```python
import torch

def _softmax(x, axis=-1):
    return torch.softmax(x, dim=axis)
def _gelu(x):
    return torch.nn.functional.gelu(x, approximate="tanh")
def _silu(x):
    return torch.nn.functional.silu(x)
def _sigmoid(x):
    return torch.sigmoid(x)
def _layernorm(x, axis=-1, eps=1e-5):
    m = x.mean(dim=axis, keepdim=True)
    v = x.var(dim=axis, keepdim=True, unbiased=False)
    return (x - m) / torch.sqrt(v + eps)
def _scatter_add(tgt, idx, src, axis=0):
    return tgt.clone().index_add_(axis, idx, src)
def _segment_sum(src, seg, n):
    out = torch.zeros((n,) + src.shape[1:], dtype=src.dtype)
    return out.index_add_(0, seg, src)
def _pad(x, pw):
    flat = tuple(v for pair in reversed(pw) for v in pair)
    return torch.nn.functional.pad(x, flat)

kernel_name = 'gated_mix__softmax_full_mha__swiglu_ffn__prompt'

def setup_inputs():

    _w = (lambda a: (lambda t: t.to(torch.bfloat16) if t.is_floating_point() else t)(torch.as_tensor(a)))
    def _A_setup():
        B, S, D = 1, 2048, 448
        return {
            "x": _w((lambda *s: torch.randn(*s, dtype=torch.bfloat16) * 0.05)(B, S, D)),
            "wqkv": _w((lambda *s: torch.randn(*s, dtype=torch.bfloat16) * 0.8)(D, 3 * D)),
            "wo": _w((lambda *s: torch.randn(*s, dtype=torch.bfloat16) * 0.05)(D, D)),
        }
    _A_in = _A_setup()

    def _B_setup():
        B, S, D, F = 1, 2048, 448, 1792
        return {
            "x": _w((lambda *s: torch.randn(*s, dtype=torch.bfloat16) * 0.05)(B, S, D)),
            "w_gate": _w((lambda *s: torch.randn(*s, dtype=torch.bfloat16) * 0.1)(D, F)),
            "w_up": _w((lambda *s: torch.randn(*s, dtype=torch.bfloat16) * 0.1)(D, F)),
            "w_down": _w((lambda *s: torch.randn(*s, dtype=torch.bfloat16) * 0.1)(F, D)),
        }
    _B_in = _B_setup()

    return {
        "A_x": _A_in["x"],
        "A_wqkv": _A_in["wqkv"],
        "A_wo": _A_in["wo"],
        "B_x": _B_in["x"],
        "B_w_gate": _B_in["w_gate"],
        "B_w_up": _B_in["w_up"],
        "B_w_down": _B_in["w_down"],
        "gate_w": _w((lambda *s: torch.randn(*s, dtype=torch.bfloat16) * 0.05)(448) * 16.0),
    }

def reference(A_x, A_wqkv, A_wo, B_x, B_w_gate, B_w_up, B_w_down, gate_w):
    def _A_ref(x, wqkv, wo):
        B, S, D = x.shape
        H = 16; Dh = D // H
        qkv = (lambda x, *d: x.permute(*d))((x @ wqkv).reshape(B, S, 3, H, Dh), 2, 0, 3, 1, 4)
        q, k, v = qkv[0], qkv[1], qkv[2]
        scale = Dh ** -0.5
        scores = torch.einsum("bhqd,bhkd->bhqk", q, k) * scale
        p = _softmax(scores, axis=-1)
        o = torch.einsum("bhqk,bhkd->bhqd", p, v)
        return (lambda x, *d: x.permute(*d))(o, 0, 2, 1, 3).reshape(B, S, D) @ wo

    def _B_ref(x, w_gate, w_up, w_down):
        g = _silu(x @ w_gate)
        u = x @ w_up
        return (g * u) @ w_down

    x = A_x
    g = _sigmoid((x * gate_w).sum(-1, keepdims=True))
    a = _A_ref(x, A_wqkv, A_wo)
    b = _B_ref(x, B_w_gate, B_w_up, B_w_down)
    return g * a + (1 - g) * b
```

```python
import math, struct, sys

NAME = "gated_mix__softmax_full_mha__swiglu_ffn__prompt"

QF = 0
KVF = 2 << 20
HF = 6 << 20
OF = 14 << 20
GF = 16 << 20
WS_BYTES = 32 << 20
OOB = 0x40000000


def f32bits(x):
    return struct.unpack("<I", struct.pack("<f", x))[0]


class Asm:
    def __init__(self):
        self.lines = []

    def __call__(self, s):
        for ln in s.strip("\n").split("\n"):
            self.lines.append("    " + ln.strip() if not ln.strip().endswith(":") else ln.strip())

    def label(self, l):
        self.lines.append(l + ":")

    def text(self):
        return "\n".join(self.lines) + "\n"


def vr(base, n):
    return f"v[{base}:{base + n - 1}]"


def srd(a, sd, sb, nbytes):
    a(f"""
    s_mov_b32 s{sd}, s{sb}
    s_mov_b32 s{sd+1}, s{sb+1}
    s_mov_b32 s{sd+2}, {nbytes}
    s_mov_b32 s{sd+3}, 0x00020000
    """)


def kernel_head(name):
    return f""".globl {name}
.p2align 8
.type {name},@function
{name}:
"""


def kernel_desc(name, vgpr, sgpr=102):
    acc = (vgpr + 3) // 4 * 4
    return f""".p2align 6
.amdhsa_kernel {name}
  .amdhsa_next_free_vgpr {vgpr}
  .amdhsa_next_free_sgpr {sgpr}
  .amdhsa_accum_offset {acc}
  .amdhsa_group_segment_fixed_size 0
  .amdhsa_kernarg_size 88
  .amdhsa_user_sgpr_count 2
  .amdhsa_user_sgpr_kernarg_segment_ptr 1
  .amdhsa_system_sgpr_workgroup_id_x 1
.end_amdhsa_kernel
"""


MFMA = "v_mfma_f32_32x32x16_bf16"

K1_BRING = 0
K1_ARING = 81920
K1_LDS = 81920 + 3 * 24576


def gen_k1():
    a = Asm()
    S_X, S_B0, S_G, S_U, S_WS = 8, 12, 16, 20, 24
    sMI, sJ, sW, sR, sGRP, sROT = 28, 29, 30, 31, 32, 33
    sPITCH, sB0STR, sT0, sT1, sT2 = 34, 35, 36, 37, 38
    sMX, sMB0, sMG = 39, 40, 41
    sKC = 42
    sOX, sOB0, sOG = 43, 44, 45
    sSC = 46
    sTILE = 47
    sHOFF = 48
    sC0, sC1 = 50, 51
    vLane, vT0, vT1, vT2, vT3 = 1, 2, 3, 4, 5
    vDX0, vDX1, vDB0, vDG, vDU = 6, 7, 8, 9, 10
    vAX = 12
    vAB0 = 16
    vAF = 17
    vST = 26
    vL16 = 30
    FR = [32, 56]
    ACC = 80
    TMP = 160
    NV = 192

    a(f"""
    s_cmp_ge_u32 s2, 256
    s_cbranch_scc1 k1_end
    s_load_dwordx4 s[52:55], s[0:1], 0
    s_load_dwordx4 s[56:59], s[0:1], 32
    s_load_dwordx2 s[60:61], s[0:1], 56
    s_load_dwordx2 s[62:63], s[0:1], 80
    v_and_b32 v{vLane}, 63, v0
    v_lshrrev_b32 v{vT0}, 6, v0
    s_and_b32 s{sT0}, s2, 7
    s_lshr_b32 s{sT1}, s2, 3
    v_readfirstlane_b32 s{sW}, v{vT0}
    s_and_b32 s{sMI}, s{sT0}, 1
    s_lshl_b32 s{sMI}, s{sMI}, 3
    s_and_b32 s{sT2}, s{sT1}, 7
    s_add_u32 s{sMI}, s{sMI}, s{sT2}
    s_lshr_b32 s{sJ}, s{sT0}, 1
    s_lshl_b32 s{sJ}, s{sJ}, 2
    s_lshr_b32 s{sT1}, s{sT1}, 3
    s_add_u32 s{sJ}, s{sJ}, s{sT1}
    s_lshl_b32 s{sT1}, s{sT1}, 1
    s_add_u32 s{sROT}, s{sT2}, s{sT1}
    s_cmp_ge_u32 s{sROT}, 7
    s_cselect_b32 s{sT0}, 7, 0
    s_sub_u32 s{sROT}, s{sROT}, s{sT0}
    s_cmp_ge_u32 s{sROT}, 7
    s_cselect_b32 s{sT0}, 7, 0
    s_sub_u32 s{sROT}, s{sROT}, s{sT0}
    s_and_b32 s{sR}, s{sW}, 3
    s_lshr_b32 s{sGRP}, s{sW}, 2
    s_lshl_b32 s{sTILE}, s{sMI}, 2
    s_add_u32 s{sTILE}, s{sTILE}, s{sR}
    """)
    a(f"""
    v_lshrrev_b32 v{vT0}, 3, v{vLane}
    v_lshrrev_b32 v{vT1}, 4, v{vLane}
    v_and_b32 v{vT2}, 7, v{vLane}
    v_xor_b32 v{vT3}, v{vT2}, v{vT1}
    s_lshl_b32 s{sT0}, s{sMI}, 7
    s_lshl_b32 s{sT1}, s{sW}, 4
    s_add_u32 s{sT0}, s{sT0}, s{sT1}
    v_add_u32 v{vDX0}, s{sT0}, v{vT0}
    v_mul_u32_u24 v{vDX0}, 896, v{vDX0}
    v_lshl_add_u32 v{vDX0}, v{vT3}, 4, v{vDX0}
    v_xor_b32 v{vDX1}, 64, v{vDX0}
    v_add_u32 v{vDX1}, 7168, v{vDX1}
    """)
    a(f"""
    s_lshl_b32 s{sMX}, s{sW}, 11
    s_add_u32 s{sMX}, s{sMX}, {K1_ARING}
    s_lshl_b32 s{sMG}, s{sW}, 10
    s_add_u32 s{sMB0}, s{sMG}, {K1_ARING + 16384}
    s_cmp_ge_u32 s{sJ}, 14
    s_cbranch_scc1 k1_setup_v
    """)
    a(f"""
    v_and_b32 v{vT3}, 1, v{vT1}
    v_lshlrev_b32 v{vT3}, 2, v{vT3}
    v_xor_b32 v{vT3}, v{vT3}, v{vT2}
    s_lshl_b32 s{sT0}, s{sW}, 3
    v_add_u32 v{vDB0}, s{sT0}, v{vT0}
    v_mul_u32_u24 v{vDB0}, 2688, v{vDB0}
    v_lshl_add_u32 v{vDB0}, v{vT3}, 4, v{vDB0}
    s_lshl_b32 s{sT0}, s{sJ}, 7
    v_add_u32 v{vDB0}, s{sT0}, v{vDB0}
    s_mov_b32 s{sPITCH}, 3584
    s_mov_b32 s{sB0STR}, {64 * 2688}
    s_lshl_b32 s{sT1}, s{sJ}, 8
    s_mov_b32 s{sT2}, s{sT1}
    s_waitcnt lgkmcnt(0)
    """)
    srd(a, S_B0, 54, 448 * 1344 * 2)
    srd(a, S_G, 56, 448 * 1792 * 2)
    srd(a, S_U, 58, 448 * 1792 * 2)
    a("s_branch k1_setup_done")
    a.label("k1_setup_v")
    a(f"""
    v_lshlrev_b32 v{vDB0}, 4, v{vT2}
    s_mov_b32 s{sPITCH}, 2688
    s_mov_b32 s{sB0STR}, 128
    s_cmp_eq_u32 s{sJ}, 14
    s_cselect_b32 s{sT1}, 0, 512
    s_add_u32 s{sT1}, s{sT1}, {896 * 2}
    s_add_u32 s{sT2}, s{sT1}, 256
    s_waitcnt lgkmcnt(0)
    """)
    srd(a, S_B0, 60, 448 * 2)
    srd(a, S_G, 54, 448 * 1344 * 2)
    srd(a, S_U, 54, 448 * 1344 * 2)
    a.label("k1_setup_done")
    srd(a, S_X, 52, 2048 * 448 * 2)
    srd(a, S_WS, 62, WS_BYTES)
    a(f"""
    v_and_b32 v{vT2}, 15, v{vLane}
    v_lshlrev_b32 v{vT3}, 2, v{vT1}
    v_xor_b32 v{vT3}, v{vT3}, v{vT2}
    s_lshl_b32 s{sT0}, s{sW}, 2
    v_add_u32 v{vDG}, s{sT0}, v{vT1}
    v_mul_lo_u32 v{vDG}, v{vDG}, s{sPITCH}
    v_xor_b32 v{vT2}, 2, v{vT3}
    v_lshl_add_u32 v{vDU}, v{vT2}, 4, v{vDG}
    v_lshl_add_u32 v{vDG}, v{vT3}, 4, v{vDG}
    v_add_u32 v{vDG}, s{sT1}, v{vDG}
    v_add_u32 v{vDU}, s{sT2}, v{vDU}
    """)

    issued = []

    def kc_of(st):
        a(f"""
        s_add_u32 s{sKC}, s{sROT}, {st}
        s_cmp_ge_u32 s{sKC}, 7
        s_cselect_b32 s{sT0}, 7, 0
        s_sub_u32 s{sKC}, s{sKC}, s{sT0}
        """)

    def dma_A(st):
        slot = st % 3
        kc_of(st)
        a(f"""
        s_add_u32 m0, s{sMX}, {slot * 24576}
        s_lshl_b32 s{sOX}, s{sKC}, 7
        buffer_load_dwordx4 v{vDX0}, s[{S_X}:{S_X+3}], s{sOX} offen lds
        s_add_u32 m0, s{sMX}, {slot * 24576 + 1024}
        s_mul_i32 s{sOB0}, s{sKC}, s{sB0STR}
        buffer_load_dwordx4 v{vDX1}, s[{S_X}:{S_X+3}], s{sOX} offen lds
        s_add_u32 m0, s{sMB0}, {slot * 24576}
        s_nop 0
        buffer_load_dwordx4 v{vDB0}, s[{S_B0}:{S_B0+3}], s{sOB0} offen lds
        """)
        issued.extend([("A", st)] * 3)

    def dma_B(hs):
        slot = hs % 5
        kc_of(hs // 2)
        a(f"""
        s_lshl_b32 s{sKC}, s{sKC}, 6
        s_add_u32 s{sKC}, s{sKC}, {32 * (hs % 2)}
        s_add_u32 m0, s{sMG}, {K1_BRING + slot * 16384}
        s_mul_i32 s{sOG}, s{sKC}, s{sPITCH}
        buffer_load_dwordx4 v{vDG}, s[{S_G}:{S_G+3}], s{sOG} offen lds
        s_add_u32 m0, s{sMG}, {K1_BRING + slot * 16384 + 8192}
        s_nop 0
        buffer_load_dwordx4 v{vDU}, s[{S_U}:{S_U+3}], s{sOG} offen lds
        """)
        issued.extend([("B", hs)] * 2)

    def wait_for(tags, iss):
        idx = max([i for i, t in enumerate(iss) if t in tags], default=-1)
        return len(iss) - 1 - idx

    dma_A(0); dma_B(0); dma_B(1); dma_A(1); dma_B(2); dma_B(3)

    a(f"""
    v_and_b32 v{vT0}, 31, v{vLane}
    v_lshrrev_b32 v{vT1}, 5, v{vLane}
    v_bfe_u32 v{vT2}, v{vLane}, 1, 3
    v_xor_b32 v{vT2}, v{vT2}, v{vT1}
    s_lshl_b32 s{sT0}, s{sR}, 12
    s_add_u32 s{sT0}, s{sT0}, {K1_ARING}
    v_lshlrev_b32 v{vT3}, 7, v{vT0}
    v_lshl_add_u32 v{vT3}, v{vT2}, 4, v{vT3}
    v_add_u32 v{vAX}, s{sT0}, v{vT3}
    v_xor_b32 v{vAX+1}, 32, v{vAX}
    v_xor_b32 v{vAX+2}, 64, v{vAX}
    v_xor_b32 v{vAX+3}, 96, v{vAX}
    v_lshlrev_b32 v{vL16}, 4, v{vLane}
    """)
    vN, vR4, vC, vRow = TMP, TMP + 1, TMP + 2, TMP + 3
    a(f"""
    v_bfe_u32 v{vN}, v{vLane}, 4, 1
    v_bfe_u32 v{vR4}, v{vLane}, 2, 2
    v_and_b32 v{vC}, 3, v{vLane}
    v_lshl_add_u32 v{vRow}, v{vT1}, 3, v{vR4}
    """)
    a(f"""
    v_lshlrev_b32 v{vT2}, 1, v{vR4}
    v_xor_b32 v{vT2}, v{vT2}, v{vN}
    s_lshl_b32 s{sT0}, s{sGRP}, 2
    v_xor_b32 v{vT2}, s{sT0}, v{vT2}
    v_lshlrev_b32 v{vT3}, 8, v{vRow}
    v_lshl_add_u32 v{vT3}, v{vN}, 13, v{vT3}
    v_lshl_add_u32 v{vT3}, v{vT2}, 5, v{vT3}
    v_lshl_add_u32 v{vAF}, v{vC}, 3, v{vT3}
    v_xor_b32 v{vAF+1}, 32, v{vAF}
    v_xor_b32 v{vAF+2}, 64, v{vAF}
    v_xor_b32 v{vAF+3}, 96, v{vAF}
    v_add_u32 v{vAF+4}, 49152, v{vAF}
    v_add_u32 v{vAF+5}, 49152, v{vAF+1}
    v_add_u32 v{vAF+6}, 49152, v{vAF+2}
    v_add_u32 v{vAF+7}, 49152, v{vAF+3}
    """)
    for i in range(80):
        a(f"v_mov_b32 v{ACC+i}, 0")
    a(f"""
    s_cmp_ge_u32 s{sJ}, 14
    s_cbranch_scc1 k1_main_v
    """)
    issued0 = list(issued)

    def main(vtype):
        nonlocal issued
        issued = list(issued0)
        if not vtype:
            a(f"""
            v_and_b32 v{vT2}, 2, v{vR4}
            v_xor_b32 v{vT2}, v{vT2}, v{vN}
            s_lshl_b32 s{sT0}, s{sGRP}, 1
            v_xor_b32 v{vT2}, s{sT0}, v{vT2}
            v_lshlrev_b32 v{vT3}, 7, v{vRow}
            v_lshl_add_u32 v{vT3}, v{vT2}, 5, v{vT3}
            v_lshl_add_u32 v{vT3}, v{vC}, 3, v{vT3}
            v_add_u32 v{vAB0}, {K1_ARING + 16384}, v{vT3}
            """)
            a(f"""
            s_cmp_ge_u32 s{sJ}, 7
            s_cselect_b32 s{sT0}, 7, 0
            s_sub_u32 s{sT0}, s{sJ}, s{sT0}
            s_lshl_b32 s{sT0}, s{sT0}, 4
            s_lshl_b32 s{sT1}, s{sGRP}, 3
            s_add_u32 s{sT0}, s{sT0}, s{sT1}
            s_cmp_ge_u32 s{sJ}, 7
            s_cselect_b32 s{sT1}, 18, 17
            s_cselect_b32 s{sT2}, 12, 11
            s_lshl_b32 s{sT2}, s{sTILE}, s{sT2}
            s_cselect_b32 s{sKC}, {KVF}, {QF}
            """)
            a.lines.pop()
            a(f"""
            s_cmp_ge_u32 s{sJ}, 7
            s_cselect_b32 s{sKC}, {KVF}, {QF}
            s_cselect_b32 s{sSC}, 1.0, {f32bits(28 ** -0.5 * math.log2(math.e)):#x}
            s_add_u32 s{sT2}, s{sT2}, s{sKC}
            v_add_u32 v{vT2}, s{sT0}, v{vT1}
            v_lshlrev_b32 v{vT0}, 4, v{vT0}
            v_add_u32 v{vT0}, s{sT2}, v{vT0}
            """)
            for q in range(4):
                t0, t1, t2 = TMP + 8, TMP + 9, TMP + 10
                a(f"""
                v_add_u32 v{t0}, {2*q}, v{vT2}
                v_mul_u32_u24 v{t1}, 147, v{t0}
                v_lshrrev_b32 v{t1}, 10, v{t1}
                v_mul_u32_u24 v{t2}, 7, v{t1}
                v_sub_u32 v{t0}, v{t0}, v{t2}
                v_lshlrev_b32 v{t1}, s{sT1}, v{t1}
                v_add_u32 v{t1}, v{t1}, v{vT0}
                v_lshrrev_b32 v{t2}, 1, v{t0}
                v_lshl_add_u32 v{t1}, v{t2}, 9, v{t1}
                v_and_b32 v{t0}, 1, v{t0}
                v_lshl_add_u32 v{vST+q}, v{t0}, 3, v{t1}
                """)
        else:
            a(f"""
            v_lshlrev_b32 v{vT3}, 4, v{vT1}
            v_add_u32 v{vAB0}, s{sMB0}, v{vT3}
            """)
            a(f"""
            s_cmp_eq_u32 s{sJ}, 14
            s_cselect_b32 s{sT0}, 0, 256
            s_lshl_b32 s{sT1}, s{sGRP}, 6
            s_add_u32 s{sT0}, s{sT0}, s{sT1}
            v_mul_u32_u24 v{vT2}, 112, v{vN}
            v_add3_u32 v{vT2}, v{vT2}, v{vT0}, s{sT0}
            s_lshl_b32 s{sT2}, s{sTILE}, 12
            s_add_u32 s{sT2}, s{sT2}, {KVF + 2048}
            v_lshlrev_b32 v{vT3}, 9, v{vT1}
            v_add_u32 v{vT3}, s{sT2}, v{vT3}
            v_mov_b32 v{TMP+11}, {OOB}
            """)
            for tt in range(4):
                t0, t1, t2 = TMP + 8, TMP + 9, TMP + 10
                a(f"""
                v_add_u32 v{t0}, {16*tt}, v{vT2}
                v_mul_u32_u24 v{t1}, 2341, v{t0}
                v_lshrrev_b32 v{t1}, 16, v{t1}
                v_mul_u32_u24 v{t2}, 28, v{t1}
                v_sub_u32 v{t2}, v{t0}, v{t2}
                v_lshl_add_u32 v{t1}, v{t1}, 18, v{vT3}
                v_lshl_add_u32 v{t1}, v{t2}, 4, v{t1}
                v_cmp_gt_u32 vcc, 448, v{t0}
                s_nop 1
                v_cndmask_b32 v{vST+tt}, v{TMP+11}, v{t1}, vcc
                """)

        def reads(ks):
            st, s = ks // 4, ks % 4
            hs, s2 = ks // 2, ks % 2
            f = FR[ks % 2]
            aoff = (st % 3) * 24576
            out = [f"ds_read_b128 {vr(f, 4)}, v{vAX+s} offset:{aoff}"]
            if not vtype:
                for q in range(2):
                    out.append(f"ds_read_b64_tr_b16 {vr(f+4+2*q, 2)}, v{vAB0} offset:{aoff + (16*s + 4*q) * 128}")
            else:
                out.append(f"ds_read_b128 {vr(f+4, 4)}, v{vAB0} offset:{aoff + 32*s}")
            slot = hs % 5
            for tt in range(4):
                if slot < 3:
                    ar, boff = vAF + tt, slot * 16384
                else:
                    ar, boff = vAF + 4 + tt, (slot - 3) * 16384
                for q in range(2):
                    out.append(f"ds_read_b64_tr_b16 {vr(f+8+4*tt+2*q, 2)}, v{ar} offset:{boff + (16*s2 + 4*q) * 256}")
            return out

        def mfmas(ks):
            f = FR[ks % 2]
            out = []
            for t in range(5):
                w, x = vr(f + 4 + 4 * t, 4), vr(f, 4)
                c = vr(ACC + 16 * t, 16)
                if vtype and t > 0:
                    out.append(f"{MFMA} {c}, {x}, {w}, {c}")
                else:
                    out.append(f"{MFMA} {c}, {w}, {x}, {c}")
            return out

        n = wait_for({("A", 0), ("B", 0)}, issued)
        a(f"s_waitcnt vmcnt({n})\ns_barrier")
        for r in reads(0):
            a(r)
        for hs in range(14):
            if hs + 1 < 14:
                n = wait_for({("A", (hs + 1) // 2), ("B", hs + 1)}, issued)
                a(f"s_waitcnt vmcnt({n})\ns_barrier")
            for s2 in range(2):
                ks = 2 * hs + s2
                m = mfmas(ks)
                r = reads(ks + 1) if ks + 1 < 28 else []
                a("s_waitcnt lgkmcnt(0)")
                a(m[0])
                for x in r[:6]:
                    a(x)
                a(m[1])
                for x in r[6:]:
                    a(x)
                a(m[2])
                if s2 == 0:
                    if hs + 4 < 14:
                        dma_B(hs + 4)
                else:
                    pass
                a(m[3])
                if s2 == 0 and hs % 2 == 0 and hs // 2 + 2 < 7:
                    dma_A(hs // 2 + 2)
                a(m[4])
        a("s_nop 7\ns_nop 7")

    main(False)
    a(f"""
    s_mov_b32 s{sC0}, {f32bits(-math.log2(math.e)):#x}
    s_mov_b32 s{sC1}, s{sC0}
    s_mul_i32 s{sHOFF}, s{sTILE}, 112
    s_lshl_b32 s{sT0}, s{sJ}, 3
    s_add_u32 s{sHOFF}, s{sHOFF}, s{sT0}
    s_lshl_b32 s{sT0}, s{sGRP}, 2
    s_add_u32 s{sHOFF}, s{sHOFF}, s{sT0}
    s_lshl_b32 s{sHOFF}, s{sHOFF}, 10
    s_add_u32 s{sHOFF}, s{sHOFF}, {HF}
    """)
    for i in range(16):
        a(f"v_mul_f32 v{ACC+i}, s{sSC}, v{ACC+i}")
    for q in range(4):
        a(f"""
        v_cvt_pk_bf16_f32 v{TMP+2*q}, v{ACC+4*q}, v{ACC+4*q+1}
        v_cvt_pk_bf16_f32 v{TMP+2*q+1}, v{ACC+4*q+2}, v{ACC+4*q+3}
        buffer_store_dwordx2 {vr(TMP+2*q, 2)}, v{vST+q}, s[{S_WS}:{S_WS+3}], 0 offen
        """)
    for tt in range(4):
        g = ACC + 16 * (tt + 1)
        u = g + 8
        t = TMP + 8 + (tt % 2) * 12
        for i in range(0, 8, 2):
            a(f"v_pk_mul_f32 {vr(t+i, 2)}, {vr(g+i, 2)}, s[{sC0}:{sC1}]")
        for i in range(8):
            a(f"v_exp_f32 v{t+i}, v{t+i}")
        for i in range(0, 8, 2):
            a(f"v_pk_mul_f32 {vr(g+i, 2)}, {vr(g+i, 2)}, {vr(u+i, 2)}")
        for i in range(0, 8, 2):
            a(f"v_pk_add_f32 {vr(t+i, 2)}, {vr(t+i, 2)}, 1.0 op_sel_hi:[1,0]")
        for i in range(8):
            a(f"v_rcp_f32 v{t+i}, v{t+i}")
        a("s_nop 0")
        for i in range(0, 8, 2):
            a(f"v_pk_mul_f32 {vr(g+i, 2)}, {vr(g+i, 2)}, {vr(t+i, 2)}")
        for i in range(4):
            a(f"v_cvt_pk_bf16_f32 v{t+8+i}, v{g+2*i}, v{g+2*i+1}")
        a(f"buffer_store_dwordx4 {vr(t+8, 4)}, v{vL16}, s[{S_WS}:{S_WS+3}], s{sHOFF} offen offset:{1024*tt}")
    a("s_endpgm")

    a.label("k1_main_v")
    main(True)
    for tt in range(4):
        c = ACC + 16 * (tt + 1)
        t = TMP + (tt % 2) * 8
        for i in range(8):
            a(f"v_cvt_pk_bf16_f32 v{t+i}, v{c+2*i}, v{c+2*i+1}")
        a(f"""
        buffer_store_dwordx4 {vr(t, 4)}, v{vST+tt}, s[{S_WS}:{S_WS+3}], 0 offen
        buffer_store_dwordx4 {vr(t+4, 4)}, v{vST+tt}, s[{S_WS}:{S_WS+3}], 0 offen offset:1024
        """)
    t = TMP + 16
    a(f"""
    s_cmp_eq_u32 s{sJ}, 14
    s_cbranch_scc1 k1_v_kpad
    v_mul_f32 v{t}, {f32bits(-math.log2(math.e)):#x}, v{ACC}
    v_exp_f32 v{t}, v{t}
    v_and_b32 v{t+1}, 31, v{vLane}
    v_add_f32 v{t}, 1.0, v{t}
    v_rcp_f32 v{t}, v{t}
    v_lshlrev_b32 v{t+1}, 2, v{t+1}
    s_lshl_b32 s{sT0}, s{sTILE}, 7
    s_add_u32 s{sT0}, s{sT0}, {GF}
    buffer_store_dword v{t}, v{t+1}, s[{S_WS}:{S_WS+3}], s{sT0} offen
    """)
    a(f"""
    v_bfe_u32 v{t}, v{vLane}, 4, 1
    v_lshlrev_b32 v{t}, 18, v{t}
    v_bfe_u32 v{t+1}, v{vLane}, 2, 2
    v_lshl_add_u32 v{t}, v{t+1}, 12, v{t}
    v_and_b32 v{t+1}, 3, v{vLane}
    v_lshl_add_u32 v{t}, v{t+1}, 9, v{t}
    s_lshl_b32 s{sT0}, s{sW}, 19
    s_lshl_b32 s{sT1}, s{sMI}, 14
    s_add_u32 s{sT0}, s{sT0}, s{sT1}
    s_add_u32 s{sT0}, s{sT0}, {KVF + 2048 + 28 * 16}
    v_mov_b32 v{t+4}, 0x3f803f80
    v_mov_b32 v{t+5}, 0x3f803f80
    v_mov_b32 v{t+6}, 0x3f803f80
    v_mov_b32 v{t+7}, 0x3f803f80
    buffer_store_dwordx4 {vr(t+4, 4)}, v{t}, s[{S_WS}:{S_WS+3}], s{sT0} offen
    s_endpgm
    """)
    a.label("k1_v_kpad")
    a(f"""
    v_and_b32 v{t}, 31, v{vLane}
    v_lshlrev_b32 v{t}, 4, v{t}
    v_lshrrev_b32 v{t+1}, 5, v{vLane}
    v_lshl_add_u32 v{t}, v{t+1}, 12, v{t}
    s_lshl_b32 s{sT0}, s{sW}, 19
    s_lshl_b32 s{sT1}, s{sMI}, 14
    s_add_u32 s{sT0}, s{sT0}, s{sT1}
    s_add_u32 s{sT0}, s{sT0}, {KVF + 1024 + 512 + 8}
    v_mov_b32 v{t+4}, 0x3f803f80
    v_mov_b32 v{t+5}, 0
    s_add_u32 s{sT1}, s{sT0}, 8192
    s_add_u32 s{sT2}, s{sT0}, {1 << 18}
    s_add_u32 s{sKC}, s{sT2}, 8192
    buffer_store_dwordx2 {vr(t+4, 2)}, v{t}, s[{S_WS}:{S_WS+3}], s{sT0} offen
    buffer_store_dwordx2 {vr(t+4, 2)}, v{t}, s[{S_WS}:{S_WS+3}], s{sT1} offen
    buffer_store_dwordx2 {vr(t+4, 2)}, v{t}, s[{S_WS}:{S_WS+3}], s{sT2} offen
    buffer_store_dwordx2 {vr(t+4, 2)}, v{t}, s[{S_WS}:{S_WS+3}], s{sKC} offen
    """)
    a.label("k1_end")
    a("s_endpgm")
    return a.text(), NV


K2_NS = 8
K2_LDS = K2_NS * 16384


def gen_k2():
    a = Asm()
    S_WS = 8
    sHEAD, sQB, sW, sQT, sKH, sT0, sT1, sT2 = 12, 13, 14, 15, 16, 17, 18, 19
    sM0, sSRC, sST, sOFF, sIT, sKV = 20, 21, 22, 23, 24, 25
    vLane, vL16, vT0, vT1, vT2, vT3 = 1, 2, 3, 4, 5, 6
    vCur, vNxt, vG = 7, 8, 9
    vM = 10
    Q = 12
    K = 20
    V = 28
    P = 36
    O = 48
    S = [64, 80]
    TMP = 96
    NV = 128
    a(f"""
    s_cmp_ge_u32 s2, 256
    s_cbranch_scc1 k2_end
    s_load_dwordx2 s[4:5], s[0:1], 80
    v_and_b32 v{vLane}, 63, v0
    v_lshrrev_b32 v{vT0}, 6, v0
    s_and_b32 s{sT0}, s2, 7
    s_lshr_b32 s{sT1}, s2, 3
    v_readfirstlane_b32 s{sW}, v{vT0}
    s_lshl_b32 s{sHEAD}, s{sT0}, 1
    s_and_b32 s{sT2}, s{sT1}, 1
    s_add_u32 s{sHEAD}, s{sHEAD}, s{sT2}
    s_lshr_b32 s{sQB}, s{sT1}, 1
    v_lshlrev_b32 v{vL16}, 4, v{vLane}
    s_and_b32 s{sQT}, s{sW}, 3
    s_lshr_b32 s{sKH}, s{sW}, 2
    s_lshl_b32 s{sT0}, s{sQB}, 2
    s_add_u32 s{sQT}, s{sQT}, s{sT0}
    s_lshl_b32 s{sKV}, s{sHEAD}, 18
    s_add_u32 s{sKV}, s{sKV}, {KVF}
    """)
    a(f"""
    s_lshl_b32 s{sM0}, s{sW}, 11
    s_lshl_b32 s{sSRC}, s{sKH}, 17
    s_and_b32 s{sT0}, s{sW}, 3
    s_lshl_b32 s{sT0}, s{sT0}, 11
    s_add_u32 s{sSRC}, s{sSRC}, s{sT0}
    s_add_u32 s{sSRC}, s{sSRC}, s{sKV}
    s_waitcnt lgkmcnt(0)
    """)
    srd(a, S_WS, 4, WS_BYTES)
    a(f"""
    s_lshl_b32 s{sT0}, s{sHEAD}, 6
    s_add_u32 s{sT0}, s{sT0}, s{sQT}
    s_lshl_b32 s{sT0}, s{sT0}, 11
    s_add_u32 s{sT0}, s{sT0}, {QF}
    buffer_load_dwordx4 {vr(Q, 4)}, v{vL16}, s[{S_WS}:{S_WS+3}], s{sT0} offen
    buffer_load_dwordx4 {vr(Q+4, 4)}, v{vL16}, s[{S_WS}:{S_WS+3}], s{sT0} offen offset:1024
    v_and_b32 v{vT0}, 31, v{vLane}
    v_lshlrev_b32 v{vT0}, 2, v{vT0}
    s_lshl_b32 s{sT1}, s{sQT}, 7
    s_add_u32 s{sT1}, s{sT1}, {GF}
    buffer_load_dword v{vG}, v{vT0}, s[{S_WS}:{S_WS+3}], s{sT1} offen
    """)
    PRE = K2_NS - 2
    for s in range(PRE):
        a(f"""
        s_add_u32 s{sT0}, s{sQB}, {s}
        s_and_b32 s{sT0}, s{sT0}, 15
        s_lshl_b32 s{sT0}, s{sT0}, 13
        s_add_u32 m0, s{sM0}, {s * 16384}
        s_add_u32 s{sT0}, s{sT0}, s{sSRC}
        buffer_load_dwordx4 v{vL16}, s[{S_WS}:{S_WS+3}], s{sT0} offen lds
        buffer_load_dwordx4 v{vL16}, s[{S_WS}:{S_WS+3}], s{sT0} offen offset:1024 lds
        """)
    a(f"""
    s_lshl_b32 s{sT0}, s{sKH}, 13
    v_add_u32 v{vCur}, s{sT0}, v{vL16}
    v_add_u32 v{vNxt}, 16384, v{vCur}
    v_cmp_lt_u32 vcc, 31, v{vLane}
    """)
    for i in range(16):
        a(f"v_mov_b32 v{O+i}, 0")
    a(f"""
    s_waitcnt vmcnt({2 * (PRE - 1)})
    s_barrier
    ds_read_b128 {vr(K, 4)}, v{vL16}
    ds_read_b128 {vr(K+4, 4)}, v{vL16} offset:1024
    v_mov_b32 v{vT0}, 0
    v_cndmask_b32 v{Q+6}, v{Q+6}, v{vT0}, vcc
    v_cndmask_b32 v{Q+7}, v{Q+7}, v{vT0}, vcc
    s_waitcnt lgkmcnt(0)
    {MFMA} {vr(S[0], 16)}, {vr(K, 4)}, {vr(Q, 4)}, 0
    {MFMA} {vr(S[0], 16)}, {vr(K+4, 4)}, {vr(Q+4, 4)}, {vr(S[0], 16)}
    ds_read_b128 {vr(K, 4)}, v{vCur}
    ds_read_b128 {vr(K+4, 4)}, v{vCur} offset:1024
    ds_read_b128 {vr(V, 4)}, v{vCur} offset:2048
    s_nop 15
    """)
    s0 = S[0]
    a(f"v_max3_f32 v{vM}, v{s0}, v{s0+1}, v{s0+2}")
    for i in range(3, 15, 2):
        a(f"v_max3_f32 v{vM}, v{vM}, v{s0+i}, v{s0+i+1}")
    a(f"""
    v_max_f32 v{vM}, v{vM}, v{s0+15}
    v_mov_b32 v{vT0}, v{vM}
    s_nop 1
    v_permlane32_swap_b32 v{vM}, v{vT0}
    v_max_f32 v{vM}, v{vM}, v{vT0}
    v_sub_f32 v{vM}, 0, v{vM}
    v_cvt_pk_bf16_f32 v{vT0}, v{vM}, v{vM}
    v_lshlrev_b32 v{vT0}, 16, v{vT0}
    v_sub_f32 v{vT0}, v{vM}, v{vT0}
    v_cvt_pk_bf16_f32 v{vT0}, v{vM}, v{vT0}
    v_cndmask_b32 v{Q+6}, v{Q+6}, v{vT0}, vcc
    s_waitcnt lgkmcnt(1)
    s_nop 0
    {MFMA} {vr(S[0], 16)}, {vr(K, 4)}, {vr(Q, 4)}, 0
    {MFMA} {vr(S[0], 16)}, {vr(K+4, 4)}, {vr(Q+4, 4)}, {vr(S[0], 16)}
    ds_read_b128 {vr(K, 4)}, v{vCur} offset:4096
    ds_read_b128 {vr(K+4, 4)}, v{vCur} offset:5120
    """)
    for i in range(4):
        a(f"v_mov_b32 v{P+4+i}, 0\nv_mov_b32 v{V+4+i}, 0")
    a(f"""
    s_mov_b32 s{sST}, {PRE}
    s_nop 7
    """)
    a.label("k2_loop")
    a(f"""
    s_waitcnt vmcnt({2 * (PRE - 2)})
    s_barrier
    s_add_u32 s{sT0}, s{sQB}, s{sST}
    s_and_b32 s{sT0}, s{sT0}, 15
    s_lshl_b32 s{sT0}, s{sT0}, 13
    s_add_u32 s{sT0}, s{sT0}, s{sSRC}
    s_cmp_lt_u32 s{sST}, 16
    s_cselect_b32 s{sT0}, s{sT0}, {OOB}
    s_and_b32 s{sT1}, s{sST}, {K2_NS - 1}
    s_lshl_b32 s{sT1}, s{sT1}, 14
    s_add_u32 m0, s{sT1}, s{sM0}
    """)

    def phase(par):
        sc, sn = S[par], S[1 - par]
        e = [f"v_exp_f32 v{sc+i}, v{sc+i}" for i in range(16)]
        c = [f"v_cvt_pk_bf16_f32 v{P+i}, v{sc+2*i}, v{sc+2*i+1}" for i in range(8)]
        a(f"{MFMA} {vr(O, 16)}, {vr(V+4, 4)}, {vr(P+4, 4)}, {vr(O, 16)}")
        a(f"ds_read_b128 {vr(V+4, 4)}, v{vCur} offset:{par*4096 + 3072}")
        if par == 0:
            a(f"buffer_load_dwordx4 v{vL16}, s[{S_WS}:{S_WS+3}], s{sT0} offen lds")
        for x in e[0:3]:
            a(x)
        a("s_waitcnt lgkmcnt(1)")
        a(f"{MFMA} {vr(sn, 16)}, {vr(K, 4)}, {vr(Q, 4)}, 0")
        if par == 0:
            a(f"buffer_load_dwordx4 v{vL16}, s[{S_WS}:{S_WS+3}], s{sT0} offen offset:1024 lds")
        for x in e[3:7]:
            a(x)
        a(f"{MFMA} {vr(sn, 16)}, {vr(K+4, 4)}, {vr(Q+4, 4)}, {vr(sn, 16)}")
        a(e[7])
        a(e[8])
        for x in c[0:4]:
            a(x)
        a(e[9])
        a(e[10])
        a(f"{MFMA} {vr(O, 16)}, {vr(V, 4)}, {vr(P, 4)}, {vr(O, 16)}")
        if par == 0:
            a(f"ds_read_b128 {vr(V, 4)}, v{vCur} offset:{4096 + 2048}")
        else:
            a(f"ds_read_b128 {vr(V, 4)}, v{vNxt} offset:2048")
        a(f"ds_read_b128 {vr(K, 4)}, v{vNxt} offset:{par*4096}")
        a(f"ds_read_b128 {vr(K+4, 4)}, v{vNxt} offset:{par*4096 + 1024}")
        for x in e[11:16]:
            a(x)
        a(c[4]); a(c[5]); a(c[6]); a(c[7])
        a("s_waitcnt lgkmcnt(3)")
        if par == 1:
            a(f"v_mov_b32 v{vCur}, v{vNxt}")
            a(f"v_add_u32 v{vNxt}, 16384, v{vNxt}")
            a(f"v_and_b32 v{vNxt}, {K2_LDS - 1}, v{vNxt}")
        else:
            a("s_nop 0")

    phase(0)
    phase(1)
    a(f"""
    s_add_u32 s{sST}, s{sST}, 1
    s_cmp_lt_u32 s{sST}, {16 + PRE}
    s_cbranch_scc1 k2_loop
    {MFMA} {vr(O, 16)}, {vr(V+4, 4)}, {vr(P+4, 4)}, {vr(O, 16)}
    s_waitcnt vmcnt(0) lgkmcnt(0)
    s_barrier
    s_and_b32 s{sT0}, s{sW}, 3
    s_lshl_b32 s{sT0}, s{sT0}, 12
    v_add_u32 v{vT0}, s{sT0}, v{vL16}
    s_nop 7
    s_cmp_eq_u32 s{sKH}, 0
    s_cbranch_scc1 k2_merge
    """)
    for q in range(4):
        a(f"ds_write_b128 v{vT0}, {vr(O+4*q, 4)} offset:{1024*q}")
    a("""
    s_waitcnt lgkmcnt(0)
    s_barrier
    s_endpgm
    """)
    a.label("k2_merge")
    a("s_barrier")
    for q in range(4):
        a(f"ds_read_b128 {vr(S[0]+4*q, 4)}, v{vT0} offset:{1024*q}")
    a("s_waitcnt lgkmcnt(0)")
    for i in range(16):
        a(f"v_add_f32 v{O+i}, v{O+i}, v{S[0]+i}")
    a(f"""
    v_mov_b32 v{vT0}, v{O+12}
    v_mov_b32 v{vT1}, v{O+12}
    s_nop 1
    v_permlane32_swap_b32 v{vT0}, v{vT1}
    """)
    a(f"v_cmp_lt_u32 vcc, 31, v{vLane}")
    a(f"v_mul_f32 v{vT2}, 0, v{O}")
    for i in range(1, 12):
        a(f"v_fma_f32 v{vT2}, v{O+i}, 0, v{vT2}")
    a(f"v_mul_f32 v{vT3}, 0, v{O+12}")
    for i in range(13, 16):
        a(f"v_fma_f32 v{vT3}, v{O+i}, 0, v{vT3}")
    a(f"""
    v_cndmask_b32 v{vT3}, v{vT3}, v{vT2}, vcc
    v_add_f32 v{vT2}, v{vT2}, v{vT3}
    v_add_f32 v{vT2}, v{vT2}, v{vT1}
    s_mov_b32 s{sT0}, {f32bits(2.0**-10):#x}
    s_mov_b32 s{sT1}, {f32bits(2.0**100):#x}
    v_cmp_le_f32 s[26:27], s{sT0}, v{vT2}
    v_cmp_ge_f32 vcc, s{sT1}, v{vT2}
    s_and_b64 s[26:27], s[26:27], vcc
    s_cmp_eq_u64 s[26:27], -1
    s_cbranch_scc0 k2_fallback
    """)
    a.label("k2_final")
    a(f"""
    v_rcp_f32 v{vT1}, v{vT1}
    v_lshrrev_b32 v{vT2}, 5, v{vLane}
    s_mul_i32 s{sT0}, s{sHEAD}, 7
    v_mul_f32 v{vT1}, v{vT1}, v{vG}
    v_add_u32 v{vT2}, s{sT0}, v{vT2}
    v_and_b32 v{vT3}, 31, v{vLane}
    v_lshlrev_b32 v{vT3}, 4, v{vT3}
    s_mul_i32 s{sT1}, s{sQT}, {28 * 1024}
    s_add_u32 s{sT1}, s{sT1}, {OF}
    v_cmp_lt_u32 vcc, 31, v{vLane}
    v_mov_b32 v{TMP+15}, {OOB}
    """)
    for i in range(16):
        a(f"v_mul_f32 v{O+i}, v{O+i}, v{vT1}")
    for q in range(4):
        t0, t1, t2 = TMP + 8, TMP + 9, TMP + 10 + q
        a(f"""
        v_cvt_pk_bf16_f32 v{TMP+2*q}, v{O+4*q}, v{O+4*q+1}
        v_cvt_pk_bf16_f32 v{TMP+2*q+1}, v{O+4*q+2}, v{O+4*q+3}
        v_add_u32 v{t0}, {2*q}, v{vT2}
        v_lshrrev_b32 v{t1}, 2, v{t0}
        v_lshl_add_u32 v{t2}, v{t1}, 10, v{vT3}
        v_and_b32 v{t1}, 1, v{t0}
        v_lshl_add_u32 v{t2}, v{t1}, 9, v{t2}
        v_bfe_u32 v{t1}, v{t0}, 1, 1
        v_lshl_add_u32 v{t2}, v{t1}, 3, v{t2}
        """)
        if q == 3:
            a(f"v_cndmask_b32 v{t2}, v{t2}, v{TMP+15}, vcc")
        a(f"buffer_store_dwordx2 {vr(TMP+2*q, 2)}, v{t2}, s[{S_WS}:{S_WS+3}], s{sT1} offen")
    a("s_endpgm")

    a.label("k2_fallback")
    sc = S[0]
    vMo, vMn, vAl = TMP, TMP + 1, TMP + 2
    a(f"""
    v_cmp_lt_u32 vcc, 31, v{vLane}
    v_mov_b32 v{vT0}, 0
    v_mov_b32 v{vMo}, 0xff800000
    v_cndmask_b32 v{Q+6}, v{Q+6}, v{vT0}, vcc
    s_mov_b32 s{sIT}, 0
    s_mov_b32 s{sOFF}, s{sKV}
    """)
    for i in range(16):
        a(f"v_mov_b32 v{O+i}, 0")
    a.label("k2_fb_loop")
    a(f"""
    buffer_load_dwordx4 {vr(K, 4)}, v{vL16}, s[{S_WS}:{S_WS+3}], s{sOFF} offen
    buffer_load_dwordx4 {vr(K+4, 4)}, v{vL16}, s[{S_WS}:{S_WS+3}], s{sOFF} offen offset:1024
    buffer_load_dwordx4 {vr(V, 4)}, v{vL16}, s[{S_WS}:{S_WS+3}], s{sOFF} offen offset:2048
    buffer_load_dwordx4 {vr(V+4, 4)}, v{vL16}, s[{S_WS}:{S_WS+3}], s{sOFF} offen offset:3072
    s_waitcnt vmcnt(0)
    {MFMA} {vr(sc, 16)}, {vr(K, 4)}, {vr(Q, 4)}, 0
    {MFMA} {vr(sc, 16)}, {vr(K+4, 4)}, {vr(Q+4, 4)}, {vr(sc, 16)}
    s_nop 15
    v_max3_f32 v{vMn}, v{vMo}, v{sc}, v{sc+1}
    """)
    for i in range(2, 16, 2):
        a(f"v_max3_f32 v{vMn}, v{vMn}, v{sc+i}, v{sc+i+1}")
    a(f"""
    v_mov_b32 v{vT0}, v{vMn}
    s_nop 1
    v_permlane32_swap_b32 v{vMn}, v{vT0}
    v_max_f32 v{vMn}, v{vMn}, v{vT0}
    v_sub_f32 v{vAl}, v{vMo}, v{vMn}
    v_exp_f32 v{vAl}, v{vAl}
    v_mov_b32 v{vMo}, v{vMn}
    """)
    for i in range(16):
        a(f"v_sub_f32 v{sc+i}, v{sc+i}, v{vMn}")
    for i in range(16):
        a(f"v_exp_f32 v{sc+i}, v{sc+i}")
    for i in range(16):
        a(f"v_mul_f32 v{O+i}, v{O+i}, v{vAl}")
    for i in range(8):
        a(f"v_cvt_pk_bf16_f32 v{P+i}, v{sc+2*i}, v{sc+2*i+1}")
    a(f"""
    s_nop 1
    {MFMA} {vr(O, 16)}, {vr(V, 4)}, {vr(P, 4)}, {vr(O, 16)}
    {MFMA} {vr(O, 16)}, {vr(V+4, 4)}, {vr(P+4, 4)}, {vr(O, 16)}
    s_add_u32 s{sOFF}, s{sOFF}, 4096
    s_add_u32 s{sIT}, s{sIT}, 1
    s_cmp_lt_u32 s{sIT}, 64
    s_cbranch_scc1 k2_fb_loop
    s_nop 15
    v_mov_b32 v{vT0}, v{O+12}
    v_mov_b32 v{vT1}, v{O+12}
    s_nop 1
    v_permlane32_swap_b32 v{vT0}, v{vT1}
    s_branch k2_final
    """)
    a.label("k2_end")
    a("s_endpgm")
    return a.text(), NV


K3_D = 7
K3_LDS = 65536


def gen_k3():
    a = Asm()
    S_WS, S_W, S_OUT, S_WD, S_WO = 8, 12, 16, 20, 24
    sMT, sNT, sW, sT0, sT1, sT2 = 28, 29, 30, 31, 32, 33
    sA, sASTR, sB, sIT, sM0, sNIT, sSW = 34, 35, 36, 37, 38, 39, 40
    sAO, sBO = 41, 42
    vLane, vL16, vT0, vT1, vT2, vT3 = 1, 2, 3, 4, 5, 6
    vDW, vAW, vG0, vG1, vA1 = 7, 8, 10, 11, 12
    ACT = 16
    WF = [72, 80]
    ACC = 96
    TMP = 160
    NV = 208
    a(f"""
    s_cmp_ge_u32 s2, 224
    s_cbranch_scc1 k3_end
    s_load_dwordx2 s[52:53], s[0:1], 16
    s_load_dwordx2 s[54:55], s[0:1], 48
    s_load_dwordx2 s[56:57], s[0:1], 64
    s_load_dwordx2 s[58:59], s[0:1], 80
    v_and_b32 v{vLane}, 63, v0
    v_lshrrev_b32 v{vT0}, 6, v0
    s_and_b32 s{sT0}, s2, 7
    s_lshr_b32 s{sT1}, s2, 3
    v_readfirstlane_b32 s{sW}, v{vT0}
    s_lshl_b32 s{sMT}, s{sT0}, 2
    s_and_b32 s{sT2}, s{sT1}, 3
    s_add_u32 s{sMT}, s{sMT}, s{sT2}
    s_lshr_b32 s{sNT}, s{sT1}, 2
    v_lshlrev_b32 v{vL16}, 4, v{vLane}
    """)
    a(f"""
    v_lshrrev_b32 v{vT0}, 3, v{vLane}
    v_bfe_u32 v{vT1}, v{vLane}, 4, 1
    v_lshlrev_b32 v{vT1}, 2, v{vT1}
    v_and_b32 v{vT2}, 7, v{vLane}
    v_xor_b32 v{vT1}, v{vT1}, v{vT2}
    v_mul_u32_u24 v{vDW}, 896, v{vT0}
    v_lshl_add_u32 v{vDW}, v{vT1}, 4, v{vDW}
    s_lshl_b32 s{sT0}, s{sNT}, 7
    v_add_u32 v{vDW}, s{sT0}, v{vDW}
    s_mul_i32 s{sM0}, s{sW}, {K3_D * 2048}
    """)
    a(f"""
    s_mul_i32 s{sT0}, s{sW}, 35
    s_sub_u32 s{sT0}, s{sT0}, 28
    s_cmp_eq_u32 s{sW}, 0
    s_cselect_b32 s{sT0}, 0, s{sT0}
    s_cselect_b32 s{sSW}, 1, 100
    s_mul_i32 s{sA}, s{sMT}, 224
    s_add_u32 s{sA}, s{sA}, s{sT0}
    s_lshl_b32 s{sA}, s{sA}, 10
    s_add_u32 s{sA}, s{sA}, {HF}
    s_mul_i32 s{sB}, s{sT0}, {16 * 896}
    v_add_u32 v{vA1}, {112 * 1024}, v{vL16}
    s_waitcnt lgkmcnt(0)
    """)
    srd(a, S_WS, 58, WS_BYTES)
    srd(a, S_W, 54, 1792 * 448 * 2)
    srd(a, S_OUT, 56, 2048 * 448 * 2)

    def loads(i):
        a(f"""
        s_add_u32 s{sAO}, s{sA}, {i * 1024}
        s_add_u32 m0, s{sM0}, {i * 2048}
        s_add_u32 s{sBO}, s{sB}, {i * 16 * 896}
        buffer_load_dwordx4 {vr(ACT+8*i, 4)}, v{vL16}, s[{S_WS}:{S_WS+3}], s{sAO} offen
        buffer_load_dwordx4 v{vDW}, s[{S_W}:{S_W+3}], s{sBO} offen lds
        s_add_u32 m0, s{sM0}, {i * 2048 + 1024}
        s_add_u32 s{sBO}, s{sBO}, {8 * 896}
        buffer_load_dwordx4 {vr(ACT+8*i+4, 4)}, v{vA1}, s[{S_WS}:{S_WS+3}], s{sAO} offen
        buffer_load_dwordx4 v{vDW}, s[{S_W}:{S_W+3}], s{sBO} offen lds
        """)

    a(f"""
    v_and_b32 v{vT0}, 31, v{vLane}
    v_lshlrev_b32 v{vT0}, 2, v{vT0}
    s_lshl_b32 s{sT1}, s{sMT}, 8
    s_add_u32 s{sT1}, s{sT1}, {GF}
    buffer_load_dword v{vG0}, v{vT0}, s[{S_WS}:{S_WS+3}], s{sT1} offen
    buffer_load_dword v{vG1}, v{vT0}, s[{S_WS}:{S_WS+3}], s{sT1} offen offset:128
    """)
    for i in range(K3_D):
        loads(i)
    a(f"""
    v_bfe_u32 v{vT0}, v{vLane}, 4, 1
    v_bfe_u32 v{vT1}, v{vLane}, 2, 2
    v_and_b32 v{vT2}, 2, v{vT1}
    v_xor_b32 v{vT2}, v{vT2}, v{vT0}
    v_lshrrev_b32 v{vT3}, 5, v{vLane}
    v_lshl_add_u32 v{vT3}, v{vT3}, 2, v{vT1}
    v_lshlrev_b32 v{vT3}, 7, v{vT3}
    v_lshl_add_u32 v{vT3}, v{vT2}, 5, v{vT3}
    v_and_b32 v{vT2}, 3, v{vLane}
    v_lshl_add_u32 v{vT3}, v{vT2}, 3, v{vT3}
    v_add_u32 v{vAW}, s{sM0}, v{vT3}
    v_xor_b32 v{vAW+1}, 64, v{vAW}
    s_mov_b32 s{sIT}, 0
    """)
    for i in range(64):
        a(f"v_mov_b32 v{ACC+i}, 0")

    def wreads(i, buf):
        for T in range(2):
            for q in range(2):
                a(f"ds_read_b64_tr_b16 {vr(WF[buf]+4*T+2*q, 2)}, v{vAW+T} offset:{i*2048 + q*1024}")

    a.label("k3_loop")
    a(f"""
    s_add_u32 s{sIT}, s{sIT}, 1
    s_add_u32 s{sA}, s{sA}, {K3_D * 1024}
    s_add_u32 s{sB}, s{sB}, {K3_D * 16 * 896}
    s_cmp_eq_u32 s{sIT}, s{sSW}
    s_cbranch_scc0 k3_noswitch
    s_mul_i32 s{sA}, s{sMT}, {56 * 1024}
    s_add_u32 s{sA}, s{sA}, {OF}
    s_mov_b32 s{sB}, 0
    s_mov_b32 s{S_W}, s52
    s_mov_b32 s{S_W+1}, s53
    s_mov_b32 s{S_W+2}, {448 * 448 * 2}
    v_add_u32 v{vA1}, {28 * 1024}, v{vL16}
    """)
    a.label("k3_noswitch")
    a(f"""
    s_cmp_eq_u32 s{sIT}, 5
    s_cselect_b32 s{sA}, {OOB}, s{sA}
    s_cselect_b32 s{sB}, {OOB}, s{sB}
    """)
    for i in range(K3_D):
        a(f"s_waitcnt vmcnt({4 * (K3_D - 1)})")
        wreads(i, i % 2)
        a("s_waitcnt lgkmcnt(0)")
        for T in range(2):
            for mt in range(2):
                c = vr(ACC + 16 * (2 * T + mt), 16)
                a(f"{MFMA} {c}, {vr(WF[i%2]+4*T, 4)}, {vr(ACT+8*i+4*mt, 4)}, {c}")
        loads(i)
    a(f"""
    s_cmp_eq_u32 s{sIT}, s{sSW}
    s_cbranch_scc1 k3_scale
    s_cmp_lt_u32 s{sIT}, 5
    s_cbranch_scc1 k3_loop
    s_cmp_eq_u32 s{sW}, 0
    s_cbranch_scc1 k3_reduce
    """)
    a.label("k3_scale")
    a(f"""
    v_sub_f32 v{vT0}, 1.0, v{vG0}
    v_sub_f32 v{vT1}, 1.0, v{vG1}
    s_nop 7
    s_nop 3
    """)
    for T in range(2):
        for mt in range(2):
            for i in range(16):
                r = ACC + 16 * (2 * T + mt) + i
                a(f"v_mul_f32 v{r}, v{r}, v{vT0 + mt}")
    a(f"""
    s_cmp_lt_u32 s{sIT}, 5
    s_cbranch_scc1 k3_loop
    """)
    a.label("k3_reduce")
    a(f"""
    s_waitcnt vmcnt(0) lgkmcnt(0)
    s_barrier
    s_lshl_b32 s{sT0}, s{sW}, 12
    v_add_u32 v{vT0}, s{sT0}, v{vL16}
    s_lshl_b32 s{sT0}, s{sW}, 14
    v_add_u32 v{vT1}, s{sT0}, v{vL16}
    s_nop 7
    """)
    for t in range(4):
        for q in range(4):
            a(f"ds_write_b128 v{vT0}, {vr(ACC+16*t+4*q, 4)} offset:{t*16384 + q*1024}")
    a("s_waitcnt lgkmcnt(0)\ns_barrier")
    for sw in range(4):
        for q in range(4):
            a(f"ds_read_b128 {vr(ACC+16*sw+4*q, 4)}, v{vT1} offset:{sw*4096 + q*1024}")
    a(f"""
    v_and_b32 v{vT2}, 31, v{vLane}
    v_mul_u32_u24 v{vT2}, 896, v{vT2}
    v_lshrrev_b32 v{vT3}, 5, v{vLane}
    v_lshl_add_u32 v{vT2}, v{vT3}, 4, v{vT2}
    s_lshl_b32 s{sT0}, s{sMT}, 1
    s_and_b32 s{sT1}, s{sW}, 1
    s_add_u32 s{sT0}, s{sT0}, s{sT1}
    s_mul_i32 s{sT0}, s{sT0}, {32 * 896}
    s_lshl_b32 s{sT1}, s{sNT}, 7
    s_add_u32 s{sT0}, s{sT0}, s{sT1}
    s_lshr_b32 s{sT1}, s{sW}, 1
    s_lshl_b32 s{sT1}, s{sT1}, 6
    s_add_u32 s{sT0}, s{sT0}, s{sT1}
    s_waitcnt lgkmcnt(0)
    """)
    for i in range(16):
        a(f"v_add_f32 v{ACC+i}, v{ACC+i}, v{ACC+16+i}")
        a(f"v_add_f32 v{ACC+32+i}, v{ACC+32+i}, v{ACC+48+i}")
    for i in range(16):
        a(f"v_add_f32 v{ACC+i}, v{ACC+i}, v{ACC+32+i}")
    for i in range(8):
        a(f"v_cvt_pk_bf16_f32 v{TMP+i}, v{ACC+2*i}, v{ACC+2*i+1}")
    a(f"""
    s_nop 1
    v_permlane32_swap_b32 v{TMP}, v{TMP+2}
    v_permlane32_swap_b32 v{TMP+1}, v{TMP+3}
    v_permlane32_swap_b32 v{TMP+4}, v{TMP+6}
    v_permlane32_swap_b32 v{TMP+5}, v{TMP+7}
    buffer_store_dwordx4 {vr(TMP, 4)}, v{vT2}, s[{S_OUT}:{S_OUT+3}], s{sT0} offen
    buffer_store_dwordx4 {vr(TMP+4, 4)}, v{vT2}, s[{S_OUT}:{S_OUT+3}], s{sT0} offen offset:32
    """)
    a.label("k3_end")
    a("s_endpgm")
    return a.text(), NV


def build():
    ref = open(f"cdna_kernels/{NAME}.s.ref").read().split("\n")
    hdr = [l for l in ref if l.startswith(";") and "@launch" not in l and "Override launch" not in l and "grid=ceil" not in l]
    k1, v1 = gen_k1()
    k2, v2 = gen_k2()
    k3, v3 = gen_k3()
    out = "\n".join(hdr) + "\n"
    out += f"; @launch kernel=k1_kernel grid=(256,1,1) block=(512,1,1) lds={K1_LDS}\n"
    out += f"; @launch kernel=k2_kernel grid=(256,1,1) block=(512,1,1) lds={K2_LDS}\n"
    out += f"; @launch kernel=k3_kernel grid=(224,1,1) block=(256,1,1) lds={K3_LDS}\n"
    out += '.amdgcn_target "amdgcn-amd-amdhsa--gfx950"\n.text\n'
    out += kernel_head("k1_kernel") + k1
    out += kernel_head("k2_kernel") + k2
    out += kernel_head("k3_kernel") + k3
    out += '.section .rodata,"a"\n'
    out += kernel_desc("k1_kernel", v1) + kernel_desc("k2_kernel", v2) + kernel_desc("k3_kernel", v3)
    return out


if __name__ == "__main__":
    path = sys.argv[1] if len(sys.argv) > 1 else f"cdna_kernels/{NAME}.s"
    open(path, "w").write(build())
    print("wrote", path)
```

```python
import math, struct, sys

NAME = "gated_mix__softmax_full_mha__swiglu_ffn__prompt"

QF = 0
KVF = 2 << 20
HF = 6 << 20
OF = 14 << 20
GF = 16 << 20
WS_BYTES = 32 << 20
OOB = 0x40000000


def f32bits(x):
    return struct.unpack("<I", struct.pack("<f", x))[0]


class Asm:
    def __init__(self):
        self.lines = []

    def __call__(self, s):
        for ln in s.strip("\n").split("\n"):
            self.lines.append("    " + ln.strip() if not ln.strip().endswith(":") else ln.strip())

    def label(self, l):
        self.lines.append(l + ":")

    def text(self):
        return "\n".join(self.lines) + "\n"


def vr(base, n):
    return f"v[{base}:{base + n - 1}]"


def srd(a, sd, sb, nbytes):
    a(f"""
    s_mov_b32 s{sd}, s{sb}
    s_mov_b32 s{sd+1}, s{sb+1}
    s_mov_b32 s{sd+2}, {nbytes}
    s_mov_b32 s{sd+3}, 0x00020000
    """)


def kernel_head(name):
    return f""".globl {name}
.p2align 8
.type {name},@function
{name}:
"""


def kernel_desc(name, vgpr, sgpr=102):
    acc = (vgpr + 3) // 4 * 4
    return f""".p2align 6
.amdhsa_kernel {name}
  .amdhsa_next_free_vgpr {vgpr}
  .amdhsa_next_free_sgpr {sgpr}
  .amdhsa_accum_offset {acc}
  .amdhsa_group_segment_fixed_size 0
  .amdhsa_kernarg_size 88
  .amdhsa_user_sgpr_count 2
  .amdhsa_user_sgpr_kernarg_segment_ptr 1
  .amdhsa_system_sgpr_workgroup_id_x 1
.end_amdhsa_kernel
"""


MFMA = "v_mfma_f32_32x32x16_bf16"
import os
INSTR = int(os.environ.get("INSTR", "0"))
TSF = 24 << 20

def stamp(a, idx):
    if INSTR:
        a(f"s_memtime s[{66+2*idx}:{67+2*idx}]")

def stamp_init(a):
    if INSTR:
        a("s_memrealtime s[64:65]")

def stamp_flush(a, kern, nst, S_WS, sW, vtmp):
    if not INSTR:
        return
    a(f"""
    s_memrealtime s[90:91]
    s_lshl_b32 s92, s2, 3
    s_add_u32 s92, s92, s{sW}
    s_lshl_b32 s92, s92, 6
    s_add_u32 s92, s92, {TSF + kern * (1 << 18)}
    v_mov_b32 v{vtmp+1}, 0
    s_waitcnt lgkmcnt(0)
    v_mov_b32 v{vtmp}, s64
    buffer_store_dword v{vtmp}, v{vtmp+1}, s[{S_WS}:{S_WS+3}], s92 offen
    s_nop 1
    v_mov_b32 v{vtmp}, s90
    buffer_store_dword v{vtmp}, v{vtmp+1}, s[{S_WS}:{S_WS+3}], s92 offen offset:4
    """)
    for i in range(nst):
        a(f"""
        s_nop 1
        v_mov_b32 v{vtmp}, s{66+2*i}
        buffer_store_dword v{vtmp}, v{vtmp+1}, s[{S_WS}:{S_WS+3}], s92 offen offset:{8+4*i}
        """)


K1_BRING = 0
K1_ARING = 81920
K1_LDS = 81920 + 3 * 24576


def gen_k1():
    a = Asm()
    S_X, S_B0, S_G, S_U, S_WS = 8, 12, 16, 20, 24
    sMI, sJ, sW, sR, sGRP, sROT = 28, 29, 30, 31, 32, 33
    sPITCH, sB0STR, sT0, sT1, sT2 = 34, 35, 36, 37, 38
    sMX, sMB0, sMG = 39, 40, 41
    sKC = 42
    sOX, sOB0, sOG = 43, 44, 45
    sSC = 46
    sTILE = 47
    sHOFF = 48
    sC0, sC1 = 50, 51
    vLane, vT0, vT1, vT2, vT3 = 1, 2, 3, 4, 5
    vDX0, vDX1, vDB0, vDG, vDU = 6, 7, 8, 9, 10
    vAX = 12
    vAB0 = 16
    vAF = 17
    vST = 26
    vL16 = 30
    FR = [32, 56]
    ACC = 80
    TMP = 160
    NV = 192

    stamp_init(a); stamp(a, 0)
    a(f"""
    s_cmp_ge_u32 s2, 256
    s_cbranch_scc1 k1_end
    s_load_dwordx4 s[52:55], s[0:1], 0
    s_load_dwordx4 s[56:59], s[0:1], 32
    s_load_dwordx2 s[60:61], s[0:1], 56
    s_load_dwordx2 s[62:63], s[0:1], 80
    v_and_b32 v{vLane}, 63, v0
    v_lshrrev_b32 v{vT0}, 6, v0
    s_and_b32 s{sT0}, s2, 7
    s_lshr_b32 s{sT1}, s2, 3
    v_readfirstlane_b32 s{sW}, v{vT0}
    s_and_b32 s{sMI}, s{sT0}, 1
    s_lshl_b32 s{sMI}, s{sMI}, 3
    s_and_b32 s{sT2}, s{sT1}, 7
    s_add_u32 s{sMI}, s{sMI}, s{sT2}
    s_lshr_b32 s{sJ}, s{sT0}, 1
    s_lshl_b32 s{sJ}, s{sJ}, 2
    s_lshr_b32 s{sT1}, s{sT1}, 3
    s_add_u32 s{sJ}, s{sJ}, s{sT1}
    s_lshl_b32 s{sT1}, s{sT1}, 1
    s_add_u32 s{sROT}, s{sT2}, s{sT1}
    s_cmp_ge_u32 s{sROT}, 7
    s_cselect_b32 s{sT0}, 7, 0
    s_sub_u32 s{sROT}, s{sROT}, s{sT0}
    s_cmp_ge_u32 s{sROT}, 7
    s_cselect_b32 s{sT0}, 7, 0
    s_sub_u32 s{sROT}, s{sROT}, s{sT0}
    s_and_b32 s{sR}, s{sW}, 3
    s_lshr_b32 s{sGRP}, s{sW}, 2
    s_lshl_b32 s{sTILE}, s{sMI}, 2
    s_add_u32 s{sTILE}, s{sTILE}, s{sR}
    """)
    a(f"""
    v_lshrrev_b32 v{vT0}, 3, v{vLane}
    v_lshrrev_b32 v{vT1}, 4, v{vLane}
    v_and_b32 v{vT2}, 7, v{vLane}
    v_xor_b32 v{vT3}, v{vT2}, v{vT1}
    s_lshl_b32 s{sT0}, s{sMI}, 7
    s_lshl_b32 s{sT1}, s{sW}, 4
    s_add_u32 s{sT0}, s{sT0}, s{sT1}
    v_add_u32 v{vDX0}, s{sT0}, v{vT0}
    v_mul_u32_u24 v{vDX0}, 896, v{vDX0}
    v_lshl_add_u32 v{vDX0}, v{vT3}, 4, v{vDX0}
    v_xor_b32 v{vDX1}, 64, v{vDX0}
    v_add_u32 v{vDX1}, 7168, v{vDX1}
    """)
    a(f"""
    s_lshl_b32 s{sMX}, s{sW}, 11
    s_add_u32 s{sMX}, s{sMX}, {K1_ARING}
    s_lshl_b32 s{sMG}, s{sW}, 10
    s_add_u32 s{sMB0}, s{sMG}, {K1_ARING + 16384}
    s_cmp_ge_u32 s{sJ}, 14
    s_cbranch_scc1 k1_setup_v
    """)
    a(f"""
    v_and_b32 v{vT3}, 1, v{vT1}
    v_lshlrev_b32 v{vT3}, 2, v{vT3}
    v_xor_b32 v{vT3}, v{vT3}, v{vT2}
    s_lshl_b32 s{sT0}, s{sW}, 3
    v_add_u32 v{vDB0}, s{sT0}, v{vT0}
    v_mul_u32_u24 v{vDB0}, 2688, v{vDB0}
    v_lshl_add_u32 v{vDB0}, v{vT3}, 4, v{vDB0}
    s_lshl_b32 s{sT0}, s{sJ}, 7
    v_add_u32 v{vDB0}, s{sT0}, v{vDB0}
    s_mov_b32 s{sPITCH}, 3584
    s_mov_b32 s{sB0STR}, {64 * 2688}
    s_lshl_b32 s{sT1}, s{sJ}, 8
    s_mov_b32 s{sT2}, s{sT1}
    s_waitcnt lgkmcnt(0)
    """)
    srd(a, S_B0, 54, 448 * 1344 * 2)
    srd(a, S_G, 56, 448 * 1792 * 2)
    srd(a, S_U, 58, 448 * 1792 * 2)
    a("s_branch k1_setup_done")
    a.label("k1_setup_v")
    a(f"""
    v_lshlrev_b32 v{vDB0}, 4, v{vT2}
    s_mov_b32 s{sPITCH}, 2688
    s_mov_b32 s{sB0STR}, 128
    s_cmp_eq_u32 s{sJ}, 14
    s_cselect_b32 s{sT1}, 0, 512
    s_add_u32 s{sT1}, s{sT1}, {896 * 2}
    s_add_u32 s{sT2}, s{sT1}, 256
    s_waitcnt lgkmcnt(0)
    """)
    srd(a, S_B0, 60, 448 * 2)
    srd(a, S_G, 54, 448 * 1344 * 2)
    srd(a, S_U, 54, 448 * 1344 * 2)
    a.label("k1_setup_done")
    srd(a, S_X, 52, 2048 * 448 * 2)
    srd(a, S_WS, 62, WS_BYTES)
    a(f"""
    v_and_b32 v{vT2}, 15, v{vLane}
    v_lshlrev_b32 v{vT3}, 2, v{vT1}
    v_xor_b32 v{vT3}, v{vT3}, v{vT2}
    s_lshl_b32 s{sT0}, s{sW}, 2
    v_add_u32 v{vDG}, s{sT0}, v{vT1}
    v_mul_lo_u32 v{vDG}, v{vDG}, s{sPITCH}
    v_xor_b32 v{vT2}, 2, v{vT3}
    v_lshl_add_u32 v{vDU}, v{vT2}, 4, v{vDG}
    v_lshl_add_u32 v{vDG}, v{vT3}, 4, v{vDG}
    v_add_u32 v{vDG}, s{sT1}, v{vDG}
    v_add_u32 v{vDU}, s{sT2}, v{vDU}
    """)

    issued = []

    def kc_of(st):
        a(f"""
        s_add_u32 s{sKC}, s{sROT}, {st}
        s_cmp_ge_u32 s{sKC}, 7
        s_cselect_b32 s{sT0}, 7, 0
        s_sub_u32 s{sKC}, s{sKC}, s{sT0}
        """)

    def dma_A(st):
        slot = st % 3
        kc_of(st)
        a(f"""
        s_add_u32 m0, s{sMX}, {slot * 24576}
        s_lshl_b32 s{sOX}, s{sKC}, 7
        buffer_load_dwordx4 v{vDX0}, s[{S_X}:{S_X+3}], s{sOX} offen lds
        s_add_u32 m0, s{sMX}, {slot * 24576 + 1024}
        s_mul_i32 s{sOB0}, s{sKC}, s{sB0STR}
        buffer_load_dwordx4 v{vDX1}, s[{S_X}:{S_X+3}], s{sOX} offen lds
        s_add_u32 m0, s{sMB0}, {slot * 24576}
        s_nop 0
        buffer_load_dwordx4 v{vDB0}, s[{S_B0}:{S_B0+3}], s{sOB0} offen lds
        """)
        issued.extend([("A", st)] * 3)

    def dma_B(hs):
        slot = hs % 5
        kc_of(hs // 2)
        a(f"""
        s_lshl_b32 s{sKC}, s{sKC}, 6
        s_add_u32 s{sKC}, s{sKC}, {32 * (hs % 2)}
        s_add_u32 m0, s{sMG}, {K1_BRING + slot * 16384}
        s_mul_i32 s{sOG}, s{sKC}, s{sPITCH}
        buffer_load_dwordx4 v{vDG}, s[{S_G}:{S_G+3}], s{sOG} offen lds
        s_add_u32 m0, s{sMG}, {K1_BRING + slot * 16384 + 8192}
        s_nop 0
        buffer_load_dwordx4 v{vDU}, s[{S_U}:{S_U+3}], s{sOG} offen lds
        """)
        issued.extend([("B", hs)] * 2)

    def wait_for(tags, iss):
        idx = max([i for i, t in enumerate(iss) if t in tags], default=-1)
        return len(iss) - 1 - idx

    dma_A(0); dma_B(0); dma_B(1); dma_A(1); dma_B(2); dma_B(3)

    a(f"""
    v_and_b32 v{vT0}, 31, v{vLane}
    v_lshrrev_b32 v{vT1}, 5, v{vLane}
    v_bfe_u32 v{vT2}, v{vLane}, 1, 3
    v_xor_b32 v{vT2}, v{vT2}, v{vT1}
    s_lshl_b32 s{sT0}, s{sR}, 12
    s_add_u32 s{sT0}, s{sT0}, {K1_ARING}
    v_lshlrev_b32 v{vT3}, 7, v{vT0}
    v_lshl_add_u32 v{vT3}, v{vT2}, 4, v{vT3}
    v_add_u32 v{vAX}, s{sT0}, v{vT3}
    v_xor_b32 v{vAX+1}, 32, v{vAX}
    v_xor_b32 v{vAX+2}, 64, v{vAX}
    v_xor_b32 v{vAX+3}, 96, v{vAX}
    v_lshlrev_b32 v{vL16}, 4, v{vLane}
    """)
    vN, vR4, vC, vRow = TMP, TMP + 1, TMP + 2, TMP + 3
    a(f"""
    v_bfe_u32 v{vN}, v{vLane}, 4, 1
    v_bfe_u32 v{vR4}, v{vLane}, 2, 2
    v_and_b32 v{vC}, 3, v{vLane}
    v_lshl_add_u32 v{vRow}, v{vT1}, 3, v{vR4}
    """)
    a(f"""
    v_lshlrev_b32 v{vT2}, 1, v{vR4}
    v_xor_b32 v{vT2}, v{vT2}, v{vN}
    s_lshl_b32 s{sT0}, s{sGRP}, 2
    v_xor_b32 v{vT2}, s{sT0}, v{vT2}
    v_lshlrev_b32 v{vT3}, 8, v{vRow}
    v_lshl_add_u32 v{vT3}, v{vN}, 13, v{vT3}
    v_lshl_add_u32 v{vT3}, v{vT2}, 5, v{vT3}
    v_lshl_add_u32 v{vAF}, v{vC}, 3, v{vT3}
    v_xor_b32 v{vAF+1}, 32, v{vAF}
    v_xor_b32 v{vAF+2}, 64, v{vAF}
    v_xor_b32 v{vAF+3}, 96, v{vAF}
    v_add_u32 v{vAF+4}, 49152, v{vAF}
    v_add_u32 v{vAF+5}, 49152, v{vAF+1}
    v_add_u32 v{vAF+6}, 49152, v{vAF+2}
    v_add_u32 v{vAF+7}, 49152, v{vAF+3}
    """)
    for i in range(80):
        a(f"v_mov_b32 v{ACC+i}, 0")
    a(f"""
    s_cmp_ge_u32 s{sJ}, 14
    s_cbranch_scc1 k1_main_v
    """)
    issued0 = list(issued)

    def main(vtype):
        nonlocal issued
        issued = list(issued0)
        if not vtype:
            a(f"""
            v_and_b32 v{vT2}, 2, v{vR4}
            v_xor_b32 v{vT2}, v{vT2}, v{vN}
            s_lshl_b32 s{sT0}, s{sGRP}, 1
            v_xor_b32 v{vT2}, s{sT0}, v{vT2}
            v_lshlrev_b32 v{vT3}, 7, v{vRow}
            v_lshl_add_u32 v{vT3}, v{vT2}, 5, v{vT3}
            v_lshl_add_u32 v{vT3}, v{vC}, 3, v{vT3}
            v_add_u32 v{vAB0}, {K1_ARING + 16384}, v{vT3}
            """)
            a(f"""
            s_cmp_ge_u32 s{sJ}, 7
            s_cselect_b32 s{sT0}, 7, 0
            s_sub_u32 s{sT0}, s{sJ}, s{sT0}
            s_lshl_b32 s{sT0}, s{sT0}, 4
            s_lshl_b32 s{sT1}, s{sGRP}, 3
            s_add_u32 s{sT0}, s{sT0}, s{sT1}
            s_cmp_ge_u32 s{sJ}, 7
            s_cselect_b32 s{sT1}, 18, 17
            s_cselect_b32 s{sT2}, 12, 11
            s_lshl_b32 s{sT2}, s{sTILE}, s{sT2}
            s_cselect_b32 s{sKC}, {KVF}, {QF}
            """)
            a.lines.pop()
            a(f"""
            s_cmp_ge_u32 s{sJ}, 7
            s_cselect_b32 s{sKC}, {KVF}, {QF}
            s_cselect_b32 s{sSC}, 1.0, {f32bits(28 ** -0.5 * math.log2(math.e)):#x}
            s_add_u32 s{sT2}, s{sT2}, s{sKC}
            v_add_u32 v{vT2}, s{sT0}, v{vT1}
            v_lshlrev_b32 v{vT0}, 4, v{vT0}
            v_add_u32 v{vT0}, s{sT2}, v{vT0}
            """)
            for q in range(4):
                t0, t1, t2 = TMP + 8, TMP + 9, TMP + 10
                a(f"""
                v_add_u32 v{t0}, {2*q}, v{vT2}
                v_mul_u32_u24 v{t1}, 147, v{t0}
                v_lshrrev_b32 v{t1}, 10, v{t1}
                v_mul_u32_u24 v{t2}, 7, v{t1}
                v_sub_u32 v{t0}, v{t0}, v{t2}
                v_lshlrev_b32 v{t1}, s{sT1}, v{t1}
                v_add_u32 v{t1}, v{t1}, v{vT0}
                v_lshrrev_b32 v{t2}, 1, v{t0}
                v_lshl_add_u32 v{t1}, v{t2}, 9, v{t1}
                v_and_b32 v{t0}, 1, v{t0}
                v_lshl_add_u32 v{vST+q}, v{t0}, 3, v{t1}
                """)
        else:
            a(f"""
            v_lshlrev_b32 v{vT3}, 4, v{vT1}
            v_add_u32 v{vAB0}, s{sMB0}, v{vT3}
            """)
            a(f"""
            s_cmp_eq_u32 s{sJ}, 14
            s_cselect_b32 s{sT0}, 0, 256
            s_lshl_b32 s{sT1}, s{sGRP}, 6
            s_add_u32 s{sT0}, s{sT0}, s{sT1}
            v_mul_u32_u24 v{vT2}, 112, v{vN}
            v_add3_u32 v{vT2}, v{vT2}, v{vT0}, s{sT0}
            s_lshl_b32 s{sT2}, s{sTILE}, 12
            s_add_u32 s{sT2}, s{sT2}, {KVF + 2048}
            v_lshlrev_b32 v{vT3}, 9, v{vT1}
            v_add_u32 v{vT3}, s{sT2}, v{vT3}
            v_mov_b32 v{TMP+11}, {OOB}
            """)
            for tt in range(4):
                t0, t1, t2 = TMP + 8, TMP + 9, TMP + 10
                a(f"""
                v_add_u32 v{t0}, {16*tt}, v{vT2}
                v_mul_u32_u24 v{t1}, 2341, v{t0}
                v_lshrrev_b32 v{t1}, 16, v{t1}
                v_mul_u32_u24 v{t2}, 28, v{t1}
                v_sub_u32 v{t2}, v{t0}, v{t2}
                v_lshl_add_u32 v{t1}, v{t1}, 18, v{vT3}
                v_lshl_add_u32 v{t1}, v{t2}, 4, v{t1}
                v_cmp_gt_u32 vcc, 448, v{t0}
                s_nop 1
                v_cndmask_b32 v{vST+tt}, v{TMP+11}, v{t1}, vcc
                """)

        def reads(ks):
            st, s = ks // 4, ks % 4
            hs, s2 = ks // 2, ks % 2
            f = FR[ks % 2]
            aoff = (st % 3) * 24576
            out = [f"ds_read_b128 {vr(f, 4)}, v{vAX+s} offset:{aoff}"]
            if not vtype:
                for q in range(2):
                    out.append(f"ds_read_b64_tr_b16 {vr(f+4+2*q, 2)}, v{vAB0} offset:{aoff + (16*s + 4*q) * 128}")
            else:
                out.append(f"ds_read_b128 {vr(f+4, 4)}, v{vAB0} offset:{aoff + 32*s}")
            slot = hs % 5
            for tt in range(4):
                if slot < 3:
                    ar, boff = vAF + tt, slot * 16384
                else:
                    ar, boff = vAF + 4 + tt, (slot - 3) * 16384
                for q in range(2):
                    out.append(f"ds_read_b64_tr_b16 {vr(f+8+4*tt+2*q, 2)}, v{ar} offset:{boff + (16*s2 + 4*q) * 256}")
            return out

        def mfmas(ks):
            f = FR[ks % 2]
            out = []
            for t in range(5):
                w, x = vr(f + 4 + 4 * t, 4), vr(f, 4)
                c = vr(ACC + 16 * t, 16)
                if vtype and t > 0:
                    out.append(f"{MFMA} {c}, {x}, {w}, {c}")
                else:
                    out.append(f"{MFMA} {c}, {w}, {x}, {c}")
            return out

        n = wait_for({("A", 0), ("B", 0)}, issued)
        stamp(a, 1)
        a(f"s_waitcnt vmcnt({n})\ns_barrier")
        stamp(a, 2)
        for r in reads(0):
            a(r)
        for hs in range(14):
            if hs + 1 < 14:
                n = wait_for({("A", (hs + 1) // 2), ("B", hs + 1)}, issued)
                a(f"s_waitcnt vmcnt({n})\ns_barrier")
            if hs in (1, 3, 6, 10): stamp(a, {1: 3, 3: 4, 6: 5, 10: 6}[hs])
            for s2 in range(2):
                ks = 2 * hs + s2
                m = mfmas(ks)
                r = reads(ks + 1) if ks + 1 < 28 else []
                a("s_waitcnt lgkmcnt(0)")
                a(m[0])
                for x in r[:6]:
                    a(x)
                a(m[1])
                for x in r[6:]:
                    a(x)
                a(m[2])
                if s2 == 0:
                    if hs + 4 < 14:
                        dma_B(hs + 4)
                else:
                    pass
                a(m[3])
                if s2 == 0 and hs % 2 == 0 and hs // 2 + 2 < 7:
                    dma_A(hs // 2 + 2)
                a(m[4])
        a("s_nop 7\ns_nop 7")
        stamp(a, 7)

    main(False)
    a(f"""
    s_mov_b32 s{sC0}, {f32bits(-math.log2(math.e)):#x}
    s_mov_b32 s{sC1}, s{sC0}
    s_mul_i32 s{sHOFF}, s{sTILE}, 112
    s_lshl_b32 s{sT0}, s{sJ}, 3
    s_add_u32 s{sHOFF}, s{sHOFF}, s{sT0}
    s_lshl_b32 s{sT0}, s{sGRP}, 2
    s_add_u32 s{sHOFF}, s{sHOFF}, s{sT0}
    s_lshl_b32 s{sHOFF}, s{sHOFF}, 10
    s_add_u32 s{sHOFF}, s{sHOFF}, {HF}
    """)
    for i in range(16):
        a(f"v_mul_f32 v{ACC+i}, s{sSC}, v{ACC+i}")
    for q in range(4):
        a(f"""
        v_cvt_pk_bf16_f32 v{TMP+2*q}, v{ACC+4*q}, v{ACC+4*q+1}
        v_cvt_pk_bf16_f32 v{TMP+2*q+1}, v{ACC+4*q+2}, v{ACC+4*q+3}
        buffer_store_dwordx2 {vr(TMP+2*q, 2)}, v{vST+q}, s[{S_WS}:{S_WS+3}], 0 offen
        """)
    for tt in range(4):
        g = ACC + 16 * (tt + 1)
        u = g + 8
        t = TMP + 8 + (tt % 2) * 12
        for i in range(0, 8, 2):
            a(f"v_pk_mul_f32 {vr(t+i, 2)}, {vr(g+i, 2)}, s[{sC0}:{sC1}]")
        for i in range(8):
            a(f"v_exp_f32 v{t+i}, v{t+i}")
        for i in range(0, 8, 2):
            a(f"v_pk_mul_f32 {vr(g+i, 2)}, {vr(g+i, 2)}, {vr(u+i, 2)}")
        for i in range(0, 8, 2):
            a(f"v_pk_add_f32 {vr(t+i, 2)}, {vr(t+i, 2)}, 1.0 op_sel_hi:[1,0]")
        for i in range(8):
            a(f"v_rcp_f32 v{t+i}, v{t+i}")
        a("s_nop 0")
        for i in range(0, 8, 2):
            a(f"v_pk_mul_f32 {vr(g+i, 2)}, {vr(g+i, 2)}, {vr(t+i, 2)}")
        for i in range(4):
            a(f"v_cvt_pk_bf16_f32 v{t+8+i}, v{g+2*i}, v{g+2*i+1}")
        a(f"buffer_store_dwordx4 {vr(t+8, 4)}, v{vL16}, s[{S_WS}:{S_WS+3}], s{sHOFF} offen offset:{1024*tt}")
    stamp(a, 8)
    if INSTR: a("s_waitcnt vmcnt(0)")
    stamp(a, 9)
    stamp_flush(a, 0, 10, S_WS, sW, 2)
    a("s_endpgm")

    a.label("k1_main_v")
    main(True)
    for tt in range(4):
        c = ACC + 16 * (tt + 1)
        t = TMP + (tt % 2) * 8
        for i in range(8):
            a(f"v_cvt_pk_bf16_f32 v{t+i}, v{c+2*i}, v{c+2*i+1}")
        a(f"""
        buffer_store_dwordx4 {vr(t, 4)}, v{vST+tt}, s[{S_WS}:{S_WS+3}], 0 offen
        buffer_store_dwordx4 {vr(t+4, 4)}, v{vST+tt}, s[{S_WS}:{S_WS+3}], 0 offen offset:1024
        """)
    t = TMP + 16
    a(f"""
    s_cmp_eq_u32 s{sJ}, 14
    s_cbranch_scc1 k1_v_kpad
    v_mul_f32 v{t}, {f32bits(-math.log2(math.e)):#x}, v{ACC}
    v_exp_f32 v{t}, v{t}
    v_and_b32 v{t+1}, 31, v{vLane}
    v_add_f32 v{t}, 1.0, v{t}
    v_rcp_f32 v{t}, v{t}
    v_lshlrev_b32 v{t+1}, 2, v{t+1}
    s_lshl_b32 s{sT0}, s{sTILE}, 7
    s_add_u32 s{sT0}, s{sT0}, {GF}
    buffer_store_dword v{t}, v{t+1}, s[{S_WS}:{S_WS+3}], s{sT0} offen
    """)
    a(f"""
    v_bfe_u32 v{t}, v{vLane}, 4, 1
    v_lshlrev_b32 v{t}, 18, v{t}
    v_bfe_u32 v{t+1}, v{vLane}, 2, 2
    v_lshl_add_u32 v{t}, v{t+1}, 12, v{t}
    v_and_b32 v{t+1}, 3, v{vLane}
    v_lshl_add_u32 v{t}, v{t+1}, 9, v{t}
    s_lshl_b32 s{sT0}, s{sW}, 19
    s_lshl_b32 s{sT1}, s{sMI}, 14
    s_add_u32 s{sT0}, s{sT0}, s{sT1}
    s_add_u32 s{sT0}, s{sT0}, {KVF + 2048 + 28 * 16}
    v_mov_b32 v{t+4}, 0x3f803f80
    v_mov_b32 v{t+5}, 0x3f803f80
    v_mov_b32 v{t+6}, 0x3f803f80
    v_mov_b32 v{t+7}, 0x3f803f80
    buffer_store_dwordx4 {vr(t+4, 4)}, v{t}, s[{S_WS}:{S_WS+3}], s{sT0} offen
    s_endpgm
    """)
    a.label("k1_v_kpad")
    a(f"""
    v_and_b32 v{t}, 31, v{vLane}
    v_lshlrev_b32 v{t}, 4, v{t}
    v_lshrrev_b32 v{t+1}, 5, v{vLane}
    v_lshl_add_u32 v{t}, v{t+1}, 12, v{t}
    s_lshl_b32 s{sT0}, s{sW}, 19
    s_lshl_b32 s{sT1}, s{sMI}, 14
    s_add_u32 s{sT0}, s{sT0}, s{sT1}
    s_add_u32 s{sT0}, s{sT0}, {KVF + 1024 + 512 + 8}
    v_mov_b32 v{t+4}, 0x3f803f80
    v_mov_b32 v{t+5}, 0
    s_add_u32 s{sT1}, s{sT0}, 8192
    s_add_u32 s{sT2}, s{sT0}, {1 << 18}
    s_add_u32 s{sKC}, s{sT2}, 8192
    buffer_store_dwordx2 {vr(t+4, 2)}, v{t}, s[{S_WS}:{S_WS+3}], s{sT0} offen
    buffer_store_dwordx2 {vr(t+4, 2)}, v{t}, s[{S_WS}:{S_WS+3}], s{sT1} offen
    buffer_store_dwordx2 {vr(t+4, 2)}, v{t}, s[{S_WS}:{S_WS+3}], s{sT2} offen
    buffer_store_dwordx2 {vr(t+4, 2)}, v{t}, s[{S_WS}:{S_WS+3}], s{sKC} offen
    """)
    a.label("k1_end")
    a("s_endpgm")
    return a.text(), NV


K2_NS = 8
K2_LDS = K2_NS * 16384


def gen_k2():
    a = Asm()
    S_WS = 8
    sHEAD, sQB, sW, sQT, sKH, sT0, sT1, sT2 = 12, 13, 14, 15, 16, 17, 18, 19
    sM0, sSRC, sST, sOFF, sIT, sKV = 20, 21, 22, 23, 24, 25
    vLane, vL16, vT0, vT1, vT2, vT3 = 1, 2, 3, 4, 5, 6
    vCur, vNxt, vG = 7, 8, 9
    vM = 10
    Q = 12
    K = 20
    V = 28
    P = 36
    O = 48
    S = [64, 80]
    TMP = 96
    NV = 128
    stamp_init(a); stamp(a, 0)
    a(f"""
    s_cmp_ge_u32 s2, 256
    s_cbranch_scc1 k2_end
    s_load_dwordx2 s[4:5], s[0:1], 80
    v_and_b32 v{vLane}, 63, v0
    v_lshrrev_b32 v{vT0}, 6, v0
    s_and_b32 s{sT0}, s2, 7
    s_lshr_b32 s{sT1}, s2, 3
    v_readfirstlane_b32 s{sW}, v{vT0}
    s_lshl_b32 s{sHEAD}, s{sT0}, 1
    s_and_b32 s{sT2}, s{sT1}, 1
    s_add_u32 s{sHEAD}, s{sHEAD}, s{sT2}
    s_lshr_b32 s{sQB}, s{sT1}, 1
    v_lshlrev_b32 v{vL16}, 4, v{vLane}
    s_and_b32 s{sQT}, s{sW}, 3
    s_lshr_b32 s{sKH}, s{sW}, 2
    s_lshl_b32 s{sT0}, s{sQB}, 2
    s_add_u32 s{sQT}, s{sQT}, s{sT0}
    s_lshl_b32 s{sKV}, s{sHEAD}, 18
    s_add_u32 s{sKV}, s{sKV}, {KVF}
    """)
    a(f"""
    s_lshl_b32 s{sM0}, s{sW}, 11
    s_lshl_b32 s{sSRC}, s{sKH}, 17
    s_and_b32 s{sT0}, s{sW}, 3
    s_lshl_b32 s{sT0}, s{sT0}, 11
    s_add_u32 s{sSRC}, s{sSRC}, s{sT0}
    s_add_u32 s{sSRC}, s{sSRC}, s{sKV}
    s_waitcnt lgkmcnt(0)
    """)
    srd(a, S_WS, 4, WS_BYTES)
    a(f"""
    s_lshl_b32 s{sT0}, s{sHEAD}, 6
    s_add_u32 s{sT0}, s{sT0}, s{sQT}
    s_lshl_b32 s{sT0}, s{sT0}, 11
    s_add_u32 s{sT0}, s{sT0}, {QF}
    buffer_load_dwordx4 {vr(Q, 4)}, v{vL16}, s[{S_WS}:{S_WS+3}], s{sT0} offen
    buffer_load_dwordx4 {vr(Q+4, 4)}, v{vL16}, s[{S_WS}:{S_WS+3}], s{sT0} offen offset:1024
    v_and_b32 v{vT0}, 31, v{vLane}
    v_lshlrev_b32 v{vT0}, 2, v{vT0}
    s_lshl_b32 s{sT1}, s{sQT}, 7
    s_add_u32 s{sT1}, s{sT1}, {GF}
    buffer_load_dword v{vG}, v{vT0}, s[{S_WS}:{S_WS+3}], s{sT1} offen
    """)
    PRE = K2_NS - 2
    for s in range(PRE):
        a(f"""
        s_add_u32 s{sT0}, s{sQB}, {s}
        s_and_b32 s{sT0}, s{sT0}, 15
        s_lshl_b32 s{sT0}, s{sT0}, 13
        s_add_u32 m0, s{sM0}, {s * 16384}
        s_add_u32 s{sT0}, s{sT0}, s{sSRC}
        buffer_load_dwordx4 v{vL16}, s[{S_WS}:{S_WS+3}], s{sT0} offen lds
        buffer_load_dwordx4 v{vL16}, s[{S_WS}:{S_WS+3}], s{sT0} offen offset:1024 lds
        """)
    a(f"""
    s_lshl_b32 s{sT0}, s{sKH}, 13
    v_add_u32 v{vCur}, s{sT0}, v{vL16}
    v_add_u32 v{vNxt}, 16384, v{vCur}
    v_cmp_lt_u32 vcc, 31, v{vLane}
    """)
    for i in range(16):
        a(f"v_mov_b32 v{O+i}, 0")
    stamp(a, 1)
    a(f"""
    s_waitcnt vmcnt({2 * (PRE - 1)})
    s_barrier
    """)
    stamp(a, 2)
    a(f"""
    ds_read_b128 {vr(K, 4)}, v{vL16}
    ds_read_b128 {vr(K+4, 4)}, v{vL16} offset:1024
    v_mov_b32 v{vT0}, 0
    v_cndmask_b32 v{Q+6}, v{Q+6}, v{vT0}, vcc
    v_cndmask_b32 v{Q+7}, v{Q+7}, v{vT0}, vcc
    s_waitcnt lgkmcnt(0)
    {MFMA} {vr(S[0], 16)}, {vr(K, 4)}, {vr(Q, 4)}, 0
    {MFMA} {vr(S[0], 16)}, {vr(K+4, 4)}, {vr(Q+4, 4)}, {vr(S[0], 16)}
    ds_read_b128 {vr(K, 4)}, v{vCur}
    ds_read_b128 {vr(K+4, 4)}, v{vCur} offset:1024
    ds_read_b128 {vr(V, 4)}, v{vCur} offset:2048
    s_nop 15
    """)
    s0 = S[0]
    a(f"v_max3_f32 v{vM}, v{s0}, v{s0+1}, v{s0+2}")
    for i in range(3, 15, 2):
        a(f"v_max3_f32 v{vM}, v{vM}, v{s0+i}, v{s0+i+1}")
    a(f"""
    v_max_f32 v{vM}, v{vM}, v{s0+15}
    v_mov_b32 v{vT0}, v{vM}
    s_nop 1
    v_permlane32_swap_b32 v{vM}, v{vT0}
    v_max_f32 v{vM}, v{vM}, v{vT0}
    v_sub_f32 v{vM}, 0, v{vM}
    v_cvt_pk_bf16_f32 v{vT0}, v{vM}, v{vM}
    v_lshlrev_b32 v{vT0}, 16, v{vT0}
    v_sub_f32 v{vT0}, v{vM}, v{vT0}
    v_cvt_pk_bf16_f32 v{vT0}, v{vM}, v{vT0}
    v_cndmask_b32 v{Q+6}, v{Q+6}, v{vT0}, vcc
    s_waitcnt lgkmcnt(1)
    s_nop 0
    {MFMA} {vr(S[0], 16)}, {vr(K, 4)}, {vr(Q, 4)}, 0
    {MFMA} {vr(S[0], 16)}, {vr(K+4, 4)}, {vr(Q+4, 4)}, {vr(S[0], 16)}
    ds_read_b128 {vr(K, 4)}, v{vCur} offset:4096
    ds_read_b128 {vr(K+4, 4)}, v{vCur} offset:5120
    """)
    for i in range(4):
        a(f"v_mov_b32 v{P+4+i}, 0\nv_mov_b32 v{V+4+i}, 0")
    a(f"""
    s_mov_b32 s{sST}, {PRE}
    s_nop 7
    """)
    a.label("k2_loop")
    a(f"""
    s_waitcnt vmcnt({2 * (PRE - 2)})
    s_barrier
    s_add_u32 s{sT0}, s{sQB}, s{sST}
    s_and_b32 s{sT0}, s{sT0}, 15
    s_lshl_b32 s{sT0}, s{sT0}, 13
    s_add_u32 s{sT0}, s{sT0}, s{sSRC}
    s_cmp_lt_u32 s{sST}, 16
    s_cselect_b32 s{sT0}, s{sT0}, {OOB}
    s_and_b32 s{sT1}, s{sST}, {K2_NS - 1}
    s_lshl_b32 s{sT1}, s{sT1}, 14
    s_add_u32 m0, s{sT1}, s{sM0}
    """)

    def phase(par):
        sc, sn = S[par], S[1 - par]
        e = [f"v_exp_f32 v{sc+i}, v{sc+i}" for i in range(16)]
        c = [f"v_cvt_pk_bf16_f32 v{P+i}, v{sc+2*i}, v{sc+2*i+1}" for i in range(8)]
        a(f"{MFMA} {vr(O, 16)}, {vr(V+4, 4)}, {vr(P+4, 4)}, {vr(O, 16)}")
        a(f"ds_read_b128 {vr(V+4, 4)}, v{vCur} offset:{par*4096 + 3072}")
        if par == 0:
            a(f"buffer_load_dwordx4 v{vL16}, s[{S_WS}:{S_WS+3}], s{sT0} offen lds")
        for x in e[0:3]:
            a(x)
        a("s_waitcnt lgkmcnt(1)")
        a(f"{MFMA} {vr(sn, 16)}, {vr(K, 4)}, {vr(Q, 4)}, 0")
        if par == 0:
            a(f"buffer_load_dwordx4 v{vL16}, s[{S_WS}:{S_WS+3}], s{sT0} offen offset:1024 lds")
        for x in e[3:7]:
            a(x)
        a(f"{MFMA} {vr(sn, 16)}, {vr(K+4, 4)}, {vr(Q+4, 4)}, {vr(sn, 16)}")
        a(e[7])
        a(e[8])
        for x in c[0:4]:
            a(x)
        a(e[9])
        a(e[10])
        a(f"{MFMA} {vr(O, 16)}, {vr(V, 4)}, {vr(P, 4)}, {vr(O, 16)}")
        if par == 0:
            a(f"ds_read_b128 {vr(V, 4)}, v{vCur} offset:{4096 + 2048}")
        else:
            a(f"ds_read_b128 {vr(V, 4)}, v{vNxt} offset:2048")
        a(f"ds_read_b128 {vr(K, 4)}, v{vNxt} offset:{par*4096}")
        a(f"ds_read_b128 {vr(K+4, 4)}, v{vNxt} offset:{par*4096 + 1024}")
        for x in e[11:16]:
            a(x)
        a(c[4]); a(c[5]); a(c[6]); a(c[7])
        a("s_waitcnt lgkmcnt(3)")
        if par == 1:
            a(f"v_mov_b32 v{vCur}, v{vNxt}")
            a(f"v_add_u32 v{vNxt}, 16384, v{vNxt}")
            a(f"v_and_b32 v{vNxt}, {K2_LDS - 1}, v{vNxt}")
        else:
            a("s_nop 0")

    phase(0)
    phase(1)
    a(f"""
    s_add_u32 s{sST}, s{sST}, 1
    s_cmp_lt_u32 s{sST}, {16 + PRE}
    s_cbranch_scc1 k2_loop
    {MFMA} {vr(O, 16)}, {vr(V+4, 4)}, {vr(P+4, 4)}, {vr(O, 16)}
    s_waitcnt vmcnt(0) lgkmcnt(0)
    """)
    stamp(a, 3)
    a(f"""
    s_barrier
    s_and_b32 s{sT0}, s{sW}, 3
    s_lshl_b32 s{sT0}, s{sT0}, 12
    v_add_u32 v{vT0}, s{sT0}, v{vL16}
    s_nop 7
    s_cmp_eq_u32 s{sKH}, 0
    s_cbranch_scc1 k2_merge
    """)
    for q in range(4):
        a(f"ds_write_b128 v{vT0}, {vr(O+4*q, 4)} offset:{1024*q}")
    a("""
    s_waitcnt lgkmcnt(0)
    s_barrier
    s_endpgm
    """)
    a.label("k2_merge")
    a("s_barrier")
    for q in range(4):
        a(f"ds_read_b128 {vr(S[0]+4*q, 4)}, v{vT0} offset:{1024*q}")
    a("s_waitcnt lgkmcnt(0)")
    for i in range(16):
        a(f"v_add_f32 v{O+i}, v{O+i}, v{S[0]+i}")
    a(f"""
    v_mov_b32 v{vT0}, v{O+12}
    v_mov_b32 v{vT1}, v{O+12}
    s_nop 1
    v_permlane32_swap_b32 v{vT0}, v{vT1}
    """)
    a(f"v_cmp_lt_u32 vcc, 31, v{vLane}")
    a(f"v_mul_f32 v{vT2}, 0, v{O}")
    for i in range(1, 12):
        a(f"v_fma_f32 v{vT2}, v{O+i}, 0, v{vT2}")
    a(f"v_mul_f32 v{vT3}, 0, v{O+12}")
    for i in range(13, 16):
        a(f"v_fma_f32 v{vT3}, v{O+i}, 0, v{vT3}")
    a(f"""
    v_cndmask_b32 v{vT3}, v{vT3}, v{vT2}, vcc
    v_add_f32 v{vT2}, v{vT2}, v{vT3}
    v_add_f32 v{vT2}, v{vT2}, v{vT1}
    s_mov_b32 s{sT0}, {f32bits(2.0**-10):#x}
    s_mov_b32 s{sT1}, {f32bits(2.0**100):#x}
    v_cmp_le_f32 s[26:27], s{sT0}, v{vT2}
    v_cmp_ge_f32 vcc, s{sT1}, v{vT2}
    s_and_b64 s[26:27], s[26:27], vcc
    s_cmp_eq_u64 s[26:27], -1
    s_cbranch_scc0 k2_fallback
    """)
    a.label("k2_final")
    a(f"""
    v_rcp_f32 v{vT1}, v{vT1}
    v_lshrrev_b32 v{vT2}, 5, v{vLane}
    s_mul_i32 s{sT0}, s{sHEAD}, 7
    v_mul_f32 v{vT1}, v{vT1}, v{vG}
    v_add_u32 v{vT2}, s{sT0}, v{vT2}
    v_and_b32 v{vT3}, 31, v{vLane}
    v_lshlrev_b32 v{vT3}, 4, v{vT3}
    s_mul_i32 s{sT1}, s{sQT}, {28 * 1024}
    s_add_u32 s{sT1}, s{sT1}, {OF}
    v_cmp_lt_u32 vcc, 31, v{vLane}
    v_mov_b32 v{TMP+15}, {OOB}
    """)
    for i in range(16):
        a(f"v_mul_f32 v{O+i}, v{O+i}, v{vT1}")
    for q in range(4):
        t0, t1, t2 = TMP + 8, TMP + 9, TMP + 10 + q
        a(f"""
        v_cvt_pk_bf16_f32 v{TMP+2*q}, v{O+4*q}, v{O+4*q+1}
        v_cvt_pk_bf16_f32 v{TMP+2*q+1}, v{O+4*q+2}, v{O+4*q+3}
        v_add_u32 v{t0}, {2*q}, v{vT2}
        v_lshrrev_b32 v{t1}, 2, v{t0}
        v_lshl_add_u32 v{t2}, v{t1}, 10, v{vT3}
        v_and_b32 v{t1}, 1, v{t0}
        v_lshl_add_u32 v{t2}, v{t1}, 9, v{t2}
        v_bfe_u32 v{t1}, v{t0}, 1, 1
        v_lshl_add_u32 v{t2}, v{t1}, 3, v{t2}
        """)
        if q == 3:
            a(f"v_cndmask_b32 v{t2}, v{t2}, v{TMP+15}, vcc")
        a(f"buffer_store_dwordx2 {vr(TMP+2*q, 2)}, v{t2}, s[{S_WS}:{S_WS+3}], s{sT1} offen")
    stamp(a, 4)
    if INSTR: a("s_waitcnt vmcnt(0)")
    stamp(a, 5)
    stamp_flush(a, 1, 6, S_WS, sW, 2)
    a("s_endpgm")

    a.label("k2_fallback")
    sc = S[0]
    vMo, vMn, vAl = TMP, TMP + 1, TMP + 2
    a(f"""
    v_cmp_lt_u32 vcc, 31, v{vLane}
    v_mov_b32 v{vT0}, 0
    v_mov_b32 v{vMo}, 0xff800000
    v_cndmask_b32 v{Q+6}, v{Q+6}, v{vT0}, vcc
    s_mov_b32 s{sIT}, 0
    s_mov_b32 s{sOFF}, s{sKV}
    """)
    for i in range(16):
        a(f"v_mov_b32 v{O+i}, 0")
    a.label("k2_fb_loop")
    a(f"""
    buffer_load_dwordx4 {vr(K, 4)}, v{vL16}, s[{S_WS}:{S_WS+3}], s{sOFF} offen
    buffer_load_dwordx4 {vr(K+4, 4)}, v{vL16}, s[{S_WS}:{S_WS+3}], s{sOFF} offen offset:1024
    buffer_load_dwordx4 {vr(V, 4)}, v{vL16}, s[{S_WS}:{S_WS+3}], s{sOFF} offen offset:2048
    buffer_load_dwordx4 {vr(V+4, 4)}, v{vL16}, s[{S_WS}:{S_WS+3}], s{sOFF} offen offset:3072
    s_waitcnt vmcnt(0)
    {MFMA} {vr(sc, 16)}, {vr(K, 4)}, {vr(Q, 4)}, 0
    {MFMA} {vr(sc, 16)}, {vr(K+4, 4)}, {vr(Q+4, 4)}, {vr(sc, 16)}
    s_nop 15
    v_max3_f32 v{vMn}, v{vMo}, v{sc}, v{sc+1}
    """)
    for i in range(2, 16, 2):
        a(f"v_max3_f32 v{vMn}, v{vMn}, v{sc+i}, v{sc+i+1}")
    a(f"""
    v_mov_b32 v{vT0}, v{vMn}
    s_nop 1
    v_permlane32_swap_b32 v{vMn}, v{vT0}
    v_max_f32 v{vMn}, v{vMn}, v{vT0}
    v_sub_f32 v{vAl}, v{vMo}, v{vMn}
    v_exp_f32 v{vAl}, v{vAl}
    v_mov_b32 v{vMo}, v{vMn}
    """)
    for i in range(16):
        a(f"v_sub_f32 v{sc+i}, v{sc+i}, v{vMn}")
    for i in range(16):
        a(f"v_exp_f32 v{sc+i}, v{sc+i}")
    for i in range(16):
        a(f"v_mul_f32 v{O+i}, v{O+i}, v{vAl}")
    for i in range(8):
        a(f"v_cvt_pk_bf16_f32 v{P+i}, v{sc+2*i}, v{sc+2*i+1}")
    a(f"""
    s_nop 1
    {MFMA} {vr(O, 16)}, {vr(V, 4)}, {vr(P, 4)}, {vr(O, 16)}
    {MFMA} {vr(O, 16)}, {vr(V+4, 4)}, {vr(P+4, 4)}, {vr(O, 16)}
    s_add_u32 s{sOFF}, s{sOFF}, 4096
    s_add_u32 s{sIT}, s{sIT}, 1
    s_cmp_lt_u32 s{sIT}, 64
    s_cbranch_scc1 k2_fb_loop
    s_nop 15
    v_mov_b32 v{vT0}, v{O+12}
    v_mov_b32 v{vT1}, v{O+12}
    s_nop 1
    v_permlane32_swap_b32 v{vT0}, v{vT1}
    s_branch k2_final
    """)
    a.label("k2_end")
    a("s_endpgm")
    return a.text(), NV


K3_D = 7
K3_LDS = 65536


def gen_k3():
    a = Asm()
    S_WS, S_W, S_OUT, S_WD, S_WO = 8, 12, 16, 20, 24
    sMT, sNT, sW, sT0, sT1, sT2 = 28, 29, 30, 31, 32, 33
    sA, sASTR, sB, sIT, sM0, sNIT, sSW = 34, 35, 36, 37, 38, 39, 40
    sAO, sBO = 41, 42
    vLane, vL16, vT0, vT1, vT2, vT3 = 1, 2, 3, 4, 5, 6
    vDW, vAW, vG0, vG1, vA1 = 7, 8, 10, 11, 12
    ACT = 16
    WF = [72, 80]
    ACC = 96
    TMP = 160
    NV = 208
    stamp_init(a); stamp(a, 0)
    a(f"""
    s_cmp_ge_u32 s2, 224
    s_cbranch_scc1 k3_end
    s_load_dwordx2 s[52:53], s[0:1], 16
    s_load_dwordx2 s[54:55], s[0:1], 48
    s_load_dwordx2 s[56:57], s[0:1], 64
    s_load_dwordx2 s[58:59], s[0:1], 80
    v_and_b32 v{vLane}, 63, v0
    v_lshrrev_b32 v{vT0}, 6, v0
    s_and_b32 s{sT0}, s2, 7
    s_lshr_b32 s{sT1}, s2, 3
    v_readfirstlane_b32 s{sW}, v{vT0}
    s_lshl_b32 s{sMT}, s{sT0}, 2
    s_and_b32 s{sT2}, s{sT1}, 3
    s_add_u32 s{sMT}, s{sMT}, s{sT2}
    s_lshr_b32 s{sNT}, s{sT1}, 2
    v_lshlrev_b32 v{vL16}, 4, v{vLane}
    """)
    a(f"""
    v_lshrrev_b32 v{vT0}, 3, v{vLane}
    v_bfe_u32 v{vT1}, v{vLane}, 4, 1
    v_lshlrev_b32 v{vT1}, 2, v{vT1}
    v_and_b32 v{vT2}, 7, v{vLane}
    v_xor_b32 v{vT1}, v{vT1}, v{vT2}
    v_mul_u32_u24 v{vDW}, 896, v{vT0}
    v_lshl_add_u32 v{vDW}, v{vT1}, 4, v{vDW}
    s_lshl_b32 s{sT0}, s{sNT}, 7
    v_add_u32 v{vDW}, s{sT0}, v{vDW}
    s_mul_i32 s{sM0}, s{sW}, {K3_D * 2048}
    """)
    a(f"""
    s_mul_i32 s{sT0}, s{sW}, 35
    s_sub_u32 s{sT0}, s{sT0}, 28
    s_cmp_eq_u32 s{sW}, 0
    s_cselect_b32 s{sT0}, 0, s{sT0}
    s_cselect_b32 s{sSW}, 1, 100
    s_mul_i32 s{sA}, s{sMT}, 224
    s_add_u32 s{sA}, s{sA}, s{sT0}
    s_lshl_b32 s{sA}, s{sA}, 10
    s_add_u32 s{sA}, s{sA}, {HF}
    s_mul_i32 s{sB}, s{sT0}, {16 * 896}
    v_add_u32 v{vA1}, {112 * 1024}, v{vL16}
    s_waitcnt lgkmcnt(0)
    """)
    srd(a, S_WS, 58, WS_BYTES)
    srd(a, S_W, 54, 1792 * 448 * 2)
    srd(a, S_OUT, 56, 2048 * 448 * 2)

    def loads(i):
        a(f"""
        s_add_u32 s{sAO}, s{sA}, {i * 1024}
        s_add_u32 m0, s{sM0}, {i * 2048}
        s_add_u32 s{sBO}, s{sB}, {i * 16 * 896}
        buffer_load_dwordx4 {vr(ACT+8*i, 4)}, v{vL16}, s[{S_WS}:{S_WS+3}], s{sAO} offen
        buffer_load_dwordx4 v{vDW}, s[{S_W}:{S_W+3}], s{sBO} offen lds
        s_add_u32 m0, s{sM0}, {i * 2048 + 1024}
        s_add_u32 s{sBO}, s{sBO}, {8 * 896}
        buffer_load_dwordx4 {vr(ACT+8*i+4, 4)}, v{vA1}, s[{S_WS}:{S_WS+3}], s{sAO} offen
        buffer_load_dwordx4 v{vDW}, s[{S_W}:{S_W+3}], s{sBO} offen lds
        """)

    a(f"""
    v_and_b32 v{vT0}, 31, v{vLane}
    v_lshlrev_b32 v{vT0}, 2, v{vT0}
    s_lshl_b32 s{sT1}, s{sMT}, 8
    s_add_u32 s{sT1}, s{sT1}, {GF}
    buffer_load_dword v{vG0}, v{vT0}, s[{S_WS}:{S_WS+3}], s{sT1} offen
    buffer_load_dword v{vG1}, v{vT0}, s[{S_WS}:{S_WS+3}], s{sT1} offen offset:128
    """)
    for i in range(K3_D):
        loads(i)
    a(f"""
    v_bfe_u32 v{vT0}, v{vLane}, 4, 1
    v_bfe_u32 v{vT1}, v{vLane}, 2, 2
    v_and_b32 v{vT2}, 2, v{vT1}
    v_xor_b32 v{vT2}, v{vT2}, v{vT0}
    v_lshrrev_b32 v{vT3}, 5, v{vLane}
    v_lshl_add_u32 v{vT3}, v{vT3}, 2, v{vT1}
    v_lshlrev_b32 v{vT3}, 7, v{vT3}
    v_lshl_add_u32 v{vT3}, v{vT2}, 5, v{vT3}
    v_and_b32 v{vT2}, 3, v{vLane}
    v_lshl_add_u32 v{vT3}, v{vT2}, 3, v{vT3}
    v_add_u32 v{vAW}, s{sM0}, v{vT3}
    v_xor_b32 v{vAW+1}, 64, v{vAW}
    s_mov_b32 s{sIT}, 0
    """)
    for i in range(64):
        a(f"v_mov_b32 v{ACC+i}, 0")

    def wreads(i, buf):
        for T in range(2):
            for q in range(2):
                a(f"ds_read_b64_tr_b16 {vr(WF[buf]+4*T+2*q, 2)}, v{vAW+T} offset:{i*2048 + q*1024}")

    stamp(a, 1)
    a.label("k3_loop")
    a(f"""
    s_add_u32 s{sIT}, s{sIT}, 1
    s_add_u32 s{sA}, s{sA}, {K3_D * 1024}
    s_add_u32 s{sB}, s{sB}, {K3_D * 16 * 896}
    s_cmp_eq_u32 s{sIT}, s{sSW}
    s_cbranch_scc0 k3_noswitch
    s_mul_i32 s{sA}, s{sMT}, {56 * 1024}
    s_add_u32 s{sA}, s{sA}, {OF}
    s_mov_b32 s{sB}, 0
    s_mov_b32 s{S_W}, s52
    s_mov_b32 s{S_W+1}, s53
    s_mov_b32 s{S_W+2}, {448 * 448 * 2}
    v_add_u32 v{vA1}, {28 * 1024}, v{vL16}
    """)
    a.label("k3_noswitch")
    a(f"""
    s_cmp_eq_u32 s{sIT}, 5
    s_cselect_b32 s{sA}, {OOB}, s{sA}
    s_cselect_b32 s{sB}, {OOB}, s{sB}
    """)
    for i in range(K3_D):
        a(f"s_waitcnt vmcnt({4 * (K3_D - 1)})")
        wreads(i, i % 2)
        a("s_waitcnt lgkmcnt(0)")
        for T in range(2):
            for mt in range(2):
                c = vr(ACC + 16 * (2 * T + mt), 16)
                a(f"{MFMA} {c}, {vr(WF[i%2]+4*T, 4)}, {vr(ACT+8*i+4*mt, 4)}, {c}")
        loads(i)
    a(f"""
    s_cmp_eq_u32 s{sIT}, s{sSW}
    s_cbranch_scc1 k3_scale
    s_cmp_lt_u32 s{sIT}, 5
    s_cbranch_scc1 k3_loop
    s_cmp_eq_u32 s{sW}, 0
    s_cbranch_scc1 k3_reduce
    """)
    a.label("k3_scale")
    a(f"""
    v_sub_f32 v{vT0}, 1.0, v{vG0}
    v_sub_f32 v{vT1}, 1.0, v{vG1}
    s_nop 7
    s_nop 3
    """)
    for T in range(2):
        for mt in range(2):
            for i in range(16):
                r = ACC + 16 * (2 * T + mt) + i
                a(f"v_mul_f32 v{r}, v{r}, v{vT0 + mt}")
    a(f"""
    s_cmp_lt_u32 s{sIT}, 5
    s_cbranch_scc1 k3_loop
    """)
    a.label("k3_reduce")
    stamp(a, 2)
    a(f"""
    s_waitcnt vmcnt(0) lgkmcnt(0)
    s_barrier
    s_lshl_b32 s{sT0}, s{sW}, 12
    v_add_u32 v{vT0}, s{sT0}, v{vL16}
    s_lshl_b32 s{sT0}, s{sW}, 14
    v_add_u32 v{vT1}, s{sT0}, v{vL16}
    s_nop 7
    """)
    for t in range(4):
        for q in range(4):
            a(f"ds_write_b128 v{vT0}, {vr(ACC+16*t+4*q, 4)} offset:{t*16384 + q*1024}")
    a("s_waitcnt lgkmcnt(0)\ns_barrier")
    for sw in range(4):
        for q in range(4):
            a(f"ds_read_b128 {vr(ACC+16*sw+4*q, 4)}, v{vT1} offset:{sw*4096 + q*1024}")
    a(f"""
    v_and_b32 v{vT2}, 31, v{vLane}
    v_mul_u32_u24 v{vT2}, 896, v{vT2}
    v_lshrrev_b32 v{vT3}, 5, v{vLane}
    v_lshl_add_u32 v{vT2}, v{vT3}, 4, v{vT2}
    s_lshl_b32 s{sT0}, s{sMT}, 1
    s_and_b32 s{sT1}, s{sW}, 1
    s_add_u32 s{sT0}, s{sT0}, s{sT1}
    s_mul_i32 s{sT0}, s{sT0}, {32 * 896}
    s_lshl_b32 s{sT1}, s{sNT}, 7
    s_add_u32 s{sT0}, s{sT0}, s{sT1}
    s_lshr_b32 s{sT1}, s{sW}, 1
    s_lshl_b32 s{sT1}, s{sT1}, 6
    s_add_u32 s{sT0}, s{sT0}, s{sT1}
    s_waitcnt lgkmcnt(0)
    """)
    for i in range(16):
        a(f"v_add_f32 v{ACC+i}, v{ACC+i}, v{ACC+16+i}")
        a(f"v_add_f32 v{ACC+32+i}, v{ACC+32+i}, v{ACC+48+i}")
    for i in range(16):
        a(f"v_add_f32 v{ACC+i}, v{ACC+i}, v{ACC+32+i}")
    for i in range(8):
        a(f"v_cvt_pk_bf16_f32 v{TMP+i}, v{ACC+2*i}, v{ACC+2*i+1}")
    a(f"""
    s_nop 1
    v_permlane32_swap_b32 v{TMP}, v{TMP+2}
    v_permlane32_swap_b32 v{TMP+1}, v{TMP+3}
    v_permlane32_swap_b32 v{TMP+4}, v{TMP+6}
    v_permlane32_swap_b32 v{TMP+5}, v{TMP+7}
    buffer_store_dwordx4 {vr(TMP, 4)}, v{vT2}, s[{S_OUT}:{S_OUT+3}], s{sT0} offen
    buffer_store_dwordx4 {vr(TMP+4, 4)}, v{vT2}, s[{S_OUT}:{S_OUT+3}], s{sT0} offen offset:32
    """)
    stamp(a, 3)
    if INSTR: a("s_waitcnt vmcnt(0)")
    stamp(a, 4)
    stamp_flush(a, 2, 5, S_WS, sW, 2)
    a.label("k3_end")
    a("s_endpgm")
    return a.text(), NV


def build():
    ref = open(f"cdna_kernels/{NAME}.s.ref").read().split("\n")
    hdr = [l for l in ref if l.startswith(";") and "@launch" not in l and "Override launch" not in l and "grid=ceil" not in l]
    k1, v1 = gen_k1()
    k2, v2 = gen_k2()
    k3, v3 = gen_k3()
    out = "\n".join(hdr) + "\n"
    out += f"; @launch kernel=k1_kernel grid=(256,1,1) block=(512,1,1) lds={K1_LDS}\n"
    out += f"; @launch kernel=k2_kernel grid=(256,1,1) block=(512,1,1) lds={K2_LDS}\n"
    out += f"; @launch kernel=k3_kernel grid=(224,1,1) block=(256,1,1) lds={K3_LDS}\n"
    out += '.amdgcn_target "amdgcn-amd-amdhsa--gfx950"\n.text\n'
    out += kernel_head("k1_kernel") + k1
    out += kernel_head("k2_kernel") + k2
    out += kernel_head("k3_kernel") + k3
    out += '.section .rodata,"a"\n'
    out += kernel_desc("k1_kernel", v1) + kernel_desc("k2_kernel", v2) + kernel_desc("k3_kernel", v3)
    return out


if __name__ == "__main__":
    path = sys.argv[1] if len(sys.argv) > 1 else f"cdna_kernels/{NAME}.s"
    open(path, "w").write(build())
    print("wrote", path)
```

```python
import math, struct, sys

NAME = "gated_mix__softmax_full_mha__swiglu_ffn__prompt"

QF = 0
KVF = 2 << 20
HF = 6 << 20
OF = 14 << 20
GF = 16 << 20
WS_BYTES = 32 << 20
OOB = 0x40000000


def f32bits(x):
    return struct.unpack("<I", struct.pack("<f", x))[0]


class Asm:
    def __init__(self):
        self.lines = []

    def __call__(self, s):
        for ln in s.strip("\n").split("\n"):
            self.lines.append("    " + ln.strip() if not ln.strip().endswith(":") else ln.strip())

    def label(self, l):
        self.lines.append(l + ":")

    def text(self):
        return "\n".join(self.lines) + "\n"


def vr(base, n):
    return f"v[{base}:{base + n - 1}]"


def srd(a, sd, sb, nbytes):
    a(f"""
    s_mov_b32 s{sd}, s{sb}
    s_mov_b32 s{sd+1}, s{sb+1}
    s_mov_b32 s{sd+2}, {nbytes}
    s_mov_b32 s{sd+3}, 0x00020000
    """)


def kernel_head(name):
    return f""".globl {name}
.p2align 8
.type {name},@function
{name}:
"""


def kernel_desc(name, vgpr, sgpr=102):
    acc = (vgpr + 3) // 4 * 4
    return f""".p2align 6
.amdhsa_kernel {name}
  .amdhsa_next_free_vgpr {vgpr}
  .amdhsa_next_free_sgpr {sgpr}
  .amdhsa_accum_offset {acc}
  .amdhsa_group_segment_fixed_size 0
  .amdhsa_kernarg_size 88
  .amdhsa_user_sgpr_count 2
  .amdhsa_user_sgpr_kernarg_segment_ptr 1
  .amdhsa_system_sgpr_workgroup_id_x 1
.end_amdhsa_kernel
"""


MFMA = "v_mfma_f32_32x32x16_bf16"
import os
INSTR = int(os.environ.get("INSTR", "0"))
TSF = 24 << 20

def stamp(a, idx):
    if INSTR:
        a(f"s_memtime s[{66+2*idx}:{67+2*idx}]")

def stamp_init(a):
    if INSTR:
        a("s_memrealtime s[64:65]")

def stamp_flush(a, kern, nst, S_WS, sW, vtmp):
    if not INSTR:
        return
    a(f"""
    s_memrealtime s[90:91]
    s_lshl_b32 s92, s2, 3
    s_add_u32 s92, s92, s{sW}
    s_lshl_b32 s92, s92, 6
    s_add_u32 s92, s92, {TSF + kern * (1 << 18)}
    v_mov_b32 v{vtmp+1}, 0
    s_waitcnt lgkmcnt(0)
    v_mov_b32 v{vtmp}, s64
    buffer_store_dword v{vtmp}, v{vtmp+1}, s[{S_WS}:{S_WS+3}], s92 offen
    s_nop 1
    v_mov_b32 v{vtmp}, s90
    buffer_store_dword v{vtmp}, v{vtmp+1}, s[{S_WS}:{S_WS+3}], s92 offen offset:4
    """)
    for i in range(nst):
        a(f"""
        s_nop 1
        v_mov_b32 v{vtmp}, s{66+2*i}
        buffer_store_dword v{vtmp}, v{vtmp+1}, s[{S_WS}:{S_WS+3}], s92 offen offset:{8+4*i}
        """)


K1_BRING = 0
K1_ARING = 81920
K1_LDS = 81920 + 3 * 24576


def gen_k1():
    a = Asm()
    S_X, S_B0, S_G, S_U, S_WS = 8, 12, 16, 20, 24
    sMI, sJ, sW, sR, sGRP, sROT = 28, 29, 30, 31, 32, 33
    sPITCH, sB0STR, sT0, sT1, sT2 = 34, 35, 36, 37, 38
    sMX, sMB0, sMG = 39, 40, 41
    sKC = 42
    sOX, sOB0, sOG = 43, 44, 45
    sSC = 46
    sTILE = 47
    sHOFF = 48
    sC0, sC1 = 50, 51
    vLane, vT0, vT1, vT2, vT3 = 1, 2, 3, 4, 5
    vDX0, vDX1, vDB0, vDG, vDU = 6, 7, 8, 9, 10
    vAX = 12
    vAB0 = 16
    vAF = 17
    vST = 26
    vL16 = 30
    FR = [32, 56]
    ACC = 80
    TMP = 160
    NV = 192

    stamp_init(a); stamp(a, 0)
    a(f"""
    s_cmp_ge_u32 s2, 256
    s_cbranch_scc1 k1_end
    s_load_dwordx4 s[52:55], s[0:1], 0
    s_load_dwordx4 s[56:59], s[0:1], 32
    s_load_dwordx2 s[60:61], s[0:1], 56
    s_load_dwordx2 s[62:63], s[0:1], 80
    v_and_b32 v{vLane}, 63, v0
    v_lshrrev_b32 v{vT0}, 6, v0
    s_and_b32 s{sT0}, s2, 7
    s_lshr_b32 s{sT1}, s2, 3
    v_readfirstlane_b32 s{sW}, v{vT0}
    s_and_b32 s{sMI}, s{sT0}, 1
    s_lshl_b32 s{sMI}, s{sMI}, 3
    s_and_b32 s{sT2}, s{sT1}, 7
    s_add_u32 s{sMI}, s{sMI}, s{sT2}
    s_lshr_b32 s{sJ}, s{sT0}, 1
    s_lshl_b32 s{sJ}, s{sJ}, 2
    s_lshr_b32 s{sT1}, s{sT1}, 3
    s_add_u32 s{sJ}, s{sJ}, s{sT1}
    s_lshl_b32 s{sT1}, s{sT1}, 1
    s_add_u32 s{sROT}, s{sT2}, s{sT1}
    s_cmp_ge_u32 s{sROT}, 7
    s_cselect_b32 s{sT0}, 7, 0
    s_sub_u32 s{sROT}, s{sROT}, s{sT0}
    s_cmp_ge_u32 s{sROT}, 7
    s_cselect_b32 s{sT0}, 7, 0
    s_sub_u32 s{sROT}, s{sROT}, s{sT0}
    s_and_b32 s{sR}, s{sW}, 3
    s_lshr_b32 s{sGRP}, s{sW}, 2
    s_lshl_b32 s{sTILE}, s{sMI}, 2
    s_add_u32 s{sTILE}, s{sTILE}, s{sR}
    """)
    a(f"""
    v_lshrrev_b32 v{vT0}, 3, v{vLane}
    v_lshrrev_b32 v{vT1}, 4, v{vLane}
    v_and_b32 v{vT2}, 7, v{vLane}
    v_xor_b32 v{vT3}, v{vT2}, v{vT1}
    s_lshl_b32 s{sT0}, s{sMI}, 7
    s_lshl_b32 s{sT1}, s{sW}, 4
    s_add_u32 s{sT0}, s{sT0}, s{sT1}
    v_add_u32 v{vDX0}, s{sT0}, v{vT0}
    v_mul_u32_u24 v{vDX0}, 896, v{vDX0}
    v_lshl_add_u32 v{vDX0}, v{vT3}, 4, v{vDX0}
    v_xor_b32 v{vDX1}, 64, v{vDX0}
    v_add_u32 v{vDX1}, 7168, v{vDX1}
    """)
    a(f"""
    s_lshl_b32 s{sMX}, s{sW}, 11
    s_add_u32 s{sMX}, s{sMX}, {K1_ARING}
    s_lshl_b32 s{sMG}, s{sW}, 10
    s_add_u32 s{sMB0}, s{sMG}, {K1_ARING + 16384}
    s_cmp_ge_u32 s{sJ}, 14
    s_cbranch_scc1 k1_setup_v
    """)
    a(f"""
    v_and_b32 v{vT3}, 1, v{vT1}
    v_lshlrev_b32 v{vT3}, 2, v{vT3}
    v_xor_b32 v{vT3}, v{vT3}, v{vT2}
    s_lshl_b32 s{sT0}, s{sW}, 3
    v_add_u32 v{vDB0}, s{sT0}, v{vT0}
    v_mul_u32_u24 v{vDB0}, 2688, v{vDB0}
    v_lshl_add_u32 v{vDB0}, v{vT3}, 4, v{vDB0}
    s_lshl_b32 s{sT0}, s{sJ}, 7
    v_add_u32 v{vDB0}, s{sT0}, v{vDB0}
    s_mov_b32 s{sPITCH}, 3584
    s_mov_b32 s{sB0STR}, {64 * 2688}
    s_lshl_b32 s{sT1}, s{sJ}, 8
    s_mov_b32 s{sT2}, s{sT1}
    s_waitcnt lgkmcnt(0)
    """)
    srd(a, S_B0, 54, 448 * 1344 * 2)
    srd(a, S_G, 56, 448 * 1792 * 2)
    srd(a, S_U, 58, 448 * 1792 * 2)
    a("s_branch k1_setup_done")
    a.label("k1_setup_v")
    a(f"""
    v_lshlrev_b32 v{vDB0}, 4, v{vT2}
    s_mov_b32 s{sPITCH}, 2688
    s_mov_b32 s{sB0STR}, 128
    s_cmp_eq_u32 s{sJ}, 14
    s_cselect_b32 s{sT1}, 0, 512
    s_add_u32 s{sT1}, s{sT1}, {896 * 2}
    s_add_u32 s{sT2}, s{sT1}, 256
    s_waitcnt lgkmcnt(0)
    """)
    srd(a, S_B0, 60, 448 * 2)
    srd(a, S_G, 54, 448 * 1344 * 2)
    srd(a, S_U, 54, 448 * 1344 * 2)
    a.label("k1_setup_done")
    srd(a, S_X, 52, 2048 * 448 * 2)
    srd(a, S_WS, 62, WS_BYTES)
    a(f"""
    v_and_b32 v{vT2}, 15, v{vLane}
    v_lshlrev_b32 v{vT3}, 2, v{vT1}
    v_xor_b32 v{vT3}, v{vT3}, v{vT2}
    s_lshl_b32 s{sT0}, s{sW}, 2
    v_add_u32 v{vDG}, s{sT0}, v{vT1}
    v_mul_lo_u32 v{vDG}, v{vDG}, s{sPITCH}
    v_xor_b32 v{vT2}, 2, v{vT3}
    v_lshl_add_u32 v{vDU}, v{vT2}, 4, v{vDG}
    v_lshl_add_u32 v{vDG}, v{vT3}, 4, v{vDG}
    v_add_u32 v{vDG}, s{sT1}, v{vDG}
    v_add_u32 v{vDU}, s{sT2}, v{vDU}
    """)

    issued = []

    def kc_of(st):
        a(f"""
        s_add_u32 s{sKC}, s{sROT}, {st}
        s_cmp_ge_u32 s{sKC}, 7
        s_cselect_b32 s{sT0}, 7, 0
        s_sub_u32 s{sKC}, s{sKC}, s{sT0}
        """)

    def dma_A(st):
        slot = st % 3
        kc_of(st)
        a(f"""
        s_add_u32 m0, s{sMX}, {slot * 24576}
        s_lshl_b32 s{sOX}, s{sKC}, 7
        buffer_load_dwordx4 v{vDX0}, s[{S_X}:{S_X+3}], s{sOX} offen lds
        s_add_u32 m0, s{sMX}, {slot * 24576 + 1024}
        s_mul_i32 s{sOB0}, s{sKC}, s{sB0STR}
        buffer_load_dwordx4 v{vDX1}, s[{S_X}:{S_X+3}], s{sOX} offen lds
        s_add_u32 m0, s{sMB0}, {slot * 24576}
        s_nop 0
        buffer_load_dwordx4 v{vDB0}, s[{S_B0}:{S_B0+3}], s{sOB0} offen lds
        """)
        issued.extend([("A", st)] * 3)

    def dma_B(hs):
        slot = hs % 5
        kc_of(hs // 2)
        a(f"""
        s_lshl_b32 s{sKC}, s{sKC}, 6
        s_add_u32 s{sKC}, s{sKC}, {32 * (hs % 2)}
        s_add_u32 m0, s{sMG}, {K1_BRING + slot * 16384}
        s_mul_i32 s{sOG}, s{sKC}, s{sPITCH}
        buffer_load_dwordx4 v{vDG}, s[{S_G}:{S_G+3}], s{sOG} offen lds
        s_add_u32 m0, s{sMG}, {K1_BRING + slot * 16384 + 8192}
        s_nop 0
        buffer_load_dwordx4 v{vDU}, s[{S_U}:{S_U+3}], s{sOG} offen lds
        """)
        issued.extend([("B", hs)] * 2)

    def wait_for(tags, iss):
        idx = max([i for i, t in enumerate(iss) if t in tags], default=-1)
        return len(iss) - 1 - idx

    dma_A(0); dma_B(0); dma_B(1); dma_A(1); dma_B(2); dma_B(3)

    a(f"""
    v_and_b32 v{vT0}, 31, v{vLane}
    v_lshrrev_b32 v{vT1}, 5, v{vLane}
    v_bfe_u32 v{vT2}, v{vLane}, 1, 3
    v_xor_b32 v{vT2}, v{vT2}, v{vT1}
    s_lshl_b32 s{sT0}, s{sR}, 12
    s_add_u32 s{sT0}, s{sT0}, {K1_ARING}
    v_lshlrev_b32 v{vT3}, 7, v{vT0}
    v_lshl_add_u32 v{vT3}, v{vT2}, 4, v{vT3}
    v_add_u32 v{vAX}, s{sT0}, v{vT3}
    v_xor_b32 v{vAX+1}, 32, v{vAX}
    v_xor_b32 v{vAX+2}, 64, v{vAX}
    v_xor_b32 v{vAX+3}, 96, v{vAX}
    v_lshlrev_b32 v{vL16}, 4, v{vLane}
    """)
    vN, vR4, vC, vRow = TMP, TMP + 1, TMP + 2, TMP + 3
    a(f"""
    v_bfe_u32 v{vN}, v{vLane}, 4, 1
    v_bfe_u32 v{vR4}, v{vLane}, 2, 2
    v_and_b32 v{vC}, 3, v{vLane}
    v_lshl_add_u32 v{vRow}, v{vT1}, 3, v{vR4}
    """)
    a(f"""
    v_lshlrev_b32 v{vT2}, 1, v{vR4}
    v_xor_b32 v{vT2}, v{vT2}, v{vN}
    s_lshl_b32 s{sT0}, s{sGRP}, 2
    v_xor_b32 v{vT2}, s{sT0}, v{vT2}
    v_lshlrev_b32 v{vT3}, 8, v{vRow}
    v_lshl_add_u32 v{vT3}, v{vN}, 13, v{vT3}
    v_lshl_add_u32 v{vT3}, v{vT2}, 5, v{vT3}
    v_lshl_add_u32 v{vAF}, v{vC}, 3, v{vT3}
    v_xor_b32 v{vAF+1}, 32, v{vAF}
    v_xor_b32 v{vAF+2}, 64, v{vAF}
    v_xor_b32 v{vAF+3}, 96, v{vAF}
    v_add_u32 v{vAF+4}, 49152, v{vAF}
    v_add_u32 v{vAF+5}, 49152, v{vAF+1}
    v_add_u32 v{vAF+6}, 49152, v{vAF+2}
    v_add_u32 v{vAF+7}, 49152, v{vAF+3}
    """)
    for i in range(80):
        a(f"v_mov_b32 v{ACC+i}, 0")
    a(f"""
    s_cmp_ge_u32 s{sJ}, 14
    s_cbranch_scc1 k1_main_v
    """)
    issued0 = list(issued)

    def main(vtype):
        nonlocal issued
        issued = list(issued0)
        if not vtype:
            a(f"""
            v_and_b32 v{vT2}, 2, v{vR4}
            v_xor_b32 v{vT2}, v{vT2}, v{vN}
            s_lshl_b32 s{sT0}, s{sGRP}, 1
            v_xor_b32 v{vT2}, s{sT0}, v{vT2}
            v_lshlrev_b32 v{vT3}, 7, v{vRow}
            v_lshl_add_u32 v{vT3}, v{vT2}, 5, v{vT3}
            v_lshl_add_u32 v{vT3}, v{vC}, 3, v{vT3}
            v_add_u32 v{vAB0}, {K1_ARING + 16384}, v{vT3}
            """)
            a(f"""
            s_cmp_ge_u32 s{sJ}, 7
            s_cselect_b32 s{sT0}, 7, 0
            s_sub_u32 s{sT0}, s{sJ}, s{sT0}
            s_lshl_b32 s{sT0}, s{sT0}, 4
            s_lshl_b32 s{sT1}, s{sGRP}, 3
            s_add_u32 s{sT0}, s{sT0}, s{sT1}
            s_cmp_ge_u32 s{sJ}, 7
            s_cselect_b32 s{sT1}, 18, 17
            s_cselect_b32 s{sT2}, 12, 11
            s_lshl_b32 s{sT2}, s{sTILE}, s{sT2}
            s_cselect_b32 s{sKC}, {KVF}, {QF}
            """)
            a.lines.pop()
            a(f"""
            s_cmp_ge_u32 s{sJ}, 7
            s_cselect_b32 s{sKC}, {KVF}, {QF}
            s_cselect_b32 s{sSC}, 1.0, {f32bits(28 ** -0.5 * math.log2(math.e)):#x}
            s_add_u32 s{sT2}, s{sT2}, s{sKC}
            v_add_u32 v{vT2}, s{sT0}, v{vT1}
            v_lshlrev_b32 v{vT0}, 4, v{vT0}
            v_add_u32 v{vT0}, s{sT2}, v{vT0}
            """)
            for q in range(4):
                t0, t1, t2 = TMP + 8, TMP + 9, TMP + 10
                a(f"""
                v_add_u32 v{t0}, {2*q}, v{vT2}
                v_mul_u32_u24 v{t1}, 147, v{t0}
                v_lshrrev_b32 v{t1}, 10, v{t1}
                v_mul_u32_u24 v{t2}, 7, v{t1}
                v_sub_u32 v{t0}, v{t0}, v{t2}
                v_lshlrev_b32 v{t1}, s{sT1}, v{t1}
                v_add_u32 v{t1}, v{t1}, v{vT0}
                v_lshrrev_b32 v{t2}, 1, v{t0}
                v_lshl_add_u32 v{t1}, v{t2}, 9, v{t1}
                v_and_b32 v{t0}, 1, v{t0}
                v_lshl_add_u32 v{vST+q}, v{t0}, 3, v{t1}
                """)
        else:
            a(f"""
            v_lshlrev_b32 v{vT3}, 4, v{vT1}
            v_add_u32 v{vAB0}, s{sMB0}, v{vT3}
            """)
            a(f"""
            s_cmp_eq_u32 s{sJ}, 14
            s_cselect_b32 s{sT0}, 0, 256
            s_lshl_b32 s{sT1}, s{sGRP}, 6
            s_add_u32 s{sT0}, s{sT0}, s{sT1}
            v_mul_u32_u24 v{vT2}, 112, v{vN}
            v_add3_u32 v{vT2}, v{vT2}, v{vT0}, s{sT0}
            s_lshl_b32 s{sT2}, s{sTILE}, 12
            s_add_u32 s{sT2}, s{sT2}, {KVF + 2048}
            v_lshlrev_b32 v{vT3}, 9, v{vT1}
            v_add_u32 v{vT3}, s{sT2}, v{vT3}
            v_mov_b32 v{TMP+11}, {OOB}
            """)
            for tt in range(4):
                t0, t1, t2 = TMP + 8, TMP + 9, TMP + 10
                a(f"""
                v_add_u32 v{t0}, {16*tt}, v{vT2}
                v_mul_u32_u24 v{t1}, 2341, v{t0}
                v_lshrrev_b32 v{t1}, 16, v{t1}
                v_mul_u32_u24 v{t2}, 28, v{t1}
                v_sub_u32 v{t2}, v{t0}, v{t2}
                v_lshl_add_u32 v{t1}, v{t1}, 18, v{vT3}
                v_lshl_add_u32 v{t1}, v{t2}, 4, v{t1}
                v_cmp_gt_u32 vcc, 448, v{t0}
                s_nop 1
                v_cndmask_b32 v{vST+tt}, v{TMP+11}, v{t1}, vcc
                """)

        def reads(ks):
            st, s = ks // 4, ks % 4
            hs, s2 = ks // 2, ks % 2
            f = FR[ks % 2]
            aoff = (st % 3) * 24576
            out = [f"ds_read_b128 {vr(f, 4)}, v{vAX+s} offset:{aoff}"]
            if not vtype:
                for q in range(2):
                    out.append(f"ds_read_b64_tr_b16 {vr(f+4+2*q, 2)}, v{vAB0} offset:{aoff + (16*s + 4*q) * 128}")
            else:
                out.append(f"ds_read_b128 {vr(f+4, 4)}, v{vAB0} offset:{aoff + 32*s}")
            slot = hs % 5
            for tt in range(4):
                if slot < 3:
                    ar, boff = vAF + tt, slot * 16384
                else:
                    ar, boff = vAF + 4 + tt, (slot - 3) * 16384
                for q in range(2):
                    out.append(f"ds_read_b64_tr_b16 {vr(f+8+4*tt+2*q, 2)}, v{ar} offset:{boff + (16*s2 + 4*q) * 256}")
            return out

        def mfmas(ks):
            f = FR[ks % 2]
            out = []
            for t in range(5):
                w, x = vr(f + 4 + 4 * t, 4), vr(f, 4)
                c = vr(ACC + 16 * t, 16)
                if vtype and t > 0:
                    out.append(f"{MFMA} {c}, {x}, {w}, {c}")
                else:
                    out.append(f"{MFMA} {c}, {w}, {x}, {c}")
            return out

        n = wait_for({("A", 0), ("B", 0)}, issued)
        stamp(a, 1)
        a(f"s_waitcnt vmcnt({n})\ns_barrier")
        stamp(a, 2)
        for r in reads(0):
            a(r)
        for hs in range(14):
            if hs + 1 < 14:
                n = wait_for({("A", (hs + 1) // 2), ("B", hs + 1)}, issued)
                a(f"s_waitcnt vmcnt({n})\ns_barrier")
            if hs in (1, 3, 6, 10): stamp(a, {1: 3, 3: 4, 6: 5, 10: 6}[hs])
            for s2 in range(2):
                ks = 2 * hs + s2
                m = mfmas(ks)
                r = reads(ks + 1) if ks + 1 < 28 else []
                a("s_waitcnt lgkmcnt(0)")
                a(m[0])
                for x in r[:6]:
                    a(x)
                a(m[1])
                for x in r[6:]:
                    a(x)
                a(m[2])
                if s2 == 0:
                    if hs + 4 < 14:
                        dma_B(hs + 4)
                else:
                    pass
                a(m[3])
                if s2 == 0 and hs % 2 == 0 and hs // 2 + 2 < 7:
                    dma_A(hs // 2 + 2)
                a(m[4])
        a("s_nop 7\ns_nop 7")
        stamp(a, 7)

    main(False)
    a(f"""
    s_mov_b32 s{sC0}, {f32bits(-math.log2(math.e)):#x}
    s_mov_b32 s{sC1}, s{sC0}
    s_mul_i32 s{sHOFF}, s{sTILE}, 112
    s_lshl_b32 s{sT0}, s{sJ}, 3
    s_add_u32 s{sHOFF}, s{sHOFF}, s{sT0}
    s_lshl_b32 s{sT0}, s{sGRP}, 2
    s_add_u32 s{sHOFF}, s{sHOFF}, s{sT0}
    s_lshl_b32 s{sHOFF}, s{sHOFF}, 10
    s_add_u32 s{sHOFF}, s{sHOFF}, {HF}
    """)
    for i in range(16):
        a(f"v_mul_f32 v{ACC+i}, s{sSC}, v{ACC+i}")
    for q in range(4):
        a(f"""
        v_cvt_pk_bf16_f32 v{TMP+2*q}, v{ACC+4*q}, v{ACC+4*q+1}
        v_cvt_pk_bf16_f32 v{TMP+2*q+1}, v{ACC+4*q+2}, v{ACC+4*q+3}
        buffer_store_dwordx2 {vr(TMP+2*q, 2)}, v{vST+q}, s[{S_WS}:{S_WS+3}], 0 offen
        """)
    for tt in range(4):
        g = ACC + 16 * (tt + 1)
        u = g + 8
        t = TMP + 8 + (tt % 2) * 12
        for i in range(0, 8, 2):
            a(f"v_pk_mul_f32 {vr(t+i, 2)}, {vr(g+i, 2)}, s[{sC0}:{sC1}]")
        for i in range(8):
            a(f"v_exp_f32 v{t+i}, v{t+i}")
        for i in range(0, 8, 2):
            a(f"v_pk_mul_f32 {vr(g+i, 2)}, {vr(g+i, 2)}, {vr(u+i, 2)}")
        for i in range(0, 8, 2):
            a(f"v_pk_add_f32 {vr(t+i, 2)}, {vr(t+i, 2)}, 1.0 op_sel_hi:[1,0]")
        for i in range(8):
            a(f"v_rcp_f32 v{t+i}, v{t+i}")
        a("s_nop 0")
        for i in range(0, 8, 2):
            a(f"v_pk_mul_f32 {vr(g+i, 2)}, {vr(g+i, 2)}, {vr(t+i, 2)}")
        for i in range(4):
            a(f"v_cvt_pk_bf16_f32 v{t+8+i}, v{g+2*i}, v{g+2*i+1}")
        a(f"buffer_store_dwordx4 {vr(t+8, 4)}, v{vL16}, s[{S_WS}:{S_WS+3}], s{sHOFF} offen offset:{1024*tt}")
    stamp(a, 8)
    if INSTR: a("s_waitcnt vmcnt(0)")
    stamp(a, 9)
    stamp_flush(a, 0, 10, S_WS, sW, 2)
    a("s_endpgm")

    a.label("k1_main_v")
    main(True)
    for tt in range(4):
        c = ACC + 16 * (tt + 1)
        t = TMP + (tt % 2) * 8
        for i in range(8):
            a(f"v_cvt_pk_bf16_f32 v{t+i}, v{c+2*i}, v{c+2*i+1}")
        a(f"""
        buffer_store_dwordx4 {vr(t, 4)}, v{vST+tt}, s[{S_WS}:{S_WS+3}], 0 offen
        buffer_store_dwordx4 {vr(t+4, 4)}, v{vST+tt}, s[{S_WS}:{S_WS+3}], 0 offen offset:1024
        """)
    t = TMP + 16
    a(f"""
    s_cmp_eq_u32 s{sJ}, 14
    s_cbranch_scc1 k1_v_kpad
    v_mul_f32 v{t}, {f32bits(-math.log2(math.e)):#x}, v{ACC}
    v_exp_f32 v{t}, v{t}
    v_and_b32 v{t+1}, 31, v{vLane}
    v_add_f32 v{t}, 1.0, v{t}
    v_rcp_f32 v{t}, v{t}
    v_lshlrev_b32 v{t+1}, 2, v{t+1}
    s_lshl_b32 s{sT0}, s{sTILE}, 7
    s_add_u32 s{sT0}, s{sT0}, {GF}
    buffer_store_dword v{t}, v{t+1}, s[{S_WS}:{S_WS+3}], s{sT0} offen
    """)
    a(f"""
    v_bfe_u32 v{t}, v{vLane}, 4, 1
    v_lshlrev_b32 v{t}, 18, v{t}
    v_bfe_u32 v{t+1}, v{vLane}, 2, 2
    v_lshl_add_u32 v{t}, v{t+1}, 12, v{t}
    v_and_b32 v{t+1}, 3, v{vLane}
    v_lshl_add_u32 v{t}, v{t+1}, 9, v{t}
    s_lshl_b32 s{sT0}, s{sW}, 19
    s_lshl_b32 s{sT1}, s{sMI}, 14
    s_add_u32 s{sT0}, s{sT0}, s{sT1}
    s_add_u32 s{sT0}, s{sT0}, {KVF + 2048 + 28 * 16}
    v_mov_b32 v{t+4}, 0x3f803f80
    v_mov_b32 v{t+5}, 0x3f803f80
    v_mov_b32 v{t+6}, 0x3f803f80
    v_mov_b32 v{t+7}, 0x3f803f80
    buffer_store_dwordx4 {vr(t+4, 4)}, v{t}, s[{S_WS}:{S_WS+3}], s{sT0} offen
    s_endpgm
    """)
    a.label("k1_v_kpad")
    a(f"""
    v_and_b32 v{t}, 31, v{vLane}
    v_lshlrev_b32 v{t}, 4, v{t}
    v_lshrrev_b32 v{t+1}, 5, v{vLane}
    v_lshl_add_u32 v{t}, v{t+1}, 12, v{t}
    s_lshl_b32 s{sT0}, s{sW}, 19
    s_lshl_b32 s{sT1}, s{sMI}, 14
    s_add_u32 s{sT0}, s{sT0}, s{sT1}
    s_add_u32 s{sT0}, s{sT0}, {KVF + 1024 + 512 + 8}
    v_mov_b32 v{t+4}, 0x3f803f80
    v_mov_b32 v{t+5}, 0
    s_add_u32 s{sT1}, s{sT0}, 8192
    s_add_u32 s{sT2}, s{sT0}, {1 << 18}
    s_add_u32 s{sKC}, s{sT2}, 8192
    buffer_store_dwordx2 {vr(t+4, 2)}, v{t}, s[{S_WS}:{S_WS+3}], s{sT0} offen
    buffer_store_dwordx2 {vr(t+4, 2)}, v{t}, s[{S_WS}:{S_WS+3}], s{sT1} offen
    buffer_store_dwordx2 {vr(t+4, 2)}, v{t}, s[{S_WS}:{S_WS+3}], s{sT2} offen
    buffer_store_dwordx2 {vr(t+4, 2)}, v{t}, s[{S_WS}:{S_WS+3}], s{sKC} offen
    """)
    a.label("k1_end")
    a("s_endpgm")
    return a.text(), NV


K2_NS = 8
K2_LDS = K2_NS * 16384


def gen_k2():
    a = Asm()
    S_WS = 8
    sHEAD, sQB, sW, sQT, sKH, sT0, sT1, sT2 = 12, 13, 14, 15, 16, 17, 18, 19
    sM0, sSRC, sST, sOFF, sIT, sKV = 20, 21, 22, 23, 24, 25
    vLane, vL16, vT0, vT1, vT2, vT3 = 1, 2, 3, 4, 5, 6
    vCur, vNxt, vG = 7, 8, 9
    vM = 10
    Q = 12
    K = 20
    V = 28
    P = 36
    O = 48
    S = [64, 80]
    TMP = 96
    NV = 128
    stamp_init(a); stamp(a, 0)
    a(f"""
    s_cmp_ge_u32 s2, 256
    s_cbranch_scc1 k2_end
    s_load_dwordx2 s[4:5], s[0:1], 80
    v_and_b32 v{vLane}, 63, v0
    v_lshrrev_b32 v{vT0}, 6, v0
    s_and_b32 s{sT0}, s2, 7
    s_lshr_b32 s{sT1}, s2, 3
    v_readfirstlane_b32 s{sW}, v{vT0}
    s_lshl_b32 s{sHEAD}, s{sT0}, 1
    s_and_b32 s{sT2}, s{sT1}, 1
    s_add_u32 s{sHEAD}, s{sHEAD}, s{sT2}
    s_lshr_b32 s{sQB}, s{sT1}, 1
    v_lshlrev_b32 v{vL16}, 4, v{vLane}
    s_and_b32 s{sQT}, s{sW}, 3
    s_lshr_b32 s{sKH}, s{sW}, 2
    s_lshl_b32 s{sT0}, s{sQB}, 2
    s_add_u32 s{sQT}, s{sQT}, s{sT0}
    s_lshl_b32 s{sKV}, s{sHEAD}, 18
    s_add_u32 s{sKV}, s{sKV}, {KVF}
    """)
    a(f"""
    s_lshl_b32 s{sM0}, s{sW}, 11
    s_lshl_b32 s{sSRC}, s{sKH}, 17
    s_and_b32 s{sT0}, s{sW}, 3
    s_lshl_b32 s{sT0}, s{sT0}, 11
    s_add_u32 s{sSRC}, s{sSRC}, s{sT0}
    s_add_u32 s{sSRC}, s{sSRC}, s{sKV}
    s_waitcnt lgkmcnt(0)
    """)
    srd(a, S_WS, 4, WS_BYTES)
    a(f"""
    s_lshl_b32 s{sT0}, s{sHEAD}, 6
    s_add_u32 s{sT0}, s{sT0}, s{sQT}
    s_lshl_b32 s{sT0}, s{sT0}, 11
    s_add_u32 s{sT0}, s{sT0}, {QF}
    buffer_load_dwordx4 {vr(Q, 4)}, v{vL16}, s[{S_WS}:{S_WS+3}], s{sT0} offen
    buffer_load_dwordx4 {vr(Q+4, 4)}, v{vL16}, s[{S_WS}:{S_WS+3}], s{sT0} offen offset:1024
    v_and_b32 v{vT0}, 31, v{vLane}
    v_lshlrev_b32 v{vT0}, 2, v{vT0}
    s_lshl_b32 s{sT1}, s{sQT}, 7
    s_add_u32 s{sT1}, s{sT1}, {GF}
    buffer_load_dword v{vG}, v{vT0}, s[{S_WS}:{S_WS+3}], s{sT1} offen
    """)
    PRE = K2_NS - 2
    for s in range(PRE):
        a(f"""
        s_add_u32 s{sT0}, s{sQB}, {s}
        s_and_b32 s{sT0}, s{sT0}, 15
        s_lshl_b32 s{sT0}, s{sT0}, 13
        s_add_u32 m0, s{sM0}, {s * 16384}
        s_add_u32 s{sT0}, s{sT0}, s{sSRC}
        buffer_load_dwordx4 v{vL16}, s[{S_WS}:{S_WS+3}], s{sT0} offen lds
        buffer_load_dwordx4 v{vL16}, s[{S_WS}:{S_WS+3}], s{sT0} offen offset:1024 lds
        """)
    a(f"""
    s_lshl_b32 s{sT0}, s{sKH}, 13
    v_add_u32 v{vCur}, s{sT0}, v{vL16}
    v_add_u32 v{vNxt}, 16384, v{vCur}
    v_cmp_lt_u32 vcc, 31, v{vLane}
    """)
    for i in range(16):
        a(f"v_mov_b32 v{O+i}, 0")
    stamp(a, 1)
    a(f"""
    s_waitcnt vmcnt({2 * (PRE - 1)})
    s_barrier
    """)
    stamp(a, 2)
    a(f"""
    ds_read_b128 {vr(K, 4)}, v{vL16}
    ds_read_b128 {vr(K+4, 4)}, v{vL16} offset:1024
    v_mov_b32 v{vT0}, 0
    v_cndmask_b32 v{Q+6}, v{Q+6}, v{vT0}, vcc
    v_cndmask_b32 v{Q+7}, v{Q+7}, v{vT0}, vcc
    s_waitcnt lgkmcnt(0)
    {MFMA} {vr(S[0], 16)}, {vr(K, 4)}, {vr(Q, 4)}, 0
    {MFMA} {vr(S[0], 16)}, {vr(K+4, 4)}, {vr(Q+4, 4)}, {vr(S[0], 16)}
    ds_read_b128 {vr(K, 4)}, v{vCur}
    ds_read_b128 {vr(K+4, 4)}, v{vCur} offset:1024
    ds_read_b128 {vr(V, 4)}, v{vCur} offset:2048
    s_nop 15
    """)
    s0 = S[0]
    a(f"v_max3_f32 v{vM}, v{s0}, v{s0+1}, v{s0+2}")
    for i in range(3, 15, 2):
        a(f"v_max3_f32 v{vM}, v{vM}, v{s0+i}, v{s0+i+1}")
    a(f"""
    v_max_f32 v{vM}, v{vM}, v{s0+15}
    v_mov_b32 v{vT0}, v{vM}
    s_nop 1
    v_permlane32_swap_b32 v{vM}, v{vT0}
    v_max_f32 v{vM}, v{vM}, v{vT0}
    v_sub_f32 v{vM}, 0, v{vM}
    v_cvt_pk_bf16_f32 v{vT0}, v{vM}, v{vM}
    v_lshlrev_b32 v{vT0}, 16, v{vT0}
    v_sub_f32 v{vT0}, v{vM}, v{vT0}
    v_cvt_pk_bf16_f32 v{vT0}, v{vM}, v{vT0}
    v_cndmask_b32 v{Q+6}, v{Q+6}, v{vT0}, vcc
    s_waitcnt lgkmcnt(1)
    s_nop 0
    {MFMA} {vr(S[0], 16)}, {vr(K, 4)}, {vr(Q, 4)}, 0
    {MFMA} {vr(S[0], 16)}, {vr(K+4, 4)}, {vr(Q+4, 4)}, {vr(S[0], 16)}
    ds_read_b128 {vr(K, 4)}, v{vCur} offset:4096
    ds_read_b128 {vr(K+4, 4)}, v{vCur} offset:5120
    """)
    for i in range(4):
        a(f"v_mov_b32 v{P+4+i}, 0\nv_mov_b32 v{V+4+i}, 0")
    a(f"""
    s_mov_b32 s{sST}, {PRE}
    s_nop 7
    """)
    a.label("k2_loop")
    X = os.environ.get("K2X", "")
    if "novm" not in X: a(f"s_waitcnt vmcnt({2 * (PRE - 2)})")
    if "nobar" not in X: a("s_barrier")
    if "prio" in X: pass
    a(f"""
    s_add_u32 s{sT0}, s{sQB}, s{sST}
    s_and_b32 s{sT0}, s{sT0}, 15
    s_lshl_b32 s{sT0}, s{sT0}, 13
    s_add_u32 s{sT0}, s{sT0}, s{sSRC}
    s_cmp_lt_u32 s{sST}, 16
    s_cselect_b32 s{sT0}, s{sT0}, {OOB}
    s_and_b32 s{sT1}, s{sST}, {K2_NS - 1}
    s_lshl_b32 s{sT1}, s{sT1}, 14
    s_add_u32 m0, s{sT1}, s{sM0}
    """)

    def phase(par):
        sc, sn = S[par], S[1 - par]
        e = [f"v_exp_f32 v{sc+i}, v{sc+i}" for i in range(16)]
        c = [f"v_cvt_pk_bf16_f32 v{P+i}, v{sc+2*i}, v{sc+2*i+1}" for i in range(8)]
        a(f"{MFMA} {vr(O, 16)}, {vr(V+4, 4)}, {vr(P+4, 4)}, {vr(O, 16)}")
        a(f"ds_read_b128 {vr(V+4, 4)}, v{vCur} offset:{par*4096 + 3072}")
        if par == 0 and "nodma" not in X:
            a(f"buffer_load_dwordx4 v{vL16}, s[{S_WS}:{S_WS+3}], s{sT0} offen lds")
        for x in e[0:3]:
            a(x)
        a("s_waitcnt lgkmcnt(1)")
        a(f"{MFMA} {vr(sn, 16)}, {vr(K, 4)}, {vr(Q, 4)}, 0")
        if par == 0 and "nodma" not in X:
            a(f"buffer_load_dwordx4 v{vL16}, s[{S_WS}:{S_WS+3}], s{sT0} offen offset:1024 lds")
        for x in e[3:7]:
            a(x)
        a(f"{MFMA} {vr(sn, 16)}, {vr(K+4, 4)}, {vr(Q+4, 4)}, {vr(sn, 16)}")
        a(e[7])
        a(e[8])
        for x in c[0:4]:
            a(x)
        a(e[9])
        a(e[10])
        a(f"{MFMA} {vr(O, 16)}, {vr(V, 4)}, {vr(P, 4)}, {vr(O, 16)}")
        if par == 0:
            a(f"ds_read_b128 {vr(V, 4)}, v{vCur} offset:{4096 + 2048}")
        else:
            a(f"ds_read_b128 {vr(V, 4)}, v{vNxt} offset:2048")
        a(f"ds_read_b128 {vr(K, 4)}, v{vNxt} offset:{par*4096}")
        a(f"ds_read_b128 {vr(K+4, 4)}, v{vNxt} offset:{par*4096 + 1024}")
        for x in e[11:16]:
            a(x)
        a(c[4]); a(c[5]); a(c[6]); a(c[7])
        a("s_waitcnt lgkmcnt(3)")
        if par == 1:
            a(f"v_mov_b32 v{vCur}, v{vNxt}")
            a(f"v_add_u32 v{vNxt}, 16384, v{vNxt}")
            a(f"v_and_b32 v{vNxt}, {K2_LDS - 1}, v{vNxt}")
        else:
            a("s_nop 0")

    n0 = len(a.lines)
    phase(0)
    phase(1)
    if "nods" in X:
        a.lines[n0:] = [l for l in a.lines[n0:] if "ds_read" not in l]
    if "nowait" in X:
        a.lines[n0:] = [l for l in a.lines[n0:] if "s_waitcnt" not in l]
    if "nomfma" in X:
        a.lines[n0:] = [l for l in a.lines[n0:] if "mfma" not in l]
    a(f"""
    s_add_u32 s{sST}, s{sST}, 1
    s_cmp_lt_u32 s{sST}, {16 + PRE}
    s_cbranch_scc1 k2_loop
    {MFMA} {vr(O, 16)}, {vr(V+4, 4)}, {vr(P+4, 4)}, {vr(O, 16)}
    s_waitcnt vmcnt(0) lgkmcnt(0)
    """)
    stamp(a, 3)
    a(f"""
    s_barrier
    s_and_b32 s{sT0}, s{sW}, 3
    s_lshl_b32 s{sT0}, s{sT0}, 12
    v_add_u32 v{vT0}, s{sT0}, v{vL16}
    s_nop 7
    s_cmp_eq_u32 s{sKH}, 0
    s_cbranch_scc1 k2_merge
    """)
    for q in range(4):
        a(f"ds_write_b128 v{vT0}, {vr(O+4*q, 4)} offset:{1024*q}")
    a("""
    s_waitcnt lgkmcnt(0)
    s_barrier
    """)
    stamp(a, 4); stamp(a, 5)
    stamp_flush(a, 1, 6, S_WS, sW, 2)
    a("s_endpgm")
    a.label("k2_merge")
    a("s_barrier")
    for q in range(4):
        a(f"ds_read_b128 {vr(S[0]+4*q, 4)}, v{vT0} offset:{1024*q}")
    a("s_waitcnt lgkmcnt(0)")
    for i in range(16):
        a(f"v_add_f32 v{O+i}, v{O+i}, v{S[0]+i}")
    a(f"""
    v_mov_b32 v{vT0}, v{O+12}
    v_mov_b32 v{vT1}, v{O+12}
    s_nop 1
    v_permlane32_swap_b32 v{vT0}, v{vT1}
    """)
    a(f"v_cmp_lt_u32 vcc, 31, v{vLane}")
    a(f"v_mul_f32 v{vT2}, 0, v{O}")
    for i in range(1, 12):
        a(f"v_fma_f32 v{vT2}, v{O+i}, 0, v{vT2}")
    a(f"v_mul_f32 v{vT3}, 0, v{O+12}")
    for i in range(13, 16):
        a(f"v_fma_f32 v{vT3}, v{O+i}, 0, v{vT3}")
    a(f"""
    v_cndmask_b32 v{vT3}, v{vT3}, v{vT2}, vcc
    v_add_f32 v{vT2}, v{vT2}, v{vT3}
    v_add_f32 v{vT2}, v{vT2}, v{vT1}
    s_mov_b32 s{sT0}, {f32bits(2.0**-10):#x}
    s_mov_b32 s{sT1}, {f32bits(2.0**100):#x}
    v_cmp_le_f32 s[26:27], s{sT0}, v{vT2}
    v_cmp_ge_f32 vcc, s{sT1}, v{vT2}
    s_and_b64 s[26:27], s[26:27], vcc
    s_cmp_eq_u64 s[26:27], -1
    s_cbranch_scc0 k2_fallback
    """)
    a.label("k2_final")
    a(f"""
    v_rcp_f32 v{vT1}, v{vT1}
    v_lshrrev_b32 v{vT2}, 5, v{vLane}
    s_mul_i32 s{sT0}, s{sHEAD}, 7
    v_mul_f32 v{vT1}, v{vT1}, v{vG}
    v_add_u32 v{vT2}, s{sT0}, v{vT2}
    v_and_b32 v{vT3}, 31, v{vLane}
    v_lshlrev_b32 v{vT3}, 4, v{vT3}
    s_mul_i32 s{sT1}, s{sQT}, {28 * 1024}
    s_add_u32 s{sT1}, s{sT1}, {OF}
    v_cmp_lt_u32 vcc, 31, v{vLane}
    v_mov_b32 v{TMP+15}, {OOB}
    """)
    for i in range(16):
        a(f"v_mul_f32 v{O+i}, v{O+i}, v{vT1}")
    for q in range(4):
        t0, t1, t2 = TMP + 8, TMP + 9, TMP + 10 + q
        a(f"""
        v_cvt_pk_bf16_f32 v{TMP+2*q}, v{O+4*q}, v{O+4*q+1}
        v_cvt_pk_bf16_f32 v{TMP+2*q+1}, v{O+4*q+2}, v{O+4*q+3}
        v_add_u32 v{t0}, {2*q}, v{vT2}
        v_lshrrev_b32 v{t1}, 2, v{t0}
        v_lshl_add_u32 v{t2}, v{t1}, 10, v{vT3}
        v_and_b32 v{t1}, 1, v{t0}
        v_lshl_add_u32 v{t2}, v{t1}, 9, v{t2}
        v_bfe_u32 v{t1}, v{t0}, 1, 1
        v_lshl_add_u32 v{t2}, v{t1}, 3, v{t2}
        """)
        if q == 3:
            a(f"v_cndmask_b32 v{t2}, v{t2}, v{TMP+15}, vcc")
        a(f"buffer_store_dwordx2 {vr(TMP+2*q, 2)}, v{t2}, s[{S_WS}:{S_WS+3}], s{sT1} offen")
    stamp(a, 4)
    if INSTR: a("s_waitcnt vmcnt(0)")
    stamp(a, 5)
    stamp_flush(a, 1, 6, S_WS, sW, 2)
    a("s_endpgm")

    a.label("k2_fallback")
    sc = S[0]
    vMo, vMn, vAl = TMP, TMP + 1, TMP + 2
    a(f"""
    v_cmp_lt_u32 vcc, 31, v{vLane}
    v_mov_b32 v{vT0}, 0
    v_mov_b32 v{vMo}, 0xff800000
    v_cndmask_b32 v{Q+6}, v{Q+6}, v{vT0}, vcc
    s_mov_b32 s{sIT}, 0
    s_mov_b32 s{sOFF}, s{sKV}
    """)
    for i in range(16):
        a(f"v_mov_b32 v{O+i}, 0")
    a.label("k2_fb_loop")
    a(f"""
    buffer_load_dwordx4 {vr(K, 4)}, v{vL16}, s[{S_WS}:{S_WS+3}], s{sOFF} offen
    buffer_load_dwordx4 {vr(K+4, 4)}, v{vL16}, s[{S_WS}:{S_WS+3}], s{sOFF} offen offset:1024
    buffer_load_dwordx4 {vr(V, 4)}, v{vL16}, s[{S_WS}:{S_WS+3}], s{sOFF} offen offset:2048
    buffer_load_dwordx4 {vr(V+4, 4)}, v{vL16}, s[{S_WS}:{S_WS+3}], s{sOFF} offen offset:3072
    s_waitcnt vmcnt(0)
    {MFMA} {vr(sc, 16)}, {vr(K, 4)}, {vr(Q, 4)}, 0
    {MFMA} {vr(sc, 16)}, {vr(K+4, 4)}, {vr(Q+4, 4)}, {vr(sc, 16)}
    s_nop 15
    v_max3_f32 v{vMn}, v{vMo}, v{sc}, v{sc+1}
    """)
    for i in range(2, 16, 2):
        a(f"v_max3_f32 v{vMn}, v{vMn}, v{sc+i}, v{sc+i+1}")
    a(f"""
    v_mov_b32 v{vT0}, v{vMn}
    s_nop 1
    v_permlane32_swap_b32 v{vMn}, v{vT0}
    v_max_f32 v{vMn}, v{vMn}, v{vT0}
    v_sub_f32 v{vAl}, v{vMo}, v{vMn}
    v_exp_f32 v{vAl}, v{vAl}
    v_mov_b32 v{vMo}, v{vMn}
    """)
    for i in range(16):
        a(f"v_sub_f32 v{sc+i}, v{sc+i}, v{vMn}")
    for i in range(16):
        a(f"v_exp_f32 v{sc+i}, v{sc+i}")
    for i in range(16):
        a(f"v_mul_f32 v{O+i}, v{O+i}, v{vAl}")
    for i in range(8):
        a(f"v_cvt_pk_bf16_f32 v{P+i}, v{sc+2*i}, v{sc+2*i+1}")
    a(f"""
    s_nop 1
    {MFMA} {vr(O, 16)}, {vr(V, 4)}, {vr(P, 4)}, {vr(O, 16)}
    {MFMA} {vr(O, 16)}, {vr(V+4, 4)}, {vr(P+4, 4)}, {vr(O, 16)}
    s_add_u32 s{sOFF}, s{sOFF}, 4096
    s_add_u32 s{sIT}, s{sIT}, 1
    s_cmp_lt_u32 s{sIT}, 64
    s_cbranch_scc1 k2_fb_loop
    s_nop 15
    v_mov_b32 v{vT0}, v{O+12}
    v_mov_b32 v{vT1}, v{O+12}
    s_nop 1
    v_permlane32_swap_b32 v{vT0}, v{vT1}
    s_branch k2_final
    """)
    a.label("k2_end")
    a("s_endpgm")
    return a.text(), NV


K3_D = 7
K3_LDS = 65536


def gen_k3():
    a = Asm()
    S_WS, S_W, S_OUT, S_WD, S_WO = 8, 12, 16, 20, 24
    sMT, sNT, sW, sT0, sT1, sT2 = 28, 29, 30, 31, 32, 33
    sA, sASTR, sB, sIT, sM0, sNIT, sSW = 34, 35, 36, 37, 38, 39, 40
    sAO, sBO = 41, 42
    vLane, vL16, vT0, vT1, vT2, vT3 = 1, 2, 3, 4, 5, 6
    vDW, vAW, vG0, vG1, vA1 = 7, 8, 10, 11, 12
    ACT = 16
    WF = [72, 80]
    ACC = 96
    TMP = 160
    NV = 208
    stamp_init(a); stamp(a, 0)
    a(f"""
    s_cmp_ge_u32 s2, 224
    s_cbranch_scc1 k3_end
    s_load_dwordx2 s[52:53], s[0:1], 16
    s_load_dwordx2 s[54:55], s[0:1], 48
    s_load_dwordx2 s[56:57], s[0:1], 64
    s_load_dwordx2 s[58:59], s[0:1], 80
    v_and_b32 v{vLane}, 63, v0
    v_lshrrev_b32 v{vT0}, 6, v0
    s_and_b32 s{sT0}, s2, 7
    s_lshr_b32 s{sT1}, s2, 3
    v_readfirstlane_b32 s{sW}, v{vT0}
    s_lshl_b32 s{sMT}, s{sT0}, 2
    s_and_b32 s{sT2}, s{sT1}, 3
    s_add_u32 s{sMT}, s{sMT}, s{sT2}
    s_lshr_b32 s{sNT}, s{sT1}, 2
    v_lshlrev_b32 v{vL16}, 4, v{vLane}
    """)
    a(f"""
    v_lshrrev_b32 v{vT0}, 3, v{vLane}
    v_bfe_u32 v{vT1}, v{vLane}, 4, 1
    v_lshlrev_b32 v{vT1}, 2, v{vT1}
    v_and_b32 v{vT2}, 7, v{vLane}
    v_xor_b32 v{vT1}, v{vT1}, v{vT2}
    v_mul_u32_u24 v{vDW}, 896, v{vT0}
    v_lshl_add_u32 v{vDW}, v{vT1}, 4, v{vDW}
    s_lshl_b32 s{sT0}, s{sNT}, 7
    v_add_u32 v{vDW}, s{sT0}, v{vDW}
    s_mul_i32 s{sM0}, s{sW}, {K3_D * 2048}
    """)
    a(f"""
    s_mul_i32 s{sT0}, s{sW}, 35
    s_sub_u32 s{sT0}, s{sT0}, 28
    s_cmp_eq_u32 s{sW}, 0
    s_cselect_b32 s{sT0}, 0, s{sT0}
    s_cselect_b32 s{sSW}, 1, 100
    s_mul_i32 s{sA}, s{sMT}, 224
    s_add_u32 s{sA}, s{sA}, s{sT0}
    s_lshl_b32 s{sA}, s{sA}, 10
    s_add_u32 s{sA}, s{sA}, {HF}
    s_mul_i32 s{sB}, s{sT0}, {16 * 896}
    v_add_u32 v{vA1}, {112 * 1024}, v{vL16}
    s_waitcnt lgkmcnt(0)
    """)
    srd(a, S_WS, 58, WS_BYTES)
    srd(a, S_W, 54, 1792 * 448 * 2)
    srd(a, S_OUT, 56, 2048 * 448 * 2)

    def loads(i):
        a(f"""
        s_add_u32 s{sAO}, s{sA}, {i * 1024}
        s_add_u32 m0, s{sM0}, {i * 2048}
        s_add_u32 s{sBO}, s{sB}, {i * 16 * 896}
        buffer_load_dwordx4 {vr(ACT+8*i, 4)}, v{vL16}, s[{S_WS}:{S_WS+3}], s{sAO} offen
        buffer_load_dwordx4 v{vDW}, s[{S_W}:{S_W+3}], s{sBO} offen lds
        s_add_u32 m0, s{sM0}, {i * 2048 + 1024}
        s_add_u32 s{sBO}, s{sBO}, {8 * 896}
        buffer_load_dwordx4 {vr(ACT+8*i+4, 4)}, v{vA1}, s[{S_WS}:{S_WS+3}], s{sAO} offen
        buffer_load_dwordx4 v{vDW}, s[{S_W}:{S_W+3}], s{sBO} offen lds
        """)

    a(f"""
    v_and_b32 v{vT0}, 31, v{vLane}
    v_lshlrev_b32 v{vT0}, 2, v{vT0}
    s_lshl_b32 s{sT1}, s{sMT}, 8
    s_add_u32 s{sT1}, s{sT1}, {GF}
    buffer_load_dword v{vG0}, v{vT0}, s[{S_WS}:{S_WS+3}], s{sT1} offen
    buffer_load_dword v{vG1}, v{vT0}, s[{S_WS}:{S_WS+3}], s{sT1} offen offset:128
    """)
    for i in range(K3_D):
        loads(i)
    a(f"""
    v_bfe_u32 v{vT0}, v{vLane}, 4, 1
    v_bfe_u32 v{vT1}, v{vLane}, 2, 2
    v_and_b32 v{vT2}, 2, v{vT1}
    v_xor_b32 v{vT2}, v{vT2}, v{vT0}
    v_lshrrev_b32 v{vT3}, 5, v{vLane}
    v_lshl_add_u32 v{vT3}, v{vT3}, 2, v{vT1}
    v_lshlrev_b32 v{vT3}, 7, v{vT3}
    v_lshl_add_u32 v{vT3}, v{vT2}, 5, v{vT3}
    v_and_b32 v{vT2}, 3, v{vLane}
    v_lshl_add_u32 v{vT3}, v{vT2}, 3, v{vT3}
    v_add_u32 v{vAW}, s{sM0}, v{vT3}
    v_xor_b32 v{vAW+1}, 64, v{vAW}
    s_mov_b32 s{sIT}, 0
    """)
    for i in range(64):
        a(f"v_mov_b32 v{ACC+i}, 0")

    def wreads(i, buf):
        for T in range(2):
            for q in range(2):
                a(f"ds_read_b64_tr_b16 {vr(WF[buf]+4*T+2*q, 2)}, v{vAW+T} offset:{i*2048 + q*1024}")

    stamp(a, 1)
    a.label("k3_loop")
    a(f"""
    s_add_u32 s{sIT}, s{sIT}, 1
    s_add_u32 s{sA}, s{sA}, {K3_D * 1024}
    s_add_u32 s{sB}, s{sB}, {K3_D * 16 * 896}
    s_cmp_eq_u32 s{sIT}, s{sSW}
    s_cbranch_scc0 k3_noswitch
    s_mul_i32 s{sA}, s{sMT}, {56 * 1024}
    s_add_u32 s{sA}, s{sA}, {OF}
    s_mov_b32 s{sB}, 0
    s_mov_b32 s{S_W}, s52
    s_mov_b32 s{S_W+1}, s53
    s_mov_b32 s{S_W+2}, {448 * 448 * 2}
    v_add_u32 v{vA1}, {28 * 1024}, v{vL16}
    """)
    a.label("k3_noswitch")
    a(f"""
    s_cmp_eq_u32 s{sIT}, 5
    s_cselect_b32 s{sA}, {OOB}, s{sA}
    s_cselect_b32 s{sB}, {OOB}, s{sB}
    """)
    for i in range(K3_D):
        a(f"s_waitcnt vmcnt({4 * (K3_D - 1)})")
        wreads(i, i % 2)
        a("s_waitcnt lgkmcnt(0)")
        for T in range(2):
            for mt in range(2):
                c = vr(ACC + 16 * (2 * T + mt), 16)
                a(f"{MFMA} {c}, {vr(WF[i%2]+4*T, 4)}, {vr(ACT+8*i+4*mt, 4)}, {c}")
        loads(i)
    a(f"""
    s_cmp_eq_u32 s{sIT}, s{sSW}
    s_cbranch_scc1 k3_scale
    s_cmp_lt_u32 s{sIT}, 5
    s_cbranch_scc1 k3_loop
    s_cmp_eq_u32 s{sW}, 0
    s_cbranch_scc1 k3_reduce
    """)
    a.label("k3_scale")
    a(f"""
    v_sub_f32 v{vT0}, 1.0, v{vG0}
    v_sub_f32 v{vT1}, 1.0, v{vG1}
    s_nop 7
    s_nop 3
    """)
    for T in range(2):
        for mt in range(2):
            for i in range(16):
                r = ACC + 16 * (2 * T + mt) + i
                a(f"v_mul_f32 v{r}, v{r}, v{vT0 + mt}")
    a(f"""
    s_cmp_lt_u32 s{sIT}, 5
    s_cbranch_scc1 k3_loop
    """)
    a.label("k3_reduce")
    stamp(a, 2)
    a(f"""
    s_waitcnt vmcnt(0) lgkmcnt(0)
    s_barrier
    s_lshl_b32 s{sT0}, s{sW}, 12
    v_add_u32 v{vT0}, s{sT0}, v{vL16}
    s_lshl_b32 s{sT0}, s{sW}, 14
    v_add_u32 v{vT1}, s{sT0}, v{vL16}
    s_nop 7
    """)
    for t in range(4):
        for q in range(4):
            a(f"ds_write_b128 v{vT0}, {vr(ACC+16*t+4*q, 4)} offset:{t*16384 + q*1024}")
    a("s_waitcnt lgkmcnt(0)\ns_barrier")
    for sw in range(4):
        for q in range(4):
            a(f"ds_read_b128 {vr(ACC+16*sw+4*q, 4)}, v{vT1} offset:{sw*4096 + q*1024}")
    a(f"""
    v_and_b32 v{vT2}, 31, v{vLane}
    v_mul_u32_u24 v{vT2}, 896, v{vT2}
    v_lshrrev_b32 v{vT3}, 5, v{vLane}
    v_lshl_add_u32 v{vT2}, v{vT3}, 4, v{vT2}
    s_lshl_b32 s{sT0}, s{sMT}, 1
    s_and_b32 s{sT1}, s{sW}, 1
    s_add_u32 s{sT0}, s{sT0}, s{sT1}
    s_mul_i32 s{sT0}, s{sT0}, {32 * 896}
    s_lshl_b32 s{sT1}, s{sNT}, 7
    s_add_u32 s{sT0}, s{sT0}, s{sT1}
    s_lshr_b32 s{sT1}, s{sW}, 1
    s_lshl_b32 s{sT1}, s{sT1}, 6
    s_add_u32 s{sT0}, s{sT0}, s{sT1}
    s_waitcnt lgkmcnt(0)
    """)
    for i in range(16):
        a(f"v_add_f32 v{ACC+i}, v{ACC+i}, v{ACC+16+i}")
        a(f"v_add_f32 v{ACC+32+i}, v{ACC+32+i}, v{ACC+48+i}")
    for i in range(16):
        a(f"v_add_f32 v{ACC+i}, v{ACC+i}, v{ACC+32+i}")
    for i in range(8):
        a(f"v_cvt_pk_bf16_f32 v{TMP+i}, v{ACC+2*i}, v{ACC+2*i+1}")
    a(f"""
    s_nop 1
    v_permlane32_swap_b32 v{TMP}, v{TMP+2}
    v_permlane32_swap_b32 v{TMP+1}, v{TMP+3}
    v_permlane32_swap_b32 v{TMP+4}, v{TMP+6}
    v_permlane32_swap_b32 v{TMP+5}, v{TMP+7}
    buffer_store_dwordx4 {vr(TMP, 4)}, v{vT2}, s[{S_OUT}:{S_OUT+3}], s{sT0} offen
    buffer_store_dwordx4 {vr(TMP+4, 4)}, v{vT2}, s[{S_OUT}:{S_OUT+3}], s{sT0} offen offset:32
    """)
    stamp(a, 3)
    if INSTR: a("s_waitcnt vmcnt(0)")
    stamp(a, 4)
    stamp_flush(a, 2, 5, S_WS, sW, 2)
    a.label("k3_end")
    a("s_endpgm")
    return a.text(), NV


def build():
    ref = open(f"cdna_kernels/{NAME}.s.ref").read().split("\n")
    hdr = [l for l in ref if l.startswith(";") and "@launch" not in l and "Override launch" not in l and "grid=ceil" not in l]
    k1, v1 = gen_k1()
    k2, v2 = gen_k2()
    k3, v3 = gen_k3()
    out = "\n".join(hdr) + "\n"
    out += f"; @launch kernel=k1_kernel grid=(256,1,1) block=(512,1,1) lds={K1_LDS}\n"
    out += f"; @launch kernel=k2_kernel grid=(256,1,1) block=(512,1,1) lds={K2_LDS}\n"
    out += f"; @launch kernel=k3_kernel grid=(224,1,1) block=(256,1,1) lds={K3_LDS}\n"
    out += '.amdgcn_target "amdgcn-amd-amdhsa--gfx950"\n.text\n'
    out += kernel_head("k1_kernel") + k1
    out += kernel_head("k2_kernel") + k2
    out += kernel_head("k3_kernel") + k3
    out += '.section .rodata,"a"\n'
    out += kernel_desc("k1_kernel", v1) + kernel_desc("k2_kernel", v2) + kernel_desc("k3_kernel", v3)
    return out


if __name__ == "__main__":
    path = sys.argv[1] if len(sys.argv) > 1 else f"cdna_kernels/{NAME}.s"
    open(path, "w").write(build())
    print("wrote", path)
```

```python
import math, struct, sys, os
from gen import *

K1_SLOT = 40960
K1_LDS2 = 4 * K1_SLOT
LOG2E = math.log2(math.e)

def gen_k1v2():
    a = Asm()
    S_X, S_B0, S_G, S_U, S_WS, S_G2, S_U2 = 8, 12, 16, 20, 24, 64, 68
    if INSTR: S_G2, S_U2 = 92, 96
    sMI, sJ, sW, sR, sGRP, sROT = 28, 29, 30, 31, 32, 33
    sT0, sT1, sT2 = 34, 35, 36
    sMX, sMB = 37, 38
    sKC, sOX, sOB, sOG = 39, 40, 41, 42
    sSTB, sSTG, sSTU2 = 43, 44, 45
    sSC, sTILE, sHOFF = 46, 47, 48
    sOU = 49
    sC0, sC1 = 50, 51
    vLane, vT0, vT1, vT2, vT3 = 1, 2, 3, 4, 5
    vDX0, vDX1, vDB0, vDG, vDU, vDG2, vDU2 = 6, 7, 8, 9, 10, 11, 12
    vAX = 13
    vAW = 17
    vAZ = 20
    vST = 21
    vL16 = 25
    vN, vR4, vC, vRow = 26, 27, 28, 29
    X = 32
    ACC = 144
    WF = 224
    NV = 256

    stamp_init(a); stamp(a, 0)
    a(f"""
    s_cmp_ge_u32 s2, 256
    s_cbranch_scc1 k1_end
    s_load_dwordx4 s[52:55], s[0:1], 0
    s_load_dwordx4 s[56:59], s[0:1], 32
    s_load_dwordx2 s[60:61], s[0:1], 56
    s_load_dwordx2 s[62:63], s[0:1], 80
    v_and_b32 v{vLane}, 63, v0
    v_lshrrev_b32 v{vT0}, 6, v0
    s_and_b32 s{sT0}, s2, 7
    s_lshr_b32 s{sT1}, s2, 3
    v_readfirstlane_b32 s{sW}, v{vT0}
    s_and_b32 s{sMI}, s{sT0}, 1
    s_lshl_b32 s{sMI}, s{sMI}, 3
    s_and_b32 s{sT2}, s{sT1}, 7
    s_add_u32 s{sMI}, s{sMI}, s{sT2}
    s_lshr_b32 s{sJ}, s{sT0}, 1
    s_lshl_b32 s{sJ}, s{sJ}, 2
    s_lshr_b32 s{sT1}, s{sT1}, 3
    s_add_u32 s{sJ}, s{sJ}, s{sT1}
    s_lshl_b32 s{sT1}, s{sT1}, 1
    s_add_u32 s{sROT}, s{sT2}, s{sT1}
    s_cmp_ge_u32 s{sROT}, 7
    s_cselect_b32 s{sT0}, 7, 0
    s_sub_u32 s{sROT}, s{sROT}, s{sT0}
    s_cmp_ge_u32 s{sROT}, 7
    s_cselect_b32 s{sT0}, 7, 0
    s_sub_u32 s{sROT}, s{sROT}, s{sT0}
    """)
    K1X = os.environ.get("K1X", "")
    if "norot" in K1X: a(f"s_mov_b32 s{sROT}, 0")
    if "rot2" in K1X: a(f"s_and_b32 s{sROT}, s{sROT}, 1")
    if "rot4" in K1X: a(f"s_and_b32 s{sROT}, s{sROT}, 3")
    a(f"""
    v_lshrrev_b32 v{vT0}, 3, v{vLane}
    v_lshrrev_b32 v{vT1}, 4, v{vLane}
    v_and_b32 v{vT2}, 7, v{vLane}
    v_xor_b32 v{vT3}, v{vT2}, v{vT1}
    s_lshl_b32 s{sT0}, s{sMI}, 7
    s_lshl_b32 s{sT1}, s{sW}, 4
    s_add_u32 s{sT0}, s{sT0}, s{sT1}
    v_add_u32 v{vDX0}, s{sT0}, v{vT0}
    v_mul_u32_u24 v{vDX0}, 896, v{vDX0}
    v_lshl_add_u32 v{vDX0}, v{vT3}, 4, v{vDX0}
    v_xor_b32 v{vDX1}, 64, v{vDX0}
    v_add_u32 v{vDX1}, 7168, v{vDX1}
    v_and_b32 v{vT3}, 1, v{vT1}
    v_lshlrev_b32 v{vT3}, 2, v{vT3}
    v_xor_b32 v{vT3}, v{vT3}, v{vT2}
    v_lshlrev_b32 v{vT3}, 4, v{vT3}
    s_lshl_b32 s{sT0}, s{sW}, 3
    v_add_u32 v{vT0}, s{sT0}, v{vT0}
    v_mul_u32_u24 v{vDB0}, 2688, v{vT0}
    v_add_u32 v{vDB0}, v{vDB0}, v{vT3}
    s_lshl_b32 s{sMX}, s{sW}, 11
    s_lshl_b32 s{sMB}, s{sW}, 10
    s_add_u32 s{sMB}, s{sMB}, 16384
    s_mov_b32 s{sSTB}, {64 * 2688}
    s_cmp_ge_u32 s{sJ}, 14
    s_cbranch_scc1 k1_setup_v
    s_lshl_b32 s{sT0}, s{sJ}, 7
    v_add_u32 v{vDB0}, s{sT0}, v{vDB0}
    v_mul_u32_u24 v{vDG}, 3584, v{vT0}
    s_lshl_b32 s{sT0}, s{sJ}, 8
    v_add3_u32 v{vDG}, v{vDG}, v{vT3}, s{sT0}
    v_xor_b32 v{vDU}, 32, v{vDG}
    v_add_u32 v{vDG2}, 128, v{vDG}
    v_add_u32 v{vDU2}, 128, v{vDU}
    s_mov_b32 s{sSTG}, {64 * 3584}
    s_mov_b32 s{sSTU2}, {64 * 3584}
    s_waitcnt lgkmcnt(0)
    """)
    srd(a, S_G, 56, 448 * 1792 * 2)
    srd(a, S_U, 58, 448 * 1792 * 2)
    srd(a, S_G2, 56, 448 * 1792 * 2)
    srd(a, S_U2, 58, 448 * 1792 * 2)
    a("s_branch k1_setup_done")
    a.label("k1_setup_v")
    a(f"""
    s_cmp_eq_u32 s{sJ}, 14
    s_cselect_b32 s{sT0}, 0, 512
    s_add_u32 s{sT0}, s{sT0}, {896 * 2}
    v_add_u32 v{vDB0}, s{sT0}, v{vDB0}
    v_add_u32 v{vDG}, 128, v{vDB0}
    v_add_u32 v{vDU}, 256, v{vDB0}
    v_add_u32 v{vDG2}, 384, v{vDB0}
    v_lshlrev_b32 v{vDU2}, 4, v{vT2}
    s_mov_b32 s{sSTG}, {64 * 2688}
    s_mov_b32 s{sSTU2}, 128
    s_waitcnt lgkmcnt(0)
    """)
    srd(a, S_G, 54, 448 * 1344 * 2)
    srd(a, S_U, 54, 448 * 1344 * 2)
    srd(a, S_G2, 54, 448 * 1344 * 2)
    srd(a, S_U2, 60, 448 * 2)
    a.label("k1_setup_done")
    srd(a, S_X, 52, 2048 * 448 * 2)
    srd(a, S_B0, 54, 448 * 1344 * 2)

    issued = []

    def kc_lines(st):
        return [f"s_add_u32 s{sKC}, s{sROT}, {st}",
                f"s_cmp_ge_u32 s{sKC}, 7",
                f"s_cselect_b32 s{sT0}, 7, 0",
                f"s_sub_u32 s{sKC}, s{sKC}, s{sT0}"]

    def dmaA_groups(st):
        b = (st % 4) * K1_SLOT
        g = []
        g.append(kc_lines(st) + [f"s_add_u32 m0, s{sMX}, {b}", f"s_lshl_b32 s{sOX}, s{sKC}, 7",
                 f"buffer_load_dwordx4 v{vDX0}, s[{S_X}:{S_X+3}], s{sOX} offen lds"])
        g.append([f"s_add_u32 m0, s{sMX}, {b + 1024}", f"s_mul_i32 s{sOB}, s{sKC}, s{sSTB}",
                 f"buffer_load_dwordx4 v{vDX1}, s[{S_X}:{S_X+3}], s{sOX} offen lds"])
        g.append([f"s_add_u32 m0, s{sMB}, {b}", f"s_mul_i32 s{sOG}, s{sKC}, s{sSTG}",
                 f"buffer_load_dwordx4 v{vDB0}, s[{S_B0}:{S_B0+3}], s{sOB} offen lds"])
        g.append([f"s_add_u32 m0, s{sMB}, {b + 8192}", "s_nop 0",
                 f"buffer_load_dwordx4 v{vDG}, s[{S_G}:{S_G+3}], s{sOG} offen lds"])
        g.append([f"s_add_u32 m0, s{sMB}, {b + 16384}", "s_nop 0",
                 f"buffer_load_dwordx4 v{vDU}, s[{S_U}:{S_U+3}], s{sOG} offen lds"])
        return [(x, ("A", st)) for x in g]

    def bslot(sb):
        return ((3 + sb // 2) % 4) * K1_SLOT + (sb % 2) * 16384

    def dmaB_groups(sb):
        b = bslot(sb) - 16384
        g = []
        g.append(kc_lines(sb) + [f"s_add_u32 m0, s{sMB}, {b & 0xffffffff}", f"s_mul_i32 s{sOG}, s{sKC}, s{sSTG}",
                 f"buffer_load_dwordx4 v{vDG2}, s[{S_G2}:{S_G2+3}], s{sOG} offen lds"])
        g.append([f"s_add_u32 m0, s{sMB}, {(b + 8192) & 0xffffffff}", f"s_mul_i32 s{sOU}, s{sKC}, s{sSTU2}",
                 f"buffer_load_dwordx4 v{vDU2}, s[{S_U2}:{S_U2+3}], s{sOU} offen lds"])
        return [(x, ("B", sb)) for x in g]

    def emit_group(g):
        lines, tag = g
        for l in lines:
            a(l)
        issued.append(tag)

    def wait_for(tags):
        for t in tags:
            assert issued.count(t) == (5 if t[0] == "A" else 2), (t, issued)
        idx = max([i for i, t in enumerate(issued) if t in tags], default=-1)
        return len(issued) - 1 - idx

    if INSTR == 2: stamp(a, 3)
    for g in dmaA_groups(0):
        emit_group(g)
    if INSTR == 2: stamp(a, 4)
    a("s_barrier")
    if INSTR == 2: stamp(a, 5)
    for g in dmaA_groups(1):
        emit_group(g)
    if INSTR == 2: stamp(a, 6)
    srd(a, S_WS, 62, WS_BYTES)
    a(f"""
    s_and_b32 s{sR}, s{sW}, 3
    s_lshr_b32 s{sGRP}, s{sW}, 2
    s_lshl_b32 s{sTILE}, s{sMI}, 2
    s_add_u32 s{sTILE}, s{sTILE}, s{sR}
    v_and_b32 v{vT0}, 31, v{vLane}
    v_lshrrev_b32 v{vT1}, 5, v{vLane}
    v_bfe_u32 v{vT2}, v{vLane}, 1, 3
    v_xor_b32 v{vT2}, v{vT2}, v{vT1}
    s_lshl_b32 s{sT0}, s{sR}, 12
    v_lshlrev_b32 v{vT3}, 7, v{vT0}
    v_lshl_add_u32 v{vT3}, v{vT2}, 4, v{vT3}
    v_add_u32 v{vAX}, s{sT0}, v{vT3}
    v_xor_b32 v{vAX+1}, 32, v{vAX}
    v_xor_b32 v{vAX+2}, 64, v{vAX}
    v_xor_b32 v{vAX+3}, 96, v{vAX}
    v_lshlrev_b32 v{vL16}, 4, v{vLane}
    v_bfe_u32 v{vN}, v{vLane}, 4, 1
    v_bfe_u32 v{vR4}, v{vLane}, 2, 2
    v_and_b32 v{vC}, 3, v{vLane}
    v_lshl_add_u32 v{vRow}, v{vT1}, 3, v{vR4}
    v_and_b32 v{vT2}, 2, v{vR4}
    v_xor_b32 v{vT2}, v{vT2}, v{vN}
    s_lshl_b32 s{sT0}, s{sGRP}, 1
    v_xor_b32 v{vT2}, s{sT0}, v{vT2}
    v_lshlrev_b32 v{vT3}, 7, v{vRow}
    v_lshl_add_u32 v{vT3}, v{vT2}, 5, v{vT3}
    v_lshl_add_u32 v{vT3}, v{vC}, 3, v{vT3}
    v_add_u32 v{vAW}, 16384, v{vT3}
    s_cmp_ge_u32 s{sJ}, 14
    s_cbranch_scc1 k1_main_v
    """)
    issued0 = list(issued)

    def main(vtype):
        nonlocal issued
        issued = list(issued0)
        setup = []
        if not vtype:
            a(f"""
            v_lshl_add_u32 v{vAW+1}, v{vN}, 13, v{vT3}
            v_add_u32 v{vAW+1}, {16384 + 8192}, v{vAW+1}
            v_xor_b32 v{vAW+2}, 32, v{vAW+1}
            """)
            setup += f"""
            s_cmp_ge_u32 s{sJ}, 7
            s_cselect_b32 s{sT1}, 7, 0
            s_sub_u32 s{sT1}, s{sJ}, s{sT1}
            s_lshl_b32 s{sT1}, s{sT1}, 4
            s_lshl_b32 s{sT2}, s{sGRP}, 3
            s_add_u32 s{sT1}, s{sT1}, s{sT2}
            v_add_u32 v{vT2}, s{sT1}, v{vT1}
            s_cmp_ge_u32 s{sJ}, 7
            s_cselect_b32 s{sT2}, 12, 11
            s_lshl_b32 s{sT2}, s{sTILE}, s{sT2}
            s_cmp_ge_u32 s{sJ}, 7
            s_cselect_b32 s{sT1}, {KVF}, {QF}
            s_add_u32 s{sT2}, s{sT2}, s{sT1}
            s_cmp_ge_u32 s{sJ}, 7
            s_cselect_b32 s{sSC}, 1.0, {f32bits(28 ** -0.5 * LOG2E):#x}
            s_cselect_b32 s{sT1}, 18, 17
            v_lshlrev_b32 v{vT0}, 4, v{vT0}
            v_add_u32 v{vT0}, s{sT2}, v{vT0}
            """.split("\n")
            for q in range(4):
                t0, t1, t2 = vN, vR4, vC
                setup += f"""
                v_add_u32 v{t0}, {2*q}, v{vT2}
                v_mul_u32_u24 v{t1}, 147, v{t0}
                v_lshrrev_b32 v{t1}, 10, v{t1}
                v_mul_u32_u24 v{t2}, 7, v{t1}
                v_sub_u32 v{t0}, v{t0}, v{t2}
                v_lshlrev_b32 v{t1}, s{sT1}, v{t1}
                v_add_u32 v{t1}, v{t1}, v{vT0}
                v_lshrrev_b32 v{t2}, 1, v{t0}
                v_lshl_add_u32 v{t1}, v{t2}, 9, v{t1}
                v_and_b32 v{t0}, 1, v{t0}
                v_lshl_add_u32 v{vST+q}, v{t0}, 3, v{t1}
                """.split("\n")
            setup += f"""
            s_mov_b32 s{sC0}, {f32bits(-LOG2E):#x}
            s_mov_b32 s{sC1}, s{sC0}
            s_mul_i32 s{sHOFF}, s{sTILE}, 112
            s_lshl_b32 s{sT1}, s{sJ}, 3
            s_add_u32 s{sHOFF}, s{sHOFF}, s{sT1}
            s_lshl_b32 s{sT1}, s{sGRP}, 1
            s_add_u32 s{sHOFF}, s{sHOFF}, s{sT1}
            s_lshl_b32 s{sHOFF}, s{sHOFF}, 10
            s_add_u32 s{sHOFF}, s{sHOFF}, {HF}
            """.split("\n")
        else:
            a(f"""
            v_add_u32 v{vAW+1}, 8192, v{vAW}
            v_add_u32 v{vAW+2}, 16384, v{vAW}
            """)
            setup += f"""
            v_lshlrev_b32 v{vAZ}, 4, v{vT1}
            s_add_u32 s{sT1}, s{sMB}, 8192
            v_add_u32 v{vAZ}, s{sT1}, v{vAZ}
            s_cmp_eq_u32 s{sJ}, 14
            s_cselect_b32 s{sT1}, 0, 256
            s_lshl_b32 s{sT2}, s{sGRP}, 5
            s_add_u32 s{sT1}, s{sT1}, s{sT2}
            v_add_u32 v{vT2}, s{sT1}, v{vT0}
            s_lshl_b32 s{sT2}, s{sTILE}, 12
            s_add_u32 s{sT2}, s{sT2}, {KVF + 2048}
            v_lshlrev_b32 v{vT3}, 9, v{vT1}
            v_add_u32 v{vT3}, s{sT2}, v{vT3}
            v_mov_b32 v{vRow}, {OOB}
            """.split("\n")
            for bi in range(4):
                t0, t1, t2 = vN, vR4, vC
                setup += f"""
                v_add_u32 v{t0}, {64*bi}, v{vT2}
                v_cmp_gt_u32 vcc, 448, v{t0}
                v_mul_u32_u24 v{t1}, 2341, v{t0}
                v_lshrrev_b32 v{t1}, 16, v{t1}
                v_mul_u32_u24 v{t2}, 28, v{t1}
                v_sub_u32 v{t2}, v{t0}, v{t2}
                v_lshl_add_u32 v{t1}, v{t1}, 18, v{vT3}
                v_lshl_add_u32 v{t1}, v{t2}, 4, v{t1}
                v_cndmask_b32 v{vST+bi}, v{vRow}, v{t1}, vcc
                """.split("\n")
        setup = [l.strip() for l in setup if l.strip()]
        for l in setup:
            a(l)

        abase = [0]

        def set_base(nb, regs):
            out = []
            if nb != abase[0]:
                d = nb - abase[0]
                for r in regs:
                    out.append(f"v_add_u32 v{r}, {d & 0xffffffff:#x}, v{r}" if d > 0 else f"v_subrev_u32 v{r}, {-d}, v{r}")
                abase[0] = nb
            return out

        def readsA(ks):
            st, s = ks // 4, ks % 4
            slot = st % 4
            out = set_base((slot // 2) * 2 * K1_SLOT, [vAX, vAX+1, vAX+2, vAX+3, vAW, vAW+1, vAW+2] + ([vAZ] if vtype else []))
            off = (slot % 2) * K1_SLOT
            f = WF + 12 * (ks % 2)
            out.append(f"ds_read_b128 {vr(X+4*ks, 4)}, v{vAX+s} offset:{off}")
            for t in range(3):
                for q in range(2):
                    out.append(f"ds_read_b64_tr_b16 {vr(f+4*t+2*q, 2)}, v{vAW+t} offset:{off + (16*s + 4*q) * 128}")
            return out

        def mfmasA(ks):
            f = WF + 12 * (ks % 2)
            out = []
            for t in range(3):
                w, x, c = vr(f + 4*t, 4), vr(X + 4*ks, 4), vr(ACC + 16*t, 16)
                cin = "0" if ks == 0 else c
                out.append(f"{MFMA} {c}, {x}, {w}, {cin}" if vtype else f"{MFMA} {c}, {w}, {x}, {cin}")
            return out

        NB = 4
        def readsB(ks):
            sb, s = ks // 4, ks % 4
            b = bslot(sb)
            f = WF + 8 * (ks % NB)
            out = []
            if not vtype:
                b32 = b - b % 32768
                out += set_base(b32 - 24576, [vAW+1, vAW+2])
                off = b - b32
                for t in range(2):
                    for q in range(2):
                        out.append(f"ds_read_b64_tr_b16 {vr(f+4*t+2*q, 2)}, v{vAW+1+t} offset:{off + (16*s + 4*q) * 128}")
            else:
                b32 = b - b % 32768
                out += set_base(b32 - 16384, [vAW, vAZ])
                off = b - b32
                for q in range(2):
                    out.append(f"ds_read_b64_tr_b16 {vr(f+2*q, 2)}, v{vAW} offset:{off + (16*s + 4*q) * 128}")
                out.append(f"ds_read_b128 {vr(f+4, 4)}, v{vAZ} offset:{off + 32*s}")
            return out

        def mfmasB(ks):
            f = WF + 8 * (ks % NB)
            out = []
            for t in range(2):
                w, x, c = vr(f + 4*t, 4), vr(X + 4*ks, 4), vr(ACC + 48 + 16*t, 16)
                cin = "0" if ks == 0 else c
                out.append(f"{MFMA} {c}, {x}, {w}, {cin}" if (vtype and t == 0) else f"{MFMA} {c}, {w}, {x}, {cin}")
            return out

        def epi_ffn(acc, kstep_off):
            g, u = acc, acc + 8
            o = []
            for i in range(0, 8, 2):
                o.append(f"v_pk_mul_f32 {vr(u+i, 2)}, {vr(g+i, 2)}, {vr(u+i, 2)}")
            for i in range(0, 8, 2):
                o.append(f"v_pk_mul_f32 {vr(g+i, 2)}, {vr(g+i, 2)}, s[{sC0}:{sC1}]")
            for i in range(8):
                o.append(f"v_exp_f32 v{g+i}, v{g+i}")
            o.append("s_nop 0")
            for i in range(0, 8, 2):
                o.append(f"v_pk_add_f32 {vr(g+i, 2)}, {vr(g+i, 2)}, 1.0 op_sel_hi:[1,0]")
            for i in range(8):
                o.append(f"v_rcp_f32 v{g+i}, v{g+i}")
            o.append("s_nop 0")
            for i in range(0, 8, 2):
                o.append(f"v_pk_mul_f32 {vr(u+i, 2)}, {vr(u+i, 2)}, {vr(g+i, 2)}")
            for i in range(4):
                o.append(f"v_cvt_pk_bf16_f32 v{g+i}, v{u+2*i}, v{u+2*i+1}")
            o.append(("ST", f"buffer_store_dwordx4 {vr(g, 4)}, v{vL16}, s[{S_WS}:{S_WS+3}], s{sHOFF} offen offset:{1024*kstep_off}" if kstep_off < 4 else
                      f"buffer_store_dwordx4 {vr(g, 4)}, v{vL16}, s[{S_WS}:{S_WS+3}], s{sT2} offen offset:{1024*(kstep_off-4)}"))
            return o

        def epi_qk():
            o = []
            for q in range(4):
                b = ACC + 4*q
                for i in range(4):
                    o.append(f"v_mul_f32 v{b+i}, s{sSC}, v{b+i}")
                o.append(f"v_cvt_pk_bf16_f32 v{b}, v{b}, v{b+1}")
                o.append(f"v_cvt_pk_bf16_f32 v{b+1}, v{b+2}, v{b+3}")
                o.append(("ST", f"buffer_store_dwordx2 {vr(b, 2)}, v{vST+q}, s[{S_WS}:{S_WS+3}], 0 offen"))
            return o

        def epi_v(acc, bi):
            o = []
            for i in range(8):
                o.append(f"v_cvt_pk_bf16_f32 v{acc+i}, v{acc+2*i}, v{acc+2*i+1}")
            o.append(("ST", f"buffer_store_dwordx4 {vr(acc, 4)}, v{vST+bi}, s[{S_WS}:{S_WS+3}], 0 offen"))
            o.append(("ST", f"buffer_store_dwordx4 {vr(acc+4, 4)}, v{vST+bi}, s[{S_WS}:{S_WS+3}], 0 offen offset:1024"))
            return o

        def emit(x):
            if isinstance(x, tuple):
                a(x[1]); issued.append(("ST",))
            else:
                a(x)

        stamp(a, 1)
        a(f"s_waitcnt vmcnt({wait_for({('A', 0)})})\ns_barrier")
        stamp(a, 2)
        for r in readsA(0):
            a(r)
        pend = dmaA_groups(2) + dmaA_groups(3)
        for ks in range(28):
            st, s = ks // 4, ks % 4
            m = mfmasA(ks)
            a("s_waitcnt lgkmcnt(0)")
            if s == 3:
                need = {("A", st + 1)} if st < 6 else {("B", 0), ("B", 1)}
                a(f"s_waitcnt vmcnt({wait_for(need)})\ns_barrier")
                if st in (1, 3, 6) and INSTR == 1: stamp(a, {1: 3, 3: 4, 6: 5}[st])
                if st + 4 <= 6:
                    pend += dmaA_groups(st + 4)
                else:
                    i0 = 2 * (st - 3)
                    pend += dmaB_groups(i0) + (dmaB_groups(i0 + 1) if i0 + 1 < 7 else [])
            if ks + 1 < 28:
                r = readsA(ks + 1)
            else:
                r = []
            a(m[0])
            for x in r[:len(r) - 4]:
                a(x)
            a(m[1])
            for x in r[len(r) - 4:]:
                a(x)
            if pend:
                emit_group(pend.pop(0))
            a(m[2])
            if ks == 27:
                pass
            for _ in range(2):
                if pend:
                    emit_group(pend.pop(0))
        for ks in range(NB - 1):
            for x in readsB(ks):
                a(x)
        nrd = 4 if not vtype else 3
        if not vtype:
            fill = ["s_nop 3", f"s_add_u32 s{sT2}, s{sHOFF}, 4096"] + epi_qk() + epi_ffn(ACC + 16, 0) + epi_ffn(ACC + 32, 1)
        else:
            fill = ["s_nop 3"] + epi_v(ACC, 0) + epi_v(ACC + 16, 1) + epi_v(ACC + 32, 2)
        per = 3
        for ks in range(28):
            sb, s = ks // 4, ks % 4
            m = mfmasB(ks)
            nxt = ks + NB - 1
            if nxt < 28 and nxt % 4 == 0 and nxt // 4 in (2, 5):
                need = {("B", x) for x in ((2, 3, 4) if nxt // 4 == 2 else (5, 6))}
                a(f"s_waitcnt vmcnt({wait_for(need)})\ns_barrier")
                if nxt // 4 == 2 and INSTR == 1: stamp(a, 6)
            out_reads = min(NB - 2, 27 - ks) * nrd
            a(f"s_waitcnt lgkmcnt({out_reads})")
            a(m[0])
            if nxt < 28:
                for x in readsB(nxt):
                    a(x)
            if pend:
                emit_group(pend.pop(0))
            for _ in range(per):
                if fill and ks >= 1: emit(fill.pop(0))
            a(m[1])
            for _ in range(per):
                if fill and ks >= 1: emit(fill.pop(0))
        assert not fill and not pend
        a("s_nop 7\ns_nop 7")
        stamp(a, 7)
        if not vtype:
            e0, e1 = epi_ffn(ACC + 48, 4), epi_ffn(ACC + 64, 5)
            for x in e0 + e1:
                emit(x)
        else:
            for x in epi_v(ACC + 48, 3):
                emit(x)

    main(False)
    stamp(a, 8)
    if INSTR: a("s_waitcnt vmcnt(0)")
    stamp(a, 9)
    stamp_flush(a, 0, 10, S_WS, sW, 2)
    a("s_endpgm")

    a.label("k1_main_v")
    main(True)
    t = WF
    Z = ACC + 64
    a(f"""
    s_cmp_eq_u32 s{sJ}, 14
    s_cbranch_scc1 k1_v_kpad
    v_mul_f32 v{t}, {f32bits(-LOG2E):#x}, v{Z}
    v_exp_f32 v{t}, v{t}
    v_and_b32 v{t+1}, 31, v{vLane}
    v_add_f32 v{t}, 1.0, v{t}
    v_rcp_f32 v{t}, v{t}
    v_lshlrev_b32 v{t+1}, 2, v{t+1}
    s_lshl_b32 s{sT0}, s{sTILE}, 7
    s_add_u32 s{sT0}, s{sT0}, {GF}
    buffer_store_dword v{t}, v{t+1}, s[{S_WS}:{S_WS+3}], s{sT0} offen
    v_bfe_u32 v{t+2}, v{vLane}, 4, 1
    v_lshlrev_b32 v{t+2}, 18, v{t+2}
    v_bfe_u32 v{t+3}, v{vLane}, 2, 2
    v_lshl_add_u32 v{t+2}, v{t+3}, 12, v{t+2}
    v_and_b32 v{t+3}, 3, v{vLane}
    v_lshl_add_u32 v{t+2}, v{t+3}, 9, v{t+2}
    s_lshl_b32 s{sT0}, s{sW}, 19
    s_lshl_b32 s{sT1}, s{sMI}, 14
    s_add_u32 s{sT0}, s{sT0}, s{sT1}
    s_add_u32 s{sT0}, s{sT0}, {KVF + 2048 + 28 * 16}
    v_mov_b32 v{t+4}, 0x3f803f80
    v_mov_b32 v{t+5}, 0x3f803f80
    v_mov_b32 v{t+6}, 0x3f803f80
    v_mov_b32 v{t+7}, 0x3f803f80
    buffer_store_dwordx4 {vr(t+4, 4)}, v{t+2}, s[{S_WS}:{S_WS+3}], s{sT0} offen
    s_endpgm
    """)
    a.label("k1_v_kpad")
    a(f"""
    v_and_b32 v{t}, 31, v{vLane}
    v_lshlrev_b32 v{t}, 4, v{t}
    v_lshrrev_b32 v{t+1}, 5, v{vLane}
    v_lshl_add_u32 v{t}, v{t+1}, 12, v{t}
    s_lshl_b32 s{sT0}, s{sW}, 19
    s_lshl_b32 s{sT1}, s{sMI}, 14
    s_add_u32 s{sT0}, s{sT0}, s{sT1}
    s_add_u32 s{sT0}, s{sT0}, {KVF + 1024 + 512 + 8}
    v_mov_b32 v{t+4}, 0x3f803f80
    v_mov_b32 v{t+5}, 0
    s_add_u32 s{sT1}, s{sT0}, 8192
    s_add_u32 s{sT2}, s{sT0}, {1 << 18}
    s_add_u32 s{sKC}, s{sT2}, 8192
    buffer_store_dwordx2 {vr(t+4, 2)}, v{t}, s[{S_WS}:{S_WS+3}], s{sT0} offen
    buffer_store_dwordx2 {vr(t+4, 2)}, v{t}, s[{S_WS}:{S_WS+3}], s{sT1} offen
    buffer_store_dwordx2 {vr(t+4, 2)}, v{t}, s[{S_WS}:{S_WS+3}], s{sT2} offen
    buffer_store_dwordx2 {vr(t+4, 2)}, v{t}, s[{S_WS}:{S_WS+3}], s{sKC} offen
    """)
    a.label("k1_end")
    a("s_endpgm")
    return a.text(), NV


def build2():
    ref = open(f"cdna_kernels/{NAME}.s.ref").read().split("\n")
    hdr = [l for l in ref if l.startswith(";") and "@launch" not in l and "Override launch" not in l and "grid=ceil" not in l]
    k1, v1 = gen_k1v2()
    k2, v2 = gen_k2()
    k3, v3 = gen_k3()
    out = "\n".join(hdr) + "\n"
    out += f"; @launch kernel=k1_kernel grid=(256,1,1) block=(512,1,1) lds={K1_LDS2}\n"
    out += f"; @launch kernel=k2_kernel grid=(256,1,1) block=(512,1,1) lds={K2_LDS}\n"
    out += f"; @launch kernel=k3_kernel grid=(224,1,1) block=(256,1,1) lds={K3_LDS}\n"
    out += '.amdgcn_target "amdgcn-amd-amdhsa--gfx950"\n.text\n'
    out += kernel_head("k1_kernel") + k1
    out += kernel_head("k2_kernel") + k2
    out += kernel_head("k3_kernel") + k3
    out += '.section .rodata,"a"\n'
    out += kernel_desc("k1_kernel", v1) + kernel_desc("k2_kernel", v2) + kernel_desc("k3_kernel", v3)
    return out


if __name__ == "__main__":
    path = sys.argv[1]
    open(path, "w").write(build2())
    print("wrote", path)
```

```python
import math, struct, sys, os

NAME = "gated_mix__softmax_full_mha__swiglu_ffn__prompt"
KNAME = NAME + "_kernel"
INSTR = int(os.environ.get("INSTR", "0"))
OPT = os.environ.get("OPT", "")

QF = 0
KF = 2 << 20
VF = 4 << 20
TQ = 28672
HF = 6 << 20
OF = 14 << 20
GF = 16 << 20
FQ = (16 << 20) + 0x10000
FH = (16 << 20) + 0x14000
FO = (16 << 20) + 0x18000
TSF = 24 << 20
WS_BYTES = 32 << 20
OOB = 0x40000000
SLEEP_Q = int(os.environ.get('SLQ', '6'))
SLEEP_H = int(os.environ.get('SLH', '8'))
SLEEP_O = int(os.environ.get('SLO', '2'))
LOG2E = math.log2(math.e)
MFMA = "v_mfma_f32_32x32x16_bf16"
SC = " sc1"
SLOT = 40960
LDS_BYTES = 4 * SLOT
MERGE = 73728
CNT = 155648
SPIN_MAX = 1 << int(os.environ.get('SPINLOG', '18'))


def ring_addr(s):
    if s <= 4:
        return s * 8192
    if s <= 8:
        return 122880 + (s - 5) * 8192
    return 40960 + (s - 9) * 8192


def f32bits(x):
    return struct.unpack("<I", struct.pack("<f", x))[0]


class Asm:
    def __init__(self):
        self.lines = []

    def __call__(self, s):
        for ln in s.strip("\n").split("\n"):
            ln = ln.strip()
            if not ln:
                continue
            self.lines.append(ln if ln.endswith(":") else "    " + ln)

    def label(self, l):
        self.lines.append(l + ":")

    def text(self):
        return "\n".join(self.lines) + "\n"


def vr(base, n):
    return f"v[{base}:{base + n - 1}]"


def sr4(b):
    return f"s[{b}:{b+3}]"


def srd(a, sd, sb, nbytes):
    a(f"""
    s_mov_b32 s{sd}, s{sb}
    s_mov_b32 s{sd+1}, s{sb+1}
    s_mov_b32 s{sd+2}, {nbytes}
    s_mov_b32 s{sd+3}, 0x00020000
    """)


def L(s):
    return [l.strip() for l in s.strip("\n").split("\n") if l.strip()]


S_X, S_B0, S_G, S_U, S_WS, S_G2, S_U2, S_DBG = 4, 8, 12, 16, 20, 24, 28, 32
S_WD, S_WO, S_OUT = 4, 8, 12
sMI, sJ, sW, sR, sGRP, sROT = 36, 37, 38, 39, 40, 41
sT0, sT1, sT2 = 42, 43, 44
sMX, sMB, sKC, sOX, sOB, sOG, sOU = 45, 46, 47, 48, 49, 50, 51
sSTB, sSTG, sSTU2, sSC, sTILE, sHOFF, sHOFF2 = 52, 53, 54, 55, 56, 57, 58
sNONCE, sNL2E, sC8, sI32 = 59, 60, 61, 62
sSPIN = 63
sQKO = 3
sP0, sFHO, sMODE, sFQB = 70, 71, 56, 64
P_X, P_WQKV, P_WO, P_WG, P_WU, P_WD, P_GW, P_OUT, P_DBG, P_WS = 64, 66, 68, 72, 74, 76, 78, 80, 82, 84
ST0 = 86
sHEAD, sQB, sMT, sNT, sKQ, sKVB, sKOFF, sSOFF, sIT, sA0, sB0w, sM0 = 36, 37, 39, 40, 41, 45, 46, 47, 48, 49, 50, 51
sWB, sMH, sWH, sMH2 = 52, 53, 54, 55

vLane, vL16 = 1, 2
vT0, vT1, vT2, vT3 = 3, 4, 5, 6


def stamp(a, idx):
    if INSTR:
        a(f"s_memtime s[{ST0+2*idx}:{ST0+2*idx+1}]")


def stamp_rt(a, idx):
    if INSTR:
        a(f"s_memrealtime s[{ST0+2*idx}:{ST0+2*idx+1}]")


def stamp_flush(a, part, n, vtmp=3):
    if not INSTR:
        return
    a(f"""
    s_lshl_b32 s3, s2, 3
    s_add_u32 s3, s3, s{sW}
    s_lshl_b32 s3, s3, 7
    s_add_u32 s3, s3, {TSF + part * 32}
    v_mov_b32 v{vtmp+1}, 0
    s_waitcnt lgkmcnt(0)
    """)
    for i in range(n):
        a(f"""
        v_mov_b32 v{vtmp}, s{ST0+2*i}
        buffer_store_dword v{vtmp}, v{vtmp+1}, {sr4(S_WS)}, s3 offen offset:{4*i}
        s_nop 1
        """)


def flag_store(a, soff_reg, vtmp):
    a(f"""
    v_mov_b32 v{vtmp}, s{sNONCE}
    v_mov_b32 v{vtmp+1}, 0
    s_mov_b64 exec, 1
    buffer_store_dword v{vtmp}, v{vtmp+1}, {sr4(S_WS)}, s{soff_reg} offen{SC}
    s_mov_b64 exec, -1
    """)


_uid = [0]


def poll(a, addrs, soff, vtmp, sleep):
    _uid[0] += 1
    u = _uid[0]
    a(f"s_mov_b32 s{sSPIN}, {SPIN_MAX}")
    a.label(f"poll_ld{u}")
    for i, va in enumerate(addrs):
        a(f"buffer_load_dword v{vtmp+i}, v{va}, {sr4(S_WS)}, s{soff} offen{SC}")
    a("s_waitcnt vmcnt(0)")
    poll_cmp(a, len(addrs), vtmp)
    a(f"""
    s_sub_u32 s{sSPIN}, s{sSPIN}, 1
    s_cbranch_scc1 poll_done{u}
    s_cmp_eq_u64 vcc, 0
    s_cbranch_scc1 poll_done{u}
    s_sleep {sleep}
    s_branch poll_ld{u}
    """)
    a.label(f"poll_done{u}")


def poll_cmp(a, n, vtmp):
    if n == 1:
        a(f"v_cmp_ne_u32 vcc, s{sNONCE}, v{vtmp}")
    else:
        a(f"""
        v_xor_b32 v{vtmp}, s{sNONCE}, v{vtmp}
        v_xor_b32 v{vtmp+1}, s{sNONCE}, v{vtmp+1}
        v_or_b32 v{vtmp}, v{vtmp}, v{vtmp+1}
        v_cmp_ne_u32 vcc, 0, v{vtmp}
        """)


def lds_set(a, off, val, vtmp):
    a(f"""
    v_mov_b32 v{vtmp}, {CNT + off}
    v_mov_b32 v{vtmp+1}, {val}
    ds_write_b32 v{vtmp}, v{vtmp+1}
    """)


def lds_wait(a, off, vtmp, cond, sleep=1):
    _uid[0] += 1
    u = _uid[0]
    a(f"v_mov_b32 v{vtmp}, {CNT + off}")
    a.label(f"lw{u}")
    a(f"""
    ds_read_b32 v{vtmp+1}, v{vtmp}
    s_waitcnt lgkmcnt(0)
    v_readfirstlane_b32 s{sT0}, v{vtmp+1}
    """)
    a(f"s_cmp_lg_u32 s{sT0}, 0" if cond == "ne0" else f"s_cmp_eq_u32 s{sT0}, 1")
    a(f"""
    s_cbranch_scc1 lwd{u}
    s_sleep {sleep}
    s_branch lw{u}
    """)
    a.label(f"lwd{u}")


class VM:
    def __init__(self):
        self.q = []

    def add(self, tag):
        self.q.append(tag)

    def wait(self, tags, counts=None):
        idx = max([i for i, t in enumerate(self.q) if t in tags], default=-1)
        for t in tags:
            assert t in self.q, (t, self.q)
            if counts:
                assert self.q.count(t) == counts(t), (t, self.q)
        n = len(self.q) - 1 - idx
        assert n <= 63
        return n

    def copy(self):
        v = VM(); v.q = list(self.q); return v


def gen():
    a = Asm()
    vDX0, vDX1, vDB0, vDG, vDU, vDG2, vDU2 = 7, 8, 9, 10, 11, 12, 13
    vAX = 14
    vAW = 18
    vAZ = 21
    vST = 22
    vN, vR4, vC, vRow = 26, 27, 28, 29
    vNON = 30
    vDW = 31
    X = 32
    ACC = 144
    WF = 224

    stamp_rt(a, 0); stamp(a, 1)
    a(f"""
    s_cmp_ge_u32 s2, 256
    s_cbranch_scc1 k_end
    s_load_dwordx16 s[64:79], s[0:1], 0
    s_load_dwordx4 s[80:83], s[0:1], 64
    s_load_dwordx2 s[84:85], s[0:1], 80
    v_and_b32 v{vLane}, 63, v0
    v_lshrrev_b32 v{vT0}, 6, v0
    s_and_b32 s{sC8}, s2, 7
    s_lshr_b32 s{sI32}, s2, 3
    v_readfirstlane_b32 s{sW}, v{vT0}
    s_and_b32 s{sMI}, s{sC8}, 1
    s_lshl_b32 s{sMI}, s{sMI}, 3
    s_and_b32 s{sT2}, s{sI32}, 7
    s_add_u32 s{sMI}, s{sMI}, s{sT2}
    s_lshr_b32 s{sJ}, s{sC8}, 1
    s_lshl_b32 s{sJ}, s{sJ}, 2
    s_lshr_b32 s{sT1}, s{sI32}, 3
    s_add_u32 s{sJ}, s{sJ}, s{sT1}
    """)
    if "rot" in OPT:
        a(f"""
        s_lshl_b32 s{sT1}, s{sT1}, 1
        s_add_u32 s{sROT}, s{sT2}, s{sT1}
        s_cmp_ge_u32 s{sROT}, 7
        s_cselect_b32 s{sT0}, 7, 0
        s_sub_u32 s{sROT}, s{sROT}, s{sT0}
        s_cmp_ge_u32 s{sROT}, 7
        s_cselect_b32 s{sT0}, 7, 0
        s_sub_u32 s{sROT}, s{sROT}, s{sT0}
        """)
    a(f"""
    v_lshrrev_b32 v{vT0}, 3, v{vLane}
    v_lshrrev_b32 v{vT1}, 4, v{vLane}
    v_and_b32 v{vT2}, 7, v{vLane}
    v_xor_b32 v{vT3}, v{vT2}, v{vT1}
    s_lshl_b32 s{sT0}, s{sMI}, 7
    s_lshl_b32 s{sT1}, s{sW}, 4
    s_add_u32 s{sT0}, s{sT0}, s{sT1}
    v_add_u32 v{vDX0}, s{sT0}, v{vT0}
    v_mul_u32_u24 v{vDX0}, 896, v{vDX0}
    v_lshl_add_u32 v{vDX0}, v{vT3}, 4, v{vDX0}
    v_xor_b32 v{vDX1}, 64, v{vDX0}
    v_add_u32 v{vDX1}, 7168, v{vDX1}
    v_and_b32 v{vT3}, 1, v{vT1}
    v_lshlrev_b32 v{vT3}, 2, v{vT3}
    v_xor_b32 v{vT3}, v{vT3}, v{vT2}
    v_lshlrev_b32 v{vT3}, 4, v{vT3}
    v_mul_u32_u24 v{vDW}, 896, v{vT0}
    v_add_u32 v{vDW}, v{vDW}, v{vT3}
    s_lshl_b32 s{sT0}, s{sW}, 3
    v_add_u32 v{vT0}, s{sT0}, v{vT0}
    v_mul_u32_u24 v{vDB0}, 2688, v{vT0}
    v_add_u32 v{vDB0}, v{vDB0}, v{vT3}
    s_lshl_b32 s{sMX}, s{sW}, 11
    s_lshl_b32 s{sMB}, s{sW}, 10
    s_add_u32 s{sMB}, s{sMB}, 16384
    s_mov_b32 s{sSTB}, {64 * 2688}
    s_cmp_ge_u32 s{sJ}, 14
    s_cbranch_scc1 k1_setup_v
    s_lshl_b32 s{sT0}, s{sJ}, 7
    v_add_u32 v{vDB0}, s{sT0}, v{vDB0}
    v_mul_u32_u24 v{vDG}, 3584, v{vT0}
    s_lshl_b32 s{sT0}, s{sJ}, 8
    v_add3_u32 v{vDG}, v{vDG}, v{vT3}, s{sT0}
    v_xor_b32 v{vDU}, 32, v{vDG}
    v_add_u32 v{vDG2}, 128, v{vDG}
    v_add_u32 v{vDU2}, 128, v{vDU}
    s_mov_b32 s{sSTG}, {64 * 3584}
    s_mov_b32 s{sSTU2}, {64 * 3584}
    s_waitcnt lgkmcnt(0)
    """)
    srd(a, S_G, P_WG, 448 * 1792 * 2)
    srd(a, S_U, P_WU, 448 * 1792 * 2)
    srd(a, S_G2, P_WG, 448 * 1792 * 2)
    srd(a, S_U2, P_WU, 448 * 1792 * 2)
    a("s_branch k1_setup_done")
    a.label("k1_setup_v")
    a(f"""
    s_cmp_eq_u32 s{sJ}, 14
    s_cselect_b32 s{sT0}, 0, 512
    s_add_u32 s{sT0}, s{sT0}, {896 * 2}
    v_add_u32 v{vDB0}, s{sT0}, v{vDB0}
    v_add_u32 v{vDG}, 128, v{vDB0}
    v_add_u32 v{vDU}, 256, v{vDB0}
    v_add_u32 v{vDG2}, 384, v{vDB0}
    v_lshlrev_b32 v{vDU2}, 4, v{vT2}
    s_mov_b32 s{sSTG}, {64 * 2688}
    s_mov_b32 s{sSTU2}, 128
    s_waitcnt lgkmcnt(0)
    """)
    srd(a, S_G, P_WQKV, 448 * 1344 * 2)
    srd(a, S_U, P_WQKV, 448 * 1344 * 2)
    srd(a, S_G2, P_WQKV, 448 * 1344 * 2)
    srd(a, S_U2, P_GW, 448 * 2)
    a.label("k1_setup_done")
    srd(a, S_X, P_X, 2048 * 448 * 2)
    srd(a, S_B0, P_WQKV, 448 * 1344 * 2)

    vm = VM()

    def kc_lines(st):
        if "rot" in OPT:
            return [f"s_add_u32 s{sKC}, s{sROT}, {st}", f"s_cmp_ge_u32 s{sKC}, 7",
                    f"s_cselect_b32 s{sT0}, 7, 0", f"s_sub_u32 s{sKC}, s{sKC}, s{sT0}"]
        return [f"s_mov_b32 s{sKC}, {st}"]

    def dmaA_groups(st):
        b = (st % 4) * SLOT
        g = []
        g.append(kc_lines(st) + [f"s_add_u32 m0, s{sMX}, {b}", f"s_lshl_b32 s{sOX}, s{sKC}, 7",
                 f"buffer_load_dwordx4 v{vDX0}, {sr4(S_X)}, s{sOX} offen lds"])
        g.append([f"s_add_u32 m0, s{sMX}, {b + 1024}", f"s_mul_i32 s{sOB}, s{sKC}, s{sSTB}",
                 f"buffer_load_dwordx4 v{vDX1}, {sr4(S_X)}, s{sOX} offen lds"])
        g.append([f"s_add_u32 m0, s{sMB}, {b}", f"s_mul_i32 s{sOG}, s{sKC}, s{sSTG}",
                 f"buffer_load_dwordx4 v{vDB0}, {sr4(S_B0)}, s{sOB} offen lds"])
        g.append([f"s_add_u32 m0, s{sMB}, {b + 8192}", "s_nop 0",
                 f"buffer_load_dwordx4 v{vDG}, {sr4(S_G)}, s{sOG} offen lds"])
        g.append([f"s_add_u32 m0, s{sMB}, {b + 16384}", "s_nop 0",
                 f"buffer_load_dwordx4 v{vDU}, {sr4(S_U)}, s{sOG} offen lds"])
        return [(x, ("A", st)) for x in g]

    def bslot(sb):
        return ((3 + sb // 2) % 4) * SLOT + (sb % 2) * 16384

    def dmaB_groups(sb):
        b = bslot(sb) - 16384
        g = []
        g.append(kc_lines(sb) + [f"s_add_u32 m0, s{sMB}, {b & 0xffffffff}", f"s_mul_i32 s{sOG}, s{sKC}, s{sSTG}",
                 f"buffer_load_dwordx4 v{vDG2}, {sr4(S_G2)}, s{sOG} offen lds"])
        g.append([f"s_add_u32 m0, s{sMB}, {(b + 8192) & 0xffffffff}", f"s_mul_i32 s{sOU}, s{sKC}, s{sSTU2}",
                 f"buffer_load_dwordx4 v{vDU2}, {sr4(S_U2)}, s{sOU} offen lds"])
        return [(x, ("B", sb)) for x in g]

    def emit_group(g):
        for l in g[0]:
            a(l)
        vm.add(g[1])

    cnts = lambda t: {"A": 5, "B": 2}.get(t[0], 1) if t[0] in "AB" else vm.q.count(t)

    for g in dmaA_groups(0):
        emit_group(g)
    a("s_barrier")
    for g in dmaA_groups(1):
        emit_group(g)
    srd(a, S_WS, P_WS, WS_BYTES)
    srd(a, S_DBG, P_DBG, 256)
    a(f"""
    s_or_b32 s{sT0}, s2, s{sW}
    s_cmp_lg_u32 s{sT0}, 0
    s_cbranch_scc1 k_nononce
    s_memrealtime s[{sT1+1}:{sT1+2}]
    v_mov_b32 v{vT1}, 0
    s_waitcnt lgkmcnt(0)
    s_or_b32 s{sT0}, s{sT1+1}, 0x80000000
    v_mov_b32 v{vT0}, s{sT0}
    s_mov_b64 exec, 1
    buffer_store_dword v{vT0}, v{vT1}, {sr4(S_DBG)}, 0 offen{SC}
    s_mov_b64 exec, -1
    s_lshl_b32 s{sMX}, s{sW}, 11
    """)
    a.label("k_nononce")
    a(f"""
    s_and_b32 s{sR}, s{sW}, 3
    s_lshr_b32 s{sGRP}, s{sW}, 2
    s_lshl_b32 s{sTILE}, s{sMI}, 2
    s_add_u32 s{sTILE}, s{sTILE}, s{sR}
    v_and_b32 v{vT0}, 31, v{vLane}
    v_lshrrev_b32 v{vT1}, 5, v{vLane}
    v_bfe_u32 v{vT2}, v{vLane}, 1, 3
    v_xor_b32 v{vT2}, v{vT2}, v{vT1}
    s_lshl_b32 s{sT0}, s{sR}, 12
    v_lshlrev_b32 v{vT3}, 7, v{vT0}
    v_lshl_add_u32 v{vT3}, v{vT2}, 4, v{vT3}
    v_add_u32 v{vAX}, s{sT0}, v{vT3}
    v_xor_b32 v{vAX+1}, 32, v{vAX}
    v_xor_b32 v{vAX+2}, 64, v{vAX}
    v_xor_b32 v{vAX+3}, 96, v{vAX}
    v_lshlrev_b32 v{vL16}, 4, v{vLane}
    v_bfe_u32 v{vN}, v{vLane}, 4, 1
    v_bfe_u32 v{vR4}, v{vLane}, 2, 2
    v_and_b32 v{vC}, 3, v{vLane}
    v_lshl_add_u32 v{vRow}, v{vT1}, 3, v{vR4}
    v_and_b32 v{vT2}, 2, v{vR4}
    v_xor_b32 v{vT2}, v{vT2}, v{vN}
    s_lshl_b32 s{sT0}, s{sGRP}, 1
    v_xor_b32 v{vT2}, s{sT0}, v{vT2}
    v_lshlrev_b32 v{vT3}, 7, v{vRow}
    v_lshl_add_u32 v{vT3}, v{vT2}, 5, v{vT3}
    v_lshl_add_u32 v{vT3}, v{vC}, 3, v{vT3}
    v_add_u32 v{vAW}, 16384, v{vT3}
    s_mov_b32 s{sNL2E}, {f32bits(-LOG2E):#x}
    s_cmp_ge_u32 s{sJ}, 14
    s_cbranch_scc1 k1_main_v
    """)
    vm0 = vm.copy()

    def wpref_lines(i):
        ra = ring_addr(i % 13)
        return [f"s_add_u32 m0, s{sM0}, {ra}", f"s_add_u32 s{sT0}, s{sWB}, {i * 16 * 896}",
                f"buffer_load_dwordx4 v{vDW}, {sr4(S_WD)}, s{sT0} offen lds",
                f"s_add_u32 m0, s{sM0}, {ra + 1024}", f"s_add_u32 s{sT0}, s{sT0}, {8 * 896}",
                f"buffer_load_dwordx4 v{vDW}, {sr4(S_WD)}, s{sT0} offen lds"]

    def main(vtype):
        nonlocal vm
        vm = vm0.copy()
        tg = "v" if vtype else "f"
        if not vtype:
            a(f"""
            v_lshl_add_u32 v{vAW+1}, v{vN}, 13, v{vT3}
            v_add_u32 v{vAW+1}, {16384 + 8192}, v{vAW+1}
            v_xor_b32 v{vAW+2}, 32, v{vAW+1}
            s_cmp_ge_u32 s{sJ}, 7
            s_cselect_b32 s{sT1}, {KF - 7 * 4096}, {QF}
            s_cselect_b32 s{sSC}, 1.0, {f32bits(28 ** -0.5 * LOG2E):#x}
            s_lshl_b32 s{sT2}, s{sJ}, 12
            s_add_u32 s{sT1}, s{sT1}, s{sT2}
            s_lshl_b32 s{sT2}, s{sGRP}, 11
            s_add_u32 s{sT1}, s{sT1}, s{sT2}
            s_mul_i32 s{sQKO}, s{sTILE}, {TQ}
            s_add_u32 s{sQKO}, s{sQKO}, s{sT1}
            s_mul_i32 s{sHOFF}, s{sTILE}, 112
            s_lshl_b32 s{sT1}, s{sJ}, 3
            s_add_u32 s{sHOFF}, s{sHOFF}, s{sT1}
            s_lshl_b32 s{sT1}, s{sGRP}, 1
            s_add_u32 s{sHOFF}, s{sHOFF}, s{sT1}
            s_lshl_b32 s{sHOFF}, s{sHOFF}, 10
            s_add_u32 s{sHOFF}, s{sHOFF}, {HF}
            s_add_u32 s{sHOFF2}, s{sHOFF}, 4096
            """)
        else:
            a(f"""
            v_add_u32 v{vAW+1}, 8192, v{vAW}
            v_add_u32 v{vAW+2}, 16384, v{vAW}
            v_lshlrev_b32 v{vAZ}, 4, v{vT1}
            s_add_u32 s{sT1}, s{sMB}, 8192
            v_add_u32 v{vAZ}, s{sT1}, v{vAZ}
            s_cmp_eq_u32 s{sJ}, 14
            s_cselect_b32 s{sT1}, 0, 256
            s_lshl_b32 s{sT2}, s{sGRP}, 5
            s_add_u32 s{sT1}, s{sT1}, s{sT2}
            v_add_u32 v{vT2}, s{sT1}, v{vT0}
            s_lshl_b32 s{sT2}, s{sTILE}, 11
            s_add_u32 s{sT2}, s{sT2}, {VF}
            v_lshlrev_b32 v{vT3}, 9, v{vT1}
            v_add_u32 v{vT3}, s{sT2}, v{vT3}
            v_mov_b32 v{vRow}, {OOB}
            """)
            for bi in range(4):
                t0, t1, t2 = vN, vR4, vC
                a(f"""
                v_add_u32 v{t0}, {64*bi}, v{vT2}
                v_cmp_gt_u32 vcc, 448, v{t0}
                v_mul_u32_u24 v{t1}, 2341, v{t0}
                v_lshrrev_b32 v{t1}, 16, v{t1}
                v_mul_u32_u24 v{t2}, 28, v{t1}
                v_sub_u32 v{t2}, v{t0}, v{t2}
                v_lshl_add_u32 v{t1}, v{t1}, 17, v{vT3}
                v_lshl_add_u32 v{t1}, v{t2}, 4, v{t1}
                v_cndmask_b32 v{vST+bi}, v{vRow}, v{t1}, vcc
                """)

        abase = [0]

        def set_base(nb, regs):
            out = []
            if nb != abase[0]:
                d = nb - abase[0]
                for r in regs:
                    out.append(f"v_add_u32 v{r}, {d}, v{r}" if d > 0 else f"v_subrev_u32 v{r}, {-d}, v{r}")
                abase[0] = nb
            return out

        WA = [WF, WF + 12, ACC + 48]

        def readsA(ks):
            st, s = ks // 4, ks % 4
            slot = st % 4
            out = set_base((slot // 2) * 2 * SLOT, [vAX, vAX+1, vAX+2, vAX+3, vAW, vAW+1, vAW+2] + ([vAZ] if vtype else []))
            off = (slot % 2) * SLOT
            f = WA[ks % 3]
            out.append(f"ds_read_b128 {vr(X+4*ks, 4)}, v{vAX+s} offset:{off}")
            for t in range(3):
                for q in range(2):
                    out.append(f"ds_read_b64_tr_b16 {vr(f+4*t+2*q, 2)}, v{vAW+t} offset:{off + (16*s + 4*q) * 128}")
            return out

        def mfmasA(ks):
            f = WA[ks % 3]
            out = []
            for t in range(3):
                w, x, c = vr(f + 4*t, 4), vr(X + 4*ks, 4), vr(ACC + 16*t, 16)
                cin = "0" if ks == 0 else c
                out.append(f"{MFMA} {c}, {x}, {w}, {cin}" if vtype else f"{MFMA} {c}, {w}, {x}, {cin}")
            return out

        NB = 4
        WB = [WF + 24, WF + 16, WF + 8, WF]

        def readsB(ks, vsub=0):
            sb, s = ks // 4, ks % 4
            b = bslot(sb)
            f = WB[ks % NB]
            out = []
            b32 = b - b % 32768
            off = b - b32
            if not vtype:
                out += set_base(b32 - 24576, [vAW+1, vAW+2])
                for t in range(2):
                    for q in range(2):
                        out.append(f"ds_read_b64_tr_b16 {vr(f+4*t+2*q, 2)}, v{vAW+1+t} offset:{off + (16*s + 4*q) * 128}")
            else:
                out += set_base(b32 - 16384, [vAW, vAZ])
                if vsub in (0, 2):
                    for q in range(2):
                        out.append(f"ds_read_b64_tr_b16 {vr(f+2*q, 2)}, v{vAW} offset:{off + (16*s + 4*q) * 128}")
                if vsub in (1, 2):
                    out.append(f"ds_read_b128 {vr(f+4, 4)}, v{vAZ} offset:{off + 32*s}")
            return out

        def mfmasB(ks):
            f = WB[ks % NB]
            out = []
            for t in range(2):
                w, x, c = vr(f + 4*t, 4), vr(X + 4*ks, 4), vr(ACC + 48 + 16*t, 16)
                cin = "0" if ks == 0 else c
                out.append(f"{MFMA} {c}, {x}, {w}, {cin}" if (vtype and t == 0) else f"{MFMA} {c}, {w}, {x}, {cin}")
            return out

        def epi_ffn(acc, ko):
            g, u = acc, acc + 8
            o = []
            for i in range(8):
                o.append(f"v_mul_f32 v{u+i}, v{g+i}, v{u+i}")
                o.append(f"v_mul_f32 v{g+i}, s{sNL2E}, v{g+i}")
            for i in range(8):
                o.append(f"v_exp_f32 v{g+i}, v{g+i}")
            for i in range(8):
                o.append(f"v_add_f32 v{g+i}, 1.0, v{g+i}")
            for i in range(8):
                o.append(f"v_rcp_f32 v{g+i}, v{g+i}")
            for i in range(8):
                o.append(f"v_mul_f32 v{u+i}, v{u+i}, v{g+i}")
            for i in range(4):
                o.append(f"v_cvt_pk_bf16_f32 v{g+i}, v{u+2*i}, v{u+2*i+1}")
            so, off = (sHOFF, ko) if ko < 4 else (sHOFF2, ko - 4)
            o.append(("H", f"buffer_store_dwordx4 {vr(g, 4)}, v{vL16}, {sr4(S_WS)}, s{so} offen offset:{1024*off}{SC}"))
            return o

        def epi_qk():
            o = []
            for i in range(8):
                o.append(f"v_mul_f32 v{ACC+2*i}, s{sSC}, v{ACC+2*i}")
                o.append(f"v_mul_f32 v{ACC+2*i+1}, s{sSC}, v{ACC+2*i+1}")
                o.append(f"v_cvt_pk_bf16_f32 v{ACC+i}, v{ACC+2*i}, v{ACC+2*i+1}")
            o.append("s_nop 1")
            for hh in range(2):
                b = ACC + 4 * hh
                o.append(f"v_permlane32_swap_b32 v{b}, v{b+2}")
                o.append(f"v_permlane32_swap_b32 v{b+1}, v{b+3}")
                o.append(("QK", f"buffer_store_dwordx4 {vr(b, 4)}, v{vL16}, {sr4(S_WS)}, s{sQKO} offen offset:{1024*hh}{SC}"))
            return o

        def epi_v(acc, bi):
            o = []
            for i in range(8):
                o.append(f"v_cvt_pk_bf16_f32 v{acc+i}, v{acc+2*i}, v{acc+2*i+1}")
            o.append(("QK", f"buffer_store_dwordx4 {vr(acc, 4)}, v{vST+bi}, {sr4(S_WS)}, 0 offen{SC}"))
            o.append(("QK", f"buffer_store_dwordx4 {vr(acc+4, 4)}, v{vST+bi}, {sr4(S_WS)}, 0 offen offset:1024{SC}"))
            return o

        def emit(x):
            if isinstance(x, tuple):
                a(x[1]); vm.add((x[0],))
            else:
                a(x)

        a(f"s_waitcnt vmcnt({vm.wait({('A', 0)}, cnts)})\ns_barrier")
        if INSTR == 1 or vtype: stamp(a, 2)
        for ks in range(2):
            for r in readsA(ks):
                a(r)
        pend = dmaA_groups(2) + dmaA_groups(3)
        fillA = flag_addr(vtype)
        nrdB = 4 if not vtype else 3
        for ks in range(28):
            st, s = ks // 4, ks % 4
            m = mfmasA(ks)
            if s == 2:
                need = {("A", st + 1)} if st < 6 else {("B", 0), ("B", 1)}
                a(f"s_waitcnt vmcnt({vm.wait(need, cnts)}) lgkmcnt(0)\ns_barrier")
                if st == 3 and (INSTR == 1 or vtype): stamp(a, 3)
                if st + 4 <= 6:
                    pend += dmaA_groups(st + 4)
                else:
                    i0 = 2 * (st - 3)
                    pend += dmaB_groups(i0) + (dmaB_groups(i0 + 1) if i0 + 1 < 7 else [])
                if st == 2:
                    pend.append(([f"v_mov_b32 v{vNON}, 0", f"buffer_load_dword v{vNON}, v{vNON}, {sr4(S_DBG)}, 0 offen{SC}"], ("N",)))
            elif ks < 27:
                a("s_waitcnt lgkmcnt(7)")
            else:
                a(f"s_waitcnt lgkmcnt({nrdB})")
            if ks + 2 < 28:
                r = readsA(ks + 2)
            else:
                r = readsB(ks + 2 - 28, 2)
            k = len(r) - 4 if ks + 2 < 28 else len(r) - 2
            a(m[0])
            for x in r[:k]:
                a(x)
            a(m[1])
            for x in r[k:]:
                a(x)
            a(m[2])
            if ks >= 17:
                assert vm.q.count(("A", 6)) == 5
                for _ in range(4):
                    if fillA: a(fillA.pop(0))
            nd = 2 if (len(pend) > 4 or st < 1) else 1
            if st >= 3: nd = 1 if len(pend) <= 4 else 2
            for _ in range(nd):
                if pend:
                    emit_group(pend.pop(0))
        assert not fillA
        stamp(a, 4)
        for x in readsB(2, 2):
            a(x)

        def nonce_get(tag):
            a(f"""
            v_readfirstlane_b32 s{sNONCE}, v{vNON}
            v_lshlrev_b32 v{vT0}, 2, v{vLane}
            v_add_u32 v{vT0}, {CNT}, v{vT0}
            v_mov_b32 v{vT1}, 0
            s_cmp_lg_u32 s{sNONCE}, 0
            s_cbranch_scc1 k1_nonce_ok_{tag}
            """)
            a.label(f"k1_nonce_spin_{tag}")
            a(f"""
            buffer_load_dword v{vNON}, v{vT1}, {sr4(S_DBG)}, 0 offen{SC}
            s_waitcnt vmcnt(0)
            v_readfirstlane_b32 s{sNONCE}, v{vNON}
            s_sleep 2
            s_cmp_eq_u32 s{sNONCE}, 0
            s_cbranch_scc1 k1_nonce_spin_{tag}
            """)
            a.label(f"k1_nonce_ok_{tag}")
            a(f"ds_write_b32 v{vT0}, v{vT1}")

        def wpref_setup():
            a(f"""
            s_lshr_b32 s{sM0}, s{sI32}, 2
            s_lshl_b32 s{sM0}, s{sM0}, 7
            s_mul_i32 s{sWB}, s{sR}, {28 * 16 * 896}
            s_add_u32 s{sWB}, s{sWB}, s{sM0}
            s_cmp_ge_u32 s{sI32}, 28
            s_cselect_b32 s{sWB}, {OOB}, s{sWB}
            s_lshl_b32 s{sM0}, s{sR}, 11
            s_mul_i32 s{sWH}, s{sGRP}, {8 * 896}
            s_add_u32 s{sWH}, s{sWH}, s{sWB}
            s_lshl_b32 s{sMH2}, s{sGRP}, 10
            s_add_u32 s{sMH2}, s{sMH2}, s{sM0}
            """)
            srd(a, S_WD, P_WD, 1792 * 448 * 2)
            return [([f"s_add_u32 m0, s{sMH2}, {ring_addr(i)}", f"s_add_u32 s{sT0}, s{sWH}, {i * 16 * 896}",
                      f"buffer_load_dwordx4 v{vDW}, {sr4(S_WD)}, s{sT0} offen lds"], ("W",)) for i in range(9)]

        def fq_flag():
            a(f"""
            v_mov_b32 v{vT0}, s{sNONCE}
            s_mov_b32 s{sT0}, {FQ}
            buffer_store_dword v{vT0}, v{vFQO}, {sr4(S_WS)}, s{sT0} offen{SC}
            """)

        if not vtype:
            fill = ["s_nop 3"] + epi_qk() + epi_ffn(ACC + 16, 0) + epi_ffn(ACC + 32, 1)
            per = 4
            for ks in range(28):
                m = mfmasB(ks)
                nxt = ks + NB - 1
                if nxt < 28 and nxt % 4 == 0 and nxt // 4 in (2, 3, 5):
                    g = nxt // 4
                    need = {2: {("B", 2)}, 3: {("B", 3), ("B", 4), ("N",), ("QK",)}, 5: {("B", 5), ("B", 6)}}[g]
                    if g == 3: assert vm.q.count(("QK",)) == 2
                    a(f"s_waitcnt vmcnt({vm.wait(need, cnts)})")
                    if g == 3:
                        if INSTR == 2: stamp(a, 2)
                        nonce_get(tg)
                    a("s_barrier")
                    if g == 3 and INSTR == 2: stamp(a, 3)
                    if g == 3:
                        a(f"s_cmp_lg_u32 s{sW}, 7\ns_cbranch_scc1 k1_noflag_{tg}")
                        fq_flag()
                        a.label(f"k1_noflag_{tg}")
                    if g == 5:
                        assert not pend
                        pend += wpref_setup()
                out_reads = min(NB - 2, 27 - ks) * nrdB
                a(f"s_waitcnt lgkmcnt({out_reads})")
                r = readsB(nxt) if nxt < 28 else []
                a(m[0])
                for x in r[:len(r) - 2]:
                    a(x)
                if pend:
                    emit_group(pend.pop(0))
                for _ in range(per):
                    if fill and ks >= 1: emit(fill.pop(0))
                a(m[1])
                for x in r[len(r) - 2:]:
                    a(x)
                for _ in range(per):
                    if fill and ks >= 1: emit(fill.pop(0))
            assert not fill and not pend
            a(f"""
            s_cmp_lg_u32 s{sW}, 0
            s_cbranch_scc1 k1_nopoll
            buffer_load_dword v{vPOL}, v{vFLA}, {sr4(S_WS)}, s{sFQB} offen{SC}
            buffer_load_dword v{vPOL+1}, v{vFLA+1}, {sr4(S_WS)}, s{sFQB} offen{SC}
            """)
            a.label("k1_nopoll")
            a("s_nop 7\ns_nop 5")
            stamp(a, 5)
            e0, e1 = epi_ffn(ACC + 48, 4), epi_ffn(ACC + 64, 5)
            for x in e0 + e1:
                emit(x)
            stamp(a, 6)
            phase2_ids()
            a(f"""
            s_cmp_ge_u32 s{sW}, 4
            s_cbranch_scc1 k1_done_g
            s_cmp_lg_u32 s{sW}, 0
            s_cbranch_scc1 k1_att_lw
            s_waitcnt vmcnt(2)
            """)
            poll_cmp(a, 2, vPOL)
            a(f"""
            s_cmp_eq_u64 vcc, 0
            s_cselect_b32 s{sT0}, 1, 2
            """)
            lds_set(a, 4, f"s{sT0}", vT0)
            a("s_branch k1_att_dec")
            a.label("k1_att_lw")
            lds_wait(a, 4, vT0, "ne0")
            a.label("k1_att_dec")
            a(f"""
            s_mov_b32 s{sMODE}, 0
            s_cmp_eq_u32 s{sT0}, 1
            s_cbranch_scc1 att_loads
            s_waitcnt vmcnt(0)
            s_barrier
            s_branch att_spin
            """)
            a.label("k1_done_g")
            a(f"""
            s_waitcnt vmcnt(0)
            s_barrier
            """)
            stamp(a, 7)
            a(f"s_cmp_lg_u32 s{sW}, 7\ns_cbranch_scc1 gemm_role")
            flag_store(a, sFHO, vT0)
            a("s_branch gemm_role")
        else:
            a(f"s_cmp_eq_u32 s{sJ}, 15\ns_cbranch_scc1 k1_passb_z")
            vmB, pendB, abB = vm.copy(), list(pend), abase[0]
            for vsub in range(2):
                if vsub == 1:
                    a.label("k1_passb_z")
                    vm = vmB.copy(); pend = list(pendB); abase[0] = abB
                nrd = 2 if vsub == 0 else 1
                fill = ["s_nop 3"] + epi_v(ACC, 0) + epi_v(ACC + 16, 1) + epi_v(ACC + 32, 2)
                for ks in range(28):
                    m = mfmasB(ks)[vsub]
                    nxt = ks + NB - 1
                    if nxt < 28 and nxt % 4 == 0 and nxt // 4 in (2, 4):
                        g = nxt // 4
                        need = {2: {("B", 2), ("B", 3)}, 4: {("B", 4), ("B", 5), ("B", 6), ("N",)}}[g]
                        a(f"s_waitcnt vmcnt({vm.wait(need, cnts)})")
                        if g == 4:
                            nonce_get(f"{tg}{vsub}")
                        a("s_barrier")
                    out_reads = min(NB - 2, 27 - ks) * nrd
                    a(f"s_waitcnt lgkmcnt({out_reads})")
                    r = readsB(nxt, vsub) if nxt < 28 else []
                    a(m)
                    for x in r:
                        a(x)
                    if pend:
                        emit_group(pend.pop(0))
                    for _ in range(4):
                        if fill and ks >= 1: emit(fill.pop(0))
                assert not fill and not pend
                a("s_nop 7\ns_nop 7")
                t, Z = WF, ACC + 64
                if vsub == 0:
                    for x in epi_v(ACC + 48, 3):
                        emit(x)
                    a("s_branch k1_v_fin")
                else:
                    a(f"""
                    v_mul_f32 v{t}, s{sNL2E}, v{Z}
                    v_exp_f32 v{t}, v{t}
                    v_and_b32 v{t+1}, 31, v{vLane}
                    v_add_f32 v{t}, 1.0, v{t}
                    v_rcp_f32 v{t}, v{t}
                    v_lshlrev_b32 v{t+1}, 2, v{t+1}
                    s_lshl_b32 s{sT0}, s{sTILE}, 7
                    s_add_u32 s{sT0}, s{sT0}, {GF}
                    buffer_store_dword v{t}, v{t+1}, {sr4(S_WS)}, s{sT0} offen{SC}
                    v_bfe_u32 v{t+2}, v{vLane}, 4, 1
                    v_lshlrev_b32 v{t+2}, 17, v{t+2}
                    v_and_b32 v{t+3}, 15, v{vLane}
                    v_lshl_add_u32 v{t+2}, v{t+3}, 9, v{t+2}
                    s_lshl_b32 s{sT0}, s{sW}, 18
                    s_lshl_b32 s{sT1}, s{sMI}, 13
                    s_add_u32 s{sT0}, s{sT0}, s{sT1}
                    s_add_u32 s{sT0}, s{sT0}, {VF + 28 * 16}
                    v_mov_b32 v{t+4}, 0x3f803f80
                    v_mov_b32 v{t+5}, 0x3f803f80
                    v_mov_b32 v{t+6}, 0x3f803f80
                    v_mov_b32 v{t+7}, 0x3f803f80
                    s_mov_b32 exec_hi, 0
                    buffer_store_dwordx4 {vr(t+4, 4)}, v{t+2}, {sr4(S_WS)}, s{sT0} offen{SC}
                    s_mov_b32 exec_hi, -1
                    """)
            a.label("k1_v_fin")
            stamp(a, 5)
            a(f"""
            s_waitcnt vmcnt(0)
            s_barrier
            """)
            stamp(a, 6)
            a(f"s_cmp_lg_u32 s{sW}, 7\ns_cbranch_scc1 k1_noflag_{tg}")
            fq_flag()
            flag_store(a, sFHO, vT0)
            a.label(f"k1_noflag_{tg}")
            for g in wpref_setup():
                emit_group(g)
            phase2_ids()
            a(f"""
            s_waitcnt vmcnt(0)
            s_barrier
            """)
            stamp(a, 7)
            a(f"""
            s_cmp_ge_u32 s{sW}, 4
            s_cbranch_scc1 gemm_role
            s_branch att_spin
            """)

    vFLA, vPOL, vFQO = 7, 9, 11

    def flag_addr(vtype):
        t0, t1, t2, t3 = vN, vR4, vC, vRow
        o = L(f"""
        s_lshl_b32 s{sT1}, s{sC8}, 1
        s_and_b32 s{sT2}, s{sI32}, 1
        s_add_u32 s{sT1}, s{sT1}, s{sT2}
        s_mul_i32 s{sP0}, s{sT1}, 7
        s_lshr_b32 s{sP0}, s{sP0}, 1
        s_lshl_b32 s{sFQB}, s{sT1}, 9
        s_add_u32 s{sFQB}, s{sFQB}, {FQ}
        s_lshr_b32 s{sT1}, s{sI32}, 1
        s_lshl_b32 s{sT1}, s{sT1}, 2
        s_add_u32 s{sT1}, s{sT1}, 256
        v_lshlrev_b32 v{vFLA}, 2, v{vLane}
        v_and_b32 v{t0}, 1, v{vLane}
        v_lshl_add_u32 v{vFLA+1}, v{t0}, 6, s{sT1}
        v_and_b32 v{t0}, 15, v{vLane}
        v_lshrrev_b32 v{t1}, 4, v{vLane}
        v_lshlrev_b32 v{t3}, 9, v{t0}
        v_lshl_add_u32 v{t3}, v{t1}, 6, v{t3}
        s_lshl_b32 s{sT1}, s{sMI}, 2
        """)
        if not vtype:
            o += L(f"""
            s_add_u32 s{sT2}, s{sJ}, 1
            s_lshr_b32 s{sT2}, s{sT2}, 3
            v_mul_u32_u24 v{t2}, 7, v{t0}
            v_lshrrev_b32 v{t2}, 1, v{t2}
            v_mad_u32_u24 v{t2}, v{t1}, 3, v{t2}
            v_lshrrev_b32 v{t2}, 3, v{t2}
            v_lshrrev_b32 v{t1}, 1, v{t1}
            v_lshl_add_u32 v{t2}, v{t1}, 6, v{t2}
            v_mad_u32_u24 v{t2}, s{sT2}, 7, v{t2}
            v_cmp_eq_u32 vcc, s{sJ}, v{t2}
            s_lshl_b32 s{sT2}, s{sT2}, 8
            s_sub_u32 s{sT1}, s{sT1}, s{sT2}
            s_add_u32 s{sT1}, s{sT1}, 256
            """)
        else:
            o += L(f"""
            v_add_u32 v{t2}, 14, v{t1}
            v_cmp_eq_u32 vcc, s{sJ}, v{t2}
            s_add_u32 s{sT1}, s{sT1}, 128
            """)
        o += L(f"""
        v_add_u32 v{t3}, s{sT1}, v{t3}
        v_mov_b32 v{t0}, {OOB}
        v_cndmask_b32 v{vFQO}, v{t0}, v{t3}, vcc
        s_lshl_b32 s{sFHO}, s{sMI}, 5
        s_add_u32 s{sFHO}, s{sFHO}, s{sJ}
        s_lshl_b32 s{sFHO}, s{sFHO}, 2
        s_add_u32 s{sFHO}, s{sFHO}, {FH}
        """)
        return o

    def phase2_ids():
        stamp_flush(a, 0, 7)
        a(f"""
        s_lshl_b32 s{sHEAD}, s{sC8}, 1
        s_and_b32 s{sT0}, s{sI32}, 1
        s_add_u32 s{sHEAD}, s{sHEAD}, s{sT0}
        s_lshr_b32 s{sQB}, s{sI32}, 1
        s_and_b32 s{sKQ}, s{sW}, 3
        s_lshl_b32 s{sMT}, s{sC8}, 2
        s_and_b32 s{sT0}, s{sI32}, 3
        s_add_u32 s{sMT}, s{sMT}, s{sT0}
        s_lshr_b32 s{sNT}, s{sI32}, 2
        """)

    main(False)
    a.label("k1_main_v")
    main(True)
    gen_attention(a)
    a.label("gemm_role")
    gen_gemm(a, vDW)
    a.label("phase3")
    gen_phase3(a)
    a.label("k_end")
    a("s_endpgm")
    return a.text()


P3_ACC = 64
P3_WF = 128
P3_OF = 192
vAWr = 8
RB = [0, 57344, 114688]


def wtr_setup(a):
    a(f"""
    v_bfe_u32 v{vT0}, v{vLane}, 4, 1
    v_bfe_u32 v{vT1}, v{vLane}, 2, 2
    v_and_b32 v{vT2}, 2, v{vT1}
    v_xor_b32 v{vT2}, v{vT2}, v{vT0}
    v_xor_b32 v{vT2}, s{sKQ}, v{vT2}
    v_lshrrev_b32 v{vT3}, 5, v{vLane}
    v_lshl_add_u32 v{vT3}, v{vT3}, 2, v{vT1}
    v_lshlrev_b32 v{vT3}, 7, v{vT3}
    v_lshl_add_u32 v{vT3}, v{vT2}, 5, v{vT3}
    v_and_b32 v{vT2}, 3, v{vLane}
    v_lshl_add_u32 v{vT3}, v{vT2}, 3, v{vT3}
    s_lshl_b32 s{sT0}, s{sKQ}, 11
    v_add_u32 v{vAWr}, s{sT0}, v{vT3}
    v_xor_b32 v{vAWr+1}, 64, v{vAWr}
    v_add_u32 v{vAWr+2}, {RB[1]}, v{vAWr}
    v_add_u32 v{vAWr+3}, {RB[1]}, v{vAWr+1}
    v_add_u32 v{vAWr+4}, {RB[2]}, v{vAWr}
    v_add_u32 v{vAWr+5}, {RB[2]}, v{vAWr+1}
    """)


def wtr_reads(slot, dst):
    ra = ring_addr(slot)
    bi = max(i for i in range(3) if RB[i] <= ra)
    out = []
    for T in range(2):
        for q in range(2):
            out.append(f"ds_read_b64_tr_b16 {vr(dst+4*T+2*q, 2)}, v{vAWr+2*bi+T} offset:{ra - RB[bi] + q*1024}")
    return out


HAND_SLOTS = [0, 1, 10, 11]


def gen_gemm(a, vDW):
    ACT = 128
    ACC = 64
    WFB = [240, 248]
    vA1, vG0, vG1, vFl = 14, 15, 16, 17
    DA = 14
    a(f"""
    s_cmp_ge_u32 s{sI32}, 28
    s_cbranch_scc1 k_end
    """)
    stamp(a, 0)
    vm = VM()
    for i in range(9, 13):
        ra = ring_addr(i)
        a(f"""
        s_add_u32 m0, s{sM0}, {ra}
        s_add_u32 s{sT0}, s{sWB}, {i * 16 * 896}
        buffer_load_dwordx4 v{vDW}, {sr4(S_WD)}, s{sT0} offen lds
        s_add_u32 m0, s{sM0}, {ra + 1024}
        s_add_u32 s{sT0}, s{sT0}, {8 * 896}
        buffer_load_dwordx4 v{vDW}, {sr4(S_WD)}, s{sT0} offen lds
        """)
    wtr_setup(a)
    srd(a, S_WO, P_WO, 448 * 448 * 2)
    a(f"""
    v_add_u32 v{vA1}, {112 * 1024}, v{vL16}
    v_and_b32 v{vFl}, 15, v{vLane}
    v_lshlrev_b32 v{vFl}, 2, v{vFl}
    s_lshr_b32 s{sT1}, s{sMT}, 1
    s_lshl_b32 s{sT1}, s{sT1}, 7
    s_add_u32 s{sT1}, s{sT1}, {FH}
    s_mul_i32 s{sA0}, s{sMT}, 224
    s_mul_i32 s{sT0}, s{sKQ}, 28
    s_add_u32 s{sA0}, s{sA0}, s{sT0}
    s_lshl_b32 s{sA0}, s{sA0}, 10
    s_add_u32 s{sA0}, s{sA0}, {HF}
    s_mul_i32 s{sB0w}, s{sKQ}, {7 * 16 * 896}
    s_lshl_b32 s{sT0}, s{sNT}, 7
    s_add_u32 s{sB0w}, s{sB0w}, s{sT0}
    """)
    a(f"s_cmp_lg_u32 s{sW}, 4\ns_cbranch_scc1 gemm_lw")
    poll(a, [vFl], sT1, vG0, SLEEP_H)
    lds_set(a, 8, 1, vT0)
    a("s_branch gemm_go")
    a.label("gemm_lw")
    lds_wait(a, 8, vT0, "eq1", 2)
    a("s_waitcnt vmcnt(0)")
    a.label("gemm_go")
    stamp(a, 1)

    def act_loads(i):
        r = ACT + 8 * (i % DA)
        a(f"""
        s_add_u32 s{sT0}, s{sA0}, {i * 1024}
        buffer_load_dwordx4 {vr(r, 4)}, v{vL16}, {sr4(S_WS)}, s{sT0} offen{SC}
        buffer_load_dwordx4 {vr(r+4, 4)}, v{vA1}, {sr4(S_WS)}, s{sT0} offen{SC}
        """)
        vm.add(("a", i)); vm.add(("a", i))

    def w_loads(i):
        ra = ring_addr(i % 13)
        if i < 28:
            base, srdw, off = sWB, S_WD, i * 16 * 896
        else:
            base, srdw, off = sB0w, S_WO, (28 * ((i - 28) // 2) + 16 * ((i - 28) % 2)) * 896
        a(f"""
        s_add_u32 m0, s{sM0}, {ra}
        s_add_u32 s{sT0}, s{base}, {off}
        buffer_load_dwordx4 v{vDW}, {sr4(srdw)}, s{sT0} offen lds
        s_add_u32 m0, s{sM0}, {ra + 1024}
        s_add_u32 s{sT0}, s{sT0}, {8 * 896}
        buffer_load_dwordx4 v{vDW}, {sr4(srdw)}, s{sT0} offen lds
        """)
        vm.add(("w", i)); vm.add(("w", i))

    for i in range(DA):
        act_loads(i)
    a(f"""
    v_and_b32 v{vT0}, 31, v{vLane}
    v_lshlrev_b32 v{vT0}, 2, v{vT0}
    s_lshl_b32 s{sT1}, s{sMT}, 8
    s_add_u32 s{sT1}, s{sT1}, {GF}
    buffer_load_dword v{vG0}, v{vT0}, {sr4(S_WS)}, s{sT1} offen{SC}
    buffer_load_dword v{vG1}, v{vT0}, {sr4(S_WS)}, s{sT1} offen offset:128{SC}
    """)
    vm.add(("g",)); vm.add(("g",))
    for x in wtr_reads(0, WFB[0]):
        a(x)
    for i in range(28):
        need = {("a", i)}
        if i + 1 < 28 and i + 1 >= 13:
            need.add(("w", i + 1))
        a(f"s_waitcnt vmcnt({vm.wait(need)}) lgkmcnt(0)")
        if i + 1 < 28:
            for x in wtr_reads((i + 1) % 13, WFB[(i + 1) % 2]):
                a(x)
        for mt in range(2):
            for T in range(2):
                c = vr(ACC + 32 * mt + 16 * T, 16)
                a(f"{MFMA} {c}, {vr(WFB[i%2]+4*T, 4)}, {vr(ACT+8*(i%DA)+4*mt, 4)}, {'0' if i == 0 else c}")
        if i + 13 < 36:
            w_loads(i + 13)
        if i + DA < 28:
            act_loads(i + DA)
    stamp(a, 2)
    a(f"""
    v_sub_f32 v{vG0}, 1.0, v{vG0}
    v_sub_f32 v{vG1}, 1.0, v{vG1}
    s_lshl_b32 s{sT0}, s{sKQ}, 11
    v_add_u32 v{vT0}, s{sT0}, v{vL16}
    s_nop 7
    s_nop 3
    """)
    for i in range(32):
        a(f"v_mul_f32 v{ACC+32+i}, v{ACC+32+i}, v{vG1}")
    for q in range(8):
        a(f"ds_write_b128 v{vT0}, {vr(ACC+32+4*q, 4)} offset:{ring_addr(HAND_SLOTS[q//2]) + (q%2)*1024}")
    for i in range(32):
        a(f"v_mul_f32 v{ACC+i}, v{ACC+i}, v{vG0}")
    a(f"""
    s_mov_b32 s{sMH}, 0
    s_waitcnt vmcnt(0) lgkmcnt(0)
    """)
    stamp(a, 3)
    a("s_barrier")


def gen_attention(a):
    Q = 16
    O = 48
    S = [112, 128]
    P = 144
    KV = 160
    TMP = 224
    vG, vM, vFLA, vPOL, vONE = 14, 15, 7, 9, 12
    sME, sMO = 24, 26
    sKB, sVB, sTI, sKS, sVS = sKVB, sKOFF, sSOFF, sA0, sB0w
    a.label("att_spin")
    a(f"s_cmp_lg_u32 s{sW}, 0\ns_cbranch_scc1 att_spin_lw")
    poll(a, [vFLA, vFLA + 1], sFQB, vPOL, SLEEP_Q)
    lds_set(a, 4, 1, vT0)
    a("s_branch att_spin_done")
    a.label("att_spin_lw")
    lds_wait(a, 4, vT0, "eq1")
    a.label("att_spin_done")
    a(f"s_mov_b32 s{sMODE}, 1")
    a.label("att_loads")
    stamp(a, 0)
    vm = VM()
    a(f"""
    s_setprio 2
    s_lshl_b32 s{sT1}, s{sP0}, 9
    s_mul_i32 s{sT2}, s{sQB}, {4 * TQ}
    s_add_u32 s{sT2}, s{sT2}, s{sT1}
    s_add_u32 s{sT0}, s{sT2}, {KF}
    buffer_load_dwordx4 {vr(TMP, 4)}, v{vL16}, {sr4(S_WS)}, s{sT0} offen{SC}
    buffer_load_dwordx4 {vr(TMP+4, 4)}, v{vL16}, {sr4(S_WS)}, s{sT0} offen offset:1024{SC}
    """)
    vm.add(("m",)); vm.add(("m",))
    for i in range(4):
        a(f"""
        s_add_u32 s{sT0}, s{sKQ}, {i}
        s_and_b32 s{sT0}, s{sT0}, 3
        s_mul_i32 s{sT0}, s{sT0}, {TQ}
        s_add_u32 s{sT0}, s{sT0}, s{sT2}
        buffer_load_dwordx4 {vr(Q+8*i, 4)}, v{vL16}, {sr4(S_WS)}, s{sT0} offen{SC}
        buffer_load_dwordx4 {vr(Q+8*i+4, 4)}, v{vL16}, {sr4(S_WS)}, s{sT0} offen offset:1024{SC}
        """)
        vm.add(("q", i)); vm.add(("q", i))
    a(f"""
    s_mul_i32 s{sKB}, s{sKQ}, {16 * TQ}
    s_add_u32 s{sKB}, s{sKB}, s{sT1}
    s_add_u32 s{sKB}, s{sKB}, {KF}
    s_lshl_b32 s{sVB}, s{sHEAD}, 17
    s_lshl_b32 s{sT0}, s{sKQ}, 15
    s_add_u32 s{sVB}, s{sVB}, s{sT0}
    s_add_u32 s{sVB}, s{sVB}, {VF}
    s_mov_b32 s{sTI}, s{sQB}
    """)

    def kv_adv():
        return [f"s_mul_i32 s{sKS}, s{sTI}, {TQ}", f"s_add_u32 s{sKS}, s{sKS}, s{sKB}",
                f"s_lshl_b32 s{sVS}, s{sTI}, 11", f"s_add_u32 s{sVS}, s{sVS}, s{sVB}",
                f"s_add_u32 s{sTI}, s{sTI}, 1", f"s_and_b32 s{sTI}, s{sTI}, 15"]

    def kv_load(buf, part):
        so = sKS if part < 2 else sVS
        return f"buffer_load_dwordx4 {vr(KV+16*buf+4*part, 4)}, v{vL16}, {sr4(S_WS)}, s{so} offen offset:{1024*(part%2)}{SC}"

    def k_fix(buf):
        return [f"v_cndmask_b32 v{KV+16*buf+6}, v{KV+16*buf+6}, v{vONE}, s[{sME}:{sME+1}]",
                f"v_cndmask_b32 v{KV+16*buf}, v{KV+16*buf}, v{vONE}, s[{sMO}:{sMO+1}]"]

    for t in range(3):
        for x in kv_adv():
            a(x)
        for p in range(4):
            a(kv_load(t, p)); vm.add(("kv", t, p))
    a(f"""
    v_and_b32 v{vT0}, 31, v{vLane}
    v_lshlrev_b32 v{vT0}, 2, v{vT0}
    s_lshl_b32 s{sT0}, s{sQB}, 2
    s_add_u32 s{sT0}, s{sT0}, s{sKQ}
    s_lshl_b32 s{sT0}, s{sT0}, 7
    s_add_u32 s{sT0}, s{sT0}, {GF}
    buffer_load_dword v{vG}, v{vT0}, {sr4(S_WS)}, s{sT0} offen{SC}
    v_mov_b32 v{vT1}, 0
    v_mov_b32 v{vONE}, 0x3f803f80
    s_and_b32 s{sT0}, s{sHEAD}, 1
    s_mov_b32 s{sME}, 0
    s_mov_b32 s{sMO+1}, 0
    s_sub_u32 s{sME+1}, s{sT0}, 1
    s_sub_u32 s{sMO}, 0, s{sT0}
    """)
    vm.add(("g",))
    for i in range(64):
        a(f"v_mov_b32 v{O+i}, 0")
    for x in kv_adv()[:2]:
        a(x)
    a(f"""
    s_cmp_eq_u32 s{sMODE}, 1
    s_cbranch_scc1 att_main
    s_waitcnt vmcnt({len(vm.q)})
    s_barrier
    """)
    a.label("att_main")
    stamp(a, 1)
    SCR = [S[0], S[1], KV + 48, TMP + 8]
    for i in range(4):
        a(f"""
        s_waitcnt vmcnt({vm.wait({('m',), ('q', i)})})
        v_cndmask_b32 v{Q+8*i}, v{Q+8*i}, v{vT1}, s[{sMO}:{sMO+1}]
        v_cndmask_b32 v{Q+8*i+1}, v{Q+8*i+1}, v{vT1}, s[{sMO}:{sMO+1}]
        v_cndmask_b32 v{Q+8*i+6}, v{Q+8*i+6}, v{vT1}, s[{sME}:{sME+1}]
        v_cndmask_b32 v{Q+8*i+7}, v{Q+8*i+7}, v{vT1}, s[{sME}:{sME+1}]
        {MFMA} {vr(SCR[i], 16)}, {vr(TMP, 4)}, {vr(Q+8*i, 4)}, 0
        s_nop 0
        {MFMA} {vr(SCR[i], 16)}, {vr(TMP+4, 4)}, {vr(Q+8*i+4, 4)}, {vr(SCR[i], 16)}
        """)
    a(f"s_waitcnt vmcnt({vm.wait({('kv', 0, 1)})})")
    for x in k_fix(0):
        a(x)
    for i in range(4):
        s0 = SCR[i]
        a(f"v_max3_f32 v{vM}, v{s0}, v{s0+1}, v{s0+2}")
        for k in range(3, 15, 2):
            a(f"v_max3_f32 v{vM}, v{vM}, v{s0+k}, v{s0+k+1}")
        a(f"""
        v_max_f32 v{vM}, v{vM}, v{s0+15}
        v_mov_b32 v{vT0}, v{vM}
        s_nop 1
        v_permlane32_swap_b32 v{vM}, v{vT0}
        v_max_f32 v{vM}, v{vM}, v{vT0}
        v_sub_f32 v{vM}, 0, v{vM}
        v_cvt_pk_bf16_f32 v{vT0}, v{vM}, v{vM}
        v_lshlrev_b32 v{vT0}, 16, v{vT0}
        v_sub_f32 v{vT0}, v{vM}, v{vT0}
        v_cvt_pk_bf16_f32 v{vT0}, v{vM}, v{vT0}
        v_cndmask_b32 v{Q+8*i}, v{Q+8*i}, v{vT0}, s[{sMO}:{sMO+1}]
        v_cndmask_b32 v{Q+8*i+6}, v{Q+8*i+6}, v{vT0}, s[{sME}:{sME+1}]
        """)
        if i == 0:
            a(f"""
            s_nop 0
            {MFMA} {vr(S[0], 16)}, {vr(KV, 4)}, {vr(Q, 4)}, 0
            {MFMA} {vr(S[0], 16)}, {vr(KV+4, 4)}, {vr(Q+4, 4)}, {vr(S[0], 16)}
            """)
    for i in range(4):
        a(f"v_mov_b32 v{P+4+i}, 0\nv_mov_b32 v{KV+16*3+12+i}, 0")
    a(f"s_mov_b32 s{sIT}, 0")
    stamp(a, 2)
    a.label("att_loop")
    for tb in range(4):
        for q in range(4):
            ph = 4 * tb + q
            sc, sn = S[ph % 2], S[1 - ph % 2]
            pq, pb = (q - 1) % 4, (tb if q > 0 else (tb - 1) % 4)
            nq, nb = (q + 1) % 4, (tb if q < 3 else (tb + 1) % 4)
            e = [f"v_exp_f32 v{sc+i}, v{sc+i}" for i in range(16)]
            c = [f"v_cvt_pk_bf16_f32 v{P+i}, v{sc+2*i}, v{sc+2*i+1}" for i in range(8)]
            pv2 = f"{MFMA} {vr(O+16*pq, 16)}, {vr(KV+16*pb+12, 4)}, {vr(P+4, 4)}, {vr(O+16*pq, 16)}"
            pv1 = f"{MFMA} {vr(O+16*q, 16)}, {vr(KV+16*tb+8, 4)}, {vr(P, 4)}, {vr(O+16*q, 16)}"
            qk1 = f"{MFMA} {vr(sn, 16)}, {vr(KV+16*nb, 4)}, {vr(Q+8*nq, 4)}, 0"
            qk2 = f"{MFMA} {vr(sn, 16)}, {vr(KV+16*nb+4, 4)}, {vr(Q+8*nq+4, 4)}, {vr(sn, 16)}"
            adv = kv_adv()
            s_pv2, s_qk1, s_qk2, s_pv1, tail = [], [], [], [], []
            s_qk1.append(kv_load((tb + 3) % 4, q))
            if q == 0:
                s_pv2.append(adv[2])
                s_qk2.append("s_waitcnt vmcnt(9)")
                s_pv1.append(adv[3])
            if q == 1:
                s_pv2.append(adv[4])
                s_qk2.append(adv[5])
                if tb == 0:
                    s_pv1.append(f"s_cmp_eq_u32 s{sIT}, 3")
                if tb == 3:
                    s_pv1.append(f"s_add_u32 s{sIT}, s{sIT}, 1")
            if q == 2:
                if tb == 0:
                    s_pv2.append(f"s_cselect_b32 s{sKB}, {OOB}, s{sKB}")
                    s_qk2.append(f"s_cselect_b32 s{sVB}, {OOB}, s{sVB}")
                s_pv1.append("s_waitcnt vmcnt(9)")
                tail = k_fix((tb + 1) % 4)
            if q == 3:
                s_pv2.append(adv[0])
                s_qk2.append(adv[1])
                if tb == 3:
                    s_pv1.append(f"s_cmp_lt_u32 s{sIT}, 4")
            seq = e[0:2] + [pv2] + s_pv2 + e[2:5] + [qk1] + s_qk1 + e[5:9] + c[0:4] + [qk2] + s_qk2 + e[9:12] + [pv1] + s_pv1 + e[12:16] + tail + c[4:8]
            for x in seq:
                a(x)
    a(f"""
    s_cbranch_scc1 att_loop
    s_nop 0
    {MFMA} {vr(O+48, 16)}, {vr(KV+16*3+12, 4)}, {vr(P+4, 4)}, {vr(O+48, 16)}
    """)
    stamp(a, 3)
    for i in range(1, 4):
        a(f"""
        s_add_u32 s{sT0}, s{sKQ}, {i}
        s_and_b32 s{sT0}, s{sT0}, 3
        s_mul_i32 s{sT0}, s{sT0}, 12288
        s_add_u32 s{sT0}, s{sT0}, {MERGE + (i-1) * 4096}
        v_add_u32 v{vT0}, s{sT0}, v{vL16}
        """)
        if i == 3:
            a("s_nop 3")
        for q in range(4):
            a(f"ds_write_b128 v{vT0}, {vr(O+16*i+4*q, 4)} offset:{1024*q}")
    a(f"""
    v_mov_b32 v{vT1}, {CNT}
    v_mov_b32 v{vT2}, 1
    s_mul_i32 s{sT0}, s{sKQ}, 12288
    s_add_u32 s{sT0}, s{sT0}, {MERGE}
    v_add_u32 v{vT0}, s{sT0}, v{vL16}
    s_waitcnt lgkmcnt(0)
    s_mov_b64 exec, 1
    ds_add_u32 v{vT1}, v{vT2}
    s_mov_b64 exec, -1
    """)
    a.label("att_msync")
    a(f"""
    ds_read_b32 v{vT2}, v{vT1}
    s_waitcnt lgkmcnt(0)
    v_cmp_gt_u32 vcc, 4, v{vT2}
    s_cbranch_vccnz att_msync
    """)
    for i in range(12):
        a(f"ds_read_b128 {vr(O+16+4*i, 4)}, v{vT0} offset:{1024*i}")
    a(f"v_cmp_lt_u32 vcc, 31, v{vLane}")
    a("s_waitcnt lgkmcnt(4)")
    for i in range(16):
        a(f"v_add_f32 v{O+i}, v{O+i}, v{O+16+i}")
    for i in range(16):
        a(f"v_add_f32 v{O+i}, v{O+i}, v{O+32+i}")
    a("s_waitcnt lgkmcnt(0)")
    for i in range(16):
        a(f"v_add_f32 v{O+i}, v{O+i}, v{O+48+i}")
    a(f"""
    v_mov_b32 v{vT0}, v{O+12}
    v_mov_b32 v{vT1}, v{O+12}
    v_mul_f32 v{vT2}, 0, v{O}
    v_mul_f32 v{vT3}, 0, v{O+12}
    v_permlane32_swap_b32 v{vT0}, v{vT1}
    """)
    for i in range(1, 12):
        a(f"v_fma_f32 v{vT2}, v{O+i}, 0, v{vT2}")
    for i in range(13, 16):
        a(f"v_fma_f32 v{vT3}, v{O+i}, 0, v{vT3}")
    a(f"""
    v_cndmask_b32 v{vT3}, v{vT3}, v{vT2}, vcc
    v_add_f32 v{vT2}, v{vT2}, v{vT3}
    v_add_f32 v{vT2}, v{vT2}, v{vT1}
    s_mov_b32 s{sT0}, {f32bits(2.0**-10):#x}
    s_mov_b32 s{sT1}, {f32bits(2.0**100):#x}
    v_cmp_le_f32 s[28:29], s{sT0}, v{vT2}
    v_cmp_ge_f32 vcc, s{sT1}, v{vT2}
    s_and_b64 vcc, s[28:29], vcc
    s_cmp_eq_u64 vcc, -1
    s_cbranch_scc0 att_fallback
    """)
    a.label("att_final")
    a(f"""
    v_rcp_f32 v{vT1}, v{vT1}
    s_lshl_b32 s{sT2}, s{sQB}, 2
    s_add_u32 s{sT2}, s{sT2}, s{sKQ}
    v_mul_f32 v{vT1}, v{vT1}, v{vG}
    s_lshl_b32 s{sT2}, s{sT2}, 4
    s_add_u32 s{sT2}, s{sT2}, s{sHEAD}
    s_lshl_b32 s{sT1}, s{sT2}, 11
    s_add_u32 s{sT1}, s{sT1}, {OF}
    v_cmp_lt_u32 vcc, 31, v{vLane}
    v_mov_b32 v{vT0}, 0
    """)
    for hh in range(2):
        for i in range(8):
            a(f"v_mul_f32 v{O+8*hh+i}, v{O+8*hh+i}, v{vT1}")
        for i in range(4):
            a(f"v_cvt_pk_bf16_f32 v{TMP+4*hh+i}, v{O+8*hh+2*i}, v{O+8*hh+2*i+1}")
        if hh == 1:
            a(f"v_cndmask_b32 v{TMP+6}, v{TMP+6}, v{vT0}, vcc\nv_cndmask_b32 v{TMP+7}, v{TMP+7}, v{vT0}, vcc")
        a(f"buffer_store_dwordx4 {vr(TMP+4*hh, 4)}, v{vL16}, {sr4(S_WS)}, s{sT1} offen offset:{1024*hh}{SC}")
    a(f"""
    s_lshl_b32 s{sT0}, s{sQB}, 2
    s_add_u32 s{sT0}, s{sT0}, s{sKQ}
    s_lshl_b32 s{sT0}, s{sT0}, 5
    s_add_u32 s{sT0}, s{sT0}, s{sHEAD}
    s_lshl_b32 s{sT0}, s{sT0}, 2
    s_add_u32 s{sT0}, s{sT0}, {FO}
    """)
    stamp(a, 4)
    a("s_waitcnt vmcnt(0)")
    flag_store(a, sT0, vT0)
    stamp(a, 5)
    a(f"""
    s_setprio 0
    s_cmp_ge_u32 s{sI32}, 28
    s_cbranch_scc1 att_exit
    """)
    wtr_setup(a)
    a(f"""
    s_mov_b32 s{sMH}, 1
    s_lshl_b32 s{sT0}, s{sKQ}, 11
    v_add_u32 v{vT0}, s{sT0}, v{vL16}
    s_barrier
    """)
    for q in range(8):
        a(f"ds_read_b128 {vr(P3_ACC+4*q, 4)}, v{vT0} offset:{ring_addr(HAND_SLOTS[q//2]) + (q%2)*1024}")
    a("s_branch phase3")
    a.label("att_exit")
    stamp_flush(a, 1, 6)
    a("s_endpgm")

    a.label("att_fallback")
    sc = S[0]
    K, V = KV, KV + 8
    vMo, vMn, vAl = TMP, TMP + 1, TMP + 2
    a(f"""
    v_mov_b32 v{vT0}, 0
    v_mov_b32 v{vMo}, 0xff800000
    v_cndmask_b32 v{Q}, v{Q}, v{vT0}, s[{sMO}:{sMO+1}]
    v_cndmask_b32 v{Q+6}, v{Q+6}, v{vT0}, s[{sME}:{sME+1}]
    s_mov_b32 s{sIT}, 0
    s_lshl_b32 s{sKS}, s{sP0}, 9
    s_add_u32 s{sKS}, s{sKS}, {KF}
    s_lshl_b32 s{sVS}, s{sHEAD}, 17
    s_add_u32 s{sVS}, s{sVS}, {VF}
    s_waitcnt vmcnt(0)
    """)
    for i in range(16):
        a(f"v_mov_b32 v{O+i}, 0")
    a.label("att_fb_loop")
    a(f"""
    buffer_load_dwordx4 {vr(K, 4)}, v{vL16}, {sr4(S_WS)}, s{sKS} offen{SC}
    buffer_load_dwordx4 {vr(K+4, 4)}, v{vL16}, {sr4(S_WS)}, s{sKS} offen offset:1024{SC}
    buffer_load_dwordx4 {vr(V, 4)}, v{vL16}, {sr4(S_WS)}, s{sVS} offen{SC}
    buffer_load_dwordx4 {vr(V+4, 4)}, v{vL16}, {sr4(S_WS)}, s{sVS} offen offset:1024{SC}
    s_waitcnt vmcnt(0)
    {MFMA} {vr(sc, 16)}, {vr(K, 4)}, {vr(Q, 4)}, 0
    {MFMA} {vr(sc, 16)}, {vr(K+4, 4)}, {vr(Q+4, 4)}, {vr(sc, 16)}
    s_nop 15
    v_max3_f32 v{vMn}, v{vMo}, v{sc}, v{sc+1}
    """)
    for i in range(2, 16, 2):
        a(f"v_max3_f32 v{vMn}, v{vMn}, v{sc+i}, v{sc+i+1}")
    a(f"""
    v_mov_b32 v{vT0}, v{vMn}
    s_nop 1
    v_permlane32_swap_b32 v{vMn}, v{vT0}
    v_max_f32 v{vMn}, v{vMn}, v{vT0}
    v_sub_f32 v{vAl}, v{vMo}, v{vMn}
    v_exp_f32 v{vAl}, v{vAl}
    v_mov_b32 v{vMo}, v{vMn}
    """)
    for i in range(16):
        a(f"v_sub_f32 v{sc+i}, v{sc+i}, v{vMn}")
    for i in range(16):
        a(f"v_exp_f32 v{sc+i}, v{sc+i}")
    for i in range(16):
        a(f"v_mul_f32 v{O+i}, v{O+i}, v{vAl}")
    for i in range(8):
        a(f"v_cvt_pk_bf16_f32 v{P+i}, v{sc+2*i}, v{sc+2*i+1}")
    a(f"""
    s_nop 1
    {MFMA} {vr(O, 16)}, {vr(V, 4)}, {vr(P, 4)}, {vr(O, 16)}
    {MFMA} {vr(O, 16)}, {vr(V+4, 4)}, {vr(P+4, 4)}, {vr(O, 16)}
    s_add_u32 s{sKS}, s{sKS}, {TQ}
    s_add_u32 s{sVS}, s{sVS}, 2048
    s_add_u32 s{sIT}, s{sIT}, 1
    s_cmp_lt_u32 s{sIT}, 64
    s_cbranch_scc1 att_fb_loop
    s_nop 15
    v_mov_b32 v{vT0}, v{O+12}
    v_mov_b32 v{vT1}, v{O+12}
    s_nop 1
    v_permlane32_swap_b32 v{vT0}, v{vT1}
    s_branch att_final
    """)


def gen_phase3(a):
    vFl, vPo = 14, 15
    for i in range(8):
        for x in wtr_reads((28 + i) % 13, P3_WF + 8 * i):
            a(x)
        a("s_waitcnt lgkmcnt(8)")
    srd(a, S_OUT, P_OUT, 2048 * 448 * 2)
    a(f"""
    s_lshl_b32 s{sT2}, s{sMT}, 1
    s_add_u32 s{sT2}, s{sT2}, s{sMH}
    s_lshl_b32 s{sT1}, s{sT2}, 7
    s_add_u32 s{sT1}, s{sT1}, {FO}
    v_and_b32 v{vFl}, 15, v{vLane}
    v_lshlrev_b32 v{vFl}, 2, v{vFl}
    s_lshl_b32 s{sA0}, s{sT2}, 2
    s_add_u32 s{sA0}, s{sA0}, s{sKQ}
    s_lshl_b32 s{sA0}, s{sA0}, 13
    s_add_u32 s{sA0}, s{sA0}, {OF}
    s_add_u32 s{sB0w}, s{sA0}, 4096
    """)
    stamp(a, 6)
    a(f"""
    s_lshl_b32 s{sIT}, s{sMH}, 2
    s_add_u32 s{sIT}, s{sIT}, {CNT + 12}
    v_mov_b32 v{vT0}, s{sIT}
    v_mov_b32 v{vT1}, 1
    s_cmp_lg_u32 s{sKQ}, 0
    s_cbranch_scc1 p3_lw
    """)
    poll(a, [vFl], sT1, vPo, SLEEP_O)
    a(f"""
    ds_write_b32 v{vT0}, v{vT1}
    s_branch p3_go
    """)
    a.label("p3_lw")
    a(f"""
    ds_read_b32 v{vT1}, v{vT0}
    s_waitcnt lgkmcnt(0)
    v_readfirstlane_b32 s{sT0}, v{vT1}
    s_cmp_eq_u32 s{sT0}, 1
    s_cbranch_scc0 p3_lw
    """)
    a.label("p3_go")
    stamp(a, 7)
    for i in range(8):
        so, off = (sA0, i) if i < 4 else (sB0w, i - 4)
        a(f"buffer_load_dwordx4 {vr(P3_OF+4*i, 4)}, v{vL16}, {sr4(S_WS)}, s{so} offen offset:{1024*off}{SC}")
    a(f"""
    s_mul_i32 s{sT0}, s{sMH}, 24576
    s_add_u32 s{sT0}, s{sT0}, {MERGE}
    v_add_u32 v{vT0}, s{sT0}, v{vL16}
    s_mul_i32 s{sT1}, s{sKQ}, 6144
    v_add_u32 v{vPo}, s{sT1}, v{vT0}
    """)
    for lp in range(1, 4):
        a(f"""
        s_xor_b32 s{sT1}, s{sKQ}, {lp}
        s_mul_i32 s{sT1}, s{sT1}, 6144
        v_add_u32 v{vT0+lp}, s{sT1}, v{vT0}
        """)
    a(f"""
    v_and_b32 v{vFl}, 31, v{vLane}
    v_mul_u32_u24 v{vFl}, 896, v{vFl}
    v_lshrrev_b32 v{vT0}, 5, v{vLane}
    v_lshl_add_u32 v{vFl}, v{vT0}, 4, v{vFl}
    s_mul_i32 s{sT2}, s{sT2}, {32 * 896}
    s_lshl_b32 s{sT0}, s{sNT}, 7
    s_add_u32 s{sT2}, s{sT2}, s{sT0}
    s_lshl_b32 s{sT0}, s{sKQ}, 5
    s_add_u32 s{sT2}, s{sT2}, s{sT0}
    s_waitcnt lgkmcnt(0)
    """)
    for i in range(8):
        a(f"s_waitcnt vmcnt({7 - i})")
        for T in range(2):
            c = vr(P3_ACC + 16 * T, 16)
            a(f"{MFMA} {c}, {vr(P3_WF+8*i+4*T, 4)}, {vr(P3_OF+4*i, 4)}, {c}")
    a("s_nop 7\ns_nop 3")
    for lp in range(1, 4):
        for q in range(2):
            a(f"ds_write_b128 v{vT0+lp}, {vr(P3_ACC+8*lp+4*q, 4)} offset:{(lp-1)*2048 + q*1024}")
    a("s_waitcnt lgkmcnt(0)\ns_barrier")
    for i in range(6):
        a(f"ds_read_b128 {vr(P3_ACC+8+4*i, 4)}, v{vPo} offset:{1024*i}")
    a("s_waitcnt lgkmcnt(2)")
    for i in range(8):
        a(f"v_add_f32 v{P3_ACC+i}, v{P3_ACC+i}, v{P3_ACC+8+i}")
    for i in range(8):
        a(f"v_add_f32 v{P3_ACC+i}, v{P3_ACC+i}, v{P3_ACC+16+i}")
    a("s_waitcnt lgkmcnt(0)")
    for i in range(8):
        a(f"v_add_f32 v{P3_ACC+i}, v{P3_ACC+i}, v{P3_ACC+24+i}")
    t = P3_OF
    for i in range(4):
        a(f"v_cvt_pk_bf16_f32 v{t+i}, v{P3_ACC+2*i}, v{P3_ACC+2*i+1}")
    a(f"""
    s_nop 1
    v_permlane32_swap_b32 v{t}, v{t+2}
    v_permlane32_swap_b32 v{t+1}, v{t+3}
    buffer_store_dwordx4 {vr(t, 4)}, v{vFl}, {sr4(S_OUT)}, s{sT2} offen
    """)
    if INSTR:
        stamp_flush(a, 1, 8)
        stamp(a, 0); stamp_rt(a, 1)
        stamp_flush(a, 2, 2)


def build():
    ref = open(f"cdna_kernels/{NAME}.s.ref").read().split("\n")
    hdr = [l for l in ref if l.startswith(";") and "@launch" not in l and "Override launch" not in l and "grid=ceil" not in l]
    body = gen()
    out = "\n".join(hdr) + "\n"
    out += f"; @launch grid=(256,1,1) block=(512,1,1) lds={LDS_BYTES}\n"
    out += '.amdgcn_target "amdgcn-amd-amdhsa--gfx950"\n.text\n'
    out += f".globl {KNAME}\n.p2align 8\n.type {KNAME},@function\n{KNAME}:\n"
    out += body
    out += f""".section .rodata,"a"
.p2align 6
.amdhsa_kernel {KNAME}
  .amdhsa_next_free_vgpr 256
  .amdhsa_next_free_sgpr 102
  .amdhsa_accum_offset 256
  .amdhsa_group_segment_fixed_size 0
  .amdhsa_kernarg_size 88
  .amdhsa_user_sgpr_count 2
  .amdhsa_user_sgpr_kernarg_segment_ptr 1
  .amdhsa_system_sgpr_workgroup_id_x 1
.end_amdhsa_kernel
"""
    return out


if __name__ == "__main__":
    path = sys.argv[1]
    open(path, "w").write(build())
    print("wrote", path)
```

```python
import math, struct, sys, os

NAME = "gated_mix__softmax_full_mha__swiglu_ffn__prompt"
KNAME = NAME + "_kernel"
INSTR = int(os.environ.get("INSTR", "0"))
OPT = os.environ.get("OPT", "")

QF = 0
KF = 2 << 20
VF = 4 << 20
TQ = 28672
HF = 6 << 20
OF = 14 << 20
GF = 16 << 20
FQ = (16 << 20) + 0x10000
FH = (16 << 20) + 0x14000
FO = (16 << 20) + 0x18000
TSF = 24 << 20
WS_BYTES = 32 << 20
OOB = 0x40000000
SLEEP_Q = int(os.environ.get('SLQ', '6'))
SLEEP_H = int(os.environ.get('SLH', '8'))
SLEEP_O = int(os.environ.get('SLO', '2'))
LOG2E = math.log2(math.e)
MFMA = "v_mfma_f32_32x32x16_bf16"
SC = " sc1"
SLOT = 40960
LDS_BYTES = 4 * SLOT
MERGE = 73728
CNT = 155648
SPIN_MAX = 1 << int(os.environ.get('SPINLOG', '18'))


def ring_addr(s):
    if s <= 4:
        return s * 8192
    if s <= 8:
        return 122880 + (s - 5) * 8192
    return 40960 + (s - 9) * 8192


def f32bits(x):
    return struct.unpack("<I", struct.pack("<f", x))[0]


class Asm:
    def __init__(self):
        self.lines = []

    def __call__(self, s):
        for ln in s.strip("\n").split("\n"):
            ln = ln.strip()
            if not ln:
                continue
            self.lines.append(ln if ln.endswith(":") else "    " + ln)

    def label(self, l):
        self.lines.append(l + ":")

    def text(self):
        return "\n".join(self.lines) + "\n"


def vr(base, n):
    return f"v[{base}:{base + n - 1}]"


def sr4(b):
    return f"s[{b}:{b+3}]"


def srd(a, sd, sb, nbytes):
    a(f"""
    s_mov_b32 s{sd}, s{sb}
    s_mov_b32 s{sd+1}, s{sb+1}
    s_mov_b32 s{sd+2}, {nbytes}
    s_mov_b32 s{sd+3}, 0x00020000
    """)


def L(s):
    return [l.strip() for l in s.strip("\n").split("\n") if l.strip()]


EARLY_A = int(os.environ.get('EARLY_A', '20'))
EARLY_P = int(os.environ.get('EARLY_P', '22'))
GB_AT = int(os.environ.get('GB_AT', '7'))

S_X, S_B0, S_G, S_U, S_WS, S_TMP, S_WD, S_DBG = 4, 8, 12, 16, 20, 24, 28, 32
S_WO, S_OUT = 8, 12
sMI, sJ, sW, sR, sGRP = 36, 37, 38, 39, 40
sKQ = 39
sT0, sT1, sT2 = 42, 43, 44
sMX, sMB, sSO = 45, 46, 47
sSC, sTILE, sHOFF, sHOFF2, sQKO = 48, 49, 50, 51, 52
sWB, sM0, sFHO, sFQB, sP0, sOK = 53, 54, 55, 56, 57, 58
sNONCE, sNL2E, sC8, sI32, sSPIN = 59, 60, 61, 62, 63
P_X, P_WQKV, P_WO, P_WG, P_WU, P_WD, P_GW, P_OUT, P_DBG, P_WS = 64, 66, 68, 72, 74, 76, 78, 80, 82, 84
ST0 = 86
sHEAD, sQB, sMT, sNT = 70, 71, 41, 3
vLane, vL16 = 1, 2
vT0, vT1, vT2, vT3 = 3, 4, 5, 6
STAMPS = os.environ.get("STAMPS", "p1_first,p1_aend,p1_bend,p1_end,x_go,x_loop,x_lend").split(",")


def stamp(a, name):
    if INSTR and (name == "start" or name in STAMPS):
        idx = 0 if name == "start" else 1 + STAMPS.index(name)
        a(f"s_memtime s[{ST0+2*idx}:{ST0+2*idx+1}]")


def stamp_flush(a, vtmp=3):
    if not INSTR:
        return
    a(f"""
    s_memtime s[4:5]
    s_memrealtime s[6:7]
    s_lshl_b32 s3, s2, 3
    s_add_u32 s3, s3, s{sW}
    s_lshl_b32 s3, s3, 7
    s_add_u32 s3, s3, {TSF}
    v_mov_b32 v{vtmp+1}, 0
    s_waitcnt lgkmcnt(0)
    """)
    regs = [ST0 + 2 * i for i in range(8)] + [4, 6]
    for i, r in enumerate(regs):
        a(f"""
        v_mov_b32 v{vtmp}, s{r}
        buffer_store_dword v{vtmp}, v{vtmp+1}, {sr4(S_WS)}, s3 offen offset:{4*i}
        s_nop 1
        """)


def flag_store(a, soff_reg, vtmp):
    a(f"""
    v_mov_b32 v{vtmp}, s{sNONCE}
    v_mov_b32 v{vtmp+1}, 0
    s_mov_b64 exec, 1
    buffer_store_dword v{vtmp}, v{vtmp+1}, {sr4(S_WS)}, s{soff_reg} offen{SC}
    s_mov_b64 exec, -1
    """)


_uid = [0]


def poll(a, addrs, soff, vtmp, sleep):
    _uid[0] += 1
    u = _uid[0]
    a(f"s_mov_b32 s{sSPIN}, {SPIN_MAX}")
    a.label(f"poll_ld{u}")
    for i, va in enumerate(addrs):
        a(f"buffer_load_dword v{vtmp+i}, v{va}, {sr4(S_WS)}, s{soff} offen{SC}")
    a("s_waitcnt vmcnt(0)")
    poll_cmp(a, len(addrs), vtmp)
    a(f"""
    s_sub_u32 s{sSPIN}, s{sSPIN}, 1
    s_cbranch_scc1 poll_done{u}
    s_cmp_eq_u64 vcc, 0
    s_cbranch_scc1 poll_done{u}
    s_sleep {sleep}
    s_branch poll_ld{u}
    """)
    a.label(f"poll_done{u}")


def poll_cmp(a, n, vtmp):
    if n == 1:
        a(f"v_cmp_ne_u32 vcc, s{sNONCE}, v{vtmp}")
    else:
        a(f"""
        v_xor_b32 v{vtmp}, s{sNONCE}, v{vtmp}
        v_xor_b32 v{vtmp+1}, s{sNONCE}, v{vtmp+1}
        v_or_b32 v{vtmp}, v{vtmp}, v{vtmp+1}
        v_cmp_ne_u32 vcc, 0, v{vtmp}
        """)


def lds_set(a, off, val, vtmp):
    a(f"""
    v_mov_b32 v{vtmp}, {CNT + off}
    v_mov_b32 v{vtmp+1}, {val}
    ds_write_b32 v{vtmp}, v{vtmp+1}
    """)


def lds_wait(a, off, vtmp, cond, sleep=1):
    _uid[0] += 1
    u = _uid[0]
    a(f"v_mov_b32 v{vtmp}, {CNT + off}")
    a.label(f"lw{u}")
    a(f"""
    ds_read_b32 v{vtmp+1}, v{vtmp}
    s_waitcnt lgkmcnt(0)
    v_readfirstlane_b32 s{sT0}, v{vtmp+1}
    """)
    a(f"s_cmp_lg_u32 s{sT0}, 0" if cond == "ne0" else f"s_cmp_eq_u32 s{sT0}, 1")
    a(f"""
    s_cbranch_scc1 lwd{u}
    s_sleep {sleep}
    s_branch lw{u}
    """)
    a.label(f"lwd{u}")


class VM:
    def __init__(self):
        self.q = []

    def add(self, tag):
        self.q.append(tag)

    def wait(self, tags, counts=None):
        idx = max([i for i, t in enumerate(self.q) if t in tags], default=-1)
        for t in tags:
            assert t in self.q, (t, self.q)
            if counts:
                assert self.q.count(t) == counts(t), (t, self.q)
        n = len(self.q) - 1 - idx
        assert n <= 63
        return n

    def copy(self):
        v = VM(); v.q = list(self.q); return v


vFLA, vPOL, vFQO, vF1, vNON = 7, 9, 11, 12, 13
vDW = 31


def flag1(a, soff):
    return f"buffer_store_dword v{vNON}, v{vF1}, {sr4(S_WS)}, s{soff} offen{SC}"


AQ, AO, AS, AKV, AP, ATMP = 16, 48, [112, 128], 144, 208, 224
avG, avM, avONE = 14, 15, 216
sME, sMO = 24, 26
sKB, sVB, sTI, sKS, sVS, sIT = 45, 46, 47, 48, 52, 49


def kv_adv():
    return [f"s_mul_i32 s{sKS}, s{sTI}, {TQ}", f"s_add_u32 s{sKS}, s{sKS}, s{sKB}",
            f"s_lshl_b32 s{sVS}, s{sTI}, 11", f"s_add_u32 s{sVS}, s{sVS}, s{sVB}",
            f"s_add_u32 s{sTI}, s{sTI}, 1", f"s_and_b32 s{sTI}, s{sTI}, 15"]


def kv_load(buf, part):
    so = sKS if part < 2 else sVS
    return f"buffer_load_dwordx4 {vr(AKV+16*buf+4*part, 4)}, v{vL16}, {sr4(S_WS)}, s{so} offen offset:{1024*(part%2)}{SC}"


def att_loads(a):
    vm = VM()
    a(f"""
    s_lshl_b32 s{sT1}, s{sP0}, 9
    s_mul_i32 s{sT2}, s{sQB}, {4 * TQ}
    s_add_u32 s{sT2}, s{sT2}, s{sT1}
    s_add_u32 s{sT0}, s{sT2}, {KF}
    buffer_load_dwordx4 {vr(ATMP, 4)}, v{vL16}, {sr4(S_WS)}, s{sT0} offen{SC}
    buffer_load_dwordx4 {vr(ATMP+4, 4)}, v{vL16}, {sr4(S_WS)}, s{sT0} offen offset:1024{SC}
    """)
    vm.add(("m",)); vm.add(("m",))
    for i in range(4):
        a(f"""
        s_add_u32 s{sT0}, s{sKQ}, {i}
        s_and_b32 s{sT0}, s{sT0}, 3
        s_mul_i32 s{sT0}, s{sT0}, {TQ}
        s_add_u32 s{sT0}, s{sT0}, s{sT2}
        buffer_load_dwordx4 {vr(AQ+8*i, 4)}, v{vL16}, {sr4(S_WS)}, s{sT0} offen{SC}
        buffer_load_dwordx4 {vr(AQ+8*i+4, 4)}, v{vL16}, {sr4(S_WS)}, s{sT0} offen offset:1024{SC}
        """)
        vm.add(("q", i)); vm.add(("q", i))
    a(f"""
    s_mul_i32 s{sKB}, s{sKQ}, {16 * TQ}
    s_add_u32 s{sKB}, s{sKB}, s{sT1}
    s_add_u32 s{sKB}, s{sKB}, {KF}
    s_lshl_b32 s{sVB}, s{sHEAD}, 17
    s_lshl_b32 s{sT0}, s{sKQ}, 15
    s_add_u32 s{sVB}, s{sVB}, s{sT0}
    s_add_u32 s{sVB}, s{sVB}, {VF}
    s_mov_b32 s{sTI}, s{sQB}
    """)
    for t in range(3):
        for x in kv_adv():
            a(x)
        for p in range(4):
            a(kv_load(t, p)); vm.add(("kv", t, p))
    a(f"""
    v_and_b32 v{vT0}, 31, v{vLane}
    v_lshlrev_b32 v{vT0}, 2, v{vT0}
    s_lshl_b32 s{sT0}, s{sQB}, 2
    s_add_u32 s{sT0}, s{sT0}, s{sKQ}
    s_lshl_b32 s{sT0}, s{sT0}, 7
    s_add_u32 s{sT0}, s{sT0}, {GF}
    buffer_load_dword v{avG}, v{vT0}, {sr4(S_WS)}, s{sT0} offen{SC}
    """)
    vm.add(("g",))
    return vm


def wk_off(i):
    return 8 * (i % 14) + 4 * (i // 14)


def gen():
    a = Asm()
    vDX0, vDX1, vDB0, vDG, vDU = 7, 8, 9, 10, 11
    vAX = 14
    vAW = 18
    vST = 22
    vN, vR4, vC, vRow = 26, 27, 28, 29
    X, ACC, WF = 32, 144, 224

    stamp(a, "start")
    a(f"""
    s_cmp_ge_u32 s2, 256
    s_cbranch_scc1 k_end
    s_load_dwordx16 s[64:79], s[0:1], 0
    s_load_dwordx4 s[80:83], s[0:1], 64
    s_load_dwordx2 s[84:85], s[0:1], 80
    v_and_b32 v{vLane}, 63, v0
    v_lshrrev_b32 v{vT0}, 6, v0
    s_and_b32 s{sC8}, s2, 7
    s_lshr_b32 s{sI32}, s2, 3
    v_readfirstlane_b32 s{sW}, v{vT0}
    s_and_b32 s{sMI}, s{sC8}, 1
    s_lshl_b32 s{sMI}, s{sMI}, 3
    s_and_b32 s{sT2}, s{sI32}, 7
    s_add_u32 s{sMI}, s{sMI}, s{sT2}
    s_lshr_b32 s{sJ}, s{sC8}, 1
    s_lshl_b32 s{sJ}, s{sJ}, 2
    s_lshr_b32 s{sT1}, s{sI32}, 3
    s_add_u32 s{sJ}, s{sJ}, s{sT1}
    v_lshrrev_b32 v{vT0}, 3, v{vLane}
    v_lshrrev_b32 v{vT1}, 4, v{vLane}
    v_and_b32 v{vT2}, 7, v{vLane}
    v_xor_b32 v{vT3}, v{vT2}, v{vT1}
    s_lshl_b32 s{sT0}, s{sMI}, 7
    s_lshl_b32 s{sT1}, s{sW}, 4
    s_add_u32 s{sT0}, s{sT0}, s{sT1}
    v_add_u32 v{vDX0}, s{sT0}, v{vT0}
    v_mul_u32_u24 v{vDX0}, 896, v{vDX0}
    v_lshl_add_u32 v{vDX0}, v{vT3}, 4, v{vDX0}
    v_xor_b32 v{vDX1}, 64, v{vDX0}
    v_add_u32 v{vDX1}, 7168, v{vDX1}
    v_and_b32 v{vT3}, 1, v{vT1}
    v_lshlrev_b32 v{vT3}, 2, v{vT3}
    v_xor_b32 v{vT3}, v{vT3}, v{vT2}
    v_lshlrev_b32 v{vT3}, 4, v{vT3}
    v_mul_u32_u24 v{vDW}, 896, v{vT0}
    v_add_u32 v{vDW}, v{vDW}, v{vT3}
    s_lshl_b32 s{sT0}, s{sW}, 3
    v_add_u32 v{vT0}, s{sT0}, v{vT0}
    v_mul_u32_u24 v{vDB0}, 2688, v{vT0}
    v_add_u32 v{vDB0}, v{vDB0}, v{vT3}
    s_lshl_b32 s{sMX}, s{sW}, 11
    s_lshl_b32 s{sMB}, s{sW}, 10
    s_add_u32 s{sMB}, s{sMB}, 16384
    v_lshlrev_b32 v{vL16}, 4, v{vLane}
    s_mov_b32 s{S_X+2}, {2048 * 448 * 2}
    s_mov_b32 s{S_X+3}, 0x00020000
    s_mov_b32 s{S_B0+2}, {448 * 1344 * 2}
    s_mov_b32 s{S_B0+3}, 0x00020000
    s_mov_b32 s{S_G+3}, 0x00020000
    s_mov_b32 s{S_U+3}, 0x00020000
    s_cmp_ge_u32 s{sJ}, 14
    s_cbranch_scc1 k1_v
    """)

    vm = None

    def emit_group(g):
        for l in g[0]:
            a(l)
        vm.add(g[1])

    def dma(m0base, m0off, vaddr, srdb, soff):
        return [f"s_add_u32 m0, s{m0base}, {m0off & 0xffffffff}", f"s_mov_b32 s{sSO}, {soff}",
                f"buffer_load_dwordx4 v{vaddr}, {sr4(srdb)}, s{sSO} offen lds"]

    def common_setup2(tg):
        srd(a, S_WS, P_WS, WS_BYTES)
        srd(a, S_DBG, P_DBG, 256)
        srd(a, S_WD, P_WD, 1792 * 448 * 2)
        a(f"""
        s_or_b32 s{sT0}, s2, s{sW}
        s_cmp_lg_u32 s{sT0}, 0
        s_cbranch_scc1 k_nononce_{tg}
        s_memrealtime s[{sSC}:{sSC+1}]
        v_mov_b32 v{vT1}, 0
        s_waitcnt lgkmcnt(0)
        s_or_b32 s{sT0}, s{sSC}, 0x80000000
        v_mov_b32 v{vT0}, s{sT0}
        s_mov_b64 exec, 1
        buffer_store_dword v{vT0}, v{vT1}, {sr4(S_DBG)}, 0 offen{SC}
        s_mov_b64 exec, -1
        """)
        a.label(f"k_nononce_{tg}")
        if "nopf" not in OPT:
            PF = ACC + 60
            a(f"""
            s_lshl_b32 s{sT0}, s2, 3
            s_add_u32 s{sT0}, s{sT0}, s{sW}
            s_lshl_b32 s{sT0}, s{sT0}, 10
            s_mov_b32 s{S_TMP+3}, 0x00020000
            buffer_load_dwordx4 {vr(PF, 4)}, v{vL16}, {sr4(S_X)}, s{sT0} offen
            s_mov_b32 s{S_TMP}, s{P_WG}
            s_mov_b32 s{S_TMP+1}, s{P_WG+1}
            s_mov_b32 s{S_TMP+2}, {448 * 1792 * 2}
            buffer_load_dwordx4 {vr(PF+4, 4)}, v{vL16}, {sr4(S_TMP)}, s{sT0} offen
            s_mov_b32 s{S_TMP}, s{P_WU}
            s_mov_b32 s{S_TMP+1}, s{P_WU+1}
            buffer_load_dwordx4 {vr(PF+8, 4)}, v{vL16}, {sr4(S_TMP)}, s{sT0} offen
            buffer_load_dwordx4 {vr(PF+12, 4)}, v{vL16}, {sr4(S_B0)}, s{sT0} offen
            buffer_load_dwordx4 {vr(PF+16, 4)}, v{vL16}, {sr4(S_WD)}, s{sT0} offen
            s_mov_b32 s{S_TMP}, s{P_WO}
            s_mov_b32 s{S_TMP+1}, s{P_WO+1}
            s_mov_b32 s{S_TMP+2}, {448 * 448 * 2}
            s_sub_u32 s{sT0}, s{sT0}, {1600 * 1024}
            s_min_u32 s{sT0}, s{sT0}, {OOB}
            buffer_load_dwordx4 {vr(PF+16, 4)}, v{vL16}, {sr4(S_TMP)}, s{sT0} offen
            """)
            for _ in range(6):
                vm.add(("PF",))
        if "nocp" not in OPT:
            a(f"""
            s_cmp_ge_u32 s{sI32}, 5
            s_cbranch_scc1 k_nocp_{tg}
            s_lshl_b32 s{sT0}, s{sI32}, 3
            s_add_u32 s{sT0}, s{sT0}, s{sW}
            s_lshl_b32 s{sT0}, s{sT0}, 10
            v_add_u32 v{vT0}, s{sT0}, v{vL16}
            v_min_u32 v{vT0}, k_end-{KNAME}-12, v{vT0}
            s_getpc_b64 s[{sSC}:{sSC+1}]
            """)
            a.label(f"k_pc_{tg}")
            a(f"""
            s_sub_u32 s{sSC}, s{sSC}, k_pc_{tg}-{KNAME}
            s_subb_u32 s{sSC+1}, s{sSC+1}, 0
            global_load_dwordx4 {vr(ACC+76, 4)}, v{vT0}, s[{sSC}:{sSC+1}]
            """)
            a.label(f"k_nocp_{tg}")
        a(f"""
        s_and_b32 s{sR}, s{sW}, 3
        s_lshr_b32 s{sGRP}, s{sW}, 2
        s_lshl_b32 s{sTILE}, s{sMI}, 2
        s_add_u32 s{sTILE}, s{sTILE}, s{sR}
        v_and_b32 v{vT0}, 31, v{vLane}
        v_lshrrev_b32 v{vT1}, 5, v{vLane}
        v_bfe_u32 v{vT2}, v{vLane}, 1, 3
        v_xor_b32 v{vT2}, v{vT2}, v{vT1}
        s_lshl_b32 s{sT0}, s{sR}, 12
        v_lshlrev_b32 v{vT3}, 7, v{vT0}
        v_lshl_add_u32 v{vT3}, v{vT2}, 4, v{vT3}
        v_add_u32 v{vAX}, s{sT0}, v{vT3}
        v_xor_b32 v{vAX+1}, 32, v{vAX}
        v_xor_b32 v{vAX+2}, 64, v{vAX}
        v_xor_b32 v{vAX+3}, 96, v{vAX}
        v_bfe_u32 v{vN}, v{vLane}, 4, 1
        v_bfe_u32 v{vR4}, v{vLane}, 2, 2
        v_and_b32 v{vC}, 3, v{vLane}
        v_lshl_add_u32 v{vRow}, v{vT1}, 3, v{vR4}
        v_and_b32 v{vT2}, 2, v{vR4}
        v_xor_b32 v{vT2}, v{vT2}, v{vN}
        s_lshl_b32 s{sT0}, s{sGRP}, 1
        v_xor_b32 v{vT2}, s{sT0}, v{vT2}
        v_lshlrev_b32 v{vT3}, 7, v{vRow}
        v_lshl_add_u32 v{vT3}, v{vT2}, 5, v{vT3}
        v_lshl_add_u32 v{vT3}, v{vC}, 3, v{vT3}
        v_add_u32 v{vAW}, 16384, v{vT3}
        s_mov_b32 s{sNL2E}, {f32bits(-LOG2E):#x}
        """)

    def flag_addr(vtype, vfla, vfqo):
        t0, t1, t2, t3 = vN, vR4, vC, vRow
        o = L(f"""
        s_lshl_b32 s{sHEAD}, s{sC8}, 1
        s_and_b32 s{sT2}, s{sI32}, 1
        s_add_u32 s{sHEAD}, s{sHEAD}, s{sT2}
        s_lshr_b32 s{sQB}, s{sI32}, 1
        s_lshl_b32 s{sMT}, s{sC8}, 2
        s_and_b32 s{sT2}, s{sI32}, 3
        s_add_u32 s{sMT}, s{sMT}, s{sT2}
        s_lshr_b32 s{sNT}, s{sI32}, 2
        s_mul_i32 s{sP0}, s{sHEAD}, 7
        s_lshr_b32 s{sP0}, s{sP0}, 1
        s_lshl_b32 s{sFQB}, s{sHEAD}, 9
        s_add_u32 s{sFQB}, s{sFQB}, {FQ}
        s_lshl_b32 s{sT1}, s{sQB}, 2
        s_add_u32 s{sT1}, s{sT1}, 256
        v_lshlrev_b32 v{vfla}, 2, v{vLane}
        v_and_b32 v{t0}, 1, v{vLane}
        v_lshl_add_u32 v{vfla+1}, v{t0}, 6, s{sT1}
        v_and_b32 v{t0}, 15, v{vLane}
        v_lshrrev_b32 v{t1}, 4, v{vLane}
        v_lshlrev_b32 v{t3}, 9, v{t0}
        v_lshl_add_u32 v{t3}, v{t1}, 6, v{t3}
        s_lshl_b32 s{sT1}, s{sMI}, 2
        """)
        if not vtype:
            o += L(f"""
            s_add_u32 s{sT2}, s{sJ}, 1
            s_lshr_b32 s{sT2}, s{sT2}, 3
            v_mul_u32_u24 v{t2}, 7, v{t0}
            v_lshrrev_b32 v{t2}, 1, v{t2}
            v_mad_u32_u24 v{t2}, v{t1}, 3, v{t2}
            v_lshrrev_b32 v{t2}, 3, v{t2}
            v_lshrrev_b32 v{t1}, 1, v{t1}
            v_lshl_add_u32 v{t2}, v{t1}, 6, v{t2}
            v_mad_u32_u24 v{t2}, s{sT2}, 7, v{t2}
            v_cmp_eq_u32 vcc, s{sJ}, v{t2}
            s_lshl_b32 s{sT2}, s{sT2}, 8
            s_sub_u32 s{sT1}, s{sT1}, s{sT2}
            s_add_u32 s{sT1}, s{sT1}, 256
            """)
        else:
            o += L(f"""
            v_add_u32 v{t2}, 14, v{t1}
            v_cmp_eq_u32 vcc, s{sJ}, v{t2}
            s_add_u32 s{sT1}, s{sT1}, 128
            """)
        o += L(f"""
        v_add_u32 v{t3}, s{sT1}, v{t3}
        v_mov_b32 v{t0}, {OOB}
        v_cndmask_b32 v{vfqo}, v{t0}, v{t3}, vcc
        v_cmp_eq_u32 vcc, 0, v{vLane}
        s_lshr_b32 s{sFHO}, s{sTILE}, 1
        s_lshl_b32 s{sFHO}, s{sFHO}, 6
        v_cndmask_b32 v{vF1}, v{t0}, v{vLane}, vcc
        s_lshl_b32 s{sT1}, s{sJ}, 2
        s_add_u32 s{sFHO}, s{sFHO}, s{sT1}
        s_and_b32 s{sT1}, s{sR}, 1
        s_lshl_b32 s{sT1}, s{sT1}, 1
        s_add_u32 s{sFHO}, s{sFHO}, s{sT1}
        s_add_u32 s{sFHO}, s{sFHO}, s{sGRP}
        s_lshl_b32 s{sFHO}, s{sFHO}, 2
        s_add_u32 s{sFHO}, s{sFHO}, {FH}
        s_lshl_b32 s{sM0}, s{sNT}, 7
        s_mul_i32 s{sWB}, s{sR}, {16 * 896}
        s_add_u32 s{sWB}, s{sWB}, s{sM0}
        s_lshl_b32 s{sM0}, s{sR}, 11
        """)
        return o

    def nonce_get(tag):
        a(f"""
        v_readfirstlane_b32 s{sNONCE}, v{vNON}
        v_lshlrev_b32 v{vT0}, 2, v{vLane}
        v_add_u32 v{vT0}, {CNT}, v{vT0}
        v_mov_b32 v{vT1}, 0
        s_cmp_lg_u32 s{sNONCE}, 0
        s_cbranch_scc1 k1_nonce_ok_{tag}
        """)
        a.label(f"k1_nonce_spin_{tag}")
        a(f"""
        buffer_load_dword v{vNON}, v{vT1}, {sr4(S_DBG)}, 0 offen{SC}
        s_waitcnt vmcnt(0)
        v_readfirstlane_b32 s{sNONCE}, v{vNON}
        s_sleep 4
        s_cmp_eq_u32 s{sNONCE}, 0
        s_cbranch_scc1 k1_nonce_spin_{tag}
        """)
        a.label(f"k1_nonce_ok_{tag}")
        a(f"ds_write_b32 v{vT0}, v{vT1}")

    nonce_ld = ([f"v_mov_b32 v{vNON}, 0", f"buffer_load_dword v{vNON}, v{vNON}, {sr4(S_DBG)}, 0 offen{SC}"], ("N",))

    def wpref(i):
        ra = ring_addr(i % 13)
        return [f"s_add_u32 m0, s{sM0}, {ra}", f"s_add_u32 s{sT0}, s{sWB}, {wk_off(i) * 16 * 896}",
                f"buffer_load_dwordx4 v{vDW}, {sr4(S_WD)}, s{sT0} offen lds",
                f"s_add_u32 m0, s{sM0}, {ra + 1024}", f"s_add_u32 s{sT0}, s{sT0}, {8 * 896}",
                f"buffer_load_dwordx4 v{vDW}, {sr4(S_WD)}, s{sT0} offen lds"]

    abase = [0]

    def set_base(nb, regs):
        out = []
        if nb != abase[0]:
            d = nb - abase[0]
            for r in regs:
                out.append(f"v_add_u32 v{r}, {d}, v{r}" if d > 0 else f"v_subrev_u32 v{r}, {-d}, v{r}")
            abase[0] = nb
        return out

    def emit(x):
        if isinstance(x, tuple):
            a(x[1]); vm.add((x[0],))
        else:
            a(x)

    vm = VM()
    cnts = lambda t: {"A": 5, "B": 2}[t[0]] if t[0] in ("A", "B") else vm.q.count(t)
    a(f"""
    s_lshl_b32 s{sT0}, s{sJ}, 7
    v_add_u32 v{vDB0}, s{sT0}, v{vDB0}
    v_mul_u32_u24 v{vDG}, 3584, v{vT0}
    s_lshl_b32 s{sT0}, s{sJ}, 8
    v_add3_u32 v{vDG}, v{vDG}, v{vT3}, s{sT0}
    v_xor_b32 v{vDU}, 32, v{vDG}
    s_mov_b32 s{S_G+2}, {448 * 1792 * 2}
    s_mov_b32 s{S_U+2}, {448 * 1792 * 2}
    s_waitcnt lgkmcnt(0)
    s_mov_b64 s[{S_X}:{S_X+1}], s[{P_X}:{P_X+1}]
    s_mov_b64 s[{S_B0}:{S_B0+1}], s[{P_WQKV}:{P_WQKV+1}]
    s_mov_b64 s[{S_G}:{S_G+1}], s[{P_WG}:{P_WG+1}]
    s_mov_b64 s[{S_U}:{S_U+1}], s[{P_WU}:{P_WU+1}]
    """)

    def fA(st):
        b = (st % 4) * SLOT
        g = [dma(sMX, b, vDX0, S_X, st * 128), dma(sMX, b + 1024, vDX1, S_X, st * 128),
             dma(sMB, b, vDB0, S_B0, st * 64 * 2688), dma(sMB, b + 8192, vDG, S_G, st * 64 * 3584),
             dma(sMB, b + 16384, vDU, S_U, st * 64 * 3584)]
        return [(x, ("A", st)) for x in g]

    def bslot(sb):
        return ((3 + sb // 2) % 4) * SLOT + (sb % 2) * 16384

    def fB(sb):
        b = bslot(sb) - 16384
        g = [dma(sMB, b, vDG, S_G, sb * 64 * 3584 + 128), dma(sMB, b + 8192, vDU, S_U, sb * 64 * 3584 + 128)]
        return [(x, ("B", sb)) for x in g]

    for g in fA(0):
        emit_group(g)
    a("s_barrier")
    for g in fA(1):
        emit_group(g)
    common_setup2("f")
    a(f"""
    v_lshl_add_u32 v{vAW+1}, v{vN}, 13, v{vT3}
    v_add_u32 v{vAW+1}, {16384 + 8192}, v{vAW+1}
    v_xor_b32 v{vAW+2}, 32, v{vAW+1}
    s_cmp_ge_u32 s{sJ}, 7
    s_cselect_b32 s{sT1}, {KF - 7 * 4096}, {QF}
    s_cselect_b32 s{sSC}, 1.0, {f32bits(28 ** -0.5 * LOG2E):#x}
    s_lshl_b32 s{sT2}, s{sJ}, 12
    s_add_u32 s{sT1}, s{sT1}, s{sT2}
    s_lshl_b32 s{sT2}, s{sGRP}, 11
    s_add_u32 s{sT1}, s{sT1}, s{sT2}
    s_mul_i32 s{sQKO}, s{sTILE}, {TQ}
    s_add_u32 s{sQKO}, s{sQKO}, s{sT1}
    s_mul_i32 s{sHOFF}, s{sTILE}, 112
    s_lshl_b32 s{sT1}, s{sJ}, 3
    s_add_u32 s{sHOFF}, s{sHOFF}, s{sT1}
    s_lshl_b32 s{sT1}, s{sGRP}, 1
    s_add_u32 s{sHOFF}, s{sHOFF}, s{sT1}
    s_lshl_b32 s{sHOFF}, s{sHOFF}, 10
    s_add_u32 s{sHOFF}, s{sHOFF}, {HF}
    s_add_u32 s{sHOFF2}, s{sHOFF}, 4096
    """)
    WA = [WF, WF + 12, ACC + 48]
    NB = 4
    WB = [WF + 24, WF + 16, WF + 8, WF]

    def readsA(ks):
        st, s = ks // 4, ks % 4
        slot = st % 4
        out = set_base((slot // 2) * 2 * SLOT, [vAX, vAX+1, vAX+2, vAX+3, vAW, vAW+1, vAW+2])
        off = (slot % 2) * SLOT
        f = WA[ks % 3]
        out.append(f"ds_read_b128 {vr(X+4*ks, 4)}, v{vAX+s} offset:{off}")
        for t in range(3):
            for q in range(2):
                out.append(f"ds_read_b64_tr_b16 {vr(f+4*t+2*q, 2)}, v{vAW+t} offset:{off + (16*s + 4*q) * 128}")
        return out

    def readsB(ks):
        sb, s = ks // 4, ks % 4
        b = bslot(sb)
        f = WB[ks % NB]
        b32 = b - b % 32768
        off = b - b32
        out = set_base(b32 - 24576, [vAW+1, vAW+2])
        for t in range(2):
            for q in range(2):
                out.append(f"ds_read_b64_tr_b16 {vr(f+4*t+2*q, 2)}, v{vAW+1+t} offset:{off + (16*s + 4*q) * 128}")
        return out

    def epi_ffn(acc, ko):
        g, u = acc, acc + 8
        o = []
        for i in range(8):
            o.append(f"v_mul_f32 v{u+i}, v{g+i}, v{u+i}")
            o.append(f"v_mul_f32 v{g+i}, s{sNL2E}, v{g+i}")
        for i in range(8):
            o.append(f"v_exp_f32 v{g+i}, v{g+i}")
        for i in range(8):
            o.append(f"v_add_f32 v{g+i}, 1.0, v{g+i}")
        for i in range(8):
            o.append(f"v_rcp_f32 v{g+i}, v{g+i}")
        for i in range(8):
            o.append(f"v_mul_f32 v{u+i}, v{u+i}, v{g+i}")
        for i in range(4):
            o.append(f"v_cvt_pk_bf16_f32 v{g+i}, v{u+2*i}, v{u+2*i+1}")
        so, off = (sHOFF, ko) if ko < 4 else (sHOFF2, ko - 4)
        o.append(("H", f"buffer_store_dwordx4 {vr(g, 4)}, v{vL16}, {sr4(S_WS)}, s{so} offen offset:{1024*off}{SC}"))
        return o

    def epi_qk():
        o = []
        for i in range(8):
            o.append(f"v_mul_f32 v{ACC+2*i}, s{sSC}, v{ACC+2*i}")
            o.append(f"v_mul_f32 v{ACC+2*i+1}, s{sSC}, v{ACC+2*i+1}")
            o.append(f"v_cvt_pk_bf16_f32 v{ACC+i}, v{ACC+2*i}, v{ACC+2*i+1}")
        o.append("s_nop 1")
        for hh in range(2):
            b = ACC + 4 * hh
            o.append(f"v_permlane32_swap_b32 v{b}, v{b+2}")
            o.append(f"v_permlane32_swap_b32 v{b+1}, v{b+3}")
            o.append(("QK", f"buffer_store_dwordx4 {vr(b, 4)}, v{vL16}, {sr4(S_WS)}, s{sQKO} offen offset:{1024*hh}{SC}"))
        return o

    abase[0] = 0
    a(f"s_waitcnt vmcnt({vm.wait({('A', 0)}, cnts)})\ns_barrier")
    stamp(a, "p1_first")
    for ks in range(2):
        for r in readsA(ks):
            a(r)
    pend = fA(2) + fA(3)
    vFQf = vST
    fillA = flag_addr(False, vFLA, vFQf)
    for ks in range(28):
        st, s = ks // 4, ks % 4
        f = WA[ks % 3]
        m = [f"{MFMA} {vr(ACC+16*t, 16)}, {vr(f+4*t, 4)}, {vr(X+4*ks, 4)}, {'0' if ks == 0 else vr(ACC+16*t, 16)}" for t in range(3)]
        if s == 2:
            need = {("A", st + 1)} if st < 6 else {("B", 0), ("B", 1)}
            a(f"s_waitcnt vmcnt({vm.wait(need, cnts)}) lgkmcnt(0)\ns_barrier")
            stamp(a, f"p1_a{st}")
            if st + 4 <= 6:
                pend += fA(st + 4)
            else:
                i0 = 2 * (st - 3)
                pend += fB(i0) + (fB(i0 + 1) if i0 + 1 < 7 else [])
            if st == 2:
                pend.append(nonce_ld)
        elif ks < 27:
            a("s_waitcnt lgkmcnt(7)")
        else:
            a("s_waitcnt lgkmcnt(4)")
        r = readsA(ks + 2) if ks + 2 < 28 else readsB(ks + 2 - 28)
        k = len(r) - 4 if ks + 2 < 28 else len(r) - 2
        a(m[0])
        for x in r[:k]:
            a(x)
        a(m[1])
        for x in r[k:]:
            a(x)
        a(m[2])
        if ks >= 16:
            assert vm.q.count(("A", 6)) == 5
            for _ in range(5):
                if fillA: a(fillA.pop(0))
        nd = 2 if (len(pend) > 4 or st < 1) else 1
        for _ in range(nd):
            if pend:
                emit_group(pend.pop(0))
    assert not fillA
    stamp(a, "p1_aend")
    for x in readsB(2):
        a(x)
    fill = ["s_nop 3"] + epi_qk() + epi_ffn(ACC + 16, 0) + epi_ffn(ACC + 32, 1)
    per = 5
    wpi = 0
    for ks in range(28):
        f = WB[ks % NB]
        m = [f"{MFMA} {vr(ACC+48+16*t, 16)}, {vr(f+4*t, 4)}, {vr(X+4*ks, 4)}, {'0' if ks == 0 else vr(ACC+48+16*t, 16)}" for t in range(2)]
        nxt = ks + NB - 1
        if nxt < 28 and nxt % 4 == 0 and nxt // 4 in (2, 3, 5):
            g = nxt // 4
            need = {2: {("B", 2)}, 3: {("B", 3), ("B", 4), ("N",), ("QK",)}, 5: {("B", 5), ("B", 6)}}[g]
            if g == 3: assert vm.q.count(("QK",)) == 2
            a(f"s_waitcnt vmcnt({vm.wait(need, cnts)})")
            if g == 3:
                nonce_get("f")
            a("s_barrier")
            stamp(a, f"p1_b{g}")
            if g == 3:
                a(f"""
                s_cmp_lg_u32 s{sW}, 7
                s_cbranch_scc1 k1_noflag_f
                s_mov_b32 s{sT0}, {FQ}
                buffer_store_dword v{vNON}, v{vFQf}, {sr4(S_WS)}, s{sT0} offen{SC}
                """)
                a.label("k1_noflag_f")
            if g == 5:
                a(f"""
                s_cmp_lt_u32 s{sI32}, 28
                s_cselect_b32 s{sOK}, s{sGRP}, 0
                """)
        a(f"s_waitcnt lgkmcnt({min(NB - 2, 27 - ks) * 4})")
        r = readsB(nxt) if nxt < 28 else []
        a(m[0])
        for x in r[:len(r) - 2]:
            a(x)
        if pend:
            emit_group(pend.pop(0))
        for _ in range(per):
            if fill and ks >= 1: emit(fill.pop(0))
        a(m[1])
        for x in r[len(r) - 2:]:
            a(x)
        for _ in range(per):
            if fill and ks >= 1: emit(fill.pop(0))
        if ks == EARLY_A:
            assert not fill and vm.q.count(("H",)) == 2
            a(f"s_waitcnt vmcnt({vm.wait({('H',)})})")
            a(flag1(a, sFHO))
        if ks > EARLY_A and ks >= 17 and wpi < 9:
            a(f"s_cmp_eq_u32 s{sOK}, 0\ns_cbranch_scc1 k1_nowp{ks}")
            nw = 2 if 27 - ks < 9 - wpi else 1
            for _ in range(nw):
                if wpi < 9:
                    for x in wpref(wpi):
                        a(x)
                    wpi += 1
            a.label(f"k1_nowp{ks}")
        if ks == EARLY_P:
            a(f"""
            s_cmp_lg_u32 s{sW}, 0
            s_cbranch_scc1 k1_nopoll
            buffer_load_dword v{vPOL}, v{vFLA}, {sr4(S_WS)}, s{sFQB} offen{SC}
            buffer_load_dword v{vPOL+1}, v{vFLA+1}, {sr4(S_WS)}, s{sFQB} offen{SC}
            """)
            a.label("k1_nopoll")
    assert not fill and not pend and wpi == 9
    a(f"""
    s_cmp_lg_u32 s{sW}, 0
    s_cbranch_scc1 k1_nochk
    s_waitcnt vmcnt(0)
    """)
    poll_cmp(a, 2, vPOL)
    a(f"""
    s_cmp_eq_u64 vcc, 0
    s_cselect_b32 s{sT0}, 1, 0
    """)
    lds_set(a, 4, f"s{sT0}", vT0)
    a("s_waitcnt lgkmcnt(0)")
    a.label("k1_nochk")
    a(f"""
    s_barrier
    s_add_u32 s{sFHO}, s{sFHO}, {32 * 256}
    s_mov_b32 s{sOK}, 0
    s_cmp_ge_u32 s{sW}, 4
    s_cbranch_scc1 k1_epi
    v_mov_b32 v{vT0}, {CNT + 4}
    ds_read_b32 v{vT1}, v{vT0}
    s_waitcnt lgkmcnt(0)
    v_readfirstlane_b32 s{sOK}, v{vT1}
    s_cmp_eq_u32 s{sOK}, 0
    s_cbranch_scc1 k1_epi
    """)
    stamp(a, "x_go")
    att_loads(a)
    a.label("k1_epi")
    a("s_nop 7")
    stamp(a, "p1_bend")
    for x in epi_ffn(ACC + 48, 4) + epi_ffn(ACC + 64, 5):
        emit(x)
    stamp(a, "p1_end")
    a(f"""
    s_cmp_ge_u32 s{sW}, 4
    s_cbranch_scc1 gemm_role
    s_cmp_eq_u32 s{sOK}, 1
    s_cbranch_scc1 att_main
    s_branch att_spin
    """)

    a.label("k1_v")
    VS = 49152
    a(f"""
    s_cmp_eq_u32 s{sJ}, 14
    s_cselect_b32 s{sT0}, 0, 512
    s_add_u32 s{sT0}, s{sT0}, {896 * 2}
    v_add_u32 v{vDB0}, s{sT0}, v{vDB0}
    v_lshlrev_b32 v{vDU}, 4, v{vT2}
    s_mov_b32 s{S_U+2}, {448 * 2}
    s_waitcnt lgkmcnt(0)
    s_mov_b64 s[{S_X}:{S_X+1}], s[{P_X}:{P_X+1}]
    s_mov_b64 s[{S_B0}:{S_B0+1}], s[{P_WQKV}:{P_WQKV+1}]
    s_mov_b64 s[{S_U}:{S_U+1}], s[{P_GW}:{P_GW+1}]
    s_cmp_eq_u32 s{sJ}, 15
    s_cbranch_scc1 k1_vz
    """)
    for z in range(2):
        tg = "vz" if z else "v4"
        if z:
            a.label("k1_vz")
        vm = VM()
        cntv = lambda t: 6 if t[0] == "A" else vm.q.count(t)

        def vA(st):
            b = (st % 3) * VS
            g = [dma(sMX, b, vDX0, S_X, st * 128), dma(sMX, b + 1024, vDX1, S_X, st * 128)]
            for bi in range(3):
                g.append(dma(sMB, b + 8192 * bi, vDB0, S_B0, st * 64 * 2688 + 128 * bi))
            if z:
                g.append(dma(sMB, b + 8192 * 3, vDU, S_U, st * 128))
            else:
                g.append(dma(sMB, b + 8192 * 3, vDB0, S_B0, st * 64 * 2688 + 384))
            return [(x, ("A", st)) for x in g]

        for g in vA(0):
            emit_group(g)
        a("s_barrier")
        for g in vA(1):
            emit_group(g)
        common_setup2(tg)
        a(f"""
        s_lshl_b32 s{sT2}, s{sGRP}, 5
        s_add_u32 s{sT1}, s{sT2}, {256 if z else 0}
        v_add_u32 v{vT2}, s{sT1}, v{vT0}
        s_lshl_b32 s{sT2}, s{sTILE}, 11
        s_add_u32 s{sT2}, s{sT2}, {VF}
        v_lshlrev_b32 v{vT3}, 9, v{vT1}
        v_add_u32 v{vT3}, s{sT2}, v{vT3}
        """)
        if z:
            a(f"""
            v_lshlrev_b32 v{vAW+1}, 4, v{vT1}
            s_add_u32 s{sT1}, s{sMB}, {3 * 8192}
            v_add_u32 v{vAW+1}, s{sT1}, v{vAW+1}
            """)
        for bi in range(3 if z else 4):
            t0, t1, t2 = vN, vR4, vC
            a(f"""
            v_add_u32 v{t0}, {64*bi}, v{vT2}
            v_mul_u32_u24 v{t1}, 2341, v{t0}
            v_lshrrev_b32 v{t1}, 16, v{t1}
            v_mul_u32_u24 v{t2}, 28, v{t1}
            v_sub_u32 v{t2}, v{t0}, v{t2}
            v_lshl_add_u32 v{t1}, v{t1}, 17, v{vT3}
            v_lshl_add_u32 v{vST+bi}, v{t2}, 4, v{t1}
            """)
        FB = [X, X + 20, X + 40]
        VACC = X + 64
        nrd = 8 if z else 9

        def readsV(ks):
            st, s = ks // 4, ks % 4
            out = set_base((st % 3) * VS, [vAX, vAX+1, vAX+2, vAX+3, vAW] + ([vAW+1] if z else []))
            f = FB[ks % 3]
            out.append(f"ds_read_b128 {vr(f, 4)}, v{vAX+s}")
            for t in range(3 if z else 4):
                for q in range(2):
                    out.append(f"ds_read_b64_tr_b16 {vr(f+4+4*t+2*q, 2)}, v{vAW} offset:{8192*t + (16*s + 4*q) * 128}")
            if z:
                out.append(f"ds_read_b128 {vr(f+16, 4)}, v{vAW+1} offset:{32*s}")
            return out

        abase[0] = 0
        a(f"s_waitcnt vmcnt({vm.wait({('A', 0)}, cntv)})\ns_barrier")
        stamp(a, "p1_first")
        for r in readsV(0):
            a(r)
        a("s_waitcnt lgkmcnt(4)")
        for r in readsV(1):
            a(r)
        pend = vA(2)
        fillA = flag_addr(True, vFLA, vDG)
        for ks in range(28):
            st, s = ks // 4, ks % 4
            f = FB[ks % 3]
            m = []
            for t in range(4):
                c = vr(VACC + 16*t, 16)
                w, x = vr(f + 4 + 4*t, 4), vr(f, 4)
                ops = f"{w}, {x}" if (z and t == 3) else f"{x}, {w}"
                m.append(f"{MFMA} {c}, {ops}, {'0' if ks == 0 else c}")
            if s == 2 and st < 6:
                need = {("A", st + 1)} | ({("N",)} if st == 5 else set())
                a(f"s_waitcnt vmcnt({vm.wait(need, cntv)}) lgkmcnt(0)")
                if st == 5:
                    nonce_get(tg)
                a("s_barrier")
                if st + 3 <= 6:
                    pend += vA(st + 3)
                if st == 2:
                    pend.append(nonce_ld)
            elif ks < 27:
                a(f"s_waitcnt lgkmcnt({nrd})")
            else:
                a("s_waitcnt lgkmcnt(0)")
            r = readsV(ks + 2) if ks + 2 < 28 else []
            k1_, k2_ = max(len(r) - 6, 0), max(len(r) - 3, 0)
            a(m[0])
            for x in r[:k1_]:
                a(x)
            a(m[1])
            if r: a("s_waitcnt lgkmcnt(9)")
            for x in r[k1_:k2_]:
                a(x)
            a(m[2])
            for x in r[k2_:]:
                a(x)
            if pend:
                emit_group(pend.pop(0))
            a(m[3])
            if pend:
                emit_group(pend.pop(0))
            if ks >= 19:
                assert vm.q.count(("A", 6)) == 6
                for _ in range(6):
                    if fillA: a(fillA.pop(0))
        assert not fillA and not pend
        stamp(a, "p1_aend")
        a("s_nop 7\ns_nop 3")
        for bi in range(3 if z else 4):
            acc = VACC + 16 * bi
            for i in range(8):
                a(f"v_cvt_pk_bf16_f32 v{acc+i}, v{acc+2*i}, v{acc+2*i+1}")
            a(f"buffer_store_dwordx4 {vr(acc, 4)}, v{vST+bi}, {sr4(S_WS)}, 0 offen{SC}")
            a(f"buffer_store_dwordx4 {vr(acc+4, 4)}, v{vST+bi}, {sr4(S_WS)}, 0 offen offset:1024{SC}")
        if z:
            t, Z = WF, VACC + 48
            a(f"""
            v_mul_f32 v{t}, s{sNL2E}, v{Z}
            v_exp_f32 v{t}, v{t}
            v_and_b32 v{t+1}, 31, v{vLane}
            v_add_f32 v{t}, 1.0, v{t}
            v_rcp_f32 v{t}, v{t}
            v_lshlrev_b32 v{t+1}, 2, v{t+1}
            s_lshl_b32 s{sT0}, s{sTILE}, 7
            s_add_u32 s{sT0}, s{sT0}, {GF}
            buffer_store_dword v{t}, v{t+1}, {sr4(S_WS)}, s{sT0} offen{SC}
            v_bfe_u32 v{t+2}, v{vLane}, 4, 1
            v_lshlrev_b32 v{t+2}, 17, v{t+2}
            v_and_b32 v{t+3}, 15, v{vLane}
            v_lshl_add_u32 v{t+2}, v{t+3}, 9, v{t+2}
            s_lshl_b32 s{sT0}, s{sW}, 18
            s_lshl_b32 s{sT1}, s{sMI}, 13
            s_add_u32 s{sT0}, s{sT0}, s{sT1}
            s_add_u32 s{sT0}, s{sT0}, {VF + 28 * 16}
            v_mov_b32 v{t+4}, 0x3f803f80
            v_mov_b32 v{t+5}, 0x3f803f80
            v_mov_b32 v{t+6}, 0x3f803f80
            v_mov_b32 v{t+7}, 0x3f803f80
            s_mov_b32 exec_hi, 0
            buffer_store_dwordx4 {vr(t+4, 4)}, v{t+2}, {sr4(S_WS)}, s{sT0} offen{SC}
            s_mov_b32 exec_hi, -1
            """)
        else:
            a("s_branch k1_v_fin")
    a.label("k1_v_fin")
    stamp(a, "p1_bend")
    a(f"""
    s_waitcnt vmcnt(0)
    s_barrier
    """)
    stamp(a, "p1_end")
    a(f"""
    s_cmp_lg_u32 s{sW}, 7
    s_cbranch_scc1 k1_noflag_v
    s_mov_b32 s{sT0}, {FQ}
    buffer_store_dword v{vNON}, v{vDG}, {sr4(S_WS)}, s{sT0} offen{SC}
    """)
    a.label("k1_noflag_v")
    a(flag1(a, sFHO))
    a(f"""
    s_add_u32 s{sFHO}, s{sFHO}, {32 * 256}
    s_cmp_lt_u32 s{sW}, 4
    s_cbranch_scc1 att_spin
    s_cmp_ge_u32 s{sI32}, 28
    s_cbranch_scc1 gemm_role
    """)
    for i in range(9):
        for x in wpref(i):
            a(x)
    a.label("gemm_role")
    gen_gemm(a, wpref)
    gen_attention(a)
    a.label("k_end")
    a("s_endpgm")
    return a.text()


vAWr = 16
RB = [0, 57344, 114688]


def wtr_setup(a):
    a(f"""
    v_bfe_u32 v{vT0}, v{vLane}, 4, 1
    v_bfe_u32 v{vT1}, v{vLane}, 2, 2
    v_and_b32 v{vT2}, 2, v{vT1}
    v_xor_b32 v{vT2}, v{vT2}, v{vT0}
    v_xor_b32 v{vT2}, s{sKQ}, v{vT2}
    v_lshrrev_b32 v{vT3}, 5, v{vLane}
    v_lshl_add_u32 v{vT3}, v{vT3}, 2, v{vT1}
    v_lshlrev_b32 v{vT3}, 7, v{vT3}
    v_lshl_add_u32 v{vT3}, v{vT2}, 5, v{vT3}
    v_and_b32 v{vT2}, 3, v{vLane}
    v_lshl_add_u32 v{vT3}, v{vT2}, 3, v{vT3}
    v_add_u32 v{vAWr}, s{sM0}, v{vT3}
    v_xor_b32 v{vAWr+1}, 64, v{vAWr}
    v_add_u32 v{vAWr+2}, {RB[1]}, v{vAWr}
    v_add_u32 v{vAWr+3}, {RB[1]}, v{vAWr+1}
    v_add_u32 v{vAWr+4}, {RB[2]}, v{vAWr}
    v_add_u32 v{vAWr+5}, {RB[2]}, v{vAWr+1}
    """)


def wtr_reads(slot, dst):
    ra = ring_addr(slot)
    bi = max(i for i in range(3) if RB[i] <= ra)
    out = []
    for T in range(2):
        for q in range(2):
            out.append(f"ds_read_b64_tr_b16 {vr(dst+4*T+2*q, 2)}, v{vAWr+2*bi+T} offset:{ra - RB[bi] + q*1024}")
    return out


def bcast_poll(a, tag, leader, addrs, soff, vtmp, sleep, ldsoff, pre=None, lsleep=2):
    a(f"s_cmp_lg_u32 s{sW}, {leader}\ns_cbranch_scc1 {tag}_lw")
    if pre:
        pre()
    poll(a, addrs, soff, vtmp, sleep)
    lds_set(a, ldsoff, 1, vT0)
    a(f"s_branch {tag}_go")
    a.label(f"{tag}_lw")
    lds_wait(a, ldsoff, vT0, "eq1", lsleep)
    a.label(f"{tag}_go")


def gen_gemm(a, wpref):
    ACC = 64
    ACT = 128
    WFB = [240, 248]
    vA1, vG0, vG1, vFl = 22, 23, 24, 25
    sA0, sB0w, sFH2 = 45, 46, 47
    DA = 14
    a("s_waitcnt vmcnt(0)")
    a(flag1(a, sFHO))
    a(f"""
    s_cmp_ge_u32 s{sI32}, 28
    s_cbranch_scc1 k_end
    """)
    stamp(a, "x_role")
    for i in range(9, 13):
        for x in wpref(i):
            a(x)
    wtr_setup(a)
    srd(a, S_WO, P_WO, 448 * 448 * 2)
    srd(a, S_OUT, P_OUT, 2048 * 448 * 2)
    a(f"""
    v_add_u32 v{vA1}, {112 * 1024}, v{vL16}
    v_lshlrev_b32 v{vFl}, 2, v{vLane}
    s_lshl_b32 s{sT1}, s{sMT}, 8
    s_add_u32 s{sT1}, s{sT1}, {FH}
    s_add_u32 s{sFH2}, s{sT1}, {32 * 256}
    s_mul_i32 s{sA0}, s{sMT}, 224
    s_add_u32 s{sA0}, s{sA0}, s{sKQ}
    s_lshl_b32 s{sA0}, s{sA0}, 10
    s_add_u32 s{sA0}, s{sA0}, {HF}
    s_mul_i32 s{sB0w}, s{sKQ}, {112 * 896}
    s_lshl_b32 s{sT0}, s{sNT}, 7
    s_add_u32 s{sB0w}, s{sB0w}, s{sT0}
    """)
    bcast_poll(a, "gA", 4, [vFl], sT1, vG0, SLEEP_H, 8)
    stamp(a, "x_go"); stamp(a, "x_loop")
    vm = VM()
    for i in range(9, 13):
        vm.add(("w", i)); vm.add(("w", i))

    def act_loads(i):
        r = ACT + 8 * (i % DA)
        a(f"""
        s_add_u32 s{sT0}, s{sA0}, {wk_off(i) * 1024}
        buffer_load_dwordx4 {vr(r, 4)}, v{vL16}, {sr4(S_WS)}, s{sT0} offen{SC}
        buffer_load_dwordx4 {vr(r+4, 4)}, v{vA1}, {sr4(S_WS)}, s{sT0} offen{SC}
        """)
        vm.add(("a", i)); vm.add(("a", i))

    def w_loads(i):
        if i < 28:
            for x in wpref(i):
                a(x)
        else:
            ra = ring_addr(i % 13)
            off = (28 * ((i - 28) // 2) + 16 * ((i - 28) % 2)) * 896
            a(f"""
            s_add_u32 m0, s{sM0}, {ra}
            s_add_u32 s{sT0}, s{sB0w}, {off}
            buffer_load_dwordx4 v{vDW}, {sr4(S_WO)}, s{sT0} offen lds
            s_add_u32 m0, s{sM0}, {ra + 1024}
            s_add_u32 s{sT0}, s{sT0}, {8 * 896}
            buffer_load_dwordx4 v{vDW}, {sr4(S_WO)}, s{sT0} offen lds
            """)
        vm.add(("w", i)); vm.add(("w", i))

    for i in range(DA):
        act_loads(i)
    a(f"""
    v_and_b32 v{vT0}, 31, v{vLane}
    v_lshlrev_b32 v{vT0}, 2, v{vT0}
    s_lshl_b32 s{sT1}, s{sMT}, 8
    s_add_u32 s{sT1}, s{sT1}, {GF}
    buffer_load_dword v{vG0}, v{vT0}, {sr4(S_WS)}, s{sT1} offen{SC}
    buffer_load_dword v{vG1}, v{vT0}, {sr4(S_WS)}, s{sT1} offen offset:128{SC}
    """)
    vm.add(("g",)); vm.add(("g",))
    for x in wtr_reads(0, WFB[0]):
        a(x)
    for i in range(28):
        need = {("a", i)}
        if 9 <= i + 1 < 28:
            need.add(("w", i + 1))
        a(f"s_waitcnt vmcnt({vm.wait(need)}) lgkmcnt(0)")
        if i + 1 < 28:
            for x in wtr_reads((i + 1) % 13, WFB[(i + 1) % 2]):
                a(x)
        for mt in range(2):
            for T in range(2):
                c = vr(ACC + 32 * mt + 16 * T, 16)
                a(f"{MFMA} {c}, {vr(WFB[i%2]+4*T, 4)}, {vr(ACT+8*(i%DA)+4*mt, 4)}, {'0' if i == 0 else c}")
        if i + 13 < 36:
            w_loads(i + 13)
        if i == GB_AT:
            stamp(a, "g_b0")
            bcast_poll(a, "gB", 4, [vFl], sFH2, vPOL, SLEEP_H, 12)
            stamp(a, "g_b1")
            for k in range(GB_AT + 1):
                act_loads(k + DA)
        elif i > GB_AT and i + DA < 28:
            act_loads(i + DA)
    stamp(a, "x_lend")
    P3W, P3O = 128, 192
    a(f"""
    v_sub_f32 v{vG0}, 1.0, v{vG0}
    v_sub_f32 v{vG1}, 1.0, v{vG1}
    s_waitcnt vmcnt(0)
    """)
    for i in range(8):
        for x in wtr_reads((28 + i) % 13, P3W + 8 * i):
            a(x)
        a("s_waitcnt lgkmcnt(8)")
    for i in range(64):
        a(f"v_mul_f32 v{ACC+i}, v{ACC+i}, v{vG0 + i // 32}")
    vRW, vRD, vOUT = 26, 29, 30
    a(f"""
    v_mov_b32 v{vT0}, {CNT + 16}
    v_mov_b32 v{vT1}, 1
    s_waitcnt lgkmcnt(0)
    s_mov_b64 exec, 1
    ds_add_u32 v{vT0}, v{vT1}
    s_mov_b64 exec, -1
    s_lshl_b32 s{sT1}, s{sMT}, 7
    s_add_u32 s{sFH2}, s{sT1}, {FO}
    v_and_b32 v{vFl}, 31, v{vLane}
    v_mul_u32_u24 v{vOUT}, 896, v{vFl}
    v_lshlrev_b32 v{vFl}, 2, v{vFl}
    v_lshrrev_b32 v{vT2}, 5, v{vLane}
    v_lshl_add_u32 v{vOUT}, v{vT2}, 4, v{vOUT}
    s_lshl_b32 s{sA0}, s{sMT}, 3
    s_add_u32 s{sA0}, s{sA0}, s{sKQ}
    s_lshl_b32 s{sA0}, s{sA0}, 13
    s_add_u32 s{sA0}, s{sA0}, {OF}
    s_add_u32 s{sB0w}, s{sA0}, 4096
    v_add_u32 v{vA1}, 32768, v{vL16}
    s_mul_i32 s{sT1}, s{sKQ}, 12288
    v_add_u32 v{vRD}, s{sT1}, v{vL16}
    """)
    for lp in range(1, 4):
        a(f"""
        s_xor_b32 s{sT1}, s{sKQ}, {lp}
        s_mul_i32 s{sT1}, s{sT1}, 12288
        v_add_u32 v{vRW+lp-1}, s{sT1}, v{vL16}
        """)
    a(f"""
    s_mul_i32 s{sT2}, s{sMT}, {64 * 896}
    s_lshl_b32 s{sT1}, s{sNT}, 7
    s_add_u32 s{sT2}, s{sT2}, s{sT1}
    s_lshl_b32 s{sT1}, s{sKQ}, 5
    s_add_u32 s{sT2}, s{sT2}, s{sT1}
    """)
    stamp(a, "p3_poll")

    def pre():
        a(f"v_mov_b32 v{vT0}, {CNT}")
        a.label("p3_pre")
        a(f"""
        ds_read_b32 v{vT1}, v{vT0}
        ds_read_b32 v{vT2}, v{vT0} offset:16
        s_waitcnt lgkmcnt(0)
        v_readfirstlane_b32 s{sT0}, v{vT1}
        v_readfirstlane_b32 s{sT1}, v{vT2}
        s_min_u32 s{sT0}, s{sT0}, 1
        s_add_u32 s{sT0}, s{sT0}, s{sT1}
        s_cmp_eq_u32 s{sT0}, 5
        s_cbranch_scc1 p3_pre_done
        s_sleep 2
        s_branch p3_pre
        """)
        a.label("p3_pre_done")
    bcast_poll(a, "p3", 4, [vFl], sFH2, vPOL, SLEEP_O, 20, pre=pre, lsleep=1)
    stamp(a, "p3_go")
    a("s_setprio 3")
    for i in range(8):
        so, off = (sA0, i) if i < 4 else (sB0w, i - 4)
        a(f"buffer_load_dwordx4 {vr(P3O+8*i, 4)}, v{vL16}, {sr4(S_WS)}, s{so} offen offset:{1024*off}{SC}")
        a(f"buffer_load_dwordx4 {vr(P3O+8*i+4, 4)}, v{vA1}, {sr4(S_WS)}, s{so} offen offset:{1024*off}{SC}")
    for i in range(8):
        for mt in range(2):
            a(f"s_waitcnt vmcnt({15 - 2*i - mt})")
            for T in range(2):
                c = vr(ACC + 32 * mt + 16 * T, 16)
                a(f"{MFMA} {c}, {vr(P3W+8*i+4*T, 4)}, {vr(P3O+8*i+4*mt, 4)}, {c}")
    stamp(a, "p3_mfma")
    a("s_nop 7\ns_nop 1")
    for mt in range(2):
        for lp in range(1, 4):
            for q in range(2):
                a(f"ds_write_b128 v{vRW+lp-1}, {vr(ACC+32*mt+8*lp+4*q, 4)} offset:{(lp-1)*4096 + mt*2048 + q*1024}")
    a("s_waitcnt lgkmcnt(0)\ns_barrier")
    stamp(a, "p3_b3")
    R = P3W
    for i in range(12):
        a(f"ds_read_b128 {vr(R+4*i, 4)}, v{vRD} offset:{1024*i}")
    for lp in range(3):
        a(f"s_waitcnt lgkmcnt({8 - 4*lp})")
        for mt in range(2):
            for i in range(8):
                a(f"v_add_f32 v{ACC+32*mt+i}, v{ACC+32*mt+i}, v{R+16*lp+8*mt+i}")
    t = P3O
    for mt in range(2):
        for i in range(4):
            a(f"v_cvt_pk_bf16_f32 v{t+4*mt+i}, v{ACC+32*mt+2*i}, v{ACC+32*mt+2*i+1}")
    a(f"""
    s_add_u32 s{sT1}, s{sT2}, {32 * 896}
    v_permlane32_swap_b32 v{t}, v{t+2}
    v_permlane32_swap_b32 v{t+1}, v{t+3}
    buffer_store_dwordx4 {vr(t, 4)}, v{vOUT}, {sr4(S_OUT)}, s{sT2} offen
    v_permlane32_swap_b32 v{t+4}, v{t+6}
    v_permlane32_swap_b32 v{t+5}, v{t+7}
    buffer_store_dwordx4 {vr(t+4, 4)}, v{vOUT}, {sr4(S_OUT)}, s{sT1} offen
    """)
    stamp_flush(a)
    a("s_endpgm")


def gen_attention(a):
    Q, O, S, KV, P, TMP = AQ, AO, AS, AKV, AP, ATMP
    vG, vM, vONE = avG, avM, avONE
    a.label("att_spin")
    bcast_poll(a, "aq", 0, [vFLA, vFLA + 1], sFQB, vPOL, SLEEP_Q, 4, lsleep=1)
    stamp(a, "x_go")
    vm = att_loads(a)
    a.label("att_main")
    stamp(a, "x_main")

    def k_fix(buf):
        return [f"v_cndmask_b32 v{KV+16*buf+6}, v{KV+16*buf+6}, v{vONE}, s[{sME}:{sME+1}]",
                f"v_cndmask_b32 v{KV+16*buf}, v{KV+16*buf}, v{vONE}, s[{sMO}:{sMO+1}]"]

    a(f"""
    s_setprio 2
    v_mov_b32 v{vT1}, 0
    s_and_b32 s{sT0}, s{sHEAD}, 1
    s_mov_b32 s{sME}, 0
    s_mov_b32 s{sMO+1}, 0
    s_sub_u32 s{sME+1}, s{sT0}, 1
    s_sub_u32 s{sMO}, 0, s{sT0}
    """)
    for x in kv_adv()[:2]:
        a(x)
    SCR = [S[0], S[1], KV + 48, TMP + 8]
    for i in range(4):
        a(f"""
        s_waitcnt vmcnt({vm.wait({('m',), ('q', i)})})
        v_cndmask_b32 v{Q+8*i}, v{Q+8*i}, v{vT1}, s[{sMO}:{sMO+1}]
        v_cndmask_b32 v{Q+8*i+1}, v{Q+8*i+1}, v{vT1}, s[{sMO}:{sMO+1}]
        v_cndmask_b32 v{Q+8*i+6}, v{Q+8*i+6}, v{vT1}, s[{sME}:{sME+1}]
        v_cndmask_b32 v{Q+8*i+7}, v{Q+8*i+7}, v{vT1}, s[{sME}:{sME+1}]
        {MFMA} {vr(SCR[i], 16)}, {vr(TMP, 4)}, {vr(Q+8*i, 4)}, 0
        """)
        for k in range(6):
            a(f"v_mov_b32 v{O+16*i+k}, 0")
        a(f"{MFMA} {vr(SCR[i], 16)}, {vr(TMP+4, 4)}, {vr(Q+8*i+4, 4)}, {vr(SCR[i], 16)}")
        for k in range(6, 16):
            a(f"v_mov_b32 v{O+16*i+k}, 0")
    a(f"v_mov_b32 v{vONE}, 0x3f803f80")
    a(f"s_waitcnt vmcnt({vm.wait({('kv', 0, 1)})})")
    for x in k_fix(0):
        a(x)
    for i in range(4):
        s0 = SCR[i]
        a(f"""
        v_max3_f32 v{vM}, v{s0}, v{s0+1}, v{s0+2}
        v_max3_f32 v{vT0}, v{s0+3}, v{s0+4}, v{s0+5}
        v_max3_f32 v{vT2}, v{s0+6}, v{s0+7}, v{s0+8}
        v_max3_f32 v{vT3}, v{s0+9}, v{s0+10}, v{s0+11}
        v_max3_f32 v{vM}, v{vM}, v{s0+12}, v{s0+13}
        v_max3_f32 v{vT0}, v{vT0}, v{s0+14}, v{s0+15}
        v_max3_f32 v{vM}, v{vM}, v{vT2}, v{vT3}
        v_max_f32 v{vM}, v{vM}, v{vT0}
        v_mov_b32 v{vT0}, v{vM}
        s_nop 1
        v_permlane32_swap_b32 v{vM}, v{vT0}
        v_max_f32 v{vM}, v{vM}, v{vT0}
        v_sub_f32 v{vM}, 0, v{vM}
        v_cvt_pk_bf16_f32 v{vT0}, v{vM}, v{vM}
        v_lshlrev_b32 v{vT0}, 16, v{vT0}
        v_sub_f32 v{vT0}, v{vM}, v{vT0}
        v_cvt_pk_bf16_f32 v{vT0}, v{vM}, v{vT0}
        v_cndmask_b32 v{Q+8*i}, v{Q+8*i}, v{vT0}, s[{sMO}:{sMO+1}]
        v_cndmask_b32 v{Q+8*i+6}, v{Q+8*i+6}, v{vT0}, s[{sME}:{sME+1}]
        """)
        if i == 0:
            a(f"""
            s_nop 0
            {MFMA} {vr(S[0], 16)}, {vr(KV, 4)}, {vr(Q, 4)}, 0
            {MFMA} {vr(S[0], 16)}, {vr(KV+4, 4)}, {vr(Q+4, 4)}, {vr(S[0], 16)}
            """)
    for i in range(4):
        a(f"v_mov_b32 v{P+4+i}, 0\nv_mov_b32 v{KV+16*3+12+i}, 0")
    a(f"s_mov_b32 s{sIT}, 0")
    stamp(a, "x_loop")
    a.label("att_loop")
    for tb in range(4):
        for q in range(4):
            ph = 4 * tb + q
            sc, sn = S[ph % 2], S[1 - ph % 2]
            pq, pb = (q - 1) % 4, (tb if q > 0 else (tb - 1) % 4)
            nq, nb = (q + 1) % 4, (tb if q < 3 else (tb + 1) % 4)
            e = [f"v_exp_f32 v{sc+i}, v{sc+i}" for i in range(16)]
            c = [f"v_cvt_pk_bf16_f32 v{P+i}, v{sc+2*i}, v{sc+2*i+1}" for i in range(8)]
            pv2 = f"{MFMA} {vr(O+16*pq, 16)}, {vr(KV+16*pb+12, 4)}, {vr(P+4, 4)}, {vr(O+16*pq, 16)}"
            pv1 = f"{MFMA} {vr(O+16*q, 16)}, {vr(KV+16*tb+8, 4)}, {vr(P, 4)}, {vr(O+16*q, 16)}"
            qk1 = f"{MFMA} {vr(sn, 16)}, {vr(KV+16*nb, 4)}, {vr(Q+8*nq, 4)}, 0"
            qk2 = f"{MFMA} {vr(sn, 16)}, {vr(KV+16*nb+4, 4)}, {vr(Q+8*nq+4, 4)}, {vr(sn, 16)}"
            adv = kv_adv()
            s_pv2, s_qk1, s_qk2, s_pv1, tail = [], [], [], [], []
            s_qk1.append(kv_load((tb + 3) % 4, q))
            if q == 0:
                s_pv2.append(adv[2])
                s_qk2.append("s_waitcnt vmcnt(9)")
                s_pv1.append(adv[3])
                if tb == 2:
                    s_pv1.append(flag1(a, sFHO))
            if q == 1:
                s_pv2.append(adv[4])
                s_qk2.append(adv[5])
                if tb == 0:
                    s_pv1.append(f"s_cmp_eq_u32 s{sIT}, 3")
                if tb == 3:
                    s_pv1.append(f"s_add_u32 s{sIT}, s{sIT}, 1")
                if tb == 2:
                    s_pv1.append(f"s_mov_b32 s{sFHO}, {OOB}")
            if q == 2:
                if tb == 0:
                    s_pv2.append(f"s_cselect_b32 s{sKB}, {OOB}, s{sKB}")
                    s_qk2.append(f"s_cselect_b32 s{sVB}, {OOB}, s{sVB}")
                s_pv1.append("s_waitcnt vmcnt(9)")
                tail = k_fix((tb + 1) % 4)
            if q == 3:
                s_pv2.append(adv[0])
                s_qk2.append(adv[1])
                if tb == 3:
                    s_pv1.append(f"s_cmp_lt_u32 s{sIT}, 4")
            seq = e[0:2] + [pv2] + s_pv2 + e[2:5] + [qk1] + s_qk1 + e[5:9] + c[0:4] + [qk2] + s_qk2 + e[9:12] + [pv1] + s_pv1 + e[12:16] + tail + c[4:8]
            for x in seq:
                a(x)
    a(f"""
    s_cbranch_scc1 att_loop
    s_nop 0
    {MFMA} {vr(O+48, 16)}, {vr(KV+16*3+12, 4)}, {vr(P+4, 4)}, {vr(O+48, 16)}
    """)
    stamp(a, "x_lend")
    for i in range(1, 4):
        a(f"""
        s_add_u32 s{sT0}, s{sKQ}, {i}
        s_and_b32 s{sT0}, s{sT0}, 3
        s_mul_i32 s{sT0}, s{sT0}, 12288
        s_add_u32 s{sT0}, s{sT0}, {MERGE + (i-1) * 4096}
        v_add_u32 v{vT0}, s{sT0}, v{vL16}
        """)
        for q in range(4):
            a(f"ds_write_b128 v{vT0}, {vr(O+16*i+4*q, 4)} offset:{1024*q}")
    a(f"""
    v_mov_b32 v{vT1}, {CNT}
    v_mov_b32 v{vT2}, 1
    s_mul_i32 s{sT0}, s{sKQ}, 12288
    s_add_u32 s{sT0}, s{sT0}, {MERGE}
    v_add_u32 v{vT0}, s{sT0}, v{vL16}
    s_lshl_b32 s{sT2}, s{sQB}, 2
    s_add_u32 s{sT2}, s{sT2}, s{sKQ}
    s_lshl_b32 s{sT2}, s{sT2}, 4
    s_add_u32 s{sT2}, s{sT2}, s{sHEAD}
    s_lshl_b32 s{sKB}, s{sT2}, 11
    s_add_u32 s{sKB}, s{sKB}, {OF}
    s_lshl_b32 s{sVB}, s{sT2}, 2
    s_add_u32 s{sVB}, s{sVB}, {FO}
    s_waitcnt lgkmcnt(0)
    s_mov_b64 exec, 1
    ds_add_u32 v{vT1}, v{vT2}
    s_mov_b64 exec, -1
    """)
    a.label("att_msync")
    a(f"""
    ds_read_b32 v{vT2}, v{vT1}
    s_waitcnt lgkmcnt(0)
    v_cmp_gt_u32 vcc, 4, v{vT2}
    s_cbranch_vccnz att_msync
    """)
    stamp(a, "x_msync")
    for i in range(12):
        a(f"ds_read_b128 {vr(O+16+4*i, 4)}, v{vT0} offset:{1024*i}")
    a(f"""
    v_cmp_lt_u32 vcc, 31, v{vLane}
    s_mov_b32 s{sT0}, {f32bits(2.0**-10):#x}
    s_mov_b32 s{sT1}, {f32bits(2.0**100):#x}
    """)
    for k in range(3):
        a(f"s_waitcnt lgkmcnt({8 - 4*k})")
        for i in range(16):
            a(f"v_add_f32 v{O+i}, v{O+i}, v{O+16+16*k+i}")
    C = O + 16
    a(f"""
    v_mov_b32 v{vT0}, v{O+12}
    v_mov_b32 v{vT1}, v{O+12}
    """)
    for k in range(4):
        a(f"v_mul_f32 v{C+k}, 0, v{O+4*k}")
    a(f"v_permlane32_swap_b32 v{vT0}, v{vT1}")
    for i in range(1, 4):
        for k in range(4):
            a(f"v_fma_f32 v{C+k}, v{O+4*k+i}, 0, v{C+k}")
    a(f"""
    v_rcp_f32 v{vT2}, v{vT1}
    v_cndmask_b32 v{C+3}, v{C+3}, v{C+2}, vcc
    v_add_f32 v{C}, v{C}, v{C+1}
    v_add_f32 v{C+2}, v{C+2}, v{C+3}
    v_add_f32 v{C}, v{C}, v{vT1}
    v_add_f32 v{C}, v{C}, v{C+2}
    v_cmp_le_f32 s[28:29], s{sT0}, v{C}
    v_cmp_ge_f32 s[30:31], s{sT1}, v{C}
    s_and_b64 s[28:29], s[28:29], s[30:31]
    s_cmp_eq_u64 s[28:29], -1
    s_cbranch_scc0 att_fallback
    """)
    a.label("att_final")
    a(f"""
    v_mul_f32 v{vT2}, v{vT2}, v{vG}
    v_mov_b32 v{vT0}, 0
    """)
    for hh in range(2):
        for i in range(8):
            a(f"v_mul_f32 v{O+8*hh+i}, v{O+8*hh+i}, v{vT2}")
        for i in range(4):
            a(f"v_cvt_pk_bf16_f32 v{TMP+4*hh+i}, v{O+8*hh+2*i}, v{O+8*hh+2*i+1}")
        if hh == 1:
            a(f"v_cndmask_b32 v{TMP+6}, v{TMP+6}, v{vT0}, vcc\nv_cndmask_b32 v{TMP+7}, v{TMP+7}, v{vT0}, vcc")
        a(f"buffer_store_dwordx4 {vr(TMP+4*hh, 4)}, v{vL16}, {sr4(S_WS)}, s{sKB} offen offset:{1024*hh}{SC}")
    stamp(a, "x_ost")
    a("s_waitcnt vmcnt(0)")
    a(flag1(a, sVB))
    stamp(a, "x_b2")
    stamp_flush(a)
    a("s_endpgm")

    a.label("att_fallback")
    sc = S[0]
    K, V = KV, KV + 8
    vMo, vMn, vAl = TMP, TMP + 1, TMP + 2
    a(f"""
    v_mov_b32 v{vT0}, 0
    v_mov_b32 v{vMo}, 0xff800000
    v_cndmask_b32 v{Q}, v{Q}, v{vT0}, s[{sMO}:{sMO+1}]
    v_cndmask_b32 v{Q+6}, v{Q+6}, v{vT0}, s[{sME}:{sME+1}]
    s_mov_b32 s{sIT}, 0
    s_lshl_b32 s{sKS}, s{sP0}, 9
    s_add_u32 s{sKS}, s{sKS}, {KF}
    s_lshl_b32 s{sVS}, s{sHEAD}, 17
    s_add_u32 s{sVS}, s{sVS}, {VF}
    s_waitcnt vmcnt(0)
    """)
    for i in range(16):
        a(f"v_mov_b32 v{O+i}, 0")
    a.label("att_fb_loop")
    a(f"""
    buffer_load_dwordx4 {vr(K, 4)}, v{vL16}, {sr4(S_WS)}, s{sKS} offen{SC}
    buffer_load_dwordx4 {vr(K+4, 4)}, v{vL16}, {sr4(S_WS)}, s{sKS} offen offset:1024{SC}
    buffer_load_dwordx4 {vr(V, 4)}, v{vL16}, {sr4(S_WS)}, s{sVS} offen{SC}
    buffer_load_dwordx4 {vr(V+4, 4)}, v{vL16}, {sr4(S_WS)}, s{sVS} offen offset:1024{SC}
    s_waitcnt vmcnt(0)
    {MFMA} {vr(sc, 16)}, {vr(K, 4)}, {vr(Q, 4)}, 0
    {MFMA} {vr(sc, 16)}, {vr(K+4, 4)}, {vr(Q+4, 4)}, {vr(sc, 16)}
    s_nop 15
    v_max3_f32 v{vMn}, v{vMo}, v{sc}, v{sc+1}
    """)
    for i in range(2, 16, 2):
        a(f"v_max3_f32 v{vMn}, v{vMn}, v{sc+i}, v{sc+i+1}")
    a(f"""
    v_mov_b32 v{vT0}, v{vMn}
    s_nop 1
    v_permlane32_swap_b32 v{vMn}, v{vT0}
    v_max_f32 v{vMn}, v{vMn}, v{vT0}
    v_sub_f32 v{vAl}, v{vMo}, v{vMn}
    v_exp_f32 v{vAl}, v{vAl}
    v_mov_b32 v{vMo}, v{vMn}
    """)
    for i in range(16):
        a(f"v_sub_f32 v{sc+i}, v{sc+i}, v{vMn}")
    for i in range(16):
        a(f"v_exp_f32 v{sc+i}, v{sc+i}")
    for i in range(16):
        a(f"v_mul_f32 v{O+i}, v{O+i}, v{vAl}")
    for i in range(8):
        a(f"v_cvt_pk_bf16_f32 v{P+i}, v{sc+2*i}, v{sc+2*i+1}")
    a(f"""
    s_nop 1
    {MFMA} {vr(O, 16)}, {vr(V, 4)}, {vr(P, 4)}, {vr(O, 16)}
    {MFMA} {vr(O, 16)}, {vr(V+4, 4)}, {vr(P+4, 4)}, {vr(O, 16)}
    s_add_u32 s{sKS}, s{sKS}, {TQ}
    s_add_u32 s{sVS}, s{sVS}, 2048
    s_add_u32 s{sIT}, s{sIT}, 1
    s_cmp_lt_u32 s{sIT}, 64
    s_cbranch_scc1 att_fb_loop
    s_nop 15
    v_mov_b32 v{vT0}, v{O+12}
    v_mov_b32 v{vT1}, v{O+12}
    s_nop 1
    v_permlane32_swap_b32 v{vT0}, v{vT1}
    v_rcp_f32 v{vT2}, v{vT1}
    s_nop 0
    s_branch att_final
    """)


def build():
    ref = open(f"cdna_kernels/{NAME}.s.ref").read().split("\n")
    hdr = [l for l in ref if l.startswith(";") and "@launch" not in l and "Override launch" not in l and "grid=ceil" not in l]
    body = gen()
    out = "\n".join(hdr) + "\n"
    out += f"; @launch grid=(256,1,1) block=(512,1,1) lds={LDS_BYTES}\n"
    out += '.amdgcn_target "amdgcn-amd-amdhsa--gfx950"\n.text\n'
    out += f".globl {KNAME}\n.p2align 8\n.type {KNAME},@function\n{KNAME}:\n"
    out += body
    out += f""".section .rodata,"a"
.p2align 6
.amdhsa_kernel {KNAME}
  .amdhsa_next_free_vgpr 256
  .amdhsa_next_free_sgpr 102
  .amdhsa_accum_offset 256
  .amdhsa_group_segment_fixed_size 0
  .amdhsa_kernarg_size 88
  .amdhsa_user_sgpr_count 2
  .amdhsa_user_sgpr_kernarg_segment_ptr 1
  .amdhsa_system_sgpr_workgroup_id_x 1
.end_amdhsa_kernel
"""
    return out


if __name__ == "__main__":
    path = sys.argv[1]
    open(path, "w").write(build())
    print("wrote", path)
```

```python
import math, struct, sys, os

NAME = "gated_mix__softmax_full_mha__swiglu_ffn__prompt"
KNAME = NAME + "_kernel"
INSTR = int(os.environ.get("INSTR", "0"))
OPT = os.environ.get("OPT", "")

QF = 0
KF = 2 << 20
VF = 4 << 20
TQ = 28672
HF = 6 << 20
OF = 14 << 20
GF = 16 << 20
FQ = (16 << 20) + 0x10000
FH = (16 << 20) + 0x20000
FO = (16 << 20) + 0x30000
TSF = 24 << 20
WS_BYTES = 32 << 20
OOB = 0x40000000
SLEEP_Q = int(os.environ.get('SLQ', '6'))
SLEEP_H = int(os.environ.get('SLH', '8'))
SLEEP_O = int(os.environ.get('SLO', '2'))
LOG2E = math.log2(math.e)
MFMA = "v_mfma_f32_32x32x16_bf16"
SC = " sc1"
SLOT = 40960
LDS_BYTES = 4 * SLOT
MERGE = 73728
CNT = 155648
SPIN_MAX = 1 << int(os.environ.get('SPINLOG', '18'))


def ring_addr(s):
    if s <= 4:
        return s * 8192
    if s <= 8:
        return 122880 + (s - 5) * 8192
    return 40960 + (s - 9) * 8192


def f32bits(x):
    return struct.unpack("<I", struct.pack("<f", x))[0]


class Asm:
    def __init__(self):
        self.lines = []

    def __call__(self, s):
        for ln in s.strip("\n").split("\n"):
            ln = ln.strip()
            if not ln:
                continue
            self.lines.append(ln if ln.endswith(":") else "    " + ln)

    def label(self, l):
        self.lines.append(l + ":")

    def text(self):
        return "\n".join(self.lines) + "\n"


def vr(base, n):
    return f"v[{base}:{base + n - 1}]"


def sr4(b):
    return f"s[{b}:{b+3}]"


def srd(a, sd, sb, nbytes):
    a(f"""
    s_mov_b32 s{sd}, s{sb}
    s_mov_b32 s{sd+1}, s{sb+1}
    s_mov_b32 s{sd+2}, {nbytes}
    s_mov_b32 s{sd+3}, 0x00020000
    """)


def L(s):
    return [l.strip() for l in s.strip("\n").split("\n") if l.strip()]


HA_ST = int(os.environ.get('HA_ST', '22'))
EARLY_P = int(os.environ.get('EARLY_P', '23'))
QKB = int(os.environ.get('QKB', '11'))
FPER = int(os.environ.get('FPER', '3'))
PF2_ST = int(os.environ.get('PF2_ST', '0'))
PF3_ST = int(os.environ.get('PF3_ST', '2'))
GDA = int(os.environ.get('GDA', '14'))
GB_AT = int(os.environ.get('GB_AT', '7'))

S_X, S_B0, S_G, S_U, S_WS, S_TMP, S_WD, S_DBG = 4, 8, 12, 16, 20, 24, 28, 32
S_WO, S_OUT = 8, 12
sMI, sJ, sW, sR, sGRP = 36, 37, 38, 39, 40
sKQ = 39
sT0, sT1, sT2 = 42, 43, 44
sMX, sMB, sSO = 45, 46, 47
sSC, sTILE, sHOFF, sHOFF2, sQKO = 48, 49, 50, 51, 52
sWB, sM0, sFHO, sFQB, sP0, sOK = 53, 54, 55, 56, 57, 58
sNONCE, sNL2E, sC8, sI32, sSPIN = 59, 60, 61, 62, 63
P_X, P_WQKV, P_WO, P_WG, P_WU, P_WD, P_GW, P_OUT, P_DBG, P_WS = 64, 66, 68, 72, 74, 76, 78, 80, 82, 84
ST0 = 86
sHEAD, sQB, sMT, sNT = 70, 71, 41, 3
vLane, vL16 = 1, 2
vT0, vT1, vT2, vT3 = 3, 4, 5, 6
STAMPS = os.environ.get("STAMPS", "p1_first,p1_aend,p1_bend,p1_end,x_go,x_loop,x_lend").split(",")


def stamp(a, name):
    if INSTR and (name == "start" or name in STAMPS):
        idx = 0 if name == "start" else 1 + STAMPS.index(name)
        a(f"s_memtime s[{ST0+2*idx}:{ST0+2*idx+1}]")


def stamp_flush(a, vtmp=3):
    if not INSTR:
        return
    a(f"""
    s_memtime s[4:5]
    s_memrealtime s[6:7]
    s_lshl_b32 s3, s2, 3
    s_add_u32 s3, s3, s{sW}
    s_lshl_b32 s3, s3, 7
    s_add_u32 s3, s3, {TSF}
    v_mov_b32 v{vtmp+1}, 0
    s_waitcnt lgkmcnt(0)
    """)
    regs = [ST0 + 2 * i for i in range(8)] + [4, 6]
    for i, r in enumerate(regs):
        a(f"""
        v_mov_b32 v{vtmp}, s{r}
        buffer_store_dword v{vtmp}, v{vtmp+1}, {sr4(S_WS)}, s3 offen offset:{4*i}
        s_nop 1
        """)


def flag_store(a, soff_reg, vtmp):
    a(f"""
    v_mov_b32 v{vtmp}, s{sNONCE}
    v_mov_b32 v{vtmp+1}, 0
    s_mov_b64 exec, 1
    buffer_store_dword v{vtmp}, v{vtmp+1}, {sr4(S_WS)}, s{soff_reg} offen{SC}
    s_mov_b64 exec, -1
    """)


_uid = [0]


def poll(a, addrs, soff, vtmp, sleep):
    _uid[0] += 1
    u = _uid[0]
    a(f"s_mov_b32 s{sSPIN}, {SPIN_MAX}")
    a.label(f"poll_ld{u}")
    for i, va in enumerate(addrs):
        a(f"buffer_load_dword v{vtmp+i}, v{va}, {sr4(S_WS)}, s{soff} offen{SC}")
    a("s_waitcnt vmcnt(0)")
    poll_cmp(a, len(addrs), vtmp)
    a(f"""
    s_sub_u32 s{sSPIN}, s{sSPIN}, 1
    s_cbranch_scc1 poll_done{u}
    s_cmp_eq_u64 vcc, 0
    s_cbranch_scc1 poll_done{u}
    s_sleep {sleep}
    s_branch poll_ld{u}
    """)
    a.label(f"poll_done{u}")


def poll_cmp(a, n, vtmp):
    if n == 1:
        a(f"v_cmp_ne_u32 vcc, s{sNONCE}, v{vtmp}")
    else:
        a(f"""
        v_xor_b32 v{vtmp}, s{sNONCE}, v{vtmp}
        v_xor_b32 v{vtmp+1}, s{sNONCE}, v{vtmp+1}
        v_or_b32 v{vtmp}, v{vtmp}, v{vtmp+1}
        v_cmp_ne_u32 vcc, 0, v{vtmp}
        """)


def lds_set(a, off, val, vtmp):
    a(f"""
    v_mov_b32 v{vtmp}, {CNT + off}
    v_mov_b32 v{vtmp+1}, {val}
    ds_write_b32 v{vtmp}, v{vtmp+1}
    """)


def lds_wait(a, off, vtmp, cond, sleep=1):
    _uid[0] += 1
    u = _uid[0]
    a(f"v_mov_b32 v{vtmp}, {CNT + off}")
    a.label(f"lw{u}")
    a(f"""
    ds_read_b32 v{vtmp+1}, v{vtmp}
    s_waitcnt lgkmcnt(0)
    v_readfirstlane_b32 s{sT0}, v{vtmp+1}
    """)
    a(f"s_cmp_lg_u32 s{sT0}, 0" if cond == "ne0" else f"s_cmp_eq_u32 s{sT0}, 1")
    a(f"""
    s_cbranch_scc1 lwd{u}
    s_sleep {sleep}
    s_branch lw{u}
    """)
    a.label(f"lwd{u}")


class VM:
    def __init__(self):
        self.q = []

    def add(self, tag):
        self.q.append(tag)

    def wait(self, tags, counts=None):
        idx = max([i for i, t in enumerate(self.q) if t in tags], default=-1)
        for t in tags:
            assert t in self.q, (t, self.q)
            if counts:
                assert self.q.count(t) == counts(t), (t, self.q)
        n = len(self.q) - 1 - idx
        assert n <= 63
        return n

    def copy(self):
        v = VM(); v.q = list(self.q); return v


vFLA, vPOL, vFQO, vF1, vNON = 7, 9, 11, 12, 13
vDW = 31


def flag1(a, soff):
    return f"buffer_store_dword v{vNON}, v{vF1}, {sr4(S_WS)}, s{soff} offen{SC}"


AQ, AO, AS, AKV, AP, ATMP = 16, 48, [112, 128], 144, 208, 224
avG, avM, avONE = 14, 15, 216
sME, sMO = 24, 26
sKB, sVB, sTI, sKS, sVS, sIT = 45, 46, 47, 48, 52, 49


avV0, avV1 = 217, 218
sVM = 30


def kv_adv():
    return [f"s_mul_i32 s{sVS}, s{sTI}, {TQ}", f"s_add_u32 s{sKS}, s{sVS}, s{sKB}",
            f"s_add_u32 s{sVS}, s{sVS}, s{sVB}",
            f"s_add_u32 s{sTI}, s{sTI}, 1", f"s_and_b32 s{sTI}, s{sTI}, 15"]


def kv_load(buf, part, vv=(None, None)):
    if part < 2:
        return [f"buffer_load_dwordx4 {vr(AKV+16*buf+4*part, 4)}, v{vL16}, {sr4(S_WS)}, s{sKS} offen offset:{1024*part}{SC}"]
    return [f"s_mov_b64 exec, s[{sVM}:{sVM+1}]",
            f"buffer_load_dwordx4 {vr(AKV+16*buf+4*part, 4)}, v{vv[part-2]}, {sr4(S_WS)}, s{sVS} offen{SC}",
            "s_mov_b64 exec, -1"]


def att_loads(a):
    vm = VM()
    a(f"""
    s_lshl_b32 s{sT1}, s{sP0}, 9
    s_mul_i32 s{sT2}, s{sQB}, {4 * TQ}
    s_add_u32 s{sT2}, s{sT2}, s{sT1}
    s_add_u32 s{sT0}, s{sT2}, {KF}
    buffer_load_dwordx4 {vr(ATMP, 4)}, v{vL16}, {sr4(S_WS)}, s{sT0} offen{SC}
    buffer_load_dwordx4 {vr(ATMP+4, 4)}, v{vL16}, {sr4(S_WS)}, s{sT0} offen offset:1024{SC}
    """)
    vm.add(("m",)); vm.add(("m",))
    for i in range(4):
        a(f"""
        s_add_u32 s{sT0}, s{sKQ}, {i}
        s_and_b32 s{sT0}, s{sT0}, 3
        s_mul_i32 s{sT0}, s{sT0}, {TQ}
        s_add_u32 s{sT0}, s{sT0}, s{sT2}
        buffer_load_dwordx4 {vr(AQ+8*i, 4)}, v{vL16}, {sr4(S_WS)}, s{sT0} offen{SC}
        buffer_load_dwordx4 {vr(AQ+8*i+4, 4)}, v{vL16}, {sr4(S_WS)}, s{sT0} offen offset:1024{SC}
        """)
        vm.add(("q", i)); vm.add(("q", i))
    a(f"""
    s_mul_i32 s{sKB}, s{sKQ}, {16 * TQ}
    s_add_u32 s{sKB}, s{sKB}, s{sT1}
    s_add_u32 s{sKB}, s{sKB}, {KF}
    s_mul_i32 s{sVB}, s{sKQ}, {16 * TQ}
    s_mul_i32 s{sT0}, s{sHEAD}, 448
    s_add_u32 s{sVB}, s{sVB}, s{sT0}
    s_add_u32 s{sVB}, s{sVB}, {VF}
    s_mov_b32 s{sTI}, s{sQB}
    s_mov_b32 s{sVM}, 0x0fffffff
    s_mov_b32 s{sVM+1}, 0x0fffffff
    v_lshrrev_b32 v{vT2}, 5, v{vLane}
    v_mul_u32_u24 v{vT2}, {7168 - 512}, v{vT2}
    v_add_u32 v{vT2}, v{vT2}, v{vL16}
    v_add_u32 v{vT3}, 14336, v{vT2}
    """)
    for t in range(3):
        for i in range(8):
            a(f"v_mov_b32 v{AKV+16*t+8+i}, 0x3f803f80")
        for x in kv_adv():
            a(x)
        for p in range(4):
            for x in kv_load(t, p, (vT2, vT3)):
                a(x)
            vm.add(("kv", t, p))
    a(f"""
    v_and_b32 v{vT0}, 31, v{vLane}
    v_lshlrev_b32 v{vT0}, 2, v{vT0}
    s_lshl_b32 s{sT0}, s{sQB}, 2
    s_add_u32 s{sT0}, s{sT0}, s{sKQ}
    s_lshl_b32 s{sT0}, s{sT0}, 7
    s_add_u32 s{sT0}, s{sT0}, {GF}
    buffer_load_dword v{avG}, v{vT0}, {sr4(S_WS)}, s{sT0} offen{SC}
    """)
    vm.add(("g",))
    return vm


def wk_off(i):
    return 8 * (i % 14) + 4 * (i // 14)


def gen():
    a = Asm()
    vDX0, vDX1, vDB0, vDG, vDU = 7, 8, 9, 10, 11
    vAX = 14
    vAW = 18
    vST = 22
    vN, vR4, vC, vRow = 26, 27, 28, 29
    X, ACC, WF = 32, 144, 224
    PFR, vPFL, sPFI = ACC + 60, 30, 58

    stamp(a, "start")
    a(f"""
    s_cmp_ge_u32 s2, 256
    s_cbranch_scc1 k_end
    s_load_dwordx16 s[64:79], s[0:1], 0
    s_load_dwordx4 s[80:83], s[0:1], 64
    s_load_dwordx2 s[84:85], s[0:1], 80
    v_and_b32 v{vLane}, 63, v0
    v_lshrrev_b32 v{vT0}, 6, v0
    s_and_b32 s{sC8}, s2, 7
    s_lshr_b32 s{sI32}, s2, 3
    v_readfirstlane_b32 s{sW}, v{vT0}
    s_lshr_b32 s{sT1}, s{sC8}, 1
    s_mul_i32 s{sT0}, s{sT1}, 28
    s_lshl_b32 s{sT1}, s{sT1}, 2
    s_add_u32 s{sT1}, s{sT1}, 84
    s_cmp_ge_u32 s{sI32}, 28
    s_cselect_b32 s{sT0}, s{sT1}, s{sT0}
    s_add_u32 s{sT0}, s{sT0}, s{sI32}
    s_lshr_b32 s{sJ}, s{sT0}, 3
    s_and_b32 s{sT0}, s{sT0}, 7
    s_and_b32 s{sMI}, s{sC8}, 1
    s_lshl_b32 s{sMI}, s{sMI}, 3
    s_add_u32 s{sMI}, s{sMI}, s{sT0}
    v_lshrrev_b32 v{vT0}, 3, v{vLane}
    v_lshrrev_b32 v{vT1}, 4, v{vLane}
    v_and_b32 v{vT2}, 7, v{vLane}
    v_xor_b32 v{vT3}, v{vT2}, v{vT1}
    s_lshl_b32 s{sT0}, s{sMI}, 7
    s_lshl_b32 s{sT1}, s{sW}, 4
    s_add_u32 s{sT0}, s{sT0}, s{sT1}
    v_add_u32 v{vDX0}, s{sT0}, v{vT0}
    v_mul_u32_u24 v{vDX0}, 896, v{vDX0}
    v_lshl_add_u32 v{vDX0}, v{vT3}, 4, v{vDX0}
    v_xor_b32 v{vDX1}, 64, v{vDX0}
    v_add_u32 v{vDX1}, 7168, v{vDX1}
    v_and_b32 v{vT3}, 1, v{vT1}
    v_lshlrev_b32 v{vT3}, 2, v{vT3}
    v_xor_b32 v{vT3}, v{vT3}, v{vT2}
    v_lshlrev_b32 v{vT3}, 4, v{vT3}
    v_mul_u32_u24 v{vDW}, 896, v{vT0}
    v_add_u32 v{vDW}, v{vDW}, v{vT3}
    s_lshl_b32 s{sT0}, s{sW}, 3
    v_add_u32 v{vT0}, s{sT0}, v{vT0}
    v_mul_u32_u24 v{vDB0}, 2688, v{vT0}
    v_add_u32 v{vDB0}, v{vDB0}, v{vT3}
    s_lshl_b32 s{sMX}, s{sW}, 11
    s_lshl_b32 s{sMB}, s{sW}, 10
    s_add_u32 s{sMB}, s{sMB}, 16384
    v_lshlrev_b32 v{vL16}, 4, v{vLane}
    s_mov_b32 s{S_X+2}, {2048 * 448 * 2}
    s_mov_b32 s{S_X+3}, 0x00020000
    s_mov_b32 s{S_B0+2}, {448 * 1344 * 2}
    s_mov_b32 s{S_B0+3}, 0x00020000
    s_mov_b32 s{S_G+3}, 0x00020000
    s_mov_b32 s{S_U+3}, 0x00020000
    s_cmp_ge_u32 s{sJ}, 14
    s_cbranch_scc1 k1_v
    """)

    vm = None

    def emit_group(g):
        for l in g[0]:
            a(l)
        vm.add(g[1])

    def dma(m0base, m0off, vaddr, srdb, soff):
        return [f"s_add_u32 m0, s{m0base}, {m0off & 0xffffffff}", f"s_mov_b32 s{sSO}, {soff}",
                f"buffer_load_dwordx4 v{vaddr}, {sr4(srdb)}, s{sSO} offen lds"]

    def common_setup2(tg):
        srd(a, S_WS, P_WS, WS_BYTES)
        srd(a, S_DBG, P_DBG, 256)
        srd(a, S_WD, P_WD, 1792 * 448 * 2)
        a(f"""
        s_or_b32 s{sT0}, s2, s{sW}
        s_cmp_lg_u32 s{sT0}, 0
        s_cbranch_scc1 k_nononce_{tg}
        s_memrealtime s[{sSC}:{sSC+1}]
        v_mov_b32 v{vT1}, 0
        s_waitcnt lgkmcnt(0)
        s_or_b32 s{sT0}, s{sSC}, 0x80000000
        v_mov_b32 v{vT0}, s{sT0}
        s_mov_b64 exec, 1
        buffer_store_dword v{vT0}, v{vT1}, {sr4(S_DBG)}, 0 offen{SC}
        s_mov_b64 exec, -1
        """)
        a.label(f"k_nononce_{tg}")
        if "nopf" not in OPT:
            a(f"""
            s_lshl_b32 s{sPFI}, s2, 3
            s_add_u32 s{sPFI}, s{sPFI}, s{sW}
            s_lshl_b32 s{sT0}, s{sPFI}, 10
            s_mov_b32 s{S_TMP+3}, 0x00020000
            buffer_load_dwordx4 {vr(PFR, 4)}, v{vL16}, {sr4(S_X)}, s{sT0} offen
            v_lshrrev_b32 v{vPFL}, 3, v{vLane}
            v_lshlrev_b32 v{vPFL}, 7, v{vPFL}
            v_add_u32 v{vPFL}, v{vPFL}, v{vL16}
            s_cmp_lt_u32 s{sPFI}, 840
            s_cbranch_scc1 k_pf_q_{tg}
            s_cmp_lt_u32 s{sPFI}, 1400
            s_cselect_b32 s{S_TMP}, s{P_WG}, s{P_WU}
            s_cselect_b32 s{S_TMP+1}, s{P_WG+1}, s{P_WU+1}
            s_cselect_b32 s{sT0}, 0, 560
            s_mov_b32 s{S_TMP+2}, {448 * 1792 * 2}
            s_sub_u32 s{sT0}, s{sPFI}, s{sT0}
            s_lshl_b32 s{sT0}, s{sT0}, 11
            s_add_u32 s{sT0}, s{sT0}, {(128 * 3584 - 840 * 2048) & 0xffffffff}
            buffer_load_dwordx4 {vr(PFR+4, 4)}, v{vPFL}, {sr4(S_TMP)}, s{sT0} offen
            s_branch k_pf_d_{tg}
            """)
            a.label(f"k_pf_q_{tg}")
            a(f"""
            s_add_u32 s{sT0}, s{sT0}, {128 * 2688}
            buffer_load_dwordx4 {vr(PFR+4, 4)}, v{vL16}, {sr4(S_B0)}, s{sT0} offen
            """)
            a.label(f"k_pf_d_{tg}")
            vm.add(("PF",)); vm.add(("PF",))
        if "nocp" not in OPT:
            a(f"""
            s_cmp_ge_u32 s{sI32}, 5
            s_cbranch_scc1 k_nocp_{tg}
            s_lshl_b32 s{sT0}, s{sI32}, 3
            s_add_u32 s{sT0}, s{sT0}, s{sW}
            s_lshl_b32 s{sT0}, s{sT0}, 10
            v_add_u32 v{vT0}, s{sT0}, v{vL16}
            v_min_u32 v{vT0}, k_end-{KNAME}-12, v{vT0}
            s_getpc_b64 s[{sSC}:{sSC+1}]
            """)
            a.label(f"k_pc_{tg}")
            a(f"""
            s_sub_u32 s{sSC}, s{sSC}, k_pc_{tg}-{KNAME}
            s_subb_u32 s{sSC+1}, s{sSC+1}, 0
            global_load_dwordx4 {vr(ACC+76, 4)}, v{vT0}, s[{sSC}:{sSC+1}]
            """)
            a.label(f"k_nocp_{tg}")
        a(f"""
        s_and_b32 s{sR}, s{sW}, 3
        s_lshr_b32 s{sGRP}, s{sW}, 2
        s_lshl_b32 s{sTILE}, s{sMI}, 2
        s_add_u32 s{sTILE}, s{sTILE}, s{sR}
        v_and_b32 v{vT0}, 31, v{vLane}
        v_lshrrev_b32 v{vT1}, 5, v{vLane}
        v_bfe_u32 v{vT2}, v{vLane}, 1, 3
        v_xor_b32 v{vT2}, v{vT2}, v{vT1}
        s_lshl_b32 s{sT0}, s{sR}, 12
        v_lshlrev_b32 v{vT3}, 7, v{vT0}
        v_lshl_add_u32 v{vT3}, v{vT2}, 4, v{vT3}
        v_add_u32 v{vAX}, s{sT0}, v{vT3}
        v_xor_b32 v{vAX+1}, 32, v{vAX}
        v_xor_b32 v{vAX+2}, 64, v{vAX}
        v_xor_b32 v{vAX+3}, 96, v{vAX}
        v_bfe_u32 v{vN}, v{vLane}, 4, 1
        v_bfe_u32 v{vR4}, v{vLane}, 2, 2
        v_and_b32 v{vC}, 3, v{vLane}
        v_lshl_add_u32 v{vRow}, v{vT1}, 3, v{vR4}
        v_and_b32 v{vT2}, 2, v{vR4}
        v_xor_b32 v{vT2}, v{vT2}, v{vN}
        s_lshl_b32 s{sT0}, s{sGRP}, 1
        v_xor_b32 v{vT2}, s{sT0}, v{vT2}
        v_lshlrev_b32 v{vT3}, 7, v{vRow}
        v_lshl_add_u32 v{vT3}, v{vT2}, 5, v{vT3}
        v_lshl_add_u32 v{vT3}, v{vC}, 3, v{vT3}
        v_add_u32 v{vAW}, 16384, v{vT3}
        s_mov_b32 s{sNL2E}, {f32bits(-LOG2E):#x}
        """)

    def flag_addr(vtype, vfla, vfqo):
        t0, t1, t2, t3 = vN, vR4, vC, vRow
        o = L(f"""
        s_lshl_b32 s{sHEAD}, s{sC8}, 1
        s_and_b32 s{sT2}, s{sI32}, 1
        s_add_u32 s{sHEAD}, s{sHEAD}, s{sT2}
        s_lshr_b32 s{sQB}, s{sI32}, 1
        s_lshl_b32 s{sMT}, s{sC8}, 2
        s_and_b32 s{sT2}, s{sI32}, 3
        s_add_u32 s{sMT}, s{sMT}, s{sT2}
        s_lshr_b32 s{sNT}, s{sI32}, 2
        s_mul_i32 s{sP0}, s{sHEAD}, 7
        s_lshr_b32 s{sP0}, s{sP0}, 1
        s_lshl_b32 s{sFQB}, s{sHEAD}, 12
        s_add_u32 s{sFQB}, s{sFQB}, {FQ}
        s_lshr_b32 s{sT1}, s{sQB}, 2
        s_lshl_b32 s{sT1}, s{sT1}, 7
        s_and_b32 s{sT2}, s{sQB}, 3
        s_lshl_b32 s{sT2}, s{sT2}, 2
        s_add_u32 s{sT1}, s{sT1}, s{sT2}
        s_add_u32 s{sT1}, s{sT1}, 2048
        v_lshrrev_b32 v{t0}, 2, v{vLane}
        v_and_b32 v{t1}, 3, v{vLane}
        v_lshlrev_b32 v{t1}, 2, v{t1}
        v_lshl_add_u32 v{vfla}, v{t0}, 7, v{t1}
        v_and_b32 v{t0}, 1, v{vLane}
        v_lshl_add_u32 v{vfla+1}, v{t0}, 9, s{sT1}
        v_and_b32 v{t0}, 15, v{vLane}
        v_lshrrev_b32 v{t1}, 4, v{vLane}
        v_lshlrev_b32 v{t3}, 12, v{t0}
        v_lshl_add_u32 v{t3}, v{t1}, 9, v{t3}
        s_lshr_b32 s{sT1}, s{sMI}, 2
        s_lshl_b32 s{sT1}, s{sT1}, 7
        s_and_b32 s{sT2}, s{sMI}, 3
        s_lshl_b32 s{sT2}, s{sT2}, 2
        s_add_u32 s{sT1}, s{sT1}, s{sT2}
        """)
        if not vtype:
            o += L(f"""
            s_add_u32 s{sT2}, s{sJ}, 1
            s_lshr_b32 s{sT2}, s{sT2}, 3
            v_mul_u32_u24 v{t2}, 7, v{t0}
            v_lshrrev_b32 v{t2}, 1, v{t2}
            v_mad_u32_u24 v{t2}, v{t1}, 3, v{t2}
            v_lshrrev_b32 v{t2}, 3, v{t2}
            v_lshrrev_b32 v{t1}, 1, v{t1}
            v_lshl_add_u32 v{t2}, v{t1}, 6, v{t2}
            v_mad_u32_u24 v{t2}, s{sT2}, 7, v{t2}
            v_cmp_eq_u32 vcc, s{sJ}, v{t2}
            s_lshl_b32 s{sT2}, s{sT2}, 11
            s_sub_u32 s{sT1}, s{sT1}, s{sT2}
            s_add_u32 s{sT1}, s{sT1}, 2048
            """)
        else:
            o += L(f"""
            v_add_u32 v{t2}, 14, v{t1}
            v_cmp_eq_u32 vcc, s{sJ}, v{t2}
            s_add_u32 s{sT1}, s{sT1}, 1024
            """)
        o += L(f"""
        v_add_u32 v{t3}, s{sT1}, v{t3}
        v_mov_b32 v{t0}, {OOB}
        v_cndmask_b32 v{vfqo}, v{t0}, v{t3}, vcc
        v_cmp_eq_u32 vcc, 0, v{vLane}
        s_lshr_b32 s{sFHO}, s{sTILE}, 1
        s_lshl_b32 s{sFHO}, s{sFHO}, 4
        v_cndmask_b32 v{vF1}, v{t0}, v{vLane}, vcc
        s_add_u32 s{sFHO}, s{sFHO}, s{sJ}
        s_lshl_b32 s{sFHO}, s{sFHO}, 5
        s_and_b32 s{sT1}, s{sR}, 1
        s_lshl_b32 s{sT1}, s{sT1}, 1
        s_add_u32 s{sFHO}, s{sFHO}, s{sT1}
        s_add_u32 s{sFHO}, s{sFHO}, s{sGRP}
        s_lshl_b32 s{sFHO}, s{sFHO}, 2
        s_add_u32 s{sFHO}, s{sFHO}, {FH}
        s_lshl_b32 s{sM0}, s{sNT}, 7
        s_mul_i32 s{sWB}, s{sR}, {16 * 896}
        s_add_u32 s{sWB}, s{sWB}, s{sM0}
        s_lshl_b32 s{sM0}, s{sR}, 11
        """)
        return o

    def nonce_get(tag):
        a(f"""
        v_readfirstlane_b32 s{sNONCE}, v{vNON}
        v_lshlrev_b32 v{vT0}, 2, v{vLane}
        v_add_u32 v{vT0}, {CNT}, v{vT0}
        v_mov_b32 v{vT1}, 0
        s_cmp_lg_u32 s{sNONCE}, 0
        s_cbranch_scc1 k1_nonce_ok_{tag}
        """)
        a.label(f"k1_nonce_spin_{tag}")
        a(f"""
        buffer_load_dword v{vNON}, v{vT1}, {sr4(S_DBG)}, 0 offen{SC}
        s_waitcnt vmcnt(0)
        v_readfirstlane_b32 s{sNONCE}, v{vNON}
        s_sleep 4
        s_cmp_eq_u32 s{sNONCE}, 0
        s_cbranch_scc1 k1_nonce_spin_{tag}
        """)
        a.label(f"k1_nonce_ok_{tag}")
        a(f"ds_write_b32 v{vT0}, v{vT1}")

    def pf2():
        return (L(f"""
        s_cmp_lt_u32 s{sPFI}, 784
        s_cselect_b32 s{S_TMP}, s{P_WG}, s{P_WU}
        s_cselect_b32 s{S_TMP+1}, s{P_WG+1}, s{P_WU+1}
        s_cselect_b32 s{sT0}, 0, 784
        s_mov_b32 s{S_TMP+2}, {448 * 1792 * 2}
        s_sub_u32 s{sT0}, s{sPFI}, s{sT0}
        s_lshl_b32 s{sT0}, s{sT0}, 11
        buffer_load_dwordx4 {vr(PFR+8, 4)}, v{vPFL}, {sr4(S_TMP)}, s{sT0} offen offset:128
        """), ("PF",))

    def pf3():
        return (L(f"""
        s_cmp_lt_u32 s{sPFI}, 1568
        s_cselect_b32 s{S_TMP}, s{P_WD}, s{P_WO}
        s_cselect_b32 s{S_TMP+1}, s{P_WD+1}, s{P_WO+1}
        s_cselect_b32 s{sT0}, 0, 1568
        s_cselect_b32 s{S_TMP+2}, s{S_WD+2}, {448 * 448 * 2}
        s_sub_u32 s{sT0}, s{sPFI}, s{sT0}
        s_lshl_b32 s{sT0}, s{sT0}, 10
        buffer_load_dwordx4 {vr(PFR+12, 4)}, v{vL16}, {sr4(S_TMP)}, s{sT0} offen
        """), ("PF",))

    nonce_ld = ([f"v_mov_b32 v{vNON}, 0", f"buffer_load_dword v{vNON}, v{vNON}, {sr4(S_DBG)}, 0 offen{SC}"], ("N",))

    def wpref(i):
        ra = ring_addr(i % 13)
        return [f"s_add_u32 m0, s{sM0}, {ra}", f"s_add_u32 s{sT0}, s{sWB}, {wk_off(i) * 16 * 896}",
                f"buffer_load_dwordx4 v{vDW}, {sr4(S_WD)}, s{sT0} offen lds",
                f"s_add_u32 m0, s{sM0}, {ra + 1024}", f"s_add_u32 s{sT0}, s{sT0}, {8 * 896}",
                f"buffer_load_dwordx4 v{vDW}, {sr4(S_WD)}, s{sT0} offen lds"]

    abase = [0]

    def set_base(nb, regs):
        out = []
        if nb != abase[0]:
            d = nb - abase[0]
            for r in regs:
                out.append(f"v_add_u32 v{r}, {d}, v{r}" if d > 0 else f"v_subrev_u32 v{r}, {-d}, v{r}")
            abase[0] = nb
        return out

    def emit(x):
        if isinstance(x, tuple):
            a(x[1]); vm.add((x[0],))
        else:
            a(x)

    vm = VM()
    cnts = lambda t: {"A": 5, "B": 2}[t[0]] if t[0] in ("A", "B") else vm.q.count(t)
    a(f"""
    s_lshl_b32 s{sT0}, s{sJ}, 7
    v_add_u32 v{vDB0}, s{sT0}, v{vDB0}
    v_mul_u32_u24 v{vDG}, 3584, v{vT0}
    s_lshl_b32 s{sT0}, s{sJ}, 8
    v_add3_u32 v{vDG}, v{vDG}, v{vT3}, s{sT0}
    v_xor_b32 v{vDU}, 32, v{vDG}
    s_mov_b32 s{S_G+2}, {448 * 1792 * 2}
    s_mov_b32 s{S_U+2}, {448 * 1792 * 2}
    s_waitcnt lgkmcnt(0)
    s_mov_b64 s[{S_X}:{S_X+1}], s[{P_X}:{P_X+1}]
    s_mov_b64 s[{S_B0}:{S_B0+1}], s[{P_WQKV}:{P_WQKV+1}]
    s_mov_b64 s[{S_G}:{S_G+1}], s[{P_WG}:{P_WG+1}]
    s_mov_b64 s[{S_U}:{S_U+1}], s[{P_WU}:{P_WU+1}]
    """)

    def fA(st):
        b = (st % 4) * SLOT
        g = [dma(sMX, b, vDX0, S_X, st * 128), dma(sMX, b + 1024, vDX1, S_X, st * 128),
             dma(sMB, b, vDB0, S_B0, st * 64 * 2688), dma(sMB, b + 8192, vDG, S_G, st * 64 * 3584),
             dma(sMB, b + 16384, vDU, S_U, st * 64 * 3584)]
        return [(x, ("A", st)) for x in g]

    def bslot(sb):
        return ((3 + sb // 2) % 4) * SLOT + (sb % 2) * 16384

    def fB(sb):
        b = bslot(sb) - 16384
        g = [dma(sMB, b, vDG, S_G, sb * 64 * 3584 + 128), dma(sMB, b + 8192, vDU, S_U, sb * 64 * 3584 + 128)]
        return [(x, ("B", sb)) for x in g]

    for g in fA(0):
        emit_group(g)
    a("s_barrier")
    for g in fA(1):
        emit_group(g)
    common_setup2("f")
    a(f"""
    v_lshl_add_u32 v{vAW+1}, v{vN}, 13, v{vT3}
    v_add_u32 v{vAW+1}, {16384 + 8192}, v{vAW+1}
    v_xor_b32 v{vAW+2}, 32, v{vAW+1}
    s_cmp_ge_u32 s{sJ}, 7
    s_cselect_b32 s{sT1}, {KF - 7 * 4096}, {QF}
    s_cselect_b32 s{sSC}, 1.0, {f32bits(28 ** -0.5 * LOG2E):#x}
    s_lshl_b32 s{sT2}, s{sJ}, 12
    s_add_u32 s{sT1}, s{sT1}, s{sT2}
    s_lshl_b32 s{sT2}, s{sGRP}, 11
    s_add_u32 s{sT1}, s{sT1}, s{sT2}
    s_mul_i32 s{sQKO}, s{sTILE}, {TQ}
    s_add_u32 s{sQKO}, s{sQKO}, s{sT1}
    s_mul_i32 s{sHOFF}, s{sTILE}, 112
    s_lshl_b32 s{sT1}, s{sJ}, 3
    s_add_u32 s{sHOFF}, s{sHOFF}, s{sT1}
    s_lshl_b32 s{sT1}, s{sGRP}, 1
    s_add_u32 s{sHOFF}, s{sHOFF}, s{sT1}
    s_lshl_b32 s{sHOFF}, s{sHOFF}, 10
    s_add_u32 s{sHOFF}, s{sHOFF}, {HF}
    s_add_u32 s{sHOFF2}, s{sHOFF}, 4096
    """)
    WA = [WF, WF + 12, ACC + 48]
    NB = 4
    WB = [WF + 24, WF + 16, WF + 8, WF]

    def readsA(ks):
        st, s = ks // 4, ks % 4
        slot = st % 4
        out = set_base((slot // 2) * 2 * SLOT, [vAX, vAX+1, vAX+2, vAX+3, vAW, vAW+1, vAW+2])
        off = (slot % 2) * SLOT
        f = WA[ks % 3]
        out.append(f"ds_read_b128 {vr(X+4*ks, 4)}, v{vAX+s} offset:{off}")
        for t in range(3):
            for q in range(2):
                out.append(f"ds_read_b64_tr_b16 {vr(f+4*t+2*q, 2)}, v{vAW+t} offset:{off + (16*s + 4*q) * 128}")
        return out

    def readsB(ks):
        sb, s = ks // 4, ks % 4
        b = bslot(sb)
        f = WB[ks % NB]
        b32 = b - b % 32768
        off = b - b32
        out = set_base(b32 - 24576, [vAW+1, vAW+2])
        for t in range(2):
            for q in range(2):
                out.append(f"ds_read_b64_tr_b16 {vr(f+4*t+2*q, 2)}, v{vAW+1+t} offset:{off + (16*s + 4*q) * 128}")
        return out

    def epi_ffn(acc, ko, dst=None):
        g, u = acc, acc + 8
        dst = g if dst is None else dst
        o = []
        for i in range(8):
            o.append(f"v_mul_f32 v{u+i}, v{g+i}, v{u+i}")
            o.append(f"v_mul_f32 v{g+i}, s{sNL2E}, v{g+i}")
        for i in range(8):
            o.append(f"v_exp_f32 v{g+i}, v{g+i}")
        for i in range(8):
            o.append(f"v_add_f32 v{g+i}, 1.0, v{g+i}")
        for i in range(8):
            o.append(f"v_rcp_f32 v{g+i}, v{g+i}")
        for i in range(8):
            o.append(f"v_mul_f32 v{u+i}, v{u+i}, v{g+i}")
        for i in range(4):
            o.append(f"v_cvt_pk_bf16_f32 v{dst+i}, v{u+2*i}, v{u+2*i+1}")
        so, off = (sHOFF, ko) if ko < 4 else (sHOFF2, ko - 4)
        o.append(("H", f"buffer_store_dwordx4 {vr(dst, 4)}, v{vL16}, {sr4(S_WS)}, s{so} offen offset:{1024*off}{SC}"))
        return o

    def epi_qk():
        o = []
        for i in range(8):
            o.append(f"v_mul_f32 v{ACC+2*i}, s{sSC}, v{ACC+2*i}")
            o.append(f"v_mul_f32 v{ACC+2*i+1}, s{sSC}, v{ACC+2*i+1}")
            o.append(f"v_cvt_pk_bf16_f32 v{ACC+i}, v{ACC+2*i}, v{ACC+2*i+1}")
        o.append("s_nop 1")
        for hh in range(2):
            b = ACC + 4 * hh
            o.append(f"v_permlane32_swap_b32 v{b}, v{b+2}")
            o.append(f"v_permlane32_swap_b32 v{b+1}, v{b+3}")
            o.append(("QK", f"buffer_store_dwordx4 {vr(b, 4)}, v{vL16}, {sr4(S_WS)}, s{sQKO} offen offset:{1024*hh}{SC}"))
        return o

    abase[0] = 0
    a(f"s_waitcnt vmcnt({vm.wait({('A', 0)}, cnts)})\ns_barrier")
    stamp(a, "p1_first")
    for ks in range(2):
        for r in readsA(ks):
            a(r)
    pend = fA(2) + fA(3)
    vFQf = vST
    fillA = flag_addr(False, vFLA, vFQf)
    for ks in range(28):
        st, s = ks // 4, ks % 4
        f = WA[ks % 3]
        m = [f"{MFMA} {vr(ACC+16*t, 16)}, {vr(f+4*t, 4)}, {vr(X+4*ks, 4)}, {'0' if ks == 0 else vr(ACC+16*t, 16)}" for t in range(3)]
        if s == 2:
            need = {("A", st + 1)} if st < 6 else {("B", 0), ("B", 1)}
            a(f"s_waitcnt vmcnt({vm.wait(need, cnts)}) lgkmcnt(0)\ns_barrier")
            stamp(a, f"p1_a{st}")
            if st + 4 <= 6:
                pend += fA(st + 4)
            else:
                i0 = 2 * (st - 3)
                pend += fB(i0) + (fB(i0 + 1) if i0 + 1 < 7 else [])
            if st == 2:
                pend.append(nonce_ld)
            if "nopf" not in OPT and st == PF2_ST: pend.append(pf2())
            if "nopf" not in OPT and st == PF3_ST: pend.append(pf3())
        elif ks < 27:
            a("s_waitcnt lgkmcnt(7)")
        else:
            a("s_waitcnt lgkmcnt(4)")
        r = readsA(ks + 2) if ks + 2 < 28 else readsB(ks + 2 - 28)
        k = len(r) - 4 if ks + 2 < 28 else len(r) - 2
        a(m[0])
        for x in r[:k]:
            a(x)
        a(m[1])
        for x in r[k:]:
            a(x)
        a(m[2])
        if ks >= 16:
            assert vm.q.count(("A", 6)) == 5
            for _ in range(6):
                if fillA: a(fillA.pop(0))
        nd = 2 if (len(pend) > 4 or st < 1) else 1
        for _ in range(nd):
            if pend:
                emit_group(pend.pop(0))
    assert not fillA
    stamp(a, "p1_aend")
    for x in readsB(2):
        a(x)
    ea, eb = epi_ffn(ACC + 16, 0, X + 16), epi_ffn(ACC + 32, 1, X + 20)
    fillq = ["s_nop 3"] + epi_qk()
    fill = ea[:-1] + eb[:-1]
    hst = [ea[-1], eb[-1]]
    wpi = 0
    for ks in range(28):
        f = WB[ks % NB]
        m = [f"{MFMA} {vr(ACC+48+16*t, 16)}, {vr(f+4*t, 4)}, {vr(X+4*ks, 4)}, {'0' if ks == 0 else vr(ACC+48+16*t, 16)}" for t in range(2)]
        nxt = ks + NB - 1
        if ks in (5, QKB, 17):
            need = {5: {("B", 2), ("B", 3), ("N",)}, QKB: {("B", 4), ("B", 5), ("B", 6), ("QK",)}, 17: set()}[ks]
            if ks == QKB: assert vm.q.count(("QK",)) == 2 and QKB <= 13
            if need: a(f"s_waitcnt vmcnt({vm.wait(need, cnts)})")
            if ks == 5:
                nonce_get("f")
            a("s_barrier")
            stamp(a, {5: "p1_b2", QKB: "p1_b4", 17: "p1_b5"}[ks])
            if ks == QKB:
                a(f"""
                s_cmp_lg_u32 s{sW}, 7
                s_cbranch_scc1 k1_noflag_f
                s_mov_b32 s{sT0}, {FQ}
                buffer_store_dword v{vNON}, v{vFQf}, {sr4(S_WS)}, s{sT0} offen{SC}
                """)
                a.label("k1_noflag_f")
        a(f"s_waitcnt lgkmcnt({min(NB - 2, 27 - ks) * 4})")
        r = readsB(nxt) if nxt < 28 else []

        def dofill():
            if ks < 1: return
            if fillq:
                for _ in range(5):
                    if fillq: emit(fillq.pop(0))
            else:
                for _ in range(FPER):
                    if fill: emit(fill.pop(0))
        a(m[0])
        for x in r[:len(r) - 2]:
            a(x)
        if pend:
            emit_group(pend.pop(0))
        dofill()
        a(m[1])
        for x in r[len(r) - 2:]:
            a(x)
        dofill()
        if ks == EARLY_P:
            a(f"""
            s_cmp_lg_u32 s{sW}, 0
            s_cbranch_scc1 k1_nopoll
            buffer_load_dword v{vPOL}, v{vFLA}, {sr4(S_WS)}, s{sFQB} offen{SC}
            buffer_load_dword v{vPOL+1}, v{vFLA+1}, {sr4(S_WS)}, s{sFQB} offen{SC}
            """)
            a.label("k1_nopoll")
        if ks >= 17 and wpi < 9:
            a(f"s_cmp_eq_u32 s{sGRP}, 0\ns_cbranch_scc1 k1_nowp{ks}")
            for x in wpref(wpi):
                a(x)
            wpi += 1
            a.label(f"k1_nowp{ks}")
    assert not fill and not pend and wpi == 9
    a(f"""
    s_cmp_lg_u32 s{sW}, 0
    s_cbranch_scc1 k1_nochk
    s_waitcnt vmcnt(0)
    """)
    poll_cmp(a, 2, vPOL)
    a(f"""
    s_cmp_eq_u64 vcc, 0
    s_cselect_b32 s{sT0}, 1, 0
    """)
    lds_set(a, 4, f"s{sT0}", vT0)
    a("s_waitcnt lgkmcnt(0)")
    a.label("k1_nochk")
    a(f"""
    s_barrier
    s_mov_b32 s{sOK}, 0
    s_cmp_ge_u32 s{sW}, 4
    s_cbranch_scc1 k1_epi
    v_mov_b32 v{vT0}, {CNT + 4}
    ds_read_b32 v{vT1}, v{vT0}
    s_waitcnt lgkmcnt(0)
    v_readfirstlane_b32 s{sOK}, v{vT1}
    s_cmp_eq_u32 s{sOK}, 1
    s_cbranch_scc1 k1_early
    s_cmp_lg_u32 s{sW}, 0
    s_cbranch_scc1 k1_epi
    buffer_load_dword v{vPOL}, v{vFLA}, {sr4(S_WS)}, s{sFQB} offen{SC}
    buffer_load_dword v{vPOL+1}, v{vFLA+1}, {sr4(S_WS)}, s{sFQB} offen{SC}
    s_branch k1_epi
    """)
    a.label("k1_early")
    stamp(a, "x_go")
    att_loads(a)
    a.label("k1_epi")
    a("s_nop 7")
    stamp(a, "p1_bend")
    for x in epi_ffn(ACC + 48, 4) + hst + epi_ffn(ACC + 64, 5):
        emit(x)
    stamp(a, "p1_end")
    a(f"""
    s_cmp_ge_u32 s{sW}, 4
    s_cbranch_scc1 gemm_role
    s_cmp_eq_u32 s{sOK}, 1
    s_cbranch_scc1 att_main
    s_cmp_lg_u32 s{sW}, 0
    s_cbranch_scc1 aq_lw
    s_waitcnt vmcnt(4)
    """)
    poll_cmp(a, 2, vPOL)
    a(f"""
    s_cmp_eq_u64 vcc, 0
    s_cbranch_scc1 aq_ok
    s_branch att_spin
    """)

    a.label("k1_v")
    vm = VM()
    cntv = lambda t: {"A": 5, "B": 1}[t[0]] if t[0] in ("A", "B") else vm.q.count(t)
    sBST = sQKO
    a(f"""
    s_cmp_eq_u32 s{sJ}, 14
    s_cselect_b32 s{sT0}, 0, 512
    s_add_u32 s{sT0}, s{sT0}, {896 * 2}
    v_add_u32 v{vDB0}, s{sT0}, v{vDB0}
    v_lshlrev_b32 v{vDU}, 4, v{vT2}
    v_add_u32 v{vDG}, 384, v{vDB0}
    s_cmp_eq_u32 s{sJ}, 14
    s_cselect_b64 vcc, -1, 0
    s_cselect_b32 s{S_U+2}, s{S_B0+2}, {448 * 2}
    s_cselect_b32 s{sBST}, {64 * 2688}, 64
    s_cselect_b32 s{sT1}, 0, 64
    s_add_u32 s{sBST}, s{sBST}, s{sT1}
    v_cndmask_b32 v{vDU}, v{vDU}, v{vDG}, vcc
    s_waitcnt lgkmcnt(0)
    s_mov_b64 s[{S_X}:{S_X+1}], s[{P_X}:{P_X+1}]
    s_mov_b64 s[{S_B0}:{S_B0+1}], s[{P_WQKV}:{P_WQKV+1}]
    s_cmp_eq_u32 s{sJ}, 14
    s_cselect_b64 s[{S_U}:{S_U+1}], s[{P_WQKV}:{P_WQKV+1}], s[{P_GW}:{P_GW+1}]
    """)

    def vA(st):
        b = (st % 4) * SLOT
        g = [dma(sMX, b, vDX0, S_X, st * 128), dma(sMX, b + 1024, vDX1, S_X, st * 128)]
        for bi in range(3):
            g.append(dma(sMB, b + 8192 * bi, vDB0, S_B0, st * 64 * 2688 + 128 * bi))
        return [(x, ("A", st)) for x in g]

    def vbslot(sb):
        return 3 * SLOT + sb * 8192 if sb < 4 else (sb - 4) * 8192

    def vB(sb):
        return [([f"s_add_u32 m0, s{sMB}, {(vbslot(sb) - 16384) & 0xffffffff}", f"s_mul_i32 s{sSO}, s{sBST}, {sb}",
                  f"buffer_load_dwordx4 v{vDU}, {sr4(S_U)}, s{sSO} offen lds"], ("B", sb))]

    for g in vA(0):
        emit_group(g)
    a("s_barrier")
    for g in vA(1):
        emit_group(g)
    common_setup2("v")
    vAZ = vAW + 3
    a(f"""
    v_add_u32 v{vAW+1}, 8192, v{vAW}
    v_add_u32 v{vAW+2}, 16384, v{vAW}
    v_lshlrev_b32 v{vAZ}, 4, v{vT1}
    v_add_u32 v{vAZ}, s{sMB}, v{vAZ}
    s_cmp_eq_u32 s{sJ}, 14
    s_cselect_b32 s{sT1}, 0, 4096
    s_lshl_b32 s{sT2}, s{sGRP}, 9
    s_add_u32 s{sT1}, s{sT1}, s{sT2}
    s_mul_i32 s{sHOFF}, s{sTILE}, {TQ}
    s_add_u32 s{sHOFF}, s{sHOFF}, s{sT1}
    s_add_u32 s{sHOFF}, s{sHOFF}, {VF}
    s_add_u32 s{sHOFF2}, s{sHOFF}, 14336
    v_mul_u32_u24 v{vST}, {7168 - 512}, v{vT1}
    v_add_u32 v{vST}, v{vST}, v{vL16}
    """)

    def readsVA(ks):
        st, s = ks // 4, ks % 4
        slot = st % 4
        out = set_base((slot // 2) * 2 * SLOT, [vAX, vAX+1, vAX+2, vAX+3, vAW, vAW+1, vAW+2, vAZ])
        off = (slot % 2) * SLOT
        f = WA[ks % 3]
        out.append(f"ds_read_b128 {vr(X+4*ks, 4)}, v{vAX+s} offset:{off}")
        for t in range(3):
            for q in range(2):
                out.append(f"ds_read_b64_tr_b16 {vr(f+4*t+2*q, 2)}, v{vAW+t} offset:{off + (16*s + 4*q) * 128}")
        return out

    NBV = 6
    WBV = [WF + 24, WF + 28, WF + 16, WF + 20, WF + 12, WF + 8]

    def readsVB(ks, z):
        sb, s = ks // 4, ks % 4
        b = vbslot(sb)
        f = WBV[ks % NBV]
        nb = (3 * SLOT if sb < 4 else 0)
        out = set_base(nb - 16384, [vAZ if z else vAW])
        off = b - nb
        if z:
            out.append(f"ds_read_b128 {vr(f, 4)}, v{vAZ} offset:{off + 32*s}")
        else:
            for q in range(2):
                out.append(f"ds_read_b64_tr_b16 {vr(f+2*q, 2)}, v{vAW} offset:{off + (16*s + 4*q) * 128}")
        return out

    def epi_v(acc, bi):
        o = [f"v_cvt_pk_bf16_f32 v{acc+i}, v{acc+2*i}, v{acc+2*i+1}" for i in range(8)]
        o.append(f"buffer_store_dwordx4 {vr(acc, 4)}, v{vST}, {sr4(S_WS)}, s{sHOFF} offen offset:{1024*bi}{SC}")
        o.append(f"buffer_store_dwordx4 {vr(acc+4, 4)}, v{vST}, {sr4(S_WS)}, s{sHOFF2} offen offset:{1024*bi}{SC}")
        return o

    abase[0] = 0
    a(f"s_waitcnt vmcnt({vm.wait({('A', 0)}, cntv)})\ns_barrier")
    stamp(a, "p1_first")
    for ks in range(2):
        for r in readsVA(ks):
            a(r)
    pend = vA(2) + vA(3)
    fillA = flag_addr(True, vFLA, vDG)
    for ks in range(28):
        st, s = ks // 4, ks % 4
        f = WA[ks % 3]
        m = [f"{MFMA} {vr(ACC+16*t, 16)}, {vr(X+4*ks, 4)}, {vr(f+4*t, 4)}, {'0' if ks == 0 else vr(ACC+16*t, 16)}" for t in range(3)]
        if s == 2:
            need = {("A", st + 1)} if st < 6 else {("B", x) for x in range(7)} | {("N",)}
            a(f"s_waitcnt vmcnt({vm.wait(need, cntv)}) lgkmcnt(0)")
            if st == 6:
                nonce_get("v")
            a("s_barrier")
            if st + 4 <= 6:
                pend += vA(st + 4)
            elif st == 3:
                pend += vB(0) + vB(1) + vB(2) + vB(3)
            elif st == 4:
                pend += vB(4) + vB(5) + vB(6)
            if st == 2:
                pend.append(nonce_ld)
            if "nopf" not in OPT and st == PF2_ST: pend.append(pf2())
            if "nopf" not in OPT and st == PF3_ST: pend.append(pf3())
        elif ks < 27:
            a("s_waitcnt lgkmcnt(7)")
        r = readsVA(ks + 2) if ks + 2 < 28 else []
        k = max(len(r) - 4, 0)
        a(m[0])
        for x in r[:k]:
            a(x)
        a(m[1])
        for x in r[k:]:
            a(x)
        a(m[2])
        if ks >= 16:
            assert vm.q.count(("A", 6)) == 5
            for _ in range(6):
                if fillA: a(fillA.pop(0))
        nd = 2 if (len(pend) > 4 or st < 1) else 1
        for _ in range(nd):
            if pend:
                emit_group(pend.pop(0))
    assert not fillA and not pend
    stamp(a, "p1_aend")
    a(f"s_cmp_eq_u32 s{sJ}, 15\ns_cbranch_scc1 k1_vz")
    ab0 = abase[0]
    for z in range(2):
        if z:
            a.label("k1_vz")
        abase[0] = ab0
        nrd = 1 if z else 2
        for ks in range(NBV - 1):
            for x in readsVB(ks, z):
                a(x)
        fill = ["s_nop 1"] + epi_v(ACC, 0) + epi_v(ACC + 16, 1) + epi_v(ACC + 32, 2)
        VB = ACC + 48
        for ks in range(28):
            f = WBV[ks % NBV]
            c = vr(VB, 16)
            ops = f"{vr(f, 4)}, {vr(X+4*ks, 4)}" if z else f"{vr(X+4*ks, 4)}, {vr(f, 4)}"
            a(f"s_waitcnt lgkmcnt({min(NBV - 2, 27 - ks) * nrd})")
            a(f"{MFMA} {c}, {ops}, {'0' if ks == 0 else c}")
            if ks + NBV - 1 < 28:
                for x in readsVB(ks + NBV - 1, z):
                    a(x)
            for _ in range(4):
                if fill: a(fill.pop(0))
        assert not fill
        t = WF
        if z:
            a(f"""
            s_nop 7
            s_nop 3
            v_mul_f32 v{t}, s{sNL2E}, v{VB}
            v_exp_f32 v{t}, v{t}
            v_and_b32 v{t+1}, 31, v{vLane}
            v_add_f32 v{t}, 1.0, v{t}
            v_rcp_f32 v{t}, v{t}
            v_lshlrev_b32 v{t+1}, 2, v{t+1}
            s_lshl_b32 s{sT0}, s{sTILE}, 7
            s_add_u32 s{sT0}, s{sT0}, {GF}
            buffer_store_dword v{t}, v{t+1}, {sr4(S_WS)}, s{sT0} offen{SC}
            """)
        else:
            a("s_nop 7\ns_nop 3")
            for x in epi_v(VB, 3):
                a(x)
            a("s_branch k1_v_fin")
    a.label("k1_v_fin")
    stamp(a, "p1_bend")
    a(f"""
    s_waitcnt vmcnt(0)
    s_barrier
    """)
    stamp(a, "p1_end")
    a(f"""
    s_cmp_lg_u32 s{sW}, 7
    s_cbranch_scc1 k1_noflag_v
    s_mov_b32 s{sT0}, {FQ}
    buffer_store_dword v{vNON}, v{vDG}, {sr4(S_WS)}, s{sT0} offen{SC}
    """)
    a.label("k1_noflag_v")
    a(flag1(a, sFHO))
    a(f"""
    s_cmp_lt_u32 s{sW}, 4
    s_cbranch_scc1 att_spin
    s_endpgm
    """)
    a.label("gemm_role")
    gen_gemm(a, wpref)
    gen_attention(a)
    a.label("k_end")
    a("s_endpgm")
    return a.text()


vAWr = 16
RB = [0, 57344, 114688]


def wtr_setup(a):
    a(f"""
    v_bfe_u32 v{vT0}, v{vLane}, 4, 1
    v_bfe_u32 v{vT1}, v{vLane}, 2, 2
    v_and_b32 v{vT2}, 2, v{vT1}
    v_xor_b32 v{vT2}, v{vT2}, v{vT0}
    v_xor_b32 v{vT2}, s{sKQ}, v{vT2}
    v_lshrrev_b32 v{vT3}, 5, v{vLane}
    v_lshl_add_u32 v{vT3}, v{vT3}, 2, v{vT1}
    v_lshlrev_b32 v{vT3}, 7, v{vT3}
    v_lshl_add_u32 v{vT3}, v{vT2}, 5, v{vT3}
    v_and_b32 v{vT2}, 3, v{vLane}
    v_lshl_add_u32 v{vT3}, v{vT2}, 3, v{vT3}
    v_add_u32 v{vAWr}, s{sM0}, v{vT3}
    v_xor_b32 v{vAWr+1}, 64, v{vAWr}
    v_add_u32 v{vAWr+2}, {RB[1]}, v{vAWr}
    v_add_u32 v{vAWr+3}, {RB[1]}, v{vAWr+1}
    v_add_u32 v{vAWr+4}, {RB[2]}, v{vAWr}
    v_add_u32 v{vAWr+5}, {RB[2]}, v{vAWr+1}
    """)


def wtr_reads(slot, dst):
    ra = ring_addr(slot)
    bi = max(i for i in range(3) if RB[i] <= ra)
    out = []
    for T in range(2):
        for q in range(2):
            out.append(f"ds_read_b64_tr_b16 {vr(dst+4*T+2*q, 2)}, v{vAWr+2*bi+T} offset:{ra - RB[bi] + q*1024}")
    return out


def bcast_poll(a, tag, leader, addrs, soff, vtmp, sleep, ldsoff, pre=None, lsleep=2):
    a(f"s_cmp_lg_u32 s{sW}, {leader}\ns_cbranch_scc1 {tag}_lw")
    if pre:
        pre()
    poll(a, addrs, soff, vtmp, sleep)
    a.label(f"{tag}_ok")
    lds_set(a, ldsoff, 1, vT0)
    a(f"s_branch {tag}_go")
    a.label(f"{tag}_lw")
    lds_wait(a, ldsoff, vT0, "eq1", lsleep)
    a.label(f"{tag}_go")


def gen_gemm(a, wpref):
    ACC = 64
    ACT = 128
    WFB = [240, 248]
    vA1, vG0, vG1, vFl = 22, 23, 24, 25
    sA0, sB0w, sFH2 = 45, 46, 47
    DA = GDA
    stamp(a, "x_role")
    for i in range(9, 13):
        for x in wpref(i):
            a(x)
    wtr_setup(a)
    a("s_waitcnt vmcnt(8)")
    a(flag1(a, sFHO))
    srd(a, S_WO, P_WO, 448 * 448 * 2)
    srd(a, S_OUT, P_OUT, 2048 * 448 * 2)
    a(f"""
    v_add_u32 v{vA1}, {112 * 1024}, v{vL16}
    s_lshl_b32 s{sT1}, s{sMT}, 11
    s_add_u32 s{sT1}, s{sT1}, {FH}
    s_mul_i32 s{sA0}, s{sMT}, 224
    s_add_u32 s{sA0}, s{sA0}, s{sKQ}
    s_lshl_b32 s{sA0}, s{sA0}, 10
    s_add_u32 s{sA0}, s{sA0}, {HF}
    s_mul_i32 s{sB0w}, s{sKQ}, {112 * 896}
    s_lshl_b32 s{sT0}, s{sNT}, 7
    s_add_u32 s{sB0w}, s{sB0w}, s{sT0}
    """)
    bcast_poll(a, "gA", 4, [vFLA], sT1, vG0, SLEEP_H, 8)
    stamp(a, "x_go"); stamp(a, "x_loop")
    vm = VM()
    for i in range(9, 13):
        vm.add(("w", i)); vm.add(("w", i))

    def act_loads(i):
        r = ACT + 8 * (i % DA)
        a(f"""
        s_add_u32 s{sT0}, s{sA0}, {wk_off(i) * 1024}
        buffer_load_dwordx4 {vr(r, 4)}, v{vL16}, {sr4(S_WS)}, s{sT0} offen{SC}
        buffer_load_dwordx4 {vr(r+4, 4)}, v{vA1}, {sr4(S_WS)}, s{sT0} offen{SC}
        """)
        vm.add(("a", i)); vm.add(("a", i))

    def w_loads(i):
        if i < 28:
            for x in wpref(i):
                a(x)
        else:
            ra = ring_addr(i % 13)
            off = (28 * ((i - 28) // 2) + 16 * ((i - 28) % 2)) * 896
            a(f"""
            s_add_u32 m0, s{sM0}, {ra}
            s_add_u32 s{sT0}, s{sB0w}, {off}
            buffer_load_dwordx4 v{vDW}, {sr4(S_WO)}, s{sT0} offen lds
            s_add_u32 m0, s{sM0}, {ra + 1024}
            s_add_u32 s{sT0}, s{sT0}, {8 * 896}
            buffer_load_dwordx4 v{vDW}, {sr4(S_WO)}, s{sT0} offen lds
            """)
        vm.add(("w", i)); vm.add(("w", i))

    for i in range(DA):
        act_loads(i)
    a(f"""
    v_and_b32 v{vT0}, 31, v{vLane}
    v_lshlrev_b32 v{vT0}, 2, v{vT0}
    s_lshl_b32 s{sT1}, s{sMT}, 8
    s_add_u32 s{sT1}, s{sT1}, {GF}
    buffer_load_dword v{vG0}, v{vT0}, {sr4(S_WS)}, s{sT1} offen{SC}
    buffer_load_dword v{vG1}, v{vT0}, {sr4(S_WS)}, s{sT1} offen offset:128{SC}
    """)
    vm.add(("g",)); vm.add(("g",))
    for x in wtr_reads(0, WFB[0]):
        a(x)
    for i in range(28):
        need = {("a", i)}
        if 9 <= i + 1 < 28:
            need.add(("w", i + 1))
        a(f"s_waitcnt vmcnt({vm.wait(need)}) lgkmcnt(0)")
        if i + 1 < 28:
            for x in wtr_reads((i + 1) % 13, WFB[(i + 1) % 2]):
                a(x)
        for mt in range(2):
            for T in range(2):
                c = vr(ACC + 32 * mt + 16 * T, 16)
                a(f"{MFMA} {c}, {vr(WFB[i%2]+4*T, 4)}, {vr(ACT+8*(i%DA)+4*mt, 4)}, {'0' if i == 0 else c}")
        if i + 13 < 36:
            w_loads(i + 13)
        if i + DA < 28:
            act_loads(i + DA)
    stamp(a, "x_lend")
    P3W, P3O = 128, 192
    a(f"""
    v_sub_f32 v{vG0}, 1.0, v{vG0}
    v_sub_f32 v{vG1}, 1.0, v{vG1}
    s_waitcnt vmcnt(0)
    """)
    for i in range(8):
        for x in wtr_reads((28 + i) % 13, P3W + 8 * i):
            a(x)
        a("s_waitcnt lgkmcnt(8)")
    for i in range(64):
        a(f"v_mul_f32 v{ACC+i}, v{ACC+i}, v{vG0 + i // 32}")
    vRW, vRD, vOUT = 26, 29, 30
    a(f"""
    v_mov_b32 v{vT0}, {CNT + 16}
    v_mov_b32 v{vT1}, 1
    s_waitcnt lgkmcnt(0)
    s_mov_b64 exec, 1
    ds_add_u32 v{vT0}, v{vT1}
    s_mov_b64 exec, -1
    s_lshl_b32 s{sT1}, s{sMT}, 10
    s_add_u32 s{sFH2}, s{sT1}, {FO}
    v_and_b32 v{vFl}, 31, v{vLane}
    v_mul_u32_u24 v{vOUT}, 896, v{vFl}
    v_and_b32 v{vFl}, 0x3ff, v{vFLA}
    v_lshrrev_b32 v{vT2}, 5, v{vLane}
    v_lshl_add_u32 v{vOUT}, v{vT2}, 4, v{vOUT}
    s_lshl_b32 s{sA0}, s{sMT}, 3
    s_add_u32 s{sA0}, s{sA0}, s{sKQ}
    s_lshl_b32 s{sA0}, s{sA0}, 13
    s_add_u32 s{sA0}, s{sA0}, {OF}
    s_add_u32 s{sB0w}, s{sA0}, 4096
    v_add_u32 v{vA1}, 32768, v{vL16}
    s_mul_i32 s{sT1}, s{sKQ}, 12288
    v_add_u32 v{vRD}, s{sT1}, v{vL16}
    """)
    for lp in range(1, 4):
        a(f"""
        s_xor_b32 s{sT1}, s{sKQ}, {lp}
        s_mul_i32 s{sT1}, s{sT1}, 12288
        v_add_u32 v{vRW+lp-1}, s{sT1}, v{vL16}
        """)
    a(f"""
    s_mul_i32 s{sT2}, s{sMT}, {64 * 896}
    s_lshl_b32 s{sT1}, s{sNT}, 7
    s_add_u32 s{sT2}, s{sT2}, s{sT1}
    s_lshl_b32 s{sT1}, s{sKQ}, 5
    s_add_u32 s{sT2}, s{sT2}, s{sT1}
    """)
    stamp(a, "p3_poll")

    def pre():
        a(f"v_mov_b32 v{vT0}, {CNT}")
        a.label("p3_pre")
        a(f"""
        ds_read_b32 v{vT1}, v{vT0}
        ds_read_b32 v{vT2}, v{vT0} offset:16
        s_waitcnt lgkmcnt(0)
        v_readfirstlane_b32 s{sT0}, v{vT1}
        v_readfirstlane_b32 s{sT1}, v{vT2}
        s_min_u32 s{sT0}, s{sT0}, 1
        s_add_u32 s{sT0}, s{sT0}, s{sT1}
        s_cmp_eq_u32 s{sT0}, 5
        s_cbranch_scc1 p3_pre_done
        s_sleep 2
        s_branch p3_pre
        """)
        a.label("p3_pre_done")
    bcast_poll(a, "p3", 4, [vFl], sFH2, vPOL, SLEEP_O, 20, pre=pre, lsleep=1)
    stamp(a, "p3_go")
    a("s_setprio 3")
    for i in range(8):
        so, off = (sA0, i) if i < 4 else (sB0w, i - 4)
        a(f"buffer_load_dwordx4 {vr(P3O+8*i, 4)}, v{vL16}, {sr4(S_WS)}, s{so} offen offset:{1024*off}{SC}")
        a(f"buffer_load_dwordx4 {vr(P3O+8*i+4, 4)}, v{vA1}, {sr4(S_WS)}, s{so} offen offset:{1024*off}{SC}")
    for i in range(8):
        for mt in range(2):
            a(f"s_waitcnt vmcnt({15 - 2*i - mt})")
            for T in range(2):
                c = vr(ACC + 32 * mt + 16 * T, 16)
                a(f"{MFMA} {c}, {vr(P3W+8*i+4*T, 4)}, {vr(P3O+8*i+4*mt, 4)}, {c}")
    stamp(a, "p3_mfma")
    a("s_nop 7\ns_nop 1")
    for mt in range(2):
        for lp in range(1, 4):
            for q in range(2):
                a(f"ds_write_b128 v{vRW+lp-1}, {vr(ACC+32*mt+8*lp+4*q, 4)} offset:{(lp-1)*4096 + mt*2048 + q*1024}")
    a("s_waitcnt lgkmcnt(0)\ns_barrier")
    stamp(a, "p3_b3")
    R = P3W
    for i in range(12):
        a(f"ds_read_b128 {vr(R+4*i, 4)}, v{vRD} offset:{1024*i}")
    for lp in range(3):
        a(f"s_waitcnt lgkmcnt({8 - 4*lp})")
        for mt in range(2):
            for i in range(8):
                a(f"v_add_f32 v{ACC+32*mt+i}, v{ACC+32*mt+i}, v{R+16*lp+8*mt+i}")
    t = P3O
    for mt in range(2):
        for i in range(4):
            a(f"v_cvt_pk_bf16_f32 v{t+4*mt+i}, v{ACC+32*mt+2*i}, v{ACC+32*mt+2*i+1}")
    a(f"""
    s_add_u32 s{sT1}, s{sT2}, {32 * 896}
    v_permlane32_swap_b32 v{t}, v{t+2}
    v_permlane32_swap_b32 v{t+1}, v{t+3}
    buffer_store_dwordx4 {vr(t, 4)}, v{vOUT}, {sr4(S_OUT)}, s{sT2} offen
    v_permlane32_swap_b32 v{t+4}, v{t+6}
    v_permlane32_swap_b32 v{t+5}, v{t+7}
    buffer_store_dwordx4 {vr(t+4, 4)}, v{vOUT}, {sr4(S_OUT)}, s{sT1} offen
    """)
    stamp_flush(a)
    a("s_endpgm")


def gen_attention(a):
    Q, O, S, KV, P, TMP = AQ, AO, AS, AKV, AP, ATMP
    vG, vM, vONE = avG, avM, avONE
    a.label("att_spin")
    bcast_poll(a, "aq", 0, [vFLA, vFLA + 1], sFQB, vPOL, SLEEP_Q, 4, lsleep=1)
    stamp(a, "x_go")
    vm = att_loads(a)
    a.label("att_main")
    stamp(a, "x_main")

    def k_fix(buf):
        return [f"v_cndmask_b32 v{KV+16*buf+6}, v{KV+16*buf+6}, v{vONE}, s[{sME}:{sME+1}]",
                f"v_cndmask_b32 v{KV+16*buf}, v{KV+16*buf}, v{vONE}, s[{sMO}:{sMO+1}]"]

    a(f"""
    s_setprio 2
    v_mov_b32 v{vT1}, 0
    s_and_b32 s{sT0}, s{sHEAD}, 1
    s_mov_b32 s{sME}, 0
    s_mov_b32 s{sMO+1}, 0
    s_sub_u32 s{sME+1}, s{sT0}, 1
    s_sub_u32 s{sMO}, 0, s{sT0}
    """)
    for x in kv_adv()[:3]:
        a(x)
    a(f"v_mov_b32 v{avV0}, v{vT2}\nv_mov_b32 v{avV1}, v{vT3}")
    SCR = [S[0], S[1], KV + 48, TMP + 8]
    for i in range(4):
        a(f"""
        s_waitcnt vmcnt({vm.wait({('m',), ('q', i)})})
        v_cndmask_b32 v{Q+8*i}, v{Q+8*i}, v{vT1}, s[{sMO}:{sMO+1}]
        v_cndmask_b32 v{Q+8*i+1}, v{Q+8*i+1}, v{vT1}, s[{sMO}:{sMO+1}]
        v_cndmask_b32 v{Q+8*i+6}, v{Q+8*i+6}, v{vT1}, s[{sME}:{sME+1}]
        v_cndmask_b32 v{Q+8*i+7}, v{Q+8*i+7}, v{vT1}, s[{sME}:{sME+1}]
        {MFMA} {vr(SCR[i], 16)}, {vr(TMP, 4)}, {vr(Q+8*i, 4)}, 0
        """)
        for k in range(6):
            a(f"v_mov_b32 v{O+16*i+k}, 0")
        a(f"{MFMA} {vr(SCR[i], 16)}, {vr(TMP+4, 4)}, {vr(Q+8*i+4, 4)}, {vr(SCR[i], 16)}")
        for k in range(6, 16):
            a(f"v_mov_b32 v{O+16*i+k}, 0")
    a(f"v_mov_b32 v{vONE}, 0x3f803f80")
    a(f"s_waitcnt vmcnt({vm.wait({('kv', 0, 1)})})")
    for x in k_fix(0):
        a(x)
    for i in range(4):
        s0 = SCR[i]
        a(f"""
        v_max3_f32 v{vM}, v{s0}, v{s0+1}, v{s0+2}
        v_max3_f32 v{vT0}, v{s0+3}, v{s0+4}, v{s0+5}
        v_max3_f32 v{vT2}, v{s0+6}, v{s0+7}, v{s0+8}
        v_max3_f32 v{vT3}, v{s0+9}, v{s0+10}, v{s0+11}
        v_max3_f32 v{vM}, v{vM}, v{s0+12}, v{s0+13}
        v_max3_f32 v{vT0}, v{vT0}, v{s0+14}, v{s0+15}
        v_max3_f32 v{vM}, v{vM}, v{vT2}, v{vT3}
        v_max_f32 v{vM}, v{vM}, v{vT0}
        v_mov_b32 v{vT0}, v{vM}
        s_nop 1
        v_permlane32_swap_b32 v{vM}, v{vT0}
        v_max_f32 v{vM}, v{vM}, v{vT0}
        v_sub_f32 v{vM}, 0, v{vM}
        v_cvt_pk_bf16_f32 v{vT0}, v{vM}, v{vM}
        v_lshlrev_b32 v{vT0}, 16, v{vT0}
        v_sub_f32 v{vT0}, v{vM}, v{vT0}
        v_cvt_pk_bf16_f32 v{vT0}, v{vM}, v{vT0}
        v_cndmask_b32 v{Q+8*i}, v{Q+8*i}, v{vT0}, s[{sMO}:{sMO+1}]
        v_cndmask_b32 v{Q+8*i+6}, v{Q+8*i+6}, v{vT0}, s[{sME}:{sME+1}]
        """)
        if i == 0:
            a(f"""
            s_nop 0
            {MFMA} {vr(S[0], 16)}, {vr(KV, 4)}, {vr(Q, 4)}, 0
            {MFMA} {vr(S[0], 16)}, {vr(KV+4, 4)}, {vr(Q+4, 4)}, {vr(S[0], 16)}
            """)
    for i in range(4):
        a(f"v_mov_b32 v{P+4+i}, 0\nv_mov_b32 v{KV+16*3+12+i}, v{vONE}\nv_mov_b32 v{KV+16*3+8+i}, v{vONE}")
    a(f"s_mov_b32 s{sIT}, 0")
    stamp(a, "x_loop")
    a.label("att_loop")
    for tb in range(4):
        for q in range(4):
            ph = 4 * tb + q
            sc, sn = S[ph % 2], S[1 - ph % 2]
            pq, pb = (q - 1) % 4, (tb if q > 0 else (tb - 1) % 4)
            nq, nb = (q + 1) % 4, (tb if q < 3 else (tb + 1) % 4)
            e = [f"v_exp_f32 v{sc+i}, v{sc+i}" for i in range(16)]
            c = [f"v_cvt_pk_bf16_f32 v{P+i}, v{sc+2*i}, v{sc+2*i+1}" for i in range(8)]
            pv2 = f"{MFMA} {vr(O+16*pq, 16)}, {vr(KV+16*pb+12, 4)}, {vr(P+4, 4)}, {vr(O+16*pq, 16)}"
            pv1 = f"{MFMA} {vr(O+16*q, 16)}, {vr(KV+16*tb+8, 4)}, {vr(P, 4)}, {vr(O+16*q, 16)}"
            qk1 = f"{MFMA} {vr(sn, 16)}, {vr(KV+16*nb, 4)}, {vr(Q+8*nq, 4)}, 0"
            qk2 = f"{MFMA} {vr(sn, 16)}, {vr(KV+16*nb+4, 4)}, {vr(Q+8*nq+4, 4)}, {vr(sn, 16)}"
            adv = kv_adv()
            s_pv2, s_qk1, s_qk2, s_pv1, tail = [], [], [], [], []
            s_qk1 += kv_load((tb + 3) % 4, q, (avV0, avV1))
            if q == 0:
                s_pv2.append(adv[3])
                s_qk2.append("s_waitcnt vmcnt(9)")
                s_pv1.append(adv[4])
                if tb == 2:
                    s_pv1.append(flag1(a, sFHO))
            if q == 1:
                if tb == 0:
                    s_pv2.append(f"s_cmp_eq_u32 s{sIT}, 3")
                    s_qk2.append(f"s_cselect_b32 s{sKB}, {OOB}, s{sKB}")
                    s_pv1.append(f"s_cselect_b32 s{sVB}, {OOB}, s{sVB}")
                if tb == 3:
                    s_pv1.append(f"s_add_u32 s{sIT}, s{sIT}, 1")
                if tb == 2:
                    s_pv1.append(f"s_mov_b32 s{sFHO}, {OOB}")
            if q == 2:
                s_pv2.append(f"s_mul_i32 s{sT0}, s{sTI}, {TQ}")
                s_qk2.append(f"s_add_u32 s{sKS}, s{sT0}, s{sKB}")
                s_pv1.append("s_waitcnt vmcnt(9)")
                tail = k_fix((tb + 1) % 4)
            if q == 3:
                s_qk2.append(f"s_add_u32 s{sVS}, s{sT0}, s{sVB}")
                if tb == 3:
                    s_pv1.append(f"s_cmp_lt_u32 s{sIT}, 4")
            seq = e[0:2] + [pv2] + s_pv2 + e[2:5] + [qk1] + s_qk1 + e[5:9] + c[0:4] + [qk2] + s_qk2 + e[9:12] + [pv1] + s_pv1 + e[12:16] + tail + c[4:8]
            for x in seq:
                a(x)
    a(f"""
    s_cbranch_scc1 att_loop
    s_nop 0
    {MFMA} {vr(O+48, 16)}, {vr(KV+16*3+12, 4)}, {vr(P+4, 4)}, {vr(O+48, 16)}
    """)
    stamp(a, "x_lend")
    for i in range(1, 4):
        a(f"""
        s_add_u32 s{sT0}, s{sKQ}, {i}
        s_and_b32 s{sT0}, s{sT0}, 3
        s_mul_i32 s{sT0}, s{sT0}, 12288
        s_add_u32 s{sT0}, s{sT0}, {MERGE + (i-1) * 4096}
        v_add_u32 v{vT0}, s{sT0}, v{vL16}
        """)
        for q in range(4):
            a(f"ds_write_b128 v{vT0}, {vr(O+16*i+4*q, 4)} offset:{1024*q}")
    a(f"""
    v_mov_b32 v{vT1}, {CNT}
    v_mov_b32 v{vT2}, 1
    s_mul_i32 s{sT0}, s{sKQ}, 12288
    s_add_u32 s{sT0}, s{sT0}, {MERGE}
    v_add_u32 v{vT0}, s{sT0}, v{vL16}
    s_lshl_b32 s{sT2}, s{sQB}, 2
    s_add_u32 s{sT2}, s{sT2}, s{sKQ}
    s_lshl_b32 s{sT2}, s{sT2}, 4
    s_add_u32 s{sT2}, s{sT2}, s{sHEAD}
    s_lshl_b32 s{sKB}, s{sT2}, 11
    s_add_u32 s{sKB}, s{sKB}, {OF}
    s_lshr_b32 s{sVB}, s{sT2}, 2
    s_lshl_b32 s{sVB}, s{sVB}, 7
    s_and_b32 s{sT2}, s{sT2}, 3
    s_lshl_b32 s{sT2}, s{sT2}, 2
    s_add_u32 s{sVB}, s{sVB}, s{sT2}
    s_add_u32 s{sVB}, s{sVB}, {FO}
    s_waitcnt lgkmcnt(0)
    s_mov_b64 exec, 1
    ds_add_u32 v{vT1}, v{vT2}
    s_mov_b64 exec, -1
    """)
    a.label("att_msync")
    a(f"""
    ds_read_b32 v{vT2}, v{vT1}
    s_waitcnt lgkmcnt(0)
    v_cmp_gt_u32 vcc, 4, v{vT2}
    s_cbranch_vccnz att_msync
    """)
    stamp(a, "x_msync")
    for i in range(12):
        a(f"ds_read_b128 {vr(O+16+4*i, 4)}, v{vT0} offset:{1024*i}")
    a(f"""
    v_cmp_lt_u32 vcc, 31, v{vLane}
    s_mov_b32 s{sT0}, {f32bits(2.0**-10):#x}
    s_mov_b32 s{sT1}, {f32bits(2.0**100):#x}
    """)
    for k in range(3):
        a(f"s_waitcnt lgkmcnt({8 - 4*k})")
        for i in range(16):
            a(f"v_add_f32 v{O+i}, v{O+i}, v{O+16+16*k+i}")
    C = O + 16
    a(f"""
    v_mov_b32 v{vT0}, v{O+12}
    v_mov_b32 v{vT1}, v{O+12}
    """)
    for k in range(4):
        a(f"v_mul_f32 v{C+k}, 0, v{O+4*k}")
    a(f"v_permlane32_swap_b32 v{vT0}, v{vT1}")
    for i in range(1, 4):
        for k in range(4):
            a(f"v_fma_f32 v{C+k}, v{O+4*k+i}, 0, v{C+k}")
    a(f"""
    v_rcp_f32 v{vT2}, v{vT1}
    v_cndmask_b32 v{C+3}, v{C+3}, v{C+2}, vcc
    v_add_f32 v{C}, v{C}, v{C+1}
    v_add_f32 v{C+2}, v{C+2}, v{C+3}
    v_add_f32 v{C}, v{C}, v{vT1}
    v_add_f32 v{C}, v{C}, v{C+2}
    v_cmp_le_f32 s[28:29], s{sT0}, v{C}
    v_cmp_ge_f32 s[16:17], s{sT1}, v{C}
    s_and_b64 s[28:29], s[28:29], s[16:17]
    s_cmp_eq_u64 s[28:29], -1
    s_cbranch_scc0 att_fallback
    """)
    a.label("att_final")
    a(f"""
    v_mul_f32 v{vT2}, v{vT2}, v{vG}
    v_mov_b32 v{vT0}, 0
    """)
    for hh in range(2):
        for i in range(8):
            a(f"v_mul_f32 v{O+8*hh+i}, v{O+8*hh+i}, v{vT2}")
        for i in range(4):
            a(f"v_cvt_pk_bf16_f32 v{TMP+4*hh+i}, v{O+8*hh+2*i}, v{O+8*hh+2*i+1}")
        if hh == 1:
            a(f"v_cndmask_b32 v{TMP+6}, v{TMP+6}, v{vT0}, vcc\nv_cndmask_b32 v{TMP+7}, v{TMP+7}, v{vT0}, vcc")
        a(f"buffer_store_dwordx4 {vr(TMP+4*hh, 4)}, v{vL16}, {sr4(S_WS)}, s{sKB} offen offset:{1024*hh}{SC}")
    stamp(a, "x_ost")
    a("s_waitcnt vmcnt(0)")
    a(flag1(a, sVB))
    stamp(a, "x_b2")
    stamp_flush(a)
    a("s_endpgm")

    a.label("att_fallback")
    sc = S[0]
    K, V = KV, KV + 8
    vMo, vMn, vAl = TMP, TMP + 1, TMP + 2
    a(f"""
    v_mov_b32 v{vT0}, 0
    v_mov_b32 v{vMo}, 0xff800000
    v_cndmask_b32 v{Q}, v{Q}, v{vT0}, s[{sMO}:{sMO+1}]
    v_cndmask_b32 v{Q+6}, v{Q+6}, v{vT0}, s[{sME}:{sME+1}]
    s_mov_b32 s{sIT}, 0
    s_lshl_b32 s{sKS}, s{sP0}, 9
    s_add_u32 s{sKS}, s{sKS}, {KF}
    s_mul_i32 s{sVS}, s{sHEAD}, 448
    s_add_u32 s{sVS}, s{sVS}, {VF}
    s_waitcnt vmcnt(0)
    """)
    for i in range(16):
        a(f"v_mov_b32 v{O+i}, 0")
    a.label("att_fb_loop")
    a(f"""
    buffer_load_dwordx4 {vr(K, 4)}, v{vL16}, {sr4(S_WS)}, s{sKS} offen{SC}
    buffer_load_dwordx4 {vr(K+4, 4)}, v{vL16}, {sr4(S_WS)}, s{sKS} offen offset:1024{SC}
    s_mov_b64 exec, s[{sVM}:{sVM+1}]
    buffer_load_dwordx4 {vr(V, 4)}, v{avV0}, {sr4(S_WS)}, s{sVS} offen{SC}
    buffer_load_dwordx4 {vr(V+4, 4)}, v{avV1}, {sr4(S_WS)}, s{sVS} offen{SC}
    s_mov_b64 exec, -1
    s_waitcnt vmcnt(0)
    {MFMA} {vr(sc, 16)}, {vr(K, 4)}, {vr(Q, 4)}, 0
    {MFMA} {vr(sc, 16)}, {vr(K+4, 4)}, {vr(Q+4, 4)}, {vr(sc, 16)}
    s_nop 15
    v_max3_f32 v{vMn}, v{vMo}, v{sc}, v{sc+1}
    """)
    for i in range(2, 16, 2):
        a(f"v_max3_f32 v{vMn}, v{vMn}, v{sc+i}, v{sc+i+1}")
    a(f"""
    v_mov_b32 v{vT0}, v{vMn}
    s_nop 1
    v_permlane32_swap_b32 v{vMn}, v{vT0}
    v_max_f32 v{vMn}, v{vMn}, v{vT0}
    v_sub_f32 v{vAl}, v{vMo}, v{vMn}
    v_exp_f32 v{vAl}, v{vAl}
    v_mov_b32 v{vMo}, v{vMn}
    """)
    for i in range(16):
        a(f"v_sub_f32 v{sc+i}, v{sc+i}, v{vMn}")
    for i in range(16):
        a(f"v_exp_f32 v{sc+i}, v{sc+i}")
    for i in range(16):
        a(f"v_mul_f32 v{O+i}, v{O+i}, v{vAl}")
    for i in range(8):
        a(f"v_cvt_pk_bf16_f32 v{P+i}, v{sc+2*i}, v{sc+2*i+1}")
    a(f"""
    s_nop 1
    {MFMA} {vr(O, 16)}, {vr(V, 4)}, {vr(P, 4)}, {vr(O, 16)}
    {MFMA} {vr(O, 16)}, {vr(V+4, 4)}, {vr(P+4, 4)}, {vr(O, 16)}
    s_add_u32 s{sKS}, s{sKS}, {TQ}
    s_add_u32 s{sVS}, s{sVS}, {TQ}
    s_add_u32 s{sIT}, s{sIT}, 1
    s_cmp_lt_u32 s{sIT}, 64
    s_cbranch_scc1 att_fb_loop
    s_nop 15
    v_mov_b32 v{vT0}, v{O+12}
    v_mov_b32 v{vT1}, v{O+12}
    s_nop 1
    v_permlane32_swap_b32 v{vT0}, v{vT1}
    v_rcp_f32 v{vT2}, v{vT1}
    s_nop 0
    s_branch att_final
    """)


def build():
    ref = open(f"cdna_kernels/{NAME}.s.ref").read().split("\n")
    hdr = [l for l in ref if l.startswith(";") and "@launch" not in l and "Override launch" not in l and "grid=ceil" not in l]
    body = gen()
    out = "\n".join(hdr) + "\n"
    out += f"; @launch grid=(256,1,1) block=(512,1,1) lds={LDS_BYTES}\n"
    out += '.amdgcn_target "amdgcn-amd-amdhsa--gfx950"\n.text\n'
    out += f".globl {KNAME}\n.p2align 8\n.type {KNAME},@function\n{KNAME}:\n"
    out += body
    out += f""".section .rodata,"a"
.p2align 6
.amdhsa_kernel {KNAME}
  .amdhsa_next_free_vgpr 256
  .amdhsa_next_free_sgpr 102
  .amdhsa_accum_offset 256
  .amdhsa_group_segment_fixed_size 0
  .amdhsa_kernarg_size 88
  .amdhsa_user_sgpr_count 2
  .amdhsa_user_sgpr_kernarg_segment_ptr 1
  .amdhsa_system_sgpr_workgroup_id_x 1
.end_amdhsa_kernel
"""
    return out


if __name__ == "__main__":
    path = sys.argv[1]
    open(path, "w").write(build())
    print("wrote", path)
```

```python
import math, struct, sys, os

NAME = "gated_mix__softmax_full_mha__swiglu_ffn__prompt"
KNAME = NAME + "_kernel"
INSTR = int(os.environ.get("INSTR", "0"))
OPT = os.environ.get("OPT", "")

QF = 0
KF = 2 << 20
VF = 4 << 20
TQ = 28672
HF = 6 << 20
OF = 14 << 20
GF = 16 << 20
FQ = (16 << 20) + 0x10000
FH = (16 << 20) + 0x20000
FHS = 0x10000
FO = (16 << 20) + 0x40000
TSF = 24 << 20
WS_BYTES = 32 << 20
OOB = 0x40000000
SLEEP_Q = int(os.environ.get('SLQ', '6'))
SLEEP_H = int(os.environ.get('SLH', '8'))
SLEEP_O = int(os.environ.get('SLO', '2'))
LOG2E = math.log2(math.e)
MFMA = "v_mfma_f32_32x32x16_bf16"
SC = " sc1"
SLOT = 40960
LDS_BYTES = 4 * SLOT
MERGE = 73728
CNT = 155648
SPIN_MAX = 1 << int(os.environ.get('SPINLOG', '18'))


def ring_addr(s):
    if s <= 4:
        return s * 8192
    if s <= 8:
        return 122880 + (s - 5) * 8192
    return 40960 + (s - 9) * 8192


def f32bits(x):
    return struct.unpack("<I", struct.pack("<f", x))[0]


class Asm:
    def __init__(self):
        self.lines = []

    def __call__(self, s):
        for ln in s.strip("\n").split("\n"):
            ln = ln.strip()
            if not ln:
                continue
            self.lines.append(ln if ln.endswith(":") else "    " + ln)

    def label(self, l):
        self.lines.append(l + ":")

    def text(self):
        return "\n".join(self.lines) + "\n"


def vr(base, n):
    return f"v[{base}:{base + n - 1}]"


def sr4(b):
    return f"s[{b}:{b+3}]"


def srd(a, sd, sb, nbytes):
    a(f"""
    s_mov_b32 s{sd}, s{sb}
    s_mov_b32 s{sd+1}, s{sb+1}
    s_mov_b32 s{sd+2}, {nbytes}
    s_mov_b32 s{sd+3}, 0x00020000
    """)


def L(s):
    return [l.strip() for l in s.strip("\n").split("\n") if l.strip()]


HA_ST = int(os.environ.get('HA_ST', '13'))
EARLY_P = int(os.environ.get('EARLY_P', '24'))
QKB = int(os.environ.get('QKB', '11'))
FPER = int(os.environ.get('FPER', '4'))
PF2_ST = int(os.environ.get('PF2_ST', '0'))
PF3_ST = int(os.environ.get('PF3_ST', '2'))
GDA = int(os.environ.get('GDA', '14'))
AROT = int(os.environ.get('AROT', '15'))
GB_AT = int(os.environ.get('GB_AT', '7'))

S_X, S_B0, S_G, S_U, S_WS, S_TMP, S_WD, S_DBG = 4, 8, 12, 16, 20, 24, 28, 32
S_WO, S_OUT = 8, 12
sMI, sJ, sW, sR, sGRP = 36, 37, 38, 39, 40
sKQ = 39
sT0, sT1, sT2 = 42, 43, 44
sMX, sMB, sSO = 45, 46, 47
sSC, sTILE, sHOFF, sHOFF2, sQKO = 48, 49, 50, 51, 52
sWB, sM0, sFHO, sFQB, sP0, sOK = 53, 54, 55, 56, 57, 58
sNONCE, sNL2E, sC8, sI32, sSPIN = 59, 60, 61, 62, 63
P_X, P_WQKV, P_WO, P_WG, P_WU, P_WD, P_GW, P_OUT, P_DBG, P_WS = 64, 66, 68, 72, 74, 76, 78, 80, 82, 84
ST0 = 86
sHEAD, sQB, sMT, sNT = 70, 71, 41, 3
vLane, vL16 = 1, 2
vT0, vT1, vT2, vT3 = 3, 4, 5, 6
STAMPS = os.environ.get("STAMPS", "p1_first,p1_aend,p1_bend,p1_end,x_go,x_loop,x_lend").split(",")


def stamp(a, name):
    if INSTR and (name == "start" or name in STAMPS):
        idx = 0 if name == "start" else 1 + STAMPS.index(name)
        a(f"s_memtime s[{ST0+2*idx}:{ST0+2*idx+1}]")


def stamp_flush(a, vtmp=3):
    if not INSTR:
        return
    a(f"""
    s_memtime s[4:5]
    s_memrealtime s[6:7]
    s_lshl_b32 s3, s2, 3
    s_add_u32 s3, s3, s{sW}
    s_lshl_b32 s3, s3, 7
    s_add_u32 s3, s3, {TSF}
    v_mov_b32 v{vtmp+1}, 0
    s_waitcnt lgkmcnt(0)
    """)
    regs = [ST0 + 2 * i for i in range(8)] + [4, 6]
    for i, r in enumerate(regs):
        a(f"""
        v_mov_b32 v{vtmp}, s{r}
        buffer_store_dword v{vtmp}, v{vtmp+1}, {sr4(S_WS)}, s3 offen offset:{4*i}
        s_nop 1
        """)


def flag_store(a, soff_reg, vtmp):
    a(f"""
    v_mov_b32 v{vtmp}, s{sNONCE}
    v_mov_b32 v{vtmp+1}, 0
    s_mov_b64 exec, 1
    buffer_store_dword v{vtmp}, v{vtmp+1}, {sr4(S_WS)}, s{soff_reg} offen{SC}
    s_mov_b64 exec, -1
    """)


_uid = [0]


def poll(a, addrs, soff, vtmp, sleep):
    _uid[0] += 1
    u = _uid[0]
    a(f"s_mov_b32 s{sSPIN}, {SPIN_MAX}")
    a.label(f"poll_ld{u}")
    for i, va in enumerate(addrs):
        a(f"buffer_load_dword v{vtmp+i}, v{va}, {sr4(S_WS)}, s{soff} offen{SC}")
    a("s_waitcnt vmcnt(0)")
    poll_cmp(a, len(addrs), vtmp)
    a(f"""
    s_sub_u32 s{sSPIN}, s{sSPIN}, 1
    s_cbranch_scc1 poll_done{u}
    s_cmp_eq_u64 vcc, 0
    s_cbranch_scc1 poll_done{u}
    s_sleep {sleep}
    s_branch poll_ld{u}
    """)
    a.label(f"poll_done{u}")


def poll_cmp(a, n, vtmp):
    if n == 1:
        a(f"v_cmp_ne_u32 vcc, s{sNONCE}, v{vtmp}")
    else:
        a(f"""
        v_xor_b32 v{vtmp}, s{sNONCE}, v{vtmp}
        v_xor_b32 v{vtmp+1}, s{sNONCE}, v{vtmp+1}
        v_or_b32 v{vtmp}, v{vtmp}, v{vtmp+1}
        v_cmp_ne_u32 vcc, 0, v{vtmp}
        """)


def lds_set(a, off, val, vtmp):
    a(f"""
    v_mov_b32 v{vtmp}, {CNT + off}
    v_mov_b32 v{vtmp+1}, {val}
    ds_write_b32 v{vtmp}, v{vtmp+1}
    """)


def lds_wait(a, off, vtmp, cond, sleep=1):
    _uid[0] += 1
    u = _uid[0]
    a(f"v_mov_b32 v{vtmp}, {CNT + off}")
    a.label(f"lw{u}")
    a(f"""
    ds_read_b32 v{vtmp+1}, v{vtmp}
    s_waitcnt lgkmcnt(0)
    v_readfirstlane_b32 s{sT0}, v{vtmp+1}
    """)
    a(f"s_cmp_lg_u32 s{sT0}, 0" if cond == "ne0" else f"s_cmp_eq_u32 s{sT0}, 1")
    a(f"""
    s_cbranch_scc1 lwd{u}
    s_sleep {sleep}
    s_branch lw{u}
    """)
    a.label(f"lwd{u}")


class VM:
    def __init__(self):
        self.q = []

    def add(self, tag):
        self.q.append(tag)

    def wait(self, tags, counts=None):
        idx = max([i for i, t in enumerate(self.q) if t in tags], default=-1)
        for t in tags:
            assert t in self.q, (t, self.q)
            if counts:
                assert self.q.count(t) == counts(t), (t, self.q)
        n = len(self.q) - 1 - idx
        assert n <= 63
        return n

    def copy(self):
        v = VM(); v.q = list(self.q); return v


vFLA, vPOL, vFQO, vF1, vNON = 7, 9, 11, 12, 13
vDW = 31


def flag1(a, soff):
    return f"buffer_store_dword v{vNON}, v{vF1}, {sr4(S_WS)}, s{soff} offen{SC}"


AQ, AO, AS, AKV, AP, ATMP = 16, 48, [112, 128], 144, 208, 224
avG, avM, avONE = 14, 15, 216
sME, sMO = 24, 26
sKB, sVB, sTI, sKS, sVS, sIT = 45, 46, 47, 48, 52, 49


avV0, avV1 = 217, 218
sVM = 30


def kv_adv():
    return [f"s_mul_i32 s{sVS}, s{sTI}, {TQ}", f"s_add_u32 s{sKS}, s{sVS}, s{sKB}",
            f"s_add_u32 s{sVS}, s{sVS}, s{sVB}",
            f"s_add_u32 s{sTI}, s{sTI}, 1", f"s_and_b32 s{sTI}, s{sTI}, 15"]


def kv_load(buf, part, vv=(None, None)):
    if part < 2:
        return [f"buffer_load_dwordx4 {vr(AKV+16*buf+4*part, 4)}, v{vL16}, {sr4(S_WS)}, s{sKS} offen offset:{1024*part}{SC}"]
    return [f"s_mov_b64 exec, s[{sVM}:{sVM+1}]",
            f"buffer_load_dwordx4 {vr(AKV+16*buf+4*part, 4)}, v{vv[part-2]}, {sr4(S_WS)}, s{sVS} offen{SC}",
            "s_mov_b64 exec, -1"]


def att_loads(a):
    vm = VM()
    a(f"""
    s_lshl_b32 s{sT1}, s{sP0}, 9
    s_mul_i32 s{sT2}, s{sQB}, {4 * TQ}
    s_add_u32 s{sT2}, s{sT2}, s{sT1}
    s_add_u32 s{sT0}, s{sT2}, {KF}
    buffer_load_dwordx4 {vr(ATMP, 4)}, v{vL16}, {sr4(S_WS)}, s{sT0} offen{SC}
    buffer_load_dwordx4 {vr(ATMP+4, 4)}, v{vL16}, {sr4(S_WS)}, s{sT0} offen offset:1024{SC}
    """)
    vm.add(("m",)); vm.add(("m",))
    for i in range(4):
        a(f"""
        s_add_u32 s{sT0}, s{sKQ}, {i}
        s_and_b32 s{sT0}, s{sT0}, 3
        s_mul_i32 s{sT0}, s{sT0}, {TQ}
        s_add_u32 s{sT0}, s{sT0}, s{sT2}
        buffer_load_dwordx4 {vr(AQ+8*i, 4)}, v{vL16}, {sr4(S_WS)}, s{sT0} offen{SC}
        buffer_load_dwordx4 {vr(AQ+8*i+4, 4)}, v{vL16}, {sr4(S_WS)}, s{sT0} offen offset:1024{SC}
        """)
        vm.add(("q", i)); vm.add(("q", i))
    a(f"""
    s_mul_i32 s{sKB}, s{sKQ}, {16 * TQ}
    s_add_u32 s{sKB}, s{sKB}, s{sT1}
    s_add_u32 s{sKB}, s{sKB}, {KF}
    s_mul_i32 s{sVB}, s{sKQ}, {16 * TQ}
    s_mul_i32 s{sT0}, s{sHEAD}, 448
    s_add_u32 s{sVB}, s{sVB}, s{sT0}
    s_add_u32 s{sVB}, s{sVB}, {VF}
    s_and_b32 s{sTI}, s{sQB}, {AROT}
    s_mov_b32 s{sVM}, 0x0fffffff
    s_mov_b32 s{sVM+1}, 0x0fffffff
    v_lshrrev_b32 v{vT2}, 5, v{vLane}
    v_mul_u32_u24 v{vT2}, {7168 - 512}, v{vT2}
    v_add_u32 v{vT2}, v{vT2}, v{vL16}
    v_add_u32 v{vT3}, 14336, v{vT2}
    """)
    for t in range(3):
        for i in range(8):
            a(f"v_mov_b32 v{AKV+16*t+8+i}, 0x3f803f80")
        for x in kv_adv():
            a(x)
        for p in range(4):
            for x in kv_load(t, p, (vT2, vT3)):
                a(x)
            vm.add(("kv", t, p))
    a(f"""
    v_and_b32 v{vT0}, 31, v{vLane}
    v_lshlrev_b32 v{vT0}, 2, v{vT0}
    s_lshl_b32 s{sT0}, s{sQB}, 2
    s_add_u32 s{sT0}, s{sT0}, s{sKQ}
    s_lshl_b32 s{sT0}, s{sT0}, 7
    s_add_u32 s{sT0}, s{sT0}, {GF}
    buffer_load_dword v{avG}, v{vT0}, {sr4(S_WS)}, s{sT0} offen{SC}
    """)
    vm.add(("g",))
    return vm


def wk_off(i):
    return 8 * (i % 14) + 4 * (i // 14)


def gen():
    a = Asm()
    vDX0, vDX1, vDB0, vDG, vDU = 7, 8, 9, 10, 11
    vAX = 14
    vAW = 18
    vST = 22
    vN, vR4, vC, vRow = 26, 27, 28, 29
    X, ACC, WF = 32, 144, 224
    PFR, vPFL, sPFI = ACC + 60, 30, 58

    stamp(a, "start")
    if "dbgt" in OPT: a("s_memtime s[86:87]\ns_memrealtime s[88:89]")
    a(f"""
    s_cmp_ge_u32 s2, 256
    s_cbranch_scc1 k_end
    s_load_dwordx16 s[64:79], s[0:1], 0
    s_load_dwordx4 s[80:83], s[0:1], 64
    s_load_dwordx2 s[84:85], s[0:1], 80
    v_and_b32 v{vLane}, 63, v0
    v_lshrrev_b32 v{vT0}, 6, v0
    s_and_b32 s{sC8}, s2, 7
    s_lshr_b32 s{sI32}, s2, 3
    v_readfirstlane_b32 s{sW}, v{vT0}
    s_lshr_b32 s{sT1}, s{sC8}, 1
    s_mul_i32 s{sT0}, s{sT1}, 28
    s_lshl_b32 s{sT1}, s{sT1}, 2
    s_add_u32 s{sT1}, s{sT1}, 84
    s_cmp_ge_u32 s{sI32}, 28
    s_cselect_b32 s{sT0}, s{sT1}, s{sT0}
    s_add_u32 s{sT0}, s{sT0}, s{sI32}
    s_lshr_b32 s{sJ}, s{sT0}, 3
    s_and_b32 s{sT0}, s{sT0}, 7
    s_and_b32 s{sMI}, s{sC8}, 1
    s_lshl_b32 s{sMI}, s{sMI}, 3
    s_add_u32 s{sMI}, s{sMI}, s{sT0}
    v_lshrrev_b32 v{vT0}, 3, v{vLane}
    v_lshrrev_b32 v{vT1}, 4, v{vLane}
    v_and_b32 v{vT2}, 7, v{vLane}
    v_xor_b32 v{vT3}, v{vT2}, v{vT1}
    s_lshl_b32 s{sT0}, s{sMI}, 7
    s_lshl_b32 s{sT1}, s{sW}, 4
    s_add_u32 s{sT0}, s{sT0}, s{sT1}
    v_add_u32 v{vDX0}, s{sT0}, v{vT0}
    v_mul_u32_u24 v{vDX0}, 896, v{vDX0}
    v_lshl_add_u32 v{vDX0}, v{vT3}, 4, v{vDX0}
    v_xor_b32 v{vDX1}, 64, v{vDX0}
    v_add_u32 v{vDX1}, 7168, v{vDX1}
    v_and_b32 v{vT3}, 1, v{vT1}
    v_lshlrev_b32 v{vT3}, 2, v{vT3}
    v_xor_b32 v{vT3}, v{vT3}, v{vT2}
    v_lshlrev_b32 v{vT3}, 4, v{vT3}
    v_mul_u32_u24 v{vDW}, 896, v{vT0}
    v_add_u32 v{vDW}, v{vDW}, v{vT3}
    s_lshl_b32 s{sT0}, s{sW}, 3
    v_add_u32 v{vT0}, s{sT0}, v{vT0}
    v_mul_u32_u24 v{vDB0}, 2688, v{vT0}
    v_add_u32 v{vDB0}, v{vDB0}, v{vT3}
    s_lshl_b32 s{sMX}, s{sW}, 11
    s_lshl_b32 s{sMB}, s{sW}, 10
    s_add_u32 s{sMB}, s{sMB}, 16384
    v_lshlrev_b32 v{vL16}, 4, v{vLane}
    s_mov_b32 s{S_X+2}, {2048 * 448 * 2}
    s_mov_b32 s{S_X+3}, 0x00020000
    s_mov_b32 s{S_B0+2}, {448 * 1344 * 2}
    s_mov_b32 s{S_B0+3}, 0x00020000
    s_mov_b32 s{S_G+3}, 0x00020000
    s_mov_b32 s{S_U+3}, 0x00020000
    s_cmp_ge_u32 s{sJ}, 14
    s_cbranch_scc1 k1_v
    """)

    vm = None

    def emit_group(g):
        for l in g[0]:
            a(l)
        vm.add(g[1])

    def dma(m0base, m0off, vaddr, srdb, soff):
        return [f"s_add_u32 m0, s{m0base}, {m0off & 0xffffffff}", f"s_mov_b32 s{sSO}, {soff}",
                f"buffer_load_dwordx4 v{vaddr}, {sr4(srdb)}, s{sSO} offen lds"]

    def common_setup2(tg):
        srd(a, S_WS, P_WS, WS_BYTES)
        srd(a, S_DBG, P_DBG, 256)
        srd(a, S_WD, P_WD, 1792 * 448 * 2)
        a(f"""
        s_or_b32 s{sT0}, s2, s{sW}
        s_cmp_lg_u32 s{sT0}, 0
        s_cbranch_scc1 k_nononce_{tg}
        s_memrealtime s[{sSC}:{sSC+1}]
        v_mov_b32 v{vT1}, 0
        s_waitcnt lgkmcnt(0)
        s_or_b32 s{sT0}, s{sSC}, 0x80000000
        v_mov_b32 v{vT0}, s{sT0}
        s_mov_b64 exec, 1
        buffer_store_dword v{vT0}, v{vT1}, {sr4(S_DBG)}, 0 offen{SC}
        s_mov_b64 exec, -1
        """)
        a.label(f"k_nononce_{tg}")
        if "nopf" not in OPT:
            a(f"""
            s_lshl_b32 s{sPFI}, s2, 3
            s_add_u32 s{sPFI}, s{sPFI}, s{sW}
            s_lshl_b32 s{sT0}, s{sPFI}, 10
            s_mov_b32 s{S_TMP+3}, 0x00020000
            buffer_load_dwordx4 {vr(PFR, 4)}, v{vL16}, {sr4(S_X)}, s{sT0} offen
            v_lshrrev_b32 v{vPFL}, 3, v{vLane}
            v_lshlrev_b32 v{vPFL}, 7, v{vPFL}
            v_add_u32 v{vPFL}, v{vPFL}, v{vL16}
            s_cmp_lt_u32 s{sPFI}, 840
            s_cbranch_scc1 k_pf_q_{tg}
            s_cmp_lt_u32 s{sPFI}, 1400
            s_cselect_b32 s{S_TMP}, s{P_WG}, s{P_WU}
            s_cselect_b32 s{S_TMP+1}, s{P_WG+1}, s{P_WU+1}
            s_cselect_b32 s{sT0}, 0, 560
            s_mov_b32 s{S_TMP+2}, {448 * 1792 * 2}
            s_sub_u32 s{sT0}, s{sPFI}, s{sT0}
            s_lshl_b32 s{sT0}, s{sT0}, 11
            s_add_u32 s{sT0}, s{sT0}, {(128 * 3584 - 840 * 2048) & 0xffffffff}
            buffer_load_dwordx4 {vr(PFR+4, 4)}, v{vPFL}, {sr4(S_TMP)}, s{sT0} offen
            s_branch k_pf_d_{tg}
            """)
            a.label(f"k_pf_q_{tg}")
            a(f"""
            s_add_u32 s{sT0}, s{sT0}, {128 * 2688}
            buffer_load_dwordx4 {vr(PFR+4, 4)}, v{vL16}, {sr4(S_B0)}, s{sT0} offen
            """)
            a.label(f"k_pf_d_{tg}")
            vm.add(("PF",)); vm.add(("PF",))
        if "nocp" not in OPT:
            a(f"""
            s_cmp_ge_u32 s{sI32}, 5
            s_cbranch_scc1 k_nocp_{tg}
            s_lshl_b32 s{sT0}, s{sI32}, 3
            s_add_u32 s{sT0}, s{sT0}, s{sW}
            s_lshl_b32 s{sT0}, s{sT0}, 10
            v_add_u32 v{vT0}, s{sT0}, v{vL16}
            v_min_u32 v{vT0}, k_end-{KNAME}-12, v{vT0}
            s_getpc_b64 s[{sSC}:{sSC+1}]
            """)
            a.label(f"k_pc_{tg}")
            a(f"""
            s_sub_u32 s{sSC}, s{sSC}, k_pc_{tg}-{KNAME}
            s_subb_u32 s{sSC+1}, s{sSC+1}, 0
            global_load_dwordx4 {vr(ACC+76, 4)}, v{vT0}, s[{sSC}:{sSC+1}]
            """)
            a.label(f"k_nocp_{tg}")
        a(f"""
        s_and_b32 s{sR}, s{sW}, 3
        s_lshr_b32 s{sGRP}, s{sW}, 2
        s_lshl_b32 s{sTILE}, s{sMI}, 2
        s_add_u32 s{sTILE}, s{sTILE}, s{sR}
        v_and_b32 v{vT0}, 31, v{vLane}
        v_lshrrev_b32 v{vT1}, 5, v{vLane}
        v_bfe_u32 v{vT2}, v{vLane}, 1, 3
        v_xor_b32 v{vT2}, v{vT2}, v{vT1}
        s_lshl_b32 s{sT0}, s{sR}, 12
        v_lshlrev_b32 v{vT3}, 7, v{vT0}
        v_lshl_add_u32 v{vT3}, v{vT2}, 4, v{vT3}
        v_add_u32 v{vAX}, s{sT0}, v{vT3}
        v_xor_b32 v{vAX+1}, 32, v{vAX}
        v_xor_b32 v{vAX+2}, 64, v{vAX}
        v_xor_b32 v{vAX+3}, 96, v{vAX}
        v_bfe_u32 v{vN}, v{vLane}, 4, 1
        v_bfe_u32 v{vR4}, v{vLane}, 2, 2
        v_and_b32 v{vC}, 3, v{vLane}
        v_lshl_add_u32 v{vRow}, v{vT1}, 3, v{vR4}
        v_and_b32 v{vT2}, 2, v{vR4}
        v_xor_b32 v{vT2}, v{vT2}, v{vN}
        s_lshl_b32 s{sT0}, s{sGRP}, 1
        v_xor_b32 v{vT2}, s{sT0}, v{vT2}
        v_lshlrev_b32 v{vT3}, 7, v{vRow}
        v_lshl_add_u32 v{vT3}, v{vT2}, 5, v{vT3}
        v_lshl_add_u32 v{vT3}, v{vC}, 3, v{vT3}
        v_add_u32 v{vAW}, 16384, v{vT3}
        s_mov_b32 s{sNL2E}, {f32bits(-LOG2E):#x}
        """)

    def flag_addr(vtype, vfla, vfqo):
        t0, t1, t2, t3 = vN, vR4, vC, vRow
        o = L(f"""
        s_lshl_b32 s{sHEAD}, s{sC8}, 1
        s_and_b32 s{sT2}, s{sI32}, 1
        s_add_u32 s{sHEAD}, s{sHEAD}, s{sT2}
        s_lshr_b32 s{sQB}, s{sI32}, 1
        s_lshl_b32 s{sMT}, s{sC8}, 2
        s_and_b32 s{sT2}, s{sI32}, 3
        s_add_u32 s{sMT}, s{sMT}, s{sT2}
        s_lshr_b32 s{sNT}, s{sI32}, 2
        s_mul_i32 s{sP0}, s{sHEAD}, 7
        s_lshr_b32 s{sP0}, s{sP0}, 1
        s_lshl_b32 s{sFQB}, s{sHEAD}, 12
        s_add_u32 s{sFQB}, s{sFQB}, {FQ}
        s_lshr_b32 s{sT1}, s{sQB}, 2
        s_lshl_b32 s{sT1}, s{sT1}, 7
        s_and_b32 s{sT2}, s{sQB}, 3
        s_lshl_b32 s{sT2}, s{sT2}, 2
        s_add_u32 s{sT1}, s{sT1}, s{sT2}
        s_add_u32 s{sT1}, s{sT1}, 2048
        v_lshrrev_b32 v{t0}, 2, v{vLane}
        v_and_b32 v{t1}, 3, v{vLane}
        v_lshlrev_b32 v{t1}, 2, v{t1}
        v_lshl_add_u32 v{vfla}, v{t0}, 7, v{t1}
        v_and_b32 v{t0}, 1, v{vLane}
        v_lshl_add_u32 v{vfla+1}, v{t0}, 9, s{sT1}
        v_and_b32 v{t0}, 15, v{vLane}
        v_lshrrev_b32 v{t1}, 4, v{vLane}
        v_lshlrev_b32 v{t3}, 12, v{t0}
        v_lshl_add_u32 v{t3}, v{t1}, 9, v{t3}
        s_lshr_b32 s{sT1}, s{sMI}, 2
        s_lshl_b32 s{sT1}, s{sT1}, 7
        s_and_b32 s{sT2}, s{sMI}, 3
        s_lshl_b32 s{sT2}, s{sT2}, 2
        s_add_u32 s{sT1}, s{sT1}, s{sT2}
        """)
        if not vtype:
            o += L(f"""
            s_add_u32 s{sT2}, s{sJ}, 1
            s_lshr_b32 s{sT2}, s{sT2}, 3
            v_mul_u32_u24 v{t2}, 7, v{t0}
            v_lshrrev_b32 v{t2}, 1, v{t2}
            v_mad_u32_u24 v{t2}, v{t1}, 3, v{t2}
            v_lshrrev_b32 v{t2}, 3, v{t2}
            v_lshrrev_b32 v{t1}, 1, v{t1}
            v_lshl_add_u32 v{t2}, v{t1}, 6, v{t2}
            v_mad_u32_u24 v{t2}, s{sT2}, 7, v{t2}
            v_cmp_eq_u32 vcc, s{sJ}, v{t2}
            s_lshl_b32 s{sT2}, s{sT2}, 11
            s_sub_u32 s{sT1}, s{sT1}, s{sT2}
            s_add_u32 s{sT1}, s{sT1}, 2048
            """)
        else:
            o += L(f"""
            v_add_u32 v{t2}, 14, v{t1}
            v_cmp_eq_u32 vcc, s{sJ}, v{t2}
            s_add_u32 s{sT1}, s{sT1}, 1024
            """)
        o += L(f"""
        v_add_u32 v{t3}, s{sT1}, v{t3}
        v_mov_b32 v{t0}, {OOB}
        v_cndmask_b32 v{vfqo}, v{t0}, v{t3}, vcc
        v_cmp_eq_u32 vcc, 0, v{vLane}
        s_lshr_b32 s{sFHO}, s{sTILE}, 1
        s_lshl_b32 s{sFHO}, s{sFHO}, 4
        v_cndmask_b32 v{vF1}, v{t0}, v{vLane}, vcc
        s_add_u32 s{sFHO}, s{sFHO}, s{sJ}
        s_lshl_b32 s{sFHO}, s{sFHO}, 5
        s_and_b32 s{sT1}, s{sR}, 1
        s_lshl_b32 s{sT1}, s{sT1}, 1
        s_add_u32 s{sFHO}, s{sFHO}, s{sT1}
        s_add_u32 s{sFHO}, s{sFHO}, s{sGRP}
        s_lshl_b32 s{sFHO}, s{sFHO}, 2
        s_add_u32 s{sFHO}, s{sFHO}, {FH}
        s_lshl_b32 s{sM0}, s{sNT}, 7
        s_mul_i32 s{sWB}, s{sR}, {16 * 896}
        s_add_u32 s{sWB}, s{sWB}, s{sM0}
        s_lshl_b32 s{sM0}, s{sR}, 11
        """)
        return o

    def nonce_get(tag):
        a(f"""
        v_readfirstlane_b32 s{sNONCE}, v{vNON}
        v_lshlrev_b32 v{vT0}, 2, v{vLane}
        v_add_u32 v{vT0}, {CNT}, v{vT0}
        v_mov_b32 v{vT1}, 0
        s_cmp_lg_u32 s{sNONCE}, 0
        s_cbranch_scc1 k1_nonce_ok_{tag}
        """)
        a.label(f"k1_nonce_spin_{tag}")
        a(f"""
        buffer_load_dword v{vNON}, v{vT1}, {sr4(S_DBG)}, 0 offen{SC}
        s_waitcnt vmcnt(0)
        v_readfirstlane_b32 s{sNONCE}, v{vNON}
        s_sleep 4
        s_cmp_eq_u32 s{sNONCE}, 0
        s_cbranch_scc1 k1_nonce_spin_{tag}
        """)
        a.label(f"k1_nonce_ok_{tag}")
        a(f"ds_write_b32 v{vT0}, v{vT1}")

    def pf2():
        return (L(f"""
        s_cmp_lt_u32 s{sPFI}, 784
        s_cselect_b32 s{S_TMP}, s{P_WG}, s{P_WU}
        s_cselect_b32 s{S_TMP+1}, s{P_WG+1}, s{P_WU+1}
        s_cselect_b32 s{sT0}, 0, 784
        s_mov_b32 s{S_TMP+2}, {448 * 1792 * 2}
        s_sub_u32 s{sT0}, s{sPFI}, s{sT0}
        s_lshl_b32 s{sT0}, s{sT0}, 11
        buffer_load_dwordx4 {vr(PFR+8, 4)}, v{vPFL}, {sr4(S_TMP)}, s{sT0} offen offset:128
        """), ("PF",))

    def pf3():
        return (L(f"""
        s_cmp_lt_u32 s{sPFI}, 1568
        s_cselect_b32 s{S_TMP}, s{P_WD}, s{P_WO}
        s_cselect_b32 s{S_TMP+1}, s{P_WD+1}, s{P_WO+1}
        s_cselect_b32 s{sT0}, 0, 1568
        s_cselect_b32 s{S_TMP+2}, s{S_WD+2}, {448 * 448 * 2}
        s_sub_u32 s{sT0}, s{sPFI}, s{sT0}
        s_lshl_b32 s{sT0}, s{sT0}, 10
        buffer_load_dwordx4 {vr(PFR+12, 4)}, v{vL16}, {sr4(S_TMP)}, s{sT0} offen
        """), ("PF",))

    nonce_ld = ([f"v_mov_b32 v{vNON}, 0", f"buffer_load_dword v{vNON}, v{vNON}, {sr4(S_DBG)}, 0 offen{SC}"], ("N",))

    def wpref(i):
        ra = ring_addr(i % 13)
        return [f"s_add_u32 m0, s{sM0}, {ra}", f"s_add_u32 s{sT0}, s{sWB}, {wk_off(i) * 16 * 896}",
                f"buffer_load_dwordx4 v{vDW}, {sr4(S_WD)}, s{sT0} offen lds",
                f"s_add_u32 m0, s{sM0}, {ra + 1024}", f"s_add_u32 s{sT0}, s{sT0}, {8 * 896}",
                f"buffer_load_dwordx4 v{vDW}, {sr4(S_WD)}, s{sT0} offen lds"]

    abase = [0]

    def set_base(nb, regs):
        out = []
        if nb != abase[0]:
            d = nb - abase[0]
            for r in regs:
                out.append(f"v_add_u32 v{r}, {d}, v{r}" if d > 0 else f"v_subrev_u32 v{r}, {-d}, v{r}")
            abase[0] = nb
        return out

    def emit(x):
        if isinstance(x, tuple):
            a(x[1]); vm.add((x[0],))
        else:
            a(x)

    vm = VM()
    cnts = lambda t: {"A": 5, "B": 2}[t[0]] if t[0] in ("A", "B") else vm.q.count(t)
    a(f"""
    s_lshl_b32 s{sT0}, s{sJ}, 7
    v_add_u32 v{vDB0}, s{sT0}, v{vDB0}
    v_mul_u32_u24 v{vDG}, 3584, v{vT0}
    s_lshl_b32 s{sT0}, s{sJ}, 8
    v_add3_u32 v{vDG}, v{vDG}, v{vT3}, s{sT0}
    v_xor_b32 v{vDU}, 32, v{vDG}
    s_mov_b32 s{S_G+2}, {448 * 1792 * 2}
    s_mov_b32 s{S_U+2}, {448 * 1792 * 2}
    s_waitcnt lgkmcnt(0)
    s_mov_b64 s[{S_X}:{S_X+1}], s[{P_X}:{P_X+1}]
    s_mov_b64 s[{S_B0}:{S_B0+1}], s[{P_WQKV}:{P_WQKV+1}]
    s_mov_b64 s[{S_G}:{S_G+1}], s[{P_WG}:{P_WG+1}]
    s_mov_b64 s[{S_U}:{S_U+1}], s[{P_WU}:{P_WU+1}]
    """)

    def fA(st):
        b = (st % 4) * SLOT
        g = [dma(sMX, b, vDX0, S_X, st * 128), dma(sMX, b + 1024, vDX1, S_X, st * 128),
             dma(sMB, b, vDB0, S_B0, st * 64 * 2688), dma(sMB, b + 8192, vDG, S_G, st * 64 * 3584),
             dma(sMB, b + 16384, vDU, S_U, st * 64 * 3584)]
        return [(x, ("A", st)) for x in g]

    def bslot(sb):
        return ((3 + sb // 2) % 4) * SLOT + (sb % 2) * 16384

    def fB(sb):
        b = bslot(sb) - 16384
        g = [dma(sMB, b, vDG, S_G, sb * 64 * 3584 + 128), dma(sMB, b + 8192, vDU, S_U, sb * 64 * 3584 + 128)]
        return [(x, ("B", sb)) for x in g]

    for g in fA(0):
        emit_group(g)
    a("s_barrier")
    for g in fA(1):
        emit_group(g)
    common_setup2("f")
    a(f"""
    v_lshl_add_u32 v{vAW+1}, v{vN}, 13, v{vT3}
    v_add_u32 v{vAW+1}, {16384 + 8192}, v{vAW+1}
    v_xor_b32 v{vAW+2}, 32, v{vAW+1}
    s_cmp_ge_u32 s{sJ}, 7
    s_cselect_b32 s{sT1}, {KF - 7 * 4096}, {QF}
    s_cselect_b32 s{sSC}, 1.0, {f32bits(28 ** -0.5 * LOG2E):#x}
    s_lshl_b32 s{sT2}, s{sJ}, 12
    s_add_u32 s{sT1}, s{sT1}, s{sT2}
    s_lshl_b32 s{sT2}, s{sGRP}, 11
    s_add_u32 s{sT1}, s{sT1}, s{sT2}
    s_mul_i32 s{sQKO}, s{sTILE}, {TQ}
    s_add_u32 s{sQKO}, s{sQKO}, s{sT1}
    s_mul_i32 s{sHOFF}, s{sTILE}, 112
    s_lshl_b32 s{sT1}, s{sJ}, 3
    s_add_u32 s{sHOFF}, s{sHOFF}, s{sT1}
    s_lshl_b32 s{sT1}, s{sGRP}, 1
    s_add_u32 s{sHOFF}, s{sHOFF}, s{sT1}
    s_lshl_b32 s{sHOFF}, s{sHOFF}, 10
    s_add_u32 s{sHOFF}, s{sHOFF}, {HF}
    s_add_u32 s{sHOFF2}, s{sHOFF}, 4096
    """)
    WA = [WF, WF + 12, ACC + 48]
    NB = 4
    WB = [WF + 24, WF + 16, WF + 8, WF]

    def readsA(ks):
        st, s = ks // 4, ks % 4
        slot = st % 4
        out = set_base((slot // 2) * 2 * SLOT, [vAX, vAX+1, vAX+2, vAX+3, vAW, vAW+1, vAW+2])
        off = (slot % 2) * SLOT
        f = WA[ks % 3]
        out.append(f"ds_read_b128 {vr(X+4*ks, 4)}, v{vAX+s} offset:{off}")
        for t in range(3):
            for q in range(2):
                out.append(f"ds_read_b64_tr_b16 {vr(f+4*t+2*q, 2)}, v{vAW+t} offset:{off + (16*s + 4*q) * 128}")
        return out

    def readsB(ks):
        sb, s = ks // 4, ks % 4
        b = bslot(sb)
        f = WB[ks % NB]
        b32 = b - b % 32768
        off = b - b32
        out = set_base(b32 - 24576, [vAW+1, vAW+2])
        for t in range(2):
            for q in range(2):
                out.append(f"ds_read_b64_tr_b16 {vr(f+4*t+2*q, 2)}, v{vAW+1+t} offset:{off + (16*s + 4*q) * 128}")
        return out

    def epi_ffn(acc, ko, dst=None):
        g, u = acc, acc + 8
        dst = g if dst is None else dst
        o = []
        for i in range(8):
            o.append(f"v_mul_f32 v{u+i}, v{g+i}, v{u+i}")
            o.append(f"v_mul_f32 v{g+i}, s{sNL2E}, v{g+i}")
        for i in range(8):
            o.append(f"v_exp_f32 v{g+i}, v{g+i}")
        for i in range(8):
            o.append(f"v_add_f32 v{g+i}, 1.0, v{g+i}")
        for i in range(8):
            o.append(f"v_rcp_f32 v{g+i}, v{g+i}")
        for i in range(8):
            o.append(f"v_mul_f32 v{u+i}, v{u+i}, v{g+i}")
        for i in range(4):
            o.append(f"v_cvt_pk_bf16_f32 v{dst+i}, v{u+2*i}, v{u+2*i+1}")
        so, off = (sHOFF, ko) if ko < 4 else (sHOFF2, ko - 4)
        o.append(("H", f"buffer_store_dwordx4 {vr(dst, 4)}, v{vL16}, {sr4(S_WS)}, s{so} offen offset:{1024*off}{SC}"))
        return o

    def epi_qk():
        o = []
        for i in range(8):
            o.append(f"v_mul_f32 v{ACC+2*i}, s{sSC}, v{ACC+2*i}")
            o.append(f"v_mul_f32 v{ACC+2*i+1}, s{sSC}, v{ACC+2*i+1}")
            o.append(f"v_cvt_pk_bf16_f32 v{ACC+i}, v{ACC+2*i}, v{ACC+2*i+1}")
        o.append("s_nop 1")
        for hh in range(2):
            b = ACC + 4 * hh
            o.append(f"v_permlane32_swap_b32 v{b}, v{b+2}")
            o.append(f"v_permlane32_swap_b32 v{b+1}, v{b+3}")
            o.append(("QK", f"buffer_store_dwordx4 {vr(b, 4)}, v{vL16}, {sr4(S_WS)}, s{sQKO} offen offset:{1024*hh}{SC}"))
        return o

    abase[0] = 0
    a(f"s_waitcnt vmcnt({vm.wait({('A', 0)}, cnts)})\ns_barrier")
    stamp(a, "p1_first")
    for ks in range(2):
        for r in readsA(ks):
            a(r)
    pend = fA(2) + fA(3)
    vFQf = vST
    fillA = flag_addr(False, vFLA, vFQf)
    for ks in range(28):
        st, s = ks // 4, ks % 4
        f = WA[ks % 3]
        m = [f"{MFMA} {vr(ACC+16*t, 16)}, {vr(f+4*t, 4)}, {vr(X+4*ks, 4)}, {'0' if ks == 0 else vr(ACC+16*t, 16)}" for t in range(3)]
        if s == 2:
            need = {("A", st + 1)} if st < 6 else {("B", 0), ("B", 1)}
            a(f"s_waitcnt vmcnt({vm.wait(need, cnts)}) lgkmcnt(0)\ns_barrier")
            stamp(a, f"p1_a{st}")
            if st + 4 <= 6:
                pend += fA(st + 4)
            else:
                i0 = 2 * (st - 3)
                pend += fB(i0) + (fB(i0 + 1) if i0 + 1 < 7 else [])
            if st == 2:
                pend.append(nonce_ld)
            if "nopf" not in OPT and st == PF2_ST: pend.append(pf2())
            if "nopf" not in OPT and st == PF3_ST: pend.append(pf3())
        elif ks < 27:
            a("s_waitcnt lgkmcnt(7)")
        else:
            a("s_waitcnt lgkmcnt(4)")
        r = readsA(ks + 2) if ks + 2 < 28 else readsB(ks + 2 - 28)
        k = len(r) - 4 if ks + 2 < 28 else len(r) - 2
        a(m[0])
        for x in r[:k]:
            a(x)
        a(m[1])
        for x in r[k:]:
            a(x)
        a(m[2])
        if ks >= 16:
            assert vm.q.count(("A", 6)) == 5
            for _ in range(6):
                if fillA: a(fillA.pop(0))
        nd = 2 if (len(pend) > 4 or st < 1) else 1
        for _ in range(nd):
            if pend:
                emit_group(pend.pop(0))
    assert not fillA
    stamp(a, "p1_aend")
    for x in readsB(2):
        a(x)
    ea, eb = epi_ffn(ACC + 16, 0, X + 16), epi_ffn(ACC + 32, 1, X + 20)
    fillq = ["s_nop 3"] + epi_qk()
    fill = ea + eb
    wpi = 0
    for ks in range(28):
        f = WB[ks % NB]
        m = [f"{MFMA} {vr(ACC+48+16*t, 16)}, {vr(f+4*t, 4)}, {vr(X+4*ks, 4)}, {'0' if ks == 0 else vr(ACC+48+16*t, 16)}" for t in range(2)]
        nxt = ks + NB - 1
        if ks in (5, QKB, 17):
            need = {5: {("B", 2), ("B", 3), ("N",)}, QKB: {("B", 4), ("B", 5), ("B", 6), ("QK",)}, 17: set()}[ks]
            if ks == QKB: assert vm.q.count(("QK",)) == 2 and QKB <= 13
            if need: a(f"s_waitcnt vmcnt({vm.wait(need, cnts)})")
            if ks == 5:
                nonce_get("f")
            a("s_barrier")
            stamp(a, {5: "p1_b2", QKB: "p1_b4", 17: "p1_b5"}[ks])
            if ks == QKB:
                a(f"""
                s_cmp_lg_u32 s{sW}, 7
                s_cbranch_scc1 k1_noflag_f
                s_mov_b32 s{sT0}, {FQ}
                buffer_store_dword v{vNON}, v{vFQf}, {sr4(S_WS)}, s{sT0} offen{SC}
                """)
                a.label("k1_noflag_f")
        a(f"s_waitcnt lgkmcnt({min(NB - 2, 27 - ks) * 4})")
        r = readsB(nxt) if nxt < 28 else []

        def dofill():
            if ks < 1: return
            if fillq:
                for _ in range(5):
                    if fillq: emit(fillq.pop(0))
            else:
                for _ in range(FPER):
                    if fill and isinstance(fill[0], tuple) and ks < HA_ST and len(fill) > 1:
                        fill[0], fill[1] = fill[1], fill[0]
                    if fill and not (isinstance(fill[0], tuple) and ks < HA_ST): emit(fill.pop(0))
        a(m[0])
        for x in r[:len(r) - 2]:
            a(x)
        if pend:
            emit_group(pend.pop(0))
        dofill()
        a(m[1])
        for x in r[len(r) - 2:]:
            a(x)
        dofill()
        if ks == EARLY_P:
            a(f"""
            s_cmp_lg_u32 s{sW}, 0
            s_cbranch_scc1 k1_nopoll
            buffer_load_dword v{vPOL}, v{vFLA}, {sr4(S_WS)}, s{sFQB} offen{SC}
            buffer_load_dword v{vPOL+1}, v{vFLA+1}, {sr4(S_WS)}, s{sFQB} offen{SC}
            """)
            a.label("k1_nopoll")
        if ks >= 17 and wpi < 9:
            a(f"s_cmp_eq_u32 s{sGRP}, 0\ns_cbranch_scc1 k1_nowp{ks}")
            for x in wpref(wpi):
                a(x)
            wpi += 1
            a.label(f"k1_nowp{ks}")
    assert not fill and not pend and wpi == 9
    a(f"""
    s_cmp_lg_u32 s{sW}, 0
    s_cbranch_scc1 k1_nochk
    s_waitcnt vmcnt(0)
    """)
    poll_cmp(a, 2, vPOL)
    a(f"""
    s_cmp_eq_u64 vcc, 0
    s_cselect_b32 s{sT0}, 1, 0
    """)
    lds_set(a, 4, f"s{sT0}", vT0)
    a("s_waitcnt lgkmcnt(0)")
    a.label("k1_nochk")
    a(f"""
    s_barrier
    s_mov_b32 s{sOK}, 0
    s_cmp_ge_u32 s{sW}, 4
    s_cbranch_scc1 k1_epi
    v_mov_b32 v{vT0}, {CNT + 4}
    ds_read_b32 v{vT1}, v{vT0}
    s_waitcnt lgkmcnt(0)
    v_readfirstlane_b32 s{sOK}, v{vT1}
    s_cmp_eq_u32 s{sOK}, 1
    s_cbranch_scc1 k1_early
    s_cmp_lg_u32 s{sW}, 0
    s_cbranch_scc1 k1_epi
    buffer_load_dword v{vPOL}, v{vFLA}, {sr4(S_WS)}, s{sFQB} offen{SC}
    buffer_load_dword v{vPOL+1}, v{vFLA+1}, {sr4(S_WS)}, s{sFQB} offen{SC}
    s_branch k1_epi
    """)
    a.label("k1_early")
    stamp(a, "x_go")
    att_loads(a)
    a.label("k1_epi")
    a("s_nop 7")
    stamp(a, "p1_bend")
    for x in epi_ffn(ACC + 48, 4) + epi_ffn(ACC + 64, 5):
        emit(x)
    stamp(a, "p1_end")
    a(f"""
    s_cmp_ge_u32 s{sW}, 4
    s_cbranch_scc1 gemm_role
    s_cmp_eq_u32 s{sOK}, 1
    s_cbranch_scc1 att_main
    s_cmp_lg_u32 s{sW}, 0
    s_cbranch_scc1 aq_lw
    s_waitcnt vmcnt(2)
    """)
    poll_cmp(a, 2, vPOL)
    a(f"""
    s_cmp_eq_u64 vcc, 0
    s_cbranch_scc1 aq_ok
    s_branch att_spin
    """)

    a.label("k1_v")
    vm = VM()
    cntv = lambda t: {"A": 5, "B": 1}[t[0]] if t[0] in ("A", "B") else vm.q.count(t)
    sBST = sQKO
    a(f"""
    s_cmp_eq_u32 s{sJ}, 14
    s_cselect_b32 s{sT0}, 0, 512
    s_add_u32 s{sT0}, s{sT0}, {896 * 2}
    v_add_u32 v{vDB0}, s{sT0}, v{vDB0}
    v_lshlrev_b32 v{vDU}, 4, v{vT2}
    v_add_u32 v{vDG}, 384, v{vDB0}
    s_cmp_eq_u32 s{sJ}, 14
    s_cselect_b64 vcc, -1, 0
    s_cselect_b32 s{S_U+2}, s{S_B0+2}, {448 * 2}
    s_cselect_b32 s{sBST}, {64 * 2688}, 64
    s_cselect_b32 s{sT1}, 0, 64
    s_add_u32 s{sBST}, s{sBST}, s{sT1}
    v_cndmask_b32 v{vDU}, v{vDU}, v{vDG}, vcc
    s_waitcnt lgkmcnt(0)
    s_mov_b64 s[{S_X}:{S_X+1}], s[{P_X}:{P_X+1}]
    s_mov_b64 s[{S_B0}:{S_B0+1}], s[{P_WQKV}:{P_WQKV+1}]
    s_cmp_eq_u32 s{sJ}, 14
    s_cselect_b64 s[{S_U}:{S_U+1}], s[{P_WQKV}:{P_WQKV+1}], s[{P_GW}:{P_GW+1}]
    """)

    def vA(st):
        b = (st % 4) * SLOT
        g = [dma(sMX, b, vDX0, S_X, st * 128), dma(sMX, b + 1024, vDX1, S_X, st * 128)]
        for bi in range(3):
            g.append(dma(sMB, b + 8192 * bi, vDB0, S_B0, st * 64 * 2688 + 128 * bi))
        return [(x, ("A", st)) for x in g]

    def vbslot(sb):
        return 3 * SLOT + sb * 8192 if sb < 4 else (sb - 4) * 8192

    def vB(sb):
        return [([f"s_add_u32 m0, s{sMB}, {(vbslot(sb) - 16384) & 0xffffffff}", f"s_mul_i32 s{sSO}, s{sBST}, {sb}",
                  f"buffer_load_dwordx4 v{vDU}, {sr4(S_U)}, s{sSO} offen lds"], ("B", sb))]

    for g in vA(0):
        emit_group(g)
    a("s_barrier")
    for g in vA(1):
        emit_group(g)
    common_setup2("v")
    vAZ = vAW + 3
    a(f"""
    v_add_u32 v{vAW+1}, 8192, v{vAW}
    v_add_u32 v{vAW+2}, 16384, v{vAW}
    v_lshlrev_b32 v{vAZ}, 4, v{vT1}
    v_add_u32 v{vAZ}, s{sMB}, v{vAZ}
    s_cmp_eq_u32 s{sJ}, 14
    s_cselect_b32 s{sT1}, 0, 4096
    s_lshl_b32 s{sT2}, s{sGRP}, 9
    s_add_u32 s{sT1}, s{sT1}, s{sT2}
    s_mul_i32 s{sHOFF}, s{sTILE}, {TQ}
    s_add_u32 s{sHOFF}, s{sHOFF}, s{sT1}
    s_add_u32 s{sHOFF}, s{sHOFF}, {VF}
    s_add_u32 s{sHOFF2}, s{sHOFF}, 14336
    v_mul_u32_u24 v{vST}, {7168 - 512}, v{vT1}
    v_add_u32 v{vST}, v{vST}, v{vL16}
    """)

    def readsVA(ks):
        st, s = ks // 4, ks % 4
        slot = st % 4
        out = set_base((slot // 2) * 2 * SLOT, [vAX, vAX+1, vAX+2, vAX+3, vAW, vAW+1, vAW+2, vAZ])
        off = (slot % 2) * SLOT
        f = WA[ks % 3]
        out.append(f"ds_read_b128 {vr(X+4*ks, 4)}, v{vAX+s} offset:{off}")
        for t in range(3):
            for q in range(2):
                out.append(f"ds_read_b64_tr_b16 {vr(f+4*t+2*q, 2)}, v{vAW+t} offset:{off + (16*s + 4*q) * 128}")
        return out

    NBV = 6
    WBV = [WF + 24, WF + 28, WF + 16, WF + 20, WF + 12, WF + 8]

    def readsVB(ks, z):
        sb, s = ks // 4, ks % 4
        b = vbslot(sb)
        f = WBV[ks % NBV]
        nb = (3 * SLOT if sb < 4 else 0)
        out = set_base(nb - 16384, [vAZ if z else vAW])
        off = b - nb
        if z:
            out.append(f"ds_read_b128 {vr(f, 4)}, v{vAZ} offset:{off + 32*s}")
        else:
            for q in range(2):
                out.append(f"ds_read_b64_tr_b16 {vr(f+2*q, 2)}, v{vAW} offset:{off + (16*s + 4*q) * 128}")
        return out

    def epi_v(acc, bi):
        o = [f"v_cvt_pk_bf16_f32 v{acc+i}, v{acc+2*i}, v{acc+2*i+1}" for i in range(8)]
        o.append(f"buffer_store_dwordx4 {vr(acc, 4)}, v{vST}, {sr4(S_WS)}, s{sHOFF} offen offset:{1024*bi}{SC}")
        o.append(f"buffer_store_dwordx4 {vr(acc+4, 4)}, v{vST}, {sr4(S_WS)}, s{sHOFF2} offen offset:{1024*bi}{SC}")
        return o

    abase[0] = 0
    a(f"s_waitcnt vmcnt({vm.wait({('A', 0)}, cntv)})\ns_barrier")
    stamp(a, "p1_first")
    for ks in range(2):
        for r in readsVA(ks):
            a(r)
    pend = vA(2) + vA(3)
    fillA = flag_addr(True, vFLA, vDG)
    for ks in range(28):
        st, s = ks // 4, ks % 4
        f = WA[ks % 3]
        m = [f"{MFMA} {vr(ACC+16*t, 16)}, {vr(X+4*ks, 4)}, {vr(f+4*t, 4)}, {'0' if ks == 0 else vr(ACC+16*t, 16)}" for t in range(3)]
        if s == 2:
            need = {("A", st + 1)} if st < 6 else {("B", x) for x in range(7)} | {("N",)}
            a(f"s_waitcnt vmcnt({vm.wait(need, cntv)}) lgkmcnt(0)")
            if st == 6:
                nonce_get("v")
            a("s_barrier")
            if st + 4 <= 6:
                pend += vA(st + 4)
            elif st == 3:
                pend += vB(0) + vB(1) + vB(2) + vB(3)
            elif st == 4:
                pend += vB(4) + vB(5) + vB(6)
            if st == 2:
                pend.append(nonce_ld)
            if "nopf" not in OPT and st == PF2_ST: pend.append(pf2())
            if "nopf" not in OPT and st == PF3_ST: pend.append(pf3())
        elif ks < 27:
            a("s_waitcnt lgkmcnt(7)")
        r = readsVA(ks + 2) if ks + 2 < 28 else []
        k = max(len(r) - 4, 0)
        a(m[0])
        for x in r[:k]:
            a(x)
        a(m[1])
        for x in r[k:]:
            a(x)
        a(m[2])
        if ks >= 16:
            assert vm.q.count(("A", 6)) == 5
            for _ in range(6):
                if fillA: a(fillA.pop(0))
        nd = 2 if (len(pend) > 4 or st < 1) else 1
        for _ in range(nd):
            if pend:
                emit_group(pend.pop(0))
    assert not fillA and not pend
    stamp(a, "p1_aend")
    a(f"s_cmp_eq_u32 s{sJ}, 15\ns_cbranch_scc1 k1_vz")
    ab0 = abase[0]
    for z in range(2):
        if z:
            a.label("k1_vz")
        abase[0] = ab0
        nrd = 1 if z else 2
        for ks in range(NBV - 1):
            for x in readsVB(ks, z):
                a(x)
        fill = ["s_nop 1"] + epi_v(ACC, 0) + epi_v(ACC + 16, 1) + epi_v(ACC + 32, 2)
        VB = ACC + 48
        for ks in range(28):
            f = WBV[ks % NBV]
            c = vr(VB, 16)
            ops = f"{vr(f, 4)}, {vr(X+4*ks, 4)}" if z else f"{vr(X+4*ks, 4)}, {vr(f, 4)}"
            a(f"s_waitcnt lgkmcnt({min(NBV - 2, 27 - ks) * nrd})")
            a(f"{MFMA} {c}, {ops}, {'0' if ks == 0 else c}")
            if ks + NBV - 1 < 28:
                for x in readsVB(ks + NBV - 1, z):
                    a(x)
            for _ in range(4):
                if fill: a(fill.pop(0))
        assert not fill
        t = WF
        if z:
            a(f"""
            s_nop 7
            s_nop 3
            v_mul_f32 v{t}, s{sNL2E}, v{VB}
            v_exp_f32 v{t}, v{t}
            v_and_b32 v{t+1}, 31, v{vLane}
            v_add_f32 v{t}, 1.0, v{t}
            v_rcp_f32 v{t}, v{t}
            v_lshlrev_b32 v{t+1}, 2, v{t+1}
            s_lshl_b32 s{sT0}, s{sTILE}, 7
            s_add_u32 s{sT0}, s{sT0}, {GF}
            buffer_store_dword v{t}, v{t+1}, {sr4(S_WS)}, s{sT0} offen{SC}
            """)
        else:
            a("s_nop 7\ns_nop 3")
            for x in epi_v(VB, 3):
                a(x)
            a("s_branch k1_v_fin")
    a.label("k1_v_fin")
    stamp(a, "p1_bend")
    a(f"""
    s_waitcnt vmcnt(0)
    s_barrier
    """)
    stamp(a, "p1_end")
    a(f"""
    s_cmp_lg_u32 s{sW}, 7
    s_cbranch_scc1 k1_noflag_v
    s_mov_b32 s{sT0}, {FQ}
    buffer_store_dword v{vNON}, v{vDG}, {sr4(S_WS)}, s{sT0} offen{SC}
    """)
    a.label("k1_noflag_v")
    a(flag1(a, sFHO))
    a(f"""
    s_cmp_lt_u32 s{sW}, 4
    s_cbranch_scc1 att_spin
    s_add_u32 s{sFHO}, s{sFHO}, {FHS}
    """)
    a(flag1(a, sFHO))
    a("s_endpgm")
    a.label("gemm_role")
    gen_gemm(a, wpref)
    gen_attention(a)
    a.label("k_end")
    a("s_endpgm")
    return a.text()


vAWr = 16
RB = [0, 57344, 114688]


def wtr_setup(a):
    a(f"""
    v_bfe_u32 v{vT0}, v{vLane}, 4, 1
    v_bfe_u32 v{vT1}, v{vLane}, 2, 2
    v_and_b32 v{vT2}, 2, v{vT1}
    v_xor_b32 v{vT2}, v{vT2}, v{vT0}
    v_xor_b32 v{vT2}, s{sKQ}, v{vT2}
    v_lshrrev_b32 v{vT3}, 5, v{vLane}
    v_lshl_add_u32 v{vT3}, v{vT3}, 2, v{vT1}
    v_lshlrev_b32 v{vT3}, 7, v{vT3}
    v_lshl_add_u32 v{vT3}, v{vT2}, 5, v{vT3}
    v_and_b32 v{vT2}, 3, v{vLane}
    v_lshl_add_u32 v{vT3}, v{vT2}, 3, v{vT3}
    v_add_u32 v{vAWr}, s{sM0}, v{vT3}
    v_xor_b32 v{vAWr+1}, 64, v{vAWr}
    v_add_u32 v{vAWr+2}, {RB[1]}, v{vAWr}
    v_add_u32 v{vAWr+3}, {RB[1]}, v{vAWr+1}
    v_add_u32 v{vAWr+4}, {RB[2]}, v{vAWr}
    v_add_u32 v{vAWr+5}, {RB[2]}, v{vAWr+1}
    """)


def wtr_reads(slot, dst):
    ra = ring_addr(slot)
    bi = max(i for i in range(3) if RB[i] <= ra)
    out = []
    for T in range(2):
        for q in range(2):
            out.append(f"ds_read_b64_tr_b16 {vr(dst+4*T+2*q, 2)}, v{vAWr+2*bi+T} offset:{ra - RB[bi] + q*1024}")
    return out


def bcast_poll(a, tag, leader, addrs, soff, vtmp, sleep, ldsoff, pre=None, lsleep=2):
    a(f"s_cmp_lg_u32 s{sW}, {leader}\ns_cbranch_scc1 {tag}_lw")
    if pre:
        pre()
    poll(a, addrs, soff, vtmp, sleep)
    a.label(f"{tag}_ok")
    lds_set(a, ldsoff, 1, vT0)
    a(f"s_branch {tag}_go")
    a.label(f"{tag}_lw")
    lds_wait(a, ldsoff, vT0, "eq1", lsleep)
    a.label(f"{tag}_go")


def gen_gemm(a, wpref):
    ACC = 64
    ACT = 128
    WFB = [240, 248]
    vA1, vG0, vG1, vFl = 22, 23, 24, 25
    sA0, sB0w, sFH2 = 45, 46, 47
    DA = GDA
    stamp(a, "x_role")
    a("s_waitcnt vmcnt(2)")
    a(flag1(a, sFHO))
    for i in range(9, 13):
        for x in wpref(i):
            a(x)
    wtr_setup(a)
    a(f"s_add_u32 s{sFHO}, s{sFHO}, {FHS}\ns_waitcnt vmcnt(9)")
    a(flag1(a, sFHO))
    srd(a, S_WO, P_WO, 448 * 448 * 2)
    srd(a, S_OUT, P_OUT, 2048 * 448 * 2)
    a(f"""
    v_add_u32 v{vA1}, {112 * 1024}, v{vL16}
    s_lshl_b32 s{sT1}, s{sMT}, 11
    s_add_u32 s{sT1}, s{sT1}, {FH}
    s_add_u32 s{sFH2}, s{sT1}, {FHS}
    s_mul_i32 s{sA0}, s{sMT}, 224
    s_add_u32 s{sA0}, s{sA0}, s{sKQ}
    s_lshl_b32 s{sA0}, s{sA0}, 10
    s_add_u32 s{sA0}, s{sA0}, {HF}
    s_mul_i32 s{sB0w}, s{sKQ}, {112 * 896}
    s_lshl_b32 s{sT0}, s{sNT}, 7
    s_add_u32 s{sB0w}, s{sB0w}, s{sT0}
    """)
    bcast_poll(a, "gA", 4, [vFLA], sT1, vG0, SLEEP_H, 8)
    stamp(a, "x_go"); stamp(a, "x_loop")
    vm = VM()
    for i in range(9, 13):
        vm.add(("w", i)); vm.add(("w", i))

    def act_loads(i):
        r = ACT + 8 * (i % DA)
        a(f"""
        s_add_u32 s{sT0}, s{sA0}, {wk_off(i) * 1024}
        buffer_load_dwordx4 {vr(r, 4)}, v{vL16}, {sr4(S_WS)}, s{sT0} offen{SC}
        buffer_load_dwordx4 {vr(r+4, 4)}, v{vA1}, {sr4(S_WS)}, s{sT0} offen{SC}
        """)
        vm.add(("a", i)); vm.add(("a", i))

    def w_loads(i):
        if i < 28:
            for x in wpref(i):
                a(x)
        else:
            ra = ring_addr(i % 13)
            off = (28 * ((i - 28) // 2) + 16 * ((i - 28) % 2)) * 896
            a(f"""
            s_add_u32 m0, s{sM0}, {ra}
            s_add_u32 s{sT0}, s{sB0w}, {off}
            buffer_load_dwordx4 v{vDW}, {sr4(S_WO)}, s{sT0} offen lds
            s_add_u32 m0, s{sM0}, {ra + 1024}
            s_add_u32 s{sT0}, s{sT0}, {8 * 896}
            buffer_load_dwordx4 v{vDW}, {sr4(S_WO)}, s{sT0} offen lds
            """)
        vm.add(("w", i)); vm.add(("w", i))

    for i in range(DA):
        act_loads(i)
    a(f"""
    v_and_b32 v{vT0}, 31, v{vLane}
    v_lshlrev_b32 v{vT0}, 2, v{vT0}
    s_lshl_b32 s{sT1}, s{sMT}, 8
    s_add_u32 s{sT1}, s{sT1}, {GF}
    buffer_load_dword v{vG0}, v{vT0}, {sr4(S_WS)}, s{sT1} offen{SC}
    buffer_load_dword v{vG1}, v{vT0}, {sr4(S_WS)}, s{sT1} offen offset:128{SC}
    """)
    vm.add(("g",)); vm.add(("g",))
    for x in wtr_reads(0, WFB[0]):
        a(x)
    for i in range(28):
        need = {("a", i)}
        if 9 <= i + 1 < 28:
            need.add(("w", i + 1))
        a(f"s_waitcnt vmcnt({vm.wait(need)}) lgkmcnt(0)")
        if i + 1 < 28:
            for x in wtr_reads((i + 1) % 13, WFB[(i + 1) % 2]):
                a(x)
        for mt in range(2):
            for T in range(2):
                c = vr(ACC + 32 * mt + 16 * T, 16)
                a(f"{MFMA} {c}, {vr(WFB[i%2]+4*T, 4)}, {vr(ACT+8*(i%DA)+4*mt, 4)}, {'0' if i == 0 else c}")
        if i + 13 < 36:
            w_loads(i + 13)
        nxt = i + DA
        if i == GB_AT:
            stamp(a, "g_b0")
            bcast_poll(a, "gB", 4, [vFLA], sFH2, vPOL, SLEEP_H, 12)
            stamp(a, "g_b1")
            for k in range(14, nxt + 1):
                act_loads(k)
        elif nxt < 28 and (nxt < 14 or i > GB_AT):
            act_loads(nxt)
    stamp(a, "x_lend")
    P3W, P3O = 128, 192
    a(f"""
    v_sub_f32 v{vG0}, 1.0, v{vG0}
    v_sub_f32 v{vG1}, 1.0, v{vG1}
    s_waitcnt vmcnt(0)
    """)
    for i in range(8):
        for x in wtr_reads((28 + i) % 13, P3W + 8 * i):
            a(x)
        a("s_waitcnt lgkmcnt(8)")
    for i in range(64):
        a(f"v_mul_f32 v{ACC+i}, v{ACC+i}, v{vG0 + i // 32}")
    vRW, vRD, vOUT = 26, 29, 30
    a(f"""
    v_mov_b32 v{vT0}, {CNT + 16}
    v_mov_b32 v{vT1}, 1
    s_waitcnt lgkmcnt(0)
    s_mov_b64 exec, 1
    ds_add_u32 v{vT0}, v{vT1}
    s_mov_b64 exec, -1
    s_lshl_b32 s{sT1}, s{sMT}, 10
    s_add_u32 s{sFH2}, s{sT1}, {FO}
    v_and_b32 v{vFl}, 31, v{vLane}
    v_mul_u32_u24 v{vOUT}, 896, v{vFl}
    v_and_b32 v{vFl}, 0x3ff, v{vFLA}
    v_lshrrev_b32 v{vT2}, 5, v{vLane}
    v_lshl_add_u32 v{vOUT}, v{vT2}, 4, v{vOUT}
    s_lshl_b32 s{sA0}, s{sMT}, 3
    s_add_u32 s{sA0}, s{sA0}, s{sKQ}
    s_lshl_b32 s{sA0}, s{sA0}, 13
    s_add_u32 s{sA0}, s{sA0}, {OF}
    s_add_u32 s{sB0w}, s{sA0}, 4096
    v_add_u32 v{vA1}, 32768, v{vL16}
    s_mul_i32 s{sT1}, s{sKQ}, 12288
    v_add_u32 v{vRD}, s{sT1}, v{vL16}
    """)
    for lp in range(1, 4):
        a(f"""
        s_xor_b32 s{sT1}, s{sKQ}, {lp}
        s_mul_i32 s{sT1}, s{sT1}, 12288
        v_add_u32 v{vRW+lp-1}, s{sT1}, v{vL16}
        """)
    a(f"""
    s_mul_i32 s{sT2}, s{sMT}, {64 * 896}
    s_lshl_b32 s{sT1}, s{sNT}, 7
    s_add_u32 s{sT2}, s{sT2}, s{sT1}
    s_lshl_b32 s{sT1}, s{sKQ}, 5
    s_add_u32 s{sT2}, s{sT2}, s{sT1}
    """)
    stamp(a, "p3_poll")

    def pre():
        a(f"v_mov_b32 v{vT0}, {CNT}")
        a.label("p3_pre")
        a(f"""
        ds_read_b32 v{vT1}, v{vT0}
        ds_read_b32 v{vT2}, v{vT0} offset:16
        s_waitcnt lgkmcnt(0)
        v_readfirstlane_b32 s{sT0}, v{vT1}
        v_readfirstlane_b32 s{sT1}, v{vT2}
        s_min_u32 s{sT0}, s{sT0}, 1
        s_add_u32 s{sT0}, s{sT0}, s{sT1}
        s_cmp_eq_u32 s{sT0}, 5
        s_cbranch_scc1 p3_pre_done
        s_sleep 2
        s_branch p3_pre
        """)
        a.label("p3_pre_done")
    bcast_poll(a, "p3", 4, [vFl], sFH2, vPOL, SLEEP_O, 20, pre=pre, lsleep=1)
    stamp(a, "p3_go")
    a("s_setprio 3")
    for i in range(8):
        so, off = (sA0, i) if i < 4 else (sB0w, i - 4)
        a(f"buffer_load_dwordx4 {vr(P3O+8*i, 4)}, v{vL16}, {sr4(S_WS)}, s{so} offen offset:{1024*off}{SC}")
        a(f"buffer_load_dwordx4 {vr(P3O+8*i+4, 4)}, v{vA1}, {sr4(S_WS)}, s{so} offen offset:{1024*off}{SC}")
    for i in range(8):
        for mt in range(2):
            a(f"s_waitcnt vmcnt({15 - 2*i - mt})")
            for T in range(2):
                c = vr(ACC + 32 * mt + 16 * T, 16)
                a(f"{MFMA} {c}, {vr(P3W+8*i+4*T, 4)}, {vr(P3O+8*i+4*mt, 4)}, {c}")
    stamp(a, "p3_mfma")
    a("s_nop 7\ns_nop 1")
    for mt in range(2):
        for lp in range(1, 4):
            for q in range(2):
                a(f"ds_write_b128 v{vRW+lp-1}, {vr(ACC+32*mt+8*lp+4*q, 4)} offset:{(lp-1)*4096 + mt*2048 + q*1024}")
    a("s_waitcnt lgkmcnt(0)\ns_barrier")
    stamp(a, "p3_b3")
    R = P3W
    for i in range(12):
        a(f"ds_read_b128 {vr(R+4*i, 4)}, v{vRD} offset:{1024*i}")
    for lp in range(3):
        a(f"s_waitcnt lgkmcnt({8 - 4*lp})")
        for mt in range(2):
            for i in range(8):
                a(f"v_add_f32 v{ACC+32*mt+i}, v{ACC+32*mt+i}, v{R+16*lp+8*mt+i}")
    t = P3O
    for mt in range(2):
        for i in range(4):
            a(f"v_cvt_pk_bf16_f32 v{t+4*mt+i}, v{ACC+32*mt+2*i}, v{ACC+32*mt+2*i+1}")
    a(f"""
    s_add_u32 s{sT1}, s{sT2}, {32 * 896}
    v_permlane32_swap_b32 v{t}, v{t+2}
    v_permlane32_swap_b32 v{t+1}, v{t+3}
    buffer_store_dwordx4 {vr(t, 4)}, v{vOUT}, {sr4(S_OUT)}, s{sT2} offen
    v_permlane32_swap_b32 v{t+4}, v{t+6}
    v_permlane32_swap_b32 v{t+5}, v{t+7}
    buffer_store_dwordx4 {vr(t+4, 4)}, v{vOUT}, {sr4(S_OUT)}, s{sT1} offen
    """)
    if "dbgt" in OPT:
        a(f"""
        s_cmp_ge_u32 s2, 7
        s_cbranch_scc1 k_end
        s_cmp_lg_u32 s{sW}, 4
        s_cbranch_scc1 k_end
        s_memtime s[90:91]
        s_memrealtime s[92:93]
        s_waitcnt lgkmcnt(0)
        s_sub_u32 s90, s90, s86
        s_sub_u32 s92, s92, s88
        v_mov_b32 v4, s90
        v_mov_b32 v5, s92
        s_lshl_b32 s3, s2, 3
        s_add_u32 s3, s3, 8
        buffer_store_dwordx2 v[4:5], v{vF1}, {sr4(S_DBG)}, s3 offen
        """)
    stamp_flush(a)
    a("s_endpgm")


def gen_attention(a):
    Q, O, S, KV, P, TMP = AQ, AO, AS, AKV, AP, ATMP
    vG, vM, vONE = avG, avM, avONE
    a.label("att_spin")
    bcast_poll(a, "aq", 0, [vFLA, vFLA + 1], sFQB, vPOL, SLEEP_Q, 4, lsleep=1)
    stamp(a, "x_go")
    vm = att_loads(a)
    a.label("att_main")
    stamp(a, "x_main")

    def k_fix(buf):
        return [f"v_cndmask_b32 v{KV+16*buf+6}, v{KV+16*buf+6}, v{vONE}, s[{sME}:{sME+1}]",
                f"v_cndmask_b32 v{KV+16*buf}, v{KV+16*buf}, v{vONE}, s[{sMO}:{sMO+1}]"]

    a(f"""
    s_setprio 2
    v_mov_b32 v{vT1}, 0
    s_and_b32 s{sT0}, s{sHEAD}, 1
    s_mov_b32 s{sME}, 0
    s_mov_b32 s{sMO+1}, 0
    s_sub_u32 s{sME+1}, s{sT0}, 1
    s_sub_u32 s{sMO}, 0, s{sT0}
    """)
    for x in kv_adv()[:3]:
        a(x)
    a(f"v_mov_b32 v{avV0}, v{vT2}\nv_mov_b32 v{avV1}, v{vT3}")
    SCR = [S[0], S[1], KV + 48, TMP + 8]
    for i in range(4):
        a(f"""
        s_waitcnt vmcnt({vm.wait({('m',), ('q', i)})})
        v_cndmask_b32 v{Q+8*i}, v{Q+8*i}, v{vT1}, s[{sMO}:{sMO+1}]
        v_cndmask_b32 v{Q+8*i+1}, v{Q+8*i+1}, v{vT1}, s[{sMO}:{sMO+1}]
        v_cndmask_b32 v{Q+8*i+6}, v{Q+8*i+6}, v{vT1}, s[{sME}:{sME+1}]
        v_cndmask_b32 v{Q+8*i+7}, v{Q+8*i+7}, v{vT1}, s[{sME}:{sME+1}]
        {MFMA} {vr(SCR[i], 16)}, {vr(TMP, 4)}, {vr(Q+8*i, 4)}, 0
        """)
        if i == 0:
            a(flag1(a, sFHO))
            a(f"s_add_u32 s{sFHO}, s{sFHO}, {FHS}")
        for k in range(6):
            a(f"v_mov_b32 v{O+16*i+k}, 0")
        a(f"{MFMA} {vr(SCR[i], 16)}, {vr(TMP+4, 4)}, {vr(Q+8*i+4, 4)}, {vr(SCR[i], 16)}")
        for k in range(6, 16):
            a(f"v_mov_b32 v{O+16*i+k}, 0")
    a(f"v_mov_b32 v{vONE}, 0x3f803f80")
    a(f"s_waitcnt vmcnt({vm.wait({('kv', 0, 1)})})")
    for x in k_fix(0):
        a(x)
    for i in range(4):
        s0 = SCR[i]
        a(f"""
        v_max3_f32 v{vM}, v{s0}, v{s0+1}, v{s0+2}
        v_max3_f32 v{vT0}, v{s0+3}, v{s0+4}, v{s0+5}
        v_max3_f32 v{vT2}, v{s0+6}, v{s0+7}, v{s0+8}
        v_max3_f32 v{vT3}, v{s0+9}, v{s0+10}, v{s0+11}
        v_max3_f32 v{vM}, v{vM}, v{s0+12}, v{s0+13}
        v_max3_f32 v{vT0}, v{vT0}, v{s0+14}, v{s0+15}
        v_max3_f32 v{vM}, v{vM}, v{vT2}, v{vT3}
        v_max_f32 v{vM}, v{vM}, v{vT0}
        v_mov_b32 v{vT0}, v{vM}
        s_nop 1
        v_permlane32_swap_b32 v{vM}, v{vT0}
        v_max_f32 v{vM}, v{vM}, v{vT0}
        v_sub_f32 v{vM}, 0, v{vM}
        v_cvt_pk_bf16_f32 v{vT0}, v{vM}, v{vM}
        v_lshlrev_b32 v{vT0}, 16, v{vT0}
        v_sub_f32 v{vT0}, v{vM}, v{vT0}
        v_cvt_pk_bf16_f32 v{vT0}, v{vM}, v{vT0}
        v_cndmask_b32 v{Q+8*i}, v{Q+8*i}, v{vT0}, s[{sMO}:{sMO+1}]
        v_cndmask_b32 v{Q+8*i+6}, v{Q+8*i+6}, v{vT0}, s[{sME}:{sME+1}]
        """)
        if i == 0:
            a(f"""
            s_nop 0
            {MFMA} {vr(S[0], 16)}, {vr(KV, 4)}, {vr(Q, 4)}, 0
            {MFMA} {vr(S[0], 16)}, {vr(KV+4, 4)}, {vr(Q+4, 4)}, {vr(S[0], 16)}
            """)
    for i in range(4):
        a(f"v_mov_b32 v{P+4+i}, 0\nv_mov_b32 v{KV+16*3+12+i}, v{vONE}\nv_mov_b32 v{KV+16*3+8+i}, v{vONE}")
    a(f"s_mov_b32 s{sIT}, 0")
    stamp(a, "x_loop")
    a.label("att_loop")
    for tb in range(4):
        for q in range(4):
            ph = 4 * tb + q
            sc, sn = S[ph % 2], S[1 - ph % 2]
            pq, pb = (q - 1) % 4, (tb if q > 0 else (tb - 1) % 4)
            nq, nb = (q + 1) % 4, (tb if q < 3 else (tb + 1) % 4)
            e = [f"v_exp_f32 v{sc+i}, v{sc+i}" for i in range(16)]
            c = [f"v_cvt_pk_bf16_f32 v{P+i}, v{sc+2*i}, v{sc+2*i+1}" for i in range(8)]
            pv2 = f"{MFMA} {vr(O+16*pq, 16)}, {vr(KV+16*pb+12, 4)}, {vr(P+4, 4)}, {vr(O+16*pq, 16)}"
            pv1 = f"{MFMA} {vr(O+16*q, 16)}, {vr(KV+16*tb+8, 4)}, {vr(P, 4)}, {vr(O+16*q, 16)}"
            qk1 = f"{MFMA} {vr(sn, 16)}, {vr(KV+16*nb, 4)}, {vr(Q+8*nq, 4)}, 0"
            qk2 = f"{MFMA} {vr(sn, 16)}, {vr(KV+16*nb+4, 4)}, {vr(Q+8*nq+4, 4)}, {vr(sn, 16)}"
            adv = kv_adv()
            s_pv2, s_qk1, s_qk2, s_pv1, tail = [], [], [], [], []
            s_qk1 += kv_load((tb + 3) % 4, q, (avV0, avV1))
            if q == 0:
                s_pv2.append(adv[3])
                s_qk2.append("s_waitcnt vmcnt(9)")
                s_pv1.append(adv[4])
            if q == 1:
                if tb == 0:
                    s_pv2.append(f"s_cmp_eq_u32 s{sIT}, 3")
                    s_qk2.append(f"s_cselect_b32 s{sKB}, {OOB}, s{sKB}")
                    s_pv1.append(f"s_cselect_b32 s{sVB}, {OOB}, s{sVB}")
                if tb == 3:
                    s_pv1.append(f"s_add_u32 s{sIT}, s{sIT}, 1")
            if q == 2:
                s_pv2.append(f"s_mul_i32 s{sT0}, s{sTI}, {TQ}")
                s_qk2.append(f"s_add_u32 s{sKS}, s{sT0}, s{sKB}")
                s_pv1.append("s_waitcnt vmcnt(9)")
                tail = k_fix((tb + 1) % 4)
            if q == 3:
                s_qk2.append(f"s_add_u32 s{sVS}, s{sT0}, s{sVB}")
                if tb == 0:
                    s_pv1 += [f"s_cmp_lg_u32 s{sIT}, 0", "s_cbranch_scc1 att_nofl", "s_waitcnt vmcnt(4)", flag1(a, sFHO), "att_nofl:"]
                if tb == 3:
                    s_pv1.append(f"s_cmp_lt_u32 s{sIT}, 4")
            seq = e[0:2] + [pv2] + s_pv2 + e[2:5] + [qk1] + s_qk1 + e[5:9] + c[0:4] + [qk2] + s_qk2 + e[9:12] + [pv1] + s_pv1 + e[12:16] + tail + c[4:8]
            for x in seq:
                a(x)
    a(f"""
    s_cbranch_scc1 att_loop
    s_nop 0
    {MFMA} {vr(O+48, 16)}, {vr(KV+16*3+12, 4)}, {vr(P+4, 4)}, {vr(O+48, 16)}
    """)
    stamp(a, "x_lend")
    for i in range(1, 4):
        a(f"""
        s_add_u32 s{sT0}, s{sKQ}, {i}
        s_and_b32 s{sT0}, s{sT0}, 3
        s_mul_i32 s{sT0}, s{sT0}, 12288
        s_add_u32 s{sT0}, s{sT0}, {MERGE + (i-1) * 4096}
        v_add_u32 v{vT0}, s{sT0}, v{vL16}
        """)
        for q in range(4):
            a(f"ds_write_b128 v{vT0}, {vr(O+16*i+4*q, 4)} offset:{1024*q}")
    a(f"""
    v_mov_b32 v{vT1}, {CNT}
    v_mov_b32 v{vT2}, 1
    s_mul_i32 s{sT0}, s{sKQ}, 12288
    s_add_u32 s{sT0}, s{sT0}, {MERGE}
    v_add_u32 v{vT0}, s{sT0}, v{vL16}
    s_lshl_b32 s{sT2}, s{sQB}, 2
    s_add_u32 s{sT2}, s{sT2}, s{sKQ}
    s_lshl_b32 s{sT2}, s{sT2}, 4
    s_add_u32 s{sT2}, s{sT2}, s{sHEAD}
    s_lshl_b32 s{sKB}, s{sT2}, 11
    s_add_u32 s{sKB}, s{sKB}, {OF}
    s_lshr_b32 s{sVB}, s{sT2}, 2
    s_lshl_b32 s{sVB}, s{sVB}, 7
    s_and_b32 s{sT2}, s{sT2}, 3
    s_lshl_b32 s{sT2}, s{sT2}, 2
    s_add_u32 s{sVB}, s{sVB}, s{sT2}
    s_add_u32 s{sVB}, s{sVB}, {FO}
    s_waitcnt lgkmcnt(0)
    s_mov_b64 exec, 1
    ds_add_u32 v{vT1}, v{vT2}
    s_mov_b64 exec, -1
    """)
    a.label("att_msync")
    a(f"""
    ds_read_b32 v{vT2}, v{vT1}
    s_waitcnt lgkmcnt(0)
    v_cmp_gt_u32 vcc, 4, v{vT2}
    s_cbranch_vccnz att_msync
    """)
    stamp(a, "x_msync")
    for i in range(12):
        a(f"ds_read_b128 {vr(O+16+4*i, 4)}, v{vT0} offset:{1024*i}")
    a(f"""
    v_cmp_lt_u32 vcc, 31, v{vLane}
    s_mov_b32 s{sT0}, {f32bits(2.0**-10):#x}
    s_mov_b32 s{sT1}, {f32bits(2.0**100):#x}
    """)
    for k in range(3):
        a(f"s_waitcnt lgkmcnt({8 - 4*k})")
        for i in range(16):
            a(f"v_add_f32 v{O+i}, v{O+i}, v{O+16+16*k+i}")
    C = O + 16
    a(f"""
    v_mov_b32 v{vT0}, v{O+12}
    v_mov_b32 v{vT1}, v{O+12}
    """)
    for k in range(4):
        a(f"v_mul_f32 v{C+k}, 0, v{O+4*k}")
    a(f"v_permlane32_swap_b32 v{vT0}, v{vT1}")
    for i in range(1, 4):
        for k in range(4):
            a(f"v_fma_f32 v{C+k}, v{O+4*k+i}, 0, v{C+k}")
    a(f"""
    v_rcp_f32 v{vT2}, v{vT1}
    v_cndmask_b32 v{C+3}, v{C+3}, v{C+2}, vcc
    v_add_f32 v{C}, v{C}, v{C+1}
    v_add_f32 v{C+2}, v{C+2}, v{C+3}
    v_add_f32 v{C}, v{C}, v{vT1}
    v_add_f32 v{C}, v{C}, v{C+2}
    v_cmp_le_f32 s[28:29], s{sT0}, v{C}
    v_cmp_ge_f32 s[16:17], s{sT1}, v{C}
    s_and_b64 s[28:29], s[28:29], s[16:17]
    s_cmp_eq_u64 s[28:29], -1
    s_cbranch_scc0 att_fallback
    """)
    a.label("att_final")
    a(f"""
    v_mul_f32 v{vT2}, v{vT2}, v{vG}
    v_mov_b32 v{vT0}, 0
    """)
    for hh in range(2):
        for i in range(8):
            a(f"v_mul_f32 v{O+8*hh+i}, v{O+8*hh+i}, v{vT2}")
        for i in range(4):
            a(f"v_cvt_pk_bf16_f32 v{TMP+4*hh+i}, v{O+8*hh+2*i}, v{O+8*hh+2*i+1}")
        if hh == 1:
            a(f"v_cndmask_b32 v{TMP+6}, v{TMP+6}, v{vT0}, vcc\nv_cndmask_b32 v{TMP+7}, v{TMP+7}, v{vT0}, vcc")
        a(f"buffer_store_dwordx4 {vr(TMP+4*hh, 4)}, v{vL16}, {sr4(S_WS)}, s{sKB} offen offset:{1024*hh}{SC}")
    stamp(a, "x_ost")
    a("s_waitcnt vmcnt(0)")
    a(flag1(a, sVB))
    stamp(a, "x_b2")
    stamp_flush(a)
    a("s_endpgm")

    a.label("att_fallback")
    sc = S[0]
    K, V = KV, KV + 8
    vMo, vMn, vAl = TMP, TMP + 1, TMP + 2
    a(f"""
    v_mov_b32 v{vT0}, 0
    v_mov_b32 v{vMo}, 0xff800000
    v_cndmask_b32 v{Q}, v{Q}, v{vT0}, s[{sMO}:{sMO+1}]
    v_cndmask_b32 v{Q+6}, v{Q+6}, v{vT0}, s[{sME}:{sME+1}]
    s_mov_b32 s{sIT}, 0
    s_lshl_b32 s{sKS}, s{sP0}, 9
    s_add_u32 s{sKS}, s{sKS}, {KF}
    s_mul_i32 s{sVS}, s{sHEAD}, 448
    s_add_u32 s{sVS}, s{sVS}, {VF}
    s_waitcnt vmcnt(0)
    """)
    for i in range(16):
        a(f"v_mov_b32 v{O+i}, 0")
    a.label("att_fb_loop")
    a(f"""
    buffer_load_dwordx4 {vr(K, 4)}, v{vL16}, {sr4(S_WS)}, s{sKS} offen{SC}
    buffer_load_dwordx4 {vr(K+4, 4)}, v{vL16}, {sr4(S_WS)}, s{sKS} offen offset:1024{SC}
    s_mov_b64 exec, s[{sVM}:{sVM+1}]
    buffer_load_dwordx4 {vr(V, 4)}, v{avV0}, {sr4(S_WS)}, s{sVS} offen{SC}
    buffer_load_dwordx4 {vr(V+4, 4)}, v{avV1}, {sr4(S_WS)}, s{sVS} offen{SC}
    s_mov_b64 exec, -1
    s_waitcnt vmcnt(0)
    {MFMA} {vr(sc, 16)}, {vr(K, 4)}, {vr(Q, 4)}, 0
    {MFMA} {vr(sc, 16)}, {vr(K+4, 4)}, {vr(Q+4, 4)}, {vr(sc, 16)}
    s_nop 15
    v_max3_f32 v{vMn}, v{vMo}, v{sc}, v{sc+1}
    """)
    for i in range(2, 16, 2):
        a(f"v_max3_f32 v{vMn}, v{vMn}, v{sc+i}, v{sc+i+1}")
    a(f"""
    v_mov_b32 v{vT0}, v{vMn}
    s_nop 1
    v_permlane32_swap_b32 v{vMn}, v{vT0}
    v_max_f32 v{vMn}, v{vMn}, v{vT0}
    v_sub_f32 v{vAl}, v{vMo}, v{vMn}
    v_exp_f32 v{vAl}, v{vAl}
    v_mov_b32 v{vMo}, v{vMn}
    """)
    for i in range(16):
        a(f"v_sub_f32 v{sc+i}, v{sc+i}, v{vMn}")
    for i in range(16):
        a(f"v_exp_f32 v{sc+i}, v{sc+i}")
    for i in range(16):
        a(f"v_mul_f32 v{O+i}, v{O+i}, v{vAl}")
    for i in range(8):
        a(f"v_cvt_pk_bf16_f32 v{P+i}, v{sc+2*i}, v{sc+2*i+1}")
    a(f"""
    s_nop 1
    {MFMA} {vr(O, 16)}, {vr(V, 4)}, {vr(P, 4)}, {vr(O, 16)}
    {MFMA} {vr(O, 16)}, {vr(V+4, 4)}, {vr(P+4, 4)}, {vr(O, 16)}
    s_add_u32 s{sKS}, s{sKS}, {TQ}
    s_add_u32 s{sVS}, s{sVS}, {TQ}
    s_add_u32 s{sIT}, s{sIT}, 1
    s_cmp_lt_u32 s{sIT}, 64
    s_cbranch_scc1 att_fb_loop
    s_nop 15
    v_mov_b32 v{vT0}, v{O+12}
    v_mov_b32 v{vT1}, v{O+12}
    s_nop 1
    v_permlane32_swap_b32 v{vT0}, v{vT1}
    v_rcp_f32 v{vT2}, v{vT1}
    s_nop 0
    s_branch att_final
    """)


def build():
    ref = open(f"cdna_kernels/{NAME}.s.ref").read().split("\n")
    hdr = [l for l in ref if l.startswith(";") and "@launch" not in l and "Override launch" not in l and "grid=ceil" not in l]
    body = gen()
    out = "\n".join(hdr) + "\n"
    out += f"; @launch grid=(256,1,1) block=(512,1,1) lds={LDS_BYTES}\n"
    out += '.amdgcn_target "amdgcn-amd-amdhsa--gfx950"\n.text\n'
    out += f".globl {KNAME}\n.p2align 8\n.type {KNAME},@function\n{KNAME}:\n"
    out += body
    out += f""".section .rodata,"a"
.p2align 6
.amdhsa_kernel {KNAME}
  .amdhsa_next_free_vgpr 256
  .amdhsa_next_free_sgpr 102
  .amdhsa_accum_offset 256
  .amdhsa_group_segment_fixed_size 0
  .amdhsa_kernarg_size 88
  .amdhsa_user_sgpr_count 2
  .amdhsa_user_sgpr_kernarg_segment_ptr 1
  .amdhsa_system_sgpr_workgroup_id_x 1
.end_amdhsa_kernel
"""
    return out


if __name__ == "__main__":
    path = sys.argv[1]
    open(path, "w").write(build())
    print("wrote", path)
```

```python
import math, struct, sys, os

NAME = "gated_mix__softmax_full_mha__swiglu_ffn__prompt"
KNAME = NAME + "_kernel"
INSTR = int(os.environ.get("INSTR", "0"))
OPT = os.environ.get("OPT", "nopf")

QF = 0
KF = 2 << 20
VF = 4 << 20
TQ = 28672
HF = 6 << 20
OF = 14 << 20
GF = 16 << 20
FQ = (16 << 20) + 0x10000
FH = (16 << 20) + 0x20000
FHB = (16 << 20) + 0x28000
MBOX = 8192
FO = (16 << 20) + 0x40000
TSF = 24 << 20
WS_BYTES = 32 << 20
OOB = 0x40000000
SLEEP_Q = int(os.environ.get('SLQ', '6'))
SLEEP_H = int(os.environ.get('SLH', '8'))
SLEEP_O = int(os.environ.get('SLO', '2'))
LOG2E = math.log2(math.e)
MFMA = "v_mfma_f32_32x32x16_bf16"
SC = " sc1"
SLOT = 40960
LDS_BYTES = 4 * SLOT
MERGE = 49152
CNT = 155648
SPIN_MAX = 1 << int(os.environ.get('SPINLOG', '18'))


def ring_addr(s):
    if s <= 6:
        return 98304 + s * 8192
    if s == 7:
        return 32768
    if s <= 11:
        return (s - 8) * 8192
    return 40960


def wslot(i):
    return i % 13 if i < 28 else [2, 3, 4, 5, 8, 9, 10, 11][i - 28]


def f32bits(x):
    return struct.unpack("<I", struct.pack("<f", x))[0]


class Asm:
    def __init__(self):
        self.lines = []

    def __call__(self, s):
        for ln in s.strip("\n").split("\n"):
            ln = ln.strip()
            if not ln:
                continue
            self.lines.append(ln if ln.endswith(":") else "    " + ln)

    def label(self, l):
        self.lines.append(l + ":")

    def text(self):
        return "\n".join(self.lines) + "\n"


def vr(base, n):
    return f"v[{base}:{base + n - 1}]"


def sr4(b):
    return f"s[{b}:{b+3}]"


def srd(a, sd, sb, nbytes):
    a(f"""
    s_mov_b32 s{sd}, s{sb}
    s_mov_b32 s{sd+1}, s{sb+1}
    s_mov_b32 s{sd+2}, {nbytes}
    s_mov_b32 s{sd+3}, 0x00020000
    """)


def L(s):
    return [l.strip() for l in s.strip("\n").split("\n") if l.strip()]


HA_ST = int(os.environ.get('HA_ST', '13'))
EARLY_P = int(os.environ.get('EARLY_P', '24'))
QKB = int(os.environ.get('QKB', '11'))
FPER = int(os.environ.get('FPER', '4'))
PF2_ST = int(os.environ.get('PF2_ST', '0'))
PF3_ST = int(os.environ.get('PF3_ST', '2'))
GDA = int(os.environ.get('GDA', '10'))
AROT = int(os.environ.get('AROT', '15'))
WP_ST = int(os.environ.get('WP_ST', '5'))
GPRE = int(os.environ.get('GPRE', '4'))
GB_AT = int(os.environ.get('GB_AT', '8'))

S_X, S_B0, S_G, S_U, S_WS, S_TMP, S_WD, S_DBG = 4, 8, 12, 16, 20, 24, 28, 32
S_WO, S_OUT = 8, 12
sMI, sJ, sW, sR, sGRP = 36, 37, 38, 39, 40
sKQ = 39
sT0, sT1, sT2 = 42, 43, 44
sMX, sMB, sSO = 45, 46, 47
sSC, sTILE, sHOFF, sHOFF2, sQKO = 48, 49, 50, 51, 52
sWB, sM0, sFHO, sFQB, sP0, sOK = 53, 54, 55, 56, 57, 58
sNONCE, sNL2E, sC8, sI32, sSPIN = 59, 60, 61, 62, 63
P_X, P_WQKV, P_WO, P_WG, P_WU, P_WD, P_GW, P_OUT, P_DBG, P_WS = 64, 66, 68, 72, 74, 76, 78, 80, 82, 84
ST0 = 86
sHEAD, sQB, sMT, sNT = 70, 71, 41, 3
sFHA = 65
vLane, vL16 = 1, 2
vT0, vT1, vT2, vT3 = 3, 4, 5, 6
STAMPS = os.environ.get("STAMPS", "").split(",")[:6]


def stamp(a, name):
    if INSTR and (name == "start" or name in STAMPS):
        idx = 0 if name == "start" else 1 + STAMPS.index(name)
        a(f"s_memtime s[{ST0+2*idx}:{ST0+2*idx+1}]")
    if INSTR and "R" + name in STAMPS:
        idx = 1 + STAMPS.index("R" + name)
        a(f"s_memrealtime s[{ST0+2*idx}:{ST0+2*idx+1}]")


def stamp_flush(a, vtmp=3):
    if not INSTR:
        return
    a(f"""
    s_memtime s[4:5]
    s_memrealtime s[6:7]
    s_lshl_b32 s3, s2, 3
    s_add_u32 s3, s3, s{sW}
    s_lshl_b32 s3, s3, 7
    s_add_u32 s3, s3, {TSF}
    v_mov_b32 v{vtmp+1}, 0
    s_waitcnt lgkmcnt(0)
    """)
    regs = [ST0 + 2 * i for i in range(8)] + [4, 6]
    for i, r in enumerate(regs):
        a(f"""
        v_mov_b32 v{vtmp}, s{r}
        buffer_store_dword v{vtmp}, v{vtmp+1}, {sr4(S_WS)}, s3 offen offset:{4*i}
        s_nop 1
        """)


def flag_store(a, soff_reg, vtmp):
    a(f"""
    v_mov_b32 v{vtmp}, s{sNONCE}
    v_mov_b32 v{vtmp+1}, 0
    s_mov_b64 exec, 1
    buffer_store_dword v{vtmp}, v{vtmp+1}, {sr4(S_WS)}, s{soff_reg} offen{SC}
    s_mov_b64 exec, -1
    """)


_uid = [0]


def poll(a, addrs, soff, vtmp, sleep):
    _uid[0] += 1
    u = _uid[0]
    a(f"s_mov_b32 s{sSPIN}, {SPIN_MAX}")
    a.label(f"poll_ld{u}")
    for i, va in enumerate(addrs):
        a(f"buffer_load_dword v{vtmp+i}, v{va}, {sr4(S_WS)}, s{soff} offen{SC}")
    a("s_waitcnt vmcnt(0)")
    poll_cmp(a, len(addrs), vtmp)
    a(f"""
    s_sub_u32 s{sSPIN}, s{sSPIN}, 1
    s_cbranch_scc1 poll_done{u}
    s_cmp_eq_u64 vcc, 0
    s_cbranch_scc1 poll_done{u}
    s_sleep {sleep}
    s_branch poll_ld{u}
    """)
    a.label(f"poll_done{u}")


def poll_cmp(a, n, vtmp):
    if n == 1:
        a(f"v_cmp_ne_u32 vcc, s{sNONCE}, v{vtmp}")
    else:
        a(f"""
        v_xor_b32 v{vtmp}, s{sNONCE}, v{vtmp}
        v_xor_b32 v{vtmp+1}, s{sNONCE}, v{vtmp+1}
        v_or_b32 v{vtmp}, v{vtmp}, v{vtmp+1}
        v_cmp_ne_u32 vcc, 0, v{vtmp}
        """)


def lds_set(a, off, val, vtmp):
    a(f"""
    v_mov_b32 v{vtmp}, {CNT + off}
    v_mov_b32 v{vtmp+1}, {val}
    ds_write_b32 v{vtmp}, v{vtmp+1}
    """)


def lds_wait(a, off, vtmp, cond, sleep=1):
    _uid[0] += 1
    u = _uid[0]
    a(f"v_mov_b32 v{vtmp}, {CNT + off}")
    a.label(f"lw{u}")
    a(f"""
    ds_read_b32 v{vtmp+1}, v{vtmp}
    s_waitcnt lgkmcnt(0)
    v_readfirstlane_b32 s{sT0}, v{vtmp+1}
    """)
    a(f"s_cmp_lg_u32 s{sT0}, 0" if cond == "ne0" else f"s_cmp_eq_u32 s{sT0}, {cond[2:]}")
    a(f"""
    s_cbranch_scc1 lwd{u}
    s_sleep {sleep}
    s_branch lw{u}
    """)
    a.label(f"lwd{u}")


class VM:
    def __init__(self):
        self.q = []

    def add(self, tag):
        self.q.append(tag)

    def wait(self, tags, counts=None):
        idx = max([i for i, t in enumerate(self.q) if t in tags], default=-1)
        for t in tags:
            assert t in self.q, (t, self.q)
            if counts:
                assert self.q.count(t) == counts(t), (t, self.q)
        n = len(self.q) - 1 - idx
        assert n <= 63
        return n

    def copy(self):
        v = VM(); v.q = list(self.q); return v


vFLA, vPOL, vFQO, vF1, vNON = 7, 9, 11, 12, 13
vDW = 31


def flag1(a, soff):
    return f"buffer_store_dword v{vNON}, v{vF1}, {sr4(S_WS)}, s{soff} offen{SC}"


AQ, AO, AS, AKV, AP, ATMP = 16, 48, [112, 128], 144, 208, 224
avG, avM, avONE = 14, 15, 216
sME, sMO = 24, 26
sKB, sVB, sTI, sKS, sVS, sIT = 45, 46, 47, 48, 52, 49


avV0, avV1 = 217, 218
HBR = 240


def hb_stores():
    return [f"buffer_store_dwordx4 {vr(HBR+4*i, 4)}, v{vL16}, {sr4(S_WS)}, s{sHOFF2} offen offset:{1024*i}{SC}" for i in range(2)]

sVM = 30


def kv_adv():
    return [f"s_mul_i32 s{sVS}, s{sTI}, {TQ}", f"s_add_u32 s{sKS}, s{sVS}, s{sKB}",
            f"s_add_u32 s{sVS}, s{sVS}, s{sVB}",
            f"s_add_u32 s{sTI}, s{sTI}, 1", f"s_and_b32 s{sTI}, s{sTI}, 15"]


def kv_load(buf, part, vv=(None, None)):
    if part < 2:
        return [f"buffer_load_dwordx4 {vr(AKV+16*buf+4*part, 4)}, v{vL16}, {sr4(S_WS)}, s{sKS} offen offset:{1024*part}{SC}"]
    return [f"s_mov_b64 exec, s[{sVM}:{sVM+1}]",
            f"buffer_load_dwordx4 {vr(AKV+16*buf+4*part, 4)}, v{vv[part-2]}, {sr4(S_WS)}, s{sVS} offen{SC}",
            "s_mov_b64 exec, -1"]


def att_loads():
    vm = VM()
    o1 = L(f"""
    s_lshl_b32 s{sT1}, s{sP0}, 9
    s_lshl_b32 s{sT2}, s{sQB}, 2
    s_add_u32 s{sT2}, s{sT2}, s{sKQ}
    s_mul_i32 s{sT0}, s{sT2}, {TQ}
    s_add_u32 s{sT0}, s{sT0}, s{sT1}
    buffer_load_dwordx4 {vr(AQ, 4)}, v{vL16}, {sr4(S_WS)}, s{sT0} offen{SC}
    buffer_load_dwordx4 {vr(AQ+4, 4)}, v{vL16}, {sr4(S_WS)}, s{sT0} offen offset:1024{SC}
    s_mul_i32 s{sVB}, s{sKQ}, {16 * TQ}
    s_add_u32 s{sKB}, s{sVB}, s{sT1}
    s_add_u32 s{sKB}, s{sKB}, {KF}
    s_mul_i32 s{sT0}, s{sHEAD}, 448
    s_add_u32 s{sVB}, s{sVB}, s{sT0}
    s_add_u32 s{sVB}, s{sVB}, {VF}
    s_and_b32 s{sTI}, s{sQB}, {AROT}
    s_mov_b32 s{sVM}, 0x0fffffff
    s_mov_b32 s{sVM+1}, 0x0fffffff
    v_lshrrev_b32 v{vT2}, 5, v{vLane}
    v_mul_u32_u24 v{vT2}, {7168 - 512}, v{vT2}
    v_add_u32 v{vT2}, v{vT2}, v{vL16}
    v_add_u32 v{vT3}, 14336, v{vT2}
    """)
    vm.add(("q",)); vm.add(("q",))
    o2 = []
    for t in range(3):
        o = o1 if t == 0 else o2
        o += kv_adv()
        for p in range(4):
            if p == 2:
                o += [f"v_mov_b32 v{AKV+16*t+8+i}, 0x3f803f80" for i in range(8)]
            o.append(kv_load(t, p, (vT2, vT3)))
            vm.add(("kv", t, p))
    flat = lambda o: [y for x in o for y in (x if isinstance(x, list) else [x])]
    return o1, o2, vm, flat


def wk_off(i):
    return 8 * (i % 14) + 4 * (i // 14)


def gen():
    a = Asm()
    vDX0, vDX1, vDB0, vDG, vDU = 7, 8, 9, 10, 11
    vAX = 14
    vAW = 18
    vST = 22
    vN, vR4, vC, vRow = 26, 27, 28, 29
    X, ACC, WF = 32, 144, 224
    PFR, vPFL, sPFI = ACC + 60, 30, 58

    stamp(a, "start")
    if INSTR: a("s_memrealtime s[100:101]")
    if "dbgt" in OPT: a("s_memtime s[86:87]\ns_memrealtime s[88:89]")
    a(f"""
    s_cmp_ge_u32 s2, 256
    s_cbranch_scc1 k_end
    s_load_dwordx16 s[64:79], s[0:1], 0
    s_load_dwordx4 s[80:83], s[0:1], 64
    s_load_dwordx2 s[84:85], s[0:1], 80
    v_and_b32 v{vLane}, 63, v0
    v_lshrrev_b32 v{vT0}, 6, v0
    s_and_b32 s{sC8}, s2, 7
    s_lshr_b32 s{sI32}, s2, 3
    v_readfirstlane_b32 s{sW}, v{vT0}
    s_lshr_b32 s{sT1}, s{sC8}, 1
    s_mul_i32 s{sT0}, s{sT1}, 28
    s_sub_u32 s{sT0}, s{sT0}, 4
    s_lshl_b32 s{sT1}, s{sT1}, 2
    s_add_u32 s{sT1}, s{sT1}, 112
    s_cmp_lt_u32 s{sI32}, 4
    s_cselect_b32 s{sT0}, s{sT1}, s{sT0}
    s_add_u32 s{sT0}, s{sT0}, s{sI32}
    s_lshr_b32 s{sJ}, s{sT0}, 3
    s_and_b32 s{sT0}, s{sT0}, 7
    s_and_b32 s{sMI}, s{sC8}, 1
    s_lshl_b32 s{sMI}, s{sMI}, 3
    s_add_u32 s{sMI}, s{sMI}, s{sT0}
    v_lshrrev_b32 v{vT0}, 3, v{vLane}
    v_lshrrev_b32 v{vT1}, 4, v{vLane}
    v_and_b32 v{vT2}, 7, v{vLane}
    v_xor_b32 v{vT3}, v{vT2}, v{vT1}
    s_lshl_b32 s{sT0}, s{sMI}, 7
    s_lshl_b32 s{sT1}, s{sW}, 4
    s_add_u32 s{sT0}, s{sT0}, s{sT1}
    v_add_u32 v{vDX0}, s{sT0}, v{vT0}
    v_mul_u32_u24 v{vDX0}, 896, v{vDX0}
    v_lshl_add_u32 v{vDX0}, v{vT3}, 4, v{vDX0}
    v_xor_b32 v{vDX1}, 64, v{vDX0}
    v_add_u32 v{vDX1}, 7168, v{vDX1}
    v_and_b32 v{vT3}, 1, v{vT1}
    v_lshlrev_b32 v{vT3}, 2, v{vT3}
    v_xor_b32 v{vT3}, v{vT3}, v{vT2}
    v_lshlrev_b32 v{vT3}, 4, v{vT3}
    v_mul_u32_u24 v{vDW}, 896, v{vT0}
    v_add_u32 v{vDW}, v{vDW}, v{vT3}
    s_lshl_b32 s{sT0}, s{sW}, 3
    v_add_u32 v{vT0}, s{sT0}, v{vT0}
    v_mul_u32_u24 v{vDB0}, 2688, v{vT0}
    v_add_u32 v{vDB0}, v{vDB0}, v{vT3}
    s_lshl_b32 s{sMX}, s{sW}, 11
    s_lshl_b32 s{sMB}, s{sW}, 10
    s_add_u32 s{sMB}, s{sMB}, 16384
    v_lshlrev_b32 v{vL16}, 4, v{vLane}
    s_mov_b32 s{S_X+2}, {2048 * 448 * 2}
    s_mov_b32 s{S_X+3}, 0x00020000
    s_mov_b32 s{S_B0+2}, {448 * 1344 * 2}
    s_mov_b32 s{S_B0+3}, 0x00020000
    s_mov_b32 s{S_G+3}, 0x00020000
    s_mov_b32 s{S_U+3}, 0x00020000
    s_cmp_ge_u32 s{sJ}, 14
    s_cbranch_scc1 k1_v
    """)

    vm = None

    def emit_group(g):
        for l in g[0]:
            a(l)
        vm.add(g[1])

    def dma(m0base, m0off, vaddr, srdb, soff):
        return [f"s_add_u32 m0, s{m0base}, {m0off & 0xffffffff}", f"s_mov_b32 s{sSO}, {soff}",
                f"buffer_load_dwordx4 v{vaddr}, {sr4(srdb)}, s{sSO} offen lds"]

    def common_setup2(tg):
        srd(a, S_WS, P_WS, WS_BYTES)
        srd(a, S_DBG, P_DBG, 256)
        srd(a, S_WD, P_WD, 1792 * 448 * 2)
        a(f"""
        s_or_b32 s{sT0}, s2, s{sW}
        s_cmp_lg_u32 s{sT0}, 0
        s_cbranch_scc1 k_nononce_{tg}
        s_memrealtime s[{sSC}:{sSC+1}]
        v_mov_b32 v{vT1}, 0
        s_waitcnt lgkmcnt(0)
        s_or_b32 s{sT0}, s{sSC}, 0x80000000
        v_mov_b32 v{vT0}, s{sT0}
        s_mov_b64 exec, 1
        buffer_store_dword v{vT0}, v{vT1}, {sr4(S_DBG)}, 0 offen{SC}
        s_mov_b64 exec, -1
        """)
        a.label(f"k_nononce_{tg}")
        if "nopf" not in OPT:
            a(f"""
            s_lshl_b32 s{sPFI}, s2, 3
            s_add_u32 s{sPFI}, s{sPFI}, s{sW}
            s_lshl_b32 s{sT0}, s{sPFI}, 10
            s_mov_b32 s{S_TMP+3}, 0x00020000
            buffer_load_dwordx4 {vr(PFR, 4)}, v{vL16}, {sr4(S_X)}, s{sT0} offen
            v_lshrrev_b32 v{vPFL}, 3, v{vLane}
            v_lshlrev_b32 v{vPFL}, 7, v{vPFL}
            v_add_u32 v{vPFL}, v{vPFL}, v{vL16}
            s_cmp_lt_u32 s{sPFI}, 840
            s_cbranch_scc1 k_pf_q_{tg}
            s_cmp_lt_u32 s{sPFI}, 1400
            s_cselect_b32 s{S_TMP}, s{P_WG}, s{P_WU}
            s_cselect_b32 s{S_TMP+1}, s{P_WG+1}, s{P_WU+1}
            s_cselect_b32 s{sT0}, 0, 560
            s_mov_b32 s{S_TMP+2}, {448 * 1792 * 2}
            s_sub_u32 s{sT0}, s{sPFI}, s{sT0}
            s_lshl_b32 s{sT0}, s{sT0}, 11
            s_add_u32 s{sT0}, s{sT0}, {(128 * 3584 - 840 * 2048) & 0xffffffff}
            buffer_load_dwordx4 {vr(PFR+4, 4)}, v{vPFL}, {sr4(S_TMP)}, s{sT0} offen
            s_branch k_pf_d_{tg}
            """)
            a.label(f"k_pf_q_{tg}")
            a(f"""
            s_add_u32 s{sT0}, s{sT0}, {128 * 2688}
            buffer_load_dwordx4 {vr(PFR+4, 4)}, v{vL16}, {sr4(S_B0)}, s{sT0} offen
            """)
            a.label(f"k_pf_d_{tg}")
            vm.add(("PF",)); vm.add(("PF",))
        if "nocp" not in OPT:
            a(f"""
            s_cmp_ge_u32 s{sI32}, 5
            s_cbranch_scc1 k_nocp_{tg}
            s_lshl_b32 s{sT0}, s{sI32}, 3
            s_add_u32 s{sT0}, s{sT0}, s{sW}
            s_lshl_b32 s{sT0}, s{sT0}, 10
            v_add_u32 v{vT0}, s{sT0}, v{vL16}
            v_min_u32 v{vT0}, k_end-{KNAME}-12, v{vT0}
            s_getpc_b64 s[{sSC}:{sSC+1}]
            """)
            a.label(f"k_pc_{tg}")
            a(f"""
            s_sub_u32 s{sSC}, s{sSC}, k_pc_{tg}-{KNAME}
            s_subb_u32 s{sSC+1}, s{sSC+1}, 0
            global_load_dwordx4 {vr(ACC+76, 4)}, v{vT0}, s[{sSC}:{sSC+1}]
            """)
            a.label(f"k_nocp_{tg}")
        a(f"""
        s_and_b32 s{sR}, s{sW}, 3
        s_lshr_b32 s{sGRP}, s{sW}, 2
        s_lshl_b32 s{sTILE}, s{sMI}, 2
        s_add_u32 s{sTILE}, s{sTILE}, s{sR}
        v_and_b32 v{vT0}, 31, v{vLane}
        v_lshrrev_b32 v{vT1}, 5, v{vLane}
        v_bfe_u32 v{vT2}, v{vLane}, 1, 3
        v_xor_b32 v{vT2}, v{vT2}, v{vT1}
        s_lshl_b32 s{sT0}, s{sR}, 12
        v_lshlrev_b32 v{vT3}, 7, v{vT0}
        v_lshl_add_u32 v{vT3}, v{vT2}, 4, v{vT3}
        v_add_u32 v{vAX}, s{sT0}, v{vT3}
        v_xor_b32 v{vAX+1}, 32, v{vAX}
        v_xor_b32 v{vAX+2}, 64, v{vAX}
        v_xor_b32 v{vAX+3}, 96, v{vAX}
        v_bfe_u32 v{vN}, v{vLane}, 4, 1
        v_bfe_u32 v{vR4}, v{vLane}, 2, 2
        v_and_b32 v{vC}, 3, v{vLane}
        v_lshl_add_u32 v{vRow}, v{vT1}, 3, v{vR4}
        v_and_b32 v{vT2}, 2, v{vR4}
        v_xor_b32 v{vT2}, v{vT2}, v{vN}
        s_lshl_b32 s{sT0}, s{sGRP}, 1
        v_xor_b32 v{vT2}, s{sT0}, v{vT2}
        v_lshlrev_b32 v{vT3}, 7, v{vRow}
        v_lshl_add_u32 v{vT3}, v{vT2}, 5, v{vT3}
        v_lshl_add_u32 v{vT3}, v{vC}, 3, v{vT3}
        v_add_u32 v{vAW}, 16384, v{vT3}
        s_mov_b32 s{sNL2E}, {f32bits(-LOG2E):#x}
        """)

    def flag_addr(vtype, vfla, vfqo):
        t0, t1, t2, t3 = vN, vR4, vC, vRow
        o = L(f"""
        s_lshl_b32 s{sHEAD}, s{sC8}, 1
        s_and_b32 s{sT2}, s{sI32}, 1
        s_add_u32 s{sHEAD}, s{sHEAD}, s{sT2}
        s_lshr_b32 s{sQB}, s{sI32}, 1
        s_lshl_b32 s{sMT}, s{sC8}, 2
        s_and_b32 s{sT2}, s{sI32}, 3
        s_add_u32 s{sMT}, s{sMT}, s{sT2}
        s_lshr_b32 s{sNT}, s{sI32}, 2
        s_mul_i32 s{sP0}, s{sHEAD}, 7
        s_lshr_b32 s{sP0}, s{sP0}, 1
        s_lshl_b32 s{sFQB}, s{sHEAD}, 12
        s_add_u32 s{sFQB}, s{sFQB}, {FQ}
        s_lshr_b32 s{sT1}, s{sQB}, 2
        s_lshl_b32 s{sT1}, s{sT1}, 7
        s_and_b32 s{sT2}, s{sQB}, 3
        s_lshl_b32 s{sT2}, s{sT2}, 2
        s_add_u32 s{sT1}, s{sT1}, s{sT2}
        s_add_u32 s{sT1}, s{sT1}, 2048
        v_lshrrev_b32 v{t0}, 2, v{vLane}
        v_and_b32 v{t1}, 3, v{vLane}
        v_lshlrev_b32 v{t1}, 2, v{t1}
        v_lshl_add_u32 v{vfla}, v{t0}, 7, v{t1}
        v_and_b32 v{t0}, 1, v{vLane}
        v_lshl_add_u32 v{vfla+1}, v{t0}, 9, s{sT1}
        v_and_b32 v{t0}, 15, v{vLane}
        v_lshrrev_b32 v{t1}, 4, v{vLane}
        v_lshlrev_b32 v{t3}, 12, v{t0}
        v_lshl_add_u32 v{t3}, v{t1}, 9, v{t3}
        s_lshr_b32 s{sT1}, s{sMI}, 2
        s_lshl_b32 s{sT1}, s{sT1}, 7
        s_and_b32 s{sT2}, s{sMI}, 3
        s_lshl_b32 s{sT2}, s{sT2}, 2
        s_add_u32 s{sT1}, s{sT1}, s{sT2}
        """)
        if not vtype:
            o += L(f"""
            s_add_u32 s{sT2}, s{sJ}, 1
            s_lshr_b32 s{sT2}, s{sT2}, 3
            v_mul_u32_u24 v{t2}, 7, v{t0}
            v_lshrrev_b32 v{t2}, 1, v{t2}
            v_mad_u32_u24 v{t2}, v{t1}, 3, v{t2}
            v_lshrrev_b32 v{t2}, 3, v{t2}
            v_lshrrev_b32 v{t1}, 1, v{t1}
            v_lshl_add_u32 v{t2}, v{t1}, 6, v{t2}
            v_mad_u32_u24 v{t2}, s{sT2}, 7, v{t2}
            v_cmp_eq_u32 vcc, s{sJ}, v{t2}
            s_lshl_b32 s{sT2}, s{sT2}, 11
            s_sub_u32 s{sT1}, s{sT1}, s{sT2}
            s_add_u32 s{sT1}, s{sT1}, 2048
            """)
        else:
            o += L(f"""
            v_add_u32 v{t2}, 14, v{t1}
            v_cmp_eq_u32 vcc, s{sJ}, v{t2}
            s_add_u32 s{sT1}, s{sT1}, 1024
            """)
        o += L(f"""
        v_add_u32 v{t3}, s{sT1}, v{t3}
        v_mov_b32 v{t0}, {OOB}
        v_cndmask_b32 v{vfqo}, v{t0}, v{t3}, vcc
        v_cmp_eq_u32 vcc, 0, v{vLane}
        s_lshr_b32 s{sFHO}, s{sTILE}, 1
        s_lshl_b32 s{sFHO}, s{sFHO}, 10
        v_cndmask_b32 v{vF1}, v{t0}, v{vLane}, vcc
        s_lshr_b32 s{sT1}, s{sJ}, 1
        s_lshl_b32 s{sT1}, s{sT1}, 7
        s_add_u32 s{sFHO}, s{sFHO}, s{sT1}
        s_and_b32 s{sT1}, s{sJ}, 1
        s_lshl_b32 s{sT1}, s{sT1}, 3
        s_add_u32 s{sFHO}, s{sFHO}, s{sT1}
        s_and_b32 s{sT1}, s{sR}, 1
        s_lshl_b32 s{sT1}, s{sT1}, 2
        s_add_u32 s{sFHO}, s{sFHO}, s{sT1}
        s_add_u32 s{sFHO}, s{sFHO}, {FHB}
        s_lshl_b32 s{sFHA}, s{sMI}, 9
        s_lshr_b32 s{sT1}, s{sJ}, 2
        s_lshl_b32 s{sT1}, s{sT1}, 7
        s_add_u32 s{sFHA}, s{sFHA}, s{sT1}
        s_and_b32 s{sT1}, s{sJ}, 3
        s_lshl_b32 s{sT1}, s{sT1}, 2
        s_add_u32 s{sFHA}, s{sFHA}, s{sT1}
        s_add_u32 s{sFHA}, s{sFHA}, {FH}
        s_lshl_b32 s{sM0}, s{sNT}, 7
        s_mul_i32 s{sWB}, s{sR}, {16 * 896}
        s_add_u32 s{sWB}, s{sWB}, s{sM0}
        s_lshl_b32 s{sM0}, s{sR}, 11
        """)
        return o

    def nonce_get(tag):
        a(f"""
        v_readfirstlane_b32 s{sNONCE}, v{vNON}
        v_lshlrev_b32 v{vT0}, 2, v{vLane}
        v_add_u32 v{vT0}, {CNT}, v{vT0}
        v_mov_b32 v{vT1}, 0
        s_cmp_lg_u32 s{sNONCE}, 0
        s_cbranch_scc1 k1_nonce_ok_{tag}
        """)
        a.label(f"k1_nonce_spin_{tag}")
        a(f"""
        buffer_load_dword v{vNON}, v{vT1}, {sr4(S_DBG)}, 0 offen{SC}
        s_waitcnt vmcnt(0)
        v_readfirstlane_b32 s{sNONCE}, v{vNON}
        s_sleep 4
        s_cmp_eq_u32 s{sNONCE}, 0
        s_cbranch_scc1 k1_nonce_spin_{tag}
        """)
        a.label(f"k1_nonce_ok_{tag}")
        a(f"ds_write_b32 v{vT0}, v{vT1}")

    def pf2():
        return (L(f"""
        s_cmp_lt_u32 s{sPFI}, 784
        s_cselect_b32 s{S_TMP}, s{P_WG}, s{P_WU}
        s_cselect_b32 s{S_TMP+1}, s{P_WG+1}, s{P_WU+1}
        s_cselect_b32 s{sT0}, 0, 784
        s_mov_b32 s{S_TMP+2}, {448 * 1792 * 2}
        s_sub_u32 s{sT0}, s{sPFI}, s{sT0}
        s_lshl_b32 s{sT0}, s{sT0}, 11
        buffer_load_dwordx4 {vr(PFR+8, 4)}, v{vPFL}, {sr4(S_TMP)}, s{sT0} offen offset:128
        """), ("PF",))

    def pf3():
        return (L(f"""
        s_cmp_lt_u32 s{sPFI}, 1568
        s_cselect_b32 s{S_TMP}, s{P_WD}, s{P_WO}
        s_cselect_b32 s{S_TMP+1}, s{P_WD+1}, s{P_WO+1}
        s_cselect_b32 s{sT0}, 0, 1568
        s_cselect_b32 s{S_TMP+2}, s{S_WD+2}, {448 * 448 * 2}
        s_sub_u32 s{sT0}, s{sPFI}, s{sT0}
        s_lshl_b32 s{sT0}, s{sT0}, 10
        buffer_load_dwordx4 {vr(PFR+12, 4)}, v{vL16}, {sr4(S_TMP)}, s{sT0} offen
        """), ("PF",))

    nonce_ld = ([f"v_mov_b32 v{vNON}, 0", f"buffer_load_dword v{vNON}, v{vNON}, {sr4(S_DBG)}, 0 offen{SC}"], ("N",))

    def wpref(i):
        ra = ring_addr(i % 13)
        return [f"s_add_u32 m0, s{sM0}, {ra}", f"s_add_u32 s{sT0}, s{sWB}, {wk_off(i) * 16 * 896}",
                f"buffer_load_dwordx4 v{vDW}, {sr4(S_WD)}, s{sT0} offen lds",
                f"s_add_u32 m0, s{sM0}, {ra + 1024}", f"s_add_u32 s{sT0}, s{sT0}, {8 * 896}",
                f"buffer_load_dwordx4 v{vDW}, {sr4(S_WD)}, s{sT0} offen lds"]

    abase = [0]

    def set_base(nb, regs):
        out = []
        if nb != abase[0]:
            d = nb - abase[0]
            for r in regs:
                out.append(f"v_add_u32 v{r}, {d}, v{r}" if d > 0 else f"v_subrev_u32 v{r}, {-d}, v{r}")
            abase[0] = nb
        return out

    def emit(x):
        if isinstance(x, tuple):
            a(x[1]); vm.add((x[0],))
        else:
            a(x)

    vm = VM()
    cnts = lambda t: {"A": 5, "B": 2}[t[0]] if t[0] in ("A", "B") else vm.q.count(t)
    a(f"""
    s_lshl_b32 s{sT0}, s{sJ}, 7
    v_add_u32 v{vDB0}, s{sT0}, v{vDB0}
    v_mul_u32_u24 v{vDG}, 3584, v{vT0}
    s_lshl_b32 s{sT0}, s{sJ}, 8
    v_add3_u32 v{vDG}, v{vDG}, v{vT3}, s{sT0}
    v_xor_b32 v{vDU}, 32, v{vDG}
    s_mov_b32 s{S_G+2}, {448 * 1792 * 2}
    s_mov_b32 s{S_U+2}, {448 * 1792 * 2}
    s_waitcnt lgkmcnt(0)
    s_mov_b64 s[{S_X}:{S_X+1}], s[{P_X}:{P_X+1}]
    s_mov_b64 s[{S_B0}:{S_B0+1}], s[{P_WQKV}:{P_WQKV+1}]
    s_mov_b64 s[{S_G}:{S_G+1}], s[{P_WG}:{P_WG+1}]
    s_mov_b64 s[{S_U}:{S_U+1}], s[{P_WU}:{P_WU+1}]
    """)

    def fA(st):
        b = (st % 4) * SLOT
        g = [dma(sMX, b, vDX0, S_X, st * 128), dma(sMX, b + 1024, vDX1, S_X, st * 128),
             dma(sMB, b, vDB0, S_B0, st * 64 * 2688), dma(sMB, b + 8192, vDG, S_G, st * 64 * 3584),
             dma(sMB, b + 16384, vDU, S_U, st * 64 * 3584)]
        return [(x, ("A", st)) for x in g]

    def bslot(sb):
        return ((3 + sb // 2) % 4) * SLOT + (sb % 2) * 16384

    def fB(sb):
        b = bslot(sb) - 16384
        g = [dma(sMB, b, vDG, S_G, sb * 64 * 3584 + 128), dma(sMB, b + 8192, vDU, S_U, sb * 64 * 3584 + 128)]
        return [(x, ("B", sb)) for x in g]

    for g in fA(0):
        emit_group(g)
    a("s_barrier")
    for g in fA(1):
        emit_group(g)
    common_setup2("f")
    a(f"""
    v_lshl_add_u32 v{vAW+1}, v{vN}, 13, v{vT3}
    v_add_u32 v{vAW+1}, {16384 + 8192}, v{vAW+1}
    v_xor_b32 v{vAW+2}, 32, v{vAW+1}
    s_cmp_ge_u32 s{sJ}, 7
    s_cselect_b32 s{sT1}, {KF - 7 * 4096}, {QF}
    s_cselect_b32 s{sSC}, 1.0, {f32bits(28 ** -0.5 * LOG2E):#x}
    s_lshl_b32 s{sT2}, s{sJ}, 12
    s_add_u32 s{sT1}, s{sT1}, s{sT2}
    s_lshl_b32 s{sT2}, s{sGRP}, 11
    s_add_u32 s{sT1}, s{sT1}, s{sT2}
    s_mul_i32 s{sQKO}, s{sTILE}, {TQ}
    s_add_u32 s{sQKO}, s{sQKO}, s{sT1}
    s_mul_i32 s{sHOFF}, s{sTILE}, 112
    s_lshl_b32 s{sT1}, s{sJ}, 3
    s_add_u32 s{sHOFF}, s{sHOFF}, s{sT1}
    s_lshl_b32 s{sT1}, s{sGRP}, 1
    s_add_u32 s{sHOFF}, s{sHOFF}, s{sT1}
    s_lshl_b32 s{sHOFF}, s{sHOFF}, 10
    s_add_u32 s{sHOFF}, s{sHOFF}, {HF}
    s_add_u32 s{sHOFF2}, s{sHOFF}, 4096
    """)
    WA = [WF, WF + 12, ACC + 48]
    NB = 4
    WB = [WF + 24, WF + 16, WF + 8, WF]

    def readsA(ks):
        st, s = ks // 4, ks % 4
        slot = st % 4
        out = set_base((slot // 2) * 2 * SLOT, [vAX, vAX+1, vAX+2, vAX+3, vAW, vAW+1, vAW+2])
        off = (slot % 2) * SLOT
        f = WA[ks % 3]
        out.append(f"ds_read_b128 {vr(X+4*ks, 4)}, v{vAX+s} offset:{off}")
        for t in range(3):
            for q in range(2):
                out.append(f"ds_read_b64_tr_b16 {vr(f+4*t+2*q, 2)}, v{vAW+t} offset:{off + (16*s + 4*q) * 128}")
        return out

    def readsB(ks):
        sb, s = ks // 4, ks % 4
        b = bslot(sb)
        f = WB[ks % NB]
        b32 = b - b % 32768
        off = b - b32
        out = set_base(b32 - 24576, [vAW+1, vAW+2])
        for t in range(2):
            for q in range(2):
                out.append(f"ds_read_b64_tr_b16 {vr(f+4*t+2*q, 2)}, v{vAW+1+t} offset:{off + (16*s + 4*q) * 128}")
        return out

    def epi_ffn(acc, ko, dst=None):
        g, u = acc, acc + 8
        dst = g if dst is None else dst
        o = []
        for i in range(8):
            o.append(f"v_mul_f32 v{u+i}, v{g+i}, v{u+i}")
            o.append(f"v_mul_f32 v{g+i}, s{sNL2E}, v{g+i}")
        for i in range(8):
            o.append(f"v_exp_f32 v{g+i}, v{g+i}")
        for i in range(8):
            o.append(f"v_add_f32 v{g+i}, 1.0, v{g+i}")
        for i in range(8):
            o.append(f"v_rcp_f32 v{g+i}, v{g+i}")
        for i in range(8):
            o.append(f"v_mul_f32 v{u+i}, v{u+i}, v{g+i}")
        for i in range(4):
            o.append(f"v_cvt_pk_bf16_f32 v{dst+i}, v{u+2*i}, v{u+2*i+1}")
        so, off = (sHOFF, ko) if ko < 4 else (sHOFF2, ko - 4)
        o.append(("H", f"buffer_store_dwordx4 {vr(dst, 4)}, v{vL16}, {sr4(S_WS)}, s{so} offen offset:{1024*off}{SC}"))
        return o

    def epi_qk():
        o = []
        for i in range(8):
            o.append(f"v_mul_f32 v{ACC+2*i}, s{sSC}, v{ACC+2*i}")
            o.append(f"v_mul_f32 v{ACC+2*i+1}, s{sSC}, v{ACC+2*i+1}")
            o.append(f"v_cvt_pk_bf16_f32 v{ACC+i}, v{ACC+2*i}, v{ACC+2*i+1}")
        o.append("s_nop 1")
        for hh in range(2):
            b = ACC + 4 * hh
            o.append(f"v_permlane32_swap_b32 v{b}, v{b+2}")
            o.append(f"v_permlane32_swap_b32 v{b+1}, v{b+3}")
            o.append(("QK", f"buffer_store_dwordx4 {vr(b, 4)}, v{vL16}, {sr4(S_WS)}, s{sQKO} offen offset:{1024*hh}{SC}"))
        return o

    abase[0] = 0
    a(f"s_waitcnt vmcnt({vm.wait({('A', 0)}, cnts)})\ns_barrier")
    stamp(a, "p1_first")
    for ks in range(2):
        for r in readsA(ks):
            a(r)
    pend = fA(2) + fA(3)
    vFQf = vST
    fillA = flag_addr(False, vFLA, vFQf)
    for ks in range(28):
        st, s = ks // 4, ks % 4
        f = WA[ks % 3]
        m = [f"{MFMA} {vr(ACC+16*t, 16)}, {vr(f+4*t, 4)}, {vr(X+4*ks, 4)}, {'0' if ks == 0 else vr(ACC+16*t, 16)}" for t in range(3)]
        if s == 2:
            need = {("A", st + 1)} if st < 6 else {("B", 0), ("B", 1), ("B", 2), ("B", 3), ("N",)}
            a(f"s_waitcnt vmcnt({vm.wait(need, cnts)}) lgkmcnt(0)")
            if st == 6:
                nonce_get("f")
            a("s_barrier")
            stamp(a, f"p1_a{st}")
            if st + 4 <= 6:
                pend += fA(st + 4)
            else:
                i0 = 2 * (st - 3)
                pend += fB(i0) + (fB(i0 + 1) if i0 + 1 < 7 else [])
            if st == 2:
                pend.append(nonce_ld)
            if "nopf" not in OPT and st == PF2_ST: pend.append(pf2())
            if "nopf" not in OPT and st == PF3_ST: pend.append(pf3())
        elif ks < 27:
            a("s_waitcnt lgkmcnt(7)")
        else:
            a("s_waitcnt lgkmcnt(4)")
        r = readsA(ks + 2) if ks + 2 < 28 else readsB(ks + 2 - 28)
        k = len(r) - 4 if ks + 2 < 28 else len(r) - 2
        a(m[0])
        for x in r[:k]:
            a(x)
        a(m[1])
        for x in r[k:]:
            a(x)
        a(m[2])
        if ks >= 16:
            assert vm.q.count(("A", 6)) == 5
            for _ in range(7):
                if fillA: a(fillA.pop(0))
        nd = 2 if (len(pend) > 4 or st < 1) else 1
        for _ in range(nd):
            if pend:
                emit_group(pend.pop(0))
    assert not fillA
    stamp(a, "p1_aend")
    for x in readsB(2):
        a(x)
    ea, eb = epi_ffn(ACC + 16, 0, X + 16), epi_ffn(ACC + 32, 1, X + 20)
    fillq = ["s_nop 3"] + epi_qk()
    fill = ea + eb
    wq = [0, 1, 2, 7, 3, 4, 5, 6]
    sWH, sMH2 = sMX, sOK
    for ks in range(28):
        f = WB[ks % NB]
        m = [f"{MFMA} {vr(ACC+48+16*t, 16)}, {vr(f+4*t, 4)}, {vr(X+4*ks, 4)}, {'0' if ks == 0 else vr(ACC+48+16*t, 16)}" for t in range(2)]
        nxt = ks + NB - 1
        if ks == QKB:
            need = {5: {("B", 2), ("B", 3), ("N",)}, QKB: {("B", 4), ("B", 5), ("B", 6), ("QK",)}, 17: set()}[ks]
            if ks == QKB: assert vm.q.count(("QK",)) == 2 and QKB <= 13
            if need: a(f"s_waitcnt vmcnt({vm.wait(need, cnts)})")
            a("s_barrier")
            stamp(a, {5: "p1_b2", QKB: "p1_b4", 17: "p1_b5"}[ks])
            if ks == QKB:
                a(f"""
                s_cmp_lg_u32 s{sW}, 7
                s_cbranch_scc1 k1_noflag_f
                s_mov_b32 s{sT0}, {FQ}
                buffer_store_dword v{vNON}, v{vFQf}, {sr4(S_WS)}, s{sT0} offen{SC}
                """)
                a.label("k1_noflag_f")
        stamp(a, f"pb{ks}")
        a(f"s_waitcnt lgkmcnt({min(NB - 2, 27 - ks) * 4})")
        r = readsB(nxt) if nxt < 28 else []

        def dofill():
            if ks < 1: return
            if fillq:
                for _ in range(5):
                    if fillq: emit(fillq.pop(0))
            else:
                for _ in range(FPER):
                    if fill and isinstance(fill[0], tuple) and ks < HA_ST and len(fill) > 1:
                        fill[0], fill[1] = fill[1], fill[0]
                    if fill and not (isinstance(fill[0], tuple) and ks < HA_ST): emit(fill.pop(0))
        a(m[0])
        for x in r[:len(r) - 2]:
            a(x)
        if pend:
            emit_group(pend.pop(0))
        dofill()
        a(m[1])
        for x in r[len(r) - 2:]:
            a(x)
        dofill()
        if wq and ks >= WP_ST and (ring_addr(wq[0]) < 122880 or ks >= QKB) and not pend:
            i = wq.pop(0)
            if i == 0:
                a(f"""
                s_mul_i32 s{sWH}, s{sGRP}, {8 * 896}
                s_add_u32 s{sWH}, s{sWH}, s{sWB}
                s_cmp_ge_u32 s{sI32}, 28
                s_cselect_b32 s{sWH}, {OOB}, s{sWH}
                s_lshl_b32 s{sMH2}, s{sGRP}, 10
                s_add_u32 s{sMH2}, s{sMH2}, s{sM0}
                """)
            a(f"""
            s_add_u32 m0, s{sMH2}, {ring_addr(i)}
            s_add_u32 s{sT0}, s{sWH}, {wk_off(i) * 16 * 896}
            buffer_load_dwordx4 v{vDW}, {sr4(S_WD)}, s{sT0} offen lds
            """)
            vm.add(("WP",))
        if ks == EARLY_P:
            a(f"""
            s_cmp_lg_u32 s{sW}, 0
            s_cbranch_scc1 k1_nopoll
            buffer_load_dword v{vPOL}, v{vFLA}, {sr4(S_WS)}, s{sFQB} offen{SC}
            buffer_load_dword v{vPOL+1}, v{vFLA+1}, {sr4(S_WS)}, s{sFQB} offen{SC}
            """)
            a.label("k1_nopoll")
    assert not fill and not pend and not wq
    stamp(a, "pb28")
    a(f"""
    s_cmp_lg_u32 s{sW}, 0
    s_cbranch_scc1 k1_nochk
    s_waitcnt vmcnt(0)
    """)
    poll_cmp(a, 2, vPOL)
    a(f"""
    s_cmp_eq_u64 vcc, 0
    s_cselect_b32 s{sT0}, 1, 0
    """)
    lds_set(a, 4, f"s{sT0}", vT0)
    a("s_waitcnt lgkmcnt(0)")
    a.label("k1_nochk")
    a(f"""
    s_cmp_ge_u32 s{sW}, 4
    s_cbranch_scc1 k1_nodr
    s_waitcnt vmcnt(0)
    """)
    a.label("k1_nodr")
    a(f"""
    s_barrier
    s_mov_b32 s{sOK}, 0
    s_cmp_ge_u32 s{sW}, 4
    s_cbranch_scc1 k1_epi
    v_mov_b32 v{vT0}, {CNT + 4}
    ds_read_b32 v{vT1}, v{vT0}
    s_waitcnt lgkmcnt(0)
    v_readfirstlane_b32 s{sOK}, v{vT1}
    s_cmp_eq_u32 s{sOK}, 1
    s_cbranch_scc1 k1_early
    s_cmp_lg_u32 s{sW}, 0
    s_cbranch_scc1 k1_epi
    buffer_load_dword v{vPOL}, v{vFLA}, {sr4(S_WS)}, s{sFQB} offen{SC}
    buffer_load_dword v{vPOL+1}, v{vFLA+1}, {sr4(S_WS)}, s{sFQB} offen{SC}
    s_branch k1_epi
    """)
    a.label("k1_early")
    stamp(a, "x_go")
    o1, o2, _, flat = att_loads()
    for x in flat(o1):
        a(x)
    stamp(a, "p1_bend")
    e0, e1 = epi_ffn(ACC + 48, 4, HBR), epi_ffn(ACC + 64, 5, HBR + 4)
    ev = e0[:-1] + e1[:-1]
    step = len(ev) // len(o2)
    for x in o2:
        for _ in range(step):
            a(ev.pop(0))
        for y in flat([x]):
            a(y)
    for x in ev:
        a(x)
    stamp(a, "p1_end")
    a("s_branch att_main")
    a.label("k1_epi")
    a("s_nop 7")
    stamp(a, "p1_bend")
    for x in e0[:-1] + e1[:-1]:
        a(x)
    stamp(a, "p1_end")
    a(f"""
    s_cmp_ge_u32 s{sW}, 4
    s_cbranch_scc1 gemm_role_f
    s_cmp_lg_u32 s{sW}, 0
    s_cbranch_scc1 aq_lw
    s_waitcnt vmcnt(0)
    """)
    poll_cmp(a, 2, vPOL)
    a(f"""
    s_cmp_eq_u64 vcc, 0
    s_cbranch_scc1 aq_ok
    s_branch att_spin
    """)

    a.label("k1_v")
    vm = VM()
    cntv = lambda t: {"A": 5, "B": 1}[t[0]] if t[0] in ("A", "B") else vm.q.count(t)
    GWL = CNT + 1024
    a(f"""
    v_add_u32 v{vDU}, {(896 + 192) * 2}, v{vDB0}
    s_cmp_eq_u32 s{sJ}, 14
    s_cselect_b32 s{sT0}, 0, 512
    s_add_u32 s{sT0}, s{sT0}, {896 * 2}
    v_add_u32 v{vDB0}, s{sT0}, v{vDB0}
    s_mov_b32 s{S_U+2}, {448 * 2}
    s_waitcnt lgkmcnt(0)
    s_mov_b64 s[{S_X}:{S_X+1}], s[{P_X}:{P_X+1}]
    s_mov_b64 s[{S_B0}:{S_B0+1}], s[{P_WQKV}:{P_WQKV+1}]
    s_mov_b64 s[{S_U}:{S_U+1}], s[{P_GW}:{P_GW+1}]
    """)

    def vA(st):
        b = (st % 4) * SLOT
        g = [dma(sMX, b, vDX0, S_X, st * 128), dma(sMX, b + 1024, vDX1, S_X, st * 128)]
        for bi in range(3):
            g.append(dma(sMB, b + 8192 * bi, vDB0, S_B0, st * 64 * 2688 + 128 * bi))
        return [(x, ("A", st)) for x in g]

    def vbslot(sb):
        return 3 * SLOT + sb * 8192 if sb < 4 else (sb - 4) * 8192

    def vB(sb):
        return [(dma(sMB, vbslot(sb) - 16384, vDU, S_B0, sb * 64 * 2688), ("B", sb))]

    gw_ld = ([f"s_mov_b32 m0, {GWL}", "s_nop 0", f"buffer_load_dwordx4 v{vL16}, {sr4(S_U)}, 0 offen lds"], ("GW",))

    for g in vA(0):
        emit_group(g)
    a("s_barrier")
    for g in vA(1):
        emit_group(g)
    common_setup2("v")
    vAZ = vAW + 3
    a(f"""
    v_add_u32 v{vAW+1}, 8192, v{vAW}
    v_add_u32 v{vAW+2}, 16384, v{vAW}
    s_sub_u32 s{sT1}, s{sJ}, 14
    s_lshl_b32 s{sT1}, s{sT1}, 6
    v_xor_b32 v{vAZ}, s{sT1}, v{vAW}
    v_lshlrev_b32 v{vST+1}, 4, v{vT1}
    v_add_u32 v{vST+1}, {GWL}, v{vST+1}
    s_cmp_eq_u32 s{sJ}, 14
    s_cselect_b32 s{sT1}, 0, 4096
    s_lshl_b32 s{sT2}, s{sGRP}, 9
    s_add_u32 s{sT1}, s{sT1}, s{sT2}
    s_mul_i32 s{sHOFF}, s{sTILE}, {TQ}
    s_add_u32 s{sHOFF}, s{sHOFF}, s{sT1}
    s_add_u32 s{sHOFF}, s{sHOFF}, {VF}
    s_add_u32 s{sHOFF2}, s{sHOFF}, 14336
    v_mul_u32_u24 v{vST}, {7168 - 512}, v{vT1}
    v_add_u32 v{vST}, v{vST}, v{vL16}
    """)

    def readsVA(ks):
        st, s = ks // 4, ks % 4
        slot = st % 4
        out = set_base((slot // 2) * 2 * SLOT, [vAX, vAX+1, vAX+2, vAX+3, vAW, vAW+1, vAW+2, vAZ])
        off = (slot % 2) * SLOT
        f = WA[ks % 3]
        out.append(f"ds_read_b128 {vr(X+4*ks, 4)}, v{vAX+s} offset:{off}")
        for t in range(3):
            for q in range(2):
                out.append(f"ds_read_b64_tr_b16 {vr(f+4*t+2*q, 2)}, v{vAW+t} offset:{off + (16*s + 4*q) * 128}")
        return out

    NBV = 6
    WBV = [WF + 24, WF + 28, WF + 16, WF + 20, WF + 12, WF + 8]

    def readsVB(ks, z):
        sb, s = ks // 4, ks % 4
        f = WBV[ks % NBV]
        if z:
            return [f"ds_read_b128 {vr(f, 4)}, v{vST+1} offset:{32*ks}"]
        b = vbslot(sb)
        nb = (3 * SLOT if sb < 4 else 0)
        out = set_base(nb - 16384, [vAZ])
        off = b - nb
        for q in range(2):
            out.append(f"ds_read_b64_tr_b16 {vr(f+2*q, 2)}, v{vAZ} offset:{off + (16*s + 4*q) * 128}")
        return out

    def epi_v(acc, bi):
        o = [f"v_cvt_pk_bf16_f32 v{acc+i}, v{acc+2*i}, v{acc+2*i+1}" for i in range(8)]
        o.append(f"buffer_store_dwordx4 {vr(acc, 4)}, v{vST}, {sr4(S_WS)}, s{sHOFF} offen offset:{1024*bi}{SC}")
        o.append(f"buffer_store_dwordx4 {vr(acc+4, 4)}, v{vST}, {sr4(S_WS)}, s{sHOFF2} offen offset:{1024*bi}{SC}")
        return o

    abase[0] = 0
    a(f"s_waitcnt vmcnt({vm.wait({('A', 0)}, cntv)})\ns_barrier")
    stamp(a, "p1_first")
    for ks in range(2):
        for r in readsVA(ks):
            a(r)
    pend = vA(2) + vA(3)
    fillA = flag_addr(True, vFLA, vDG)
    for ks in range(28):
        st, s = ks // 4, ks % 4
        f = WA[ks % 3]
        m = [f"{MFMA} {vr(ACC+16*t, 16)}, {vr(X+4*ks, 4)}, {vr(f+4*t, 4)}, {'0' if ks == 0 else vr(ACC+16*t, 16)}" for t in range(3)]
        if s == 2:
            need = {("A", st + 1)} if st < 6 else {("B", x) for x in range(7)} | {("N",), ("GW",)}
            a(f"s_waitcnt vmcnt({vm.wait(need, cntv)}) lgkmcnt(0)")
            if st == 6:
                nonce_get("v")
            a("s_barrier")
            if st + 4 <= 6:
                pend += vA(st + 4)
            elif st == 3:
                pend += vB(0) + vB(1) + vB(2) + vB(3)
            elif st == 4:
                pend += vB(4) + vB(5) + vB(6) + [gw_ld]
            if st == 2:
                pend.append(nonce_ld)
            if "nopf" not in OPT and st == PF2_ST: pend.append(pf2())
            if "nopf" not in OPT and st == PF3_ST: pend.append(pf3())
        elif ks < 27:
            a("s_waitcnt lgkmcnt(7)")
        r = readsVA(ks + 2) if ks + 2 < 28 else []
        k = max(len(r) - 4, 0)
        a(m[0])
        for x in r[:k]:
            a(x)
        a(m[1])
        for x in r[k:]:
            a(x)
        a(m[2])
        if ks >= 16:
            assert vm.q.count(("A", 6)) == 5
            for _ in range(7):
                if fillA: a(fillA.pop(0))
        nd = 2 if (len(pend) > 4 or st < 1) else 1
        for _ in range(nd):
            if pend:
                emit_group(pend.pop(0))
    assert not fillA and not pend
    stamp(a, "p1_aend")
    VB = ACC + 48

    def passVB(z, fill):
        nrd = 1 if z else 2
        for ks in range(NBV - 1):
            for x in readsVB(ks, z):
                a(x)
        for ks in range(28):
            f = WBV[ks % NBV]
            c = vr(VB, 16)
            ops = f"{vr(f, 4)}, {vr(X+4*ks, 4)}" if z else f"{vr(X+4*ks, 4)}, {vr(f, 4)}"
            a(f"s_waitcnt lgkmcnt({min(NBV - 2, 27 - ks) * nrd})")
            a(f"{MFMA} {c}, {ops}, {'0' if ks == 0 else c}")
            if ks + NBV - 1 < 28:
                for x in readsVB(ks + NBV - 1, z):
                    a(x)
            for _ in range(3):
                if fill: a(fill.pop(0))
        assert not fill

    a(f"s_cmp_eq_u32 s{sGRP}, 1\ns_cbranch_scc1 k1_vg1")
    passVB(False, ["s_nop 1"] + epi_v(ACC, 0) + epi_v(ACC + 16, 1) + epi_v(ACC + 32, 2))
    a(f"""
    s_mul_i32 s{sHOFF}, s{sTILE}, {TQ}
    s_lshl_b32 s{sT1}, s{sJ}, 9
    s_add_u32 s{sHOFF}, s{sHOFF}, s{sT1}
    s_add_u32 s{sHOFF}, s{sHOFF}, {VF + 192 * 16 - 14 * 512}
    s_add_u32 s{sHOFF2}, s{sHOFF}, 14336
    s_nop 7
    """)
    for x in epi_v(VB, 0):
        a(x)
    stamp(a, "p1_bend")
    a(f"""
    s_waitcnt vmcnt(0)
    s_barrier
    """)
    stamp(a, "p1_end")
    a(f"""
    s_cmp_lg_u32 s{sW}, 3
    s_cbranch_scc1 k1_noflag_v
    s_mov_b32 s{sT0}, {FQ}
    buffer_store_dword v{vNON}, v{vDG}, {sr4(S_WS)}, s{sT0} offen{SC}
    """)
    a(flag1(a, sFHA))
    a.label("k1_noflag_v")
    a("s_branch att_spin")
    a.label("k1_vg1")
    a("s_nop 7")
    for x in epi_v(ACC, 0) + epi_v(ACC + 16, 1) + epi_v(ACC + 32, 2):
        a(x)
    stamp(a, "p1_bend")
    a(f"""
    s_waitcnt vmcnt(0)
    s_barrier
    """)
    stamp(a, "p1_end")
    a(f"s_mov_b32 s{sHOFF2}, {OOB}\ns_cmp_eq_u32 s{sJ}, 14\ns_cbranch_scc1 gemm_role")
    passVB(True, [])
    t = WF
    a(f"""
    s_nop 7
    s_nop 3
    v_mul_f32 v{t}, s{sNL2E}, v{VB}
    v_exp_f32 v{t}, v{t}
    v_and_b32 v{t+1}, 31, v{vLane}
    v_add_f32 v{t}, 1.0, v{t}
    v_rcp_f32 v{t}, v{t}
    v_lshlrev_b32 v{t+1}, 2, v{t+1}
    s_lshl_b32 s{sT0}, s{sTILE}, 7
    s_add_u32 s{sT0}, s{sT0}, {GF}
    buffer_store_dword v{t}, v{t+1}, {sr4(S_WS)}, s{sT0} offen{SC}
    s_waitcnt vmcnt(0)
    """)
    a.label("gemm_role")
    for i in range(8):
        for x in wpref(i):
            a(x)
    a("s_branch gemm_role2")
    a.label("gemm_role_f")
    a(f"""
    v_mov_b32 v{vT0}, {CNT + 32}
    v_mov_b32 v{vT1}, 1
    s_waitcnt vmcnt(0)
    s_mov_b64 exec, 1
    ds_add_rtn_u32 v{vT1}, v{vT0}, v{vT1}
    s_mov_b64 exec, -1
    s_waitcnt lgkmcnt(0)
    v_readfirstlane_b32 s{sT0}, v{vT1}
    s_cmp_lg_u32 s{sT0}, 3
    s_cbranch_scc1 gemm_role2
    """)
    a(flag1(a, sFHA))
    a.label("gemm_role2")
    gen_gemm(a, wpref)
    gen_attention(a)
    a.label("k_end")
    a("s_endpgm")
    return a.text()


vAWr = 16
RB = [0, 98304]


def wtr_setup(a):
    a(f"""
    v_bfe_u32 v{vT0}, v{vLane}, 4, 1
    v_bfe_u32 v{vT1}, v{vLane}, 2, 2
    v_and_b32 v{vT2}, 2, v{vT1}
    v_xor_b32 v{vT2}, v{vT2}, v{vT0}
    s_and_b32 s{sT0}, s{sKQ}, 1
    s_lshl_b32 s{sT0}, s{sT0}, 1
    v_xor_b32 v{vT2}, s{sT0}, v{vT2}
    v_lshrrev_b32 v{vT3}, 5, v{vLane}
    v_lshl_add_u32 v{vT3}, v{vT3}, 2, v{vT1}
    v_lshlrev_b32 v{vT3}, 7, v{vT3}
    v_lshl_add_u32 v{vT3}, v{vT2}, 5, v{vT3}
    v_and_b32 v{vT2}, 3, v{vLane}
    v_lshl_add_u32 v{vT3}, v{vT2}, 3, v{vT3}
    v_add_u32 v{vAWr}, s{sM0}, v{vT3}
    v_xor_b32 v{vAWr+1}, 64, v{vAWr}
    v_add_u32 v{vAWr+2}, {RB[1]}, v{vAWr}
    v_add_u32 v{vAWr+3}, {RB[1]}, v{vAWr+1}
    v_mov_b32 v{vAWr+4}, v{vT3}
    """)


def wtr_reads(slot, dst):
    ra = ring_addr(slot)
    bi = max(i for i in range(2) if RB[i] <= ra)
    out = []
    for T in range(2):
        for q in range(2):
            out.append(f"ds_read_b64_tr_b16 {vr(dst+4*T+2*q, 2)}, v{vAWr+2*bi+T} offset:{ra - RB[bi] + q*1024}")
    return out


def bcast_poll(a, tag, leader, addrs, soff, vtmp, sleep, ldsoff, pre=None, lsleep=2):
    a(f"s_cmp_lg_u32 s{sW}, {leader}\ns_cbranch_scc1 {tag}_lw")
    if pre:
        pre()
    poll(a, addrs, soff, vtmp, sleep)
    a.label(f"{tag}_ok")
    lds_set(a, ldsoff, 1, vT0)
    a(f"s_branch {tag}_go")
    a.label(f"{tag}_lw")
    lds_wait(a, ldsoff, vT0, "eq1", lsleep)
    a.label(f"{tag}_go")


def gen_gemm(a, wpref):
    ACC = 64
    ACT = 128
    WFB = [32, 40]
    vA0, vA1, vG0, vFl, vFl2, vMB = 21, 22, 23, 25, 24, 26
    sA0, sB0w, sFH2, sMO2, sDONE, sNEW, sH = 45, 46, 47, 48, 49, 50, 52
    DA = GDA
    stamp(a, "x_role")
    wtr_setup(a)
    srd(a, S_WO, P_WO, 448 * 448 * 2)
    srd(a, S_OUT, P_OUT, 2048 * 448 * 2)
    a(f"""
    s_lshr_b32 s{sMO2}, s{sKQ}, 1
    s_mul_i32 s{sT0}, s{sMO2}, {112 * 1024}
    v_add_u32 v{vA0}, s{sT0}, v{vL16}
    s_sub_u32 s{sT0}, {112 * 1024}, s{sT0}
    v_add_u32 v{vA1}, s{sT0}, v{vL16}
    s_lshr_b32 s{sT1}, s{sMT}, 1
    s_lshl_b32 s{sT1}, s{sT1}, 9
    s_add_u32 s{sT1}, s{sT1}, {FH}
    s_lshl_b32 s{sFH2}, s{sMT}, 10
    s_add_u32 s{sFH2}, s{sFH2}, {FHB}
    s_mul_i32 s{sA0}, s{sMT}, 224
    s_add_u32 s{sA0}, s{sA0}, s{sKQ}
    s_lshl_b32 s{sA0}, s{sA0}, 10
    s_add_u32 s{sA0}, s{sA0}, {HF}
    s_mul_i32 s{sB0w}, s{sKQ}, {112 * 896}
    s_lshl_b32 s{sT0}, s{sNT}, 7
    s_add_u32 s{sB0w}, s{sB0w}, s{sT0}
    v_and_b32 v{vFl}, 0x1ff, v{vFLA}
    v_and_b32 v{vFl2}, 0x3ff, v{vFLA}
    s_add_u32 s{sT2}, s{sM0}, {MERGE + MBOX}
    v_add_u32 v{vMB}, s{sT2}, v{vL16}
    s_sub_u32 s{sHOFF}, s{sHOFF2}, 2048
    s_cmp_lt_u32 s{sI32}, 28
    s_cbranch_scc1 gemm_has
    """)

    def hb_all():
        lds_wait(a, 24, vT0, "eq4", 1)
        a(f"""
        ds_read_b128 {vr(HBR+8, 4)}, v{vMB}
        ds_read_b128 {vr(HBR+12, 4)}, v{vMB} offset:1024
        """)

    def hb_st():
        return hb_stores() + [f"buffer_store_dwordx4 {vr(HBR+8+4*i, 4)}, v{vL16}, {sr4(S_WS)}, s{sHOFF} offen offset:{1024*i}{SC}" for i in range(2)]
    hb_all()
    a("s_waitcnt lgkmcnt(0)")
    for x in hb_st():
        a(x)
    a("s_waitcnt vmcnt(0)")
    a(flag1(a, sFHO))
    a("s_endpgm")
    a.label("gemm_has")
    bcast_poll(a, "gA", 4, [vFl], sT1, vG0, SLEEP_H, 8)
    hb_all()
    stamp(a, "x_go"); stamp(a, "x_loop")
    vm = VM()
    for i in range(0, 8):
        vm.add(("w", i))

    def act_loads(i):
        r = ACT + 8 * (i % DA)
        a(f"""
        s_add_u32 s{sT0}, s{sA0}, {wk_off(i) * 1024}
        buffer_load_dwordx4 {vr(r, 4)}, v{vA0}, {sr4(S_WS)}, s{sT0} offen{SC}
        buffer_load_dwordx4 {vr(r+4, 4)}, v{vA1}, {sr4(S_WS)}, s{sT0} offen{SC}
        """)
        vm.add(("a", i)); vm.add(("a", i))

    def w_loads(i):
        if i < 28:
            for x in wpref(i):
                a(x)
        else:
            ra = ring_addr(wslot(i))
            off = (28 * ((i - 28) // 2) + 16 * ((i - 28) % 2)) * 896
            a(f"""
            s_add_u32 m0, s{sM0}, {ra}
            s_add_u32 s{sT0}, s{sB0w}, {off}
            buffer_load_dwordx4 v{vDW}, {sr4(S_WO)}, s{sT0} offen lds
            s_add_u32 m0, s{sM0}, {ra + 1024}
            s_add_u32 s{sT0}, s{sT0}, {8 * 896}
            buffer_load_dwordx4 v{vDW}, {sr4(S_WO)}, s{sT0} offen lds
            """)
        vm.add(("w", i)); vm.add(("w", i))

    na, nw = 0, 8
    for i in range(GPRE):
        act_loads(na); na += 1
        if nw < GPRE + 1:
            w_loads(nw); nw += 1
    a("s_waitcnt lgkmcnt(0)")
    for x in hb_st():
        a(x); vm.add(("hb",))
    a(f"s_waitcnt vmcnt({vm.wait({('w', 0)})})")
    for x in wtr_reads(0, WFB[0]):
        a(x)
    gotB = False
    for i in range(28):
        need = {("a", i)}
        if i + 1 < 28:
            need.add(("w", i + 1))
        a(f"s_waitcnt vmcnt({vm.wait(need)}) lgkmcnt(0)")
        if i + 1 < 28:
            for x in wtr_reads((i + 1) % 13, WFB[(i + 1) % 2]):
                a(x)
        for mt in range(2):
            for T in range(2):
                c = vr(ACC + 32 * mt + 16 * T, 16)
                a(f"{MFMA} {c}, {vr(WFB[i%2]+4*T, 4)}, {vr(ACT+8*(i%DA)+4*mt, 4)}, {'0' if i == 0 else c}")
        if i == GPRE:
            a(flag1(a, sFHO))
        if i == GB_AT:
            stamp(a, "g_b0")
            bcast_poll(a, "gB", 4, [vFl2], sFH2, vPOL, SLEEP_H, 12)
            stamp(a, "g_b1")
            gotB = True
            a(f"""
            v_and_b32 v{vT0}, 31, v{vLane}
            v_lshlrev_b32 v{vT0}, 2, v{vT0}
            s_lshl_b32 s{sT1}, s{sMT}, 1
            s_add_u32 s{sT1}, s{sT1}, s{sMO2}
            s_lshl_b32 s{sT1}, s{sT1}, 7
            s_add_u32 s{sT1}, s{sT1}, {GF}
            buffer_load_dword v{vG0}, v{vT0}, {sr4(S_WS)}, s{sT1} offen{SC}
            """)
            vm.add(("g",))
        for _ in range(2):
            if na < 28 and na <= i + DA and (na < 14 or gotB):
                act_loads(na); na += 1
            if nw < 36 and nw <= i + min(13, DA + 1) and (nw < 28 or wslot(nw) + 13 <= i):
                w_loads(nw); nw += 1
    assert na == 28
    while nw < 36:
        w_loads(nw); nw += 1
    stamp(a, "x_lend")
    XS = [0, 1, 6, 7]
    R, AA, SL = 128, ACC + 16, 128
    vX0, vX1, vC1, vOUT, vWa = 26, 27, 28, 30, 29

    def xaddr(reg, x):
        a(f"""
        s_xor_b32 s{sT0}, s{sKQ}, {x}
        s_lshl_b32 s{sT0}, s{sT0}, 11
        v_add_u32 v{reg}, s{sT0}, v{vL16}
        v_add_u32 v{reg+1}, {RB[1]}, v{reg}
        """)

    def xo(i):
        ra = ring_addr(XS[i // 2]) + (i % 2) * 1024
        return (vX0, ra) if ra < RB[1] else (vX1, ra - RB[1])

    def gsync(off, tag):
        a(f"""
        v_mov_b32 v{vC1}, {CNT + off}
        v_mov_b32 v{vT0}, 1
        s_waitcnt vmcnt(0) lgkmcnt(0)
        s_mov_b64 exec, 1
        ds_add_u32 v{vC1}, v{vT0}
        s_mov_b64 exec, -1
        """)
        a.label(tag)
        a(f"""
        ds_read_b32 v{vT0}, v{vC1}
        s_waitcnt lgkmcnt(0)
        v_readfirstlane_b32 s{sT0}, v{vT0}
        s_cmp_eq_u32 s{sT0}, 4
        s_cbranch_scc1 {tag}_d
        s_sleep 1
        s_branch {tag}
        """)
        a.label(f"{tag}_d")

    xaddr(vX0, 0)
    a("s_nop 7")
    for i in range(8):
        r_, o_ = xo(i)
        a(f"ds_write_b128 v{r_}, {vr(ACC+32+4*i, 4)} offset:{o_}")
    xaddr(vX0, 2)
    gsync(16, "gs1")
    for i in range(8):
        r_, o_ = xo(i)
        a(f"ds_read_b128 {vr(R+4*i, 4)}, v{r_} offset:{o_}")
    a("s_waitcnt lgkmcnt(0)")
    for i in range(16, 32):
        a(f"v_add_f32 v{ACC+i}, v{ACC+i}, v{R+i}")
    for i in range(4):
        r_, o_ = xo(i)
        a(f"ds_write_b128 v{r_}, {vr(ACC+16+4*i, 4)} offset:{o_}")
    for i in range(16):
        a(f"v_add_f32 v{ACC+i}, v{ACC+i}, v{R+i}")
    xaddr(vX0, 3)
    gsync(28, "gs2")
    for i in range(4):
        r_, o_ = xo(i)
        a(f"ds_read_b128 {vr(R+4*i, 4)}, v{r_} offset:{o_}")
    a(f"""
    v_sub_f32 v{vT2}, 1.0, v{vG0}
    s_lshl_b32 s{sT1}, s{sMT}, 1
    s_add_u32 s{sT1}, s{sT1}, s{sMO2}
    s_lshl_b32 s{sFH2}, s{sT1}, 9
    s_add_u32 s{sFH2}, s{sFH2}, {FO}
    s_lshl_b32 s{sA0}, s{sT1}, 15
    s_add_u32 s{sA0}, s{sA0}, {OF}
    s_mul_i32 s{sT2}, s{sT1}, {32 * 896}
    s_lshl_b32 s{sT1}, s{sNT}, 7
    s_add_u32 s{sT2}, s{sT2}, s{sT1}
    s_and_b32 s{sT1}, s{sKQ}, 1
    s_lshl_b32 s{sT1}, s{sT1}, 6
    s_add_u32 s{sT2}, s{sT2}, s{sT1}
    v_and_b32 v{vFl}, 31, v{vLane}
    v_mul_u32_u24 v{vOUT}, 896, v{vFl}
    v_lshrrev_b32 v{vT3}, 5, v{vLane}
    v_lshl_add_u32 v{vOUT}, v{vT3}, 4, v{vOUT}
    v_and_b32 v{vFl}, 0x1ff, v{vFLA}
    s_mov_b32 s{sDONE}, 0xffff0000
    s_mov_b32 s{sSPIN}, {SPIN_MAX}
    s_waitcnt lgkmcnt(0)
    """)
    for i in range(16):
        a(f"v_add_f32 v{ACC+i}, v{ACC+i}, v{R+i}")
    for i in range(16):
        a(f"v_mul_f32 v{ACC+i}, v{ACC+i}, v{vT2}")
        a(f"v_mov_b32 v{AA+i}, 0")
    stamp(a, "p3_poll")
    a.label("p3_poll")
    a(f"""
    buffer_load_dword v{vPOL}, v{vFl}, {sr4(S_WS)}, s{sFH2} offen{SC}
    s_waitcnt vmcnt(0)
    v_cmp_eq_u32 vcc, s{sNONCE}, v{vPOL}
    s_sub_u32 s{sSPIN}, s{sSPIN}, 1
    s_cbranch_scc1 p3_fin
    s_andn2_b32 s{sNEW}, vcc_lo, s{sDONE}
    s_cbranch_scc1 p3_batch
    s_sleep {SLEEP_O}
    s_branch p3_poll
    """)
    a.label("p3_batch")
    for k in range(4):
        o, w = SL + 16 * k, SL + 16 * k + 8
        a(f"""
        s_ff1_i32_b32 s{sH}, s{sNEW}
        s_bitset0_b32 s{sNEW}, s{sH}
        s_bitset1_b32 s{sDONE}, s{sH}
        s_lshl_b32 s{sT0}, s{sH}, 11
        s_add_u32 s{sT0}, s{sT0}, s{sA0}
        buffer_load_dwordx4 {vr(o, 4)}, v{vL16}, {sr4(S_WS)}, s{sT0} offen{SC}
        buffer_load_dwordx4 {vr(o+4, 4)}, v{vL16}, {sr4(S_WS)}, s{sT0} offen offset:1024{SC}
        s_bitcmp1_b32 s{sH}, 1
        s_cselect_b32 s{sT0}, 0, {ring_addr(2)}
        s_and_b32 s{sT1}, s{sH}, 1
        s_lshl_b32 s{sT1}, s{sT1}, 14
        s_add_u32 s{sT0}, s{sT0}, s{sT1}
        s_lshr_b32 s{sT1}, s{sH}, 2
        s_lshl_b32 s{sT1}, s{sT1}, 11
        s_add_u32 s{sT0}, s{sT0}, s{sT1}
        v_add_u32 v{vWa}, s{sT0}, v{vAWr+4}
        ds_read_b64_tr_b16 {vr(w, 2)}, v{vWa}
        ds_read_b64_tr_b16 {vr(w+2, 2)}, v{vWa} offset:1024
        ds_read_b64_tr_b16 {vr(w+4, 2)}, v{vWa} offset:8192
        ds_read_b64_tr_b16 {vr(w+6, 2)}, v{vWa} offset:9216
        """)
        if k == 2:
            a("s_waitcnt lgkmcnt(4)")
        if k < 3:
            a(f"s_cmp_eq_u32 s{sNEW}, 0\ns_cbranch_scc1 p3_run{k}")
    for k in range(3, -1, -1):
        o, w = SL + 16 * k, SL + 16 * k + 8
        a.label(f"p3_run{k}")
        a(f"""
        s_waitcnt vmcnt(0) lgkmcnt(0)
        {MFMA} {vr(AA, 16)}, {vr(w, 4)}, {vr(o, 4)}, {vr(AA, 16)}
        {MFMA} {vr(AA, 16)}, {vr(w+4, 4)}, {vr(o+4, 4)}, {vr(AA, 16)}
        """)
    a(f"""
    s_cmp_lg_u32 s{sNEW}, 0
    s_cbranch_scc1 p3_batch
    s_cmp_lg_u32 s{sDONE}, -1
    s_cbranch_scc1 p3_poll
    """)
    a.label("p3_fin")
    stamp(a, "p3_mfma")
    a("s_nop 7")
    t = 192
    for i in range(16):
        a(f"v_fma_f32 v{ACC+i}, v{AA+i}, v{vG0}, v{ACC+i}")
    for i in range(8):
        a(f"v_cvt_pk_bf16_f32 v{t+i}, v{ACC+2*i}, v{ACC+2*i+1}")
    a(f"""
    v_permlane32_swap_b32 v{t}, v{t+2}
    v_permlane32_swap_b32 v{t+1}, v{t+3}
    buffer_store_dwordx4 {vr(t, 4)}, v{vOUT}, {sr4(S_OUT)}, s{sT2} offen
    v_permlane32_swap_b32 v{t+4}, v{t+6}
    v_permlane32_swap_b32 v{t+5}, v{t+7}
    buffer_store_dwordx4 {vr(t+4, 4)}, v{vOUT}, {sr4(S_OUT)}, s{sT2} offen offset:32
    """)
    if "dbgt" in OPT:
        a(f"""
        s_cmp_ge_u32 s2, 7
        s_cbranch_scc1 k_end
        s_cmp_lg_u32 s{sW}, 4
        s_cbranch_scc1 k_end
        s_memtime s[90:91]
        s_memrealtime s[92:93]
        s_waitcnt lgkmcnt(0)
        s_sub_u32 s90, s90, s86
        s_sub_u32 s92, s92, s88
        v_mov_b32 v4, s90
        v_mov_b32 v5, s92
        s_lshl_b32 s3, s2, 3
        s_add_u32 s3, s3, 8
        buffer_store_dwordx2 v[4:5], v{vF1}, {sr4(S_DBG)}, s3 offen
        """)
    stamp_flush(a)
    a("s_endpgm")


def gen_attention(a):
    Q, O, S, KV, P, TMP = AQ, AO, AS, AKV, AP, ATMP
    vG, vM, vONE = avG, avM, avONE
    a.label("att_spin")
    bcast_poll(a, "aq", 0, [vFLA, vFLA + 1], sFQB, vPOL, SLEEP_Q, 4, lsleep=1)
    stamp(a, "x_go")
    o1, o2, vm, flat = att_loads()

    def k_fix(buf):
        return [f"v_cndmask_b32 v{KV+16*buf+6}, v{KV+16*buf+6}, v{vONE}, s[{sME}:{sME+1}]",
                f"v_cndmask_b32 v{KV+16*buf}, v{KV+16*buf}, v{vONE}, s[{sMO}:{sMO+1}]"]

    zer = [f"v_mov_b32 v{O+k}, 0" for k in range(12, 64)]
    for x in flat(o1):
        a(x)
    step = len(zer) // len(o2) + 1
    zz = list(zer)
    for x in o2:
        for _ in range(step):
            if zz: a(zz.pop(0))
        for y in flat([x]):
            a(y)
    a("s_branch att_main2")
    a.label("att_main")
    for x in zer:
        a(x)
    a.label("att_main2")
    stamp(a, "x_main")
    a(f"""
    s_setprio 2
    s_lshl_b32 s{sT0}, s{sKQ}, 11
    s_add_u32 s{sT0}, s{sT0}, {MERGE}
    v_add_u32 v{TMP}, s{sT0}, v{vL16}
    ds_write_b128 v{TMP}, {vr(HBR, 4)} offset:{MBOX}
    ds_write_b128 v{TMP}, {vr(HBR+4, 4)} offset:{MBOX + 1024}
    v_mov_b32 v{vT1}, 0
    s_and_b32 s{sT0}, s{sHEAD}, 1
    s_mov_b32 s{sME}, 0
    s_mov_b32 s{sMO+1}, 0
    s_sub_u32 s{sME+1}, s{sT0}, 1
    s_sub_u32 s{sMO}, 0, s{sT0}
    v_mov_b32 v{avV0}, v{vT2}
    v_mov_b32 v{avV1}, v{vT3}
    v_mov_b32 v{vONE}, 0x3f803f80
    v_mov_b32 v{TMP+1}, {CNT + 24}
    v_mov_b32 v{TMP+2}, 1
    s_waitcnt vmcnt({vm.wait({('q',), ('kv', 0, 1)})})
    v_cndmask_b32 v{Q}, v{Q}, v{vT1}, s[{sMO}:{sMO+1}]
    v_cndmask_b32 v{Q+1}, v{Q+1}, v{vT1}, s[{sMO}:{sMO+1}]
    v_cndmask_b32 v{Q+6}, v{Q+6}, v{vT1}, s[{sME}:{sME+1}]
    v_cndmask_b32 v{Q+7}, v{Q+7}, v{vT1}, s[{sME}:{sME+1}]
    {MFMA} {vr(S[1], 16)}, {vr(KV, 4)}, {vr(Q, 4)}, 0
    s_nop 0
    {MFMA} {vr(S[1], 16)}, {vr(KV+4, 4)}, {vr(Q+4, 4)}, {vr(S[1], 16)}
    """)
    stamp(a, "x_q")
    for x in k_fix(0):
        a(x)
    for k in range(12):
        a(f"v_mov_b32 v{O+k}, 0")
    s0 = S[1]
    a(f"""
    v_max3_f32 v{vM}, v{s0}, v{s0+1}, v{s0+2}
    v_max3_f32 v{vT0}, v{s0+3}, v{s0+4}, v{s0+5}
    v_max3_f32 v{vT2}, v{s0+6}, v{s0+7}, v{s0+8}
    v_max3_f32 v{vT3}, v{s0+9}, v{s0+10}, v{s0+11}
    v_max3_f32 v{vM}, v{vM}, v{s0+12}, v{s0+13}
    v_max3_f32 v{vT0}, v{vT0}, v{s0+14}, v{s0+15}
    v_max3_f32 v{vM}, v{vM}, v{vT2}, v{vT3}
    v_max_f32 v{vM}, v{vM}, v{vT0}
    v_mov_b32 v{vT0}, v{vM}
    s_nop 1
    v_permlane32_swap_b32 v{vM}, v{vT0}
    v_max_f32 v{vM}, v{vM}, v{vT0}
    v_sub_f32 v{vM}, 0, v{vM}
    v_cvt_pk_bf16_f32 v{vT0}, v{vM}, v{vM}
    v_lshlrev_b32 v{vT0}, 16, v{vT0}
    v_sub_f32 v{vT0}, v{vM}, v{vT0}
    v_cvt_pk_bf16_f32 v{vT0}, v{vM}, v{vT0}
    v_cndmask_b32 v{Q}, v{Q}, v{vT0}, s[{sMO}:{sMO+1}]
    v_cndmask_b32 v{Q+6}, v{Q+6}, v{vT0}, s[{sME}:{sME+1}]
    ds_write_b128 v{TMP}, {vr(Q, 4)}
    ds_write_b128 v{TMP}, {vr(Q+4, 4)} offset:1024
    {MFMA} {vr(S[0], 16)}, {vr(KV, 4)}, {vr(Q, 4)}, 0
    {MFMA} {vr(S[0], 16)}, {vr(KV+4, 4)}, {vr(Q+4, 4)}, {vr(S[0], 16)}
    s_waitcnt lgkmcnt(0)
    s_mov_b64 exec, 1
    ds_add_u32 v{TMP+1}, v{TMP+2}
    s_mov_b64 exec, -1
    """)
    for x in kv_adv()[:3]:
        a(x)
    for i in range(4):
        a(f"v_mov_b32 v{P+4+i}, 0\nv_mov_b32 v{KV+16*3+12+i}, v{vONE}\nv_mov_b32 v{KV+16*3+8+i}, v{vONE}")
    for i in range(1, 4):
        a(f"""
        s_add_u32 s{sT0}, s{sKQ}, {i}
        s_and_b32 s{sT0}, s{sT0}, 3
        s_lshl_b32 s{sT0}, s{sT0}, 11
        s_add_u32 s{sT0}, s{sT0}, {MERGE}
        v_add_u32 v{TMP+2+i}, s{sT0}, v{vL16}
        """)
    stamp(a, "x_qs")
    a.label("att_qsync")
    a(f"""
    ds_read_b32 v{TMP+2}, v{TMP+1}
    s_waitcnt lgkmcnt(0)
    v_cmp_gt_u32 vcc, 4, v{TMP+2}
    s_cbranch_vccnz att_qsync
    """)
    for i in range(1, 4):
        a(f"ds_read_b128 {vr(Q+8*i, 4)}, v{TMP+2+i}\nds_read_b128 {vr(Q+8*i+4, 4)}, v{TMP+2+i} offset:1024")
    a("s_waitcnt lgkmcnt(0)")
    a(f"s_mov_b32 s{sIT}, 0")
    stamp(a, "x_loop")
    a.label("att_loop")
    for tb in range(4):
        for q in range(4):
            ph = 4 * tb + q
            sc, sn = S[ph % 2], S[1 - ph % 2]
            pq, pb = (q - 1) % 4, (tb if q > 0 else (tb - 1) % 4)
            nq, nb = (q + 1) % 4, (tb if q < 3 else (tb + 1) % 4)
            e = [f"v_exp_f32 v{sc+i}, v{sc+i}" for i in range(16)]
            c = [f"v_cvt_pk_bf16_f32 v{P+i}, v{sc+2*i}, v{sc+2*i+1}" for i in range(8)]
            pv2 = f"{MFMA} {vr(O+16*pq, 16)}, {vr(KV+16*pb+12, 4)}, {vr(P+4, 4)}, {vr(O+16*pq, 16)}"
            pv1 = f"{MFMA} {vr(O+16*q, 16)}, {vr(KV+16*tb+8, 4)}, {vr(P, 4)}, {vr(O+16*q, 16)}"
            qk1 = f"{MFMA} {vr(sn, 16)}, {vr(KV+16*nb, 4)}, {vr(Q+8*nq, 4)}, 0"
            qk2 = f"{MFMA} {vr(sn, 16)}, {vr(KV+16*nb+4, 4)}, {vr(Q+8*nq+4, 4)}, {vr(sn, 16)}"
            adv = kv_adv()
            s_pv2, s_qk1, s_qk2, s_pv1, tail = [], [], [], [], []
            s_qk1 += kv_load((tb + 3) % 4, q, (avV0, avV1))
            if q == 0:
                s_pv2.append(adv[3])
                s_qk2.append("s_waitcnt vmcnt(9)")
                s_pv1.append(adv[4])
            if q == 1:
                if tb == 0:
                    s_pv2.append(f"s_cmp_eq_u32 s{sIT}, 3")
                    s_qk2.append(f"s_cselect_b32 s{sKB}, {OOB}, s{sKB}")
                    s_pv1.append(f"s_cselect_b32 s{sVB}, {OOB}, s{sVB}")
                if tb == 3:
                    s_pv1.append(f"s_add_u32 s{sIT}, s{sIT}, 1")
            if q == 2:
                s_pv2.append(f"s_mul_i32 s{sT0}, s{sTI}, {TQ}")
                s_qk2.append(f"s_add_u32 s{sKS}, s{sT0}, s{sKB}")
                s_pv1.append("s_waitcnt vmcnt(9)")
                tail = k_fix((tb + 1) % 4)
            if q == 3:
                s_qk2.append(f"s_add_u32 s{sVS}, s{sT0}, s{sVB}")
                if tb == 3:
                    s_pv1.append(f"s_cmp_lt_u32 s{sIT}, 4")
            seq = e[0:2] + [pv2] + s_pv2 + e[2:5] + [qk1] + s_qk1 + e[5:9] + c[0:4] + [qk2] + s_qk2 + e[9:12] + [pv1] + s_pv1 + e[12:16] + tail + c[4:8]
            for x in seq:
                a(x)
    a(f"""
    s_cbranch_scc1 att_loop
    s_nop 0
    {MFMA} {vr(O+48, 16)}, {vr(KV+16*3+12, 4)}, {vr(P+4, 4)}, {vr(O+48, 16)}
    """)
    stamp(a, "x_lend")
    for i in range(1, 4):
        a(f"""
        s_add_u32 s{sT0}, s{sKQ}, {i}
        s_and_b32 s{sT0}, s{sT0}, 3
        s_mul_i32 s{sT0}, s{sT0}, 12288
        s_add_u32 s{sT0}, s{sT0}, {MERGE + (i-1) * 4096}
        v_add_u32 v{vT0}, s{sT0}, v{vL16}
        """)
        for q in range(4):
            a(f"ds_write_b128 v{vT0}, {vr(O+16*i+4*q, 4)} offset:{1024*q}")
    a(f"""
    v_mov_b32 v{vT1}, {CNT}
    v_mov_b32 v{vT2}, 1
    s_mul_i32 s{sT0}, s{sKQ}, 12288
    s_add_u32 s{sT0}, s{sT0}, {MERGE}
    v_add_u32 v{vT0}, s{sT0}, v{vL16}
    s_lshl_b32 s{sT2}, s{sQB}, 2
    s_add_u32 s{sT2}, s{sT2}, s{sKQ}
    s_lshl_b32 s{sT2}, s{sT2}, 4
    s_add_u32 s{sT2}, s{sT2}, s{sHEAD}
    s_lshl_b32 s{sKB}, s{sT2}, 11
    s_add_u32 s{sKB}, s{sKB}, {OF}
    s_lshr_b32 s{sVB}, s{sT2}, 2
    s_lshl_b32 s{sVB}, s{sVB}, 7
    s_and_b32 s{sT2}, s{sT2}, 3
    s_lshl_b32 s{sT2}, s{sT2}, 2
    s_add_u32 s{sVB}, s{sVB}, s{sT2}
    s_add_u32 s{sVB}, s{sVB}, {FO}
    s_waitcnt lgkmcnt(0)
    s_mov_b64 exec, 1
    ds_add_u32 v{vT1}, v{vT2}
    s_mov_b64 exec, -1
    """)
    a.label("att_msync")
    a(f"""
    ds_read_b32 v{vT2}, v{vT1}
    s_waitcnt lgkmcnt(0)
    v_cmp_gt_u32 vcc, 4, v{vT2}
    s_cbranch_vccnz att_msync
    """)
    stamp(a, "x_msync")
    for i in range(12):
        a(f"ds_read_b128 {vr(O+16+4*i, 4)}, v{vT0} offset:{1024*i}")
    a(f"""
    v_cmp_lt_u32 vcc, 31, v{vLane}
    s_mov_b32 s{sT0}, {f32bits(2.0**-10):#x}
    s_mov_b32 s{sT1}, {f32bits(2.0**100):#x}
    """)
    for k in range(3):
        a(f"s_waitcnt lgkmcnt({8 - 4*k})")
        for i in range(16):
            a(f"v_add_f32 v{O+i}, v{O+i}, v{O+16+16*k+i}")
    C = O + 16
    a(f"""
    v_mov_b32 v{vT0}, v{O+12}
    v_mov_b32 v{vT1}, v{O+12}
    """)
    for k in range(4):
        a(f"v_mul_f32 v{C+k}, 0, v{O+4*k}")
    a(f"v_permlane32_swap_b32 v{vT0}, v{vT1}")
    for i in range(1, 4):
        for k in range(4):
            a(f"v_fma_f32 v{C+k}, v{O+4*k+i}, 0, v{C+k}")
    a(f"""
    v_rcp_f32 v{vT2}, v{vT1}
    v_cndmask_b32 v{C+3}, v{C+3}, v{C+2}, vcc
    v_add_f32 v{C}, v{C}, v{C+1}
    v_add_f32 v{C+2}, v{C+2}, v{C+3}
    v_add_f32 v{C}, v{C}, v{vT1}
    v_add_f32 v{C}, v{C}, v{C+2}
    v_cmp_le_f32 s[28:29], s{sT0}, v{C}
    v_cmp_ge_f32 s[16:17], s{sT1}, v{C}
    s_and_b64 s[28:29], s[28:29], s[16:17]
    s_cmp_eq_u64 s[28:29], -1
    s_cbranch_scc0 att_fallback
    """)
    a.label("att_final")
    a(f"""
    v_mov_b32 v{vT0}, 0
    """)
    for hh in range(2):
        for i in range(8):
            a(f"v_mul_f32 v{O+8*hh+i}, v{O+8*hh+i}, v{vT2}")
        for i in range(4):
            a(f"v_cvt_pk_bf16_f32 v{TMP+4*hh+i}, v{O+8*hh+2*i}, v{O+8*hh+2*i+1}")
        if hh == 1:
            a(f"v_cndmask_b32 v{TMP+6}, v{TMP+6}, v{vT0}, vcc\nv_cndmask_b32 v{TMP+7}, v{TMP+7}, v{vT0}, vcc")
        a(f"buffer_store_dwordx4 {vr(TMP+4*hh, 4)}, v{vL16}, {sr4(S_WS)}, s{sKB} offen offset:{1024*hh}{SC}")
    stamp(a, "x_ost")
    a("s_waitcnt vmcnt(0)")
    a(flag1(a, sVB))
    stamp(a, "x_b2")
    stamp_flush(a)
    a("s_endpgm")

    a.label("att_fallback")
    sc = S[0]
    K, V = KV, KV + 8
    vMo, vMn, vAl = TMP, TMP + 1, TMP + 2
    a(f"""
    v_mov_b32 v{vT0}, 0
    v_mov_b32 v{vMo}, 0xff800000
    v_cndmask_b32 v{Q}, v{Q}, v{vT0}, s[{sMO}:{sMO+1}]
    v_cndmask_b32 v{Q+6}, v{Q+6}, v{vT0}, s[{sME}:{sME+1}]
    s_mov_b32 s{sIT}, 0
    s_lshl_b32 s{sKS}, s{sP0}, 9
    s_add_u32 s{sKS}, s{sKS}, {KF}
    s_mul_i32 s{sVS}, s{sHEAD}, 448
    s_add_u32 s{sVS}, s{sVS}, {VF}
    s_waitcnt vmcnt(0)
    """)
    for i in range(16):
        a(f"v_mov_b32 v{O+i}, 0")
    a.label("att_fb_loop")
    a(f"""
    buffer_load_dwordx4 {vr(K, 4)}, v{vL16}, {sr4(S_WS)}, s{sKS} offen{SC}
    buffer_load_dwordx4 {vr(K+4, 4)}, v{vL16}, {sr4(S_WS)}, s{sKS} offen offset:1024{SC}
    s_mov_b64 exec, s[{sVM}:{sVM+1}]
    buffer_load_dwordx4 {vr(V, 4)}, v{avV0}, {sr4(S_WS)}, s{sVS} offen{SC}
    buffer_load_dwordx4 {vr(V+4, 4)}, v{avV1}, {sr4(S_WS)}, s{sVS} offen{SC}
    s_mov_b64 exec, -1
    s_waitcnt vmcnt(0)
    {MFMA} {vr(sc, 16)}, {vr(K, 4)}, {vr(Q, 4)}, 0
    {MFMA} {vr(sc, 16)}, {vr(K+4, 4)}, {vr(Q+4, 4)}, {vr(sc, 16)}
    s_nop 15
    v_max3_f32 v{vMn}, v{vMo}, v{sc}, v{sc+1}
    """)
    for i in range(2, 16, 2):
        a(f"v_max3_f32 v{vMn}, v{vMn}, v{sc+i}, v{sc+i+1}")
    a(f"""
    v_mov_b32 v{vT0}, v{vMn}
    s_nop 1
    v_permlane32_swap_b32 v{vMn}, v{vT0}
    v_max_f32 v{vMn}, v{vMn}, v{vT0}
    v_sub_f32 v{vAl}, v{vMo}, v{vMn}
    v_exp_f32 v{vAl}, v{vAl}
    v_mov_b32 v{vMo}, v{vMn}
    """)
    for i in range(16):
        a(f"v_sub_f32 v{sc+i}, v{sc+i}, v{vMn}")
    for i in range(16):
        a(f"v_exp_f32 v{sc+i}, v{sc+i}")
    for i in range(16):
        a(f"v_mul_f32 v{O+i}, v{O+i}, v{vAl}")
    for i in range(8):
        a(f"v_cvt_pk_bf16_f32 v{P+i}, v{sc+2*i}, v{sc+2*i+1}")
    a(f"""
    s_nop 1
    {MFMA} {vr(O, 16)}, {vr(V, 4)}, {vr(P, 4)}, {vr(O, 16)}
    {MFMA} {vr(O, 16)}, {vr(V+4, 4)}, {vr(P+4, 4)}, {vr(O, 16)}
    s_add_u32 s{sKS}, s{sKS}, {TQ}
    s_add_u32 s{sVS}, s{sVS}, {TQ}
    s_add_u32 s{sIT}, s{sIT}, 1
    s_cmp_lt_u32 s{sIT}, 64
    s_cbranch_scc1 att_fb_loop
    s_nop 15
    v_mov_b32 v{vT0}, v{O+12}
    v_mov_b32 v{vT1}, v{O+12}
    s_nop 1
    v_permlane32_swap_b32 v{vT0}, v{vT1}
    v_rcp_f32 v{vT2}, v{vT1}
    s_nop 0
    s_branch att_final
    """)


def build():
    ref = open(f"cdna_kernels/{NAME}.s.ref").read().split("\n")
    hdr = [l for l in ref if l.startswith(";") and "@launch" not in l and "Override launch" not in l and "grid=ceil" not in l]
    body = gen()
    out = "\n".join(hdr) + "\n"
    out += f"; @launch grid=(256,1,1) block=(512,1,1) lds={LDS_BYTES}\n"
    out += '.amdgcn_target "amdgcn-amd-amdhsa--gfx950"\n.text\n'
    out += f".globl {KNAME}\n.p2align 8\n.type {KNAME},@function\n{KNAME}:\n"
    out += body
    out += f""".section .rodata,"a"
.p2align 6
.amdhsa_kernel {KNAME}
  .amdhsa_next_free_vgpr 256
  .amdhsa_next_free_sgpr 102
  .amdhsa_accum_offset 256
  .amdhsa_group_segment_fixed_size 0
  .amdhsa_kernarg_size 88
  .amdhsa_user_sgpr_count 2
  .amdhsa_user_sgpr_kernarg_segment_ptr 1
  .amdhsa_system_sgpr_workgroup_id_x 1
.end_amdhsa_kernel
"""
    return out


if __name__ == "__main__":
    path = sys.argv[1]
    open(path, "w").write(build())
    print("wrote", path)
```

```python
import math, struct, sys, os

NAME = "gated_mix__softmax_full_mha__swiglu_ffn__prompt"
KNAME = NAME + "_kernel"
INSTR = int(os.environ.get("INSTR", "0"))
OPT = os.environ.get("OPT", "nopf")

QF = 0
KF = 2 << 20
VF = 4 << 20
TQ = 28672
HF = 6 << 20
OF = 14 << 20
GF = 16 << 20
FQ = (16 << 20) + 0x10000
FH = (16 << 20) + 0x20000
FHB = (16 << 20) + 0x28000
MBOX = 40960 - 49152
FO = (16 << 20) + 0x40000
TSF = 24 << 20
WS_BYTES = 32 << 20
OOB = 0x40000000
SLEEP_Q = int(os.environ.get('SLQ', '6'))
SLEEP_H = int(os.environ.get('SLH', '8'))
SLEEP_O = int(os.environ.get('SLO', '2'))
LOG2E = math.log2(math.e)
MFMA = "v_mfma_f32_32x32x16_bf16"
SC = " sc1"
SLOT = 40960
LDS_BYTES = 4 * SLOT
MERGE = 49152
CNT = 155648
SPIN_MAX = 1 << int(os.environ.get('SPINLOG', '18'))


def ring_addr(s):
    if s <= 6:
        return 98304 + s * 8192
    if s == 7:
        return 32768
    if s <= 11:
        return (s - 8) * 8192
    return 40960


def wslot(i):
    return i % 13 if i < 28 else [2, 3, 4, 5, 8, 9, 10, 11][i - 28]


def f32bits(x):
    return struct.unpack("<I", struct.pack("<f", x))[0]


class Asm:
    def __init__(self):
        self.lines = []

    def __call__(self, s):
        for ln in s.strip("\n").split("\n"):
            ln = ln.strip()
            if not ln:
                continue
            self.lines.append(ln if ln.endswith(":") else "    " + ln)

    def label(self, l):
        self.lines.append(l + ":")

    def text(self):
        return "\n".join(self.lines) + "\n"


def vr(base, n):
    return f"v[{base}:{base + n - 1}]"


def sr4(b):
    return f"s[{b}:{b+3}]"


def srd(a, sd, sb, nbytes):
    a(f"""
    s_mov_b32 s{sd}, s{sb}
    s_mov_b32 s{sd+1}, s{sb+1}
    s_mov_b32 s{sd+2}, {nbytes}
    s_mov_b32 s{sd+3}, 0x00020000
    """)


def L(s):
    return [l.strip() for l in s.strip("\n").split("\n") if l.strip()]


HA_ST = int(os.environ.get('HA_ST', '13'))
EARLY_P = int(os.environ.get('EARLY_P', '24'))
QKB = int(os.environ.get('QKB', '11'))
FPER = int(os.environ.get('FPER', '4'))
PF2_ST = int(os.environ.get('PF2_ST', '0'))
PF3_ST = int(os.environ.get('PF3_ST', '2'))
GDA = int(os.environ.get('GDA', '10'))
AROT = int(os.environ.get('AROT', '15'))
WP_ST = int(os.environ.get('WP_ST', '5'))
GPRE = int(os.environ.get('GPRE', '4'))
GB_AT = int(os.environ.get('GB_AT', '8'))

S_X, S_B0, S_G, S_U, S_WS, S_TMP, S_WD, S_DBG = 4, 8, 12, 16, 20, 24, 28, 32
S_WO, S_OUT = 8, 12
sMI, sJ, sW, sR, sGRP = 36, 37, 38, 39, 40
sKQ = 39
sT0, sT1, sT2 = 42, 43, 44
sMX, sMB, sSO = 45, 46, 47
sSC, sTILE, sHOFF, sHOFF2, sQKO = 48, 49, 50, 51, 52
sWB, sM0, sFHO, sFQB, sP0, sOK = 53, 54, 55, 56, 57, 58
sNONCE, sNL2E, sC8, sI32, sSPIN = 59, 60, 61, 62, 63
P_X, P_WQKV, P_WO, P_WG, P_WU, P_WD, P_GW, P_OUT, P_DBG, P_WS = 64, 66, 68, 72, 74, 76, 78, 80, 82, 84
ST0 = 86
sHEAD, sQB, sMT, sNT = 70, 71, 41, 3
sFHA = 65
vLane, vL16 = 1, 2
vT0, vT1, vT2, vT3 = 3, 4, 5, 6
STAMPS = os.environ.get("STAMPS", "").split(",")[:6]


def stamp(a, name):
    if INSTR and (name == "start" or name in STAMPS):
        idx = 0 if name == "start" else 1 + STAMPS.index(name)
        a(f"s_memtime s[{ST0+2*idx}:{ST0+2*idx+1}]")
    if INSTR and "R" + name in STAMPS:
        idx = 1 + STAMPS.index("R" + name)
        a(f"s_memrealtime s[{ST0+2*idx}:{ST0+2*idx+1}]")


def stamp_flush(a, vtmp=3):
    if not INSTR:
        return
    a(f"""
    s_memtime s[4:5]
    s_memrealtime s[6:7]
    s_lshl_b32 s3, s2, 3
    s_add_u32 s3, s3, s{sW}
    s_lshl_b32 s3, s3, 7
    s_add_u32 s3, s3, {TSF}
    v_mov_b32 v{vtmp+1}, 0
    s_waitcnt lgkmcnt(0)
    """)
    regs = [ST0 + 2 * i for i in range(8)] + [4, 6]
    for i, r in enumerate(regs):
        a(f"""
        v_mov_b32 v{vtmp}, s{r}
        buffer_store_dword v{vtmp}, v{vtmp+1}, {sr4(S_WS)}, s3 offen offset:{4*i}
        s_nop 1
        """)


def flag_store(a, soff_reg, vtmp):
    a(f"""
    v_mov_b32 v{vtmp}, s{sNONCE}
    v_mov_b32 v{vtmp+1}, 0
    s_mov_b64 exec, 1
    buffer_store_dword v{vtmp}, v{vtmp+1}, {sr4(S_WS)}, s{soff_reg} offen{SC}
    s_mov_b64 exec, -1
    """)


_uid = [0]


def poll(a, addrs, soff, vtmp, sleep):
    _uid[0] += 1
    u = _uid[0]
    a(f"s_mov_b32 s{sSPIN}, {SPIN_MAX}")
    a.label(f"poll_ld{u}")
    for i, va in enumerate(addrs):
        a(f"buffer_load_dword v{vtmp+i}, v{va}, {sr4(S_WS)}, s{soff} offen{SC}")
    a("s_waitcnt vmcnt(0)")
    poll_cmp(a, len(addrs), vtmp)
    a(f"""
    s_sub_u32 s{sSPIN}, s{sSPIN}, 1
    s_cbranch_scc1 poll_done{u}
    s_cmp_eq_u64 vcc, 0
    s_cbranch_scc1 poll_done{u}
    s_sleep {sleep}
    s_branch poll_ld{u}
    """)
    a.label(f"poll_done{u}")


def poll_cmp(a, n, vtmp):
    if n == 1:
        a(f"v_cmp_ne_u32 vcc, s{sNONCE}, v{vtmp}")
    else:
        a(f"""
        v_xor_b32 v{vtmp}, s{sNONCE}, v{vtmp}
        v_xor_b32 v{vtmp+1}, s{sNONCE}, v{vtmp+1}
        v_or_b32 v{vtmp}, v{vtmp}, v{vtmp+1}
        v_cmp_ne_u32 vcc, 0, v{vtmp}
        """)


def lds_set(a, off, val, vtmp):
    a(f"""
    v_mov_b32 v{vtmp}, {CNT + off}
    v_mov_b32 v{vtmp+1}, {val}
    ds_write_b32 v{vtmp}, v{vtmp+1}
    """)


def lds_wait(a, off, vtmp, cond, sleep=1):
    _uid[0] += 1
    u = _uid[0]
    a(f"v_mov_b32 v{vtmp}, {CNT + off}")
    a.label(f"lw{u}")
    a(f"""
    ds_read_b32 v{vtmp+1}, v{vtmp}
    s_waitcnt lgkmcnt(0)
    v_readfirstlane_b32 s{sT0}, v{vtmp+1}
    """)
    a(f"s_cmp_lg_u32 s{sT0}, 0" if cond == "ne0" else f"s_cmp_eq_u32 s{sT0}, {cond[2:]}")
    a(f"""
    s_cbranch_scc1 lwd{u}
    s_sleep {sleep}
    s_branch lw{u}
    """)
    a.label(f"lwd{u}")


class VM:
    def __init__(self):
        self.q = []

    def add(self, tag):
        self.q.append(tag)

    def wait(self, tags, counts=None):
        idx = max([i for i, t in enumerate(self.q) if t in tags], default=-1)
        for t in tags:
            assert t in self.q, (t, self.q)
            if counts:
                assert self.q.count(t) == counts(t), (t, self.q)
        n = len(self.q) - 1 - idx
        assert n <= 63
        return n

    def copy(self):
        v = VM(); v.q = list(self.q); return v


vFLA, vPOL, vFQO, vF1, vNON = 7, 9, 11, 12, 13
vDW = 31


def flag1(a, soff):
    return f"buffer_store_dword v{vNON}, v{vF1}, {sr4(S_WS)}, s{soff} offen{SC}"


AQ, AO, AS, AKV, AP, ATMP = 16, 48, [112, 128], 144, 208, 224
avG, avM, avONE = 14, 15, 216
sME, sMO = 24, 26
sKB, sVB, sTI, sKS, sVS, sIT = 45, 46, 47, 48, 52, 49


avV0, avV1 = 217, 218
HBR = 240


def hb_stores():
    return [f"buffer_store_dwordx4 {vr(HBR+4*i, 4)}, v{vL16}, {sr4(S_WS)}, s{sHOFF2} offen offset:{1024*i}{SC}" for i in range(2)]

sVM = 30


def kv_adv():
    return [f"s_mul_i32 s{sVS}, s{sTI}, {TQ}", f"s_add_u32 s{sKS}, s{sVS}, s{sKB}",
            f"s_add_u32 s{sVS}, s{sVS}, s{sVB}",
            f"s_add_u32 s{sTI}, s{sTI}, 1", f"s_and_b32 s{sTI}, s{sTI}, 15"]


def kv_load(buf, part, vv=(None, None)):
    if part < 2:
        return [f"buffer_load_dwordx4 {vr(AKV+16*buf+4*part, 4)}, v{vL16}, {sr4(S_WS)}, s{sKS} offen offset:{1024*part}{SC}"]
    return [f"s_mov_b64 exec, s[{sVM}:{sVM+1}]",
            f"buffer_load_dwordx4 {vr(AKV+16*buf+4*part, 4)}, v{vv[part-2]}, {sr4(S_WS)}, s{sVS} offen{SC}",
            "s_mov_b64 exec, -1"]


def att_loads():
    vm = VM()
    o1 = L(f"""
    s_lshl_b32 s{sT1}, s{sP0}, 9
    s_lshl_b32 s{sT2}, s{sQB}, 2
    s_add_u32 s{sT2}, s{sT2}, s{sKQ}
    s_mul_i32 s{sT0}, s{sT2}, {TQ}
    s_add_u32 s{sT0}, s{sT0}, s{sT1}
    buffer_load_dwordx4 {vr(AQ, 4)}, v{vL16}, {sr4(S_WS)}, s{sT0} offen{SC}
    buffer_load_dwordx4 {vr(AQ+4, 4)}, v{vL16}, {sr4(S_WS)}, s{sT0} offen offset:1024{SC}
    s_mul_i32 s{sVB}, s{sKQ}, {16 * TQ}
    s_add_u32 s{sKB}, s{sVB}, s{sT1}
    s_add_u32 s{sKB}, s{sKB}, {KF}
    s_mul_i32 s{sT0}, s{sHEAD}, 448
    s_add_u32 s{sVB}, s{sVB}, s{sT0}
    s_add_u32 s{sVB}, s{sVB}, {VF}
    s_and_b32 s{sTI}, s{sQB}, {AROT}
    s_mov_b32 s{sVM}, 0x0fffffff
    s_mov_b32 s{sVM+1}, 0x0fffffff
    v_lshrrev_b32 v{vT2}, 5, v{vLane}
    v_mul_u32_u24 v{vT2}, {7168 - 512}, v{vT2}
    v_add_u32 v{vT2}, v{vT2}, v{vL16}
    v_add_u32 v{vT3}, 14336, v{vT2}
    """)
    vm.add(("q",)); vm.add(("q",))
    o2 = []
    for t in range(3):
        o = o1 if t == 0 else o2
        o += kv_adv()
        for p in range(4):
            if p == 2:
                o += [f"v_mov_b32 v{AKV+16*t+8+i}, 0x3f803f80" for i in range(8)]
            o.append(kv_load(t, p, (vT2, vT3)))
            vm.add(("kv", t, p))
    flat = lambda o: [y for x in o for y in (x if isinstance(x, list) else [x])]
    return o1, o2, vm, flat


def wk_off(i):
    return 8 * (i % 14) + 4 * (i // 14)


def gen():
    a = Asm()
    vDX0, vDX1, vDB0, vDG, vDU = 7, 8, 9, 10, 11
    vAX = 14
    vAW = 18
    vST = 22
    vN, vR4, vC, vRow = 26, 27, 28, 29
    X, ACC, WF = 32, 144, 224
    PFR, vPFL, sPFI = ACC + 60, 30, 58

    stamp(a, "start")
    if INSTR: a("s_memrealtime s[100:101]")
    if "dbgt" in OPT: a("s_memtime s[86:87]\ns_memrealtime s[88:89]")
    a(f"""
    s_cmp_ge_u32 s2, 256
    s_cbranch_scc1 k_end
    """)
    if os.environ.get("DELAY"):
        a(f"""
        s_cmp_lg_u32 s2, {os.environ["DELAY"]}
        s_cbranch_scc1 k_nodelay
        s_mov_b32 s3, 12
        """)
        a.label("k_delay")
        a("s_sleep 100\ns_sub_u32 s3, s3, 1\ns_cmp_lg_u32 s3, 0\ns_cbranch_scc1 k_delay")
        a.label("k_nodelay")
    a(f"""
    s_load_dwordx16 s[64:79], s[0:1], 0
    s_load_dwordx4 s[80:83], s[0:1], 64
    s_load_dwordx2 s[84:85], s[0:1], 80
    v_and_b32 v{vLane}, 63, v0
    v_lshrrev_b32 v{vT0}, 6, v0
    s_and_b32 s{sC8}, s2, 7
    s_lshr_b32 s{sI32}, s2, 3
    v_readfirstlane_b32 s{sW}, v{vT0}
    s_lshr_b32 s{sT1}, s{sC8}, 1
    s_mul_i32 s{sT0}, s{sT1}, 28
    s_sub_u32 s{sT0}, s{sT0}, 4
    s_lshl_b32 s{sT1}, s{sT1}, 2
    s_add_u32 s{sT1}, s{sT1}, 112
    s_cmp_lt_u32 s{sI32}, 4
    s_cselect_b32 s{sT0}, s{sT1}, s{sT0}
    s_add_u32 s{sT0}, s{sT0}, s{sI32}
    s_lshr_b32 s{sJ}, s{sT0}, 3
    s_and_b32 s{sT0}, s{sT0}, 7
    s_and_b32 s{sMI}, s{sC8}, 1
    s_lshl_b32 s{sMI}, s{sMI}, 3
    s_add_u32 s{sMI}, s{sMI}, s{sT0}
    v_lshrrev_b32 v{vT0}, 3, v{vLane}
    v_lshrrev_b32 v{vT1}, 4, v{vLane}
    v_and_b32 v{vT2}, 7, v{vLane}
    v_xor_b32 v{vT3}, v{vT2}, v{vT1}
    s_lshl_b32 s{sT0}, s{sMI}, 7
    s_lshl_b32 s{sT1}, s{sW}, 4
    s_add_u32 s{sT0}, s{sT0}, s{sT1}
    v_add_u32 v{vDX0}, s{sT0}, v{vT0}
    v_mul_u32_u24 v{vDX0}, 896, v{vDX0}
    v_lshl_add_u32 v{vDX0}, v{vT3}, 4, v{vDX0}
    v_xor_b32 v{vDX1}, 64, v{vDX0}
    v_add_u32 v{vDX1}, 7168, v{vDX1}
    v_and_b32 v{vT3}, 1, v{vT1}
    v_lshlrev_b32 v{vT3}, 2, v{vT3}
    v_xor_b32 v{vT3}, v{vT3}, v{vT2}
    v_lshlrev_b32 v{vT3}, 4, v{vT3}
    v_mul_u32_u24 v{vDW}, 896, v{vT0}
    v_add_u32 v{vDW}, v{vDW}, v{vT3}
    s_lshl_b32 s{sT0}, s{sW}, 3
    v_add_u32 v{vT0}, s{sT0}, v{vT0}
    v_mul_u32_u24 v{vDB0}, 2688, v{vT0}
    v_add_u32 v{vDB0}, v{vDB0}, v{vT3}
    s_lshl_b32 s{sMX}, s{sW}, 11
    s_lshl_b32 s{sMB}, s{sW}, 10
    s_add_u32 s{sMB}, s{sMB}, 16384
    v_lshlrev_b32 v{vL16}, 4, v{vLane}
    s_mov_b32 s{S_X+2}, {2048 * 448 * 2}
    s_mov_b32 s{S_X+3}, 0x00020000
    s_mov_b32 s{S_B0+2}, {448 * 1344 * 2}
    s_mov_b32 s{S_B0+3}, 0x00020000
    s_mov_b32 s{S_G+3}, 0x00020000
    s_mov_b32 s{S_U+3}, 0x00020000
    s_cmp_ge_u32 s{sJ}, 14
    s_cbranch_scc1 k1_v
    """)

    vm = None

    def emit_group(g):
        for l in g[0]:
            a(l)
        vm.add(g[1])

    def dma(m0base, m0off, vaddr, srdb, soff):
        return [f"s_add_u32 m0, s{m0base}, {m0off & 0xffffffff}", f"s_mov_b32 s{sSO}, {soff}",
                f"buffer_load_dwordx4 v{vaddr}, {sr4(srdb)}, s{sSO} offen lds"]

    def common_setup2(tg):
        srd(a, S_WS, P_WS, WS_BYTES)
        srd(a, S_DBG, P_DBG, 256)
        srd(a, S_WD, P_WD, 1792 * 448 * 2)
        a(f"""
        s_or_b32 s{sT0}, s2, s{sW}
        s_cmp_lg_u32 s{sT0}, 0
        s_cbranch_scc1 k_nononce_{tg}
        s_memrealtime s[{sSC}:{sSC+1}]
        v_mov_b32 v{vT1}, 0
        s_waitcnt lgkmcnt(0)
        s_or_b32 s{sT0}, s{sSC}, 0x80000000
        v_mov_b32 v{vT0}, s{sT0}
        s_mov_b64 exec, 1
        buffer_store_dword v{vT0}, v{vT1}, {sr4(S_DBG)}, 0 offen{SC}
        s_mov_b64 exec, -1
        """)
        a.label(f"k_nononce_{tg}")
        if "nopf" not in OPT:
            a(f"""
            s_lshl_b32 s{sPFI}, s2, 3
            s_add_u32 s{sPFI}, s{sPFI}, s{sW}
            s_lshl_b32 s{sT0}, s{sPFI}, 10
            s_mov_b32 s{S_TMP+3}, 0x00020000
            buffer_load_dwordx4 {vr(PFR, 4)}, v{vL16}, {sr4(S_X)}, s{sT0} offen
            v_lshrrev_b32 v{vPFL}, 3, v{vLane}
            v_lshlrev_b32 v{vPFL}, 7, v{vPFL}
            v_add_u32 v{vPFL}, v{vPFL}, v{vL16}
            s_cmp_lt_u32 s{sPFI}, 840
            s_cbranch_scc1 k_pf_q_{tg}
            s_cmp_lt_u32 s{sPFI}, 1400
            s_cselect_b32 s{S_TMP}, s{P_WG}, s{P_WU}
            s_cselect_b32 s{S_TMP+1}, s{P_WG+1}, s{P_WU+1}
            s_cselect_b32 s{sT0}, 0, 560
            s_mov_b32 s{S_TMP+2}, {448 * 1792 * 2}
            s_sub_u32 s{sT0}, s{sPFI}, s{sT0}
            s_lshl_b32 s{sT0}, s{sT0}, 11
            s_add_u32 s{sT0}, s{sT0}, {(128 * 3584 - 840 * 2048) & 0xffffffff}
            buffer_load_dwordx4 {vr(PFR+4, 4)}, v{vPFL}, {sr4(S_TMP)}, s{sT0} offen
            s_branch k_pf_d_{tg}
            """)
            a.label(f"k_pf_q_{tg}")
            a(f"""
            s_add_u32 s{sT0}, s{sT0}, {128 * 2688}
            buffer_load_dwordx4 {vr(PFR+4, 4)}, v{vL16}, {sr4(S_B0)}, s{sT0} offen
            """)
            a.label(f"k_pf_d_{tg}")
            vm.add(("PF",)); vm.add(("PF",))
        if "nocp" not in OPT:
            a(f"""
            s_cmp_ge_u32 s{sI32}, 5
            s_cbranch_scc1 k_nocp_{tg}
            s_lshl_b32 s{sT0}, s{sI32}, 3
            s_add_u32 s{sT0}, s{sT0}, s{sW}
            s_lshl_b32 s{sT0}, s{sT0}, 10
            v_add_u32 v{vT0}, s{sT0}, v{vL16}
            v_min_u32 v{vT0}, k_end-{KNAME}-12, v{vT0}
            s_getpc_b64 s[{sSC}:{sSC+1}]
            """)
            a.label(f"k_pc_{tg}")
            a(f"""
            s_sub_u32 s{sSC}, s{sSC}, k_pc_{tg}-{KNAME}
            s_subb_u32 s{sSC+1}, s{sSC+1}, 0
            global_load_dwordx4 {vr(ACC+76, 4)}, v{vT0}, s[{sSC}:{sSC+1}]
            """)
            a.label(f"k_nocp_{tg}")
        a(f"""
        s_and_b32 s{sR}, s{sW}, 3
        s_lshr_b32 s{sGRP}, s{sW}, 2
        s_lshl_b32 s{sTILE}, s{sMI}, 2
        s_add_u32 s{sTILE}, s{sTILE}, s{sR}
        v_and_b32 v{vT0}, 31, v{vLane}
        v_lshrrev_b32 v{vT1}, 5, v{vLane}
        v_bfe_u32 v{vT2}, v{vLane}, 1, 3
        v_xor_b32 v{vT2}, v{vT2}, v{vT1}
        s_lshl_b32 s{sT0}, s{sR}, 12
        v_lshlrev_b32 v{vT3}, 7, v{vT0}
        v_lshl_add_u32 v{vT3}, v{vT2}, 4, v{vT3}
        v_add_u32 v{vAX}, s{sT0}, v{vT3}
        v_xor_b32 v{vAX+1}, 32, v{vAX}
        v_xor_b32 v{vAX+2}, 64, v{vAX}
        v_xor_b32 v{vAX+3}, 96, v{vAX}
        v_bfe_u32 v{vN}, v{vLane}, 4, 1
        v_bfe_u32 v{vR4}, v{vLane}, 2, 2
        v_and_b32 v{vC}, 3, v{vLane}
        v_lshl_add_u32 v{vRow}, v{vT1}, 3, v{vR4}
        v_and_b32 v{vT2}, 2, v{vR4}
        v_xor_b32 v{vT2}, v{vT2}, v{vN}
        s_lshl_b32 s{sT0}, s{sGRP}, 1
        v_xor_b32 v{vT2}, s{sT0}, v{vT2}
        v_lshlrev_b32 v{vT3}, 7, v{vRow}
        v_lshl_add_u32 v{vT3}, v{vT2}, 5, v{vT3}
        v_lshl_add_u32 v{vT3}, v{vC}, 3, v{vT3}
        v_add_u32 v{vAW}, 16384, v{vT3}
        s_mov_b32 s{sNL2E}, {f32bits(-LOG2E):#x}
        """)

    def flag_addr(vtype, vfla, vfqo):
        t0, t1, t2, t3 = vN, vR4, vC, vRow
        o = L(f"""
        s_lshl_b32 s{sHEAD}, s{sC8}, 1
        s_and_b32 s{sT2}, s{sI32}, 1
        s_add_u32 s{sHEAD}, s{sHEAD}, s{sT2}
        s_lshr_b32 s{sQB}, s{sI32}, 1
        s_lshl_b32 s{sMT}, s{sC8}, 2
        s_and_b32 s{sT2}, s{sI32}, 3
        s_add_u32 s{sMT}, s{sMT}, s{sT2}
        s_lshr_b32 s{sNT}, s{sI32}, 2
        s_mul_i32 s{sP0}, s{sHEAD}, 7
        s_lshr_b32 s{sP0}, s{sP0}, 1
        s_lshl_b32 s{sFQB}, s{sHEAD}, 12
        s_add_u32 s{sFQB}, s{sFQB}, {FQ}
        s_lshr_b32 s{sT1}, s{sQB}, 2
        s_lshl_b32 s{sT1}, s{sT1}, 7
        s_and_b32 s{sT2}, s{sQB}, 3
        s_lshl_b32 s{sT2}, s{sT2}, 2
        s_add_u32 s{sT1}, s{sT1}, s{sT2}
        s_add_u32 s{sT1}, s{sT1}, 2048
        v_lshrrev_b32 v{t0}, 2, v{vLane}
        v_and_b32 v{t1}, 3, v{vLane}
        v_lshlrev_b32 v{t1}, 2, v{t1}
        v_lshl_add_u32 v{vfla}, v{t0}, 7, v{t1}
        v_and_b32 v{t0}, 1, v{vLane}
        v_lshl_add_u32 v{vfla+1}, v{t0}, 9, s{sT1}
        v_and_b32 v{t0}, 15, v{vLane}
        v_lshrrev_b32 v{t1}, 4, v{vLane}
        v_lshlrev_b32 v{t3}, 12, v{t0}
        v_lshl_add_u32 v{t3}, v{t1}, 9, v{t3}
        s_lshr_b32 s{sT1}, s{sMI}, 2
        s_lshl_b32 s{sT1}, s{sT1}, 7
        s_and_b32 s{sT2}, s{sMI}, 3
        s_lshl_b32 s{sT2}, s{sT2}, 2
        s_add_u32 s{sT1}, s{sT1}, s{sT2}
        """)
        if not vtype:
            o += L(f"""
            s_add_u32 s{sT2}, s{sJ}, 1
            s_lshr_b32 s{sT2}, s{sT2}, 3
            v_mul_u32_u24 v{t2}, 7, v{t0}
            v_lshrrev_b32 v{t2}, 1, v{t2}
            v_mad_u32_u24 v{t2}, v{t1}, 3, v{t2}
            v_lshrrev_b32 v{t2}, 3, v{t2}
            v_lshrrev_b32 v{t1}, 1, v{t1}
            v_lshl_add_u32 v{t2}, v{t1}, 6, v{t2}
            v_mad_u32_u24 v{t2}, s{sT2}, 7, v{t2}
            v_cmp_eq_u32 vcc, s{sJ}, v{t2}
            s_lshl_b32 s{sT2}, s{sT2}, 11
            s_sub_u32 s{sT1}, s{sT1}, s{sT2}
            s_add_u32 s{sT1}, s{sT1}, 2048
            """)
        else:
            o += L(f"""
            v_add_u32 v{t2}, 14, v{t1}
            v_cmp_eq_u32 vcc, s{sJ}, v{t2}
            s_add_u32 s{sT1}, s{sT1}, 1024
            """)
        o += L(f"""
        v_add_u32 v{t3}, s{sT1}, v{t3}
        v_mov_b32 v{t0}, {OOB}
        v_cndmask_b32 v{vfqo}, v{t0}, v{t3}, vcc
        v_cmp_eq_u32 vcc, 0, v{vLane}
        s_lshr_b32 s{sFHO}, s{sTILE}, 1
        s_lshl_b32 s{sFHO}, s{sFHO}, 10
        v_cndmask_b32 v{vF1}, v{t0}, v{vLane}, vcc
        s_lshr_b32 s{sT1}, s{sJ}, 1
        s_lshl_b32 s{sT1}, s{sT1}, 7
        s_add_u32 s{sFHO}, s{sFHO}, s{sT1}
        s_and_b32 s{sT1}, s{sJ}, 1
        s_lshl_b32 s{sT1}, s{sT1}, 3
        s_add_u32 s{sFHO}, s{sFHO}, s{sT1}
        s_and_b32 s{sT1}, s{sR}, 1
        s_lshl_b32 s{sT1}, s{sT1}, 2
        s_add_u32 s{sFHO}, s{sFHO}, s{sT1}
        s_add_u32 s{sFHO}, s{sFHO}, {FHB}
        s_lshl_b32 s{sFHA}, s{sMI}, 9
        s_lshr_b32 s{sT1}, s{sJ}, 2
        s_lshl_b32 s{sT1}, s{sT1}, 7
        s_add_u32 s{sFHA}, s{sFHA}, s{sT1}
        s_and_b32 s{sT1}, s{sJ}, 3
        s_lshl_b32 s{sT1}, s{sT1}, 2
        s_add_u32 s{sFHA}, s{sFHA}, s{sT1}
        s_add_u32 s{sFHA}, s{sFHA}, {FH}
        s_lshl_b32 s{sM0}, s{sNT}, 7
        s_mul_i32 s{sWB}, s{sR}, {16 * 896}
        s_add_u32 s{sWB}, s{sWB}, s{sM0}
        s_lshl_b32 s{sM0}, s{sR}, 11
        """)
        return o

    def nonce_get(tag):
        a(f"""
        v_readfirstlane_b32 s{sNONCE}, v{vNON}
        v_lshlrev_b32 v{vT0}, 2, v{vLane}
        v_add_u32 v{vT0}, {CNT}, v{vT0}
        v_mov_b32 v{vT1}, 0
        s_cmp_lg_u32 s{sNONCE}, 0
        s_cbranch_scc1 k1_nonce_ok_{tag}
        """)
        a.label(f"k1_nonce_spin_{tag}")
        a(f"""
        buffer_load_dword v{vNON}, v{vT1}, {sr4(S_DBG)}, 0 offen{SC}
        s_waitcnt vmcnt(0)
        v_readfirstlane_b32 s{sNONCE}, v{vNON}
        s_sleep 4
        s_cmp_eq_u32 s{sNONCE}, 0
        s_cbranch_scc1 k1_nonce_spin_{tag}
        """)
        a.label(f"k1_nonce_ok_{tag}")
        a(f"ds_write_b32 v{vT0}, v{vT1}")

    def pf2():
        return (L(f"""
        s_cmp_lt_u32 s{sPFI}, 784
        s_cselect_b32 s{S_TMP}, s{P_WG}, s{P_WU}
        s_cselect_b32 s{S_TMP+1}, s{P_WG+1}, s{P_WU+1}
        s_cselect_b32 s{sT0}, 0, 784
        s_mov_b32 s{S_TMP+2}, {448 * 1792 * 2}
        s_sub_u32 s{sT0}, s{sPFI}, s{sT0}
        s_lshl_b32 s{sT0}, s{sT0}, 11
        buffer_load_dwordx4 {vr(PFR+8, 4)}, v{vPFL}, {sr4(S_TMP)}, s{sT0} offen offset:128
        """), ("PF",))

    def pf3():
        return (L(f"""
        s_cmp_lt_u32 s{sPFI}, 1568
        s_cselect_b32 s{S_TMP}, s{P_WD}, s{P_WO}
        s_cselect_b32 s{S_TMP+1}, s{P_WD+1}, s{P_WO+1}
        s_cselect_b32 s{sT0}, 0, 1568
        s_cselect_b32 s{S_TMP+2}, s{S_WD+2}, {448 * 448 * 2}
        s_sub_u32 s{sT0}, s{sPFI}, s{sT0}
        s_lshl_b32 s{sT0}, s{sT0}, 10
        buffer_load_dwordx4 {vr(PFR+12, 4)}, v{vL16}, {sr4(S_TMP)}, s{sT0} offen
        """), ("PF",))

    nonce_ld = ([f"v_mov_b32 v{vNON}, 0", f"buffer_load_dword v{vNON}, v{vNON}, {sr4(S_DBG)}, 0 offen{SC}"], ("N",))

    def wpref(i):
        ra = ring_addr(i % 13)
        return [f"s_add_u32 m0, s{sM0}, {ra}", f"s_add_u32 s{sT0}, s{sWB}, {wk_off(i) * 16 * 896}",
                f"buffer_load_dwordx4 v{vDW}, {sr4(S_WD)}, s{sT0} offen lds",
                f"s_add_u32 m0, s{sM0}, {ra + 1024}", f"s_add_u32 s{sT0}, s{sT0}, {8 * 896}",
                f"buffer_load_dwordx4 v{vDW}, {sr4(S_WD)}, s{sT0} offen lds"]

    abase = [0]

    def set_base(nb, regs):
        out = []
        if nb != abase[0]:
            d = nb - abase[0]
            for r in regs:
                out.append(f"v_add_u32 v{r}, {d}, v{r}" if d > 0 else f"v_subrev_u32 v{r}, {-d}, v{r}")
            abase[0] = nb
        return out

    def emit(x):
        if isinstance(x, tuple):
            a(x[1]); vm.add((x[0],))
        else:
            a(x)

    vm = VM()
    cnts = lambda t: {"A": 5, "B": 2}[t[0]] if t[0] in ("A", "B") else vm.q.count(t)
    a(f"""
    s_lshl_b32 s{sT0}, s{sJ}, 7
    v_add_u32 v{vDB0}, s{sT0}, v{vDB0}
    v_mul_u32_u24 v{vDG}, 3584, v{vT0}
    s_lshl_b32 s{sT0}, s{sJ}, 8
    v_add3_u32 v{vDG}, v{vDG}, v{vT3}, s{sT0}
    v_xor_b32 v{vDU}, 32, v{vDG}
    s_mov_b32 s{S_G+2}, {448 * 1792 * 2}
    s_mov_b32 s{S_U+2}, {448 * 1792 * 2}
    s_waitcnt lgkmcnt(0)
    s_mov_b64 s[{S_X}:{S_X+1}], s[{P_X}:{P_X+1}]
    s_mov_b64 s[{S_B0}:{S_B0+1}], s[{P_WQKV}:{P_WQKV+1}]
    s_mov_b64 s[{S_G}:{S_G+1}], s[{P_WG}:{P_WG+1}]
    s_mov_b64 s[{S_U}:{S_U+1}], s[{P_WU}:{P_WU+1}]
    """)

    def fA(st):
        b = (st % 4) * SLOT
        g = [dma(sMX, b, vDX0, S_X, st * 128), dma(sMX, b + 1024, vDX1, S_X, st * 128),
             dma(sMB, b, vDB0, S_B0, st * 64 * 2688), dma(sMB, b + 8192, vDG, S_G, st * 64 * 3584),
             dma(sMB, b + 16384, vDU, S_U, st * 64 * 3584)]
        return [(x, ("A", st)) for x in g]

    def bslot(sb):
        return ((3 + sb // 2) % 4) * SLOT + (sb % 2) * 16384

    def fB(sb):
        b = bslot(sb) - 16384
        g = [dma(sMB, b, vDG, S_G, sb * 64 * 3584 + 128), dma(sMB, b + 8192, vDU, S_U, sb * 64 * 3584 + 128)]
        return [(x, ("B", sb)) for x in g]

    for g in fA(0):
        emit_group(g)
    a("s_barrier")
    for g in fA(1):
        emit_group(g)
    common_setup2("f")
    a(f"""
    v_lshl_add_u32 v{vAW+1}, v{vN}, 13, v{vT3}
    v_add_u32 v{vAW+1}, {16384 + 8192}, v{vAW+1}
    v_xor_b32 v{vAW+2}, 32, v{vAW+1}
    s_cmp_ge_u32 s{sJ}, 7
    s_cselect_b32 s{sT1}, {KF - 7 * 4096}, {QF}
    s_cselect_b32 s{sSC}, 1.0, {f32bits(28 ** -0.5 * LOG2E):#x}
    s_lshl_b32 s{sT2}, s{sJ}, 12
    s_add_u32 s{sT1}, s{sT1}, s{sT2}
    s_lshl_b32 s{sT2}, s{sGRP}, 11
    s_add_u32 s{sT1}, s{sT1}, s{sT2}
    s_mul_i32 s{sQKO}, s{sTILE}, {TQ}
    s_add_u32 s{sQKO}, s{sQKO}, s{sT1}
    s_mul_i32 s{sHOFF}, s{sTILE}, 112
    s_lshl_b32 s{sT1}, s{sJ}, 3
    s_add_u32 s{sHOFF}, s{sHOFF}, s{sT1}
    s_lshl_b32 s{sT1}, s{sGRP}, 1
    s_add_u32 s{sHOFF}, s{sHOFF}, s{sT1}
    s_lshl_b32 s{sHOFF}, s{sHOFF}, 10
    s_add_u32 s{sHOFF}, s{sHOFF}, {HF}
    s_add_u32 s{sHOFF2}, s{sHOFF}, 4096
    """)
    WA = [WF, WF + 12, ACC + 48]
    NB = 4
    WB = [WF + 24, WF + 16, WF + 8, WF]

    def readsA(ks):
        st, s = ks // 4, ks % 4
        slot = st % 4
        out = set_base((slot // 2) * 2 * SLOT, [vAX, vAX+1, vAX+2, vAX+3, vAW, vAW+1, vAW+2])
        off = (slot % 2) * SLOT
        f = WA[ks % 3]
        out.append(f"ds_read_b128 {vr(X+4*ks, 4)}, v{vAX+s} offset:{off}")
        for t in range(3):
            for q in range(2):
                out.append(f"ds_read_b64_tr_b16 {vr(f+4*t+2*q, 2)}, v{vAW+t} offset:{off + (16*s + 4*q) * 128}")
        return out

    def readsB(ks):
        sb, s = ks // 4, ks % 4
        b = bslot(sb)
        f = WB[ks % NB]
        b32 = b - b % 32768
        off = b - b32
        out = set_base(b32 - 24576, [vAW+1, vAW+2])
        for t in range(2):
            for q in range(2):
                out.append(f"ds_read_b64_tr_b16 {vr(f+4*t+2*q, 2)}, v{vAW+1+t} offset:{off + (16*s + 4*q) * 128}")
        return out

    def epi_ffn(acc, ko, dst=None):
        g, u = acc, acc + 8
        dst = g if dst is None else dst
        o = []
        for i in range(8):
            o.append(f"v_mul_f32 v{u+i}, v{g+i}, v{u+i}")
            o.append(f"v_mul_f32 v{g+i}, s{sNL2E}, v{g+i}")
        for i in range(8):
            o.append(f"v_exp_f32 v{g+i}, v{g+i}")
        for i in range(8):
            o.append(f"v_add_f32 v{g+i}, 1.0, v{g+i}")
        for i in range(8):
            o.append(f"v_rcp_f32 v{g+i}, v{g+i}")
        for i in range(8):
            o.append(f"v_mul_f32 v{u+i}, v{u+i}, v{g+i}")
        for i in range(4):
            o.append(f"v_cvt_pk_bf16_f32 v{dst+i}, v{u+2*i}, v{u+2*i+1}")
        so, off = (sHOFF, ko) if ko < 4 else (sHOFF2, ko - 4)
        o.append(("H", f"buffer_store_dwordx4 {vr(dst, 4)}, v{vL16}, {sr4(S_WS)}, s{so} offen offset:{1024*off}{SC}"))
        return o

    def epi_qk():
        o = []
        for i in range(8):
            o.append(f"v_mul_f32 v{ACC+2*i}, s{sSC}, v{ACC+2*i}")
            o.append(f"v_mul_f32 v{ACC+2*i+1}, s{sSC}, v{ACC+2*i+1}")
            o.append(f"v_cvt_pk_bf16_f32 v{ACC+i}, v{ACC+2*i}, v{ACC+2*i+1}")
        o.append("s_nop 1")
        for hh in range(2):
            b = ACC + 4 * hh
            o.append(f"v_permlane32_swap_b32 v{b}, v{b+2}")
            o.append(f"v_permlane32_swap_b32 v{b+1}, v{b+3}")
            o.append(("QK", f"buffer_store_dwordx4 {vr(b, 4)}, v{vL16}, {sr4(S_WS)}, s{sQKO} offen offset:{1024*hh}{SC}"))
        return o

    abase[0] = 0
    a(f"s_waitcnt vmcnt({vm.wait({('A', 0)}, cnts)})\ns_barrier")
    stamp(a, "p1_first")
    for ks in range(2):
        for r in readsA(ks):
            a(r)
    pend = fA(2) + fA(3)
    vFQf = vST
    fillA = flag_addr(False, vFLA, vFQf)
    for ks in range(28):
        st, s = ks // 4, ks % 4
        f = WA[ks % 3]
        m = [f"{MFMA} {vr(ACC+16*t, 16)}, {vr(f+4*t, 4)}, {vr(X+4*ks, 4)}, {'0' if ks == 0 else vr(ACC+16*t, 16)}" for t in range(3)]
        if s == 2:
            need = {("A", st + 1)} if st < 6 else {("B", 0), ("B", 1), ("B", 2), ("B", 3), ("N",)}
            a(f"s_waitcnt vmcnt({vm.wait(need, cnts)}) lgkmcnt(0)")
            if st == 6:
                nonce_get("f")
            a("s_barrier")
            stamp(a, f"p1_a{st}")
            if st + 4 <= 6:
                pend += fA(st + 4)
            else:
                i0 = 2 * (st - 3)
                pend += fB(i0) + (fB(i0 + 1) if i0 + 1 < 7 else [])
            if st == 2:
                pend.append(nonce_ld)
            if "nopf" not in OPT and st == PF2_ST: pend.append(pf2())
            if "nopf" not in OPT and st == PF3_ST: pend.append(pf3())
        elif ks < 27:
            a("s_waitcnt lgkmcnt(7)")
        else:
            a("s_waitcnt lgkmcnt(4)")
        r = readsA(ks + 2) if ks + 2 < 28 else readsB(ks + 2 - 28)
        k = len(r) - 4 if ks + 2 < 28 else len(r) - 2
        a(m[0])
        for x in r[:k]:
            a(x)
        a(m[1])
        for x in r[k:]:
            a(x)
        a(m[2])
        if ks >= 16:
            assert vm.q.count(("A", 6)) == 5
            for _ in range(7):
                if fillA: a(fillA.pop(0))
        nd = 2 if (len(pend) > 4 or st < 1) else 1
        for _ in range(nd):
            if pend:
                emit_group(pend.pop(0))
    assert not fillA
    stamp(a, "p1_aend")
    for x in readsB(2):
        a(x)
    ea, eb = epi_ffn(ACC + 16, 0, X + 16), epi_ffn(ACC + 32, 1, X + 20)
    fillq = ["s_nop 3"] + epi_qk()
    fill = ea + eb
    wq = [0, 1, 2, 7, 3, 4, 5, 6]
    sWH, sMH2 = sMX, sOK
    for ks in range(28):
        f = WB[ks % NB]
        m = [f"{MFMA} {vr(ACC+48+16*t, 16)}, {vr(f+4*t, 4)}, {vr(X+4*ks, 4)}, {'0' if ks == 0 else vr(ACC+48+16*t, 16)}" for t in range(2)]
        nxt = ks + NB - 1
        if ks == QKB:
            need = {5: {("B", 2), ("B", 3), ("N",)}, QKB: {("B", 4), ("B", 5), ("B", 6), ("QK",)}, 17: set()}[ks]
            if ks == QKB: assert vm.q.count(("QK",)) == 2 and QKB <= 13
            if need: a(f"s_waitcnt vmcnt({vm.wait(need, cnts)})")
            a("s_barrier")
            stamp(a, {5: "p1_b2", QKB: "p1_b4", 17: "p1_b5"}[ks])
            if ks == QKB:
                a(f"""
                s_cmp_lg_u32 s{sW}, 7
                s_cbranch_scc1 k1_noflag_f
                s_mov_b32 s{sT0}, {FQ}
                buffer_store_dword v{vNON}, v{vFQf}, {sr4(S_WS)}, s{sT0} offen{SC}
                """)
                a.label("k1_noflag_f")
        stamp(a, f"pb{ks}")
        a(f"s_waitcnt lgkmcnt({min(NB - 2, 27 - ks) * 4})")
        r = readsB(nxt) if nxt < 28 else []

        def dofill():
            if ks < 1: return
            if fillq:
                for _ in range(5):
                    if fillq: emit(fillq.pop(0))
            else:
                for _ in range(FPER):
                    if fill and isinstance(fill[0], tuple) and ks < HA_ST and len(fill) > 1:
                        fill[0], fill[1] = fill[1], fill[0]
                    if fill and not (isinstance(fill[0], tuple) and ks < HA_ST): emit(fill.pop(0))
        a(m[0])
        for x in r[:len(r) - 2]:
            a(x)
        if pend:
            emit_group(pend.pop(0))
        dofill()
        a(m[1])
        for x in r[len(r) - 2:]:
            a(x)
        dofill()
        if wq and ks >= WP_ST and (ring_addr(wq[0]) < 122880 or ks >= QKB) and not pend:
            i = wq.pop(0)
            if i == 0:
                a(f"""
                s_mul_i32 s{sWH}, s{sGRP}, {8 * 896}
                s_add_u32 s{sWH}, s{sWH}, s{sWB}
                s_cmp_ge_u32 s{sI32}, 28
                s_cselect_b32 s{sWH}, {OOB}, s{sWH}
                s_lshl_b32 s{sMH2}, s{sGRP}, 10
                s_add_u32 s{sMH2}, s{sMH2}, s{sM0}
                """)
            a(f"""
            s_add_u32 m0, s{sMH2}, {ring_addr(i)}
            s_add_u32 s{sT0}, s{sWH}, {wk_off(i) * 16 * 896}
            buffer_load_dwordx4 v{vDW}, {sr4(S_WD)}, s{sT0} offen lds
            """)
            vm.add(("WP",))
        if ks == EARLY_P:
            a(f"""
            s_cmp_lg_u32 s{sW}, 0
            s_cbranch_scc1 k1_nopoll
            buffer_load_dword v{vPOL}, v{vFLA}, {sr4(S_WS)}, s{sFQB} offen{SC}
            buffer_load_dword v{vPOL+1}, v{vFLA+1}, {sr4(S_WS)}, s{sFQB} offen{SC}
            """)
            a.label("k1_nopoll")
    assert not fill and not pend and not wq
    stamp(a, "pb28")
    a(f"""
    s_cmp_lg_u32 s{sW}, 0
    s_cbranch_scc1 k1_nochk
    s_waitcnt vmcnt(0)
    """)
    poll_cmp(a, 2, vPOL)
    a(f"""
    s_cmp_eq_u64 vcc, 0
    s_cselect_b32 s{sT0}, 1, 0
    """)
    lds_set(a, 4, f"s{sT0}", vT0)
    a("s_waitcnt lgkmcnt(0)")
    a.label("k1_nochk")
    a(f"""
    s_cmp_ge_u32 s{sW}, 4
    s_cbranch_scc1 k1_nodr
    s_waitcnt vmcnt(0)
    """)
    a.label("k1_nodr")
    a(f"""
    s_barrier
    s_mov_b32 s{sOK}, 0
    s_cmp_ge_u32 s{sW}, 4
    s_cbranch_scc1 k1_epi
    v_mov_b32 v{vT0}, {CNT + 4}
    ds_read_b32 v{vT1}, v{vT0}
    s_waitcnt lgkmcnt(0)
    v_readfirstlane_b32 s{sOK}, v{vT1}
    s_cmp_eq_u32 s{sOK}, 1
    s_cbranch_scc1 k1_early
    s_cmp_lg_u32 s{sW}, 0
    s_cbranch_scc1 k1_epi
    buffer_load_dword v{vPOL}, v{vFLA}, {sr4(S_WS)}, s{sFQB} offen{SC}
    buffer_load_dword v{vPOL+1}, v{vFLA+1}, {sr4(S_WS)}, s{sFQB} offen{SC}
    s_branch k1_epi
    """)
    a.label("k1_early")
    stamp(a, "x_go")
    o1, o2, _, flat = att_loads()
    for x in flat(o1):
        a(x)
    stamp(a, "p1_bend")
    e0, e1 = epi_ffn(ACC + 48, 4, HBR), epi_ffn(ACC + 64, 5, HBR + 4)
    ev = e0[:-1] + e1[:-1]
    step = len(ev) // len(o2)
    for x in o2:
        for _ in range(step):
            a(ev.pop(0))
        for y in flat([x]):
            a(y)
    for x in ev:
        a(x)
    stamp(a, "p1_end")
    a("s_branch att_main")
    a.label("k1_epi")
    a("s_nop 7")
    stamp(a, "p1_bend")
    for x in e0[:-1] + e1[:-1]:
        a(x)
    stamp(a, "p1_end")
    a(f"""
    s_cmp_ge_u32 s{sW}, 4
    s_cbranch_scc1 gemm_role_f
    s_cmp_lg_u32 s{sW}, 0
    s_cbranch_scc1 aq_lw
    s_waitcnt vmcnt(0)
    """)
    poll_cmp(a, 2, vPOL)
    a(f"""
    s_cmp_eq_u64 vcc, 0
    s_cbranch_scc1 aq_ok
    s_branch att_spin
    """)

    a.label("k1_v")
    vm = VM()
    cntv = lambda t: {"A": 5, "B": 1}[t[0]] if t[0] in ("A", "B") else vm.q.count(t)
    GWL = CNT + 1024
    a(f"""
    v_add_u32 v{vDU}, {(896 + 192) * 2}, v{vDB0}
    s_cmp_eq_u32 s{sJ}, 14
    s_cselect_b32 s{sT0}, 0, 512
    s_add_u32 s{sT0}, s{sT0}, {896 * 2}
    v_add_u32 v{vDB0}, s{sT0}, v{vDB0}
    s_mov_b32 s{S_U+2}, {448 * 2}
    s_waitcnt lgkmcnt(0)
    s_mov_b64 s[{S_X}:{S_X+1}], s[{P_X}:{P_X+1}]
    s_mov_b64 s[{S_B0}:{S_B0+1}], s[{P_WQKV}:{P_WQKV+1}]
    s_mov_b64 s[{S_U}:{S_U+1}], s[{P_GW}:{P_GW+1}]
    """)

    def vA(st):
        b = (st % 4) * SLOT
        g = [dma(sMX, b, vDX0, S_X, st * 128), dma(sMX, b + 1024, vDX1, S_X, st * 128)]
        for bi in range(3):
            g.append(dma(sMB, b + 8192 * bi, vDB0, S_B0, st * 64 * 2688 + 128 * bi))
        return [(x, ("A", st)) for x in g]

    def vbslot(sb):
        return 3 * SLOT + sb * 8192 if sb < 4 else (sb - 4) * 8192

    def vB(sb):
        return [(dma(sMB, vbslot(sb) - 16384, vDU, S_B0, sb * 64 * 2688), ("B", sb))]

    gw_ld = ([f"s_mov_b32 m0, {GWL}", "s_nop 0", f"buffer_load_dwordx4 v{vL16}, {sr4(S_U)}, 0 offen lds"], ("GW",))

    for g in vA(0):
        emit_group(g)
    a("s_barrier")
    for g in vA(1):
        emit_group(g)
    common_setup2("v")
    vAZ = vAW + 3
    a(f"""
    v_add_u32 v{vAW+1}, 8192, v{vAW}
    v_add_u32 v{vAW+2}, 16384, v{vAW}
    s_sub_u32 s{sT1}, s{sJ}, 14
    s_lshl_b32 s{sT1}, s{sT1}, 6
    v_xor_b32 v{vAZ}, s{sT1}, v{vAW}
    v_lshlrev_b32 v{vST+1}, 4, v{vT1}
    v_add_u32 v{vST+1}, {GWL}, v{vST+1}
    s_cmp_eq_u32 s{sJ}, 14
    s_cselect_b32 s{sT1}, 0, 4096
    s_lshl_b32 s{sT2}, s{sGRP}, 9
    s_add_u32 s{sT1}, s{sT1}, s{sT2}
    s_mul_i32 s{sHOFF}, s{sTILE}, {TQ}
    s_add_u32 s{sHOFF}, s{sHOFF}, s{sT1}
    s_add_u32 s{sHOFF}, s{sHOFF}, {VF}
    s_add_u32 s{sHOFF2}, s{sHOFF}, 14336
    v_mul_u32_u24 v{vST}, {7168 - 512}, v{vT1}
    v_add_u32 v{vST}, v{vST}, v{vL16}
    """)

    def readsVA(ks):
        st, s = ks // 4, ks % 4
        slot = st % 4
        out = set_base((slot // 2) * 2 * SLOT, [vAX, vAX+1, vAX+2, vAX+3, vAW, vAW+1, vAW+2, vAZ])
        off = (slot % 2) * SLOT
        f = WA[ks % 3]
        out.append(f"ds_read_b128 {vr(X+4*ks, 4)}, v{vAX+s} offset:{off}")
        for t in range(3):
            for q in range(2):
                out.append(f"ds_read_b64_tr_b16 {vr(f+4*t+2*q, 2)}, v{vAW+t} offset:{off + (16*s + 4*q) * 128}")
        return out

    NBV = 6
    WBV = [WF + 24, WF + 28, WF + 16, WF + 20, WF + 12, WF + 8]

    def readsVB(ks, z):
        sb, s = ks // 4, ks % 4
        f = WBV[ks % NBV]
        if z:
            return [f"ds_read_b128 {vr(f, 4)}, v{vST+1} offset:{32*ks}"]
        b = vbslot(sb)
        nb = (3 * SLOT if sb < 4 else 0)
        out = set_base(nb - 16384, [vAZ])
        off = b - nb
        for q in range(2):
            out.append(f"ds_read_b64_tr_b16 {vr(f+2*q, 2)}, v{vAZ} offset:{off + (16*s + 4*q) * 128}")
        return out

    def epi_v(acc, bi):
        o = [f"v_cvt_pk_bf16_f32 v{acc+i}, v{acc+2*i}, v{acc+2*i+1}" for i in range(8)]
        o.append(f"buffer_store_dwordx4 {vr(acc, 4)}, v{vST}, {sr4(S_WS)}, s{sHOFF} offen offset:{1024*bi}{SC}")
        o.append(f"buffer_store_dwordx4 {vr(acc+4, 4)}, v{vST}, {sr4(S_WS)}, s{sHOFF2} offen offset:{1024*bi}{SC}")
        return o

    abase[0] = 0
    a(f"s_waitcnt vmcnt({vm.wait({('A', 0)}, cntv)})\ns_barrier")
    stamp(a, "p1_first")
    for ks in range(2):
        for r in readsVA(ks):
            a(r)
    pend = vA(2) + vA(3)
    fillA = flag_addr(True, vFLA, vDG)
    for ks in range(28):
        st, s = ks // 4, ks % 4
        f = WA[ks % 3]
        m = [f"{MFMA} {vr(ACC+16*t, 16)}, {vr(X+4*ks, 4)}, {vr(f+4*t, 4)}, {'0' if ks == 0 else vr(ACC+16*t, 16)}" for t in range(3)]
        if s == 2:
            need = {("A", st + 1)} if st < 6 else {("B", x) for x in range(7)} | {("N",), ("GW",)}
            a(f"s_waitcnt vmcnt({vm.wait(need, cntv)}) lgkmcnt(0)")
            if st == 6:
                nonce_get("v")
            a("s_barrier")
            if st + 4 <= 6:
                pend += vA(st + 4)
            elif st == 3:
                pend += vB(0) + vB(1) + vB(2) + vB(3)
            elif st == 4:
                pend += vB(4) + vB(5) + vB(6) + [gw_ld]
            if st == 2:
                pend.append(nonce_ld)
            if "nopf" not in OPT and st == PF2_ST: pend.append(pf2())
            if "nopf" not in OPT and st == PF3_ST: pend.append(pf3())
        elif ks < 27:
            a("s_waitcnt lgkmcnt(7)")
        r = readsVA(ks + 2) if ks + 2 < 28 else []
        k = max(len(r) - 4, 0)
        a(m[0])
        for x in r[:k]:
            a(x)
        a(m[1])
        for x in r[k:]:
            a(x)
        a(m[2])
        if ks >= 16:
            assert vm.q.count(("A", 6)) == 5
            for _ in range(7):
                if fillA: a(fillA.pop(0))
        nd = 2 if (len(pend) > 4 or st < 1) else 1
        for _ in range(nd):
            if pend:
                emit_group(pend.pop(0))
    assert not fillA and not pend
    stamp(a, "p1_aend")
    VB = ACC + 48

    def passVB(z, fill):
        nrd = 1 if z else 2
        for ks in range(NBV - 1):
            for x in readsVB(ks, z):
                a(x)
        for ks in range(28):
            f = WBV[ks % NBV]
            c = vr(VB, 16)
            ops = f"{vr(f, 4)}, {vr(X+4*ks, 4)}" if z else f"{vr(X+4*ks, 4)}, {vr(f, 4)}"
            a(f"s_waitcnt lgkmcnt({min(NBV - 2, 27 - ks) * nrd})")
            a(f"{MFMA} {c}, {ops}, {'0' if ks == 0 else c}")
            if ks + NBV - 1 < 28:
                for x in readsVB(ks + NBV - 1, z):
                    a(x)
            for _ in range(3):
                if fill: a(fill.pop(0))
        assert not fill

    a(f"s_cmp_eq_u32 s{sGRP}, 1\ns_cbranch_scc1 k1_vg1")
    passVB(False, ["s_nop 1"] + epi_v(ACC, 0) + epi_v(ACC + 16, 1) + epi_v(ACC + 32, 2))
    a(f"""
    s_mul_i32 s{sHOFF}, s{sTILE}, {TQ}
    s_lshl_b32 s{sT1}, s{sJ}, 9
    s_add_u32 s{sHOFF}, s{sHOFF}, s{sT1}
    s_add_u32 s{sHOFF}, s{sHOFF}, {VF + 192 * 16 - 14 * 512}
    s_add_u32 s{sHOFF2}, s{sHOFF}, 14336
    s_nop 7
    """)
    for x in epi_v(VB, 0):
        a(x)
    stamp(a, "p1_bend")
    a(f"""
    s_waitcnt vmcnt(0)
    s_barrier
    """)
    stamp(a, "p1_end")
    a(f"""
    s_cmp_lg_u32 s{sW}, 3
    s_cbranch_scc1 k1_noflag_v
    s_mov_b32 s{sT0}, {FQ}
    buffer_store_dword v{vNON}, v{vDG}, {sr4(S_WS)}, s{sT0} offen{SC}
    """)
    a(flag1(a, sFHA))
    a.label("k1_noflag_v")
    a("s_branch att_spin")
    a.label("k1_vg1")
    a("s_nop 7")
    for x in epi_v(ACC, 0) + epi_v(ACC + 16, 1) + epi_v(ACC + 32, 2):
        a(x)
    stamp(a, "p1_bend")
    a(f"""
    s_waitcnt vmcnt(0)
    s_barrier
    """)
    stamp(a, "p1_end")
    a(f"s_mov_b32 s{sHOFF2}, {OOB}\ns_cmp_eq_u32 s{sJ}, 14\ns_cbranch_scc1 gemm_role")
    passVB(True, [])
    t = WF
    a(f"""
    s_nop 7
    s_nop 3
    v_mul_f32 v{t}, s{sNL2E}, v{VB}
    v_exp_f32 v{t}, v{t}
    v_and_b32 v{t+1}, 31, v{vLane}
    v_add_f32 v{t}, 1.0, v{t}
    v_rcp_f32 v{t}, v{t}
    v_lshlrev_b32 v{t+1}, 2, v{t+1}
    s_lshl_b32 s{sT0}, s{sTILE}, 7
    s_add_u32 s{sT0}, s{sT0}, {GF}
    buffer_store_dword v{t}, v{t+1}, {sr4(S_WS)}, s{sT0} offen{SC}
    s_waitcnt vmcnt(0)
    """)
    a.label("gemm_role")
    for i in range(8):
        for x in wpref(i):
            a(x)
    a("s_branch gemm_role2")
    a.label("gemm_role_f")
    a(f"""
    v_mov_b32 v{vT0}, {CNT + 32}
    v_mov_b32 v{vT1}, 1
    s_waitcnt vmcnt(0)
    s_mov_b64 exec, 1
    ds_add_rtn_u32 v{vT1}, v{vT0}, v{vT1}
    s_mov_b64 exec, -1
    s_waitcnt lgkmcnt(0)
    v_readfirstlane_b32 s{sT0}, v{vT1}
    s_cmp_lg_u32 s{sT0}, 3
    s_cbranch_scc1 gemm_role2
    """)
    a(flag1(a, sFHA))
    a.label("gemm_role2")
    gen_gemm(a, wpref)
    gen_attention(a)
    a.label("k_end")
    a("s_endpgm")
    return a.text()


vAWr = 16
RB = [0, 98304]


def wtr_setup(a):
    a(f"""
    v_bfe_u32 v{vT0}, v{vLane}, 4, 1
    v_bfe_u32 v{vT1}, v{vLane}, 2, 2
    v_and_b32 v{vT2}, 2, v{vT1}
    v_xor_b32 v{vT2}, v{vT2}, v{vT0}
    s_and_b32 s{sT0}, s{sKQ}, 1
    s_lshl_b32 s{sT0}, s{sT0}, 1
    v_xor_b32 v{vT2}, s{sT0}, v{vT2}
    v_lshrrev_b32 v{vT3}, 5, v{vLane}
    v_lshl_add_u32 v{vT3}, v{vT3}, 2, v{vT1}
    v_lshlrev_b32 v{vT3}, 7, v{vT3}
    v_lshl_add_u32 v{vT3}, v{vT2}, 5, v{vT3}
    v_and_b32 v{vT2}, 3, v{vLane}
    v_lshl_add_u32 v{vT3}, v{vT2}, 3, v{vT3}
    v_add_u32 v{vAWr}, s{sM0}, v{vT3}
    v_xor_b32 v{vAWr+1}, 64, v{vAWr}
    v_add_u32 v{vAWr+2}, {RB[1]}, v{vAWr}
    v_add_u32 v{vAWr+3}, {RB[1]}, v{vAWr+1}
    v_mov_b32 v{vAWr+4}, v{vT3}
    """)


def wtr_reads(slot, dst):
    ra = ring_addr(slot)
    bi = max(i for i in range(2) if RB[i] <= ra)
    out = []
    for T in range(2):
        for q in range(2):
            out.append(f"ds_read_b64_tr_b16 {vr(dst+4*T+2*q, 2)}, v{vAWr+2*bi+T} offset:{ra - RB[bi] + q*1024}")
    return out


def bcast_poll(a, tag, leader, addrs, soff, vtmp, sleep, ldsoff, pre=None, lsleep=2):
    a(f"s_cmp_lg_u32 s{sW}, {leader}\ns_cbranch_scc1 {tag}_lw")
    if pre:
        pre()
    poll(a, addrs, soff, vtmp, sleep)
    a.label(f"{tag}_ok")
    lds_set(a, ldsoff, 1, vT0)
    a(f"s_branch {tag}_go")
    a.label(f"{tag}_lw")
    lds_wait(a, ldsoff, vT0, "eq1", lsleep)
    a.label(f"{tag}_go")


def gen_gemm(a, wpref):
    ACC = 64
    ACT = 128
    WFB = [32, 40]
    vA0, vA1, vG0, vFl, vFl2, vMB = 21, 22, 23, 25, 24, 26
    sA0, sB0w, sFH2, sMO2, sDONE, sNEW, sH = 45, 46, 47, 48, 49, 50, 52
    DA = GDA
    stamp(a, "x_role")
    wtr_setup(a)
    srd(a, S_WO, P_WO, 448 * 448 * 2)
    srd(a, S_OUT, P_OUT, 2048 * 448 * 2)
    a(f"""
    s_lshr_b32 s{sMO2}, s{sKQ}, 1
    s_mul_i32 s{sT0}, s{sMO2}, {112 * 1024}
    v_add_u32 v{vA0}, s{sT0}, v{vL16}
    s_sub_u32 s{sT0}, {112 * 1024}, s{sT0}
    v_add_u32 v{vA1}, s{sT0}, v{vL16}
    s_lshr_b32 s{sT1}, s{sMT}, 1
    s_lshl_b32 s{sT1}, s{sT1}, 9
    s_add_u32 s{sT1}, s{sT1}, {FH}
    s_lshl_b32 s{sFH2}, s{sMT}, 10
    s_add_u32 s{sFH2}, s{sFH2}, {FHB}
    s_mul_i32 s{sA0}, s{sMT}, 224
    s_add_u32 s{sA0}, s{sA0}, s{sKQ}
    s_lshl_b32 s{sA0}, s{sA0}, 10
    s_add_u32 s{sA0}, s{sA0}, {HF}
    s_mul_i32 s{sB0w}, s{sKQ}, {112 * 896}
    s_lshl_b32 s{sT0}, s{sNT}, 7
    s_add_u32 s{sB0w}, s{sB0w}, s{sT0}
    v_and_b32 v{vFl}, 0x1ff, v{vFLA}
    v_and_b32 v{vFl2}, 0x3ff, v{vFLA}
    s_add_u32 s{sT2}, s{sM0}, {MERGE + MBOX}
    v_add_u32 v{vMB}, s{sT2}, v{vL16}
    s_sub_u32 s{sHOFF}, s{sHOFF2}, 2048
    s_cmp_lt_u32 s{sI32}, 28
    s_cbranch_scc1 gemm_has
    """)

    def hb_all():
        lds_wait(a, 24, vT0, "eq4", 1)
        a(f"""
        ds_read_b128 {vr(HBR+8, 4)}, v{vMB}
        ds_read_b128 {vr(HBR+12, 4)}, v{vMB} offset:1024
        """)

    def hb_st():
        return hb_stores() + [f"buffer_store_dwordx4 {vr(HBR+8+4*i, 4)}, v{vL16}, {sr4(S_WS)}, s{sHOFF} offen offset:{1024*i}{SC}" for i in range(2)]
    hb_all()
    a("s_waitcnt lgkmcnt(0)")
    for x in hb_st():
        a(x)
    a("s_waitcnt vmcnt(0)")
    a(flag1(a, sFHO))
    a("s_endpgm")
    a.label("gemm_has")
    bcast_poll(a, "gA", 4, [vFl], sT1, vG0, SLEEP_H, 8)
    hb_all()
    stamp(a, "x_go"); stamp(a, "x_loop")
    vm = VM()
    for i in range(0, 8):
        vm.add(("w", i))

    def act_loads(i):
        r = ACT + 8 * (i % DA)
        a(f"""
        s_add_u32 s{sT0}, s{sA0}, {wk_off(i) * 1024}
        buffer_load_dwordx4 {vr(r, 4)}, v{vA0}, {sr4(S_WS)}, s{sT0} offen{SC}
        buffer_load_dwordx4 {vr(r+4, 4)}, v{vA1}, {sr4(S_WS)}, s{sT0} offen{SC}
        """)
        vm.add(("a", i)); vm.add(("a", i))

    def w_loads(i):
        if i < 28:
            for x in wpref(i):
                a(x)
        else:
            ra = ring_addr(wslot(i))
            off = (28 * ((i - 28) // 2) + 16 * ((i - 28) % 2)) * 896
            a(f"""
            s_add_u32 m0, s{sM0}, {ra}
            s_add_u32 s{sT0}, s{sB0w}, {off}
            buffer_load_dwordx4 v{vDW}, {sr4(S_WO)}, s{sT0} offen lds
            s_add_u32 m0, s{sM0}, {ra + 1024}
            s_add_u32 s{sT0}, s{sT0}, {8 * 896}
            buffer_load_dwordx4 v{vDW}, {sr4(S_WO)}, s{sT0} offen lds
            """)
        vm.add(("w", i)); vm.add(("w", i))

    na, nw = 0, 8
    for i in range(GPRE):
        act_loads(na); na += 1
        if nw < GPRE + 1:
            w_loads(nw); nw += 1
    a("s_waitcnt lgkmcnt(0)")
    for x in hb_st():
        a(x); vm.add(("hb",))
    a(f"s_waitcnt vmcnt({vm.wait({('w', 0)})})")
    for x in wtr_reads(0, WFB[0]):
        a(x)
    gotB = False
    for i in range(28):
        need = {("a", i)}
        if i + 1 < 28:
            need.add(("w", i + 1))
        a(f"s_waitcnt vmcnt({vm.wait(need)}) lgkmcnt(0)")
        if i + 1 < 28:
            for x in wtr_reads((i + 1) % 13, WFB[(i + 1) % 2]):
                a(x)
        for mt in range(2):
            for T in range(2):
                c = vr(ACC + 32 * mt + 16 * T, 16)
                a(f"{MFMA} {c}, {vr(WFB[i%2]+4*T, 4)}, {vr(ACT+8*(i%DA)+4*mt, 4)}, {'0' if i == 0 else c}")
        if i == GPRE:
            a(flag1(a, sFHO))
        if i == GB_AT:
            stamp(a, "g_b0")
            bcast_poll(a, "gB", 4, [vFl2], sFH2, vPOL, SLEEP_H, 12)
            stamp(a, "g_b1")
            gotB = True
            a(f"""
            v_and_b32 v{vT0}, 31, v{vLane}
            v_lshlrev_b32 v{vT0}, 2, v{vT0}
            s_lshl_b32 s{sT1}, s{sMT}, 1
            s_add_u32 s{sT1}, s{sT1}, s{sMO2}
            s_lshl_b32 s{sT1}, s{sT1}, 7
            s_add_u32 s{sT1}, s{sT1}, {GF}
            buffer_load_dword v{vG0}, v{vT0}, {sr4(S_WS)}, s{sT1} offen{SC}
            """)
            vm.add(("g",))
        for _ in range(2):
            if na < 28 and na <= i + DA and (na < 14 or gotB):
                act_loads(na); na += 1
            if nw < 36 and nw <= i + min(13, DA + 1) and (nw < 28 or wslot(nw) + 13 <= i):
                w_loads(nw); nw += 1
    assert na == 28
    while nw < 36:
        w_loads(nw); nw += 1
    stamp(a, "x_lend")
    XS = [0, 1, 6, 7]
    R, AA, SL = 128, ACC + 16, 128
    vX0, vX1, vC1, vOUT, vWa = 26, 27, 28, 30, 29

    def xaddr(reg, x):
        a(f"""
        s_xor_b32 s{sT0}, s{sKQ}, {x}
        s_lshl_b32 s{sT0}, s{sT0}, 11
        v_add_u32 v{reg}, s{sT0}, v{vL16}
        v_add_u32 v{reg+1}, {RB[1]}, v{reg}
        """)

    def xo(i):
        ra = ring_addr(XS[i // 2]) + (i % 2) * 1024
        return (vX0, ra) if ra < RB[1] else (vX1, ra - RB[1])

    def gsync(off, tag):
        a(f"""
        v_mov_b32 v{vC1}, {CNT + off}
        v_mov_b32 v{vT0}, 1
        s_waitcnt vmcnt(0) lgkmcnt(0)
        s_mov_b64 exec, 1
        ds_add_u32 v{vC1}, v{vT0}
        s_mov_b64 exec, -1
        """)
        a.label(tag)
        a(f"""
        ds_read_b32 v{vT0}, v{vC1}
        s_waitcnt lgkmcnt(0)
        v_readfirstlane_b32 s{sT0}, v{vT0}
        s_cmp_eq_u32 s{sT0}, 4
        s_cbranch_scc1 {tag}_d
        s_sleep 1
        s_branch {tag}
        """)
        a.label(f"{tag}_d")

    xaddr(vX0, 0)
    a("s_nop 7")
    for i in range(8):
        r_, o_ = xo(i)
        a(f"ds_write_b128 v{r_}, {vr(ACC+32+4*i, 4)} offset:{o_}")
    xaddr(vX0, 2)
    gsync(16, "gs1")
    for i in range(8):
        r_, o_ = xo(i)
        a(f"ds_read_b128 {vr(R+4*i, 4)}, v{r_} offset:{o_}")
    a("s_waitcnt lgkmcnt(0)")
    for i in range(16, 32):
        a(f"v_add_f32 v{ACC+i}, v{ACC+i}, v{R+i}")
    for i in range(4):
        r_, o_ = xo(i)
        a(f"ds_write_b128 v{r_}, {vr(ACC+16+4*i, 4)} offset:{o_}")
    for i in range(16):
        a(f"v_add_f32 v{ACC+i}, v{ACC+i}, v{R+i}")
    xaddr(vX0, 3)
    gsync(28, "gs2")
    for i in range(4):
        r_, o_ = xo(i)
        a(f"ds_read_b128 {vr(R+4*i, 4)}, v{r_} offset:{o_}")
    a(f"""
    v_sub_f32 v{vT2}, 1.0, v{vG0}
    s_lshl_b32 s{sT1}, s{sMT}, 1
    s_add_u32 s{sT1}, s{sT1}, s{sMO2}
    s_lshl_b32 s{sFH2}, s{sT1}, 9
    s_add_u32 s{sFH2}, s{sFH2}, {FO}
    s_lshl_b32 s{sA0}, s{sT1}, 15
    s_add_u32 s{sA0}, s{sA0}, {OF}
    s_mul_i32 s{sT2}, s{sT1}, {32 * 896}
    s_lshl_b32 s{sT1}, s{sNT}, 7
    s_add_u32 s{sT2}, s{sT2}, s{sT1}
    s_and_b32 s{sT1}, s{sKQ}, 1
    s_lshl_b32 s{sT1}, s{sT1}, 6
    s_add_u32 s{sT2}, s{sT2}, s{sT1}
    v_and_b32 v{vFl}, 31, v{vLane}
    v_mul_u32_u24 v{vOUT}, 896, v{vFl}
    v_lshrrev_b32 v{vT3}, 5, v{vLane}
    v_lshl_add_u32 v{vOUT}, v{vT3}, 4, v{vOUT}
    v_and_b32 v{vFl}, 0x1ff, v{vFLA}
    s_mov_b32 s{sDONE}, 0xffff0000
    s_mov_b32 s{sSPIN}, {SPIN_MAX}
    s_waitcnt lgkmcnt(0)
    """)
    for i in range(16):
        a(f"v_add_f32 v{ACC+i}, v{ACC+i}, v{R+i}")
    for i in range(16):
        a(f"v_mul_f32 v{ACC+i}, v{ACC+i}, v{vT2}")
        a(f"v_mov_b32 v{AA+i}, 0")
    stamp(a, "p3_poll")
    a.label("p3_poll")
    a(f"""
    buffer_load_dword v{vPOL}, v{vFl}, {sr4(S_WS)}, s{sFH2} offen{SC}
    s_waitcnt vmcnt(0)
    v_cmp_eq_u32 vcc, s{sNONCE}, v{vPOL}
    s_sub_u32 s{sSPIN}, s{sSPIN}, 1
    s_cbranch_scc1 p3_fin
    s_andn2_b32 s{sNEW}, vcc_lo, s{sDONE}
    s_cbranch_scc1 p3_batch
    s_sleep {SLEEP_O}
    s_branch p3_poll
    """)
    a.label("p3_batch")
    for k in range(4):
        o, w = SL + 16 * k, SL + 16 * k + 8
        a(f"""
        s_ff1_i32_b32 s{sH}, s{sNEW}
        s_bitset0_b32 s{sNEW}, s{sH}
        s_bitset1_b32 s{sDONE}, s{sH}
        s_lshl_b32 s{sT0}, s{sH}, 11
        s_add_u32 s{sT0}, s{sT0}, s{sA0}
        buffer_load_dwordx4 {vr(o, 4)}, v{vL16}, {sr4(S_WS)}, s{sT0} offen{SC}
        buffer_load_dwordx4 {vr(o+4, 4)}, v{vL16}, {sr4(S_WS)}, s{sT0} offen offset:1024{SC}
        s_bitcmp1_b32 s{sH}, 1
        s_cselect_b32 s{sT0}, 0, {ring_addr(2)}
        s_and_b32 s{sT1}, s{sH}, 1
        s_lshl_b32 s{sT1}, s{sT1}, 14
        s_add_u32 s{sT0}, s{sT0}, s{sT1}
        s_lshr_b32 s{sT1}, s{sH}, 2
        s_lshl_b32 s{sT1}, s{sT1}, 11
        s_add_u32 s{sT0}, s{sT0}, s{sT1}
        v_add_u32 v{vWa}, s{sT0}, v{vAWr+4}
        ds_read_b64_tr_b16 {vr(w, 2)}, v{vWa}
        ds_read_b64_tr_b16 {vr(w+2, 2)}, v{vWa} offset:1024
        ds_read_b64_tr_b16 {vr(w+4, 2)}, v{vWa} offset:8192
        ds_read_b64_tr_b16 {vr(w+6, 2)}, v{vWa} offset:9216
        """)
        if k == 2:
            a("s_waitcnt lgkmcnt(4)")
        if k < 3:
            a(f"s_cmp_eq_u32 s{sNEW}, 0\ns_cbranch_scc1 p3_run{k}")
    for k in range(3, -1, -1):
        o, w = SL + 16 * k, SL + 16 * k + 8
        a.label(f"p3_run{k}")
        a(f"""
        s_waitcnt vmcnt(0) lgkmcnt(0)
        {MFMA} {vr(AA, 16)}, {vr(w, 4)}, {vr(o, 4)}, {vr(AA, 16)}
        {MFMA} {vr(AA, 16)}, {vr(w+4, 4)}, {vr(o+4, 4)}, {vr(AA, 16)}
        """)
    a(f"""
    s_cmp_lg_u32 s{sNEW}, 0
    s_cbranch_scc1 p3_batch
    s_cmp_lg_u32 s{sDONE}, -1
    s_cbranch_scc1 p3_poll
    """)
    a.label("p3_fin")
    stamp(a, "p3_mfma")
    a("s_nop 7")
    t = 192
    for i in range(16):
        a(f"v_fma_f32 v{ACC+i}, v{AA+i}, v{vG0}, v{ACC+i}")
    for i in range(8):
        a(f"v_cvt_pk_bf16_f32 v{t+i}, v{ACC+2*i}, v{ACC+2*i+1}")
    a(f"""
    v_permlane32_swap_b32 v{t}, v{t+2}
    v_permlane32_swap_b32 v{t+1}, v{t+3}
    buffer_store_dwordx4 {vr(t, 4)}, v{vOUT}, {sr4(S_OUT)}, s{sT2} offen
    v_permlane32_swap_b32 v{t+4}, v{t+6}
    v_permlane32_swap_b32 v{t+5}, v{t+7}
    buffer_store_dwordx4 {vr(t+4, 4)}, v{vOUT}, {sr4(S_OUT)}, s{sT2} offen offset:32
    """)
    if "dbgt" in OPT:
        a(f"""
        s_cmp_ge_u32 s2, 7
        s_cbranch_scc1 k_end
        s_cmp_lg_u32 s{sW}, 4
        s_cbranch_scc1 k_end
        s_memtime s[90:91]
        s_memrealtime s[92:93]
        s_waitcnt lgkmcnt(0)
        s_sub_u32 s90, s90, s86
        s_sub_u32 s92, s92, s88
        v_mov_b32 v4, s90
        v_mov_b32 v5, s92
        s_lshl_b32 s3, s2, 3
        s_add_u32 s3, s3, 8
        buffer_store_dwordx2 v[4:5], v{vF1}, {sr4(S_DBG)}, s3 offen
        """)
    stamp_flush(a)
    a("s_endpgm")


def gen_attention(a):
    Q, O, S, KV, P, TMP = AQ, AO, AS, AKV, AP, ATMP
    vG, vM, vONE = avG, avM, avONE
    a.label("att_spin")
    bcast_poll(a, "aq", 0, [vFLA, vFLA + 1], sFQB, vPOL, SLEEP_Q, 4, lsleep=1)
    stamp(a, "x_go")
    o1, o2, vm, flat = att_loads()

    def k_fix(buf):
        return [f"v_cndmask_b32 v{KV+16*buf+6}, v{KV+16*buf+6}, v{vONE}, s[{sME}:{sME+1}]",
                f"v_cndmask_b32 v{KV+16*buf}, v{KV+16*buf}, v{vONE}, s[{sMO}:{sMO+1}]"]

    zer = [f"v_mov_b32 v{O+k}, 0" for k in range(12, 64)]
    for x in flat(o1):
        a(x)
    step = len(zer) // len(o2) + 1
    zz = list(zer)
    for x in o2:
        for _ in range(step):
            if zz: a(zz.pop(0))
        for y in flat([x]):
            a(y)
    a("s_branch att_main2")
    a.label("att_main")
    for x in zer:
        a(x)
    a.label("att_main2")
    stamp(a, "x_main")
    a(f"""
    s_setprio 2
    s_lshl_b32 s{sT0}, s{sKQ}, 11
    s_add_u32 s{sT0}, s{sT0}, {MERGE}
    v_add_u32 v{TMP}, s{sT0}, v{vL16}
    v_subrev_u32 v{TMP+1}, {-MBOX}, v{TMP}
    ds_write_b128 v{TMP+1}, {vr(HBR, 4)}
    ds_write_b128 v{TMP+1}, {vr(HBR+4, 4)} offset:1024
    v_mov_b32 v{vT1}, 0
    s_and_b32 s{sT0}, s{sHEAD}, 1
    s_mov_b32 s{sME}, 0
    s_mov_b32 s{sMO+1}, 0
    s_sub_u32 s{sME+1}, s{sT0}, 1
    s_sub_u32 s{sMO}, 0, s{sT0}
    v_mov_b32 v{avV0}, v{vT2}
    v_mov_b32 v{avV1}, v{vT3}
    v_mov_b32 v{vONE}, 0x3f803f80
    v_mov_b32 v{TMP+1}, {CNT + 24}
    v_mov_b32 v{TMP+2}, 1
    s_waitcnt vmcnt({vm.wait({('q',), ('kv', 0, 1)})})
    v_cndmask_b32 v{Q}, v{Q}, v{vT1}, s[{sMO}:{sMO+1}]
    v_cndmask_b32 v{Q+1}, v{Q+1}, v{vT1}, s[{sMO}:{sMO+1}]
    v_cndmask_b32 v{Q+6}, v{Q+6}, v{vT1}, s[{sME}:{sME+1}]
    v_cndmask_b32 v{Q+7}, v{Q+7}, v{vT1}, s[{sME}:{sME+1}]
    {MFMA} {vr(S[1], 16)}, {vr(KV, 4)}, {vr(Q, 4)}, 0
    s_nop 0
    {MFMA} {vr(S[1], 16)}, {vr(KV+4, 4)}, {vr(Q+4, 4)}, {vr(S[1], 16)}
    """)
    stamp(a, "x_q")
    for x in k_fix(0):
        a(x)
    for k in range(12):
        a(f"v_mov_b32 v{O+k}, 0")
    s0 = S[1]
    a(f"""
    v_max3_f32 v{vM}, v{s0}, v{s0+1}, v{s0+2}
    v_max3_f32 v{vT0}, v{s0+3}, v{s0+4}, v{s0+5}
    v_max3_f32 v{vT2}, v{s0+6}, v{s0+7}, v{s0+8}
    v_max3_f32 v{vT3}, v{s0+9}, v{s0+10}, v{s0+11}
    v_max3_f32 v{vM}, v{vM}, v{s0+12}, v{s0+13}
    v_max3_f32 v{vT0}, v{vT0}, v{s0+14}, v{s0+15}
    v_max3_f32 v{vM}, v{vM}, v{vT2}, v{vT3}
    v_max_f32 v{vM}, v{vM}, v{vT0}
    v_mov_b32 v{vT0}, v{vM}
    s_nop 1
    v_permlane32_swap_b32 v{vM}, v{vT0}
    v_max_f32 v{vM}, v{vM}, v{vT0}
    v_sub_f32 v{vM}, 0, v{vM}
    v_cvt_pk_bf16_f32 v{vT0}, v{vM}, v{vM}
    v_lshlrev_b32 v{vT0}, 16, v{vT0}
    v_sub_f32 v{vT0}, v{vM}, v{vT0}
    v_cvt_pk_bf16_f32 v{vT0}, v{vM}, v{vT0}
    v_cndmask_b32 v{Q}, v{Q}, v{vT0}, s[{sMO}:{sMO+1}]
    v_cndmask_b32 v{Q+6}, v{Q+6}, v{vT0}, s[{sME}:{sME+1}]
    ds_write_b128 v{TMP}, {vr(Q, 4)}
    ds_write_b128 v{TMP}, {vr(Q+4, 4)} offset:1024
    {MFMA} {vr(S[0], 16)}, {vr(KV, 4)}, {vr(Q, 4)}, 0
    {MFMA} {vr(S[0], 16)}, {vr(KV+4, 4)}, {vr(Q+4, 4)}, {vr(S[0], 16)}
    s_waitcnt lgkmcnt(0)
    s_mov_b64 exec, 1
    ds_add_u32 v{TMP+1}, v{TMP+2}
    s_mov_b64 exec, -1
    """)
    for x in kv_adv()[:3]:
        a(x)
    for i in range(4):
        a(f"v_mov_b32 v{P+4+i}, 0\nv_mov_b32 v{KV+16*3+12+i}, v{vONE}\nv_mov_b32 v{KV+16*3+8+i}, v{vONE}")
    for i in range(1, 4):
        a(f"""
        s_add_u32 s{sT0}, s{sKQ}, {i}
        s_and_b32 s{sT0}, s{sT0}, 3
        s_lshl_b32 s{sT0}, s{sT0}, 11
        s_add_u32 s{sT0}, s{sT0}, {MERGE}
        v_add_u32 v{TMP+2+i}, s{sT0}, v{vL16}
        """)
    stamp(a, "x_qs")
    a.label("att_qsync")
    a(f"""
    ds_read_b32 v{TMP+2}, v{TMP+1}
    s_waitcnt lgkmcnt(0)
    v_cmp_gt_u32 vcc, 4, v{TMP+2}
    s_cbranch_vccnz att_qsync
    """)
    for i in range(1, 4):
        a(f"ds_read_b128 {vr(Q+8*i, 4)}, v{TMP+2+i}\nds_read_b128 {vr(Q+8*i+4, 4)}, v{TMP+2+i} offset:1024")
    a("s_waitcnt lgkmcnt(0)")
    a(f"s_mov_b32 s{sIT}, 0")
    stamp(a, "x_loop")
    a.label("att_loop")
    for tb in range(4):
        for q in range(4):
            ph = 4 * tb + q
            sc, sn = S[ph % 2], S[1 - ph % 2]
            pq, pb = (q - 1) % 4, (tb if q > 0 else (tb - 1) % 4)
            nq, nb = (q + 1) % 4, (tb if q < 3 else (tb + 1) % 4)
            e = [f"v_exp_f32 v{sc+i}, v{sc+i}" for i in range(16)]
            c = [f"v_cvt_pk_bf16_f32 v{P+i}, v{sc+2*i}, v{sc+2*i+1}" for i in range(8)]
            pv2 = f"{MFMA} {vr(O+16*pq, 16)}, {vr(KV+16*pb+12, 4)}, {vr(P+4, 4)}, {vr(O+16*pq, 16)}"
            pv1 = f"{MFMA} {vr(O+16*q, 16)}, {vr(KV+16*tb+8, 4)}, {vr(P, 4)}, {vr(O+16*q, 16)}"
            qk1 = f"{MFMA} {vr(sn, 16)}, {vr(KV+16*nb, 4)}, {vr(Q+8*nq, 4)}, 0"
            qk2 = f"{MFMA} {vr(sn, 16)}, {vr(KV+16*nb+4, 4)}, {vr(Q+8*nq+4, 4)}, {vr(sn, 16)}"
            adv = kv_adv()
            s_pv2, s_qk1, s_qk2, s_pv1, tail = [], [], [], [], []
            s_qk1 += kv_load((tb + 3) % 4, q, (avV0, avV1))
            if q == 0:
                s_pv2.append(adv[3])
                s_qk2.append("s_waitcnt vmcnt(9)")
                s_pv1.append(adv[4])
            if q == 1:
                if tb == 0:
                    s_pv2.append(f"s_cmp_eq_u32 s{sIT}, 3")
                    s_qk2.append(f"s_cselect_b32 s{sKB}, {OOB}, s{sKB}")
                    s_pv1.append(f"s_cselect_b32 s{sVB}, {OOB}, s{sVB}")
                if tb == 3:
                    s_pv1.append(f"s_add_u32 s{sIT}, s{sIT}, 1")
            if q == 2:
                s_pv2.append(f"s_mul_i32 s{sT0}, s{sTI}, {TQ}")
                s_qk2.append(f"s_add_u32 s{sKS}, s{sT0}, s{sKB}")
                s_pv1.append("s_waitcnt vmcnt(9)")
                tail = k_fix((tb + 1) % 4)
            if q == 3:
                s_qk2.append(f"s_add_u32 s{sVS}, s{sT0}, s{sVB}")
                if tb == 3:
                    s_pv1.append(f"s_cmp_lt_u32 s{sIT}, 4")
            seq = e[0:2] + [pv2] + s_pv2 + e[2:5] + [qk1] + s_qk1 + e[5:9] + c[0:4] + [qk2] + s_qk2 + e[9:12] + [pv1] + s_pv1 + e[12:16] + tail + c[4:8]
            for x in seq:
                a(x)
    a(f"""
    s_cbranch_scc1 att_loop
    s_nop 0
    {MFMA} {vr(O+48, 16)}, {vr(KV+16*3+12, 4)}, {vr(P+4, 4)}, {vr(O+48, 16)}
    """)
    stamp(a, "x_lend")
    for i in range(1, 4):
        a(f"""
        s_add_u32 s{sT0}, s{sKQ}, {i}
        s_and_b32 s{sT0}, s{sT0}, 3
        s_mul_i32 s{sT0}, s{sT0}, 12288
        s_add_u32 s{sT0}, s{sT0}, {MERGE + (i-1) * 4096}
        v_add_u32 v{vT0}, s{sT0}, v{vL16}
        """)
        for q in range(4):
            a(f"ds_write_b128 v{vT0}, {vr(O+16*i+4*q, 4)} offset:{1024*q}")
    a(f"""
    v_mov_b32 v{vT1}, {CNT}
    v_mov_b32 v{vT2}, 1
    s_mul_i32 s{sT0}, s{sKQ}, 12288
    s_add_u32 s{sT0}, s{sT0}, {MERGE}
    v_add_u32 v{vT0}, s{sT0}, v{vL16}
    s_lshl_b32 s{sT2}, s{sQB}, 2
    s_add_u32 s{sT2}, s{sT2}, s{sKQ}
    s_lshl_b32 s{sT2}, s{sT2}, 4
    s_add_u32 s{sT2}, s{sT2}, s{sHEAD}
    s_lshl_b32 s{sKB}, s{sT2}, 11
    s_add_u32 s{sKB}, s{sKB}, {OF}
    s_lshr_b32 s{sVB}, s{sT2}, 2
    s_lshl_b32 s{sVB}, s{sVB}, 7
    s_and_b32 s{sT2}, s{sT2}, 3
    s_lshl_b32 s{sT2}, s{sT2}, 2
    s_add_u32 s{sVB}, s{sVB}, s{sT2}
    s_add_u32 s{sVB}, s{sVB}, {FO}
    s_waitcnt lgkmcnt(0)
    s_mov_b64 exec, 1
    ds_add_u32 v{vT1}, v{vT2}
    s_mov_b64 exec, -1
    """)
    a.label("att_msync")
    a(f"""
    ds_read_b32 v{vT2}, v{vT1}
    s_waitcnt lgkmcnt(0)
    v_cmp_gt_u32 vcc, 4, v{vT2}
    s_cbranch_vccnz att_msync
    """)
    stamp(a, "x_msync")
    for i in range(12):
        a(f"ds_read_b128 {vr(O+16+4*i, 4)}, v{vT0} offset:{1024*i}")
    a(f"""
    v_cmp_lt_u32 vcc, 31, v{vLane}
    s_mov_b32 s{sT0}, {f32bits(2.0**-10):#x}
    s_mov_b32 s{sT1}, {f32bits(2.0**100):#x}
    """)
    for k in range(3):
        a(f"s_waitcnt lgkmcnt({8 - 4*k})")
        for i in range(16):
            a(f"v_add_f32 v{O+i}, v{O+i}, v{O+16+16*k+i}")
    C = O + 16
    a(f"""
    v_mov_b32 v{vT0}, v{O+12}
    v_mov_b32 v{vT1}, v{O+12}
    """)
    for k in range(4):
        a(f"v_mul_f32 v{C+k}, 0, v{O+4*k}")
    a(f"v_permlane32_swap_b32 v{vT0}, v{vT1}")
    for i in range(1, 4):
        for k in range(4):
            a(f"v_fma_f32 v{C+k}, v{O+4*k+i}, 0, v{C+k}")
    a(f"""
    v_rcp_f32 v{vT2}, v{vT1}
    v_cndmask_b32 v{C+3}, v{C+3}, v{C+2}, vcc
    v_add_f32 v{C}, v{C}, v{C+1}
    v_add_f32 v{C+2}, v{C+2}, v{C+3}
    v_add_f32 v{C}, v{C}, v{vT1}
    v_add_f32 v{C}, v{C}, v{C+2}
    v_cmp_le_f32 s[28:29], s{sT0}, v{C}
    v_cmp_ge_f32 s[16:17], s{sT1}, v{C}
    s_and_b64 s[28:29], s[28:29], s[16:17]
    s_cmp_eq_u64 s[28:29], -1
    s_cbranch_scc0 att_fallback
    """)
    a.label("att_final")
    a(f"""
    v_mov_b32 v{vT0}, 0
    """)
    for hh in range(2):
        for i in range(8):
            a(f"v_mul_f32 v{O+8*hh+i}, v{O+8*hh+i}, v{vT2}")
        for i in range(4):
            a(f"v_cvt_pk_bf16_f32 v{TMP+4*hh+i}, v{O+8*hh+2*i}, v{O+8*hh+2*i+1}")
        if hh == 1:
            a(f"v_cndmask_b32 v{TMP+6}, v{TMP+6}, v{vT0}, vcc\nv_cndmask_b32 v{TMP+7}, v{TMP+7}, v{vT0}, vcc")
        a(f"buffer_store_dwordx4 {vr(TMP+4*hh, 4)}, v{vL16}, {sr4(S_WS)}, s{sKB} offen offset:{1024*hh}{SC}")
    stamp(a, "x_ost")
    a("s_waitcnt vmcnt(0)")
    a(flag1(a, sVB))
    stamp(a, "x_b2")
    stamp_flush(a)
    a("s_endpgm")

    a.label("att_fallback")
    sc = S[0]
    K, V = KV, KV + 8
    vMo, vMn, vAl = TMP, TMP + 1, TMP + 2
    a(f"""
    v_mov_b32 v{vT0}, 0
    v_mov_b32 v{vMo}, 0xff800000
    v_cndmask_b32 v{Q}, v{Q}, v{vT0}, s[{sMO}:{sMO+1}]
    v_cndmask_b32 v{Q+6}, v{Q+6}, v{vT0}, s[{sME}:{sME+1}]
    s_mov_b32 s{sIT}, 0
    s_lshl_b32 s{sKS}, s{sP0}, 9
    s_add_u32 s{sKS}, s{sKS}, {KF}
    s_mul_i32 s{sVS}, s{sHEAD}, 448
    s_add_u32 s{sVS}, s{sVS}, {VF}
    s_waitcnt vmcnt(0)
    """)
    for i in range(16):
        a(f"v_mov_b32 v{O+i}, 0")
    a.label("att_fb_loop")
    a(f"""
    buffer_load_dwordx4 {vr(K, 4)}, v{vL16}, {sr4(S_WS)}, s{sKS} offen{SC}
    buffer_load_dwordx4 {vr(K+4, 4)}, v{vL16}, {sr4(S_WS)}, s{sKS} offen offset:1024{SC}
    s_mov_b64 exec, s[{sVM}:{sVM+1}]
    buffer_load_dwordx4 {vr(V, 4)}, v{avV0}, {sr4(S_WS)}, s{sVS} offen{SC}
    buffer_load_dwordx4 {vr(V+4, 4)}, v{avV1}, {sr4(S_WS)}, s{sVS} offen{SC}
    s_mov_b64 exec, -1
    s_waitcnt vmcnt(0)
    {MFMA} {vr(sc, 16)}, {vr(K, 4)}, {vr(Q, 4)}, 0
    {MFMA} {vr(sc, 16)}, {vr(K+4, 4)}, {vr(Q+4, 4)}, {vr(sc, 16)}
    s_nop 15
    v_max3_f32 v{vMn}, v{vMo}, v{sc}, v{sc+1}
    """)
    for i in range(2, 16, 2):
        a(f"v_max3_f32 v{vMn}, v{vMn}, v{sc+i}, v{sc+i+1}")
    a(f"""
    v_mov_b32 v{vT0}, v{vMn}
    s_nop 1
    v_permlane32_swap_b32 v{vMn}, v{vT0}
    v_max_f32 v{vMn}, v{vMn}, v{vT0}
    v_sub_f32 v{vAl}, v{vMo}, v{vMn}
    v_exp_f32 v{vAl}, v{vAl}
    v_mov_b32 v{vMo}, v{vMn}
    """)
    for i in range(16):
        a(f"v_sub_f32 v{sc+i}, v{sc+i}, v{vMn}")
    for i in range(16):
        a(f"v_exp_f32 v{sc+i}, v{sc+i}")
    for i in range(16):
        a(f"v_mul_f32 v{O+i}, v{O+i}, v{vAl}")
    for i in range(8):
        a(f"v_cvt_pk_bf16_f32 v{P+i}, v{sc+2*i}, v{sc+2*i+1}")
    a(f"""
    s_nop 1
    {MFMA} {vr(O, 16)}, {vr(V, 4)}, {vr(P, 4)}, {vr(O, 16)}
    {MFMA} {vr(O, 16)}, {vr(V+4, 4)}, {vr(P+4, 4)}, {vr(O, 16)}
    s_add_u32 s{sKS}, s{sKS}, {TQ}
    s_add_u32 s{sVS}, s{sVS}, {TQ}
    s_add_u32 s{sIT}, s{sIT}, 1
    s_cmp_lt_u32 s{sIT}, 64
    s_cbranch_scc1 att_fb_loop
    s_nop 15
    v_mov_b32 v{vT0}, v{O+12}
    v_mov_b32 v{vT1}, v{O+12}
    s_nop 1
    v_permlane32_swap_b32 v{vT0}, v{vT1}
    v_rcp_f32 v{vT2}, v{vT1}
    s_nop 0
    s_branch att_final
    """)


def build():
    ref = open(f"cdna_kernels/{NAME}.s.ref").read().split("\n")
    hdr = [l for l in ref if l.startswith(";") and "@launch" not in l and "Override launch" not in l and "grid=ceil" not in l]
    body = gen()
    out = "\n".join(hdr) + "\n"
    out += f"; @launch grid=(256,1,1) block=(512,1,1) lds={LDS_BYTES}\n"
    out += '.amdgcn_target "amdgcn-amd-amdhsa--gfx950"\n.text\n'
    out += f".globl {KNAME}\n.p2align 8\n.type {KNAME},@function\n{KNAME}:\n"
    out += body
    out += f""".section .rodata,"a"
.p2align 6
.amdhsa_kernel {KNAME}
  .amdhsa_next_free_vgpr 256
  .amdhsa_next_free_sgpr 102
  .amdhsa_accum_offset 256
  .amdhsa_group_segment_fixed_size 0
  .amdhsa_kernarg_size 88
  .amdhsa_user_sgpr_count 2
  .amdhsa_user_sgpr_kernarg_segment_ptr 1
  .amdhsa_system_sgpr_workgroup_id_x 1
.end_amdhsa_kernel
"""
    return out


if __name__ == "__main__":
    path = sys.argv[1]
    open(path, "w").write(build())
    print("wrote", path)
```

```python
import math, struct, sys, os

NAME = "gated_mix__softmax_full_mha__swiglu_ffn__prompt"
KNAME = NAME + "_kernel"
INSTR = int(os.environ.get("INSTR", "0"))
OPT = os.environ.get("OPT", "nopf")

QF = 0
KF = 2 << 20
VF = 4 << 20
TQ = 28672
HF = 6 << 20
OF = 14 << 20
GF = 16 << 20
FQ = (16 << 20) + 0x10000
FH = (16 << 20) + 0x20000
FHB = (16 << 20) + 0x28000
MBOX = 40960 - 49152
FO = (16 << 20) + 0x40000
TSF = 24 << 20
WS_BYTES = 32 << 20
OOB = 0x40000000
SLEEP_Q = int(os.environ.get('SLQ', '6'))
SLEEP_H = int(os.environ.get('SLH', '8'))
SLEEP_O = int(os.environ.get('SLO', '2'))
LOG2E = math.log2(math.e)
MFMA = "v_mfma_f32_32x32x16_bf16"
SC = " sc1"
SLOT = 40960
LDS_BYTES = 4 * SLOT
MERGE = 49152
CNT = 155648
SPIN_MAX = 1 << int(os.environ.get('SPINLOG', '18'))


def ring_addr(s):
    if s <= 6:
        return 98304 + s * 8192
    if s == 7:
        return 32768
    if s <= 11:
        return (s - 8) * 8192
    return 40960


def wslot(i):
    return i % 13 if i < 28 else [2, 3, 4, 5, 8, 9, 10, 11][i - 28]


def f32bits(x):
    return struct.unpack("<I", struct.pack("<f", x))[0]


class Asm:
    def __init__(self):
        self.lines = []

    def __call__(self, s):
        for ln in s.strip("\n").split("\n"):
            ln = ln.strip()
            if not ln:
                continue
            self.lines.append(ln if ln.endswith(":") else "    " + ln)

    def label(self, l):
        self.lines.append(l + ":")

    def text(self):
        return "\n".join(self.lines) + "\n"


def vr(base, n):
    return f"v[{base}:{base + n - 1}]"


def sr4(b):
    return f"s[{b}:{b+3}]"


def srd(a, sd, sb, nbytes):
    a(f"""
    s_mov_b32 s{sd}, s{sb}
    s_mov_b32 s{sd+1}, s{sb+1}
    s_mov_b32 s{sd+2}, {nbytes}
    s_mov_b32 s{sd+3}, 0x00020000
    """)


def L(s):
    return [l.strip() for l in s.strip("\n").split("\n") if l.strip()]


HA_ST = int(os.environ.get('HA_ST', '13'))
EARLY_P = int(os.environ.get('EARLY_P', '24'))
QKB = int(os.environ.get('QKB', '11'))
FPER = int(os.environ.get('FPER', '4'))
PF2_ST = int(os.environ.get('PF2_ST', '0'))
PF3_ST = int(os.environ.get('PF3_ST', '2'))
GDA = int(os.environ.get('GDA', '10'))
AROT = int(os.environ.get('AROT', '15'))
WP_ST = int(os.environ.get('WP_ST', '5'))
GPRE = int(os.environ.get('GPRE', '4'))
GB_AT = int(os.environ.get('GB_AT', '8'))

S_X, S_B0, S_G, S_U, S_WS, S_TMP, S_WD, S_DBG = 4, 8, 12, 16, 20, 24, 28, 32
S_WO, S_OUT = 8, 12
sMI, sJ, sW, sR, sGRP = 36, 37, 38, 39, 40
sKQ = 39
sT0, sT1, sT2 = 42, 43, 44
sMX, sMB, sSO = 45, 46, 47
sSC, sTILE, sHOFF, sHOFF2, sQKO = 48, 49, 50, 51, 52
sWB, sM0, sFHO, sFQB, sP0, sOK = 53, 54, 55, 56, 57, 58
sNONCE, sNL2E, sC8, sI32, sSPIN = 59, 60, 61, 62, 63
P_X, P_WQKV, P_WO, P_WG, P_WU, P_WD, P_GW, P_OUT, P_DBG, P_WS = 64, 66, 68, 72, 74, 76, 78, 80, 82, 84
ST0 = 86
sHEAD, sQB, sMT, sNT = 70, 71, 41, 3
sFHA = 65
vLane, vL16 = 1, 2
vT0, vT1, vT2, vT3 = 3, 4, 5, 6
STAMPS = os.environ.get("STAMPS", "").split(",")[:6]


AMP = os.environ.get("AMP", "")


def stamp(a, name):
    if AMP and name == "start": a("s_memrealtime s[86:87]")
    if AMP and name == AMP: a("s_memrealtime s[88:89]")
    if INSTR and (name == "start" or name in STAMPS):
        idx = 0 if name == "start" else 1 + STAMPS.index(name)
        a(f"s_memtime s[{ST0+2*idx}:{ST0+2*idx+1}]")
    if INSTR and "R" + name in STAMPS:
        idx = 1 + STAMPS.index("R" + name)
        a(f"s_memrealtime s[{ST0+2*idx}:{ST0+2*idx+1}]")


def amp_end(a, tag):
    if not AMP: return
    stamp(a, "end")
    a(f"""
    s_cmp_lg_u32 s2, {os.environ.get("AMPG", "40")}
    s_cbranch_scc1 k_end
    s_cmp_lg_u32 s{sW}, {os.environ.get("AMPW", "4")}
    s_cbranch_scc1 k_end
    s_memrealtime s[90:91]
    s_waitcnt lgkmcnt(0)
    s_sub_u32 s88, s88, s86
    """)
    a.label(f"amp_spin{tag}")
    a(f"""
    s_memrealtime s[92:93]
    s_waitcnt lgkmcnt(0)
    s_sub_u32 s92, s92, s90
    s_cmp_lt_u32 s92, s88
    s_cbranch_scc1 amp_spin{tag}
    """)


def stamp_flush(a, vtmp=3):
    if not INSTR:
        return
    a(f"""
    s_memtime s[4:5]
    s_memrealtime s[6:7]
    s_lshl_b32 s3, s2, 3
    s_add_u32 s3, s3, s{sW}
    s_lshl_b32 s3, s3, 7
    s_add_u32 s3, s3, {TSF}
    v_mov_b32 v{vtmp+1}, 0
    s_waitcnt lgkmcnt(0)
    """)
    regs = [ST0 + 2 * i for i in range(8)] + [4, 6]
    for i, r in enumerate(regs):
        a(f"""
        v_mov_b32 v{vtmp}, s{r}
        buffer_store_dword v{vtmp}, v{vtmp+1}, {sr4(S_WS)}, s3 offen offset:{4*i}
        s_nop 1
        """)


def flag_store(a, soff_reg, vtmp):
    a(f"""
    v_mov_b32 v{vtmp}, s{sNONCE}
    v_mov_b32 v{vtmp+1}, 0
    s_mov_b64 exec, 1
    buffer_store_dword v{vtmp}, v{vtmp+1}, {sr4(S_WS)}, s{soff_reg} offen{SC}
    s_mov_b64 exec, -1
    """)


_uid = [0]


def poll(a, addrs, soff, vtmp, sleep):
    _uid[0] += 1
    u = _uid[0]
    a(f"s_mov_b32 s{sSPIN}, {SPIN_MAX}")
    a.label(f"poll_ld{u}")
    for i, va in enumerate(addrs):
        a(f"buffer_load_dword v{vtmp+i}, v{va}, {sr4(S_WS)}, s{soff} offen{SC}")
    a("s_waitcnt vmcnt(0)")
    poll_cmp(a, len(addrs), vtmp)
    a(f"""
    s_sub_u32 s{sSPIN}, s{sSPIN}, 1
    s_cbranch_scc1 poll_done{u}
    s_cmp_eq_u64 vcc, 0
    s_cbranch_scc1 poll_done{u}
    s_sleep {sleep}
    s_branch poll_ld{u}
    """)
    a.label(f"poll_done{u}")


def poll_cmp(a, n, vtmp):
    if n == 1:
        a(f"v_cmp_ne_u32 vcc, s{sNONCE}, v{vtmp}")
    else:
        a(f"""
        v_xor_b32 v{vtmp}, s{sNONCE}, v{vtmp}
        v_xor_b32 v{vtmp+1}, s{sNONCE}, v{vtmp+1}
        v_or_b32 v{vtmp}, v{vtmp}, v{vtmp+1}
        v_cmp_ne_u32 vcc, 0, v{vtmp}
        """)


def lds_set(a, off, val, vtmp):
    a(f"""
    v_mov_b32 v{vtmp}, {CNT + off}
    v_mov_b32 v{vtmp+1}, {val}
    ds_write_b32 v{vtmp}, v{vtmp+1}
    """)


def lds_wait(a, off, vtmp, cond, sleep=1):
    _uid[0] += 1
    u = _uid[0]
    a(f"v_mov_b32 v{vtmp}, {CNT + off}")
    a.label(f"lw{u}")
    a(f"""
    ds_read_b32 v{vtmp+1}, v{vtmp}
    s_waitcnt lgkmcnt(0)
    v_readfirstlane_b32 s{sT0}, v{vtmp+1}
    """)
    a(f"s_cmp_lg_u32 s{sT0}, 0" if cond == "ne0" else f"s_cmp_eq_u32 s{sT0}, {cond[2:]}")
    a(f"""
    s_cbranch_scc1 lwd{u}
    s_sleep {sleep}
    s_branch lw{u}
    """)
    a.label(f"lwd{u}")


class VM:
    def __init__(self):
        self.q = []

    def add(self, tag):
        self.q.append(tag)

    def wait(self, tags, counts=None):
        idx = max([i for i, t in enumerate(self.q) if t in tags], default=-1)
        for t in tags:
            assert t in self.q, (t, self.q)
            if counts:
                assert self.q.count(t) == counts(t), (t, self.q)
        n = len(self.q) - 1 - idx
        assert n <= 63
        return n

    def copy(self):
        v = VM(); v.q = list(self.q); return v


vFLA, vPOL, vFQO, vF1, vNON = 7, 9, 11, 12, 13
vDW = 31


def flag1(a, soff):
    return f"buffer_store_dword v{vNON}, v{vF1}, {sr4(S_WS)}, s{soff} offen{SC}"


AQ, AO, AS, AKV, AP, ATMP = 16, 48, [112, 128], 144, 208, 224
avG, avM, avONE = 14, 15, 216
sME, sMO = 24, 26
sKB, sVB, sTI, sKS, sVS, sIT = 45, 46, 47, 48, 52, 49


avV0, avV1 = 217, 218
HBR = 240


def hb_stores():
    return [f"buffer_store_dwordx4 {vr(HBR+4*i, 4)}, v{vL16}, {sr4(S_WS)}, s{sHOFF2} offen offset:{1024*i}{SC}" for i in range(2)]

sVM = 30


def kv_adv():
    return [f"s_mul_i32 s{sVS}, s{sTI}, {TQ}", f"s_add_u32 s{sKS}, s{sVS}, s{sKB}",
            f"s_add_u32 s{sVS}, s{sVS}, s{sVB}",
            f"s_add_u32 s{sTI}, s{sTI}, 1", f"s_and_b32 s{sTI}, s{sTI}, 15"]


def kv_load(buf, part, vv=(None, None)):
    if part < 2:
        return [f"buffer_load_dwordx4 {vr(AKV+16*buf+4*part, 4)}, v{vL16}, {sr4(S_WS)}, s{sKS} offen offset:{1024*part}{SC}"]
    return [f"s_mov_b64 exec, s[{sVM}:{sVM+1}]",
            f"buffer_load_dwordx4 {vr(AKV+16*buf+4*part, 4)}, v{vv[part-2]}, {sr4(S_WS)}, s{sVS} offen{SC}",
            "s_mov_b64 exec, -1"]


def att_loads():
    vm = VM()
    o1 = L(f"""
    s_lshl_b32 s{sT1}, s{sP0}, 9
    s_lshl_b32 s{sT2}, s{sQB}, 2
    s_add_u32 s{sT2}, s{sT2}, s{sKQ}
    s_mul_i32 s{sT0}, s{sT2}, {TQ}
    s_add_u32 s{sT0}, s{sT0}, s{sT1}
    buffer_load_dwordx4 {vr(AQ, 4)}, v{vL16}, {sr4(S_WS)}, s{sT0} offen{SC}
    buffer_load_dwordx4 {vr(AQ+4, 4)}, v{vL16}, {sr4(S_WS)}, s{sT0} offen offset:1024{SC}
    s_mul_i32 s{sVB}, s{sKQ}, {16 * TQ}
    s_add_u32 s{sKB}, s{sVB}, s{sT1}
    s_add_u32 s{sKB}, s{sKB}, {KF}
    s_mul_i32 s{sT0}, s{sHEAD}, 448
    s_add_u32 s{sVB}, s{sVB}, s{sT0}
    s_add_u32 s{sVB}, s{sVB}, {VF}
    s_and_b32 s{sTI}, s{sQB}, {AROT}
    s_mov_b32 s{sVM}, 0x0fffffff
    s_mov_b32 s{sVM+1}, 0x0fffffff
    v_lshrrev_b32 v{vT2}, 5, v{vLane}
    v_mul_u32_u24 v{vT2}, {7168 - 512}, v{vT2}
    v_add_u32 v{vT2}, v{vT2}, v{vL16}
    v_add_u32 v{vT3}, 14336, v{vT2}
    """)
    vm.add(("q",)); vm.add(("q",))
    o2 = []
    for t in range(3):
        o = o1 if t == 0 else o2
        o += kv_adv()
        for p in range(4):
            if p == 2:
                o += [f"v_mov_b32 v{AKV+16*t+8+i}, 0x3f803f80" for i in range(8)]
            o.append(kv_load(t, p, (vT2, vT3)))
            vm.add(("kv", t, p))
    flat = lambda o: [y for x in o for y in (x if isinstance(x, list) else [x])]
    return o1, o2, vm, flat


def wk_off(i):
    return 8 * (i % 14) + 4 * (i // 14)


def gen():
    a = Asm()
    vDX0, vDX1, vDB0, vDG, vDU = 7, 8, 9, 10, 11
    vAX = 14
    vAW = 18
    vST = 22
    vN, vR4, vC, vRow = 26, 27, 28, 29
    X, ACC, WF = 32, 144, 224
    PFR, vPFL, sPFI = ACC + 60, 30, 58

    stamp(a, "start")
    if INSTR: a("s_memrealtime s[100:101]")
    if "dbgt" in OPT: a("s_memtime s[86:87]\ns_memrealtime s[88:89]")
    a(f"""
    s_cmp_ge_u32 s2, 256
    s_cbranch_scc1 k_end
    """)
    if os.environ.get("DELAY"):
        a(f"""
        s_cmp_lg_u32 s2, {os.environ["DELAY"]}
        s_cbranch_scc1 k_nodelay
        s_mov_b32 s3, 12
        """)
        a.label("k_delay")
        a("s_sleep 100\ns_sub_u32 s3, s3, 1\ns_cmp_lg_u32 s3, 0\ns_cbranch_scc1 k_delay")
        a.label("k_nodelay")
    a(f"""
    s_load_dwordx16 s[64:79], s[0:1], 0
    s_load_dwordx4 s[80:83], s[0:1], 64
    s_load_dwordx2 s[84:85], s[0:1], 80
    v_and_b32 v{vLane}, 63, v0
    v_lshrrev_b32 v{vT0}, 6, v0
    s_and_b32 s{sC8}, s2, 7
    s_lshr_b32 s{sI32}, s2, 3
    v_readfirstlane_b32 s{sW}, v{vT0}
    s_lshr_b32 s{sT1}, s{sC8}, 1
    s_mul_i32 s{sT0}, s{sT1}, 28
    s_sub_u32 s{sT0}, s{sT0}, 4
    s_lshl_b32 s{sT1}, s{sT1}, 2
    s_add_u32 s{sT1}, s{sT1}, 112
    s_cmp_lt_u32 s{sI32}, 4
    s_cselect_b32 s{sT0}, s{sT1}, s{sT0}
    s_add_u32 s{sT0}, s{sT0}, s{sI32}
    s_lshr_b32 s{sJ}, s{sT0}, 3
    s_and_b32 s{sT0}, s{sT0}, 7
    s_and_b32 s{sMI}, s{sC8}, 1
    s_lshl_b32 s{sMI}, s{sMI}, 3
    s_add_u32 s{sMI}, s{sMI}, s{sT0}
    v_lshrrev_b32 v{vT0}, 3, v{vLane}
    v_lshrrev_b32 v{vT1}, 4, v{vLane}
    v_and_b32 v{vT2}, 7, v{vLane}
    v_xor_b32 v{vT3}, v{vT2}, v{vT1}
    s_lshl_b32 s{sT0}, s{sMI}, 7
    s_lshl_b32 s{sT1}, s{sW}, 4
    s_add_u32 s{sT0}, s{sT0}, s{sT1}
    v_add_u32 v{vDX0}, s{sT0}, v{vT0}
    v_mul_u32_u24 v{vDX0}, 896, v{vDX0}
    v_lshl_add_u32 v{vDX0}, v{vT3}, 4, v{vDX0}
    v_xor_b32 v{vDX1}, 64, v{vDX0}
    v_add_u32 v{vDX1}, 7168, v{vDX1}
    v_and_b32 v{vT3}, 1, v{vT1}
    v_lshlrev_b32 v{vT3}, 2, v{vT3}
    v_xor_b32 v{vT3}, v{vT3}, v{vT2}
    v_lshlrev_b32 v{vT3}, 4, v{vT3}
    v_mul_u32_u24 v{vDW}, 896, v{vT0}
    v_add_u32 v{vDW}, v{vDW}, v{vT3}
    s_lshl_b32 s{sT0}, s{sW}, 3
    v_add_u32 v{vT0}, s{sT0}, v{vT0}
    v_mul_u32_u24 v{vDB0}, 2688, v{vT0}
    v_add_u32 v{vDB0}, v{vDB0}, v{vT3}
    s_lshl_b32 s{sMX}, s{sW}, 11
    s_lshl_b32 s{sMB}, s{sW}, 10
    s_add_u32 s{sMB}, s{sMB}, 16384
    v_lshlrev_b32 v{vL16}, 4, v{vLane}
    s_mov_b32 s{S_X+2}, {2048 * 448 * 2}
    s_mov_b32 s{S_X+3}, 0x00020000
    s_mov_b32 s{S_B0+2}, {448 * 1344 * 2}
    s_mov_b32 s{S_B0+3}, 0x00020000
    s_mov_b32 s{S_G+3}, 0x00020000
    s_mov_b32 s{S_U+3}, 0x00020000
    s_cmp_ge_u32 s{sJ}, 14
    s_cbranch_scc1 k1_v
    """)

    vm = None

    def emit_group(g):
        for l in g[0]:
            a(l)
        vm.add(g[1])

    def dma(m0base, m0off, vaddr, srdb, soff):
        return [f"s_add_u32 m0, s{m0base}, {m0off & 0xffffffff}", f"s_mov_b32 s{sSO}, {soff}",
                f"buffer_load_dwordx4 v{vaddr}, {sr4(srdb)}, s{sSO} offen lds"]

    def common_setup2(tg):
        srd(a, S_WS, P_WS, WS_BYTES)
        srd(a, S_DBG, P_DBG, 256)
        srd(a, S_WD, P_WD, 1792 * 448 * 2)
        a(f"""
        s_or_b32 s{sT0}, s2, s{sW}
        s_cmp_lg_u32 s{sT0}, 0
        s_cbranch_scc1 k_nononce_{tg}
        s_memrealtime s[{sSC}:{sSC+1}]
        v_mov_b32 v{vT1}, 0
        s_waitcnt lgkmcnt(0)
        s_or_b32 s{sT0}, s{sSC}, 0x80000000
        v_mov_b32 v{vT0}, s{sT0}
        s_mov_b64 exec, 1
        buffer_store_dword v{vT0}, v{vT1}, {sr4(S_DBG)}, 0 offen{SC}
        s_mov_b64 exec, -1
        """)
        a.label(f"k_nononce_{tg}")
        if "nopf" not in OPT:
            a(f"""
            s_lshl_b32 s{sPFI}, s2, 3
            s_add_u32 s{sPFI}, s{sPFI}, s{sW}
            s_lshl_b32 s{sT0}, s{sPFI}, 10
            s_mov_b32 s{S_TMP+3}, 0x00020000
            buffer_load_dwordx4 {vr(PFR, 4)}, v{vL16}, {sr4(S_X)}, s{sT0} offen
            v_lshrrev_b32 v{vPFL}, 3, v{vLane}
            v_lshlrev_b32 v{vPFL}, 7, v{vPFL}
            v_add_u32 v{vPFL}, v{vPFL}, v{vL16}
            s_cmp_lt_u32 s{sPFI}, 840
            s_cbranch_scc1 k_pf_q_{tg}
            s_cmp_lt_u32 s{sPFI}, 1400
            s_cselect_b32 s{S_TMP}, s{P_WG}, s{P_WU}
            s_cselect_b32 s{S_TMP+1}, s{P_WG+1}, s{P_WU+1}
            s_cselect_b32 s{sT0}, 0, 560
            s_mov_b32 s{S_TMP+2}, {448 * 1792 * 2}
            s_sub_u32 s{sT0}, s{sPFI}, s{sT0}
            s_lshl_b32 s{sT0}, s{sT0}, 11
            s_add_u32 s{sT0}, s{sT0}, {(128 * 3584 - 840 * 2048) & 0xffffffff}
            buffer_load_dwordx4 {vr(PFR+4, 4)}, v{vPFL}, {sr4(S_TMP)}, s{sT0} offen
            s_branch k_pf_d_{tg}
            """)
            a.label(f"k_pf_q_{tg}")
            a(f"""
            s_add_u32 s{sT0}, s{sT0}, {128 * 2688}
            buffer_load_dwordx4 {vr(PFR+4, 4)}, v{vL16}, {sr4(S_B0)}, s{sT0} offen
            """)
            a.label(f"k_pf_d_{tg}")
            vm.add(("PF",)); vm.add(("PF",))
        if "nocp" not in OPT:
            a(f"""
            s_cmp_ge_u32 s{sI32}, 5
            s_cbranch_scc1 k_nocp_{tg}
            s_lshl_b32 s{sT0}, s{sI32}, 3
            s_add_u32 s{sT0}, s{sT0}, s{sW}
            s_lshl_b32 s{sT0}, s{sT0}, 10
            v_add_u32 v{vT0}, s{sT0}, v{vL16}
            v_min_u32 v{vT0}, k_end-{KNAME}-12, v{vT0}
            s_getpc_b64 s[{sSC}:{sSC+1}]
            """)
            a.label(f"k_pc_{tg}")
            a(f"""
            s_sub_u32 s{sSC}, s{sSC}, k_pc_{tg}-{KNAME}
            s_subb_u32 s{sSC+1}, s{sSC+1}, 0
            global_load_dwordx4 {vr(ACC+76, 4)}, v{vT0}, s[{sSC}:{sSC+1}]
            """)
            a.label(f"k_nocp_{tg}")
        a(f"""
        s_and_b32 s{sR}, s{sW}, 3
        s_lshr_b32 s{sGRP}, s{sW}, 2
        s_lshl_b32 s{sTILE}, s{sMI}, 2
        s_add_u32 s{sTILE}, s{sTILE}, s{sR}
        v_and_b32 v{vT0}, 31, v{vLane}
        v_lshrrev_b32 v{vT1}, 5, v{vLane}
        v_bfe_u32 v{vT2}, v{vLane}, 1, 3
        v_xor_b32 v{vT2}, v{vT2}, v{vT1}
        s_lshl_b32 s{sT0}, s{sR}, 12
        v_lshlrev_b32 v{vT3}, 7, v{vT0}
        v_lshl_add_u32 v{vT3}, v{vT2}, 4, v{vT3}
        v_add_u32 v{vAX}, s{sT0}, v{vT3}
        v_xor_b32 v{vAX+1}, 32, v{vAX}
        v_xor_b32 v{vAX+2}, 64, v{vAX}
        v_xor_b32 v{vAX+3}, 96, v{vAX}
        v_bfe_u32 v{vN}, v{vLane}, 4, 1
        v_bfe_u32 v{vR4}, v{vLane}, 2, 2
        v_and_b32 v{vC}, 3, v{vLane}
        v_lshl_add_u32 v{vRow}, v{vT1}, 3, v{vR4}
        v_and_b32 v{vT2}, 2, v{vR4}
        v_xor_b32 v{vT2}, v{vT2}, v{vN}
        s_lshl_b32 s{sT0}, s{sGRP}, 1
        v_xor_b32 v{vT2}, s{sT0}, v{vT2}
        v_lshlrev_b32 v{vT3}, 7, v{vRow}
        v_lshl_add_u32 v{vT3}, v{vT2}, 5, v{vT3}
        v_lshl_add_u32 v{vT3}, v{vC}, 3, v{vT3}
        v_add_u32 v{vAW}, 16384, v{vT3}
        s_mov_b32 s{sNL2E}, {f32bits(-LOG2E):#x}
        """)

    def flag_addr(vtype, vfla, vfqo):
        t0, t1, t2, t3 = vN, vR4, vC, vRow
        o = L(f"""
        s_lshl_b32 s{sHEAD}, s{sC8}, 1
        s_and_b32 s{sT2}, s{sI32}, 1
        s_add_u32 s{sHEAD}, s{sHEAD}, s{sT2}
        s_lshr_b32 s{sQB}, s{sI32}, 1
        s_lshl_b32 s{sMT}, s{sC8}, 2
        s_and_b32 s{sT2}, s{sI32}, 3
        s_add_u32 s{sMT}, s{sMT}, s{sT2}
        s_lshr_b32 s{sNT}, s{sI32}, 2
        s_mul_i32 s{sP0}, s{sHEAD}, 7
        s_lshr_b32 s{sP0}, s{sP0}, 1
        s_lshl_b32 s{sFQB}, s{sHEAD}, 12
        s_add_u32 s{sFQB}, s{sFQB}, {FQ}
        s_lshr_b32 s{sT1}, s{sQB}, 2
        s_lshl_b32 s{sT1}, s{sT1}, 7
        s_and_b32 s{sT2}, s{sQB}, 3
        s_lshl_b32 s{sT2}, s{sT2}, 2
        s_add_u32 s{sT1}, s{sT1}, s{sT2}
        s_add_u32 s{sT1}, s{sT1}, 2048
        v_lshrrev_b32 v{t0}, 2, v{vLane}
        v_and_b32 v{t1}, 3, v{vLane}
        v_lshlrev_b32 v{t1}, 2, v{t1}
        v_lshl_add_u32 v{vfla}, v{t0}, 7, v{t1}
        v_and_b32 v{t0}, 1, v{vLane}
        v_lshl_add_u32 v{vfla+1}, v{t0}, 9, s{sT1}
        v_and_b32 v{t0}, 15, v{vLane}
        v_lshrrev_b32 v{t1}, 4, v{vLane}
        v_lshlrev_b32 v{t3}, 12, v{t0}
        v_lshl_add_u32 v{t3}, v{t1}, 9, v{t3}
        s_lshr_b32 s{sT1}, s{sMI}, 2
        s_lshl_b32 s{sT1}, s{sT1}, 7
        s_and_b32 s{sT2}, s{sMI}, 3
        s_lshl_b32 s{sT2}, s{sT2}, 2
        s_add_u32 s{sT1}, s{sT1}, s{sT2}
        """)
        if not vtype:
            o += L(f"""
            s_add_u32 s{sT2}, s{sJ}, 1
            s_lshr_b32 s{sT2}, s{sT2}, 3
            v_mul_u32_u24 v{t2}, 7, v{t0}
            v_lshrrev_b32 v{t2}, 1, v{t2}
            v_mad_u32_u24 v{t2}, v{t1}, 3, v{t2}
            v_lshrrev_b32 v{t2}, 3, v{t2}
            v_lshrrev_b32 v{t1}, 1, v{t1}
            v_lshl_add_u32 v{t2}, v{t1}, 6, v{t2}
            v_mad_u32_u24 v{t2}, s{sT2}, 7, v{t2}
            v_cmp_eq_u32 vcc, s{sJ}, v{t2}
            s_lshl_b32 s{sT2}, s{sT2}, 11
            s_sub_u32 s{sT1}, s{sT1}, s{sT2}
            s_add_u32 s{sT1}, s{sT1}, 2048
            """)
        else:
            o += L(f"""
            v_add_u32 v{t2}, 14, v{t1}
            v_cmp_eq_u32 vcc, s{sJ}, v{t2}
            s_add_u32 s{sT1}, s{sT1}, 1024
            """)
        o += L(f"""
        v_add_u32 v{t3}, s{sT1}, v{t3}
        v_mov_b32 v{t0}, {OOB}
        v_cndmask_b32 v{vfqo}, v{t0}, v{t3}, vcc
        v_cmp_eq_u32 vcc, 0, v{vLane}
        s_lshr_b32 s{sFHO}, s{sTILE}, 1
        s_lshl_b32 s{sFHO}, s{sFHO}, 10
        v_cndmask_b32 v{vF1}, v{t0}, v{vLane}, vcc
        s_lshr_b32 s{sT1}, s{sJ}, 1
        s_lshl_b32 s{sT1}, s{sT1}, 7
        s_add_u32 s{sFHO}, s{sFHO}, s{sT1}
        s_and_b32 s{sT1}, s{sJ}, 1
        s_lshl_b32 s{sT1}, s{sT1}, 3
        s_add_u32 s{sFHO}, s{sFHO}, s{sT1}
        s_and_b32 s{sT1}, s{sR}, 1
        s_lshl_b32 s{sT1}, s{sT1}, 2
        s_add_u32 s{sFHO}, s{sFHO}, s{sT1}
        s_add_u32 s{sFHO}, s{sFHO}, {FHB}
        s_lshl_b32 s{sFHA}, s{sMI}, 9
        s_lshr_b32 s{sT1}, s{sJ}, 2
        s_lshl_b32 s{sT1}, s{sT1}, 7
        s_add_u32 s{sFHA}, s{sFHA}, s{sT1}
        s_and_b32 s{sT1}, s{sJ}, 3
        s_lshl_b32 s{sT1}, s{sT1}, 2
        s_add_u32 s{sFHA}, s{sFHA}, s{sT1}
        s_add_u32 s{sFHA}, s{sFHA}, {FH}
        s_lshl_b32 s{sM0}, s{sNT}, 7
        s_mul_i32 s{sWB}, s{sR}, {16 * 896}
        s_add_u32 s{sWB}, s{sWB}, s{sM0}
        s_lshl_b32 s{sM0}, s{sR}, 11
        """)
        return o

    def nonce_get(tag):
        a(f"""
        v_readfirstlane_b32 s{sNONCE}, v{vNON}
        v_lshlrev_b32 v{vT0}, 2, v{vLane}
        v_add_u32 v{vT0}, {CNT}, v{vT0}
        v_mov_b32 v{vT1}, 0
        s_cmp_lg_u32 s{sNONCE}, 0
        s_cbranch_scc1 k1_nonce_ok_{tag}
        """)
        a.label(f"k1_nonce_spin_{tag}")
        a(f"""
        buffer_load_dword v{vNON}, v{vT1}, {sr4(S_DBG)}, 0 offen{SC}
        s_waitcnt vmcnt(0)
        v_readfirstlane_b32 s{sNONCE}, v{vNON}
        s_sleep 4
        s_cmp_eq_u32 s{sNONCE}, 0
        s_cbranch_scc1 k1_nonce_spin_{tag}
        """)
        a.label(f"k1_nonce_ok_{tag}")
        a(f"ds_write_b32 v{vT0}, v{vT1}")

    def pf2():
        return (L(f"""
        s_cmp_lt_u32 s{sPFI}, 784
        s_cselect_b32 s{S_TMP}, s{P_WG}, s{P_WU}
        s_cselect_b32 s{S_TMP+1}, s{P_WG+1}, s{P_WU+1}
        s_cselect_b32 s{sT0}, 0, 784
        s_mov_b32 s{S_TMP+2}, {448 * 1792 * 2}
        s_sub_u32 s{sT0}, s{sPFI}, s{sT0}
        s_lshl_b32 s{sT0}, s{sT0}, 11
        buffer_load_dwordx4 {vr(PFR+8, 4)}, v{vPFL}, {sr4(S_TMP)}, s{sT0} offen offset:128
        """), ("PF",))

    def pf3():
        return (L(f"""
        s_cmp_lt_u32 s{sPFI}, 1568
        s_cselect_b32 s{S_TMP}, s{P_WD}, s{P_WO}
        s_cselect_b32 s{S_TMP+1}, s{P_WD+1}, s{P_WO+1}
        s_cselect_b32 s{sT0}, 0, 1568
        s_cselect_b32 s{S_TMP+2}, s{S_WD+2}, {448 * 448 * 2}
        s_sub_u32 s{sT0}, s{sPFI}, s{sT0}
        s_lshl_b32 s{sT0}, s{sT0}, 10
        buffer_load_dwordx4 {vr(PFR+12, 4)}, v{vL16}, {sr4(S_TMP)}, s{sT0} offen
        """), ("PF",))

    nonce_ld = ([f"v_mov_b32 v{vNON}, 0", f"buffer_load_dword v{vNON}, v{vNON}, {sr4(S_DBG)}, 0 offen{SC}"], ("N",))

    def wpref(i):
        ra = ring_addr(i % 13)
        return [f"s_add_u32 m0, s{sM0}, {ra}", f"s_add_u32 s{sT0}, s{sWB}, {wk_off(i) * 16 * 896}",
                f"buffer_load_dwordx4 v{vDW}, {sr4(S_WD)}, s{sT0} offen lds",
                f"s_add_u32 m0, s{sM0}, {ra + 1024}", f"s_add_u32 s{sT0}, s{sT0}, {8 * 896}",
                f"buffer_load_dwordx4 v{vDW}, {sr4(S_WD)}, s{sT0} offen lds"]

    abase = [0]

    def set_base(nb, regs):
        out = []
        if nb != abase[0]:
            d = nb - abase[0]
            for r in regs:
                out.append(f"v_add_u32 v{r}, {d}, v{r}" if d > 0 else f"v_subrev_u32 v{r}, {-d}, v{r}")
            abase[0] = nb
        return out

    def emit(x):
        if isinstance(x, tuple):
            a(x[1]); vm.add((x[0],))
        else:
            a(x)

    vm = VM()
    cnts = lambda t: {"A": 5, "B": 2}[t[0]] if t[0] in ("A", "B") else vm.q.count(t)
    a(f"""
    s_lshl_b32 s{sT0}, s{sJ}, 7
    v_add_u32 v{vDB0}, s{sT0}, v{vDB0}
    v_mul_u32_u24 v{vDG}, 3584, v{vT0}
    s_lshl_b32 s{sT0}, s{sJ}, 8
    v_add3_u32 v{vDG}, v{vDG}, v{vT3}, s{sT0}
    v_xor_b32 v{vDU}, 32, v{vDG}
    s_mov_b32 s{S_G+2}, {448 * 1792 * 2}
    s_mov_b32 s{S_U+2}, {448 * 1792 * 2}
    s_waitcnt lgkmcnt(0)
    s_mov_b64 s[{S_X}:{S_X+1}], s[{P_X}:{P_X+1}]
    s_mov_b64 s[{S_B0}:{S_B0+1}], s[{P_WQKV}:{P_WQKV+1}]
    s_mov_b64 s[{S_G}:{S_G+1}], s[{P_WG}:{P_WG+1}]
    s_mov_b64 s[{S_U}:{S_U+1}], s[{P_WU}:{P_WU+1}]
    """)

    def fA(st):
        b = (st % 4) * SLOT
        g = [dma(sMX, b, vDX0, S_X, st * 128), dma(sMX, b + 1024, vDX1, S_X, st * 128),
             dma(sMB, b, vDB0, S_B0, st * 64 * 2688), dma(sMB, b + 8192, vDG, S_G, st * 64 * 3584),
             dma(sMB, b + 16384, vDU, S_U, st * 64 * 3584)]
        return [(x, ("A", st)) for x in g]

    def bslot(sb):
        return ((3 + sb // 2) % 4) * SLOT + (sb % 2) * 16384

    def fB(sb):
        b = bslot(sb) - 16384
        g = [dma(sMB, b, vDG, S_G, sb * 64 * 3584 + 128), dma(sMB, b + 8192, vDU, S_U, sb * 64 * 3584 + 128)]
        return [(x, ("B", sb)) for x in g]

    for g in fA(0):
        emit_group(g)
    a("s_barrier")
    for g in fA(1):
        emit_group(g)
    common_setup2("f")
    a(f"""
    v_lshl_add_u32 v{vAW+1}, v{vN}, 13, v{vT3}
    v_add_u32 v{vAW+1}, {16384 + 8192}, v{vAW+1}
    v_xor_b32 v{vAW+2}, 32, v{vAW+1}
    s_cmp_ge_u32 s{sJ}, 7
    s_cselect_b32 s{sT1}, {KF - 7 * 4096}, {QF}
    s_cselect_b32 s{sSC}, 1.0, {f32bits(28 ** -0.5 * LOG2E):#x}
    s_lshl_b32 s{sT2}, s{sJ}, 12
    s_add_u32 s{sT1}, s{sT1}, s{sT2}
    s_lshl_b32 s{sT2}, s{sGRP}, 11
    s_add_u32 s{sT1}, s{sT1}, s{sT2}
    s_mul_i32 s{sQKO}, s{sTILE}, {TQ}
    s_add_u32 s{sQKO}, s{sQKO}, s{sT1}
    s_mul_i32 s{sHOFF}, s{sTILE}, 112
    s_lshl_b32 s{sT1}, s{sJ}, 3
    s_add_u32 s{sHOFF}, s{sHOFF}, s{sT1}
    s_lshl_b32 s{sT1}, s{sGRP}, 1
    s_add_u32 s{sHOFF}, s{sHOFF}, s{sT1}
    s_lshl_b32 s{sHOFF}, s{sHOFF}, 10
    s_add_u32 s{sHOFF}, s{sHOFF}, {HF}
    s_add_u32 s{sHOFF2}, s{sHOFF}, 4096
    """)
    WA = [WF, WF + 12, ACC + 48]
    NB = 4
    WB = [WF + 24, WF + 16, WF + 8, WF]

    def readsA(ks):
        st, s = ks // 4, ks % 4
        slot = st % 4
        out = set_base((slot // 2) * 2 * SLOT, [vAX, vAX+1, vAX+2, vAX+3, vAW, vAW+1, vAW+2])
        off = (slot % 2) * SLOT
        f = WA[ks % 3]
        out.append(f"ds_read_b128 {vr(X+4*ks, 4)}, v{vAX+s} offset:{off}")
        for t in range(3):
            for q in range(2):
                out.append(f"ds_read_b64_tr_b16 {vr(f+4*t+2*q, 2)}, v{vAW+t} offset:{off + (16*s + 4*q) * 128}")
        return out

    def readsB(ks):
        sb, s = ks // 4, ks % 4
        b = bslot(sb)
        f = WB[ks % NB]
        b32 = b - b % 32768
        off = b - b32
        out = set_base(b32 - 24576, [vAW+1, vAW+2])
        for t in range(2):
            for q in range(2):
                out.append(f"ds_read_b64_tr_b16 {vr(f+4*t+2*q, 2)}, v{vAW+1+t} offset:{off + (16*s + 4*q) * 128}")
        return out

    def epi_ffn(acc, ko, dst=None):
        g, u = acc, acc + 8
        dst = g if dst is None else dst
        o = []
        for i in range(8):
            o.append(f"v_mul_f32 v{u+i}, v{g+i}, v{u+i}")
            o.append(f"v_mul_f32 v{g+i}, s{sNL2E}, v{g+i}")
        for i in range(8):
            o.append(f"v_exp_f32 v{g+i}, v{g+i}")
        for i in range(8):
            o.append(f"v_add_f32 v{g+i}, 1.0, v{g+i}")
        for i in range(8):
            o.append(f"v_rcp_f32 v{g+i}, v{g+i}")
        for i in range(8):
            o.append(f"v_mul_f32 v{u+i}, v{u+i}, v{g+i}")
        for i in range(4):
            o.append(f"v_cvt_pk_bf16_f32 v{dst+i}, v{u+2*i}, v{u+2*i+1}")
        so, off = (sHOFF, ko) if ko < 4 else (sHOFF2, ko - 4)
        o.append(("H", f"buffer_store_dwordx4 {vr(dst, 4)}, v{vL16}, {sr4(S_WS)}, s{so} offen offset:{1024*off}{SC}"))
        return o

    def epi_qk():
        o = []
        for i in range(8):
            o.append(f"v_mul_f32 v{ACC+2*i}, s{sSC}, v{ACC+2*i}")
            o.append(f"v_mul_f32 v{ACC+2*i+1}, s{sSC}, v{ACC+2*i+1}")
            o.append(f"v_cvt_pk_bf16_f32 v{ACC+i}, v{ACC+2*i}, v{ACC+2*i+1}")
        o.append("s_nop 1")
        for hh in range(2):
            b = ACC + 4 * hh
            o.append(f"v_permlane32_swap_b32 v{b}, v{b+2}")
            o.append(f"v_permlane32_swap_b32 v{b+1}, v{b+3}")
            o.append(("QK", f"buffer_store_dwordx4 {vr(b, 4)}, v{vL16}, {sr4(S_WS)}, s{sQKO} offen offset:{1024*hh}{SC}"))
        return o

    abase[0] = 0
    a(f"s_waitcnt vmcnt({vm.wait({('A', 0)}, cnts)})\ns_barrier")
    stamp(a, "p1_first")
    for ks in range(2):
        for r in readsA(ks):
            a(r)
    pend = fA(2) + fA(3)
    vFQf = vST
    fillA = flag_addr(False, vFLA, vFQf)
    for ks in range(28):
        st, s = ks // 4, ks % 4
        f = WA[ks % 3]
        m = [f"{MFMA} {vr(ACC+16*t, 16)}, {vr(f+4*t, 4)}, {vr(X+4*ks, 4)}, {'0' if ks == 0 else vr(ACC+16*t, 16)}" for t in range(3)]
        if s == 2:
            need = {("A", st + 1)} if st < 6 else {("B", 0), ("B", 1), ("B", 2), ("B", 3), ("N",)}
            a(f"s_waitcnt vmcnt({vm.wait(need, cnts)}) lgkmcnt(0)")
            if st == 6:
                nonce_get("f")
            a("s_barrier")
            stamp(a, f"p1_a{st}")
            if st + 4 <= 6:
                pend += fA(st + 4)
            else:
                i0 = 2 * (st - 3)
                pend += fB(i0) + (fB(i0 + 1) if i0 + 1 < 7 else [])
            if st == 2:
                pend.append(nonce_ld)
            if "nopf" not in OPT and st == PF2_ST: pend.append(pf2())
            if "nopf" not in OPT and st == PF3_ST: pend.append(pf3())
        elif ks < 27:
            a("s_waitcnt lgkmcnt(7)")
        else:
            a("s_waitcnt lgkmcnt(4)")
        r = readsA(ks + 2) if ks + 2 < 28 else readsB(ks + 2 - 28)
        k = len(r) - 4 if ks + 2 < 28 else len(r) - 2
        a(m[0])
        for x in r[:k]:
            a(x)
        a(m[1])
        for x in r[k:]:
            a(x)
        a(m[2])
        if ks >= 16:
            assert vm.q.count(("A", 6)) == 5
            for _ in range(7):
                if fillA: a(fillA.pop(0))
        nd = 2 if (len(pend) > 4 or st < 1) else 1
        for _ in range(nd):
            if pend:
                emit_group(pend.pop(0))
    assert not fillA
    stamp(a, "p1_aend")
    for x in readsB(2):
        a(x)
    ea, eb = epi_ffn(ACC + 16, 0, X + 16), epi_ffn(ACC + 32, 1, X + 20)
    fillq = ["s_nop 3"] + epi_qk()
    fill = ea + eb
    wq = [0, 1, 2, 7, 3, 4, 5, 6]
    sWH, sMH2 = sMX, sOK
    for ks in range(28):
        f = WB[ks % NB]
        m = [f"{MFMA} {vr(ACC+48+16*t, 16)}, {vr(f+4*t, 4)}, {vr(X+4*ks, 4)}, {'0' if ks == 0 else vr(ACC+48+16*t, 16)}" for t in range(2)]
        nxt = ks + NB - 1
        if ks == QKB:
            need = {5: {("B", 2), ("B", 3), ("N",)}, QKB: {("B", 4), ("B", 5), ("B", 6), ("QK",)}, 17: set()}[ks]
            if ks == QKB: assert vm.q.count(("QK",)) == 2 and QKB <= 13
            if need: a(f"s_waitcnt vmcnt({vm.wait(need, cnts)})")
            a("s_barrier")
            stamp(a, {5: "p1_b2", QKB: "p1_b4", 17: "p1_b5"}[ks])
            if ks == QKB:
                a(f"""
                s_cmp_lg_u32 s{sW}, 7
                s_cbranch_scc1 k1_noflag_f
                s_mov_b32 s{sT0}, {FQ}
                buffer_store_dword v{vNON}, v{vFQf}, {sr4(S_WS)}, s{sT0} offen{SC}
                """)
                a.label("k1_noflag_f")
        stamp(a, f"pb{ks}")
        a(f"s_waitcnt lgkmcnt({min(NB - 2, 27 - ks) * 4})")
        r = readsB(nxt) if nxt < 28 else []

        def dofill():
            if ks < 1: return
            if fillq:
                for _ in range(5):
                    if fillq: emit(fillq.pop(0))
            else:
                for _ in range(FPER):
                    if fill and isinstance(fill[0], tuple) and ks < HA_ST and len(fill) > 1:
                        fill[0], fill[1] = fill[1], fill[0]
                    if fill and not (isinstance(fill[0], tuple) and ks < HA_ST): emit(fill.pop(0))
        a(m[0])
        for x in r[:len(r) - 2]:
            a(x)
        if pend:
            emit_group(pend.pop(0))
        dofill()
        a(m[1])
        for x in r[len(r) - 2:]:
            a(x)
        dofill()
        if wq and ks >= WP_ST and (ring_addr(wq[0]) < 122880 or ks >= QKB) and not pend:
            i = wq.pop(0)
            if i == 0:
                a(f"""
                s_mul_i32 s{sWH}, s{sGRP}, {8 * 896}
                s_add_u32 s{sWH}, s{sWH}, s{sWB}
                s_cmp_ge_u32 s{sI32}, 28
                s_cselect_b32 s{sWH}, {OOB}, s{sWH}
                s_lshl_b32 s{sMH2}, s{sGRP}, 10
                s_add_u32 s{sMH2}, s{sMH2}, s{sM0}
                """)
            a(f"""
            s_add_u32 m0, s{sMH2}, {ring_addr(i)}
            s_add_u32 s{sT0}, s{sWH}, {wk_off(i) * 16 * 896}
            buffer_load_dwordx4 v{vDW}, {sr4(S_WD)}, s{sT0} offen lds
            """)
            vm.add(("WP",))
        if ks == EARLY_P:
            a(f"""
            s_cmp_lg_u32 s{sW}, 0
            s_cbranch_scc1 k1_nopoll
            buffer_load_dword v{vPOL}, v{vFLA}, {sr4(S_WS)}, s{sFQB} offen{SC}
            buffer_load_dword v{vPOL+1}, v{vFLA+1}, {sr4(S_WS)}, s{sFQB} offen{SC}
            """)
            a.label("k1_nopoll")
    assert not fill and not pend and not wq
    stamp(a, "pb28")
    a(f"""
    s_cmp_lg_u32 s{sW}, 0
    s_cbranch_scc1 k1_nochk
    s_waitcnt vmcnt(0)
    """)
    poll_cmp(a, 2, vPOL)
    a(f"""
    s_cmp_eq_u64 vcc, 0
    s_cselect_b32 s{sT0}, 1, 0
    """)
    lds_set(a, 4, f"s{sT0}", vT0)
    a("s_waitcnt lgkmcnt(0)")
    a.label("k1_nochk")
    a(f"""
    s_cmp_ge_u32 s{sW}, 4
    s_cbranch_scc1 k1_nodr
    s_waitcnt vmcnt(0)
    """)
    a.label("k1_nodr")
    a(f"""
    s_barrier
    s_mov_b32 s{sOK}, 0
    s_cmp_ge_u32 s{sW}, 4
    s_cbranch_scc1 k1_epi
    v_mov_b32 v{vT0}, {CNT + 4}
    ds_read_b32 v{vT1}, v{vT0}
    s_waitcnt lgkmcnt(0)
    v_readfirstlane_b32 s{sOK}, v{vT1}
    s_cmp_eq_u32 s{sOK}, 1
    s_cbranch_scc1 k1_early
    s_cmp_lg_u32 s{sW}, 0
    s_cbranch_scc1 k1_epi
    buffer_load_dword v{vPOL}, v{vFLA}, {sr4(S_WS)}, s{sFQB} offen{SC}
    buffer_load_dword v{vPOL+1}, v{vFLA+1}, {sr4(S_WS)}, s{sFQB} offen{SC}
    s_branch k1_epi
    """)
    a.label("k1_early")
    stamp(a, "x_go")
    o1, o2, _, flat = att_loads()
    for x in flat(o1):
        a(x)
    stamp(a, "p1_bend")
    e0, e1 = epi_ffn(ACC + 48, 4, HBR), epi_ffn(ACC + 64, 5, HBR + 4)
    ev = e0[:-1] + e1[:-1]
    step = len(ev) // len(o2)
    for x in o2:
        for _ in range(step):
            a(ev.pop(0))
        for y in flat([x]):
            a(y)
    for x in ev:
        a(x)
    stamp(a, "p1_end")
    a("s_branch att_main")
    a.label("k1_epi")
    a("s_nop 7")
    stamp(a, "p1_bend")
    for x in e0[:-1] + e1[:-1]:
        a(x)
    stamp(a, "p1_end")
    a(f"""
    s_cmp_ge_u32 s{sW}, 4
    s_cbranch_scc1 gemm_role_f
    s_cmp_lg_u32 s{sW}, 0
    s_cbranch_scc1 aq_lw
    s_waitcnt vmcnt(0)
    """)
    poll_cmp(a, 2, vPOL)
    a(f"""
    s_cmp_eq_u64 vcc, 0
    s_cbranch_scc1 aq_ok
    s_branch att_spin
    """)

    a.label("k1_v")
    vm = VM()
    cntv = lambda t: {"A": 5, "B": 1}[t[0]] if t[0] in ("A", "B") else vm.q.count(t)
    GWL = CNT + 1024
    a(f"""
    v_add_u32 v{vDU}, {(896 + 192) * 2}, v{vDB0}
    s_cmp_eq_u32 s{sJ}, 14
    s_cselect_b32 s{sT0}, 0, 512
    s_add_u32 s{sT0}, s{sT0}, {896 * 2}
    v_add_u32 v{vDB0}, s{sT0}, v{vDB0}
    s_mov_b32 s{S_U+2}, {448 * 2}
    s_waitcnt lgkmcnt(0)
    s_mov_b64 s[{S_X}:{S_X+1}], s[{P_X}:{P_X+1}]
    s_mov_b64 s[{S_B0}:{S_B0+1}], s[{P_WQKV}:{P_WQKV+1}]
    s_mov_b64 s[{S_U}:{S_U+1}], s[{P_GW}:{P_GW+1}]
    """)

    def vA(st):
        b = (st % 4) * SLOT
        g = [dma(sMX, b, vDX0, S_X, st * 128), dma(sMX, b + 1024, vDX1, S_X, st * 128)]
        for bi in range(3):
            g.append(dma(sMB, b + 8192 * bi, vDB0, S_B0, st * 64 * 2688 + 128 * bi))
        return [(x, ("A", st)) for x in g]

    def vbslot(sb):
        return 3 * SLOT + sb * 8192 if sb < 4 else (sb - 4) * 8192

    def vB(sb):
        return [(dma(sMB, vbslot(sb) - 16384, vDU, S_B0, sb * 64 * 2688), ("B", sb))]

    gw_ld = ([f"s_mov_b32 m0, {GWL}", "s_nop 0", f"buffer_load_dwordx4 v{vL16}, {sr4(S_U)}, 0 offen lds"], ("GW",))

    for g in vA(0):
        emit_group(g)
    a("s_barrier")
    for g in vA(1):
        emit_group(g)
    common_setup2("v")
    vAZ = vAW + 3
    a(f"""
    v_add_u32 v{vAW+1}, 8192, v{vAW}
    v_add_u32 v{vAW+2}, 16384, v{vAW}
    s_sub_u32 s{sT1}, s{sJ}, 14
    s_lshl_b32 s{sT1}, s{sT1}, 6
    v_xor_b32 v{vAZ}, s{sT1}, v{vAW}
    v_lshlrev_b32 v{vST+1}, 4, v{vT1}
    v_add_u32 v{vST+1}, {GWL}, v{vST+1}
    s_cmp_eq_u32 s{sJ}, 14
    s_cselect_b32 s{sT1}, 0, 4096
    s_lshl_b32 s{sT2}, s{sGRP}, 9
    s_add_u32 s{sT1}, s{sT1}, s{sT2}
    s_mul_i32 s{sHOFF}, s{sTILE}, {TQ}
    s_add_u32 s{sHOFF}, s{sHOFF}, s{sT1}
    s_add_u32 s{sHOFF}, s{sHOFF}, {VF}
    s_add_u32 s{sHOFF2}, s{sHOFF}, 14336
    v_mul_u32_u24 v{vST}, {7168 - 512}, v{vT1}
    v_add_u32 v{vST}, v{vST}, v{vL16}
    """)

    def readsVA(ks):
        st, s = ks // 4, ks % 4
        slot = st % 4
        out = set_base((slot // 2) * 2 * SLOT, [vAX, vAX+1, vAX+2, vAX+3, vAW, vAW+1, vAW+2, vAZ])
        off = (slot % 2) * SLOT
        f = WA[ks % 3]
        out.append(f"ds_read_b128 {vr(X+4*ks, 4)}, v{vAX+s} offset:{off}")
        for t in range(3):
            for q in range(2):
                out.append(f"ds_read_b64_tr_b16 {vr(f+4*t+2*q, 2)}, v{vAW+t} offset:{off + (16*s + 4*q) * 128}")
        return out

    NBV = 6
    WBV = [WF + 24, WF + 28, WF + 16, WF + 20, WF + 12, WF + 8]

    def readsVB(ks, z):
        sb, s = ks // 4, ks % 4
        f = WBV[ks % NBV]
        if z:
            return [f"ds_read_b128 {vr(f, 4)}, v{vST+1} offset:{32*ks}"]
        b = vbslot(sb)
        nb = (3 * SLOT if sb < 4 else 0)
        out = set_base(nb - 16384, [vAZ])
        off = b - nb
        for q in range(2):
            out.append(f"ds_read_b64_tr_b16 {vr(f+2*q, 2)}, v{vAZ} offset:{off + (16*s + 4*q) * 128}")
        return out

    def epi_v(acc, bi):
        o = [f"v_cvt_pk_bf16_f32 v{acc+i}, v{acc+2*i}, v{acc+2*i+1}" for i in range(8)]
        o.append(f"buffer_store_dwordx4 {vr(acc, 4)}, v{vST}, {sr4(S_WS)}, s{sHOFF} offen offset:{1024*bi}{SC}")
        o.append(f"buffer_store_dwordx4 {vr(acc+4, 4)}, v{vST}, {sr4(S_WS)}, s{sHOFF2} offen offset:{1024*bi}{SC}")
        return o

    abase[0] = 0
    a(f"s_waitcnt vmcnt({vm.wait({('A', 0)}, cntv)})\ns_barrier")
    stamp(a, "p1_first")
    for ks in range(2):
        for r in readsVA(ks):
            a(r)
    pend = vA(2) + vA(3)
    fillA = flag_addr(True, vFLA, vDG)
    for ks in range(28):
        st, s = ks // 4, ks % 4
        f = WA[ks % 3]
        m = [f"{MFMA} {vr(ACC+16*t, 16)}, {vr(X+4*ks, 4)}, {vr(f+4*t, 4)}, {'0' if ks == 0 else vr(ACC+16*t, 16)}" for t in range(3)]
        if s == 2:
            need = {("A", st + 1)} if st < 6 else {("B", x) for x in range(7)} | {("N",), ("GW",)}
            a(f"s_waitcnt vmcnt({vm.wait(need, cntv)}) lgkmcnt(0)")
            if st == 6:
                nonce_get("v")
            a("s_barrier")
            if st + 4 <= 6:
                pend += vA(st + 4)
            elif st == 3:
                pend += vB(0) + vB(1) + vB(2) + vB(3)
            elif st == 4:
                pend += vB(4) + vB(5) + vB(6) + [gw_ld]
            if st == 2:
                pend.append(nonce_ld)
            if "nopf" not in OPT and st == PF2_ST: pend.append(pf2())
            if "nopf" not in OPT and st == PF3_ST: pend.append(pf3())
        elif ks < 27:
            a("s_waitcnt lgkmcnt(7)")
        r = readsVA(ks + 2) if ks + 2 < 28 else []
        k = max(len(r) - 4, 0)
        a(m[0])
        for x in r[:k]:
            a(x)
        a(m[1])
        for x in r[k:]:
            a(x)
        a(m[2])
        if ks >= 16:
            assert vm.q.count(("A", 6)) == 5
            for _ in range(7):
                if fillA: a(fillA.pop(0))
        nd = 2 if (len(pend) > 4 or st < 1) else 1
        for _ in range(nd):
            if pend:
                emit_group(pend.pop(0))
    assert not fillA and not pend
    stamp(a, "p1_aend")
    VB = ACC + 48

    def passVB(z, fill):
        nrd = 1 if z else 2
        for ks in range(NBV - 1):
            for x in readsVB(ks, z):
                a(x)
        for ks in range(28):
            f = WBV[ks % NBV]
            c = vr(VB, 16)
            ops = f"{vr(f, 4)}, {vr(X+4*ks, 4)}" if z else f"{vr(X+4*ks, 4)}, {vr(f, 4)}"
            a(f"s_waitcnt lgkmcnt({min(NBV - 2, 27 - ks) * nrd})")
            a(f"{MFMA} {c}, {ops}, {'0' if ks == 0 else c}")
            if ks + NBV - 1 < 28:
                for x in readsVB(ks + NBV - 1, z):
                    a(x)
            for _ in range(3):
                if fill: a(fill.pop(0))
        assert not fill

    a(f"s_cmp_eq_u32 s{sGRP}, 1\ns_cbranch_scc1 k1_vg1")
    passVB(False, ["s_nop 1"] + epi_v(ACC, 0) + epi_v(ACC + 16, 1) + epi_v(ACC + 32, 2))
    a(f"""
    s_mul_i32 s{sHOFF}, s{sTILE}, {TQ}
    s_lshl_b32 s{sT1}, s{sJ}, 9
    s_add_u32 s{sHOFF}, s{sHOFF}, s{sT1}
    s_add_u32 s{sHOFF}, s{sHOFF}, {VF + 192 * 16 - 14 * 512}
    s_add_u32 s{sHOFF2}, s{sHOFF}, 14336
    s_nop 7
    """)
    for x in epi_v(VB, 0):
        a(x)
    stamp(a, "p1_bend")
    a(f"""
    s_waitcnt vmcnt(0)
    s_barrier
    """)
    stamp(a, "p1_end")
    a(f"""
    s_cmp_lg_u32 s{sW}, 3
    s_cbranch_scc1 k1_noflag_v
    s_mov_b32 s{sT0}, {FQ}
    buffer_store_dword v{vNON}, v{vDG}, {sr4(S_WS)}, s{sT0} offen{SC}
    """)
    a(flag1(a, sFHA))
    a.label("k1_noflag_v")
    a("s_branch att_spin")
    a.label("k1_vg1")
    a("s_nop 7")
    for x in epi_v(ACC, 0) + epi_v(ACC + 16, 1) + epi_v(ACC + 32, 2):
        a(x)
    stamp(a, "p1_bend")
    a(f"""
    s_waitcnt vmcnt(0)
    s_barrier
    """)
    stamp(a, "p1_end")
    a(f"s_mov_b32 s{sHOFF2}, {OOB}\ns_cmp_eq_u32 s{sJ}, 14\ns_cbranch_scc1 gemm_role")
    passVB(True, [])
    t = WF
    a(f"""
    s_nop 7
    s_nop 3
    v_mul_f32 v{t}, s{sNL2E}, v{VB}
    v_exp_f32 v{t}, v{t}
    v_and_b32 v{t+1}, 31, v{vLane}
    v_add_f32 v{t}, 1.0, v{t}
    v_rcp_f32 v{t}, v{t}
    v_lshlrev_b32 v{t+1}, 2, v{t+1}
    s_lshl_b32 s{sT0}, s{sTILE}, 7
    s_add_u32 s{sT0}, s{sT0}, {GF}
    buffer_store_dword v{t}, v{t+1}, {sr4(S_WS)}, s{sT0} offen{SC}
    s_waitcnt vmcnt(0)
    """)
    a.label("gemm_role")
    for i in range(8):
        for x in wpref(i):
            a(x)
    a("s_branch gemm_role2")
    a.label("gemm_role_f")
    a(f"""
    v_mov_b32 v{vT0}, {CNT + 32}
    v_mov_b32 v{vT1}, 1
    s_waitcnt vmcnt(0)
    s_mov_b64 exec, 1
    ds_add_rtn_u32 v{vT1}, v{vT0}, v{vT1}
    s_mov_b64 exec, -1
    s_waitcnt lgkmcnt(0)
    v_readfirstlane_b32 s{sT0}, v{vT1}
    s_cmp_lg_u32 s{sT0}, 3
    s_cbranch_scc1 gemm_role2
    """)
    a(flag1(a, sFHA))
    a.label("gemm_role2")
    gen_gemm(a, wpref)
    gen_attention(a)
    a.label("k_end")
    a("s_endpgm")
    return a.text()


vAWr = 16
RB = [0, 98304]


def wtr_setup(a):
    a(f"""
    v_bfe_u32 v{vT0}, v{vLane}, 4, 1
    v_bfe_u32 v{vT1}, v{vLane}, 2, 2
    v_and_b32 v{vT2}, 2, v{vT1}
    v_xor_b32 v{vT2}, v{vT2}, v{vT0}
    s_and_b32 s{sT0}, s{sKQ}, 1
    s_lshl_b32 s{sT0}, s{sT0}, 1
    v_xor_b32 v{vT2}, s{sT0}, v{vT2}
    v_lshrrev_b32 v{vT3}, 5, v{vLane}
    v_lshl_add_u32 v{vT3}, v{vT3}, 2, v{vT1}
    v_lshlrev_b32 v{vT3}, 7, v{vT3}
    v_lshl_add_u32 v{vT3}, v{vT2}, 5, v{vT3}
    v_and_b32 v{vT2}, 3, v{vLane}
    v_lshl_add_u32 v{vT3}, v{vT2}, 3, v{vT3}
    v_add_u32 v{vAWr}, s{sM0}, v{vT3}
    v_xor_b32 v{vAWr+1}, 64, v{vAWr}
    v_add_u32 v{vAWr+2}, {RB[1]}, v{vAWr}
    v_add_u32 v{vAWr+3}, {RB[1]}, v{vAWr+1}
    v_mov_b32 v{vAWr+4}, v{vT3}
    """)


def wtr_reads(slot, dst):
    ra = ring_addr(slot)
    bi = max(i for i in range(2) if RB[i] <= ra)
    out = []
    for T in range(2):
        for q in range(2):
            out.append(f"ds_read_b64_tr_b16 {vr(dst+4*T+2*q, 2)}, v{vAWr+2*bi+T} offset:{ra - RB[bi] + q*1024}")
    return out


def bcast_poll(a, tag, leader, addrs, soff, vtmp, sleep, ldsoff, pre=None, lsleep=2):
    a(f"s_cmp_lg_u32 s{sW}, {leader}\ns_cbranch_scc1 {tag}_lw")
    if pre:
        pre()
    poll(a, addrs, soff, vtmp, sleep)
    a.label(f"{tag}_ok")
    lds_set(a, ldsoff, 1, vT0)
    a(f"s_branch {tag}_go")
    a.label(f"{tag}_lw")
    lds_wait(a, ldsoff, vT0, "eq1", lsleep)
    a.label(f"{tag}_go")


def gen_gemm(a, wpref):
    ACC = 64
    ACT = 128
    WFB = [32, 40]
    vA0, vA1, vG0, vFl, vFl2, vMB = 21, 22, 23, 25, 24, 26
    sA0, sB0w, sFH2, sMO2, sDONE, sNEW, sH = 45, 46, 47, 48, 49, 50, 52
    DA = GDA
    stamp(a, "x_role")
    wtr_setup(a)
    srd(a, S_WO, P_WO, 448 * 448 * 2)
    srd(a, S_OUT, P_OUT, 2048 * 448 * 2)
    a(f"""
    s_lshr_b32 s{sMO2}, s{sKQ}, 1
    s_mul_i32 s{sT0}, s{sMO2}, {112 * 1024}
    v_add_u32 v{vA0}, s{sT0}, v{vL16}
    s_sub_u32 s{sT0}, {112 * 1024}, s{sT0}
    v_add_u32 v{vA1}, s{sT0}, v{vL16}
    s_lshr_b32 s{sT1}, s{sMT}, 1
    s_lshl_b32 s{sT1}, s{sT1}, 9
    s_add_u32 s{sT1}, s{sT1}, {FH}
    s_lshl_b32 s{sFH2}, s{sMT}, 10
    s_add_u32 s{sFH2}, s{sFH2}, {FHB}
    s_mul_i32 s{sA0}, s{sMT}, 224
    s_add_u32 s{sA0}, s{sA0}, s{sKQ}
    s_lshl_b32 s{sA0}, s{sA0}, 10
    s_add_u32 s{sA0}, s{sA0}, {HF}
    s_mul_i32 s{sB0w}, s{sKQ}, {112 * 896}
    s_lshl_b32 s{sT0}, s{sNT}, 7
    s_add_u32 s{sB0w}, s{sB0w}, s{sT0}
    v_and_b32 v{vFl}, 0x1ff, v{vFLA}
    v_and_b32 v{vFl2}, 0x3ff, v{vFLA}
    s_add_u32 s{sT2}, s{sM0}, {MERGE + MBOX}
    v_add_u32 v{vMB}, s{sT2}, v{vL16}
    s_sub_u32 s{sHOFF}, s{sHOFF2}, 2048
    s_cmp_lt_u32 s{sI32}, 28
    s_cbranch_scc1 gemm_has
    """)

    def hb_all():
        lds_wait(a, 24, vT0, "eq4", 1)
        a(f"""
        ds_read_b128 {vr(HBR+8, 4)}, v{vMB}
        ds_read_b128 {vr(HBR+12, 4)}, v{vMB} offset:1024
        """)

    def hb_st():
        return hb_stores() + [f"buffer_store_dwordx4 {vr(HBR+8+4*i, 4)}, v{vL16}, {sr4(S_WS)}, s{sHOFF} offen offset:{1024*i}{SC}" for i in range(2)]
    hb_all()
    a("s_waitcnt lgkmcnt(0)")
    for x in hb_st():
        a(x)
    a("s_waitcnt vmcnt(0)")
    a(flag1(a, sFHO))
    a("s_endpgm")
    a.label("gemm_has")
    bcast_poll(a, "gA", 4, [vFl], sT1, vG0, SLEEP_H, 8)
    hb_all()
    stamp(a, "x_go"); stamp(a, "x_loop")
    vm = VM()
    for i in range(0, 8):
        vm.add(("w", i))

    def act_loads(i):
        r = ACT + 8 * (i % DA)
        a(f"""
        s_add_u32 s{sT0}, s{sA0}, {wk_off(i) * 1024}
        buffer_load_dwordx4 {vr(r, 4)}, v{vA0}, {sr4(S_WS)}, s{sT0} offen{SC}
        buffer_load_dwordx4 {vr(r+4, 4)}, v{vA1}, {sr4(S_WS)}, s{sT0} offen{SC}
        """)
        vm.add(("a", i)); vm.add(("a", i))

    def w_loads(i):
        if i < 28:
            for x in wpref(i):
                a(x)
        else:
            ra = ring_addr(wslot(i))
            off = (28 * ((i - 28) // 2) + 16 * ((i - 28) % 2)) * 896
            a(f"""
            s_add_u32 m0, s{sM0}, {ra}
            s_add_u32 s{sT0}, s{sB0w}, {off}
            buffer_load_dwordx4 v{vDW}, {sr4(S_WO)}, s{sT0} offen lds
            s_add_u32 m0, s{sM0}, {ra + 1024}
            s_add_u32 s{sT0}, s{sT0}, {8 * 896}
            buffer_load_dwordx4 v{vDW}, {sr4(S_WO)}, s{sT0} offen lds
            """)
        vm.add(("w", i)); vm.add(("w", i))

    na, nw = 0, 8
    for i in range(GPRE):
        act_loads(na); na += 1
        if nw < GPRE + 1:
            w_loads(nw); nw += 1
    a("s_waitcnt lgkmcnt(0)")
    for x in hb_st():
        a(x); vm.add(("hb",))
    a(f"s_waitcnt vmcnt({vm.wait({('w', 0)})})")
    for x in wtr_reads(0, WFB[0]):
        a(x)
    gotB = False
    for i in range(28):
        need = {("a", i)}
        if i + 1 < 28:
            need.add(("w", i + 1))
        a(f"s_waitcnt vmcnt({vm.wait(need)}) lgkmcnt(0)")
        if i + 1 < 28:
            for x in wtr_reads((i + 1) % 13, WFB[(i + 1) % 2]):
                a(x)
        for mt in range(2):
            for T in range(2):
                c = vr(ACC + 32 * mt + 16 * T, 16)
                a(f"{MFMA} {c}, {vr(WFB[i%2]+4*T, 4)}, {vr(ACT+8*(i%DA)+4*mt, 4)}, {'0' if i == 0 else c}")
        if i == GPRE:
            a(flag1(a, sFHO))
        if i == GB_AT:
            stamp(a, "g_b0")
            bcast_poll(a, "gB", 4, [vFl2], sFH2, vPOL, SLEEP_H, 12)
            stamp(a, "g_b1")
            gotB = True
            a(f"""
            v_and_b32 v{vT0}, 31, v{vLane}
            v_lshlrev_b32 v{vT0}, 2, v{vT0}
            s_lshl_b32 s{sT1}, s{sMT}, 1
            s_add_u32 s{sT1}, s{sT1}, s{sMO2}
            s_lshl_b32 s{sT1}, s{sT1}, 7
            s_add_u32 s{sT1}, s{sT1}, {GF}
            buffer_load_dword v{vG0}, v{vT0}, {sr4(S_WS)}, s{sT1} offen{SC}
            """)
            vm.add(("g",))
        for _ in range(2):
            if na < 28 and na <= i + DA and (na < 14 or gotB):
                act_loads(na); na += 1
            if nw < 36 and nw <= i + min(13, DA + 1) and (nw < 28 or wslot(nw) + 13 <= i):
                w_loads(nw); nw += 1
    assert na == 28
    while nw < 36:
        w_loads(nw); nw += 1
    stamp(a, "x_lend")
    XS = [0, 1, 6, 7]
    R, AA, SL = 128, ACC + 16, 128
    vX0, vX1, vC1, vOUT, vWa = 26, 27, 28, 30, 29

    def xaddr(reg, x):
        a(f"""
        s_xor_b32 s{sT0}, s{sKQ}, {x}
        s_lshl_b32 s{sT0}, s{sT0}, 11
        v_add_u32 v{reg}, s{sT0}, v{vL16}
        v_add_u32 v{reg+1}, {RB[1]}, v{reg}
        """)

    def xo(i):
        ra = ring_addr(XS[i // 2]) + (i % 2) * 1024
        return (vX0, ra) if ra < RB[1] else (vX1, ra - RB[1])

    def gsync(off, tag):
        a(f"""
        v_mov_b32 v{vC1}, {CNT + off}
        v_mov_b32 v{vT0}, 1
        s_waitcnt vmcnt(0) lgkmcnt(0)
        s_mov_b64 exec, 1
        ds_add_u32 v{vC1}, v{vT0}
        s_mov_b64 exec, -1
        """)
        a.label(tag)
        a(f"""
        ds_read_b32 v{vT0}, v{vC1}
        s_waitcnt lgkmcnt(0)
        v_readfirstlane_b32 s{sT0}, v{vT0}
        s_cmp_eq_u32 s{sT0}, 4
        s_cbranch_scc1 {tag}_d
        s_sleep 1
        s_branch {tag}
        """)
        a.label(f"{tag}_d")

    xaddr(vX0, 0)
    a("s_nop 7")
    for i in range(8):
        r_, o_ = xo(i)
        a(f"ds_write_b128 v{r_}, {vr(ACC+32+4*i, 4)} offset:{o_}")
    xaddr(vX0, 2)
    gsync(16, "gs1")
    for i in range(8):
        r_, o_ = xo(i)
        a(f"ds_read_b128 {vr(R+4*i, 4)}, v{r_} offset:{o_}")
    a("s_waitcnt lgkmcnt(0)")
    for i in range(16, 32):
        a(f"v_add_f32 v{ACC+i}, v{ACC+i}, v{R+i}")
    for i in range(4):
        r_, o_ = xo(i)
        a(f"ds_write_b128 v{r_}, {vr(ACC+16+4*i, 4)} offset:{o_}")
    for i in range(16):
        a(f"v_add_f32 v{ACC+i}, v{ACC+i}, v{R+i}")
    xaddr(vX0, 3)
    gsync(28, "gs2")
    for i in range(4):
        r_, o_ = xo(i)
        a(f"ds_read_b128 {vr(R+4*i, 4)}, v{r_} offset:{o_}")
    a(f"""
    v_sub_f32 v{vT2}, 1.0, v{vG0}
    s_lshl_b32 s{sT1}, s{sMT}, 1
    s_add_u32 s{sT1}, s{sT1}, s{sMO2}
    s_lshl_b32 s{sFH2}, s{sT1}, 9
    s_add_u32 s{sFH2}, s{sFH2}, {FO}
    s_lshl_b32 s{sA0}, s{sT1}, 15
    s_add_u32 s{sA0}, s{sA0}, {OF}
    s_mul_i32 s{sT2}, s{sT1}, {32 * 896}
    s_lshl_b32 s{sT1}, s{sNT}, 7
    s_add_u32 s{sT2}, s{sT2}, s{sT1}
    s_and_b32 s{sT1}, s{sKQ}, 1
    s_lshl_b32 s{sT1}, s{sT1}, 6
    s_add_u32 s{sT2}, s{sT2}, s{sT1}
    v_and_b32 v{vFl}, 31, v{vLane}
    v_mul_u32_u24 v{vOUT}, 896, v{vFl}
    v_lshrrev_b32 v{vT3}, 5, v{vLane}
    v_lshl_add_u32 v{vOUT}, v{vT3}, 4, v{vOUT}
    v_and_b32 v{vFl}, 0x1ff, v{vFLA}
    s_mov_b32 s{sDONE}, 0xffff0000
    s_mov_b32 s{sSPIN}, {SPIN_MAX}
    s_waitcnt lgkmcnt(0)
    """)
    for i in range(16):
        a(f"v_add_f32 v{ACC+i}, v{ACC+i}, v{R+i}")
    for i in range(16):
        a(f"v_mul_f32 v{ACC+i}, v{ACC+i}, v{vT2}")
        a(f"v_mov_b32 v{AA+i}, 0")
    stamp(a, "p3_poll")
    a.label("p3_poll")
    a(f"""
    buffer_load_dword v{vPOL}, v{vFl}, {sr4(S_WS)}, s{sFH2} offen{SC}
    s_waitcnt vmcnt(0)
    v_cmp_eq_u32 vcc, s{sNONCE}, v{vPOL}
    s_sub_u32 s{sSPIN}, s{sSPIN}, 1
    s_cbranch_scc1 p3_fin
    s_andn2_b32 s{sNEW}, vcc_lo, s{sDONE}
    s_cbranch_scc1 p3_batch
    s_sleep {SLEEP_O}
    s_branch p3_poll
    """)
    a.label("p3_batch")
    for k in range(4):
        o, w = SL + 16 * k, SL + 16 * k + 8
        a(f"""
        s_ff1_i32_b32 s{sH}, s{sNEW}
        s_bitset0_b32 s{sNEW}, s{sH}
        s_bitset1_b32 s{sDONE}, s{sH}
        s_lshl_b32 s{sT0}, s{sH}, 11
        s_add_u32 s{sT0}, s{sT0}, s{sA0}
        buffer_load_dwordx4 {vr(o, 4)}, v{vL16}, {sr4(S_WS)}, s{sT0} offen{SC}
        buffer_load_dwordx4 {vr(o+4, 4)}, v{vL16}, {sr4(S_WS)}, s{sT0} offen offset:1024{SC}
        s_bitcmp1_b32 s{sH}, 1
        s_cselect_b32 s{sT0}, 0, {ring_addr(2)}
        s_and_b32 s{sT1}, s{sH}, 1
        s_lshl_b32 s{sT1}, s{sT1}, 14
        s_add_u32 s{sT0}, s{sT0}, s{sT1}
        s_lshr_b32 s{sT1}, s{sH}, 2
        s_lshl_b32 s{sT1}, s{sT1}, 11
        s_add_u32 s{sT0}, s{sT0}, s{sT1}
        v_add_u32 v{vWa}, s{sT0}, v{vAWr+4}
        ds_read_b64_tr_b16 {vr(w, 2)}, v{vWa}
        ds_read_b64_tr_b16 {vr(w+2, 2)}, v{vWa} offset:1024
        ds_read_b64_tr_b16 {vr(w+4, 2)}, v{vWa} offset:8192
        ds_read_b64_tr_b16 {vr(w+6, 2)}, v{vWa} offset:9216
        """)
        if k == 2:
            a("s_waitcnt lgkmcnt(4)")
        if k < 3:
            a(f"s_cmp_eq_u32 s{sNEW}, 0\ns_cbranch_scc1 p3_run{k}")
    for k in range(3, -1, -1):
        o, w = SL + 16 * k, SL + 16 * k + 8
        a.label(f"p3_run{k}")
        a(f"""
        s_waitcnt vmcnt(0) lgkmcnt(0)
        {MFMA} {vr(AA, 16)}, {vr(w, 4)}, {vr(o, 4)}, {vr(AA, 16)}
        {MFMA} {vr(AA, 16)}, {vr(w+4, 4)}, {vr(o+4, 4)}, {vr(AA, 16)}
        """)
    a(f"""
    s_cmp_lg_u32 s{sNEW}, 0
    s_cbranch_scc1 p3_batch
    s_cmp_lg_u32 s{sDONE}, -1
    s_cbranch_scc1 p3_poll
    """)
    a.label("p3_fin")
    stamp(a, "p3_mfma")
    a("s_nop 7")
    t = 192
    for i in range(16):
        a(f"v_fma_f32 v{ACC+i}, v{AA+i}, v{vG0}, v{ACC+i}")
    for i in range(8):
        a(f"v_cvt_pk_bf16_f32 v{t+i}, v{ACC+2*i}, v{ACC+2*i+1}")
    a(f"""
    v_permlane32_swap_b32 v{t}, v{t+2}
    v_permlane32_swap_b32 v{t+1}, v{t+3}
    buffer_store_dwordx4 {vr(t, 4)}, v{vOUT}, {sr4(S_OUT)}, s{sT2} offen
    v_permlane32_swap_b32 v{t+4}, v{t+6}
    v_permlane32_swap_b32 v{t+5}, v{t+7}
    buffer_store_dwordx4 {vr(t+4, 4)}, v{vOUT}, {sr4(S_OUT)}, s{sT2} offen offset:32
    """)
    amp_end(a, 'g')
    if "dbgt" in OPT:
        a(f"""
        s_cmp_ge_u32 s2, 7
        s_cbranch_scc1 k_end
        s_cmp_lg_u32 s{sW}, 4
        s_cbranch_scc1 k_end
        s_memtime s[90:91]
        s_memrealtime s[92:93]
        s_waitcnt lgkmcnt(0)
        s_sub_u32 s90, s90, s86
        s_sub_u32 s92, s92, s88
        v_mov_b32 v4, s90
        v_mov_b32 v5, s92
        s_lshl_b32 s3, s2, 3
        s_add_u32 s3, s3, 8
        buffer_store_dwordx2 v[4:5], v{vF1}, {sr4(S_DBG)}, s3 offen
        """)
    stamp_flush(a)
    a("s_endpgm")


def gen_attention(a):
    Q, O, S, KV, P, TMP = AQ, AO, AS, AKV, AP, ATMP
    vG, vM, vONE = avG, avM, avONE
    a.label("att_spin")
    bcast_poll(a, "aq", 0, [vFLA, vFLA + 1], sFQB, vPOL, SLEEP_Q, 4, lsleep=1)
    stamp(a, "x_go")
    o1, o2, vm, flat = att_loads()

    def k_fix(buf):
        return [f"v_cndmask_b32 v{KV+16*buf+6}, v{KV+16*buf+6}, v{vONE}, s[{sME}:{sME+1}]",
                f"v_cndmask_b32 v{KV+16*buf}, v{KV+16*buf}, v{vONE}, s[{sMO}:{sMO+1}]"]

    zer = [f"v_mov_b32 v{O+k}, 0" for k in range(12, 64)]
    for x in flat(o1):
        a(x)
    step = len(zer) // len(o2) + 1
    zz = list(zer)
    for x in o2:
        for _ in range(step):
            if zz: a(zz.pop(0))
        for y in flat([x]):
            a(y)
    a("s_branch att_main2")
    a.label("att_main")
    for x in zer:
        a(x)
    a.label("att_main2")
    stamp(a, "x_main")
    a(f"""
    s_setprio 2
    s_lshl_b32 s{sT0}, s{sKQ}, 11
    s_add_u32 s{sT0}, s{sT0}, {MERGE}
    v_add_u32 v{TMP}, s{sT0}, v{vL16}
    v_subrev_u32 v{TMP+1}, {-MBOX}, v{TMP}
    ds_write_b128 v{TMP+1}, {vr(HBR, 4)}
    ds_write_b128 v{TMP+1}, {vr(HBR+4, 4)} offset:1024
    v_mov_b32 v{vT1}, 0
    s_and_b32 s{sT0}, s{sHEAD}, 1
    s_mov_b32 s{sME}, 0
    s_mov_b32 s{sMO+1}, 0
    s_sub_u32 s{sME+1}, s{sT0}, 1
    s_sub_u32 s{sMO}, 0, s{sT0}
    v_mov_b32 v{avV0}, v{vT2}
    v_mov_b32 v{avV1}, v{vT3}
    v_mov_b32 v{vONE}, 0x3f803f80
    v_mov_b32 v{TMP+1}, {CNT + 24}
    v_mov_b32 v{TMP+2}, 1
    s_waitcnt vmcnt({vm.wait({('q',), ('kv', 0, 1)})})
    v_cndmask_b32 v{Q}, v{Q}, v{vT1}, s[{sMO}:{sMO+1}]
    v_cndmask_b32 v{Q+1}, v{Q+1}, v{vT1}, s[{sMO}:{sMO+1}]
    v_cndmask_b32 v{Q+6}, v{Q+6}, v{vT1}, s[{sME}:{sME+1}]
    v_cndmask_b32 v{Q+7}, v{Q+7}, v{vT1}, s[{sME}:{sME+1}]
    {MFMA} {vr(S[1], 16)}, {vr(KV, 4)}, {vr(Q, 4)}, 0
    s_nop 0
    {MFMA} {vr(S[1], 16)}, {vr(KV+4, 4)}, {vr(Q+4, 4)}, {vr(S[1], 16)}
    """)
    stamp(a, "x_q")
    for x in k_fix(0):
        a(x)
    for k in range(12):
        a(f"v_mov_b32 v{O+k}, 0")
    s0 = S[1]
    a(f"""
    v_max3_f32 v{vM}, v{s0}, v{s0+1}, v{s0+2}
    v_max3_f32 v{vT0}, v{s0+3}, v{s0+4}, v{s0+5}
    v_max3_f32 v{vT2}, v{s0+6}, v{s0+7}, v{s0+8}
    v_max3_f32 v{vT3}, v{s0+9}, v{s0+10}, v{s0+11}
    v_max3_f32 v{vM}, v{vM}, v{s0+12}, v{s0+13}
    v_max3_f32 v{vT0}, v{vT0}, v{s0+14}, v{s0+15}
    v_max3_f32 v{vM}, v{vM}, v{vT2}, v{vT3}
    v_max_f32 v{vM}, v{vM}, v{vT0}
    v_mov_b32 v{vT0}, v{vM}
    s_nop 1
    v_permlane32_swap_b32 v{vM}, v{vT0}
    v_max_f32 v{vM}, v{vM}, v{vT0}
    v_sub_f32 v{vM}, 0, v{vM}
    v_cvt_pk_bf16_f32 v{vT0}, v{vM}, v{vM}
    v_lshlrev_b32 v{vT0}, 16, v{vT0}
    v_sub_f32 v{vT0}, v{vM}, v{vT0}
    v_cvt_pk_bf16_f32 v{vT0}, v{vM}, v{vT0}
    v_cndmask_b32 v{Q}, v{Q}, v{vT0}, s[{sMO}:{sMO+1}]
    v_cndmask_b32 v{Q+6}, v{Q+6}, v{vT0}, s[{sME}:{sME+1}]
    ds_write_b128 v{TMP}, {vr(Q, 4)}
    ds_write_b128 v{TMP}, {vr(Q+4, 4)} offset:1024
    {MFMA} {vr(S[0], 16)}, {vr(KV, 4)}, {vr(Q, 4)}, 0
    {MFMA} {vr(S[0], 16)}, {vr(KV+4, 4)}, {vr(Q+4, 4)}, {vr(S[0], 16)}
    s_waitcnt lgkmcnt(0)
    s_mov_b64 exec, 1
    ds_add_u32 v{TMP+1}, v{TMP+2}
    s_mov_b64 exec, -1
    """)
    for x in kv_adv()[:3]:
        a(x)
    for i in range(4):
        a(f"v_mov_b32 v{P+4+i}, 0\nv_mov_b32 v{KV+16*3+12+i}, v{vONE}\nv_mov_b32 v{KV+16*3+8+i}, v{vONE}")
    for i in range(1, 4):
        a(f"""
        s_add_u32 s{sT0}, s{sKQ}, {i}
        s_and_b32 s{sT0}, s{sT0}, 3
        s_lshl_b32 s{sT0}, s{sT0}, 11
        s_add_u32 s{sT0}, s{sT0}, {MERGE}
        v_add_u32 v{TMP+2+i}, s{sT0}, v{vL16}
        """)
    stamp(a, "x_qs")
    a.label("att_qsync")
    a(f"""
    ds_read_b32 v{TMP+2}, v{TMP+1}
    s_waitcnt lgkmcnt(0)
    v_cmp_gt_u32 vcc, 4, v{TMP+2}
    s_cbranch_vccnz att_qsync
    """)
    for i in range(1, 4):
        a(f"ds_read_b128 {vr(Q+8*i, 4)}, v{TMP+2+i}\nds_read_b128 {vr(Q+8*i+4, 4)}, v{TMP+2+i} offset:1024")
    a("s_waitcnt lgkmcnt(0)")
    a(f"s_mov_b32 s{sIT}, 0")
    stamp(a, "x_loop")
    a.label("att_loop")
    for tb in range(4):
        for q in range(4):
            ph = 4 * tb + q
            sc, sn = S[ph % 2], S[1 - ph % 2]
            pq, pb = (q - 1) % 4, (tb if q > 0 else (tb - 1) % 4)
            nq, nb = (q + 1) % 4, (tb if q < 3 else (tb + 1) % 4)
            e = [f"v_exp_f32 v{sc+i}, v{sc+i}" for i in range(16)]
            c = [f"v_cvt_pk_bf16_f32 v{P+i}, v{sc+2*i}, v{sc+2*i+1}" for i in range(8)]
            pv2 = f"{MFMA} {vr(O+16*pq, 16)}, {vr(KV+16*pb+12, 4)}, {vr(P+4, 4)}, {vr(O+16*pq, 16)}"
            pv1 = f"{MFMA} {vr(O+16*q, 16)}, {vr(KV+16*tb+8, 4)}, {vr(P, 4)}, {vr(O+16*q, 16)}"
            qk1 = f"{MFMA} {vr(sn, 16)}, {vr(KV+16*nb, 4)}, {vr(Q+8*nq, 4)}, 0"
            qk2 = f"{MFMA} {vr(sn, 16)}, {vr(KV+16*nb+4, 4)}, {vr(Q+8*nq+4, 4)}, {vr(sn, 16)}"
            adv = kv_adv()
            s_pv2, s_qk1, s_qk2, s_pv1, tail = [], [], [], [], []
            s_qk1 += kv_load((tb + 3) % 4, q, (avV0, avV1))
            if q == 0:
                s_pv2.append(adv[3])
                s_qk2.append("s_waitcnt vmcnt(9)")
                s_pv1.append(adv[4])
            if q == 1:
                if tb == 0:
                    s_pv2.append(f"s_cmp_eq_u32 s{sIT}, 3")
                    s_qk2.append(f"s_cselect_b32 s{sKB}, {OOB}, s{sKB}")
                    s_pv1.append(f"s_cselect_b32 s{sVB}, {OOB}, s{sVB}")
                if tb == 3:
                    s_pv1.append(f"s_add_u32 s{sIT}, s{sIT}, 1")
            if q == 2:
                s_pv2.append(f"s_mul_i32 s{sT0}, s{sTI}, {TQ}")
                s_qk2.append(f"s_add_u32 s{sKS}, s{sT0}, s{sKB}")
                s_pv1.append("s_waitcnt vmcnt(9)")
                tail = k_fix((tb + 1) % 4)
            if q == 3:
                s_qk2.append(f"s_add_u32 s{sVS}, s{sT0}, s{sVB}")
                if tb == 3:
                    s_pv1.append(f"s_cmp_lt_u32 s{sIT}, 4")
            seq = e[0:2] + [pv2] + s_pv2 + e[2:5] + [qk1] + s_qk1 + e[5:9] + c[0:4] + [qk2] + s_qk2 + e[9:12] + [pv1] + s_pv1 + e[12:16] + tail + c[4:8]
            for x in seq:
                a(x)
    a(f"""
    s_cbranch_scc1 att_loop
    s_nop 0
    {MFMA} {vr(O+48, 16)}, {vr(KV+16*3+12, 4)}, {vr(P+4, 4)}, {vr(O+48, 16)}
    """)
    stamp(a, "x_lend")
    for i in range(1, 4):
        a(f"""
        s_add_u32 s{sT0}, s{sKQ}, {i}
        s_and_b32 s{sT0}, s{sT0}, 3
        s_mul_i32 s{sT0}, s{sT0}, 12288
        s_add_u32 s{sT0}, s{sT0}, {MERGE + (i-1) * 4096}
        v_add_u32 v{vT0}, s{sT0}, v{vL16}
        """)
        for q in range(4):
            a(f"ds_write_b128 v{vT0}, {vr(O+16*i+4*q, 4)} offset:{1024*q}")
    a(f"""
    v_mov_b32 v{vT1}, {CNT}
    v_mov_b32 v{vT2}, 1
    s_mul_i32 s{sT0}, s{sKQ}, 12288
    s_add_u32 s{sT0}, s{sT0}, {MERGE}
    v_add_u32 v{vT0}, s{sT0}, v{vL16}
    s_lshl_b32 s{sT2}, s{sQB}, 2
    s_add_u32 s{sT2}, s{sT2}, s{sKQ}
    s_lshl_b32 s{sT2}, s{sT2}, 4
    s_add_u32 s{sT2}, s{sT2}, s{sHEAD}
    s_lshl_b32 s{sKB}, s{sT2}, 11
    s_add_u32 s{sKB}, s{sKB}, {OF}
    s_lshr_b32 s{sVB}, s{sT2}, 2
    s_lshl_b32 s{sVB}, s{sVB}, 7
    s_and_b32 s{sT2}, s{sT2}, 3
    s_lshl_b32 s{sT2}, s{sT2}, 2
    s_add_u32 s{sVB}, s{sVB}, s{sT2}
    s_add_u32 s{sVB}, s{sVB}, {FO}
    s_waitcnt lgkmcnt(0)
    s_mov_b64 exec, 1
    ds_add_u32 v{vT1}, v{vT2}
    s_mov_b64 exec, -1
    """)
    a.label("att_msync")
    a(f"""
    ds_read_b32 v{vT2}, v{vT1}
    s_waitcnt lgkmcnt(0)
    v_cmp_gt_u32 vcc, 4, v{vT2}
    s_cbranch_vccnz att_msync
    """)
    stamp(a, "x_msync")
    for i in range(12):
        a(f"ds_read_b128 {vr(O+16+4*i, 4)}, v{vT0} offset:{1024*i}")
    a(f"""
    v_cmp_lt_u32 vcc, 31, v{vLane}
    s_mov_b32 s{sT0}, {f32bits(2.0**-10):#x}
    s_mov_b32 s{sT1}, {f32bits(2.0**100):#x}
    """)
    for k in range(3):
        a(f"s_waitcnt lgkmcnt({8 - 4*k})")
        for i in range(16):
            a(f"v_add_f32 v{O+i}, v{O+i}, v{O+16+16*k+i}")
    C = O + 16
    a(f"""
    v_mov_b32 v{vT0}, v{O+12}
    v_mov_b32 v{vT1}, v{O+12}
    """)
    for k in range(4):
        a(f"v_mul_f32 v{C+k}, 0, v{O+4*k}")
    a(f"v_permlane32_swap_b32 v{vT0}, v{vT1}")
    for i in range(1, 4):
        for k in range(4):
            a(f"v_fma_f32 v{C+k}, v{O+4*k+i}, 0, v{C+k}")
    a(f"""
    v_rcp_f32 v{vT2}, v{vT1}
    v_cndmask_b32 v{C+3}, v{C+3}, v{C+2}, vcc
    v_add_f32 v{C}, v{C}, v{C+1}
    v_add_f32 v{C+2}, v{C+2}, v{C+3}
    v_add_f32 v{C}, v{C}, v{vT1}
    v_add_f32 v{C}, v{C}, v{C+2}
    v_cmp_le_f32 s[28:29], s{sT0}, v{C}
    v_cmp_ge_f32 s[16:17], s{sT1}, v{C}
    s_and_b64 s[28:29], s[28:29], s[16:17]
    s_cmp_eq_u64 s[28:29], -1
    s_cbranch_scc0 att_fallback
    """)
    a.label("att_final")
    a(f"""
    v_mov_b32 v{vT0}, 0
    """)
    for hh in range(2):
        for i in range(8):
            a(f"v_mul_f32 v{O+8*hh+i}, v{O+8*hh+i}, v{vT2}")
        for i in range(4):
            a(f"v_cvt_pk_bf16_f32 v{TMP+4*hh+i}, v{O+8*hh+2*i}, v{O+8*hh+2*i+1}")
        if hh == 1:
            a(f"v_cndmask_b32 v{TMP+6}, v{TMP+6}, v{vT0}, vcc\nv_cndmask_b32 v{TMP+7}, v{TMP+7}, v{vT0}, vcc")
        a(f"buffer_store_dwordx4 {vr(TMP+4*hh, 4)}, v{vL16}, {sr4(S_WS)}, s{sKB} offen offset:{1024*hh}{SC}")
    stamp(a, "x_ost")
    a("s_waitcnt vmcnt(0)")
    a(flag1(a, sVB))
    stamp(a, "x_b2")
    amp_end(a, 'a')
    stamp_flush(a)
    a("s_endpgm")

    a.label("att_fallback")
    sc = S[0]
    K, V = KV, KV + 8
    vMo, vMn, vAl = TMP, TMP + 1, TMP + 2
    a(f"""
    v_mov_b32 v{vT0}, 0
    v_mov_b32 v{vMo}, 0xff800000
    v_cndmask_b32 v{Q}, v{Q}, v{vT0}, s[{sMO}:{sMO+1}]
    v_cndmask_b32 v{Q+6}, v{Q+6}, v{vT0}, s[{sME}:{sME+1}]
    s_mov_b32 s{sIT}, 0
    s_lshl_b32 s{sKS}, s{sP0}, 9
    s_add_u32 s{sKS}, s{sKS}, {KF}
    s_mul_i32 s{sVS}, s{sHEAD}, 448
    s_add_u32 s{sVS}, s{sVS}, {VF}
    s_waitcnt vmcnt(0)
    """)
    for i in range(16):
        a(f"v_mov_b32 v{O+i}, 0")
    a.label("att_fb_loop")
    a(f"""
    buffer_load_dwordx4 {vr(K, 4)}, v{vL16}, {sr4(S_WS)}, s{sKS} offen{SC}
    buffer_load_dwordx4 {vr(K+4, 4)}, v{vL16}, {sr4(S_WS)}, s{sKS} offen offset:1024{SC}
    s_mov_b64 exec, s[{sVM}:{sVM+1}]
    buffer_load_dwordx4 {vr(V, 4)}, v{avV0}, {sr4(S_WS)}, s{sVS} offen{SC}
    buffer_load_dwordx4 {vr(V+4, 4)}, v{avV1}, {sr4(S_WS)}, s{sVS} offen{SC}
    s_mov_b64 exec, -1
    s_waitcnt vmcnt(0)
    {MFMA} {vr(sc, 16)}, {vr(K, 4)}, {vr(Q, 4)}, 0
    {MFMA} {vr(sc, 16)}, {vr(K+4, 4)}, {vr(Q+4, 4)}, {vr(sc, 16)}
    s_nop 15
    v_max3_f32 v{vMn}, v{vMo}, v{sc}, v{sc+1}
    """)
    for i in range(2, 16, 2):
        a(f"v_max3_f32 v{vMn}, v{vMn}, v{sc+i}, v{sc+i+1}")
    a(f"""
    v_mov_b32 v{vT0}, v{vMn}
    s_nop 1
    v_permlane32_swap_b32 v{vMn}, v{vT0}
    v_max_f32 v{vMn}, v{vMn}, v{vT0}
    v_sub_f32 v{vAl}, v{vMo}, v{vMn}
    v_exp_f32 v{vAl}, v{vAl}
    v_mov_b32 v{vMo}, v{vMn}
    """)
    for i in range(16):
        a(f"v_sub_f32 v{sc+i}, v{sc+i}, v{vMn}")
    for i in range(16):
        a(f"v_exp_f32 v{sc+i}, v{sc+i}")
    for i in range(16):
        a(f"v_mul_f32 v{O+i}, v{O+i}, v{vAl}")
    for i in range(8):
        a(f"v_cvt_pk_bf16_f32 v{P+i}, v{sc+2*i}, v{sc+2*i+1}")
    a(f"""
    s_nop 1
    {MFMA} {vr(O, 16)}, {vr(V, 4)}, {vr(P, 4)}, {vr(O, 16)}
    {MFMA} {vr(O, 16)}, {vr(V+4, 4)}, {vr(P+4, 4)}, {vr(O, 16)}
    s_add_u32 s{sKS}, s{sKS}, {TQ}
    s_add_u32 s{sVS}, s{sVS}, {TQ}
    s_add_u32 s{sIT}, s{sIT}, 1
    s_cmp_lt_u32 s{sIT}, 64
    s_cbranch_scc1 att_fb_loop
    s_nop 15
    v_mov_b32 v{vT0}, v{O+12}
    v_mov_b32 v{vT1}, v{O+12}
    s_nop 1
    v_permlane32_swap_b32 v{vT0}, v{vT1}
    v_rcp_f32 v{vT2}, v{vT1}
    s_nop 0
    s_branch att_final
    """)


def build():
    ref = open(f"cdna_kernels/{NAME}.s.ref").read().split("\n")
    hdr = [l for l in ref if l.startswith(";") and "@launch" not in l and "Override launch" not in l and "grid=ceil" not in l]
    body = gen()
    out = "\n".join(hdr) + "\n"
    out += f"; @launch grid=(256,1,1) block=(512,1,1) lds={LDS_BYTES}\n"
    out += '.amdgcn_target "amdgcn-amd-amdhsa--gfx950"\n.text\n'
    out += f".globl {KNAME}\n.p2align 8\n.type {KNAME},@function\n{KNAME}:\n"
    out += body
    out += f""".section .rodata,"a"
.p2align 6
.amdhsa_kernel {KNAME}
  .amdhsa_next_free_vgpr 256
  .amdhsa_next_free_sgpr 102
  .amdhsa_accum_offset 256
  .amdhsa_group_segment_fixed_size 0
  .amdhsa_kernarg_size 88
  .amdhsa_user_sgpr_count 2
  .amdhsa_user_sgpr_kernarg_segment_ptr 1
  .amdhsa_system_sgpr_workgroup_id_x 1
.end_amdhsa_kernel
"""
    return out


if __name__ == "__main__":
    path = sys.argv[1]
    open(path, "w").write(build())
    print("wrote", path)
```

```python
import math, struct, sys, os

NAME = "gated_mix__softmax_full_mha__swiglu_ffn__prompt"
KNAME = NAME + "_kernel"
INSTR = int(os.environ.get("INSTR", "0"))
OPT = os.environ.get("OPT", "nopf")

QF = 0
KF = 2 << 20
VF = 4 << 20
TQ = 28672
HF = 6 << 20
OF = 14 << 20
GF = 16 << 20
FQ = (16 << 20) + 0x10000
FH = (16 << 20) + 0x20000
FHB = (16 << 20) + 0x28000
MBOX = 40960 - 49152
FO = (16 << 20) + 0x40000
TSF = 24 << 20
WS_BYTES = 32 << 20
OOB = 0x40000000
SLEEP_Q = int(os.environ.get('SLQ', '6'))
SLEEP_H = int(os.environ.get('SLH', '8'))
SLEEP_O = int(os.environ.get('SLO', '2'))
LOG2E = math.log2(math.e)
MFMA = "v_mfma_f32_32x32x16_bf16"
SC = " sc1"
SLOT = 40960
LDS_BYTES = 4 * SLOT
MERGE = 49152
CNT = 155648
SPIN_MAX = 1 << int(os.environ.get('SPINLOG', '18'))


def ring_addr(s):
    if s <= 6:
        return 98304 + s * 8192
    if s == 7:
        return 32768
    if s <= 11:
        return (s - 8) * 8192
    return 40960


def wslot(i):
    return i % 13 if i < 28 else [2, 3, 4, 5, 8, 9, 10, 11][i - 28]


def f32bits(x):
    return struct.unpack("<I", struct.pack("<f", x))[0]


class Asm:
    def __init__(self):
        self.lines = []

    def __call__(self, s):
        for ln in s.strip("\n").split("\n"):
            ln = ln.strip()
            if not ln:
                continue
            self.lines.append(ln if ln.endswith(":") else "    " + ln)

    def label(self, l):
        self.lines.append(l + ":")

    def text(self):
        return "\n".join(self.lines) + "\n"


def vr(base, n):
    return f"v[{base}:{base + n - 1}]"


def sr4(b):
    return f"s[{b}:{b+3}]"


def srd(a, sd, sb, nbytes):
    a(f"""
    s_mov_b32 s{sd}, s{sb}
    s_mov_b32 s{sd+1}, s{sb+1}
    s_mov_b32 s{sd+2}, {nbytes}
    s_mov_b32 s{sd+3}, 0x00020000
    """)


def L(s):
    return [l.strip() for l in s.strip("\n").split("\n") if l.strip()]


HA_ST = int(os.environ.get('HA_ST', '13'))
EARLY_P = int(os.environ.get('EARLY_P', '24'))
QKB = int(os.environ.get('QKB', '11'))
FPER = int(os.environ.get('FPER', '4'))
PF2_ST = int(os.environ.get('PF2_ST', '0'))
PF3_ST = int(os.environ.get('PF3_ST', '2'))
GDA = int(os.environ.get('GDA', '10'))
AROT = int(os.environ.get('AROT', '15'))
WP_ST = int(os.environ.get('WP_ST', '5'))
TLB_STR = int(os.environ.get('TLB_STR', str(1 << 20)))
TLB_WG = int(os.environ.get('TLB_WG', '0'))
GPRE = int(os.environ.get('GPRE', '4'))
GB_AT = int(os.environ.get('GB_AT', '8'))

S_X, S_B0, S_G, S_U, S_WS, S_TMP, S_WD, S_DBG = 4, 8, 12, 16, 20, 24, 28, 32
S_WO, S_OUT = 8, 12
sMI, sJ, sW, sR, sGRP = 36, 37, 38, 39, 40
sKQ = 39
sT0, sT1, sT2 = 42, 43, 44
sMX, sMB, sSO = 45, 46, 47
sSC, sTILE, sHOFF, sHOFF2, sQKO = 48, 49, 50, 51, 52
sWB, sM0, sFHO, sFQB, sP0, sOK = 53, 54, 55, 56, 57, 58
sNONCE, sNL2E, sC8, sI32, sSPIN = 59, 60, 61, 62, 63
P_X, P_WQKV, P_WO, P_WG, P_WU, P_WD, P_GW, P_OUT, P_DBG, P_WS = 64, 66, 68, 72, 74, 76, 78, 80, 82, 84
ST0 = 86
sHEAD, sQB, sMT, sNT = 70, 71, 41, 3
sFHA = 65
vLane, vL16 = 1, 2
vT0, vT1, vT2, vT3 = 3, 4, 5, 6
STAMPS = os.environ.get("STAMPS", "").split(",")[:6]


AMP = os.environ.get("AMP", "")


def stamp(a, name):
    if AMP and name == "start": a("s_memrealtime s[86:87]")
    if AMP and name == AMP: a("s_memrealtime s[88:89]")
    if INSTR and (name == "start" or name in STAMPS):
        idx = 0 if name == "start" else 1 + STAMPS.index(name)
        a(f"s_memtime s[{ST0+2*idx}:{ST0+2*idx+1}]")
    if INSTR and "R" + name in STAMPS:
        idx = 1 + STAMPS.index("R" + name)
        a(f"s_memrealtime s[{ST0+2*idx}:{ST0+2*idx+1}]")


def amp_end(a, tag):
    if not AMP: return
    stamp(a, "end")
    a(f"""
    s_cmp_lg_u32 s2, {os.environ.get("AMPG", "40")}
    s_cbranch_scc1 k_end
    s_cmp_lg_u32 s{sW}, {os.environ.get("AMPW", "4")}
    s_cbranch_scc1 k_end
    s_memrealtime s[90:91]
    s_waitcnt lgkmcnt(0)
    s_sub_u32 s88, s88, s86
    """)
    a.label(f"amp_spin{tag}")
    a(f"""
    s_memrealtime s[92:93]
    s_waitcnt lgkmcnt(0)
    s_sub_u32 s92, s92, s90
    s_cmp_lt_u32 s92, s88
    s_cbranch_scc1 amp_spin{tag}
    """)


def stamp_flush(a, vtmp=3):
    if not INSTR:
        return
    a(f"""
    s_memtime s[4:5]
    s_memrealtime s[6:7]
    s_lshl_b32 s3, s2, 3
    s_add_u32 s3, s3, s{sW}
    s_lshl_b32 s3, s3, 7
    s_add_u32 s3, s3, {TSF}
    v_mov_b32 v{vtmp+1}, 0
    s_waitcnt lgkmcnt(0)
    """)
    regs = [ST0 + 2 * i for i in range(8)] + [4, 6]
    for i, r in enumerate(regs):
        a(f"""
        v_mov_b32 v{vtmp}, s{r}
        buffer_store_dword v{vtmp}, v{vtmp+1}, {sr4(S_WS)}, s3 offen offset:{4*i}
        s_nop 1
        """)


def flag_store(a, soff_reg, vtmp):
    a(f"""
    v_mov_b32 v{vtmp}, s{sNONCE}
    v_mov_b32 v{vtmp+1}, 0
    s_mov_b64 exec, 1
    buffer_store_dword v{vtmp}, v{vtmp+1}, {sr4(S_WS)}, s{soff_reg} offen{SC}
    s_mov_b64 exec, -1
    """)


_uid = [0]


def poll(a, addrs, soff, vtmp, sleep):
    _uid[0] += 1
    u = _uid[0]
    a(f"s_mov_b32 s{sSPIN}, {SPIN_MAX}")
    a.label(f"poll_ld{u}")
    for i, va in enumerate(addrs):
        a(f"buffer_load_dword v{vtmp+i}, v{va}, {sr4(S_WS)}, s{soff} offen{SC}")
    a("s_waitcnt vmcnt(0)")
    poll_cmp(a, len(addrs), vtmp)
    a(f"""
    s_sub_u32 s{sSPIN}, s{sSPIN}, 1
    s_cbranch_scc1 poll_done{u}
    s_cmp_eq_u64 vcc, 0
    s_cbranch_scc1 poll_done{u}
    s_sleep {sleep}
    s_branch poll_ld{u}
    """)
    a.label(f"poll_done{u}")


def poll_cmp(a, n, vtmp):
    if n == 1:
        a(f"v_cmp_ne_u32 vcc, s{sNONCE}, v{vtmp}")
    else:
        a(f"""
        v_xor_b32 v{vtmp}, s{sNONCE}, v{vtmp}
        v_xor_b32 v{vtmp+1}, s{sNONCE}, v{vtmp+1}
        v_or_b32 v{vtmp}, v{vtmp}, v{vtmp+1}
        v_cmp_ne_u32 vcc, 0, v{vtmp}
        """)


def lds_set(a, off, val, vtmp):
    a(f"""
    v_mov_b32 v{vtmp}, {CNT + off}
    v_mov_b32 v{vtmp+1}, {val}
    ds_write_b32 v{vtmp}, v{vtmp+1}
    """)


def lds_wait(a, off, vtmp, cond, sleep=1):
    _uid[0] += 1
    u = _uid[0]
    a(f"v_mov_b32 v{vtmp}, {CNT + off}")
    a.label(f"lw{u}")
    a(f"""
    ds_read_b32 v{vtmp+1}, v{vtmp}
    s_waitcnt lgkmcnt(0)
    v_readfirstlane_b32 s{sT0}, v{vtmp+1}
    """)
    a(f"s_cmp_lg_u32 s{sT0}, 0" if cond == "ne0" else f"s_cmp_eq_u32 s{sT0}, {cond[2:]}")
    a(f"""
    s_cbranch_scc1 lwd{u}
    s_sleep {sleep}
    s_branch lw{u}
    """)
    a.label(f"lwd{u}")


class VM:
    def __init__(self):
        self.q = []

    def add(self, tag):
        self.q.append(tag)

    def wait(self, tags, counts=None):
        idx = max([i for i, t in enumerate(self.q) if t in tags], default=-1)
        for t in tags:
            assert t in self.q, (t, self.q)
            if counts:
                assert self.q.count(t) == counts(t), (t, self.q)
        n = len(self.q) - 1 - idx
        assert n <= 63
        return n

    def copy(self):
        v = VM(); v.q = list(self.q); return v


vFLA, vPOL, vFQO, vF1, vNON = 7, 9, 11, 12, 13
vDW = 31


def flag1(a, soff):
    return f"buffer_store_dword v{vNON}, v{vF1}, {sr4(S_WS)}, s{soff} offen{SC}"


AQ, AO, AS, AKV, AP, ATMP = 16, 48, [112, 128], 144, 208, 224
avG, avM, avONE = 14, 15, 216
sME, sMO = 24, 26
sKB, sVB, sTI, sKS, sVS, sIT = 45, 46, 47, 48, 52, 49


avV0, avV1 = 217, 218
HBR = 240


def hb_stores():
    return [f"buffer_store_dwordx4 {vr(HBR+4*i, 4)}, v{vL16}, {sr4(S_WS)}, s{sHOFF2} offen offset:{1024*i}{SC}" for i in range(2)]

sVM = 30


def kv_adv():
    return [f"s_mul_i32 s{sVS}, s{sTI}, {TQ}", f"s_add_u32 s{sKS}, s{sVS}, s{sKB}",
            f"s_add_u32 s{sVS}, s{sVS}, s{sVB}",
            f"s_add_u32 s{sTI}, s{sTI}, 1", f"s_and_b32 s{sTI}, s{sTI}, 15"]


def kv_load(buf, part, vv=(None, None)):
    if part < 2:
        return [f"buffer_load_dwordx4 {vr(AKV+16*buf+4*part, 4)}, v{vL16}, {sr4(S_WS)}, s{sKS} offen offset:{1024*part}{SC}"]
    return [f"s_mov_b64 exec, s[{sVM}:{sVM+1}]",
            f"buffer_load_dwordx4 {vr(AKV+16*buf+4*part, 4)}, v{vv[part-2]}, {sr4(S_WS)}, s{sVS} offen{SC}",
            "s_mov_b64 exec, -1"]


def att_loads():
    vm = VM()
    o1 = L(f"""
    s_lshl_b32 s{sT1}, s{sP0}, 9
    s_lshl_b32 s{sT2}, s{sQB}, 2
    s_add_u32 s{sT2}, s{sT2}, s{sKQ}
    s_mul_i32 s{sT0}, s{sT2}, {TQ}
    s_add_u32 s{sT0}, s{sT0}, s{sT1}
    buffer_load_dwordx4 {vr(AQ, 4)}, v{vL16}, {sr4(S_WS)}, s{sT0} offen{SC}
    buffer_load_dwordx4 {vr(AQ+4, 4)}, v{vL16}, {sr4(S_WS)}, s{sT0} offen offset:1024{SC}
    s_mul_i32 s{sVB}, s{sKQ}, {16 * TQ}
    s_add_u32 s{sKB}, s{sVB}, s{sT1}
    s_add_u32 s{sKB}, s{sKB}, {KF}
    s_mul_i32 s{sT0}, s{sHEAD}, 448
    s_add_u32 s{sVB}, s{sVB}, s{sT0}
    s_add_u32 s{sVB}, s{sVB}, {VF}
    s_and_b32 s{sTI}, s{sQB}, {AROT}
    s_mov_b32 s{sVM}, 0x0fffffff
    s_mov_b32 s{sVM+1}, 0x0fffffff
    v_lshrrev_b32 v{vT2}, 5, v{vLane}
    v_mul_u32_u24 v{vT2}, {7168 - 512}, v{vT2}
    v_add_u32 v{vT2}, v{vT2}, v{vL16}
    v_add_u32 v{vT3}, 14336, v{vT2}
    """)
    vm.add(("q",)); vm.add(("q",))
    o2 = []
    for t in range(3):
        o = o1 if t == 0 else o2
        o += kv_adv()
        for p in range(4):
            if p == 2:
                o += [f"v_mov_b32 v{AKV+16*t+8+i}, 0x3f803f80" for i in range(8)]
            o.append(kv_load(t, p, (vT2, vT3)))
            vm.add(("kv", t, p))
    flat = lambda o: [y for x in o for y in (x if isinstance(x, list) else [x])]
    return o1, o2, vm, flat


def wk_off(i):
    return 8 * (i % 14) + 4 * (i // 14)


def gen():
    a = Asm()
    vDX0, vDX1, vDB0, vDG, vDU = 7, 8, 9, 10, 11
    vAX = 14
    vAW = 18
    vST = 22
    vN, vR4, vC, vRow = 26, 27, 28, 29
    X, ACC, WF = 32, 144, 224
    PFR, vPFL, sPFI = ACC + 60, 30, 58

    stamp(a, "start")
    if INSTR: a("s_memrealtime s[100:101]")
    if "dbgt" in OPT: a("s_memtime s[86:87]\ns_memrealtime s[88:89]")
    a(f"""
    s_cmp_ge_u32 s2, 256
    s_cbranch_scc1 k_end
    """)
    if os.environ.get("DELAY"):
        a(f"""
        s_cmp_lg_u32 s2, {os.environ["DELAY"]}
        s_cbranch_scc1 k_nodelay
        s_mov_b32 s3, 12
        """)
        a.label("k_delay")
        a("s_sleep 100\ns_sub_u32 s3, s3, 1\ns_cmp_lg_u32 s3, 0\ns_cbranch_scc1 k_delay")
        a.label("k_nodelay")
    a(f"""
    s_load_dwordx16 s[64:79], s[0:1], 0
    s_load_dwordx4 s[80:83], s[0:1], 64
    s_load_dwordx2 s[84:85], s[0:1], 80
    v_and_b32 v{vLane}, 63, v0
    v_lshrrev_b32 v{vT0}, 6, v0
    s_and_b32 s{sC8}, s2, 7
    s_lshr_b32 s{sI32}, s2, 3
    v_readfirstlane_b32 s{sW}, v{vT0}
    s_lshr_b32 s{sT1}, s{sC8}, 1
    s_mul_i32 s{sT0}, s{sT1}, 28
    s_sub_u32 s{sT0}, s{sT0}, 4
    s_lshl_b32 s{sT1}, s{sT1}, 2
    s_add_u32 s{sT1}, s{sT1}, 112
    s_cmp_lt_u32 s{sI32}, 4
    s_cselect_b32 s{sT0}, s{sT1}, s{sT0}
    s_add_u32 s{sT0}, s{sT0}, s{sI32}
    s_lshr_b32 s{sJ}, s{sT0}, 3
    s_and_b32 s{sT0}, s{sT0}, 7
    s_and_b32 s{sMI}, s{sC8}, 1
    s_lshl_b32 s{sMI}, s{sMI}, 3
    s_add_u32 s{sMI}, s{sMI}, s{sT0}
    v_lshrrev_b32 v{vT0}, 3, v{vLane}
    v_lshrrev_b32 v{vT1}, 4, v{vLane}
    v_and_b32 v{vT2}, 7, v{vLane}
    v_xor_b32 v{vT3}, v{vT2}, v{vT1}
    s_lshl_b32 s{sT0}, s{sMI}, 7
    s_lshl_b32 s{sT1}, s{sW}, 4
    s_add_u32 s{sT0}, s{sT0}, s{sT1}
    v_add_u32 v{vDX0}, s{sT0}, v{vT0}
    v_mul_u32_u24 v{vDX0}, 896, v{vDX0}
    v_lshl_add_u32 v{vDX0}, v{vT3}, 4, v{vDX0}
    v_xor_b32 v{vDX1}, 64, v{vDX0}
    v_add_u32 v{vDX1}, 7168, v{vDX1}
    v_and_b32 v{vT3}, 1, v{vT1}
    v_lshlrev_b32 v{vT3}, 2, v{vT3}
    v_xor_b32 v{vT3}, v{vT3}, v{vT2}
    v_lshlrev_b32 v{vT3}, 4, v{vT3}
    v_mul_u32_u24 v{vDW}, 896, v{vT0}
    v_add_u32 v{vDW}, v{vDW}, v{vT3}
    s_lshl_b32 s{sT0}, s{sW}, 3
    v_add_u32 v{vT0}, s{sT0}, v{vT0}
    v_mul_u32_u24 v{vDB0}, 2688, v{vT0}
    v_add_u32 v{vDB0}, v{vDB0}, v{vT3}
    s_lshl_b32 s{sMX}, s{sW}, 11
    s_lshl_b32 s{sMB}, s{sW}, 10
    s_add_u32 s{sMB}, s{sMB}, 16384
    v_lshlrev_b32 v{vL16}, 4, v{vLane}
    s_mov_b32 s{S_X+2}, {2048 * 448 * 2}
    s_mov_b32 s{S_X+3}, 0x00020000
    s_mov_b32 s{S_B0+2}, {448 * 1344 * 2}
    s_mov_b32 s{S_B0+3}, 0x00020000
    s_mov_b32 s{S_G+3}, 0x00020000
    s_mov_b32 s{S_U+3}, 0x00020000
    s_cmp_ge_u32 s{sJ}, 14
    s_cbranch_scc1 k1_v
    """)

    vm = None

    def emit_group(g):
        for l in g[0]:
            a(l)
        vm.add(g[1])

    def dma(m0base, m0off, vaddr, srdb, soff):
        return [f"s_add_u32 m0, s{m0base}, {m0off & 0xffffffff}", f"s_mov_b32 s{sSO}, {soff}",
                f"buffer_load_dwordx4 v{vaddr}, {sr4(srdb)}, s{sSO} offen lds"]

    def common_setup2(tg):
        srd(a, S_WS, P_WS, WS_BYTES)
        srd(a, S_DBG, P_DBG, 256)
        srd(a, S_WD, P_WD, 1792 * 448 * 2)
        a(f"""
        s_or_b32 s{sT0}, s2, s{sW}
        s_cmp_lg_u32 s{sT0}, 0
        s_cbranch_scc1 k_nononce_{tg}
        s_memrealtime s[{sSC}:{sSC+1}]
        v_mov_b32 v{vT1}, 0
        s_waitcnt lgkmcnt(0)
        s_or_b32 s{sT0}, s{sSC}, 0x80000000
        v_mov_b32 v{vT0}, s{sT0}
        s_mov_b64 exec, 1
        buffer_store_dword v{vT0}, v{vT1}, {sr4(S_DBG)}, 0 offen{SC}
        s_mov_b64 exec, -1
        """)
        a.label(f"k_nononce_{tg}")
        if "nopf" not in OPT:
            a(f"""
            s_lshl_b32 s{sPFI}, s2, 3
            s_add_u32 s{sPFI}, s{sPFI}, s{sW}
            s_lshl_b32 s{sT0}, s{sPFI}, 10
            s_mov_b32 s{S_TMP+3}, 0x00020000
            buffer_load_dwordx4 {vr(PFR, 4)}, v{vL16}, {sr4(S_X)}, s{sT0} offen
            v_lshrrev_b32 v{vPFL}, 3, v{vLane}
            v_lshlrev_b32 v{vPFL}, 7, v{vPFL}
            v_add_u32 v{vPFL}, v{vPFL}, v{vL16}
            s_cmp_lt_u32 s{sPFI}, 840
            s_cbranch_scc1 k_pf_q_{tg}
            s_cmp_lt_u32 s{sPFI}, 1400
            s_cselect_b32 s{S_TMP}, s{P_WG}, s{P_WU}
            s_cselect_b32 s{S_TMP+1}, s{P_WG+1}, s{P_WU+1}
            s_cselect_b32 s{sT0}, 0, 560
            s_mov_b32 s{S_TMP+2}, {448 * 1792 * 2}
            s_sub_u32 s{sT0}, s{sPFI}, s{sT0}
            s_lshl_b32 s{sT0}, s{sT0}, 11
            s_add_u32 s{sT0}, s{sT0}, {(128 * 3584 - 840 * 2048) & 0xffffffff}
            buffer_load_dwordx4 {vr(PFR+4, 4)}, v{vPFL}, {sr4(S_TMP)}, s{sT0} offen
            s_branch k_pf_d_{tg}
            """)
            a.label(f"k_pf_q_{tg}")
            a(f"""
            s_add_u32 s{sT0}, s{sT0}, {128 * 2688}
            buffer_load_dwordx4 {vr(PFR+4, 4)}, v{vL16}, {sr4(S_B0)}, s{sT0} offen
            """)
            a.label(f"k_pf_d_{tg}")
            vm.add(("PF",)); vm.add(("PF",))
        if "notlb" not in OPT:
            a(f"""
            s_cmp_lg_u32 s{sW}, 1
            s_cbranch_scc1 k_notlb_{tg}
            s_mov_b32 s{sT0}, {TLB_STR}
            v_mul_lo_u32 v{vT0}, v{vLane}, s{sT0}
            s_mul_i32 s{sT1}, s{sI32}, {TLB_WG}
            s_mov_b32 s{S_TMP}, s{P_WS}
            s_mov_b32 s{S_TMP+1}, s{P_WS+1}
            s_mov_b32 s{S_TMP+2}, {(16 << 20) + 0x50000}
            s_mov_b32 s{S_TMP+3}, 0x00020000
            buffer_load_dword v{ACC+76}, v{vT0}, {sr4(S_TMP)}, s{sT1} offen
            s_mov_b32 s{S_TMP}, s{P_OUT}
            s_mov_b32 s{S_TMP+1}, s{P_OUT+1}
            s_mov_b32 s{S_TMP+2}, {2048 * 448 * 2}
            buffer_load_dword v{ACC+77}, v{vT0}, {sr4(S_TMP)}, s{sT1} offen
            buffer_load_dword v{ACC+78}, v{vT0}, {sr4(S_WD)}, s{sT1} offen
            s_mov_b32 s{S_TMP}, s{P_WO}
            s_mov_b32 s{S_TMP+1}, s{P_WO+1}
            s_mov_b32 s{S_TMP+2}, {448 * 448 * 2}
            buffer_load_dword v{ACC+79}, v{vT0}, {sr4(S_TMP)}, s{sT1} offen
            """)
            a.label(f"k_notlb_{tg}")
        if "nocp" not in OPT:
            a(f"""
            s_cmp_ge_u32 s{sI32}, 5
            s_cbranch_scc1 k_nocp_{tg}
            s_lshl_b32 s{sT0}, s{sI32}, 3
            s_add_u32 s{sT0}, s{sT0}, s{sW}
            s_lshl_b32 s{sT0}, s{sT0}, 10
            v_add_u32 v{vT0}, s{sT0}, v{vL16}
            v_min_u32 v{vT0}, k_end-{KNAME}-12, v{vT0}
            s_getpc_b64 s[{sSC}:{sSC+1}]
            """)
            a.label(f"k_pc_{tg}")
            a(f"""
            s_sub_u32 s{sSC}, s{sSC}, k_pc_{tg}-{KNAME}
            s_subb_u32 s{sSC+1}, s{sSC+1}, 0
            global_load_dwordx4 {vr(ACC+76, 4)}, v{vT0}, s[{sSC}:{sSC+1}]
            """)
            a.label(f"k_nocp_{tg}")
        a(f"""
        s_and_b32 s{sR}, s{sW}, 3
        s_lshr_b32 s{sGRP}, s{sW}, 2
        s_lshl_b32 s{sTILE}, s{sMI}, 2
        s_add_u32 s{sTILE}, s{sTILE}, s{sR}
        v_and_b32 v{vT0}, 31, v{vLane}
        v_lshrrev_b32 v{vT1}, 5, v{vLane}
        v_bfe_u32 v{vT2}, v{vLane}, 1, 3
        v_xor_b32 v{vT2}, v{vT2}, v{vT1}
        s_lshl_b32 s{sT0}, s{sR}, 12
        v_lshlrev_b32 v{vT3}, 7, v{vT0}
        v_lshl_add_u32 v{vT3}, v{vT2}, 4, v{vT3}
        v_add_u32 v{vAX}, s{sT0}, v{vT3}
        v_xor_b32 v{vAX+1}, 32, v{vAX}
        v_xor_b32 v{vAX+2}, 64, v{vAX}
        v_xor_b32 v{vAX+3}, 96, v{vAX}
        v_bfe_u32 v{vN}, v{vLane}, 4, 1
        v_bfe_u32 v{vR4}, v{vLane}, 2, 2
        v_and_b32 v{vC}, 3, v{vLane}
        v_lshl_add_u32 v{vRow}, v{vT1}, 3, v{vR4}
        v_and_b32 v{vT2}, 2, v{vR4}
        v_xor_b32 v{vT2}, v{vT2}, v{vN}
        s_lshl_b32 s{sT0}, s{sGRP}, 1
        v_xor_b32 v{vT2}, s{sT0}, v{vT2}
        v_lshlrev_b32 v{vT3}, 7, v{vRow}
        v_lshl_add_u32 v{vT3}, v{vT2}, 5, v{vT3}
        v_lshl_add_u32 v{vT3}, v{vC}, 3, v{vT3}
        v_add_u32 v{vAW}, 16384, v{vT3}
        s_mov_b32 s{sNL2E}, {f32bits(-LOG2E):#x}
        """)

    def flag_addr(vtype, vfla, vfqo):
        t0, t1, t2, t3 = vN, vR4, vC, vRow
        o = L(f"""
        s_lshl_b32 s{sHEAD}, s{sC8}, 1
        s_and_b32 s{sT2}, s{sI32}, 1
        s_add_u32 s{sHEAD}, s{sHEAD}, s{sT2}
        s_lshr_b32 s{sQB}, s{sI32}, 1
        s_lshl_b32 s{sMT}, s{sC8}, 2
        s_and_b32 s{sT2}, s{sI32}, 3
        s_add_u32 s{sMT}, s{sMT}, s{sT2}
        s_lshr_b32 s{sNT}, s{sI32}, 2
        s_mul_i32 s{sP0}, s{sHEAD}, 7
        s_lshr_b32 s{sP0}, s{sP0}, 1
        s_lshl_b32 s{sFQB}, s{sHEAD}, 12
        s_add_u32 s{sFQB}, s{sFQB}, {FQ}
        s_lshr_b32 s{sT1}, s{sQB}, 2
        s_lshl_b32 s{sT1}, s{sT1}, 7
        s_and_b32 s{sT2}, s{sQB}, 3
        s_lshl_b32 s{sT2}, s{sT2}, 2
        s_add_u32 s{sT1}, s{sT1}, s{sT2}
        s_add_u32 s{sT1}, s{sT1}, 2048
        v_lshrrev_b32 v{t0}, 2, v{vLane}
        v_and_b32 v{t1}, 3, v{vLane}
        v_lshlrev_b32 v{t1}, 2, v{t1}
        v_lshl_add_u32 v{vfla}, v{t0}, 7, v{t1}
        v_and_b32 v{t0}, 1, v{vLane}
        v_lshl_add_u32 v{vfla+1}, v{t0}, 9, s{sT1}
        v_and_b32 v{t0}, 15, v{vLane}
        v_lshrrev_b32 v{t1}, 4, v{vLane}
        v_lshlrev_b32 v{t3}, 12, v{t0}
        v_lshl_add_u32 v{t3}, v{t1}, 9, v{t3}
        s_lshr_b32 s{sT1}, s{sMI}, 2
        s_lshl_b32 s{sT1}, s{sT1}, 7
        s_and_b32 s{sT2}, s{sMI}, 3
        s_lshl_b32 s{sT2}, s{sT2}, 2
        s_add_u32 s{sT1}, s{sT1}, s{sT2}
        """)
        if not vtype:
            o += L(f"""
            s_add_u32 s{sT2}, s{sJ}, 1
            s_lshr_b32 s{sT2}, s{sT2}, 3
            v_mul_u32_u24 v{t2}, 7, v{t0}
            v_lshrrev_b32 v{t2}, 1, v{t2}
            v_mad_u32_u24 v{t2}, v{t1}, 3, v{t2}
            v_lshrrev_b32 v{t2}, 3, v{t2}
            v_lshrrev_b32 v{t1}, 1, v{t1}
            v_lshl_add_u32 v{t2}, v{t1}, 6, v{t2}
            v_mad_u32_u24 v{t2}, s{sT2}, 7, v{t2}
            v_cmp_eq_u32 vcc, s{sJ}, v{t2}
            s_lshl_b32 s{sT2}, s{sT2}, 11
            s_sub_u32 s{sT1}, s{sT1}, s{sT2}
            s_add_u32 s{sT1}, s{sT1}, 2048
            """)
        else:
            o += L(f"""
            v_add_u32 v{t2}, 14, v{t1}
            v_cmp_eq_u32 vcc, s{sJ}, v{t2}
            s_add_u32 s{sT1}, s{sT1}, 1024
            """)
        o += L(f"""
        v_add_u32 v{t3}, s{sT1}, v{t3}
        v_mov_b32 v{t0}, {OOB}
        v_cndmask_b32 v{vfqo}, v{t0}, v{t3}, vcc
        v_cmp_eq_u32 vcc, 0, v{vLane}
        s_lshr_b32 s{sFHO}, s{sTILE}, 1
        s_lshl_b32 s{sFHO}, s{sFHO}, 10
        v_cndmask_b32 v{vF1}, v{t0}, v{vLane}, vcc
        s_lshr_b32 s{sT1}, s{sJ}, 1
        s_lshl_b32 s{sT1}, s{sT1}, 7
        s_add_u32 s{sFHO}, s{sFHO}, s{sT1}
        s_and_b32 s{sT1}, s{sJ}, 1
        s_lshl_b32 s{sT1}, s{sT1}, 3
        s_add_u32 s{sFHO}, s{sFHO}, s{sT1}
        s_and_b32 s{sT1}, s{sR}, 1
        s_lshl_b32 s{sT1}, s{sT1}, 2
        s_add_u32 s{sFHO}, s{sFHO}, s{sT1}
        s_add_u32 s{sFHO}, s{sFHO}, {FHB}
        s_lshl_b32 s{sFHA}, s{sMI}, 9
        s_lshr_b32 s{sT1}, s{sJ}, 2
        s_lshl_b32 s{sT1}, s{sT1}, 7
        s_add_u32 s{sFHA}, s{sFHA}, s{sT1}
        s_and_b32 s{sT1}, s{sJ}, 3
        s_lshl_b32 s{sT1}, s{sT1}, 2
        s_add_u32 s{sFHA}, s{sFHA}, s{sT1}
        s_add_u32 s{sFHA}, s{sFHA}, {FH}
        s_lshl_b32 s{sM0}, s{sNT}, 7
        s_mul_i32 s{sWB}, s{sR}, {16 * 896}
        s_add_u32 s{sWB}, s{sWB}, s{sM0}
        s_lshl_b32 s{sM0}, s{sR}, 11
        """)
        return o

    def nonce_get(tag):
        a(f"""
        v_readfirstlane_b32 s{sNONCE}, v{vNON}
        v_lshlrev_b32 v{vT0}, 2, v{vLane}
        v_add_u32 v{vT0}, {CNT}, v{vT0}
        v_mov_b32 v{vT1}, 0
        s_cmp_lg_u32 s{sNONCE}, 0
        s_cbranch_scc1 k1_nonce_ok_{tag}
        """)
        a.label(f"k1_nonce_spin_{tag}")
        a(f"""
        buffer_load_dword v{vNON}, v{vT1}, {sr4(S_DBG)}, 0 offen{SC}
        s_waitcnt vmcnt(0)
        v_readfirstlane_b32 s{sNONCE}, v{vNON}
        s_sleep 4
        s_cmp_eq_u32 s{sNONCE}, 0
        s_cbranch_scc1 k1_nonce_spin_{tag}
        """)
        a.label(f"k1_nonce_ok_{tag}")
        a(f"ds_write_b32 v{vT0}, v{vT1}")

    def pf2():
        return (L(f"""
        s_cmp_lt_u32 s{sPFI}, 784
        s_cselect_b32 s{S_TMP}, s{P_WG}, s{P_WU}
        s_cselect_b32 s{S_TMP+1}, s{P_WG+1}, s{P_WU+1}
        s_cselect_b32 s{sT0}, 0, 784
        s_mov_b32 s{S_TMP+2}, {448 * 1792 * 2}
        s_sub_u32 s{sT0}, s{sPFI}, s{sT0}
        s_lshl_b32 s{sT0}, s{sT0}, 11
        buffer_load_dwordx4 {vr(PFR+8, 4)}, v{vPFL}, {sr4(S_TMP)}, s{sT0} offen offset:128
        """), ("PF",))

    def pf3():
        return (L(f"""
        s_cmp_lt_u32 s{sPFI}, 1568
        s_cselect_b32 s{S_TMP}, s{P_WD}, s{P_WO}
        s_cselect_b32 s{S_TMP+1}, s{P_WD+1}, s{P_WO+1}
        s_cselect_b32 s{sT0}, 0, 1568
        s_cselect_b32 s{S_TMP+2}, s{S_WD+2}, {448 * 448 * 2}
        s_sub_u32 s{sT0}, s{sPFI}, s{sT0}
        s_lshl_b32 s{sT0}, s{sT0}, 10
        buffer_load_dwordx4 {vr(PFR+12, 4)}, v{vL16}, {sr4(S_TMP)}, s{sT0} offen
        """), ("PF",))

    nonce_ld = ([f"v_mov_b32 v{vNON}, 0", f"buffer_load_dword v{vNON}, v{vNON}, {sr4(S_DBG)}, 0 offen{SC}"], ("N",))

    def wpref(i):
        ra = ring_addr(i % 13)
        return [f"s_add_u32 m0, s{sM0}, {ra}", f"s_add_u32 s{sT0}, s{sWB}, {wk_off(i) * 16 * 896}",
                f"buffer_load_dwordx4 v{vDW}, {sr4(S_WD)}, s{sT0} offen lds",
                f"s_add_u32 m0, s{sM0}, {ra + 1024}", f"s_add_u32 s{sT0}, s{sT0}, {8 * 896}",
                f"buffer_load_dwordx4 v{vDW}, {sr4(S_WD)}, s{sT0} offen lds"]

    abase = [0]

    def set_base(nb, regs):
        out = []
        if nb != abase[0]:
            d = nb - abase[0]
            for r in regs:
                out.append(f"v_add_u32 v{r}, {d}, v{r}" if d > 0 else f"v_subrev_u32 v{r}, {-d}, v{r}")
            abase[0] = nb
        return out

    def emit(x):
        if isinstance(x, tuple):
            a(x[1]); vm.add((x[0],))
        else:
            a(x)

    vm = VM()
    cnts = lambda t: {"A": 5, "B": 2}[t[0]] if t[0] in ("A", "B") else vm.q.count(t)
    a(f"""
    s_lshl_b32 s{sT0}, s{sJ}, 7
    v_add_u32 v{vDB0}, s{sT0}, v{vDB0}
    v_mul_u32_u24 v{vDG}, 3584, v{vT0}
    s_lshl_b32 s{sT0}, s{sJ}, 8
    v_add3_u32 v{vDG}, v{vDG}, v{vT3}, s{sT0}
    v_xor_b32 v{vDU}, 32, v{vDG}
    s_mov_b32 s{S_G+2}, {448 * 1792 * 2}
    s_mov_b32 s{S_U+2}, {448 * 1792 * 2}
    s_waitcnt lgkmcnt(0)
    s_mov_b64 s[{S_X}:{S_X+1}], s[{P_X}:{P_X+1}]
    s_mov_b64 s[{S_B0}:{S_B0+1}], s[{P_WQKV}:{P_WQKV+1}]
    s_mov_b64 s[{S_G}:{S_G+1}], s[{P_WG}:{P_WG+1}]
    s_mov_b64 s[{S_U}:{S_U+1}], s[{P_WU}:{P_WU+1}]
    """)

    def fA(st):
        b = (st % 4) * SLOT
        g = [dma(sMX, b, vDX0, S_X, st * 128), dma(sMX, b + 1024, vDX1, S_X, st * 128),
             dma(sMB, b, vDB0, S_B0, st * 64 * 2688), dma(sMB, b + 8192, vDG, S_G, st * 64 * 3584),
             dma(sMB, b + 16384, vDU, S_U, st * 64 * 3584)]
        return [(x, ("A", st)) for x in g]

    def bslot(sb):
        return ((3 + sb // 2) % 4) * SLOT + (sb % 2) * 16384

    def fB(sb):
        b = bslot(sb) - 16384
        g = [dma(sMB, b, vDG, S_G, sb * 64 * 3584 + 128), dma(sMB, b + 8192, vDU, S_U, sb * 64 * 3584 + 128)]
        return [(x, ("B", sb)) for x in g]

    for g in fA(0):
        emit_group(g)
    a("s_barrier")
    for g in fA(1):
        emit_group(g)
    common_setup2("f")
    a(f"""
    v_lshl_add_u32 v{vAW+1}, v{vN}, 13, v{vT3}
    v_add_u32 v{vAW+1}, {16384 + 8192}, v{vAW+1}
    v_xor_b32 v{vAW+2}, 32, v{vAW+1}
    s_cmp_ge_u32 s{sJ}, 7
    s_cselect_b32 s{sT1}, {KF - 7 * 4096}, {QF}
    s_cselect_b32 s{sSC}, 1.0, {f32bits(28 ** -0.5 * LOG2E):#x}
    s_lshl_b32 s{sT2}, s{sJ}, 12
    s_add_u32 s{sT1}, s{sT1}, s{sT2}
    s_lshl_b32 s{sT2}, s{sGRP}, 11
    s_add_u32 s{sT1}, s{sT1}, s{sT2}
    s_mul_i32 s{sQKO}, s{sTILE}, {TQ}
    s_add_u32 s{sQKO}, s{sQKO}, s{sT1}
    s_mul_i32 s{sHOFF}, s{sTILE}, 112
    s_lshl_b32 s{sT1}, s{sJ}, 3
    s_add_u32 s{sHOFF}, s{sHOFF}, s{sT1}
    s_lshl_b32 s{sT1}, s{sGRP}, 1
    s_add_u32 s{sHOFF}, s{sHOFF}, s{sT1}
    s_lshl_b32 s{sHOFF}, s{sHOFF}, 10
    s_add_u32 s{sHOFF}, s{sHOFF}, {HF}
    s_add_u32 s{sHOFF2}, s{sHOFF}, 4096
    """)
    WA = [WF, WF + 12, ACC + 48]
    NB = 4
    WB = [WF + 24, WF + 16, WF + 8, WF]

    def readsA(ks):
        st, s = ks // 4, ks % 4
        slot = st % 4
        out = set_base((slot // 2) * 2 * SLOT, [vAX, vAX+1, vAX+2, vAX+3, vAW, vAW+1, vAW+2])
        off = (slot % 2) * SLOT
        f = WA[ks % 3]
        out.append(f"ds_read_b128 {vr(X+4*ks, 4)}, v{vAX+s} offset:{off}")
        for t in range(3):
            for q in range(2):
                out.append(f"ds_read_b64_tr_b16 {vr(f+4*t+2*q, 2)}, v{vAW+t} offset:{off + (16*s + 4*q) * 128}")
        return out

    def readsB(ks):
        sb, s = ks // 4, ks % 4
        b = bslot(sb)
        f = WB[ks % NB]
        b32 = b - b % 32768
        off = b - b32
        out = set_base(b32 - 24576, [vAW+1, vAW+2])
        for t in range(2):
            for q in range(2):
                out.append(f"ds_read_b64_tr_b16 {vr(f+4*t+2*q, 2)}, v{vAW+1+t} offset:{off + (16*s + 4*q) * 128}")
        return out

    def epi_ffn(acc, ko, dst=None):
        g, u = acc, acc + 8
        dst = g if dst is None else dst
        o = []
        for i in range(8):
            o.append(f"v_mul_f32 v{u+i}, v{g+i}, v{u+i}")
            o.append(f"v_mul_f32 v{g+i}, s{sNL2E}, v{g+i}")
        for i in range(8):
            o.append(f"v_exp_f32 v{g+i}, v{g+i}")
        for i in range(8):
            o.append(f"v_add_f32 v{g+i}, 1.0, v{g+i}")
        for i in range(8):
            o.append(f"v_rcp_f32 v{g+i}, v{g+i}")
        for i in range(8):
            o.append(f"v_mul_f32 v{u+i}, v{u+i}, v{g+i}")
        for i in range(4):
            o.append(f"v_cvt_pk_bf16_f32 v{dst+i}, v{u+2*i}, v{u+2*i+1}")
        so, off = (sHOFF, ko) if ko < 4 else (sHOFF2, ko - 4)
        o.append(("H", f"buffer_store_dwordx4 {vr(dst, 4)}, v{vL16}, {sr4(S_WS)}, s{so} offen offset:{1024*off}{SC}"))
        return o

    def epi_qk():
        o = []
        for i in range(8):
            o.append(f"v_mul_f32 v{ACC+2*i}, s{sSC}, v{ACC+2*i}")
            o.append(f"v_mul_f32 v{ACC+2*i+1}, s{sSC}, v{ACC+2*i+1}")
            o.append(f"v_cvt_pk_bf16_f32 v{ACC+i}, v{ACC+2*i}, v{ACC+2*i+1}")
        o.append("s_nop 1")
        for hh in range(2):
            b = ACC + 4 * hh
            o.append(f"v_permlane32_swap_b32 v{b}, v{b+2}")
            o.append(f"v_permlane32_swap_b32 v{b+1}, v{b+3}")
            o.append(("QK", f"buffer_store_dwordx4 {vr(b, 4)}, v{vL16}, {sr4(S_WS)}, s{sQKO} offen offset:{1024*hh}{SC}"))
        return o

    abase[0] = 0
    a(f"s_waitcnt vmcnt({vm.wait({('A', 0)}, cnts)})\ns_barrier")
    stamp(a, "p1_first")
    for ks in range(2):
        for r in readsA(ks):
            a(r)
    pend = fA(2) + fA(3)
    vFQf = vST
    fillA = flag_addr(False, vFLA, vFQf)
    for ks in range(28):
        st, s = ks // 4, ks % 4
        f = WA[ks % 3]
        m = [f"{MFMA} {vr(ACC+16*t, 16)}, {vr(f+4*t, 4)}, {vr(X+4*ks, 4)}, {'0' if ks == 0 else vr(ACC+16*t, 16)}" for t in range(3)]
        if s == 2:
            need = {("A", st + 1)} if st < 6 else {("B", 0), ("B", 1), ("B", 2), ("B", 3), ("N",)}
            a(f"s_waitcnt vmcnt({vm.wait(need, cnts)}) lgkmcnt(0)")
            if st == 6:
                nonce_get("f")
            a("s_barrier")
            stamp(a, f"p1_a{st}")
            if st + 4 <= 6:
                pend += fA(st + 4)
            else:
                i0 = 2 * (st - 3)
                pend += fB(i0) + (fB(i0 + 1) if i0 + 1 < 7 else [])
            if st == 2:
                pend.append(nonce_ld)
            if "nopf" not in OPT and st == PF2_ST: pend.append(pf2())
            if "nopf" not in OPT and st == PF3_ST: pend.append(pf3())
        elif ks < 27:
            a("s_waitcnt lgkmcnt(7)")
        else:
            a("s_waitcnt lgkmcnt(4)")
        r = readsA(ks + 2) if ks + 2 < 28 else readsB(ks + 2 - 28)
        k = len(r) - 4 if ks + 2 < 28 else len(r) - 2
        a(m[0])
        for x in r[:k]:
            a(x)
        a(m[1])
        for x in r[k:]:
            a(x)
        a(m[2])
        if ks >= 16:
            assert vm.q.count(("A", 6)) == 5
            for _ in range(7):
                if fillA: a(fillA.pop(0))
        nd = 2 if (len(pend) > 4 or st < 1) else 1
        for _ in range(nd):
            if pend:
                emit_group(pend.pop(0))
    assert not fillA
    stamp(a, "p1_aend")
    for x in readsB(2):
        a(x)
    ea, eb = epi_ffn(ACC + 16, 0, X + 16), epi_ffn(ACC + 32, 1, X + 20)
    fillq = ["s_nop 3"] + epi_qk()
    fill = ea + eb
    wq = [0, 1, 2, 7, 3, 4, 5, 6]
    sWH, sMH2 = sMX, sOK
    for ks in range(28):
        f = WB[ks % NB]
        m = [f"{MFMA} {vr(ACC+48+16*t, 16)}, {vr(f+4*t, 4)}, {vr(X+4*ks, 4)}, {'0' if ks == 0 else vr(ACC+48+16*t, 16)}" for t in range(2)]
        nxt = ks + NB - 1
        if ks == QKB:
            need = {5: {("B", 2), ("B", 3), ("N",)}, QKB: {("B", 4), ("B", 5), ("B", 6), ("QK",)}, 17: set()}[ks]
            if ks == QKB: assert vm.q.count(("QK",)) == 2 and QKB <= 13
            if need: a(f"s_waitcnt vmcnt({vm.wait(need, cnts)})")
            a("s_barrier")
            stamp(a, {5: "p1_b2", QKB: "p1_b4", 17: "p1_b5"}[ks])
            if ks == QKB:
                a(f"""
                s_cmp_lg_u32 s{sW}, 7
                s_cbranch_scc1 k1_noflag_f
                s_mov_b32 s{sT0}, {FQ}
                buffer_store_dword v{vNON}, v{vFQf}, {sr4(S_WS)}, s{sT0} offen{SC}
                """)
                a.label("k1_noflag_f")
        stamp(a, f"pb{ks}")
        a(f"s_waitcnt lgkmcnt({min(NB - 2, 27 - ks) * 4})")
        r = readsB(nxt) if nxt < 28 else []

        def dofill():
            if ks < 1: return
            if fillq:
                for _ in range(5):
                    if fillq: emit(fillq.pop(0))
            else:
                for _ in range(FPER):
                    if fill and isinstance(fill[0], tuple) and ks < HA_ST and len(fill) > 1:
                        fill[0], fill[1] = fill[1], fill[0]
                    if fill and not (isinstance(fill[0], tuple) and ks < HA_ST): emit(fill.pop(0))
        a(m[0])
        for x in r[:len(r) - 2]:
            a(x)
        if pend:
            emit_group(pend.pop(0))
        dofill()
        a(m[1])
        for x in r[len(r) - 2:]:
            a(x)
        dofill()
        if wq and ks >= WP_ST and (ring_addr(wq[0]) < 122880 or ks >= QKB) and not pend:
            i = wq.pop(0)
            if i == 0:
                a(f"""
                s_mul_i32 s{sWH}, s{sGRP}, {8 * 896}
                s_add_u32 s{sWH}, s{sWH}, s{sWB}
                s_cmp_ge_u32 s{sI32}, 28
                s_cselect_b32 s{sWH}, {OOB}, s{sWH}
                s_lshl_b32 s{sMH2}, s{sGRP}, 10
                s_add_u32 s{sMH2}, s{sMH2}, s{sM0}
                """)
            a(f"""
            s_add_u32 m0, s{sMH2}, {ring_addr(i)}
            s_add_u32 s{sT0}, s{sWH}, {wk_off(i) * 16 * 896}
            buffer_load_dwordx4 v{vDW}, {sr4(S_WD)}, s{sT0} offen lds
            """)
            vm.add(("WP",))
        if ks == EARLY_P:
            a(f"""
            s_cmp_lg_u32 s{sW}, 0
            s_cbranch_scc1 k1_nopoll
            buffer_load_dword v{vPOL}, v{vFLA}, {sr4(S_WS)}, s{sFQB} offen{SC}
            buffer_load_dword v{vPOL+1}, v{vFLA+1}, {sr4(S_WS)}, s{sFQB} offen{SC}
            """)
            a.label("k1_nopoll")
    assert not fill and not pend and not wq
    stamp(a, "pb28")
    a(f"""
    s_cmp_lg_u32 s{sW}, 0
    s_cbranch_scc1 k1_nochk
    s_waitcnt vmcnt(0)
    """)
    poll_cmp(a, 2, vPOL)
    a(f"""
    s_cmp_eq_u64 vcc, 0
    s_cselect_b32 s{sT0}, 1, 0
    """)
    lds_set(a, 4, f"s{sT0}", vT0)
    a("s_waitcnt lgkmcnt(0)")
    a.label("k1_nochk")
    a(f"""
    s_cmp_ge_u32 s{sW}, 4
    s_cbranch_scc1 k1_nodr
    s_waitcnt vmcnt(0)
    """)
    a.label("k1_nodr")
    a(f"""
    s_barrier
    s_mov_b32 s{sOK}, 0
    s_cmp_ge_u32 s{sW}, 4
    s_cbranch_scc1 k1_epi
    v_mov_b32 v{vT0}, {CNT + 4}
    ds_read_b32 v{vT1}, v{vT0}
    s_waitcnt lgkmcnt(0)
    v_readfirstlane_b32 s{sOK}, v{vT1}
    s_cmp_eq_u32 s{sOK}, 1
    s_cbranch_scc1 k1_early
    s_cmp_lg_u32 s{sW}, 0
    s_cbranch_scc1 k1_epi
    buffer_load_dword v{vPOL}, v{vFLA}, {sr4(S_WS)}, s{sFQB} offen{SC}
    buffer_load_dword v{vPOL+1}, v{vFLA+1}, {sr4(S_WS)}, s{sFQB} offen{SC}
    s_branch k1_epi
    """)
    a.label("k1_early")
    stamp(a, "x_go")
    o1, o2, _, flat = att_loads()
    for x in flat(o1):
        a(x)
    stamp(a, "p1_bend")
    e0, e1 = epi_ffn(ACC + 48, 4, HBR), epi_ffn(ACC + 64, 5, HBR + 4)
    ev = e0[:-1] + e1[:-1]
    step = len(ev) // len(o2)
    for x in o2:
        for _ in range(step):
            a(ev.pop(0))
        for y in flat([x]):
            a(y)
    for x in ev:
        a(x)
    stamp(a, "p1_end")
    a("s_branch att_main")
    a.label("k1_epi")
    a("s_nop 7")
    stamp(a, "p1_bend")
    for x in e0[:-1] + e1[:-1]:
        a(x)
    stamp(a, "p1_end")
    a(f"""
    s_cmp_ge_u32 s{sW}, 4
    s_cbranch_scc1 gemm_role_f
    s_cmp_lg_u32 s{sW}, 0
    s_cbranch_scc1 aq_lw
    s_waitcnt vmcnt(0)
    """)
    poll_cmp(a, 2, vPOL)
    a(f"""
    s_cmp_eq_u64 vcc, 0
    s_cbranch_scc1 aq_ok
    s_branch att_spin
    """)

    a.label("k1_v")
    vm = VM()
    cntv = lambda t: {"A": 5, "B": 1}[t[0]] if t[0] in ("A", "B") else vm.q.count(t)
    GWL = CNT + 1024
    a(f"""
    v_add_u32 v{vDU}, {(896 + 192) * 2}, v{vDB0}
    s_cmp_eq_u32 s{sJ}, 14
    s_cselect_b32 s{sT0}, 0, 512
    s_add_u32 s{sT0}, s{sT0}, {896 * 2}
    v_add_u32 v{vDB0}, s{sT0}, v{vDB0}
    s_mov_b32 s{S_U+2}, {448 * 2}
    s_waitcnt lgkmcnt(0)
    s_mov_b64 s[{S_X}:{S_X+1}], s[{P_X}:{P_X+1}]
    s_mov_b64 s[{S_B0}:{S_B0+1}], s[{P_WQKV}:{P_WQKV+1}]
    s_mov_b64 s[{S_U}:{S_U+1}], s[{P_GW}:{P_GW+1}]
    """)

    def vA(st):
        b = (st % 4) * SLOT
        g = [dma(sMX, b, vDX0, S_X, st * 128), dma(sMX, b + 1024, vDX1, S_X, st * 128)]
        for bi in range(3):
            g.append(dma(sMB, b + 8192 * bi, vDB0, S_B0, st * 64 * 2688 + 128 * bi))
        return [(x, ("A", st)) for x in g]

    def vbslot(sb):
        return 3 * SLOT + sb * 8192 if sb < 4 else (sb - 4) * 8192

    def vB(sb):
        return [(dma(sMB, vbslot(sb) - 16384, vDU, S_B0, sb * 64 * 2688), ("B", sb))]

    gw_ld = ([f"s_mov_b32 m0, {GWL}", "s_nop 0", f"buffer_load_dwordx4 v{vL16}, {sr4(S_U)}, 0 offen lds"], ("GW",))

    for g in vA(0):
        emit_group(g)
    a("s_barrier")
    for g in vA(1):
        emit_group(g)
    common_setup2("v")
    vAZ = vAW + 3
    a(f"""
    v_add_u32 v{vAW+1}, 8192, v{vAW}
    v_add_u32 v{vAW+2}, 16384, v{vAW}
    s_sub_u32 s{sT1}, s{sJ}, 14
    s_lshl_b32 s{sT1}, s{sT1}, 6
    v_xor_b32 v{vAZ}, s{sT1}, v{vAW}
    v_lshlrev_b32 v{vST+1}, 4, v{vT1}
    v_add_u32 v{vST+1}, {GWL}, v{vST+1}
    s_cmp_eq_u32 s{sJ}, 14
    s_cselect_b32 s{sT1}, 0, 4096
    s_lshl_b32 s{sT2}, s{sGRP}, 9
    s_add_u32 s{sT1}, s{sT1}, s{sT2}
    s_mul_i32 s{sHOFF}, s{sTILE}, {TQ}
    s_add_u32 s{sHOFF}, s{sHOFF}, s{sT1}
    s_add_u32 s{sHOFF}, s{sHOFF}, {VF}
    s_add_u32 s{sHOFF2}, s{sHOFF}, 14336
    v_mul_u32_u24 v{vST}, {7168 - 512}, v{vT1}
    v_add_u32 v{vST}, v{vST}, v{vL16}
    """)

    def readsVA(ks):
        st, s = ks // 4, ks % 4
        slot = st % 4
        out = set_base((slot // 2) * 2 * SLOT, [vAX, vAX+1, vAX+2, vAX+3, vAW, vAW+1, vAW+2, vAZ])
        off = (slot % 2) * SLOT
        f = WA[ks % 3]
        out.append(f"ds_read_b128 {vr(X+4*ks, 4)}, v{vAX+s} offset:{off}")
        for t in range(3):
            for q in range(2):
                out.append(f"ds_read_b64_tr_b16 {vr(f+4*t+2*q, 2)}, v{vAW+t} offset:{off + (16*s + 4*q) * 128}")
        return out

    NBV = 6
    WBV = [WF + 24, WF + 28, WF + 16, WF + 20, WF + 12, WF + 8]

    def readsVB(ks, z):
        sb, s = ks // 4, ks % 4
        f = WBV[ks % NBV]
        if z:
            return [f"ds_read_b128 {vr(f, 4)}, v{vST+1} offset:{32*ks}"]
        b = vbslot(sb)
        nb = (3 * SLOT if sb < 4 else 0)
        out = set_base(nb - 16384, [vAZ])
        off = b - nb
        for q in range(2):
            out.append(f"ds_read_b64_tr_b16 {vr(f+2*q, 2)}, v{vAZ} offset:{off + (16*s + 4*q) * 128}")
        return out

    def epi_v(acc, bi):
        o = [f"v_cvt_pk_bf16_f32 v{acc+i}, v{acc+2*i}, v{acc+2*i+1}" for i in range(8)]
        o.append(f"buffer_store_dwordx4 {vr(acc, 4)}, v{vST}, {sr4(S_WS)}, s{sHOFF} offen offset:{1024*bi}{SC}")
        o.append(f"buffer_store_dwordx4 {vr(acc+4, 4)}, v{vST}, {sr4(S_WS)}, s{sHOFF2} offen offset:{1024*bi}{SC}")
        return o

    abase[0] = 0
    a(f"s_waitcnt vmcnt({vm.wait({('A', 0)}, cntv)})\ns_barrier")
    stamp(a, "p1_first")
    for ks in range(2):
        for r in readsVA(ks):
            a(r)
    pend = vA(2) + vA(3)
    fillA = flag_addr(True, vFLA, vDG)
    for ks in range(28):
        st, s = ks // 4, ks % 4
        f = WA[ks % 3]
        m = [f"{MFMA} {vr(ACC+16*t, 16)}, {vr(X+4*ks, 4)}, {vr(f+4*t, 4)}, {'0' if ks == 0 else vr(ACC+16*t, 16)}" for t in range(3)]
        if s == 2:
            need = {("A", st + 1)} if st < 6 else {("B", x) for x in range(7)} | {("N",), ("GW",)}
            a(f"s_waitcnt vmcnt({vm.wait(need, cntv)}) lgkmcnt(0)")
            if st == 6:
                nonce_get("v")
            a("s_barrier")
            if st + 4 <= 6:
                pend += vA(st + 4)
            elif st == 3:
                pend += vB(0) + vB(1) + vB(2) + vB(3)
            elif st == 4:
                pend += vB(4) + vB(5) + vB(6) + [gw_ld]
            if st == 2:
                pend.append(nonce_ld)
            if "nopf" not in OPT and st == PF2_ST: pend.append(pf2())
            if "nopf" not in OPT and st == PF3_ST: pend.append(pf3())
        elif ks < 27:
            a("s_waitcnt lgkmcnt(7)")
        r = readsVA(ks + 2) if ks + 2 < 28 else []
        k = max(len(r) - 4, 0)
        a(m[0])
        for x in r[:k]:
            a(x)
        a(m[1])
        for x in r[k:]:
            a(x)
        a(m[2])
        if ks >= 16:
            assert vm.q.count(("A", 6)) == 5
            for _ in range(7):
                if fillA: a(fillA.pop(0))
        nd = 2 if (len(pend) > 4 or st < 1) else 1
        for _ in range(nd):
            if pend:
                emit_group(pend.pop(0))
    assert not fillA and not pend
    stamp(a, "p1_aend")
    VB = ACC + 48

    def passVB(z, fill):
        nrd = 1 if z else 2
        for ks in range(NBV - 1):
            for x in readsVB(ks, z):
                a(x)
        for ks in range(28):
            f = WBV[ks % NBV]
            c = vr(VB, 16)
            ops = f"{vr(f, 4)}, {vr(X+4*ks, 4)}" if z else f"{vr(X+4*ks, 4)}, {vr(f, 4)}"
            a(f"s_waitcnt lgkmcnt({min(NBV - 2, 27 - ks) * nrd})")
            a(f"{MFMA} {c}, {ops}, {'0' if ks == 0 else c}")
            if ks + NBV - 1 < 28:
                for x in readsVB(ks + NBV - 1, z):
                    a(x)
            for _ in range(3):
                if fill: a(fill.pop(0))
        assert not fill

    a(f"s_cmp_eq_u32 s{sGRP}, 1\ns_cbranch_scc1 k1_vg1")
    passVB(False, ["s_nop 1"] + epi_v(ACC, 0) + epi_v(ACC + 16, 1) + epi_v(ACC + 32, 2))
    a(f"""
    s_mul_i32 s{sHOFF}, s{sTILE}, {TQ}
    s_lshl_b32 s{sT1}, s{sJ}, 9
    s_add_u32 s{sHOFF}, s{sHOFF}, s{sT1}
    s_add_u32 s{sHOFF}, s{sHOFF}, {VF + 192 * 16 - 14 * 512}
    s_add_u32 s{sHOFF2}, s{sHOFF}, 14336
    s_nop 7
    """)
    for x in epi_v(VB, 0):
        a(x)
    stamp(a, "p1_bend")
    a(f"""
    s_waitcnt vmcnt(0)
    s_barrier
    """)
    stamp(a, "p1_end")
    a(f"""
    s_cmp_lg_u32 s{sW}, 3
    s_cbranch_scc1 k1_noflag_v
    s_mov_b32 s{sT0}, {FQ}
    buffer_store_dword v{vNON}, v{vDG}, {sr4(S_WS)}, s{sT0} offen{SC}
    """)
    a(flag1(a, sFHA))
    a.label("k1_noflag_v")
    a("s_branch att_spin")
    a.label("k1_vg1")
    a("s_nop 7")
    for x in epi_v(ACC, 0) + epi_v(ACC + 16, 1) + epi_v(ACC + 32, 2):
        a(x)
    stamp(a, "p1_bend")
    a(f"""
    s_waitcnt vmcnt(0)
    s_barrier
    """)
    stamp(a, "p1_end")
    a(f"s_mov_b32 s{sHOFF2}, {OOB}\ns_cmp_eq_u32 s{sJ}, 14\ns_cbranch_scc1 gemm_role")
    passVB(True, [])
    t = WF
    a(f"""
    s_nop 7
    s_nop 3
    v_mul_f32 v{t}, s{sNL2E}, v{VB}
    v_exp_f32 v{t}, v{t}
    v_and_b32 v{t+1}, 31, v{vLane}
    v_add_f32 v{t}, 1.0, v{t}
    v_rcp_f32 v{t}, v{t}
    v_lshlrev_b32 v{t+1}, 2, v{t+1}
    s_lshl_b32 s{sT0}, s{sTILE}, 7
    s_add_u32 s{sT0}, s{sT0}, {GF}
    buffer_store_dword v{t}, v{t+1}, {sr4(S_WS)}, s{sT0} offen{SC}
    s_waitcnt vmcnt(0)
    """)
    a.label("gemm_role")
    for i in range(8):
        for x in wpref(i):
            a(x)
    a("s_branch gemm_role2")
    a.label("gemm_role_f")
    a(f"""
    v_mov_b32 v{vT0}, {CNT + 32}
    v_mov_b32 v{vT1}, 1
    s_waitcnt vmcnt(0)
    s_mov_b64 exec, 1
    ds_add_rtn_u32 v{vT1}, v{vT0}, v{vT1}
    s_mov_b64 exec, -1
    s_waitcnt lgkmcnt(0)
    v_readfirstlane_b32 s{sT0}, v{vT1}
    s_cmp_lg_u32 s{sT0}, 3
    s_cbranch_scc1 gemm_role2
    """)
    a(flag1(a, sFHA))
    a.label("gemm_role2")
    gen_gemm(a, wpref)
    gen_attention(a)
    a.label("k_end")
    a("s_endpgm")
    return a.text()


vAWr = 16
RB = [0, 98304]


def wtr_setup(a):
    a(f"""
    v_bfe_u32 v{vT0}, v{vLane}, 4, 1
    v_bfe_u32 v{vT1}, v{vLane}, 2, 2
    v_and_b32 v{vT2}, 2, v{vT1}
    v_xor_b32 v{vT2}, v{vT2}, v{vT0}
    s_and_b32 s{sT0}, s{sKQ}, 1
    s_lshl_b32 s{sT0}, s{sT0}, 1
    v_xor_b32 v{vT2}, s{sT0}, v{vT2}
    v_lshrrev_b32 v{vT3}, 5, v{vLane}
    v_lshl_add_u32 v{vT3}, v{vT3}, 2, v{vT1}
    v_lshlrev_b32 v{vT3}, 7, v{vT3}
    v_lshl_add_u32 v{vT3}, v{vT2}, 5, v{vT3}
    v_and_b32 v{vT2}, 3, v{vLane}
    v_lshl_add_u32 v{vT3}, v{vT2}, 3, v{vT3}
    v_add_u32 v{vAWr}, s{sM0}, v{vT3}
    v_xor_b32 v{vAWr+1}, 64, v{vAWr}
    v_add_u32 v{vAWr+2}, {RB[1]}, v{vAWr}
    v_add_u32 v{vAWr+3}, {RB[1]}, v{vAWr+1}
    v_mov_b32 v{vAWr+4}, v{vT3}
    """)


def wtr_reads(slot, dst):
    ra = ring_addr(slot)
    bi = max(i for i in range(2) if RB[i] <= ra)
    out = []
    for T in range(2):
        for q in range(2):
            out.append(f"ds_read_b64_tr_b16 {vr(dst+4*T+2*q, 2)}, v{vAWr+2*bi+T} offset:{ra - RB[bi] + q*1024}")
    return out


def bcast_poll(a, tag, leader, addrs, soff, vtmp, sleep, ldsoff, pre=None, lsleep=2):
    a(f"s_cmp_lg_u32 s{sW}, {leader}\ns_cbranch_scc1 {tag}_lw")
    if pre:
        pre()
    poll(a, addrs, soff, vtmp, sleep)
    a.label(f"{tag}_ok")
    lds_set(a, ldsoff, 1, vT0)
    a(f"s_branch {tag}_go")
    a.label(f"{tag}_lw")
    lds_wait(a, ldsoff, vT0, "eq1", lsleep)
    a.label(f"{tag}_go")


def gen_gemm(a, wpref):
    ACC = 64
    ACT = 128
    WFB = [32, 40]
    vA0, vA1, vG0, vFl, vFl2, vMB = 21, 22, 23, 25, 24, 26
    sA0, sB0w, sFH2, sMO2, sDONE, sNEW, sH = 45, 46, 47, 48, 49, 50, 52
    DA = GDA
    stamp(a, "x_role")
    wtr_setup(a)
    srd(a, S_WO, P_WO, 448 * 448 * 2)
    srd(a, S_OUT, P_OUT, 2048 * 448 * 2)
    a(f"""
    s_lshr_b32 s{sMO2}, s{sKQ}, 1
    s_mul_i32 s{sT0}, s{sMO2}, {112 * 1024}
    v_add_u32 v{vA0}, s{sT0}, v{vL16}
    s_sub_u32 s{sT0}, {112 * 1024}, s{sT0}
    v_add_u32 v{vA1}, s{sT0}, v{vL16}
    s_lshr_b32 s{sT1}, s{sMT}, 1
    s_lshl_b32 s{sT1}, s{sT1}, 9
    s_add_u32 s{sT1}, s{sT1}, {FH}
    s_lshl_b32 s{sFH2}, s{sMT}, 10
    s_add_u32 s{sFH2}, s{sFH2}, {FHB}
    s_mul_i32 s{sA0}, s{sMT}, 224
    s_add_u32 s{sA0}, s{sA0}, s{sKQ}
    s_lshl_b32 s{sA0}, s{sA0}, 10
    s_add_u32 s{sA0}, s{sA0}, {HF}
    s_mul_i32 s{sB0w}, s{sKQ}, {112 * 896}
    s_lshl_b32 s{sT0}, s{sNT}, 7
    s_add_u32 s{sB0w}, s{sB0w}, s{sT0}
    v_and_b32 v{vFl}, 0x1ff, v{vFLA}
    v_and_b32 v{vFl2}, 0x3ff, v{vFLA}
    s_add_u32 s{sT2}, s{sM0}, {MERGE + MBOX}
    v_add_u32 v{vMB}, s{sT2}, v{vL16}
    s_sub_u32 s{sHOFF}, s{sHOFF2}, 2048
    s_cmp_lt_u32 s{sI32}, 28
    s_cbranch_scc1 gemm_has
    """)

    def hb_all():
        lds_wait(a, 24, vT0, "eq4", 1)
        a(f"""
        ds_read_b128 {vr(HBR+8, 4)}, v{vMB}
        ds_read_b128 {vr(HBR+12, 4)}, v{vMB} offset:1024
        """)

    def hb_st():
        return hb_stores() + [f"buffer_store_dwordx4 {vr(HBR+8+4*i, 4)}, v{vL16}, {sr4(S_WS)}, s{sHOFF} offen offset:{1024*i}{SC}" for i in range(2)]
    hb_all()
    a("s_waitcnt lgkmcnt(0)")
    for x in hb_st():
        a(x)
    a("s_waitcnt vmcnt(0)")
    a(flag1(a, sFHO))
    a("s_endpgm")
    a.label("gemm_has")
    bcast_poll(a, "gA", 4, [vFl], sT1, vG0, SLEEP_H, 8)
    hb_all()
    stamp(a, "x_go"); stamp(a, "x_loop")
    vm = VM()
    for i in range(0, 8):
        vm.add(("w", i))

    def act_loads(i):
        r = ACT + 8 * (i % DA)
        a(f"""
        s_add_u32 s{sT0}, s{sA0}, {wk_off(i) * 1024}
        buffer_load_dwordx4 {vr(r, 4)}, v{vA0}, {sr4(S_WS)}, s{sT0} offen{SC}
        buffer_load_dwordx4 {vr(r+4, 4)}, v{vA1}, {sr4(S_WS)}, s{sT0} offen{SC}
        """)
        vm.add(("a", i)); vm.add(("a", i))

    def w_loads(i):
        if i < 28:
            for x in wpref(i):
                a(x)
        else:
            ra = ring_addr(wslot(i))
            off = (28 * ((i - 28) // 2) + 16 * ((i - 28) % 2)) * 896
            a(f"""
            s_add_u32 m0, s{sM0}, {ra}
            s_add_u32 s{sT0}, s{sB0w}, {off}
            buffer_load_dwordx4 v{vDW}, {sr4(S_WO)}, s{sT0} offen lds
            s_add_u32 m0, s{sM0}, {ra + 1024}
            s_add_u32 s{sT0}, s{sT0}, {8 * 896}
            buffer_load_dwordx4 v{vDW}, {sr4(S_WO)}, s{sT0} offen lds
            """)
        vm.add(("w", i)); vm.add(("w", i))

    na, nw = 0, 8
    for i in range(GPRE):
        act_loads(na); na += 1
        if nw < GPRE + 1:
            w_loads(nw); nw += 1
    a("s_waitcnt lgkmcnt(0)")
    for x in hb_st():
        a(x); vm.add(("hb",))
    a(f"s_waitcnt vmcnt({vm.wait({('w', 0)})})")
    for x in wtr_reads(0, WFB[0]):
        a(x)
    gotB = False
    for i in range(28):
        need = {("a", i)}
        if i + 1 < 28:
            need.add(("w", i + 1))
        a(f"s_waitcnt vmcnt({vm.wait(need)}) lgkmcnt(0)")
        if i + 1 < 28:
            for x in wtr_reads((i + 1) % 13, WFB[(i + 1) % 2]):
                a(x)
        for mt in range(2):
            for T in range(2):
                c = vr(ACC + 32 * mt + 16 * T, 16)
                a(f"{MFMA} {c}, {vr(WFB[i%2]+4*T, 4)}, {vr(ACT+8*(i%DA)+4*mt, 4)}, {'0' if i == 0 else c}")
        if i == GPRE:
            a(flag1(a, sFHO))
        if i == GB_AT:
            stamp(a, "g_b0")
            bcast_poll(a, "gB", 4, [vFl2], sFH2, vPOL, SLEEP_H, 12)
            stamp(a, "g_b1")
            gotB = True
            a(f"""
            v_and_b32 v{vT0}, 31, v{vLane}
            v_lshlrev_b32 v{vT0}, 2, v{vT0}
            s_lshl_b32 s{sT1}, s{sMT}, 1
            s_add_u32 s{sT1}, s{sT1}, s{sMO2}
            s_lshl_b32 s{sT1}, s{sT1}, 7
            s_add_u32 s{sT1}, s{sT1}, {GF}
            buffer_load_dword v{vG0}, v{vT0}, {sr4(S_WS)}, s{sT1} offen{SC}
            """)
            vm.add(("g",))
        for _ in range(2):
            if na < 28 and na <= i + DA and (na < 14 or gotB):
                act_loads(na); na += 1
            if nw < 36 and nw <= i + min(13, DA + 1) and (nw < 28 or wslot(nw) + 13 <= i):
                w_loads(nw); nw += 1
    assert na == 28
    while nw < 36:
        w_loads(nw); nw += 1
    stamp(a, "x_lend")
    XS = [0, 1, 6, 7]
    R, AA, SL = 128, ACC + 16, 128
    vX0, vX1, vC1, vOUT, vWa = 26, 27, 28, 30, 29

    def xaddr(reg, x):
        a(f"""
        s_xor_b32 s{sT0}, s{sKQ}, {x}
        s_lshl_b32 s{sT0}, s{sT0}, 11
        v_add_u32 v{reg}, s{sT0}, v{vL16}
        v_add_u32 v{reg+1}, {RB[1]}, v{reg}
        """)

    def xo(i):
        ra = ring_addr(XS[i // 2]) + (i % 2) * 1024
        return (vX0, ra) if ra < RB[1] else (vX1, ra - RB[1])

    def gsync(off, tag):
        a(f"""
        v_mov_b32 v{vC1}, {CNT + off}
        v_mov_b32 v{vT0}, 1
        s_waitcnt vmcnt(0) lgkmcnt(0)
        s_mov_b64 exec, 1
        ds_add_u32 v{vC1}, v{vT0}
        s_mov_b64 exec, -1
        """)
        a.label(tag)
        a(f"""
        ds_read_b32 v{vT0}, v{vC1}
        s_waitcnt lgkmcnt(0)
        v_readfirstlane_b32 s{sT0}, v{vT0}
        s_cmp_eq_u32 s{sT0}, 4
        s_cbranch_scc1 {tag}_d
        s_sleep 1
        s_branch {tag}
        """)
        a.label(f"{tag}_d")

    xaddr(vX0, 0)
    a("s_nop 7")
    for i in range(8):
        r_, o_ = xo(i)
        a(f"ds_write_b128 v{r_}, {vr(ACC+32+4*i, 4)} offset:{o_}")
    xaddr(vX0, 2)
    gsync(16, "gs1")
    for i in range(8):
        r_, o_ = xo(i)
        a(f"ds_read_b128 {vr(R+4*i, 4)}, v{r_} offset:{o_}")
    a("s_waitcnt lgkmcnt(0)")
    for i in range(16, 32):
        a(f"v_add_f32 v{ACC+i}, v{ACC+i}, v{R+i}")
    for i in range(4):
        r_, o_ = xo(i)
        a(f"ds_write_b128 v{r_}, {vr(ACC+16+4*i, 4)} offset:{o_}")
    for i in range(16):
        a(f"v_add_f32 v{ACC+i}, v{ACC+i}, v{R+i}")
    xaddr(vX0, 3)
    gsync(28, "gs2")
    for i in range(4):
        r_, o_ = xo(i)
        a(f"ds_read_b128 {vr(R+4*i, 4)}, v{r_} offset:{o_}")
    a(f"""
    v_sub_f32 v{vT2}, 1.0, v{vG0}
    s_lshl_b32 s{sT1}, s{sMT}, 1
    s_add_u32 s{sT1}, s{sT1}, s{sMO2}
    s_lshl_b32 s{sFH2}, s{sT1}, 9
    s_add_u32 s{sFH2}, s{sFH2}, {FO}
    s_lshl_b32 s{sA0}, s{sT1}, 15
    s_add_u32 s{sA0}, s{sA0}, {OF}
    s_mul_i32 s{sT2}, s{sT1}, {32 * 896}
    s_lshl_b32 s{sT1}, s{sNT}, 7
    s_add_u32 s{sT2}, s{sT2}, s{sT1}
    s_and_b32 s{sT1}, s{sKQ}, 1
    s_lshl_b32 s{sT1}, s{sT1}, 6
    s_add_u32 s{sT2}, s{sT2}, s{sT1}
    v_and_b32 v{vFl}, 31, v{vLane}
    v_mul_u32_u24 v{vOUT}, 896, v{vFl}
    v_lshrrev_b32 v{vT3}, 5, v{vLane}
    v_lshl_add_u32 v{vOUT}, v{vT3}, 4, v{vOUT}
    v_and_b32 v{vFl}, 0x1ff, v{vFLA}
    s_mov_b32 s{sDONE}, 0xffff0000
    s_mov_b32 s{sSPIN}, {SPIN_MAX}
    s_waitcnt lgkmcnt(0)
    """)
    for i in range(16):
        a(f"v_add_f32 v{ACC+i}, v{ACC+i}, v{R+i}")
    for i in range(16):
        a(f"v_mul_f32 v{ACC+i}, v{ACC+i}, v{vT2}")
        a(f"v_mov_b32 v{AA+i}, 0")
    stamp(a, "p3_poll")
    a.label("p3_poll")
    a(f"""
    buffer_load_dword v{vPOL}, v{vFl}, {sr4(S_WS)}, s{sFH2} offen{SC}
    s_waitcnt vmcnt(0)
    v_cmp_eq_u32 vcc, s{sNONCE}, v{vPOL}
    s_sub_u32 s{sSPIN}, s{sSPIN}, 1
    s_cbranch_scc1 p3_fin
    s_andn2_b32 s{sNEW}, vcc_lo, s{sDONE}
    s_cbranch_scc1 p3_batch
    s_sleep {SLEEP_O}
    s_branch p3_poll
    """)
    a.label("p3_batch")
    for k in range(4):
        o, w = SL + 16 * k, SL + 16 * k + 8
        a(f"""
        s_ff1_i32_b32 s{sH}, s{sNEW}
        s_bitset0_b32 s{sNEW}, s{sH}
        s_bitset1_b32 s{sDONE}, s{sH}
        s_lshl_b32 s{sT0}, s{sH}, 11
        s_add_u32 s{sT0}, s{sT0}, s{sA0}
        buffer_load_dwordx4 {vr(o, 4)}, v{vL16}, {sr4(S_WS)}, s{sT0} offen{SC}
        buffer_load_dwordx4 {vr(o+4, 4)}, v{vL16}, {sr4(S_WS)}, s{sT0} offen offset:1024{SC}
        s_bitcmp1_b32 s{sH}, 1
        s_cselect_b32 s{sT0}, 0, {ring_addr(2)}
        s_and_b32 s{sT1}, s{sH}, 1
        s_lshl_b32 s{sT1}, s{sT1}, 14
        s_add_u32 s{sT0}, s{sT0}, s{sT1}
        s_lshr_b32 s{sT1}, s{sH}, 2
        s_lshl_b32 s{sT1}, s{sT1}, 11
        s_add_u32 s{sT0}, s{sT0}, s{sT1}
        v_add_u32 v{vWa}, s{sT0}, v{vAWr+4}
        ds_read_b64_tr_b16 {vr(w, 2)}, v{vWa}
        ds_read_b64_tr_b16 {vr(w+2, 2)}, v{vWa} offset:1024
        ds_read_b64_tr_b16 {vr(w+4, 2)}, v{vWa} offset:8192
        ds_read_b64_tr_b16 {vr(w+6, 2)}, v{vWa} offset:9216
        """)
        if k == 2:
            a("s_waitcnt lgkmcnt(4)")
        if k < 3:
            a(f"s_cmp_eq_u32 s{sNEW}, 0\ns_cbranch_scc1 p3_run{k}")
    for k in range(3, -1, -1):
        o, w = SL + 16 * k, SL + 16 * k + 8
        a.label(f"p3_run{k}")
        a(f"""
        s_waitcnt vmcnt(0) lgkmcnt(0)
        {MFMA} {vr(AA, 16)}, {vr(w, 4)}, {vr(o, 4)}, {vr(AA, 16)}
        {MFMA} {vr(AA, 16)}, {vr(w+4, 4)}, {vr(o+4, 4)}, {vr(AA, 16)}
        """)
    a(f"""
    s_cmp_lg_u32 s{sNEW}, 0
    s_cbranch_scc1 p3_batch
    s_cmp_lg_u32 s{sDONE}, -1
    s_cbranch_scc1 p3_poll
    """)
    a.label("p3_fin")
    stamp(a, "p3_mfma")
    a("s_nop 7")
    t = 192
    for i in range(16):
        a(f"v_fma_f32 v{ACC+i}, v{AA+i}, v{vG0}, v{ACC+i}")
    for i in range(8):
        a(f"v_cvt_pk_bf16_f32 v{t+i}, v{ACC+2*i}, v{ACC+2*i+1}")
    a(f"""
    v_permlane32_swap_b32 v{t}, v{t+2}
    v_permlane32_swap_b32 v{t+1}, v{t+3}
    buffer_store_dwordx4 {vr(t, 4)}, v{vOUT}, {sr4(S_OUT)}, s{sT2} offen
    v_permlane32_swap_b32 v{t+4}, v{t+6}
    v_permlane32_swap_b32 v{t+5}, v{t+7}
    buffer_store_dwordx4 {vr(t+4, 4)}, v{vOUT}, {sr4(S_OUT)}, s{sT2} offen offset:32
    """)
    amp_end(a, 'g')
    if "dbgt" in OPT:
        a(f"""
        s_cmp_ge_u32 s2, 7
        s_cbranch_scc1 k_end
        s_cmp_lg_u32 s{sW}, 4
        s_cbranch_scc1 k_end
        s_memtime s[90:91]
        s_memrealtime s[92:93]
        s_waitcnt lgkmcnt(0)
        s_sub_u32 s90, s90, s86
        s_sub_u32 s92, s92, s88
        v_mov_b32 v4, s90
        v_mov_b32 v5, s92
        s_lshl_b32 s3, s2, 3
        s_add_u32 s3, s3, 8
        buffer_store_dwordx2 v[4:5], v{vF1}, {sr4(S_DBG)}, s3 offen
        """)
    stamp_flush(a)
    a("s_endpgm")


def gen_attention(a):
    Q, O, S, KV, P, TMP = AQ, AO, AS, AKV, AP, ATMP
    vG, vM, vONE = avG, avM, avONE
    a.label("att_spin")
    bcast_poll(a, "aq", 0, [vFLA, vFLA + 1], sFQB, vPOL, SLEEP_Q, 4, lsleep=1)
    stamp(a, "x_go")
    o1, o2, vm, flat = att_loads()

    def k_fix(buf):
        return [f"v_cndmask_b32 v{KV+16*buf+6}, v{KV+16*buf+6}, v{vONE}, s[{sME}:{sME+1}]",
                f"v_cndmask_b32 v{KV+16*buf}, v{KV+16*buf}, v{vONE}, s[{sMO}:{sMO+1}]"]

    zer = [f"v_mov_b32 v{O+k}, 0" for k in range(12, 64)]
    for x in flat(o1):
        a(x)
    step = len(zer) // len(o2) + 1
    zz = list(zer)
    for x in o2:
        for _ in range(step):
            if zz: a(zz.pop(0))
        for y in flat([x]):
            a(y)
    a("s_branch att_main2")
    a.label("att_main")
    for x in zer:
        a(x)
    a.label("att_main2")
    stamp(a, "x_main")
    a(f"""
    s_setprio 2
    s_lshl_b32 s{sT0}, s{sKQ}, 11
    s_add_u32 s{sT0}, s{sT0}, {MERGE}
    v_add_u32 v{TMP}, s{sT0}, v{vL16}
    v_subrev_u32 v{TMP+1}, {-MBOX}, v{TMP}
    ds_write_b128 v{TMP+1}, {vr(HBR, 4)}
    ds_write_b128 v{TMP+1}, {vr(HBR+4, 4)} offset:1024
    v_mov_b32 v{vT1}, 0
    s_and_b32 s{sT0}, s{sHEAD}, 1
    s_mov_b32 s{sME}, 0
    s_mov_b32 s{sMO+1}, 0
    s_sub_u32 s{sME+1}, s{sT0}, 1
    s_sub_u32 s{sMO}, 0, s{sT0}
    v_mov_b32 v{avV0}, v{vT2}
    v_mov_b32 v{avV1}, v{vT3}
    v_mov_b32 v{vONE}, 0x3f803f80
    v_mov_b32 v{TMP+1}, {CNT + 24}
    v_mov_b32 v{TMP+2}, 1
    s_waitcnt vmcnt({vm.wait({('q',), ('kv', 0, 1)})})
    v_cndmask_b32 v{Q}, v{Q}, v{vT1}, s[{sMO}:{sMO+1}]
    v_cndmask_b32 v{Q+1}, v{Q+1}, v{vT1}, s[{sMO}:{sMO+1}]
    v_cndmask_b32 v{Q+6}, v{Q+6}, v{vT1}, s[{sME}:{sME+1}]
    v_cndmask_b32 v{Q+7}, v{Q+7}, v{vT1}, s[{sME}:{sME+1}]
    {MFMA} {vr(S[1], 16)}, {vr(KV, 4)}, {vr(Q, 4)}, 0
    s_nop 0
    {MFMA} {vr(S[1], 16)}, {vr(KV+4, 4)}, {vr(Q+4, 4)}, {vr(S[1], 16)}
    """)
    stamp(a, "x_q")
    for x in k_fix(0):
        a(x)
    for k in range(12):
        a(f"v_mov_b32 v{O+k}, 0")
    s0 = S[1]
    a(f"""
    v_max3_f32 v{vM}, v{s0}, v{s0+1}, v{s0+2}
    v_max3_f32 v{vT0}, v{s0+3}, v{s0+4}, v{s0+5}
    v_max3_f32 v{vT2}, v{s0+6}, v{s0+7}, v{s0+8}
    v_max3_f32 v{vT3}, v{s0+9}, v{s0+10}, v{s0+11}
    v_max3_f32 v{vM}, v{vM}, v{s0+12}, v{s0+13}
    v_max3_f32 v{vT0}, v{vT0}, v{s0+14}, v{s0+15}
    v_max3_f32 v{vM}, v{vM}, v{vT2}, v{vT3}
    v_max_f32 v{vM}, v{vM}, v{vT0}
    v_mov_b32 v{vT0}, v{vM}
    s_nop 1
    v_permlane32_swap_b32 v{vM}, v{vT0}
    v_max_f32 v{vM}, v{vM}, v{vT0}
    v_sub_f32 v{vM}, 0, v{vM}
    v_cvt_pk_bf16_f32 v{vT0}, v{vM}, v{vM}
    v_lshlrev_b32 v{vT0}, 16, v{vT0}
    v_sub_f32 v{vT0}, v{vM}, v{vT0}
    v_cvt_pk_bf16_f32 v{vT0}, v{vM}, v{vT0}
    v_cndmask_b32 v{Q}, v{Q}, v{vT0}, s[{sMO}:{sMO+1}]
    v_cndmask_b32 v{Q+6}, v{Q+6}, v{vT0}, s[{sME}:{sME+1}]
    ds_write_b128 v{TMP}, {vr(Q, 4)}
    ds_write_b128 v{TMP}, {vr(Q+4, 4)} offset:1024
    {MFMA} {vr(S[0], 16)}, {vr(KV, 4)}, {vr(Q, 4)}, 0
    {MFMA} {vr(S[0], 16)}, {vr(KV+4, 4)}, {vr(Q+4, 4)}, {vr(S[0], 16)}
    s_waitcnt lgkmcnt(0)
    s_mov_b64 exec, 1
    ds_add_u32 v{TMP+1}, v{TMP+2}
    s_mov_b64 exec, -1
    """)
    for x in kv_adv()[:3]:
        a(x)
    for i in range(4):
        a(f"v_mov_b32 v{P+4+i}, 0\nv_mov_b32 v{KV+16*3+12+i}, v{vONE}\nv_mov_b32 v{KV+16*3+8+i}, v{vONE}")
    for i in range(1, 4):
        a(f"""
        s_add_u32 s{sT0}, s{sKQ}, {i}
        s_and_b32 s{sT0}, s{sT0}, 3
        s_lshl_b32 s{sT0}, s{sT0}, 11
        s_add_u32 s{sT0}, s{sT0}, {MERGE}
        v_add_u32 v{TMP+2+i}, s{sT0}, v{vL16}
        """)
    stamp(a, "x_qs")
    a.label("att_qsync")
    a(f"""
    ds_read_b32 v{TMP+2}, v{TMP+1}
    s_waitcnt lgkmcnt(0)
    v_cmp_gt_u32 vcc, 4, v{TMP+2}
    s_cbranch_vccnz att_qsync
    """)
    for i in range(1, 4):
        a(f"ds_read_b128 {vr(Q+8*i, 4)}, v{TMP+2+i}\nds_read_b128 {vr(Q+8*i+4, 4)}, v{TMP+2+i} offset:1024")
    a("s_waitcnt lgkmcnt(0)")
    a(f"s_mov_b32 s{sIT}, 0")
    stamp(a, "x_loop")
    a.label("att_loop")
    for tb in range(4):
        for q in range(4):
            ph = 4 * tb + q
            sc, sn = S[ph % 2], S[1 - ph % 2]
            pq, pb = (q - 1) % 4, (tb if q > 0 else (tb - 1) % 4)
            nq, nb = (q + 1) % 4, (tb if q < 3 else (tb + 1) % 4)
            e = [f"v_exp_f32 v{sc+i}, v{sc+i}" for i in range(16)]
            c = [f"v_cvt_pk_bf16_f32 v{P+i}, v{sc+2*i}, v{sc+2*i+1}" for i in range(8)]
            pv2 = f"{MFMA} {vr(O+16*pq, 16)}, {vr(KV+16*pb+12, 4)}, {vr(P+4, 4)}, {vr(O+16*pq, 16)}"
            pv1 = f"{MFMA} {vr(O+16*q, 16)}, {vr(KV+16*tb+8, 4)}, {vr(P, 4)}, {vr(O+16*q, 16)}"
            qk1 = f"{MFMA} {vr(sn, 16)}, {vr(KV+16*nb, 4)}, {vr(Q+8*nq, 4)}, 0"
            qk2 = f"{MFMA} {vr(sn, 16)}, {vr(KV+16*nb+4, 4)}, {vr(Q+8*nq+4, 4)}, {vr(sn, 16)}"
            adv = kv_adv()
            s_pv2, s_qk1, s_qk2, s_pv1, tail = [], [], [], [], []
            s_qk1 += kv_load((tb + 3) % 4, q, (avV0, avV1))
            if q == 0:
                s_pv2.append(adv[3])
                s_qk2.append("s_waitcnt vmcnt(9)")
                s_pv1.append(adv[4])
            if q == 1:
                if tb == 0:
                    s_pv2.append(f"s_cmp_eq_u32 s{sIT}, 3")
                    s_qk2.append(f"s_cselect_b32 s{sKB}, {OOB}, s{sKB}")
                    s_pv1.append(f"s_cselect_b32 s{sVB}, {OOB}, s{sVB}")
                if tb == 3:
                    s_pv1.append(f"s_add_u32 s{sIT}, s{sIT}, 1")
            if q == 2:
                s_pv2.append(f"s_mul_i32 s{sT0}, s{sTI}, {TQ}")
                s_qk2.append(f"s_add_u32 s{sKS}, s{sT0}, s{sKB}")
                s_pv1.append("s_waitcnt vmcnt(9)")
                tail = k_fix((tb + 1) % 4)
            if q == 3:
                s_qk2.append(f"s_add_u32 s{sVS}, s{sT0}, s{sVB}")
                if tb == 3:
                    s_pv1.append(f"s_cmp_lt_u32 s{sIT}, 4")
            seq = e[0:2] + [pv2] + s_pv2 + e[2:5] + [qk1] + s_qk1 + e[5:9] + c[0:4] + [qk2] + s_qk2 + e[9:12] + [pv1] + s_pv1 + e[12:16] + tail + c[4:8]
            for x in seq:
                a(x)
    a(f"""
    s_cbranch_scc1 att_loop
    s_nop 0
    {MFMA} {vr(O+48, 16)}, {vr(KV+16*3+12, 4)}, {vr(P+4, 4)}, {vr(O+48, 16)}
    """)
    stamp(a, "x_lend")
    for i in range(1, 4):
        a(f"""
        s_add_u32 s{sT0}, s{sKQ}, {i}
        s_and_b32 s{sT0}, s{sT0}, 3
        s_mul_i32 s{sT0}, s{sT0}, 12288
        s_add_u32 s{sT0}, s{sT0}, {MERGE + (i-1) * 4096}
        v_add_u32 v{vT0}, s{sT0}, v{vL16}
        """)
        for q in range(4):
            a(f"ds_write_b128 v{vT0}, {vr(O+16*i+4*q, 4)} offset:{1024*q}")
    a(f"""
    v_mov_b32 v{vT1}, {CNT}
    v_mov_b32 v{vT2}, 1
    s_mul_i32 s{sT0}, s{sKQ}, 12288
    s_add_u32 s{sT0}, s{sT0}, {MERGE}
    v_add_u32 v{vT0}, s{sT0}, v{vL16}
    s_lshl_b32 s{sT2}, s{sQB}, 2
    s_add_u32 s{sT2}, s{sT2}, s{sKQ}
    s_lshl_b32 s{sT2}, s{sT2}, 4
    s_add_u32 s{sT2}, s{sT2}, s{sHEAD}
    s_lshl_b32 s{sKB}, s{sT2}, 11
    s_add_u32 s{sKB}, s{sKB}, {OF}
    s_lshr_b32 s{sVB}, s{sT2}, 2
    s_lshl_b32 s{sVB}, s{sVB}, 7
    s_and_b32 s{sT2}, s{sT2}, 3
    s_lshl_b32 s{sT2}, s{sT2}, 2
    s_add_u32 s{sVB}, s{sVB}, s{sT2}
    s_add_u32 s{sVB}, s{sVB}, {FO}
    s_waitcnt lgkmcnt(0)
    s_mov_b64 exec, 1
    ds_add_u32 v{vT1}, v{vT2}
    s_mov_b64 exec, -1
    """)
    a.label("att_msync")
    a(f"""
    ds_read_b32 v{vT2}, v{vT1}
    s_waitcnt lgkmcnt(0)
    v_cmp_gt_u32 vcc, 4, v{vT2}
    s_cbranch_vccnz att_msync
    """)
    stamp(a, "x_msync")
    for i in range(12):
        a(f"ds_read_b128 {vr(O+16+4*i, 4)}, v{vT0} offset:{1024*i}")
    a(f"""
    v_cmp_lt_u32 vcc, 31, v{vLane}
    s_mov_b32 s{sT0}, {f32bits(2.0**-10):#x}
    s_mov_b32 s{sT1}, {f32bits(2.0**100):#x}
    """)
    for k in range(3):
        a(f"s_waitcnt lgkmcnt({8 - 4*k})")
        for i in range(16):
            a(f"v_add_f32 v{O+i}, v{O+i}, v{O+16+16*k+i}")
    C = O + 16
    a(f"""
    v_mov_b32 v{vT0}, v{O+12}
    v_mov_b32 v{vT1}, v{O+12}
    """)
    for k in range(4):
        a(f"v_mul_f32 v{C+k}, 0, v{O+4*k}")
    a(f"v_permlane32_swap_b32 v{vT0}, v{vT1}")
    for i in range(1, 4):
        for k in range(4):
            a(f"v_fma_f32 v{C+k}, v{O+4*k+i}, 0, v{C+k}")
    a(f"""
    v_rcp_f32 v{vT2}, v{vT1}
    v_cndmask_b32 v{C+3}, v{C+3}, v{C+2}, vcc
    v_add_f32 v{C}, v{C}, v{C+1}
    v_add_f32 v{C+2}, v{C+2}, v{C+3}
    v_add_f32 v{C}, v{C}, v{vT1}
    v_add_f32 v{C}, v{C}, v{C+2}
    v_cmp_le_f32 s[28:29], s{sT0}, v{C}
    v_cmp_ge_f32 s[16:17], s{sT1}, v{C}
    s_and_b64 s[28:29], s[28:29], s[16:17]
    s_cmp_eq_u64 s[28:29], -1
    s_cbranch_scc0 att_fallback
    """)
    a.label("att_final")
    a(f"""
    v_mov_b32 v{vT0}, 0
    """)
    for hh in range(2):
        for i in range(8):
            a(f"v_mul_f32 v{O+8*hh+i}, v{O+8*hh+i}, v{vT2}")
        for i in range(4):
            a(f"v_cvt_pk_bf16_f32 v{TMP+4*hh+i}, v{O+8*hh+2*i}, v{O+8*hh+2*i+1}")
        if hh == 1:
            a(f"v_cndmask_b32 v{TMP+6}, v{TMP+6}, v{vT0}, vcc\nv_cndmask_b32 v{TMP+7}, v{TMP+7}, v{vT0}, vcc")
        a(f"buffer_store_dwordx4 {vr(TMP+4*hh, 4)}, v{vL16}, {sr4(S_WS)}, s{sKB} offen offset:{1024*hh}{SC}")
    stamp(a, "x_ost")
    a("s_waitcnt vmcnt(0)")
    a(flag1(a, sVB))
    stamp(a, "x_b2")
    amp_end(a, 'a')
    stamp_flush(a)
    a("s_endpgm")

    a.label("att_fallback")
    sc = S[0]
    K, V = KV, KV + 8
    vMo, vMn, vAl = TMP, TMP + 1, TMP + 2
    a(f"""
    v_mov_b32 v{vT0}, 0
    v_mov_b32 v{vMo}, 0xff800000
    v_cndmask_b32 v{Q}, v{Q}, v{vT0}, s[{sMO}:{sMO+1}]
    v_cndmask_b32 v{Q+6}, v{Q+6}, v{vT0}, s[{sME}:{sME+1}]
    s_mov_b32 s{sIT}, 0
    s_lshl_b32 s{sKS}, s{sP0}, 9
    s_add_u32 s{sKS}, s{sKS}, {KF}
    s_mul_i32 s{sVS}, s{sHEAD}, 448
    s_add_u32 s{sVS}, s{sVS}, {VF}
    s_waitcnt vmcnt(0)
    """)
    for i in range(16):
        a(f"v_mov_b32 v{O+i}, 0")
    a.label("att_fb_loop")
    a(f"""
    buffer_load_dwordx4 {vr(K, 4)}, v{vL16}, {sr4(S_WS)}, s{sKS} offen{SC}
    buffer_load_dwordx4 {vr(K+4, 4)}, v{vL16}, {sr4(S_WS)}, s{sKS} offen offset:1024{SC}
    s_mov_b64 exec, s[{sVM}:{sVM+1}]
    buffer_load_dwordx4 {vr(V, 4)}, v{avV0}, {sr4(S_WS)}, s{sVS} offen{SC}
    buffer_load_dwordx4 {vr(V+4, 4)}, v{avV1}, {sr4(S_WS)}, s{sVS} offen{SC}
    s_mov_b64 exec, -1
    s_waitcnt vmcnt(0)
    {MFMA} {vr(sc, 16)}, {vr(K, 4)}, {vr(Q, 4)}, 0
    {MFMA} {vr(sc, 16)}, {vr(K+4, 4)}, {vr(Q+4, 4)}, {vr(sc, 16)}
    s_nop 15
    v_max3_f32 v{vMn}, v{vMo}, v{sc}, v{sc+1}
    """)
    for i in range(2, 16, 2):
        a(f"v_max3_f32 v{vMn}, v{vMn}, v{sc+i}, v{sc+i+1}")
    a(f"""
    v_mov_b32 v{vT0}, v{vMn}
    s_nop 1
    v_permlane32_swap_b32 v{vMn}, v{vT0}
    v_max_f32 v{vMn}, v{vMn}, v{vT0}
    v_sub_f32 v{vAl}, v{vMo}, v{vMn}
    v_exp_f32 v{vAl}, v{vAl}
    v_mov_b32 v{vMo}, v{vMn}
    """)
    for i in range(16):
        a(f"v_sub_f32 v{sc+i}, v{sc+i}, v{vMn}")
    for i in range(16):
        a(f"v_exp_f32 v{sc+i}, v{sc+i}")
    for i in range(16):
        a(f"v_mul_f32 v{O+i}, v{O+i}, v{vAl}")
    for i in range(8):
        a(f"v_cvt_pk_bf16_f32 v{P+i}, v{sc+2*i}, v{sc+2*i+1}")
    a(f"""
    s_nop 1
    {MFMA} {vr(O, 16)}, {vr(V, 4)}, {vr(P, 4)}, {vr(O, 16)}
    {MFMA} {vr(O, 16)}, {vr(V+4, 4)}, {vr(P+4, 4)}, {vr(O, 16)}
    s_add_u32 s{sKS}, s{sKS}, {TQ}
    s_add_u32 s{sVS}, s{sVS}, {TQ}
    s_add_u32 s{sIT}, s{sIT}, 1
    s_cmp_lt_u32 s{sIT}, 64
    s_cbranch_scc1 att_fb_loop
    s_nop 15
    v_mov_b32 v{vT0}, v{O+12}
    v_mov_b32 v{vT1}, v{O+12}
    s_nop 1
    v_permlane32_swap_b32 v{vT0}, v{vT1}
    v_rcp_f32 v{vT2}, v{vT1}
    s_nop 0
    s_branch att_final
    """)


def build():
    ref = open(f"cdna_kernels/{NAME}.s.ref").read().split("\n")
    hdr = [l for l in ref if l.startswith(";") and "@launch" not in l and "Override launch" not in l and "grid=ceil" not in l]
    body = gen()
    out = "\n".join(hdr) + "\n"
    out += f"; @launch grid=(256,1,1) block=(512,1,1) lds={LDS_BYTES}\n"
    out += '.amdgcn_target "amdgcn-amd-amdhsa--gfx950"\n.text\n'
    out += f".globl {KNAME}\n.p2align 8\n.type {KNAME},@function\n{KNAME}:\n"
    out += body
    out += f""".section .rodata,"a"
.p2align 6
.amdhsa_kernel {KNAME}
  .amdhsa_next_free_vgpr 256
  .amdhsa_next_free_sgpr 102
  .amdhsa_accum_offset 256
  .amdhsa_group_segment_fixed_size 0
  .amdhsa_kernarg_size 88
  .amdhsa_user_sgpr_count 2
  .amdhsa_user_sgpr_kernarg_segment_ptr 1
  .amdhsa_system_sgpr_workgroup_id_x 1
.end_amdhsa_kernel
"""
    return out


if __name__ == "__main__":
    path = sys.argv[1]
    open(path, "w").write(build())
    print("wrote", path)
```

```python
import math, struct, sys, os

NAME = "gated_mix__softmax_full_mha__swiglu_ffn__prompt"
KNAME = NAME + "_kernel"
INSTR = int(os.environ.get("INSTR", "0"))
OPT = os.environ.get("OPT", "nopf")

QF = 0
KF = 2 << 20
VF = 4 << 20
TQ = 28672
HF = 6 << 20
OF = 14 << 20
GF = 16 << 20
FQ = (16 << 20) + 0x10000
FH = (16 << 20) + 0x20000
FHB = (16 << 20) + 0x28000
MBOX = 40960 - 49152
FO = (16 << 20) + 0x40000
TSF = 24 << 20
WS_BYTES = 32 << 20
OOB = 0x40000000
SLEEP_Q = int(os.environ.get('SLQ', '6'))
SLEEP_H = int(os.environ.get('SLH', '8'))
SLEEP_O = int(os.environ.get('SLO', '2'))
LOG2E = math.log2(math.e)
MFMA = "v_mfma_f32_32x32x16_bf16"
SC = " sc1"
SLOT = 40960
LDS_BYTES = 4 * SLOT
MERGE = 49152
CNT = 155648
SPIN_MAX = 1 << int(os.environ.get('SPINLOG', '18'))


def ring_addr(s):
    if s <= 6:
        return 98304 + s * 8192
    if s == 7:
        return 32768
    if s <= 11:
        return (s - 8) * 8192
    return 40960


def wslot(i):
    return i % 13 if i < 28 else [2, 3, 4, 5, 8, 9, 10, 11][i - 28]


def f32bits(x):
    return struct.unpack("<I", struct.pack("<f", x))[0]


class Asm:
    def __init__(self):
        self.lines = []

    def __call__(self, s):
        for ln in s.strip("\n").split("\n"):
            ln = ln.strip()
            if not ln:
                continue
            self.lines.append(ln if ln.endswith(":") else "    " + ln)

    def label(self, l):
        self.lines.append(l + ":")

    def text(self):
        return "\n".join(self.lines) + "\n"


def vr(base, n):
    return f"v[{base}:{base + n - 1}]"


def sr4(b):
    return f"s[{b}:{b+3}]"


def srd(a, sd, sb, nbytes):
    a(f"""
    s_mov_b32 s{sd}, s{sb}
    s_mov_b32 s{sd+1}, s{sb+1}
    s_mov_b32 s{sd+2}, {nbytes}
    s_mov_b32 s{sd+3}, 0x00020000
    """)


def L(s):
    return [l.strip() for l in s.strip("\n").split("\n") if l.strip()]


HA_ST = int(os.environ.get('HA_ST', '13'))
EARLY_P = int(os.environ.get('EARLY_P', '24'))
QKB = int(os.environ.get('QKB', '11'))
FPER = int(os.environ.get('FPER', '4'))
PF2_ST = int(os.environ.get('PF2_ST', '0'))
PF3_ST = int(os.environ.get('PF3_ST', '2'))
GDA = int(os.environ.get('GDA', '10'))
AROT = int(os.environ.get('AROT', '15'))
WP_ST = int(os.environ.get('WP_ST', '5'))
FA_AT = int(os.environ.get('FA_AT', '24'))
GPRE = int(os.environ.get('GPRE', '4'))
GB_AT = int(os.environ.get('GB_AT', '7'))

S_X, S_B0, S_G, S_U, S_WS, S_TMP, S_WD, S_DBG = 4, 8, 12, 16, 20, 24, 28, 32
S_WO, S_OUT = 8, 12
sMI, sJ, sW, sR, sGRP = 36, 37, 38, 39, 40
sKQ = 39
sT0, sT1, sT2 = 42, 43, 44
sMX, sMB, sSO = 45, 46, 47
sSC, sTILE, sHOFF, sHOFF2, sQKO = 48, 49, 50, 51, 52
sWB, sM0, sFHO, sFQB, sP0, sOK = 53, 54, 55, 56, 57, 58
sNONCE, sNL2E, sC8, sI32, sSPIN = 59, 60, 61, 62, 63
P_X, P_WQKV, P_WO, P_WG, P_WU, P_WD, P_GW, P_OUT, P_DBG, P_WS = 64, 66, 68, 72, 74, 76, 78, 80, 82, 84
ST0 = 86
sHEAD, sQB, sMT, sNT = 70, 71, 41, 3
sFHA = 65
vLane, vL16 = 1, 2
vT0, vT1, vT2, vT3 = 3, 4, 5, 6
STAMPS = os.environ.get("STAMPS", "").split(",")[:6]


AMP = os.environ.get("AMP", "")


def stamp(a, name):
    if AMP and name == "start": a("s_memrealtime s[86:87]")
    if AMP and name == AMP: a("s_memrealtime s[88:89]")
    if INSTR and (name == "start" or name in STAMPS):
        idx = 0 if name == "start" else 1 + STAMPS.index(name)
        a(f"s_memtime s[{ST0+2*idx}:{ST0+2*idx+1}]")
    if INSTR and "R" + name in STAMPS:
        idx = 1 + STAMPS.index("R" + name)
        a(f"s_memrealtime s[{ST0+2*idx}:{ST0+2*idx+1}]")


def amp_end(a, tag):
    if not AMP: return
    stamp(a, "end")
    a(f"""
    s_cmp_lg_u32 s2, {os.environ.get("AMPG", "40")}
    s_cbranch_scc1 k_end
    s_cmp_lg_u32 s{sW}, {os.environ.get("AMPW", "4")}
    s_cbranch_scc1 k_end
    s_memrealtime s[90:91]
    s_waitcnt lgkmcnt(0)
    s_sub_u32 s88, s88, s86
    s_mul_i32 s88, s88, {os.environ.get('AMPK', '1')}
    """)
    a.label(f"amp_spin{tag}")
    a(f"""
    s_memrealtime s[92:93]
    s_waitcnt lgkmcnt(0)
    s_sub_u32 s92, s92, s90
    s_cmp_lt_u32 s92, s88
    s_cbranch_scc1 amp_spin{tag}
    """)


def stamp_flush(a, vtmp=3):
    if not INSTR:
        return
    a(f"""
    s_memtime s[4:5]
    s_memrealtime s[6:7]
    s_lshl_b32 s3, s2, 3
    s_add_u32 s3, s3, s{sW}
    s_lshl_b32 s3, s3, 7
    s_add_u32 s3, s3, {TSF}
    v_mov_b32 v{vtmp+1}, 0
    s_waitcnt lgkmcnt(0)
    """)
    regs = [ST0 + 2 * i for i in range(8)] + [4, 6]
    for i, r in enumerate(regs):
        a(f"""
        v_mov_b32 v{vtmp}, s{r}
        buffer_store_dword v{vtmp}, v{vtmp+1}, {sr4(S_WS)}, s3 offen offset:{4*i}
        s_nop 1
        """)


def flag_store(a, soff_reg, vtmp):
    a(f"""
    v_mov_b32 v{vtmp}, s{sNONCE}
    v_mov_b32 v{vtmp+1}, 0
    s_mov_b64 exec, 1
    buffer_store_dword v{vtmp}, v{vtmp+1}, {sr4(S_WS)}, s{soff_reg} offen{SC}
    s_mov_b64 exec, -1
    """)


_uid = [0]


def poll(a, addrs, soff, vtmp, sleep):
    _uid[0] += 1
    u = _uid[0]
    a(f"s_mov_b32 s{sSPIN}, {SPIN_MAX}")
    a.label(f"poll_ld{u}")
    for i, va in enumerate(addrs):
        a(f"buffer_load_dword v{vtmp+i}, v{va}, {sr4(S_WS)}, s{soff} offen{SC}")
    a("s_waitcnt vmcnt(0)")
    poll_cmp(a, len(addrs), vtmp)
    a(f"""
    s_sub_u32 s{sSPIN}, s{sSPIN}, 1
    s_cbranch_scc1 poll_done{u}
    s_cmp_eq_u64 vcc, 0
    s_cbranch_scc1 poll_done{u}
    s_sleep {sleep}
    s_branch poll_ld{u}
    """)
    a.label(f"poll_done{u}")


def poll_cmp(a, n, vtmp):
    if n == 1:
        a(f"v_cmp_ne_u32 vcc, s{sNONCE}, v{vtmp}")
    else:
        a(f"""
        v_xor_b32 v{vtmp}, s{sNONCE}, v{vtmp}
        v_xor_b32 v{vtmp+1}, s{sNONCE}, v{vtmp+1}
        v_or_b32 v{vtmp}, v{vtmp}, v{vtmp+1}
        v_cmp_ne_u32 vcc, 0, v{vtmp}
        """)


def lds_set(a, off, val, vtmp):
    a(f"""
    v_mov_b32 v{vtmp}, {CNT + off}
    v_mov_b32 v{vtmp+1}, {val}
    ds_write_b32 v{vtmp}, v{vtmp+1}
    """)


def lds_wait(a, off, vtmp, cond, sleep=1):
    _uid[0] += 1
    u = _uid[0]
    a(f"v_mov_b32 v{vtmp}, {CNT + off}")
    a.label(f"lw{u}")
    a(f"""
    ds_read_b32 v{vtmp+1}, v{vtmp}
    s_waitcnt lgkmcnt(0)
    v_readfirstlane_b32 s{sT0}, v{vtmp+1}
    """)
    a(f"s_cmp_lg_u32 s{sT0}, 0" if cond == "ne0" else f"s_cmp_eq_u32 s{sT0}, {cond[2:]}")
    a(f"""
    s_cbranch_scc1 lwd{u}
    s_sleep {sleep}
    s_branch lw{u}
    """)
    a.label(f"lwd{u}")


class VM:
    def __init__(self):
        self.q = []

    def add(self, tag):
        self.q.append(tag)

    def wait(self, tags, counts=None):
        idx = max([i for i, t in enumerate(self.q) if t in tags], default=-1)
        for t in tags:
            assert t in self.q, (t, self.q)
            if counts:
                assert self.q.count(t) == counts(t), (t, self.q)
        n = len(self.q) - 1 - idx
        assert n <= 63
        return n

    def copy(self):
        v = VM(); v.q = list(self.q); return v


vFLA, vPOL, vFQO, vF1, vNON = 7, 9, 11, 12, 13
vDW = 31


def flag1(a, soff):
    return f"buffer_store_dword v{vNON}, v{vF1}, {sr4(S_WS)}, s{soff} offen{SC}"


AQ, AO, AS, AKV, AP, ATMP = 16, 48, [112, 128], 144, 208, 224
avG, avM, avONE = 14, 15, 216
sME, sMO = 24, 26
sKB, sVB, sTI, sKS, sVS, sIT = 45, 46, 47, 48, 52, 49


avV0, avV1 = 217, 218
HBR = 240


def hb_stores():
    return [f"buffer_store_dwordx4 {vr(HBR+4*i, 4)}, v{vL16}, {sr4(S_WS)}, s{sHOFF2} offen offset:{1024*i}{SC}" for i in range(2)]

sVM = 30


def kv_adv():
    return [f"s_mul_i32 s{sVS}, s{sTI}, {TQ}", f"s_add_u32 s{sKS}, s{sVS}, s{sKB}",
            f"s_add_u32 s{sVS}, s{sVS}, s{sVB}",
            f"s_add_u32 s{sTI}, s{sTI}, 1", f"s_and_b32 s{sTI}, s{sTI}, 15"]


def kv_load(buf, part, vv=(None, None)):
    if part < 2:
        return [f"buffer_load_dwordx4 {vr(AKV+16*buf+4*part, 4)}, v{vL16}, {sr4(S_WS)}, s{sKS} offen offset:{1024*part}{SC}"]
    return [f"s_mov_b64 exec, s[{sVM}:{sVM+1}]",
            f"buffer_load_dwordx4 {vr(AKV+16*buf+4*part, 4)}, v{vv[part-2]}, {sr4(S_WS)}, s{sVS} offen{SC}",
            "s_mov_b64 exec, -1"]


def att_loads():
    vm = VM()
    o1 = L(f"""
    s_lshl_b32 s{sT1}, s{sP0}, 9
    s_lshl_b32 s{sT2}, s{sQB}, 2
    s_add_u32 s{sT2}, s{sT2}, s{sKQ}
    s_mul_i32 s{sT0}, s{sT2}, {TQ}
    s_add_u32 s{sT0}, s{sT0}, s{sT1}
    buffer_load_dwordx4 {vr(AQ, 4)}, v{vL16}, {sr4(S_WS)}, s{sT0} offen{SC}
    buffer_load_dwordx4 {vr(AQ+4, 4)}, v{vL16}, {sr4(S_WS)}, s{sT0} offen offset:1024{SC}
    s_mul_i32 s{sVB}, s{sKQ}, {16 * TQ}
    s_add_u32 s{sKB}, s{sVB}, s{sT1}
    s_add_u32 s{sKB}, s{sKB}, {KF}
    s_mul_i32 s{sT0}, s{sHEAD}, 448
    s_add_u32 s{sVB}, s{sVB}, s{sT0}
    s_add_u32 s{sVB}, s{sVB}, {VF}
    s_and_b32 s{sTI}, s{sQB}, {AROT}
    s_mov_b32 s{sVM}, 0x0fffffff
    s_mov_b32 s{sVM+1}, 0x0fffffff
    v_lshrrev_b32 v{vT2}, 5, v{vLane}
    v_mul_u32_u24 v{vT2}, {7168 - 512}, v{vT2}
    v_add_u32 v{vT2}, v{vT2}, v{vL16}
    v_add_u32 v{vT3}, 14336, v{vT2}
    """)
    vm.add(("q",)); vm.add(("q",))
    o2 = []
    for t in range(3):
        o = o1 if t == 0 else o2
        o += kv_adv()
        for p in range(4):
            if p == 2:
                o += [f"v_mov_b32 v{AKV+16*t+8+i}, 0x3f803f80" for i in range(8)]
            o.append(kv_load(t, p, (vT2, vT3)))
            vm.add(("kv", t, p))
    flat = lambda o: [y for x in o for y in (x if isinstance(x, list) else [x])]
    return o1, o2, vm, flat


def wk_off(i):
    return 8 * (i % 14) + 4 * (i // 14)


def gen():
    a = Asm()
    vDX0, vDX1, vDB0, vDG, vDU = 7, 8, 9, 10, 11
    vAX = 14
    vAW = 18
    vST = 22
    vN, vR4, vC, vRow = 26, 27, 28, 29
    X, ACC, WF = 32, 144, 224
    PFR, vPFL, sPFI = ACC + 60, 30, 58

    stamp(a, "start")
    if INSTR: a("s_memrealtime s[100:101]")
    if "dbgt" in OPT: a("s_memtime s[86:87]\ns_memrealtime s[88:89]")
    a(f"""
    s_cmp_ge_u32 s2, 256
    s_cbranch_scc1 k_end
    """)
    if os.environ.get("DELAY"):
        a(f"""
        s_cmp_lg_u32 s2, {os.environ["DELAY"]}
        s_cbranch_scc1 k_nodelay
        s_mov_b32 s3, 12
        """)
        a.label("k_delay")
        a("s_sleep 100\ns_sub_u32 s3, s3, 1\ns_cmp_lg_u32 s3, 0\ns_cbranch_scc1 k_delay")
        a.label("k_nodelay")
    a(f"""
    s_load_dwordx16 s[64:79], s[0:1], 0
    s_load_dwordx4 s[80:83], s[0:1], 64
    s_load_dwordx2 s[84:85], s[0:1], 80
    v_and_b32 v{vLane}, 63, v0
    v_lshrrev_b32 v{vT0}, 6, v0
    s_and_b32 s{sC8}, s2, 7
    s_lshr_b32 s{sI32}, s2, 3
    v_readfirstlane_b32 s{sW}, v{vT0}
    s_lshr_b32 s{sT1}, s{sC8}, 1
    s_mul_i32 s{sT0}, s{sT1}, 28
    s_sub_u32 s{sT0}, s{sT0}, 4
    s_lshl_b32 s{sT1}, s{sT1}, 2
    s_add_u32 s{sT1}, s{sT1}, 112
    s_cmp_lt_u32 s{sI32}, 4
    s_cselect_b32 s{sT0}, s{sT1}, s{sT0}
    s_add_u32 s{sT0}, s{sT0}, s{sI32}
    s_lshr_b32 s{sJ}, s{sT0}, 3
    s_and_b32 s{sT0}, s{sT0}, 7
    s_and_b32 s{sMI}, s{sC8}, 1
    s_lshl_b32 s{sMI}, s{sMI}, 3
    s_add_u32 s{sMI}, s{sMI}, s{sT0}
    v_lshrrev_b32 v{vT0}, 3, v{vLane}
    v_lshrrev_b32 v{vT1}, 4, v{vLane}
    v_and_b32 v{vT2}, 7, v{vLane}
    v_xor_b32 v{vT3}, v{vT2}, v{vT1}
    s_lshl_b32 s{sT0}, s{sMI}, 7
    s_lshl_b32 s{sT1}, s{sW}, 4
    s_add_u32 s{sT0}, s{sT0}, s{sT1}
    v_add_u32 v{vDX0}, s{sT0}, v{vT0}
    v_mul_u32_u24 v{vDX0}, 896, v{vDX0}
    v_lshl_add_u32 v{vDX0}, v{vT3}, 4, v{vDX0}
    v_xor_b32 v{vDX1}, 64, v{vDX0}
    v_add_u32 v{vDX1}, 7168, v{vDX1}
    v_and_b32 v{vT3}, 1, v{vT1}
    v_lshlrev_b32 v{vT3}, 2, v{vT3}
    v_xor_b32 v{vT3}, v{vT3}, v{vT2}
    v_lshlrev_b32 v{vT3}, 4, v{vT3}
    v_mul_u32_u24 v{vDW}, 896, v{vT0}
    v_add_u32 v{vDW}, v{vDW}, v{vT3}
    s_lshl_b32 s{sT0}, s{sW}, 3
    v_add_u32 v{vT0}, s{sT0}, v{vT0}
    v_mul_u32_u24 v{vDB0}, 2688, v{vT0}
    v_add_u32 v{vDB0}, v{vDB0}, v{vT3}
    s_lshl_b32 s{sMX}, s{sW}, 11
    s_lshl_b32 s{sMB}, s{sW}, 10
    s_add_u32 s{sMB}, s{sMB}, 16384
    v_lshlrev_b32 v{vL16}, 4, v{vLane}
    s_mov_b32 s{S_X+2}, {2048 * 448 * 2}
    s_mov_b32 s{S_X+3}, 0x00020000
    s_mov_b32 s{S_B0+2}, {448 * 1344 * 2}
    s_mov_b32 s{S_B0+3}, 0x00020000
    s_mov_b32 s{S_G+3}, 0x00020000
    s_mov_b32 s{S_U+3}, 0x00020000
    s_cmp_ge_u32 s{sJ}, 14
    s_cbranch_scc1 k1_v
    """)

    vm = None

    def emit_group(g):
        for l in g[0]:
            a(l)
        vm.add(g[1])

    def dma(m0base, m0off, vaddr, srdb, soff):
        return [f"s_add_u32 m0, s{m0base}, {m0off & 0xffffffff}", f"s_mov_b32 s{sSO}, {soff}",
                f"buffer_load_dwordx4 v{vaddr}, {sr4(srdb)}, s{sSO} offen lds"]

    def common_setup2(tg):
        srd(a, S_WS, P_WS, WS_BYTES)
        srd(a, S_DBG, P_DBG, 256)
        srd(a, S_WD, P_WD, 1792 * 448 * 2)
        a(f"""
        s_or_b32 s{sT0}, s2, s{sW}
        s_cmp_lg_u32 s{sT0}, 0
        s_cbranch_scc1 k_nononce_{tg}
        s_memrealtime s[{sSC}:{sSC+1}]
        v_mov_b32 v{vT1}, 0
        s_waitcnt lgkmcnt(0)
        s_or_b32 s{sT0}, s{sSC}, 0x80000000
        v_mov_b32 v{vT0}, s{sT0}
        s_mov_b64 exec, 1
        buffer_store_dword v{vT0}, v{vT1}, {sr4(S_DBG)}, 0 offen{SC}
        s_mov_b64 exec, -1
        """)
        a.label(f"k_nononce_{tg}")
        if "nopf" not in OPT:
            a(f"""
            s_lshl_b32 s{sPFI}, s2, 3
            s_add_u32 s{sPFI}, s{sPFI}, s{sW}
            s_lshl_b32 s{sT0}, s{sPFI}, 10
            s_mov_b32 s{S_TMP+3}, 0x00020000
            buffer_load_dwordx4 {vr(PFR, 4)}, v{vL16}, {sr4(S_X)}, s{sT0} offen
            v_lshrrev_b32 v{vPFL}, 3, v{vLane}
            v_lshlrev_b32 v{vPFL}, 7, v{vPFL}
            v_add_u32 v{vPFL}, v{vPFL}, v{vL16}
            s_cmp_lt_u32 s{sPFI}, 840
            s_cbranch_scc1 k_pf_q_{tg}
            s_cmp_lt_u32 s{sPFI}, 1400
            s_cselect_b32 s{S_TMP}, s{P_WG}, s{P_WU}
            s_cselect_b32 s{S_TMP+1}, s{P_WG+1}, s{P_WU+1}
            s_cselect_b32 s{sT0}, 0, 560
            s_mov_b32 s{S_TMP+2}, {448 * 1792 * 2}
            s_sub_u32 s{sT0}, s{sPFI}, s{sT0}
            s_lshl_b32 s{sT0}, s{sT0}, 11
            s_add_u32 s{sT0}, s{sT0}, {(128 * 3584 - 840 * 2048) & 0xffffffff}
            buffer_load_dwordx4 {vr(PFR+4, 4)}, v{vPFL}, {sr4(S_TMP)}, s{sT0} offen
            s_branch k_pf_d_{tg}
            """)
            a.label(f"k_pf_q_{tg}")
            a(f"""
            s_add_u32 s{sT0}, s{sT0}, {128 * 2688}
            buffer_load_dwordx4 {vr(PFR+4, 4)}, v{vL16}, {sr4(S_B0)}, s{sT0} offen
            """)
            a.label(f"k_pf_d_{tg}")
            vm.add(("PF",)); vm.add(("PF",))
        if "nocp" not in OPT:
            a(f"""
            s_cmp_ge_u32 s{sI32}, 5
            s_cbranch_scc1 k_nocp_{tg}
            s_lshl_b32 s{sT0}, s{sI32}, 3
            s_add_u32 s{sT0}, s{sT0}, s{sW}
            s_lshl_b32 s{sT0}, s{sT0}, 10
            v_add_u32 v{vT0}, s{sT0}, v{vL16}
            v_min_u32 v{vT0}, k_end-{KNAME}-12, v{vT0}
            s_getpc_b64 s[{sSC}:{sSC+1}]
            """)
            a.label(f"k_pc_{tg}")
            a(f"""
            s_sub_u32 s{sSC}, s{sSC}, k_pc_{tg}-{KNAME}
            s_subb_u32 s{sSC+1}, s{sSC+1}, 0
            global_load_dwordx4 {vr(ACC+76, 4)}, v{vT0}, s[{sSC}:{sSC+1}]
            """)
            a.label(f"k_nocp_{tg}")
        a(f"""
        s_and_b32 s{sR}, s{sW}, 3
        s_lshr_b32 s{sGRP}, s{sW}, 2
        s_lshl_b32 s{sTILE}, s{sMI}, 2
        s_add_u32 s{sTILE}, s{sTILE}, s{sR}
        v_and_b32 v{vT0}, 31, v{vLane}
        v_lshrrev_b32 v{vT1}, 5, v{vLane}
        v_bfe_u32 v{vT2}, v{vLane}, 1, 3
        v_xor_b32 v{vT2}, v{vT2}, v{vT1}
        s_lshl_b32 s{sT0}, s{sR}, 12
        v_lshlrev_b32 v{vT3}, 7, v{vT0}
        v_lshl_add_u32 v{vT3}, v{vT2}, 4, v{vT3}
        v_add_u32 v{vAX}, s{sT0}, v{vT3}
        v_xor_b32 v{vAX+1}, 32, v{vAX}
        v_xor_b32 v{vAX+2}, 64, v{vAX}
        v_xor_b32 v{vAX+3}, 96, v{vAX}
        v_bfe_u32 v{vN}, v{vLane}, 4, 1
        v_bfe_u32 v{vR4}, v{vLane}, 2, 2
        v_and_b32 v{vC}, 3, v{vLane}
        v_lshl_add_u32 v{vRow}, v{vT1}, 3, v{vR4}
        v_and_b32 v{vT2}, 2, v{vR4}
        v_xor_b32 v{vT2}, v{vT2}, v{vN}
        s_lshl_b32 s{sT0}, s{sGRP}, 1
        v_xor_b32 v{vT2}, s{sT0}, v{vT2}
        v_lshlrev_b32 v{vT3}, 7, v{vRow}
        v_lshl_add_u32 v{vT3}, v{vT2}, 5, v{vT3}
        v_lshl_add_u32 v{vT3}, v{vC}, 3, v{vT3}
        v_add_u32 v{vAW}, 16384, v{vT3}
        s_mov_b32 s{sNL2E}, {f32bits(-LOG2E):#x}
        """)

    def flag_addr(vtype, vfla, vfqo):
        t0, t1, t2, t3 = vN, vR4, vC, vRow
        o = L(f"""
        s_lshl_b32 s{sHEAD}, s{sC8}, 1
        s_and_b32 s{sT2}, s{sI32}, 1
        s_add_u32 s{sHEAD}, s{sHEAD}, s{sT2}
        s_lshr_b32 s{sQB}, s{sI32}, 1
        s_lshl_b32 s{sMT}, s{sC8}, 2
        s_and_b32 s{sT2}, s{sI32}, 3
        s_add_u32 s{sMT}, s{sMT}, s{sT2}
        s_lshr_b32 s{sNT}, s{sI32}, 2
        s_mul_i32 s{sP0}, s{sHEAD}, 7
        s_lshr_b32 s{sP0}, s{sP0}, 1
        s_lshl_b32 s{sFQB}, s{sHEAD}, 12
        s_add_u32 s{sFQB}, s{sFQB}, {FQ}
        s_lshr_b32 s{sT1}, s{sQB}, 2
        s_lshl_b32 s{sT1}, s{sT1}, 7
        s_and_b32 s{sT2}, s{sQB}, 3
        s_lshl_b32 s{sT2}, s{sT2}, 2
        s_add_u32 s{sT1}, s{sT1}, s{sT2}
        s_add_u32 s{sT1}, s{sT1}, 2048
        v_lshrrev_b32 v{t0}, 2, v{vLane}
        v_and_b32 v{t1}, 3, v{vLane}
        v_lshlrev_b32 v{t1}, 2, v{t1}
        v_lshl_add_u32 v{vfla}, v{t0}, 7, v{t1}
        v_and_b32 v{t0}, 1, v{vLane}
        v_lshl_add_u32 v{vfla+1}, v{t0}, 9, s{sT1}
        v_and_b32 v{t0}, 15, v{vLane}
        v_lshrrev_b32 v{t1}, 4, v{vLane}
        v_lshlrev_b32 v{t3}, 12, v{t0}
        v_lshl_add_u32 v{t3}, v{t1}, 9, v{t3}
        s_lshr_b32 s{sT1}, s{sMI}, 2
        s_lshl_b32 s{sT1}, s{sT1}, 7
        s_and_b32 s{sT2}, s{sMI}, 3
        s_lshl_b32 s{sT2}, s{sT2}, 2
        s_add_u32 s{sT1}, s{sT1}, s{sT2}
        """)
        if not vtype:
            o += L(f"""
            s_add_u32 s{sT2}, s{sJ}, 1
            s_lshr_b32 s{sT2}, s{sT2}, 3
            v_mul_u32_u24 v{t2}, 7, v{t0}
            v_lshrrev_b32 v{t2}, 1, v{t2}
            v_mad_u32_u24 v{t2}, v{t1}, 3, v{t2}
            v_lshrrev_b32 v{t2}, 3, v{t2}
            v_lshrrev_b32 v{t1}, 1, v{t1}
            v_lshl_add_u32 v{t2}, v{t1}, 6, v{t2}
            v_mad_u32_u24 v{t2}, s{sT2}, 7, v{t2}
            v_cmp_eq_u32 vcc, s{sJ}, v{t2}
            s_lshl_b32 s{sT2}, s{sT2}, 11
            s_sub_u32 s{sT1}, s{sT1}, s{sT2}
            s_add_u32 s{sT1}, s{sT1}, 2048
            """)
        else:
            o += L(f"""
            v_add_u32 v{t2}, 14, v{t1}
            v_cmp_eq_u32 vcc, s{sJ}, v{t2}
            s_add_u32 s{sT1}, s{sT1}, 1024
            """)
        o += L(f"""
        v_add_u32 v{t3}, s{sT1}, v{t3}
        v_mov_b32 v{t0}, {OOB}
        v_cndmask_b32 v{vfqo}, v{t0}, v{t3}, vcc
        v_cmp_eq_u32 vcc, 0, v{vLane}
        s_lshr_b32 s{sFHO}, s{sTILE}, 1
        s_lshl_b32 s{sFHO}, s{sFHO}, 10
        v_cndmask_b32 v{vF1}, v{t0}, v{vLane}, vcc
        s_lshr_b32 s{sT1}, s{sJ}, 1
        s_lshl_b32 s{sT1}, s{sT1}, 7
        s_add_u32 s{sFHO}, s{sFHO}, s{sT1}
        s_and_b32 s{sT1}, s{sJ}, 1
        s_lshl_b32 s{sT1}, s{sT1}, 3
        s_add_u32 s{sFHO}, s{sFHO}, s{sT1}
        s_and_b32 s{sT1}, s{sR}, 1
        s_lshl_b32 s{sT1}, s{sT1}, 2
        s_add_u32 s{sFHO}, s{sFHO}, s{sT1}
        s_add_u32 s{sFHO}, s{sFHO}, {FHB}
        s_lshl_b32 s{sFHA}, s{sMI}, 9
        s_lshr_b32 s{sT1}, s{sJ}, 2
        s_lshl_b32 s{sT1}, s{sT1}, 7
        s_add_u32 s{sFHA}, s{sFHA}, s{sT1}
        s_and_b32 s{sT1}, s{sJ}, 3
        s_lshl_b32 s{sT1}, s{sT1}, 2
        s_add_u32 s{sFHA}, s{sFHA}, s{sT1}
        s_add_u32 s{sFHA}, s{sFHA}, {FH}
        s_lshl_b32 s{sM0}, s{sNT}, 7
        s_mul_i32 s{sWB}, s{sR}, {16 * 896}
        s_add_u32 s{sWB}, s{sWB}, s{sM0}
        s_lshl_b32 s{sM0}, s{sR}, 11
        """)
        return o

    def nonce_get(tag):
        a(f"""
        v_readfirstlane_b32 s{sNONCE}, v{vNON}
        v_lshlrev_b32 v{vT0}, 2, v{vLane}
        v_add_u32 v{vT0}, {CNT}, v{vT0}
        v_mov_b32 v{vT1}, 0
        s_cmp_lg_u32 s{sNONCE}, 0
        s_cbranch_scc1 k1_nonce_ok_{tag}
        """)
        a.label(f"k1_nonce_spin_{tag}")
        a(f"""
        buffer_load_dword v{vNON}, v{vT1}, {sr4(S_DBG)}, 0 offen{SC}
        s_waitcnt vmcnt(0)
        v_readfirstlane_b32 s{sNONCE}, v{vNON}
        s_sleep 4
        s_cmp_eq_u32 s{sNONCE}, 0
        s_cbranch_scc1 k1_nonce_spin_{tag}
        """)
        a.label(f"k1_nonce_ok_{tag}")
        a(f"ds_write_b32 v{vT0}, v{vT1}")

    def pf2():
        return (L(f"""
        s_cmp_lt_u32 s{sPFI}, 784
        s_cselect_b32 s{S_TMP}, s{P_WG}, s{P_WU}
        s_cselect_b32 s{S_TMP+1}, s{P_WG+1}, s{P_WU+1}
        s_cselect_b32 s{sT0}, 0, 784
        s_mov_b32 s{S_TMP+2}, {448 * 1792 * 2}
        s_sub_u32 s{sT0}, s{sPFI}, s{sT0}
        s_lshl_b32 s{sT0}, s{sT0}, 11
        buffer_load_dwordx4 {vr(PFR+8, 4)}, v{vPFL}, {sr4(S_TMP)}, s{sT0} offen offset:128
        """), ("PF",))

    def pf3():
        return (L(f"""
        s_cmp_lt_u32 s{sPFI}, 1568
        s_cselect_b32 s{S_TMP}, s{P_WD}, s{P_WO}
        s_cselect_b32 s{S_TMP+1}, s{P_WD+1}, s{P_WO+1}
        s_cselect_b32 s{sT0}, 0, 1568
        s_cselect_b32 s{S_TMP+2}, s{S_WD+2}, {448 * 448 * 2}
        s_sub_u32 s{sT0}, s{sPFI}, s{sT0}
        s_lshl_b32 s{sT0}, s{sT0}, 10
        buffer_load_dwordx4 {vr(PFR+12, 4)}, v{vL16}, {sr4(S_TMP)}, s{sT0} offen
        """), ("PF",))

    nonce_ld = ([f"v_mov_b32 v{vNON}, 0", f"buffer_load_dword v{vNON}, v{vNON}, {sr4(S_DBG)}, 0 offen{SC}"], ("N",))

    def wpref(i):
        ra = ring_addr(i % 13)
        return [f"s_add_u32 m0, s{sM0}, {ra}", f"s_add_u32 s{sT0}, s{sWB}, {wk_off(i) * 16 * 896}",
                f"buffer_load_dwordx4 v{vDW}, {sr4(S_WD)}, s{sT0} offen lds",
                f"s_add_u32 m0, s{sM0}, {ra + 1024}", f"s_add_u32 s{sT0}, s{sT0}, {8 * 896}",
                f"buffer_load_dwordx4 v{vDW}, {sr4(S_WD)}, s{sT0} offen lds"]

    abase = [0]

    def set_base(nb, regs):
        out = []
        if nb != abase[0]:
            d = nb - abase[0]
            for r in regs:
                out.append(f"v_add_u32 v{r}, {d}, v{r}" if d > 0 else f"v_subrev_u32 v{r}, {-d}, v{r}")
            abase[0] = nb
        return out

    def emit(x):
        if isinstance(x, tuple):
            a(x[1]); vm.add((x[0],))
        else:
            a(x)

    vm = VM()
    cnts = lambda t: {"A": 5, "B": 2}[t[0]] if t[0] in ("A", "B") else vm.q.count(t)
    a(f"""
    s_lshl_b32 s{sT0}, s{sJ}, 7
    v_add_u32 v{vDB0}, s{sT0}, v{vDB0}
    v_mul_u32_u24 v{vDG}, 3584, v{vT0}
    s_lshl_b32 s{sT0}, s{sJ}, 8
    v_add3_u32 v{vDG}, v{vDG}, v{vT3}, s{sT0}
    v_xor_b32 v{vDU}, 32, v{vDG}
    s_mov_b32 s{S_G+2}, {448 * 1792 * 2}
    s_mov_b32 s{S_U+2}, {448 * 1792 * 2}
    s_waitcnt lgkmcnt(0)
    s_mov_b64 s[{S_X}:{S_X+1}], s[{P_X}:{P_X+1}]
    s_mov_b64 s[{S_B0}:{S_B0+1}], s[{P_WQKV}:{P_WQKV+1}]
    s_mov_b64 s[{S_G}:{S_G+1}], s[{P_WG}:{P_WG+1}]
    s_mov_b64 s[{S_U}:{S_U+1}], s[{P_WU}:{P_WU+1}]
    """)

    def fA(st):
        b = (st % 4) * SLOT
        g = [dma(sMX, b, vDX0, S_X, st * 128), dma(sMX, b + 1024, vDX1, S_X, st * 128),
             dma(sMB, b, vDB0, S_B0, st * 64 * 2688), dma(sMB, b + 8192, vDG, S_G, st * 64 * 3584),
             dma(sMB, b + 16384, vDU, S_U, st * 64 * 3584)]
        return [(x, ("A", st)) for x in g]

    def bslot(sb):
        return ((3 + sb // 2) % 4) * SLOT + (sb % 2) * 16384

    def fB(sb):
        b = bslot(sb) - 16384
        g = [dma(sMB, b, vDG, S_G, sb * 64 * 3584 + 128), dma(sMB, b + 8192, vDU, S_U, sb * 64 * 3584 + 128)]
        return [(x, ("B", sb)) for x in g]

    for g in fA(0):
        emit_group(g)
    a("s_barrier")
    for g in fA(1):
        emit_group(g)
    common_setup2("f")
    a(f"""
    v_lshl_add_u32 v{vAW+1}, v{vN}, 13, v{vT3}
    v_add_u32 v{vAW+1}, {16384 + 8192}, v{vAW+1}
    v_xor_b32 v{vAW+2}, 32, v{vAW+1}
    s_cmp_ge_u32 s{sJ}, 7
    s_cselect_b32 s{sT1}, {KF - 7 * 4096}, {QF}
    s_cselect_b32 s{sSC}, 1.0, {f32bits(28 ** -0.5 * LOG2E):#x}
    s_lshl_b32 s{sT2}, s{sJ}, 12
    s_add_u32 s{sT1}, s{sT1}, s{sT2}
    s_lshl_b32 s{sT2}, s{sGRP}, 11
    s_add_u32 s{sT1}, s{sT1}, s{sT2}
    s_mul_i32 s{sQKO}, s{sTILE}, {TQ}
    s_add_u32 s{sQKO}, s{sQKO}, s{sT1}
    s_mul_i32 s{sHOFF}, s{sTILE}, 112
    s_lshl_b32 s{sT1}, s{sJ}, 3
    s_add_u32 s{sHOFF}, s{sHOFF}, s{sT1}
    s_lshl_b32 s{sT1}, s{sGRP}, 1
    s_add_u32 s{sHOFF}, s{sHOFF}, s{sT1}
    s_lshl_b32 s{sHOFF}, s{sHOFF}, 10
    s_add_u32 s{sHOFF}, s{sHOFF}, {HF}
    s_add_u32 s{sHOFF2}, s{sHOFF}, 4096
    """)
    WA = [WF, WF + 12, ACC + 48]
    NB = 4
    WB = [WF + 24, WF + 16, WF + 8, WF]

    def readsA(ks):
        st, s = ks // 4, ks % 4
        slot = st % 4
        out = set_base((slot // 2) * 2 * SLOT, [vAX, vAX+1, vAX+2, vAX+3, vAW, vAW+1, vAW+2])
        off = (slot % 2) * SLOT
        f = WA[ks % 3]
        out.append(f"ds_read_b128 {vr(X+4*ks, 4)}, v{vAX+s} offset:{off}")
        for t in range(3):
            for q in range(2):
                out.append(f"ds_read_b64_tr_b16 {vr(f+4*t+2*q, 2)}, v{vAW+t} offset:{off + (16*s + 4*q) * 128}")
        return out

    def readsB(ks):
        sb, s = ks // 4, ks % 4
        b = bslot(sb)
        f = WB[ks % NB]
        b32 = b - b % 32768
        off = b - b32
        out = set_base(b32 - 24576, [vAW+1, vAW+2])
        for t in range(2):
            for q in range(2):
                out.append(f"ds_read_b64_tr_b16 {vr(f+4*t+2*q, 2)}, v{vAW+1+t} offset:{off + (16*s + 4*q) * 128}")
        return out

    def epi_ffn(acc, ko, dst=None):
        g, u = acc, acc + 8
        dst = g if dst is None else dst
        o = []
        for i in range(8):
            o.append(f"v_mul_f32 v{u+i}, v{g+i}, v{u+i}")
            o.append(f"v_mul_f32 v{g+i}, s{sNL2E}, v{g+i}")
        for i in range(8):
            o.append(f"v_exp_f32 v{g+i}, v{g+i}")
        for i in range(8):
            o.append(f"v_add_f32 v{g+i}, 1.0, v{g+i}")
        for i in range(8):
            o.append(f"v_rcp_f32 v{g+i}, v{g+i}")
        for i in range(8):
            o.append(f"v_mul_f32 v{u+i}, v{u+i}, v{g+i}")
        for i in range(4):
            o.append(f"v_cvt_pk_bf16_f32 v{dst+i}, v{u+2*i}, v{u+2*i+1}")
        so, off = (sHOFF, ko) if ko < 4 else (sHOFF2, ko - 4)
        o.append(("H", f"buffer_store_dwordx4 {vr(dst, 4)}, v{vL16}, {sr4(S_WS)}, s{so} offen offset:{1024*off}{SC}"))
        return o

    def epi_qk():
        o = []
        for i in range(8):
            o.append(f"v_mul_f32 v{ACC+2*i}, s{sSC}, v{ACC+2*i}")
            o.append(f"v_mul_f32 v{ACC+2*i+1}, s{sSC}, v{ACC+2*i+1}")
            o.append(f"v_cvt_pk_bf16_f32 v{ACC+i}, v{ACC+2*i}, v{ACC+2*i+1}")
        o.append("s_nop 1")
        for hh in range(2):
            b = ACC + 4 * hh
            o.append(f"v_permlane32_swap_b32 v{b}, v{b+2}")
            o.append(f"v_permlane32_swap_b32 v{b+1}, v{b+3}")
            o.append(("QK", f"buffer_store_dwordx4 {vr(b, 4)}, v{vL16}, {sr4(S_WS)}, s{sQKO} offen offset:{1024*hh}{SC}"))
        return o

    abase[0] = 0
    a(f"s_waitcnt vmcnt({vm.wait({('A', 0)}, cnts)})\ns_barrier")
    stamp(a, "p1_first")
    for ks in range(2):
        for r in readsA(ks):
            a(r)
    pend = fA(2) + fA(3)
    vFQf = vST
    fillA = flag_addr(False, vFLA, vFQf)
    for ks in range(28):
        st, s = ks // 4, ks % 4
        f = WA[ks % 3]
        m = [f"{MFMA} {vr(ACC+16*t, 16)}, {vr(f+4*t, 4)}, {vr(X+4*ks, 4)}, {'0' if ks == 0 else vr(ACC+16*t, 16)}" for t in range(3)]
        if s == 2:
            need = {("A", st + 1)} if st < 6 else {("B", 0), ("B", 1), ("B", 2), ("B", 3), ("N",)}
            a(f"s_waitcnt vmcnt({vm.wait(need, cnts)}) lgkmcnt(0)")
            if st == 6:
                nonce_get("f")
            a("s_barrier")
            stamp(a, f"p1_a{st}")
            if st + 4 <= 6:
                pend += fA(st + 4)
            else:
                i0 = 2 * (st - 3)
                pend += fB(i0) + (fB(i0 + 1) if i0 + 1 < 7 else [])
            if st == 2:
                pend.append(nonce_ld)
            if "nopf" not in OPT and st == PF2_ST: pend.append(pf2())
            if "nopf" not in OPT and st == PF3_ST: pend.append(pf3())
        elif ks < 27:
            a("s_waitcnt lgkmcnt(7)")
        else:
            a("s_waitcnt lgkmcnt(4)")
        r = readsA(ks + 2) if ks + 2 < 28 else readsB(ks + 2 - 28)
        k = len(r) - 4 if ks + 2 < 28 else len(r) - 2
        a(m[0])
        for x in r[:k]:
            a(x)
        a(m[1])
        for x in r[k:]:
            a(x)
        a(m[2])
        if ks >= 16:
            assert vm.q.count(("A", 6)) == 5
            for _ in range(7):
                if fillA: a(fillA.pop(0))
        nd = 2 if (len(pend) > 4 or st < 1) else 1
        for _ in range(nd):
            if pend:
                emit_group(pend.pop(0))
    assert not fillA
    stamp(a, "p1_aend")
    for x in readsB(2):
        a(x)
    ea, eb = epi_ffn(ACC + 16, 0, X + 16), epi_ffn(ACC + 32, 1, X + 20)
    fillq = ["s_nop 3"] + epi_qk()
    fill = ea + eb
    wq = [0, 1, 2, 7, 3, 4, 5, 6]
    sWH, sMH2 = sMX, sOK
    for ks in range(28):
        f = WB[ks % NB]
        m = [f"{MFMA} {vr(ACC+48+16*t, 16)}, {vr(f+4*t, 4)}, {vr(X+4*ks, 4)}, {'0' if ks == 0 else vr(ACC+48+16*t, 16)}" for t in range(2)]
        nxt = ks + NB - 1
        if ks == QKB:
            need = {5: {("B", 2), ("B", 3), ("N",)}, QKB: {("B", 4), ("B", 5), ("B", 6), ("QK",)}, 17: set()}[ks]
            if ks == QKB: assert vm.q.count(("QK",)) == 2 and QKB <= 13
            if need: a(f"s_waitcnt vmcnt({vm.wait(need, cnts)})")
            a("s_barrier")
            stamp(a, {5: "p1_b2", QKB: "p1_b4", 17: "p1_b5"}[ks])
            if ks == QKB:
                a(f"""
                s_cmp_lg_u32 s{sW}, 7
                s_cbranch_scc1 k1_noflag_f
                s_mov_b32 s{sT0}, {FQ}
                buffer_store_dword v{vNON}, v{vFQf}, {sr4(S_WS)}, s{sT0} offen{SC}
                """)
                a.label("k1_noflag_f")
        stamp(a, f"pb{ks}")
        a(f"s_waitcnt lgkmcnt({min(NB - 2, 27 - ks) * 4})")
        r = readsB(nxt) if nxt < 28 else []

        def dofill():
            if ks < 1: return
            if fillq:
                for _ in range(5):
                    if fillq: emit(fillq.pop(0))
            else:
                for _ in range(FPER):
                    if fill and isinstance(fill[0], tuple) and ks < HA_ST and len(fill) > 1:
                        fill[0], fill[1] = fill[1], fill[0]
                    if fill and not (isinstance(fill[0], tuple) and ks < HA_ST): emit(fill.pop(0))
        a(m[0])
        for x in r[:len(r) - 2]:
            a(x)
        if pend:
            emit_group(pend.pop(0))
        dofill()
        a(m[1])
        for x in r[len(r) - 2:]:
            a(x)
        dofill()
        if wq and ks >= WP_ST and (ring_addr(wq[0]) < 122880 or ks >= QKB) and not pend:
            i = wq.pop(0)
            if i == 0:
                a(f"""
                s_mul_i32 s{sWH}, s{sGRP}, {8 * 896}
                s_add_u32 s{sWH}, s{sWH}, s{sWB}
                s_cmp_ge_u32 s{sI32}, 28
                s_cselect_b32 s{sWH}, {OOB}, s{sWH}
                s_lshl_b32 s{sMH2}, s{sGRP}, 10
                s_add_u32 s{sMH2}, s{sMH2}, s{sM0}
                """)
            a(f"""
            s_add_u32 m0, s{sMH2}, {ring_addr(i)}
            s_add_u32 s{sT0}, s{sWH}, {wk_off(i) * 16 * 896}
            buffer_load_dwordx4 v{vDW}, {sr4(S_WD)}, s{sT0} offen lds
            """)
            vm.add(("WP",))
        if ks == EARLY_P:
            a(f"""
            s_cmp_lg_u32 s{sW}, 0
            s_cbranch_scc1 k1_nopoll
            buffer_load_dword v{vPOL}, v{vFLA}, {sr4(S_WS)}, s{sFQB} offen{SC}
            buffer_load_dword v{vPOL+1}, v{vFLA+1}, {sr4(S_WS)}, s{sFQB} offen{SC}
            """)
            a.label("k1_nopoll")
    assert not fill and not pend and not wq
    stamp(a, "pb28")
    a(f"""
    s_cmp_lg_u32 s{sW}, 0
    s_cbranch_scc1 k1_nochk
    s_waitcnt vmcnt(0)
    """)
    poll_cmp(a, 2, vPOL)
    a(f"""
    s_cmp_eq_u64 vcc, 0
    s_cselect_b32 s{sT0}, 1, 0
    """)
    lds_set(a, 4, f"s{sT0}", vT0)
    a("s_waitcnt lgkmcnt(0)")
    a.label("k1_nochk")
    a(f"""
    s_cmp_ge_u32 s{sW}, 4
    s_cbranch_scc1 k1_nodr
    s_waitcnt vmcnt(0)
    """)
    a.label("k1_nodr")
    a(f"""
    s_barrier
    s_mov_b32 s{sOK}, 0
    s_cmp_ge_u32 s{sW}, 4
    s_cbranch_scc1 k1_epi
    v_mov_b32 v{vT0}, {CNT + 4}
    ds_read_b32 v{vT1}, v{vT0}
    s_waitcnt lgkmcnt(0)
    v_readfirstlane_b32 s{sOK}, v{vT1}
    s_cmp_eq_u32 s{sOK}, 1
    s_cbranch_scc1 k1_early
    s_cmp_lg_u32 s{sW}, 0
    s_cbranch_scc1 k1_epi
    buffer_load_dword v{vPOL}, v{vFLA}, {sr4(S_WS)}, s{sFQB} offen{SC}
    buffer_load_dword v{vPOL+1}, v{vFLA+1}, {sr4(S_WS)}, s{sFQB} offen{SC}
    s_branch k1_epi
    """)
    a.label("k1_early")
    stamp(a, "x_go")
    o1, o2, _, flat = att_loads()
    for x in flat(o1):
        a(x)
    stamp(a, "p1_bend")
    e0, e1 = epi_ffn(ACC + 48, 4, HBR), epi_ffn(ACC + 64, 5, HBR + 4)
    ev = e0[:-1] + e1[:-1]
    step = len(ev) // len(o2)
    for x in o2:
        for _ in range(step):
            a(ev.pop(0))
        for y in flat([x]):
            a(y)
    for x in ev:
        a(x)
    stamp(a, "p1_end")
    a("s_branch att_main")
    a.label("k1_epi")
    a("s_nop 7")
    stamp(a, "p1_bend")
    for x in e0[:FA_AT]:
        a(x)
    a(f"""
    s_cmp_lt_u32 s{sW}, 4
    s_cbranch_scc1 k1_nofa
    v_mov_b32 v{vT0}, {CNT + 32}
    v_mov_b32 v{vT1}, 1
    s_waitcnt vmcnt(0)
    s_mov_b64 exec, 1
    ds_add_rtn_u32 v{vT1}, v{vT0}, v{vT1}
    s_mov_b64 exec, -1
    s_waitcnt lgkmcnt(0)
    v_readfirstlane_b32 s{sT0}, v{vT1}
    s_cmp_lg_u32 s{sT0}, 3
    s_cbranch_scc1 k1_nofa
    """)
    a(flag1(a, sFHA))
    a.label("k1_nofa")
    for x in e0[FA_AT:-1] + e1[:-1]:
        a(x)
    stamp(a, "p1_end")
    a(f"""
    s_cmp_ge_u32 s{sW}, 4
    s_cbranch_scc1 gemm_role2
    s_cmp_lg_u32 s{sW}, 0
    s_cbranch_scc1 aq_lw
    s_waitcnt vmcnt(0)
    """)
    poll_cmp(a, 2, vPOL)
    a(f"""
    s_cmp_eq_u64 vcc, 0
    s_cbranch_scc1 aq_ok
    s_branch att_spin
    """)

    a.label("k1_v")
    vm = VM()
    cntv = lambda t: {"A": 5, "B": 1}[t[0]] if t[0] in ("A", "B") else vm.q.count(t)
    GWL = CNT + 1024
    a(f"""
    v_add_u32 v{vDU}, {(896 + 192) * 2}, v{vDB0}
    s_cmp_eq_u32 s{sJ}, 14
    s_cselect_b32 s{sT0}, 0, 512
    s_add_u32 s{sT0}, s{sT0}, {896 * 2}
    v_add_u32 v{vDB0}, s{sT0}, v{vDB0}
    s_mov_b32 s{S_U+2}, {448 * 2}
    s_waitcnt lgkmcnt(0)
    s_mov_b64 s[{S_X}:{S_X+1}], s[{P_X}:{P_X+1}]
    s_mov_b64 s[{S_B0}:{S_B0+1}], s[{P_WQKV}:{P_WQKV+1}]
    s_mov_b64 s[{S_U}:{S_U+1}], s[{P_GW}:{P_GW+1}]
    """)

    def vA(st):
        b = (st % 4) * SLOT
        g = [dma(sMX, b, vDX0, S_X, st * 128), dma(sMX, b + 1024, vDX1, S_X, st * 128)]
        for bi in range(3):
            g.append(dma(sMB, b + 8192 * bi, vDB0, S_B0, st * 64 * 2688 + 128 * bi))
        return [(x, ("A", st)) for x in g]

    def vbslot(sb):
        return 3 * SLOT + sb * 8192 if sb < 4 else (sb - 4) * 8192

    def vB(sb):
        return [(dma(sMB, vbslot(sb) - 16384, vDU, S_B0, sb * 64 * 2688), ("B", sb))]

    gw_ld = ([f"s_mov_b32 m0, {GWL}", "s_nop 0", f"buffer_load_dwordx4 v{vL16}, {sr4(S_U)}, 0 offen lds"], ("GW",))

    for g in vA(0):
        emit_group(g)
    a("s_barrier")
    for g in vA(1):
        emit_group(g)
    common_setup2("v")
    vAZ = vAW + 3
    a(f"""
    v_add_u32 v{vAW+1}, 8192, v{vAW}
    v_add_u32 v{vAW+2}, 16384, v{vAW}
    s_sub_u32 s{sT1}, s{sJ}, 14
    s_lshl_b32 s{sT1}, s{sT1}, 6
    v_xor_b32 v{vAZ}, s{sT1}, v{vAW}
    v_lshlrev_b32 v{vST+1}, 4, v{vT1}
    v_add_u32 v{vST+1}, {GWL}, v{vST+1}
    s_cmp_eq_u32 s{sJ}, 14
    s_cselect_b32 s{sT1}, 0, 4096
    s_lshl_b32 s{sT2}, s{sGRP}, 9
    s_add_u32 s{sT1}, s{sT1}, s{sT2}
    s_mul_i32 s{sHOFF}, s{sTILE}, {TQ}
    s_add_u32 s{sHOFF}, s{sHOFF}, s{sT1}
    s_add_u32 s{sHOFF}, s{sHOFF}, {VF}
    s_add_u32 s{sHOFF2}, s{sHOFF}, 14336
    v_mul_u32_u24 v{vST}, {7168 - 512}, v{vT1}
    v_add_u32 v{vST}, v{vST}, v{vL16}
    """)

    def readsVA(ks):
        st, s = ks // 4, ks % 4
        slot = st % 4
        out = set_base((slot // 2) * 2 * SLOT, [vAX, vAX+1, vAX+2, vAX+3, vAW, vAW+1, vAW+2, vAZ])
        off = (slot % 2) * SLOT
        f = WA[ks % 3]
        out.append(f"ds_read_b128 {vr(X+4*ks, 4)}, v{vAX+s} offset:{off}")
        for t in range(3):
            for q in range(2):
                out.append(f"ds_read_b64_tr_b16 {vr(f+4*t+2*q, 2)}, v{vAW+t} offset:{off + (16*s + 4*q) * 128}")
        return out

    NBV = 6
    WBV = [WF + 24, WF + 28, WF + 16, WF + 20, WF + 12, WF + 8]

    def readsVB(ks, z):
        sb, s = ks // 4, ks % 4
        f = WBV[ks % NBV]
        if z:
            return [f"ds_read_b128 {vr(f, 4)}, v{vST+1} offset:{32*ks}"]
        b = vbslot(sb)
        nb = (3 * SLOT if sb < 4 else 0)
        out = set_base(nb - 16384, [vAZ])
        off = b - nb
        for q in range(2):
            out.append(f"ds_read_b64_tr_b16 {vr(f+2*q, 2)}, v{vAZ} offset:{off + (16*s + 4*q) * 128}")
        return out

    def epi_v(acc, bi):
        o = [f"v_cvt_pk_bf16_f32 v{acc+i}, v{acc+2*i}, v{acc+2*i+1}" for i in range(8)]
        o.append(f"buffer_store_dwordx4 {vr(acc, 4)}, v{vST}, {sr4(S_WS)}, s{sHOFF} offen offset:{1024*bi}{SC}")
        o.append(f"buffer_store_dwordx4 {vr(acc+4, 4)}, v{vST}, {sr4(S_WS)}, s{sHOFF2} offen offset:{1024*bi}{SC}")
        return o

    abase[0] = 0
    a(f"s_waitcnt vmcnt({vm.wait({('A', 0)}, cntv)})\ns_barrier")
    stamp(a, "p1_first")
    for ks in range(2):
        for r in readsVA(ks):
            a(r)
    pend = vA(2) + vA(3)
    fillA = flag_addr(True, vFLA, vDG)
    for ks in range(28):
        st, s = ks // 4, ks % 4
        f = WA[ks % 3]
        m = [f"{MFMA} {vr(ACC+16*t, 16)}, {vr(X+4*ks, 4)}, {vr(f+4*t, 4)}, {'0' if ks == 0 else vr(ACC+16*t, 16)}" for t in range(3)]
        if s == 2:
            need = {("A", st + 1)} if st < 6 else {("B", x) for x in range(7)} | {("N",), ("GW",)}
            a(f"s_waitcnt vmcnt({vm.wait(need, cntv)}) lgkmcnt(0)")
            if st == 6:
                nonce_get("v")
            a("s_barrier")
            if st + 4 <= 6:
                pend += vA(st + 4)
            elif st == 3:
                pend += vB(0) + vB(1) + vB(2) + vB(3)
            elif st == 4:
                pend += vB(4) + vB(5) + vB(6) + [gw_ld]
            if st == 2:
                pend.append(nonce_ld)
            if "nopf" not in OPT and st == PF2_ST: pend.append(pf2())
            if "nopf" not in OPT and st == PF3_ST: pend.append(pf3())
        elif ks < 27:
            a("s_waitcnt lgkmcnt(7)")
        r = readsVA(ks + 2) if ks + 2 < 28 else []
        k = max(len(r) - 4, 0)
        a(m[0])
        for x in r[:k]:
            a(x)
        a(m[1])
        for x in r[k:]:
            a(x)
        a(m[2])
        if ks >= 16:
            assert vm.q.count(("A", 6)) == 5
            for _ in range(7):
                if fillA: a(fillA.pop(0))
        nd = 2 if (len(pend) > 4 or st < 1) else 1
        for _ in range(nd):
            if pend:
                emit_group(pend.pop(0))
    assert not fillA and not pend
    stamp(a, "p1_aend")
    VB = ACC + 48

    def passVB(z, fill):
        nrd = 1 if z else 2
        for ks in range(NBV - 1):
            for x in readsVB(ks, z):
                a(x)
        for ks in range(28):
            f = WBV[ks % NBV]
            c = vr(VB, 16)
            ops = f"{vr(f, 4)}, {vr(X+4*ks, 4)}" if z else f"{vr(X+4*ks, 4)}, {vr(f, 4)}"
            a(f"s_waitcnt lgkmcnt({min(NBV - 2, 27 - ks) * nrd})")
            a(f"{MFMA} {c}, {ops}, {'0' if ks == 0 else c}")
            if ks + NBV - 1 < 28:
                for x in readsVB(ks + NBV - 1, z):
                    a(x)
            for _ in range(3):
                if fill: a(fill.pop(0))
        assert not fill

    a(f"s_cmp_eq_u32 s{sGRP}, 1\ns_cbranch_scc1 k1_vg1")
    passVB(False, ["s_nop 1"] + epi_v(ACC, 0) + epi_v(ACC + 16, 1) + epi_v(ACC + 32, 2))
    a(f"""
    s_mul_i32 s{sHOFF}, s{sTILE}, {TQ}
    s_lshl_b32 s{sT1}, s{sJ}, 9
    s_add_u32 s{sHOFF}, s{sHOFF}, s{sT1}
    s_add_u32 s{sHOFF}, s{sHOFF}, {VF + 192 * 16 - 14 * 512}
    s_add_u32 s{sHOFF2}, s{sHOFF}, 14336
    s_nop 7
    """)
    for x in epi_v(VB, 0):
        a(x)
    stamp(a, "p1_bend")
    a(f"""
    s_waitcnt vmcnt(0)
    s_barrier
    """)
    stamp(a, "p1_end")
    a(f"""
    s_cmp_lg_u32 s{sW}, 3
    s_cbranch_scc1 k1_noflag_v
    s_mov_b32 s{sT0}, {FQ}
    buffer_store_dword v{vNON}, v{vDG}, {sr4(S_WS)}, s{sT0} offen{SC}
    """)
    a(flag1(a, sFHA))
    a.label("k1_noflag_v")
    a("s_branch att_spin")
    a.label("k1_vg1")
    a("s_nop 7")
    for x in epi_v(ACC, 0) + epi_v(ACC + 16, 1) + epi_v(ACC + 32, 2):
        a(x)
    stamp(a, "p1_bend")
    a(f"""
    s_waitcnt vmcnt(0)
    s_barrier
    """)
    stamp(a, "p1_end")
    a(f"s_mov_b32 s{sHOFF2}, {OOB}\ns_cmp_eq_u32 s{sJ}, 14\ns_cbranch_scc1 gemm_role")
    passVB(True, [])
    t = WF
    a(f"""
    s_nop 7
    s_nop 3
    v_mul_f32 v{t}, s{sNL2E}, v{VB}
    v_exp_f32 v{t}, v{t}
    v_and_b32 v{t+1}, 31, v{vLane}
    v_add_f32 v{t}, 1.0, v{t}
    v_rcp_f32 v{t}, v{t}
    v_lshlrev_b32 v{t+1}, 2, v{t+1}
    s_lshl_b32 s{sT0}, s{sTILE}, 7
    s_add_u32 s{sT0}, s{sT0}, {GF}
    buffer_store_dword v{t}, v{t+1}, {sr4(S_WS)}, s{sT0} offen{SC}
    s_waitcnt vmcnt(0)
    """)
    a.label("gemm_role")
    for i in range(8):
        for x in wpref(i):
            a(x)
    a.label("gemm_role2")
    gen_gemm(a, wpref)
    gen_attention(a)
    a.label("k_end")
    a("s_endpgm")
    return a.text()


vAWr = 16
RB = [0, 98304]


def wtr_setup(a):
    a(f"""
    v_bfe_u32 v{vT0}, v{vLane}, 4, 1
    v_bfe_u32 v{vT1}, v{vLane}, 2, 2
    v_and_b32 v{vT2}, 2, v{vT1}
    v_xor_b32 v{vT2}, v{vT2}, v{vT0}
    s_and_b32 s{sT0}, s{sKQ}, 1
    s_lshl_b32 s{sT0}, s{sT0}, 1
    v_xor_b32 v{vT2}, s{sT0}, v{vT2}
    v_lshrrev_b32 v{vT3}, 5, v{vLane}
    v_lshl_add_u32 v{vT3}, v{vT3}, 2, v{vT1}
    v_lshlrev_b32 v{vT3}, 7, v{vT3}
    v_lshl_add_u32 v{vT3}, v{vT2}, 5, v{vT3}
    v_and_b32 v{vT2}, 3, v{vLane}
    v_lshl_add_u32 v{vT3}, v{vT2}, 3, v{vT3}
    v_add_u32 v{vAWr}, s{sM0}, v{vT3}
    v_xor_b32 v{vAWr+1}, 64, v{vAWr}
    v_add_u32 v{vAWr+2}, {RB[1]}, v{vAWr}
    v_add_u32 v{vAWr+3}, {RB[1]}, v{vAWr+1}
    v_mov_b32 v{vAWr+4}, v{vT3}
    """)


def wtr_reads(slot, dst):
    ra = ring_addr(slot)
    bi = max(i for i in range(2) if RB[i] <= ra)
    out = []
    for T in range(2):
        for q in range(2):
            out.append(f"ds_read_b64_tr_b16 {vr(dst+4*T+2*q, 2)}, v{vAWr+2*bi+T} offset:{ra - RB[bi] + q*1024}")
    return out


def bcast_poll(a, tag, leader, addrs, soff, vtmp, sleep, ldsoff, pre=None, lsleep=2, skip_if_set=False):
    if skip_if_set:
        a(f"""
        v_mov_b32 v{vT0}, {CNT + ldsoff}
        ds_read_b32 v{vT1}, v{vT0}
        s_waitcnt lgkmcnt(0)
        v_readfirstlane_b32 s{sT0}, v{vT1}
        s_cmp_eq_u32 s{sT0}, 1
        s_cbranch_scc1 {tag}_go
        """)
    a(f"s_cmp_lg_u32 s{sW}, {leader}\ns_cbranch_scc1 {tag}_lw")
    if pre:
        pre()
    poll(a, addrs, soff, vtmp, sleep)
    a.label(f"{tag}_ok")
    lds_set(a, ldsoff, 1, vT0)
    a(f"s_branch {tag}_go")
    a.label(f"{tag}_lw")
    lds_wait(a, ldsoff, vT0, "eq1", lsleep)
    a.label(f"{tag}_go")


def gen_gemm(a, wpref):
    ACC = 64
    ACT = 128
    WFB = [32, 40]
    vA0, vA1, vG0, vFl, vFl2, vMB = 21, 22, 23, 25, 24, 26
    sA0, sB0w, sFH2, sMO2, sDONE, sNEW, sH = 45, 46, 47, 48, 49, 50, 52
    DA = GDA
    stamp(a, "x_role")
    wtr_setup(a)
    srd(a, S_WO, P_WO, 448 * 448 * 2)
    srd(a, S_OUT, P_OUT, 2048 * 448 * 2)
    a(f"""
    s_lshr_b32 s{sMO2}, s{sKQ}, 1
    s_mul_i32 s{sT0}, s{sMO2}, {112 * 1024}
    v_add_u32 v{vA0}, s{sT0}, v{vL16}
    s_sub_u32 s{sT0}, {112 * 1024}, s{sT0}
    v_add_u32 v{vA1}, s{sT0}, v{vL16}
    s_lshr_b32 s{sT1}, s{sMT}, 1
    s_lshl_b32 s{sT1}, s{sT1}, 9
    s_add_u32 s{sT1}, s{sT1}, {FH}
    s_lshl_b32 s{sFH2}, s{sMT}, 10
    s_add_u32 s{sFH2}, s{sFH2}, {FHB}
    s_mul_i32 s{sA0}, s{sMT}, 224
    s_add_u32 s{sA0}, s{sA0}, s{sKQ}
    s_lshl_b32 s{sA0}, s{sA0}, 10
    s_add_u32 s{sA0}, s{sA0}, {HF}
    s_mul_i32 s{sB0w}, s{sKQ}, {112 * 896}
    s_lshl_b32 s{sT0}, s{sNT}, 7
    s_add_u32 s{sB0w}, s{sB0w}, s{sT0}
    v_and_b32 v{vFl}, 0x1ff, v{vFLA}
    v_and_b32 v{vFl2}, 0x3ff, v{vFLA}
    s_add_u32 s{sT2}, s{sM0}, {MERGE + MBOX}
    v_add_u32 v{vMB}, s{sT2}, v{vL16}
    s_sub_u32 s{sHOFF}, s{sHOFF2}, 2048
    s_cmp_lt_u32 s{sI32}, 28
    s_cbranch_scc1 gemm_has
    """)

    def hb_all():
        lds_wait(a, 24, vT0, "eq4", 1)
        a(f"""
        ds_read_b128 {vr(HBR+8, 4)}, v{vMB}
        ds_read_b128 {vr(HBR+12, 4)}, v{vMB} offset:1024
        """)

    def hb_st():
        return hb_stores() + [f"buffer_store_dwordx4 {vr(HBR+8+4*i, 4)}, v{vL16}, {sr4(S_WS)}, s{sHOFF} offen offset:{1024*i}{SC}" for i in range(2)]
    hb_all()
    a("s_waitcnt lgkmcnt(0)")
    for x in hb_st():
        a(x)
    a("s_waitcnt vmcnt(0)")
    a(flag1(a, sFHO))
    a("s_endpgm")
    a.label("gemm_has")
    a(f"""
    s_cmp_lg_u32 s{sW}, 4
    s_cbranch_scc1 g_noe
    buffer_load_dword v{vG0}, v{vFl}, {sr4(S_WS)}, s{sT1} offen{SC}
    s_waitcnt vmcnt(0)
    v_cmp_ne_u32 vcc, s{sNONCE}, v{vG0}
    s_nop 1
    s_cmp_eq_u64 vcc, 0
    s_cbranch_scc0 g_noe
    """)
    lds_set(a, 8, 1, vT0)
    a.label("g_noe")
    hb_all()
    vm = VM()
    for i in range(0, 8):
        vm.add(("w", i))

    def act_loads(i):
        r = ACT + 8 * (i % DA)
        a(f"""
        s_add_u32 s{sT0}, s{sA0}, {wk_off(i) * 1024}
        buffer_load_dwordx4 {vr(r, 4)}, v{vA0}, {sr4(S_WS)}, s{sT0} offen{SC}
        buffer_load_dwordx4 {vr(r+4, 4)}, v{vA1}, {sr4(S_WS)}, s{sT0} offen{SC}
        """)
        vm.add(("a", i)); vm.add(("a", i))

    def w_loads(i):
        if i < 28:
            for x in wpref(i):
                a(x)
        else:
            ra = ring_addr(wslot(i))
            off = (28 * ((i - 28) // 2) + 16 * ((i - 28) % 2)) * 896
            a(f"""
            s_add_u32 m0, s{sM0}, {ra}
            s_add_u32 s{sT0}, s{sB0w}, {off}
            buffer_load_dwordx4 v{vDW}, {sr4(S_WO)}, s{sT0} offen lds
            s_add_u32 m0, s{sM0}, {ra + 1024}
            s_add_u32 s{sT0}, s{sT0}, {8 * 896}
            buffer_load_dwordx4 v{vDW}, {sr4(S_WO)}, s{sT0} offen lds
            """)
        vm.add(("w", i)); vm.add(("w", i))

    na, nw = 0, 8
    a("s_waitcnt lgkmcnt(0)")
    for x in hb_st():
        a(x); vm.add(("hb",))
    bcast_poll(a, "gA", 4, [vFl], sT1, vG0, SLEEP_H, 8, skip_if_set=True)
    stamp(a, "x_go"); stamp(a, "x_loop")
    for i in range(GPRE):
        act_loads(na); na += 1
    a(f"s_waitcnt vmcnt({vm.wait({('w', 0)})})")
    for x in wtr_reads(0, WFB[0]):
        a(x)
    gotB = False
    for i in range(28):
        need = {("a", i)}
        if i + 1 < 28:
            need.add(("w", i + 1))
        a(f"s_waitcnt vmcnt({vm.wait(need)}) lgkmcnt(0)")
        if i + 1 < 28:
            for x in wtr_reads((i + 1) % 13, WFB[(i + 1) % 2]):
                a(x)
        for mt in range(2):
            for T in range(2):
                c = vr(ACC + 32 * mt + 16 * T, 16)
                a(f"{MFMA} {c}, {vr(WFB[i%2]+4*T, 4)}, {vr(ACT+8*(i%DA)+4*mt, 4)}, {'0' if i == 0 else c}")
        if i == 0:
            a(flag1(a, sFHO))
        if i == GB_AT:
            stamp(a, "g_b0")
            bcast_poll(a, "gB", 4, [vFl2], sFH2, vPOL, SLEEP_H, 12)
            stamp(a, "g_b1")
            gotB = True
            a(f"""
            v_and_b32 v{vT0}, 31, v{vLane}
            v_lshlrev_b32 v{vT0}, 2, v{vT0}
            s_lshl_b32 s{sT1}, s{sMT}, 1
            s_add_u32 s{sT1}, s{sT1}, s{sMO2}
            s_lshl_b32 s{sT1}, s{sT1}, 7
            s_add_u32 s{sT1}, s{sT1}, {GF}
            buffer_load_dword v{vG0}, v{vT0}, {sr4(S_WS)}, s{sT1} offen{SC}
            """)
            vm.add(("g",))
        for _ in range(2):
            if na < 28 and na <= i + DA and (na < 14 or gotB):
                act_loads(na); na += 1
            if nw < 36 and nw <= i + min(13, DA + 1) and (nw < 28 or wslot(nw) + 13 <= i):
                w_loads(nw); nw += 1
    assert na == 28
    while nw < 36:
        w_loads(nw); nw += 1
    stamp(a, "x_lend")
    XS = [0, 1, 6, 7]
    R, AA, SL = 128, ACC + 16, 128
    vX0, vX1, vC1, vOUT, vWa = 26, 27, 28, 30, 29

    def xaddr(reg, x):
        a(f"""
        s_xor_b32 s{sT0}, s{sKQ}, {x}
        s_lshl_b32 s{sT0}, s{sT0}, 11
        v_add_u32 v{reg}, s{sT0}, v{vL16}
        v_add_u32 v{reg+1}, {RB[1]}, v{reg}
        """)

    def xo(i):
        ra = ring_addr(XS[i // 2]) + (i % 2) * 1024
        return (vX0, ra) if ra < RB[1] else (vX1, ra - RB[1])

    def gsync(off, tag):
        a(f"""
        v_mov_b32 v{vC1}, {CNT + off}
        v_mov_b32 v{vT0}, 1
        s_waitcnt vmcnt(0) lgkmcnt(0)
        s_mov_b64 exec, 1
        ds_add_u32 v{vC1}, v{vT0}
        s_mov_b64 exec, -1
        """)
        a.label(tag)
        a(f"""
        ds_read_b32 v{vT0}, v{vC1}
        s_waitcnt lgkmcnt(0)
        v_readfirstlane_b32 s{sT0}, v{vT0}
        s_cmp_eq_u32 s{sT0}, 4
        s_cbranch_scc1 {tag}_d
        s_sleep 1
        s_branch {tag}
        """)
        a.label(f"{tag}_d")

    a("s_setprio 3")
    xaddr(vX0, 0)
    a("s_nop 7")
    for i in range(8):
        r_, o_ = xo(i)
        a(f"ds_write_b128 v{r_}, {vr(ACC+32+4*i, 4)} offset:{o_}")
    xaddr(vX0, 2)
    gsync(16, "gs1")
    for i in range(8):
        r_, o_ = xo(i)
        a(f"ds_read_b128 {vr(R+4*i, 4)}, v{r_} offset:{o_}")
    a("s_waitcnt lgkmcnt(0)")
    for i in range(16, 32):
        a(f"v_add_f32 v{ACC+i}, v{ACC+i}, v{R+i}")
    for i in range(4):
        r_, o_ = xo(i)
        a(f"ds_write_b128 v{r_}, {vr(ACC+16+4*i, 4)} offset:{o_}")
    for i in range(16):
        a(f"v_add_f32 v{ACC+i}, v{ACC+i}, v{R+i}")
    xaddr(vX0, 3)
    gsync(28, "gs2")
    for i in range(4):
        r_, o_ = xo(i)
        a(f"ds_read_b128 {vr(R+4*i, 4)}, v{r_} offset:{o_}")
    a(f"""
    v_sub_f32 v{vT2}, 1.0, v{vG0}
    s_lshl_b32 s{sT1}, s{sMT}, 1
    s_add_u32 s{sT1}, s{sT1}, s{sMO2}
    s_lshl_b32 s{sFH2}, s{sT1}, 9
    s_add_u32 s{sFH2}, s{sFH2}, {FO}
    s_lshl_b32 s{sA0}, s{sT1}, 15
    s_add_u32 s{sA0}, s{sA0}, {OF}
    s_mul_i32 s{sT2}, s{sT1}, {32 * 896}
    s_lshl_b32 s{sT1}, s{sNT}, 7
    s_add_u32 s{sT2}, s{sT2}, s{sT1}
    s_and_b32 s{sT1}, s{sKQ}, 1
    s_lshl_b32 s{sT1}, s{sT1}, 6
    s_add_u32 s{sT2}, s{sT2}, s{sT1}
    v_and_b32 v{vFl}, 31, v{vLane}
    v_mul_u32_u24 v{vOUT}, 896, v{vFl}
    v_lshrrev_b32 v{vT3}, 5, v{vLane}
    v_lshl_add_u32 v{vOUT}, v{vT3}, 4, v{vOUT}
    v_and_b32 v{vFl}, 0x1ff, v{vFLA}
    s_mov_b32 s{sDONE}, 0xffff0000
    s_mov_b32 s{sSPIN}, {SPIN_MAX}
    s_waitcnt lgkmcnt(0)
    """)
    for i in range(16):
        a(f"v_add_f32 v{ACC+i}, v{ACC+i}, v{R+i}")
    for i in range(16):
        a(f"v_mul_f32 v{ACC+i}, v{ACC+i}, v{vT2}")
        a(f"v_mov_b32 v{AA+i}, 0")
    a("s_setprio 1")
    stamp(a, "p3_poll")
    sNB = 53
    a(f"s_mov_b32 s{sNB}, 0\ns_mov_b32 s{sNEW}, 0")
    a.label("p3_poll")
    a(f"""
    buffer_load_dword v{vPOL}, v{vFl}, {sr4(S_WS)}, s{sFH2} offen{SC}
    s_cmp_eq_u32 s{sNB}, 0
    s_cbranch_scc1 p3_chk
    s_waitcnt vmcnt(1) lgkmcnt(0)
    """)
    a.label("p3_run")
    for k in range(8):
        o, w = SL + 16 * k, SL + 16 * k + 8
        a(f"""
        {MFMA} {vr(AA, 16)}, {vr(w, 4)}, {vr(o, 4)}, {vr(AA, 16)}
        {MFMA} {vr(AA, 16)}, {vr(w+4, 4)}, {vr(o+4, 4)}, {vr(AA, 16)}
        """)
        if k < 7:
            a(f"s_cmp_eq_u32 s{sNB}, {k+1}\ns_cbranch_scc1 p3_ran")
    a.label("p3_ran")
    a(f"""
    s_mov_b32 s{sNB}, 0
    s_cmp_eq_u32 s{sDONE}, -1
    s_cbranch_scc1 p3_fin
    """)
    a.label("p3_chk")
    a(f"""
    s_waitcnt vmcnt(0)
    v_cmp_eq_u32 vcc, s{sNONCE}, v{vPOL}
    s_sub_u32 s{sSPIN}, s{sSPIN}, 1
    s_cbranch_scc1 p3_fin
    s_andn2_b32 s{sNEW}, vcc_lo, s{sDONE}
    s_cbranch_scc1 p3_batch
    s_sleep {SLEEP_O}
    s_branch p3_poll
    """)
    a.label("p3_batch")
    for k in range(8):
        o, w = SL + 16 * k, SL + 16 * k + 8
        a(f"""
        s_ff1_i32_b32 s{sH}, s{sNEW}
        s_bitset0_b32 s{sNEW}, s{sH}
        s_bitset1_b32 s{sDONE}, s{sH}
        s_lshl_b32 s{sT0}, s{sH}, 11
        s_add_u32 s{sT0}, s{sT0}, s{sA0}
        buffer_load_dwordx4 {vr(o, 4)}, v{vL16}, {sr4(S_WS)}, s{sT0} offen{SC}
        buffer_load_dwordx4 {vr(o+4, 4)}, v{vL16}, {sr4(S_WS)}, s{sT0} offen offset:1024{SC}
        s_bitcmp1_b32 s{sH}, 1
        s_cselect_b32 s{sT0}, 0, {ring_addr(2)}
        s_and_b32 s{sT1}, s{sH}, 1
        s_lshl_b32 s{sT1}, s{sT1}, 14
        s_add_u32 s{sT0}, s{sT0}, s{sT1}
        s_lshr_b32 s{sT1}, s{sH}, 2
        s_lshl_b32 s{sT1}, s{sT1}, 11
        s_add_u32 s{sT0}, s{sT0}, s{sT1}
        v_add_u32 v{vWa}, s{sT0}, v{vAWr+4}
        ds_read_b64_tr_b16 {vr(w, 2)}, v{vWa}
        ds_read_b64_tr_b16 {vr(w+2, 2)}, v{vWa} offset:1024
        ds_read_b64_tr_b16 {vr(w+4, 2)}, v{vWa} offset:8192
        ds_read_b64_tr_b16 {vr(w+6, 2)}, v{vWa} offset:9216
        s_mov_b32 s{sNB}, {k+1}
        """)
        if k >= 2:
            a("s_waitcnt lgkmcnt(8)")
        if k < 7:
            a(f"s_cmp_eq_u32 s{sNEW}, 0\ns_cbranch_scc1 p3_iss")
    a.label("p3_iss")
    a(f"""
    s_cmp_lg_u32 s{sDONE}, -1
    s_cbranch_scc1 p3_poll
    s_waitcnt vmcnt(0) lgkmcnt(0)
    s_branch p3_run
    """)
    a.label("p3_fin")
    stamp(a, "p3_mfma")
    a("s_nop 7\ns_nop 1")
    t = 96
    for i in range(16):
        a(f"v_fma_f32 v{ACC+i}, v{AA+i}, v{vG0}, v{ACC+i}")
    for i in range(8):
        a(f"v_cvt_pk_bf16_f32 v{t+i}, v{ACC+2*i}, v{ACC+2*i+1}")
    a(f"""
    v_permlane32_swap_b32 v{t}, v{t+2}
    v_permlane32_swap_b32 v{t+1}, v{t+3}
    buffer_store_dwordx4 {vr(t, 4)}, v{vOUT}, {sr4(S_OUT)}, s{sT2} offen
    v_permlane32_swap_b32 v{t+4}, v{t+6}
    v_permlane32_swap_b32 v{t+5}, v{t+7}
    buffer_store_dwordx4 {vr(t+4, 4)}, v{vOUT}, {sr4(S_OUT)}, s{sT2} offen offset:32
    """)
    amp_end(a, 'g')
    if "dbgt" in OPT:
        a(f"""
        s_cmp_ge_u32 s2, 7
        s_cbranch_scc1 k_end
        s_cmp_lg_u32 s{sW}, 4
        s_cbranch_scc1 k_end
        s_memtime s[90:91]
        s_memrealtime s[92:93]
        s_waitcnt lgkmcnt(0)
        s_sub_u32 s90, s90, s86
        s_sub_u32 s92, s92, s88
        v_mov_b32 v4, s90
        v_mov_b32 v5, s92
        s_lshl_b32 s3, s2, 3
        s_add_u32 s3, s3, 8
        buffer_store_dwordx2 v[4:5], v{vF1}, {sr4(S_DBG)}, s3 offen
        """)
    stamp_flush(a)
    a("s_endpgm")


def gen_attention(a):
    Q, O, S, KV, P, TMP = AQ, AO, AS, AKV, AP, ATMP
    vG, vM, vONE = avG, avM, avONE
    a.label("att_spin")
    bcast_poll(a, "aq", 0, [vFLA, vFLA + 1], sFQB, vPOL, SLEEP_Q, 4, lsleep=1)
    stamp(a, "x_go")
    o1, o2, vm, flat = att_loads()

    def k_fix(buf):
        return [f"v_cndmask_b32 v{KV+16*buf+6}, v{KV+16*buf+6}, v{vONE}, s[{sME}:{sME+1}]",
                f"v_cndmask_b32 v{KV+16*buf}, v{KV+16*buf}, v{vONE}, s[{sMO}:{sMO+1}]"]

    zer = [f"v_mov_b32 v{O+k}, 0" for k in range(12, 64)]
    for x in flat(o1):
        a(x)
    step = len(zer) // len(o2) + 1
    zz = list(zer)
    for x in o2:
        for _ in range(step):
            if zz: a(zz.pop(0))
        for y in flat([x]):
            a(y)
    a("s_branch att_main2")
    a.label("att_main")
    for x in zer:
        a(x)
    a.label("att_main2")
    stamp(a, "x_main")
    a(f"""
    s_setprio 2
    s_lshl_b32 s{sT0}, s{sKQ}, 11
    s_add_u32 s{sT0}, s{sT0}, {MERGE}
    v_add_u32 v{TMP}, s{sT0}, v{vL16}
    v_subrev_u32 v{TMP+1}, {-MBOX}, v{TMP}
    ds_write_b128 v{TMP+1}, {vr(HBR, 4)}
    ds_write_b128 v{TMP+1}, {vr(HBR+4, 4)} offset:1024
    v_mov_b32 v{vT1}, 0
    s_and_b32 s{sT0}, s{sHEAD}, 1
    s_mov_b32 s{sME}, 0
    s_mov_b32 s{sMO+1}, 0
    s_sub_u32 s{sME+1}, s{sT0}, 1
    s_sub_u32 s{sMO}, 0, s{sT0}
    v_mov_b32 v{avV0}, v{vT2}
    v_mov_b32 v{avV1}, v{vT3}
    v_mov_b32 v{vONE}, 0x3f803f80
    v_mov_b32 v{TMP+1}, {CNT + 24}
    v_mov_b32 v{TMP+2}, 1
    s_waitcnt vmcnt({vm.wait({('q',), ('kv', 0, 1)})})
    v_cndmask_b32 v{Q}, v{Q}, v{vT1}, s[{sMO}:{sMO+1}]
    v_cndmask_b32 v{Q+1}, v{Q+1}, v{vT1}, s[{sMO}:{sMO+1}]
    v_cndmask_b32 v{Q+6}, v{Q+6}, v{vT1}, s[{sME}:{sME+1}]
    v_cndmask_b32 v{Q+7}, v{Q+7}, v{vT1}, s[{sME}:{sME+1}]
    {MFMA} {vr(S[1], 16)}, {vr(KV, 4)}, {vr(Q, 4)}, 0
    s_nop 0
    {MFMA} {vr(S[1], 16)}, {vr(KV+4, 4)}, {vr(Q+4, 4)}, {vr(S[1], 16)}
    """)
    stamp(a, "x_q")
    for x in k_fix(0):
        a(x)
    for k in range(12):
        a(f"v_mov_b32 v{O+k}, 0")
    s0 = S[1]
    a(f"""
    v_max3_f32 v{vM}, v{s0}, v{s0+1}, v{s0+2}
    v_max3_f32 v{vT0}, v{s0+3}, v{s0+4}, v{s0+5}
    v_max3_f32 v{vT2}, v{s0+6}, v{s0+7}, v{s0+8}
    v_max3_f32 v{vT3}, v{s0+9}, v{s0+10}, v{s0+11}
    v_max3_f32 v{vM}, v{vM}, v{s0+12}, v{s0+13}
    v_max3_f32 v{vT0}, v{vT0}, v{s0+14}, v{s0+15}
    v_max3_f32 v{vM}, v{vM}, v{vT2}, v{vT3}
    v_max_f32 v{vM}, v{vM}, v{vT0}
    v_mov_b32 v{vT0}, v{vM}
    s_nop 1
    v_permlane32_swap_b32 v{vM}, v{vT0}
    v_max_f32 v{vM}, v{vM}, v{vT0}
    v_sub_f32 v{vM}, 0, v{vM}
    v_cvt_pk_bf16_f32 v{vT0}, v{vM}, v{vM}
    v_lshlrev_b32 v{vT0}, 16, v{vT0}
    v_sub_f32 v{vT0}, v{vM}, v{vT0}
    v_cvt_pk_bf16_f32 v{vT0}, v{vM}, v{vT0}
    v_cndmask_b32 v{Q}, v{Q}, v{vT0}, s[{sMO}:{sMO+1}]
    v_cndmask_b32 v{Q+6}, v{Q+6}, v{vT0}, s[{sME}:{sME+1}]
    ds_write_b128 v{TMP}, {vr(Q, 4)}
    ds_write_b128 v{TMP}, {vr(Q+4, 4)} offset:1024
    {MFMA} {vr(S[0], 16)}, {vr(KV, 4)}, {vr(Q, 4)}, 0
    {MFMA} {vr(S[0], 16)}, {vr(KV+4, 4)}, {vr(Q+4, 4)}, {vr(S[0], 16)}
    s_waitcnt lgkmcnt(0)
    s_mov_b64 exec, 1
    ds_add_u32 v{TMP+1}, v{TMP+2}
    s_mov_b64 exec, -1
    """)
    for x in kv_adv()[:3]:
        a(x)
    for i in range(4):
        a(f"v_mov_b32 v{P+4+i}, 0\nv_mov_b32 v{KV+16*3+12+i}, v{vONE}\nv_mov_b32 v{KV+16*3+8+i}, v{vONE}")
    for i in range(1, 4):
        a(f"""
        s_add_u32 s{sT0}, s{sKQ}, {i}
        s_and_b32 s{sT0}, s{sT0}, 3
        s_lshl_b32 s{sT0}, s{sT0}, 11
        s_add_u32 s{sT0}, s{sT0}, {MERGE}
        v_add_u32 v{TMP+2+i}, s{sT0}, v{vL16}
        s_add_u32 s{sT0}, s{sKQ}, {i}
        s_and_b32 s{sT0}, s{sT0}, 3
        s_mul_i32 s{sT0}, s{sT0}, 12288
        s_add_u32 s{sT0}, s{sT0}, {MERGE + (i-1) * 4096}
        v_add_u32 v{TMP+8+i-1}, s{sT0}, v{vL16}
        """)
    a(f"""
    s_mul_i32 s{sT0}, s{sKQ}, 12288
    s_add_u32 s{sT0}, s{sT0}, {MERGE}
    v_add_u32 v{TMP+11}, s{sT0}, v{vL16}
    v_mov_b32 v{TMP+12}, {CNT}
    v_mov_b32 v{TMP+13}, 1
    """)
    stamp(a, "x_qs")
    a.label("att_qsync")
    a(f"""
    ds_read_b32 v{TMP+2}, v{TMP+1}
    s_waitcnt lgkmcnt(0)
    v_cmp_gt_u32 vcc, 4, v{TMP+2}
    s_cbranch_vccnz att_qsync
    """)
    for i in range(1, 4):
        a(f"ds_read_b128 {vr(Q+8*i, 4)}, v{TMP+2+i}\nds_read_b128 {vr(Q+8*i+4, 4)}, v{TMP+2+i} offset:1024")
    a("s_waitcnt lgkmcnt(0)")
    a(f"s_mov_b32 s{sIT}, 0")
    stamp(a, "x_loop")
    vMW, vMR, vMC, vM1 = TMP + 8, TMP + 11, TMP + 12, TMP + 13

    def phase(ph, cur, prev, nxt, s_pv2=[], s_qk1=[], s_qk2=[], s_pv1=[], tail=[]):
        sc, sn = S[ph % 2], S[1 - ph % 2]
        e = [f"v_exp_f32 v{sc+i}, v{sc+i}" for i in range(16)]
        c = [f"v_cvt_pk_bf16_f32 v{P+i}, v{sc+2*i}, v{sc+2*i+1}" for i in range(8)]
        pv2 = f"{MFMA} {vr(O+16*prev[1], 16)}, {vr(KV+16*prev[0]+12, 4)}, {vr(P+4, 4)}, {vr(O+16*prev[1], 16)}"
        pv1 = f"{MFMA} {vr(O+16*cur[1], 16)}, {vr(KV+16*cur[0]+8, 4)}, {vr(P, 4)}, {vr(O+16*cur[1], 16)}"
        qk1, qk2 = [], []
        if nxt:
            qk1 = [f"{MFMA} {vr(sn, 16)}, {vr(KV+16*nxt[0], 4)}, {vr(Q+8*nxt[1], 4)}, 0"]
            qk2 = [f"{MFMA} {vr(sn, 16)}, {vr(KV+16*nxt[0]+4, 4)}, {vr(Q+8*nxt[1]+4, 4)}, {vr(sn, 16)}"]
        seq = e[0:2] + [pv2] + s_pv2 + e[2:5] + qk1 + s_qk1 + e[5:9] + c[0:4] + qk2 + s_qk2 + e[9:12] + [pv1] + s_pv1 + e[12:16] + tail + c[4:8]
        for x in seq:
            a(x)

    a.label("att_loop")
    for tb in range(4):
        for q in range(4):
            adv = kv_adv()
            s_pv2, s_qk1, s_qk2, s_pv1, tail = [], [], [], [], []
            s_qk1 += kv_load((tb + 3) % 4, q, (avV0, avV1))
            if q == 0:
                s_pv2.append(adv[3])
                s_qk2.append("s_waitcnt vmcnt(9)")
                s_pv1.append(adv[4])
            if q == 1:
                if tb == 0:
                    s_pv2.append(f"s_cmp_eq_u32 s{sIT}, 3")
                    s_qk2.append(f"s_cselect_b32 s{sKB}, {OOB}, s{sKB}")
                    s_pv1.append(f"s_cselect_b32 s{sVB}, {OOB}, s{sVB}")
                if tb == 3:
                    s_pv1.append(f"s_add_u32 s{sIT}, s{sIT}, 1")
            if q == 2:
                s_pv2.append(f"s_mul_i32 s{sT0}, s{sTI}, {TQ}")
                s_qk2.append(f"s_add_u32 s{sKS}, s{sT0}, s{sKB}")
                s_pv1.append("s_waitcnt vmcnt(9)")
                if tb == 2:
                    s_pv1.append(f"s_cmp_eq_u32 s{sIT}, 3")
                tail = k_fix((tb + 1) % 4)
            if q == 3:
                s_qk2.append(f"s_add_u32 s{sVS}, s{sT0}, s{sVB}")
            phase(4 * tb + q, (tb, q), (tb if q > 0 else (tb - 1) % 4, (q - 1) % 4), (tb if q < 3 else (tb + 1) % 4, (q + 1) % 4),
                  s_pv2, s_qk1, s_qk2, s_pv1, tail)
            if tb == 2 and q == 2:
                a("s_cbranch_scc1 att_peel")
    a("s_branch att_loop")
    a.label("att_peel")

    def mw(i, lo, hi):
        return [f"ds_write_b128 v{vMW+i-1}, {vr(O+16*i+4*k, 4)} offset:{1024*k}" for k in range(lo, hi)]
    sa = L(f"""
    s_lshl_b32 s{sT2}, s{sQB}, 2
    s_add_u32 s{sT2}, s{sT2}, s{sKQ}
    s_lshl_b32 s{sT2}, s{sT2}, 4
    s_add_u32 s{sT2}, s{sT2}, s{sHEAD}
    s_lshl_b32 s{sKB}, s{sT2}, 11
    s_add_u32 s{sKB}, s{sKB}, {OF}
    s_lshr_b32 s{sVB}, s{sT2}, 2
    s_lshl_b32 s{sVB}, s{sVB}, 7
    s_and_b32 s{sT2}, s{sT2}, 3
    s_lshl_b32 s{sT2}, s{sT2}, 2
    s_add_u32 s{sVB}, s{sVB}, s{sT2}
    s_add_u32 s{sVB}, s{sVB}, {FO}
    s_mov_b32 s{sT0}, {f32bits(2.0**-10):#x}
    s_mov_b32 s{sT1}, {f32bits(2.0**100):#x}
    """)
    phase(11, (2, 3), (2, 2), (3, 1), sa[0:1], sa[1:2], sa[2:3], sa[3:4])
    phase(12, (3, 1), (2, 3), (3, 2), sa[4:5], sa[5:6], ["s_waitcnt vmcnt(0)"], sa[6:7])
    phase(13, (3, 2), (3, 1), (3, 3), sa[7:8], sa[8:9], mw(1, 0, 2), mw(1, 2, 4))
    phase(14, (3, 3), (3, 2), (3, 0), sa[9:10], sa[10:11], mw(2, 0, 2), mw(2, 2, 4))
    phase(15, (3, 0), (3, 3), None, sa[11:14], [], ["s_nop 0"] + mw(3, 0, 4), [],
          ["s_waitcnt lgkmcnt(0)", "s_mov_b64 exec, 1", f"ds_add_u32 v{vMC}, v{vM1}", "s_mov_b64 exec, -1"])
    a(f"""
    v_cmp_lt_u32 s[18:19], 31, v{vLane}
    s_nop 0
    {MFMA} {vr(O, 16)}, {vr(KV+16*3+12, 4)}, {vr(P+4, 4)}, {vr(O, 16)}
    """)
    stamp(a, "x_lend")
    a.label("att_msync")
    a(f"""
    ds_read_b32 v{vT2}, v{vMC}
    s_waitcnt lgkmcnt(0)
    v_cmp_gt_u32 vcc, 4, v{vT2}
    s_cbranch_vccnz att_msync
    """)
    stamp(a, "x_msync")
    for i in range(12):
        a(f"ds_read_b128 {vr(O+16+4*i, 4)}, v{vMR} offset:{1024*i}")
    a("s_mov_b64 vcc, s[18:19]")
    for k in range(3):
        a(f"s_waitcnt lgkmcnt({8 - 4*k})")
        for i in range(16):
            a(f"v_add_f32 v{O+i}, v{O+i}, v{O+16+16*k+i}")
    C = O + 16
    a(f"""
    v_mov_b32 v{vT0}, v{O+12}
    v_mov_b32 v{vT1}, v{O+12}
    """)
    for k in range(4):
        a(f"v_mul_f32 v{C+k}, 0, v{O+4*k}")
    a(f"v_permlane32_swap_b32 v{vT0}, v{vT1}")
    for i in range(1, 4):
        for k in range(4):
            a(f"v_fma_f32 v{C+k}, v{O+4*k+i}, 0, v{C+k}")
    a(f"""
    v_rcp_f32 v{vT2}, v{vT1}
    v_add_f32 v{C}, v{C}, v{C+1}
    v_add_f32 v{C+2}, v{C+2}, v{C+3}
    v_add_f32 v{C}, v{C}, v{vT1}
    v_add_f32 v{C}, v{C}, v{C+2}
    v_cmp_le_f32 s[28:29], s{sT0}, v{C}
    v_cmp_ge_f32 s[16:17], s{sT1}, v{C}
    s_and_b64 s[28:29], s[28:29], s[16:17]
    s_cmp_eq_u64 s[28:29], -1
    s_cbranch_scc0 att_fallback
    """)
    a.label("att_final")
    a(f"""
    v_mov_b32 v{vT0}, 0
    """)
    for hh in range(2):
        for i in range(8):
            a(f"v_mul_f32 v{O+8*hh+i}, v{O+8*hh+i}, v{vT2}")
        for i in range(4):
            a(f"v_cvt_pk_bf16_f32 v{TMP+4*hh+i}, v{O+8*hh+2*i}, v{O+8*hh+2*i+1}")
        if hh == 1:
            a(f"v_cndmask_b32 v{TMP+6}, v{TMP+6}, v{vT0}, vcc\nv_cndmask_b32 v{TMP+7}, v{TMP+7}, v{vT0}, vcc")
        a(f"buffer_store_dwordx4 {vr(TMP+4*hh, 4)}, v{vL16}, {sr4(S_WS)}, s{sKB} offen offset:{1024*hh}{SC}")
    stamp(a, "x_ost")
    a("s_waitcnt vmcnt(0)")
    a(flag1(a, sVB))
    stamp(a, "x_b2")
    amp_end(a, 'a')
    stamp_flush(a)
    a("s_endpgm")

    a.label("att_fallback")
    sc = S[0]
    K, V = KV, KV + 8
    vMo, vMn, vAl = TMP, TMP + 1, TMP + 2
    a(f"""
    v_mov_b32 v{vT0}, 0
    v_mov_b32 v{vMo}, 0xff800000
    v_cndmask_b32 v{Q}, v{Q}, v{vT0}, s[{sMO}:{sMO+1}]
    v_cndmask_b32 v{Q+6}, v{Q+6}, v{vT0}, s[{sME}:{sME+1}]
    s_mov_b32 s{sIT}, 0
    s_lshl_b32 s{sKS}, s{sP0}, 9
    s_add_u32 s{sKS}, s{sKS}, {KF}
    s_mul_i32 s{sVS}, s{sHEAD}, 448
    s_add_u32 s{sVS}, s{sVS}, {VF}
    s_waitcnt vmcnt(0)
    """)
    for i in range(16):
        a(f"v_mov_b32 v{O+i}, 0")
    a.label("att_fb_loop")
    a(f"""
    buffer_load_dwordx4 {vr(K, 4)}, v{vL16}, {sr4(S_WS)}, s{sKS} offen{SC}
    buffer_load_dwordx4 {vr(K+4, 4)}, v{vL16}, {sr4(S_WS)}, s{sKS} offen offset:1024{SC}
    s_mov_b64 exec, s[{sVM}:{sVM+1}]
    buffer_load_dwordx4 {vr(V, 4)}, v{avV0}, {sr4(S_WS)}, s{sVS} offen{SC}
    buffer_load_dwordx4 {vr(V+4, 4)}, v{avV1}, {sr4(S_WS)}, s{sVS} offen{SC}
    s_mov_b64 exec, -1
    s_waitcnt vmcnt(0)
    {MFMA} {vr(sc, 16)}, {vr(K, 4)}, {vr(Q, 4)}, 0
    {MFMA} {vr(sc, 16)}, {vr(K+4, 4)}, {vr(Q+4, 4)}, {vr(sc, 16)}
    s_nop 15
    v_max3_f32 v{vMn}, v{vMo}, v{sc}, v{sc+1}
    """)
    for i in range(2, 16, 2):
        a(f"v_max3_f32 v{vMn}, v{vMn}, v{sc+i}, v{sc+i+1}")
    a(f"""
    v_mov_b32 v{vT0}, v{vMn}
    s_nop 1
    v_permlane32_swap_b32 v{vMn}, v{vT0}
    v_max_f32 v{vMn}, v{vMn}, v{vT0}
    v_sub_f32 v{vAl}, v{vMo}, v{vMn}
    v_exp_f32 v{vAl}, v{vAl}
    v_mov_b32 v{vMo}, v{vMn}
    """)
    for i in range(16):
        a(f"v_sub_f32 v{sc+i}, v{sc+i}, v{vMn}")
    for i in range(16):
        a(f"v_exp_f32 v{sc+i}, v{sc+i}")
    for i in range(16):
        a(f"v_mul_f32 v{O+i}, v{O+i}, v{vAl}")
    for i in range(8):
        a(f"v_cvt_pk_bf16_f32 v{P+i}, v{sc+2*i}, v{sc+2*i+1}")
    a(f"""
    s_nop 1
    {MFMA} {vr(O, 16)}, {vr(V, 4)}, {vr(P, 4)}, {vr(O, 16)}
    {MFMA} {vr(O, 16)}, {vr(V+4, 4)}, {vr(P+4, 4)}, {vr(O, 16)}
    s_add_u32 s{sKS}, s{sKS}, {TQ}
    s_add_u32 s{sVS}, s{sVS}, {TQ}
    s_add_u32 s{sIT}, s{sIT}, 1
    s_cmp_lt_u32 s{sIT}, 64
    s_cbranch_scc1 att_fb_loop
    s_nop 15
    v_mov_b32 v{vT0}, v{O+12}
    v_mov_b32 v{vT1}, v{O+12}
    s_nop 1
    v_permlane32_swap_b32 v{vT0}, v{vT1}
    v_rcp_f32 v{vT2}, v{vT1}
    s_nop 0
    s_branch att_final
    """)


def build():
    ref = open(f"cdna_kernels/{NAME}.s.ref").read().split("\n")
    hdr = [l for l in ref if l.startswith(";") and "@launch" not in l and "Override launch" not in l and "grid=ceil" not in l]
    body = gen()
    out = "\n".join(hdr) + "\n"
    out += f"; @launch grid=(256,1,1) block=(512,1,1) lds={LDS_BYTES}\n"
    out += '.amdgcn_target "amdgcn-amd-amdhsa--gfx950"\n.text\n'
    out += f".globl {KNAME}\n.p2align 8\n.type {KNAME},@function\n{KNAME}:\n"
    out += body
    out += f""".section .rodata,"a"
.p2align 6
.amdhsa_kernel {KNAME}
  .amdhsa_next_free_vgpr 256
  .amdhsa_next_free_sgpr 102
  .amdhsa_accum_offset 256
  .amdhsa_group_segment_fixed_size 0
  .amdhsa_kernarg_size 88
  .amdhsa_user_sgpr_count 2
  .amdhsa_user_sgpr_kernarg_segment_ptr 1
  .amdhsa_system_sgpr_workgroup_id_x 1
.end_amdhsa_kernel
"""
    return out


if __name__ == "__main__":
    path = sys.argv[1]
    open(path, "w").write(build())
    print("wrote", path)
```

```python
import math, struct, sys, os

NAME = "gated_mix__softmax_full_mha__swiglu_ffn__prompt"
KNAME = NAME + "_kernel"
INSTR = int(os.environ.get("INSTR", "0"))
OPT = os.environ.get("OPT", "nopf")

QF = 0
KF = 2 << 20
VF = 4 << 20
TQ = 28672
HF = 6 << 20
OF = 14 << 20
GF = 16 << 20
FQ = (16 << 20) + 0x10000
FH = (16 << 20) + 0x20000
FHB = (16 << 20) + 0x28000
MBOX = 40960 - 49152
FO = (16 << 20) + 0x40000
TSF = 24 << 20
WS_BYTES = 32 << 20
OOB = 0x40000000
SLEEP_Q = int(os.environ.get('SLQ', '6'))
SLEEP_H = int(os.environ.get('SLH', '8'))
SLEEP_O = int(os.environ.get('SLO', '2'))
LOG2E = math.log2(math.e)
MFMA = "v_mfma_f32_32x32x16_bf16"
SC = " sc1"
SLOT = 40960
LDS_BYTES = 4 * SLOT
MERGE = 49152
CNT = 155648
SPIN_MAX = 1 << int(os.environ.get('SPINLOG', '18'))


def ring_addr(s):
    if s <= 6:
        return 98304 + s * 8192
    if s == 7:
        return 32768
    if s <= 11:
        return (s - 8) * 8192
    return 40960


def wslot(i):
    return i % 13 if i < 28 else [2, 3, 4, 5, 8, 9, 10, 11][i - 28]


def f32bits(x):
    return struct.unpack("<I", struct.pack("<f", x))[0]


class Asm:
    def __init__(self):
        self.lines = []

    def __call__(self, s):
        for ln in s.strip("\n").split("\n"):
            ln = ln.strip()
            if not ln:
                continue
            self.lines.append(ln if ln.endswith(":") else "    " + ln)

    def label(self, l):
        self.lines.append(l + ":")

    def text(self):
        return "\n".join(self.lines) + "\n"


def vr(base, n):
    return f"v[{base}:{base + n - 1}]"


def sr4(b):
    return f"s[{b}:{b+3}]"


def srd(a, sd, sb, nbytes):
    a(f"""
    s_mov_b32 s{sd}, s{sb}
    s_mov_b32 s{sd+1}, s{sb+1}
    s_mov_b32 s{sd+2}, {nbytes}
    s_mov_b32 s{sd+3}, 0x00020000
    """)


def L(s):
    return [l.strip() for l in s.strip("\n").split("\n") if l.strip()]


HA_ST = int(os.environ.get('HA_ST', '13'))
EARLY_P = int(os.environ.get('EARLY_P', '24'))
QKB = int(os.environ.get('QKB', '11'))
FPER = int(os.environ.get('FPER', '4'))
PF2_ST = int(os.environ.get('PF2_ST', '0'))
PF3_ST = int(os.environ.get('PF3_ST', '2'))
GDA = int(os.environ.get('GDA', '10'))
AROT = int(os.environ.get('AROT', '15'))
WP_ST = int(os.environ.get('WP_ST', '5'))
FA_AT = int(os.environ.get('FA_AT', '24'))
PFPOS = int(os.environ.get('PFPOS', '0'))
PF_EARLY = int(os.environ.get('PF_EARLY', '0'))
PFROW = int(os.environ.get('PFROW', '128'))
NQ = (448 - PFROW) * 2688 // 1024
NG = (448 - PFROW) * 3584 // 2048
assert NQ + 2 * NG <= 2048
GPRE = int(os.environ.get('GPRE', '4'))
GB_AT = int(os.environ.get('GB_AT', '7'))

S_X, S_B0, S_G, S_U, S_WS, S_TMP, S_WD, S_DBG = 4, 8, 12, 16, 20, 24, 28, 32
S_WO, S_OUT = 8, 12
sMI, sJ, sW, sR, sGRP = 36, 37, 38, 39, 40
sKQ = 39
sT0, sT1, sT2 = 42, 43, 44
sMX, sMB, sSO = 45, 46, 47
sSC, sTILE, sHOFF, sHOFF2, sQKO = 48, 49, 50, 51, 52
sWB, sM0, sFHO, sFQB, sP0, sOK = 53, 54, 55, 56, 57, 58
sNONCE, sNL2E, sC8, sI32, sSPIN = 59, 60, 61, 62, 63
P_X, P_WQKV, P_WO, P_WG, P_WU, P_WD, P_GW, P_OUT, P_DBG, P_WS = 64, 66, 68, 72, 74, 76, 78, 80, 82, 84
ST0 = 86
sHEAD, sQB, sMT, sNT = 70, 71, 41, 3
sFHA = 65
vLane, vL16 = 1, 2
vT0, vT1, vT2, vT3 = 3, 4, 5, 6
STAMPS = os.environ.get("STAMPS", "").split(",")[:6]


AMP = os.environ.get("AMP", "")


def stamp(a, name):
    if AMP and name == "start": a("s_memrealtime s[86:87]")
    if AMP and name == AMP: a("s_memrealtime s[88:89]")
    if INSTR and (name == "start" or name in STAMPS):
        idx = 0 if name == "start" else 1 + STAMPS.index(name)
        a(f"s_memtime s[{ST0+2*idx}:{ST0+2*idx+1}]")
    if INSTR and "R" + name in STAMPS:
        idx = 1 + STAMPS.index("R" + name)
        a(f"s_memrealtime s[{ST0+2*idx}:{ST0+2*idx+1}]")


def amp_end(a, tag):
    if not AMP: return
    stamp(a, "end")
    a(f"""
    s_cmp_lg_u32 s2, {os.environ.get("AMPG", "40")}
    s_cbranch_scc1 k_end
    s_cmp_lg_u32 s{sW}, {os.environ.get("AMPW", "4")}
    s_cbranch_scc1 k_end
    s_memrealtime s[90:91]
    s_waitcnt lgkmcnt(0)
    s_sub_u32 s88, s88, s86
    s_mul_i32 s88, s88, {os.environ.get('AMPK', '1')}
    """)
    a.label(f"amp_spin{tag}")
    a(f"""
    s_memrealtime s[92:93]
    s_waitcnt lgkmcnt(0)
    s_sub_u32 s92, s92, s90
    s_cmp_lt_u32 s92, s88
    s_cbranch_scc1 amp_spin{tag}
    """)


def stamp_flush(a, vtmp=3):
    if not INSTR:
        return
    a(f"""
    s_memtime s[4:5]
    s_memrealtime s[6:7]
    s_lshl_b32 s3, s2, 3
    s_add_u32 s3, s3, s{sW}
    s_lshl_b32 s3, s3, 7
    s_add_u32 s3, s3, {TSF}
    v_mov_b32 v{vtmp+1}, 0
    s_waitcnt lgkmcnt(0)
    """)
    regs = [ST0 + 2 * i for i in range(8)] + [4, 6]
    for i, r in enumerate(regs):
        a(f"""
        v_mov_b32 v{vtmp}, s{r}
        buffer_store_dword v{vtmp}, v{vtmp+1}, {sr4(S_WS)}, s3 offen offset:{4*i}
        s_nop 1
        """)


def flag_store(a, soff_reg, vtmp):
    a(f"""
    v_mov_b32 v{vtmp}, s{sNONCE}
    v_mov_b32 v{vtmp+1}, 0
    s_mov_b64 exec, 1
    buffer_store_dword v{vtmp}, v{vtmp+1}, {sr4(S_WS)}, s{soff_reg} offen{SC}
    s_mov_b64 exec, -1
    """)


_uid = [0]


def poll(a, addrs, soff, vtmp, sleep):
    _uid[0] += 1
    u = _uid[0]
    a(f"s_mov_b32 s{sSPIN}, {SPIN_MAX}")
    a.label(f"poll_ld{u}")
    for i, va in enumerate(addrs):
        a(f"buffer_load_dword v{vtmp+i}, v{va}, {sr4(S_WS)}, s{soff} offen{SC}")
    a("s_waitcnt vmcnt(0)")
    poll_cmp(a, len(addrs), vtmp)
    a(f"""
    s_sub_u32 s{sSPIN}, s{sSPIN}, 1
    s_cbranch_scc1 poll_done{u}
    s_cmp_eq_u64 vcc, 0
    s_cbranch_scc1 poll_done{u}
    s_sleep {sleep}
    s_branch poll_ld{u}
    """)
    a.label(f"poll_done{u}")


def poll_cmp(a, n, vtmp):
    if n == 1:
        a(f"v_cmp_ne_u32 vcc, s{sNONCE}, v{vtmp}")
    else:
        a(f"""
        v_xor_b32 v{vtmp}, s{sNONCE}, v{vtmp}
        v_xor_b32 v{vtmp+1}, s{sNONCE}, v{vtmp+1}
        v_or_b32 v{vtmp}, v{vtmp}, v{vtmp+1}
        v_cmp_ne_u32 vcc, 0, v{vtmp}
        """)


def lds_set(a, off, val, vtmp):
    a(f"""
    v_mov_b32 v{vtmp}, {CNT + off}
    v_mov_b32 v{vtmp+1}, {val}
    ds_write_b32 v{vtmp}, v{vtmp+1}
    """)


def lds_wait(a, off, vtmp, cond, sleep=1):
    _uid[0] += 1
    u = _uid[0]
    a(f"v_mov_b32 v{vtmp}, {CNT + off}")
    a.label(f"lw{u}")
    a(f"""
    ds_read_b32 v{vtmp+1}, v{vtmp}
    s_waitcnt lgkmcnt(0)
    v_readfirstlane_b32 s{sT0}, v{vtmp+1}
    """)
    a(f"s_cmp_lg_u32 s{sT0}, 0" if cond == "ne0" else f"s_cmp_eq_u32 s{sT0}, {cond[2:]}")
    a(f"""
    s_cbranch_scc1 lwd{u}
    s_sleep {sleep}
    s_branch lw{u}
    """)
    a.label(f"lwd{u}")


class VM:
    def __init__(self):
        self.q = []

    def add(self, tag):
        self.q.append(tag)

    def wait(self, tags, counts=None):
        idx = max([i for i, t in enumerate(self.q) if t in tags], default=-1)
        for t in tags:
            assert t in self.q, (t, self.q)
            if counts:
                assert self.q.count(t) == counts(t), (t, self.q)
        n = len(self.q) - 1 - idx
        assert n <= 63
        return n

    def copy(self):
        v = VM(); v.q = list(self.q); return v


vFLA, vPOL, vFQO, vF1, vNON = 7, 9, 11, 12, 13
vDW = 31


def flag1(a, soff):
    return f"buffer_store_dword v{vNON}, v{vF1}, {sr4(S_WS)}, s{soff} offen{SC}"


AQ, AO, AS, AKV, AP, ATMP = 16, 48, [112, 128], 144, 208, 224
avG, avM, avONE = 14, 15, 216
sME, sMO = 24, 26
sKB, sVB, sTI, sKS, sVS, sIT = 45, 46, 47, 48, 52, 49


avV0, avV1 = 217, 218
HBR = 240


def hb_stores():
    return [f"buffer_store_dwordx4 {vr(HBR+4*i, 4)}, v{vL16}, {sr4(S_WS)}, s{sHOFF2} offen offset:{1024*i}{SC}" for i in range(2)]

sVM = 30


def kv_adv():
    return [f"s_mul_i32 s{sVS}, s{sTI}, {TQ}", f"s_add_u32 s{sKS}, s{sVS}, s{sKB}",
            f"s_add_u32 s{sVS}, s{sVS}, s{sVB}",
            f"s_add_u32 s{sTI}, s{sTI}, 1", f"s_and_b32 s{sTI}, s{sTI}, 15"]


def kv_load(buf, part, vv=(None, None)):
    if part < 2:
        return [f"buffer_load_dwordx4 {vr(AKV+16*buf+4*part, 4)}, v{vL16}, {sr4(S_WS)}, s{sKS} offen offset:{1024*part}{SC}"]
    return [f"s_mov_b64 exec, s[{sVM}:{sVM+1}]",
            f"buffer_load_dwordx4 {vr(AKV+16*buf+4*part, 4)}, v{vv[part-2]}, {sr4(S_WS)}, s{sVS} offen{SC}",
            "s_mov_b64 exec, -1"]


def att_loads():
    vm = VM()
    o1 = L(f"""
    s_lshl_b32 s{sT1}, s{sP0}, 9
    s_lshl_b32 s{sT2}, s{sQB}, 2
    s_add_u32 s{sT2}, s{sT2}, s{sKQ}
    s_mul_i32 s{sT0}, s{sT2}, {TQ}
    s_add_u32 s{sT0}, s{sT0}, s{sT1}
    buffer_load_dwordx4 {vr(AQ, 4)}, v{vL16}, {sr4(S_WS)}, s{sT0} offen{SC}
    buffer_load_dwordx4 {vr(AQ+4, 4)}, v{vL16}, {sr4(S_WS)}, s{sT0} offen offset:1024{SC}
    s_mul_i32 s{sVB}, s{sKQ}, {16 * TQ}
    s_add_u32 s{sKB}, s{sVB}, s{sT1}
    s_add_u32 s{sKB}, s{sKB}, {KF}
    s_mul_i32 s{sT0}, s{sHEAD}, 448
    s_add_u32 s{sVB}, s{sVB}, s{sT0}
    s_add_u32 s{sVB}, s{sVB}, {VF}
    s_and_b32 s{sTI}, s{sQB}, {AROT}
    s_mov_b32 s{sVM}, 0x0fffffff
    s_mov_b32 s{sVM+1}, 0x0fffffff
    v_lshrrev_b32 v{vT2}, 5, v{vLane}
    v_mul_u32_u24 v{vT2}, {7168 - 512}, v{vT2}
    v_add_u32 v{vT2}, v{vT2}, v{vL16}
    v_add_u32 v{vT3}, 14336, v{vT2}
    """)
    vm.add(("q",)); vm.add(("q",))
    o2 = []
    for t in range(3):
        o = o1 if t == 0 else o2
        o += kv_adv()
        for p in range(4):
            if p == 2:
                o += [f"v_mov_b32 v{AKV+16*t+8+i}, 0x3f803f80" for i in range(8)]
            o.append(kv_load(t, p, (vT2, vT3)))
            vm.add(("kv", t, p))
    flat = lambda o: [y for x in o for y in (x if isinstance(x, list) else [x])]
    return o1, o2, vm, flat


def wk_off(i):
    return 8 * (i % 14) + 4 * (i // 14)


def gen():
    a = Asm()
    vDX0, vDX1, vDB0, vDG, vDU = 7, 8, 9, 10, 11
    vAX = 14
    vAW = 18
    vST = 22
    vN, vR4, vC, vRow = 26, 27, 28, 29
    X, ACC, WF = 32, 144, 224
    PFR, vPFL, sPFI = ACC + 60, 30, 58

    stamp(a, "start")
    if INSTR: a("s_memrealtime s[100:101]")
    if "dbgt" in OPT: a("s_memtime s[86:87]\ns_memrealtime s[88:89]")
    a(f"""
    s_cmp_ge_u32 s2, 256
    s_cbranch_scc1 k_end
    """)
    if os.environ.get("DELAY"):
        a(f"""
        s_cmp_lg_u32 s2, {os.environ["DELAY"]}
        s_cbranch_scc1 k_nodelay
        s_mov_b32 s3, 12
        """)
        a.label("k_delay")
        a("s_sleep 100\ns_sub_u32 s3, s3, 1\ns_cmp_lg_u32 s3, 0\ns_cbranch_scc1 k_delay")
        a.label("k_nodelay")
    a(f"""
    s_load_dwordx16 s[64:79], s[0:1], 0
    s_load_dwordx4 s[80:83], s[0:1], 64
    s_load_dwordx2 s[84:85], s[0:1], 80
    v_and_b32 v{vLane}, 63, v0
    v_lshrrev_b32 v{vT0}, 6, v0
    s_and_b32 s{sC8}, s2, 7
    s_lshr_b32 s{sI32}, s2, 3
    v_readfirstlane_b32 s{sW}, v{vT0}
    s_lshr_b32 s{sT1}, s{sC8}, 1
    s_mul_i32 s{sT0}, s{sT1}, 28
    s_sub_u32 s{sT0}, s{sT0}, 4
    s_lshl_b32 s{sT1}, s{sT1}, 2
    s_add_u32 s{sT1}, s{sT1}, 112
    s_cmp_lt_u32 s{sI32}, 4
    s_cselect_b32 s{sT0}, s{sT1}, s{sT0}
    s_add_u32 s{sT0}, s{sT0}, s{sI32}
    s_lshr_b32 s{sJ}, s{sT0}, 3
    s_and_b32 s{sT0}, s{sT0}, 7
    s_and_b32 s{sMI}, s{sC8}, 1
    s_lshl_b32 s{sMI}, s{sMI}, 3
    s_add_u32 s{sMI}, s{sMI}, s{sT0}
    v_lshrrev_b32 v{vT0}, 3, v{vLane}
    v_lshrrev_b32 v{vT1}, 4, v{vLane}
    v_and_b32 v{vT2}, 7, v{vLane}
    v_xor_b32 v{vT3}, v{vT2}, v{vT1}
    s_lshl_b32 s{sT0}, s{sMI}, 7
    s_lshl_b32 s{sT1}, s{sW}, 4
    s_add_u32 s{sT0}, s{sT0}, s{sT1}
    v_add_u32 v{vDX0}, s{sT0}, v{vT0}
    v_mul_u32_u24 v{vDX0}, 896, v{vDX0}
    v_lshl_add_u32 v{vDX0}, v{vT3}, 4, v{vDX0}
    v_xor_b32 v{vDX1}, 64, v{vDX0}
    v_add_u32 v{vDX1}, 7168, v{vDX1}
    v_and_b32 v{vT3}, 1, v{vT1}
    v_lshlrev_b32 v{vT3}, 2, v{vT3}
    v_xor_b32 v{vT3}, v{vT3}, v{vT2}
    v_lshlrev_b32 v{vT3}, 4, v{vT3}
    v_mul_u32_u24 v{vDW}, 896, v{vT0}
    v_add_u32 v{vDW}, v{vDW}, v{vT3}
    s_lshl_b32 s{sT0}, s{sW}, 3
    v_add_u32 v{vT0}, s{sT0}, v{vT0}
    v_mul_u32_u24 v{vDB0}, 2688, v{vT0}
    v_add_u32 v{vDB0}, v{vDB0}, v{vT3}
    s_lshl_b32 s{sMX}, s{sW}, 11
    s_lshl_b32 s{sMB}, s{sW}, 10
    s_add_u32 s{sMB}, s{sMB}, 16384
    v_lshlrev_b32 v{vL16}, 4, v{vLane}
    s_mov_b32 s{S_X+2}, {2048 * 448 * 2}
    s_mov_b32 s{S_X+3}, 0x00020000
    s_mov_b32 s{S_B0+2}, {448 * 1344 * 2}
    s_mov_b32 s{S_B0+3}, 0x00020000
    s_mov_b32 s{S_G+3}, 0x00020000
    s_mov_b32 s{S_U+3}, 0x00020000
    s_cmp_ge_u32 s{sJ}, 14
    s_cbranch_scc1 k1_v
    """)

    vm = None

    def emit_group(g):
        for l in g[0]:
            a(l)
        vm.add(g[1])

    def dma(m0base, m0off, vaddr, srdb, soff):
        return [f"s_add_u32 m0, s{m0base}, {m0off & 0xffffffff}", f"s_mov_b32 s{sSO}, {soff}",
                f"buffer_load_dwordx4 v{vaddr}, {sr4(srdb)}, s{sSO} offen lds"]

    def pf1(tg):
        if "nopf" not in OPT:
            a(f"""
            s_lshl_b32 s{sPFI}, s2, 3
            s_add_u32 s{sPFI}, s{sPFI}, s{sW}
            s_lshl_b32 s{sT0}, s{sPFI}, 10
            s_mov_b32 s{S_TMP+3}, 0x00020000
            buffer_load_dwordx4 {vr(PFR, 4)}, v{vL16}, {sr4(S_X)}, s{sT0} offen
            v_lshrrev_b32 v{vPFL}, 3, v{vLane}
            v_lshlrev_b32 v{vPFL}, 7, v{vPFL}
            v_add_u32 v{vPFL}, v{vPFL}, v{vL16}
            s_cmp_lt_u32 s{sPFI}, {NQ}
            s_cbranch_scc1 k_pf_q_{tg}
            s_cmp_lt_u32 s{sPFI}, {NQ + NG}
            s_cselect_b32 s{S_TMP}, s{P_WG}, s{P_WU}
            s_cselect_b32 s{S_TMP+1}, s{P_WG+1}, s{P_WU+1}
            s_cselect_b32 s{sT0}, 0, {NG}
            s_mov_b32 s{S_TMP+2}, {448 * 1792 * 2}
            s_sub_u32 s{sT0}, s{sPFI}, s{sT0}
            s_lshl_b32 s{sT0}, s{sT0}, 11
            s_add_u32 s{sT0}, s{sT0}, {(PFROW * 3584 - NQ * 2048) & 0xffffffff}
            buffer_load_dwordx4 {vr(PFR+4, 4)}, v{vPFL}, {sr4(S_TMP)}, s{sT0} offen
            s_branch k_pf_d_{tg}
            """)
            a.label(f"k_pf_q_{tg}")
            a(f"""
            s_add_u32 s{sT0}, s{sT0}, {PFROW * 2688}
            buffer_load_dwordx4 {vr(PFR+4, 4)}, v{vL16}, {sr4(S_B0)}, s{sT0} offen
            """)
            a.label(f"k_pf_d_{tg}")
            vm.add(("PF",)); vm.add(("PF",))

    def common_setup2(tg):
        srd(a, S_WS, P_WS, WS_BYTES)
        srd(a, S_DBG, P_DBG, 256)
        srd(a, S_WD, P_WD, 1792 * 448 * 2)
        a(f"""
        s_or_b32 s{sT0}, s2, s{sW}
        s_cmp_lg_u32 s{sT0}, 0
        s_cbranch_scc1 k_nononce_{tg}
        s_memrealtime s[{sSC}:{sSC+1}]
        v_mov_b32 v{vT1}, 0
        s_waitcnt lgkmcnt(0)
        s_or_b32 s{sT0}, s{sSC}, 0x80000000
        v_mov_b32 v{vT0}, s{sT0}
        s_mov_b64 exec, 1
        buffer_store_dword v{vT0}, v{vT1}, {sr4(S_DBG)}, 0 offen{SC}
        s_mov_b64 exec, -1
        """)
        a.label(f"k_nononce_{tg}")
        if not PFPOS:
            pf1(tg)
        if PF_EARLY:
            for g in ([pf2(), pf3()] if PF_EARLY == 2 else [pf2()]):
                emit_group(g)
        if "nocp" not in OPT:
            a(f"""
            s_cmp_ge_u32 s{sI32}, 5
            s_cbranch_scc1 k_nocp_{tg}
            s_lshl_b32 s{sT0}, s{sI32}, 3
            s_add_u32 s{sT0}, s{sT0}, s{sW}
            s_lshl_b32 s{sT0}, s{sT0}, 10
            v_add_u32 v{vT0}, s{sT0}, v{vL16}
            v_min_u32 v{vT0}, k_end-{KNAME}-12, v{vT0}
            s_getpc_b64 s[{sSC}:{sSC+1}]
            """)
            a.label(f"k_pc_{tg}")
            a(f"""
            s_sub_u32 s{sSC}, s{sSC}, k_pc_{tg}-{KNAME}
            s_subb_u32 s{sSC+1}, s{sSC+1}, 0
            global_load_dwordx4 {vr(ACC+76, 4)}, v{vT0}, s[{sSC}:{sSC+1}]
            """)
            a.label(f"k_nocp_{tg}")
        a(f"""
        s_and_b32 s{sR}, s{sW}, 3
        s_lshr_b32 s{sGRP}, s{sW}, 2
        s_lshl_b32 s{sTILE}, s{sMI}, 2
        s_add_u32 s{sTILE}, s{sTILE}, s{sR}
        v_and_b32 v{vT0}, 31, v{vLane}
        v_lshrrev_b32 v{vT1}, 5, v{vLane}
        v_bfe_u32 v{vT2}, v{vLane}, 1, 3
        v_xor_b32 v{vT2}, v{vT2}, v{vT1}
        s_lshl_b32 s{sT0}, s{sR}, 12
        v_lshlrev_b32 v{vT3}, 7, v{vT0}
        v_lshl_add_u32 v{vT3}, v{vT2}, 4, v{vT3}
        v_add_u32 v{vAX}, s{sT0}, v{vT3}
        v_xor_b32 v{vAX+1}, 32, v{vAX}
        v_xor_b32 v{vAX+2}, 64, v{vAX}
        v_xor_b32 v{vAX+3}, 96, v{vAX}
        v_bfe_u32 v{vN}, v{vLane}, 4, 1
        v_bfe_u32 v{vR4}, v{vLane}, 2, 2
        v_and_b32 v{vC}, 3, v{vLane}
        v_lshl_add_u32 v{vRow}, v{vT1}, 3, v{vR4}
        v_and_b32 v{vT2}, 2, v{vR4}
        v_xor_b32 v{vT2}, v{vT2}, v{vN}
        s_lshl_b32 s{sT0}, s{sGRP}, 1
        v_xor_b32 v{vT2}, s{sT0}, v{vT2}
        v_lshlrev_b32 v{vT3}, 7, v{vRow}
        v_lshl_add_u32 v{vT3}, v{vT2}, 5, v{vT3}
        v_lshl_add_u32 v{vT3}, v{vC}, 3, v{vT3}
        v_add_u32 v{vAW}, 16384, v{vT3}
        s_mov_b32 s{sNL2E}, {f32bits(-LOG2E):#x}
        """)

    def flag_addr(vtype, vfla, vfqo):
        t0, t1, t2, t3 = vN, vR4, vC, vRow
        o = L(f"""
        s_lshl_b32 s{sHEAD}, s{sC8}, 1
        s_and_b32 s{sT2}, s{sI32}, 1
        s_add_u32 s{sHEAD}, s{sHEAD}, s{sT2}
        s_lshr_b32 s{sQB}, s{sI32}, 1
        s_lshl_b32 s{sMT}, s{sC8}, 2
        s_and_b32 s{sT2}, s{sI32}, 3
        s_add_u32 s{sMT}, s{sMT}, s{sT2}
        s_lshr_b32 s{sNT}, s{sI32}, 2
        s_mul_i32 s{sP0}, s{sHEAD}, 7
        s_lshr_b32 s{sP0}, s{sP0}, 1
        s_lshl_b32 s{sFQB}, s{sHEAD}, 12
        s_add_u32 s{sFQB}, s{sFQB}, {FQ}
        s_lshr_b32 s{sT1}, s{sQB}, 2
        s_lshl_b32 s{sT1}, s{sT1}, 7
        s_and_b32 s{sT2}, s{sQB}, 3
        s_lshl_b32 s{sT2}, s{sT2}, 2
        s_add_u32 s{sT1}, s{sT1}, s{sT2}
        s_add_u32 s{sT1}, s{sT1}, 2048
        v_lshrrev_b32 v{t0}, 2, v{vLane}
        v_and_b32 v{t1}, 3, v{vLane}
        v_lshlrev_b32 v{t1}, 2, v{t1}
        v_lshl_add_u32 v{vfla}, v{t0}, 7, v{t1}
        v_and_b32 v{t0}, 1, v{vLane}
        v_lshl_add_u32 v{vfla+1}, v{t0}, 9, s{sT1}
        v_and_b32 v{t0}, 15, v{vLane}
        v_lshrrev_b32 v{t1}, 4, v{vLane}
        v_lshlrev_b32 v{t3}, 12, v{t0}
        v_lshl_add_u32 v{t3}, v{t1}, 9, v{t3}
        s_lshr_b32 s{sT1}, s{sMI}, 2
        s_lshl_b32 s{sT1}, s{sT1}, 7
        s_and_b32 s{sT2}, s{sMI}, 3
        s_lshl_b32 s{sT2}, s{sT2}, 2
        s_add_u32 s{sT1}, s{sT1}, s{sT2}
        """)
        if not vtype:
            o += L(f"""
            s_add_u32 s{sT2}, s{sJ}, 1
            s_lshr_b32 s{sT2}, s{sT2}, 3
            v_mul_u32_u24 v{t2}, 7, v{t0}
            v_lshrrev_b32 v{t2}, 1, v{t2}
            v_mad_u32_u24 v{t2}, v{t1}, 3, v{t2}
            v_lshrrev_b32 v{t2}, 3, v{t2}
            v_lshrrev_b32 v{t1}, 1, v{t1}
            v_lshl_add_u32 v{t2}, v{t1}, 6, v{t2}
            v_mad_u32_u24 v{t2}, s{sT2}, 7, v{t2}
            v_cmp_eq_u32 vcc, s{sJ}, v{t2}
            s_lshl_b32 s{sT2}, s{sT2}, 11
            s_sub_u32 s{sT1}, s{sT1}, s{sT2}
            s_add_u32 s{sT1}, s{sT1}, 2048
            """)
        else:
            o += L(f"""
            v_add_u32 v{t2}, 14, v{t1}
            v_cmp_eq_u32 vcc, s{sJ}, v{t2}
            s_add_u32 s{sT1}, s{sT1}, 1024
            """)
        o += L(f"""
        v_add_u32 v{t3}, s{sT1}, v{t3}
        v_mov_b32 v{t0}, {OOB}
        v_cndmask_b32 v{vfqo}, v{t0}, v{t3}, vcc
        v_cmp_eq_u32 vcc, 0, v{vLane}
        s_lshr_b32 s{sFHO}, s{sTILE}, 1
        s_lshl_b32 s{sFHO}, s{sFHO}, 10
        v_cndmask_b32 v{vF1}, v{t0}, v{vLane}, vcc
        s_lshr_b32 s{sT1}, s{sJ}, 1
        s_lshl_b32 s{sT1}, s{sT1}, 7
        s_add_u32 s{sFHO}, s{sFHO}, s{sT1}
        s_and_b32 s{sT1}, s{sJ}, 1
        s_lshl_b32 s{sT1}, s{sT1}, 3
        s_add_u32 s{sFHO}, s{sFHO}, s{sT1}
        s_and_b32 s{sT1}, s{sR}, 1
        s_lshl_b32 s{sT1}, s{sT1}, 2
        s_add_u32 s{sFHO}, s{sFHO}, s{sT1}
        s_add_u32 s{sFHO}, s{sFHO}, {FHB}
        s_lshl_b32 s{sFHA}, s{sMI}, 9
        s_lshr_b32 s{sT1}, s{sJ}, 2
        s_lshl_b32 s{sT1}, s{sT1}, 7
        s_add_u32 s{sFHA}, s{sFHA}, s{sT1}
        s_and_b32 s{sT1}, s{sJ}, 3
        s_lshl_b32 s{sT1}, s{sT1}, 2
        s_add_u32 s{sFHA}, s{sFHA}, s{sT1}
        s_add_u32 s{sFHA}, s{sFHA}, {FH}
        s_lshl_b32 s{sM0}, s{sNT}, 7
        s_mul_i32 s{sWB}, s{sR}, {16 * 896}
        s_add_u32 s{sWB}, s{sWB}, s{sM0}
        s_lshl_b32 s{sM0}, s{sR}, 11
        """)
        return o

    def nonce_get(tag):
        a(f"""
        v_readfirstlane_b32 s{sNONCE}, v{vNON}
        v_lshlrev_b32 v{vT0}, 2, v{vLane}
        v_add_u32 v{vT0}, {CNT}, v{vT0}
        v_mov_b32 v{vT1}, 0
        s_cmp_lg_u32 s{sNONCE}, 0
        s_cbranch_scc1 k1_nonce_ok_{tag}
        """)
        a.label(f"k1_nonce_spin_{tag}")
        a(f"""
        buffer_load_dword v{vNON}, v{vT1}, {sr4(S_DBG)}, 0 offen{SC}
        s_waitcnt vmcnt(0)
        v_readfirstlane_b32 s{sNONCE}, v{vNON}
        s_sleep 4
        s_cmp_eq_u32 s{sNONCE}, 0
        s_cbranch_scc1 k1_nonce_spin_{tag}
        """)
        a.label(f"k1_nonce_ok_{tag}")
        a(f"ds_write_b32 v{vT0}, v{vT1}")

    def pf2():
        return (L(f"""
        s_cmp_lt_u32 s{sPFI}, 784
        s_cselect_b32 s{S_TMP}, s{P_WG}, s{P_WU}
        s_cselect_b32 s{S_TMP+1}, s{P_WG+1}, s{P_WU+1}
        s_cselect_b32 s{sT0}, 0, 784
        s_mov_b32 s{S_TMP+2}, {448 * 1792 * 2}
        s_sub_u32 s{sT0}, s{sPFI}, s{sT0}
        s_lshl_b32 s{sT0}, s{sT0}, 11
        buffer_load_dwordx4 {vr(PFR+8, 4)}, v{vPFL}, {sr4(S_TMP)}, s{sT0} offen offset:128
        """), ("PF",))

    def pf3():
        return (L(f"""
        s_cmp_lt_u32 s{sPFI}, 1568
        s_cselect_b32 s{S_TMP}, s{P_WD}, s{P_WO}
        s_cselect_b32 s{S_TMP+1}, s{P_WD+1}, s{P_WO+1}
        s_cselect_b32 s{sT0}, 0, 1568
        s_cselect_b32 s{S_TMP+2}, s{S_WD+2}, {448 * 448 * 2}
        s_sub_u32 s{sT0}, s{sPFI}, s{sT0}
        s_lshl_b32 s{sT0}, s{sT0}, 10
        buffer_load_dwordx4 {vr(PFR+12, 4)}, v{vL16}, {sr4(S_TMP)}, s{sT0} offen
        """), ("PF",))

    nonce_ld = ([f"v_mov_b32 v{vNON}, 0", f"buffer_load_dword v{vNON}, v{vNON}, {sr4(S_DBG)}, 0 offen{SC}"], ("N",))

    def wpref(i):
        ra = ring_addr(i % 13)
        return [f"s_add_u32 m0, s{sM0}, {ra}", f"s_add_u32 s{sT0}, s{sWB}, {wk_off(i) * 16 * 896}",
                f"buffer_load_dwordx4 v{vDW}, {sr4(S_WD)}, s{sT0} offen lds",
                f"s_add_u32 m0, s{sM0}, {ra + 1024}", f"s_add_u32 s{sT0}, s{sT0}, {8 * 896}",
                f"buffer_load_dwordx4 v{vDW}, {sr4(S_WD)}, s{sT0} offen lds"]

    abase = [0]

    def set_base(nb, regs):
        out = []
        if nb != abase[0]:
            d = nb - abase[0]
            for r in regs:
                out.append(f"v_add_u32 v{r}, {d}, v{r}" if d > 0 else f"v_subrev_u32 v{r}, {-d}, v{r}")
            abase[0] = nb
        return out

    def emit(x):
        if isinstance(x, tuple):
            a(x[1]); vm.add((x[0],))
        else:
            a(x)

    vm = VM()
    cnts = lambda t: {"A": 5, "B": 2}[t[0]] if t[0] in ("A", "B") else vm.q.count(t)
    a(f"""
    s_lshl_b32 s{sT0}, s{sJ}, 7
    v_add_u32 v{vDB0}, s{sT0}, v{vDB0}
    v_mul_u32_u24 v{vDG}, 3584, v{vT0}
    s_lshl_b32 s{sT0}, s{sJ}, 8
    v_add3_u32 v{vDG}, v{vDG}, v{vT3}, s{sT0}
    v_xor_b32 v{vDU}, 32, v{vDG}
    s_mov_b32 s{S_G+2}, {448 * 1792 * 2}
    s_mov_b32 s{S_U+2}, {448 * 1792 * 2}
    s_waitcnt lgkmcnt(0)
    s_mov_b64 s[{S_X}:{S_X+1}], s[{P_X}:{P_X+1}]
    s_mov_b64 s[{S_B0}:{S_B0+1}], s[{P_WQKV}:{P_WQKV+1}]
    s_mov_b64 s[{S_G}:{S_G+1}], s[{P_WG}:{P_WG+1}]
    s_mov_b64 s[{S_U}:{S_U+1}], s[{P_WU}:{P_WU+1}]
    """)

    def fA(st):
        b = (st % 4) * SLOT
        g = [dma(sMX, b, vDX0, S_X, st * 128), dma(sMX, b + 1024, vDX1, S_X, st * 128),
             dma(sMB, b, vDB0, S_B0, st * 64 * 2688), dma(sMB, b + 8192, vDG, S_G, st * 64 * 3584),
             dma(sMB, b + 16384, vDU, S_U, st * 64 * 3584)]
        return [(x, ("A", st)) for x in g]

    def bslot(sb):
        return ((3 + sb // 2) % 4) * SLOT + (sb % 2) * 16384

    def fB(sb):
        b = bslot(sb) - 16384
        g = [dma(sMB, b, vDG, S_G, sb * 64 * 3584 + 128), dma(sMB, b + 8192, vDU, S_U, sb * 64 * 3584 + 128)]
        return [(x, ("B", sb)) for x in g]

    for g in fA(0):
        emit_group(g)
    a("s_barrier")
    if PFPOS: pf1("f")
    for g in fA(1):
        emit_group(g)
    common_setup2("f")
    a(f"""
    v_lshl_add_u32 v{vAW+1}, v{vN}, 13, v{vT3}
    v_add_u32 v{vAW+1}, {16384 + 8192}, v{vAW+1}
    v_xor_b32 v{vAW+2}, 32, v{vAW+1}
    s_cmp_ge_u32 s{sJ}, 7
    s_cselect_b32 s{sT1}, {KF - 7 * 4096}, {QF}
    s_cselect_b32 s{sSC}, 1.0, {f32bits(28 ** -0.5 * LOG2E):#x}
    s_lshl_b32 s{sT2}, s{sJ}, 12
    s_add_u32 s{sT1}, s{sT1}, s{sT2}
    s_lshl_b32 s{sT2}, s{sGRP}, 11
    s_add_u32 s{sT1}, s{sT1}, s{sT2}
    s_mul_i32 s{sQKO}, s{sTILE}, {TQ}
    s_add_u32 s{sQKO}, s{sQKO}, s{sT1}
    s_mul_i32 s{sHOFF}, s{sTILE}, 112
    s_lshl_b32 s{sT1}, s{sJ}, 3
    s_add_u32 s{sHOFF}, s{sHOFF}, s{sT1}
    s_lshl_b32 s{sT1}, s{sGRP}, 1
    s_add_u32 s{sHOFF}, s{sHOFF}, s{sT1}
    s_lshl_b32 s{sHOFF}, s{sHOFF}, 10
    s_add_u32 s{sHOFF}, s{sHOFF}, {HF}
    s_add_u32 s{sHOFF2}, s{sHOFF}, 4096
    """)
    WA = [WF, WF + 12, ACC + 48]
    NB = 4
    WB = [WF + 24, WF + 16, WF + 8, WF]

    def readsA(ks):
        st, s = ks // 4, ks % 4
        slot = st % 4
        out = set_base((slot // 2) * 2 * SLOT, [vAX, vAX+1, vAX+2, vAX+3, vAW, vAW+1, vAW+2])
        off = (slot % 2) * SLOT
        f = WA[ks % 3]
        out.append(f"ds_read_b128 {vr(X+4*ks, 4)}, v{vAX+s} offset:{off}")
        for t in range(3):
            for q in range(2):
                out.append(f"ds_read_b64_tr_b16 {vr(f+4*t+2*q, 2)}, v{vAW+t} offset:{off + (16*s + 4*q) * 128}")
        return out

    def readsB(ks):
        sb, s = ks // 4, ks % 4
        b = bslot(sb)
        f = WB[ks % NB]
        b32 = b - b % 32768
        off = b - b32
        out = set_base(b32 - 24576, [vAW+1, vAW+2])
        for t in range(2):
            for q in range(2):
                out.append(f"ds_read_b64_tr_b16 {vr(f+4*t+2*q, 2)}, v{vAW+1+t} offset:{off + (16*s + 4*q) * 128}")
        return out

    def epi_ffn(acc, ko, dst=None):
        g, u = acc, acc + 8
        dst = g if dst is None else dst
        o = []
        for i in range(8):
            o.append(f"v_mul_f32 v{u+i}, v{g+i}, v{u+i}")
            o.append(f"v_mul_f32 v{g+i}, s{sNL2E}, v{g+i}")
        for i in range(8):
            o.append(f"v_exp_f32 v{g+i}, v{g+i}")
        for i in range(8):
            o.append(f"v_add_f32 v{g+i}, 1.0, v{g+i}")
        for i in range(8):
            o.append(f"v_rcp_f32 v{g+i}, v{g+i}")
        for i in range(8):
            o.append(f"v_mul_f32 v{u+i}, v{u+i}, v{g+i}")
        for i in range(4):
            o.append(f"v_cvt_pk_bf16_f32 v{dst+i}, v{u+2*i}, v{u+2*i+1}")
        so, off = (sHOFF, ko) if ko < 4 else (sHOFF2, ko - 4)
        o.append(("H", f"buffer_store_dwordx4 {vr(dst, 4)}, v{vL16}, {sr4(S_WS)}, s{so} offen offset:{1024*off}{SC}"))
        return o

    def epi_qk():
        o = []
        for i in range(8):
            o.append(f"v_mul_f32 v{ACC+2*i}, s{sSC}, v{ACC+2*i}")
            o.append(f"v_mul_f32 v{ACC+2*i+1}, s{sSC}, v{ACC+2*i+1}")
            o.append(f"v_cvt_pk_bf16_f32 v{ACC+i}, v{ACC+2*i}, v{ACC+2*i+1}")
        o.append("s_nop 1")
        for hh in range(2):
            b = ACC + 4 * hh
            o.append(f"v_permlane32_swap_b32 v{b}, v{b+2}")
            o.append(f"v_permlane32_swap_b32 v{b+1}, v{b+3}")
            o.append(("QK", f"buffer_store_dwordx4 {vr(b, 4)}, v{vL16}, {sr4(S_WS)}, s{sQKO} offen offset:{1024*hh}{SC}"))
        return o

    abase[0] = 0
    a(f"s_waitcnt vmcnt({vm.wait({('A', 0)}, cnts)})\ns_barrier")
    stamp(a, "p1_first")
    for ks in range(2):
        for r in readsA(ks):
            a(r)
    pend = fA(2) + fA(3)
    vFQf = vST
    fillA = flag_addr(False, vFLA, vFQf)
    for ks in range(28):
        st, s = ks // 4, ks % 4
        f = WA[ks % 3]
        m = [f"{MFMA} {vr(ACC+16*t, 16)}, {vr(f+4*t, 4)}, {vr(X+4*ks, 4)}, {'0' if ks == 0 else vr(ACC+16*t, 16)}" for t in range(3)]
        if s == 2:
            need = {("A", st + 1)} if st < 6 else {("B", 0), ("B", 1), ("B", 2), ("B", 3), ("N",)}
            a(f"s_waitcnt vmcnt({vm.wait(need, cnts)}) lgkmcnt(0)")
            if st == 6:
                nonce_get("f")
            a("s_barrier")
            stamp(a, f"p1_a{st}")
            if st + 4 <= 6:
                pend += fA(st + 4)
            else:
                i0 = 2 * (st - 3)
                pend += fB(i0) + (fB(i0 + 1) if i0 + 1 < 7 else [])
            if st == 2:
                pend.append(nonce_ld)
            if "nopf" not in OPT and st == PF2_ST and PF_EARLY < 1: pend.append(pf2())
            if "nopf" not in OPT and st == PF3_ST and PF_EARLY < 2: pend.append(pf3())
        elif ks < 27:
            a("s_waitcnt lgkmcnt(7)")
        else:
            a("s_waitcnt lgkmcnt(4)")
        r = readsA(ks + 2) if ks + 2 < 28 else readsB(ks + 2 - 28)
        k = len(r) - 4 if ks + 2 < 28 else len(r) - 2
        a(m[0])
        for x in r[:k]:
            a(x)
        a(m[1])
        for x in r[k:]:
            a(x)
        a(m[2])
        if ks >= 16:
            assert vm.q.count(("A", 6)) == 5
            for _ in range(7):
                if fillA: a(fillA.pop(0))
        nd = 2 if (len(pend) > 4 or st < 1) else 1
        for _ in range(nd):
            if pend:
                emit_group(pend.pop(0))
    assert not fillA
    stamp(a, "p1_aend")
    for x in readsB(2):
        a(x)
    ea, eb = epi_ffn(ACC + 16, 0, X + 16), epi_ffn(ACC + 32, 1, X + 20)
    fillq = ["s_nop 3"] + epi_qk()
    fill = ea + eb
    wq = [0, 1, 2, 7, 3, 4, 5, 6]
    sWH, sMH2 = sMX, sOK
    for ks in range(28):
        f = WB[ks % NB]
        m = [f"{MFMA} {vr(ACC+48+16*t, 16)}, {vr(f+4*t, 4)}, {vr(X+4*ks, 4)}, {'0' if ks == 0 else vr(ACC+48+16*t, 16)}" for t in range(2)]
        nxt = ks + NB - 1
        if ks == QKB:
            need = {5: {("B", 2), ("B", 3), ("N",)}, QKB: {("B", 4), ("B", 5), ("B", 6), ("QK",)}, 17: set()}[ks]
            if ks == QKB: assert vm.q.count(("QK",)) == 2 and QKB <= 13
            if need: a(f"s_waitcnt vmcnt({vm.wait(need, cnts)})")
            a("s_barrier")
            stamp(a, {5: "p1_b2", QKB: "p1_b4", 17: "p1_b5"}[ks])
            if ks == QKB:
                a(f"""
                s_cmp_lg_u32 s{sW}, 7
                s_cbranch_scc1 k1_noflag_f
                s_mov_b32 s{sT0}, {FQ}
                buffer_store_dword v{vNON}, v{vFQf}, {sr4(S_WS)}, s{sT0} offen{SC}
                """)
                a.label("k1_noflag_f")
        stamp(a, f"pb{ks}")
        a(f"s_waitcnt lgkmcnt({min(NB - 2, 27 - ks) * 4})")
        r = readsB(nxt) if nxt < 28 else []

        def dofill():
            if ks < 1: return
            if fillq:
                for _ in range(5):
                    if fillq: emit(fillq.pop(0))
            else:
                for _ in range(FPER):
                    if fill and isinstance(fill[0], tuple) and ks < HA_ST and len(fill) > 1:
                        fill[0], fill[1] = fill[1], fill[0]
                    if fill and not (isinstance(fill[0], tuple) and ks < HA_ST): emit(fill.pop(0))
        a(m[0])
        for x in r[:len(r) - 2]:
            a(x)
        if pend:
            emit_group(pend.pop(0))
        dofill()
        a(m[1])
        for x in r[len(r) - 2:]:
            a(x)
        dofill()
        if wq and ks >= WP_ST and (ring_addr(wq[0]) < 122880 or ks >= QKB) and not pend:
            i = wq.pop(0)
            if i == 0:
                a(f"""
                s_mul_i32 s{sWH}, s{sGRP}, {8 * 896}
                s_add_u32 s{sWH}, s{sWH}, s{sWB}
                s_cmp_ge_u32 s{sI32}, 28
                s_cselect_b32 s{sWH}, {OOB}, s{sWH}
                s_lshl_b32 s{sMH2}, s{sGRP}, 10
                s_add_u32 s{sMH2}, s{sMH2}, s{sM0}
                """)
            a(f"""
            s_add_u32 m0, s{sMH2}, {ring_addr(i)}
            s_add_u32 s{sT0}, s{sWH}, {wk_off(i) * 16 * 896}
            buffer_load_dwordx4 v{vDW}, {sr4(S_WD)}, s{sT0} offen lds
            """)
            vm.add(("WP",))
        if ks == EARLY_P:
            a(f"""
            s_cmp_lg_u32 s{sW}, 0
            s_cbranch_scc1 k1_nopoll
            buffer_load_dword v{vPOL}, v{vFLA}, {sr4(S_WS)}, s{sFQB} offen{SC}
            buffer_load_dword v{vPOL+1}, v{vFLA+1}, {sr4(S_WS)}, s{sFQB} offen{SC}
            """)
            a.label("k1_nopoll")
    assert not fill and not pend and not wq
    stamp(a, "pb28")
    a(f"""
    s_cmp_lg_u32 s{sW}, 0
    s_cbranch_scc1 k1_nochk
    s_waitcnt vmcnt(0)
    """)
    poll_cmp(a, 2, vPOL)
    a(f"""
    s_cmp_eq_u64 vcc, 0
    s_cselect_b32 s{sT0}, 1, 0
    """)
    lds_set(a, 4, f"s{sT0}", vT0)
    a("s_waitcnt lgkmcnt(0)")
    a.label("k1_nochk")
    a(f"""
    s_cmp_ge_u32 s{sW}, 4
    s_cbranch_scc1 k1_nodr
    s_waitcnt vmcnt(0)
    """)
    a.label("k1_nodr")
    a(f"""
    s_barrier
    s_mov_b32 s{sOK}, 0
    s_cmp_ge_u32 s{sW}, 4
    s_cbranch_scc1 k1_epi
    v_mov_b32 v{vT0}, {CNT + 4}
    ds_read_b32 v{vT1}, v{vT0}
    s_waitcnt lgkmcnt(0)
    v_readfirstlane_b32 s{sOK}, v{vT1}
    s_cmp_eq_u32 s{sOK}, 1
    s_cbranch_scc1 k1_early
    s_cmp_lg_u32 s{sW}, 0
    s_cbranch_scc1 k1_epi
    buffer_load_dword v{vPOL}, v{vFLA}, {sr4(S_WS)}, s{sFQB} offen{SC}
    buffer_load_dword v{vPOL+1}, v{vFLA+1}, {sr4(S_WS)}, s{sFQB} offen{SC}
    s_branch k1_epi
    """)
    a.label("k1_early")
    stamp(a, "x_go")
    o1, o2, _, flat = att_loads()
    for x in flat(o1):
        a(x)
    stamp(a, "p1_bend")
    e0, e1 = epi_ffn(ACC + 48, 4, HBR), epi_ffn(ACC + 64, 5, HBR + 4)
    ev = e0[:-1] + e1[:-1]
    step = len(ev) // len(o2)
    for x in o2:
        for _ in range(step):
            a(ev.pop(0))
        for y in flat([x]):
            a(y)
    for x in ev:
        a(x)
    stamp(a, "p1_end")
    a("s_branch att_main")
    a.label("k1_epi")
    a("s_nop 7")
    stamp(a, "p1_bend")
    for x in e0[:FA_AT]:
        a(x)
    a(f"""
    s_cmp_lt_u32 s{sW}, 4
    s_cbranch_scc1 k1_nofa
    v_mov_b32 v{vT0}, {CNT + 32}
    v_mov_b32 v{vT1}, 1
    s_waitcnt vmcnt(0)
    s_mov_b64 exec, 1
    ds_add_rtn_u32 v{vT1}, v{vT0}, v{vT1}
    s_mov_b64 exec, -1
    s_waitcnt lgkmcnt(0)
    v_readfirstlane_b32 s{sT0}, v{vT1}
    s_cmp_lg_u32 s{sT0}, 3
    s_cbranch_scc1 k1_nofa
    """)
    a(flag1(a, sFHA))
    a.label("k1_nofa")
    for x in e0[FA_AT:-1] + e1[:-1]:
        a(x)
    stamp(a, "p1_end")
    a(f"""
    s_cmp_ge_u32 s{sW}, 4
    s_cbranch_scc1 gemm_role2
    s_cmp_lg_u32 s{sW}, 0
    s_cbranch_scc1 aq_lw
    s_waitcnt vmcnt(0)
    """)
    poll_cmp(a, 2, vPOL)
    a(f"""
    s_cmp_eq_u64 vcc, 0
    s_cbranch_scc1 aq_ok
    s_branch att_spin
    """)

    a.label("k1_v")
    vm = VM()
    cntv = lambda t: {"A": 5, "B": 1}[t[0]] if t[0] in ("A", "B") else vm.q.count(t)
    GWL = CNT + 1024
    a(f"""
    v_add_u32 v{vDU}, {(896 + 192) * 2}, v{vDB0}
    s_cmp_eq_u32 s{sJ}, 14
    s_cselect_b32 s{sT0}, 0, 512
    s_add_u32 s{sT0}, s{sT0}, {896 * 2}
    v_add_u32 v{vDB0}, s{sT0}, v{vDB0}
    s_mov_b32 s{S_U+2}, {448 * 2}
    s_waitcnt lgkmcnt(0)
    s_mov_b64 s[{S_X}:{S_X+1}], s[{P_X}:{P_X+1}]
    s_mov_b64 s[{S_B0}:{S_B0+1}], s[{P_WQKV}:{P_WQKV+1}]
    s_mov_b64 s[{S_U}:{S_U+1}], s[{P_GW}:{P_GW+1}]
    """)

    def vA(st):
        b = (st % 4) * SLOT
        g = [dma(sMX, b, vDX0, S_X, st * 128), dma(sMX, b + 1024, vDX1, S_X, st * 128)]
        for bi in range(3):
            g.append(dma(sMB, b + 8192 * bi, vDB0, S_B0, st * 64 * 2688 + 128 * bi))
        return [(x, ("A", st)) for x in g]

    def vbslot(sb):
        return 3 * SLOT + sb * 8192 if sb < 4 else (sb - 4) * 8192

    def vB(sb):
        return [(dma(sMB, vbslot(sb) - 16384, vDU, S_B0, sb * 64 * 2688), ("B", sb))]

    gw_ld = ([f"s_mov_b32 m0, {GWL}", "s_nop 0", f"buffer_load_dwordx4 v{vL16}, {sr4(S_U)}, 0 offen lds"], ("GW",))

    for g in vA(0):
        emit_group(g)
    a("s_barrier")
    if PFPOS: pf1("v")
    for g in vA(1):
        emit_group(g)
    common_setup2("v")
    vAZ = vAW + 3
    a(f"""
    v_add_u32 v{vAW+1}, 8192, v{vAW}
    v_add_u32 v{vAW+2}, 16384, v{vAW}
    s_sub_u32 s{sT1}, s{sJ}, 14
    s_lshl_b32 s{sT1}, s{sT1}, 6
    v_xor_b32 v{vAZ}, s{sT1}, v{vAW}
    v_lshlrev_b32 v{vST+1}, 4, v{vT1}
    v_add_u32 v{vST+1}, {GWL}, v{vST+1}
    s_cmp_eq_u32 s{sJ}, 14
    s_cselect_b32 s{sT1}, 0, 4096
    s_lshl_b32 s{sT2}, s{sGRP}, 9
    s_add_u32 s{sT1}, s{sT1}, s{sT2}
    s_mul_i32 s{sHOFF}, s{sTILE}, {TQ}
    s_add_u32 s{sHOFF}, s{sHOFF}, s{sT1}
    s_add_u32 s{sHOFF}, s{sHOFF}, {VF}
    s_add_u32 s{sHOFF2}, s{sHOFF}, 14336
    v_mul_u32_u24 v{vST}, {7168 - 512}, v{vT1}
    v_add_u32 v{vST}, v{vST}, v{vL16}
    """)

    def readsVA(ks):
        st, s = ks // 4, ks % 4
        slot = st % 4
        out = set_base((slot // 2) * 2 * SLOT, [vAX, vAX+1, vAX+2, vAX+3, vAW, vAW+1, vAW+2, vAZ])
        off = (slot % 2) * SLOT
        f = WA[ks % 3]
        out.append(f"ds_read_b128 {vr(X+4*ks, 4)}, v{vAX+s} offset:{off}")
        for t in range(3):
            for q in range(2):
                out.append(f"ds_read_b64_tr_b16 {vr(f+4*t+2*q, 2)}, v{vAW+t} offset:{off + (16*s + 4*q) * 128}")
        return out

    NBV = 6
    WBV = [WF + 24, WF + 28, WF + 16, WF + 20, WF + 12, WF + 8]

    def readsVB(ks, z):
        sb, s = ks // 4, ks % 4
        f = WBV[ks % NBV]
        if z:
            return [f"ds_read_b128 {vr(f, 4)}, v{vST+1} offset:{32*ks}"]
        b = vbslot(sb)
        nb = (3 * SLOT if sb < 4 else 0)
        out = set_base(nb - 16384, [vAZ])
        off = b - nb
        for q in range(2):
            out.append(f"ds_read_b64_tr_b16 {vr(f+2*q, 2)}, v{vAZ} offset:{off + (16*s + 4*q) * 128}")
        return out

    def epi_v(acc, bi):
        o = [f"v_cvt_pk_bf16_f32 v{acc+i}, v{acc+2*i}, v{acc+2*i+1}" for i in range(8)]
        o.append(f"buffer_store_dwordx4 {vr(acc, 4)}, v{vST}, {sr4(S_WS)}, s{sHOFF} offen offset:{1024*bi}{SC}")
        o.append(f"buffer_store_dwordx4 {vr(acc+4, 4)}, v{vST}, {sr4(S_WS)}, s{sHOFF2} offen offset:{1024*bi}{SC}")
        return o

    abase[0] = 0
    a(f"s_waitcnt vmcnt({vm.wait({('A', 0)}, cntv)})\ns_barrier")
    stamp(a, "p1_first")
    for ks in range(2):
        for r in readsVA(ks):
            a(r)
    pend = vA(2) + vA(3)
    fillA = flag_addr(True, vFLA, vDG)
    for ks in range(28):
        st, s = ks // 4, ks % 4
        f = WA[ks % 3]
        m = [f"{MFMA} {vr(ACC+16*t, 16)}, {vr(X+4*ks, 4)}, {vr(f+4*t, 4)}, {'0' if ks == 0 else vr(ACC+16*t, 16)}" for t in range(3)]
        if s == 2:
            need = {("A", st + 1)} if st < 6 else {("B", x) for x in range(7)} | {("N",), ("GW",)}
            a(f"s_waitcnt vmcnt({vm.wait(need, cntv)}) lgkmcnt(0)")
            if st == 6:
                nonce_get("v")
            a("s_barrier")
            if st + 4 <= 6:
                pend += vA(st + 4)
            elif st == 3:
                pend += vB(0) + vB(1) + vB(2) + vB(3)
            elif st == 4:
                pend += vB(4) + vB(5) + vB(6) + [gw_ld]
            if st == 2:
                pend.append(nonce_ld)
            if "nopf" not in OPT and st == PF2_ST and PF_EARLY < 1: pend.append(pf2())
            if "nopf" not in OPT and st == PF3_ST and PF_EARLY < 2: pend.append(pf3())
        elif ks < 27:
            a("s_waitcnt lgkmcnt(7)")
        r = readsVA(ks + 2) if ks + 2 < 28 else []
        k = max(len(r) - 4, 0)
        a(m[0])
        for x in r[:k]:
            a(x)
        a(m[1])
        for x in r[k:]:
            a(x)
        a(m[2])
        if ks >= 16:
            assert vm.q.count(("A", 6)) == 5
            for _ in range(7):
                if fillA: a(fillA.pop(0))
        nd = 2 if (len(pend) > 4 or st < 1) else 1
        for _ in range(nd):
            if pend:
                emit_group(pend.pop(0))
    assert not fillA and not pend
    stamp(a, "p1_aend")
    VB = ACC + 48

    def passVB(z, fill):
        nrd = 1 if z else 2
        for ks in range(NBV - 1):
            for x in readsVB(ks, z):
                a(x)
        for ks in range(28):
            f = WBV[ks % NBV]
            c = vr(VB, 16)
            ops = f"{vr(f, 4)}, {vr(X+4*ks, 4)}" if z else f"{vr(X+4*ks, 4)}, {vr(f, 4)}"
            a(f"s_waitcnt lgkmcnt({min(NBV - 2, 27 - ks) * nrd})")
            a(f"{MFMA} {c}, {ops}, {'0' if ks == 0 else c}")
            if ks + NBV - 1 < 28:
                for x in readsVB(ks + NBV - 1, z):
                    a(x)
            for _ in range(3):
                if fill: a(fill.pop(0))
        assert not fill

    a(f"s_cmp_eq_u32 s{sGRP}, 1\ns_cbranch_scc1 k1_vg1")
    passVB(False, ["s_nop 1"] + epi_v(ACC, 0) + epi_v(ACC + 16, 1) + epi_v(ACC + 32, 2))
    a(f"""
    s_mul_i32 s{sHOFF}, s{sTILE}, {TQ}
    s_lshl_b32 s{sT1}, s{sJ}, 9
    s_add_u32 s{sHOFF}, s{sHOFF}, s{sT1}
    s_add_u32 s{sHOFF}, s{sHOFF}, {VF + 192 * 16 - 14 * 512}
    s_add_u32 s{sHOFF2}, s{sHOFF}, 14336
    s_nop 7
    """)
    for x in epi_v(VB, 0):
        a(x)
    stamp(a, "p1_bend")
    a(f"""
    s_waitcnt vmcnt(0)
    s_barrier
    """)
    stamp(a, "p1_end")
    a(f"""
    s_cmp_lg_u32 s{sW}, 3
    s_cbranch_scc1 k1_noflag_v
    s_mov_b32 s{sT0}, {FQ}
    buffer_store_dword v{vNON}, v{vDG}, {sr4(S_WS)}, s{sT0} offen{SC}
    """)
    a(flag1(a, sFHA))
    a.label("k1_noflag_v")
    a("s_branch att_spin")
    a.label("k1_vg1")
    a("s_nop 7")
    for x in epi_v(ACC, 0) + epi_v(ACC + 16, 1) + epi_v(ACC + 32, 2):
        a(x)
    stamp(a, "p1_bend")
    a(f"""
    s_waitcnt vmcnt(0)
    s_barrier
    """)
    stamp(a, "p1_end")
    a(f"s_mov_b32 s{sHOFF2}, {OOB}\ns_cmp_eq_u32 s{sJ}, 14\ns_cbranch_scc1 gemm_role")
    passVB(True, [])
    t = WF
    a(f"""
    s_nop 7
    s_nop 3
    v_mul_f32 v{t}, s{sNL2E}, v{VB}
    v_exp_f32 v{t}, v{t}
    v_and_b32 v{t+1}, 31, v{vLane}
    v_add_f32 v{t}, 1.0, v{t}
    v_rcp_f32 v{t}, v{t}
    v_lshlrev_b32 v{t+1}, 2, v{t+1}
    s_lshl_b32 s{sT0}, s{sTILE}, 7
    s_add_u32 s{sT0}, s{sT0}, {GF}
    buffer_store_dword v{t}, v{t+1}, {sr4(S_WS)}, s{sT0} offen{SC}
    s_waitcnt vmcnt(0)
    """)
    a.label("gemm_role")
    for i in range(8):
        for x in wpref(i):
            a(x)
    a.label("gemm_role2")
    gen_gemm(a, wpref)
    gen_attention(a)
    a.label("k_end")
    a("s_endpgm")
    return a.text()


vAWr = 16
RB = [0, 98304]


def wtr_setup(a):
    a(f"""
    v_bfe_u32 v{vT0}, v{vLane}, 4, 1
    v_bfe_u32 v{vT1}, v{vLane}, 2, 2
    v_and_b32 v{vT2}, 2, v{vT1}
    v_xor_b32 v{vT2}, v{vT2}, v{vT0}
    s_and_b32 s{sT0}, s{sKQ}, 1
    s_lshl_b32 s{sT0}, s{sT0}, 1
    v_xor_b32 v{vT2}, s{sT0}, v{vT2}
    v_lshrrev_b32 v{vT3}, 5, v{vLane}
    v_lshl_add_u32 v{vT3}, v{vT3}, 2, v{vT1}
    v_lshlrev_b32 v{vT3}, 7, v{vT3}
    v_lshl_add_u32 v{vT3}, v{vT2}, 5, v{vT3}
    v_and_b32 v{vT2}, 3, v{vLane}
    v_lshl_add_u32 v{vT3}, v{vT2}, 3, v{vT3}
    v_add_u32 v{vAWr}, s{sM0}, v{vT3}
    v_xor_b32 v{vAWr+1}, 64, v{vAWr}
    v_add_u32 v{vAWr+2}, {RB[1]}, v{vAWr}
    v_add_u32 v{vAWr+3}, {RB[1]}, v{vAWr+1}
    v_mov_b32 v{vAWr+4}, v{vT3}
    """)


def wtr_reads(slot, dst):
    ra = ring_addr(slot)
    bi = max(i for i in range(2) if RB[i] <= ra)
    out = []
    for T in range(2):
        for q in range(2):
            out.append(f"ds_read_b64_tr_b16 {vr(dst+4*T+2*q, 2)}, v{vAWr+2*bi+T} offset:{ra - RB[bi] + q*1024}")
    return out


def bcast_poll(a, tag, leader, addrs, soff, vtmp, sleep, ldsoff, pre=None, lsleep=2, skip_if_set=False):
    if skip_if_set:
        a(f"""
        v_mov_b32 v{vT0}, {CNT + ldsoff}
        ds_read_b32 v{vT1}, v{vT0}
        s_waitcnt lgkmcnt(0)
        v_readfirstlane_b32 s{sT0}, v{vT1}
        s_cmp_eq_u32 s{sT0}, 1
        s_cbranch_scc1 {tag}_go
        """)
    a(f"s_cmp_lg_u32 s{sW}, {leader}\ns_cbranch_scc1 {tag}_lw")
    if pre:
        pre()
    poll(a, addrs, soff, vtmp, sleep)
    a.label(f"{tag}_ok")
    lds_set(a, ldsoff, 1, vT0)
    a(f"s_branch {tag}_go")
    a.label(f"{tag}_lw")
    lds_wait(a, ldsoff, vT0, "eq1", lsleep)
    a.label(f"{tag}_go")


def gen_gemm(a, wpref):
    ACC = 64
    ACT = 128
    WFB = [32, 40]
    vA0, vA1, vG0, vFl, vFl2, vMB = 21, 22, 23, 25, 24, 26
    sA0, sB0w, sFH2, sMO2, sDONE, sNEW, sH = 45, 46, 47, 48, 49, 50, 52
    DA = GDA
    stamp(a, "x_role")
    wtr_setup(a)
    srd(a, S_WO, P_WO, 448 * 448 * 2)
    srd(a, S_OUT, P_OUT, 2048 * 448 * 2)
    a(f"""
    s_lshr_b32 s{sMO2}, s{sKQ}, 1
    s_mul_i32 s{sT0}, s{sMO2}, {112 * 1024}
    v_add_u32 v{vA0}, s{sT0}, v{vL16}
    s_sub_u32 s{sT0}, {112 * 1024}, s{sT0}
    v_add_u32 v{vA1}, s{sT0}, v{vL16}
    s_lshr_b32 s{sT1}, s{sMT}, 1
    s_lshl_b32 s{sT1}, s{sT1}, 9
    s_add_u32 s{sT1}, s{sT1}, {FH}
    s_lshl_b32 s{sFH2}, s{sMT}, 10
    s_add_u32 s{sFH2}, s{sFH2}, {FHB}
    s_mul_i32 s{sA0}, s{sMT}, 224
    s_add_u32 s{sA0}, s{sA0}, s{sKQ}
    s_lshl_b32 s{sA0}, s{sA0}, 10
    s_add_u32 s{sA0}, s{sA0}, {HF}
    s_mul_i32 s{sB0w}, s{sKQ}, {112 * 896}
    s_lshl_b32 s{sT0}, s{sNT}, 7
    s_add_u32 s{sB0w}, s{sB0w}, s{sT0}
    v_and_b32 v{vFl}, 0x1ff, v{vFLA}
    v_and_b32 v{vFl2}, 0x3ff, v{vFLA}
    s_add_u32 s{sT2}, s{sM0}, {MERGE + MBOX}
    v_add_u32 v{vMB}, s{sT2}, v{vL16}
    s_sub_u32 s{sHOFF}, s{sHOFF2}, 2048
    s_cmp_lt_u32 s{sI32}, 28
    s_cbranch_scc1 gemm_has
    """)

    def hb_all():
        lds_wait(a, 24, vT0, "eq4", 1)
        a(f"""
        ds_read_b128 {vr(HBR+8, 4)}, v{vMB}
        ds_read_b128 {vr(HBR+12, 4)}, v{vMB} offset:1024
        """)

    def hb_st():
        return hb_stores() + [f"buffer_store_dwordx4 {vr(HBR+8+4*i, 4)}, v{vL16}, {sr4(S_WS)}, s{sHOFF} offen offset:{1024*i}{SC}" for i in range(2)]
    hb_all()
    a("s_waitcnt lgkmcnt(0)")
    for x in hb_st():
        a(x)
    a("s_waitcnt vmcnt(0)")
    a(flag1(a, sFHO))
    a("s_endpgm")
    a.label("gemm_has")
    a(f"""
    s_cmp_lg_u32 s{sW}, 4
    s_cbranch_scc1 g_noe
    buffer_load_dword v{vG0}, v{vFl}, {sr4(S_WS)}, s{sT1} offen{SC}
    s_waitcnt vmcnt(0)
    v_cmp_ne_u32 vcc, s{sNONCE}, v{vG0}
    s_nop 1
    s_cmp_eq_u64 vcc, 0
    s_cbranch_scc0 g_noe
    """)
    lds_set(a, 8, 1, vT0)
    a.label("g_noe")
    hb_all()
    vm = VM()
    for i in range(0, 8):
        vm.add(("w", i))

    def act_loads(i):
        r = ACT + 8 * (i % DA)
        a(f"""
        s_add_u32 s{sT0}, s{sA0}, {wk_off(i) * 1024}
        buffer_load_dwordx4 {vr(r, 4)}, v{vA0}, {sr4(S_WS)}, s{sT0} offen{SC}
        buffer_load_dwordx4 {vr(r+4, 4)}, v{vA1}, {sr4(S_WS)}, s{sT0} offen{SC}
        """)
        vm.add(("a", i)); vm.add(("a", i))

    def w_loads(i):
        if i < 28:
            for x in wpref(i):
                a(x)
        else:
            ra = ring_addr(wslot(i))
            off = (28 * ((i - 28) // 2) + 16 * ((i - 28) % 2)) * 896
            a(f"""
            s_add_u32 m0, s{sM0}, {ra}
            s_add_u32 s{sT0}, s{sB0w}, {off}
            buffer_load_dwordx4 v{vDW}, {sr4(S_WO)}, s{sT0} offen lds
            s_add_u32 m0, s{sM0}, {ra + 1024}
            s_add_u32 s{sT0}, s{sT0}, {8 * 896}
            buffer_load_dwordx4 v{vDW}, {sr4(S_WO)}, s{sT0} offen lds
            """)
        vm.add(("w", i)); vm.add(("w", i))

    na, nw = 0, 8
    a("s_waitcnt lgkmcnt(0)")
    for x in hb_st():
        a(x); vm.add(("hb",))
    bcast_poll(a, "gA", 4, [vFl], sT1, vG0, SLEEP_H, 8, skip_if_set=True)
    stamp(a, "x_go"); stamp(a, "x_loop")
    for i in range(GPRE):
        act_loads(na); na += 1
    a(f"s_waitcnt vmcnt({vm.wait({('w', 0)})})")
    for x in wtr_reads(0, WFB[0]):
        a(x)
    gotB = False
    for i in range(28):
        need = {("a", i)}
        if i + 1 < 28:
            need.add(("w", i + 1))
        a(f"s_waitcnt vmcnt({vm.wait(need)}) lgkmcnt(0)")
        if i + 1 < 28:
            for x in wtr_reads((i + 1) % 13, WFB[(i + 1) % 2]):
                a(x)
        for mt in range(2):
            for T in range(2):
                c = vr(ACC + 32 * mt + 16 * T, 16)
                a(f"{MFMA} {c}, {vr(WFB[i%2]+4*T, 4)}, {vr(ACT+8*(i%DA)+4*mt, 4)}, {'0' if i == 0 else c}")
        if i == 0:
            a(flag1(a, sFHO))
        if i == GB_AT:
            stamp(a, "g_b0")
            bcast_poll(a, "gB", 4, [vFl2], sFH2, vPOL, SLEEP_H, 12)
            stamp(a, "g_b1")
            gotB = True
            a(f"""
            v_and_b32 v{vT0}, 31, v{vLane}
            v_lshlrev_b32 v{vT0}, 2, v{vT0}
            s_lshl_b32 s{sT1}, s{sMT}, 1
            s_add_u32 s{sT1}, s{sT1}, s{sMO2}
            s_lshl_b32 s{sT1}, s{sT1}, 7
            s_add_u32 s{sT1}, s{sT1}, {GF}
            buffer_load_dword v{vG0}, v{vT0}, {sr4(S_WS)}, s{sT1} offen{SC}
            """)
            vm.add(("g",))
        for _ in range(2):
            if na < 28 and na <= i + DA and (na < 14 or gotB):
                act_loads(na); na += 1
            if nw < 36 and nw <= i + min(13, DA + 1) and (nw < 28 or wslot(nw) + 13 <= i):
                w_loads(nw); nw += 1
    assert na == 28
    while nw < 36:
        w_loads(nw); nw += 1
    stamp(a, "x_lend")
    XS = [0, 1, 6, 7]
    R, AA, SL = 128, ACC + 16, 128
    vX0, vX1, vC1, vOUT, vWa = 26, 27, 28, 30, 29

    def xaddr(reg, x):
        a(f"""
        s_xor_b32 s{sT0}, s{sKQ}, {x}
        s_lshl_b32 s{sT0}, s{sT0}, 11
        v_add_u32 v{reg}, s{sT0}, v{vL16}
        v_add_u32 v{reg+1}, {RB[1]}, v{reg}
        """)

    def xo(i):
        ra = ring_addr(XS[i // 2]) + (i % 2) * 1024
        return (vX0, ra) if ra < RB[1] else (vX1, ra - RB[1])

    def gsync(off, tag):
        a(f"""
        v_mov_b32 v{vC1}, {CNT + off}
        v_mov_b32 v{vT0}, 1
        s_waitcnt vmcnt(0) lgkmcnt(0)
        s_mov_b64 exec, 1
        ds_add_u32 v{vC1}, v{vT0}
        s_mov_b64 exec, -1
        """)
        a.label(tag)
        a(f"""
        ds_read_b32 v{vT0}, v{vC1}
        s_waitcnt lgkmcnt(0)
        v_readfirstlane_b32 s{sT0}, v{vT0}
        s_cmp_eq_u32 s{sT0}, 4
        s_cbranch_scc1 {tag}_d
        s_sleep 1
        s_branch {tag}
        """)
        a.label(f"{tag}_d")

    a("s_setprio 3")
    xaddr(vX0, 0)
    a("s_nop 7")
    for i in range(8):
        r_, o_ = xo(i)
        a(f"ds_write_b128 v{r_}, {vr(ACC+32+4*i, 4)} offset:{o_}")
    xaddr(vX0, 2)
    gsync(16, "gs1")
    for i in range(8):
        r_, o_ = xo(i)
        a(f"ds_read_b128 {vr(R+4*i, 4)}, v{r_} offset:{o_}")
    a("s_waitcnt lgkmcnt(0)")
    for i in range(16, 32):
        a(f"v_add_f32 v{ACC+i}, v{ACC+i}, v{R+i}")
    for i in range(4):
        r_, o_ = xo(i)
        a(f"ds_write_b128 v{r_}, {vr(ACC+16+4*i, 4)} offset:{o_}")
    for i in range(16):
        a(f"v_add_f32 v{ACC+i}, v{ACC+i}, v{R+i}")
    xaddr(vX0, 3)
    gsync(28, "gs2")
    for i in range(4):
        r_, o_ = xo(i)
        a(f"ds_read_b128 {vr(R+4*i, 4)}, v{r_} offset:{o_}")
    a(f"""
    v_sub_f32 v{vT2}, 1.0, v{vG0}
    s_lshl_b32 s{sT1}, s{sMT}, 1
    s_add_u32 s{sT1}, s{sT1}, s{sMO2}
    s_lshl_b32 s{sFH2}, s{sT1}, 9
    s_add_u32 s{sFH2}, s{sFH2}, {FO}
    s_lshl_b32 s{sA0}, s{sT1}, 15
    s_add_u32 s{sA0}, s{sA0}, {OF}
    s_mul_i32 s{sT2}, s{sT1}, {32 * 896}
    s_lshl_b32 s{sT1}, s{sNT}, 7
    s_add_u32 s{sT2}, s{sT2}, s{sT1}
    s_and_b32 s{sT1}, s{sKQ}, 1
    s_lshl_b32 s{sT1}, s{sT1}, 6
    s_add_u32 s{sT2}, s{sT2}, s{sT1}
    v_and_b32 v{vFl}, 31, v{vLane}
    v_mul_u32_u24 v{vOUT}, 896, v{vFl}
    v_lshrrev_b32 v{vT3}, 5, v{vLane}
    v_lshl_add_u32 v{vOUT}, v{vT3}, 4, v{vOUT}
    v_and_b32 v{vFl}, 0x1ff, v{vFLA}
    s_mov_b32 s{sDONE}, 0xffff0000
    s_mov_b32 s{sSPIN}, {SPIN_MAX}
    s_waitcnt lgkmcnt(0)
    """)
    for i in range(16):
        a(f"v_add_f32 v{ACC+i}, v{ACC+i}, v{R+i}")
    for i in range(16):
        a(f"v_mul_f32 v{ACC+i}, v{ACC+i}, v{vT2}")
        a(f"v_mov_b32 v{AA+i}, 0")
    a("s_setprio 1")
    stamp(a, "p3_poll")
    sNB = 53
    a(f"s_mov_b32 s{sNB}, 0\ns_mov_b32 s{sNEW}, 0")
    a.label("p3_poll")
    a(f"""
    buffer_load_dword v{vPOL}, v{vFl}, {sr4(S_WS)}, s{sFH2} offen{SC}
    s_cmp_eq_u32 s{sNB}, 0
    s_cbranch_scc1 p3_chk
    s_waitcnt vmcnt(1) lgkmcnt(0)
    """)
    a.label("p3_run")
    for k in range(8):
        o, w = SL + 16 * k, SL + 16 * k + 8
        a(f"""
        {MFMA} {vr(AA, 16)}, {vr(w, 4)}, {vr(o, 4)}, {vr(AA, 16)}
        {MFMA} {vr(AA, 16)}, {vr(w+4, 4)}, {vr(o+4, 4)}, {vr(AA, 16)}
        """)
        if k < 7:
            a(f"s_cmp_eq_u32 s{sNB}, {k+1}\ns_cbranch_scc1 p3_ran")
    a.label("p3_ran")
    a(f"""
    s_mov_b32 s{sNB}, 0
    s_cmp_eq_u32 s{sDONE}, -1
    s_cbranch_scc1 p3_fin
    """)
    a.label("p3_chk")
    a(f"""
    s_waitcnt vmcnt(0)
    v_cmp_eq_u32 vcc, s{sNONCE}, v{vPOL}
    s_sub_u32 s{sSPIN}, s{sSPIN}, 1
    s_cbranch_scc1 p3_fin
    s_andn2_b32 s{sNEW}, vcc_lo, s{sDONE}
    s_cbranch_scc1 p3_batch
    s_sleep {SLEEP_O}
    s_branch p3_poll
    """)
    a.label("p3_batch")
    for k in range(8):
        o, w = SL + 16 * k, SL + 16 * k + 8
        a(f"""
        s_ff1_i32_b32 s{sH}, s{sNEW}
        s_bitset0_b32 s{sNEW}, s{sH}
        s_bitset1_b32 s{sDONE}, s{sH}
        s_lshl_b32 s{sT0}, s{sH}, 11
        s_add_u32 s{sT0}, s{sT0}, s{sA0}
        buffer_load_dwordx4 {vr(o, 4)}, v{vL16}, {sr4(S_WS)}, s{sT0} offen{SC}
        buffer_load_dwordx4 {vr(o+4, 4)}, v{vL16}, {sr4(S_WS)}, s{sT0} offen offset:1024{SC}
        s_bitcmp1_b32 s{sH}, 1
        s_cselect_b32 s{sT0}, 0, {ring_addr(2)}
        s_and_b32 s{sT1}, s{sH}, 1
        s_lshl_b32 s{sT1}, s{sT1}, 14
        s_add_u32 s{sT0}, s{sT0}, s{sT1}
        s_lshr_b32 s{sT1}, s{sH}, 2
        s_lshl_b32 s{sT1}, s{sT1}, 11
        s_add_u32 s{sT0}, s{sT0}, s{sT1}
        v_add_u32 v{vWa}, s{sT0}, v{vAWr+4}
        ds_read_b64_tr_b16 {vr(w, 2)}, v{vWa}
        ds_read_b64_tr_b16 {vr(w+2, 2)}, v{vWa} offset:1024
        ds_read_b64_tr_b16 {vr(w+4, 2)}, v{vWa} offset:8192
        ds_read_b64_tr_b16 {vr(w+6, 2)}, v{vWa} offset:9216
        s_mov_b32 s{sNB}, {k+1}
        """)
        if k >= 2:
            a("s_waitcnt lgkmcnt(8)")
        if k < 7:
            a(f"s_cmp_eq_u32 s{sNEW}, 0\ns_cbranch_scc1 p3_iss")
    a.label("p3_iss")
    a(f"""
    s_cmp_lg_u32 s{sDONE}, -1
    s_cbranch_scc1 p3_poll
    s_waitcnt vmcnt(0) lgkmcnt(0)
    s_branch p3_run
    """)
    a.label("p3_fin")
    stamp(a, "p3_mfma")
    a("s_nop 7\ns_nop 1")
    t = 96
    for i in range(16):
        a(f"v_fma_f32 v{ACC+i}, v{AA+i}, v{vG0}, v{ACC+i}")
    for i in range(8):
        a(f"v_cvt_pk_bf16_f32 v{t+i}, v{ACC+2*i}, v{ACC+2*i+1}")
    a(f"""
    v_permlane32_swap_b32 v{t}, v{t+2}
    v_permlane32_swap_b32 v{t+1}, v{t+3}
    buffer_store_dwordx4 {vr(t, 4)}, v{vOUT}, {sr4(S_OUT)}, s{sT2} offen
    v_permlane32_swap_b32 v{t+4}, v{t+6}
    v_permlane32_swap_b32 v{t+5}, v{t+7}
    buffer_store_dwordx4 {vr(t+4, 4)}, v{vOUT}, {sr4(S_OUT)}, s{sT2} offen offset:32
    """)
    amp_end(a, 'g')
    if "dbgt" in OPT:
        a(f"""
        s_cmp_ge_u32 s2, 7
        s_cbranch_scc1 k_end
        s_cmp_lg_u32 s{sW}, 4
        s_cbranch_scc1 k_end
        s_memtime s[90:91]
        s_memrealtime s[92:93]
        s_waitcnt lgkmcnt(0)
        s_sub_u32 s90, s90, s86
        s_sub_u32 s92, s92, s88
        v_mov_b32 v4, s90
        v_mov_b32 v5, s92
        s_lshl_b32 s3, s2, 3
        s_add_u32 s3, s3, 8
        buffer_store_dwordx2 v[4:5], v{vF1}, {sr4(S_DBG)}, s3 offen
        """)
    stamp_flush(a)
    a("s_endpgm")


def gen_attention(a):
    Q, O, S, KV, P, TMP = AQ, AO, AS, AKV, AP, ATMP
    vG, vM, vONE = avG, avM, avONE
    a.label("att_spin")
    bcast_poll(a, "aq", 0, [vFLA, vFLA + 1], sFQB, vPOL, SLEEP_Q, 4, lsleep=1)
    stamp(a, "x_go")
    o1, o2, vm, flat = att_loads()

    def k_fix(buf):
        return [f"v_cndmask_b32 v{KV+16*buf+6}, v{KV+16*buf+6}, v{vONE}, s[{sME}:{sME+1}]",
                f"v_cndmask_b32 v{KV+16*buf}, v{KV+16*buf}, v{vONE}, s[{sMO}:{sMO+1}]"]

    zer = [f"v_mov_b32 v{O+k}, 0" for k in range(12, 64)]
    for x in flat(o1):
        a(x)
    step = len(zer) // len(o2) + 1
    zz = list(zer)
    for x in o2:
        for _ in range(step):
            if zz: a(zz.pop(0))
        for y in flat([x]):
            a(y)
    a("s_branch att_main2")
    a.label("att_main")
    for x in zer:
        a(x)
    a.label("att_main2")
    stamp(a, "x_main")
    a(f"""
    s_setprio 2
    s_lshl_b32 s{sT0}, s{sKQ}, 11
    s_add_u32 s{sT0}, s{sT0}, {MERGE}
    v_add_u32 v{TMP}, s{sT0}, v{vL16}
    v_subrev_u32 v{TMP+1}, {-MBOX}, v{TMP}
    ds_write_b128 v{TMP+1}, {vr(HBR, 4)}
    ds_write_b128 v{TMP+1}, {vr(HBR+4, 4)} offset:1024
    v_mov_b32 v{vT1}, 0
    s_and_b32 s{sT0}, s{sHEAD}, 1
    s_mov_b32 s{sME}, 0
    s_mov_b32 s{sMO+1}, 0
    s_sub_u32 s{sME+1}, s{sT0}, 1
    s_sub_u32 s{sMO}, 0, s{sT0}
    v_mov_b32 v{avV0}, v{vT2}
    v_mov_b32 v{avV1}, v{vT3}
    v_mov_b32 v{vONE}, 0x3f803f80
    v_mov_b32 v{TMP+1}, {CNT + 24}
    v_mov_b32 v{TMP+2}, 1
    s_waitcnt vmcnt({vm.wait({('q',), ('kv', 0, 1)})})
    v_cndmask_b32 v{Q}, v{Q}, v{vT1}, s[{sMO}:{sMO+1}]
    v_cndmask_b32 v{Q+1}, v{Q+1}, v{vT1}, s[{sMO}:{sMO+1}]
    v_cndmask_b32 v{Q+6}, v{Q+6}, v{vT1}, s[{sME}:{sME+1}]
    v_cndmask_b32 v{Q+7}, v{Q+7}, v{vT1}, s[{sME}:{sME+1}]
    {MFMA} {vr(S[1], 16)}, {vr(KV, 4)}, {vr(Q, 4)}, 0
    s_nop 0
    {MFMA} {vr(S[1], 16)}, {vr(KV+4, 4)}, {vr(Q+4, 4)}, {vr(S[1], 16)}
    """)
    stamp(a, "x_q")
    for x in k_fix(0):
        a(x)
    for k in range(12):
        a(f"v_mov_b32 v{O+k}, 0")
    s0 = S[1]
    a(f"""
    v_max3_f32 v{vM}, v{s0}, v{s0+1}, v{s0+2}
    v_max3_f32 v{vT0}, v{s0+3}, v{s0+4}, v{s0+5}
    v_max3_f32 v{vT2}, v{s0+6}, v{s0+7}, v{s0+8}
    v_max3_f32 v{vT3}, v{s0+9}, v{s0+10}, v{s0+11}
    v_max3_f32 v{vM}, v{vM}, v{s0+12}, v{s0+13}
    v_max3_f32 v{vT0}, v{vT0}, v{s0+14}, v{s0+15}
    v_max3_f32 v{vM}, v{vM}, v{vT2}, v{vT3}
    v_max_f32 v{vM}, v{vM}, v{vT0}
    v_mov_b32 v{vT0}, v{vM}
    s_nop 1
    v_permlane32_swap_b32 v{vM}, v{vT0}
    v_max_f32 v{vM}, v{vM}, v{vT0}
    v_sub_f32 v{vM}, 0, v{vM}
    v_cvt_pk_bf16_f32 v{vT0}, v{vM}, v{vM}
    v_lshlrev_b32 v{vT0}, 16, v{vT0}
    v_sub_f32 v{vT0}, v{vM}, v{vT0}
    v_cvt_pk_bf16_f32 v{vT0}, v{vM}, v{vT0}
    v_cndmask_b32 v{Q}, v{Q}, v{vT0}, s[{sMO}:{sMO+1}]
    v_cndmask_b32 v{Q+6}, v{Q+6}, v{vT0}, s[{sME}:{sME+1}]
    ds_write_b128 v{TMP}, {vr(Q, 4)}
    ds_write_b128 v{TMP}, {vr(Q+4, 4)} offset:1024
    {MFMA} {vr(S[0], 16)}, {vr(KV, 4)}, {vr(Q, 4)}, 0
    {MFMA} {vr(S[0], 16)}, {vr(KV+4, 4)}, {vr(Q+4, 4)}, {vr(S[0], 16)}
    s_waitcnt lgkmcnt(0)
    s_mov_b64 exec, 1
    ds_add_u32 v{TMP+1}, v{TMP+2}
    s_mov_b64 exec, -1
    """)
    for x in kv_adv()[:3]:
        a(x)
    for i in range(4):
        a(f"v_mov_b32 v{P+4+i}, 0\nv_mov_b32 v{KV+16*3+12+i}, v{vONE}\nv_mov_b32 v{KV+16*3+8+i}, v{vONE}")
    for i in range(1, 4):
        a(f"""
        s_add_u32 s{sT0}, s{sKQ}, {i}
        s_and_b32 s{sT0}, s{sT0}, 3
        s_lshl_b32 s{sT0}, s{sT0}, 11
        s_add_u32 s{sT0}, s{sT0}, {MERGE}
        v_add_u32 v{TMP+2+i}, s{sT0}, v{vL16}
        s_add_u32 s{sT0}, s{sKQ}, {i}
        s_and_b32 s{sT0}, s{sT0}, 3
        s_mul_i32 s{sT0}, s{sT0}, 12288
        s_add_u32 s{sT0}, s{sT0}, {MERGE + (i-1) * 4096}
        v_add_u32 v{TMP+8+i-1}, s{sT0}, v{vL16}
        """)
    a(f"""
    s_mul_i32 s{sT0}, s{sKQ}, 12288
    s_add_u32 s{sT0}, s{sT0}, {MERGE}
    v_add_u32 v{TMP+11}, s{sT0}, v{vL16}
    v_mov_b32 v{TMP+12}, {CNT}
    v_mov_b32 v{TMP+13}, 1
    """)
    stamp(a, "x_qs")
    a.label("att_qsync")
    a(f"""
    ds_read_b32 v{TMP+2}, v{TMP+1}
    s_waitcnt lgkmcnt(0)
    v_cmp_gt_u32 vcc, 4, v{TMP+2}
    s_cbranch_vccnz att_qsync
    """)
    for i in range(1, 4):
        a(f"ds_read_b128 {vr(Q+8*i, 4)}, v{TMP+2+i}\nds_read_b128 {vr(Q+8*i+4, 4)}, v{TMP+2+i} offset:1024")
    a("s_waitcnt lgkmcnt(0)")
    a(f"s_mov_b32 s{sIT}, 0")
    stamp(a, "x_loop")
    vMW, vMR, vMC, vM1 = TMP + 8, TMP + 11, TMP + 12, TMP + 13

    def phase(ph, cur, prev, nxt, s_pv2=[], s_qk1=[], s_qk2=[], s_pv1=[], tail=[]):
        sc, sn = S[ph % 2], S[1 - ph % 2]
        e = [f"v_exp_f32 v{sc+i}, v{sc+i}" for i in range(16)]
        c = [f"v_cvt_pk_bf16_f32 v{P+i}, v{sc+2*i}, v{sc+2*i+1}" for i in range(8)]
        pv2 = f"{MFMA} {vr(O+16*prev[1], 16)}, {vr(KV+16*prev[0]+12, 4)}, {vr(P+4, 4)}, {vr(O+16*prev[1], 16)}"
        pv1 = f"{MFMA} {vr(O+16*cur[1], 16)}, {vr(KV+16*cur[0]+8, 4)}, {vr(P, 4)}, {vr(O+16*cur[1], 16)}"
        qk1, qk2 = [], []
        if nxt:
            qk1 = [f"{MFMA} {vr(sn, 16)}, {vr(KV+16*nxt[0], 4)}, {vr(Q+8*nxt[1], 4)}, 0"]
            qk2 = [f"{MFMA} {vr(sn, 16)}, {vr(KV+16*nxt[0]+4, 4)}, {vr(Q+8*nxt[1]+4, 4)}, {vr(sn, 16)}"]
        seq = e[0:2] + [pv2] + s_pv2 + e[2:5] + qk1 + s_qk1 + e[5:9] + c[0:4] + qk2 + s_qk2 + e[9:12] + [pv1] + s_pv1 + e[12:16] + tail + c[4:8]
        for x in seq:
            a(x)

    a.label("att_loop")
    for tb in range(4):
        for q in range(4):
            adv = kv_adv()
            s_pv2, s_qk1, s_qk2, s_pv1, tail = [], [], [], [], []
            s_qk1 += kv_load((tb + 3) % 4, q, (avV0, avV1))
            if q == 0:
                s_pv2.append(adv[3])
                s_qk2.append("s_waitcnt vmcnt(9)")
                s_pv1.append(adv[4])
            if q == 1:
                if tb == 0:
                    s_pv2.append(f"s_cmp_eq_u32 s{sIT}, 3")
                    s_qk2.append(f"s_cselect_b32 s{sKB}, {OOB}, s{sKB}")
                    s_pv1.append(f"s_cselect_b32 s{sVB}, {OOB}, s{sVB}")
                if tb == 3:
                    s_pv1.append(f"s_add_u32 s{sIT}, s{sIT}, 1")
            if q == 2:
                s_pv2.append(f"s_mul_i32 s{sT0}, s{sTI}, {TQ}")
                s_qk2.append(f"s_add_u32 s{sKS}, s{sT0}, s{sKB}")
                s_pv1.append("s_waitcnt vmcnt(9)")
                if tb == 2:
                    s_pv1.append(f"s_cmp_eq_u32 s{sIT}, 3")
                tail = k_fix((tb + 1) % 4)
            if q == 3:
                s_qk2.append(f"s_add_u32 s{sVS}, s{sT0}, s{sVB}")
            phase(4 * tb + q, (tb, q), (tb if q > 0 else (tb - 1) % 4, (q - 1) % 4), (tb if q < 3 else (tb + 1) % 4, (q + 1) % 4),
                  s_pv2, s_qk1, s_qk2, s_pv1, tail)
            if tb == 2 and q == 2:
                a("s_cbranch_scc1 att_peel")
    a("s_branch att_loop")
    a.label("att_peel")

    def mw(i, lo, hi):
        return [f"ds_write_b128 v{vMW+i-1}, {vr(O+16*i+4*k, 4)} offset:{1024*k}" for k in range(lo, hi)]
    sa = L(f"""
    s_lshl_b32 s{sT2}, s{sQB}, 2
    s_add_u32 s{sT2}, s{sT2}, s{sKQ}
    s_lshl_b32 s{sT2}, s{sT2}, 4
    s_add_u32 s{sT2}, s{sT2}, s{sHEAD}
    s_lshl_b32 s{sKB}, s{sT2}, 11
    s_add_u32 s{sKB}, s{sKB}, {OF}
    s_lshr_b32 s{sVB}, s{sT2}, 2
    s_lshl_b32 s{sVB}, s{sVB}, 7
    s_and_b32 s{sT2}, s{sT2}, 3
    s_lshl_b32 s{sT2}, s{sT2}, 2
    s_add_u32 s{sVB}, s{sVB}, s{sT2}
    s_add_u32 s{sVB}, s{sVB}, {FO}
    s_mov_b32 s{sT0}, {f32bits(2.0**-10):#x}
    s_mov_b32 s{sT1}, {f32bits(2.0**100):#x}
    """)
    phase(11, (2, 3), (2, 2), (3, 1), sa[0:1], sa[1:2], sa[2:3], sa[3:4])
    phase(12, (3, 1), (2, 3), (3, 2), sa[4:5], sa[5:6], ["s_waitcnt vmcnt(0)"], sa[6:7])
    phase(13, (3, 2), (3, 1), (3, 3), sa[7:8], sa[8:9], mw(1, 0, 2), mw(1, 2, 4))
    phase(14, (3, 3), (3, 2), (3, 0), sa[9:10], sa[10:11], mw(2, 0, 2), mw(2, 2, 4))
    phase(15, (3, 0), (3, 3), None, sa[11:14], [], ["s_nop 0"] + mw(3, 0, 4), [],
          ["s_waitcnt lgkmcnt(0)", "s_mov_b64 exec, 1", f"ds_add_u32 v{vMC}, v{vM1}", "s_mov_b64 exec, -1"])
    a(f"""
    v_cmp_lt_u32 s[18:19], 31, v{vLane}
    s_nop 0
    {MFMA} {vr(O, 16)}, {vr(KV+16*3+12, 4)}, {vr(P+4, 4)}, {vr(O, 16)}
    """)
    stamp(a, "x_lend")
    a.label("att_msync")
    a(f"""
    ds_read_b32 v{vT2}, v{vMC}
    s_waitcnt lgkmcnt(0)
    v_cmp_gt_u32 vcc, 4, v{vT2}
    s_cbranch_vccnz att_msync
    """)
    stamp(a, "x_msync")
    for i in range(12):
        a(f"ds_read_b128 {vr(O+16+4*i, 4)}, v{vMR} offset:{1024*i}")
    a("s_mov_b64 vcc, s[18:19]")
    for k in range(3):
        a(f"s_waitcnt lgkmcnt({8 - 4*k})")
        for i in range(16):
            a(f"v_add_f32 v{O+i}, v{O+i}, v{O+16+16*k+i}")
    C = O + 16
    a(f"""
    v_mov_b32 v{vT0}, v{O+12}
    v_mov_b32 v{vT1}, v{O+12}
    """)
    for k in range(4):
        a(f"v_mul_f32 v{C+k}, 0, v{O+4*k}")
    a(f"v_permlane32_swap_b32 v{vT0}, v{vT1}")
    for i in range(1, 4):
        for k in range(4):
            a(f"v_fma_f32 v{C+k}, v{O+4*k+i}, 0, v{C+k}")
    a(f"""
    v_rcp_f32 v{vT2}, v{vT1}
    v_add_f32 v{C}, v{C}, v{C+1}
    v_add_f32 v{C+2}, v{C+2}, v{C+3}
    v_add_f32 v{C}, v{C}, v{vT1}
    v_add_f32 v{C}, v{C}, v{C+2}
    v_cmp_le_f32 s[28:29], s{sT0}, v{C}
    v_cmp_ge_f32 s[16:17], s{sT1}, v{C}
    s_and_b64 s[28:29], s[28:29], s[16:17]
    s_cmp_eq_u64 s[28:29], -1
    s_cbranch_scc0 att_fallback
    """)
    a.label("att_final")
    a(f"""
    v_mov_b32 v{vT0}, 0
    """)
    for hh in range(2):
        for i in range(8):
            a(f"v_mul_f32 v{O+8*hh+i}, v{O+8*hh+i}, v{vT2}")
        for i in range(4):
            a(f"v_cvt_pk_bf16_f32 v{TMP+4*hh+i}, v{O+8*hh+2*i}, v{O+8*hh+2*i+1}")
        if hh == 1:
            a(f"v_cndmask_b32 v{TMP+6}, v{TMP+6}, v{vT0}, vcc\nv_cndmask_b32 v{TMP+7}, v{TMP+7}, v{vT0}, vcc")
        a(f"buffer_store_dwordx4 {vr(TMP+4*hh, 4)}, v{vL16}, {sr4(S_WS)}, s{sKB} offen offset:{1024*hh}{SC}")
    stamp(a, "x_ost")
    a("s_waitcnt vmcnt(0)")
    a(flag1(a, sVB))
    stamp(a, "x_b2")
    amp_end(a, 'a')
    stamp_flush(a)
    a("s_endpgm")

    a.label("att_fallback")
    sc = S[0]
    K, V = KV, KV + 8
    vMo, vMn, vAl = TMP, TMP + 1, TMP + 2
    a(f"""
    v_mov_b32 v{vT0}, 0
    v_mov_b32 v{vMo}, 0xff800000
    v_cndmask_b32 v{Q}, v{Q}, v{vT0}, s[{sMO}:{sMO+1}]
    v_cndmask_b32 v{Q+6}, v{Q+6}, v{vT0}, s[{sME}:{sME+1}]
    s_mov_b32 s{sIT}, 0
    s_lshl_b32 s{sKS}, s{sP0}, 9
    s_add_u32 s{sKS}, s{sKS}, {KF}
    s_mul_i32 s{sVS}, s{sHEAD}, 448
    s_add_u32 s{sVS}, s{sVS}, {VF}
    s_waitcnt vmcnt(0)
    """)
    for i in range(16):
        a(f"v_mov_b32 v{O+i}, 0")
    a.label("att_fb_loop")
    a(f"""
    buffer_load_dwordx4 {vr(K, 4)}, v{vL16}, {sr4(S_WS)}, s{sKS} offen{SC}
    buffer_load_dwordx4 {vr(K+4, 4)}, v{vL16}, {sr4(S_WS)}, s{sKS} offen offset:1024{SC}
    s_mov_b64 exec, s[{sVM}:{sVM+1}]
    buffer_load_dwordx4 {vr(V, 4)}, v{avV0}, {sr4(S_WS)}, s{sVS} offen{SC}
    buffer_load_dwordx4 {vr(V+4, 4)}, v{avV1}, {sr4(S_WS)}, s{sVS} offen{SC}
    s_mov_b64 exec, -1
    s_waitcnt vmcnt(0)
    {MFMA} {vr(sc, 16)}, {vr(K, 4)}, {vr(Q, 4)}, 0
    {MFMA} {vr(sc, 16)}, {vr(K+4, 4)}, {vr(Q+4, 4)}, {vr(sc, 16)}
    s_nop 15
    v_max3_f32 v{vMn}, v{vMo}, v{sc}, v{sc+1}
    """)
    for i in range(2, 16, 2):
        a(f"v_max3_f32 v{vMn}, v{vMn}, v{sc+i}, v{sc+i+1}")
    a(f"""
    v_mov_b32 v{vT0}, v{vMn}
    s_nop 1
    v_permlane32_swap_b32 v{vMn}, v{vT0}
    v_max_f32 v{vMn}, v{vMn}, v{vT0}
    v_sub_f32 v{vAl}, v{vMo}, v{vMn}
    v_exp_f32 v{vAl}, v{vAl}
    v_mov_b32 v{vMo}, v{vMn}
    """)
    for i in range(16):
        a(f"v_sub_f32 v{sc+i}, v{sc+i}, v{vMn}")
    for i in range(16):
        a(f"v_exp_f32 v{sc+i}, v{sc+i}")
    for i in range(16):
        a(f"v_mul_f32 v{O+i}, v{O+i}, v{vAl}")
    for i in range(8):
        a(f"v_cvt_pk_bf16_f32 v{P+i}, v{sc+2*i}, v{sc+2*i+1}")
    a(f"""
    s_nop 1
    {MFMA} {vr(O, 16)}, {vr(V, 4)}, {vr(P, 4)}, {vr(O, 16)}
    {MFMA} {vr(O, 16)}, {vr(V+4, 4)}, {vr(P+4, 4)}, {vr(O, 16)}
    s_add_u32 s{sKS}, s{sKS}, {TQ}
    s_add_u32 s{sVS}, s{sVS}, {TQ}
    s_add_u32 s{sIT}, s{sIT}, 1
    s_cmp_lt_u32 s{sIT}, 64
    s_cbranch_scc1 att_fb_loop
    s_nop 15
    v_mov_b32 v{vT0}, v{O+12}
    v_mov_b32 v{vT1}, v{O+12}
    s_nop 1
    v_permlane32_swap_b32 v{vT0}, v{vT1}
    v_rcp_f32 v{vT2}, v{vT1}
    s_nop 0
    s_branch att_final
    """)


def build():
    ref = open(f"cdna_kernels/{NAME}.s.ref").read().split("\n")
    hdr = [l for l in ref if l.startswith(";") and "@launch" not in l and "Override launch" not in l and "grid=ceil" not in l]
    body = gen()
    out = "\n".join(hdr) + "\n"
    out += f"; @launch grid=(256,1,1) block=(512,1,1) lds={LDS_BYTES}\n"
    out += '.amdgcn_target "amdgcn-amd-amdhsa--gfx950"\n.text\n'
    out += f".globl {KNAME}\n.p2align 8\n.type {KNAME},@function\n{KNAME}:\n"
    out += body
    out += f""".section .rodata,"a"
.p2align 6
.amdhsa_kernel {KNAME}
  .amdhsa_next_free_vgpr 256
  .amdhsa_next_free_sgpr 102
  .amdhsa_accum_offset 256
  .amdhsa_group_segment_fixed_size 0
  .amdhsa_kernarg_size 88
  .amdhsa_user_sgpr_count 2
  .amdhsa_user_sgpr_kernarg_segment_ptr 1
  .amdhsa_system_sgpr_workgroup_id_x 1
.end_amdhsa_kernel
"""
    return out


if __name__ == "__main__":
    path = sys.argv[1]
    open(path, "w").write(build())
    print("wrote", path)
```

```python
import math, struct, sys, os

NAME = "gated_mix__softmax_full_mha__swiglu_ffn__prompt"
KNAME = NAME + "_kernel"
INSTR = int(os.environ.get("INSTR", "0"))
OPT = os.environ.get("OPT", "nopf")

QF = 0
KF = 2 << 20
VF = 4 << 20
TQ = 28672
HF = 6 << 20
OF = 14 << 20
GF = 16 << 20
FQ = (16 << 20) + 0x10000
FH = (16 << 20) + 0x20000
FHB = (16 << 20) + 0x28000
MBOX = 40960 - 49152
FO = (16 << 20) + 0x40000
TSF = 24 << 20
WS_BYTES = 32 << 20
OOB = 0x40000000
SLEEP_Q = int(os.environ.get('SLQ', '6'))
SLEEP_H = int(os.environ.get('SLH', '8'))
SLEEP_O = int(os.environ.get('SLO', '2'))
LOG2E = math.log2(math.e)
MFMA = "v_mfma_f32_32x32x16_bf16"
SC = " sc1"
SLOT = 40960
LDS_BYTES = 4 * SLOT
MERGE = 49152
CNT = 155648
SPIN_MAX = 1 << int(os.environ.get('SPINLOG', '18'))


def ring_addr(s):
    if s <= 6:
        return 98304 + s * 8192
    if s == 7:
        return 32768
    if s <= 11:
        return (s - 8) * 8192
    return 40960


def wslot(i):
    return i % 13 if i < 28 else [2, 3, 4, 5, 8, 9, 10, 11][i - 28]


def f32bits(x):
    return struct.unpack("<I", struct.pack("<f", x))[0]


class Asm:
    def __init__(self):
        self.lines = []

    def __call__(self, s):
        for ln in s.strip("\n").split("\n"):
            ln = ln.strip()
            if not ln:
                continue
            self.lines.append(ln if ln.endswith(":") else "    " + ln)

    def label(self, l):
        self.lines.append(l + ":")

    def text(self):
        return "\n".join(self.lines) + "\n"


def vr(base, n):
    return f"v[{base}:{base + n - 1}]"


def sr4(b):
    return f"s[{b}:{b+3}]"


def srd(a, sd, sb, nbytes):
    a(f"""
    s_mov_b32 s{sd}, s{sb}
    s_mov_b32 s{sd+1}, s{sb+1}
    s_mov_b32 s{sd+2}, {nbytes}
    s_mov_b32 s{sd+3}, 0x00020000
    """)


def L(s):
    return [l.strip() for l in s.strip("\n").split("\n") if l.strip()]


HA_ST = int(os.environ.get('HA_ST', '13'))
EARLY_P = int(os.environ.get('EARLY_P', '24'))
QKB = int(os.environ.get('QKB', '11'))
FPER = int(os.environ.get('FPER', '4'))
PF2_ST = int(os.environ.get('PF2_ST', '0'))
PF3_ST = int(os.environ.get('PF3_ST', '2'))
GDA = int(os.environ.get('GDA', '10'))
AROT = int(os.environ.get('AROT', '15'))
WP_ST = int(os.environ.get('WP_ST', '5'))
FA_AT = int(os.environ.get('FA_AT', '24'))
PFPOS = int(os.environ.get('PFPOS', '0'))
PF_EARLY = int(os.environ.get('PF_EARLY', '0'))
PFROW = int(os.environ.get('PFROW', '128'))
NQ = (448 - PFROW) * 2688 // 1024
NG = (448 - PFROW) * 3584 // 2048
assert NQ + 2 * NG <= 2048
GPRE = int(os.environ.get('GPRE', '4'))
GB_AT = int(os.environ.get('GB_AT', '7'))

S_X, S_B0, S_G, S_U, S_WS, S_TMP, S_WD, S_DBG = 4, 8, 12, 16, 20, 24, 28, 32
S_WO, S_OUT = 8, 12
sMI, sJ, sW, sR, sGRP = 36, 37, 38, 39, 40
sKQ = 39
sT0, sT1, sT2 = 42, 43, 44
sMX, sMB, sSO = 45, 46, 47
sSC, sTILE, sHOFF, sHOFF2, sQKO = 48, 49, 50, 51, 52
sWB, sM0, sFHO, sFQB, sP0, sOK = 53, 54, 55, 56, 57, 58
sNONCE, sNL2E, sC8, sI32, sSPIN = 59, 60, 61, 62, 63
P_X, P_WQKV, P_WO, P_WG, P_WU, P_WD, P_GW, P_OUT, P_DBG, P_WS = 64, 66, 68, 72, 74, 76, 78, 80, 82, 84
ST0 = 86
sHEAD, sQB, sMT, sNT = 70, 71, 41, 3
sFHA = 65
vLane, vL16 = 1, 2
vT0, vT1, vT2, vT3 = 3, 4, 5, 6
STAMPS = os.environ.get("STAMPS", "").split(",")[:6]


AMP = os.environ.get("AMP", "")


def stamp(a, name):
    if AMP and name == "start": a("s_memrealtime s[86:87]")
    if AMP and name == AMP: a("s_memrealtime s[88:89]")
    if INSTR and (name == "start" or name in STAMPS):
        idx = 0 if name == "start" else 1 + STAMPS.index(name)
        a(f"s_memtime s[{ST0+2*idx}:{ST0+2*idx+1}]")
    if INSTR and "R" + name in STAMPS:
        idx = 1 + STAMPS.index("R" + name)
        a(f"s_memrealtime s[{ST0+2*idx}:{ST0+2*idx+1}]")


def amp_end(a, tag):
    if not AMP: return
    stamp(a, "end")
    a(f"""
    s_cmp_lg_u32 s2, {os.environ.get("AMPG", "40")}
    s_cbranch_scc1 k_end
    s_cmp_lg_u32 s{sW}, {os.environ.get("AMPW", "4")}
    s_cbranch_scc1 k_end
    s_memrealtime s[90:91]
    s_waitcnt lgkmcnt(0)
    s_sub_u32 s88, s88, s86
    s_mul_i32 s88, s88, {os.environ.get('AMPK', '1')}
    """)
    a.label(f"amp_spin{tag}")
    a(f"""
    s_memrealtime s[92:93]
    s_waitcnt lgkmcnt(0)
    s_sub_u32 s92, s92, s90
    s_cmp_lt_u32 s92, s88
    s_cbranch_scc1 amp_spin{tag}
    """)


def stamp_flush(a, vtmp=3):
    if not INSTR:
        return
    a(f"""
    s_memtime s[4:5]
    s_memrealtime s[6:7]
    s_lshl_b32 s3, s2, 3
    s_add_u32 s3, s3, s{sW}
    s_lshl_b32 s3, s3, 7
    s_add_u32 s3, s3, {TSF}
    v_mov_b32 v{vtmp+1}, 0
    s_waitcnt lgkmcnt(0)
    """)
    regs = [ST0 + 2 * i for i in range(8)] + [4, 6]
    for i, r in enumerate(regs):
        a(f"""
        v_mov_b32 v{vtmp}, s{r}
        buffer_store_dword v{vtmp}, v{vtmp+1}, {sr4(S_WS)}, s3 offen offset:{4*i}
        s_nop 1
        """)


def flag_store(a, soff_reg, vtmp):
    a(f"""
    v_mov_b32 v{vtmp}, s{sNONCE}
    v_mov_b32 v{vtmp+1}, 0
    s_mov_b64 exec, 1
    buffer_store_dword v{vtmp}, v{vtmp+1}, {sr4(S_WS)}, s{soff_reg} offen{SC}
    s_mov_b64 exec, -1
    """)


_uid = [0]


def poll(a, addrs, soff, vtmp, sleep):
    _uid[0] += 1
    u = _uid[0]
    a(f"s_mov_b32 s{sSPIN}, {SPIN_MAX}")
    a.label(f"poll_ld{u}")
    for i, va in enumerate(addrs):
        a(f"buffer_load_dword v{vtmp+i}, v{va}, {sr4(S_WS)}, s{soff} offen{SC}")
    a("s_waitcnt vmcnt(0)")
    poll_cmp(a, len(addrs), vtmp)
    a(f"""
    s_sub_u32 s{sSPIN}, s{sSPIN}, 1
    s_cbranch_scc1 poll_done{u}
    s_cmp_eq_u64 vcc, 0
    s_cbranch_scc1 poll_done{u}
    s_sleep {sleep}
    s_branch poll_ld{u}
    """)
    a.label(f"poll_done{u}")


def poll_cmp(a, n, vtmp):
    if n == 1:
        a(f"v_cmp_ne_u32 vcc, s{sNONCE}, v{vtmp}")
    else:
        a(f"""
        v_xor_b32 v{vtmp}, s{sNONCE}, v{vtmp}
        v_xor_b32 v{vtmp+1}, s{sNONCE}, v{vtmp+1}
        v_or_b32 v{vtmp}, v{vtmp}, v{vtmp+1}
        v_cmp_ne_u32 vcc, 0, v{vtmp}
        """)


def lds_set(a, off, val, vtmp):
    a(f"""
    v_mov_b32 v{vtmp}, {CNT + off}
    v_mov_b32 v{vtmp+1}, {val}
    ds_write_b32 v{vtmp}, v{vtmp+1}
    """)


def lds_wait(a, off, vtmp, cond, sleep=1):
    _uid[0] += 1
    u = _uid[0]
    a(f"v_mov_b32 v{vtmp}, {CNT + off}")
    a.label(f"lw{u}")
    a(f"""
    ds_read_b32 v{vtmp+1}, v{vtmp}
    s_waitcnt lgkmcnt(0)
    v_readfirstlane_b32 s{sT0}, v{vtmp+1}
    """)
    a(f"s_cmp_lg_u32 s{sT0}, 0" if cond == "ne0" else f"s_cmp_eq_u32 s{sT0}, {cond[2:]}")
    a(f"""
    s_cbranch_scc1 lwd{u}
    s_sleep {sleep}
    s_branch lw{u}
    """)
    a.label(f"lwd{u}")


class VM:
    def __init__(self):
        self.q = []

    def add(self, tag):
        self.q.append(tag)

    def wait(self, tags, counts=None):
        idx = max([i for i, t in enumerate(self.q) if t in tags], default=-1)
        for t in tags:
            assert t in self.q, (t, self.q)
            if counts:
                assert self.q.count(t) == counts(t), (t, self.q)
        n = len(self.q) - 1 - idx
        assert n <= 63
        return n

    def copy(self):
        v = VM(); v.q = list(self.q); return v


vFLA, vPOL, vFQO, vF1, vNON = 7, 9, 11, 12, 13
vDW = 31


def flag1(a, soff):
    return f"buffer_store_dword v{vNON}, v{vF1}, {sr4(S_WS)}, s{soff} offen{SC}"


AQ, AO, AS, AKV, AP, ATMP = 16, 48, [112, 128], 144, 208, 224
avG, avM, avONE = 14, 15, 216
sME, sMO = 24, 26
sKB, sVB, sTI, sKS, sVS, sIT = 45, 46, 47, 48, 52, 49


avV0, avV1 = 217, 218
HBR = 240


def hb_stores():
    return [f"buffer_store_dwordx4 {vr(HBR+4*i, 4)}, v{vL16}, {sr4(S_WS)}, s{sHOFF2} offen offset:{1024*i}{SC}" for i in range(2)]

sVM = 30


def kv_adv():
    return [f"s_mul_i32 s{sVS}, s{sTI}, {TQ}", f"s_add_u32 s{sKS}, s{sVS}, s{sKB}",
            f"s_add_u32 s{sVS}, s{sVS}, s{sVB}",
            f"s_add_u32 s{sTI}, s{sTI}, 1", f"s_and_b32 s{sTI}, s{sTI}, 15"]


def kv_load(buf, part, vv=(None, None)):
    if part < 2:
        return [f"buffer_load_dwordx4 {vr(AKV+16*buf+4*part, 4)}, v{vL16}, {sr4(S_WS)}, s{sKS} offen offset:{1024*part}{SC}"]
    return [f"s_mov_b64 exec, s[{sVM}:{sVM+1}]",
            f"buffer_load_dwordx4 {vr(AKV+16*buf+4*part, 4)}, v{vv[part-2]}, {sr4(S_WS)}, s{sVS} offen{SC}",
            "s_mov_b64 exec, -1"]


def att_loads():
    vm = VM()
    o1 = L(f"""
    s_lshl_b32 s{sT1}, s{sP0}, 9
    s_lshl_b32 s{sT2}, s{sQB}, 2
    s_add_u32 s{sT2}, s{sT2}, s{sKQ}
    s_mul_i32 s{sT0}, s{sT2}, {TQ}
    s_add_u32 s{sT0}, s{sT0}, s{sT1}
    buffer_load_dwordx4 {vr(AQ, 4)}, v{vL16}, {sr4(S_WS)}, s{sT0} offen{SC}
    buffer_load_dwordx4 {vr(AQ+4, 4)}, v{vL16}, {sr4(S_WS)}, s{sT0} offen offset:1024{SC}
    s_mul_i32 s{sVB}, s{sKQ}, {16 * TQ}
    s_add_u32 s{sKB}, s{sVB}, s{sT1}
    s_add_u32 s{sKB}, s{sKB}, {KF}
    s_mul_i32 s{sT0}, s{sHEAD}, 448
    s_add_u32 s{sVB}, s{sVB}, s{sT0}
    s_add_u32 s{sVB}, s{sVB}, {VF}
    s_and_b32 s{sTI}, s{sQB}, {AROT}
    s_mov_b32 s{sVM}, 0x0fffffff
    s_mov_b32 s{sVM+1}, 0x0fffffff
    v_lshrrev_b32 v{vT2}, 5, v{vLane}
    v_mul_u32_u24 v{vT2}, {7168 - 512}, v{vT2}
    v_add_u32 v{vT2}, v{vT2}, v{vL16}
    v_add_u32 v{vT3}, 14336, v{vT2}
    """)
    vm.add(("q",)); vm.add(("q",))
    o2 = []
    for t in range(3):
        o = o1 if t == 0 else o2
        o += kv_adv()
        for p in range(4):
            if p == 2:
                o += [f"v_mov_b32 v{AKV+16*t+8+i}, 0x3f803f80" for i in range(8)]
            o.append(kv_load(t, p, (vT2, vT3)))
            vm.add(("kv", t, p))
    flat = lambda o: [y for x in o for y in (x if isinstance(x, list) else [x])]
    return o1, o2, vm, flat


def wk_off(i):
    return 8 * (i % 14) + 4 * (i // 14)


def gen():
    a = Asm()
    vDX0, vDX1, vDB0, vDG, vDU = 7, 8, 9, 10, 11
    vAX = 14
    vAW = 18
    vST = 22
    vN, vR4, vC, vRow = 26, 27, 28, 29
    X, ACC, WF = 32, 144, 224
    PFR, vPFL, sPFI = ACC + 60, 30, 58

    stamp(a, "start")
    if INSTR: a("s_memrealtime s[100:101]")
    if "dbgt" in OPT: a("s_memtime s[86:87]\ns_memrealtime s[88:89]")
    a(f"""
    s_cmp_ge_u32 s2, 256
    s_cbranch_scc1 k_end
    """)
    if os.environ.get("DELAY"):
        a(f"""
        s_cmp_lg_u32 s2, {os.environ["DELAY"]}
        s_cbranch_scc1 k_nodelay
        s_mov_b32 s3, 12
        """)
        a.label("k_delay")
        a("s_sleep 100\ns_sub_u32 s3, s3, 1\ns_cmp_lg_u32 s3, 0\ns_cbranch_scc1 k_delay")
        a.label("k_nodelay")
    a(f"""
    s_load_dwordx16 s[64:79], s[0:1], 0
    s_load_dwordx4 s[80:83], s[0:1], 64
    s_load_dwordx2 s[84:85], s[0:1], 80
    v_and_b32 v{vLane}, 63, v0
    v_lshrrev_b32 v{vT0}, 6, v0
    s_and_b32 s{sC8}, s2, 7
    s_lshr_b32 s{sI32}, s2, 3
    v_readfirstlane_b32 s{sW}, v{vT0}
    s_lshr_b32 s{sT1}, s{sC8}, 1
    s_mul_i32 s{sT0}, s{sT1}, 28
    s_sub_u32 s{sT0}, s{sT0}, 4
    s_lshl_b32 s{sT1}, s{sT1}, 2
    s_add_u32 s{sT1}, s{sT1}, 112
    s_cmp_lt_u32 s{sI32}, 4
    s_cselect_b32 s{sT0}, s{sT1}, s{sT0}
    s_add_u32 s{sT0}, s{sT0}, s{sI32}
    s_lshr_b32 s{sJ}, s{sT0}, 3
    s_and_b32 s{sT0}, s{sT0}, 7
    s_and_b32 s{sMI}, s{sC8}, 1
    s_lshl_b32 s{sMI}, s{sMI}, 3
    s_add_u32 s{sMI}, s{sMI}, s{sT0}
    v_lshrrev_b32 v{vT0}, 3, v{vLane}
    v_lshrrev_b32 v{vT1}, 4, v{vLane}
    v_and_b32 v{vT2}, 7, v{vLane}
    v_xor_b32 v{vT3}, v{vT2}, v{vT1}
    s_lshl_b32 s{sT0}, s{sMI}, 7
    s_lshl_b32 s{sT1}, s{sW}, 4
    s_add_u32 s{sT0}, s{sT0}, s{sT1}
    v_add_u32 v{vDX0}, s{sT0}, v{vT0}
    v_mul_u32_u24 v{vDX0}, 896, v{vDX0}
    v_lshl_add_u32 v{vDX0}, v{vT3}, 4, v{vDX0}
    v_xor_b32 v{vDX1}, 64, v{vDX0}
    v_add_u32 v{vDX1}, 7168, v{vDX1}
    v_and_b32 v{vT3}, 1, v{vT1}
    v_lshlrev_b32 v{vT3}, 2, v{vT3}
    v_xor_b32 v{vT3}, v{vT3}, v{vT2}
    v_lshlrev_b32 v{vT3}, 4, v{vT3}
    v_mul_u32_u24 v{vDW}, 896, v{vT0}
    v_add_u32 v{vDW}, v{vDW}, v{vT3}
    s_lshl_b32 s{sT0}, s{sW}, 3
    v_add_u32 v{vT0}, s{sT0}, v{vT0}
    v_mul_u32_u24 v{vDB0}, 2688, v{vT0}
    v_add_u32 v{vDB0}, v{vDB0}, v{vT3}
    s_lshl_b32 s{sMX}, s{sW}, 11
    s_lshl_b32 s{sMB}, s{sW}, 10
    s_add_u32 s{sMB}, s{sMB}, 16384
    v_lshlrev_b32 v{vL16}, 4, v{vLane}
    s_mov_b32 s{S_X+2}, {2048 * 448 * 2}
    s_mov_b32 s{S_X+3}, 0x00020000
    s_mov_b32 s{S_B0+2}, {448 * 1344 * 2}
    s_mov_b32 s{S_B0+3}, 0x00020000
    s_mov_b32 s{S_G+3}, 0x00020000
    s_mov_b32 s{S_U+3}, 0x00020000
    s_cmp_ge_u32 s{sJ}, 14
    s_cbranch_scc1 k1_v
    """)

    vm = None

    def emit_group(g):
        for l in g[0]:
            a(l)
        vm.add(g[1])

    def dma(m0base, m0off, vaddr, srdb, soff):
        return [f"s_add_u32 m0, s{m0base}, {m0off & 0xffffffff}", f"s_mov_b32 s{sSO}, {soff}",
                f"buffer_load_dwordx4 v{vaddr}, {sr4(srdb)}, s{sSO} offen lds"]

    def pf1(tg):
        if "nopf" in OPT.split(","):
            return
        a(f"""
        s_lshl_b32 s{sPFI}, s2, 3
        s_add_u32 s{sPFI}, s{sPFI}, s{sW}
        s_lshl_b32 s{sT0}, s{sPFI}, 10
        s_mov_b32 s{S_TMP+3}, 0x00020000
        v_lshrrev_b32 v{vPFL}, 3, v{vLane}
        v_lshlrev_b32 v{vPFL}, 7, v{vPFL}
        v_add_u32 v{vPFL}, v{vPFL}, v{vL16}
        """)
        if "nox" not in OPT:
            a(f"buffer_load_dwordx4 {vr(PFR, 4)}, v{vL16}, {sr4(S_X)}, s{sT0} offen")
            vm.add(("PF",))
        if "now1" in OPT:
            return
        a(f"""
        s_cmp_lt_u32 s{sPFI}, {NQ}
        s_cbranch_scc1 k_pf_q_{tg}
        s_cmp_lt_u32 s{sPFI}, {NQ + NG}
        s_cselect_b32 s{S_TMP}, s{P_WG}, s{P_WU}
        s_cselect_b32 s{S_TMP+1}, s{P_WG+1}, s{P_WU+1}
        s_cselect_b32 s{sT0}, 0, {NG}
        s_mov_b32 s{S_TMP+2}, {448 * 1792 * 2}
        s_sub_u32 s{sT0}, s{sPFI}, s{sT0}
        s_lshl_b32 s{sT0}, s{sT0}, 11
        s_add_u32 s{sT0}, s{sT0}, {(PFROW * 3584 - NQ * 2048) & 0xffffffff}
        buffer_load_dwordx4 {vr(PFR+4, 4)}, v{vPFL}, {sr4(S_TMP)}, s{sT0} offen
        s_branch k_pf_d_{tg}
        """)
        a.label(f"k_pf_q_{tg}")
        a(f"""
        s_add_u32 s{sT0}, s{sT0}, {PFROW * 2688}
        buffer_load_dwordx4 {vr(PFR+4, 4)}, v{vL16}, {sr4(S_B0)}, s{sT0} offen
        """)
        a.label(f"k_pf_d_{tg}")
        vm.add(("PF",))

    def common_setup2(tg):
        srd(a, S_WS, P_WS, WS_BYTES)
        srd(a, S_DBG, P_DBG, 256)
        srd(a, S_WD, P_WD, 1792 * 448 * 2)
        a(f"""
        s_or_b32 s{sT0}, s2, s{sW}
        s_cmp_lg_u32 s{sT0}, 0
        s_cbranch_scc1 k_nononce_{tg}
        s_memrealtime s[{sSC}:{sSC+1}]
        v_mov_b32 v{vT1}, 0
        s_waitcnt lgkmcnt(0)
        s_or_b32 s{sT0}, s{sSC}, 0x80000000
        v_mov_b32 v{vT0}, s{sT0}
        s_mov_b64 exec, 1
        buffer_store_dword v{vT0}, v{vT1}, {sr4(S_DBG)}, 0 offen{SC}
        s_mov_b64 exec, -1
        """)
        a.label(f"k_nononce_{tg}")
        if not PFPOS:
            pf1(tg)
        if PF_EARLY:
            for g in (([] if 'no2' in OPT else [pf2()]) + ([pf3()] if PF_EARLY == 2 else [])):
                emit_group(g)
        if "nocp" not in OPT:
            a(f"""
            s_cmp_ge_u32 s{sI32}, 5
            s_cbranch_scc1 k_nocp_{tg}
            s_lshl_b32 s{sT0}, s{sI32}, 3
            s_add_u32 s{sT0}, s{sT0}, s{sW}
            s_lshl_b32 s{sT0}, s{sT0}, 10
            v_add_u32 v{vT0}, s{sT0}, v{vL16}
            v_min_u32 v{vT0}, k_end-{KNAME}-12, v{vT0}
            s_getpc_b64 s[{sSC}:{sSC+1}]
            """)
            a.label(f"k_pc_{tg}")
            a(f"""
            s_sub_u32 s{sSC}, s{sSC}, k_pc_{tg}-{KNAME}
            s_subb_u32 s{sSC+1}, s{sSC+1}, 0
            global_load_dwordx4 {vr(ACC+76, 4)}, v{vT0}, s[{sSC}:{sSC+1}]
            """)
            a.label(f"k_nocp_{tg}")
        a(f"""
        s_and_b32 s{sR}, s{sW}, 3
        s_lshr_b32 s{sGRP}, s{sW}, 2
        s_lshl_b32 s{sTILE}, s{sMI}, 2
        s_add_u32 s{sTILE}, s{sTILE}, s{sR}
        v_and_b32 v{vT0}, 31, v{vLane}
        v_lshrrev_b32 v{vT1}, 5, v{vLane}
        v_bfe_u32 v{vT2}, v{vLane}, 1, 3
        v_xor_b32 v{vT2}, v{vT2}, v{vT1}
        s_lshl_b32 s{sT0}, s{sR}, 12
        v_lshlrev_b32 v{vT3}, 7, v{vT0}
        v_lshl_add_u32 v{vT3}, v{vT2}, 4, v{vT3}
        v_add_u32 v{vAX}, s{sT0}, v{vT3}
        v_xor_b32 v{vAX+1}, 32, v{vAX}
        v_xor_b32 v{vAX+2}, 64, v{vAX}
        v_xor_b32 v{vAX+3}, 96, v{vAX}
        v_bfe_u32 v{vN}, v{vLane}, 4, 1
        v_bfe_u32 v{vR4}, v{vLane}, 2, 2
        v_and_b32 v{vC}, 3, v{vLane}
        v_lshl_add_u32 v{vRow}, v{vT1}, 3, v{vR4}
        v_and_b32 v{vT2}, 2, v{vR4}
        v_xor_b32 v{vT2}, v{vT2}, v{vN}
        s_lshl_b32 s{sT0}, s{sGRP}, 1
        v_xor_b32 v{vT2}, s{sT0}, v{vT2}
        v_lshlrev_b32 v{vT3}, 7, v{vRow}
        v_lshl_add_u32 v{vT3}, v{vT2}, 5, v{vT3}
        v_lshl_add_u32 v{vT3}, v{vC}, 3, v{vT3}
        v_add_u32 v{vAW}, 16384, v{vT3}
        s_mov_b32 s{sNL2E}, {f32bits(-LOG2E):#x}
        """)

    def flag_addr(vtype, vfla, vfqo):
        t0, t1, t2, t3 = vN, vR4, vC, vRow
        o = L(f"""
        s_lshl_b32 s{sHEAD}, s{sC8}, 1
        s_and_b32 s{sT2}, s{sI32}, 1
        s_add_u32 s{sHEAD}, s{sHEAD}, s{sT2}
        s_lshr_b32 s{sQB}, s{sI32}, 1
        s_lshl_b32 s{sMT}, s{sC8}, 2
        s_and_b32 s{sT2}, s{sI32}, 3
        s_add_u32 s{sMT}, s{sMT}, s{sT2}
        s_lshr_b32 s{sNT}, s{sI32}, 2
        s_mul_i32 s{sP0}, s{sHEAD}, 7
        s_lshr_b32 s{sP0}, s{sP0}, 1
        s_lshl_b32 s{sFQB}, s{sHEAD}, 12
        s_add_u32 s{sFQB}, s{sFQB}, {FQ}
        s_lshr_b32 s{sT1}, s{sQB}, 2
        s_lshl_b32 s{sT1}, s{sT1}, 7
        s_and_b32 s{sT2}, s{sQB}, 3
        s_lshl_b32 s{sT2}, s{sT2}, 2
        s_add_u32 s{sT1}, s{sT1}, s{sT2}
        s_add_u32 s{sT1}, s{sT1}, 2048
        v_lshrrev_b32 v{t0}, 2, v{vLane}
        v_and_b32 v{t1}, 3, v{vLane}
        v_lshlrev_b32 v{t1}, 2, v{t1}
        v_lshl_add_u32 v{vfla}, v{t0}, 7, v{t1}
        v_and_b32 v{t0}, 1, v{vLane}
        v_lshl_add_u32 v{vfla+1}, v{t0}, 9, s{sT1}
        v_and_b32 v{t0}, 15, v{vLane}
        v_lshrrev_b32 v{t1}, 4, v{vLane}
        v_lshlrev_b32 v{t3}, 12, v{t0}
        v_lshl_add_u32 v{t3}, v{t1}, 9, v{t3}
        s_lshr_b32 s{sT1}, s{sMI}, 2
        s_lshl_b32 s{sT1}, s{sT1}, 7
        s_and_b32 s{sT2}, s{sMI}, 3
        s_lshl_b32 s{sT2}, s{sT2}, 2
        s_add_u32 s{sT1}, s{sT1}, s{sT2}
        """)
        if not vtype:
            o += L(f"""
            s_add_u32 s{sT2}, s{sJ}, 1
            s_lshr_b32 s{sT2}, s{sT2}, 3
            v_mul_u32_u24 v{t2}, 7, v{t0}
            v_lshrrev_b32 v{t2}, 1, v{t2}
            v_mad_u32_u24 v{t2}, v{t1}, 3, v{t2}
            v_lshrrev_b32 v{t2}, 3, v{t2}
            v_lshrrev_b32 v{t1}, 1, v{t1}
            v_lshl_add_u32 v{t2}, v{t1}, 6, v{t2}
            v_mad_u32_u24 v{t2}, s{sT2}, 7, v{t2}
            v_cmp_eq_u32 vcc, s{sJ}, v{t2}
            s_lshl_b32 s{sT2}, s{sT2}, 11
            s_sub_u32 s{sT1}, s{sT1}, s{sT2}
            s_add_u32 s{sT1}, s{sT1}, 2048
            """)
        else:
            o += L(f"""
            v_add_u32 v{t2}, 14, v{t1}
            v_cmp_eq_u32 vcc, s{sJ}, v{t2}
            s_add_u32 s{sT1}, s{sT1}, 1024
            """)
        o += L(f"""
        v_add_u32 v{t3}, s{sT1}, v{t3}
        v_mov_b32 v{t0}, {OOB}
        v_cndmask_b32 v{vfqo}, v{t0}, v{t3}, vcc
        v_cmp_eq_u32 vcc, 0, v{vLane}
        s_lshr_b32 s{sFHO}, s{sTILE}, 1
        s_lshl_b32 s{sFHO}, s{sFHO}, 10
        v_cndmask_b32 v{vF1}, v{t0}, v{vLane}, vcc
        s_lshr_b32 s{sT1}, s{sJ}, 1
        s_lshl_b32 s{sT1}, s{sT1}, 7
        s_add_u32 s{sFHO}, s{sFHO}, s{sT1}
        s_and_b32 s{sT1}, s{sJ}, 1
        s_lshl_b32 s{sT1}, s{sT1}, 3
        s_add_u32 s{sFHO}, s{sFHO}, s{sT1}
        s_and_b32 s{sT1}, s{sR}, 1
        s_lshl_b32 s{sT1}, s{sT1}, 2
        s_add_u32 s{sFHO}, s{sFHO}, s{sT1}
        s_add_u32 s{sFHO}, s{sFHO}, {FHB}
        s_lshl_b32 s{sFHA}, s{sMI}, 9
        s_lshr_b32 s{sT1}, s{sJ}, 2
        s_lshl_b32 s{sT1}, s{sT1}, 7
        s_add_u32 s{sFHA}, s{sFHA}, s{sT1}
        s_and_b32 s{sT1}, s{sJ}, 3
        s_lshl_b32 s{sT1}, s{sT1}, 2
        s_add_u32 s{sFHA}, s{sFHA}, s{sT1}
        s_add_u32 s{sFHA}, s{sFHA}, {FH}
        s_lshl_b32 s{sM0}, s{sNT}, 7
        s_mul_i32 s{sWB}, s{sR}, {16 * 896}
        s_add_u32 s{sWB}, s{sWB}, s{sM0}
        s_lshl_b32 s{sM0}, s{sR}, 11
        """)
        return o

    def nonce_get(tag):
        a(f"""
        v_readfirstlane_b32 s{sNONCE}, v{vNON}
        v_lshlrev_b32 v{vT0}, 2, v{vLane}
        v_add_u32 v{vT0}, {CNT}, v{vT0}
        v_mov_b32 v{vT1}, 0
        s_cmp_lg_u32 s{sNONCE}, 0
        s_cbranch_scc1 k1_nonce_ok_{tag}
        """)
        a.label(f"k1_nonce_spin_{tag}")
        a(f"""
        buffer_load_dword v{vNON}, v{vT1}, {sr4(S_DBG)}, 0 offen{SC}
        s_waitcnt vmcnt(0)
        v_readfirstlane_b32 s{sNONCE}, v{vNON}
        s_sleep 4
        s_cmp_eq_u32 s{sNONCE}, 0
        s_cbranch_scc1 k1_nonce_spin_{tag}
        """)
        a.label(f"k1_nonce_ok_{tag}")
        a(f"ds_write_b32 v{vT0}, v{vT1}")

    def pf2():
        return (L(f"""
        s_cmp_lt_u32 s{sPFI}, 784
        s_cselect_b32 s{S_TMP}, s{P_WG}, s{P_WU}
        s_cselect_b32 s{S_TMP+1}, s{P_WG+1}, s{P_WU+1}
        s_cselect_b32 s{sT0}, 0, 784
        s_mov_b32 s{S_TMP+2}, {448 * 1792 * 2}
        s_sub_u32 s{sT0}, s{sPFI}, s{sT0}
        s_lshl_b32 s{sT0}, s{sT0}, 11
        buffer_load_dwordx4 {vr(PFR+8, 4)}, v{vPFL}, {sr4(S_TMP)}, s{sT0} offen offset:128
        """), ("PF",))

    def pf3():
        return (L(f"""
        s_cmp_lt_u32 s{sPFI}, 1568
        s_cselect_b32 s{S_TMP}, s{P_WD}, s{P_WO}
        s_cselect_b32 s{S_TMP+1}, s{P_WD+1}, s{P_WO+1}
        s_cselect_b32 s{sT0}, 0, 1568
        s_cselect_b32 s{S_TMP+2}, s{S_WD+2}, {448 * 448 * 2}
        s_sub_u32 s{sT0}, s{sPFI}, s{sT0}
        s_lshl_b32 s{sT0}, s{sT0}, 10
        buffer_load_dwordx4 {vr(PFR+12, 4)}, v{vL16}, {sr4(S_TMP)}, s{sT0} offen
        """), ("PF",))

    nonce_ld = ([f"v_mov_b32 v{vNON}, 0", f"buffer_load_dword v{vNON}, v{vNON}, {sr4(S_DBG)}, 0 offen{SC}"], ("N",))

    def wpref(i):
        ra = ring_addr(i % 13)
        return [f"s_add_u32 m0, s{sM0}, {ra}", f"s_add_u32 s{sT0}, s{sWB}, {wk_off(i) * 16 * 896}",
                f"buffer_load_dwordx4 v{vDW}, {sr4(S_WD)}, s{sT0} offen lds",
                f"s_add_u32 m0, s{sM0}, {ra + 1024}", f"s_add_u32 s{sT0}, s{sT0}, {8 * 896}",
                f"buffer_load_dwordx4 v{vDW}, {sr4(S_WD)}, s{sT0} offen lds"]

    abase = [0]

    def set_base(nb, regs):
        out = []
        if nb != abase[0]:
            d = nb - abase[0]
            for r in regs:
                out.append(f"v_add_u32 v{r}, {d}, v{r}" if d > 0 else f"v_subrev_u32 v{r}, {-d}, v{r}")
            abase[0] = nb
        return out

    def emit(x):
        if isinstance(x, tuple):
            a(x[1]); vm.add((x[0],))
        else:
            a(x)

    vm = VM()
    cnts = lambda t: {"A": 5, "B": 2}[t[0]] if t[0] in ("A", "B") else vm.q.count(t)
    a(f"""
    s_lshl_b32 s{sT0}, s{sJ}, 7
    v_add_u32 v{vDB0}, s{sT0}, v{vDB0}
    v_mul_u32_u24 v{vDG}, 3584, v{vT0}
    s_lshl_b32 s{sT0}, s{sJ}, 8
    v_add3_u32 v{vDG}, v{vDG}, v{vT3}, s{sT0}
    v_xor_b32 v{vDU}, 32, v{vDG}
    s_mov_b32 s{S_G+2}, {448 * 1792 * 2}
    s_mov_b32 s{S_U+2}, {448 * 1792 * 2}
    s_waitcnt lgkmcnt(0)
    s_mov_b64 s[{S_X}:{S_X+1}], s[{P_X}:{P_X+1}]
    s_mov_b64 s[{S_B0}:{S_B0+1}], s[{P_WQKV}:{P_WQKV+1}]
    s_mov_b64 s[{S_G}:{S_G+1}], s[{P_WG}:{P_WG+1}]
    s_mov_b64 s[{S_U}:{S_U+1}], s[{P_WU}:{P_WU+1}]
    """)

    def fA(st):
        b = (st % 4) * SLOT
        g = [dma(sMX, b, vDX0, S_X, st * 128), dma(sMX, b + 1024, vDX1, S_X, st * 128),
             dma(sMB, b, vDB0, S_B0, st * 64 * 2688), dma(sMB, b + 8192, vDG, S_G, st * 64 * 3584),
             dma(sMB, b + 16384, vDU, S_U, st * 64 * 3584)]
        return [(x, ("A", st)) for x in g]

    def bslot(sb):
        return ((3 + sb // 2) % 4) * SLOT + (sb % 2) * 16384

    def fB(sb):
        b = bslot(sb) - 16384
        g = [dma(sMB, b, vDG, S_G, sb * 64 * 3584 + 128), dma(sMB, b + 8192, vDU, S_U, sb * 64 * 3584 + 128)]
        return [(x, ("B", sb)) for x in g]

    for g in fA(0):
        emit_group(g)
    a("s_barrier")
    if PFPOS: pf1("f")
    for g in fA(1):
        emit_group(g)
    common_setup2("f")
    a(f"""
    v_lshl_add_u32 v{vAW+1}, v{vN}, 13, v{vT3}
    v_add_u32 v{vAW+1}, {16384 + 8192}, v{vAW+1}
    v_xor_b32 v{vAW+2}, 32, v{vAW+1}
    s_cmp_ge_u32 s{sJ}, 7
    s_cselect_b32 s{sT1}, {KF - 7 * 4096}, {QF}
    s_cselect_b32 s{sSC}, 1.0, {f32bits(28 ** -0.5 * LOG2E):#x}
    s_lshl_b32 s{sT2}, s{sJ}, 12
    s_add_u32 s{sT1}, s{sT1}, s{sT2}
    s_lshl_b32 s{sT2}, s{sGRP}, 11
    s_add_u32 s{sT1}, s{sT1}, s{sT2}
    s_mul_i32 s{sQKO}, s{sTILE}, {TQ}
    s_add_u32 s{sQKO}, s{sQKO}, s{sT1}
    s_mul_i32 s{sHOFF}, s{sTILE}, 112
    s_lshl_b32 s{sT1}, s{sJ}, 3
    s_add_u32 s{sHOFF}, s{sHOFF}, s{sT1}
    s_lshl_b32 s{sT1}, s{sGRP}, 1
    s_add_u32 s{sHOFF}, s{sHOFF}, s{sT1}
    s_lshl_b32 s{sHOFF}, s{sHOFF}, 10
    s_add_u32 s{sHOFF}, s{sHOFF}, {HF}
    s_add_u32 s{sHOFF2}, s{sHOFF}, 4096
    """)
    WA = [WF, WF + 12, ACC + 48]
    NB = 4
    WB = [WF + 24, WF + 16, WF + 8, WF]

    def readsA(ks):
        st, s = ks // 4, ks % 4
        slot = st % 4
        out = set_base((slot // 2) * 2 * SLOT, [vAX, vAX+1, vAX+2, vAX+3, vAW, vAW+1, vAW+2])
        off = (slot % 2) * SLOT
        f = WA[ks % 3]
        out.append(f"ds_read_b128 {vr(X+4*ks, 4)}, v{vAX+s} offset:{off}")
        for t in range(3):
            for q in range(2):
                out.append(f"ds_read_b64_tr_b16 {vr(f+4*t+2*q, 2)}, v{vAW+t} offset:{off + (16*s + 4*q) * 128}")
        return out

    def readsB(ks):
        sb, s = ks // 4, ks % 4
        b = bslot(sb)
        f = WB[ks % NB]
        b32 = b - b % 32768
        off = b - b32
        out = set_base(b32 - 24576, [vAW+1, vAW+2])
        for t in range(2):
            for q in range(2):
                out.append(f"ds_read_b64_tr_b16 {vr(f+4*t+2*q, 2)}, v{vAW+1+t} offset:{off + (16*s + 4*q) * 128}")
        return out

    def epi_ffn(acc, ko, dst=None):
        g, u = acc, acc + 8
        dst = g if dst is None else dst
        o = []
        for i in range(8):
            o.append(f"v_mul_f32 v{u+i}, v{g+i}, v{u+i}")
            o.append(f"v_mul_f32 v{g+i}, s{sNL2E}, v{g+i}")
        for i in range(8):
            o.append(f"v_exp_f32 v{g+i}, v{g+i}")
        for i in range(8):
            o.append(f"v_add_f32 v{g+i}, 1.0, v{g+i}")
        for i in range(8):
            o.append(f"v_rcp_f32 v{g+i}, v{g+i}")
        for i in range(8):
            o.append(f"v_mul_f32 v{u+i}, v{u+i}, v{g+i}")
        for i in range(4):
            o.append(f"v_cvt_pk_bf16_f32 v{dst+i}, v{u+2*i}, v{u+2*i+1}")
        so, off = (sHOFF, ko) if ko < 4 else (sHOFF2, ko - 4)
        o.append(("H", f"buffer_store_dwordx4 {vr(dst, 4)}, v{vL16}, {sr4(S_WS)}, s{so} offen offset:{1024*off}{SC}"))
        return o

    def epi_qk():
        o = []
        for i in range(8):
            o.append(f"v_mul_f32 v{ACC+2*i}, s{sSC}, v{ACC+2*i}")
            o.append(f"v_mul_f32 v{ACC+2*i+1}, s{sSC}, v{ACC+2*i+1}")
            o.append(f"v_cvt_pk_bf16_f32 v{ACC+i}, v{ACC+2*i}, v{ACC+2*i+1}")
        o.append("s_nop 1")
        for hh in range(2):
            b = ACC + 4 * hh
            o.append(f"v_permlane32_swap_b32 v{b}, v{b+2}")
            o.append(f"v_permlane32_swap_b32 v{b+1}, v{b+3}")
            o.append(("QK", f"buffer_store_dwordx4 {vr(b, 4)}, v{vL16}, {sr4(S_WS)}, s{sQKO} offen offset:{1024*hh}{SC}"))
        return o

    abase[0] = 0
    a(f"s_waitcnt vmcnt({vm.wait({('A', 0)}, cnts)})\ns_barrier")
    stamp(a, "p1_first")
    for ks in range(2):
        for r in readsA(ks):
            a(r)
    pend = fA(2) + fA(3)
    vFQf = vST
    fillA = flag_addr(False, vFLA, vFQf)
    for ks in range(28):
        st, s = ks // 4, ks % 4
        f = WA[ks % 3]
        m = [f"{MFMA} {vr(ACC+16*t, 16)}, {vr(f+4*t, 4)}, {vr(X+4*ks, 4)}, {'0' if ks == 0 else vr(ACC+16*t, 16)}" for t in range(3)]
        if s == 2:
            need = {("A", st + 1)} if st < 6 else {("B", 0), ("B", 1), ("B", 2), ("B", 3), ("N",)}
            a(f"s_waitcnt vmcnt({vm.wait(need, cnts)}) lgkmcnt(0)")
            if st == 6:
                nonce_get("f")
            a("s_barrier")
            stamp(a, f"p1_a{st}")
            if st + 4 <= 6:
                pend += fA(st + 4)
            else:
                i0 = 2 * (st - 3)
                pend += fB(i0) + (fB(i0 + 1) if i0 + 1 < 7 else [])
            if st == 2:
                pend.append(nonce_ld)
            if "nopf" not in OPT and st == PF2_ST and PF_EARLY < 1: pend.append(pf2())
            if "nopf" not in OPT and st == PF3_ST and PF_EARLY < 2: pend.append(pf3())
        elif ks < 27:
            a("s_waitcnt lgkmcnt(7)")
        else:
            a("s_waitcnt lgkmcnt(4)")
        r = readsA(ks + 2) if ks + 2 < 28 else readsB(ks + 2 - 28)
        k = len(r) - 4 if ks + 2 < 28 else len(r) - 2
        a(m[0])
        for x in r[:k]:
            a(x)
        a(m[1])
        for x in r[k:]:
            a(x)
        a(m[2])
        if ks >= 16:
            assert vm.q.count(("A", 6)) == 5
            for _ in range(7):
                if fillA: a(fillA.pop(0))
        nd = 2 if (len(pend) > 4 or st < 1) else 1
        for _ in range(nd):
            if pend:
                emit_group(pend.pop(0))
    assert not fillA
    stamp(a, "p1_aend")
    for x in readsB(2):
        a(x)
    ea, eb = epi_ffn(ACC + 16, 0, X + 16), epi_ffn(ACC + 32, 1, X + 20)
    fillq = ["s_nop 3"] + epi_qk()
    fill = ea + eb
    wq = [0, 1, 2, 7, 3, 4, 5, 6]
    sWH, sMH2 = sMX, sOK
    for ks in range(28):
        f = WB[ks % NB]
        m = [f"{MFMA} {vr(ACC+48+16*t, 16)}, {vr(f+4*t, 4)}, {vr(X+4*ks, 4)}, {'0' if ks == 0 else vr(ACC+48+16*t, 16)}" for t in range(2)]
        nxt = ks + NB - 1
        if ks == QKB:
            need = {5: {("B", 2), ("B", 3), ("N",)}, QKB: {("B", 4), ("B", 5), ("B", 6), ("QK",)}, 17: set()}[ks]
            if ks == QKB: assert vm.q.count(("QK",)) == 2 and QKB <= 13
            if need: a(f"s_waitcnt vmcnt({vm.wait(need, cnts)})")
            a("s_barrier")
            stamp(a, {5: "p1_b2", QKB: "p1_b4", 17: "p1_b5"}[ks])
            if ks == QKB:
                a(f"""
                s_cmp_lg_u32 s{sW}, 7
                s_cbranch_scc1 k1_noflag_f
                s_mov_b32 s{sT0}, {FQ}
                buffer_store_dword v{vNON}, v{vFQf}, {sr4(S_WS)}, s{sT0} offen{SC}
                """)
                a.label("k1_noflag_f")
        stamp(a, f"pb{ks}")
        a(f"s_waitcnt lgkmcnt({min(NB - 2, 27 - ks) * 4})")
        r = readsB(nxt) if nxt < 28 else []

        def dofill():
            if ks < 1: return
            if fillq:
                for _ in range(5):
                    if fillq: emit(fillq.pop(0))
            else:
                for _ in range(FPER):
                    if fill and isinstance(fill[0], tuple) and ks < HA_ST and len(fill) > 1:
                        fill[0], fill[1] = fill[1], fill[0]
                    if fill and not (isinstance(fill[0], tuple) and ks < HA_ST): emit(fill.pop(0))
        a(m[0])
        for x in r[:len(r) - 2]:
            a(x)
        if pend:
            emit_group(pend.pop(0))
        dofill()
        a(m[1])
        for x in r[len(r) - 2:]:
            a(x)
        dofill()
        if wq and ks >= WP_ST and (ring_addr(wq[0]) < 122880 or ks >= QKB) and not pend:
            i = wq.pop(0)
            if i == 0:
                a(f"""
                s_mul_i32 s{sWH}, s{sGRP}, {8 * 896}
                s_add_u32 s{sWH}, s{sWH}, s{sWB}
                s_cmp_ge_u32 s{sI32}, 28
                s_cselect_b32 s{sWH}, {OOB}, s{sWH}
                s_lshl_b32 s{sMH2}, s{sGRP}, 10
                s_add_u32 s{sMH2}, s{sMH2}, s{sM0}
                """)
            a(f"""
            s_add_u32 m0, s{sMH2}, {ring_addr(i)}
            s_add_u32 s{sT0}, s{sWH}, {wk_off(i) * 16 * 896}
            buffer_load_dwordx4 v{vDW}, {sr4(S_WD)}, s{sT0} offen lds
            """)
            vm.add(("WP",))
        if ks == EARLY_P:
            a(f"""
            s_cmp_lg_u32 s{sW}, 0
            s_cbranch_scc1 k1_nopoll
            buffer_load_dword v{vPOL}, v{vFLA}, {sr4(S_WS)}, s{sFQB} offen{SC}
            buffer_load_dword v{vPOL+1}, v{vFLA+1}, {sr4(S_WS)}, s{sFQB} offen{SC}
            """)
            a.label("k1_nopoll")
    assert not fill and not pend and not wq
    stamp(a, "pb28")
    a(f"""
    s_cmp_lg_u32 s{sW}, 0
    s_cbranch_scc1 k1_nochk
    s_waitcnt vmcnt(0)
    """)
    poll_cmp(a, 2, vPOL)
    a(f"""
    s_cmp_eq_u64 vcc, 0
    s_cselect_b32 s{sT0}, 1, 0
    """)
    lds_set(a, 4, f"s{sT0}", vT0)
    a("s_waitcnt lgkmcnt(0)")
    a.label("k1_nochk")
    a(f"""
    s_cmp_ge_u32 s{sW}, 4
    s_cbranch_scc1 k1_nodr
    s_waitcnt vmcnt(0)
    """)
    a.label("k1_nodr")
    a(f"""
    s_barrier
    s_mov_b32 s{sOK}, 0
    s_cmp_ge_u32 s{sW}, 4
    s_cbranch_scc1 k1_epi
    v_mov_b32 v{vT0}, {CNT + 4}
    ds_read_b32 v{vT1}, v{vT0}
    s_waitcnt lgkmcnt(0)
    v_readfirstlane_b32 s{sOK}, v{vT1}
    s_cmp_eq_u32 s{sOK}, 1
    s_cbranch_scc1 k1_early
    s_cmp_lg_u32 s{sW}, 0
    s_cbranch_scc1 k1_epi
    buffer_load_dword v{vPOL}, v{vFLA}, {sr4(S_WS)}, s{sFQB} offen{SC}
    buffer_load_dword v{vPOL+1}, v{vFLA+1}, {sr4(S_WS)}, s{sFQB} offen{SC}
    s_branch k1_epi
    """)
    a.label("k1_early")
    stamp(a, "x_go")
    o1, o2, _, flat = att_loads()
    for x in flat(o1):
        a(x)
    stamp(a, "p1_bend")
    e0, e1 = epi_ffn(ACC + 48, 4, HBR), epi_ffn(ACC + 64, 5, HBR + 4)
    ev = e0[:-1] + e1[:-1]
    step = len(ev) // len(o2)
    for x in o2:
        for _ in range(step):
            a(ev.pop(0))
        for y in flat([x]):
            a(y)
    for x in ev:
        a(x)
    stamp(a, "p1_end")
    a("s_branch att_main")
    a.label("k1_epi")
    a("s_nop 7")
    stamp(a, "p1_bend")
    for x in e0[:FA_AT]:
        a(x)
    a(f"""
    s_cmp_lt_u32 s{sW}, 4
    s_cbranch_scc1 k1_nofa
    v_mov_b32 v{vT0}, {CNT + 32}
    v_mov_b32 v{vT1}, 1
    s_waitcnt vmcnt(0)
    s_mov_b64 exec, 1
    ds_add_rtn_u32 v{vT1}, v{vT0}, v{vT1}
    s_mov_b64 exec, -1
    s_waitcnt lgkmcnt(0)
    v_readfirstlane_b32 s{sT0}, v{vT1}
    s_cmp_lg_u32 s{sT0}, 3
    s_cbranch_scc1 k1_nofa
    """)
    a(flag1(a, sFHA))
    a.label("k1_nofa")
    for x in e0[FA_AT:-1] + e1[:-1]:
        a(x)
    stamp(a, "p1_end")
    a(f"""
    s_cmp_ge_u32 s{sW}, 4
    s_cbranch_scc1 gemm_role2
    s_cmp_lg_u32 s{sW}, 0
    s_cbranch_scc1 aq_lw
    s_waitcnt vmcnt(0)
    """)
    poll_cmp(a, 2, vPOL)
    a(f"""
    s_cmp_eq_u64 vcc, 0
    s_cbranch_scc1 aq_ok
    s_branch att_spin
    """)

    a.label("k1_v")
    vm = VM()
    cntv = lambda t: {"A": 5, "B": 1}[t[0]] if t[0] in ("A", "B") else vm.q.count(t)
    GWL = CNT + 1024
    a(f"""
    v_add_u32 v{vDU}, {(896 + 192) * 2}, v{vDB0}
    s_cmp_eq_u32 s{sJ}, 14
    s_cselect_b32 s{sT0}, 0, 512
    s_add_u32 s{sT0}, s{sT0}, {896 * 2}
    v_add_u32 v{vDB0}, s{sT0}, v{vDB0}
    s_mov_b32 s{S_U+2}, {448 * 2}
    s_waitcnt lgkmcnt(0)
    s_mov_b64 s[{S_X}:{S_X+1}], s[{P_X}:{P_X+1}]
    s_mov_b64 s[{S_B0}:{S_B0+1}], s[{P_WQKV}:{P_WQKV+1}]
    s_mov_b64 s[{S_U}:{S_U+1}], s[{P_GW}:{P_GW+1}]
    """)

    def vA(st):
        b = (st % 4) * SLOT
        g = [dma(sMX, b, vDX0, S_X, st * 128), dma(sMX, b + 1024, vDX1, S_X, st * 128)]
        for bi in range(3):
            g.append(dma(sMB, b + 8192 * bi, vDB0, S_B0, st * 64 * 2688 + 128 * bi))
        return [(x, ("A", st)) for x in g]

    def vbslot(sb):
        return 3 * SLOT + sb * 8192 if sb < 4 else (sb - 4) * 8192

    def vB(sb):
        return [(dma(sMB, vbslot(sb) - 16384, vDU, S_B0, sb * 64 * 2688), ("B", sb))]

    gw_ld = ([f"s_mov_b32 m0, {GWL}", "s_nop 0", f"buffer_load_dwordx4 v{vL16}, {sr4(S_U)}, 0 offen lds"], ("GW",))

    for g in vA(0):
        emit_group(g)
    a("s_barrier")
    if PFPOS: pf1("v")
    for g in vA(1):
        emit_group(g)
    common_setup2("v")
    vAZ = vAW + 3
    a(f"""
    v_add_u32 v{vAW+1}, 8192, v{vAW}
    v_add_u32 v{vAW+2}, 16384, v{vAW}
    s_sub_u32 s{sT1}, s{sJ}, 14
    s_lshl_b32 s{sT1}, s{sT1}, 6
    v_xor_b32 v{vAZ}, s{sT1}, v{vAW}
    v_lshlrev_b32 v{vST+1}, 4, v{vT1}
    v_add_u32 v{vST+1}, {GWL}, v{vST+1}
    s_cmp_eq_u32 s{sJ}, 14
    s_cselect_b32 s{sT1}, 0, 4096
    s_lshl_b32 s{sT2}, s{sGRP}, 9
    s_add_u32 s{sT1}, s{sT1}, s{sT2}
    s_mul_i32 s{sHOFF}, s{sTILE}, {TQ}
    s_add_u32 s{sHOFF}, s{sHOFF}, s{sT1}
    s_add_u32 s{sHOFF}, s{sHOFF}, {VF}
    s_add_u32 s{sHOFF2}, s{sHOFF}, 14336
    v_mul_u32_u24 v{vST}, {7168 - 512}, v{vT1}
    v_add_u32 v{vST}, v{vST}, v{vL16}
    """)

    def readsVA(ks):
        st, s = ks // 4, ks % 4
        slot = st % 4
        out = set_base((slot // 2) * 2 * SLOT, [vAX, vAX+1, vAX+2, vAX+3, vAW, vAW+1, vAW+2, vAZ])
        off = (slot % 2) * SLOT
        f = WA[ks % 3]
        out.append(f"ds_read_b128 {vr(X+4*ks, 4)}, v{vAX+s} offset:{off}")
        for t in range(3):
            for q in range(2):
                out.append(f"ds_read_b64_tr_b16 {vr(f+4*t+2*q, 2)}, v{vAW+t} offset:{off + (16*s + 4*q) * 128}")
        return out

    NBV = 6
    WBV = [WF + 24, WF + 28, WF + 16, WF + 20, WF + 12, WF + 8]

    def readsVB(ks, z):
        sb, s = ks // 4, ks % 4
        f = WBV[ks % NBV]
        if z:
            return [f"ds_read_b128 {vr(f, 4)}, v{vST+1} offset:{32*ks}"]
        b = vbslot(sb)
        nb = (3 * SLOT if sb < 4 else 0)
        out = set_base(nb - 16384, [vAZ])
        off = b - nb
        for q in range(2):
            out.append(f"ds_read_b64_tr_b16 {vr(f+2*q, 2)}, v{vAZ} offset:{off + (16*s + 4*q) * 128}")
        return out

    def epi_v(acc, bi):
        o = [f"v_cvt_pk_bf16_f32 v{acc+i}, v{acc+2*i}, v{acc+2*i+1}" for i in range(8)]
        o.append(f"buffer_store_dwordx4 {vr(acc, 4)}, v{vST}, {sr4(S_WS)}, s{sHOFF} offen offset:{1024*bi}{SC}")
        o.append(f"buffer_store_dwordx4 {vr(acc+4, 4)}, v{vST}, {sr4(S_WS)}, s{sHOFF2} offen offset:{1024*bi}{SC}")
        return o

    abase[0] = 0
    a(f"s_waitcnt vmcnt({vm.wait({('A', 0)}, cntv)})\ns_barrier")
    stamp(a, "p1_first")
    for ks in range(2):
        for r in readsVA(ks):
            a(r)
    pend = vA(2) + vA(3)
    fillA = flag_addr(True, vFLA, vDG)
    for ks in range(28):
        st, s = ks // 4, ks % 4
        f = WA[ks % 3]
        m = [f"{MFMA} {vr(ACC+16*t, 16)}, {vr(X+4*ks, 4)}, {vr(f+4*t, 4)}, {'0' if ks == 0 else vr(ACC+16*t, 16)}" for t in range(3)]
        if s == 2:
            need = {("A", st + 1)} if st < 6 else {("B", x) for x in range(7)} | {("N",), ("GW",)}
            a(f"s_waitcnt vmcnt({vm.wait(need, cntv)}) lgkmcnt(0)")
            if st == 6:
                nonce_get("v")
            a("s_barrier")
            if st + 4 <= 6:
                pend += vA(st + 4)
            elif st == 3:
                pend += vB(0) + vB(1) + vB(2) + vB(3)
            elif st == 4:
                pend += vB(4) + vB(5) + vB(6) + [gw_ld]
            if st == 2:
                pend.append(nonce_ld)
            if "nopf" not in OPT and st == PF2_ST and PF_EARLY < 1: pend.append(pf2())
            if "nopf" not in OPT and st == PF3_ST and PF_EARLY < 2: pend.append(pf3())
        elif ks < 27:
            a("s_waitcnt lgkmcnt(7)")
        r = readsVA(ks + 2) if ks + 2 < 28 else []
        k = max(len(r) - 4, 0)
        a(m[0])
        for x in r[:k]:
            a(x)
        a(m[1])
        for x in r[k:]:
            a(x)
        a(m[2])
        if ks >= 16:
            assert vm.q.count(("A", 6)) == 5
            for _ in range(7):
                if fillA: a(fillA.pop(0))
        nd = 2 if (len(pend) > 4 or st < 1) else 1
        for _ in range(nd):
            if pend:
                emit_group(pend.pop(0))
    assert not fillA and not pend
    stamp(a, "p1_aend")
    VB = ACC + 48

    def passVB(z, fill):
        nrd = 1 if z else 2
        for ks in range(NBV - 1):
            for x in readsVB(ks, z):
                a(x)
        for ks in range(28):
            f = WBV[ks % NBV]
            c = vr(VB, 16)
            ops = f"{vr(f, 4)}, {vr(X+4*ks, 4)}" if z else f"{vr(X+4*ks, 4)}, {vr(f, 4)}"
            a(f"s_waitcnt lgkmcnt({min(NBV - 2, 27 - ks) * nrd})")
            a(f"{MFMA} {c}, {ops}, {'0' if ks == 0 else c}")
            if ks + NBV - 1 < 28:
                for x in readsVB(ks + NBV - 1, z):
                    a(x)
            for _ in range(3):
                if fill: a(fill.pop(0))
        assert not fill

    a(f"s_cmp_eq_u32 s{sGRP}, 1\ns_cbranch_scc1 k1_vg1")
    passVB(False, ["s_nop 1"] + epi_v(ACC, 0) + epi_v(ACC + 16, 1) + epi_v(ACC + 32, 2))
    a(f"""
    s_mul_i32 s{sHOFF}, s{sTILE}, {TQ}
    s_lshl_b32 s{sT1}, s{sJ}, 9
    s_add_u32 s{sHOFF}, s{sHOFF}, s{sT1}
    s_add_u32 s{sHOFF}, s{sHOFF}, {VF + 192 * 16 - 14 * 512}
    s_add_u32 s{sHOFF2}, s{sHOFF}, 14336
    s_nop 7
    """)
    for x in epi_v(VB, 0):
        a(x)
    stamp(a, "p1_bend")
    a(f"""
    s_waitcnt vmcnt(0)
    s_barrier
    """)
    stamp(a, "p1_end")
    a(f"""
    s_cmp_lg_u32 s{sW}, 3
    s_cbranch_scc1 k1_noflag_v
    s_mov_b32 s{sT0}, {FQ}
    buffer_store_dword v{vNON}, v{vDG}, {sr4(S_WS)}, s{sT0} offen{SC}
    """)
    a(flag1(a, sFHA))
    a.label("k1_noflag_v")
    a("s_branch att_spin")
    a.label("k1_vg1")
    a("s_nop 7")
    for x in epi_v(ACC, 0) + epi_v(ACC + 16, 1) + epi_v(ACC + 32, 2):
        a(x)
    stamp(a, "p1_bend")
    a(f"""
    s_waitcnt vmcnt(0)
    s_barrier
    """)
    stamp(a, "p1_end")
    a(f"s_mov_b32 s{sHOFF2}, {OOB}\ns_cmp_eq_u32 s{sJ}, 14\ns_cbranch_scc1 gemm_role")
    passVB(True, [])
    t = WF
    a(f"""
    s_nop 7
    s_nop 3
    v_mul_f32 v{t}, s{sNL2E}, v{VB}
    v_exp_f32 v{t}, v{t}
    v_and_b32 v{t+1}, 31, v{vLane}
    v_add_f32 v{t}, 1.0, v{t}
    v_rcp_f32 v{t}, v{t}
    v_lshlrev_b32 v{t+1}, 2, v{t+1}
    s_lshl_b32 s{sT0}, s{sTILE}, 7
    s_add_u32 s{sT0}, s{sT0}, {GF}
    buffer_store_dword v{t}, v{t+1}, {sr4(S_WS)}, s{sT0} offen{SC}
    s_waitcnt vmcnt(0)
    """)
    a.label("gemm_role")
    for i in range(8):
        for x in wpref(i):
            a(x)
    a.label("gemm_role2")
    gen_gemm(a, wpref)
    gen_attention(a)
    a.label("k_end")
    a("s_endpgm")
    return a.text()


vAWr = 16
RB = [0, 98304]


def wtr_setup(a):
    a(f"""
    v_bfe_u32 v{vT0}, v{vLane}, 4, 1
    v_bfe_u32 v{vT1}, v{vLane}, 2, 2
    v_and_b32 v{vT2}, 2, v{vT1}
    v_xor_b32 v{vT2}, v{vT2}, v{vT0}
    s_and_b32 s{sT0}, s{sKQ}, 1
    s_lshl_b32 s{sT0}, s{sT0}, 1
    v_xor_b32 v{vT2}, s{sT0}, v{vT2}
    v_lshrrev_b32 v{vT3}, 5, v{vLane}
    v_lshl_add_u32 v{vT3}, v{vT3}, 2, v{vT1}
    v_lshlrev_b32 v{vT3}, 7, v{vT3}
    v_lshl_add_u32 v{vT3}, v{vT2}, 5, v{vT3}
    v_and_b32 v{vT2}, 3, v{vLane}
    v_lshl_add_u32 v{vT3}, v{vT2}, 3, v{vT3}
    v_add_u32 v{vAWr}, s{sM0}, v{vT3}
    v_xor_b32 v{vAWr+1}, 64, v{vAWr}
    v_add_u32 v{vAWr+2}, {RB[1]}, v{vAWr}
    v_add_u32 v{vAWr+3}, {RB[1]}, v{vAWr+1}
    v_mov_b32 v{vAWr+4}, v{vT3}
    """)


def wtr_reads(slot, dst):
    ra = ring_addr(slot)
    bi = max(i for i in range(2) if RB[i] <= ra)
    out = []
    for T in range(2):
        for q in range(2):
            out.append(f"ds_read_b64_tr_b16 {vr(dst+4*T+2*q, 2)}, v{vAWr+2*bi+T} offset:{ra - RB[bi] + q*1024}")
    return out


def bcast_poll(a, tag, leader, addrs, soff, vtmp, sleep, ldsoff, pre=None, lsleep=2, skip_if_set=False):
    if skip_if_set:
        a(f"""
        v_mov_b32 v{vT0}, {CNT + ldsoff}
        ds_read_b32 v{vT1}, v{vT0}
        s_waitcnt lgkmcnt(0)
        v_readfirstlane_b32 s{sT0}, v{vT1}
        s_cmp_eq_u32 s{sT0}, 1
        s_cbranch_scc1 {tag}_go
        """)
    a(f"s_cmp_lg_u32 s{sW}, {leader}\ns_cbranch_scc1 {tag}_lw")
    if pre:
        pre()
    poll(a, addrs, soff, vtmp, sleep)
    a.label(f"{tag}_ok")
    lds_set(a, ldsoff, 1, vT0)
    a(f"s_branch {tag}_go")
    a.label(f"{tag}_lw")
    lds_wait(a, ldsoff, vT0, "eq1", lsleep)
    a.label(f"{tag}_go")


def gen_gemm(a, wpref):
    ACC = 64
    ACT = 128
    WFB = [32, 40]
    vA0, vA1, vG0, vFl, vFl2, vMB = 21, 22, 23, 25, 24, 26
    sA0, sB0w, sFH2, sMO2, sDONE, sNEW, sH = 45, 46, 47, 48, 49, 50, 52
    DA = GDA
    stamp(a, "x_role")
    wtr_setup(a)
    srd(a, S_WO, P_WO, 448 * 448 * 2)
    srd(a, S_OUT, P_OUT, 2048 * 448 * 2)
    a(f"""
    s_lshr_b32 s{sMO2}, s{sKQ}, 1
    s_mul_i32 s{sT0}, s{sMO2}, {112 * 1024}
    v_add_u32 v{vA0}, s{sT0}, v{vL16}
    s_sub_u32 s{sT0}, {112 * 1024}, s{sT0}
    v_add_u32 v{vA1}, s{sT0}, v{vL16}
    s_lshr_b32 s{sT1}, s{sMT}, 1
    s_lshl_b32 s{sT1}, s{sT1}, 9
    s_add_u32 s{sT1}, s{sT1}, {FH}
    s_lshl_b32 s{sFH2}, s{sMT}, 10
    s_add_u32 s{sFH2}, s{sFH2}, {FHB}
    s_mul_i32 s{sA0}, s{sMT}, 224
    s_add_u32 s{sA0}, s{sA0}, s{sKQ}
    s_lshl_b32 s{sA0}, s{sA0}, 10
    s_add_u32 s{sA0}, s{sA0}, {HF}
    s_mul_i32 s{sB0w}, s{sKQ}, {112 * 896}
    s_lshl_b32 s{sT0}, s{sNT}, 7
    s_add_u32 s{sB0w}, s{sB0w}, s{sT0}
    v_and_b32 v{vFl}, 0x1ff, v{vFLA}
    v_and_b32 v{vFl2}, 0x3ff, v{vFLA}
    s_add_u32 s{sT2}, s{sM0}, {MERGE + MBOX}
    v_add_u32 v{vMB}, s{sT2}, v{vL16}
    s_sub_u32 s{sHOFF}, s{sHOFF2}, 2048
    s_cmp_lt_u32 s{sI32}, 28
    s_cbranch_scc1 gemm_has
    """)

    def hb_all():
        lds_wait(a, 24, vT0, "eq4", 1)
        a(f"""
        ds_read_b128 {vr(HBR+8, 4)}, v{vMB}
        ds_read_b128 {vr(HBR+12, 4)}, v{vMB} offset:1024
        """)

    def hb_st():
        return hb_stores() + [f"buffer_store_dwordx4 {vr(HBR+8+4*i, 4)}, v{vL16}, {sr4(S_WS)}, s{sHOFF} offen offset:{1024*i}{SC}" for i in range(2)]
    hb_all()
    a("s_waitcnt lgkmcnt(0)")
    for x in hb_st():
        a(x)
    a("s_waitcnt vmcnt(0)")
    a(flag1(a, sFHO))
    a("s_endpgm")
    a.label("gemm_has")
    a(f"""
    s_cmp_lg_u32 s{sW}, 4
    s_cbranch_scc1 g_noe
    buffer_load_dword v{vG0}, v{vFl}, {sr4(S_WS)}, s{sT1} offen{SC}
    s_waitcnt vmcnt(0)
    v_cmp_ne_u32 vcc, s{sNONCE}, v{vG0}
    s_nop 1
    s_cmp_eq_u64 vcc, 0
    s_cbranch_scc0 g_noe
    """)
    lds_set(a, 8, 1, vT0)
    a.label("g_noe")
    hb_all()
    vm = VM()
    for i in range(0, 8):
        vm.add(("w", i))

    def act_loads(i):
        r = ACT + 8 * (i % DA)
        a(f"""
        s_add_u32 s{sT0}, s{sA0}, {wk_off(i) * 1024}
        buffer_load_dwordx4 {vr(r, 4)}, v{vA0}, {sr4(S_WS)}, s{sT0} offen{SC}
        buffer_load_dwordx4 {vr(r+4, 4)}, v{vA1}, {sr4(S_WS)}, s{sT0} offen{SC}
        """)
        vm.add(("a", i)); vm.add(("a", i))

    def w_loads(i):
        if i < 28:
            for x in wpref(i):
                a(x)
        else:
            ra = ring_addr(wslot(i))
            off = (28 * ((i - 28) // 2) + 16 * ((i - 28) % 2)) * 896
            a(f"""
            s_add_u32 m0, s{sM0}, {ra}
            s_add_u32 s{sT0}, s{sB0w}, {off}
            buffer_load_dwordx4 v{vDW}, {sr4(S_WO)}, s{sT0} offen lds
            s_add_u32 m0, s{sM0}, {ra + 1024}
            s_add_u32 s{sT0}, s{sT0}, {8 * 896}
            buffer_load_dwordx4 v{vDW}, {sr4(S_WO)}, s{sT0} offen lds
            """)
        vm.add(("w", i)); vm.add(("w", i))

    na, nw = 0, 8
    a("s_waitcnt lgkmcnt(0)")
    for x in hb_st():
        a(x); vm.add(("hb",))
    bcast_poll(a, "gA", 4, [vFl], sT1, vG0, SLEEP_H, 8, skip_if_set=True)
    stamp(a, "x_go"); stamp(a, "x_loop")
    for i in range(GPRE):
        act_loads(na); na += 1
    a(f"s_waitcnt vmcnt({vm.wait({('w', 0)})})")
    for x in wtr_reads(0, WFB[0]):
        a(x)
    gotB = False
    for i in range(28):
        need = {("a", i)}
        if i + 1 < 28:
            need.add(("w", i + 1))
        a(f"s_waitcnt vmcnt({vm.wait(need)}) lgkmcnt(0)")
        if i + 1 < 28:
            for x in wtr_reads((i + 1) % 13, WFB[(i + 1) % 2]):
                a(x)
        for mt in range(2):
            for T in range(2):
                c = vr(ACC + 32 * mt + 16 * T, 16)
                a(f"{MFMA} {c}, {vr(WFB[i%2]+4*T, 4)}, {vr(ACT+8*(i%DA)+4*mt, 4)}, {'0' if i == 0 else c}")
        if i == 0:
            a(flag1(a, sFHO))
        if i == GB_AT:
            stamp(a, "g_b0")
            bcast_poll(a, "gB", 4, [vFl2], sFH2, vPOL, SLEEP_H, 12)
            stamp(a, "g_b1")
            gotB = True
            a(f"""
            v_and_b32 v{vT0}, 31, v{vLane}
            v_lshlrev_b32 v{vT0}, 2, v{vT0}
            s_lshl_b32 s{sT1}, s{sMT}, 1
            s_add_u32 s{sT1}, s{sT1}, s{sMO2}
            s_lshl_b32 s{sT1}, s{sT1}, 7
            s_add_u32 s{sT1}, s{sT1}, {GF}
            buffer_load_dword v{vG0}, v{vT0}, {sr4(S_WS)}, s{sT1} offen{SC}
            """)
            vm.add(("g",))
        for _ in range(2):
            if na < 28 and na <= i + DA and (na < 14 or gotB):
                act_loads(na); na += 1
            if nw < 36 and nw <= i + min(13, DA + 1) and (nw < 28 or wslot(nw) + 13 <= i):
                w_loads(nw); nw += 1
    assert na == 28
    while nw < 36:
        w_loads(nw); nw += 1
    stamp(a, "x_lend")
    XS = [0, 1, 6, 7]
    R, AA, SL = 128, ACC + 16, 128
    vX0, vX1, vC1, vOUT, vWa = 26, 27, 28, 30, 29

    def xaddr(reg, x):
        a(f"""
        s_xor_b32 s{sT0}, s{sKQ}, {x}
        s_lshl_b32 s{sT0}, s{sT0}, 11
        v_add_u32 v{reg}, s{sT0}, v{vL16}
        v_add_u32 v{reg+1}, {RB[1]}, v{reg}
        """)

    def xo(i):
        ra = ring_addr(XS[i // 2]) + (i % 2) * 1024
        return (vX0, ra) if ra < RB[1] else (vX1, ra - RB[1])

    def gsync(off, tag):
        a(f"""
        v_mov_b32 v{vC1}, {CNT + off}
        v_mov_b32 v{vT0}, 1
        s_waitcnt vmcnt(0) lgkmcnt(0)
        s_mov_b64 exec, 1
        ds_add_u32 v{vC1}, v{vT0}
        s_mov_b64 exec, -1
        """)
        a.label(tag)
        a(f"""
        ds_read_b32 v{vT0}, v{vC1}
        s_waitcnt lgkmcnt(0)
        v_readfirstlane_b32 s{sT0}, v{vT0}
        s_cmp_eq_u32 s{sT0}, 4
        s_cbranch_scc1 {tag}_d
        s_sleep 1
        s_branch {tag}
        """)
        a.label(f"{tag}_d")

    a("s_setprio 3")
    xaddr(vX0, 0)
    a("s_nop 7")
    for i in range(8):
        r_, o_ = xo(i)
        a(f"ds_write_b128 v{r_}, {vr(ACC+32+4*i, 4)} offset:{o_}")
    xaddr(vX0, 2)
    gsync(16, "gs1")
    for i in range(8):
        r_, o_ = xo(i)
        a(f"ds_read_b128 {vr(R+4*i, 4)}, v{r_} offset:{o_}")
    a("s_waitcnt lgkmcnt(0)")
    for i in range(16, 32):
        a(f"v_add_f32 v{ACC+i}, v{ACC+i}, v{R+i}")
    for i in range(4):
        r_, o_ = xo(i)
        a(f"ds_write_b128 v{r_}, {vr(ACC+16+4*i, 4)} offset:{o_}")
    for i in range(16):
        a(f"v_add_f32 v{ACC+i}, v{ACC+i}, v{R+i}")
    xaddr(vX0, 3)
    gsync(28, "gs2")
    for i in range(4):
        r_, o_ = xo(i)
        a(f"ds_read_b128 {vr(R+4*i, 4)}, v{r_} offset:{o_}")
    a(f"""
    v_sub_f32 v{vT2}, 1.0, v{vG0}
    s_lshl_b32 s{sT1}, s{sMT}, 1
    s_add_u32 s{sT1}, s{sT1}, s{sMO2}
    s_lshl_b32 s{sFH2}, s{sT1}, 9
    s_add_u32 s{sFH2}, s{sFH2}, {FO}
    s_lshl_b32 s{sA0}, s{sT1}, 15
    s_add_u32 s{sA0}, s{sA0}, {OF}
    s_mul_i32 s{sT2}, s{sT1}, {32 * 896}
    s_lshl_b32 s{sT1}, s{sNT}, 7
    s_add_u32 s{sT2}, s{sT2}, s{sT1}
    s_and_b32 s{sT1}, s{sKQ}, 1
    s_lshl_b32 s{sT1}, s{sT1}, 6
    s_add_u32 s{sT2}, s{sT2}, s{sT1}
    v_and_b32 v{vFl}, 31, v{vLane}
    v_mul_u32_u24 v{vOUT}, 896, v{vFl}
    v_lshrrev_b32 v{vT3}, 5, v{vLane}
    v_lshl_add_u32 v{vOUT}, v{vT3}, 4, v{vOUT}
    v_and_b32 v{vFl}, 0x1ff, v{vFLA}
    s_mov_b32 s{sDONE}, 0xffff0000
    s_mov_b32 s{sSPIN}, {SPIN_MAX}
    s_waitcnt lgkmcnt(0)
    """)
    for i in range(16):
        a(f"v_add_f32 v{ACC+i}, v{ACC+i}, v{R+i}")
    for i in range(16):
        a(f"v_mul_f32 v{ACC+i}, v{ACC+i}, v{vT2}")
        a(f"v_mov_b32 v{AA+i}, 0")
    a("s_setprio 1")
    stamp(a, "p3_poll")
    sNB = 53
    a(f"s_mov_b32 s{sNB}, 0\ns_mov_b32 s{sNEW}, 0")
    a.label("p3_poll")
    a(f"""
    buffer_load_dword v{vPOL}, v{vFl}, {sr4(S_WS)}, s{sFH2} offen{SC}
    s_cmp_eq_u32 s{sNB}, 0
    s_cbranch_scc1 p3_chk
    s_waitcnt vmcnt(1) lgkmcnt(0)
    """)
    a.label("p3_run")
    for k in range(8):
        o, w = SL + 16 * k, SL + 16 * k + 8
        a(f"""
        {MFMA} {vr(AA, 16)}, {vr(w, 4)}, {vr(o, 4)}, {vr(AA, 16)}
        {MFMA} {vr(AA, 16)}, {vr(w+4, 4)}, {vr(o+4, 4)}, {vr(AA, 16)}
        """)
        if k < 7:
            a(f"s_cmp_eq_u32 s{sNB}, {k+1}\ns_cbranch_scc1 p3_ran")
    a.label("p3_ran")
    a(f"""
    s_mov_b32 s{sNB}, 0
    s_cmp_eq_u32 s{sDONE}, -1
    s_cbranch_scc1 p3_fin
    """)
    a.label("p3_chk")
    a(f"""
    s_waitcnt vmcnt(0)
    v_cmp_eq_u32 vcc, s{sNONCE}, v{vPOL}
    s_sub_u32 s{sSPIN}, s{sSPIN}, 1
    s_cbranch_scc1 p3_fin
    s_andn2_b32 s{sNEW}, vcc_lo, s{sDONE}
    s_cbranch_scc1 p3_batch
    s_sleep {SLEEP_O}
    s_branch p3_poll
    """)
    a.label("p3_batch")
    for k in range(8):
        o, w = SL + 16 * k, SL + 16 * k + 8
        a(f"""
        s_ff1_i32_b32 s{sH}, s{sNEW}
        s_bitset0_b32 s{sNEW}, s{sH}
        s_bitset1_b32 s{sDONE}, s{sH}
        s_lshl_b32 s{sT0}, s{sH}, 11
        s_add_u32 s{sT0}, s{sT0}, s{sA0}
        buffer_load_dwordx4 {vr(o, 4)}, v{vL16}, {sr4(S_WS)}, s{sT0} offen{SC}
        buffer_load_dwordx4 {vr(o+4, 4)}, v{vL16}, {sr4(S_WS)}, s{sT0} offen offset:1024{SC}
        s_bitcmp1_b32 s{sH}, 1
        s_cselect_b32 s{sT0}, 0, {ring_addr(2)}
        s_and_b32 s{sT1}, s{sH}, 1
        s_lshl_b32 s{sT1}, s{sT1}, 14
        s_add_u32 s{sT0}, s{sT0}, s{sT1}
        s_lshr_b32 s{sT1}, s{sH}, 2
        s_lshl_b32 s{sT1}, s{sT1}, 11
        s_add_u32 s{sT0}, s{sT0}, s{sT1}
        v_add_u32 v{vWa}, s{sT0}, v{vAWr+4}
        ds_read_b64_tr_b16 {vr(w, 2)}, v{vWa}
        ds_read_b64_tr_b16 {vr(w+2, 2)}, v{vWa} offset:1024
        ds_read_b64_tr_b16 {vr(w+4, 2)}, v{vWa} offset:8192
        ds_read_b64_tr_b16 {vr(w+6, 2)}, v{vWa} offset:9216
        s_mov_b32 s{sNB}, {k+1}
        """)
        if k >= 2:
            a("s_waitcnt lgkmcnt(8)")
        if k < 7:
            a(f"s_cmp_eq_u32 s{sNEW}, 0\ns_cbranch_scc1 p3_iss")
    a.label("p3_iss")
    a(f"""
    s_cmp_lg_u32 s{sDONE}, -1
    s_cbranch_scc1 p3_poll
    s_waitcnt vmcnt(0) lgkmcnt(0)
    s_branch p3_run
    """)
    a.label("p3_fin")
    stamp(a, "p3_mfma")
    a("s_nop 7\ns_nop 1")
    t = 96
    for i in range(16):
        a(f"v_fma_f32 v{ACC+i}, v{AA+i}, v{vG0}, v{ACC+i}")
    for i in range(8):
        a(f"v_cvt_pk_bf16_f32 v{t+i}, v{ACC+2*i}, v{ACC+2*i+1}")
    a(f"""
    v_permlane32_swap_b32 v{t}, v{t+2}
    v_permlane32_swap_b32 v{t+1}, v{t+3}
    buffer_store_dwordx4 {vr(t, 4)}, v{vOUT}, {sr4(S_OUT)}, s{sT2} offen
    v_permlane32_swap_b32 v{t+4}, v{t+6}
    v_permlane32_swap_b32 v{t+5}, v{t+7}
    buffer_store_dwordx4 {vr(t+4, 4)}, v{vOUT}, {sr4(S_OUT)}, s{sT2} offen offset:32
    """)
    amp_end(a, 'g')
    if "dbgt" in OPT:
        a(f"""
        s_cmp_ge_u32 s2, 7
        s_cbranch_scc1 k_end
        s_cmp_lg_u32 s{sW}, 4
        s_cbranch_scc1 k_end
        s_memtime s[90:91]
        s_memrealtime s[92:93]
        s_waitcnt lgkmcnt(0)
        s_sub_u32 s90, s90, s86
        s_sub_u32 s92, s92, s88
        v_mov_b32 v4, s90
        v_mov_b32 v5, s92
        s_lshl_b32 s3, s2, 3
        s_add_u32 s3, s3, 8
        buffer_store_dwordx2 v[4:5], v{vF1}, {sr4(S_DBG)}, s3 offen
        """)
    stamp_flush(a)
    a("s_endpgm")


def gen_attention(a):
    Q, O, S, KV, P, TMP = AQ, AO, AS, AKV, AP, ATMP
    vG, vM, vONE = avG, avM, avONE
    a.label("att_spin")
    bcast_poll(a, "aq", 0, [vFLA, vFLA + 1], sFQB, vPOL, SLEEP_Q, 4, lsleep=1)
    stamp(a, "x_go")
    o1, o2, vm, flat = att_loads()

    def k_fix(buf):
        return [f"v_cndmask_b32 v{KV+16*buf+6}, v{KV+16*buf+6}, v{vONE}, s[{sME}:{sME+1}]",
                f"v_cndmask_b32 v{KV+16*buf}, v{KV+16*buf}, v{vONE}, s[{sMO}:{sMO+1}]"]

    zer = [f"v_mov_b32 v{O+k}, 0" for k in range(12, 64)]
    for x in flat(o1):
        a(x)
    step = len(zer) // len(o2) + 1
    zz = list(zer)
    for x in o2:
        for _ in range(step):
            if zz: a(zz.pop(0))
        for y in flat([x]):
            a(y)
    a("s_branch att_main2")
    a.label("att_main")
    for x in zer:
        a(x)
    a.label("att_main2")
    stamp(a, "x_main")
    a(f"""
    s_setprio 2
    s_lshl_b32 s{sT0}, s{sKQ}, 11
    s_add_u32 s{sT0}, s{sT0}, {MERGE}
    v_add_u32 v{TMP}, s{sT0}, v{vL16}
    v_subrev_u32 v{TMP+1}, {-MBOX}, v{TMP}
    ds_write_b128 v{TMP+1}, {vr(HBR, 4)}
    ds_write_b128 v{TMP+1}, {vr(HBR+4, 4)} offset:1024
    v_mov_b32 v{vT1}, 0
    s_and_b32 s{sT0}, s{sHEAD}, 1
    s_mov_b32 s{sME}, 0
    s_mov_b32 s{sMO+1}, 0
    s_sub_u32 s{sME+1}, s{sT0}, 1
    s_sub_u32 s{sMO}, 0, s{sT0}
    v_mov_b32 v{avV0}, v{vT2}
    v_mov_b32 v{avV1}, v{vT3}
    v_mov_b32 v{vONE}, 0x3f803f80
    v_mov_b32 v{TMP+1}, {CNT + 24}
    v_mov_b32 v{TMP+2}, 1
    s_waitcnt vmcnt({vm.wait({('q',), ('kv', 0, 1)})})
    v_cndmask_b32 v{Q}, v{Q}, v{vT1}, s[{sMO}:{sMO+1}]
    v_cndmask_b32 v{Q+1}, v{Q+1}, v{vT1}, s[{sMO}:{sMO+1}]
    v_cndmask_b32 v{Q+6}, v{Q+6}, v{vT1}, s[{sME}:{sME+1}]
    v_cndmask_b32 v{Q+7}, v{Q+7}, v{vT1}, s[{sME}:{sME+1}]
    {MFMA} {vr(S[1], 16)}, {vr(KV, 4)}, {vr(Q, 4)}, 0
    s_nop 0
    {MFMA} {vr(S[1], 16)}, {vr(KV+4, 4)}, {vr(Q+4, 4)}, {vr(S[1], 16)}
    """)
    stamp(a, "x_q")
    for x in k_fix(0):
        a(x)
    for k in range(12):
        a(f"v_mov_b32 v{O+k}, 0")
    s0 = S[1]
    a(f"""
    v_max3_f32 v{vM}, v{s0}, v{s0+1}, v{s0+2}
    v_max3_f32 v{vT0}, v{s0+3}, v{s0+4}, v{s0+5}
    v_max3_f32 v{vT2}, v{s0+6}, v{s0+7}, v{s0+8}
    v_max3_f32 v{vT3}, v{s0+9}, v{s0+10}, v{s0+11}
    v_max3_f32 v{vM}, v{vM}, v{s0+12}, v{s0+13}
    v_max3_f32 v{vT0}, v{vT0}, v{s0+14}, v{s0+15}
    v_max3_f32 v{vM}, v{vM}, v{vT2}, v{vT3}
    v_max_f32 v{vM}, v{vM}, v{vT0}
    v_mov_b32 v{vT0}, v{vM}
    s_nop 1
    v_permlane32_swap_b32 v{vM}, v{vT0}
    v_max_f32 v{vM}, v{vM}, v{vT0}
    v_sub_f32 v{vM}, 0, v{vM}
    v_cvt_pk_bf16_f32 v{vT0}, v{vM}, v{vM}
    v_lshlrev_b32 v{vT0}, 16, v{vT0}
    v_sub_f32 v{vT0}, v{vM}, v{vT0}
    v_cvt_pk_bf16_f32 v{vT0}, v{vM}, v{vT0}
    v_cndmask_b32 v{Q}, v{Q}, v{vT0}, s[{sMO}:{sMO+1}]
    v_cndmask_b32 v{Q+6}, v{Q+6}, v{vT0}, s[{sME}:{sME+1}]
    ds_write_b128 v{TMP}, {vr(Q, 4)}
    ds_write_b128 v{TMP}, {vr(Q+4, 4)} offset:1024
    {MFMA} {vr(S[0], 16)}, {vr(KV, 4)}, {vr(Q, 4)}, 0
    {MFMA} {vr(S[0], 16)}, {vr(KV+4, 4)}, {vr(Q+4, 4)}, {vr(S[0], 16)}
    s_waitcnt lgkmcnt(0)
    s_mov_b64 exec, 1
    ds_add_u32 v{TMP+1}, v{TMP+2}
    s_mov_b64 exec, -1
    """)
    for x in kv_adv()[:3]:
        a(x)
    for i in range(4):
        a(f"v_mov_b32 v{P+4+i}, 0\nv_mov_b32 v{KV+16*3+12+i}, v{vONE}\nv_mov_b32 v{KV+16*3+8+i}, v{vONE}")
    for i in range(1, 4):
        a(f"""
        s_add_u32 s{sT0}, s{sKQ}, {i}
        s_and_b32 s{sT0}, s{sT0}, 3
        s_lshl_b32 s{sT0}, s{sT0}, 11
        s_add_u32 s{sT0}, s{sT0}, {MERGE}
        v_add_u32 v{TMP+2+i}, s{sT0}, v{vL16}
        s_add_u32 s{sT0}, s{sKQ}, {i}
        s_and_b32 s{sT0}, s{sT0}, 3
        s_mul_i32 s{sT0}, s{sT0}, 12288
        s_add_u32 s{sT0}, s{sT0}, {MERGE + (i-1) * 4096}
        v_add_u32 v{TMP+8+i-1}, s{sT0}, v{vL16}
        """)
    a(f"""
    s_mul_i32 s{sT0}, s{sKQ}, 12288
    s_add_u32 s{sT0}, s{sT0}, {MERGE}
    v_add_u32 v{TMP+11}, s{sT0}, v{vL16}
    v_mov_b32 v{TMP+12}, {CNT}
    v_mov_b32 v{TMP+13}, 1
    """)
    stamp(a, "x_qs")
    a.label("att_qsync")
    a(f"""
    ds_read_b32 v{TMP+2}, v{TMP+1}
    s_waitcnt lgkmcnt(0)
    v_cmp_gt_u32 vcc, 4, v{TMP+2}
    s_cbranch_vccnz att_qsync
    """)
    for i in range(1, 4):
        a(f"ds_read_b128 {vr(Q+8*i, 4)}, v{TMP+2+i}\nds_read_b128 {vr(Q+8*i+4, 4)}, v{TMP+2+i} offset:1024")
    a("s_waitcnt lgkmcnt(0)")
    a(f"s_mov_b32 s{sIT}, 0")
    stamp(a, "x_loop")
    vMW, vMR, vMC, vM1 = TMP + 8, TMP + 11, TMP + 12, TMP + 13

    def phase(ph, cur, prev, nxt, s_pv2=[], s_qk1=[], s_qk2=[], s_pv1=[], tail=[]):
        sc, sn = S[ph % 2], S[1 - ph % 2]
        e = [f"v_exp_f32 v{sc+i}, v{sc+i}" for i in range(16)]
        c = [f"v_cvt_pk_bf16_f32 v{P+i}, v{sc+2*i}, v{sc+2*i+1}" for i in range(8)]
        pv2 = f"{MFMA} {vr(O+16*prev[1], 16)}, {vr(KV+16*prev[0]+12, 4)}, {vr(P+4, 4)}, {vr(O+16*prev[1], 16)}"
        pv1 = f"{MFMA} {vr(O+16*cur[1], 16)}, {vr(KV+16*cur[0]+8, 4)}, {vr(P, 4)}, {vr(O+16*cur[1], 16)}"
        qk1, qk2 = [], []
        if nxt:
            qk1 = [f"{MFMA} {vr(sn, 16)}, {vr(KV+16*nxt[0], 4)}, {vr(Q+8*nxt[1], 4)}, 0"]
            qk2 = [f"{MFMA} {vr(sn, 16)}, {vr(KV+16*nxt[0]+4, 4)}, {vr(Q+8*nxt[1]+4, 4)}, {vr(sn, 16)}"]
        seq = e[0:2] + [pv2] + s_pv2 + e[2:5] + qk1 + s_qk1 + e[5:9] + c[0:4] + qk2 + s_qk2 + e[9:12] + [pv1] + s_pv1 + e[12:16] + tail + c[4:8]
        for x in seq:
            a(x)

    a.label("att_loop")
    for tb in range(4):
        for q in range(4):
            adv = kv_adv()
            s_pv2, s_qk1, s_qk2, s_pv1, tail = [], [], [], [], []
            s_qk1 += kv_load((tb + 3) % 4, q, (avV0, avV1))
            if q == 0:
                s_pv2.append(adv[3])
                s_qk2.append("s_waitcnt vmcnt(9)")
                s_pv1.append(adv[4])
            if q == 1:
                if tb == 0:
                    s_pv2.append(f"s_cmp_eq_u32 s{sIT}, 3")
                    s_qk2.append(f"s_cselect_b32 s{sKB}, {OOB}, s{sKB}")
                    s_pv1.append(f"s_cselect_b32 s{sVB}, {OOB}, s{sVB}")
                if tb == 3:
                    s_pv1.append(f"s_add_u32 s{sIT}, s{sIT}, 1")
            if q == 2:
                s_pv2.append(f"s_mul_i32 s{sT0}, s{sTI}, {TQ}")
                s_qk2.append(f"s_add_u32 s{sKS}, s{sT0}, s{sKB}")
                s_pv1.append("s_waitcnt vmcnt(9)")
                if tb == 2:
                    s_pv1.append(f"s_cmp_eq_u32 s{sIT}, 3")
                tail = k_fix((tb + 1) % 4)
            if q == 3:
                s_qk2.append(f"s_add_u32 s{sVS}, s{sT0}, s{sVB}")
            phase(4 * tb + q, (tb, q), (tb if q > 0 else (tb - 1) % 4, (q - 1) % 4), (tb if q < 3 else (tb + 1) % 4, (q + 1) % 4),
                  s_pv2, s_qk1, s_qk2, s_pv1, tail)
            if tb == 2 and q == 2:
                a("s_cbranch_scc1 att_peel")
    a("s_branch att_loop")
    a.label("att_peel")

    def mw(i, lo, hi):
        return [f"ds_write_b128 v{vMW+i-1}, {vr(O+16*i+4*k, 4)} offset:{1024*k}" for k in range(lo, hi)]
    sa = L(f"""
    s_lshl_b32 s{sT2}, s{sQB}, 2
    s_add_u32 s{sT2}, s{sT2}, s{sKQ}
    s_lshl_b32 s{sT2}, s{sT2}, 4
    s_add_u32 s{sT2}, s{sT2}, s{sHEAD}
    s_lshl_b32 s{sKB}, s{sT2}, 11
    s_add_u32 s{sKB}, s{sKB}, {OF}
    s_lshr_b32 s{sVB}, s{sT2}, 2
    s_lshl_b32 s{sVB}, s{sVB}, 7
    s_and_b32 s{sT2}, s{sT2}, 3
    s_lshl_b32 s{sT2}, s{sT2}, 2
    s_add_u32 s{sVB}, s{sVB}, s{sT2}
    s_add_u32 s{sVB}, s{sVB}, {FO}
    s_mov_b32 s{sT0}, {f32bits(2.0**-10):#x}
    s_mov_b32 s{sT1}, {f32bits(2.0**100):#x}
    """)
    phase(11, (2, 3), (2, 2), (3, 1), sa[0:1], sa[1:2], sa[2:3], sa[3:4])
    phase(12, (3, 1), (2, 3), (3, 2), sa[4:5], sa[5:6], ["s_waitcnt vmcnt(0)"], sa[6:7])
    phase(13, (3, 2), (3, 1), (3, 3), sa[7:8], sa[8:9], mw(1, 0, 2), mw(1, 2, 4))
    phase(14, (3, 3), (3, 2), (3, 0), sa[9:10], sa[10:11], mw(2, 0, 2), mw(2, 2, 4))
    phase(15, (3, 0), (3, 3), None, sa[11:14], [], ["s_nop 0"] + mw(3, 0, 4), [],
          ["s_waitcnt lgkmcnt(0)", "s_mov_b64 exec, 1", f"ds_add_u32 v{vMC}, v{vM1}", "s_mov_b64 exec, -1"])
    a(f"""
    v_cmp_lt_u32 s[18:19], 31, v{vLane}
    s_nop 0
    {MFMA} {vr(O, 16)}, {vr(KV+16*3+12, 4)}, {vr(P+4, 4)}, {vr(O, 16)}
    """)
    stamp(a, "x_lend")
    a.label("att_msync")
    a(f"""
    ds_read_b32 v{vT2}, v{vMC}
    s_waitcnt lgkmcnt(0)
    v_cmp_gt_u32 vcc, 4, v{vT2}
    s_cbranch_vccnz att_msync
    """)
    stamp(a, "x_msync")
    for i in range(12):
        a(f"ds_read_b128 {vr(O+16+4*i, 4)}, v{vMR} offset:{1024*i}")
    a("s_mov_b64 vcc, s[18:19]")
    for k in range(3):
        a(f"s_waitcnt lgkmcnt({8 - 4*k})")
        for i in range(16):
            a(f"v_add_f32 v{O+i}, v{O+i}, v{O+16+16*k+i}")
    C = O + 16
    a(f"""
    v_mov_b32 v{vT0}, v{O+12}
    v_mov_b32 v{vT1}, v{O+12}
    """)
    for k in range(4):
        a(f"v_mul_f32 v{C+k}, 0, v{O+4*k}")
    a(f"v_permlane32_swap_b32 v{vT0}, v{vT1}")
    for i in range(1, 4):
        for k in range(4):
            a(f"v_fma_f32 v{C+k}, v{O+4*k+i}, 0, v{C+k}")
    a(f"""
    v_rcp_f32 v{vT2}, v{vT1}
    v_add_f32 v{C}, v{C}, v{C+1}
    v_add_f32 v{C+2}, v{C+2}, v{C+3}
    v_add_f32 v{C}, v{C}, v{vT1}
    v_add_f32 v{C}, v{C}, v{C+2}
    v_cmp_le_f32 s[28:29], s{sT0}, v{C}
    v_cmp_ge_f32 s[16:17], s{sT1}, v{C}
    s_and_b64 s[28:29], s[28:29], s[16:17]
    s_cmp_eq_u64 s[28:29], -1
    s_cbranch_scc0 att_fallback
    """)
    a.label("att_final")
    a(f"""
    v_mov_b32 v{vT0}, 0
    """)
    for hh in range(2):
        for i in range(8):
            a(f"v_mul_f32 v{O+8*hh+i}, v{O+8*hh+i}, v{vT2}")
        for i in range(4):
            a(f"v_cvt_pk_bf16_f32 v{TMP+4*hh+i}, v{O+8*hh+2*i}, v{O+8*hh+2*i+1}")
        if hh == 1:
            a(f"v_cndmask_b32 v{TMP+6}, v{TMP+6}, v{vT0}, vcc\nv_cndmask_b32 v{TMP+7}, v{TMP+7}, v{vT0}, vcc")
        a(f"buffer_store_dwordx4 {vr(TMP+4*hh, 4)}, v{vL16}, {sr4(S_WS)}, s{sKB} offen offset:{1024*hh}{SC}")
    stamp(a, "x_ost")
    a("s_waitcnt vmcnt(0)")
    a(flag1(a, sVB))
    stamp(a, "x_b2")
    amp_end(a, 'a')
    stamp_flush(a)
    a("s_endpgm")

    a.label("att_fallback")
    sc = S[0]
    K, V = KV, KV + 8
    vMo, vMn, vAl = TMP, TMP + 1, TMP + 2
    a(f"""
    v_mov_b32 v{vT0}, 0
    v_mov_b32 v{vMo}, 0xff800000
    v_cndmask_b32 v{Q}, v{Q}, v{vT0}, s[{sMO}:{sMO+1}]
    v_cndmask_b32 v{Q+6}, v{Q+6}, v{vT0}, s[{sME}:{sME+1}]
    s_mov_b32 s{sIT}, 0
    s_lshl_b32 s{sKS}, s{sP0}, 9
    s_add_u32 s{sKS}, s{sKS}, {KF}
    s_mul_i32 s{sVS}, s{sHEAD}, 448
    s_add_u32 s{sVS}, s{sVS}, {VF}
    s_waitcnt vmcnt(0)
    """)
    for i in range(16):
        a(f"v_mov_b32 v{O+i}, 0")
    a.label("att_fb_loop")
    a(f"""
    buffer_load_dwordx4 {vr(K, 4)}, v{vL16}, {sr4(S_WS)}, s{sKS} offen{SC}
    buffer_load_dwordx4 {vr(K+4, 4)}, v{vL16}, {sr4(S_WS)}, s{sKS} offen offset:1024{SC}
    s_mov_b64 exec, s[{sVM}:{sVM+1}]
    buffer_load_dwordx4 {vr(V, 4)}, v{avV0}, {sr4(S_WS)}, s{sVS} offen{SC}
    buffer_load_dwordx4 {vr(V+4, 4)}, v{avV1}, {sr4(S_WS)}, s{sVS} offen{SC}
    s_mov_b64 exec, -1
    s_waitcnt vmcnt(0)
    {MFMA} {vr(sc, 16)}, {vr(K, 4)}, {vr(Q, 4)}, 0
    {MFMA} {vr(sc, 16)}, {vr(K+4, 4)}, {vr(Q+4, 4)}, {vr(sc, 16)}
    s_nop 15
    v_max3_f32 v{vMn}, v{vMo}, v{sc}, v{sc+1}
    """)
    for i in range(2, 16, 2):
        a(f"v_max3_f32 v{vMn}, v{vMn}, v{sc+i}, v{sc+i+1}")
    a(f"""
    v_mov_b32 v{vT0}, v{vMn}
    s_nop 1
    v_permlane32_swap_b32 v{vMn}, v{vT0}
    v_max_f32 v{vMn}, v{vMn}, v{vT0}
    v_sub_f32 v{vAl}, v{vMo}, v{vMn}
    v_exp_f32 v{vAl}, v{vAl}
    v_mov_b32 v{vMo}, v{vMn}
    """)
    for i in range(16):
        a(f"v_sub_f32 v{sc+i}, v{sc+i}, v{vMn}")
    for i in range(16):
        a(f"v_exp_f32 v{sc+i}, v{sc+i}")
    for i in range(16):
        a(f"v_mul_f32 v{O+i}, v{O+i}, v{vAl}")
    for i in range(8):
        a(f"v_cvt_pk_bf16_f32 v{P+i}, v{sc+2*i}, v{sc+2*i+1}")
    a(f"""
    s_nop 1
    {MFMA} {vr(O, 16)}, {vr(V, 4)}, {vr(P, 4)}, {vr(O, 16)}
    {MFMA} {vr(O, 16)}, {vr(V+4, 4)}, {vr(P+4, 4)}, {vr(O, 16)}
    s_add_u32 s{sKS}, s{sKS}, {TQ}
    s_add_u32 s{sVS}, s{sVS}, {TQ}
    s_add_u32 s{sIT}, s{sIT}, 1
    s_cmp_lt_u32 s{sIT}, 64
    s_cbranch_scc1 att_fb_loop
    s_nop 15
    v_mov_b32 v{vT0}, v{O+12}
    v_mov_b32 v{vT1}, v{O+12}
    s_nop 1
    v_permlane32_swap_b32 v{vT0}, v{vT1}
    v_rcp_f32 v{vT2}, v{vT1}
    s_nop 0
    s_branch att_final
    """)


def build():
    ref = open(f"cdna_kernels/{NAME}.s.ref").read().split("\n")
    hdr = [l for l in ref if l.startswith(";") and "@launch" not in l and "Override launch" not in l and "grid=ceil" not in l]
    body = gen()
    out = "\n".join(hdr) + "\n"
    out += f"; @launch grid=(256,1,1) block=(512,1,1) lds={LDS_BYTES}\n"
    out += '.amdgcn_target "amdgcn-amd-amdhsa--gfx950"\n.text\n'
    out += f".globl {KNAME}\n.p2align 8\n.type {KNAME},@function\n{KNAME}:\n"
    out += body
    out += f""".section .rodata,"a"
.p2align 6
.amdhsa_kernel {KNAME}
  .amdhsa_next_free_vgpr 256
  .amdhsa_next_free_sgpr 102
  .amdhsa_accum_offset 256
  .amdhsa_group_segment_fixed_size 0
  .amdhsa_kernarg_size 88
  .amdhsa_user_sgpr_count 2
  .amdhsa_user_sgpr_kernarg_segment_ptr 1
  .amdhsa_system_sgpr_workgroup_id_x 1
.end_amdhsa_kernel
"""
    return out


if __name__ == "__main__":
    path = sys.argv[1]
    open(path, "w").write(build())
    print("wrote", path)
```

```python
import math, struct, sys, os

NAME = "gated_mix__softmax_full_mha__swiglu_ffn__prompt"
KNAME = NAME + "_kernel"
INSTR = int(os.environ.get("INSTR", "0"))
OPT = os.environ.get("OPT", "nopf")

QF = 0
KF = 2 << 20
VF = 4 << 20
TQ = 28672
HF = 6 << 20
OF = 14 << 20
GF = 16 << 20
FQ = (16 << 20) + 0x10000
FH = (16 << 20) + 0x20000
FHB = (16 << 20) + 0x28000
MBOX = 40960 - 49152
FO = (16 << 20) + 0x40000
TSF = 24 << 20
WS_BYTES = 32 << 20
OOB = 0x40000000
SLEEP_Q = int(os.environ.get('SLQ', '6'))
SLEEP_H = int(os.environ.get('SLH', '8'))
SLEEP_O = int(os.environ.get('SLO', '2'))
LOG2E = math.log2(math.e)
MFMA = "v_mfma_f32_32x32x16_bf16"
SC = " sc1"
SLOT = 40960
LDS_BYTES = 4 * SLOT
MERGE = 49152
CNT = 155648
SPIN_MAX = 1 << int(os.environ.get('SPINLOG', '18'))


def ring_addr(s):
    if s <= 6:
        return 98304 + s * 8192
    if s == 7:
        return 32768
    if s <= 11:
        return (s - 8) * 8192
    return 40960


def wslot(i):
    return i % 13 if i < 28 else [2, 3, 4, 5, 8, 9, 10, 11][i - 28]


def f32bits(x):
    return struct.unpack("<I", struct.pack("<f", x))[0]


class Asm:
    def __init__(self):
        self.lines = []

    def __call__(self, s):
        for ln in s.strip("\n").split("\n"):
            ln = ln.strip()
            if not ln:
                continue
            self.lines.append(ln if ln.endswith(":") else "    " + ln)

    def label(self, l):
        self.lines.append(l + ":")

    def text(self):
        return "\n".join(self.lines) + "\n"


def vr(base, n):
    return f"v[{base}:{base + n - 1}]"


def sr4(b):
    return f"s[{b}:{b+3}]"


def srd(a, sd, sb, nbytes):
    a(f"""
    s_mov_b32 s{sd}, s{sb}
    s_mov_b32 s{sd+1}, s{sb+1}
    s_mov_b32 s{sd+2}, {nbytes}
    s_mov_b32 s{sd+3}, 0x00020000
    """)


def L(s):
    return [l.strip() for l in s.strip("\n").split("\n") if l.strip()]


HA_ST = int(os.environ.get('HA_ST', '13'))
EARLY_P = int(os.environ.get('EARLY_P', '24'))
QKB = int(os.environ.get('QKB', '11'))
FPER = int(os.environ.get('FPER', '4'))
PF2_ST = int(os.environ.get('PF2_ST', '0'))
PF3_ST = int(os.environ.get('PF3_ST', '2'))
GDA = int(os.environ.get('GDA', '10'))
AROT = int(os.environ.get('AROT', '15'))
WP_ST = int(os.environ.get('WP_ST', '5'))
FA_AT = int(os.environ.get('FA_AT', '24'))
PFPOS = int(os.environ.get('PFPOS', '0'))
PF_EARLY = int(os.environ.get('PF_EARLY', '0'))
PFROW = int(os.environ.get('PFROW', '128'))
NQ = (448 - PFROW) * 2688 // 1024
NG = (448 - PFROW) * 3584 // 2048
assert NQ + 2 * NG <= 2048
TLB_STR = int(os.environ.get('TLB_STR', str(1 << 20)))
TLB_WG = int(os.environ.get('TLB_WG', '0'))
GPRE = int(os.environ.get('GPRE', '4'))
GB_AT = int(os.environ.get('GB_AT', '7'))

S_X, S_B0, S_G, S_U, S_WS, S_TMP, S_WD, S_DBG = 4, 8, 12, 16, 20, 24, 28, 32
S_WO, S_OUT = 8, 12
sMI, sJ, sW, sR, sGRP = 36, 37, 38, 39, 40
sKQ = 39
sT0, sT1, sT2 = 42, 43, 44
sMX, sMB, sSO = 45, 46, 47
sSC, sTILE, sHOFF, sHOFF2, sQKO = 48, 49, 50, 51, 52
sWB, sM0, sFHO, sFQB, sP0, sOK = 53, 54, 55, 56, 57, 58
sNONCE, sNL2E, sC8, sI32, sSPIN = 59, 60, 61, 62, 63
P_X, P_WQKV, P_WO, P_WG, P_WU, P_WD, P_GW, P_OUT, P_DBG, P_WS = 64, 66, 68, 72, 74, 76, 78, 80, 82, 84
ST0 = 86
sHEAD, sQB, sMT, sNT = 70, 71, 41, 3
sFHA = 65
vLane, vL16 = 1, 2
vT0, vT1, vT2, vT3 = 3, 4, 5, 6
STAMPS = os.environ.get("STAMPS", "").split(",")[:6]


AMP = os.environ.get("AMP", "")


def stamp(a, name):
    if AMP and name == "start": a("s_memrealtime s[86:87]")
    if AMP and name == AMP: a("s_memrealtime s[88:89]")
    if INSTR and (name == "start" or name in STAMPS):
        idx = 0 if name == "start" else 1 + STAMPS.index(name)
        a(f"s_memtime s[{ST0+2*idx}:{ST0+2*idx+1}]")
    if INSTR and "R" + name in STAMPS:
        idx = 1 + STAMPS.index("R" + name)
        a(f"s_memrealtime s[{ST0+2*idx}:{ST0+2*idx+1}]")


def amp_end(a, tag):
    if not AMP: return
    stamp(a, "end")
    a(f"""
    s_cmp_lg_u32 s2, {os.environ.get("AMPG", "40")}
    s_cbranch_scc1 k_end
    s_cmp_lg_u32 s{sW}, {os.environ.get("AMPW", "4")}
    s_cbranch_scc1 k_end
    s_memrealtime s[90:91]
    s_waitcnt lgkmcnt(0)
    s_sub_u32 s88, s88, s86
    s_mul_i32 s88, s88, {os.environ.get('AMPK', '1')}
    """)
    a.label(f"amp_spin{tag}")
    a(f"""
    s_memrealtime s[92:93]
    s_waitcnt lgkmcnt(0)
    s_sub_u32 s92, s92, s90
    s_cmp_lt_u32 s92, s88
    s_cbranch_scc1 amp_spin{tag}
    """)


def stamp_flush(a, vtmp=3):
    if not INSTR:
        return
    a(f"""
    s_memtime s[4:5]
    s_memrealtime s[6:7]
    s_lshl_b32 s3, s2, 3
    s_add_u32 s3, s3, s{sW}
    s_lshl_b32 s3, s3, 7
    s_add_u32 s3, s3, {TSF}
    v_mov_b32 v{vtmp+1}, 0
    s_waitcnt lgkmcnt(0)
    """)
    regs = [ST0 + 2 * i for i in range(8)] + [4, 6]
    for i, r in enumerate(regs):
        a(f"""
        v_mov_b32 v{vtmp}, s{r}
        buffer_store_dword v{vtmp}, v{vtmp+1}, {sr4(S_WS)}, s3 offen offset:{4*i}
        s_nop 1
        """)


def flag_store(a, soff_reg, vtmp):
    a(f"""
    v_mov_b32 v{vtmp}, s{sNONCE}
    v_mov_b32 v{vtmp+1}, 0
    s_mov_b64 exec, 1
    buffer_store_dword v{vtmp}, v{vtmp+1}, {sr4(S_WS)}, s{soff_reg} offen{SC}
    s_mov_b64 exec, -1
    """)


_uid = [0]


def poll(a, addrs, soff, vtmp, sleep):
    _uid[0] += 1
    u = _uid[0]
    a(f"s_mov_b32 s{sSPIN}, {SPIN_MAX}")
    a.label(f"poll_ld{u}")
    for i, va in enumerate(addrs):
        a(f"buffer_load_dword v{vtmp+i}, v{va}, {sr4(S_WS)}, s{soff} offen{SC}")
    a("s_waitcnt vmcnt(0)")
    poll_cmp(a, len(addrs), vtmp)
    a(f"""
    s_sub_u32 s{sSPIN}, s{sSPIN}, 1
    s_cbranch_scc1 poll_done{u}
    s_cmp_eq_u64 vcc, 0
    s_cbranch_scc1 poll_done{u}
    s_sleep {sleep}
    s_branch poll_ld{u}
    """)
    a.label(f"poll_done{u}")


def poll_cmp(a, n, vtmp):
    if n == 1:
        a(f"v_cmp_ne_u32 vcc, s{sNONCE}, v{vtmp}")
    else:
        a(f"""
        v_xor_b32 v{vtmp}, s{sNONCE}, v{vtmp}
        v_xor_b32 v{vtmp+1}, s{sNONCE}, v{vtmp+1}
        v_or_b32 v{vtmp}, v{vtmp}, v{vtmp+1}
        v_cmp_ne_u32 vcc, 0, v{vtmp}
        """)


def lds_set(a, off, val, vtmp):
    a(f"""
    v_mov_b32 v{vtmp}, {CNT + off}
    v_mov_b32 v{vtmp+1}, {val}
    ds_write_b32 v{vtmp}, v{vtmp+1}
    """)


def lds_wait(a, off, vtmp, cond, sleep=1):
    _uid[0] += 1
    u = _uid[0]
    a(f"v_mov_b32 v{vtmp}, {CNT + off}")
    a.label(f"lw{u}")
    a(f"""
    ds_read_b32 v{vtmp+1}, v{vtmp}
    s_waitcnt lgkmcnt(0)
    v_readfirstlane_b32 s{sT0}, v{vtmp+1}
    """)
    a(f"s_cmp_lg_u32 s{sT0}, 0" if cond == "ne0" else f"s_cmp_eq_u32 s{sT0}, {cond[2:]}")
    a(f"""
    s_cbranch_scc1 lwd{u}
    s_sleep {sleep}
    s_branch lw{u}
    """)
    a.label(f"lwd{u}")


class VM:
    def __init__(self):
        self.q = []

    def add(self, tag):
        self.q.append(tag)

    def wait(self, tags, counts=None):
        idx = max([i for i, t in enumerate(self.q) if t in tags], default=-1)
        for t in tags:
            assert t in self.q, (t, self.q)
            if counts:
                assert self.q.count(t) == counts(t), (t, self.q)
        n = len(self.q) - 1 - idx
        assert n <= 63
        return n

    def copy(self):
        v = VM(); v.q = list(self.q); return v


vFLA, vPOL, vFQO, vF1, vNON = 7, 9, 11, 12, 13
vDW = 31


def flag1(a, soff):
    return f"buffer_store_dword v{vNON}, v{vF1}, {sr4(S_WS)}, s{soff} offen{SC}"


AQ, AO, AS, AKV, AP, ATMP = 16, 48, [112, 128], 144, 208, 224
avG, avM, avONE = 14, 15, 216
sME, sMO = 24, 26
sKB, sVB, sTI, sKS, sVS, sIT = 45, 46, 47, 48, 52, 49


avV0, avV1 = 217, 218
HBR = 240


def hb_stores():
    return [f"buffer_store_dwordx4 {vr(HBR+4*i, 4)}, v{vL16}, {sr4(S_WS)}, s{sHOFF2} offen offset:{1024*i}{SC}" for i in range(2)]

sVM = 30


def kv_adv():
    return [f"s_mul_i32 s{sVS}, s{sTI}, {TQ}", f"s_add_u32 s{sKS}, s{sVS}, s{sKB}",
            f"s_add_u32 s{sVS}, s{sVS}, s{sVB}",
            f"s_add_u32 s{sTI}, s{sTI}, 1", f"s_and_b32 s{sTI}, s{sTI}, 15"]


def kv_load(buf, part, vv=(None, None)):
    if part < 2:
        return [f"buffer_load_dwordx4 {vr(AKV+16*buf+4*part, 4)}, v{vL16}, {sr4(S_WS)}, s{sKS} offen offset:{1024*part}{SC}"]
    return [f"s_mov_b64 exec, s[{sVM}:{sVM+1}]",
            f"buffer_load_dwordx4 {vr(AKV+16*buf+4*part, 4)}, v{vv[part-2]}, {sr4(S_WS)}, s{sVS} offen{SC}",
            "s_mov_b64 exec, -1"]


def att_loads():
    vm = VM()
    o1 = L(f"""
    s_lshl_b32 s{sT1}, s{sP0}, 9
    s_lshl_b32 s{sT2}, s{sQB}, 2
    s_add_u32 s{sT2}, s{sT2}, s{sKQ}
    s_mul_i32 s{sT0}, s{sT2}, {TQ}
    s_add_u32 s{sT0}, s{sT0}, s{sT1}
    buffer_load_dwordx4 {vr(AQ, 4)}, v{vL16}, {sr4(S_WS)}, s{sT0} offen{SC}
    buffer_load_dwordx4 {vr(AQ+4, 4)}, v{vL16}, {sr4(S_WS)}, s{sT0} offen offset:1024{SC}
    s_mul_i32 s{sVB}, s{sKQ}, {16 * TQ}
    s_add_u32 s{sKB}, s{sVB}, s{sT1}
    s_add_u32 s{sKB}, s{sKB}, {KF}
    s_mul_i32 s{sT0}, s{sHEAD}, 448
    s_add_u32 s{sVB}, s{sVB}, s{sT0}
    s_add_u32 s{sVB}, s{sVB}, {VF}
    s_and_b32 s{sTI}, s{sQB}, {AROT}
    s_mov_b32 s{sVM}, 0x0fffffff
    s_mov_b32 s{sVM+1}, 0x0fffffff
    v_lshrrev_b32 v{vT2}, 5, v{vLane}
    v_mul_u32_u24 v{vT2}, {7168 - 512}, v{vT2}
    v_add_u32 v{vT2}, v{vT2}, v{vL16}
    v_add_u32 v{vT3}, 14336, v{vT2}
    """)
    vm.add(("q",)); vm.add(("q",))
    o2 = []
    for t in range(3):
        o = o1 if t == 0 else o2
        o += kv_adv()
        for p in range(4):
            if p == 2:
                o += [f"v_mov_b32 v{AKV+16*t+8+i}, 0x3f803f80" for i in range(8)]
            o.append(kv_load(t, p, (vT2, vT3)))
            vm.add(("kv", t, p))
    flat = lambda o: [y for x in o for y in (x if isinstance(x, list) else [x])]
    return o1, o2, vm, flat


def wk_off(i):
    return 8 * (i % 14) + 4 * (i // 14)


def gen():
    a = Asm()
    vDX0, vDX1, vDB0, vDG, vDU = 7, 8, 9, 10, 11
    vAX = 14
    vAW = 18
    vST = 22
    vN, vR4, vC, vRow = 26, 27, 28, 29
    X, ACC, WF = 32, 144, 224
    PFR, vPFL, sPFI = ACC + 60, 30, 58

    stamp(a, "start")
    if INSTR: a("s_memrealtime s[100:101]")
    if "dbgt" in OPT: a("s_memtime s[86:87]\ns_memrealtime s[88:89]")
    a(f"""
    s_cmp_ge_u32 s2, 256
    s_cbranch_scc1 k_end
    """)
    if os.environ.get("DELAY"):
        a(f"""
        s_cmp_lg_u32 s2, {os.environ["DELAY"]}
        s_cbranch_scc1 k_nodelay
        s_mov_b32 s3, 12
        """)
        a.label("k_delay")
        a("s_sleep 100\ns_sub_u32 s3, s3, 1\ns_cmp_lg_u32 s3, 0\ns_cbranch_scc1 k_delay")
        a.label("k_nodelay")
    a(f"""
    s_load_dwordx16 s[64:79], s[0:1], 0
    s_load_dwordx4 s[80:83], s[0:1], 64
    s_load_dwordx2 s[84:85], s[0:1], 80
    v_and_b32 v{vLane}, 63, v0
    v_lshrrev_b32 v{vT0}, 6, v0
    s_and_b32 s{sC8}, s2, 7
    s_lshr_b32 s{sI32}, s2, 3
    v_readfirstlane_b32 s{sW}, v{vT0}
    s_lshr_b32 s{sT1}, s{sC8}, 1
    s_mul_i32 s{sT0}, s{sT1}, 28
    s_sub_u32 s{sT0}, s{sT0}, 4
    s_lshl_b32 s{sT1}, s{sT1}, 2
    s_add_u32 s{sT1}, s{sT1}, 112
    s_cmp_lt_u32 s{sI32}, 4
    s_cselect_b32 s{sT0}, s{sT1}, s{sT0}
    s_add_u32 s{sT0}, s{sT0}, s{sI32}
    s_lshr_b32 s{sJ}, s{sT0}, 3
    s_and_b32 s{sT0}, s{sT0}, 7
    s_and_b32 s{sMI}, s{sC8}, 1
    s_lshl_b32 s{sMI}, s{sMI}, 3
    s_add_u32 s{sMI}, s{sMI}, s{sT0}
    v_lshrrev_b32 v{vT0}, 3, v{vLane}
    v_lshrrev_b32 v{vT1}, 4, v{vLane}
    v_and_b32 v{vT2}, 7, v{vLane}
    v_xor_b32 v{vT3}, v{vT2}, v{vT1}
    s_lshl_b32 s{sT0}, s{sMI}, 7
    s_lshl_b32 s{sT1}, s{sW}, 4
    s_add_u32 s{sT0}, s{sT0}, s{sT1}
    v_add_u32 v{vDX0}, s{sT0}, v{vT0}
    v_mul_u32_u24 v{vDX0}, 896, v{vDX0}
    v_lshl_add_u32 v{vDX0}, v{vT3}, 4, v{vDX0}
    v_xor_b32 v{vDX1}, 64, v{vDX0}
    v_add_u32 v{vDX1}, 7168, v{vDX1}
    v_and_b32 v{vT3}, 1, v{vT1}
    v_lshlrev_b32 v{vT3}, 2, v{vT3}
    v_xor_b32 v{vT3}, v{vT3}, v{vT2}
    v_lshlrev_b32 v{vT3}, 4, v{vT3}
    v_mul_u32_u24 v{vDW}, 896, v{vT0}
    v_add_u32 v{vDW}, v{vDW}, v{vT3}
    s_lshl_b32 s{sT0}, s{sW}, 3
    v_add_u32 v{vT0}, s{sT0}, v{vT0}
    v_mul_u32_u24 v{vDB0}, 2688, v{vT0}
    v_add_u32 v{vDB0}, v{vDB0}, v{vT3}
    s_lshl_b32 s{sMX}, s{sW}, 11
    s_lshl_b32 s{sMB}, s{sW}, 10
    s_add_u32 s{sMB}, s{sMB}, 16384
    v_lshlrev_b32 v{vL16}, 4, v{vLane}
    s_mov_b32 s{S_X+2}, {2048 * 448 * 2}
    s_mov_b32 s{S_X+3}, 0x00020000
    s_mov_b32 s{S_B0+2}, {448 * 1344 * 2}
    s_mov_b32 s{S_B0+3}, 0x00020000
    s_mov_b32 s{S_G+3}, 0x00020000
    s_mov_b32 s{S_U+3}, 0x00020000
    s_cmp_ge_u32 s{sJ}, 14
    s_cbranch_scc1 k1_v
    """)

    vm = None

    def emit_group(g):
        for l in g[0]:
            a(l)
        vm.add(g[1])

    def dma(m0base, m0off, vaddr, srdb, soff):
        return [f"s_add_u32 m0, s{m0base}, {m0off & 0xffffffff}", f"s_mov_b32 s{sSO}, {soff}",
                f"buffer_load_dwordx4 v{vaddr}, {sr4(srdb)}, s{sSO} offen lds"]

    def pf1(tg):
        if "nopf" in OPT.split(","):
            return
        a(f"""
        s_lshl_b32 s{sPFI}, s2, 3
        s_add_u32 s{sPFI}, s{sPFI}, s{sW}
        s_lshl_b32 s{sT0}, s{sPFI}, 10
        s_mov_b32 s{S_TMP+3}, 0x00020000
        v_lshrrev_b32 v{vPFL}, 3, v{vLane}
        v_lshlrev_b32 v{vPFL}, 7, v{vPFL}
        v_add_u32 v{vPFL}, v{vPFL}, v{vL16}
        """)
        if "nox" not in OPT:
            a(f"buffer_load_dwordx4 {vr(PFR, 4)}, v{vL16}, {sr4(S_X)}, s{sT0} offen")
            vm.add(("PF",))
        if "now1" in OPT:
            return
        a(f"""
        s_cmp_lt_u32 s{sPFI}, {NQ}
        s_cbranch_scc1 k_pf_q_{tg}
        s_cmp_lt_u32 s{sPFI}, {NQ + NG}
        s_cselect_b32 s{S_TMP}, s{P_WG}, s{P_WU}
        s_cselect_b32 s{S_TMP+1}, s{P_WG+1}, s{P_WU+1}
        s_cselect_b32 s{sT0}, 0, {NG}
        s_mov_b32 s{S_TMP+2}, {448 * 1792 * 2}
        s_sub_u32 s{sT0}, s{sPFI}, s{sT0}
        s_lshl_b32 s{sT0}, s{sT0}, 11
        s_add_u32 s{sT0}, s{sT0}, {(PFROW * 3584 - NQ * 2048) & 0xffffffff}
        buffer_load_dwordx4 {vr(PFR+4, 4)}, v{vPFL}, {sr4(S_TMP)}, s{sT0} offen
        s_branch k_pf_d_{tg}
        """)
        a.label(f"k_pf_q_{tg}")
        a(f"""
        s_add_u32 s{sT0}, s{sT0}, {PFROW * 2688}
        buffer_load_dwordx4 {vr(PFR+4, 4)}, v{vL16}, {sr4(S_B0)}, s{sT0} offen
        """)
        a.label(f"k_pf_d_{tg}")
        vm.add(("PF",))

    def common_setup2(tg):
        srd(a, S_WS, P_WS, WS_BYTES)
        srd(a, S_DBG, P_DBG, 256)
        srd(a, S_WD, P_WD, 1792 * 448 * 2)
        a(f"""
        s_or_b32 s{sT0}, s2, s{sW}
        s_cmp_lg_u32 s{sT0}, 0
        s_cbranch_scc1 k_nononce_{tg}
        s_memrealtime s[{sSC}:{sSC+1}]
        v_mov_b32 v{vT1}, 0
        s_waitcnt lgkmcnt(0)
        s_or_b32 s{sT0}, s{sSC}, 0x80000000
        v_mov_b32 v{vT0}, s{sT0}
        s_mov_b64 exec, 1
        buffer_store_dword v{vT0}, v{vT1}, {sr4(S_DBG)}, 0 offen{SC}
        s_mov_b64 exec, -1
        """)
        a.label(f"k_nononce_{tg}")
        if not PFPOS:
            pf1(tg)
        if PF_EARLY:
            for g in (([] if 'no2' in OPT else [pf2()]) + ([pf3()] if PF_EARLY == 2 else [])):
                emit_group(g)
        if "tlb" in OPT:
            a(f"""
            s_cmp_lg_u32 s{sW}, 1
            s_cbranch_scc1 k_notlb_{tg}
            s_mov_b32 s{sT0}, {TLB_STR}
            v_mul_lo_u32 v{vT0}, v{vLane}, s{sT0}
            s_mul_i32 s{sT1}, s{sI32}, {TLB_WG}
            s_mov_b32 s{S_TMP}, s{P_WS}
            s_mov_b32 s{S_TMP+1}, s{P_WS+1}
            s_mov_b32 s{S_TMP+2}, {(16 << 20) + 0x50000}
            s_mov_b32 s{S_TMP+3}, 0x00020000
            buffer_load_dword v{ACC+76}, v{vT0}, {sr4(S_TMP)}, s{sT1} offen
            s_mov_b32 s{S_TMP}, s{P_OUT}
            s_mov_b32 s{S_TMP+1}, s{P_OUT+1}
            s_mov_b32 s{S_TMP+2}, {2048 * 448 * 2}
            buffer_load_dword v{ACC+77}, v{vT0}, {sr4(S_TMP)}, s{sT1} offen
            """)
            a.label(f"k_notlb_{tg}")
        if "nocp" not in OPT:
            a(f"""
            s_cmp_ge_u32 s{sI32}, 5
            s_cbranch_scc1 k_nocp_{tg}
            s_lshl_b32 s{sT0}, s{sI32}, 3
            s_add_u32 s{sT0}, s{sT0}, s{sW}
            s_lshl_b32 s{sT0}, s{sT0}, 10
            v_add_u32 v{vT0}, s{sT0}, v{vL16}
            v_min_u32 v{vT0}, k_end-{KNAME}-12, v{vT0}
            s_getpc_b64 s[{sSC}:{sSC+1}]
            """)
            a.label(f"k_pc_{tg}")
            a(f"""
            s_sub_u32 s{sSC}, s{sSC}, k_pc_{tg}-{KNAME}
            s_subb_u32 s{sSC+1}, s{sSC+1}, 0
            global_load_dwordx4 {vr(ACC+76, 4)}, v{vT0}, s[{sSC}:{sSC+1}]
            """)
            a.label(f"k_nocp_{tg}")
        a(f"""
        s_and_b32 s{sR}, s{sW}, 3
        s_lshr_b32 s{sGRP}, s{sW}, 2
        s_lshl_b32 s{sTILE}, s{sMI}, 2
        s_add_u32 s{sTILE}, s{sTILE}, s{sR}
        v_and_b32 v{vT0}, 31, v{vLane}
        v_lshrrev_b32 v{vT1}, 5, v{vLane}
        v_bfe_u32 v{vT2}, v{vLane}, 1, 3
        v_xor_b32 v{vT2}, v{vT2}, v{vT1}
        s_lshl_b32 s{sT0}, s{sR}, 12
        v_lshlrev_b32 v{vT3}, 7, v{vT0}
        v_lshl_add_u32 v{vT3}, v{vT2}, 4, v{vT3}
        v_add_u32 v{vAX}, s{sT0}, v{vT3}
        v_xor_b32 v{vAX+1}, 32, v{vAX}
        v_xor_b32 v{vAX+2}, 64, v{vAX}
        v_xor_b32 v{vAX+3}, 96, v{vAX}
        v_bfe_u32 v{vN}, v{vLane}, 4, 1
        v_bfe_u32 v{vR4}, v{vLane}, 2, 2
        v_and_b32 v{vC}, 3, v{vLane}
        v_lshl_add_u32 v{vRow}, v{vT1}, 3, v{vR4}
        v_and_b32 v{vT2}, 2, v{vR4}
        v_xor_b32 v{vT2}, v{vT2}, v{vN}
        s_lshl_b32 s{sT0}, s{sGRP}, 1
        v_xor_b32 v{vT2}, s{sT0}, v{vT2}
        v_lshlrev_b32 v{vT3}, 7, v{vRow}
        v_lshl_add_u32 v{vT3}, v{vT2}, 5, v{vT3}
        v_lshl_add_u32 v{vT3}, v{vC}, 3, v{vT3}
        v_add_u32 v{vAW}, 16384, v{vT3}
        s_mov_b32 s{sNL2E}, {f32bits(-LOG2E):#x}
        """)

    def flag_addr(vtype, vfla, vfqo):
        t0, t1, t2, t3 = vN, vR4, vC, vRow
        o = L(f"""
        s_lshl_b32 s{sHEAD}, s{sC8}, 1
        s_and_b32 s{sT2}, s{sI32}, 1
        s_add_u32 s{sHEAD}, s{sHEAD}, s{sT2}
        s_lshr_b32 s{sQB}, s{sI32}, 1
        s_lshl_b32 s{sMT}, s{sC8}, 2
        s_and_b32 s{sT2}, s{sI32}, 3
        s_add_u32 s{sMT}, s{sMT}, s{sT2}
        s_lshr_b32 s{sNT}, s{sI32}, 2
        s_mul_i32 s{sP0}, s{sHEAD}, 7
        s_lshr_b32 s{sP0}, s{sP0}, 1
        s_lshl_b32 s{sFQB}, s{sHEAD}, 12
        s_add_u32 s{sFQB}, s{sFQB}, {FQ}
        s_lshr_b32 s{sT1}, s{sQB}, 2
        s_lshl_b32 s{sT1}, s{sT1}, 7
        s_and_b32 s{sT2}, s{sQB}, 3
        s_lshl_b32 s{sT2}, s{sT2}, 2
        s_add_u32 s{sT1}, s{sT1}, s{sT2}
        s_add_u32 s{sT1}, s{sT1}, 2048
        v_lshrrev_b32 v{t0}, 2, v{vLane}
        v_and_b32 v{t1}, 3, v{vLane}
        v_lshlrev_b32 v{t1}, 2, v{t1}
        v_lshl_add_u32 v{vfla}, v{t0}, 7, v{t1}
        v_and_b32 v{t0}, 1, v{vLane}
        v_lshl_add_u32 v{vfla+1}, v{t0}, 9, s{sT1}
        v_and_b32 v{t0}, 15, v{vLane}
        v_lshrrev_b32 v{t1}, 4, v{vLane}
        v_lshlrev_b32 v{t3}, 12, v{t0}
        v_lshl_add_u32 v{t3}, v{t1}, 9, v{t3}
        s_lshr_b32 s{sT1}, s{sMI}, 2
        s_lshl_b32 s{sT1}, s{sT1}, 7
        s_and_b32 s{sT2}, s{sMI}, 3
        s_lshl_b32 s{sT2}, s{sT2}, 2
        s_add_u32 s{sT1}, s{sT1}, s{sT2}
        """)
        if not vtype:
            o += L(f"""
            s_add_u32 s{sT2}, s{sJ}, 1
            s_lshr_b32 s{sT2}, s{sT2}, 3
            v_mul_u32_u24 v{t2}, 7, v{t0}
            v_lshrrev_b32 v{t2}, 1, v{t2}
            v_mad_u32_u24 v{t2}, v{t1}, 3, v{t2}
            v_lshrrev_b32 v{t2}, 3, v{t2}
            v_lshrrev_b32 v{t1}, 1, v{t1}
            v_lshl_add_u32 v{t2}, v{t1}, 6, v{t2}
            v_mad_u32_u24 v{t2}, s{sT2}, 7, v{t2}
            v_cmp_eq_u32 vcc, s{sJ}, v{t2}
            s_lshl_b32 s{sT2}, s{sT2}, 11
            s_sub_u32 s{sT1}, s{sT1}, s{sT2}
            s_add_u32 s{sT1}, s{sT1}, 2048
            """)
        else:
            o += L(f"""
            v_add_u32 v{t2}, 14, v{t1}
            v_cmp_eq_u32 vcc, s{sJ}, v{t2}
            s_add_u32 s{sT1}, s{sT1}, 1024
            """)
        o += L(f"""
        v_add_u32 v{t3}, s{sT1}, v{t3}
        v_mov_b32 v{t0}, {OOB}
        v_cndmask_b32 v{vfqo}, v{t0}, v{t3}, vcc
        v_cmp_eq_u32 vcc, 0, v{vLane}
        s_lshr_b32 s{sFHO}, s{sTILE}, 1
        s_lshl_b32 s{sFHO}, s{sFHO}, 10
        v_cndmask_b32 v{vF1}, v{t0}, v{vLane}, vcc
        s_lshr_b32 s{sT1}, s{sJ}, 1
        s_lshl_b32 s{sT1}, s{sT1}, 7
        s_add_u32 s{sFHO}, s{sFHO}, s{sT1}
        s_and_b32 s{sT1}, s{sJ}, 1
        s_lshl_b32 s{sT1}, s{sT1}, 3
        s_add_u32 s{sFHO}, s{sFHO}, s{sT1}
        s_and_b32 s{sT1}, s{sR}, 1
        s_lshl_b32 s{sT1}, s{sT1}, 2
        s_add_u32 s{sFHO}, s{sFHO}, s{sT1}
        s_add_u32 s{sFHO}, s{sFHO}, {FHB}
        s_lshl_b32 s{sFHA}, s{sMI}, 9
        s_lshr_b32 s{sT1}, s{sJ}, 2
        s_lshl_b32 s{sT1}, s{sT1}, 7
        s_add_u32 s{sFHA}, s{sFHA}, s{sT1}
        s_and_b32 s{sT1}, s{sJ}, 3
        s_lshl_b32 s{sT1}, s{sT1}, 2
        s_add_u32 s{sFHA}, s{sFHA}, s{sT1}
        s_add_u32 s{sFHA}, s{sFHA}, {FH}
        s_lshl_b32 s{sM0}, s{sNT}, 7
        s_mul_i32 s{sWB}, s{sR}, {16 * 896}
        s_add_u32 s{sWB}, s{sWB}, s{sM0}
        s_lshl_b32 s{sM0}, s{sR}, 11
        """)
        return o

    def nonce_get(tag):
        a(f"""
        v_readfirstlane_b32 s{sNONCE}, v{vNON}
        v_lshlrev_b32 v{vT0}, 2, v{vLane}
        v_add_u32 v{vT0}, {CNT}, v{vT0}
        v_mov_b32 v{vT1}, 0
        s_cmp_lg_u32 s{sNONCE}, 0
        s_cbranch_scc1 k1_nonce_ok_{tag}
        """)
        a.label(f"k1_nonce_spin_{tag}")
        a(f"""
        buffer_load_dword v{vNON}, v{vT1}, {sr4(S_DBG)}, 0 offen{SC}
        s_waitcnt vmcnt(0)
        v_readfirstlane_b32 s{sNONCE}, v{vNON}
        s_sleep 4
        s_cmp_eq_u32 s{sNONCE}, 0
        s_cbranch_scc1 k1_nonce_spin_{tag}
        """)
        a.label(f"k1_nonce_ok_{tag}")
        a(f"ds_write_b32 v{vT0}, v{vT1}")

    def pf2():
        return (L(f"""
        s_cmp_lt_u32 s{sPFI}, 784
        s_cselect_b32 s{S_TMP}, s{P_WG}, s{P_WU}
        s_cselect_b32 s{S_TMP+1}, s{P_WG+1}, s{P_WU+1}
        s_cselect_b32 s{sT0}, 0, 784
        s_mov_b32 s{S_TMP+2}, {448 * 1792 * 2}
        s_sub_u32 s{sT0}, s{sPFI}, s{sT0}
        s_lshl_b32 s{sT0}, s{sT0}, 11
        buffer_load_dwordx4 {vr(PFR+8, 4)}, v{vPFL}, {sr4(S_TMP)}, s{sT0} offen offset:128
        """), ("PF",))

    def pf3():
        return (L(f"""
        s_cmp_lt_u32 s{sPFI}, 1568
        s_cselect_b32 s{S_TMP}, s{P_WD}, s{P_WO}
        s_cselect_b32 s{S_TMP+1}, s{P_WD+1}, s{P_WO+1}
        s_cselect_b32 s{sT0}, 0, 1568
        s_cselect_b32 s{S_TMP+2}, s{S_WD+2}, {448 * 448 * 2}
        s_sub_u32 s{sT0}, s{sPFI}, s{sT0}
        s_lshl_b32 s{sT0}, s{sT0}, 10
        buffer_load_dwordx4 {vr(PFR+12, 4)}, v{vL16}, {sr4(S_TMP)}, s{sT0} offen
        """), ("PF",))

    nonce_ld = ([f"v_mov_b32 v{vNON}, 0", f"buffer_load_dword v{vNON}, v{vNON}, {sr4(S_DBG)}, 0 offen{SC}"], ("N",))

    def wpref(i):
        ra = ring_addr(i % 13)
        return [f"s_add_u32 m0, s{sM0}, {ra}", f"s_add_u32 s{sT0}, s{sWB}, {wk_off(i) * 16 * 896}",
                f"buffer_load_dwordx4 v{vDW}, {sr4(S_WD)}, s{sT0} offen lds",
                f"s_add_u32 m0, s{sM0}, {ra + 1024}", f"s_add_u32 s{sT0}, s{sT0}, {8 * 896}",
                f"buffer_load_dwordx4 v{vDW}, {sr4(S_WD)}, s{sT0} offen lds"]

    abase = [0]

    def set_base(nb, regs):
        out = []
        if nb != abase[0]:
            d = nb - abase[0]
            for r in regs:
                out.append(f"v_add_u32 v{r}, {d}, v{r}" if d > 0 else f"v_subrev_u32 v{r}, {-d}, v{r}")
            abase[0] = nb
        return out

    def emit(x):
        if isinstance(x, tuple):
            a(x[1]); vm.add((x[0],))
        else:
            a(x)

    vm = VM()
    cnts = lambda t: {"A": 5, "B": 2}[t[0]] if t[0] in ("A", "B") else vm.q.count(t)
    a(f"""
    s_lshl_b32 s{sT0}, s{sJ}, 7
    v_add_u32 v{vDB0}, s{sT0}, v{vDB0}
    v_mul_u32_u24 v{vDG}, 3584, v{vT0}
    s_lshl_b32 s{sT0}, s{sJ}, 8
    v_add3_u32 v{vDG}, v{vDG}, v{vT3}, s{sT0}
    v_xor_b32 v{vDU}, 32, v{vDG}
    s_mov_b32 s{S_G+2}, {448 * 1792 * 2}
    s_mov_b32 s{S_U+2}, {448 * 1792 * 2}
    s_waitcnt lgkmcnt(0)
    s_mov_b64 s[{S_X}:{S_X+1}], s[{P_X}:{P_X+1}]
    s_mov_b64 s[{S_B0}:{S_B0+1}], s[{P_WQKV}:{P_WQKV+1}]
    s_mov_b64 s[{S_G}:{S_G+1}], s[{P_WG}:{P_WG+1}]
    s_mov_b64 s[{S_U}:{S_U+1}], s[{P_WU}:{P_WU+1}]
    """)

    def fA(st):
        b = (st % 4) * SLOT
        g = [dma(sMX, b, vDX0, S_X, st * 128), dma(sMX, b + 1024, vDX1, S_X, st * 128),
             dma(sMB, b, vDB0, S_B0, st * 64 * 2688), dma(sMB, b + 8192, vDG, S_G, st * 64 * 3584),
             dma(sMB, b + 16384, vDU, S_U, st * 64 * 3584)]
        return [(x, ("A", st)) for x in g]

    def bslot(sb):
        return ((3 + sb // 2) % 4) * SLOT + (sb % 2) * 16384

    def fB(sb):
        b = bslot(sb) - 16384
        g = [dma(sMB, b, vDG, S_G, sb * 64 * 3584 + 128), dma(sMB, b + 8192, vDU, S_U, sb * 64 * 3584 + 128)]
        return [(x, ("B", sb)) for x in g]

    for g in fA(0):
        emit_group(g)
    a("s_barrier")
    if PFPOS: pf1("f")
    for g in fA(1):
        emit_group(g)
    common_setup2("f")
    a(f"""
    v_lshl_add_u32 v{vAW+1}, v{vN}, 13, v{vT3}
    v_add_u32 v{vAW+1}, {16384 + 8192}, v{vAW+1}
    v_xor_b32 v{vAW+2}, 32, v{vAW+1}
    s_cmp_ge_u32 s{sJ}, 7
    s_cselect_b32 s{sT1}, {KF - 7 * 4096}, {QF}
    s_cselect_b32 s{sSC}, 1.0, {f32bits(28 ** -0.5 * LOG2E):#x}
    s_lshl_b32 s{sT2}, s{sJ}, 12
    s_add_u32 s{sT1}, s{sT1}, s{sT2}
    s_lshl_b32 s{sT2}, s{sGRP}, 11
    s_add_u32 s{sT1}, s{sT1}, s{sT2}
    s_mul_i32 s{sQKO}, s{sTILE}, {TQ}
    s_add_u32 s{sQKO}, s{sQKO}, s{sT1}
    s_mul_i32 s{sHOFF}, s{sTILE}, 112
    s_lshl_b32 s{sT1}, s{sJ}, 3
    s_add_u32 s{sHOFF}, s{sHOFF}, s{sT1}
    s_lshl_b32 s{sT1}, s{sGRP}, 1
    s_add_u32 s{sHOFF}, s{sHOFF}, s{sT1}
    s_lshl_b32 s{sHOFF}, s{sHOFF}, 10
    s_add_u32 s{sHOFF}, s{sHOFF}, {HF}
    s_add_u32 s{sHOFF2}, s{sHOFF}, 4096
    """)
    WA = [WF, WF + 12, ACC + 48]
    NB = 4
    WB = [WF + 24, WF + 16, WF + 8, WF]

    def readsA(ks):
        st, s = ks // 4, ks % 4
        slot = st % 4
        out = set_base((slot // 2) * 2 * SLOT, [vAX, vAX+1, vAX+2, vAX+3, vAW, vAW+1, vAW+2])
        off = (slot % 2) * SLOT
        f = WA[ks % 3]
        out.append(f"ds_read_b128 {vr(X+4*ks, 4)}, v{vAX+s} offset:{off}")
        for t in range(3):
            for q in range(2):
                out.append(f"ds_read_b64_tr_b16 {vr(f+4*t+2*q, 2)}, v{vAW+t} offset:{off + (16*s + 4*q) * 128}")
        return out

    def readsB(ks):
        sb, s = ks // 4, ks % 4
        b = bslot(sb)
        f = WB[ks % NB]
        b32 = b - b % 32768
        off = b - b32
        out = set_base(b32 - 24576, [vAW+1, vAW+2])
        for t in range(2):
            for q in range(2):
                out.append(f"ds_read_b64_tr_b16 {vr(f+4*t+2*q, 2)}, v{vAW+1+t} offset:{off + (16*s + 4*q) * 128}")
        return out

    def epi_ffn(acc, ko, dst=None):
        g, u = acc, acc + 8
        dst = g if dst is None else dst
        o = []
        for i in range(8):
            o.append(f"v_mul_f32 v{u+i}, v{g+i}, v{u+i}")
            o.append(f"v_mul_f32 v{g+i}, s{sNL2E}, v{g+i}")
        for i in range(8):
            o.append(f"v_exp_f32 v{g+i}, v{g+i}")
        for i in range(8):
            o.append(f"v_add_f32 v{g+i}, 1.0, v{g+i}")
        for i in range(8):
            o.append(f"v_rcp_f32 v{g+i}, v{g+i}")
        for i in range(8):
            o.append(f"v_mul_f32 v{u+i}, v{u+i}, v{g+i}")
        for i in range(4):
            o.append(f"v_cvt_pk_bf16_f32 v{dst+i}, v{u+2*i}, v{u+2*i+1}")
        so, off = (sHOFF, ko) if ko < 4 else (sHOFF2, ko - 4)
        o.append(("H", f"buffer_store_dwordx4 {vr(dst, 4)}, v{vL16}, {sr4(S_WS)}, s{so} offen offset:{1024*off}{SC}"))
        return o

    def epi_qk():
        o = []
        for i in range(8):
            o.append(f"v_mul_f32 v{ACC+2*i}, s{sSC}, v{ACC+2*i}")
            o.append(f"v_mul_f32 v{ACC+2*i+1}, s{sSC}, v{ACC+2*i+1}")
            o.append(f"v_cvt_pk_bf16_f32 v{ACC+i}, v{ACC+2*i}, v{ACC+2*i+1}")
        o.append("s_nop 1")
        for hh in range(2):
            b = ACC + 4 * hh
            o.append(f"v_permlane32_swap_b32 v{b}, v{b+2}")
            o.append(f"v_permlane32_swap_b32 v{b+1}, v{b+3}")
            o.append(("QK", f"buffer_store_dwordx4 {vr(b, 4)}, v{vL16}, {sr4(S_WS)}, s{sQKO} offen offset:{1024*hh}{SC}"))
        return o

    abase[0] = 0
    a(f"s_waitcnt vmcnt({vm.wait({('A', 0)}, cnts)})\ns_barrier")
    stamp(a, "p1_first")
    for ks in range(2):
        for r in readsA(ks):
            a(r)
    pend = fA(2) + fA(3)
    vFQf = vST
    fillA = flag_addr(False, vFLA, vFQf)
    for ks in range(28):
        st, s = ks // 4, ks % 4
        f = WA[ks % 3]
        m = [f"{MFMA} {vr(ACC+16*t, 16)}, {vr(f+4*t, 4)}, {vr(X+4*ks, 4)}, {'0' if ks == 0 else vr(ACC+16*t, 16)}" for t in range(3)]
        if s == 2:
            need = {("A", st + 1)} if st < 6 else {("B", 0), ("B", 1), ("B", 2), ("B", 3), ("N",)}
            a(f"s_waitcnt vmcnt({vm.wait(need, cnts)}) lgkmcnt(0)")
            if st == 6:
                nonce_get("f")
            a("s_barrier")
            stamp(a, f"p1_a{st}")
            if st + 4 <= 6:
                pend += fA(st + 4)
            else:
                i0 = 2 * (st - 3)
                pend += fB(i0) + (fB(i0 + 1) if i0 + 1 < 7 else [])
            if st == 2:
                pend.append(nonce_ld)
            if "nopf" not in OPT and st == PF2_ST and PF_EARLY < 1: pend.append(pf2())
            if "nopf" not in OPT and st == PF3_ST and PF_EARLY < 2: pend.append(pf3())
        elif ks < 27:
            a("s_waitcnt lgkmcnt(7)")
        else:
            a("s_waitcnt lgkmcnt(4)")
        r = readsA(ks + 2) if ks + 2 < 28 else readsB(ks + 2 - 28)
        k = len(r) - 4 if ks + 2 < 28 else len(r) - 2
        a(m[0])
        for x in r[:k]:
            a(x)
        a(m[1])
        for x in r[k:]:
            a(x)
        a(m[2])
        if ks >= 16:
            assert vm.q.count(("A", 6)) == 5
            for _ in range(7):
                if fillA: a(fillA.pop(0))
        nd = 2 if (len(pend) > 4 or st < 1) else 1
        for _ in range(nd):
            if pend:
                emit_group(pend.pop(0))
    assert not fillA
    stamp(a, "p1_aend")
    for x in readsB(2):
        a(x)
    ea, eb = epi_ffn(ACC + 16, 0, X + 16), epi_ffn(ACC + 32, 1, X + 20)
    fillq = ["s_nop 3"] + epi_qk()
    fill = ea + eb
    wq = [0, 1, 2, 7, 3, 4, 5, 6]
    sWH, sMH2 = sMX, sOK
    for ks in range(28):
        f = WB[ks % NB]
        m = [f"{MFMA} {vr(ACC+48+16*t, 16)}, {vr(f+4*t, 4)}, {vr(X+4*ks, 4)}, {'0' if ks == 0 else vr(ACC+48+16*t, 16)}" for t in range(2)]
        nxt = ks + NB - 1
        if ks == QKB:
            need = {5: {("B", 2), ("B", 3), ("N",)}, QKB: {("B", 4), ("B", 5), ("B", 6), ("QK",)}, 17: set()}[ks]
            if ks == QKB: assert vm.q.count(("QK",)) == 2 and QKB <= 13
            if need: a(f"s_waitcnt vmcnt({vm.wait(need, cnts)})")
            a("s_barrier")
            stamp(a, {5: "p1_b2", QKB: "p1_b4", 17: "p1_b5"}[ks])
            if ks == QKB:
                a(f"""
                s_cmp_lg_u32 s{sW}, 7
                s_cbranch_scc1 k1_noflag_f
                s_mov_b32 s{sT0}, {FQ}
                buffer_store_dword v{vNON}, v{vFQf}, {sr4(S_WS)}, s{sT0} offen{SC}
                """)
                a.label("k1_noflag_f")
        stamp(a, f"pb{ks}")
        a(f"s_waitcnt lgkmcnt({min(NB - 2, 27 - ks) * 4})")
        r = readsB(nxt) if nxt < 28 else []

        def dofill():
            if ks < 1: return
            if fillq:
                for _ in range(5):
                    if fillq: emit(fillq.pop(0))
            else:
                for _ in range(FPER):
                    if fill and isinstance(fill[0], tuple) and ks < HA_ST and len(fill) > 1:
                        fill[0], fill[1] = fill[1], fill[0]
                    if fill and not (isinstance(fill[0], tuple) and ks < HA_ST): emit(fill.pop(0))
        a(m[0])
        for x in r[:len(r) - 2]:
            a(x)
        if pend:
            emit_group(pend.pop(0))
        dofill()
        a(m[1])
        for x in r[len(r) - 2:]:
            a(x)
        dofill()
        if wq and ks >= WP_ST and (ring_addr(wq[0]) < 122880 or ks >= QKB) and not pend:
            i = wq.pop(0)
            if i == 0:
                a(f"""
                s_mul_i32 s{sWH}, s{sGRP}, {8 * 896}
                s_add_u32 s{sWH}, s{sWH}, s{sWB}
                s_cmp_ge_u32 s{sI32}, 28
                s_cselect_b32 s{sWH}, {OOB}, s{sWH}
                s_lshl_b32 s{sMH2}, s{sGRP}, 10
                s_add_u32 s{sMH2}, s{sMH2}, s{sM0}
                """)
            a(f"""
            s_add_u32 m0, s{sMH2}, {ring_addr(i)}
            s_add_u32 s{sT0}, s{sWH}, {wk_off(i) * 16 * 896}
            buffer_load_dwordx4 v{vDW}, {sr4(S_WD)}, s{sT0} offen lds
            """)
            vm.add(("WP",))
        if ks == EARLY_P:
            a(f"""
            s_cmp_lg_u32 s{sW}, 0
            s_cbranch_scc1 k1_nopoll
            buffer_load_dword v{vPOL}, v{vFLA}, {sr4(S_WS)}, s{sFQB} offen{SC}
            buffer_load_dword v{vPOL+1}, v{vFLA+1}, {sr4(S_WS)}, s{sFQB} offen{SC}
            """)
            a.label("k1_nopoll")
    assert not fill and not pend and not wq
    stamp(a, "pb28")
    a(f"""
    s_cmp_lg_u32 s{sW}, 0
    s_cbranch_scc1 k1_nochk
    s_waitcnt vmcnt(0)
    """)
    poll_cmp(a, 2, vPOL)
    a(f"""
    s_cmp_eq_u64 vcc, 0
    s_cselect_b32 s{sT0}, 1, 0
    """)
    lds_set(a, 4, f"s{sT0}", vT0)
    a("s_waitcnt lgkmcnt(0)")
    a.label("k1_nochk")
    a(f"""
    s_cmp_ge_u32 s{sW}, 4
    s_cbranch_scc1 k1_nodr
    s_waitcnt vmcnt(0)
    """)
    a.label("k1_nodr")
    a(f"""
    s_barrier
    s_mov_b32 s{sOK}, 0
    s_cmp_ge_u32 s{sW}, 4
    s_cbranch_scc1 k1_epi
    v_mov_b32 v{vT0}, {CNT + 4}
    ds_read_b32 v{vT1}, v{vT0}
    s_waitcnt lgkmcnt(0)
    v_readfirstlane_b32 s{sOK}, v{vT1}
    s_cmp_eq_u32 s{sOK}, 1
    s_cbranch_scc1 k1_early
    s_cmp_lg_u32 s{sW}, 0
    s_cbranch_scc1 k1_epi
    buffer_load_dword v{vPOL}, v{vFLA}, {sr4(S_WS)}, s{sFQB} offen{SC}
    buffer_load_dword v{vPOL+1}, v{vFLA+1}, {sr4(S_WS)}, s{sFQB} offen{SC}
    s_branch k1_epi
    """)
    a.label("k1_early")
    stamp(a, "x_go")
    o1, o2, _, flat = att_loads()
    for x in flat(o1):
        a(x)
    stamp(a, "p1_bend")
    e0, e1 = epi_ffn(ACC + 48, 4, HBR), epi_ffn(ACC + 64, 5, HBR + 4)
    ev = e0[:-1] + e1[:-1]
    step = len(ev) // len(o2)
    for x in o2:
        for _ in range(step):
            a(ev.pop(0))
        for y in flat([x]):
            a(y)
    for x in ev:
        a(x)
    stamp(a, "p1_end")
    a("s_branch att_main")
    a.label("k1_epi")
    a("s_nop 7")
    stamp(a, "p1_bend")
    for x in e0[:FA_AT]:
        a(x)
    a(f"""
    s_cmp_lt_u32 s{sW}, 4
    s_cbranch_scc1 k1_nofa
    v_mov_b32 v{vT0}, {CNT + 32}
    v_mov_b32 v{vT1}, 1
    s_waitcnt vmcnt(0)
    s_mov_b64 exec, 1
    ds_add_rtn_u32 v{vT1}, v{vT0}, v{vT1}
    s_mov_b64 exec, -1
    s_waitcnt lgkmcnt(0)
    v_readfirstlane_b32 s{sT0}, v{vT1}
    s_cmp_lg_u32 s{sT0}, 3
    s_cbranch_scc1 k1_nofa
    """)
    a(flag1(a, sFHA))
    a.label("k1_nofa")
    for x in e0[FA_AT:-1] + e1[:-1]:
        a(x)
    stamp(a, "p1_end")
    a(f"""
    s_cmp_ge_u32 s{sW}, 4
    s_cbranch_scc1 gemm_role2
    s_cmp_lg_u32 s{sW}, 0
    s_cbranch_scc1 aq_lw
    s_waitcnt vmcnt(0)
    """)
    poll_cmp(a, 2, vPOL)
    a(f"""
    s_cmp_eq_u64 vcc, 0
    s_cbranch_scc1 aq_ok
    s_branch att_spin
    """)

    a.label("k1_v")
    vm = VM()
    cntv = lambda t: {"A": 5, "B": 1}[t[0]] if t[0] in ("A", "B") else vm.q.count(t)
    GWL = CNT + 1024
    a(f"""
    v_add_u32 v{vDU}, {(896 + 192) * 2}, v{vDB0}
    s_cmp_eq_u32 s{sJ}, 14
    s_cselect_b32 s{sT0}, 0, 512
    s_add_u32 s{sT0}, s{sT0}, {896 * 2}
    v_add_u32 v{vDB0}, s{sT0}, v{vDB0}
    s_mov_b32 s{S_U+2}, {448 * 2}
    s_waitcnt lgkmcnt(0)
    s_mov_b64 s[{S_X}:{S_X+1}], s[{P_X}:{P_X+1}]
    s_mov_b64 s[{S_B0}:{S_B0+1}], s[{P_WQKV}:{P_WQKV+1}]
    s_mov_b64 s[{S_U}:{S_U+1}], s[{P_GW}:{P_GW+1}]
    """)

    def vA(st):
        b = (st % 4) * SLOT
        g = [dma(sMX, b, vDX0, S_X, st * 128), dma(sMX, b + 1024, vDX1, S_X, st * 128)]
        for bi in range(3):
            g.append(dma(sMB, b + 8192 * bi, vDB0, S_B0, st * 64 * 2688 + 128 * bi))
        return [(x, ("A", st)) for x in g]

    def vbslot(sb):
        return 3 * SLOT + sb * 8192 if sb < 4 else (sb - 4) * 8192

    def vB(sb):
        return [(dma(sMB, vbslot(sb) - 16384, vDU, S_B0, sb * 64 * 2688), ("B", sb))]

    gw_ld = ([f"s_mov_b32 m0, {GWL}", "s_nop 0", f"buffer_load_dwordx4 v{vL16}, {sr4(S_U)}, 0 offen lds"], ("GW",))

    for g in vA(0):
        emit_group(g)
    a("s_barrier")
    if PFPOS: pf1("v")
    for g in vA(1):
        emit_group(g)
    common_setup2("v")
    vAZ = vAW + 3
    a(f"""
    v_add_u32 v{vAW+1}, 8192, v{vAW}
    v_add_u32 v{vAW+2}, 16384, v{vAW}
    s_sub_u32 s{sT1}, s{sJ}, 14
    s_lshl_b32 s{sT1}, s{sT1}, 6
    v_xor_b32 v{vAZ}, s{sT1}, v{vAW}
    v_lshlrev_b32 v{vST+1}, 4, v{vT1}
    v_add_u32 v{vST+1}, {GWL}, v{vST+1}
    s_cmp_eq_u32 s{sJ}, 14
    s_cselect_b32 s{sT1}, 0, 4096
    s_lshl_b32 s{sT2}, s{sGRP}, 9
    s_add_u32 s{sT1}, s{sT1}, s{sT2}
    s_mul_i32 s{sHOFF}, s{sTILE}, {TQ}
    s_add_u32 s{sHOFF}, s{sHOFF}, s{sT1}
    s_add_u32 s{sHOFF}, s{sHOFF}, {VF}
    s_add_u32 s{sHOFF2}, s{sHOFF}, 14336
    v_mul_u32_u24 v{vST}, {7168 - 512}, v{vT1}
    v_add_u32 v{vST}, v{vST}, v{vL16}
    """)

    def readsVA(ks):
        st, s = ks // 4, ks % 4
        slot = st % 4
        out = set_base((slot // 2) * 2 * SLOT, [vAX, vAX+1, vAX+2, vAX+3, vAW, vAW+1, vAW+2, vAZ])
        off = (slot % 2) * SLOT
        f = WA[ks % 3]
        out.append(f"ds_read_b128 {vr(X+4*ks, 4)}, v{vAX+s} offset:{off}")
        for t in range(3):
            for q in range(2):
                out.append(f"ds_read_b64_tr_b16 {vr(f+4*t+2*q, 2)}, v{vAW+t} offset:{off + (16*s + 4*q) * 128}")
        return out

    NBV = 6
    WBV = [WF + 24, WF + 28, WF + 16, WF + 20, WF + 12, WF + 8]

    def readsVB(ks, z):
        sb, s = ks // 4, ks % 4
        f = WBV[ks % NBV]
        if z:
            return [f"ds_read_b128 {vr(f, 4)}, v{vST+1} offset:{32*ks}"]
        b = vbslot(sb)
        nb = (3 * SLOT if sb < 4 else 0)
        out = set_base(nb - 16384, [vAZ])
        off = b - nb
        for q in range(2):
            out.append(f"ds_read_b64_tr_b16 {vr(f+2*q, 2)}, v{vAZ} offset:{off + (16*s + 4*q) * 128}")
        return out

    def epi_v(acc, bi):
        o = [f"v_cvt_pk_bf16_f32 v{acc+i}, v{acc+2*i}, v{acc+2*i+1}" for i in range(8)]
        o.append(f"buffer_store_dwordx4 {vr(acc, 4)}, v{vST}, {sr4(S_WS)}, s{sHOFF} offen offset:{1024*bi}{SC}")
        o.append(f"buffer_store_dwordx4 {vr(acc+4, 4)}, v{vST}, {sr4(S_WS)}, s{sHOFF2} offen offset:{1024*bi}{SC}")
        return o

    abase[0] = 0
    a(f"s_waitcnt vmcnt({vm.wait({('A', 0)}, cntv)})\ns_barrier")
    stamp(a, "p1_first")
    for ks in range(2):
        for r in readsVA(ks):
            a(r)
    pend = vA(2) + vA(3)
    fillA = flag_addr(True, vFLA, vDG)
    for ks in range(28):
        st, s = ks // 4, ks % 4
        f = WA[ks % 3]
        m = [f"{MFMA} {vr(ACC+16*t, 16)}, {vr(X+4*ks, 4)}, {vr(f+4*t, 4)}, {'0' if ks == 0 else vr(ACC+16*t, 16)}" for t in range(3)]
        if s == 2:
            need = {("A", st + 1)} if st < 6 else {("B", x) for x in range(7)} | {("N",), ("GW",)}
            a(f"s_waitcnt vmcnt({vm.wait(need, cntv)}) lgkmcnt(0)")
            if st == 6:
                nonce_get("v")
            a("s_barrier")
            if st + 4 <= 6:
                pend += vA(st + 4)
            elif st == 3:
                pend += vB(0) + vB(1) + vB(2) + vB(3)
            elif st == 4:
                pend += vB(4) + vB(5) + vB(6) + [gw_ld]
            if st == 2:
                pend.append(nonce_ld)
            if "nopf" not in OPT and st == PF2_ST and PF_EARLY < 1: pend.append(pf2())
            if "nopf" not in OPT and st == PF3_ST and PF_EARLY < 2: pend.append(pf3())
        elif ks < 27:
            a("s_waitcnt lgkmcnt(7)")
        r = readsVA(ks + 2) if ks + 2 < 28 else []
        k = max(len(r) - 4, 0)
        a(m[0])
        for x in r[:k]:
            a(x)
        a(m[1])
        for x in r[k:]:
            a(x)
        a(m[2])
        if ks >= 16:
            assert vm.q.count(("A", 6)) == 5
            for _ in range(7):
                if fillA: a(fillA.pop(0))
        nd = 2 if (len(pend) > 4 or st < 1) else 1
        for _ in range(nd):
            if pend:
                emit_group(pend.pop(0))
    assert not fillA and not pend
    stamp(a, "p1_aend")
    VB = ACC + 48

    def passVB(z, fill):
        nrd = 1 if z else 2
        for ks in range(NBV - 1):
            for x in readsVB(ks, z):
                a(x)
        for ks in range(28):
            f = WBV[ks % NBV]
            c = vr(VB, 16)
            ops = f"{vr(f, 4)}, {vr(X+4*ks, 4)}" if z else f"{vr(X+4*ks, 4)}, {vr(f, 4)}"
            a(f"s_waitcnt lgkmcnt({min(NBV - 2, 27 - ks) * nrd})")
            a(f"{MFMA} {c}, {ops}, {'0' if ks == 0 else c}")
            if ks + NBV - 1 < 28:
                for x in readsVB(ks + NBV - 1, z):
                    a(x)
            for _ in range(3):
                if fill: a(fill.pop(0))
        assert not fill

    a(f"s_cmp_eq_u32 s{sGRP}, 1\ns_cbranch_scc1 k1_vg1")
    passVB(False, ["s_nop 1"] + epi_v(ACC, 0) + epi_v(ACC + 16, 1) + epi_v(ACC + 32, 2))
    a(f"""
    s_mul_i32 s{sHOFF}, s{sTILE}, {TQ}
    s_lshl_b32 s{sT1}, s{sJ}, 9
    s_add_u32 s{sHOFF}, s{sHOFF}, s{sT1}
    s_add_u32 s{sHOFF}, s{sHOFF}, {VF + 192 * 16 - 14 * 512}
    s_add_u32 s{sHOFF2}, s{sHOFF}, 14336
    s_nop 7
    """)
    for x in epi_v(VB, 0):
        a(x)
    stamp(a, "p1_bend")
    a(f"""
    s_waitcnt vmcnt(0)
    s_barrier
    """)
    stamp(a, "p1_end")
    a(f"""
    s_cmp_lg_u32 s{sW}, 3
    s_cbranch_scc1 k1_noflag_v
    s_mov_b32 s{sT0}, {FQ}
    buffer_store_dword v{vNON}, v{vDG}, {sr4(S_WS)}, s{sT0} offen{SC}
    """)
    a(flag1(a, sFHA))
    a.label("k1_noflag_v")
    a("s_branch att_spin")
    a.label("k1_vg1")
    a("s_nop 7")
    for x in epi_v(ACC, 0) + epi_v(ACC + 16, 1) + epi_v(ACC + 32, 2):
        a(x)
    stamp(a, "p1_bend")
    a(f"""
    s_waitcnt vmcnt(0)
    s_barrier
    """)
    stamp(a, "p1_end")
    a(f"s_mov_b32 s{sHOFF2}, {OOB}\ns_cmp_eq_u32 s{sJ}, 14\ns_cbranch_scc1 gemm_role")
    passVB(True, [])
    t = WF
    a(f"""
    s_nop 7
    s_nop 3
    v_mul_f32 v{t}, s{sNL2E}, v{VB}
    v_exp_f32 v{t}, v{t}
    v_and_b32 v{t+1}, 31, v{vLane}
    v_add_f32 v{t}, 1.0, v{t}
    v_rcp_f32 v{t}, v{t}
    v_lshlrev_b32 v{t+1}, 2, v{t+1}
    s_lshl_b32 s{sT0}, s{sTILE}, 7
    s_add_u32 s{sT0}, s{sT0}, {GF}
    buffer_store_dword v{t}, v{t+1}, {sr4(S_WS)}, s{sT0} offen{SC}
    s_waitcnt vmcnt(0)
    """)
    a.label("gemm_role")
    for i in range(8):
        for x in wpref(i):
            a(x)
    a.label("gemm_role2")
    gen_gemm(a, wpref)
    gen_attention(a)
    a.label("k_end")
    a("s_endpgm")
    return a.text()


vAWr = 16
RB = [0, 98304]


def wtr_setup(a):
    a(f"""
    v_bfe_u32 v{vT0}, v{vLane}, 4, 1
    v_bfe_u32 v{vT1}, v{vLane}, 2, 2
    v_and_b32 v{vT2}, 2, v{vT1}
    v_xor_b32 v{vT2}, v{vT2}, v{vT0}
    s_and_b32 s{sT0}, s{sKQ}, 1
    s_lshl_b32 s{sT0}, s{sT0}, 1
    v_xor_b32 v{vT2}, s{sT0}, v{vT2}
    v_lshrrev_b32 v{vT3}, 5, v{vLane}
    v_lshl_add_u32 v{vT3}, v{vT3}, 2, v{vT1}
    v_lshlrev_b32 v{vT3}, 7, v{vT3}
    v_lshl_add_u32 v{vT3}, v{vT2}, 5, v{vT3}
    v_and_b32 v{vT2}, 3, v{vLane}
    v_lshl_add_u32 v{vT3}, v{vT2}, 3, v{vT3}
    v_add_u32 v{vAWr}, s{sM0}, v{vT3}
    v_xor_b32 v{vAWr+1}, 64, v{vAWr}
    v_add_u32 v{vAWr+2}, {RB[1]}, v{vAWr}
    v_add_u32 v{vAWr+3}, {RB[1]}, v{vAWr+1}
    v_mov_b32 v{vAWr+4}, v{vT3}
    """)


def wtr_reads(slot, dst):
    ra = ring_addr(slot)
    bi = max(i for i in range(2) if RB[i] <= ra)
    out = []
    for T in range(2):
        for q in range(2):
            out.append(f"ds_read_b64_tr_b16 {vr(dst+4*T+2*q, 2)}, v{vAWr+2*bi+T} offset:{ra - RB[bi] + q*1024}")
    return out


def bcast_poll(a, tag, leader, addrs, soff, vtmp, sleep, ldsoff, pre=None, lsleep=2, skip_if_set=False):
    if skip_if_set:
        a(f"""
        v_mov_b32 v{vT0}, {CNT + ldsoff}
        ds_read_b32 v{vT1}, v{vT0}
        s_waitcnt lgkmcnt(0)
        v_readfirstlane_b32 s{sT0}, v{vT1}
        s_cmp_eq_u32 s{sT0}, 1
        s_cbranch_scc1 {tag}_go
        """)
    a(f"s_cmp_lg_u32 s{sW}, {leader}\ns_cbranch_scc1 {tag}_lw")
    if pre:
        pre()
    poll(a, addrs, soff, vtmp, sleep)
    a.label(f"{tag}_ok")
    lds_set(a, ldsoff, 1, vT0)
    a(f"s_branch {tag}_go")
    a.label(f"{tag}_lw")
    lds_wait(a, ldsoff, vT0, "eq1", lsleep)
    a.label(f"{tag}_go")


def gen_gemm(a, wpref):
    ACC = 64
    ACT = 128
    WFB = [32, 40]
    vA0, vA1, vG0, vFl, vFl2, vMB = 21, 22, 23, 25, 24, 26
    sA0, sB0w, sFH2, sMO2, sDONE, sNEW, sH = 45, 46, 47, 48, 49, 50, 52
    DA = GDA
    stamp(a, "x_role")
    wtr_setup(a)
    srd(a, S_WO, P_WO, 448 * 448 * 2)
    srd(a, S_OUT, P_OUT, 2048 * 448 * 2)
    a(f"""
    s_lshr_b32 s{sMO2}, s{sKQ}, 1
    s_mul_i32 s{sT0}, s{sMO2}, {112 * 1024}
    v_add_u32 v{vA0}, s{sT0}, v{vL16}
    s_sub_u32 s{sT0}, {112 * 1024}, s{sT0}
    v_add_u32 v{vA1}, s{sT0}, v{vL16}
    s_lshr_b32 s{sT1}, s{sMT}, 1
    s_lshl_b32 s{sT1}, s{sT1}, 9
    s_add_u32 s{sT1}, s{sT1}, {FH}
    s_lshl_b32 s{sFH2}, s{sMT}, 10
    s_add_u32 s{sFH2}, s{sFH2}, {FHB}
    s_mul_i32 s{sA0}, s{sMT}, 224
    s_add_u32 s{sA0}, s{sA0}, s{sKQ}
    s_lshl_b32 s{sA0}, s{sA0}, 10
    s_add_u32 s{sA0}, s{sA0}, {HF}
    s_mul_i32 s{sB0w}, s{sKQ}, {112 * 896}
    s_lshl_b32 s{sT0}, s{sNT}, 7
    s_add_u32 s{sB0w}, s{sB0w}, s{sT0}
    v_and_b32 v{vFl}, 0x1ff, v{vFLA}
    v_and_b32 v{vFl2}, 0x3ff, v{vFLA}
    s_add_u32 s{sT2}, s{sM0}, {MERGE + MBOX}
    v_add_u32 v{vMB}, s{sT2}, v{vL16}
    s_sub_u32 s{sHOFF}, s{sHOFF2}, 2048
    s_cmp_lt_u32 s{sI32}, 28
    s_cbranch_scc1 gemm_has
    """)

    def hb_all():
        lds_wait(a, 24, vT0, "eq4", 1)
        a(f"""
        ds_read_b128 {vr(HBR+8, 4)}, v{vMB}
        ds_read_b128 {vr(HBR+12, 4)}, v{vMB} offset:1024
        """)

    def hb_st():
        return hb_stores() + [f"buffer_store_dwordx4 {vr(HBR+8+4*i, 4)}, v{vL16}, {sr4(S_WS)}, s{sHOFF} offen offset:{1024*i}{SC}" for i in range(2)]
    hb_all()
    a("s_waitcnt lgkmcnt(0)")
    for x in hb_st():
        a(x)
    a("s_waitcnt vmcnt(0)")
    a(flag1(a, sFHO))
    a("s_endpgm")
    a.label("gemm_has")
    a(f"""
    s_cmp_lg_u32 s{sW}, 4
    s_cbranch_scc1 g_noe
    buffer_load_dword v{vG0}, v{vFl}, {sr4(S_WS)}, s{sT1} offen{SC}
    s_waitcnt vmcnt(0)
    v_cmp_ne_u32 vcc, s{sNONCE}, v{vG0}
    s_nop 1
    s_cmp_eq_u64 vcc, 0
    s_cbranch_scc0 g_noe
    """)
    lds_set(a, 8, 1, vT0)
    a.label("g_noe")
    hb_all()
    vm = VM()
    for i in range(0, 8):
        vm.add(("w", i))

    def act_loads(i):
        r = ACT + 8 * (i % DA)
        a(f"""
        s_add_u32 s{sT0}, s{sA0}, {wk_off(i) * 1024}
        buffer_load_dwordx4 {vr(r, 4)}, v{vA0}, {sr4(S_WS)}, s{sT0} offen{SC}
        buffer_load_dwordx4 {vr(r+4, 4)}, v{vA1}, {sr4(S_WS)}, s{sT0} offen{SC}
        """)
        vm.add(("a", i)); vm.add(("a", i))

    def w_loads(i):
        if i < 28:
            for x in wpref(i):
                a(x)
        else:
            ra = ring_addr(wslot(i))
            off = (28 * ((i - 28) // 2) + 16 * ((i - 28) % 2)) * 896
            a(f"""
            s_add_u32 m0, s{sM0}, {ra}
            s_add_u32 s{sT0}, s{sB0w}, {off}
            buffer_load_dwordx4 v{vDW}, {sr4(S_WO)}, s{sT0} offen lds
            s_add_u32 m0, s{sM0}, {ra + 1024}
            s_add_u32 s{sT0}, s{sT0}, {8 * 896}
            buffer_load_dwordx4 v{vDW}, {sr4(S_WO)}, s{sT0} offen lds
            """)
        vm.add(("w", i)); vm.add(("w", i))

    na, nw = 0, 8
    a("s_waitcnt lgkmcnt(0)")
    for x in hb_st():
        a(x); vm.add(("hb",))
    bcast_poll(a, "gA", 4, [vFl], sT1, vG0, SLEEP_H, 8, skip_if_set=True)
    stamp(a, "x_go"); stamp(a, "x_loop")
    for i in range(GPRE):
        act_loads(na); na += 1
    a(f"s_waitcnt vmcnt({vm.wait({('w', 0)})})")
    for x in wtr_reads(0, WFB[0]):
        a(x)
    gotB = False
    for i in range(28):
        need = {("a", i)}
        if i + 1 < 28:
            need.add(("w", i + 1))
        a(f"s_waitcnt vmcnt({vm.wait(need)}) lgkmcnt(0)")
        if i + 1 < 28:
            for x in wtr_reads((i + 1) % 13, WFB[(i + 1) % 2]):
                a(x)
        for mt in range(2):
            for T in range(2):
                c = vr(ACC + 32 * mt + 16 * T, 16)
                a(f"{MFMA} {c}, {vr(WFB[i%2]+4*T, 4)}, {vr(ACT+8*(i%DA)+4*mt, 4)}, {'0' if i == 0 else c}")
        if i == 0:
            a(flag1(a, sFHO))
        if i == GB_AT:
            stamp(a, "g_b0")
            bcast_poll(a, "gB", 4, [vFl2], sFH2, vPOL, SLEEP_H, 12)
            stamp(a, "g_b1")
            gotB = True
            a(f"""
            v_and_b32 v{vT0}, 31, v{vLane}
            v_lshlrev_b32 v{vT0}, 2, v{vT0}
            s_lshl_b32 s{sT1}, s{sMT}, 1
            s_add_u32 s{sT1}, s{sT1}, s{sMO2}
            s_lshl_b32 s{sT1}, s{sT1}, 7
            s_add_u32 s{sT1}, s{sT1}, {GF}
            buffer_load_dword v{vG0}, v{vT0}, {sr4(S_WS)}, s{sT1} offen{SC}
            """)
            vm.add(("g",))
        for _ in range(2):
            if na < 28 and na <= i + DA and (na < 14 or gotB):
                act_loads(na); na += 1
            if nw < 36 and nw <= i + min(13, DA + 1) and (nw < 28 or wslot(nw) + 13 <= i):
                w_loads(nw); nw += 1
    assert na == 28
    while nw < 36:
        w_loads(nw); nw += 1
    stamp(a, "x_lend")
    XS = [0, 1, 6, 7]
    R, AA, SL = 128, ACC + 16, 128
    vX0, vX1, vC1, vOUT, vWa = 26, 27, 28, 30, 29

    def xaddr(reg, x):
        a(f"""
        s_xor_b32 s{sT0}, s{sKQ}, {x}
        s_lshl_b32 s{sT0}, s{sT0}, 11
        v_add_u32 v{reg}, s{sT0}, v{vL16}
        v_add_u32 v{reg+1}, {RB[1]}, v{reg}
        """)

    def xo(i):
        ra = ring_addr(XS[i // 2]) + (i % 2) * 1024
        return (vX0, ra) if ra < RB[1] else (vX1, ra - RB[1])

    def gsync(off, tag):
        a(f"""
        v_mov_b32 v{vC1}, {CNT + off}
        v_mov_b32 v{vT0}, 1
        s_waitcnt vmcnt(0) lgkmcnt(0)
        s_mov_b64 exec, 1
        ds_add_u32 v{vC1}, v{vT0}
        s_mov_b64 exec, -1
        """)
        a.label(tag)
        a(f"""
        ds_read_b32 v{vT0}, v{vC1}
        s_waitcnt lgkmcnt(0)
        v_readfirstlane_b32 s{sT0}, v{vT0}
        s_cmp_eq_u32 s{sT0}, 4
        s_cbranch_scc1 {tag}_d
        s_sleep 1
        s_branch {tag}
        """)
        a.label(f"{tag}_d")

    a("s_setprio 3")
    xaddr(vX0, 0)
    a("s_nop 7")
    for i in range(8):
        r_, o_ = xo(i)
        a(f"ds_write_b128 v{r_}, {vr(ACC+32+4*i, 4)} offset:{o_}")
    xaddr(vX0, 2)
    gsync(16, "gs1")
    for i in range(8):
        r_, o_ = xo(i)
        a(f"ds_read_b128 {vr(R+4*i, 4)}, v{r_} offset:{o_}")
    a("s_waitcnt lgkmcnt(0)")
    for i in range(16, 32):
        a(f"v_add_f32 v{ACC+i}, v{ACC+i}, v{R+i}")
    for i in range(4):
        r_, o_ = xo(i)
        a(f"ds_write_b128 v{r_}, {vr(ACC+16+4*i, 4)} offset:{o_}")
    for i in range(16):
        a(f"v_add_f32 v{ACC+i}, v{ACC+i}, v{R+i}")
    xaddr(vX0, 3)
    gsync(28, "gs2")
    for i in range(4):
        r_, o_ = xo(i)
        a(f"ds_read_b128 {vr(R+4*i, 4)}, v{r_} offset:{o_}")
    a(f"""
    v_sub_f32 v{vT2}, 1.0, v{vG0}
    s_lshl_b32 s{sT1}, s{sMT}, 1
    s_add_u32 s{sT1}, s{sT1}, s{sMO2}
    s_lshl_b32 s{sFH2}, s{sT1}, 9
    s_add_u32 s{sFH2}, s{sFH2}, {FO}
    s_lshl_b32 s{sA0}, s{sT1}, 15
    s_add_u32 s{sA0}, s{sA0}, {OF}
    s_mul_i32 s{sT2}, s{sT1}, {32 * 896}
    s_lshl_b32 s{sT1}, s{sNT}, 7
    s_add_u32 s{sT2}, s{sT2}, s{sT1}
    s_and_b32 s{sT1}, s{sKQ}, 1
    s_lshl_b32 s{sT1}, s{sT1}, 6
    s_add_u32 s{sT2}, s{sT2}, s{sT1}
    v_and_b32 v{vFl}, 31, v{vLane}
    v_mul_u32_u24 v{vOUT}, 896, v{vFl}
    v_lshrrev_b32 v{vT3}, 5, v{vLane}
    v_lshl_add_u32 v{vOUT}, v{vT3}, 4, v{vOUT}
    v_and_b32 v{vFl}, 0x1ff, v{vFLA}
    s_mov_b32 s{sDONE}, 0xffff0000
    s_mov_b32 s{sSPIN}, {SPIN_MAX}
    s_waitcnt lgkmcnt(0)
    """)
    for i in range(16):
        a(f"v_add_f32 v{ACC+i}, v{ACC+i}, v{R+i}")
    for i in range(16):
        a(f"v_mul_f32 v{ACC+i}, v{ACC+i}, v{vT2}")
        a(f"v_mov_b32 v{AA+i}, 0")
    a("s_setprio 1")
    stamp(a, "p3_poll")
    sNB = 53
    a(f"s_mov_b32 s{sNB}, 0\ns_mov_b32 s{sNEW}, 0")
    a.label("p3_poll")
    a(f"""
    buffer_load_dword v{vPOL}, v{vFl}, {sr4(S_WS)}, s{sFH2} offen{SC}
    s_cmp_eq_u32 s{sNB}, 0
    s_cbranch_scc1 p3_chk
    s_waitcnt vmcnt(1) lgkmcnt(0)
    """)
    a.label("p3_run")
    for k in range(8):
        o, w = SL + 16 * k, SL + 16 * k + 8
        a(f"""
        {MFMA} {vr(AA, 16)}, {vr(w, 4)}, {vr(o, 4)}, {vr(AA, 16)}
        {MFMA} {vr(AA, 16)}, {vr(w+4, 4)}, {vr(o+4, 4)}, {vr(AA, 16)}
        """)
        if k < 7:
            a(f"s_cmp_eq_u32 s{sNB}, {k+1}\ns_cbranch_scc1 p3_ran")
    a.label("p3_ran")
    a(f"""
    s_mov_b32 s{sNB}, 0
    s_cmp_eq_u32 s{sDONE}, -1
    s_cbranch_scc1 p3_fin
    """)
    a.label("p3_chk")
    a(f"""
    s_waitcnt vmcnt(0)
    v_cmp_eq_u32 vcc, s{sNONCE}, v{vPOL}
    s_sub_u32 s{sSPIN}, s{sSPIN}, 1
    s_cbranch_scc1 p3_fin
    s_andn2_b32 s{sNEW}, vcc_lo, s{sDONE}
    s_cbranch_scc1 p3_batch
    s_sleep {SLEEP_O}
    s_branch p3_poll
    """)
    a.label("p3_batch")
    for k in range(8):
        o, w = SL + 16 * k, SL + 16 * k + 8
        a(f"""
        s_ff1_i32_b32 s{sH}, s{sNEW}
        s_bitset0_b32 s{sNEW}, s{sH}
        s_bitset1_b32 s{sDONE}, s{sH}
        s_lshl_b32 s{sT0}, s{sH}, 11
        s_add_u32 s{sT0}, s{sT0}, s{sA0}
        buffer_load_dwordx4 {vr(o, 4)}, v{vL16}, {sr4(S_WS)}, s{sT0} offen{SC}
        buffer_load_dwordx4 {vr(o+4, 4)}, v{vL16}, {sr4(S_WS)}, s{sT0} offen offset:1024{SC}
        s_bitcmp1_b32 s{sH}, 1
        s_cselect_b32 s{sT0}, 0, {ring_addr(2)}
        s_and_b32 s{sT1}, s{sH}, 1
        s_lshl_b32 s{sT1}, s{sT1}, 14
        s_add_u32 s{sT0}, s{sT0}, s{sT1}
        s_lshr_b32 s{sT1}, s{sH}, 2
        s_lshl_b32 s{sT1}, s{sT1}, 11
        s_add_u32 s{sT0}, s{sT0}, s{sT1}
        v_add_u32 v{vWa}, s{sT0}, v{vAWr+4}
        ds_read_b64_tr_b16 {vr(w, 2)}, v{vWa}
        ds_read_b64_tr_b16 {vr(w+2, 2)}, v{vWa} offset:1024
        ds_read_b64_tr_b16 {vr(w+4, 2)}, v{vWa} offset:8192
        ds_read_b64_tr_b16 {vr(w+6, 2)}, v{vWa} offset:9216
        s_mov_b32 s{sNB}, {k+1}
        """)
        if k >= 2:
            a("s_waitcnt lgkmcnt(8)")
        if k < 7:
            a(f"s_cmp_eq_u32 s{sNEW}, 0\ns_cbranch_scc1 p3_iss")
    a.label("p3_iss")
    a(f"""
    s_cmp_lg_u32 s{sDONE}, -1
    s_cbranch_scc1 p3_poll
    s_waitcnt vmcnt(0) lgkmcnt(0)
    s_branch p3_run
    """)
    a.label("p3_fin")
    stamp(a, "p3_mfma")
    a("s_nop 7\ns_nop 1")
    t = 96
    for i in range(16):
        a(f"v_fma_f32 v{ACC+i}, v{AA+i}, v{vG0}, v{ACC+i}")
    for i in range(8):
        a(f"v_cvt_pk_bf16_f32 v{t+i}, v{ACC+2*i}, v{ACC+2*i+1}")
    a(f"""
    v_permlane32_swap_b32 v{t}, v{t+2}
    v_permlane32_swap_b32 v{t+1}, v{t+3}
    buffer_store_dwordx4 {vr(t, 4)}, v{vOUT}, {sr4(S_OUT)}, s{sT2} offen
    v_permlane32_swap_b32 v{t+4}, v{t+6}
    v_permlane32_swap_b32 v{t+5}, v{t+7}
    buffer_store_dwordx4 {vr(t+4, 4)}, v{vOUT}, {sr4(S_OUT)}, s{sT2} offen offset:32
    """)
    amp_end(a, 'g')
    if "dbgt" in OPT:
        a(f"""
        s_cmp_ge_u32 s2, 7
        s_cbranch_scc1 k_end
        s_cmp_lg_u32 s{sW}, 4
        s_cbranch_scc1 k_end
        s_memtime s[90:91]
        s_memrealtime s[92:93]
        s_waitcnt lgkmcnt(0)
        s_sub_u32 s90, s90, s86
        s_sub_u32 s92, s92, s88
        v_mov_b32 v4, s90
        v_mov_b32 v5, s92
        s_lshl_b32 s3, s2, 3
        s_add_u32 s3, s3, 8
        buffer_store_dwordx2 v[4:5], v{vF1}, {sr4(S_DBG)}, s3 offen
        """)
    stamp_flush(a)
    a("s_endpgm")


def gen_attention(a):
    Q, O, S, KV, P, TMP = AQ, AO, AS, AKV, AP, ATMP
    vG, vM, vONE = avG, avM, avONE
    a.label("att_spin")
    bcast_poll(a, "aq", 0, [vFLA, vFLA + 1], sFQB, vPOL, SLEEP_Q, 4, lsleep=1)
    stamp(a, "x_go")
    o1, o2, vm, flat = att_loads()

    def k_fix(buf):
        return [f"v_cndmask_b32 v{KV+16*buf+6}, v{KV+16*buf+6}, v{vONE}, s[{sME}:{sME+1}]",
                f"v_cndmask_b32 v{KV+16*buf}, v{KV+16*buf}, v{vONE}, s[{sMO}:{sMO+1}]"]

    zer = [f"v_mov_b32 v{O+k}, 0" for k in range(12, 64)]
    for x in flat(o1):
        a(x)
    step = len(zer) // len(o2) + 1
    zz = list(zer)
    for x in o2:
        for _ in range(step):
            if zz: a(zz.pop(0))
        for y in flat([x]):
            a(y)
    a("s_branch att_main2")
    a.label("att_main")
    for x in zer:
        a(x)
    a.label("att_main2")
    stamp(a, "x_main")
    a(f"""
    s_setprio 2
    s_lshl_b32 s{sT0}, s{sKQ}, 11
    s_add_u32 s{sT0}, s{sT0}, {MERGE}
    v_add_u32 v{TMP}, s{sT0}, v{vL16}
    v_subrev_u32 v{TMP+1}, {-MBOX}, v{TMP}
    ds_write_b128 v{TMP+1}, {vr(HBR, 4)}
    ds_write_b128 v{TMP+1}, {vr(HBR+4, 4)} offset:1024
    v_mov_b32 v{vT1}, 0
    s_and_b32 s{sT0}, s{sHEAD}, 1
    s_mov_b32 s{sME}, 0
    s_mov_b32 s{sMO+1}, 0
    s_sub_u32 s{sME+1}, s{sT0}, 1
    s_sub_u32 s{sMO}, 0, s{sT0}
    v_mov_b32 v{avV0}, v{vT2}
    v_mov_b32 v{avV1}, v{vT3}
    v_mov_b32 v{vONE}, 0x3f803f80
    v_mov_b32 v{TMP+1}, {CNT + 24}
    v_mov_b32 v{TMP+2}, 1
    s_waitcnt vmcnt({vm.wait({('q',), ('kv', 0, 1)})})
    v_cndmask_b32 v{Q}, v{Q}, v{vT1}, s[{sMO}:{sMO+1}]
    v_cndmask_b32 v{Q+1}, v{Q+1}, v{vT1}, s[{sMO}:{sMO+1}]
    v_cndmask_b32 v{Q+6}, v{Q+6}, v{vT1}, s[{sME}:{sME+1}]
    v_cndmask_b32 v{Q+7}, v{Q+7}, v{vT1}, s[{sME}:{sME+1}]
    {MFMA} {vr(S[1], 16)}, {vr(KV, 4)}, {vr(Q, 4)}, 0
    s_nop 0
    {MFMA} {vr(S[1], 16)}, {vr(KV+4, 4)}, {vr(Q+4, 4)}, {vr(S[1], 16)}
    """)
    stamp(a, "x_q")
    for x in k_fix(0):
        a(x)
    for k in range(12):
        a(f"v_mov_b32 v{O+k}, 0")
    s0 = S[1]
    a(f"""
    v_max3_f32 v{vM}, v{s0}, v{s0+1}, v{s0+2}
    v_max3_f32 v{vT0}, v{s0+3}, v{s0+4}, v{s0+5}
    v_max3_f32 v{vT2}, v{s0+6}, v{s0+7}, v{s0+8}
    v_max3_f32 v{vT3}, v{s0+9}, v{s0+10}, v{s0+11}
    v_max3_f32 v{vM}, v{vM}, v{s0+12}, v{s0+13}
    v_max3_f32 v{vT0}, v{vT0}, v{s0+14}, v{s0+15}
    v_max3_f32 v{vM}, v{vM}, v{vT2}, v{vT3}
    v_max_f32 v{vM}, v{vM}, v{vT0}
    v_mov_b32 v{vT0}, v{vM}
    s_nop 1
    v_permlane32_swap_b32 v{vM}, v{vT0}
    v_max_f32 v{vM}, v{vM}, v{vT0}
    v_sub_f32 v{vM}, 0, v{vM}
    v_cvt_pk_bf16_f32 v{vT0}, v{vM}, v{vM}
    v_lshlrev_b32 v{vT0}, 16, v{vT0}
    v_sub_f32 v{vT0}, v{vM}, v{vT0}
    v_cvt_pk_bf16_f32 v{vT0}, v{vM}, v{vT0}
    v_cndmask_b32 v{Q}, v{Q}, v{vT0}, s[{sMO}:{sMO+1}]
    v_cndmask_b32 v{Q+6}, v{Q+6}, v{vT0}, s[{sME}:{sME+1}]
    ds_write_b128 v{TMP}, {vr(Q, 4)}
    ds_write_b128 v{TMP}, {vr(Q+4, 4)} offset:1024
    {MFMA} {vr(S[0], 16)}, {vr(KV, 4)}, {vr(Q, 4)}, 0
    {MFMA} {vr(S[0], 16)}, {vr(KV+4, 4)}, {vr(Q+4, 4)}, {vr(S[0], 16)}
    s_waitcnt lgkmcnt(0)
    s_mov_b64 exec, 1
    ds_add_u32 v{TMP+1}, v{TMP+2}
    s_mov_b64 exec, -1
    """)
    for x in kv_adv()[:3]:
        a(x)
    for i in range(4):
        a(f"v_mov_b32 v{P+4+i}, 0\nv_mov_b32 v{KV+16*3+12+i}, v{vONE}\nv_mov_b32 v{KV+16*3+8+i}, v{vONE}")
    for i in range(1, 4):
        a(f"""
        s_add_u32 s{sT0}, s{sKQ}, {i}
        s_and_b32 s{sT0}, s{sT0}, 3
        s_lshl_b32 s{sT0}, s{sT0}, 11
        s_add_u32 s{sT0}, s{sT0}, {MERGE}
        v_add_u32 v{TMP+2+i}, s{sT0}, v{vL16}
        s_add_u32 s{sT0}, s{sKQ}, {i}
        s_and_b32 s{sT0}, s{sT0}, 3
        s_mul_i32 s{sT0}, s{sT0}, 12288
        s_add_u32 s{sT0}, s{sT0}, {MERGE + (i-1) * 4096}
        v_add_u32 v{TMP+8+i-1}, s{sT0}, v{vL16}
        """)
    a(f"""
    s_mul_i32 s{sT0}, s{sKQ}, 12288
    s_add_u32 s{sT0}, s{sT0}, {MERGE}
    v_add_u32 v{TMP+11}, s{sT0}, v{vL16}
    v_mov_b32 v{TMP+12}, {CNT}
    v_mov_b32 v{TMP+13}, 1
    """)
    stamp(a, "x_qs")
    a.label("att_qsync")
    a(f"""
    ds_read_b32 v{TMP+2}, v{TMP+1}
    s_waitcnt lgkmcnt(0)
    v_cmp_gt_u32 vcc, 4, v{TMP+2}
    s_cbranch_vccnz att_qsync
    """)
    for i in range(1, 4):
        a(f"ds_read_b128 {vr(Q+8*i, 4)}, v{TMP+2+i}\nds_read_b128 {vr(Q+8*i+4, 4)}, v{TMP+2+i} offset:1024")
    a("s_waitcnt lgkmcnt(0)")
    a(f"s_mov_b32 s{sIT}, 0")
    stamp(a, "x_loop")
    vMW, vMR, vMC, vM1 = TMP + 8, TMP + 11, TMP + 12, TMP + 13

    def phase(ph, cur, prev, nxt, s_pv2=[], s_qk1=[], s_qk2=[], s_pv1=[], tail=[]):
        sc, sn = S[ph % 2], S[1 - ph % 2]
        e = [f"v_exp_f32 v{sc+i}, v{sc+i}" for i in range(16)]
        c = [f"v_cvt_pk_bf16_f32 v{P+i}, v{sc+2*i}, v{sc+2*i+1}" for i in range(8)]
        pv2 = f"{MFMA} {vr(O+16*prev[1], 16)}, {vr(KV+16*prev[0]+12, 4)}, {vr(P+4, 4)}, {vr(O+16*prev[1], 16)}"
        pv1 = f"{MFMA} {vr(O+16*cur[1], 16)}, {vr(KV+16*cur[0]+8, 4)}, {vr(P, 4)}, {vr(O+16*cur[1], 16)}"
        qk1, qk2 = [], []
        if nxt:
            qk1 = [f"{MFMA} {vr(sn, 16)}, {vr(KV+16*nxt[0], 4)}, {vr(Q+8*nxt[1], 4)}, 0"]
            qk2 = [f"{MFMA} {vr(sn, 16)}, {vr(KV+16*nxt[0]+4, 4)}, {vr(Q+8*nxt[1]+4, 4)}, {vr(sn, 16)}"]
        seq = e[0:2] + [pv2] + s_pv2 + e[2:5] + qk1 + s_qk1 + e[5:9] + c[0:4] + qk2 + s_qk2 + e[9:12] + [pv1] + s_pv1 + e[12:16] + tail + c[4:8]
        for x in seq:
            a(x)

    a.label("att_loop")
    for tb in range(4):
        for q in range(4):
            adv = kv_adv()
            s_pv2, s_qk1, s_qk2, s_pv1, tail = [], [], [], [], []
            s_qk1 += kv_load((tb + 3) % 4, q, (avV0, avV1))
            if q == 0:
                s_pv2.append(adv[3])
                s_qk2.append("s_waitcnt vmcnt(9)")
                s_pv1.append(adv[4])
            if q == 1:
                if tb == 0:
                    s_pv2.append(f"s_cmp_eq_u32 s{sIT}, 3")
                    s_qk2.append(f"s_cselect_b32 s{sKB}, {OOB}, s{sKB}")
                    s_pv1.append(f"s_cselect_b32 s{sVB}, {OOB}, s{sVB}")
                if tb == 3:
                    s_pv1.append(f"s_add_u32 s{sIT}, s{sIT}, 1")
            if q == 2:
                s_pv2.append(f"s_mul_i32 s{sT0}, s{sTI}, {TQ}")
                s_qk2.append(f"s_add_u32 s{sKS}, s{sT0}, s{sKB}")
                s_pv1.append("s_waitcnt vmcnt(9)")
                if tb == 2:
                    s_pv1.append(f"s_cmp_eq_u32 s{sIT}, 3")
                tail = k_fix((tb + 1) % 4)
            if q == 3:
                s_qk2.append(f"s_add_u32 s{sVS}, s{sT0}, s{sVB}")
            phase(4 * tb + q, (tb, q), (tb if q > 0 else (tb - 1) % 4, (q - 1) % 4), (tb if q < 3 else (tb + 1) % 4, (q + 1) % 4),
                  s_pv2, s_qk1, s_qk2, s_pv1, tail)
            if tb == 2 and q == 2:
                a("s_cbranch_scc1 att_peel")
    a("s_branch att_loop")
    a.label("att_peel")

    def mw(i, lo, hi):
        return [f"ds_write_b128 v{vMW+i-1}, {vr(O+16*i+4*k, 4)} offset:{1024*k}" for k in range(lo, hi)]
    sa = L(f"""
    s_lshl_b32 s{sT2}, s{sQB}, 2
    s_add_u32 s{sT2}, s{sT2}, s{sKQ}
    s_lshl_b32 s{sT2}, s{sT2}, 4
    s_add_u32 s{sT2}, s{sT2}, s{sHEAD}
    s_lshl_b32 s{sKB}, s{sT2}, 11
    s_add_u32 s{sKB}, s{sKB}, {OF}
    s_lshr_b32 s{sVB}, s{sT2}, 2
    s_lshl_b32 s{sVB}, s{sVB}, 7
    s_and_b32 s{sT2}, s{sT2}, 3
    s_lshl_b32 s{sT2}, s{sT2}, 2
    s_add_u32 s{sVB}, s{sVB}, s{sT2}
    s_add_u32 s{sVB}, s{sVB}, {FO}
    s_mov_b32 s{sT0}, {f32bits(2.0**-10):#x}
    s_mov_b32 s{sT1}, {f32bits(2.0**100):#x}
    """)
    phase(11, (2, 3), (2, 2), (3, 1), sa[0:1], sa[1:2], sa[2:3], sa[3:4])
    phase(12, (3, 1), (2, 3), (3, 2), sa[4:5], sa[5:6], ["s_waitcnt vmcnt(0)"], sa[6:7])
    phase(13, (3, 2), (3, 1), (3, 3), sa[7:8], sa[8:9], mw(1, 0, 2), mw(1, 2, 4))
    phase(14, (3, 3), (3, 2), (3, 0), sa[9:10], sa[10:11], mw(2, 0, 2), mw(2, 2, 4))
    phase(15, (3, 0), (3, 3), None, sa[11:14], [], ["s_nop 0"] + mw(3, 0, 4), [],
          ["s_waitcnt lgkmcnt(0)", "s_mov_b64 exec, 1", f"ds_add_u32 v{vMC}, v{vM1}", "s_mov_b64 exec, -1"])
    a(f"""
    v_cmp_lt_u32 s[18:19], 31, v{vLane}
    s_nop 0
    {MFMA} {vr(O, 16)}, {vr(KV+16*3+12, 4)}, {vr(P+4, 4)}, {vr(O, 16)}
    """)
    stamp(a, "x_lend")
    a.label("att_msync")
    a(f"""
    ds_read_b32 v{vT2}, v{vMC}
    s_waitcnt lgkmcnt(0)
    v_cmp_gt_u32 vcc, 4, v{vT2}
    s_cbranch_vccnz att_msync
    """)
    stamp(a, "x_msync")
    for i in range(12):
        a(f"ds_read_b128 {vr(O+16+4*i, 4)}, v{vMR} offset:{1024*i}")
    a("s_mov_b64 vcc, s[18:19]")
    for k in range(3):
        a(f"s_waitcnt lgkmcnt({8 - 4*k})")
        for i in range(16):
            a(f"v_add_f32 v{O+i}, v{O+i}, v{O+16+16*k+i}")
    C = O + 16
    a(f"""
    v_mov_b32 v{vT0}, v{O+12}
    v_mov_b32 v{vT1}, v{O+12}
    """)
    for k in range(4):
        a(f"v_mul_f32 v{C+k}, 0, v{O+4*k}")
    a(f"v_permlane32_swap_b32 v{vT0}, v{vT1}")
    for i in range(1, 4):
        for k in range(4):
            a(f"v_fma_f32 v{C+k}, v{O+4*k+i}, 0, v{C+k}")
    a(f"""
    v_rcp_f32 v{vT2}, v{vT1}
    v_add_f32 v{C}, v{C}, v{C+1}
    v_add_f32 v{C+2}, v{C+2}, v{C+3}
    v_add_f32 v{C}, v{C}, v{vT1}
    v_add_f32 v{C}, v{C}, v{C+2}
    v_cmp_le_f32 s[28:29], s{sT0}, v{C}
    v_cmp_ge_f32 s[16:17], s{sT1}, v{C}
    s_and_b64 s[28:29], s[28:29], s[16:17]
    s_cmp_eq_u64 s[28:29], -1
    s_cbranch_scc0 att_fallback
    """)
    a.label("att_final")
    a(f"""
    v_mov_b32 v{vT0}, 0
    """)
    for hh in range(2):
        for i in range(8):
            a(f"v_mul_f32 v{O+8*hh+i}, v{O+8*hh+i}, v{vT2}")
        for i in range(4):
            a(f"v_cvt_pk_bf16_f32 v{TMP+4*hh+i}, v{O+8*hh+2*i}, v{O+8*hh+2*i+1}")
        if hh == 1:
            a(f"v_cndmask_b32 v{TMP+6}, v{TMP+6}, v{vT0}, vcc\nv_cndmask_b32 v{TMP+7}, v{TMP+7}, v{vT0}, vcc")
        a(f"buffer_store_dwordx4 {vr(TMP+4*hh, 4)}, v{vL16}, {sr4(S_WS)}, s{sKB} offen offset:{1024*hh}{SC}")
    stamp(a, "x_ost")
    a("s_waitcnt vmcnt(0)")
    a(flag1(a, sVB))
    stamp(a, "x_b2")
    amp_end(a, 'a')
    stamp_flush(a)
    a("s_endpgm")

    a.label("att_fallback")
    sc = S[0]
    K, V = KV, KV + 8
    vMo, vMn, vAl = TMP, TMP + 1, TMP + 2
    a(f"""
    v_mov_b32 v{vT0}, 0
    v_mov_b32 v{vMo}, 0xff800000
    v_cndmask_b32 v{Q}, v{Q}, v{vT0}, s[{sMO}:{sMO+1}]
    v_cndmask_b32 v{Q+6}, v{Q+6}, v{vT0}, s[{sME}:{sME+1}]
    s_mov_b32 s{sIT}, 0
    s_lshl_b32 s{sKS}, s{sP0}, 9
    s_add_u32 s{sKS}, s{sKS}, {KF}
    s_mul_i32 s{sVS}, s{sHEAD}, 448
    s_add_u32 s{sVS}, s{sVS}, {VF}
    s_waitcnt vmcnt(0)
    """)
    for i in range(16):
        a(f"v_mov_b32 v{O+i}, 0")
    a.label("att_fb_loop")
    a(f"""
    buffer_load_dwordx4 {vr(K, 4)}, v{vL16}, {sr4(S_WS)}, s{sKS} offen{SC}
    buffer_load_dwordx4 {vr(K+4, 4)}, v{vL16}, {sr4(S_WS)}, s{sKS} offen offset:1024{SC}
    s_mov_b64 exec, s[{sVM}:{sVM+1}]
    buffer_load_dwordx4 {vr(V, 4)}, v{avV0}, {sr4(S_WS)}, s{sVS} offen{SC}
    buffer_load_dwordx4 {vr(V+4, 4)}, v{avV1}, {sr4(S_WS)}, s{sVS} offen{SC}
    s_mov_b64 exec, -1
    s_waitcnt vmcnt(0)
    {MFMA} {vr(sc, 16)}, {vr(K, 4)}, {vr(Q, 4)}, 0
    {MFMA} {vr(sc, 16)}, {vr(K+4, 4)}, {vr(Q+4, 4)}, {vr(sc, 16)}
    s_nop 15
    v_max3_f32 v{vMn}, v{vMo}, v{sc}, v{sc+1}
    """)
    for i in range(2, 16, 2):
        a(f"v_max3_f32 v{vMn}, v{vMn}, v{sc+i}, v{sc+i+1}")
    a(f"""
    v_mov_b32 v{vT0}, v{vMn}
    s_nop 1
    v_permlane32_swap_b32 v{vMn}, v{vT0}
    v_max_f32 v{vMn}, v{vMn}, v{vT0}
    v_sub_f32 v{vAl}, v{vMo}, v{vMn}
    v_exp_f32 v{vAl}, v{vAl}
    v_mov_b32 v{vMo}, v{vMn}
    """)
    for i in range(16):
        a(f"v_sub_f32 v{sc+i}, v{sc+i}, v{vMn}")
    for i in range(16):
        a(f"v_exp_f32 v{sc+i}, v{sc+i}")
    for i in range(16):
        a(f"v_mul_f32 v{O+i}, v{O+i}, v{vAl}")
    for i in range(8):
        a(f"v_cvt_pk_bf16_f32 v{P+i}, v{sc+2*i}, v{sc+2*i+1}")
    a(f"""
    s_nop 1
    {MFMA} {vr(O, 16)}, {vr(V, 4)}, {vr(P, 4)}, {vr(O, 16)}
    {MFMA} {vr(O, 16)}, {vr(V+4, 4)}, {vr(P+4, 4)}, {vr(O, 16)}
    s_add_u32 s{sKS}, s{sKS}, {TQ}
    s_add_u32 s{sVS}, s{sVS}, {TQ}
    s_add_u32 s{sIT}, s{sIT}, 1
    s_cmp_lt_u32 s{sIT}, 64
    s_cbranch_scc1 att_fb_loop
    s_nop 15
    v_mov_b32 v{vT0}, v{O+12}
    v_mov_b32 v{vT1}, v{O+12}
    s_nop 1
    v_permlane32_swap_b32 v{vT0}, v{vT1}
    v_rcp_f32 v{vT2}, v{vT1}
    s_nop 0
    s_branch att_final
    """)


def build():
    ref = open(f"cdna_kernels/{NAME}.s.ref").read().split("\n")
    hdr = [l for l in ref if l.startswith(";") and "@launch" not in l and "Override launch" not in l and "grid=ceil" not in l]
    body = gen()
    out = "\n".join(hdr) + "\n"
    out += f"; @launch grid=(256,1,1) block=(512,1,1) lds={LDS_BYTES}\n"
    out += '.amdgcn_target "amdgcn-amd-amdhsa--gfx950"\n.text\n'
    out += f".globl {KNAME}\n.p2align 8\n.type {KNAME},@function\n{KNAME}:\n"
    out += body
    out += f""".section .rodata,"a"
.p2align 6
.amdhsa_kernel {KNAME}
  .amdhsa_next_free_vgpr 256
  .amdhsa_next_free_sgpr 102
  .amdhsa_accum_offset 256
  .amdhsa_group_segment_fixed_size 0
  .amdhsa_kernarg_size 88
  .amdhsa_user_sgpr_count 2
  .amdhsa_user_sgpr_kernarg_segment_ptr 1
  .amdhsa_system_sgpr_workgroup_id_x 1
.end_amdhsa_kernel
"""
    return out


if __name__ == "__main__":
    path = sys.argv[1]
    open(path, "w").write(build())
    print("wrote", path)
```

```python
import math, struct, sys, os

NAME = "gated_mix__softmax_full_mha__swiglu_ffn__prompt"
KNAME = NAME + "_kernel"
INSTR = int(os.environ.get("INSTR", "0"))
OPT = os.environ.get("OPT", "nopf")

QF = 0
KF = 2 << 20
VF = 4 << 20
TQ = 28672
HF = 6 << 20
OF = 14 << 20
GF = 16 << 20
FQ = (16 << 20) + 0x10000
FH = (16 << 20) + 0x20000
FHB = (16 << 20) + 0x28000
MBOX = 40960 - 49152
FO = (16 << 20) + 0x40000
TSF = 24 << 20
WS_BYTES = 32 << 20
OOB = 0x40000000
SLEEP_Q = int(os.environ.get('SLQ', '6'))
SLEEP_H = int(os.environ.get('SLH', '8'))
SLEEP_O = int(os.environ.get('SLO', '2'))
LOG2E = math.log2(math.e)
MFMA = "v_mfma_f32_32x32x16_bf16"
SC = " sc1"
SLOT = 40960
LDS_BYTES = 4 * SLOT
MERGE = 49152
CNT = 155648
SPIN_MAX = 1 << int(os.environ.get('SPINLOG', '18'))


def ring_addr(s):
    if s <= 6:
        return 98304 + s * 8192
    if s == 7:
        return 32768
    if s <= 11:
        return (s - 8) * 8192
    return 40960


def wslot(i):
    return i % 13 if i < 28 else [2, 3, 4, 5, 8, 9, 10, 11][i - 28]


def f32bits(x):
    return struct.unpack("<I", struct.pack("<f", x))[0]


class Asm:
    def __init__(self):
        self.lines = []

    def __call__(self, s):
        for ln in s.strip("\n").split("\n"):
            ln = ln.strip()
            if not ln:
                continue
            self.lines.append(ln if ln.endswith(":") else "    " + ln)

    def label(self, l):
        self.lines.append(l + ":")

    def text(self):
        return "\n".join(self.lines) + "\n"


def vr(base, n):
    return f"v[{base}:{base + n - 1}]"


def sr4(b):
    return f"s[{b}:{b+3}]"


def srd(a, sd, sb, nbytes):
    a(f"""
    s_mov_b32 s{sd}, s{sb}
    s_mov_b32 s{sd+1}, s{sb+1}
    s_mov_b32 s{sd+2}, {nbytes}
    s_mov_b32 s{sd+3}, 0x00020000
    """)


def L(s):
    return [l.strip() for l in s.strip("\n").split("\n") if l.strip()]


HA_ST = int(os.environ.get('HA_ST', '13'))
EARLY_P = int(os.environ.get('EARLY_P', '24'))
QKB = int(os.environ.get('QKB', '11'))
FPER = int(os.environ.get('FPER', '4'))
PF2_ST = int(os.environ.get('PF2_ST', '0'))
PF3_ST = int(os.environ.get('PF3_ST', '2'))
GDA = int(os.environ.get('GDA', '10'))
AROT = int(os.environ.get('AROT', '15'))
WP_ST = int(os.environ.get('WP_ST', '5'))
FA_AT = int(os.environ.get('FA_AT', '24'))
PFPOS = int(os.environ.get('PFPOS', '0'))
PF_EARLY = int(os.environ.get('PF_EARLY', '0'))
PFROW = int(os.environ.get('PFROW', '128'))
NQ = (448 - PFROW) * 2688 // 1024
NG = (448 - PFROW) * 3584 // 2048
assert NQ + 2 * NG <= 2048
TLB_STR = int(os.environ.get('TLB_STR', str(1 << 20)))
TLB_WG = int(os.environ.get('TLB_WG', '0'))
GPRE = int(os.environ.get('GPRE', '4'))
GB_AT = int(os.environ.get('GB_AT', '7'))

S_X, S_B0, S_G, S_U, S_WS, S_TMP, S_WD, S_DBG = 4, 8, 12, 16, 20, 24, 28, 32
S_WO, S_OUT = 8, 12
sMI, sJ, sW, sR, sGRP = 36, 37, 38, 39, 40
sKQ = 39
sT0, sT1, sT2 = 42, 43, 44
sMX, sMB, sSO = 45, 46, 47
sSC, sTILE, sHOFF, sHOFF2, sQKO = 48, 49, 50, 51, 52
sWB, sM0, sFHO, sFQB, sP0, sOK = 53, 54, 55, 56, 57, 58
sNONCE, sNL2E, sC8, sI32, sSPIN = 59, 60, 61, 62, 63
P_X, P_WQKV, P_WO, P_WG, P_WU, P_WD, P_GW, P_OUT, P_DBG, P_WS = 64, 66, 68, 72, 74, 76, 78, 80, 82, 84
ST0 = 86
sHEAD, sQB, sMT, sNT = 70, 71, 41, 3
sFHA = 65
vLane, vL16 = 1, 2
vT0, vT1, vT2, vT3 = 3, 4, 5, 6
STAMPS = os.environ.get("STAMPS", "").split(",")[:6]


AMP = os.environ.get("AMP", "")


def stamp(a, name):
    if AMP and name == "start": a("s_memrealtime s[86:87]")
    if AMP and name == AMP: a("s_memrealtime s[88:89]")
    if INSTR and (name == "start" or name in STAMPS):
        idx = 0 if name == "start" else 1 + STAMPS.index(name)
        a(f"s_memtime s[{ST0+2*idx}:{ST0+2*idx+1}]")
    if INSTR and "R" + name in STAMPS:
        idx = 1 + STAMPS.index("R" + name)
        a(f"s_memrealtime s[{ST0+2*idx}:{ST0+2*idx+1}]")


def amp_end(a, tag):
    if not AMP: return
    stamp(a, "end")
    a(f"""
    s_cmp_lg_u32 s2, {os.environ.get("AMPG", "40")}
    s_cbranch_scc1 k_end
    s_cmp_lg_u32 s{sW}, {os.environ.get("AMPW", "4")}
    s_cbranch_scc1 k_end
    s_memrealtime s[90:91]
    s_waitcnt lgkmcnt(0)
    s_sub_u32 s88, s88, s86
    s_mul_i32 s88, s88, {os.environ.get('AMPK', '1')}
    """)
    a.label(f"amp_spin{tag}")
    a(f"""
    s_memrealtime s[92:93]
    s_waitcnt lgkmcnt(0)
    s_sub_u32 s92, s92, s90
    s_cmp_lt_u32 s92, s88
    s_cbranch_scc1 amp_spin{tag}
    """)


def stamp_flush(a, vtmp=3):
    if not INSTR:
        return
    a(f"""
    s_memtime s[4:5]
    s_memrealtime s[6:7]
    s_lshl_b32 s3, s2, 3
    s_add_u32 s3, s3, s{sW}
    s_lshl_b32 s3, s3, 7
    s_add_u32 s3, s3, {TSF}
    v_mov_b32 v{vtmp+1}, 0
    s_waitcnt lgkmcnt(0)
    """)
    regs = [ST0 + 2 * i for i in range(8)] + [4, 6]
    for i, r in enumerate(regs):
        a(f"""
        v_mov_b32 v{vtmp}, s{r}
        buffer_store_dword v{vtmp}, v{vtmp+1}, {sr4(S_WS)}, s3 offen offset:{4*i}
        s_nop 1
        """)


def flag_store(a, soff_reg, vtmp):
    a(f"""
    v_mov_b32 v{vtmp}, s{sNONCE}
    v_mov_b32 v{vtmp+1}, 0
    s_mov_b64 exec, 1
    buffer_store_dword v{vtmp}, v{vtmp+1}, {sr4(S_WS)}, s{soff_reg} offen{SC}
    s_mov_b64 exec, -1
    """)


_uid = [0]


def poll(a, addrs, soff, vtmp, sleep):
    _uid[0] += 1
    u = _uid[0]
    a(f"s_mov_b32 s{sSPIN}, {SPIN_MAX}")
    a.label(f"poll_ld{u}")
    for i, va in enumerate(addrs):
        a(f"buffer_load_dword v{vtmp+i}, v{va}, {sr4(S_WS)}, s{soff} offen{SC}")
    a("s_waitcnt vmcnt(0)")
    poll_cmp(a, len(addrs), vtmp)
    a(f"""
    s_sub_u32 s{sSPIN}, s{sSPIN}, 1
    s_cbranch_scc1 poll_done{u}
    s_cmp_eq_u64 vcc, 0
    s_cbranch_scc1 poll_done{u}
    s_sleep {sleep}
    s_branch poll_ld{u}
    """)
    a.label(f"poll_done{u}")


def poll_cmp(a, n, vtmp):
    if n == 1:
        a(f"v_cmp_ne_u32 vcc, s{sNONCE}, v{vtmp}")
    else:
        a(f"""
        v_xor_b32 v{vtmp}, s{sNONCE}, v{vtmp}
        v_xor_b32 v{vtmp+1}, s{sNONCE}, v{vtmp+1}
        v_or_b32 v{vtmp}, v{vtmp}, v{vtmp+1}
        v_cmp_ne_u32 vcc, 0, v{vtmp}
        """)


def lds_set(a, off, val, vtmp):
    a(f"""
    v_mov_b32 v{vtmp}, {CNT + off}
    v_mov_b32 v{vtmp+1}, {val}
    ds_write_b32 v{vtmp}, v{vtmp+1}
    """)


def lds_wait(a, off, vtmp, cond, sleep=1):
    _uid[0] += 1
    u = _uid[0]
    a(f"v_mov_b32 v{vtmp}, {CNT + off}")
    a.label(f"lw{u}")
    a(f"""
    ds_read_b32 v{vtmp+1}, v{vtmp}
    s_waitcnt lgkmcnt(0)
    v_readfirstlane_b32 s{sT0}, v{vtmp+1}
    """)
    a(f"s_cmp_lg_u32 s{sT0}, 0" if cond == "ne0" else f"s_cmp_eq_u32 s{sT0}, {cond[2:]}")
    a(f"""
    s_cbranch_scc1 lwd{u}
    s_sleep {sleep}
    s_branch lw{u}
    """)
    a.label(f"lwd{u}")


class VM:
    def __init__(self):
        self.q = []

    def add(self, tag):
        self.q.append(tag)

    def wait(self, tags, counts=None):
        idx = max([i for i, t in enumerate(self.q) if t in tags], default=-1)
        for t in tags:
            assert t in self.q, (t, self.q)
            if counts:
                assert self.q.count(t) == counts(t), (t, self.q)
        n = len(self.q) - 1 - idx
        assert n <= 63
        return n

    def copy(self):
        v = VM(); v.q = list(self.q); return v


vFLA, vPOL, vFQO, vF1, vNON = 7, 9, 11, 12, 13
vDW = 31


def flag1(a, soff):
    return f"buffer_store_dword v{vNON}, v{vF1}, {sr4(S_WS)}, s{soff} offen{SC}"


AQ, AO, AS, AKV, AP, ATMP = 16, 48, [112, 128], 144, 208, 224
avG, avM, avONE = 14, 15, 216
sME, sMO = 24, 26
sKB, sVB, sTI, sKS, sVS, sIT = 45, 46, 47, 48, 52, 49


avV0, avV1 = 217, 218
HBR = 240


def hb_stores():
    return [f"buffer_store_dwordx4 {vr(HBR+4*i, 4)}, v{vL16}, {sr4(S_WS)}, s{sHOFF2} offen offset:{1024*i}{SC}" for i in range(2)]

sVM = 30


def kv_adv():
    return [f"s_mul_i32 s{sVS}, s{sTI}, {TQ}", f"s_add_u32 s{sKS}, s{sVS}, s{sKB}",
            f"s_add_u32 s{sVS}, s{sVS}, s{sVB}",
            f"s_add_u32 s{sTI}, s{sTI}, 1", f"s_and_b32 s{sTI}, s{sTI}, 15"]


def kv_load(buf, part, vv=(None, None)):
    if part < 2:
        return [f"buffer_load_dwordx4 {vr(AKV+16*buf+4*part, 4)}, v{vL16}, {sr4(S_WS)}, s{sKS} offen offset:{1024*part}{SC}"]
    return [f"s_mov_b64 exec, s[{sVM}:{sVM+1}]",
            f"buffer_load_dwordx4 {vr(AKV+16*buf+4*part, 4)}, v{vv[part-2]}, {sr4(S_WS)}, s{sVS} offen{SC}",
            "s_mov_b64 exec, -1"]


def att_loads():
    vm = VM()
    o1 = L(f"""
    s_lshl_b32 s{sT1}, s{sP0}, 9
    s_lshl_b32 s{sT2}, s{sQB}, 2
    s_add_u32 s{sT2}, s{sT2}, s{sKQ}
    s_mul_i32 s{sT0}, s{sT2}, {TQ}
    s_add_u32 s{sT0}, s{sT0}, s{sT1}
    buffer_load_dwordx4 {vr(AQ, 4)}, v{vL16}, {sr4(S_WS)}, s{sT0} offen{SC}
    buffer_load_dwordx4 {vr(AQ+4, 4)}, v{vL16}, {sr4(S_WS)}, s{sT0} offen offset:1024{SC}
    s_mul_i32 s{sVB}, s{sKQ}, {16 * TQ}
    s_add_u32 s{sKB}, s{sVB}, s{sT1}
    s_add_u32 s{sKB}, s{sKB}, {KF}
    s_mul_i32 s{sT0}, s{sHEAD}, 448
    s_add_u32 s{sVB}, s{sVB}, s{sT0}
    s_add_u32 s{sVB}, s{sVB}, {VF}
    s_and_b32 s{sTI}, s{sQB}, {AROT}
    s_mov_b32 s{sVM}, 0x0fffffff
    s_mov_b32 s{sVM+1}, 0x0fffffff
    v_lshrrev_b32 v{vT2}, 5, v{vLane}
    v_mul_u32_u24 v{vT2}, {7168 - 512}, v{vT2}
    v_add_u32 v{vT2}, v{vT2}, v{vL16}
    v_add_u32 v{vT3}, 14336, v{vT2}
    """)
    vm.add(("q",)); vm.add(("q",))
    o2 = []
    for t in range(3):
        o = o1 if t == 0 else o2
        o += kv_adv()
        for p in range(4):
            if p == 2:
                o += [f"v_mov_b32 v{AKV+16*t+8+i}, 0x3f803f80" for i in range(8)]
            o.append(kv_load(t, p, (vT2, vT3)))
            vm.add(("kv", t, p))
    flat = lambda o: [y for x in o for y in (x if isinstance(x, list) else [x])]
    return o1, o2, vm, flat


def wk_off(i):
    return 8 * (i % 14) + 4 * (i // 14)


def gen():
    a = Asm()
    vDX0, vDX1, vDB0, vDG, vDU = 7, 8, 9, 10, 11
    vAX = 14
    vAW = 18
    vST = 22
    vN, vR4, vC, vRow = 26, 27, 28, 29
    X, ACC, WF = 32, 144, 224
    PFR, vPFL, sPFI = ACC + 60, 30, 58

    stamp(a, "start")
    if INSTR: a("s_memrealtime s[100:101]")
    if "dbgt" in OPT: a("s_memtime s[86:87]\ns_memrealtime s[88:89]")
    a(f"""
    s_cmp_ge_u32 s2, 256
    s_cbranch_scc1 k_end
    """)
    if os.environ.get("DELAY"):
        a(f"""
        s_cmp_lg_u32 s2, {os.environ["DELAY"]}
        s_cbranch_scc1 k_nodelay
        s_mov_b32 s3, 12
        """)
        a.label("k_delay")
        a("s_sleep 100\ns_sub_u32 s3, s3, 1\ns_cmp_lg_u32 s3, 0\ns_cbranch_scc1 k_delay")
        a.label("k_nodelay")
    a(f"""
    s_load_dwordx16 s[64:79], s[0:1], 0
    s_load_dwordx4 s[80:83], s[0:1], 64
    s_load_dwordx2 s[84:85], s[0:1], 80
    v_and_b32 v{vLane}, 63, v0
    v_lshrrev_b32 v{vT0}, 6, v0
    s_and_b32 s{sC8}, s2, 7
    s_lshr_b32 s{sI32}, s2, 3
    v_readfirstlane_b32 s{sW}, v{vT0}
    s_lshr_b32 s{sT1}, s{sC8}, 1
    s_mul_i32 s{sT0}, s{sT1}, 28
    s_sub_u32 s{sT0}, s{sT0}, 4
    s_lshl_b32 s{sT1}, s{sT1}, 2
    s_add_u32 s{sT1}, s{sT1}, 112
    s_cmp_lt_u32 s{sI32}, 4
    s_cselect_b32 s{sT0}, s{sT1}, s{sT0}
    s_add_u32 s{sT0}, s{sT0}, s{sI32}
    s_lshr_b32 s{sJ}, s{sT0}, 3
    s_and_b32 s{sT0}, s{sT0}, 7
    s_and_b32 s{sMI}, s{sC8}, 1
    s_lshl_b32 s{sMI}, s{sMI}, 3
    s_add_u32 s{sMI}, s{sMI}, s{sT0}
    v_lshrrev_b32 v{vT0}, 3, v{vLane}
    v_lshrrev_b32 v{vT1}, 4, v{vLane}
    v_and_b32 v{vT2}, 7, v{vLane}
    v_xor_b32 v{vT3}, v{vT2}, v{vT1}
    s_lshl_b32 s{sT0}, s{sMI}, 7
    s_lshl_b32 s{sT1}, s{sW}, 4
    s_add_u32 s{sT0}, s{sT0}, s{sT1}
    v_add_u32 v{vDX0}, s{sT0}, v{vT0}
    v_mul_u32_u24 v{vDX0}, 896, v{vDX0}
    v_lshl_add_u32 v{vDX0}, v{vT3}, 4, v{vDX0}
    v_xor_b32 v{vDX1}, 64, v{vDX0}
    v_add_u32 v{vDX1}, 7168, v{vDX1}
    v_and_b32 v{vT3}, 1, v{vT1}
    v_lshlrev_b32 v{vT3}, 2, v{vT3}
    v_xor_b32 v{vT3}, v{vT3}, v{vT2}
    v_lshlrev_b32 v{vT3}, 4, v{vT3}
    v_mul_u32_u24 v{vDW}, 896, v{vT0}
    v_add_u32 v{vDW}, v{vDW}, v{vT3}
    s_lshl_b32 s{sT0}, s{sW}, 3
    v_add_u32 v{vT0}, s{sT0}, v{vT0}
    v_mul_u32_u24 v{vDB0}, 2688, v{vT0}
    v_add_u32 v{vDB0}, v{vDB0}, v{vT3}
    s_lshl_b32 s{sMX}, s{sW}, 11
    s_lshl_b32 s{sMB}, s{sW}, 10
    s_add_u32 s{sMB}, s{sMB}, 16384
    v_lshlrev_b32 v{vL16}, 4, v{vLane}
    s_mov_b32 s{S_X+2}, {2048 * 448 * 2}
    s_mov_b32 s{S_X+3}, 0x00020000
    s_mov_b32 s{S_B0+2}, {448 * 1344 * 2}
    s_mov_b32 s{S_B0+3}, 0x00020000
    s_mov_b32 s{S_G+3}, 0x00020000
    s_mov_b32 s{S_U+3}, 0x00020000
    s_cmp_ge_u32 s{sJ}, 14
    s_cbranch_scc1 k1_v
    """)

    vm = None

    def emit_group(g):
        for l in g[0]:
            a(l)
        vm.add(g[1])

    def dma(m0base, m0off, vaddr, srdb, soff):
        return [f"s_add_u32 m0, s{m0base}, {m0off & 0xffffffff}", f"s_mov_b32 s{sSO}, {soff}",
                f"buffer_load_dwordx4 v{vaddr}, {sr4(srdb)}, s{sSO} offen lds"]

    def pf1(tg):
        if "nopf" in OPT.split(","):
            return
        a(f"""
        s_lshl_b32 s{sPFI}, s2, 3
        s_add_u32 s{sPFI}, s{sPFI}, s{sW}
        s_lshl_b32 s{sT0}, s{sPFI}, 10
        s_mov_b32 s{S_TMP+3}, 0x00020000
        v_lshrrev_b32 v{vPFL}, 3, v{vLane}
        v_lshlrev_b32 v{vPFL}, 7, v{vPFL}
        v_add_u32 v{vPFL}, v{vPFL}, v{vL16}
        """)
        if "nox" not in OPT:
            a(f"buffer_load_dwordx4 {vr(PFR, 4)}, v{vL16}, {sr4(S_X)}, s{sT0} offen")
            vm.add(("PF",))
        if "now1" in OPT:
            return
        a(f"""
        s_cmp_lt_u32 s{sPFI}, {NQ}
        s_cbranch_scc1 k_pf_q_{tg}
        s_cmp_lt_u32 s{sPFI}, {NQ + NG}
        s_cselect_b32 s{S_TMP}, s{P_WG}, s{P_WU}
        s_cselect_b32 s{S_TMP+1}, s{P_WG+1}, s{P_WU+1}
        s_cselect_b32 s{sT0}, 0, {NG}
        s_mov_b32 s{S_TMP+2}, {448 * 1792 * 2}
        s_sub_u32 s{sT0}, s{sPFI}, s{sT0}
        s_lshl_b32 s{sT0}, s{sT0}, 11
        s_add_u32 s{sT0}, s{sT0}, {(PFROW * 3584 - NQ * 2048) & 0xffffffff}
        buffer_load_dwordx4 {vr(PFR+4, 4)}, v{vPFL}, {sr4(S_TMP)}, s{sT0} offen
        s_branch k_pf_d_{tg}
        """)
        a.label(f"k_pf_q_{tg}")
        a(f"""
        s_add_u32 s{sT0}, s{sT0}, {PFROW * 2688}
        buffer_load_dwordx4 {vr(PFR+4, 4)}, v{vL16}, {sr4(S_B0)}, s{sT0} offen
        """)
        a.label(f"k_pf_d_{tg}")
        vm.add(("PF",))

    def common_setup2(tg):
        srd(a, S_WS, P_WS, WS_BYTES)
        srd(a, S_DBG, P_DBG, 256)
        srd(a, S_WD, P_WD, 1792 * 448 * 2)
        a(f"""
        s_or_b32 s{sT0}, s2, s{sW}
        s_cmp_lg_u32 s{sT0}, 0
        s_cbranch_scc1 k_nononce_{tg}
        s_memrealtime s[{sSC}:{sSC+1}]
        v_mov_b32 v{vT1}, 0
        s_waitcnt lgkmcnt(0)
        s_or_b32 s{sT0}, s{sSC}, 0x80000000
        v_mov_b32 v{vT0}, s{sT0}
        s_mov_b64 exec, 1
        buffer_store_dword v{vT0}, v{vT1}, {sr4(S_DBG)}, 0 offen{SC}
        s_mov_b64 exec, -1
        """)
        a.label(f"k_nononce_{tg}")
        if not PFPOS:
            pf1(tg)
        if PF_EARLY:
            for g in (([] if 'no2' in OPT else [pf2()]) + ([pf3()] if PF_EARLY == 2 else [])):
                emit_group(g)
        if "tlb" in OPT:
            a(f"""
            s_cmp_lg_u32 s{sW}, 1
            s_cbranch_scc1 k_notlb_{tg}
            s_mov_b32 s{sT0}, {TLB_STR}
            v_mul_lo_u32 v{vT0}, v{vLane}, s{sT0}
            s_mul_i32 s{sT1}, s{sI32}, {TLB_WG}
            s_mov_b32 s{S_TMP}, s{P_WS}
            s_mov_b32 s{S_TMP+1}, s{P_WS+1}
            s_mov_b32 s{S_TMP+2}, {(16 << 20) + 0x50000}
            s_mov_b32 s{S_TMP+3}, 0x00020000
            buffer_load_dword v{ACC+76}, v{vT0}, {sr4(S_TMP)}, s{sT1} offen
            s_mov_b32 s{S_TMP}, s{P_OUT}
            s_mov_b32 s{S_TMP+1}, s{P_OUT+1}
            s_mov_b32 s{S_TMP+2}, {2048 * 448 * 2}
            buffer_load_dword v{ACC+77}, v{vT0}, {sr4(S_TMP)}, s{sT1} offen
            """)
            a.label(f"k_notlb_{tg}")
        if "nocp" not in OPT:
            a(f"""
            s_cmp_ge_u32 s{sI32}, 5
            s_cbranch_scc1 k_nocp_{tg}
            s_lshl_b32 s{sT0}, s{sI32}, 3
            s_add_u32 s{sT0}, s{sT0}, s{sW}
            s_lshl_b32 s{sT0}, s{sT0}, 10
            v_add_u32 v{vT0}, s{sT0}, v{vL16}
            v_min_u32 v{vT0}, k_end-{KNAME}-12, v{vT0}
            s_getpc_b64 s[{sSC}:{sSC+1}]
            """)
            a.label(f"k_pc_{tg}")
            a(f"""
            s_sub_u32 s{sSC}, s{sSC}, k_pc_{tg}-{KNAME}
            s_subb_u32 s{sSC+1}, s{sSC+1}, 0
            v_mov_b32 v{vT2}, s{sSC+1}
            v_add_co_u32 v{vT1}, vcc, s{sSC}, v{vT0}
            s_nop 1
            v_addc_co_u32 v{vT2}, vcc, 0, v{vT2}, vcc
            global_load_dwordx4 {vr(ACC+76, 4)}, v[{vT1}:{vT2}], off
            """)
            a.label(f"k_nocp_{tg}")
        a(f"""
        s_and_b32 s{sR}, s{sW}, 3
        s_lshr_b32 s{sGRP}, s{sW}, 2
        s_lshl_b32 s{sTILE}, s{sMI}, 2
        s_add_u32 s{sTILE}, s{sTILE}, s{sR}
        v_and_b32 v{vT0}, 31, v{vLane}
        v_lshrrev_b32 v{vT1}, 5, v{vLane}
        v_bfe_u32 v{vT2}, v{vLane}, 1, 3
        v_xor_b32 v{vT2}, v{vT2}, v{vT1}
        s_lshl_b32 s{sT0}, s{sR}, 12
        v_lshlrev_b32 v{vT3}, 7, v{vT0}
        v_lshl_add_u32 v{vT3}, v{vT2}, 4, v{vT3}
        v_add_u32 v{vAX}, s{sT0}, v{vT3}
        v_xor_b32 v{vAX+1}, 32, v{vAX}
        v_xor_b32 v{vAX+2}, 64, v{vAX}
        v_xor_b32 v{vAX+3}, 96, v{vAX}
        v_bfe_u32 v{vN}, v{vLane}, 4, 1
        v_bfe_u32 v{vR4}, v{vLane}, 2, 2
        v_and_b32 v{vC}, 3, v{vLane}
        v_lshl_add_u32 v{vRow}, v{vT1}, 3, v{vR4}
        v_and_b32 v{vT2}, 2, v{vR4}
        v_xor_b32 v{vT2}, v{vT2}, v{vN}
        s_lshl_b32 s{sT0}, s{sGRP}, 1
        v_xor_b32 v{vT2}, s{sT0}, v{vT2}
        v_lshlrev_b32 v{vT3}, 7, v{vRow}
        v_lshl_add_u32 v{vT3}, v{vT2}, 5, v{vT3}
        v_lshl_add_u32 v{vT3}, v{vC}, 3, v{vT3}
        v_add_u32 v{vAW}, 16384, v{vT3}
        s_mov_b32 s{sNL2E}, {f32bits(-LOG2E):#x}
        """)

    def flag_addr(vtype, vfla, vfqo):
        t0, t1, t2, t3 = vN, vR4, vC, vRow
        o = L(f"""
        s_lshl_b32 s{sHEAD}, s{sC8}, 1
        s_and_b32 s{sT2}, s{sI32}, 1
        s_add_u32 s{sHEAD}, s{sHEAD}, s{sT2}
        s_lshr_b32 s{sQB}, s{sI32}, 1
        s_lshl_b32 s{sMT}, s{sC8}, 2
        s_and_b32 s{sT2}, s{sI32}, 3
        s_add_u32 s{sMT}, s{sMT}, s{sT2}
        s_lshr_b32 s{sNT}, s{sI32}, 2
        s_mul_i32 s{sP0}, s{sHEAD}, 7
        s_lshr_b32 s{sP0}, s{sP0}, 1
        s_lshl_b32 s{sFQB}, s{sHEAD}, 12
        s_add_u32 s{sFQB}, s{sFQB}, {FQ}
        s_lshr_b32 s{sT1}, s{sQB}, 2
        s_lshl_b32 s{sT1}, s{sT1}, 7
        s_and_b32 s{sT2}, s{sQB}, 3
        s_lshl_b32 s{sT2}, s{sT2}, 2
        s_add_u32 s{sT1}, s{sT1}, s{sT2}
        s_add_u32 s{sT1}, s{sT1}, 2048
        v_lshrrev_b32 v{t0}, 2, v{vLane}
        v_and_b32 v{t1}, 3, v{vLane}
        v_lshlrev_b32 v{t1}, 2, v{t1}
        v_lshl_add_u32 v{vfla}, v{t0}, 7, v{t1}
        v_and_b32 v{t0}, 1, v{vLane}
        v_lshl_add_u32 v{vfla+1}, v{t0}, 9, s{sT1}
        v_and_b32 v{t0}, 15, v{vLane}
        v_lshrrev_b32 v{t1}, 4, v{vLane}
        v_lshlrev_b32 v{t3}, 12, v{t0}
        v_lshl_add_u32 v{t3}, v{t1}, 9, v{t3}
        s_lshr_b32 s{sT1}, s{sMI}, 2
        s_lshl_b32 s{sT1}, s{sT1}, 7
        s_and_b32 s{sT2}, s{sMI}, 3
        s_lshl_b32 s{sT2}, s{sT2}, 2
        s_add_u32 s{sT1}, s{sT1}, s{sT2}
        """)
        if not vtype:
            o += L(f"""
            s_add_u32 s{sT2}, s{sJ}, 1
            s_lshr_b32 s{sT2}, s{sT2}, 3
            v_mul_u32_u24 v{t2}, 7, v{t0}
            v_lshrrev_b32 v{t2}, 1, v{t2}
            v_mad_u32_u24 v{t2}, v{t1}, 3, v{t2}
            v_lshrrev_b32 v{t2}, 3, v{t2}
            v_lshrrev_b32 v{t1}, 1, v{t1}
            v_lshl_add_u32 v{t2}, v{t1}, 6, v{t2}
            v_mad_u32_u24 v{t2}, s{sT2}, 7, v{t2}
            v_cmp_eq_u32 vcc, s{sJ}, v{t2}
            s_lshl_b32 s{sT2}, s{sT2}, 11
            s_sub_u32 s{sT1}, s{sT1}, s{sT2}
            s_add_u32 s{sT1}, s{sT1}, 2048
            """)
        else:
            o += L(f"""
            v_add_u32 v{t2}, 14, v{t1}
            v_cmp_eq_u32 vcc, s{sJ}, v{t2}
            s_add_u32 s{sT1}, s{sT1}, 1024
            """)
        o += L(f"""
        v_add_u32 v{t3}, s{sT1}, v{t3}
        v_mov_b32 v{t0}, {OOB}
        v_cndmask_b32 v{vfqo}, v{t0}, v{t3}, vcc
        v_cmp_eq_u32 vcc, 0, v{vLane}
        s_lshr_b32 s{sFHO}, s{sTILE}, 1
        s_lshl_b32 s{sFHO}, s{sFHO}, 10
        v_cndmask_b32 v{vF1}, v{t0}, v{vLane}, vcc
        s_lshr_b32 s{sT1}, s{sJ}, 1
        s_lshl_b32 s{sT1}, s{sT1}, 7
        s_add_u32 s{sFHO}, s{sFHO}, s{sT1}
        s_and_b32 s{sT1}, s{sJ}, 1
        s_lshl_b32 s{sT1}, s{sT1}, 3
        s_add_u32 s{sFHO}, s{sFHO}, s{sT1}
        s_and_b32 s{sT1}, s{sR}, 1
        s_lshl_b32 s{sT1}, s{sT1}, 2
        s_add_u32 s{sFHO}, s{sFHO}, s{sT1}
        s_add_u32 s{sFHO}, s{sFHO}, {FHB}
        s_lshl_b32 s{sFHA}, s{sMI}, 9
        s_lshr_b32 s{sT1}, s{sJ}, 2
        s_lshl_b32 s{sT1}, s{sT1}, 7
        s_add_u32 s{sFHA}, s{sFHA}, s{sT1}
        s_and_b32 s{sT1}, s{sJ}, 3
        s_lshl_b32 s{sT1}, s{sT1}, 2
        s_add_u32 s{sFHA}, s{sFHA}, s{sT1}
        s_add_u32 s{sFHA}, s{sFHA}, {FH}
        s_lshl_b32 s{sM0}, s{sNT}, 7
        s_mul_i32 s{sWB}, s{sR}, {16 * 896}
        s_add_u32 s{sWB}, s{sWB}, s{sM0}
        s_lshl_b32 s{sM0}, s{sR}, 11
        """)
        return o

    def nonce_get(tag):
        a(f"""
        v_readfirstlane_b32 s{sNONCE}, v{vNON}
        v_lshlrev_b32 v{vT0}, 2, v{vLane}
        v_add_u32 v{vT0}, {CNT}, v{vT0}
        v_mov_b32 v{vT1}, 0
        s_cmp_lg_u32 s{sNONCE}, 0
        s_cbranch_scc1 k1_nonce_ok_{tag}
        """)
        a.label(f"k1_nonce_spin_{tag}")
        a(f"""
        buffer_load_dword v{vNON}, v{vT1}, {sr4(S_DBG)}, 0 offen{SC}
        s_waitcnt vmcnt(0)
        v_readfirstlane_b32 s{sNONCE}, v{vNON}
        s_sleep 4
        s_cmp_eq_u32 s{sNONCE}, 0
        s_cbranch_scc1 k1_nonce_spin_{tag}
        """)
        a.label(f"k1_nonce_ok_{tag}")
        a(f"ds_write_b32 v{vT0}, v{vT1}")

    def pf2():
        return (L(f"""
        s_cmp_lt_u32 s{sPFI}, 784
        s_cselect_b32 s{S_TMP}, s{P_WG}, s{P_WU}
        s_cselect_b32 s{S_TMP+1}, s{P_WG+1}, s{P_WU+1}
        s_cselect_b32 s{sT0}, 0, 784
        s_mov_b32 s{S_TMP+2}, {448 * 1792 * 2}
        s_sub_u32 s{sT0}, s{sPFI}, s{sT0}
        s_lshl_b32 s{sT0}, s{sT0}, 11
        buffer_load_dwordx4 {vr(PFR+8, 4)}, v{vPFL}, {sr4(S_TMP)}, s{sT0} offen offset:128
        """), ("PF",))

    def pf3():
        return (L(f"""
        s_cmp_lt_u32 s{sPFI}, 1568
        s_cselect_b32 s{S_TMP}, s{P_WD}, s{P_WO}
        s_cselect_b32 s{S_TMP+1}, s{P_WD+1}, s{P_WO+1}
        s_cselect_b32 s{sT0}, 0, 1568
        s_cselect_b32 s{S_TMP+2}, s{S_WD+2}, {448 * 448 * 2}
        s_sub_u32 s{sT0}, s{sPFI}, s{sT0}
        s_lshl_b32 s{sT0}, s{sT0}, 10
        buffer_load_dwordx4 {vr(PFR+12, 4)}, v{vL16}, {sr4(S_TMP)}, s{sT0} offen
        """), ("PF",))

    nonce_ld = ([f"v_mov_b32 v{vNON}, 0", f"buffer_load_dword v{vNON}, v{vNON}, {sr4(S_DBG)}, 0 offen{SC}"], ("N",))

    def wpref(i):
        ra = ring_addr(i % 13)
        return [f"s_add_u32 m0, s{sM0}, {ra}", f"s_add_u32 s{sT0}, s{sWB}, {wk_off(i) * 16 * 896}",
                f"buffer_load_dwordx4 v{vDW}, {sr4(S_WD)}, s{sT0} offen lds",
                f"s_add_u32 m0, s{sM0}, {ra + 1024}", f"s_add_u32 s{sT0}, s{sT0}, {8 * 896}",
                f"buffer_load_dwordx4 v{vDW}, {sr4(S_WD)}, s{sT0} offen lds"]

    abase = [0]

    def set_base(nb, regs):
        out = []
        if nb != abase[0]:
            d = nb - abase[0]
            for r in regs:
                out.append(f"v_add_u32 v{r}, {d}, v{r}" if d > 0 else f"v_subrev_u32 v{r}, {-d}, v{r}")
            abase[0] = nb
        return out

    def emit(x):
        if isinstance(x, tuple):
            a(x[1]); vm.add((x[0],))
        else:
            a(x)

    vm = VM()
    cnts = lambda t: {"A": 5, "B": 2}[t[0]] if t[0] in ("A", "B") else vm.q.count(t)
    a(f"""
    s_lshl_b32 s{sT0}, s{sJ}, 7
    v_add_u32 v{vDB0}, s{sT0}, v{vDB0}
    v_mul_u32_u24 v{vDG}, 3584, v{vT0}
    s_lshl_b32 s{sT0}, s{sJ}, 8
    v_add3_u32 v{vDG}, v{vDG}, v{vT3}, s{sT0}
    v_xor_b32 v{vDU}, 32, v{vDG}
    s_mov_b32 s{S_G+2}, {448 * 1792 * 2}
    s_mov_b32 s{S_U+2}, {448 * 1792 * 2}
    s_waitcnt lgkmcnt(0)
    s_mov_b64 s[{S_X}:{S_X+1}], s[{P_X}:{P_X+1}]
    s_mov_b64 s[{S_B0}:{S_B0+1}], s[{P_WQKV}:{P_WQKV+1}]
    s_mov_b64 s[{S_G}:{S_G+1}], s[{P_WG}:{P_WG+1}]
    s_mov_b64 s[{S_U}:{S_U+1}], s[{P_WU}:{P_WU+1}]
    """)

    def fA(st):
        b = (st % 4) * SLOT
        g = [dma(sMX, b, vDX0, S_X, st * 128), dma(sMX, b + 1024, vDX1, S_X, st * 128),
             dma(sMB, b, vDB0, S_B0, st * 64 * 2688), dma(sMB, b + 8192, vDG, S_G, st * 64 * 3584),
             dma(sMB, b + 16384, vDU, S_U, st * 64 * 3584)]
        return [(x, ("A", st)) for x in g]

    def bslot(sb):
        return ((3 + sb // 2) % 4) * SLOT + (sb % 2) * 16384

    def fB(sb):
        b = bslot(sb) - 16384
        g = [dma(sMB, b, vDG, S_G, sb * 64 * 3584 + 128), dma(sMB, b + 8192, vDU, S_U, sb * 64 * 3584 + 128)]
        return [(x, ("B", sb)) for x in g]

    for g in fA(0):
        emit_group(g)
    a("s_barrier")
    if PFPOS: pf1("f")
    for g in fA(1):
        emit_group(g)
    common_setup2("f")
    a(f"""
    v_lshl_add_u32 v{vAW+1}, v{vN}, 13, v{vT3}
    v_add_u32 v{vAW+1}, {16384 + 8192}, v{vAW+1}
    v_xor_b32 v{vAW+2}, 32, v{vAW+1}
    s_cmp_ge_u32 s{sJ}, 7
    s_cselect_b32 s{sT1}, {KF - 7 * 4096}, {QF}
    s_cselect_b32 s{sSC}, 1.0, {f32bits(28 ** -0.5 * LOG2E):#x}
    s_lshl_b32 s{sT2}, s{sJ}, 12
    s_add_u32 s{sT1}, s{sT1}, s{sT2}
    s_lshl_b32 s{sT2}, s{sGRP}, 11
    s_add_u32 s{sT1}, s{sT1}, s{sT2}
    s_mul_i32 s{sQKO}, s{sTILE}, {TQ}
    s_add_u32 s{sQKO}, s{sQKO}, s{sT1}
    s_mul_i32 s{sHOFF}, s{sTILE}, 112
    s_lshl_b32 s{sT1}, s{sJ}, 3
    s_add_u32 s{sHOFF}, s{sHOFF}, s{sT1}
    s_lshl_b32 s{sT1}, s{sGRP}, 1
    s_add_u32 s{sHOFF}, s{sHOFF}, s{sT1}
    s_lshl_b32 s{sHOFF}, s{sHOFF}, 10
    s_add_u32 s{sHOFF}, s{sHOFF}, {HF}
    s_add_u32 s{sHOFF2}, s{sHOFF}, 4096
    """)
    WA = [WF, WF + 12, ACC + 48]
    NB = 4
    WB = [WF + 24, WF + 16, WF + 8, WF]

    def readsA(ks):
        st, s = ks // 4, ks % 4
        slot = st % 4
        out = set_base((slot // 2) * 2 * SLOT, [vAX, vAX+1, vAX+2, vAX+3, vAW, vAW+1, vAW+2])
        off = (slot % 2) * SLOT
        f = WA[ks % 3]
        out.append(f"ds_read_b128 {vr(X+4*ks, 4)}, v{vAX+s} offset:{off}")
        for t in range(3):
            for q in range(2):
                out.append(f"ds_read_b64_tr_b16 {vr(f+4*t+2*q, 2)}, v{vAW+t} offset:{off + (16*s + 4*q) * 128}")
        return out

    def readsB(ks):
        sb, s = ks // 4, ks % 4
        b = bslot(sb)
        f = WB[ks % NB]
        b32 = b - b % 32768
        off = b - b32
        out = set_base(b32 - 24576, [vAW+1, vAW+2])
        for t in range(2):
            for q in range(2):
                out.append(f"ds_read_b64_tr_b16 {vr(f+4*t+2*q, 2)}, v{vAW+1+t} offset:{off + (16*s + 4*q) * 128}")
        return out

    def epi_ffn(acc, ko, dst=None):
        g, u = acc, acc + 8
        dst = g if dst is None else dst
        o = []
        for i in range(8):
            o.append(f"v_mul_f32 v{u+i}, v{g+i}, v{u+i}")
            o.append(f"v_mul_f32 v{g+i}, s{sNL2E}, v{g+i}")
        for i in range(8):
            o.append(f"v_exp_f32 v{g+i}, v{g+i}")
        for i in range(8):
            o.append(f"v_add_f32 v{g+i}, 1.0, v{g+i}")
        for i in range(8):
            o.append(f"v_rcp_f32 v{g+i}, v{g+i}")
        for i in range(8):
            o.append(f"v_mul_f32 v{u+i}, v{u+i}, v{g+i}")
        for i in range(4):
            o.append(f"v_cvt_pk_bf16_f32 v{dst+i}, v{u+2*i}, v{u+2*i+1}")
        so, off = (sHOFF, ko) if ko < 4 else (sHOFF2, ko - 4)
        o.append(("H", f"buffer_store_dwordx4 {vr(dst, 4)}, v{vL16}, {sr4(S_WS)}, s{so} offen offset:{1024*off}{SC}"))
        return o

    def epi_qk():
        o = []
        for i in range(8):
            o.append(f"v_mul_f32 v{ACC+2*i}, s{sSC}, v{ACC+2*i}")
            o.append(f"v_mul_f32 v{ACC+2*i+1}, s{sSC}, v{ACC+2*i+1}")
            o.append(f"v_cvt_pk_bf16_f32 v{ACC+i}, v{ACC+2*i}, v{ACC+2*i+1}")
        o.append("s_nop 1")
        for hh in range(2):
            b = ACC + 4 * hh
            o.append(f"v_permlane32_swap_b32 v{b}, v{b+2}")
            o.append(f"v_permlane32_swap_b32 v{b+1}, v{b+3}")
            o.append(("QK", f"buffer_store_dwordx4 {vr(b, 4)}, v{vL16}, {sr4(S_WS)}, s{sQKO} offen offset:{1024*hh}{SC}"))
        return o

    abase[0] = 0
    a(f"s_waitcnt vmcnt({vm.wait({('A', 0)}, cnts)})\ns_barrier")
    stamp(a, "p1_first")
    for ks in range(2):
        for r in readsA(ks):
            a(r)
    pend = fA(2) + fA(3)
    vFQf = vST
    fillA = flag_addr(False, vFLA, vFQf)
    for ks in range(28):
        st, s = ks // 4, ks % 4
        f = WA[ks % 3]
        m = [f"{MFMA} {vr(ACC+16*t, 16)}, {vr(f+4*t, 4)}, {vr(X+4*ks, 4)}, {'0' if ks == 0 else vr(ACC+16*t, 16)}" for t in range(3)]
        if s == 2:
            need = {("A", st + 1)} if st < 6 else {("B", 0), ("B", 1), ("B", 2), ("B", 3), ("N",)}
            a(f"s_waitcnt vmcnt({vm.wait(need, cnts)}) lgkmcnt(0)")
            if st == 6:
                nonce_get("f")
            a("s_barrier")
            stamp(a, f"p1_a{st}")
            if st + 4 <= 6:
                pend += fA(st + 4)
            else:
                i0 = 2 * (st - 3)
                pend += fB(i0) + (fB(i0 + 1) if i0 + 1 < 7 else [])
            if st == 2:
                pend.append(nonce_ld)
            if "nopf" not in OPT and st == PF2_ST and PF_EARLY < 1: pend.append(pf2())
            if "nopf" not in OPT and st == PF3_ST and PF_EARLY < 2: pend.append(pf3())
        elif ks < 27:
            a("s_waitcnt lgkmcnt(7)")
        else:
            a("s_waitcnt lgkmcnt(4)")
        r = readsA(ks + 2) if ks + 2 < 28 else readsB(ks + 2 - 28)
        k = len(r) - 4 if ks + 2 < 28 else len(r) - 2
        a(m[0])
        for x in r[:k]:
            a(x)
        a(m[1])
        for x in r[k:]:
            a(x)
        a(m[2])
        if ks >= 16:
            assert vm.q.count(("A", 6)) == 5
            for _ in range(7):
                if fillA: a(fillA.pop(0))
        nd = 2 if (len(pend) > 4 or st < 1) else 1
        for _ in range(nd):
            if pend:
                emit_group(pend.pop(0))
    assert not fillA
    stamp(a, "p1_aend")
    for x in readsB(2):
        a(x)
    ea, eb = epi_ffn(ACC + 16, 0, X + 16), epi_ffn(ACC + 32, 1, X + 20)
    fillq = ["s_nop 3"] + epi_qk()
    fill = ea + eb
    wq = [0, 1, 2, 7, 3, 4, 5, 6]
    sWH, sMH2 = sMX, sOK
    for ks in range(28):
        f = WB[ks % NB]
        m = [f"{MFMA} {vr(ACC+48+16*t, 16)}, {vr(f+4*t, 4)}, {vr(X+4*ks, 4)}, {'0' if ks == 0 else vr(ACC+48+16*t, 16)}" for t in range(2)]
        nxt = ks + NB - 1
        if ks == QKB:
            need = {5: {("B", 2), ("B", 3), ("N",)}, QKB: {("B", 4), ("B", 5), ("B", 6), ("QK",)}, 17: set()}[ks]
            if ks == QKB: assert vm.q.count(("QK",)) == 2 and QKB <= 13
            if need: a(f"s_waitcnt vmcnt({vm.wait(need, cnts)})")
            a("s_barrier")
            stamp(a, {5: "p1_b2", QKB: "p1_b4", 17: "p1_b5"}[ks])
            if ks == QKB:
                a(f"""
                s_cmp_lg_u32 s{sW}, 7
                s_cbranch_scc1 k1_noflag_f
                s_mov_b32 s{sT0}, {FQ}
                buffer_store_dword v{vNON}, v{vFQf}, {sr4(S_WS)}, s{sT0} offen{SC}
                """)
                a.label("k1_noflag_f")
        stamp(a, f"pb{ks}")
        a(f"s_waitcnt lgkmcnt({min(NB - 2, 27 - ks) * 4})")
        r = readsB(nxt) if nxt < 28 else []

        def dofill():
            if ks < 1: return
            if fillq:
                for _ in range(5):
                    if fillq: emit(fillq.pop(0))
            else:
                for _ in range(FPER):
                    if fill and isinstance(fill[0], tuple) and ks < HA_ST and len(fill) > 1:
                        fill[0], fill[1] = fill[1], fill[0]
                    if fill and not (isinstance(fill[0], tuple) and ks < HA_ST): emit(fill.pop(0))
        a(m[0])
        for x in r[:len(r) - 2]:
            a(x)
        if pend:
            emit_group(pend.pop(0))
        dofill()
        a(m[1])
        for x in r[len(r) - 2:]:
            a(x)
        dofill()
        if wq and ks >= WP_ST and (ring_addr(wq[0]) < 122880 or ks >= QKB) and not pend:
            i = wq.pop(0)
            if i == 0:
                a(f"""
                s_mul_i32 s{sWH}, s{sGRP}, {8 * 896}
                s_add_u32 s{sWH}, s{sWH}, s{sWB}
                s_cmp_ge_u32 s{sI32}, 28
                s_cselect_b32 s{sWH}, {OOB}, s{sWH}
                s_lshl_b32 s{sMH2}, s{sGRP}, 10
                s_add_u32 s{sMH2}, s{sMH2}, s{sM0}
                """)
            a(f"""
            s_add_u32 m0, s{sMH2}, {ring_addr(i)}
            s_add_u32 s{sT0}, s{sWH}, {wk_off(i) * 16 * 896}
            buffer_load_dwordx4 v{vDW}, {sr4(S_WD)}, s{sT0} offen lds
            """)
            vm.add(("WP",))
        if ks == EARLY_P:
            a(f"""
            s_cmp_lg_u32 s{sW}, 0
            s_cbranch_scc1 k1_nopoll
            buffer_load_dword v{vPOL}, v{vFLA}, {sr4(S_WS)}, s{sFQB} offen{SC}
            buffer_load_dword v{vPOL+1}, v{vFLA+1}, {sr4(S_WS)}, s{sFQB} offen{SC}
            """)
            a.label("k1_nopoll")
    assert not fill and not pend and not wq
    stamp(a, "pb28")
    a(f"""
    s_cmp_lg_u32 s{sW}, 0
    s_cbranch_scc1 k1_nochk
    s_waitcnt vmcnt(0)
    """)
    poll_cmp(a, 2, vPOL)
    a(f"""
    s_cmp_eq_u64 vcc, 0
    s_cselect_b32 s{sT0}, 1, 0
    """)
    lds_set(a, 4, f"s{sT0}", vT0)
    a("s_waitcnt lgkmcnt(0)")
    a.label("k1_nochk")
    a(f"""
    s_cmp_ge_u32 s{sW}, 4
    s_cbranch_scc1 k1_nodr
    s_waitcnt vmcnt(0)
    """)
    a.label("k1_nodr")
    a(f"""
    s_barrier
    s_mov_b32 s{sOK}, 0
    s_cmp_ge_u32 s{sW}, 4
    s_cbranch_scc1 k1_epi
    v_mov_b32 v{vT0}, {CNT + 4}
    ds_read_b32 v{vT1}, v{vT0}
    s_waitcnt lgkmcnt(0)
    v_readfirstlane_b32 s{sOK}, v{vT1}
    s_cmp_eq_u32 s{sOK}, 1
    s_cbranch_scc1 k1_early
    s_cmp_lg_u32 s{sW}, 0
    s_cbranch_scc1 k1_epi
    buffer_load_dword v{vPOL}, v{vFLA}, {sr4(S_WS)}, s{sFQB} offen{SC}
    buffer_load_dword v{vPOL+1}, v{vFLA+1}, {sr4(S_WS)}, s{sFQB} offen{SC}
    s_branch k1_epi
    """)
    a.label("k1_early")
    stamp(a, "x_go")
    o1, o2, _, flat = att_loads()
    for x in flat(o1):
        a(x)
    stamp(a, "p1_bend")
    e0, e1 = epi_ffn(ACC + 48, 4, HBR), epi_ffn(ACC + 64, 5, HBR + 4)
    ev = e0[:-1] + e1[:-1]
    step = len(ev) // len(o2)
    for x in o2:
        for _ in range(step):
            a(ev.pop(0))
        for y in flat([x]):
            a(y)
    for x in ev:
        a(x)
    stamp(a, "p1_end")
    a("s_branch att_main")
    a.label("k1_epi")
    a("s_nop 7")
    stamp(a, "p1_bend")
    for x in e0[:FA_AT]:
        a(x)
    a(f"""
    s_cmp_lt_u32 s{sW}, 4
    s_cbranch_scc1 k1_nofa
    v_mov_b32 v{vT0}, {CNT + 32}
    v_mov_b32 v{vT1}, 1
    s_waitcnt vmcnt(0)
    s_mov_b64 exec, 1
    ds_add_rtn_u32 v{vT1}, v{vT0}, v{vT1}
    s_mov_b64 exec, -1
    s_waitcnt lgkmcnt(0)
    v_readfirstlane_b32 s{sT0}, v{vT1}
    s_cmp_lg_u32 s{sT0}, 3
    s_cbranch_scc1 k1_nofa
    """)
    a(flag1(a, sFHA))
    a.label("k1_nofa")
    for x in e0[FA_AT:-1] + e1[:-1]:
        a(x)
    stamp(a, "p1_end")
    a(f"""
    s_cmp_ge_u32 s{sW}, 4
    s_cbranch_scc1 gemm_role2
    s_cmp_lg_u32 s{sW}, 0
    s_cbranch_scc1 aq_lw
    s_waitcnt vmcnt(0)
    """)
    poll_cmp(a, 2, vPOL)
    a(f"""
    s_cmp_eq_u64 vcc, 0
    s_cbranch_scc1 aq_ok
    s_branch att_spin
    """)

    a.label("k1_v")
    vm = VM()
    cntv = lambda t: {"A": 5, "B": 1}[t[0]] if t[0] in ("A", "B") else vm.q.count(t)
    GWL = CNT + 1024
    a(f"""
    v_add_u32 v{vDU}, {(896 + 192) * 2}, v{vDB0}
    s_cmp_eq_u32 s{sJ}, 14
    s_cselect_b32 s{sT0}, 0, 512
    s_add_u32 s{sT0}, s{sT0}, {896 * 2}
    v_add_u32 v{vDB0}, s{sT0}, v{vDB0}
    s_mov_b32 s{S_U+2}, {448 * 2}
    s_waitcnt lgkmcnt(0)
    s_mov_b64 s[{S_X}:{S_X+1}], s[{P_X}:{P_X+1}]
    s_mov_b64 s[{S_B0}:{S_B0+1}], s[{P_WQKV}:{P_WQKV+1}]
    s_mov_b64 s[{S_U}:{S_U+1}], s[{P_GW}:{P_GW+1}]
    """)

    def vA(st):
        b = (st % 4) * SLOT
        g = [dma(sMX, b, vDX0, S_X, st * 128), dma(sMX, b + 1024, vDX1, S_X, st * 128)]
        for bi in range(3):
            g.append(dma(sMB, b + 8192 * bi, vDB0, S_B0, st * 64 * 2688 + 128 * bi))
        return [(x, ("A", st)) for x in g]

    def vbslot(sb):
        return 3 * SLOT + sb * 8192 if sb < 4 else (sb - 4) * 8192

    def vB(sb):
        return [(dma(sMB, vbslot(sb) - 16384, vDU, S_B0, sb * 64 * 2688), ("B", sb))]

    gw_ld = ([f"s_mov_b32 m0, {GWL}", "s_nop 0", f"buffer_load_dwordx4 v{vL16}, {sr4(S_U)}, 0 offen lds"], ("GW",))

    for g in vA(0):
        emit_group(g)
    a("s_barrier")
    if PFPOS: pf1("v")
    for g in vA(1):
        emit_group(g)
    common_setup2("v")
    vAZ = vAW + 3
    a(f"""
    v_add_u32 v{vAW+1}, 8192, v{vAW}
    v_add_u32 v{vAW+2}, 16384, v{vAW}
    s_sub_u32 s{sT1}, s{sJ}, 14
    s_lshl_b32 s{sT1}, s{sT1}, 6
    v_xor_b32 v{vAZ}, s{sT1}, v{vAW}
    v_lshlrev_b32 v{vST+1}, 4, v{vT1}
    v_add_u32 v{vST+1}, {GWL}, v{vST+1}
    s_cmp_eq_u32 s{sJ}, 14
    s_cselect_b32 s{sT1}, 0, 4096
    s_lshl_b32 s{sT2}, s{sGRP}, 9
    s_add_u32 s{sT1}, s{sT1}, s{sT2}
    s_mul_i32 s{sHOFF}, s{sTILE}, {TQ}
    s_add_u32 s{sHOFF}, s{sHOFF}, s{sT1}
    s_add_u32 s{sHOFF}, s{sHOFF}, {VF}
    s_add_u32 s{sHOFF2}, s{sHOFF}, 14336
    v_mul_u32_u24 v{vST}, {7168 - 512}, v{vT1}
    v_add_u32 v{vST}, v{vST}, v{vL16}
    """)

    def readsVA(ks):
        st, s = ks // 4, ks % 4
        slot = st % 4
        out = set_base((slot // 2) * 2 * SLOT, [vAX, vAX+1, vAX+2, vAX+3, vAW, vAW+1, vAW+2, vAZ])
        off = (slot % 2) * SLOT
        f = WA[ks % 3]
        out.append(f"ds_read_b128 {vr(X+4*ks, 4)}, v{vAX+s} offset:{off}")
        for t in range(3):
            for q in range(2):
                out.append(f"ds_read_b64_tr_b16 {vr(f+4*t+2*q, 2)}, v{vAW+t} offset:{off + (16*s + 4*q) * 128}")
        return out

    NBV = 6
    WBV = [WF + 24, WF + 28, WF + 16, WF + 20, WF + 12, WF + 8]

    def readsVB(ks, z):
        sb, s = ks // 4, ks % 4
        f = WBV[ks % NBV]
        if z:
            return [f"ds_read_b128 {vr(f, 4)}, v{vST+1} offset:{32*ks}"]
        b = vbslot(sb)
        nb = (3 * SLOT if sb < 4 else 0)
        out = set_base(nb - 16384, [vAZ])
        off = b - nb
        for q in range(2):
            out.append(f"ds_read_b64_tr_b16 {vr(f+2*q, 2)}, v{vAZ} offset:{off + (16*s + 4*q) * 128}")
        return out

    def epi_v(acc, bi):
        o = [f"v_cvt_pk_bf16_f32 v{acc+i}, v{acc+2*i}, v{acc+2*i+1}" for i in range(8)]
        o.append(f"buffer_store_dwordx4 {vr(acc, 4)}, v{vST}, {sr4(S_WS)}, s{sHOFF} offen offset:{1024*bi}{SC}")
        o.append(f"buffer_store_dwordx4 {vr(acc+4, 4)}, v{vST}, {sr4(S_WS)}, s{sHOFF2} offen offset:{1024*bi}{SC}")
        return o

    abase[0] = 0
    a(f"s_waitcnt vmcnt({vm.wait({('A', 0)}, cntv)})\ns_barrier")
    stamp(a, "p1_first")
    for ks in range(2):
        for r in readsVA(ks):
            a(r)
    pend = vA(2) + vA(3)
    fillA = flag_addr(True, vFLA, vDG)
    for ks in range(28):
        st, s = ks // 4, ks % 4
        f = WA[ks % 3]
        m = [f"{MFMA} {vr(ACC+16*t, 16)}, {vr(X+4*ks, 4)}, {vr(f+4*t, 4)}, {'0' if ks == 0 else vr(ACC+16*t, 16)}" for t in range(3)]
        if s == 2:
            need = {("A", st + 1)} if st < 6 else {("B", x) for x in range(7)} | {("N",), ("GW",)}
            a(f"s_waitcnt vmcnt({vm.wait(need, cntv)}) lgkmcnt(0)")
            if st == 6:
                nonce_get("v")
            a("s_barrier")
            if st + 4 <= 6:
                pend += vA(st + 4)
            elif st == 3:
                pend += vB(0) + vB(1) + vB(2) + vB(3)
            elif st == 4:
                pend += vB(4) + vB(5) + vB(6) + [gw_ld]
            if st == 2:
                pend.append(nonce_ld)
            if "nopf" not in OPT and st == PF2_ST and PF_EARLY < 1: pend.append(pf2())
            if "nopf" not in OPT and st == PF3_ST and PF_EARLY < 2: pend.append(pf3())
        elif ks < 27:
            a("s_waitcnt lgkmcnt(7)")
        r = readsVA(ks + 2) if ks + 2 < 28 else []
        k = max(len(r) - 4, 0)
        a(m[0])
        for x in r[:k]:
            a(x)
        a(m[1])
        for x in r[k:]:
            a(x)
        a(m[2])
        if ks >= 16:
            assert vm.q.count(("A", 6)) == 5
            for _ in range(7):
                if fillA: a(fillA.pop(0))
        nd = 2 if (len(pend) > 4 or st < 1) else 1
        for _ in range(nd):
            if pend:
                emit_group(pend.pop(0))
    assert not fillA and not pend
    stamp(a, "p1_aend")
    VB = ACC + 48

    def passVB(z, fill):
        nrd = 1 if z else 2
        for ks in range(NBV - 1):
            for x in readsVB(ks, z):
                a(x)
        for ks in range(28):
            f = WBV[ks % NBV]
            c = vr(VB, 16)
            ops = f"{vr(f, 4)}, {vr(X+4*ks, 4)}" if z else f"{vr(X+4*ks, 4)}, {vr(f, 4)}"
            a(f"s_waitcnt lgkmcnt({min(NBV - 2, 27 - ks) * nrd})")
            a(f"{MFMA} {c}, {ops}, {'0' if ks == 0 else c}")
            if ks + NBV - 1 < 28:
                for x in readsVB(ks + NBV - 1, z):
                    a(x)
            for _ in range(3):
                if fill: a(fill.pop(0))
        assert not fill

    a(f"s_cmp_eq_u32 s{sGRP}, 1\ns_cbranch_scc1 k1_vg1")
    passVB(False, ["s_nop 1"] + epi_v(ACC, 0) + epi_v(ACC + 16, 1) + epi_v(ACC + 32, 2))
    a(f"""
    s_mul_i32 s{sHOFF}, s{sTILE}, {TQ}
    s_lshl_b32 s{sT1}, s{sJ}, 9
    s_add_u32 s{sHOFF}, s{sHOFF}, s{sT1}
    s_add_u32 s{sHOFF}, s{sHOFF}, {VF + 192 * 16 - 14 * 512}
    s_add_u32 s{sHOFF2}, s{sHOFF}, 14336
    s_nop 7
    """)
    for x in epi_v(VB, 0):
        a(x)
    stamp(a, "p1_bend")
    a(f"""
    s_waitcnt vmcnt(0)
    s_barrier
    """)
    stamp(a, "p1_end")
    a(f"""
    s_cmp_lg_u32 s{sW}, 3
    s_cbranch_scc1 k1_noflag_v
    s_mov_b32 s{sT0}, {FQ}
    buffer_store_dword v{vNON}, v{vDG}, {sr4(S_WS)}, s{sT0} offen{SC}
    """)
    a(flag1(a, sFHA))
    a.label("k1_noflag_v")
    a("s_branch att_spin")
    a.label("k1_vg1")
    a("s_nop 7")
    for x in epi_v(ACC, 0) + epi_v(ACC + 16, 1) + epi_v(ACC + 32, 2):
        a(x)
    stamp(a, "p1_bend")
    a(f"""
    s_waitcnt vmcnt(0)
    s_barrier
    """)
    stamp(a, "p1_end")
    a(f"s_mov_b32 s{sHOFF2}, {OOB}\ns_cmp_eq_u32 s{sJ}, 14\ns_cbranch_scc1 gemm_role")
    passVB(True, [])
    t = WF
    a(f"""
    s_nop 7
    s_nop 3
    v_mul_f32 v{t}, s{sNL2E}, v{VB}
    v_exp_f32 v{t}, v{t}
    v_and_b32 v{t+1}, 31, v{vLane}
    v_add_f32 v{t}, 1.0, v{t}
    v_rcp_f32 v{t}, v{t}
    v_lshlrev_b32 v{t+1}, 2, v{t+1}
    s_lshl_b32 s{sT0}, s{sTILE}, 7
    s_add_u32 s{sT0}, s{sT0}, {GF}
    buffer_store_dword v{t}, v{t+1}, {sr4(S_WS)}, s{sT0} offen{SC}
    s_waitcnt vmcnt(0)
    """)
    a.label("gemm_role")
    for i in range(8):
        for x in wpref(i):
            a(x)
    a.label("gemm_role2")
    gen_gemm(a, wpref)
    gen_attention(a)
    a.label("k_end")
    a("s_endpgm")
    return a.text()


vAWr = 16
RB = [0, 98304]


def wtr_setup(a):
    a(f"""
    v_bfe_u32 v{vT0}, v{vLane}, 4, 1
    v_bfe_u32 v{vT1}, v{vLane}, 2, 2
    v_and_b32 v{vT2}, 2, v{vT1}
    v_xor_b32 v{vT2}, v{vT2}, v{vT0}
    s_and_b32 s{sT0}, s{sKQ}, 1
    s_lshl_b32 s{sT0}, s{sT0}, 1
    v_xor_b32 v{vT2}, s{sT0}, v{vT2}
    v_lshrrev_b32 v{vT3}, 5, v{vLane}
    v_lshl_add_u32 v{vT3}, v{vT3}, 2, v{vT1}
    v_lshlrev_b32 v{vT3}, 7, v{vT3}
    v_lshl_add_u32 v{vT3}, v{vT2}, 5, v{vT3}
    v_and_b32 v{vT2}, 3, v{vLane}
    v_lshl_add_u32 v{vT3}, v{vT2}, 3, v{vT3}
    v_add_u32 v{vAWr}, s{sM0}, v{vT3}
    v_xor_b32 v{vAWr+1}, 64, v{vAWr}
    v_add_u32 v{vAWr+2}, {RB[1]}, v{vAWr}
    v_add_u32 v{vAWr+3}, {RB[1]}, v{vAWr+1}
    v_mov_b32 v{vAWr+4}, v{vT3}
    """)


def wtr_reads(slot, dst):
    ra = ring_addr(slot)
    bi = max(i for i in range(2) if RB[i] <= ra)
    out = []
    for T in range(2):
        for q in range(2):
            out.append(f"ds_read_b64_tr_b16 {vr(dst+4*T+2*q, 2)}, v{vAWr+2*bi+T} offset:{ra - RB[bi] + q*1024}")
    return out


def bcast_poll(a, tag, leader, addrs, soff, vtmp, sleep, ldsoff, pre=None, lsleep=2, skip_if_set=False):
    if skip_if_set:
        a(f"""
        v_mov_b32 v{vT0}, {CNT + ldsoff}
        ds_read_b32 v{vT1}, v{vT0}
        s_waitcnt lgkmcnt(0)
        v_readfirstlane_b32 s{sT0}, v{vT1}
        s_cmp_eq_u32 s{sT0}, 1
        s_cbranch_scc1 {tag}_go
        """)
    a(f"s_cmp_lg_u32 s{sW}, {leader}\ns_cbranch_scc1 {tag}_lw")
    if pre:
        pre()
    poll(a, addrs, soff, vtmp, sleep)
    a.label(f"{tag}_ok")
    lds_set(a, ldsoff, 1, vT0)
    a(f"s_branch {tag}_go")
    a.label(f"{tag}_lw")
    lds_wait(a, ldsoff, vT0, "eq1", lsleep)
    a.label(f"{tag}_go")


def gen_gemm(a, wpref):
    ACC = 64
    ACT = 128
    WFB = [32, 40]
    vA0, vA1, vG0, vFl, vFl2, vMB = 21, 22, 23, 25, 24, 26
    sA0, sB0w, sFH2, sMO2, sDONE, sNEW, sH = 45, 46, 47, 48, 49, 50, 52
    DA = GDA
    stamp(a, "x_role")
    wtr_setup(a)
    srd(a, S_WO, P_WO, 448 * 448 * 2)
    srd(a, S_OUT, P_OUT, 2048 * 448 * 2)
    a(f"""
    s_lshr_b32 s{sMO2}, s{sKQ}, 1
    s_mul_i32 s{sT0}, s{sMO2}, {112 * 1024}
    v_add_u32 v{vA0}, s{sT0}, v{vL16}
    s_sub_u32 s{sT0}, {112 * 1024}, s{sT0}
    v_add_u32 v{vA1}, s{sT0}, v{vL16}
    s_lshr_b32 s{sT1}, s{sMT}, 1
    s_lshl_b32 s{sT1}, s{sT1}, 9
    s_add_u32 s{sT1}, s{sT1}, {FH}
    s_lshl_b32 s{sFH2}, s{sMT}, 10
    s_add_u32 s{sFH2}, s{sFH2}, {FHB}
    s_mul_i32 s{sA0}, s{sMT}, 224
    s_add_u32 s{sA0}, s{sA0}, s{sKQ}
    s_lshl_b32 s{sA0}, s{sA0}, 10
    s_add_u32 s{sA0}, s{sA0}, {HF}
    s_mul_i32 s{sB0w}, s{sKQ}, {112 * 896}
    s_lshl_b32 s{sT0}, s{sNT}, 7
    s_add_u32 s{sB0w}, s{sB0w}, s{sT0}
    v_and_b32 v{vFl}, 0x1ff, v{vFLA}
    v_and_b32 v{vFl2}, 0x3ff, v{vFLA}
    s_add_u32 s{sT2}, s{sM0}, {MERGE + MBOX}
    v_add_u32 v{vMB}, s{sT2}, v{vL16}
    s_sub_u32 s{sHOFF}, s{sHOFF2}, 2048
    s_cmp_lt_u32 s{sI32}, 28
    s_cbranch_scc1 gemm_has
    """)

    def hb_all():
        lds_wait(a, 24, vT0, "eq4", 1)
        a(f"""
        ds_read_b128 {vr(HBR+8, 4)}, v{vMB}
        ds_read_b128 {vr(HBR+12, 4)}, v{vMB} offset:1024
        """)

    def hb_st():
        return hb_stores() + [f"buffer_store_dwordx4 {vr(HBR+8+4*i, 4)}, v{vL16}, {sr4(S_WS)}, s{sHOFF} offen offset:{1024*i}{SC}" for i in range(2)]
    hb_all()
    a("s_waitcnt lgkmcnt(0)")
    for x in hb_st():
        a(x)
    a("s_waitcnt vmcnt(0)")
    a(flag1(a, sFHO))
    a("s_endpgm")
    a.label("gemm_has")
    a(f"""
    s_cmp_lg_u32 s{sW}, 4
    s_cbranch_scc1 g_noe
    buffer_load_dword v{vG0}, v{vFl}, {sr4(S_WS)}, s{sT1} offen{SC}
    s_waitcnt vmcnt(0)
    v_cmp_ne_u32 vcc, s{sNONCE}, v{vG0}
    s_nop 1
    s_cmp_eq_u64 vcc, 0
    s_cbranch_scc0 g_noe
    """)
    lds_set(a, 8, 1, vT0)
    a.label("g_noe")
    hb_all()
    vm = VM()
    for i in range(0, 8):
        vm.add(("w", i))

    def act_loads(i):
        r = ACT + 8 * (i % DA)
        a(f"""
        s_add_u32 s{sT0}, s{sA0}, {wk_off(i) * 1024}
        buffer_load_dwordx4 {vr(r, 4)}, v{vA0}, {sr4(S_WS)}, s{sT0} offen{SC}
        buffer_load_dwordx4 {vr(r+4, 4)}, v{vA1}, {sr4(S_WS)}, s{sT0} offen{SC}
        """)
        vm.add(("a", i)); vm.add(("a", i))

    def w_loads(i):
        if i < 28:
            for x in wpref(i):
                a(x)
        else:
            ra = ring_addr(wslot(i))
            off = (28 * ((i - 28) // 2) + 16 * ((i - 28) % 2)) * 896
            a(f"""
            s_add_u32 m0, s{sM0}, {ra}
            s_add_u32 s{sT0}, s{sB0w}, {off}
            buffer_load_dwordx4 v{vDW}, {sr4(S_WO)}, s{sT0} offen lds
            s_add_u32 m0, s{sM0}, {ra + 1024}
            s_add_u32 s{sT0}, s{sT0}, {8 * 896}
            buffer_load_dwordx4 v{vDW}, {sr4(S_WO)}, s{sT0} offen lds
            """)
        vm.add(("w", i)); vm.add(("w", i))

    na, nw = 0, 8
    a("s_waitcnt lgkmcnt(0)")
    for x in hb_st():
        a(x); vm.add(("hb",))
    bcast_poll(a, "gA", 4, [vFl], sT1, vG0, SLEEP_H, 8, skip_if_set=True)
    stamp(a, "x_go"); stamp(a, "x_loop")
    for i in range(GPRE):
        act_loads(na); na += 1
    a(f"s_waitcnt vmcnt({vm.wait({('w', 0)})})")
    for x in wtr_reads(0, WFB[0]):
        a(x)
    gotB = False
    for i in range(28):
        need = {("a", i)}
        if i + 1 < 28:
            need.add(("w", i + 1))
        a(f"s_waitcnt vmcnt({vm.wait(need)}) lgkmcnt(0)")
        if i + 1 < 28:
            for x in wtr_reads((i + 1) % 13, WFB[(i + 1) % 2]):
                a(x)
        for mt in range(2):
            for T in range(2):
                c = vr(ACC + 32 * mt + 16 * T, 16)
                a(f"{MFMA} {c}, {vr(WFB[i%2]+4*T, 4)}, {vr(ACT+8*(i%DA)+4*mt, 4)}, {'0' if i == 0 else c}")
        if i == 0:
            a(flag1(a, sFHO))
        if i == GB_AT:
            stamp(a, "g_b0")
            bcast_poll(a, "gB", 4, [vFl2], sFH2, vPOL, SLEEP_H, 12)
            stamp(a, "g_b1")
            gotB = True
            a(f"""
            v_and_b32 v{vT0}, 31, v{vLane}
            v_lshlrev_b32 v{vT0}, 2, v{vT0}
            s_lshl_b32 s{sT1}, s{sMT}, 1
            s_add_u32 s{sT1}, s{sT1}, s{sMO2}
            s_lshl_b32 s{sT1}, s{sT1}, 7
            s_add_u32 s{sT1}, s{sT1}, {GF}
            buffer_load_dword v{vG0}, v{vT0}, {sr4(S_WS)}, s{sT1} offen{SC}
            """)
            vm.add(("g",))
        for _ in range(2):
            if na < 28 and na <= i + DA and (na < 14 or gotB):
                act_loads(na); na += 1
            if nw < 36 and nw <= i + min(13, DA + 1) and (nw < 28 or wslot(nw) + 13 <= i):
                w_loads(nw); nw += 1
    assert na == 28
    while nw < 36:
        w_loads(nw); nw += 1
    stamp(a, "x_lend")
    XS = [0, 1, 6, 7]
    R, AA, SL = 128, ACC + 16, 128
    vX0, vX1, vC1, vOUT, vWa = 26, 27, 28, 30, 29

    def xaddr(reg, x):
        a(f"""
        s_xor_b32 s{sT0}, s{sKQ}, {x}
        s_lshl_b32 s{sT0}, s{sT0}, 11
        v_add_u32 v{reg}, s{sT0}, v{vL16}
        v_add_u32 v{reg+1}, {RB[1]}, v{reg}
        """)

    def xo(i):
        ra = ring_addr(XS[i // 2]) + (i % 2) * 1024
        return (vX0, ra) if ra < RB[1] else (vX1, ra - RB[1])

    def gsync(off, tag):
        a(f"""
        v_mov_b32 v{vC1}, {CNT + off}
        v_mov_b32 v{vT0}, 1
        s_waitcnt vmcnt(0) lgkmcnt(0)
        s_mov_b64 exec, 1
        ds_add_u32 v{vC1}, v{vT0}
        s_mov_b64 exec, -1
        """)
        a.label(tag)
        a(f"""
        ds_read_b32 v{vT0}, v{vC1}
        s_waitcnt lgkmcnt(0)
        v_readfirstlane_b32 s{sT0}, v{vT0}
        s_cmp_eq_u32 s{sT0}, 4
        s_cbranch_scc1 {tag}_d
        s_sleep 1
        s_branch {tag}
        """)
        a.label(f"{tag}_d")

    a("s_setprio 3")
    xaddr(vX0, 0)
    a("s_nop 7")
    for i in range(8):
        r_, o_ = xo(i)
        a(f"ds_write_b128 v{r_}, {vr(ACC+32+4*i, 4)} offset:{o_}")
    xaddr(vX0, 2)
    gsync(16, "gs1")
    for i in range(8):
        r_, o_ = xo(i)
        a(f"ds_read_b128 {vr(R+4*i, 4)}, v{r_} offset:{o_}")
    a("s_waitcnt lgkmcnt(0)")
    for i in range(16, 32):
        a(f"v_add_f32 v{ACC+i}, v{ACC+i}, v{R+i}")
    for i in range(4):
        r_, o_ = xo(i)
        a(f"ds_write_b128 v{r_}, {vr(ACC+16+4*i, 4)} offset:{o_}")
    for i in range(16):
        a(f"v_add_f32 v{ACC+i}, v{ACC+i}, v{R+i}")
    xaddr(vX0, 3)
    gsync(28, "gs2")
    for i in range(4):
        r_, o_ = xo(i)
        a(f"ds_read_b128 {vr(R+4*i, 4)}, v{r_} offset:{o_}")
    a(f"""
    v_sub_f32 v{vT2}, 1.0, v{vG0}
    s_lshl_b32 s{sT1}, s{sMT}, 1
    s_add_u32 s{sT1}, s{sT1}, s{sMO2}
    s_lshl_b32 s{sFH2}, s{sT1}, 9
    s_add_u32 s{sFH2}, s{sFH2}, {FO}
    s_lshl_b32 s{sA0}, s{sT1}, 15
    s_add_u32 s{sA0}, s{sA0}, {OF}
    s_mul_i32 s{sT2}, s{sT1}, {32 * 896}
    s_lshl_b32 s{sT1}, s{sNT}, 7
    s_add_u32 s{sT2}, s{sT2}, s{sT1}
    s_and_b32 s{sT1}, s{sKQ}, 1
    s_lshl_b32 s{sT1}, s{sT1}, 6
    s_add_u32 s{sT2}, s{sT2}, s{sT1}
    v_and_b32 v{vFl}, 31, v{vLane}
    v_mul_u32_u24 v{vOUT}, 896, v{vFl}
    v_lshrrev_b32 v{vT3}, 5, v{vLane}
    v_lshl_add_u32 v{vOUT}, v{vT3}, 4, v{vOUT}
    v_and_b32 v{vFl}, 0x1ff, v{vFLA}
    s_mov_b32 s{sDONE}, 0xffff0000
    s_mov_b32 s{sSPIN}, {SPIN_MAX}
    s_waitcnt lgkmcnt(0)
    """)
    for i in range(16):
        a(f"v_add_f32 v{ACC+i}, v{ACC+i}, v{R+i}")
    for i in range(16):
        a(f"v_mul_f32 v{ACC+i}, v{ACC+i}, v{vT2}")
        a(f"v_mov_b32 v{AA+i}, 0")
    a("s_setprio 1")
    stamp(a, "p3_poll")
    sNB = 53
    a(f"s_mov_b32 s{sNB}, 0\ns_mov_b32 s{sNEW}, 0")
    a.label("p3_poll")
    a(f"""
    buffer_load_dword v{vPOL}, v{vFl}, {sr4(S_WS)}, s{sFH2} offen{SC}
    s_cmp_eq_u32 s{sNB}, 0
    s_cbranch_scc1 p3_chk
    s_waitcnt vmcnt(1) lgkmcnt(0)
    """)
    a.label("p3_run")
    for k in range(8):
        o, w = SL + 16 * k, SL + 16 * k + 8
        a(f"""
        {MFMA} {vr(AA, 16)}, {vr(w, 4)}, {vr(o, 4)}, {vr(AA, 16)}
        {MFMA} {vr(AA, 16)}, {vr(w+4, 4)}, {vr(o+4, 4)}, {vr(AA, 16)}
        """)
        if k < 7:
            a(f"s_cmp_eq_u32 s{sNB}, {k+1}\ns_cbranch_scc1 p3_ran")
    a.label("p3_ran")
    a(f"""
    s_mov_b32 s{sNB}, 0
    s_cmp_eq_u32 s{sDONE}, -1
    s_cbranch_scc1 p3_fin
    """)
    a.label("p3_chk")
    a(f"""
    s_waitcnt vmcnt(0)
    v_cmp_eq_u32 vcc, s{sNONCE}, v{vPOL}
    s_sub_u32 s{sSPIN}, s{sSPIN}, 1
    s_cbranch_scc1 p3_fin
    s_andn2_b32 s{sNEW}, vcc_lo, s{sDONE}
    s_cbranch_scc1 p3_batch
    s_sleep {SLEEP_O}
    s_branch p3_poll
    """)
    a.label("p3_batch")
    for k in range(8):
        o, w = SL + 16 * k, SL + 16 * k + 8
        a(f"""
        s_ff1_i32_b32 s{sH}, s{sNEW}
        s_bitset0_b32 s{sNEW}, s{sH}
        s_bitset1_b32 s{sDONE}, s{sH}
        s_lshl_b32 s{sT0}, s{sH}, 11
        s_add_u32 s{sT0}, s{sT0}, s{sA0}
        buffer_load_dwordx4 {vr(o, 4)}, v{vL16}, {sr4(S_WS)}, s{sT0} offen{SC}
        buffer_load_dwordx4 {vr(o+4, 4)}, v{vL16}, {sr4(S_WS)}, s{sT0} offen offset:1024{SC}
        s_bitcmp1_b32 s{sH}, 1
        s_cselect_b32 s{sT0}, 0, {ring_addr(2)}
        s_and_b32 s{sT1}, s{sH}, 1
        s_lshl_b32 s{sT1}, s{sT1}, 14
        s_add_u32 s{sT0}, s{sT0}, s{sT1}
        s_lshr_b32 s{sT1}, s{sH}, 2
        s_lshl_b32 s{sT1}, s{sT1}, 11
        s_add_u32 s{sT0}, s{sT0}, s{sT1}
        v_add_u32 v{vWa}, s{sT0}, v{vAWr+4}
        ds_read_b64_tr_b16 {vr(w, 2)}, v{vWa}
        ds_read_b64_tr_b16 {vr(w+2, 2)}, v{vWa} offset:1024
        ds_read_b64_tr_b16 {vr(w+4, 2)}, v{vWa} offset:8192
        ds_read_b64_tr_b16 {vr(w+6, 2)}, v{vWa} offset:9216
        s_mov_b32 s{sNB}, {k+1}
        """)
        if k >= 2:
            a("s_waitcnt lgkmcnt(8)")
        if k < 7:
            a(f"s_cmp_eq_u32 s{sNEW}, 0\ns_cbranch_scc1 p3_iss")
    a.label("p3_iss")
    a(f"""
    s_cmp_lg_u32 s{sDONE}, -1
    s_cbranch_scc1 p3_poll
    s_waitcnt vmcnt(0) lgkmcnt(0)
    s_branch p3_run
    """)
    a.label("p3_fin")
    stamp(a, "p3_mfma")
    a("s_nop 7\ns_nop 1")
    t = 96
    for i in range(16):
        a(f"v_fma_f32 v{ACC+i}, v{AA+i}, v{vG0}, v{ACC+i}")
    for i in range(8):
        a(f"v_cvt_pk_bf16_f32 v{t+i}, v{ACC+2*i}, v{ACC+2*i+1}")
    a(f"""
    v_permlane32_swap_b32 v{t}, v{t+2}
    v_permlane32_swap_b32 v{t+1}, v{t+3}
    buffer_store_dwordx4 {vr(t, 4)}, v{vOUT}, {sr4(S_OUT)}, s{sT2} offen
    v_permlane32_swap_b32 v{t+4}, v{t+6}
    v_permlane32_swap_b32 v{t+5}, v{t+7}
    buffer_store_dwordx4 {vr(t+4, 4)}, v{vOUT}, {sr4(S_OUT)}, s{sT2} offen offset:32
    """)
    amp_end(a, 'g')
    if "dbgt" in OPT:
        a(f"""
        s_cmp_ge_u32 s2, 7
        s_cbranch_scc1 k_end
        s_cmp_lg_u32 s{sW}, 4
        s_cbranch_scc1 k_end
        s_memtime s[90:91]
        s_memrealtime s[92:93]
        s_waitcnt lgkmcnt(0)
        s_sub_u32 s90, s90, s86
        s_sub_u32 s92, s92, s88
        v_mov_b32 v4, s90
        v_mov_b32 v5, s92
        s_lshl_b32 s3, s2, 3
        s_add_u32 s3, s3, 8
        buffer_store_dwordx2 v[4:5], v{vF1}, {sr4(S_DBG)}, s3 offen
        """)
    stamp_flush(a)
    a("s_endpgm")


def gen_attention(a):
    Q, O, S, KV, P, TMP = AQ, AO, AS, AKV, AP, ATMP
    vG, vM, vONE = avG, avM, avONE
    a.label("att_spin")
    bcast_poll(a, "aq", 0, [vFLA, vFLA + 1], sFQB, vPOL, SLEEP_Q, 4, lsleep=1)
    stamp(a, "x_go")
    o1, o2, vm, flat = att_loads()

    def k_fix(buf):
        return [f"v_cndmask_b32 v{KV+16*buf+6}, v{KV+16*buf+6}, v{vONE}, s[{sME}:{sME+1}]",
                f"v_cndmask_b32 v{KV+16*buf}, v{KV+16*buf}, v{vONE}, s[{sMO}:{sMO+1}]"]

    zer = [f"v_mov_b32 v{O+k}, 0" for k in range(12, 64)]
    for x in flat(o1):
        a(x)
    step = len(zer) // len(o2) + 1
    zz = list(zer)
    for x in o2:
        for _ in range(step):
            if zz: a(zz.pop(0))
        for y in flat([x]):
            a(y)
    a("s_branch att_main2")
    a.label("att_main")
    for x in zer:
        a(x)
    a.label("att_main2")
    stamp(a, "x_main")
    a(f"""
    s_setprio 2
    s_lshl_b32 s{sT0}, s{sKQ}, 11
    s_add_u32 s{sT0}, s{sT0}, {MERGE}
    v_add_u32 v{TMP}, s{sT0}, v{vL16}
    v_subrev_u32 v{TMP+1}, {-MBOX}, v{TMP}
    ds_write_b128 v{TMP+1}, {vr(HBR, 4)}
    ds_write_b128 v{TMP+1}, {vr(HBR+4, 4)} offset:1024
    v_mov_b32 v{vT1}, 0
    s_and_b32 s{sT0}, s{sHEAD}, 1
    s_mov_b32 s{sME}, 0
    s_mov_b32 s{sMO+1}, 0
    s_sub_u32 s{sME+1}, s{sT0}, 1
    s_sub_u32 s{sMO}, 0, s{sT0}
    v_mov_b32 v{avV0}, v{vT2}
    v_mov_b32 v{avV1}, v{vT3}
    v_mov_b32 v{vONE}, 0x3f803f80
    v_mov_b32 v{TMP+1}, {CNT + 24}
    v_mov_b32 v{TMP+2}, 1
    s_waitcnt vmcnt({vm.wait({('q',), ('kv', 0, 1)})})
    v_cndmask_b32 v{Q}, v{Q}, v{vT1}, s[{sMO}:{sMO+1}]
    v_cndmask_b32 v{Q+1}, v{Q+1}, v{vT1}, s[{sMO}:{sMO+1}]
    v_cndmask_b32 v{Q+6}, v{Q+6}, v{vT1}, s[{sME}:{sME+1}]
    v_cndmask_b32 v{Q+7}, v{Q+7}, v{vT1}, s[{sME}:{sME+1}]
    {MFMA} {vr(S[1], 16)}, {vr(KV, 4)}, {vr(Q, 4)}, 0
    s_nop 0
    {MFMA} {vr(S[1], 16)}, {vr(KV+4, 4)}, {vr(Q+4, 4)}, {vr(S[1], 16)}
    """)
    stamp(a, "x_q")
    for x in k_fix(0):
        a(x)
    for k in range(12):
        a(f"v_mov_b32 v{O+k}, 0")
    s0 = S[1]
    a(f"""
    v_max3_f32 v{vM}, v{s0}, v{s0+1}, v{s0+2}
    v_max3_f32 v{vT0}, v{s0+3}, v{s0+4}, v{s0+5}
    v_max3_f32 v{vT2}, v{s0+6}, v{s0+7}, v{s0+8}
    v_max3_f32 v{vT3}, v{s0+9}, v{s0+10}, v{s0+11}
    v_max3_f32 v{vM}, v{vM}, v{s0+12}, v{s0+13}
    v_max3_f32 v{vT0}, v{vT0}, v{s0+14}, v{s0+15}
    v_max3_f32 v{vM}, v{vM}, v{vT2}, v{vT3}
    v_max_f32 v{vM}, v{vM}, v{vT0}
    v_mov_b32 v{vT0}, v{vM}
    s_nop 1
    v_permlane32_swap_b32 v{vM}, v{vT0}
    v_max_f32 v{vM}, v{vM}, v{vT0}
    v_sub_f32 v{vM}, 0, v{vM}
    v_cvt_pk_bf16_f32 v{vT0}, v{vM}, v{vM}
    v_lshlrev_b32 v{vT0}, 16, v{vT0}
    v_sub_f32 v{vT0}, v{vM}, v{vT0}
    v_cvt_pk_bf16_f32 v{vT0}, v{vM}, v{vT0}
    v_cndmask_b32 v{Q}, v{Q}, v{vT0}, s[{sMO}:{sMO+1}]
    v_cndmask_b32 v{Q+6}, v{Q+6}, v{vT0}, s[{sME}:{sME+1}]
    ds_write_b128 v{TMP}, {vr(Q, 4)}
    ds_write_b128 v{TMP}, {vr(Q+4, 4)} offset:1024
    {MFMA} {vr(S[0], 16)}, {vr(KV, 4)}, {vr(Q, 4)}, 0
    {MFMA} {vr(S[0], 16)}, {vr(KV+4, 4)}, {vr(Q+4, 4)}, {vr(S[0], 16)}
    s_waitcnt lgkmcnt(0)
    s_mov_b64 exec, 1
    ds_add_u32 v{TMP+1}, v{TMP+2}
    s_mov_b64 exec, -1
    """)
    for x in kv_adv()[:3]:
        a(x)
    for i in range(4):
        a(f"v_mov_b32 v{P+4+i}, 0\nv_mov_b32 v{KV+16*3+12+i}, v{vONE}\nv_mov_b32 v{KV+16*3+8+i}, v{vONE}")
    for i in range(1, 4):
        a(f"""
        s_add_u32 s{sT0}, s{sKQ}, {i}
        s_and_b32 s{sT0}, s{sT0}, 3
        s_lshl_b32 s{sT0}, s{sT0}, 11
        s_add_u32 s{sT0}, s{sT0}, {MERGE}
        v_add_u32 v{TMP+2+i}, s{sT0}, v{vL16}
        s_add_u32 s{sT0}, s{sKQ}, {i}
        s_and_b32 s{sT0}, s{sT0}, 3
        s_mul_i32 s{sT0}, s{sT0}, 12288
        s_add_u32 s{sT0}, s{sT0}, {MERGE + (i-1) * 4096}
        v_add_u32 v{TMP+8+i-1}, s{sT0}, v{vL16}
        """)
    a(f"""
    s_mul_i32 s{sT0}, s{sKQ}, 12288
    s_add_u32 s{sT0}, s{sT0}, {MERGE}
    v_add_u32 v{TMP+11}, s{sT0}, v{vL16}
    v_mov_b32 v{TMP+12}, {CNT}
    v_mov_b32 v{TMP+13}, 1
    """)
    stamp(a, "x_qs")
    a.label("att_qsync")
    a(f"""
    ds_read_b32 v{TMP+2}, v{TMP+1}
    s_waitcnt lgkmcnt(0)
    v_cmp_gt_u32 vcc, 4, v{TMP+2}
    s_cbranch_vccnz att_qsync
    """)
    for i in range(1, 4):
        a(f"ds_read_b128 {vr(Q+8*i, 4)}, v{TMP+2+i}\nds_read_b128 {vr(Q+8*i+4, 4)}, v{TMP+2+i} offset:1024")
    a("s_waitcnt lgkmcnt(0)")
    a(f"s_mov_b32 s{sIT}, 0")
    stamp(a, "x_loop")
    vMW, vMR, vMC, vM1 = TMP + 8, TMP + 11, TMP + 12, TMP + 13

    def phase(ph, cur, prev, nxt, s_pv2=[], s_qk1=[], s_qk2=[], s_pv1=[], tail=[]):
        sc, sn = S[ph % 2], S[1 - ph % 2]
        e = [f"v_exp_f32 v{sc+i}, v{sc+i}" for i in range(16)]
        c = [f"v_cvt_pk_bf16_f32 v{P+i}, v{sc+2*i}, v{sc+2*i+1}" for i in range(8)]
        pv2 = f"{MFMA} {vr(O+16*prev[1], 16)}, {vr(KV+16*prev[0]+12, 4)}, {vr(P+4, 4)}, {vr(O+16*prev[1], 16)}"
        pv1 = f"{MFMA} {vr(O+16*cur[1], 16)}, {vr(KV+16*cur[0]+8, 4)}, {vr(P, 4)}, {vr(O+16*cur[1], 16)}"
        qk1, qk2 = [], []
        if nxt:
            qk1 = [f"{MFMA} {vr(sn, 16)}, {vr(KV+16*nxt[0], 4)}, {vr(Q+8*nxt[1], 4)}, 0"]
            qk2 = [f"{MFMA} {vr(sn, 16)}, {vr(KV+16*nxt[0]+4, 4)}, {vr(Q+8*nxt[1]+4, 4)}, {vr(sn, 16)}"]
        seq = e[0:2] + [pv2] + s_pv2 + e[2:5] + qk1 + s_qk1 + e[5:9] + c[0:4] + qk2 + s_qk2 + e[9:12] + [pv1] + s_pv1 + e[12:16] + tail + c[4:8]
        for x in seq:
            a(x)

    a.label("att_loop")
    for tb in range(4):
        for q in range(4):
            adv = kv_adv()
            s_pv2, s_qk1, s_qk2, s_pv1, tail = [], [], [], [], []
            s_qk1 += kv_load((tb + 3) % 4, q, (avV0, avV1))
            if q == 0:
                s_pv2.append(adv[3])
                s_qk2.append("s_waitcnt vmcnt(9)")
                s_pv1.append(adv[4])
            if q == 1:
                if tb == 0:
                    s_pv2.append(f"s_cmp_eq_u32 s{sIT}, 3")
                    s_qk2.append(f"s_cselect_b32 s{sKB}, {OOB}, s{sKB}")
                    s_pv1.append(f"s_cselect_b32 s{sVB}, {OOB}, s{sVB}")
                if tb == 3:
                    s_pv1.append(f"s_add_u32 s{sIT}, s{sIT}, 1")
            if q == 2:
                s_pv2.append(f"s_mul_i32 s{sT0}, s{sTI}, {TQ}")
                s_qk2.append(f"s_add_u32 s{sKS}, s{sT0}, s{sKB}")
                s_pv1.append("s_waitcnt vmcnt(9)")
                if tb == 2:
                    s_pv1.append(f"s_cmp_eq_u32 s{sIT}, 3")
                tail = k_fix((tb + 1) % 4)
            if q == 3:
                s_qk2.append(f"s_add_u32 s{sVS}, s{sT0}, s{sVB}")
            phase(4 * tb + q, (tb, q), (tb if q > 0 else (tb - 1) % 4, (q - 1) % 4), (tb if q < 3 else (tb + 1) % 4, (q + 1) % 4),
                  s_pv2, s_qk1, s_qk2, s_pv1, tail)
            if tb == 2 and q == 2:
                a("s_cbranch_scc1 att_peel")
    a("s_branch att_loop")
    a.label("att_peel")

    def mw(i, lo, hi):
        return [f"ds_write_b128 v{vMW+i-1}, {vr(O+16*i+4*k, 4)} offset:{1024*k}" for k in range(lo, hi)]
    sa = L(f"""
    s_lshl_b32 s{sT2}, s{sQB}, 2
    s_add_u32 s{sT2}, s{sT2}, s{sKQ}
    s_lshl_b32 s{sT2}, s{sT2}, 4
    s_add_u32 s{sT2}, s{sT2}, s{sHEAD}
    s_lshl_b32 s{sKB}, s{sT2}, 11
    s_add_u32 s{sKB}, s{sKB}, {OF}
    s_lshr_b32 s{sVB}, s{sT2}, 2
    s_lshl_b32 s{sVB}, s{sVB}, 7
    s_and_b32 s{sT2}, s{sT2}, 3
    s_lshl_b32 s{sT2}, s{sT2}, 2
    s_add_u32 s{sVB}, s{sVB}, s{sT2}
    s_add_u32 s{sVB}, s{sVB}, {FO}
    s_mov_b32 s{sT0}, {f32bits(2.0**-10):#x}
    s_mov_b32 s{sT1}, {f32bits(2.0**100):#x}
    """)
    phase(11, (2, 3), (2, 2), (3, 1), sa[0:1], sa[1:2], sa[2:3], sa[3:4])
    phase(12, (3, 1), (2, 3), (3, 2), sa[4:5], sa[5:6], ["s_waitcnt vmcnt(0)"], sa[6:7])
    phase(13, (3, 2), (3, 1), (3, 3), sa[7:8], sa[8:9], mw(1, 0, 2), mw(1, 2, 4))
    phase(14, (3, 3), (3, 2), (3, 0), sa[9:10], sa[10:11], mw(2, 0, 2), mw(2, 2, 4))
    phase(15, (3, 0), (3, 3), None, sa[11:14], [], ["s_nop 0"] + mw(3, 0, 4), [],
          ["s_waitcnt lgkmcnt(0)", "s_mov_b64 exec, 1", f"ds_add_u32 v{vMC}, v{vM1}", "s_mov_b64 exec, -1"])
    a(f"""
    v_cmp_lt_u32 s[18:19], 31, v{vLane}
    s_nop 0
    {MFMA} {vr(O, 16)}, {vr(KV+16*3+12, 4)}, {vr(P+4, 4)}, {vr(O, 16)}
    """)
    stamp(a, "x_lend")
    a.label("att_msync")
    a(f"""
    ds_read_b32 v{vT2}, v{vMC}
    s_waitcnt lgkmcnt(0)
    v_cmp_gt_u32 vcc, 4, v{vT2}
    s_cbranch_vccnz att_msync
    """)
    stamp(a, "x_msync")
    for i in range(12):
        a(f"ds_read_b128 {vr(O+16+4*i, 4)}, v{vMR} offset:{1024*i}")
    a("s_mov_b64 vcc, s[18:19]")
    for k in range(3):
        a(f"s_waitcnt lgkmcnt({8 - 4*k})")
        for i in range(16):
            a(f"v_add_f32 v{O+i}, v{O+i}, v{O+16+16*k+i}")
    C = O + 16
    a(f"""
    v_mov_b32 v{vT0}, v{O+12}
    v_mov_b32 v{vT1}, v{O+12}
    """)
    for k in range(4):
        a(f"v_mul_f32 v{C+k}, 0, v{O+4*k}")
    a(f"v_permlane32_swap_b32 v{vT0}, v{vT1}")
    for i in range(1, 4):
        for k in range(4):
            a(f"v_fma_f32 v{C+k}, v{O+4*k+i}, 0, v{C+k}")
    a(f"""
    v_rcp_f32 v{vT2}, v{vT1}
    v_add_f32 v{C}, v{C}, v{C+1}
    v_add_f32 v{C+2}, v{C+2}, v{C+3}
    v_add_f32 v{C}, v{C}, v{vT1}
    v_add_f32 v{C}, v{C}, v{C+2}
    v_cmp_le_f32 s[28:29], s{sT0}, v{C}
    v_cmp_ge_f32 s[16:17], s{sT1}, v{C}
    s_and_b64 s[28:29], s[28:29], s[16:17]
    s_cmp_eq_u64 s[28:29], -1
    s_cbranch_scc0 att_fallback
    """)
    a.label("att_final")
    a(f"""
    v_mov_b32 v{vT0}, 0
    """)
    for hh in range(2):
        for i in range(8):
            a(f"v_mul_f32 v{O+8*hh+i}, v{O+8*hh+i}, v{vT2}")
        for i in range(4):
            a(f"v_cvt_pk_bf16_f32 v{TMP+4*hh+i}, v{O+8*hh+2*i}, v{O+8*hh+2*i+1}")
        if hh == 1:
            a(f"v_cndmask_b32 v{TMP+6}, v{TMP+6}, v{vT0}, vcc\nv_cndmask_b32 v{TMP+7}, v{TMP+7}, v{vT0}, vcc")
        a(f"buffer_store_dwordx4 {vr(TMP+4*hh, 4)}, v{vL16}, {sr4(S_WS)}, s{sKB} offen offset:{1024*hh}{SC}")
    stamp(a, "x_ost")
    a("s_waitcnt vmcnt(0)")
    a(flag1(a, sVB))
    stamp(a, "x_b2")
    amp_end(a, 'a')
    stamp_flush(a)
    a("s_endpgm")

    a.label("att_fallback")
    sc = S[0]
    K, V = KV, KV + 8
    vMo, vMn, vAl = TMP, TMP + 1, TMP + 2
    a(f"""
    v_mov_b32 v{vT0}, 0
    v_mov_b32 v{vMo}, 0xff800000
    v_cndmask_b32 v{Q}, v{Q}, v{vT0}, s[{sMO}:{sMO+1}]
    v_cndmask_b32 v{Q+6}, v{Q+6}, v{vT0}, s[{sME}:{sME+1}]
    s_mov_b32 s{sIT}, 0
    s_lshl_b32 s{sKS}, s{sP0}, 9
    s_add_u32 s{sKS}, s{sKS}, {KF}
    s_mul_i32 s{sVS}, s{sHEAD}, 448
    s_add_u32 s{sVS}, s{sVS}, {VF}
    s_waitcnt vmcnt(0)
    """)
    for i in range(16):
        a(f"v_mov_b32 v{O+i}, 0")
    a.label("att_fb_loop")
    a(f"""
    buffer_load_dwordx4 {vr(K, 4)}, v{vL16}, {sr4(S_WS)}, s{sKS} offen{SC}
    buffer_load_dwordx4 {vr(K+4, 4)}, v{vL16}, {sr4(S_WS)}, s{sKS} offen offset:1024{SC}
    s_mov_b64 exec, s[{sVM}:{sVM+1}]
    buffer_load_dwordx4 {vr(V, 4)}, v{avV0}, {sr4(S_WS)}, s{sVS} offen{SC}
    buffer_load_dwordx4 {vr(V+4, 4)}, v{avV1}, {sr4(S_WS)}, s{sVS} offen{SC}
    s_mov_b64 exec, -1
    s_waitcnt vmcnt(0)
    {MFMA} {vr(sc, 16)}, {vr(K, 4)}, {vr(Q, 4)}, 0
    {MFMA} {vr(sc, 16)}, {vr(K+4, 4)}, {vr(Q+4, 4)}, {vr(sc, 16)}
    s_nop 15
    v_max3_f32 v{vMn}, v{vMo}, v{sc}, v{sc+1}
    """)
    for i in range(2, 16, 2):
        a(f"v_max3_f32 v{vMn}, v{vMn}, v{sc+i}, v{sc+i+1}")
    a(f"""
    v_mov_b32 v{vT0}, v{vMn}
    s_nop 1
    v_permlane32_swap_b32 v{vMn}, v{vT0}
    v_max_f32 v{vMn}, v{vMn}, v{vT0}
    v_sub_f32 v{vAl}, v{vMo}, v{vMn}
    v_exp_f32 v{vAl}, v{vAl}
    v_mov_b32 v{vMo}, v{vMn}
    """)
    for i in range(16):
        a(f"v_sub_f32 v{sc+i}, v{sc+i}, v{vMn}")
    for i in range(16):
        a(f"v_exp_f32 v{sc+i}, v{sc+i}")
    for i in range(16):
        a(f"v_mul_f32 v{O+i}, v{O+i}, v{vAl}")
    for i in range(8):
        a(f"v_cvt_pk_bf16_f32 v{P+i}, v{sc+2*i}, v{sc+2*i+1}")
    a(f"""
    s_nop 1
    {MFMA} {vr(O, 16)}, {vr(V, 4)}, {vr(P, 4)}, {vr(O, 16)}
    {MFMA} {vr(O, 16)}, {vr(V+4, 4)}, {vr(P+4, 4)}, {vr(O, 16)}
    s_add_u32 s{sKS}, s{sKS}, {TQ}
    s_add_u32 s{sVS}, s{sVS}, {TQ}
    s_add_u32 s{sIT}, s{sIT}, 1
    s_cmp_lt_u32 s{sIT}, 64
    s_cbranch_scc1 att_fb_loop
    s_nop 15
    v_mov_b32 v{vT0}, v{O+12}
    v_mov_b32 v{vT1}, v{O+12}
    s_nop 1
    v_permlane32_swap_b32 v{vT0}, v{vT1}
    v_rcp_f32 v{vT2}, v{vT1}
    s_nop 0
    s_branch att_final
    """)


def build():
    ref = open(f"cdna_kernels/{NAME}.s.ref").read().split("\n")
    hdr = [l for l in ref if l.startswith(";") and "@launch" not in l and "Override launch" not in l and "grid=ceil" not in l]
    body = gen()
    out = "\n".join(hdr) + "\n"
    out += f"; @launch grid=(256,1,1) block=(512,1,1) lds={LDS_BYTES}\n"
    out += '.amdgcn_target "amdgcn-amd-amdhsa--gfx950"\n.text\n'
    out += f".globl {KNAME}\n.p2align 8\n.type {KNAME},@function\n{KNAME}:\n"
    out += body
    out += f""".section .rodata,"a"
.p2align 6
.amdhsa_kernel {KNAME}
  .amdhsa_next_free_vgpr 256
  .amdhsa_next_free_sgpr 102
  .amdhsa_accum_offset 256
  .amdhsa_group_segment_fixed_size 0
  .amdhsa_kernarg_size 88
  .amdhsa_user_sgpr_count 2
  .amdhsa_user_sgpr_kernarg_segment_ptr 1
  .amdhsa_system_sgpr_workgroup_id_x 1
.end_amdhsa_kernel
"""
    return out


if __name__ == "__main__":
    path = sys.argv[1]
    open(path, "w").write(build())
    print("wrote", path)
```

```python
import math, struct, sys, os

NAME = "gated_mix__softmax_full_mha__swiglu_ffn__prompt"
KNAME = NAME + "_kernel"
INSTR = int(os.environ.get("INSTR", "0"))
OPT = os.environ.get("OPT", "nox")

QF = 0
KF = 2 << 20
VF = 4 << 20
TQ = 28672
HF = 6 << 20
OF = 14 << 20
GF = 16 << 20
FQ = (16 << 20) + 0x10000
FH = (16 << 20) + 0x20000
FHB = (16 << 20) + 0x28000
QX = 73728
MBOX = 32768 - QX
FO = (16 << 20) + 0x40000
TSF = 24 << 20
WS_BYTES = 32 << 20
OOB = 0x40000000
SLEEP_Q = int(os.environ.get('SLQ', '2'))
SLEEP_H = int(os.environ.get('SLH', '8'))
SLEEP_O = int(os.environ.get('SLO', '2'))
LOG2E = math.log2(math.e)
MFMA = "v_mfma_f32_32x32x16_bf16"
SC = " sc1"
SLOT = 40960
LDS_BYTES = 4 * SLOT
MERGE = 49152
CNT = 155648
SPIN_MAX = 1 << int(os.environ.get('SPINLOG', '20'))


def ring_addr(s):
    if s <= 6:
        return 98304 + s * 8192
    if s == 7:
        return 32768
    if s <= 11:
        return (s - 8) * 8192
    return 40960


def wslot(i):
    return i % 13 if i < 28 else [2, 3, 4, 5, 8, 9, 10, 11][i - 28]


def f32bits(x):
    return struct.unpack("<I", struct.pack("<f", x))[0]


class Asm:
    def __init__(self):
        self.lines = []

    def __call__(self, s):
        for ln in s.strip("\n").split("\n"):
            ln = ln.strip()
            if not ln:
                continue
            self.lines.append(ln if ln.endswith(":") else "    " + ln)

    def label(self, l):
        self.lines.append(l + ":")

    def text(self):
        return "\n".join(self.lines) + "\n"


def vr(base, n):
    return f"v[{base}:{base + n - 1}]"


def sr4(b):
    return f"s[{b}:{b+3}]"


def srd(a, sd, sb, nbytes):
    a(f"""
    s_mov_b32 s{sd}, s{sb}
    s_mov_b32 s{sd+1}, s{sb+1}
    s_mov_b32 s{sd+2}, {nbytes}
    s_mov_b32 s{sd+3}, 0x00020000
    """)


def L(s):
    return [l.strip() for l in s.strip("\n").split("\n") if l.strip()]


HA_ST = int(os.environ.get('HA_ST', '13'))
EARLY_P = int(os.environ.get('EARLY_P', '27'))
QKB = int(os.environ.get('QKB', '11'))
FPER = int(os.environ.get('FPER', '4'))
PF2_ST = int(os.environ.get('PF2_ST', '0'))
PF3_ST = int(os.environ.get('PF3_ST', '2'))
GDA = int(os.environ.get('GDA', '10'))
AROT = int(os.environ.get('AROT', '15'))
WP_ST = int(os.environ.get('WP_ST', '5'))
FA_AT = int(os.environ.get('FA_AT', '52'))
PFPOS = int(os.environ.get('PFPOS', '1'))
PF_EARLY = int(os.environ.get('PF_EARLY', '2'))
PFROW = int(os.environ.get('PFROW', '192'))
NQ = (448 - PFROW) * 2688 // 1024
NG = (448 - PFROW) * 3584 // 2048
assert NQ + 2 * NG <= 2048
TLB_STR = int(os.environ.get('TLB_STR', str(1 << 20)))
TLB_WG = int(os.environ.get('TLB_WG', '0'))
GPRE = int(os.environ.get('GPRE', '4'))
GB_AT = int(os.environ.get('GB_AT', '7'))

S_X, S_B0, S_G, S_U, S_WS, S_TMP, S_WD, S_DBG = 4, 8, 12, 16, 20, 24, 28, 32
S_WO, S_OUT = 8, 12
sMI, sJ, sW, sR, sGRP = 36, 37, 38, 39, 40
sKQ = 39
sT0, sT1, sT2 = 42, 43, 44
sMX, sMB, sSO = 45, 46, 47
sSC, sTILE, sHOFF, sHOFF2, sQKO = 48, 49, 50, 51, 52
sWB, sM0, sFHO, sFQB, sP0, sOK = 53, 54, 55, 56, 57, 58
sNONCE, sNL2E, sC8, sI32, sSPIN = 59, 60, 61, 62, 63
P_X, P_WQKV, P_WO, P_WG, P_WU, P_WD, P_GW, P_OUT, P_DBG, P_WS = 64, 66, 68, 72, 74, 76, 78, 80, 82, 84
ST0 = 86
sHEAD, sQB, sMT, sNT = 70, 71, 41, 3
sFHA = 65
vLane, vL16 = 1, 2
vT0, vT1, vT2, vT3 = 3, 4, 5, 6
STAMPS = os.environ.get("STAMPS", "").split(",")[:6]


AMP = os.environ.get("AMP", "")


def stamp(a, name):
    if AMP and name == "start": a("s_memrealtime s[86:87]")
    if AMP and name == AMP: a("s_memrealtime s[88:89]")
    if INSTR and (name == "start" or name in STAMPS):
        idx = 0 if name == "start" else 1 + STAMPS.index(name)
        a(f"s_memtime s[{ST0+2*idx}:{ST0+2*idx+1}]")
    if INSTR and "R" + name in STAMPS:
        idx = 1 + STAMPS.index("R" + name)
        a(f"s_memrealtime s[{ST0+2*idx}:{ST0+2*idx+1}]")


def amp_end(a, tag):
    if not AMP: return
    stamp(a, "end")
    a(f"""
    s_cmp_lg_u32 s2, {os.environ.get("AMPG", "40")}
    s_cbranch_scc1 k_end
    s_cmp_lg_u32 s{sW}, {os.environ.get("AMPW", "4")}
    s_cbranch_scc1 k_end
    s_memrealtime s[90:91]
    s_waitcnt lgkmcnt(0)
    s_sub_u32 s88, s88, s86
    s_mul_i32 s88, s88, {os.environ.get('AMPK', '1')}
    """)
    a.label(f"amp_spin{tag}")
    a(f"""
    s_memrealtime s[92:93]
    s_waitcnt lgkmcnt(0)
    s_sub_u32 s92, s92, s90
    s_cmp_lt_u32 s92, s88
    s_cbranch_scc1 amp_spin{tag}
    """)


def stamp_flush(a, vtmp=3):
    if not INSTR:
        return
    a(f"""
    s_memtime s[4:5]
    s_memrealtime s[6:7]
    s_lshl_b32 s3, s2, 3
    s_add_u32 s3, s3, s{sW}
    s_lshl_b32 s3, s3, 7
    s_add_u32 s3, s3, {TSF}
    v_mov_b32 v{vtmp+1}, 0
    s_waitcnt lgkmcnt(0)
    """)
    regs = [ST0 + 2 * i for i in range(8)] + [4, 6]
    for i, r in enumerate(regs):
        a(f"""
        v_mov_b32 v{vtmp}, s{r}
        buffer_store_dword v{vtmp}, v{vtmp+1}, {sr4(S_WS)}, s3 offen offset:{4*i}
        s_nop 1
        """)


def flag_store(a, soff_reg, vtmp):
    a(f"""
    v_mov_b32 v{vtmp}, s{sNONCE}
    v_mov_b32 v{vtmp+1}, 0
    s_mov_b64 exec, 1
    buffer_store_dword v{vtmp}, v{vtmp+1}, {sr4(S_WS)}, s{soff_reg} offen{SC}
    s_mov_b64 exec, -1
    """)


_uid = [0]


def poll(a, addrs, soff, vtmp, sleep):
    _uid[0] += 1
    u = _uid[0]
    a(f"s_mov_b32 s{sSPIN}, {SPIN_MAX}")
    a.label(f"poll_ld{u}")
    for i, va in enumerate(addrs):
        a(f"buffer_load_dword v{vtmp+i}, v{va}, {sr4(S_WS)}, s{soff} offen{SC}")
    a("s_waitcnt vmcnt(0)")
    poll_cmp(a, len(addrs), vtmp)
    a(f"""
    s_sub_u32 s{sSPIN}, s{sSPIN}, 1
    s_cbranch_scc1 poll_done{u}
    s_cmp_eq_u64 vcc, 0
    s_cbranch_scc1 poll_done{u}
    s_sleep {sleep}
    s_branch poll_ld{u}
    """)
    a.label(f"poll_done{u}")


def poll_cmp(a, n, vtmp):
    if n == 1:
        a(f"v_cmp_ne_u32 vcc, s{sNONCE}, v{vtmp}")
    else:
        a(f"""
        v_xor_b32 v{vtmp}, s{sNONCE}, v{vtmp}
        v_xor_b32 v{vtmp+1}, s{sNONCE}, v{vtmp+1}
        v_or_b32 v{vtmp}, v{vtmp}, v{vtmp+1}
        v_cmp_ne_u32 vcc, 0, v{vtmp}
        """)


def lds_set(a, off, val, vtmp):
    a(f"""
    v_mov_b32 v{vtmp}, {CNT + off}
    v_mov_b32 v{vtmp+1}, {val}
    ds_write_b32 v{vtmp}, v{vtmp+1}
    """)


def lds_wait(a, off, vtmp, cond, sleep=1):
    _uid[0] += 1
    u = _uid[0]
    a(f"v_mov_b32 v{vtmp}, {CNT + off}")
    a.label(f"lw{u}")
    a(f"""
    ds_read_b32 v{vtmp+1}, v{vtmp}
    s_waitcnt lgkmcnt(0)
    v_readfirstlane_b32 s{sT0}, v{vtmp+1}
    """)
    a(f"s_cmp_lg_u32 s{sT0}, 0" if cond == "ne0" else f"s_cmp_eq_u32 s{sT0}, {cond[2:]}")
    a(f"""
    s_cbranch_scc1 lwd{u}
    s_sleep {sleep}
    s_branch lw{u}
    """)
    a.label(f"lwd{u}")


class VM:
    def __init__(self):
        self.q = []

    def add(self, tag):
        self.q.append(tag)

    def wait(self, tags, counts=None):
        idx = max([i for i, t in enumerate(self.q) if t in tags], default=-1)
        for t in tags:
            assert t in self.q, (t, self.q)
            if counts:
                assert self.q.count(t) == counts(t), (t, self.q)
        n = len(self.q) - 1 - idx
        assert n <= 63
        return n

    def copy(self):
        v = VM(); v.q = list(self.q); return v


vFLA, vPOL, vFQO, vF1, vNON = 7, 9, 11, 12, 13
vDW = 31


def flag1(a, soff):
    return f"buffer_store_dword v{vNON}, v{vF1}, {sr4(S_WS)}, s{soff} offen{SC}"


AQ, AO, AS, AKV, AP, ATMP = 16, 48, [112, 128], 144, 208, 224
avG, avM, avONE = 14, 15, 216
sME, sMO = 24, 26
sKB, sVB, sTI, sKS, sVS, sIT = 45, 46, 47, 48, 52, 49


avV0, avV1 = 14, 11
HBR = 240


def hb_stores():
    return [f"buffer_store_dwordx4 {vr(HBR+4*i, 4)}, v{vL16}, {sr4(S_WS)}, s{sHOFF2} offen offset:{1024*i}{SC}" for i in range(2)]

sVM = 30


def kv_adv():
    return [f"s_mul_i32 s{sVS}, s{sTI}, {TQ}", f"s_add_u32 s{sKS}, s{sVS}, s{sKB}",
            f"s_add_u32 s{sVS}, s{sVS}, s{sVB}",
            f"s_add_u32 s{sTI}, s{sTI}, 1", f"s_and_b32 s{sTI}, s{sTI}, 15"]


def kv_load(buf, part, vv=(None, None)):
    if part < 2:
        return [f"buffer_load_dwordx4 {vr(AKV+16*buf+4*part, 4)}, v{vL16}, {sr4(S_WS)}, s{sKS} offen offset:{1024*part}{SC}"]
    return [f"s_mov_b64 exec, s[{sVM}:{sVM+1}]",
            f"buffer_load_dwordx4 {vr(AKV+16*buf+4*part, 4)}, v{vv[part-2]}, {sr4(S_WS)}, s{sVS} offen{SC}",
            "s_mov_b64 exec, -1"]


def att_loads():
    vm = VM()
    o1 = L(f"""
    s_mov_b32 s{sOK}, s{sT0}
    s_lshl_b32 s{sT1}, s{sP0}, 9
    s_lshl_b32 s{sT2}, s{sQB}, 2
    s_add_u32 s{sT2}, s{sT2}, s{sKQ}
    s_mul_i32 s{sT0}, s{sT2}, {TQ}
    s_add_u32 s{sT0}, s{sT0}, s{sT1}
    buffer_load_dwordx4 {vr(AQ, 4)}, v{vL16}, {sr4(S_WS)}, s{sT0} offen{SC}
    buffer_load_dwordx4 {vr(AQ+4, 4)}, v{vL16}, {sr4(S_WS)}, s{sT0} offen offset:1024{SC}
    s_mul_i32 s{sVB}, s{sKQ}, {16 * TQ}
    s_add_u32 s{sKB}, s{sVB}, s{sT1}
    s_add_u32 s{sKB}, s{sKB}, {KF}
    s_mul_i32 s{sT0}, s{sHEAD}, 448
    s_add_u32 s{sVB}, s{sVB}, s{sT0}
    s_add_u32 s{sVB}, s{sVB}, {VF}
    s_and_b32 s{sTI}, s{sQB}, {AROT}
    s_mov_b32 s{sVM}, 0x0fffffff
    s_mov_b32 s{sVM+1}, 0x0fffffff
    v_lshrrev_b32 v{avV0}, 5, v{vLane}
    v_mul_u32_u24 v{avV0}, {7168 - 512}, v{avV0}
    v_add_u32 v{avV0}, v{avV0}, v{vL16}
    v_add_u32 v{avV1}, 14336, v{avV0}
    """)
    vm.add(("q",)); vm.add(("q",))
    o2, o3 = [], []
    for t in range(3):
        o = o1 if t == 0 else o2
        o += [f"s_add_u32 s{sT0}, s{sTI}, {t}", f"s_and_b32 s{sT0}, s{sT0}, 15", f"s_mul_i32 s{sKS}, s{sT0}, {TQ}", f"s_add_u32 s{sKS}, s{sKS}, s{sKB}"]
        for p in range(2):
            o.append(kv_load(t, p))
            vm.add(("kv", t, p))
        o2 += [f"v_mov_b32 v{AKV+16*t+8+i}, 0x3f803f80" for i in range(8)]
    o3.append(f"s_mov_b64 exec, s[{sVM}:{sVM+1}]")
    for t in range(3):
        o3 += [f"s_mul_i32 s{sVS}, s{sTI}, {TQ}", f"s_add_u32 s{sVS}, s{sVS}, s{sVB}", f"s_add_u32 s{sTI}, s{sTI}, 1", f"s_and_b32 s{sTI}, s{sTI}, 15"]
        for p in range(2, 4):
            o3.append(kv_load(t, p, (avV0, avV1))[1])
    o3.append("s_mov_b64 exec, -1")
    flat = lambda o: [y for x in o for y in (x if isinstance(x, list) else [x])]
    return o1, o2, vm, flat, o3


def fq_eval(a):
    a(f"""
    v_cmp_ne_u32 vcc, s{sNONCE}, v{vPOL}
    v_cmp_ne_u32 s[16:17], s{sNONCE}, v{vPOL+1}
    s_nop 0
    s_or_b32 s{sT0}, vcc_lo, s16
    s_cselect_b32 s{sT0}, 4, 5
    s_cmp_eq_u32 vcc_hi, 0
    s_cselect_b32 s{sT1}, 2, 0
    s_or_b32 s{sT0}, s{sT0}, s{sT1}
    """)


def fq_issue(a):
    a(f"""
    buffer_load_dword v{vPOL}, v{vFLA}, {sr4(S_WS)}, s{sFQB} offen{SC}
    buffer_load_dword v{vPOL+1}, v{vFLA+1}, {sr4(S_WS)}, s{sFQB} offen{SC}
    """)


def fq_wait(a, tag, bit, first_issued=False):
    a(f"s_cmp_lg_u32 s{sW}, 0\ns_cbranch_scc1 {tag}_lw\ns_mov_b32 s{sSPIN}, {SPIN_MAX}")
    if first_issued:
        a(f"s_branch {tag}_chk")
    a.label(f"{tag}_ld")
    fq_issue(a)
    a.label(f"{tag}_chk")
    a("s_waitcnt vmcnt(0)")
    fq_eval(a)
    a(f"""
    s_sub_u32 s{sSPIN}, s{sSPIN}, 1
    s_cselect_b32 s{sT0}, 7, s{sT0}
    s_bitcmp1_b32 s{sT0}, {bit}
    s_cbranch_scc1 {tag}_ok
    s_sleep {SLEEP_Q}
    s_branch {tag}_ld
    """)
    a.label(f"{tag}_ok")
    lds_set(a, 4, f"s{sT0}", vT0)
    a(f"s_branch {tag}_go")
    a.label(f"{tag}_lw")
    a(f"v_mov_b32 v{vT0}, {CNT + 4}")
    a.label(f"{tag}_lw2")
    a(f"""
    ds_read_b32 v{vT1}, v{vT0}
    s_waitcnt lgkmcnt(0)
    v_readfirstlane_b32 s{sT0}, v{vT1}
    s_bitcmp1_b32 s{sT0}, {bit}
    s_cbranch_scc1 {tag}_go
    s_sleep 1
    s_branch {tag}_lw2
    """)
    a.label(f"{tag}_go")


def wk_off(i):
    return 8 * (i % 14) + 4 * (i // 14)


def gen():
    a = Asm()
    vDX0, vDX1, vDB0, vDG, vDU = 7, 8, 9, 10, 11
    vAX = 14
    vAW = 18
    vST = 22
    vN, vR4, vC, vRow = 26, 27, 28, 29
    X, ACC, WF = 32, 144, 224
    PFR, vPFL, sPFI = ACC + 60, 30, 58

    stamp(a, "start")
    if INSTR: a("s_memrealtime s[100:101]")
    if "dbgt" in OPT: a("s_memtime s[86:87]\ns_memrealtime s[88:89]")
    a(f"""
    s_cmp_ge_u32 s2, 256
    s_cbranch_scc1 k_end
    """)
    if os.environ.get("DELAY"):
        a(f"""
        s_cmp_lg_u32 s2, {os.environ["DELAY"]}
        s_cbranch_scc1 k_nodelay
        s_mov_b32 s3, 12
        """)
        a.label("k_delay")
        a("s_sleep 100\ns_sub_u32 s3, s3, 1\ns_cmp_lg_u32 s3, 0\ns_cbranch_scc1 k_delay")
        a.label("k_nodelay")
    a(f"""
    s_load_dwordx16 s[64:79], s[0:1], 0
    s_load_dwordx4 s[80:83], s[0:1], 64
    s_load_dwordx2 s[84:85], s[0:1], 80
    v_and_b32 v{vLane}, 63, v0
    v_lshrrev_b32 v{vT0}, 6, v0
    s_and_b32 s{sC8}, s2, 7
    s_lshr_b32 s{sI32}, s2, 3
    v_readfirstlane_b32 s{sW}, v{vT0}
    s_lshr_b32 s{sT1}, s{sC8}, 1
    s_mul_i32 s{sT0}, s{sT1}, 28
    s_sub_u32 s{sT0}, s{sT0}, 4
    s_lshl_b32 s{sT1}, s{sT1}, 2
    s_add_u32 s{sT1}, s{sT1}, 112
    s_cmp_lt_u32 s{sI32}, 4
    s_cselect_b32 s{sT0}, s{sT1}, s{sT0}
    s_add_u32 s{sT0}, s{sT0}, s{sI32}
    s_lshr_b32 s{sJ}, s{sT0}, 3
    s_and_b32 s{sT0}, s{sT0}, 7
    s_and_b32 s{sMI}, s{sC8}, 1
    s_lshl_b32 s{sMI}, s{sMI}, 3
    s_add_u32 s{sMI}, s{sMI}, s{sT0}
    v_lshrrev_b32 v{vT0}, 3, v{vLane}
    v_lshrrev_b32 v{vT1}, 4, v{vLane}
    v_and_b32 v{vT2}, 7, v{vLane}
    v_xor_b32 v{vT3}, v{vT2}, v{vT1}
    s_lshl_b32 s{sT0}, s{sMI}, 7
    s_lshl_b32 s{sT1}, s{sW}, 4
    s_add_u32 s{sT0}, s{sT0}, s{sT1}
    v_add_u32 v{vDX0}, s{sT0}, v{vT0}
    v_mul_u32_u24 v{vDX0}, 896, v{vDX0}
    v_lshl_add_u32 v{vDX0}, v{vT3}, 4, v{vDX0}
    v_xor_b32 v{vDX1}, 64, v{vDX0}
    v_add_u32 v{vDX1}, 7168, v{vDX1}
    v_and_b32 v{vT3}, 1, v{vT1}
    v_lshlrev_b32 v{vT3}, 2, v{vT3}
    v_xor_b32 v{vT3}, v{vT3}, v{vT2}
    v_lshlrev_b32 v{vT3}, 4, v{vT3}
    v_mul_u32_u24 v{vDW}, 896, v{vT0}
    v_add_u32 v{vDW}, v{vDW}, v{vT3}
    s_lshl_b32 s{sT0}, s{sW}, 3
    v_add_u32 v{vT0}, s{sT0}, v{vT0}
    v_mul_u32_u24 v{vDB0}, 2688, v{vT0}
    v_add_u32 v{vDB0}, v{vDB0}, v{vT3}
    s_lshl_b32 s{sMX}, s{sW}, 11
    s_lshl_b32 s{sMB}, s{sW}, 10
    s_add_u32 s{sMB}, s{sMB}, 16384
    v_lshlrev_b32 v{vL16}, 4, v{vLane}
    s_mov_b32 s{S_X+2}, {2048 * 448 * 2}
    s_mov_b32 s{S_X+3}, 0x00020000
    s_mov_b32 s{S_B0+2}, {448 * 1344 * 2}
    s_mov_b32 s{S_B0+3}, 0x00020000
    s_mov_b32 s{S_G+3}, 0x00020000
    s_mov_b32 s{S_U+3}, 0x00020000
    s_cmp_ge_u32 s{sJ}, 14
    s_cbranch_scc1 k1_v
    """)

    vm = None

    def emit_group(g):
        for l in g[0]:
            a(l)
        vm.add(g[1])

    def dma(m0base, m0off, vaddr, srdb, soff):
        return [f"s_add_u32 m0, s{m0base}, {m0off & 0xffffffff}", f"s_mov_b32 s{sSO}, {soff}",
                f"buffer_load_dwordx4 v{vaddr}, {sr4(srdb)}, s{sSO} offen lds"]

    def pf1(tg):
        if "nopf" in OPT.split(","):
            return
        a(f"""
        s_lshl_b32 s{sPFI}, s2, 3
        s_add_u32 s{sPFI}, s{sPFI}, s{sW}
        s_lshl_b32 s{sT0}, s{sPFI}, 10
        s_mov_b32 s{S_TMP+3}, 0x00020000
        v_lshrrev_b32 v{vPFL}, 3, v{vLane}
        v_lshlrev_b32 v{vPFL}, 7, v{vPFL}
        v_add_u32 v{vPFL}, v{vPFL}, v{vL16}
        """)
        if "nox" not in OPT:
            a(f"buffer_load_dwordx4 {vr(PFR, 4)}, v{vL16}, {sr4(S_X)}, s{sT0} offen")
            vm.add(("PF",))
        if "now1" in OPT:
            return
        a(f"""
        s_cmp_lt_u32 s{sPFI}, {NQ}
        s_cbranch_scc1 k_pf_q_{tg}
        s_cmp_lt_u32 s{sPFI}, {NQ + NG}
        s_cselect_b32 s{S_TMP}, s{P_WG}, s{P_WU}
        s_cselect_b32 s{S_TMP+1}, s{P_WG+1}, s{P_WU+1}
        s_cselect_b32 s{sT0}, 0, {NG}
        s_mov_b32 s{S_TMP+2}, {448 * 1792 * 2}
        s_sub_u32 s{sT0}, s{sPFI}, s{sT0}
        s_lshl_b32 s{sT0}, s{sT0}, 11
        s_add_u32 s{sT0}, s{sT0}, {(PFROW * 3584 - NQ * 2048) & 0xffffffff}
        buffer_load_dwordx4 {vr(PFR+4, 4)}, v{vPFL}, {sr4(S_TMP)}, s{sT0} offen
        s_branch k_pf_d_{tg}
        """)
        a.label(f"k_pf_q_{tg}")
        a(f"""
        s_add_u32 s{sT0}, s{sT0}, {PFROW * 2688}
        buffer_load_dwordx4 {vr(PFR+4, 4)}, v{vL16}, {sr4(S_B0)}, s{sT0} offen
        """)
        a.label(f"k_pf_d_{tg}")
        vm.add(("PF",))

    def common_setup2(tg):
        srd(a, S_WS, P_WS, WS_BYTES)
        srd(a, S_DBG, P_DBG, 256)
        srd(a, S_WD, P_WD, 1792 * 448 * 2)
        a(f"""
        s_or_b32 s{sT0}, s2, s{sW}
        s_cmp_lg_u32 s{sT0}, 0
        s_cbranch_scc1 k_nononce_{tg}
        s_memrealtime s[{sSC}:{sSC+1}]
        v_mov_b32 v{vT1}, 0
        s_waitcnt lgkmcnt(0)
        s_or_b32 s{sT0}, s{sSC}, 0x80000000
        v_mov_b32 v{vT0}, s{sT0}
        s_mov_b64 exec, 1
        buffer_store_dword v{vT0}, v{vT1}, {sr4(S_DBG)}, 0 offen{SC}
        s_mov_b64 exec, -1
        """)
        a.label(f"k_nononce_{tg}")
        if not PFPOS:
            pf1(tg)
        if PF_EARLY:
            for g in (([] if 'no2' in OPT else [pf2()]) + ([pf3()] if PF_EARLY == 2 else [])):
                emit_group(g)
        if "tlb" in OPT:
            a(f"""
            s_cmp_lg_u32 s{sW}, 1
            s_cbranch_scc1 k_notlb_{tg}
            s_mov_b32 s{sT0}, {TLB_STR}
            v_mul_lo_u32 v{vT0}, v{vLane}, s{sT0}
            s_mul_i32 s{sT1}, s{sI32}, {TLB_WG}
            s_mov_b32 s{S_TMP}, s{P_WS}
            s_mov_b32 s{S_TMP+1}, s{P_WS+1}
            s_mov_b32 s{S_TMP+2}, {(16 << 20) + 0x50000}
            s_mov_b32 s{S_TMP+3}, 0x00020000
            buffer_load_dword v{ACC+76}, v{vT0}, {sr4(S_TMP)}, s{sT1} offen
            s_mov_b32 s{S_TMP}, s{P_OUT}
            s_mov_b32 s{S_TMP+1}, s{P_OUT+1}
            s_mov_b32 s{S_TMP+2}, {2048 * 448 * 2}
            buffer_load_dword v{ACC+77}, v{vT0}, {sr4(S_TMP)}, s{sT1} offen
            """)
            a.label(f"k_notlb_{tg}")
        if "nocp" not in OPT:
            a(f"""
            s_cmp_ge_u32 s{sI32}, 5
            s_cbranch_scc1 k_nocp_{tg}
            s_lshl_b32 s{sT0}, s{sI32}, 3
            s_add_u32 s{sT0}, s{sT0}, s{sW}
            s_lshl_b32 s{sT0}, s{sT0}, 10
            v_add_u32 v{vT0}, s{sT0}, v{vL16}
            v_min_u32 v{vT0}, k_end-{KNAME}-12, v{vT0}
            s_getpc_b64 s[{sSC}:{sSC+1}]
            """)
            a.label(f"k_pc_{tg}")
            a(f"""
            s_sub_u32 s{sSC}, s{sSC}, k_pc_{tg}-{KNAME}
            s_subb_u32 s{sSC+1}, s{sSC+1}, 0
            v_mov_b32 v{vT2}, s{sSC+1}
            v_add_co_u32 v{vT1}, vcc, s{sSC}, v{vT0}
            s_nop 1
            v_addc_co_u32 v{vT2}, vcc, 0, v{vT2}, vcc
            global_load_dwordx4 {vr(ACC+76, 4)}, v[{vT1}:{vT2}], off
            """)
            a.label(f"k_nocp_{tg}")
        a(f"""
        s_and_b32 s{sR}, s{sW}, 3
        s_lshr_b32 s{sGRP}, s{sW}, 2
        s_lshl_b32 s{sTILE}, s{sMI}, 2
        s_add_u32 s{sTILE}, s{sTILE}, s{sR}
        v_and_b32 v{vT0}, 31, v{vLane}
        v_lshrrev_b32 v{vT1}, 5, v{vLane}
        v_bfe_u32 v{vT2}, v{vLane}, 1, 3
        v_xor_b32 v{vT2}, v{vT2}, v{vT1}
        s_lshl_b32 s{sT0}, s{sR}, 12
        v_lshlrev_b32 v{vT3}, 7, v{vT0}
        v_lshl_add_u32 v{vT3}, v{vT2}, 4, v{vT3}
        v_add_u32 v{vAX}, s{sT0}, v{vT3}
        v_xor_b32 v{vAX+1}, 32, v{vAX}
        v_xor_b32 v{vAX+2}, 64, v{vAX}
        v_xor_b32 v{vAX+3}, 96, v{vAX}
        v_bfe_u32 v{vN}, v{vLane}, 4, 1
        v_bfe_u32 v{vR4}, v{vLane}, 2, 2
        v_and_b32 v{vC}, 3, v{vLane}
        v_lshl_add_u32 v{vRow}, v{vT1}, 3, v{vR4}
        v_and_b32 v{vT2}, 2, v{vR4}
        v_xor_b32 v{vT2}, v{vT2}, v{vN}
        s_lshl_b32 s{sT0}, s{sGRP}, 1
        v_xor_b32 v{vT2}, s{sT0}, v{vT2}
        v_lshlrev_b32 v{vT3}, 7, v{vRow}
        v_lshl_add_u32 v{vT3}, v{vT2}, 5, v{vT3}
        v_lshl_add_u32 v{vT3}, v{vC}, 3, v{vT3}
        v_add_u32 v{vAW}, 16384, v{vT3}
        s_mov_b32 s{sNL2E}, {f32bits(-LOG2E):#x}
        """)

    def flag_addr(vtype, vfla, vfqo):
        t0, t1, t2, t3 = vN, vR4, vC, vRow
        o = L(f"""
        s_lshl_b32 s{sHEAD}, s{sC8}, 1
        s_and_b32 s{sT2}, s{sI32}, 1
        s_add_u32 s{sHEAD}, s{sHEAD}, s{sT2}
        s_lshr_b32 s{sQB}, s{sI32}, 1
        s_lshl_b32 s{sMT}, s{sC8}, 2
        s_and_b32 s{sT2}, s{sI32}, 3
        s_add_u32 s{sMT}, s{sMT}, s{sT2}
        s_lshr_b32 s{sNT}, s{sI32}, 2
        s_mul_i32 s{sP0}, s{sHEAD}, 7
        s_lshr_b32 s{sP0}, s{sP0}, 1
        s_lshl_b32 s{sFQB}, s{sHEAD}, 12
        s_add_u32 s{sFQB}, s{sFQB}, {FQ}
        s_lshr_b32 s{sT1}, s{sQB}, 2
        s_lshl_b32 s{sT1}, s{sT1}, 7
        s_and_b32 s{sT2}, s{sQB}, 3
        s_lshl_b32 s{sT2}, s{sT2}, 2
        s_add_u32 s{sT1}, s{sT1}, s{sT2}
        s_add_u32 s{sT1}, s{sT1}, 2048
        v_lshrrev_b32 v{t0}, 2, v{vLane}
        v_and_b32 v{t1}, 3, v{vLane}
        v_lshlrev_b32 v{t1}, 2, v{t1}
        v_lshl_add_u32 v{vfla}, v{t0}, 7, v{t1}
        v_and_b32 v{t0}, 1, v{vLane}
        v_lshl_add_u32 v{vfla+1}, v{t0}, 9, s{sT1}
        v_and_b32 v{t0}, 15, v{vLane}
        v_lshrrev_b32 v{t1}, 4, v{vLane}
        v_lshlrev_b32 v{t3}, 12, v{t0}
        v_lshl_add_u32 v{t3}, v{t1}, 9, v{t3}
        s_lshr_b32 s{sT1}, s{sMI}, 2
        s_lshl_b32 s{sT1}, s{sT1}, 7
        s_and_b32 s{sT2}, s{sMI}, 3
        s_lshl_b32 s{sT2}, s{sT2}, 2
        s_add_u32 s{sT1}, s{sT1}, s{sT2}
        """)
        if not vtype:
            o += L(f"""
            s_add_u32 s{sT2}, s{sJ}, 1
            s_lshr_b32 s{sT2}, s{sT2}, 3
            v_mul_u32_u24 v{t2}, 7, v{t0}
            v_lshrrev_b32 v{t2}, 1, v{t2}
            v_mad_u32_u24 v{t2}, v{t1}, 3, v{t2}
            v_lshrrev_b32 v{t2}, 3, v{t2}
            v_lshrrev_b32 v{t1}, 1, v{t1}
            v_lshl_add_u32 v{t2}, v{t1}, 6, v{t2}
            v_mad_u32_u24 v{t2}, s{sT2}, 7, v{t2}
            v_cmp_eq_u32 vcc, s{sJ}, v{t2}
            s_lshl_b32 s{sT2}, s{sT2}, 11
            s_sub_u32 s{sT1}, s{sT1}, s{sT2}
            s_add_u32 s{sT1}, s{sT1}, 2048
            """)
        else:
            o += L(f"""
            v_add_u32 v{t2}, 14, v{t1}
            v_cmp_eq_u32 vcc, s{sJ}, v{t2}
            s_add_u32 s{sT1}, s{sT1}, 1024
            """)
        o += L(f"""
        v_add_u32 v{t3}, s{sT1}, v{t3}
        v_mov_b32 v{t0}, {OOB}
        v_cndmask_b32 v{vfqo}, v{t0}, v{t3}, vcc
        v_cmp_eq_u32 vcc, 0, v{vLane}
        s_lshr_b32 s{sFHO}, s{sTILE}, 1
        s_lshl_b32 s{sFHO}, s{sFHO}, 10
        v_cndmask_b32 v{vF1}, v{t0}, v{vLane}, vcc
        s_lshr_b32 s{sT1}, s{sJ}, 1
        s_lshl_b32 s{sT1}, s{sT1}, 7
        s_add_u32 s{sFHO}, s{sFHO}, s{sT1}
        s_and_b32 s{sT1}, s{sJ}, 1
        s_lshl_b32 s{sT1}, s{sT1}, 3
        s_add_u32 s{sFHO}, s{sFHO}, s{sT1}
        s_and_b32 s{sT1}, s{sR}, 1
        s_lshl_b32 s{sT1}, s{sT1}, 2
        s_add_u32 s{sFHO}, s{sFHO}, s{sT1}
        s_add_u32 s{sFHO}, s{sFHO}, {FHB}
        s_lshl_b32 s{sFHA}, s{sMI}, 9
        s_lshr_b32 s{sT1}, s{sJ}, 2
        s_lshl_b32 s{sT1}, s{sT1}, 7
        s_add_u32 s{sFHA}, s{sFHA}, s{sT1}
        s_and_b32 s{sT1}, s{sJ}, 3
        s_lshl_b32 s{sT1}, s{sT1}, 2
        s_add_u32 s{sFHA}, s{sFHA}, s{sT1}
        s_add_u32 s{sFHA}, s{sFHA}, {FH}
        s_lshl_b32 s{sM0}, s{sNT}, 7
        s_mul_i32 s{sWB}, s{sR}, {16 * 896}
        s_add_u32 s{sWB}, s{sWB}, s{sM0}
        s_lshl_b32 s{sM0}, s{sR}, 11
        """)
        return o

    def nonce_get(tag):
        a(f"""
        v_readfirstlane_b32 s{sNONCE}, v{vNON}
        v_lshlrev_b32 v{vT0}, 2, v{vLane}
        v_add_u32 v{vT0}, {CNT}, v{vT0}
        v_mov_b32 v{vT1}, 0
        s_cmp_lg_u32 s{sNONCE}, 0
        s_cbranch_scc1 k1_nonce_ok_{tag}
        """)
        a.label(f"k1_nonce_spin_{tag}")
        a(f"""
        buffer_load_dword v{vNON}, v{vT1}, {sr4(S_DBG)}, 0 offen{SC}
        s_waitcnt vmcnt(0)
        v_readfirstlane_b32 s{sNONCE}, v{vNON}
        s_sleep 4
        s_cmp_eq_u32 s{sNONCE}, 0
        s_cbranch_scc1 k1_nonce_spin_{tag}
        """)
        a.label(f"k1_nonce_ok_{tag}")
        a(f"ds_write_b32 v{vT0}, v{vT1}")

    def pf2():
        return (L(f"""
        s_cmp_lt_u32 s{sPFI}, 784
        s_cselect_b32 s{S_TMP}, s{P_WG}, s{P_WU}
        s_cselect_b32 s{S_TMP+1}, s{P_WG+1}, s{P_WU+1}
        s_cselect_b32 s{sT0}, 0, 784
        s_mov_b32 s{S_TMP+2}, {448 * 1792 * 2}
        s_sub_u32 s{sT0}, s{sPFI}, s{sT0}
        s_lshl_b32 s{sT0}, s{sT0}, 11
        buffer_load_dwordx4 {vr(PFR+8, 4)}, v{vPFL}, {sr4(S_TMP)}, s{sT0} offen offset:128
        """), ("PF",))

    def pf3():
        return (L(f"""
        s_cmp_lt_u32 s{sPFI}, 1568
        s_cselect_b32 s{S_TMP}, s{P_WD}, s{P_WO}
        s_cselect_b32 s{S_TMP+1}, s{P_WD+1}, s{P_WO+1}
        s_cselect_b32 s{sT0}, 0, 1568
        s_cselect_b32 s{S_TMP+2}, s{S_WD+2}, {448 * 448 * 2}
        s_sub_u32 s{sT0}, s{sPFI}, s{sT0}
        s_lshl_b32 s{sT0}, s{sT0}, 10
        buffer_load_dwordx4 {vr(PFR+12, 4)}, v{vL16}, {sr4(S_TMP)}, s{sT0} offen
        """), ("PF",))

    nonce_ld = ([f"v_mov_b32 v{vNON}, 0", f"buffer_load_dword v{vNON}, v{vNON}, {sr4(S_DBG)}, 0 offen{SC}"], ("N",))

    def wpref(i):
        ra = ring_addr(i % 13)
        return [f"s_add_u32 m0, s{sM0}, {ra}", f"s_add_u32 s{sT0}, s{sWB}, {wk_off(i) * 16 * 896}",
                f"buffer_load_dwordx4 v{vDW}, {sr4(S_WD)}, s{sT0} offen lds",
                f"s_add_u32 m0, s{sM0}, {ra + 1024}", f"s_add_u32 s{sT0}, s{sT0}, {8 * 896}",
                f"buffer_load_dwordx4 v{vDW}, {sr4(S_WD)}, s{sT0} offen lds"]

    abase = [0]

    def set_base(nb, regs):
        out = []
        if nb != abase[0]:
            d = nb - abase[0]
            for r in regs:
                out.append(f"v_add_u32 v{r}, {d}, v{r}" if d > 0 else f"v_subrev_u32 v{r}, {-d}, v{r}")
            abase[0] = nb
        return out

    def emit(x):
        if isinstance(x, tuple):
            a(x[1]); vm.add((x[0],))
        else:
            a(x)

    vm = VM()
    cnts = lambda t: {"A": 5, "B": 2}[t[0]] if t[0] in ("A", "B") else vm.q.count(t)
    a(f"""
    s_lshl_b32 s{sT0}, s{sJ}, 7
    v_add_u32 v{vDB0}, s{sT0}, v{vDB0}
    v_mul_u32_u24 v{vDG}, 3584, v{vT0}
    s_lshl_b32 s{sT0}, s{sJ}, 8
    v_add3_u32 v{vDG}, v{vDG}, v{vT3}, s{sT0}
    v_xor_b32 v{vDU}, 32, v{vDG}
    s_mov_b32 s{S_G+2}, {448 * 1792 * 2}
    s_mov_b32 s{S_U+2}, {448 * 1792 * 2}
    s_waitcnt lgkmcnt(0)
    s_mov_b64 s[{S_X}:{S_X+1}], s[{P_X}:{P_X+1}]
    s_mov_b64 s[{S_B0}:{S_B0+1}], s[{P_WQKV}:{P_WQKV+1}]
    s_mov_b64 s[{S_G}:{S_G+1}], s[{P_WG}:{P_WG+1}]
    s_mov_b64 s[{S_U}:{S_U+1}], s[{P_WU}:{P_WU+1}]
    """)

    def fA(st):
        b = (st % 4) * SLOT
        g = [dma(sMX, b, vDX0, S_X, st * 128), dma(sMX, b + 1024, vDX1, S_X, st * 128),
             dma(sMB, b, vDB0, S_B0, st * 64 * 2688), dma(sMB, b + 8192, vDG, S_G, st * 64 * 3584),
             dma(sMB, b + 16384, vDU, S_U, st * 64 * 3584)]
        return [(x, ("A", st)) for x in g]

    def bslot(sb):
        return ((3 + sb // 2) % 4) * SLOT + (sb % 2) * 16384

    def fB(sb):
        b = bslot(sb) - 16384
        g = [dma(sMB, b, vDG, S_G, sb * 64 * 3584 + 128), dma(sMB, b + 8192, vDU, S_U, sb * 64 * 3584 + 128)]
        return [(x, ("B", sb)) for x in g]

    for g in fA(0):
        emit_group(g)
    a("s_barrier")
    if PFPOS: pf1("f")
    for g in fA(1):
        emit_group(g)
    common_setup2("f")
    a(f"""
    v_lshl_add_u32 v{vAW+1}, v{vN}, 13, v{vT3}
    v_add_u32 v{vAW+1}, {16384 + 8192}, v{vAW+1}
    v_xor_b32 v{vAW+2}, 32, v{vAW+1}
    s_cmp_ge_u32 s{sJ}, 7
    s_cselect_b32 s{sT1}, {KF - 7 * 4096}, {QF}
    s_cselect_b32 s{sSC}, 1.0, {f32bits(28 ** -0.5 * LOG2E):#x}
    s_lshl_b32 s{sT2}, s{sJ}, 12
    s_add_u32 s{sT1}, s{sT1}, s{sT2}
    s_lshl_b32 s{sT2}, s{sGRP}, 11
    s_add_u32 s{sT1}, s{sT1}, s{sT2}
    s_mul_i32 s{sQKO}, s{sTILE}, {TQ}
    s_add_u32 s{sQKO}, s{sQKO}, s{sT1}
    s_mul_i32 s{sHOFF}, s{sTILE}, 112
    s_lshl_b32 s{sT1}, s{sJ}, 3
    s_add_u32 s{sHOFF}, s{sHOFF}, s{sT1}
    s_lshl_b32 s{sT1}, s{sGRP}, 1
    s_add_u32 s{sHOFF}, s{sHOFF}, s{sT1}
    s_lshl_b32 s{sHOFF}, s{sHOFF}, 10
    s_add_u32 s{sHOFF}, s{sHOFF}, {HF}
    s_add_u32 s{sHOFF2}, s{sHOFF}, 4096
    """)
    WA = [WF, WF + 12, ACC + 48]
    NB = 4
    WB = [WF + 24, WF + 16, WF + 8, WF]

    def readsA(ks):
        st, s = ks // 4, ks % 4
        slot = st % 4
        out = set_base((slot // 2) * 2 * SLOT, [vAX, vAX+1, vAX+2, vAX+3, vAW, vAW+1, vAW+2])
        off = (slot % 2) * SLOT
        f = WA[ks % 3]
        out.append(f"ds_read_b128 {vr(X+4*ks, 4)}, v{vAX+s} offset:{off}")
        for t in range(3):
            for q in range(2):
                out.append(f"ds_read_b64_tr_b16 {vr(f+4*t+2*q, 2)}, v{vAW+t} offset:{off + (16*s + 4*q) * 128}")
        return out

    def readsB(ks):
        sb, s = ks // 4, ks % 4
        b = bslot(sb)
        f = WB[ks % NB]
        b32 = b - b % 32768
        off = b - b32
        out = set_base(b32 - 24576, [vAW+1, vAW+2])
        for t in range(2):
            for q in range(2):
                out.append(f"ds_read_b64_tr_b16 {vr(f+4*t+2*q, 2)}, v{vAW+1+t} offset:{off + (16*s + 4*q) * 128}")
        return out

    def epi_ffn(acc, ko, dst=None):
        g, u = acc, acc + 8
        dst = g if dst is None else dst
        o = []
        for i in range(8):
            o.append(f"v_mul_f32 v{u+i}, v{g+i}, v{u+i}")
            o.append(f"v_mul_f32 v{g+i}, s{sNL2E}, v{g+i}")
        for i in range(8):
            o.append(f"v_exp_f32 v{g+i}, v{g+i}")
        for i in range(8):
            o.append(f"v_add_f32 v{g+i}, 1.0, v{g+i}")
        for i in range(8):
            o.append(f"v_rcp_f32 v{g+i}, v{g+i}")
        for i in range(8):
            o.append(f"v_mul_f32 v{u+i}, v{u+i}, v{g+i}")
        for i in range(4):
            o.append(f"v_cvt_pk_bf16_f32 v{dst+i}, v{u+2*i}, v{u+2*i+1}")
        so, off = (sHOFF, ko) if ko < 4 else (sHOFF2, ko - 4)
        o.append(("H", f"buffer_store_dwordx4 {vr(dst, 4)}, v{vL16}, {sr4(S_WS)}, s{so} offen offset:{1024*off}{SC}"))
        return o

    def epi_qk():
        o = []
        for i in range(8):
            o.append(f"v_mul_f32 v{ACC+2*i}, s{sSC}, v{ACC+2*i}")
            o.append(f"v_mul_f32 v{ACC+2*i+1}, s{sSC}, v{ACC+2*i+1}")
            o.append(f"v_cvt_pk_bf16_f32 v{ACC+i}, v{ACC+2*i}, v{ACC+2*i+1}")
        o.append("s_nop 1")
        for hh in range(2):
            b = ACC + 4 * hh
            o.append(f"v_permlane32_swap_b32 v{b}, v{b+2}")
            o.append(f"v_permlane32_swap_b32 v{b+1}, v{b+3}")
            o.append(("QK", f"buffer_store_dwordx4 {vr(b, 4)}, v{vL16}, {sr4(S_WS)}, s{sQKO} offen offset:{1024*hh}{SC}"))
        return o

    abase[0] = 0
    a(f"s_waitcnt vmcnt({vm.wait({('A', 0)}, cnts)})\ns_barrier")
    stamp(a, "p1_first")
    for ks in range(2):
        for r in readsA(ks):
            a(r)
    pend = fA(2) + fA(3)
    vFQf = vST
    fillA = flag_addr(False, vFLA, vFQf)
    for ks in range(28):
        st, s = ks // 4, ks % 4
        f = WA[ks % 3]
        m = [f"{MFMA} {vr(ACC+16*t, 16)}, {vr(f+4*t, 4)}, {vr(X+4*ks, 4)}, {'0' if ks == 0 else vr(ACC+16*t, 16)}" for t in range(3)]
        if s == 2:
            need = {("A", st + 1)} if st < 6 else {("B", 0), ("B", 1), ("B", 2), ("B", 3), ("N",)}
            a(f"s_waitcnt vmcnt({vm.wait(need, cnts)}) lgkmcnt(0)")
            if st == 6:
                nonce_get("f")
            a("s_barrier")
            stamp(a, f"p1_a{st}")
            if st + 4 <= 6:
                pend += fA(st + 4)
            else:
                i0 = 2 * (st - 3)
                pend += fB(i0) + (fB(i0 + 1) if i0 + 1 < 7 else [])
            if st == 2:
                pend.append(nonce_ld)
            if "nopf" not in OPT and st == PF2_ST and PF_EARLY < 1: pend.append(pf2())
            if "nopf" not in OPT and st == PF3_ST and PF_EARLY < 2: pend.append(pf3())
        elif ks < 27:
            a("s_waitcnt lgkmcnt(7)")
        else:
            a("s_waitcnt lgkmcnt(4)")
        r = readsA(ks + 2) if ks + 2 < 28 else readsB(ks + 2 - 28)
        k = len(r) - 4 if ks + 2 < 28 else len(r) - 2
        a(m[0])
        for x in r[:k]:
            a(x)
        a(m[1])
        for x in r[k:]:
            a(x)
        a(m[2])
        if ks >= 16:
            assert vm.q.count(("A", 6)) == 5
            for _ in range(7):
                if fillA: a(fillA.pop(0))
        nd = 2 if (len(pend) > 4 or st < 1) else 1
        for _ in range(nd):
            if pend:
                emit_group(pend.pop(0))
    assert not fillA
    stamp(a, "p1_aend")
    for x in readsB(2):
        a(x)
    ea, eb = epi_ffn(ACC + 16, 0, X + 16), epi_ffn(ACC + 32, 1, X + 20)
    fillq = ["s_nop 3"] + epi_qk()
    fill = ea + eb
    wq = [0, 1, 2, 3, 4, 5, 6]
    sWH, sMH2 = sMX, sOK
    for ks in range(28):
        f = WB[ks % NB]
        m = [f"{MFMA} {vr(ACC+48+16*t, 16)}, {vr(f+4*t, 4)}, {vr(X+4*ks, 4)}, {'0' if ks == 0 else vr(ACC+48+16*t, 16)}" for t in range(2)]
        nxt = ks + NB - 1
        if ks == QKB:
            need = {5: {("B", 2), ("B", 3), ("N",)}, QKB: {("B", 4), ("B", 5), ("B", 6), ("QK",)}, 17: set()}[ks]
            if ks == QKB: assert vm.q.count(("QK",)) == 2 and QKB <= 13
            if need: a(f"s_waitcnt vmcnt({vm.wait(need, cnts)})")
            a("s_barrier")
            stamp(a, {5: "p1_b2", QKB: "p1_b4", 17: "p1_b5"}[ks])
            if ks == QKB:
                a(f"""
                s_cmp_lg_u32 s{sW}, 7
                s_cbranch_scc1 k1_noflag_f
                s_mov_b32 s{sT0}, {FQ}
                buffer_store_dword v{vNON}, v{vFQf}, {sr4(S_WS)}, s{sT0} offen{SC}
                """)
                a.label("k1_noflag_f")
        stamp(a, f"pb{ks}")
        a(f"s_waitcnt lgkmcnt({min(NB - 2, 27 - ks) * 4})")
        r = readsB(nxt) if nxt < 28 else []

        def dofill():
            if ks < 1: return
            if fillq:
                for _ in range(5):
                    if fillq: emit(fillq.pop(0))
            else:
                for _ in range(FPER):
                    if fill and isinstance(fill[0], tuple) and ks < HA_ST and len(fill) > 1:
                        fill[0], fill[1] = fill[1], fill[0]
                    if fill and not (isinstance(fill[0], tuple) and ks < HA_ST): emit(fill.pop(0))
        a(m[0])
        for x in r[:len(r) - 2]:
            a(x)
        if pend:
            emit_group(pend.pop(0))
        dofill()
        a(m[1])
        for x in r[len(r) - 2:]:
            a(x)
        dofill()
        if wq and ks >= WP_ST and (ring_addr(wq[0]) < 122880 or ks >= QKB) and not pend:
            i = wq.pop(0)
            if i == 0:
                a(f"""
                s_mul_i32 s{sWH}, s{sGRP}, {8 * 896}
                s_add_u32 s{sWH}, s{sWH}, s{sWB}
                s_cmp_ge_u32 s{sI32}, 28
                s_cselect_b32 s{sWH}, {OOB}, s{sWH}
                s_lshl_b32 s{sMH2}, s{sGRP}, 10
                s_add_u32 s{sMH2}, s{sMH2}, s{sM0}
                """)
            a(f"""
            s_add_u32 m0, s{sMH2}, {ring_addr(i)}
            s_add_u32 s{sT0}, s{sWH}, {wk_off(i) * 16 * 896}
            buffer_load_dwordx4 v{vDW}, {sr4(S_WD)}, s{sT0} offen lds
            """)
            vm.add(("WP",))
        if ks == EARLY_P:
            a(f"""
            s_cmp_lg_u32 s{sW}, 0
            s_cbranch_scc1 k1_nopoll
            buffer_load_dword v{vPOL}, v{vFLA}, {sr4(S_WS)}, s{sFQB} offen{SC}
            buffer_load_dword v{vPOL+1}, v{vFLA+1}, {sr4(S_WS)}, s{sFQB} offen{SC}
            """)
            a.label("k1_nopoll")
    assert not fill and not pend and not wq
    stamp(a, "pb28")
    a("s_nop 7\ns_nop 3")
    stamp(a, "p1_bend")
    e0, e1 = epi_ffn(ACC + 48, 4, HBR), epi_ffn(ACC + 64, 5, HBR + 4)
    ev = e0[:-1] + e1[:-1]
    for x in ev[:FA_AT]:
        a(x)
    ev = ev[FA_AT:]
    a(f"""
    v_mov_b32 v{vT0}, {CNT + 32}
    v_mov_b32 v{vT1}, 1
    s_waitcnt vmcnt(0)
    s_mov_b64 exec, 1
    ds_add_rtn_u32 v{vT1}, v{vT0}, v{vT1}
    s_mov_b64 exec, -1
    s_waitcnt lgkmcnt(0)
    v_readfirstlane_b32 s{sT0}, v{vT1}
    s_cmp_lg_u32 s{sT0}, 7
    s_cbranch_scc1 k1_nofa
    """)
    a(flag1(a, sFHA))
    a.label("k1_nofa")
    a(f"""
    s_cmp_ge_u32 s{sW}, 4
    s_cbranch_scc1 k1_epi
    s_cmp_lg_u32 s{sW}, 0
    s_cbranch_scc1 k1_w123
    """)
    fq_eval(a)
    lds_set(a, 4, f"s{sT0}", vT0)
    a(f"""
    s_bitcmp1_b32 s{sT0}, 0
    s_cbranch_scc1 k1_early
    """)
    fq_issue(a)
    a("s_branch k1_epi")
    a.label("k1_w123")
    lds_wait(a, 4, vT0, "ne0", 1)
    a(f"s_bitcmp1_b32 s{sT0}, 0\ns_cbranch_scc0 k1_epi")
    a.label("k1_early")
    stamp(a, "x_go")
    o1, o2, _, flat, _ = att_loads()
    for x in flat(o1):
        a(x)
    ev2 = list(ev)
    step = len(ev2) // len(o2)
    for x in o2:
        for _ in range(step):
            a(ev2.pop(0))
        for y in flat([x]):
            a(y)
    for x in ev2:
        a(x)
    stamp(a, "p1_end")
    a("s_branch att_main")
    a.label("k1_epi")
    for x in ev:
        a(x)
    stamp(a, "p1_end")
    a(f"""
    s_cmp_ge_u32 s{sW}, 4
    s_cbranch_scc1 gemm_role_f
    s_cmp_lg_u32 s{sW}, 0
    s_cbranch_scc1 aq_lw
    s_mov_b32 s{sSPIN}, {SPIN_MAX}
    s_branch aq_chk
    """)
    a.label("gemm_role_f")
    lds_wait(a, 32, vT0, "eq8", 1)
    a("s_branch gemm_role2")

    a.label("k1_v")
    vm = VM()
    cntv = lambda t: {"A": 5, "B": 1}[t[0]] if t[0] in ("A", "B") else vm.q.count(t)
    GWL = CNT + 1024
    a(f"""
    v_add_u32 v{vDU}, {(896 + 192) * 2}, v{vDB0}
    s_cmp_eq_u32 s{sJ}, 14
    s_cselect_b32 s{sT0}, 0, 512
    s_add_u32 s{sT0}, s{sT0}, {896 * 2}
    v_add_u32 v{vDB0}, s{sT0}, v{vDB0}
    s_mov_b32 s{S_U+2}, {448 * 2}
    s_waitcnt lgkmcnt(0)
    s_mov_b64 s[{S_X}:{S_X+1}], s[{P_X}:{P_X+1}]
    s_mov_b64 s[{S_B0}:{S_B0+1}], s[{P_WQKV}:{P_WQKV+1}]
    s_mov_b64 s[{S_U}:{S_U+1}], s[{P_GW}:{P_GW+1}]
    """)

    def vA(st):
        b = (st % 4) * SLOT
        g = [dma(sMX, b, vDX0, S_X, st * 128), dma(sMX, b + 1024, vDX1, S_X, st * 128)]
        for bi in range(3):
            g.append(dma(sMB, b + 8192 * bi, vDB0, S_B0, st * 64 * 2688 + 128 * bi))
        return [(x, ("A", st)) for x in g]

    def vbslot(sb):
        return 3 * SLOT + sb * 8192 if sb < 4 else (sb - 4) * 8192

    def vB(sb):
        return [(dma(sMB, vbslot(sb) - 16384, vDU, S_B0, sb * 64 * 2688), ("B", sb))]

    gw_ld = ([f"s_mov_b32 m0, {GWL}", "s_nop 0", f"buffer_load_dwordx4 v{vL16}, {sr4(S_U)}, 0 offen lds"], ("GW",))

    for g in vA(0):
        emit_group(g)
    a("s_barrier")
    if PFPOS: pf1("v")
    for g in vA(1):
        emit_group(g)
    common_setup2("v")
    vAZ = vAW + 3
    a(f"""
    v_add_u32 v{vAW+1}, 8192, v{vAW}
    v_add_u32 v{vAW+2}, 16384, v{vAW}
    s_sub_u32 s{sT1}, s{sJ}, 14
    s_lshl_b32 s{sT1}, s{sT1}, 6
    v_xor_b32 v{vAZ}, s{sT1}, v{vAW}
    v_lshlrev_b32 v{vST+1}, 4, v{vT1}
    v_add_u32 v{vST+1}, {GWL}, v{vST+1}
    s_cmp_eq_u32 s{sJ}, 14
    s_cselect_b32 s{sT1}, 0, 4096
    s_lshl_b32 s{sT2}, s{sGRP}, 9
    s_add_u32 s{sT1}, s{sT1}, s{sT2}
    s_mul_i32 s{sHOFF}, s{sTILE}, {TQ}
    s_add_u32 s{sHOFF}, s{sHOFF}, s{sT1}
    s_add_u32 s{sHOFF}, s{sHOFF}, {VF}
    s_add_u32 s{sHOFF2}, s{sHOFF}, 14336
    v_mul_u32_u24 v{vST}, {7168 - 512}, v{vT1}
    v_add_u32 v{vST}, v{vST}, v{vL16}
    """)

    def readsVA(ks):
        st, s = ks // 4, ks % 4
        slot = st % 4
        out = set_base((slot // 2) * 2 * SLOT, [vAX, vAX+1, vAX+2, vAX+3, vAW, vAW+1, vAW+2, vAZ])
        off = (slot % 2) * SLOT
        f = WA[ks % 3]
        out.append(f"ds_read_b128 {vr(X+4*ks, 4)}, v{vAX+s} offset:{off}")
        for t in range(3):
            for q in range(2):
                out.append(f"ds_read_b64_tr_b16 {vr(f+4*t+2*q, 2)}, v{vAW+t} offset:{off + (16*s + 4*q) * 128}")
        return out

    NBV = 6
    WBV = [WF + 24, WF + 28, WF + 16, WF + 20, WF + 12, WF + 8]

    def readsVB(ks, z):
        sb, s = ks // 4, ks % 4
        f = WBV[ks % NBV]
        if z:
            return [f"ds_read_b128 {vr(f, 4)}, v{vST+1} offset:{32*ks}"]
        b = vbslot(sb)
        nb = (3 * SLOT if sb < 4 else 0)
        out = set_base(nb - 16384, [vAZ])
        off = b - nb
        for q in range(2):
            out.append(f"ds_read_b64_tr_b16 {vr(f+2*q, 2)}, v{vAZ} offset:{off + (16*s + 4*q) * 128}")
        return out

    def epi_v(acc, bi):
        o = [f"v_cvt_pk_bf16_f32 v{acc+i}, v{acc+2*i}, v{acc+2*i+1}" for i in range(8)]
        o.append(f"buffer_store_dwordx4 {vr(acc, 4)}, v{vST}, {sr4(S_WS)}, s{sHOFF} offen offset:{1024*bi}{SC}")
        o.append(f"buffer_store_dwordx4 {vr(acc+4, 4)}, v{vST}, {sr4(S_WS)}, s{sHOFF2} offen offset:{1024*bi}{SC}")
        return o

    abase[0] = 0
    a(f"s_waitcnt vmcnt({vm.wait({('A', 0)}, cntv)})\ns_barrier")
    stamp(a, "p1_first")
    for ks in range(2):
        for r in readsVA(ks):
            a(r)
    pend = vA(2) + vA(3)
    fillA = flag_addr(True, vFLA, vDG)
    for ks in range(28):
        st, s = ks // 4, ks % 4
        f = WA[ks % 3]
        m = [f"{MFMA} {vr(ACC+16*t, 16)}, {vr(X+4*ks, 4)}, {vr(f+4*t, 4)}, {'0' if ks == 0 else vr(ACC+16*t, 16)}" for t in range(3)]
        if s == 2:
            need = {("A", st + 1)} if st < 6 else {("B", x) for x in range(7)} | {("N",), ("GW",)}
            a(f"s_waitcnt vmcnt({vm.wait(need, cntv)}) lgkmcnt(0)")
            if st == 6:
                nonce_get("v")
            a("s_barrier")
            if st + 4 <= 6:
                pend += vA(st + 4)
            elif st == 3:
                pend += vB(0) + vB(1) + vB(2) + vB(3)
            elif st == 4:
                pend += vB(4) + vB(5) + vB(6) + [gw_ld]
            if st == 2:
                pend.append(nonce_ld)
            if "nopf" not in OPT and st == PF2_ST and PF_EARLY < 1: pend.append(pf2())
            if "nopf" not in OPT and st == PF3_ST and PF_EARLY < 2: pend.append(pf3())
        elif ks < 27:
            a("s_waitcnt lgkmcnt(7)")
        r = readsVA(ks + 2) if ks + 2 < 28 else []
        k = max(len(r) - 4, 0)
        a(m[0])
        for x in r[:k]:
            a(x)
        a(m[1])
        for x in r[k:]:
            a(x)
        a(m[2])
        if ks >= 16:
            assert vm.q.count(("A", 6)) == 5
            for _ in range(7):
                if fillA: a(fillA.pop(0))
        nd = 2 if (len(pend) > 4 or st < 1) else 1
        for _ in range(nd):
            if pend:
                emit_group(pend.pop(0))
    assert not fillA and not pend
    stamp(a, "p1_aend")
    VB = ACC + 48

    def passVB(z, fill):
        nrd = 1 if z else 2
        for ks in range(NBV - 1):
            for x in readsVB(ks, z):
                a(x)
        for ks in range(28):
            f = WBV[ks % NBV]
            c = vr(VB, 16)
            ops = f"{vr(f, 4)}, {vr(X+4*ks, 4)}" if z else f"{vr(X+4*ks, 4)}, {vr(f, 4)}"
            a(f"s_waitcnt lgkmcnt({min(NBV - 2, 27 - ks) * nrd})")
            a(f"{MFMA} {c}, {ops}, {'0' if ks == 0 else c}")
            if ks + NBV - 1 < 28:
                for x in readsVB(ks + NBV - 1, z):
                    a(x)
            for _ in range(3):
                if fill: a(fill.pop(0))
        assert not fill

    a(f"s_cmp_eq_u32 s{sGRP}, 1\ns_cbranch_scc1 k1_vg1")
    passVB(False, ["s_nop 1"] + epi_v(ACC, 0) + epi_v(ACC + 16, 1) + epi_v(ACC + 32, 2))
    a(f"""
    s_mul_i32 s{sHOFF}, s{sTILE}, {TQ}
    s_lshl_b32 s{sT1}, s{sJ}, 9
    s_add_u32 s{sHOFF}, s{sHOFF}, s{sT1}
    s_add_u32 s{sHOFF}, s{sHOFF}, {VF + 192 * 16 - 14 * 512}
    s_add_u32 s{sHOFF2}, s{sHOFF}, 14336
    s_nop 7
    """)
    for x in epi_v(VB, 0):
        a(x)
    stamp(a, "p1_bend")
    a(f"""
    s_waitcnt vmcnt(0)
    s_barrier
    """)
    stamp(a, "p1_end")
    a(f"""
    s_cmp_lg_u32 s{sW}, 3
    s_cbranch_scc1 k1_noflag_v
    s_mov_b32 s{sT0}, {FQ}
    buffer_store_dword v{vNON}, v{vDG}, {sr4(S_WS)}, s{sT0} offen{SC}
    """)
    a(flag1(a, sFHA))
    a.label("k1_noflag_v")
    a("s_branch att_spin")
    a.label("k1_vg1")
    a("s_nop 7")
    for x in epi_v(ACC, 0) + epi_v(ACC + 16, 1) + epi_v(ACC + 32, 2):
        a(x)
    stamp(a, "p1_bend")
    a(f"""
    s_waitcnt vmcnt(0)
    s_barrier
    """)
    stamp(a, "p1_end")
    a(f"s_mov_b32 s{sHOFF2}, {OOB}\ns_cmp_eq_u32 s{sJ}, 14\ns_cbranch_scc1 gemm_role")
    passVB(True, [])
    t = WF
    a(f"""
    s_nop 7
    s_nop 3
    v_mul_f32 v{t}, s{sNL2E}, v{VB}
    v_exp_f32 v{t}, v{t}
    v_and_b32 v{t+1}, 31, v{vLane}
    v_add_f32 v{t}, 1.0, v{t}
    v_rcp_f32 v{t}, v{t}
    v_lshlrev_b32 v{t+1}, 2, v{t+1}
    s_lshl_b32 s{sT0}, s{sTILE}, 7
    s_add_u32 s{sT0}, s{sT0}, {GF}
    buffer_store_dword v{t}, v{t+1}, {sr4(S_WS)}, s{sT0} offen{SC}
    s_waitcnt vmcnt(0)
    """)
    a.label("gemm_role")
    for i in range(7):
        for x in wpref(i):
            a(x)
    a.label("gemm_role2")
    gen_gemm(a, wpref)
    gen_attention(a)
    a.label("k_end")
    a("s_endpgm")
    return a.text()


vAWr = 16
RB = [0, 98304]


def wtr_setup(a):
    a(f"""
    v_bfe_u32 v{vT0}, v{vLane}, 4, 1
    v_bfe_u32 v{vT1}, v{vLane}, 2, 2
    v_and_b32 v{vT2}, 2, v{vT1}
    v_xor_b32 v{vT2}, v{vT2}, v{vT0}
    s_and_b32 s{sT0}, s{sKQ}, 1
    s_lshl_b32 s{sT0}, s{sT0}, 1
    v_xor_b32 v{vT2}, s{sT0}, v{vT2}
    v_lshrrev_b32 v{vT3}, 5, v{vLane}
    v_lshl_add_u32 v{vT3}, v{vT3}, 2, v{vT1}
    v_lshlrev_b32 v{vT3}, 7, v{vT3}
    v_lshl_add_u32 v{vT3}, v{vT2}, 5, v{vT3}
    v_and_b32 v{vT2}, 3, v{vLane}
    v_lshl_add_u32 v{vT3}, v{vT2}, 3, v{vT3}
    v_add_u32 v{vAWr}, s{sM0}, v{vT3}
    v_xor_b32 v{vAWr+1}, 64, v{vAWr}
    v_add_u32 v{vAWr+2}, {RB[1]}, v{vAWr}
    v_add_u32 v{vAWr+3}, {RB[1]}, v{vAWr+1}
    v_mov_b32 v{vAWr+4}, v{vT3}
    """)


def wtr_reads(slot, dst):
    ra = ring_addr(slot)
    bi = max(i for i in range(2) if RB[i] <= ra)
    out = []
    for T in range(2):
        for q in range(2):
            out.append(f"ds_read_b64_tr_b16 {vr(dst+4*T+2*q, 2)}, v{vAWr+2*bi+T} offset:{ra - RB[bi] + q*1024}")
    return out


def bcast_poll(a, tag, leader, addrs, soff, vtmp, sleep, ldsoff, pre=None, lsleep=2, skip_if_set=False):
    if skip_if_set:
        a(f"""
        v_mov_b32 v{vT0}, {CNT + ldsoff}
        ds_read_b32 v{vT1}, v{vT0}
        s_waitcnt lgkmcnt(0)
        v_readfirstlane_b32 s{sT0}, v{vT1}
        s_cmp_eq_u32 s{sT0}, 1
        s_cbranch_scc1 {tag}_go
        """)
    a(f"s_cmp_lg_u32 s{sW}, {leader}\ns_cbranch_scc1 {tag}_lw")
    if pre:
        pre()
    poll(a, addrs, soff, vtmp, sleep)
    a.label(f"{tag}_ok")
    lds_set(a, ldsoff, 1, vT0)
    a(f"s_branch {tag}_go")
    a.label(f"{tag}_lw")
    lds_wait(a, ldsoff, vT0, "eq1", lsleep)
    a.label(f"{tag}_go")


def gen_gemm(a, wpref):
    ACC = 64
    ACT = 128
    WFB = [32, 40]
    vA0, vA1, vG0, vFl, vFl2, vMB = 21, 22, 23, 25, 24, 26
    sA0, sB0w, sFH2, sMO2, sDONE, sNEW, sH = 45, 46, 47, 48, 49, 50, 52
    DA = GDA
    stamp(a, "x_role")
    wtr_setup(a)
    srd(a, S_WO, P_WO, 448 * 448 * 2)
    srd(a, S_OUT, P_OUT, 2048 * 448 * 2)
    a(f"""
    s_lshr_b32 s{sMO2}, s{sKQ}, 1
    s_mul_i32 s{sT0}, s{sMO2}, {112 * 1024}
    v_add_u32 v{vA0}, s{sT0}, v{vL16}
    s_sub_u32 s{sT0}, {112 * 1024}, s{sT0}
    v_add_u32 v{vA1}, s{sT0}, v{vL16}
    s_lshr_b32 s{sT1}, s{sMT}, 1
    s_lshl_b32 s{sT1}, s{sT1}, 9
    s_add_u32 s{sT1}, s{sT1}, {FH}
    s_lshl_b32 s{sFH2}, s{sMT}, 10
    s_add_u32 s{sFH2}, s{sFH2}, {FHB}
    s_mul_i32 s{sA0}, s{sMT}, 224
    s_add_u32 s{sA0}, s{sA0}, s{sKQ}
    s_lshl_b32 s{sA0}, s{sA0}, 10
    s_add_u32 s{sA0}, s{sA0}, {HF}
    s_mul_i32 s{sB0w}, s{sKQ}, {112 * 896}
    s_lshl_b32 s{sT0}, s{sNT}, 7
    s_add_u32 s{sB0w}, s{sB0w}, s{sT0}
    v_and_b32 v{vFl}, 0x1ff, v{vFLA}
    v_and_b32 v{vFl2}, 0x3ff, v{vFLA}
    s_add_u32 s{sT2}, s{sM0}, {QX + MBOX}
    v_add_u32 v{vMB}, s{sT2}, v{vL16}
    s_sub_u32 s{sHOFF}, s{sHOFF2}, 2048
    s_cmp_lt_u32 s{sI32}, 28
    s_cbranch_scc1 gemm_has
    """)

    def hb_all():
        lds_wait(a, 36, vT0, "eq4", 1)
        a(f"""
        ds_read_b128 {vr(HBR+8, 4)}, v{vMB}
        ds_read_b128 {vr(HBR+12, 4)}, v{vMB} offset:1024
        """)

    def hb_st():
        return hb_stores() + [f"buffer_store_dwordx4 {vr(HBR+8+4*i, 4)}, v{vL16}, {sr4(S_WS)}, s{sHOFF} offen offset:{1024*i}{SC}" for i in range(2)]
    hb_all()
    a("s_waitcnt lgkmcnt(0)")
    for x in hb_st():
        a(x)
    a("s_waitcnt vmcnt(0)")
    a(flag1(a, sFHO))
    a("s_endpgm")
    a.label("gemm_has")
    a(f"""
    s_cmp_lg_u32 s{sW}, 4
    s_cbranch_scc1 g_noe
    buffer_load_dword v{vG0}, v{vFl}, {sr4(S_WS)}, s{sT1} offen{SC}
    s_waitcnt vmcnt(0)
    v_cmp_ne_u32 vcc, s{sNONCE}, v{vG0}
    s_nop 1
    s_cmp_eq_u64 vcc, 0
    s_cbranch_scc0 g_noe
    """)
    lds_set(a, 8, 1, vT0)
    a.label("g_noe")
    hb_all()
    vm = VM()
    for i in range(0, 7):
        vm.add(("w", i))

    def act_loads(i):
        r = ACT + 8 * (i % DA)
        a(f"""
        s_add_u32 s{sT0}, s{sA0}, {wk_off(i) * 1024}
        buffer_load_dwordx4 {vr(r, 4)}, v{vA0}, {sr4(S_WS)}, s{sT0} offen{SC}
        buffer_load_dwordx4 {vr(r+4, 4)}, v{vA1}, {sr4(S_WS)}, s{sT0} offen{SC}
        """)
        vm.add(("a", i)); vm.add(("a", i))

    def w_loads(i):
        if i < 28:
            for x in wpref(i):
                a(x)
        else:
            ra = ring_addr(wslot(i))
            off = (28 * ((i - 28) // 2) + 16 * ((i - 28) % 2)) * 896
            a(f"""
            s_add_u32 m0, s{sM0}, {ra}
            s_add_u32 s{sT0}, s{sB0w}, {off}
            buffer_load_dwordx4 v{vDW}, {sr4(S_WO)}, s{sT0} offen lds
            s_add_u32 m0, s{sM0}, {ra + 1024}
            s_add_u32 s{sT0}, s{sT0}, {8 * 896}
            buffer_load_dwordx4 v{vDW}, {sr4(S_WO)}, s{sT0} offen lds
            """)
        vm.add(("w", i)); vm.add(("w", i))

    na, nw = 0, 7
    a("s_waitcnt lgkmcnt(0)")
    for x in hb_st():
        a(x); vm.add(("hb",))
    bcast_poll(a, "gA", 4, [vFl], sT1, vG0, SLEEP_H, 8, skip_if_set=True)
    stamp(a, "x_go"); stamp(a, "x_loop")
    for i in range(GPRE):
        act_loads(na); na += 1
    a(f"s_waitcnt vmcnt({vm.wait({('w', 0)})})")
    for x in wtr_reads(0, WFB[0]):
        a(x)
    gotB = False
    for i in range(28):
        need = {("a", i)}
        if i + 1 < 28:
            need.add(("w", i + 1))
        a(f"s_waitcnt vmcnt({vm.wait(need)}) lgkmcnt(0)")
        if i + 1 < 28:
            for x in wtr_reads((i + 1) % 13, WFB[(i + 1) % 2]):
                a(x)
        for mt in range(2):
            for T in range(2):
                c = vr(ACC + 32 * mt + 16 * T, 16)
                a(f"{MFMA} {c}, {vr(WFB[i%2]+4*T, 4)}, {vr(ACT+8*(i%DA)+4*mt, 4)}, {'0' if i == 0 else c}")
        if i == 0:
            a(flag1(a, sFHO))
        if i == GB_AT:
            stamp(a, "g_b0")
            bcast_poll(a, "gB", 4, [vFl2], sFH2, vPOL, SLEEP_H, 12)
            stamp(a, "g_b1")
            gotB = True
            a(f"""
            v_and_b32 v{vT0}, 31, v{vLane}
            v_lshlrev_b32 v{vT0}, 2, v{vT0}
            s_lshl_b32 s{sT1}, s{sMT}, 1
            s_add_u32 s{sT1}, s{sT1}, s{sMO2}
            s_lshl_b32 s{sT1}, s{sT1}, 7
            s_add_u32 s{sT1}, s{sT1}, {GF}
            buffer_load_dword v{vG0}, v{vT0}, {sr4(S_WS)}, s{sT1} offen{SC}
            """)
            vm.add(("g",))
        for _ in range(2):
            if na < 28 and na <= i + DA and (na < 14 or gotB):
                act_loads(na); na += 1
            if nw < 36 and nw <= i + min(13, DA + 1) and (nw < 28 or wslot(nw) + 13 <= i):
                w_loads(nw); nw += 1
    assert na == 28
    while nw < 36:
        w_loads(nw); nw += 1
    stamp(a, "x_lend")
    XS = [0, 1, 6, 7]
    R, AA, SL = 128, ACC + 16, 128
    vX0, vX1, vC1, vOUT, vWa = 26, 27, 28, 30, 29

    def xaddr(reg, x):
        a(f"""
        s_xor_b32 s{sT0}, s{sKQ}, {x}
        s_lshl_b32 s{sT0}, s{sT0}, 11
        v_add_u32 v{reg}, s{sT0}, v{vL16}
        v_add_u32 v{reg+1}, {RB[1]}, v{reg}
        """)

    def xo(i):
        ra = ring_addr(XS[i // 2]) + (i % 2) * 1024
        return (vX0, ra) if ra < RB[1] else (vX1, ra - RB[1])

    def gsync(off, tag):
        a(f"""
        v_mov_b32 v{vC1}, {CNT + off}
        v_mov_b32 v{vT0}, 1
        s_waitcnt vmcnt(0) lgkmcnt(0)
        s_mov_b64 exec, 1
        ds_add_u32 v{vC1}, v{vT0}
        s_mov_b64 exec, -1
        """)
        a.label(tag)
        a(f"""
        ds_read_b32 v{vT0}, v{vC1}
        s_waitcnt lgkmcnt(0)
        v_readfirstlane_b32 s{sT0}, v{vT0}
        s_cmp_eq_u32 s{sT0}, 4
        s_cbranch_scc1 {tag}_d
        s_sleep 1
        s_branch {tag}
        """)
        a.label(f"{tag}_d")

    a("s_setprio 3")
    xaddr(vX0, 0)
    a("s_nop 7")
    for i in range(8):
        r_, o_ = xo(i)
        a(f"ds_write_b128 v{r_}, {vr(ACC+32+4*i, 4)} offset:{o_}")
    xaddr(vX0, 2)
    gsync(16, "gs1")
    for i in range(8):
        r_, o_ = xo(i)
        a(f"ds_read_b128 {vr(R+4*i, 4)}, v{r_} offset:{o_}")
    a("s_waitcnt lgkmcnt(0)")
    for i in range(16, 32):
        a(f"v_add_f32 v{ACC+i}, v{ACC+i}, v{R+i}")
    for i in range(4):
        r_, o_ = xo(i)
        a(f"ds_write_b128 v{r_}, {vr(ACC+16+4*i, 4)} offset:{o_}")
    for i in range(16):
        a(f"v_add_f32 v{ACC+i}, v{ACC+i}, v{R+i}")
    xaddr(vX0, 3)
    gsync(28, "gs2")
    for i in range(4):
        r_, o_ = xo(i)
        a(f"ds_read_b128 {vr(R+4*i, 4)}, v{r_} offset:{o_}")
    a(f"""
    v_sub_f32 v{vT2}, 1.0, v{vG0}
    s_lshl_b32 s{sT1}, s{sMT}, 1
    s_add_u32 s{sT1}, s{sT1}, s{sMO2}
    s_lshl_b32 s{sFH2}, s{sT1}, 9
    s_add_u32 s{sFH2}, s{sFH2}, {FO}
    s_lshl_b32 s{sA0}, s{sT1}, 15
    s_add_u32 s{sA0}, s{sA0}, {OF}
    s_mul_i32 s{sT2}, s{sT1}, {32 * 896}
    s_lshl_b32 s{sT1}, s{sNT}, 7
    s_add_u32 s{sT2}, s{sT2}, s{sT1}
    s_and_b32 s{sT1}, s{sKQ}, 1
    s_lshl_b32 s{sT1}, s{sT1}, 6
    s_add_u32 s{sT2}, s{sT2}, s{sT1}
    v_and_b32 v{vFl}, 31, v{vLane}
    v_mul_u32_u24 v{vOUT}, 896, v{vFl}
    v_lshrrev_b32 v{vT3}, 5, v{vLane}
    v_lshl_add_u32 v{vOUT}, v{vT3}, 4, v{vOUT}
    v_and_b32 v{vFl}, 0x1ff, v{vFLA}
    s_mov_b32 s{sDONE}, 0xffff0000
    s_mov_b32 s{sSPIN}, {SPIN_MAX}
    s_waitcnt lgkmcnt(0)
    """)
    for i in range(16):
        a(f"v_add_f32 v{ACC+i}, v{ACC+i}, v{R+i}")
    for i in range(16):
        a(f"v_mul_f32 v{ACC+i}, v{ACC+i}, v{vT2}")
        a(f"v_mov_b32 v{AA+i}, 0")
    a("s_setprio 1")
    stamp(a, "p3_poll")
    sNB = 53
    a(f"s_mov_b32 s{sNB}, 0\ns_mov_b32 s{sNEW}, 0")
    a.label("p3_poll")
    a(f"""
    buffer_load_dword v{vPOL}, v{vFl}, {sr4(S_WS)}, s{sFH2} offen{SC}
    s_cmp_eq_u32 s{sNB}, 0
    s_cbranch_scc1 p3_chk
    s_waitcnt vmcnt(1) lgkmcnt(0)
    """)
    a.label("p3_run")
    for k in range(8):
        o, w = SL + 16 * k, SL + 16 * k + 8
        a(f"""
        {MFMA} {vr(AA, 16)}, {vr(w, 4)}, {vr(o, 4)}, {vr(AA, 16)}
        {MFMA} {vr(AA, 16)}, {vr(w+4, 4)}, {vr(o+4, 4)}, {vr(AA, 16)}
        """)
        if k < 7:
            a(f"s_cmp_eq_u32 s{sNB}, {k+1}\ns_cbranch_scc1 p3_ran")
    a.label("p3_ran")
    a(f"""
    s_mov_b32 s{sNB}, 0
    s_cmp_eq_u32 s{sDONE}, -1
    s_cbranch_scc1 p3_fin
    """)
    a.label("p3_chk")
    a(f"""
    s_waitcnt vmcnt(0)
    v_cmp_eq_u32 vcc, s{sNONCE}, v{vPOL}
    s_sub_u32 s{sSPIN}, s{sSPIN}, 1
    s_cbranch_scc1 p3_fin
    s_andn2_b32 s{sNEW}, vcc_lo, s{sDONE}
    s_cbranch_scc1 p3_batch
    s_sleep {SLEEP_O}
    s_branch p3_poll
    """)
    a.label("p3_batch")
    for k in range(8):
        o, w = SL + 16 * k, SL + 16 * k + 8
        a(f"""
        s_ff1_i32_b32 s{sH}, s{sNEW}
        s_bitset0_b32 s{sNEW}, s{sH}
        s_bitset1_b32 s{sDONE}, s{sH}
        s_lshl_b32 s{sT0}, s{sH}, 11
        s_add_u32 s{sT0}, s{sT0}, s{sA0}
        buffer_load_dwordx4 {vr(o, 4)}, v{vL16}, {sr4(S_WS)}, s{sT0} offen{SC}
        buffer_load_dwordx4 {vr(o+4, 4)}, v{vL16}, {sr4(S_WS)}, s{sT0} offen offset:1024{SC}
        s_bitcmp1_b32 s{sH}, 1
        s_cselect_b32 s{sT0}, 0, {ring_addr(2)}
        s_and_b32 s{sT1}, s{sH}, 1
        s_lshl_b32 s{sT1}, s{sT1}, 14
        s_add_u32 s{sT0}, s{sT0}, s{sT1}
        s_lshr_b32 s{sT1}, s{sH}, 2
        s_lshl_b32 s{sT1}, s{sT1}, 11
        s_add_u32 s{sT0}, s{sT0}, s{sT1}
        v_add_u32 v{vWa}, s{sT0}, v{vAWr+4}
        ds_read_b64_tr_b16 {vr(w, 2)}, v{vWa}
        ds_read_b64_tr_b16 {vr(w+2, 2)}, v{vWa} offset:1024
        ds_read_b64_tr_b16 {vr(w+4, 2)}, v{vWa} offset:8192
        ds_read_b64_tr_b16 {vr(w+6, 2)}, v{vWa} offset:9216
        s_mov_b32 s{sNB}, {k+1}
        """)
        if k >= 2:
            a("s_waitcnt lgkmcnt(8)")
        if k < 7:
            a(f"s_cmp_eq_u32 s{sNEW}, 0\ns_cbranch_scc1 p3_iss")
    a.label("p3_iss")
    a(f"""
    s_cmp_lg_u32 s{sDONE}, -1
    s_cbranch_scc1 p3_poll
    s_waitcnt vmcnt(0) lgkmcnt(0)
    s_branch p3_run
    """)
    a.label("p3_fin")
    stamp(a, "p3_mfma")
    a("s_nop 7\ns_nop 1")
    t = 96
    for i in range(16):
        a(f"v_fma_f32 v{ACC+i}, v{AA+i}, v{vG0}, v{ACC+i}")
    for i in range(8):
        a(f"v_cvt_pk_bf16_f32 v{t+i}, v{ACC+2*i}, v{ACC+2*i+1}")
    a(f"""
    v_permlane32_swap_b32 v{t}, v{t+2}
    v_permlane32_swap_b32 v{t+1}, v{t+3}
    buffer_store_dwordx4 {vr(t, 4)}, v{vOUT}, {sr4(S_OUT)}, s{sT2} offen
    v_permlane32_swap_b32 v{t+4}, v{t+6}
    v_permlane32_swap_b32 v{t+5}, v{t+7}
    buffer_store_dwordx4 {vr(t+4, 4)}, v{vOUT}, {sr4(S_OUT)}, s{sT2} offen offset:32
    """)
    amp_end(a, 'g')
    if "dbgt" in OPT:
        a(f"""
        s_cmp_ge_u32 s2, 7
        s_cbranch_scc1 k_end
        s_cmp_lg_u32 s{sW}, 4
        s_cbranch_scc1 k_end
        s_memtime s[90:91]
        s_memrealtime s[92:93]
        s_waitcnt lgkmcnt(0)
        s_sub_u32 s90, s90, s86
        s_sub_u32 s92, s92, s88
        v_mov_b32 v4, s90
        v_mov_b32 v5, s92
        s_lshl_b32 s3, s2, 3
        s_add_u32 s3, s3, 8
        buffer_store_dwordx2 v[4:5], v{vF1}, {sr4(S_DBG)}, s3 offen
        """)
    stamp_flush(a)
    a("s_endpgm")


def gen_attention(a):
    Q, O, S, KV, P, TMP = AQ, AO, AS, AKV, AP, ATMP
    vG, vM, vONE = avG, avM, avONE
    a.label("att_spin")
    fq_wait(a, "aq", 0)
    stamp(a, "x_go")
    o1, o2, vm, flat, o3 = att_loads()

    def k_fix(buf):
        return [f"v_cndmask_b32 v{KV+16*buf+6}, v{KV+16*buf+6}, v{vONE}, s[{sME}:{sME+1}]",
                f"v_cndmask_b32 v{KV+16*buf}, v{KV+16*buf}, v{vONE}, s[{sMO}:{sMO+1}]"]

    zer = [f"v_mov_b32 v{O+k}, 0" for k in range(12, 64)]
    for x in flat(o1):
        a(x)
    step = len(zer) // len(o2) + 1
    zz = list(zer)
    for x in o2:
        for _ in range(step):
            if zz: a(zz.pop(0))
        for y in flat([x]):
            a(y)
    a("s_branch att_main2")
    a.label("att_main")
    for x in zer:
        a(x)
    a.label("att_main2")
    stamp(a, "x_main")
    a(f"s_bitcmp1_b32 s{sOK}, 1\ns_cbranch_scc0 att_nv")
    for x in o3:
        a(x)
    a("s_branch att_np")
    a.label("att_nv")
    a(f"s_cmp_lg_u32 s{sW}, 0\ns_cbranch_scc1 att_np")
    fq_issue(a)
    a.label("att_np")
    a(f"""
    s_setprio 2
    s_lshl_b32 s{sT0}, s{sKQ}, 11
    s_add_u32 s{sT0}, s{sT0}, {QX}
    v_add_u32 v{TMP}, s{sT0}, v{vL16}
    v_subrev_u32 v{TMP+1}, {-MBOX}, v{TMP}
    ds_write_b128 v{TMP+1}, {vr(HBR, 4)}
    ds_write_b128 v{TMP+1}, {vr(HBR+4, 4)} offset:1024
    v_mov_b32 v{vT1}, 0
    s_and_b32 s{sT0}, s{sHEAD}, 1
    s_mov_b32 s{sME}, 0
    s_mov_b32 s{sMO+1}, 0
    s_sub_u32 s{sME+1}, s{sT0}, 1
    s_sub_u32 s{sMO}, 0, s{sT0}
    v_mov_b32 v{vONE}, 0x3f803f80
    v_mov_b32 v{TMP+1}, {CNT + 24}
    v_mov_b32 v{TMP+2}, 1
    s_waitcnt vmcnt({vm.wait({('q',), ('kv', 0, 1)}) + 6})
    s_bitcmp1_b32 s{sOK}, 1
    s_cbranch_scc1 att_w2
    s_waitcnt vmcnt({vm.wait({('q',), ('kv', 0, 1)})})
att_w2:
    v_cndmask_b32 v{Q}, v{Q}, v{vT1}, s[{sMO}:{sMO+1}]
    v_cndmask_b32 v{Q+1}, v{Q+1}, v{vT1}, s[{sMO}:{sMO+1}]
    v_cndmask_b32 v{Q+6}, v{Q+6}, v{vT1}, s[{sME}:{sME+1}]
    v_cndmask_b32 v{Q+7}, v{Q+7}, v{vT1}, s[{sME}:{sME+1}]
    {MFMA} {vr(S[1], 16)}, {vr(KV, 4)}, {vr(Q, 4)}, 0
    s_nop 0
    {MFMA} {vr(S[1], 16)}, {vr(KV+4, 4)}, {vr(Q+4, 4)}, {vr(S[1], 16)}
    """)
    stamp(a, "x_q")
    for x in k_fix(0):
        a(x)
    for k in range(12):
        a(f"v_mov_b32 v{O+k}, 0")
    s0 = S[1]
    a(f"""
    v_max3_f32 v{vM}, v{s0}, v{s0+1}, v{s0+2}
    v_max3_f32 v{vT0}, v{s0+3}, v{s0+4}, v{s0+5}
    v_max3_f32 v{vT2}, v{s0+6}, v{s0+7}, v{s0+8}
    v_max3_f32 v{vT3}, v{s0+9}, v{s0+10}, v{s0+11}
    v_max3_f32 v{vM}, v{vM}, v{s0+12}, v{s0+13}
    v_max3_f32 v{vT0}, v{vT0}, v{s0+14}, v{s0+15}
    v_max3_f32 v{vM}, v{vM}, v{vT2}, v{vT3}
    v_max_f32 v{vM}, v{vM}, v{vT0}
    v_mov_b32 v{vT0}, v{vM}
    s_nop 1
    v_permlane32_swap_b32 v{vM}, v{vT0}
    v_max_f32 v{vM}, v{vM}, v{vT0}
    v_sub_f32 v{vM}, 0, v{vM}
    v_cvt_pk_bf16_f32 v{vT0}, v{vM}, v{vM}
    v_lshlrev_b32 v{vT0}, 16, v{vT0}
    v_sub_f32 v{vT0}, v{vM}, v{vT0}
    v_cvt_pk_bf16_f32 v{vT0}, v{vM}, v{vT0}
    v_cndmask_b32 v{Q}, v{Q}, v{vT0}, s[{sMO}:{sMO+1}]
    v_cndmask_b32 v{Q+6}, v{Q+6}, v{vT0}, s[{sME}:{sME+1}]
    ds_write_b128 v{TMP}, {vr(Q, 4)}
    ds_write_b128 v{TMP}, {vr(Q+4, 4)} offset:1024
    {MFMA} {vr(S[0], 16)}, {vr(KV, 4)}, {vr(Q, 4)}, 0
    {MFMA} {vr(S[0], 16)}, {vr(KV+4, 4)}, {vr(Q+4, 4)}, {vr(S[0], 16)}
    s_waitcnt lgkmcnt(0)
    s_mov_b64 exec, 1
    ds_add_u32 v{TMP+1}, v{TMP+2}
    s_mov_b64 exec, -1
    """)
    a(f"s_bitcmp1_b32 s{sOK}, 1\ns_cbranch_scc1 att_hv")
    fq_wait(a, "av", 1, first_issued=True)
    for x in o3[:-1]:
        a(x)
    a.label("att_hv")
    stamp(a, "x_v")
    a(f"""
    s_mov_b64 exec, 1
    ds_add_u32 v{TMP+1}, v{TMP+2} offset:12
    s_mov_b64 exec, -1
    """)
    for x in kv_adv()[:3]:
        a(x)
    for i in range(4):
        a(f"v_mov_b32 v{P+4+i}, 0\nv_mov_b32 v{KV+16*3+12+i}, v{vONE}\nv_mov_b32 v{KV+16*3+8+i}, v{vONE}")
    for i in range(1, 4):
        a(f"""
        s_add_u32 s{sT0}, s{sKQ}, {i}
        s_and_b32 s{sT0}, s{sT0}, 3
        s_lshl_b32 s{sT0}, s{sT0}, 11
        s_add_u32 s{sT0}, s{sT0}, {QX}
        v_add_u32 v{TMP+2+i}, s{sT0}, v{vL16}
        s_add_u32 s{sT0}, s{sKQ}, {i}
        s_and_b32 s{sT0}, s{sT0}, 3
        s_mul_i32 s{sT0}, s{sT0}, 12288
        s_add_u32 s{sT0}, s{sT0}, {MERGE + (i-1) * 4096}
        v_add_u32 v{TMP+8+i-1}, s{sT0}, v{vL16}
        """)
    a(f"""
    s_mul_i32 s{sT0}, s{sKQ}, 12288
    s_add_u32 s{sT0}, s{sT0}, {MERGE}
    v_add_u32 v{TMP+11}, s{sT0}, v{vL16}
    v_mov_b32 v{TMP+12}, {CNT}
    v_mov_b32 v{TMP+13}, 1
    """)
    stamp(a, "x_qs")
    a.label("att_qsync")
    a(f"""
    ds_read_b32 v{TMP+2}, v{TMP+1}
    s_waitcnt lgkmcnt(0)
    v_cmp_gt_u32 vcc, 4, v{TMP+2}
    s_cbranch_vccnz att_qsync
    """)
    for i in range(1, 4):
        a(f"ds_read_b128 {vr(Q+8*i, 4)}, v{TMP+2+i}\nds_read_b128 {vr(Q+8*i+4, 4)}, v{TMP+2+i} offset:1024")
    a("s_waitcnt vmcnt(2) lgkmcnt(0)")
    a(f"s_mov_b32 s{sIT}, 0")
    stamp(a, "x_loop")
    vMW, vMR, vMC, vM1 = TMP + 8, TMP + 11, TMP + 12, TMP + 13

    def phase(ph, cur, prev, nxt, s_pv2=[], s_qk1=[], s_qk2=[], s_pv1=[], tail=[]):
        sc, sn = S[ph % 2], S[1 - ph % 2]
        e = [f"v_exp_f32 v{sc+i}, v{sc+i}" for i in range(16)]
        c = [f"v_cvt_pk_bf16_f32 v{P+i}, v{sc+2*i}, v{sc+2*i+1}" for i in range(8)]
        pv2 = f"{MFMA} {vr(O+16*prev[1], 16)}, {vr(KV+16*prev[0]+12, 4)}, {vr(P+4, 4)}, {vr(O+16*prev[1], 16)}"
        pv1 = f"{MFMA} {vr(O+16*cur[1], 16)}, {vr(KV+16*cur[0]+8, 4)}, {vr(P, 4)}, {vr(O+16*cur[1], 16)}"
        qk1, qk2 = [], []
        if nxt:
            qk1 = [f"{MFMA} {vr(sn, 16)}, {vr(KV+16*nxt[0], 4)}, {vr(Q+8*nxt[1], 4)}, 0"]
            qk2 = [f"{MFMA} {vr(sn, 16)}, {vr(KV+16*nxt[0]+4, 4)}, {vr(Q+8*nxt[1]+4, 4)}, {vr(sn, 16)}"]
        seq = e[0:2] + [pv2] + s_pv2 + e[2:5] + qk1 + s_qk1 + e[5:9] + c[0:4] + qk2 + s_qk2 + e[9:12] + [pv1] + s_pv1 + e[12:16] + tail + c[4:8]
        for x in seq:
            a(x)

    a.label("att_loop")
    for tb in range(4):
        for q in range(4):
            adv = kv_adv()
            s_pv2, s_qk1, s_qk2, s_pv1, tail = [], [], [], [], []
            s_qk1 += kv_load((tb + 3) % 4, q, (avV0, avV1))
            if q == 0:
                s_pv2.append(adv[3])
                s_qk2.append("s_waitcnt vmcnt(9)")
                s_pv1.append(adv[4])
            if q == 1:
                if tb == 0:
                    s_pv2.append(f"s_cmp_eq_u32 s{sIT}, 3")
                    s_qk2.append(f"s_cselect_b32 s{sKB}, {OOB}, s{sKB}")
                    s_pv1.append(f"s_cselect_b32 s{sVB}, {OOB}, s{sVB}")
                if tb == 3:
                    s_pv1.append(f"s_add_u32 s{sIT}, s{sIT}, 1")
            if q == 2:
                s_pv2.append(f"s_mul_i32 s{sT0}, s{sTI}, {TQ}")
                s_qk2.append(f"s_add_u32 s{sKS}, s{sT0}, s{sKB}")
                s_pv1.append("s_waitcnt vmcnt(9)")
                if tb == 2:
                    s_pv1.append(f"s_cmp_eq_u32 s{sIT}, 3")
                tail = k_fix((tb + 1) % 4)
            if q == 3:
                s_qk2.append(f"s_add_u32 s{sVS}, s{sT0}, s{sVB}")
            phase(4 * tb + q, (tb, q), (tb if q > 0 else (tb - 1) % 4, (q - 1) % 4), (tb if q < 3 else (tb + 1) % 4, (q + 1) % 4),
                  s_pv2, s_qk1, s_qk2, s_pv1, tail)
            if tb == 2 and q == 2:
                a("s_cbranch_scc1 att_peel")
    a("s_branch att_loop")
    a.label("att_peel")

    def mw(i, lo, hi):
        return [f"ds_write_b128 v{vMW+i-1}, {vr(O+16*i+4*k, 4)} offset:{1024*k}" for k in range(lo, hi)]
    sa = L(f"""
    s_lshl_b32 s{sT2}, s{sQB}, 2
    s_add_u32 s{sT2}, s{sT2}, s{sKQ}
    s_lshl_b32 s{sT2}, s{sT2}, 4
    s_add_u32 s{sT2}, s{sT2}, s{sHEAD}
    s_lshl_b32 s{sKB}, s{sT2}, 11
    s_add_u32 s{sKB}, s{sKB}, {OF}
    s_lshr_b32 s{sVB}, s{sT2}, 2
    s_lshl_b32 s{sVB}, s{sVB}, 7
    s_and_b32 s{sT2}, s{sT2}, 3
    s_lshl_b32 s{sT2}, s{sT2}, 2
    s_add_u32 s{sVB}, s{sVB}, s{sT2}
    s_add_u32 s{sVB}, s{sVB}, {FO}
    s_mov_b32 s{sT0}, {f32bits(2.0**-10):#x}
    s_mov_b32 s{sT1}, {f32bits(2.0**100):#x}
    """)
    phase(11, (2, 3), (2, 2), (3, 1), sa[0:1], sa[1:2], sa[2:3], sa[3:4])
    phase(12, (3, 1), (2, 3), (3, 2), sa[4:5], sa[5:6], ["s_waitcnt vmcnt(0)"], sa[6:7])
    phase(13, (3, 2), (3, 1), (3, 3), sa[7:8], sa[8:9], mw(1, 0, 2), mw(1, 2, 4))
    phase(14, (3, 3), (3, 2), (3, 0), sa[9:10], sa[10:11], mw(2, 0, 2), mw(2, 2, 4))
    phase(15, (3, 0), (3, 3), None, sa[11:14], [], ["s_nop 0"] + mw(3, 0, 4), [],
          ["s_waitcnt lgkmcnt(0)", "s_mov_b64 exec, 1", f"ds_add_u32 v{vMC}, v{vM1}", "s_mov_b64 exec, -1"])
    a(f"""
    v_cmp_lt_u32 s[18:19], 31, v{vLane}
    s_nop 0
    {MFMA} {vr(O, 16)}, {vr(KV+16*3+12, 4)}, {vr(P+4, 4)}, {vr(O, 16)}
    """)
    stamp(a, "x_lend")
    a.label("att_msync")
    a(f"""
    ds_read_b32 v{vT2}, v{vMC}
    s_waitcnt lgkmcnt(0)
    v_cmp_gt_u32 vcc, 4, v{vT2}
    s_cbranch_vccnz att_msync
    """)
    stamp(a, "x_msync")
    for i in range(12):
        a(f"ds_read_b128 {vr(O+16+4*i, 4)}, v{vMR} offset:{1024*i}")
    a("s_mov_b64 vcc, s[18:19]")
    for k in range(3):
        a(f"s_waitcnt lgkmcnt({8 - 4*k})")
        for i in range(16):
            a(f"v_add_f32 v{O+i}, v{O+i}, v{O+16+16*k+i}")
    C = O + 16
    a(f"""
    v_mov_b32 v{vT0}, v{O+12}
    v_mov_b32 v{vT1}, v{O+12}
    """)
    for k in range(4):
        a(f"v_mul_f32 v{C+k}, 0, v{O+4*k}")
    a(f"v_permlane32_swap_b32 v{vT0}, v{vT1}")
    for i in range(1, 4):
        for k in range(4):
            a(f"v_fma_f32 v{C+k}, v{O+4*k+i}, 0, v{C+k}")
    a(f"""
    v_rcp_f32 v{vT2}, v{vT1}
    v_add_f32 v{C}, v{C}, v{C+1}
    v_add_f32 v{C+2}, v{C+2}, v{C+3}
    v_add_f32 v{C}, v{C}, v{vT1}
    v_add_f32 v{C}, v{C}, v{C+2}
    v_cmp_le_f32 s[28:29], s{sT0}, v{C}
    v_cmp_ge_f32 s[16:17], s{sT1}, v{C}
    s_and_b64 s[28:29], s[28:29], s[16:17]
    s_cmp_eq_u64 s[28:29], -1
    s_cbranch_scc0 att_fallback
    """)
    a.label("att_final")
    a(f"""
    v_mov_b32 v{vT0}, 0
    """)
    for hh in range(2):
        for i in range(8):
            a(f"v_mul_f32 v{O+8*hh+i}, v{O+8*hh+i}, v{vT2}")
        for i in range(4):
            a(f"v_cvt_pk_bf16_f32 v{TMP+4*hh+i}, v{O+8*hh+2*i}, v{O+8*hh+2*i+1}")
        if hh == 1:
            a(f"v_cndmask_b32 v{TMP+6}, v{TMP+6}, v{vT0}, vcc\nv_cndmask_b32 v{TMP+7}, v{TMP+7}, v{vT0}, vcc")
        a(f"buffer_store_dwordx4 {vr(TMP+4*hh, 4)}, v{vL16}, {sr4(S_WS)}, s{sKB} offen offset:{1024*hh}{SC}")
    stamp(a, "x_ost")
    a("s_waitcnt vmcnt(0)")
    a(flag1(a, sVB))
    stamp(a, "x_b2")
    amp_end(a, 'a')
    stamp_flush(a)
    a("s_endpgm")

    a.label("att_fallback")
    sc = S[0]
    K, V = KV, KV + 8
    vMo, vMn, vAl = TMP, TMP + 1, TMP + 2
    a(f"""
    v_mov_b32 v{vT0}, 0
    v_mov_b32 v{vMo}, 0xff800000
    v_cndmask_b32 v{Q}, v{Q}, v{vT0}, s[{sMO}:{sMO+1}]
    v_cndmask_b32 v{Q+6}, v{Q+6}, v{vT0}, s[{sME}:{sME+1}]
    s_mov_b32 s{sIT}, 0
    s_lshl_b32 s{sKS}, s{sP0}, 9
    s_add_u32 s{sKS}, s{sKS}, {KF}
    s_mul_i32 s{sVS}, s{sHEAD}, 448
    s_add_u32 s{sVS}, s{sVS}, {VF}
    s_waitcnt vmcnt(0)
    """)
    for i in range(16):
        a(f"v_mov_b32 v{O+i}, 0")
    a.label("att_fb_loop")
    a(f"""
    buffer_load_dwordx4 {vr(K, 4)}, v{vL16}, {sr4(S_WS)}, s{sKS} offen{SC}
    buffer_load_dwordx4 {vr(K+4, 4)}, v{vL16}, {sr4(S_WS)}, s{sKS} offen offset:1024{SC}
    s_mov_b64 exec, s[{sVM}:{sVM+1}]
    buffer_load_dwordx4 {vr(V, 4)}, v{avV0}, {sr4(S_WS)}, s{sVS} offen{SC}
    buffer_load_dwordx4 {vr(V+4, 4)}, v{avV1}, {sr4(S_WS)}, s{sVS} offen{SC}
    s_mov_b64 exec, -1
    s_waitcnt vmcnt(0)
    {MFMA} {vr(sc, 16)}, {vr(K, 4)}, {vr(Q, 4)}, 0
    {MFMA} {vr(sc, 16)}, {vr(K+4, 4)}, {vr(Q+4, 4)}, {vr(sc, 16)}
    s_nop 15
    v_max3_f32 v{vMn}, v{vMo}, v{sc}, v{sc+1}
    """)
    for i in range(2, 16, 2):
        a(f"v_max3_f32 v{vMn}, v{vMn}, v{sc+i}, v{sc+i+1}")
    a(f"""
    v_mov_b32 v{vT0}, v{vMn}
    s_nop 1
    v_permlane32_swap_b32 v{vMn}, v{vT0}
    v_max_f32 v{vMn}, v{vMn}, v{vT0}
    v_sub_f32 v{vAl}, v{vMo}, v{vMn}
    v_exp_f32 v{vAl}, v{vAl}
    v_mov_b32 v{vMo}, v{vMn}
    """)
    for i in range(16):
        a(f"v_sub_f32 v{sc+i}, v{sc+i}, v{vMn}")
    for i in range(16):
        a(f"v_exp_f32 v{sc+i}, v{sc+i}")
    for i in range(16):
        a(f"v_mul_f32 v{O+i}, v{O+i}, v{vAl}")
    for i in range(8):
        a(f"v_cvt_pk_bf16_f32 v{P+i}, v{sc+2*i}, v{sc+2*i+1}")
    a(f"""
    s_nop 1
    {MFMA} {vr(O, 16)}, {vr(V, 4)}, {vr(P, 4)}, {vr(O, 16)}
    {MFMA} {vr(O, 16)}, {vr(V+4, 4)}, {vr(P+4, 4)}, {vr(O, 16)}
    s_add_u32 s{sKS}, s{sKS}, {TQ}
    s_add_u32 s{sVS}, s{sVS}, {TQ}
    s_add_u32 s{sIT}, s{sIT}, 1
    s_cmp_lt_u32 s{sIT}, 64
    s_cbranch_scc1 att_fb_loop
    s_nop 15
    v_mov_b32 v{vT0}, v{O+12}
    v_mov_b32 v{vT1}, v{O+12}
    s_nop 1
    v_permlane32_swap_b32 v{vT0}, v{vT1}
    v_rcp_f32 v{vT2}, v{vT1}
    s_nop 0
    s_branch att_final
    """)


def build():
    ref = open(f"cdna_kernels/{NAME}.s.ref").read().split("\n")
    hdr = [l for l in ref if l.startswith(";") and "@launch" not in l and "Override launch" not in l and "grid=ceil" not in l]
    body = gen()
    out = "\n".join(hdr) + "\n"
    out += f"; @launch grid=(256,1,1) block=(512,1,1) lds={LDS_BYTES}\n"
    out += '.amdgcn_target "amdgcn-amd-amdhsa--gfx950"\n.text\n'
    out += f".globl {KNAME}\n.p2align 8\n.type {KNAME},@function\n{KNAME}:\n"
    out += body
    out += f""".section .rodata,"a"
.p2align 6
.amdhsa_kernel {KNAME}
  .amdhsa_next_free_vgpr 256
  .amdhsa_next_free_sgpr 102
  .amdhsa_accum_offset 256
  .amdhsa_group_segment_fixed_size 0
  .amdhsa_kernarg_size 88
  .amdhsa_user_sgpr_count 2
  .amdhsa_user_sgpr_kernarg_segment_ptr 1
  .amdhsa_system_sgpr_workgroup_id_x 1
.end_amdhsa_kernel
"""
    return out


if __name__ == "__main__":
    path = sys.argv[1]
    open(path, "w").write(build())
    print("wrote", path)
```

```python
import math, struct, sys, os

NAME = "gated_mix__softmax_full_mha__swiglu_ffn__prompt"
KNAME = NAME + "_kernel"
INSTR = int(os.environ.get("INSTR", "0"))
OPT = os.environ.get("OPT", "nox")

QF = 0
KF = 2 << 20
VF = 4 << 20
TQ = 28672
HF = 6 << 20
OF = 14 << 20
GF = 16 << 20
FQ = (16 << 20) + 0x10000
FH = (16 << 20) + 0x20000
FHB = (16 << 20) + 0x28000
QX = 73728
MBOX = 32768 - QX
FO = (16 << 20) + 0x40000
TSF = 24 << 20
WS_BYTES = 32 << 20
OOB = 0x40000000
SLEEP_Q = int(os.environ.get('SLQ', '2'))
SLEEP_H = int(os.environ.get('SLH', '8'))
SLEEP_O = int(os.environ.get('SLO', '2'))
LOG2E = math.log2(math.e)
MFMA = "v_mfma_f32_32x32x16_bf16"
SC = " sc1"
SLOT = 40960
LDS_BYTES = 4 * SLOT
MERGE = 49152
CNT = 155648
SPIN_MAX = 1 << int(os.environ.get('SPINLOG', '20'))


def ring_addr(s):
    if s <= 6:
        return 98304 + s * 8192
    if s == 7:
        return 32768
    if s <= 11:
        return (s - 8) * 8192
    return 40960


def wslot(i):
    return i % 13 if i < 28 else [2, 3, 4, 5, 8, 9, 10, 11][i - 28]


def f32bits(x):
    return struct.unpack("<I", struct.pack("<f", x))[0]


class Asm:
    def __init__(self):
        self.lines = []

    def __call__(self, s):
        for ln in s.strip("\n").split("\n"):
            ln = ln.strip()
            if not ln:
                continue
            self.lines.append(ln if ln.endswith(":") else "    " + ln)

    def label(self, l):
        self.lines.append(l + ":")

    def text(self):
        return "\n".join(self.lines) + "\n"


def vr(base, n):
    return f"v[{base}:{base + n - 1}]"


def sr4(b):
    return f"s[{b}:{b+3}]"


def srd(a, sd, sb, nbytes):
    a(f"""
    s_mov_b32 s{sd}, s{sb}
    s_mov_b32 s{sd+1}, s{sb+1}
    s_mov_b32 s{sd+2}, {nbytes}
    s_mov_b32 s{sd+3}, 0x00020000
    """)


def L(s):
    return [l.strip() for l in s.strip("\n").split("\n") if l.strip()]


HA_ST = int(os.environ.get('HA_ST', '13'))
EARLY_P = int(os.environ.get('EARLY_P', '27'))
QKB = int(os.environ.get('QKB', '11'))
FPER = int(os.environ.get('FPER', '4'))
PF2_ST = int(os.environ.get('PF2_ST', '0'))
PF3_ST = int(os.environ.get('PF3_ST', '2'))
GDA = int(os.environ.get('GDA', '10'))
AROT = int(os.environ.get('AROT', '15'))
WP_ST = int(os.environ.get('WP_ST', '5'))
FA_AT = int(os.environ.get('FA_AT', '52'))
PFPOS = int(os.environ.get('PFPOS', '1'))
PF_EARLY = int(os.environ.get('PF_EARLY', '2'))
PFROW = int(os.environ.get('PFROW', '192'))
NQ = (448 - PFROW) * 2688 // 1024
NG = (448 - PFROW) * 3584 // 2048
assert NQ + 2 * NG <= 2048
TLB_STR = int(os.environ.get('TLB_STR', str(1 << 20)))
TLB_WG = int(os.environ.get('TLB_WG', '0'))
CPW = int(os.environ.get('CPW', '28'))
PAUSE = int(os.environ.get('PAUSE', '20'))
PLA = int(os.environ.get('PLA', '2'))
PLW = int(os.environ.get('PLW', '3'))
PBURST = int(os.environ.get('PBURST', '4'))
PMARK = os.environ.get('PMARK', 'peel')
GPRE = int(os.environ.get('GPRE', '4'))
GB_AT = int(os.environ.get('GB_AT', '7'))

S_X, S_B0, S_G, S_U, S_WS, S_TMP, S_WD, S_DBG = 4, 8, 12, 16, 20, 24, 28, 32
S_WO, S_OUT = 8, 12
sMI, sJ, sW, sR, sGRP = 36, 37, 38, 39, 40
sKQ = 39
sT0, sT1, sT2 = 42, 43, 44
sMX, sMB, sSO = 45, 46, 47
sSC, sTILE, sHOFF, sHOFF2, sQKO = 48, 49, 50, 51, 52
sWB, sM0, sFHO, sFQB, sP0, sOK = 53, 54, 55, 56, 57, 58
sNONCE, sNL2E, sC8, sI32, sSPIN = 59, 60, 61, 62, 63
P_X, P_WQKV, P_WO, P_WG, P_WU, P_WD, P_GW, P_OUT, P_DBG, P_WS = 64, 66, 68, 72, 74, 76, 78, 80, 82, 84
ST0 = 86
sHEAD, sQB, sMT, sNT = 70, 71, 41, 3
sFHA = 65
vLane, vL16 = 1, 2
vT0, vT1, vT2, vT3 = 3, 4, 5, 6
STAMPS = os.environ.get("STAMPS", "").split(",")[:6]


AMP = os.environ.get("AMP", "")


def stamp(a, name):
    if AMP and name == "start": a("s_memrealtime s[86:87]")
    if AMP and name == AMP: a("s_memrealtime s[88:89]")
    if INSTR and (name == "start" or name in STAMPS):
        idx = 0 if name == "start" else 1 + STAMPS.index(name)
        a(f"s_memtime s[{ST0+2*idx}:{ST0+2*idx+1}]")
    if INSTR and "R" + name in STAMPS:
        idx = 1 + STAMPS.index("R" + name)
        a(f"s_memrealtime s[{ST0+2*idx}:{ST0+2*idx+1}]")


def amp_end(a, tag):
    if not AMP: return
    stamp(a, "end")
    a(f"""
    s_cmp_lg_u32 s2, {os.environ.get("AMPG", "40")}
    s_cbranch_scc1 k_end
    s_cmp_lg_u32 s{sW}, {os.environ.get("AMPW", "4")}
    s_cbranch_scc1 k_end
    s_memrealtime s[90:91]
    s_waitcnt lgkmcnt(0)
    s_sub_u32 s88, s88, s86
    s_mul_i32 s88, s88, {os.environ.get('AMPK', '1')}
    """)
    a.label(f"amp_spin{tag}")
    a(f"""
    s_memrealtime s[92:93]
    s_waitcnt lgkmcnt(0)
    s_sub_u32 s92, s92, s90
    s_cmp_lt_u32 s92, s88
    s_cbranch_scc1 amp_spin{tag}
    """)


def stamp_flush(a, vtmp=3):
    if not INSTR:
        return
    a(f"""
    s_memtime s[4:5]
    s_memrealtime s[6:7]
    s_lshl_b32 s3, s2, 3
    s_add_u32 s3, s3, s{sW}
    s_lshl_b32 s3, s3, 7
    s_add_u32 s3, s3, {TSF}
    v_mov_b32 v{vtmp+1}, 0
    s_waitcnt lgkmcnt(0)
    """)
    regs = [ST0 + 2 * i for i in range(8)] + [4, 6]
    for i, r in enumerate(regs):
        a(f"""
        v_mov_b32 v{vtmp}, s{r}
        buffer_store_dword v{vtmp}, v{vtmp+1}, {sr4(S_WS)}, s3 offen offset:{4*i}
        s_nop 1
        """)


def flag_store(a, soff_reg, vtmp):
    a(f"""
    v_mov_b32 v{vtmp}, s{sNONCE}
    v_mov_b32 v{vtmp+1}, 0
    s_mov_b64 exec, 1
    buffer_store_dword v{vtmp}, v{vtmp+1}, {sr4(S_WS)}, s{soff_reg} offen{SC}
    s_mov_b64 exec, -1
    """)


_uid = [0]


def poll(a, addrs, soff, vtmp, sleep):
    _uid[0] += 1
    u = _uid[0]
    a(f"s_mov_b32 s{sSPIN}, {SPIN_MAX}")
    a.label(f"poll_ld{u}")
    for i, va in enumerate(addrs):
        a(f"buffer_load_dword v{vtmp+i}, v{va}, {sr4(S_WS)}, s{soff} offen{SC}")
    a("s_waitcnt vmcnt(0)")
    poll_cmp(a, len(addrs), vtmp)
    a(f"""
    s_sub_u32 s{sSPIN}, s{sSPIN}, 1
    s_cbranch_scc1 poll_done{u}
    s_cmp_eq_u64 vcc, 0
    s_cbranch_scc1 poll_done{u}
    s_sleep {sleep}
    s_branch poll_ld{u}
    """)
    a.label(f"poll_done{u}")


def poll_cmp(a, n, vtmp):
    if n == 1:
        a(f"v_cmp_ne_u32 vcc, s{sNONCE}, v{vtmp}")
    else:
        a(f"""
        v_xor_b32 v{vtmp}, s{sNONCE}, v{vtmp}
        v_xor_b32 v{vtmp+1}, s{sNONCE}, v{vtmp+1}
        v_or_b32 v{vtmp}, v{vtmp}, v{vtmp+1}
        v_cmp_ne_u32 vcc, 0, v{vtmp}
        """)


def lds_set(a, off, val, vtmp):
    a(f"""
    v_mov_b32 v{vtmp}, {CNT + off}
    v_mov_b32 v{vtmp+1}, {val}
    ds_write_b32 v{vtmp}, v{vtmp+1}
    """)


def lds_wait(a, off, vtmp, cond, sleep=1):
    _uid[0] += 1
    u = _uid[0]
    a(f"v_mov_b32 v{vtmp}, {CNT + off}")
    a.label(f"lw{u}")
    a(f"""
    ds_read_b32 v{vtmp+1}, v{vtmp}
    s_waitcnt lgkmcnt(0)
    v_readfirstlane_b32 s{sT0}, v{vtmp+1}
    """)
    a(f"s_cmp_lg_u32 s{sT0}, 0" if cond == "ne0" else f"s_cmp_eq_u32 s{sT0}, {cond[2:]}")
    a(f"""
    s_cbranch_scc1 lwd{u}
    s_sleep {sleep}
    s_branch lw{u}
    """)
    a.label(f"lwd{u}")


class VM:
    def __init__(self):
        self.q = []

    def add(self, tag):
        self.q.append(tag)

    def wait(self, tags, counts=None):
        idx = max([i for i, t in enumerate(self.q) if t in tags], default=-1)
        for t in tags:
            assert t in self.q, (t, self.q)
            if counts:
                assert self.q.count(t) == counts(t), (t, self.q)
        n = len(self.q) - 1 - idx
        assert n <= 63
        return n

    def copy(self):
        v = VM(); v.q = list(self.q); return v


vFLA, vPOL, vFQO, vF1, vNON = 7, 9, 11, 12, 13
vDW = 31


def flag1(a, soff):
    return f"buffer_store_dword v{vNON}, v{vF1}, {sr4(S_WS)}, s{soff} offen{SC}"


AQ, AO, AS, AKV, AP, ATMP = 16, 48, [112, 128], 144, 208, 224
avG, avM, avONE = 14, 15, 216
sME, sMO = 24, 26
sKB, sVB, sTI, sKS, sVS, sIT = 45, 46, 47, 48, 52, 49


avV0, avV1 = 14, 11
HBR = 240


def hb_stores():
    return [f"buffer_store_dwordx4 {vr(HBR+4*i, 4)}, v{vL16}, {sr4(S_WS)}, s{sHOFF2} offen offset:{1024*i}{SC}" for i in range(2)]

sVM = 30


def kv_adv():
    return [f"s_mul_i32 s{sVS}, s{sTI}, {TQ}", f"s_add_u32 s{sKS}, s{sVS}, s{sKB}",
            f"s_add_u32 s{sVS}, s{sVS}, s{sVB}",
            f"s_add_u32 s{sTI}, s{sTI}, 1", f"s_and_b32 s{sTI}, s{sTI}, 15"]


def kv_load(buf, part, vv=(None, None)):
    if part < 2:
        return [f"buffer_load_dwordx4 {vr(AKV+16*buf+4*part, 4)}, v{vL16}, {sr4(S_WS)}, s{sKS} offen offset:{1024*part}{SC}"]
    return [f"s_mov_b64 exec, s[{sVM}:{sVM+1}]",
            f"buffer_load_dwordx4 {vr(AKV+16*buf+4*part, 4)}, v{vv[part-2]}, {sr4(S_WS)}, s{sVS} offen{SC}",
            "s_mov_b64 exec, -1"]


def att_loads():
    vm = VM()
    o1 = L(f"""
    s_mov_b32 s{sOK}, s{sT0}
    s_lshl_b32 s{sT1}, s{sP0}, 9
    s_lshl_b32 s{sT2}, s{sQB}, 2
    s_add_u32 s{sT2}, s{sT2}, s{sKQ}
    s_mul_i32 s{sT0}, s{sT2}, {TQ}
    s_add_u32 s{sT0}, s{sT0}, s{sT1}
    buffer_load_dwordx4 {vr(AQ, 4)}, v{vL16}, {sr4(S_WS)}, s{sT0} offen{SC}
    buffer_load_dwordx4 {vr(AQ+4, 4)}, v{vL16}, {sr4(S_WS)}, s{sT0} offen offset:1024{SC}
    s_mul_i32 s{sVB}, s{sKQ}, {16 * TQ}
    s_add_u32 s{sKB}, s{sVB}, s{sT1}
    s_add_u32 s{sKB}, s{sKB}, {KF}
    s_mul_i32 s{sT0}, s{sHEAD}, 448
    s_add_u32 s{sVB}, s{sVB}, s{sT0}
    s_add_u32 s{sVB}, s{sVB}, {VF}
    s_and_b32 s{sTI}, s{sQB}, {AROT}
    s_mov_b32 s{sVM}, 0x0fffffff
    s_mov_b32 s{sVM+1}, 0x0fffffff
    v_lshrrev_b32 v{avV0}, 5, v{vLane}
    v_mul_u32_u24 v{avV0}, {7168 - 512}, v{avV0}
    v_add_u32 v{avV0}, v{avV0}, v{vL16}
    v_add_u32 v{avV1}, 14336, v{avV0}
    """)
    vm.add(("q",)); vm.add(("q",))
    o2, o3 = [], []
    for t in range(3):
        o = o1 if t == 0 else o2
        o += [f"s_add_u32 s{sT0}, s{sTI}, {t}", f"s_and_b32 s{sT0}, s{sT0}, 15", f"s_mul_i32 s{sKS}, s{sT0}, {TQ}", f"s_add_u32 s{sKS}, s{sKS}, s{sKB}"]
        for p in range(2):
            o.append(kv_load(t, p))
            vm.add(("kv", t, p))
        o2 += [f"v_mov_b32 v{AKV+16*t+8+i}, 0x3f803f80" for i in range(8)]
    o3.append(f"s_mov_b64 exec, s[{sVM}:{sVM+1}]")
    for t in range(3):
        o3 += [f"s_mul_i32 s{sVS}, s{sTI}, {TQ}", f"s_add_u32 s{sVS}, s{sVS}, s{sVB}", f"s_add_u32 s{sTI}, s{sTI}, 1", f"s_and_b32 s{sTI}, s{sTI}, 15"]
        for p in range(2, 4):
            o3.append(kv_load(t, p, (avV0, avV1))[1])
    o3.append("s_mov_b64 exec, -1")
    flat = lambda o: [y for x in o for y in (x if isinstance(x, list) else [x])]
    return o1, o2, vm, flat, o3


def fq_eval(a):
    a(f"""
    v_cmp_ne_u32 vcc, s{sNONCE}, v{vPOL}
    v_cmp_ne_u32 s[16:17], s{sNONCE}, v{vPOL+1}
    s_nop 0
    s_or_b32 s{sT0}, vcc_lo, s16
    s_cselect_b32 s{sT0}, 4, 5
    s_cmp_eq_u32 vcc_hi, 0
    s_cselect_b32 s{sT1}, 2, 0
    s_or_b32 s{sT0}, s{sT0}, s{sT1}
    """)


def fq_issue(a):
    a(f"""
    buffer_load_dword v{vPOL}, v{vFLA}, {sr4(S_WS)}, s{sFQB} offen{SC}
    buffer_load_dword v{vPOL+1}, v{vFLA+1}, {sr4(S_WS)}, s{sFQB} offen{SC}
    """)


def fq_wait(a, tag, bit, first_issued=False):
    a(f"s_cmp_lg_u32 s{sW}, 0\ns_cbranch_scc1 {tag}_lw\ns_mov_b32 s{sSPIN}, {SPIN_MAX}")
    if first_issued:
        a(f"s_branch {tag}_chk")
    a.label(f"{tag}_ld")
    fq_issue(a)
    a.label(f"{tag}_chk")
    a("s_waitcnt vmcnt(0)")
    fq_eval(a)
    a(f"""
    s_sub_u32 s{sSPIN}, s{sSPIN}, 1
    s_cselect_b32 s{sT0}, 7, s{sT0}
    s_bitcmp1_b32 s{sT0}, {bit}
    s_cbranch_scc1 {tag}_ok
    s_sleep {SLEEP_Q}
    s_branch {tag}_ld
    """)
    a.label(f"{tag}_ok")
    lds_set(a, 4, f"s{sT0}", vT0)
    a(f"s_branch {tag}_go")
    a.label(f"{tag}_lw")
    a(f"v_mov_b32 v{vT0}, {CNT + 4}")
    a.label(f"{tag}_lw2")
    a(f"""
    ds_read_b32 v{vT1}, v{vT0}
    s_waitcnt lgkmcnt(0)
    v_readfirstlane_b32 s{sT0}, v{vT1}
    s_bitcmp1_b32 s{sT0}, {bit}
    s_cbranch_scc1 {tag}_go
    s_sleep 1
    s_branch {tag}_lw2
    """)
    a.label(f"{tag}_go")


def wk_off(i):
    return 8 * (i % 14) + 4 * (i // 14)


def gen():
    a = Asm()
    vDX0, vDX1, vDB0, vDG, vDU = 7, 8, 9, 10, 11
    vAX = 14
    vAW = 18
    vST = 22
    vN, vR4, vC, vRow = 26, 27, 28, 29
    X, ACC, WF = 32, 144, 224
    PFR, vPFL, sPFI = ACC + 60, 30, 58

    stamp(a, "start")
    if INSTR: a("s_memrealtime s[100:101]")
    if "dbgt" in OPT: a("s_memtime s[86:87]\ns_memrealtime s[88:89]")
    a(f"""
    s_cmp_ge_u32 s2, 256
    s_cbranch_scc1 k_end
    """)
    if os.environ.get("DELAY"):
        a(f"""
        s_cmp_lg_u32 s2, {os.environ["DELAY"]}
        s_cbranch_scc1 k_nodelay
        s_mov_b32 s3, 12
        """)
        a.label("k_delay")
        a("s_sleep 100\ns_sub_u32 s3, s3, 1\ns_cmp_lg_u32 s3, 0\ns_cbranch_scc1 k_delay")
        a.label("k_nodelay")
    a(f"""
    s_load_dwordx16 s[64:79], s[0:1], 0
    s_load_dwordx4 s[80:83], s[0:1], 64
    s_load_dwordx2 s[84:85], s[0:1], 80
    v_and_b32 v{vLane}, 63, v0
    v_lshrrev_b32 v{vT0}, 6, v0
    s_and_b32 s{sC8}, s2, 7
    s_lshr_b32 s{sI32}, s2, 3
    v_readfirstlane_b32 s{sW}, v{vT0}
    s_lshr_b32 s{sT1}, s{sC8}, 1
    s_mul_i32 s{sT0}, s{sT1}, 28
    s_sub_u32 s{sT0}, s{sT0}, 4
    s_lshl_b32 s{sT1}, s{sT1}, 2
    s_add_u32 s{sT1}, s{sT1}, 112
    s_cmp_lt_u32 s{sI32}, 4
    s_cselect_b32 s{sT0}, s{sT1}, s{sT0}
    s_add_u32 s{sT0}, s{sT0}, s{sI32}
    s_lshr_b32 s{sJ}, s{sT0}, 3
    s_and_b32 s{sT0}, s{sT0}, 7
    s_and_b32 s{sMI}, s{sC8}, 1
    s_lshl_b32 s{sMI}, s{sMI}, 3
    s_add_u32 s{sMI}, s{sMI}, s{sT0}
    v_lshrrev_b32 v{vT0}, 3, v{vLane}
    v_lshrrev_b32 v{vT1}, 4, v{vLane}
    v_and_b32 v{vT2}, 7, v{vLane}
    v_xor_b32 v{vT3}, v{vT2}, v{vT1}
    s_lshl_b32 s{sT0}, s{sMI}, 7
    s_lshl_b32 s{sT1}, s{sW}, 4
    s_add_u32 s{sT0}, s{sT0}, s{sT1}
    v_add_u32 v{vDX0}, s{sT0}, v{vT0}
    v_mul_u32_u24 v{vDX0}, 896, v{vDX0}
    v_lshl_add_u32 v{vDX0}, v{vT3}, 4, v{vDX0}
    v_xor_b32 v{vDX1}, 64, v{vDX0}
    v_add_u32 v{vDX1}, 7168, v{vDX1}
    v_and_b32 v{vT3}, 1, v{vT1}
    v_lshlrev_b32 v{vT3}, 2, v{vT3}
    v_xor_b32 v{vT3}, v{vT3}, v{vT2}
    v_lshlrev_b32 v{vT3}, 4, v{vT3}
    v_mul_u32_u24 v{vDW}, 896, v{vT0}
    v_add_u32 v{vDW}, v{vDW}, v{vT3}
    s_lshl_b32 s{sT0}, s{sW}, 3
    v_add_u32 v{vT0}, s{sT0}, v{vT0}
    v_mul_u32_u24 v{vDB0}, 2688, v{vT0}
    v_add_u32 v{vDB0}, v{vDB0}, v{vT3}
    s_lshl_b32 s{sMX}, s{sW}, 11
    s_lshl_b32 s{sMB}, s{sW}, 10
    s_add_u32 s{sMB}, s{sMB}, 16384
    v_lshlrev_b32 v{vL16}, 4, v{vLane}
    s_mov_b32 s{S_X+2}, {2048 * 448 * 2}
    s_mov_b32 s{S_X+3}, 0x00020000
    s_mov_b32 s{S_B0+2}, {448 * 1344 * 2}
    s_mov_b32 s{S_B0+3}, 0x00020000
    s_mov_b32 s{S_G+3}, 0x00020000
    s_mov_b32 s{S_U+3}, 0x00020000
    s_cmp_ge_u32 s{sJ}, 14
    s_cbranch_scc1 k1_v
    """)

    vm = None

    def emit_group(g):
        for l in g[0]:
            a(l)
        vm.add(g[1])

    def dma(m0base, m0off, vaddr, srdb, soff):
        return [f"s_add_u32 m0, s{m0base}, {m0off & 0xffffffff}", f"s_mov_b32 s{sSO}, {soff}",
                f"buffer_load_dwordx4 v{vaddr}, {sr4(srdb)}, s{sSO} offen lds"]

    def pf1(tg):
        if "nopf" in OPT.split(","):
            return
        a(f"""
        s_lshl_b32 s{sPFI}, s2, 3
        s_add_u32 s{sPFI}, s{sPFI}, s{sW}
        s_lshl_b32 s{sT0}, s{sPFI}, 10
        s_mov_b32 s{S_TMP+3}, 0x00020000
        v_lshrrev_b32 v{vPFL}, 3, v{vLane}
        v_lshlrev_b32 v{vPFL}, 7, v{vPFL}
        v_add_u32 v{vPFL}, v{vPFL}, v{vL16}
        """)
        if "nox" not in OPT:
            a(f"buffer_load_dwordx4 {vr(PFR, 4)}, v{vL16}, {sr4(S_X)}, s{sT0} offen")
            vm.add(("PF",))
        if "now1" in OPT:
            return
        a(f"""
        s_cmp_lt_u32 s{sPFI}, {NQ}
        s_cbranch_scc1 k_pf_q_{tg}
        s_cmp_lt_u32 s{sPFI}, {NQ + NG}
        s_cselect_b32 s{S_TMP}, s{P_WG}, s{P_WU}
        s_cselect_b32 s{S_TMP+1}, s{P_WG+1}, s{P_WU+1}
        s_cselect_b32 s{sT0}, 0, {NG}
        s_mov_b32 s{S_TMP+2}, {448 * 1792 * 2}
        s_sub_u32 s{sT0}, s{sPFI}, s{sT0}
        s_lshl_b32 s{sT0}, s{sT0}, 11
        s_add_u32 s{sT0}, s{sT0}, {(PFROW * 3584 - NQ * 2048) & 0xffffffff}
        buffer_load_dwordx4 {vr(PFR+4, 4)}, v{vPFL}, {sr4(S_TMP)}, s{sT0} offen
        s_branch k_pf_d_{tg}
        """)
        a.label(f"k_pf_q_{tg}")
        a(f"""
        s_add_u32 s{sT0}, s{sT0}, {PFROW * 2688}
        buffer_load_dwordx4 {vr(PFR+4, 4)}, v{vL16}, {sr4(S_B0)}, s{sT0} offen
        """)
        a.label(f"k_pf_d_{tg}")
        vm.add(("PF",))

    def common_setup2(tg):
        srd(a, S_WS, P_WS, WS_BYTES)
        srd(a, S_DBG, P_DBG, 256)
        srd(a, S_WD, P_WD, 1792 * 448 * 2)
        a(f"""
        s_or_b32 s{sT0}, s2, s{sW}
        s_cmp_lg_u32 s{sT0}, 0
        s_cbranch_scc1 k_nononce_{tg}
        s_memrealtime s[{sSC}:{sSC+1}]
        v_mov_b32 v{vT1}, 0
        s_waitcnt lgkmcnt(0)
        s_or_b32 s{sT0}, s{sSC}, 0x80000000
        v_mov_b32 v{vT0}, s{sT0}
        s_mov_b64 exec, 1
        buffer_store_dword v{vT0}, v{vT1}, {sr4(S_DBG)}, 0 offen{SC}
        s_mov_b64 exec, -1
        """)
        a.label(f"k_nononce_{tg}")
        if not PFPOS:
            pf1(tg)
        if PF_EARLY:
            for g in (([] if 'no2' in OPT else [pf2()]) + ([pf3()] if PF_EARLY == 2 else [])):
                emit_group(g)
        if "tlb" in OPT:
            a(f"""
            s_cmp_lg_u32 s{sW}, 1
            s_cbranch_scc1 k_notlb_{tg}
            s_mov_b32 s{sT0}, {TLB_STR}
            v_mul_lo_u32 v{vT0}, v{vLane}, s{sT0}
            s_mul_i32 s{sT1}, s{sI32}, {TLB_WG}
            s_mov_b32 s{S_TMP}, s{P_WS}
            s_mov_b32 s{S_TMP+1}, s{P_WS+1}
            s_mov_b32 s{S_TMP+2}, {(16 << 20) + 0x50000}
            s_mov_b32 s{S_TMP+3}, 0x00020000
            buffer_load_dword v{ACC+76}, v{vT0}, {sr4(S_TMP)}, s{sT1} offen
            s_mov_b32 s{S_TMP}, s{P_OUT}
            s_mov_b32 s{S_TMP+1}, s{P_OUT+1}
            s_mov_b32 s{S_TMP+2}, {2048 * 448 * 2}
            buffer_load_dword v{ACC+77}, v{vT0}, {sr4(S_TMP)}, s{sT1} offen
            """)
            a.label(f"k_notlb_{tg}")
        if "nocp" not in OPT:
            a(f"""
            s_sub_u32 s{sT0}, s{sI32}, {CPW}
            s_cmp_ge_u32 s{sT0}, 4
            s_cbranch_scc1 k_nocp_{tg}
            s_lshl_b32 s{sT0}, s{sT0}, 3
            s_add_u32 s{sT0}, s{sT0}, s{sW}
            s_lshl_b32 s{sT0}, s{sT0}, 10
            v_add_u32 v{vT0}, s{sT0}, v{vL16}
            v_min_u32 v{vT0}, k_end-{KNAME}-12, v{vT0}
            s_getpc_b64 s[{sSC}:{sSC+1}]
            """)
            a.label(f"k_pc_{tg}")
            a(f"""
            s_sub_u32 s{sSC}, s{sSC}, k_pc_{tg}-{KNAME}
            s_subb_u32 s{sSC+1}, s{sSC+1}, 0
            v_mov_b32 v{vT2}, s{sSC+1}
            v_add_co_u32 v{vT1}, vcc, s{sSC}, v{vT0}
            s_nop 1
            v_addc_co_u32 v{vT2}, vcc, 0, v{vT2}, vcc
            global_load_dwordx4 {vr(ACC+76, 4)}, v[{vT1}:{vT2}], off
            """)
            a.label(f"k_nocp_{tg}")
        a(f"""
        s_and_b32 s{sR}, s{sW}, 3
        s_lshr_b32 s{sGRP}, s{sW}, 2
        s_lshl_b32 s{sTILE}, s{sMI}, 2
        s_add_u32 s{sTILE}, s{sTILE}, s{sR}
        v_and_b32 v{vT0}, 31, v{vLane}
        v_lshrrev_b32 v{vT1}, 5, v{vLane}
        v_bfe_u32 v{vT2}, v{vLane}, 1, 3
        v_xor_b32 v{vT2}, v{vT2}, v{vT1}
        s_lshl_b32 s{sT0}, s{sR}, 12
        v_lshlrev_b32 v{vT3}, 7, v{vT0}
        v_lshl_add_u32 v{vT3}, v{vT2}, 4, v{vT3}
        v_add_u32 v{vAX}, s{sT0}, v{vT3}
        v_xor_b32 v{vAX+1}, 32, v{vAX}
        v_xor_b32 v{vAX+2}, 64, v{vAX}
        v_xor_b32 v{vAX+3}, 96, v{vAX}
        v_bfe_u32 v{vN}, v{vLane}, 4, 1
        v_bfe_u32 v{vR4}, v{vLane}, 2, 2
        v_and_b32 v{vC}, 3, v{vLane}
        v_lshl_add_u32 v{vRow}, v{vT1}, 3, v{vR4}
        v_and_b32 v{vT2}, 2, v{vR4}
        v_xor_b32 v{vT2}, v{vT2}, v{vN}
        s_lshl_b32 s{sT0}, s{sGRP}, 1
        v_xor_b32 v{vT2}, s{sT0}, v{vT2}
        v_lshlrev_b32 v{vT3}, 7, v{vRow}
        v_lshl_add_u32 v{vT3}, v{vT2}, 5, v{vT3}
        v_lshl_add_u32 v{vT3}, v{vC}, 3, v{vT3}
        v_add_u32 v{vAW}, 16384, v{vT3}
        s_mov_b32 s{sNL2E}, {f32bits(-LOG2E):#x}
        """)

    def flag_addr(vtype, vfla, vfqo):
        t0, t1, t2, t3 = vN, vR4, vC, vRow
        o = L(f"""
        s_lshl_b32 s{sHEAD}, s{sC8}, 1
        s_and_b32 s{sT2}, s{sI32}, 1
        s_add_u32 s{sHEAD}, s{sHEAD}, s{sT2}
        s_lshr_b32 s{sQB}, s{sI32}, 1
        s_lshl_b32 s{sMT}, s{sC8}, 2
        s_and_b32 s{sT2}, s{sI32}, 3
        s_add_u32 s{sMT}, s{sMT}, s{sT2}
        s_lshr_b32 s{sNT}, s{sI32}, 2
        s_mul_i32 s{sP0}, s{sHEAD}, 7
        s_lshr_b32 s{sP0}, s{sP0}, 1
        s_lshl_b32 s{sFQB}, s{sHEAD}, 12
        s_add_u32 s{sFQB}, s{sFQB}, {FQ}
        s_lshr_b32 s{sT1}, s{sQB}, 2
        s_lshl_b32 s{sT1}, s{sT1}, 7
        s_and_b32 s{sT2}, s{sQB}, 3
        s_lshl_b32 s{sT2}, s{sT2}, 2
        s_add_u32 s{sT1}, s{sT1}, s{sT2}
        s_add_u32 s{sT1}, s{sT1}, 2048
        v_lshrrev_b32 v{t0}, 2, v{vLane}
        v_and_b32 v{t1}, 3, v{vLane}
        v_lshlrev_b32 v{t1}, 2, v{t1}
        v_lshl_add_u32 v{vfla}, v{t0}, 7, v{t1}
        v_and_b32 v{t0}, 1, v{vLane}
        v_lshl_add_u32 v{vfla+1}, v{t0}, 9, s{sT1}
        v_and_b32 v{t0}, 15, v{vLane}
        v_lshrrev_b32 v{t1}, 4, v{vLane}
        v_lshlrev_b32 v{t3}, 12, v{t0}
        v_lshl_add_u32 v{t3}, v{t1}, 9, v{t3}
        s_lshr_b32 s{sT1}, s{sMI}, 2
        s_lshl_b32 s{sT1}, s{sT1}, 7
        s_and_b32 s{sT2}, s{sMI}, 3
        s_lshl_b32 s{sT2}, s{sT2}, 2
        s_add_u32 s{sT1}, s{sT1}, s{sT2}
        """)
        if not vtype:
            o += L(f"""
            s_add_u32 s{sT2}, s{sJ}, 1
            s_lshr_b32 s{sT2}, s{sT2}, 3
            v_mul_u32_u24 v{t2}, 7, v{t0}
            v_lshrrev_b32 v{t2}, 1, v{t2}
            v_mad_u32_u24 v{t2}, v{t1}, 3, v{t2}
            v_lshrrev_b32 v{t2}, 3, v{t2}
            v_lshrrev_b32 v{t1}, 1, v{t1}
            v_lshl_add_u32 v{t2}, v{t1}, 6, v{t2}
            v_mad_u32_u24 v{t2}, s{sT2}, 7, v{t2}
            v_cmp_eq_u32 vcc, s{sJ}, v{t2}
            s_lshl_b32 s{sT2}, s{sT2}, 11
            s_sub_u32 s{sT1}, s{sT1}, s{sT2}
            s_add_u32 s{sT1}, s{sT1}, 2048
            """)
        else:
            o += L(f"""
            v_add_u32 v{t2}, 14, v{t1}
            v_cmp_eq_u32 vcc, s{sJ}, v{t2}
            s_add_u32 s{sT1}, s{sT1}, 1024
            """)
        o += L(f"""
        v_add_u32 v{t3}, s{sT1}, v{t3}
        v_mov_b32 v{t0}, {OOB}
        v_cndmask_b32 v{vfqo}, v{t0}, v{t3}, vcc
        v_cmp_eq_u32 vcc, 0, v{vLane}
        s_lshr_b32 s{sFHO}, s{sTILE}, 1
        s_lshl_b32 s{sFHO}, s{sFHO}, 10
        v_cndmask_b32 v{vF1}, v{t0}, v{vLane}, vcc
        s_lshr_b32 s{sT1}, s{sJ}, 1
        s_lshl_b32 s{sT1}, s{sT1}, 7
        s_add_u32 s{sFHO}, s{sFHO}, s{sT1}
        s_and_b32 s{sT1}, s{sJ}, 1
        s_lshl_b32 s{sT1}, s{sT1}, 3
        s_add_u32 s{sFHO}, s{sFHO}, s{sT1}
        s_and_b32 s{sT1}, s{sR}, 1
        s_lshl_b32 s{sT1}, s{sT1}, 2
        s_add_u32 s{sFHO}, s{sFHO}, s{sT1}
        s_add_u32 s{sFHO}, s{sFHO}, {FHB}
        s_lshl_b32 s{sFHA}, s{sMI}, 9
        s_lshr_b32 s{sT1}, s{sJ}, 2
        s_lshl_b32 s{sT1}, s{sT1}, 7
        s_add_u32 s{sFHA}, s{sFHA}, s{sT1}
        s_and_b32 s{sT1}, s{sJ}, 3
        s_lshl_b32 s{sT1}, s{sT1}, 2
        s_add_u32 s{sFHA}, s{sFHA}, s{sT1}
        s_add_u32 s{sFHA}, s{sFHA}, {FH}
        s_lshl_b32 s{sM0}, s{sNT}, 7
        s_mul_i32 s{sWB}, s{sR}, {16 * 896}
        s_add_u32 s{sWB}, s{sWB}, s{sM0}
        s_lshl_b32 s{sM0}, s{sR}, 11
        """)
        return o

    def nonce_get(tag):
        a(f"""
        v_readfirstlane_b32 s{sNONCE}, v{vNON}
        v_lshlrev_b32 v{vT0}, 2, v{vLane}
        v_add_u32 v{vT0}, {CNT}, v{vT0}
        v_mov_b32 v{vT1}, 0
        s_cmp_lg_u32 s{sNONCE}, 0
        s_cbranch_scc1 k1_nonce_ok_{tag}
        """)
        a.label(f"k1_nonce_spin_{tag}")
        a(f"""
        buffer_load_dword v{vNON}, v{vT1}, {sr4(S_DBG)}, 0 offen{SC}
        s_waitcnt vmcnt(0)
        v_readfirstlane_b32 s{sNONCE}, v{vNON}
        s_sleep 4
        s_cmp_eq_u32 s{sNONCE}, 0
        s_cbranch_scc1 k1_nonce_spin_{tag}
        """)
        a.label(f"k1_nonce_ok_{tag}")
        a(f"ds_write_b32 v{vT0}, v{vT1}")

    def pf2():
        return (L(f"""
        s_cmp_lt_u32 s{sPFI}, 784
        s_cselect_b32 s{S_TMP}, s{P_WG}, s{P_WU}
        s_cselect_b32 s{S_TMP+1}, s{P_WG+1}, s{P_WU+1}
        s_cselect_b32 s{sT0}, 0, 784
        s_mov_b32 s{S_TMP+2}, {448 * 1792 * 2}
        s_sub_u32 s{sT0}, s{sPFI}, s{sT0}
        s_lshl_b32 s{sT0}, s{sT0}, 11
        buffer_load_dwordx4 {vr(PFR+8, 4)}, v{vPFL}, {sr4(S_TMP)}, s{sT0} offen offset:128
        """), ("PF",))

    def pf3():
        return (L(f"""
        s_cmp_lt_u32 s{sPFI}, 1568
        s_cselect_b32 s{S_TMP}, s{P_WD}, s{P_WO}
        s_cselect_b32 s{S_TMP+1}, s{P_WD+1}, s{P_WO+1}
        s_cselect_b32 s{sT0}, 0, 1568
        s_cselect_b32 s{S_TMP+2}, s{S_WD+2}, {448 * 448 * 2}
        s_sub_u32 s{sT0}, s{sPFI}, s{sT0}
        s_lshl_b32 s{sT0}, s{sT0}, 10
        buffer_load_dwordx4 {vr(PFR+12, 4)}, v{vL16}, {sr4(S_TMP)}, s{sT0} offen
        """), ("PF",))

    nonce_ld = ([f"v_mov_b32 v{vNON}, 0", f"buffer_load_dword v{vNON}, v{vNON}, {sr4(S_DBG)}, 0 offen{SC}"], ("N",))

    def wpref(i):
        ra = ring_addr(i % 13)
        return [f"s_add_u32 m0, s{sM0}, {ra}", f"s_add_u32 s{sT0}, s{sWB}, {wk_off(i) * 16 * 896}",
                f"buffer_load_dwordx4 v{vDW}, {sr4(S_WD)}, s{sT0} offen lds",
                f"s_add_u32 m0, s{sM0}, {ra + 1024}", f"s_add_u32 s{sT0}, s{sT0}, {8 * 896}",
                f"buffer_load_dwordx4 v{vDW}, {sr4(S_WD)}, s{sT0} offen lds"]

    abase = [0]

    def set_base(nb, regs):
        out = []
        if nb != abase[0]:
            d = nb - abase[0]
            for r in regs:
                out.append(f"v_add_u32 v{r}, {d}, v{r}" if d > 0 else f"v_subrev_u32 v{r}, {-d}, v{r}")
            abase[0] = nb
        return out

    def emit(x):
        if isinstance(x, tuple):
            a(x[1]); vm.add((x[0],))
        else:
            a(x)

    vm = VM()
    cnts = lambda t: {"A": 5, "B": 2}[t[0]] if t[0] in ("A", "B") else vm.q.count(t)
    a(f"""
    s_lshl_b32 s{sT0}, s{sJ}, 7
    v_add_u32 v{vDB0}, s{sT0}, v{vDB0}
    v_mul_u32_u24 v{vDG}, 3584, v{vT0}
    s_lshl_b32 s{sT0}, s{sJ}, 8
    v_add3_u32 v{vDG}, v{vDG}, v{vT3}, s{sT0}
    v_xor_b32 v{vDU}, 32, v{vDG}
    s_mov_b32 s{S_G+2}, {448 * 1792 * 2}
    s_mov_b32 s{S_U+2}, {448 * 1792 * 2}
    s_waitcnt lgkmcnt(0)
    s_mov_b64 s[{S_X}:{S_X+1}], s[{P_X}:{P_X+1}]
    s_mov_b64 s[{S_B0}:{S_B0+1}], s[{P_WQKV}:{P_WQKV+1}]
    s_mov_b64 s[{S_G}:{S_G+1}], s[{P_WG}:{P_WG+1}]
    s_mov_b64 s[{S_U}:{S_U+1}], s[{P_WU}:{P_WU+1}]
    """)

    def fA(st):
        b = (st % 4) * SLOT
        g = [dma(sMX, b, vDX0, S_X, st * 128), dma(sMX, b + 1024, vDX1, S_X, st * 128),
             dma(sMB, b, vDB0, S_B0, st * 64 * 2688), dma(sMB, b + 8192, vDG, S_G, st * 64 * 3584),
             dma(sMB, b + 16384, vDU, S_U, st * 64 * 3584)]
        return [(x, ("A", st)) for x in g]

    def bslot(sb):
        return ((3 + sb // 2) % 4) * SLOT + (sb % 2) * 16384

    def fB(sb):
        b = bslot(sb) - 16384
        g = [dma(sMB, b, vDG, S_G, sb * 64 * 3584 + 128), dma(sMB, b + 8192, vDU, S_U, sb * 64 * 3584 + 128)]
        return [(x, ("B", sb)) for x in g]

    for g in fA(0):
        emit_group(g)
    a("s_barrier")
    if PFPOS: pf1("f")
    for g in fA(1):
        emit_group(g)
    common_setup2("f")
    a(f"""
    v_lshl_add_u32 v{vAW+1}, v{vN}, 13, v{vT3}
    v_add_u32 v{vAW+1}, {16384 + 8192}, v{vAW+1}
    v_xor_b32 v{vAW+2}, 32, v{vAW+1}
    s_cmp_ge_u32 s{sJ}, 7
    s_cselect_b32 s{sT1}, {KF - 7 * 4096}, {QF}
    s_cselect_b32 s{sSC}, 1.0, {f32bits(28 ** -0.5 * LOG2E):#x}
    s_lshl_b32 s{sT2}, s{sJ}, 12
    s_add_u32 s{sT1}, s{sT1}, s{sT2}
    s_lshl_b32 s{sT2}, s{sGRP}, 11
    s_add_u32 s{sT1}, s{sT1}, s{sT2}
    s_mul_i32 s{sQKO}, s{sTILE}, {TQ}
    s_add_u32 s{sQKO}, s{sQKO}, s{sT1}
    s_mul_i32 s{sHOFF}, s{sTILE}, 112
    s_lshl_b32 s{sT1}, s{sJ}, 3
    s_add_u32 s{sHOFF}, s{sHOFF}, s{sT1}
    s_lshl_b32 s{sT1}, s{sGRP}, 1
    s_add_u32 s{sHOFF}, s{sHOFF}, s{sT1}
    s_lshl_b32 s{sHOFF}, s{sHOFF}, 10
    s_add_u32 s{sHOFF}, s{sHOFF}, {HF}
    s_add_u32 s{sHOFF2}, s{sHOFF}, 4096
    """)
    WA = [WF, WF + 12, ACC + 48]
    NB = 4
    WB = [WF + 24, WF + 16, WF + 8, WF]

    def readsA(ks):
        st, s = ks // 4, ks % 4
        slot = st % 4
        out = set_base((slot // 2) * 2 * SLOT, [vAX, vAX+1, vAX+2, vAX+3, vAW, vAW+1, vAW+2])
        off = (slot % 2) * SLOT
        f = WA[ks % 3]
        out.append(f"ds_read_b128 {vr(X+4*ks, 4)}, v{vAX+s} offset:{off}")
        for t in range(3):
            for q in range(2):
                out.append(f"ds_read_b64_tr_b16 {vr(f+4*t+2*q, 2)}, v{vAW+t} offset:{off + (16*s + 4*q) * 128}")
        return out

    def readsB(ks):
        sb, s = ks // 4, ks % 4
        b = bslot(sb)
        f = WB[ks % NB]
        b32 = b - b % 32768
        off = b - b32
        out = set_base(b32 - 24576, [vAW+1, vAW+2])
        for t in range(2):
            for q in range(2):
                out.append(f"ds_read_b64_tr_b16 {vr(f+4*t+2*q, 2)}, v{vAW+1+t} offset:{off + (16*s + 4*q) * 128}")
        return out

    def epi_ffn(acc, ko, dst, t):
        g, u = acc, acc + 8
        o = []
        for i in range(8):
            o.append(f"v_mul_f32 v{t+i}, s{sNL2E}, v{g+i}")
        for i in range(8):
            o.append(f"v_exp_f32 v{t+i}, v{t+i}")
        for i in range(8):
            o.append(f"v_add_f32 v{t+i}, 1.0, v{t+i}")
        for i in range(8):
            o.append(f"v_rcp_f32 v{t+i}, v{t+i}")
        for i in range(8):
            o.append(f"v_mul_f32 v{g+i}, v{g+i}, v{t+i}")
        for i in range(8):
            o.append(f"v_mul_f32 v{u+i}, v{u+i}, v{g+i}")
        for i in range(4):
            o.append(f"v_cvt_pk_bf16_f32 v{dst+i}, v{u+2*i}, v{u+2*i+1}")
        so, off = (sHOFF, ko) if ko < 4 else (sHOFF2, ko - 4)
        o.append(("H", f"buffer_store_dwordx4 {vr(dst, 4)}, v{vL16}, {sr4(S_WS)}, s{so} offen offset:{1024*off}{SC}"))
        return o

    def epi_qk():
        o = []
        for i in range(8):
            o.append(f"v_mul_f32 v{ACC+2*i}, s{sSC}, v{ACC+2*i}")
            o.append(f"v_mul_f32 v{ACC+2*i+1}, s{sSC}, v{ACC+2*i+1}")
            o.append(f"v_cvt_pk_bf16_f32 v{ACC+i}, v{ACC+2*i}, v{ACC+2*i+1}")
        o.append("s_nop 1")
        for hh in range(2):
            b = ACC + 4 * hh
            o.append(f"v_permlane32_swap_b32 v{b}, v{b+2}")
            o.append(f"v_permlane32_swap_b32 v{b+1}, v{b+3}")
            o.append(("QK", f"buffer_store_dwordx4 {vr(b, 4)}, v{vL16}, {sr4(S_WS)}, s{sQKO} offen offset:{1024*hh}{SC}"))
        return o

    abase[0] = 0
    a(f"s_waitcnt vmcnt({vm.wait({('A', 0)}, cnts)})\ns_barrier")
    stamp(a, "p1_first")
    for ks in range(2):
        for r in readsA(ks):
            a(r)
    pend = fA(2) + fA(3)
    vFQf = vST
    fillA = flag_addr(False, vFLA, vFQf)
    for ks in range(28):
        st, s = ks // 4, ks % 4
        f = WA[ks % 3]
        m = [f"{MFMA} {vr(ACC+16*t, 16)}, {vr(f+4*t, 4)}, {vr(X+4*ks, 4)}, {'0' if ks == 0 else vr(ACC+16*t, 16)}" for t in range(3)]
        if s == 2:
            need = {("A", st + 1)} if st < 6 else {("B", 0), ("B", 1), ("B", 2), ("B", 3), ("N",)}
            a(f"s_waitcnt vmcnt({vm.wait(need, cnts)}) lgkmcnt(0)")
            if st == 6:
                nonce_get("f")
            a("s_barrier")
            stamp(a, f"p1_a{st}")
            if st + 4 <= 6:
                pend += fA(st + 4)
            else:
                i0 = 2 * (st - 3)
                pend += fB(i0) + (fB(i0 + 1) if i0 + 1 < 7 else [])
            if st == 2:
                pend.append(nonce_ld)
            if "nopf" not in OPT and st == PF2_ST and PF_EARLY < 1: pend.append(pf2())
            if "nopf" not in OPT and st == PF3_ST and PF_EARLY < 2: pend.append(pf3())
        elif ks < 27:
            a("s_waitcnt lgkmcnt(7)")
        else:
            a("s_waitcnt lgkmcnt(4)")
        r = readsA(ks + 2) if ks + 2 < 28 else readsB(ks + 2 - 28)
        k = len(r) - 4 if ks + 2 < 28 else len(r) - 2
        a(m[0])
        for x in r[:k]:
            a(x)
        a(m[1])
        for x in r[k:]:
            a(x)
        a(m[2])
        if ks >= 16:
            assert vm.q.count(("A", 6)) == 5
            for _ in range(7):
                if fillA: a(fillA.pop(0))
        nd = 2 if (len(pend) > 4 or st < 1) else 1
        for _ in range(nd):
            if pend:
                emit_group(pend.pop(0))
    assert not fillA
    stamp(a, "p1_aend")
    for x in readsB(2):
        a(x)
    ea, eb = epi_ffn(ACC + 16, 0, X + 16, X), epi_ffn(ACC + 32, 1, X + 20, X + 8)
    fillq = ["s_nop 3"] + epi_qk()
    fill = ea + eb
    wq = [0, 1, 2, 3, 4, 5, 6]
    sWH, sMH2 = sMX, sOK
    for ks in range(28):
        f = WB[ks % NB]
        m = [f"{MFMA} {vr(ACC+48+16*t, 16)}, {vr(f+4*t, 4)}, {vr(X+4*ks, 4)}, {'0' if ks == 0 else vr(ACC+48+16*t, 16)}" for t in range(2)]
        nxt = ks + NB - 1
        if ks == QKB:
            need = {5: {("B", 2), ("B", 3), ("N",)}, QKB: {("B", 4), ("B", 5), ("B", 6), ("QK",)}, 17: set()}[ks]
            if ks == QKB: assert vm.q.count(("QK",)) == 2 and QKB <= 13
            if need: a(f"s_waitcnt vmcnt({vm.wait(need, cnts)})")
            a("s_barrier")
            stamp(a, {5: "p1_b2", QKB: "p1_b4", 17: "p1_b5"}[ks])
            if ks == QKB:
                a(f"""
                s_cmp_lg_u32 s{sW}, 7
                s_cbranch_scc1 k1_noflag_f
                s_mov_b32 s{sT0}, {FQ}
                buffer_store_dword v{vNON}, v{vFQf}, {sr4(S_WS)}, s{sT0} offen{SC}
                """)
                a.label("k1_noflag_f")
        stamp(a, f"pb{ks}")
        a(f"s_waitcnt lgkmcnt({min(NB - 2, 27 - ks) * 4})")
        r = readsB(nxt) if nxt < 28 else []

        def dofill():
            if ks < 1: return
            if fillq:
                for _ in range(5):
                    if fillq: emit(fillq.pop(0))
            else:
                for _ in range(FPER):
                    if fill and isinstance(fill[0], tuple) and ks < HA_ST and len(fill) > 1:
                        fill[0], fill[1] = fill[1], fill[0]
                    if fill and not (isinstance(fill[0], tuple) and ks < HA_ST): emit(fill.pop(0))
        a(m[0])
        for x in r[:len(r) - 2]:
            a(x)
        if pend:
            emit_group(pend.pop(0))
        dofill()
        a(m[1])
        for x in r[len(r) - 2:]:
            a(x)
        dofill()
        if wq and ks >= WP_ST and (ring_addr(wq[0]) < 122880 or ks >= QKB) and not pend:
            i = wq.pop(0)
            if i == 0:
                a(f"""
                s_mul_i32 s{sWH}, s{sGRP}, {8 * 896}
                s_add_u32 s{sWH}, s{sWH}, s{sWB}
                s_cmp_ge_u32 s{sI32}, 28
                s_cselect_b32 s{sWH}, {OOB}, s{sWH}
                s_lshl_b32 s{sMH2}, s{sGRP}, 10
                s_add_u32 s{sMH2}, s{sMH2}, s{sM0}
                """)
            a(f"""
            s_add_u32 m0, s{sMH2}, {ring_addr(i)}
            s_add_u32 s{sT0}, s{sWH}, {wk_off(i) * 16 * 896}
            buffer_load_dwordx4 v{vDW}, {sr4(S_WD)}, s{sT0} offen lds
            """)
            vm.add(("WP",))
        if ks == EARLY_P:
            a(f"""
            s_cmp_lg_u32 s{sW}, 0
            s_cbranch_scc1 k1_nopoll
            buffer_load_dword v{vPOL}, v{vFLA}, {sr4(S_WS)}, s{sFQB} offen{SC}
            buffer_load_dword v{vPOL+1}, v{vFLA+1}, {sr4(S_WS)}, s{sFQB} offen{SC}
            """)
            a.label("k1_nopoll")
    assert not fill and not pend and not wq
    stamp(a, "pb28")
    a("s_nop 7\ns_nop 3")
    stamp(a, "p1_bend")
    e0, e1 = epi_ffn(ACC + 48, 4, HBR, X + 32), epi_ffn(ACC + 64, 5, HBR + 4, X + 40)
    ev = e0[:-1] + e1[:-1]
    for x in ev[:FA_AT]:
        a(x)
    ev = ev[FA_AT:]
    a(f"""
    v_mov_b32 v{vT0}, {CNT + 32}
    v_mov_b32 v{vT1}, 1
    s_waitcnt vmcnt(0)
    s_mov_b64 exec, 1
    ds_add_rtn_u32 v{vT1}, v{vT0}, v{vT1}
    s_mov_b64 exec, -1
    s_waitcnt lgkmcnt(0)
    v_readfirstlane_b32 s{sT0}, v{vT1}
    s_cmp_lg_u32 s{sT0}, 7
    s_cbranch_scc1 k1_nofa
    """)
    a(flag1(a, sFHA))
    a.label("k1_nofa")
    a(f"""
    s_cmp_ge_u32 s{sW}, 4
    s_cbranch_scc1 k1_epi
    s_cmp_lg_u32 s{sW}, 0
    s_cbranch_scc1 k1_w123
    """)
    fq_eval(a)
    lds_set(a, 4, f"s{sT0}", vT0)
    a(f"""
    s_bitcmp1_b32 s{sT0}, 0
    s_cbranch_scc1 k1_early
    """)
    fq_issue(a)
    a("s_branch k1_epi")
    a.label("k1_w123")
    lds_wait(a, 4, vT0, "ne0", 1)
    a(f"s_bitcmp1_b32 s{sT0}, 0\ns_cbranch_scc0 k1_epi")
    a.label("k1_early")
    stamp(a, "x_go")
    o1, o2, _, flat, _ = att_loads()
    for x in flat(o1):
        a(x)
    ev2 = list(ev)
    step = len(ev2) // len(o2)
    for x in o2:
        for _ in range(step):
            a(ev2.pop(0))
        for y in flat([x]):
            a(y)
    for x in ev2:
        a(x)
    stamp(a, "p1_end")
    a("s_branch att_main")
    a.label("k1_epi")
    for x in ev:
        a(x)
    stamp(a, "p1_end")
    a(f"""
    s_cmp_ge_u32 s{sW}, 4
    s_cbranch_scc1 gemm_role_f
    s_cmp_lg_u32 s{sW}, 0
    s_cbranch_scc1 aq_lw
    s_mov_b32 s{sSPIN}, {SPIN_MAX}
    s_branch aq_chk
    """)
    a.label("gemm_role_f")
    lds_wait(a, 32, vT0, "eq8", 1)
    a("s_branch gemm_role2")

    a.label("k1_v")
    vm = VM()
    cntv = lambda t: {"A": 5, "B": 1}[t[0]] if t[0] in ("A", "B") else vm.q.count(t)
    GWL = CNT + 1024
    a(f"""
    v_add_u32 v{vDU}, {(896 + 192) * 2}, v{vDB0}
    s_cmp_eq_u32 s{sJ}, 14
    s_cselect_b32 s{sT0}, 0, 512
    s_add_u32 s{sT0}, s{sT0}, {896 * 2}
    v_add_u32 v{vDB0}, s{sT0}, v{vDB0}
    s_mov_b32 s{S_U+2}, {448 * 2}
    s_waitcnt lgkmcnt(0)
    s_mov_b64 s[{S_X}:{S_X+1}], s[{P_X}:{P_X+1}]
    s_mov_b64 s[{S_B0}:{S_B0+1}], s[{P_WQKV}:{P_WQKV+1}]
    s_mov_b64 s[{S_U}:{S_U+1}], s[{P_GW}:{P_GW+1}]
    """)

    def vA(st):
        b = (st % 4) * SLOT
        g = [dma(sMX, b, vDX0, S_X, st * 128), dma(sMX, b + 1024, vDX1, S_X, st * 128)]
        for bi in range(3):
            g.append(dma(sMB, b + 8192 * bi, vDB0, S_B0, st * 64 * 2688 + 128 * bi))
        return [(x, ("A", st)) for x in g]

    def vbslot(sb):
        return 3 * SLOT + sb * 8192 if sb < 4 else (sb - 4) * 8192

    def vB(sb):
        return [(dma(sMB, vbslot(sb) - 16384, vDU, S_B0, sb * 64 * 2688), ("B", sb))]

    gw_ld = ([f"s_mov_b32 m0, {GWL}", "s_nop 0", f"buffer_load_dwordx4 v{vL16}, {sr4(S_U)}, 0 offen lds"], ("GW",))

    for g in vA(0):
        emit_group(g)
    a("s_barrier")
    if PFPOS: pf1("v")
    for g in vA(1):
        emit_group(g)
    common_setup2("v")
    vAZ = vAW + 3
    a(f"""
    v_add_u32 v{vAW+1}, 8192, v{vAW}
    v_add_u32 v{vAW+2}, 16384, v{vAW}
    s_sub_u32 s{sT1}, s{sJ}, 14
    s_lshl_b32 s{sT1}, s{sT1}, 6
    v_xor_b32 v{vAZ}, s{sT1}, v{vAW}
    v_lshlrev_b32 v{vST+1}, 4, v{vT1}
    v_add_u32 v{vST+1}, {GWL}, v{vST+1}
    s_cmp_eq_u32 s{sJ}, 14
    s_cselect_b32 s{sT1}, 0, 4096
    s_lshl_b32 s{sT2}, s{sGRP}, 9
    s_add_u32 s{sT1}, s{sT1}, s{sT2}
    s_mul_i32 s{sHOFF}, s{sTILE}, {TQ}
    s_add_u32 s{sHOFF}, s{sHOFF}, s{sT1}
    s_add_u32 s{sHOFF}, s{sHOFF}, {VF}
    s_add_u32 s{sHOFF2}, s{sHOFF}, 14336
    v_mul_u32_u24 v{vST}, {7168 - 512}, v{vT1}
    v_add_u32 v{vST}, v{vST}, v{vL16}
    """)

    def readsVA(ks):
        st, s = ks // 4, ks % 4
        slot = st % 4
        out = set_base((slot // 2) * 2 * SLOT, [vAX, vAX+1, vAX+2, vAX+3, vAW, vAW+1, vAW+2, vAZ])
        off = (slot % 2) * SLOT
        f = WA[ks % 3]
        out.append(f"ds_read_b128 {vr(X+4*ks, 4)}, v{vAX+s} offset:{off}")
        for t in range(3):
            for q in range(2):
                out.append(f"ds_read_b64_tr_b16 {vr(f+4*t+2*q, 2)}, v{vAW+t} offset:{off + (16*s + 4*q) * 128}")
        return out

    NBV = 6
    WBV = [WF + 24, WF + 28, WF + 16, WF + 20, WF + 12, WF + 8]

    def readsVB(ks, z):
        sb, s = ks // 4, ks % 4
        f = WBV[ks % NBV]
        if z:
            return [f"ds_read_b128 {vr(f, 4)}, v{vST+1} offset:{32*ks}"]
        b = vbslot(sb)
        nb = (3 * SLOT if sb < 4 else 0)
        out = set_base(nb - 16384, [vAZ])
        off = b - nb
        for q in range(2):
            out.append(f"ds_read_b64_tr_b16 {vr(f+2*q, 2)}, v{vAZ} offset:{off + (16*s + 4*q) * 128}")
        return out

    def epi_v(acc, bi):
        o = [f"v_cvt_pk_bf16_f32 v{acc+i}, v{acc+2*i}, v{acc+2*i+1}" for i in range(8)]
        o.append(f"buffer_store_dwordx4 {vr(acc, 4)}, v{vST}, {sr4(S_WS)}, s{sHOFF} offen offset:{1024*bi}{SC}")
        o.append(f"buffer_store_dwordx4 {vr(acc+4, 4)}, v{vST}, {sr4(S_WS)}, s{sHOFF2} offen offset:{1024*bi}{SC}")
        return o

    abase[0] = 0
    a(f"s_waitcnt vmcnt({vm.wait({('A', 0)}, cntv)})\ns_barrier")
    stamp(a, "p1_first")
    for ks in range(2):
        for r in readsVA(ks):
            a(r)
    pend = vA(2) + vA(3)
    fillA = flag_addr(True, vFLA, vDG)
    for ks in range(28):
        st, s = ks // 4, ks % 4
        f = WA[ks % 3]
        m = [f"{MFMA} {vr(ACC+16*t, 16)}, {vr(X+4*ks, 4)}, {vr(f+4*t, 4)}, {'0' if ks == 0 else vr(ACC+16*t, 16)}" for t in range(3)]
        if s == 2:
            need = {("A", st + 1)} if st < 6 else {("B", x) for x in range(7)} | {("N",), ("GW",)}
            a(f"s_waitcnt vmcnt({vm.wait(need, cntv)}) lgkmcnt(0)")
            if st == 6:
                nonce_get("v")
            a("s_barrier")
            if st + 4 <= 6:
                pend += vA(st + 4)
            elif st == 3:
                pend += vB(0) + vB(1) + vB(2) + vB(3)
            elif st == 4:
                pend += vB(4) + vB(5) + vB(6) + [gw_ld]
            if st == 2:
                pend.append(nonce_ld)
            if "nopf" not in OPT and st == PF2_ST and PF_EARLY < 1: pend.append(pf2())
            if "nopf" not in OPT and st == PF3_ST and PF_EARLY < 2: pend.append(pf3())
        elif ks < 27:
            a("s_waitcnt lgkmcnt(7)")
        r = readsVA(ks + 2) if ks + 2 < 28 else []
        k = max(len(r) - 4, 0)
        a(m[0])
        for x in r[:k]:
            a(x)
        a(m[1])
        for x in r[k:]:
            a(x)
        a(m[2])
        if ks >= 16:
            assert vm.q.count(("A", 6)) == 5
            for _ in range(7):
                if fillA: a(fillA.pop(0))
        nd = 2 if (len(pend) > 4 or st < 1) else 1
        for _ in range(nd):
            if pend:
                emit_group(pend.pop(0))
    assert not fillA and not pend
    stamp(a, "p1_aend")
    VB = ACC + 48

    def passVB(z, fill):
        nrd = 1 if z else 2
        for ks in range(NBV - 1):
            for x in readsVB(ks, z):
                a(x)
        for ks in range(28):
            f = WBV[ks % NBV]
            c = vr(VB, 16)
            ops = f"{vr(f, 4)}, {vr(X+4*ks, 4)}" if z else f"{vr(X+4*ks, 4)}, {vr(f, 4)}"
            a(f"s_waitcnt lgkmcnt({min(NBV - 2, 27 - ks) * nrd})")
            a(f"{MFMA} {c}, {ops}, {'0' if ks == 0 else c}")
            if ks + NBV - 1 < 28:
                for x in readsVB(ks + NBV - 1, z):
                    a(x)
            for _ in range(3):
                if fill: a(fill.pop(0))
        assert not fill

    a(f"s_cmp_eq_u32 s{sGRP}, 1\ns_cbranch_scc1 k1_vg1")
    passVB(False, ["s_nop 1"] + epi_v(ACC, 0) + epi_v(ACC + 16, 1) + epi_v(ACC + 32, 2))
    a(f"""
    s_mul_i32 s{sHOFF}, s{sTILE}, {TQ}
    s_lshl_b32 s{sT1}, s{sJ}, 9
    s_add_u32 s{sHOFF}, s{sHOFF}, s{sT1}
    s_add_u32 s{sHOFF}, s{sHOFF}, {VF + 192 * 16 - 14 * 512}
    s_add_u32 s{sHOFF2}, s{sHOFF}, 14336
    s_nop 7
    """)
    for x in epi_v(VB, 0):
        a(x)
    stamp(a, "p1_bend")
    a(f"""
    s_waitcnt vmcnt(0)
    s_barrier
    """)
    stamp(a, "p1_end")
    a(f"""
    s_cmp_lg_u32 s{sW}, 3
    s_cbranch_scc1 k1_noflag_v
    s_mov_b32 s{sT0}, {FQ}
    buffer_store_dword v{vNON}, v{vDG}, {sr4(S_WS)}, s{sT0} offen{SC}
    """)
    a(flag1(a, sFHA))
    a.label("k1_noflag_v")
    a("s_branch att_spin")
    a.label("k1_vg1")
    a("s_nop 7")
    for x in epi_v(ACC, 0) + epi_v(ACC + 16, 1) + epi_v(ACC + 32, 2):
        a(x)
    stamp(a, "p1_bend")
    a(f"""
    s_waitcnt vmcnt(0)
    s_barrier
    """)
    stamp(a, "p1_end")
    a(f"s_mov_b32 s{sHOFF2}, {OOB}\ns_cmp_eq_u32 s{sJ}, 14\ns_cbranch_scc1 gemm_role")
    passVB(True, [])
    t = WF
    a(f"""
    s_nop 7
    s_nop 3
    v_mul_f32 v{t}, s{sNL2E}, v{VB}
    v_exp_f32 v{t}, v{t}
    v_and_b32 v{t+1}, 31, v{vLane}
    v_add_f32 v{t}, 1.0, v{t}
    v_rcp_f32 v{t}, v{t}
    v_lshlrev_b32 v{t+1}, 2, v{t+1}
    s_lshl_b32 s{sT0}, s{sTILE}, 7
    s_add_u32 s{sT0}, s{sT0}, {GF}
    buffer_store_dword v{t}, v{t+1}, {sr4(S_WS)}, s{sT0} offen{SC}
    s_waitcnt vmcnt(0)
    """)
    a.label("gemm_role")
    for i in range(7):
        for x in wpref(i):
            a(x)
    a.label("gemm_role2")
    gen_gemm(a, wpref)
    gen_attention(a)
    a.label("k_end")
    a("s_endpgm")
    return a.text()


vAWr = 16
RB = [0, 98304]


def wtr_setup(a):
    a(f"""
    v_bfe_u32 v{vT0}, v{vLane}, 4, 1
    v_bfe_u32 v{vT1}, v{vLane}, 2, 2
    v_and_b32 v{vT2}, 2, v{vT1}
    v_xor_b32 v{vT2}, v{vT2}, v{vT0}
    s_and_b32 s{sT0}, s{sKQ}, 1
    s_lshl_b32 s{sT0}, s{sT0}, 1
    v_xor_b32 v{vT2}, s{sT0}, v{vT2}
    v_lshrrev_b32 v{vT3}, 5, v{vLane}
    v_lshl_add_u32 v{vT3}, v{vT3}, 2, v{vT1}
    v_lshlrev_b32 v{vT3}, 7, v{vT3}
    v_lshl_add_u32 v{vT3}, v{vT2}, 5, v{vT3}
    v_and_b32 v{vT2}, 3, v{vLane}
    v_lshl_add_u32 v{vT3}, v{vT2}, 3, v{vT3}
    v_add_u32 v{vAWr}, s{sM0}, v{vT3}
    v_xor_b32 v{vAWr+1}, 64, v{vAWr}
    v_add_u32 v{vAWr+2}, {RB[1]}, v{vAWr}
    v_add_u32 v{vAWr+3}, {RB[1]}, v{vAWr+1}
    v_mov_b32 v{vAWr+4}, v{vT3}
    """)


def wtr_reads(slot, dst):
    ra = ring_addr(slot)
    bi = max(i for i in range(2) if RB[i] <= ra)
    out = []
    for T in range(2):
        for q in range(2):
            out.append(f"ds_read_b64_tr_b16 {vr(dst+4*T+2*q, 2)}, v{vAWr+2*bi+T} offset:{ra - RB[bi] + q*1024}")
    return out


def bcast_poll(a, tag, leader, addrs, soff, vtmp, sleep, ldsoff, pre=None, lsleep=2, skip_if_set=False):
    if skip_if_set:
        a(f"""
        v_mov_b32 v{vT0}, {CNT + ldsoff}
        ds_read_b32 v{vT1}, v{vT0}
        s_waitcnt lgkmcnt(0)
        v_readfirstlane_b32 s{sT0}, v{vT1}
        s_cmp_eq_u32 s{sT0}, 1
        s_cbranch_scc1 {tag}_go
        """)
    a(f"s_cmp_lg_u32 s{sW}, {leader}\ns_cbranch_scc1 {tag}_lw")
    if pre:
        pre()
    poll(a, addrs, soff, vtmp, sleep)
    a.label(f"{tag}_ok")
    lds_set(a, ldsoff, 1, vT0)
    a(f"s_branch {tag}_go")
    a.label(f"{tag}_lw")
    lds_wait(a, ldsoff, vT0, "eq1", lsleep)
    a.label(f"{tag}_go")


def gen_gemm(a, wpref):
    ACC = 64
    ACT = 128
    WFB = [32, 40]
    vA0, vA1, vG0, vFl, vFl2, vMB = 21, 22, 23, 25, 24, 26
    sA0, sB0w, sFH2, sMO2, sDONE, sNEW, sH = 45, 46, 47, 48, 49, 50, 52
    DA = GDA
    stamp(a, "x_role")
    wtr_setup(a)
    srd(a, S_WO, P_WO, 448 * 448 * 2)
    srd(a, S_OUT, P_OUT, 2048 * 448 * 2)
    a(f"""
    s_lshr_b32 s{sMO2}, s{sKQ}, 1
    s_mul_i32 s{sT0}, s{sMO2}, {112 * 1024}
    v_add_u32 v{vA0}, s{sT0}, v{vL16}
    s_sub_u32 s{sT0}, {112 * 1024}, s{sT0}
    v_add_u32 v{vA1}, s{sT0}, v{vL16}
    s_lshr_b32 s{sT1}, s{sMT}, 1
    s_lshl_b32 s{sT1}, s{sT1}, 9
    s_add_u32 s{sT1}, s{sT1}, {FH}
    s_lshl_b32 s{sFH2}, s{sMT}, 10
    s_add_u32 s{sFH2}, s{sFH2}, {FHB}
    s_mul_i32 s{sA0}, s{sMT}, 224
    s_add_u32 s{sA0}, s{sA0}, s{sKQ}
    s_lshl_b32 s{sA0}, s{sA0}, 10
    s_add_u32 s{sA0}, s{sA0}, {HF}
    s_mul_i32 s{sB0w}, s{sKQ}, {112 * 896}
    s_lshl_b32 s{sT0}, s{sNT}, 7
    s_add_u32 s{sB0w}, s{sB0w}, s{sT0}
    v_and_b32 v{vFl}, 0x1ff, v{vFLA}
    v_and_b32 v{vFl2}, 0x3ff, v{vFLA}
    s_add_u32 s{sT2}, s{sM0}, {QX + MBOX}
    v_add_u32 v{vMB}, s{sT2}, v{vL16}
    s_sub_u32 s{sHOFF}, s{sHOFF2}, 2048
    s_cmp_lt_u32 s{sI32}, 28
    s_cbranch_scc1 gemm_has
    """)

    def hb_all():
        lds_wait(a, 36, vT0, "eq4", 1)
        a(f"""
        ds_read_b128 {vr(HBR+8, 4)}, v{vMB}
        ds_read_b128 {vr(HBR+12, 4)}, v{vMB} offset:1024
        """)

    def hb_st():
        return hb_stores() + [f"buffer_store_dwordx4 {vr(HBR+8+4*i, 4)}, v{vL16}, {sr4(S_WS)}, s{sHOFF} offen offset:{1024*i}{SC}" for i in range(2)]
    hb_all()
    a("s_waitcnt lgkmcnt(0)")
    for x in hb_st():
        a(x)
    a("s_waitcnt vmcnt(0)")
    a(flag1(a, sFHO))
    a("s_endpgm")
    a.label("gemm_has")
    a(f"""
    s_cmp_lg_u32 s{sW}, 4
    s_cbranch_scc1 g_noe
    buffer_load_dword v{vG0}, v{vFl}, {sr4(S_WS)}, s{sT1} offen{SC}
    s_waitcnt vmcnt(0)
    v_cmp_ne_u32 vcc, s{sNONCE}, v{vG0}
    s_nop 1
    s_cmp_eq_u64 vcc, 0
    s_cbranch_scc0 g_noe
    """)
    lds_set(a, 8, 1, vT0)
    a.label("g_noe")
    hb_all()
    vm = VM()
    for i in range(0, 7):
        vm.add(("w", i))

    def act_loads(i):
        r = ACT + 8 * (i % DA)
        a(f"""
        s_add_u32 s{sT0}, s{sA0}, {wk_off(i) * 1024}
        buffer_load_dwordx4 {vr(r, 4)}, v{vA0}, {sr4(S_WS)}, s{sT0} offen{SC}
        buffer_load_dwordx4 {vr(r+4, 4)}, v{vA1}, {sr4(S_WS)}, s{sT0} offen{SC}
        """)
        vm.add(("a", i)); vm.add(("a", i))

    def w_loads(i):
        if i < 28:
            for x in wpref(i):
                a(x)
        else:
            ra = ring_addr(wslot(i))
            off = (28 * ((i - 28) // 2) + 16 * ((i - 28) % 2)) * 896
            a(f"""
            s_add_u32 m0, s{sM0}, {ra}
            s_add_u32 s{sT0}, s{sB0w}, {off}
            buffer_load_dwordx4 v{vDW}, {sr4(S_WO)}, s{sT0} offen lds
            s_add_u32 m0, s{sM0}, {ra + 1024}
            s_add_u32 s{sT0}, s{sT0}, {8 * 896}
            buffer_load_dwordx4 v{vDW}, {sr4(S_WO)}, s{sT0} offen lds
            """)
        vm.add(("w", i)); vm.add(("w", i))

    na, nw = 0, 7
    a("s_waitcnt lgkmcnt(0)")
    for x in hb_st():
        a(x); vm.add(("hb",))
    bcast_poll(a, "gA", 4, [vFl], sT1, vG0, SLEEP_H, 8, skip_if_set=True)
    stamp(a, "x_go"); stamp(a, "x_loop")
    for i in range(GPRE):
        act_loads(na); na += 1
    a(f"s_waitcnt vmcnt({vm.wait({('w', 0)})})")
    for x in wtr_reads(0, WFB[0]):
        a(x)
    gotB = False
    for i in range(28):
        if i == PAUSE:
            stamp(a, "g_p0")
            lds_wait(a, 40, vT0, "ne0", 4)
            stamp(a, "g_p1")
            for _ in range(PBURST):
                if na < 28 and na <= i - 1 + DA:
                    act_loads(na); na += 1
                if nw < 28 and nw <= i - 1 + 13:
                    w_loads(nw); nw += 1
        need = {("a", i)}
        if i + 1 < 28:
            need.add(("w", i + 1))
        a(f"s_waitcnt vmcnt({vm.wait(need)}) lgkmcnt(0)")
        if i + 1 < 28:
            for x in wtr_reads((i + 1) % 13, WFB[(i + 1) % 2]):
                a(x)
        for mt in range(2):
            for T in range(2):
                c = vr(ACC + 32 * mt + 16 * T, 16)
                a(f"{MFMA} {c}, {vr(WFB[i%2]+4*T, 4)}, {vr(ACT+8*(i%DA)+4*mt, 4)}, {'0' if i == 0 else c}")
        if i == 0:
            a(flag1(a, sFHO))
        if i == GB_AT:
            stamp(a, "g_b0")
            bcast_poll(a, "gB", 4, [vFl2], sFH2, vPOL, SLEEP_H, 12)
            stamp(a, "g_b1")
            gotB = True
            a(f"""
            v_and_b32 v{vT0}, 31, v{vLane}
            v_lshlrev_b32 v{vT0}, 2, v{vT0}
            s_lshl_b32 s{sT1}, s{sMT}, 1
            s_add_u32 s{sT1}, s{sT1}, s{sMO2}
            s_lshl_b32 s{sT1}, s{sT1}, 7
            s_add_u32 s{sT1}, s{sT1}, {GF}
            buffer_load_dword v{vG0}, v{vT0}, {sr4(S_WS)}, s{sT1} offen{SC}
            """)
            vm.add(("g",))
        for _ in range(2):
            if na < 28 and na <= i + DA and (na < 14 or gotB) and (i >= PAUSE or na < PAUSE + PLA):
                act_loads(na); na += 1
            if nw < 36 and nw <= i + min(13, DA + 1) and (nw < 28 or wslot(nw) + 13 <= i) and (i >= PAUSE or nw < PAUSE + PLW):
                w_loads(nw); nw += 1
    assert na == 28
    while nw < 36:
        w_loads(nw); nw += 1
    stamp(a, "x_lend")
    XS = [0, 1, 6, 7]
    R, AA, SL = 128, ACC + 16, 128
    vX0, vX1, vC1, vOUT, vWa = 26, 27, 28, 30, 29

    def xaddr(reg, x):
        a(f"""
        s_xor_b32 s{sT0}, s{sKQ}, {x}
        s_lshl_b32 s{sT0}, s{sT0}, 11
        v_add_u32 v{reg}, s{sT0}, v{vL16}
        v_add_u32 v{reg+1}, {RB[1]}, v{reg}
        """)

    def xo(i):
        ra = ring_addr(XS[i // 2]) + (i % 2) * 1024
        return (vX0, ra) if ra < RB[1] else (vX1, ra - RB[1])

    def gsync(off, tag):
        a(f"""
        v_mov_b32 v{vC1}, {CNT + off}
        v_mov_b32 v{vT0}, 1
        s_waitcnt vmcnt(0) lgkmcnt(0)
        s_mov_b64 exec, 1
        ds_add_u32 v{vC1}, v{vT0}
        s_mov_b64 exec, -1
        """)
        a.label(tag)
        a(f"""
        ds_read_b32 v{vT0}, v{vC1}
        s_waitcnt lgkmcnt(0)
        v_readfirstlane_b32 s{sT0}, v{vT0}
        s_cmp_eq_u32 s{sT0}, 4
        s_cbranch_scc1 {tag}_d
        s_sleep 1
        s_branch {tag}
        """)
        a.label(f"{tag}_d")

    a("s_setprio 3")
    xaddr(vX0, 0)
    a("s_nop 7")
    for i in range(8):
        r_, o_ = xo(i)
        a(f"ds_write_b128 v{r_}, {vr(ACC+32+4*i, 4)} offset:{o_}")
    xaddr(vX0, 2)
    gsync(16, "gs1")
    for i in range(8):
        r_, o_ = xo(i)
        a(f"ds_read_b128 {vr(R+4*i, 4)}, v{r_} offset:{o_}")
    a("s_waitcnt lgkmcnt(0)")
    for i in range(16, 32):
        a(f"v_add_f32 v{ACC+i}, v{ACC+i}, v{R+i}")
    for i in range(4):
        r_, o_ = xo(i)
        a(f"ds_write_b128 v{r_}, {vr(ACC+16+4*i, 4)} offset:{o_}")
    for i in range(16):
        a(f"v_add_f32 v{ACC+i}, v{ACC+i}, v{R+i}")
    xaddr(vX0, 3)
    gsync(28, "gs2")
    for i in range(4):
        r_, o_ = xo(i)
        a(f"ds_read_b128 {vr(R+4*i, 4)}, v{r_} offset:{o_}")
    a(f"""
    v_sub_f32 v{vT2}, 1.0, v{vG0}
    s_lshl_b32 s{sT1}, s{sMT}, 1
    s_add_u32 s{sT1}, s{sT1}, s{sMO2}
    s_lshl_b32 s{sFH2}, s{sT1}, 9
    s_add_u32 s{sFH2}, s{sFH2}, {FO}
    s_lshl_b32 s{sA0}, s{sT1}, 15
    s_add_u32 s{sA0}, s{sA0}, {OF}
    s_mul_i32 s{sT2}, s{sT1}, {32 * 896}
    s_lshl_b32 s{sT1}, s{sNT}, 7
    s_add_u32 s{sT2}, s{sT2}, s{sT1}
    s_and_b32 s{sT1}, s{sKQ}, 1
    s_lshl_b32 s{sT1}, s{sT1}, 6
    s_add_u32 s{sT2}, s{sT2}, s{sT1}
    v_and_b32 v{vFl}, 31, v{vLane}
    v_mul_u32_u24 v{vOUT}, 896, v{vFl}
    v_lshrrev_b32 v{vT3}, 5, v{vLane}
    v_lshl_add_u32 v{vOUT}, v{vT3}, 4, v{vOUT}
    v_and_b32 v{vFl}, 0x1ff, v{vFLA}
    s_mov_b32 s{sDONE}, 0xffff0000
    s_mov_b32 s{sSPIN}, {SPIN_MAX}
    s_waitcnt lgkmcnt(0)
    """)
    for i in range(16):
        a(f"v_add_f32 v{ACC+i}, v{ACC+i}, v{R+i}")
    for i in range(16):
        a(f"v_mul_f32 v{ACC+i}, v{ACC+i}, v{vT2}")
        a(f"v_mov_b32 v{AA+i}, 0")
    a("s_setprio 1")
    stamp(a, "p3_poll")
    sNB = 53
    a(f"s_mov_b32 s{sNB}, 0\ns_mov_b32 s{sNEW}, 0")
    a.label("p3_poll")
    a(f"""
    buffer_load_dword v{vPOL}, v{vFl}, {sr4(S_WS)}, s{sFH2} offen{SC}
    s_cmp_eq_u32 s{sNB}, 0
    s_cbranch_scc1 p3_chk
    s_waitcnt vmcnt(1) lgkmcnt(0)
    """)
    a.label("p3_run")
    for k in range(8):
        o, w = SL + 16 * k, SL + 16 * k + 8
        a(f"""
        {MFMA} {vr(AA, 16)}, {vr(w, 4)}, {vr(o, 4)}, {vr(AA, 16)}
        {MFMA} {vr(AA, 16)}, {vr(w+4, 4)}, {vr(o+4, 4)}, {vr(AA, 16)}
        """)
        if k < 7:
            a(f"s_cmp_eq_u32 s{sNB}, {k+1}\ns_cbranch_scc1 p3_ran")
    a.label("p3_ran")
    a(f"""
    s_mov_b32 s{sNB}, 0
    s_cmp_eq_u32 s{sDONE}, -1
    s_cbranch_scc1 p3_fin
    """)
    a.label("p3_chk")
    a(f"""
    s_waitcnt vmcnt(0)
    v_cmp_eq_u32 vcc, s{sNONCE}, v{vPOL}
    s_sub_u32 s{sSPIN}, s{sSPIN}, 1
    s_cbranch_scc1 p3_fin
    s_andn2_b32 s{sNEW}, vcc_lo, s{sDONE}
    s_cbranch_scc1 p3_batch
    s_sleep {SLEEP_O}
    s_branch p3_poll
    """)
    a.label("p3_batch")
    for k in range(8):
        o, w = SL + 16 * k, SL + 16 * k + 8
        a(f"""
        s_ff1_i32_b32 s{sH}, s{sNEW}
        s_bitset0_b32 s{sNEW}, s{sH}
        s_bitset1_b32 s{sDONE}, s{sH}
        s_lshl_b32 s{sT0}, s{sH}, 11
        s_add_u32 s{sT0}, s{sT0}, s{sA0}
        buffer_load_dwordx4 {vr(o, 4)}, v{vL16}, {sr4(S_WS)}, s{sT0} offen{SC}
        buffer_load_dwordx4 {vr(o+4, 4)}, v{vL16}, {sr4(S_WS)}, s{sT0} offen offset:1024{SC}
        s_bitcmp1_b32 s{sH}, 1
        s_cselect_b32 s{sT0}, 0, {ring_addr(2)}
        s_and_b32 s{sT1}, s{sH}, 1
        s_lshl_b32 s{sT1}, s{sT1}, 14
        s_add_u32 s{sT0}, s{sT0}, s{sT1}
        s_lshr_b32 s{sT1}, s{sH}, 2
        s_lshl_b32 s{sT1}, s{sT1}, 11
        s_add_u32 s{sT0}, s{sT0}, s{sT1}
        v_add_u32 v{vWa}, s{sT0}, v{vAWr+4}
        ds_read_b64_tr_b16 {vr(w, 2)}, v{vWa}
        ds_read_b64_tr_b16 {vr(w+2, 2)}, v{vWa} offset:1024
        ds_read_b64_tr_b16 {vr(w+4, 2)}, v{vWa} offset:8192
        ds_read_b64_tr_b16 {vr(w+6, 2)}, v{vWa} offset:9216
        s_mov_b32 s{sNB}, {k+1}
        """)
        if k >= 2:
            a("s_waitcnt lgkmcnt(8)")
        if k < 7:
            a(f"s_cmp_eq_u32 s{sNEW}, 0\ns_cbranch_scc1 p3_iss")
    a.label("p3_iss")
    a(f"""
    s_cmp_lg_u32 s{sDONE}, -1
    s_cbranch_scc1 p3_poll
    s_waitcnt vmcnt(0) lgkmcnt(0)
    s_branch p3_run
    """)
    a.label("p3_fin")
    stamp(a, "p3_mfma")
    a("s_nop 7\ns_nop 1")
    t = 96
    for i in range(16):
        a(f"v_fma_f32 v{ACC+i}, v{AA+i}, v{vG0}, v{ACC+i}")
    for i in range(8):
        a(f"v_cvt_pk_bf16_f32 v{t+i}, v{ACC+2*i}, v{ACC+2*i+1}")
    a(f"""
    v_permlane32_swap_b32 v{t}, v{t+2}
    v_permlane32_swap_b32 v{t+1}, v{t+3}
    buffer_store_dwordx4 {vr(t, 4)}, v{vOUT}, {sr4(S_OUT)}, s{sT2} offen
    v_permlane32_swap_b32 v{t+4}, v{t+6}
    v_permlane32_swap_b32 v{t+5}, v{t+7}
    buffer_store_dwordx4 {vr(t+4, 4)}, v{vOUT}, {sr4(S_OUT)}, s{sT2} offen offset:32
    """)
    amp_end(a, 'g')
    if "dbgt" in OPT:
        a(f"""
        s_cmp_ge_u32 s2, 7
        s_cbranch_scc1 k_end
        s_cmp_lg_u32 s{sW}, 4
        s_cbranch_scc1 k_end
        s_memtime s[90:91]
        s_memrealtime s[92:93]
        s_waitcnt lgkmcnt(0)
        s_sub_u32 s90, s90, s86
        s_sub_u32 s92, s92, s88
        v_mov_b32 v4, s90
        v_mov_b32 v5, s92
        s_lshl_b32 s3, s2, 3
        s_add_u32 s3, s3, 8
        buffer_store_dwordx2 v[4:5], v{vF1}, {sr4(S_DBG)}, s3 offen
        """)
    stamp_flush(a)
    a("s_endpgm")


def gen_attention(a):
    Q, O, S, KV, P, TMP = AQ, AO, AS, AKV, AP, ATMP
    vG, vM, vONE = avG, avM, avONE
    a.label("att_spin")
    fq_wait(a, "aq", 0)
    stamp(a, "x_go")
    o1, o2, vm, flat, o3 = att_loads()

    def k_fix(buf):
        return [f"v_cndmask_b32 v{KV+16*buf+6}, v{KV+16*buf+6}, v{vONE}, s[{sME}:{sME+1}]",
                f"v_cndmask_b32 v{KV+16*buf}, v{KV+16*buf}, v{vONE}, s[{sMO}:{sMO+1}]"]

    zer = [f"v_mov_b32 v{O+k}, 0" for k in range(12, 64)]
    for x in flat(o1):
        a(x)
    step = len(zer) // len(o2) + 1
    zz = list(zer)
    for x in o2:
        for _ in range(step):
            if zz: a(zz.pop(0))
        for y in flat([x]):
            a(y)
    a("s_branch att_main2")
    a.label("att_main")
    for x in zer:
        a(x)
    a.label("att_main2")
    stamp(a, "x_main")
    a(f"s_bitcmp1_b32 s{sOK}, 1\ns_cbranch_scc0 att_nv")
    for x in o3:
        a(x)
    a("s_branch att_np")
    a.label("att_nv")
    a(f"s_cmp_lg_u32 s{sW}, 0\ns_cbranch_scc1 att_np")
    fq_issue(a)
    a.label("att_np")
    a(f"""
    s_setprio 2
    s_lshl_b32 s{sT0}, s{sKQ}, 11
    s_add_u32 s{sT0}, s{sT0}, {QX}
    v_add_u32 v{TMP}, s{sT0}, v{vL16}
    v_subrev_u32 v{TMP+1}, {-MBOX}, v{TMP}
    ds_write_b128 v{TMP+1}, {vr(HBR, 4)}
    ds_write_b128 v{TMP+1}, {vr(HBR+4, 4)} offset:1024
    v_mov_b32 v{vT1}, 0
    s_and_b32 s{sT0}, s{sHEAD}, 1
    s_mov_b32 s{sME}, 0
    s_mov_b32 s{sMO+1}, 0
    s_sub_u32 s{sME+1}, s{sT0}, 1
    s_sub_u32 s{sMO}, 0, s{sT0}
    v_mov_b32 v{vONE}, 0x3f803f80
    v_mov_b32 v{TMP+1}, {CNT + 24}
    v_mov_b32 v{TMP+2}, 1
    s_waitcnt vmcnt({vm.wait({('q',), ('kv', 0, 1)}) + 6})
    s_bitcmp1_b32 s{sOK}, 1
    s_cbranch_scc1 att_w2
    s_waitcnt vmcnt({vm.wait({('q',), ('kv', 0, 1)})})
att_w2:
    v_cndmask_b32 v{Q}, v{Q}, v{vT1}, s[{sMO}:{sMO+1}]
    v_cndmask_b32 v{Q+1}, v{Q+1}, v{vT1}, s[{sMO}:{sMO+1}]
    v_cndmask_b32 v{Q+6}, v{Q+6}, v{vT1}, s[{sME}:{sME+1}]
    v_cndmask_b32 v{Q+7}, v{Q+7}, v{vT1}, s[{sME}:{sME+1}]
    {MFMA} {vr(S[1], 16)}, {vr(KV, 4)}, {vr(Q, 4)}, 0
    s_nop 0
    {MFMA} {vr(S[1], 16)}, {vr(KV+4, 4)}, {vr(Q+4, 4)}, {vr(S[1], 16)}
    """)
    stamp(a, "x_q")
    for x in k_fix(0):
        a(x)
    for k in range(12):
        a(f"v_mov_b32 v{O+k}, 0")
    s0 = S[1]
    a(f"""
    v_max3_f32 v{vM}, v{s0}, v{s0+1}, v{s0+2}
    v_max3_f32 v{vT0}, v{s0+3}, v{s0+4}, v{s0+5}
    v_max3_f32 v{vT2}, v{s0+6}, v{s0+7}, v{s0+8}
    v_max3_f32 v{vT3}, v{s0+9}, v{s0+10}, v{s0+11}
    v_max3_f32 v{vM}, v{vM}, v{s0+12}, v{s0+13}
    v_max3_f32 v{vT0}, v{vT0}, v{s0+14}, v{s0+15}
    v_max3_f32 v{vM}, v{vM}, v{vT2}, v{vT3}
    v_max_f32 v{vM}, v{vM}, v{vT0}
    v_mov_b32 v{vT0}, v{vM}
    s_nop 1
    v_permlane32_swap_b32 v{vM}, v{vT0}
    v_max_f32 v{vM}, v{vM}, v{vT0}
    v_sub_f32 v{vM}, 0, v{vM}
    v_cvt_pk_bf16_f32 v{vT0}, v{vM}, v{vM}
    v_lshlrev_b32 v{vT0}, 16, v{vT0}
    v_sub_f32 v{vT0}, v{vM}, v{vT0}
    v_cvt_pk_bf16_f32 v{vT0}, v{vM}, v{vT0}
    v_cndmask_b32 v{Q}, v{Q}, v{vT0}, s[{sMO}:{sMO+1}]
    v_cndmask_b32 v{Q+6}, v{Q+6}, v{vT0}, s[{sME}:{sME+1}]
    ds_write_b128 v{TMP}, {vr(Q, 4)}
    ds_write_b128 v{TMP}, {vr(Q+4, 4)} offset:1024
    {MFMA} {vr(S[0], 16)}, {vr(KV, 4)}, {vr(Q, 4)}, 0
    {MFMA} {vr(S[0], 16)}, {vr(KV+4, 4)}, {vr(Q+4, 4)}, {vr(S[0], 16)}
    s_waitcnt lgkmcnt(0)
    s_mov_b64 exec, 1
    ds_add_u32 v{TMP+1}, v{TMP+2}
    s_mov_b64 exec, -1
    """)
    a(f"s_bitcmp1_b32 s{sOK}, 1\ns_cbranch_scc1 att_hv")
    fq_wait(a, "av", 1, first_issued=True)
    for x in o3[:-1]:
        a(x)
    a.label("att_hv")
    stamp(a, "x_v")
    a(f"""
    s_mov_b64 exec, 1
    ds_add_u32 v{TMP+1}, v{TMP+2} offset:12
    s_mov_b64 exec, -1
    """)
    for x in kv_adv()[:3]:
        a(x)
    for i in range(4):
        a(f"v_mov_b32 v{P+4+i}, 0\nv_mov_b32 v{KV+16*3+12+i}, v{vONE}\nv_mov_b32 v{KV+16*3+8+i}, v{vONE}")
    for i in range(1, 4):
        a(f"""
        s_add_u32 s{sT0}, s{sKQ}, {i}
        s_and_b32 s{sT0}, s{sT0}, 3
        s_lshl_b32 s{sT0}, s{sT0}, 11
        s_add_u32 s{sT0}, s{sT0}, {QX}
        v_add_u32 v{TMP+2+i}, s{sT0}, v{vL16}
        s_add_u32 s{sT0}, s{sKQ}, {i}
        s_and_b32 s{sT0}, s{sT0}, 3
        s_mul_i32 s{sT0}, s{sT0}, 12288
        s_add_u32 s{sT0}, s{sT0}, {MERGE + (i-1) * 4096}
        v_add_u32 v{TMP+8+i-1}, s{sT0}, v{vL16}
        """)
    a(f"""
    s_mul_i32 s{sT0}, s{sKQ}, 12288
    s_add_u32 s{sT0}, s{sT0}, {MERGE}
    v_add_u32 v{TMP+11}, s{sT0}, v{vL16}
    v_mov_b32 v{TMP+12}, {CNT}
    v_mov_b32 v{TMP+13}, 1
    """)
    stamp(a, "x_qs")
    a.label("att_qsync")
    a(f"""
    ds_read_b32 v{TMP+2}, v{TMP+1}
    s_waitcnt lgkmcnt(0)
    v_cmp_gt_u32 vcc, 4, v{TMP+2}
    s_cbranch_vccnz att_qsync
    """)
    for i in range(1, 4):
        a(f"ds_read_b128 {vr(Q+8*i, 4)}, v{TMP+2+i}\nds_read_b128 {vr(Q+8*i+4, 4)}, v{TMP+2+i} offset:1024")
    a("s_waitcnt vmcnt(2) lgkmcnt(0)")
    a(f"s_mov_b32 s{sIT}, 0")
    stamp(a, "x_loop")
    vMW, vMR, vMC, vM1 = TMP + 8, TMP + 11, TMP + 12, TMP + 13

    def phase(ph, cur, prev, nxt, s_pv2=[], s_qk1=[], s_qk2=[], s_pv1=[], tail=[]):
        sc, sn = S[ph % 2], S[1 - ph % 2]
        e = [f"v_exp_f32 v{sc+i}, v{sc+i}" for i in range(16)]
        c = [f"v_cvt_pk_bf16_f32 v{P+i}, v{sc+2*i}, v{sc+2*i+1}" for i in range(8)]
        pv2 = f"{MFMA} {vr(O+16*prev[1], 16)}, {vr(KV+16*prev[0]+12, 4)}, {vr(P+4, 4)}, {vr(O+16*prev[1], 16)}"
        pv1 = f"{MFMA} {vr(O+16*cur[1], 16)}, {vr(KV+16*cur[0]+8, 4)}, {vr(P, 4)}, {vr(O+16*cur[1], 16)}"
        qk1, qk2 = [], []
        if nxt:
            qk1 = [f"{MFMA} {vr(sn, 16)}, {vr(KV+16*nxt[0], 4)}, {vr(Q+8*nxt[1], 4)}, 0"]
            qk2 = [f"{MFMA} {vr(sn, 16)}, {vr(KV+16*nxt[0]+4, 4)}, {vr(Q+8*nxt[1]+4, 4)}, {vr(sn, 16)}"]
        seq = e[0:2] + [pv2] + s_pv2 + e[2:5] + qk1 + s_qk1 + e[5:9] + c[0:4] + qk2 + s_qk2 + e[9:12] + [pv1] + s_pv1 + e[12:16] + tail + c[4:8]
        for x in seq:
            a(x)

    a.label("att_loop")
    for tb in range(4):
        for q in range(4):
            adv = kv_adv()
            s_pv2, s_qk1, s_qk2, s_pv1, tail = [], [], [], [], []
            s_qk1 += kv_load((tb + 3) % 4, q, (avV0, avV1))
            if q == 0:
                s_pv2.append(adv[3])
                s_qk2.append("s_waitcnt vmcnt(9)")
                s_pv1.append(adv[4])
            if q == 1:
                if tb == 0:
                    s_pv2.append(f"s_cmp_eq_u32 s{sIT}, 3")
                    s_qk2.append(f"s_cselect_b32 s{sKB}, {OOB}, s{sKB}")
                    s_pv1.append(f"s_cselect_b32 s{sVB}, {OOB}, s{sVB}")
                if tb == 3:
                    s_pv1.append(f"s_add_u32 s{sIT}, s{sIT}, 1")
            if q == 2:
                s_pv2.append(f"s_mul_i32 s{sT0}, s{sTI}, {TQ}")
                s_qk2.append(f"s_add_u32 s{sKS}, s{sT0}, s{sKB}")
                s_pv1.append("s_waitcnt vmcnt(9)")
                if tb == 2:
                    s_pv1.append(f"s_cmp_eq_u32 s{sIT}, 3")
                tail = k_fix((tb + 1) % 4)
            if q == 3:
                s_qk2.append(f"s_add_u32 s{sVS}, s{sT0}, s{sVB}")
            phase(4 * tb + q, (tb, q), (tb if q > 0 else (tb - 1) % 4, (q - 1) % 4), (tb if q < 3 else (tb + 1) % 4, (q + 1) % 4),
                  s_pv2, s_qk1, s_qk2, s_pv1, tail)
            if tb == 2 and q == 2:
                a("s_cbranch_scc1 att_peel")
    a("s_branch att_loop")
    a.label("att_peel")

    def mw(i, lo, hi):
        return [f"ds_write_b128 v{vMW+i-1}, {vr(O+16*i+4*k, 4)} offset:{1024*k}" for k in range(lo, hi)]
    sa = L(f"""
    s_lshl_b32 s{sT2}, s{sQB}, 2
    s_add_u32 s{sT2}, s{sT2}, s{sKQ}
    s_lshl_b32 s{sT2}, s{sT2}, 4
    s_add_u32 s{sT2}, s{sT2}, s{sHEAD}
    s_lshl_b32 s{sKB}, s{sT2}, 11
    s_add_u32 s{sKB}, s{sKB}, {OF}
    s_lshr_b32 s{sVB}, s{sT2}, 2
    s_lshl_b32 s{sVB}, s{sVB}, 7
    s_and_b32 s{sT2}, s{sT2}, 3
    s_lshl_b32 s{sT2}, s{sT2}, 2
    s_add_u32 s{sVB}, s{sVB}, s{sT2}
    s_add_u32 s{sVB}, s{sVB}, {FO}
    s_mov_b32 s{sT0}, {f32bits(2.0**-10):#x}
    s_mov_b32 s{sT1}, {f32bits(2.0**100):#x}
    """)
    mk = [f"ds_write_b32 v{vMC}, v{vM1} offset:40"]
    phase(11, (2, 3), (2, 2), (3, 1), sa[0:1] + (mk if PMARK == "peel" else []), sa[1:2], sa[2:3], sa[3:4])
    phase(12, (3, 1), (2, 3), (3, 2), sa[4:5], sa[5:6], ["s_waitcnt vmcnt(0)"], sa[6:7])
    phase(13, (3, 2), (3, 1), (3, 3), sa[7:8], sa[8:9], mw(1, 0, 2), mw(1, 2, 4))
    phase(14, (3, 3), (3, 2), (3, 0), sa[9:10] + (mk if PMARK == "end" else []), sa[10:11], mw(2, 0, 2), mw(2, 2, 4))
    phase(15, (3, 0), (3, 3), None, sa[11:14], [], ["s_nop 0"] + mw(3, 0, 4), [],
          ["s_waitcnt lgkmcnt(0)", "s_mov_b64 exec, 1", f"ds_add_u32 v{vMC}, v{vM1}", "s_mov_b64 exec, -1"])
    a(f"""
    v_cmp_lt_u32 s[18:19], 31, v{vLane}
    s_nop 0
    {MFMA} {vr(O, 16)}, {vr(KV+16*3+12, 4)}, {vr(P+4, 4)}, {vr(O, 16)}
    """)
    stamp(a, "x_lend")
    a.label("att_msync")
    a(f"""
    ds_read_b32 v{vT2}, v{vMC}
    s_waitcnt lgkmcnt(0)
    v_cmp_gt_u32 vcc, 4, v{vT2}
    s_cbranch_vccnz att_msync
    """)
    stamp(a, "x_msync")
    for i in range(12):
        a(f"ds_read_b128 {vr(O+16+4*i, 4)}, v{vMR} offset:{1024*i}")
    a("s_mov_b64 vcc, s[18:19]")
    for k in range(3):
        a(f"s_waitcnt lgkmcnt({8 - 4*k})")
        for i in range(16):
            a(f"v_add_f32 v{O+i}, v{O+i}, v{O+16+16*k+i}")
    C = O + 16
    a(f"""
    v_mov_b32 v{vT0}, v{O+12}
    v_mov_b32 v{vT1}, v{O+12}
    """)
    for k in range(4):
        a(f"v_mul_f32 v{C+k}, 0, v{O+4*k}")
    a(f"v_permlane32_swap_b32 v{vT0}, v{vT1}")
    for i in range(1, 4):
        for k in range(4):
            a(f"v_fma_f32 v{C+k}, v{O+4*k+i}, 0, v{C+k}")
    a(f"""
    v_rcp_f32 v{vT2}, v{vT1}
    v_add_f32 v{C}, v{C}, v{C+1}
    v_add_f32 v{C+2}, v{C+2}, v{C+3}
    v_add_f32 v{C}, v{C}, v{vT1}
    v_add_f32 v{C}, v{C}, v{C+2}
    v_cmp_le_f32 s[28:29], s{sT0}, v{C}
    v_cmp_ge_f32 s[16:17], s{sT1}, v{C}
    s_and_b64 s[28:29], s[28:29], s[16:17]
    s_cmp_eq_u64 s[28:29], -1
    s_cbranch_scc0 att_fallback
    """)
    a.label("att_final")
    a(f"""
    v_mov_b32 v{vT0}, 0
    """)
    for hh in range(2):
        for i in range(8):
            a(f"v_mul_f32 v{O+8*hh+i}, v{O+8*hh+i}, v{vT2}")
        for i in range(4):
            a(f"v_cvt_pk_bf16_f32 v{TMP+4*hh+i}, v{O+8*hh+2*i}, v{O+8*hh+2*i+1}")
        if hh == 1:
            a(f"v_cndmask_b32 v{TMP+6}, v{TMP+6}, v{vT0}, vcc\nv_cndmask_b32 v{TMP+7}, v{TMP+7}, v{vT0}, vcc")
        a(f"buffer_store_dwordx4 {vr(TMP+4*hh, 4)}, v{vL16}, {sr4(S_WS)}, s{sKB} offen offset:{1024*hh}{SC}")
    stamp(a, "x_ost")
    a("s_waitcnt vmcnt(0)")
    a(flag1(a, sVB))
    stamp(a, "x_b2")
    amp_end(a, 'a')
    stamp_flush(a)
    a("s_endpgm")

    a.label("att_fallback")
    sc = S[0]
    K, V = KV, KV + 8
    vMo, vMn, vAl = TMP, TMP + 1, TMP + 2
    a(f"""
    v_mov_b32 v{vT0}, 0
    v_mov_b32 v{vMo}, 0xff800000
    v_cndmask_b32 v{Q}, v{Q}, v{vT0}, s[{sMO}:{sMO+1}]
    v_cndmask_b32 v{Q+6}, v{Q+6}, v{vT0}, s[{sME}:{sME+1}]
    s_mov_b32 s{sIT}, 0
    s_lshl_b32 s{sKS}, s{sP0}, 9
    s_add_u32 s{sKS}, s{sKS}, {KF}
    s_mul_i32 s{sVS}, s{sHEAD}, 448
    s_add_u32 s{sVS}, s{sVS}, {VF}
    s_waitcnt vmcnt(0)
    """)
    for i in range(16):
        a(f"v_mov_b32 v{O+i}, 0")
    a.label("att_fb_loop")
    a(f"""
    buffer_load_dwordx4 {vr(K, 4)}, v{vL16}, {sr4(S_WS)}, s{sKS} offen{SC}
    buffer_load_dwordx4 {vr(K+4, 4)}, v{vL16}, {sr4(S_WS)}, s{sKS} offen offset:1024{SC}
    s_mov_b64 exec, s[{sVM}:{sVM+1}]
    buffer_load_dwordx4 {vr(V, 4)}, v{avV0}, {sr4(S_WS)}, s{sVS} offen{SC}
    buffer_load_dwordx4 {vr(V+4, 4)}, v{avV1}, {sr4(S_WS)}, s{sVS} offen{SC}
    s_mov_b64 exec, -1
    s_waitcnt vmcnt(0)
    {MFMA} {vr(sc, 16)}, {vr(K, 4)}, {vr(Q, 4)}, 0
    {MFMA} {vr(sc, 16)}, {vr(K+4, 4)}, {vr(Q+4, 4)}, {vr(sc, 16)}
    s_nop 15
    v_max3_f32 v{vMn}, v{vMo}, v{sc}, v{sc+1}
    """)
    for i in range(2, 16, 2):
        a(f"v_max3_f32 v{vMn}, v{vMn}, v{sc+i}, v{sc+i+1}")
    a(f"""
    v_mov_b32 v{vT0}, v{vMn}
    s_nop 1
    v_permlane32_swap_b32 v{vMn}, v{vT0}
    v_max_f32 v{vMn}, v{vMn}, v{vT0}
    v_sub_f32 v{vAl}, v{vMo}, v{vMn}
    v_exp_f32 v{vAl}, v{vAl}
    v_mov_b32 v{vMo}, v{vMn}
    """)
    for i in range(16):
        a(f"v_sub_f32 v{sc+i}, v{sc+i}, v{vMn}")
    for i in range(16):
        a(f"v_exp_f32 v{sc+i}, v{sc+i}")
    for i in range(16):
        a(f"v_mul_f32 v{O+i}, v{O+i}, v{vAl}")
    for i in range(8):
        a(f"v_cvt_pk_bf16_f32 v{P+i}, v{sc+2*i}, v{sc+2*i+1}")
    a(f"""
    s_nop 1
    {MFMA} {vr(O, 16)}, {vr(V, 4)}, {vr(P, 4)}, {vr(O, 16)}
    {MFMA} {vr(O, 16)}, {vr(V+4, 4)}, {vr(P+4, 4)}, {vr(O, 16)}
    s_add_u32 s{sKS}, s{sKS}, {TQ}
    s_add_u32 s{sVS}, s{sVS}, {TQ}
    s_add_u32 s{sIT}, s{sIT}, 1
    s_cmp_lt_u32 s{sIT}, 64
    s_cbranch_scc1 att_fb_loop
    s_nop 15
    v_mov_b32 v{vT0}, v{O+12}
    v_mov_b32 v{vT1}, v{O+12}
    s_nop 1
    v_permlane32_swap_b32 v{vT0}, v{vT1}
    v_rcp_f32 v{vT2}, v{vT1}
    s_nop 0
    s_branch att_final
    """)


def build():
    ref = open(f"cdna_kernels/{NAME}.s.ref").read().split("\n")
    hdr = [l for l in ref if l.startswith(";") and "@launch" not in l and "Override launch" not in l and "grid=ceil" not in l]
    body = gen()
    out = "\n".join(hdr) + "\n"
    out += f"; @launch grid=(256,1,1) block=(512,1,1) lds={LDS_BYTES}\n"
    out += '.amdgcn_target "amdgcn-amd-amdhsa--gfx950"\n.text\n'
    out += f".globl {KNAME}\n.p2align 8\n.type {KNAME},@function\n{KNAME}:\n"
    out += body
    out += f""".section .rodata,"a"
.p2align 6
.amdhsa_kernel {KNAME}
  .amdhsa_next_free_vgpr 256
  .amdhsa_next_free_sgpr 102
  .amdhsa_accum_offset 256
  .amdhsa_group_segment_fixed_size 0
  .amdhsa_kernarg_size 88
  .amdhsa_user_sgpr_count 2
  .amdhsa_user_sgpr_kernarg_segment_ptr 1
  .amdhsa_system_sgpr_workgroup_id_x 1
.end_amdhsa_kernel
"""
    return out


if __name__ == "__main__":
    path = sys.argv[1]
    open(path, "w").write(build())
    print("wrote", path)
```

```python
import math, struct, sys, os

NAME = "gated_mix__softmax_full_mha__swiglu_ffn__prompt"
KNAME = NAME + "_kernel"
INSTR = int(os.environ.get("INSTR", "0"))
OPT = os.environ.get("OPT", "nox")

QF = 0
KF = 2 << 20
VF = 4 << 20
TQ = 28672
HF = 6 << 20
OF = 14 << 20
GF = 16 << 20
FQ = (16 << 20) + 0x10000
FH = (16 << 20) + 0x20000
FHB = (16 << 20) + 0x28000
QX = 73728
MBOX = 32768 - QX
FO = (16 << 20) + 0x40000
TSF = 24 << 20
WS_BYTES = 32 << 20
OOB = 0x40000000
SLEEP_Q = int(os.environ.get('SLQ', '2'))
SLEEP_H = int(os.environ.get('SLH', '8'))
SLEEP_O = int(os.environ.get('SLO', '2'))
LOG2E = math.log2(math.e)
MFMA = "v_mfma_f32_32x32x16_bf16"
SC = " sc1"
SLOT = 40960
LDS_BYTES = 4 * SLOT
MERGE = 49152
CNT = 155648
SPIN_MAX = 1 << int(os.environ.get('SPINLOG', '20'))


def ring_addr(s):
    if s <= 6:
        return 98304 + s * 8192
    if s == 7:
        return 32768
    if s <= 11:
        return (s - 8) * 8192
    return 40960


def wslot(i):
    return i % 13 if i < 28 else [2, 3, 4, 5, 8, 9, 10, 11][i - 28]


def f32bits(x):
    return struct.unpack("<I", struct.pack("<f", x))[0]


class Asm:
    def __init__(self):
        self.lines = []

    def __call__(self, s):
        for ln in s.strip("\n").split("\n"):
            ln = ln.strip()
            if not ln:
                continue
            self.lines.append(ln if ln.endswith(":") else "    " + ln)

    def label(self, l):
        self.lines.append(l + ":")

    def text(self):
        return "\n".join(self.lines) + "\n"


def vr(base, n):
    return f"v[{base}:{base + n - 1}]"


def sr4(b):
    return f"s[{b}:{b+3}]"


def srd(a, sd, sb, nbytes):
    a(f"""
    s_mov_b32 s{sd}, s{sb}
    s_mov_b32 s{sd+1}, s{sb+1}
    s_mov_b32 s{sd+2}, {nbytes}
    s_mov_b32 s{sd+3}, 0x00020000
    """)


def L(s):
    return [l.strip() for l in s.strip("\n").split("\n") if l.strip()]


HA_ST = int(os.environ.get('HA_ST', '13'))
EARLY_P = int(os.environ.get('EARLY_P', '27'))
QKB = int(os.environ.get('QKB', '11'))
FPER = int(os.environ.get('FPER', '4'))
PF2_ST = int(os.environ.get('PF2_ST', '0'))
PF3_ST = int(os.environ.get('PF3_ST', '2'))
GDA = int(os.environ.get('GDA', '10'))
AROT = int(os.environ.get('AROT', '15'))
WP_ST = int(os.environ.get('WP_ST', '5'))
FA_AT = int(os.environ.get('FA_AT', '52'))
PFPOS = int(os.environ.get('PFPOS', '1'))
PF_EARLY = int(os.environ.get('PF_EARLY', '2'))
PFROW = int(os.environ.get('PFROW', '192'))
NQ = (448 - PFROW) * 2688 // 1024
NG = (448 - PFROW) * 3584 // 2048
assert NQ + 2 * NG <= 2048
TLB_STR = int(os.environ.get('TLB_STR', str(1 << 20)))
TLB_WG = int(os.environ.get('TLB_WG', '0'))
CPW = int(os.environ.get('CPW', '28'))
GPRE = int(os.environ.get('GPRE', '4'))
GB_AT = int(os.environ.get('GB_AT', '7'))

S_X, S_B0, S_G, S_U, S_WS, S_TMP, S_WD, S_DBG = 4, 8, 12, 16, 20, 24, 28, 32
S_WO, S_OUT = 8, 12
sMI, sJ, sW, sR, sGRP = 36, 37, 38, 39, 40
sKQ = 39
sT0, sT1, sT2 = 42, 43, 44
sMX, sMB, sSO = 45, 46, 47
sSC, sTILE, sHOFF, sHOFF2, sQKO = 48, 49, 50, 51, 52
sWB, sM0, sFHO, sFQB, sP0, sOK = 53, 54, 55, 56, 57, 58
sNONCE, sNL2E, sC8, sI32, sSPIN = 59, 60, 61, 62, 63
P_X, P_WQKV, P_WO, P_WG, P_WU, P_WD, P_GW, P_OUT, P_DBG, P_WS = 64, 66, 68, 72, 74, 76, 78, 80, 82, 84
ST0 = 86
sHEAD, sQB, sMT, sNT = 70, 71, 41, 3
sFHA = 65
vLane, vL16 = 1, 2
vT0, vT1, vT2, vT3 = 3, 4, 5, 6
STAMPS = os.environ.get("STAMPS", "").split(",")[:6]


AMP = os.environ.get("AMP", "")


def stamp(a, name):
    if AMP and name == "start": a("s_memrealtime s[86:87]")
    if AMP and name == AMP: a("s_memrealtime s[88:89]")
    if INSTR and (name == "start" or name in STAMPS):
        idx = 0 if name == "start" else 1 + STAMPS.index(name)
        a(f"s_memtime s[{ST0+2*idx}:{ST0+2*idx+1}]")
    if INSTR and "R" + name in STAMPS:
        idx = 1 + STAMPS.index("R" + name)
        a(f"s_memrealtime s[{ST0+2*idx}:{ST0+2*idx+1}]")


def amp_end(a, tag):
    if not AMP: return
    stamp(a, "end")
    a(f"""
    s_cmp_lg_u32 s2, {os.environ.get("AMPG", "40")}
    s_cbranch_scc1 k_end
    s_cmp_lg_u32 s{sW}, {os.environ.get("AMPW", "4")}
    s_cbranch_scc1 k_end
    s_memrealtime s[90:91]
    s_waitcnt lgkmcnt(0)
    s_sub_u32 s88, s88, s86
    s_mul_i32 s88, s88, {os.environ.get('AMPK', '1')}
    """)
    a.label(f"amp_spin{tag}")
    a(f"""
    s_memrealtime s[92:93]
    s_waitcnt lgkmcnt(0)
    s_sub_u32 s92, s92, s90
    s_cmp_lt_u32 s92, s88
    s_cbranch_scc1 amp_spin{tag}
    """)


def stamp_flush(a, vtmp=3):
    if not INSTR:
        return
    a(f"""
    s_memtime s[4:5]
    s_memrealtime s[6:7]
    s_lshl_b32 s3, s2, 3
    s_add_u32 s3, s3, s{sW}
    s_lshl_b32 s3, s3, 7
    s_add_u32 s3, s3, {TSF}
    v_mov_b32 v{vtmp+1}, 0
    s_waitcnt lgkmcnt(0)
    """)
    regs = [ST0 + 2 * i for i in range(8)] + [4, 6]
    for i, r in enumerate(regs):
        a(f"""
        v_mov_b32 v{vtmp}, s{r}
        buffer_store_dword v{vtmp}, v{vtmp+1}, {sr4(S_WS)}, s3 offen offset:{4*i}
        s_nop 1
        """)


def flag_store(a, soff_reg, vtmp):
    a(f"""
    v_mov_b32 v{vtmp}, s{sNONCE}
    v_mov_b32 v{vtmp+1}, 0
    s_mov_b64 exec, 1
    buffer_store_dword v{vtmp}, v{vtmp+1}, {sr4(S_WS)}, s{soff_reg} offen{SC}
    s_mov_b64 exec, -1
    """)


_uid = [0]


def poll(a, addrs, soff, vtmp, sleep):
    _uid[0] += 1
    u = _uid[0]
    a(f"s_mov_b32 s{sSPIN}, {SPIN_MAX}")
    a.label(f"poll_ld{u}")
    for i, va in enumerate(addrs):
        a(f"buffer_load_dword v{vtmp+i}, v{va}, {sr4(S_WS)}, s{soff} offen{SC}")
    a("s_waitcnt vmcnt(0)")
    poll_cmp(a, len(addrs), vtmp)
    a(f"""
    s_sub_u32 s{sSPIN}, s{sSPIN}, 1
    s_cbranch_scc1 poll_done{u}
    s_cmp_eq_u64 vcc, 0
    s_cbranch_scc1 poll_done{u}
    s_sleep {sleep}
    s_branch poll_ld{u}
    """)
    a.label(f"poll_done{u}")


def poll_cmp(a, n, vtmp):
    if n == 1:
        a(f"v_cmp_ne_u32 vcc, s{sNONCE}, v{vtmp}")
    else:
        a(f"""
        v_xor_b32 v{vtmp}, s{sNONCE}, v{vtmp}
        v_xor_b32 v{vtmp+1}, s{sNONCE}, v{vtmp+1}
        v_or_b32 v{vtmp}, v{vtmp}, v{vtmp+1}
        v_cmp_ne_u32 vcc, 0, v{vtmp}
        """)


def lds_set(a, off, val, vtmp):
    a(f"""
    v_mov_b32 v{vtmp}, {CNT + off}
    v_mov_b32 v{vtmp+1}, {val}
    ds_write_b32 v{vtmp}, v{vtmp+1}
    """)


def lds_wait(a, off, vtmp, cond, sleep=1):
    _uid[0] += 1
    u = _uid[0]
    a(f"v_mov_b32 v{vtmp}, {CNT + off}")
    a.label(f"lw{u}")
    a(f"""
    ds_read_b32 v{vtmp+1}, v{vtmp}
    s_waitcnt lgkmcnt(0)
    v_readfirstlane_b32 s{sT0}, v{vtmp+1}
    """)
    a(f"s_cmp_lg_u32 s{sT0}, 0" if cond == "ne0" else f"s_cmp_eq_u32 s{sT0}, {cond[2:]}")
    a(f"""
    s_cbranch_scc1 lwd{u}
    s_sleep {sleep}
    s_branch lw{u}
    """)
    a.label(f"lwd{u}")


class VM:
    def __init__(self):
        self.q = []

    def add(self, tag):
        self.q.append(tag)

    def wait(self, tags, counts=None):
        idx = max([i for i, t in enumerate(self.q) if t in tags], default=-1)
        for t in tags:
            assert t in self.q, (t, self.q)
            if counts:
                assert self.q.count(t) == counts(t), (t, self.q)
        n = len(self.q) - 1 - idx
        assert n <= 63
        return n

    def copy(self):
        v = VM(); v.q = list(self.q); return v


vFLA, vPOL, vFQO, vF1, vNON = 7, 9, 11, 12, 13
vDW = 31


def flag1(a, soff):
    return f"buffer_store_dword v{vNON}, v{vF1}, {sr4(S_WS)}, s{soff} offen{SC}"


AQ, AO, AS, AKV, AP, ATMP = 16, 48, [112, 128], 144, 208, 224
avG, avM, avONE = 14, 15, 216
sME, sMO = 24, 26
sKB, sVB, sTI, sKS, sVS, sIT = 45, 46, 47, 48, 52, 49


avV0, avV1 = 14, 11
HBR = 240


def hb_stores():
    return [f"buffer_store_dwordx4 {vr(HBR+4*i, 4)}, v{vL16}, {sr4(S_WS)}, s{sHOFF2} offen offset:{1024*i}{SC}" for i in range(2)]

sVM = 30


def kv_adv():
    return [f"s_mul_i32 s{sVS}, s{sTI}, {TQ}", f"s_add_u32 s{sKS}, s{sVS}, s{sKB}",
            f"s_add_u32 s{sVS}, s{sVS}, s{sVB}",
            f"s_add_u32 s{sTI}, s{sTI}, 1", f"s_and_b32 s{sTI}, s{sTI}, 15"]


def kv_load(buf, part, vv=(None, None)):
    if part < 2:
        return [f"buffer_load_dwordx4 {vr(AKV+16*buf+4*part, 4)}, v{vL16}, {sr4(S_WS)}, s{sKS} offen offset:{1024*part}{SC}"]
    return [f"s_mov_b64 exec, s[{sVM}:{sVM+1}]",
            f"buffer_load_dwordx4 {vr(AKV+16*buf+4*part, 4)}, v{vv[part-2]}, {sr4(S_WS)}, s{sVS} offen{SC}",
            "s_mov_b64 exec, -1"]


def att_loads():
    vm = VM()
    o1 = L(f"""
    s_mov_b32 s{sOK}, s{sT0}
    s_lshl_b32 s{sT1}, s{sP0}, 9
    s_lshl_b32 s{sT2}, s{sQB}, 2
    s_add_u32 s{sT2}, s{sT2}, s{sKQ}
    s_mul_i32 s{sT0}, s{sT2}, {TQ}
    s_add_u32 s{sT0}, s{sT0}, s{sT1}
    buffer_load_dwordx4 {vr(AQ, 4)}, v{vL16}, {sr4(S_WS)}, s{sT0} offen{SC}
    buffer_load_dwordx4 {vr(AQ+4, 4)}, v{vL16}, {sr4(S_WS)}, s{sT0} offen offset:1024{SC}
    s_mul_i32 s{sVB}, s{sKQ}, {16 * TQ}
    s_add_u32 s{sKB}, s{sVB}, s{sT1}
    s_add_u32 s{sKB}, s{sKB}, {KF}
    s_mul_i32 s{sT0}, s{sHEAD}, 448
    s_add_u32 s{sVB}, s{sVB}, s{sT0}
    s_add_u32 s{sVB}, s{sVB}, {VF}
    s_and_b32 s{sTI}, s{sQB}, {AROT}
    s_mov_b32 s{sVM}, 0x0fffffff
    s_mov_b32 s{sVM+1}, 0x0fffffff
    v_lshrrev_b32 v{avV0}, 5, v{vLane}
    v_mul_u32_u24 v{avV0}, {7168 - 512}, v{avV0}
    v_add_u32 v{avV0}, v{avV0}, v{vL16}
    v_add_u32 v{avV1}, 14336, v{avV0}
    """)
    vm.add(("q",)); vm.add(("q",))
    o2, o3 = [], []
    for t in range(3):
        o = o1 if t == 0 else o2
        o += [f"s_add_u32 s{sT0}, s{sTI}, {t}", f"s_and_b32 s{sT0}, s{sT0}, 15", f"s_mul_i32 s{sKS}, s{sT0}, {TQ}", f"s_add_u32 s{sKS}, s{sKS}, s{sKB}"]
        for p in range(2):
            o.append(kv_load(t, p))
            vm.add(("kv", t, p))
        o2 += [f"v_mov_b32 v{AKV+16*t+8+i}, 0x3f803f80" for i in range(8)]
    o3.append(f"s_mov_b64 exec, s[{sVM}:{sVM+1}]")
    for t in range(3):
        o3 += [f"s_mul_i32 s{sVS}, s{sTI}, {TQ}", f"s_add_u32 s{sVS}, s{sVS}, s{sVB}", f"s_add_u32 s{sTI}, s{sTI}, 1", f"s_and_b32 s{sTI}, s{sTI}, 15"]
        for p in range(2, 4):
            o3.append(kv_load(t, p, (avV0, avV1))[1])
    o3.append("s_mov_b64 exec, -1")
    flat = lambda o: [y for x in o for y in (x if isinstance(x, list) else [x])]
    return o1, o2, vm, flat, o3


def fq_eval(a):
    a(f"""
    v_cmp_ne_u32 vcc, s{sNONCE}, v{vPOL}
    v_cmp_ne_u32 s[16:17], s{sNONCE}, v{vPOL+1}
    s_nop 0
    s_or_b32 s{sT0}, vcc_lo, s16
    s_cselect_b32 s{sT0}, 4, 5
    s_cmp_eq_u32 vcc_hi, 0
    s_cselect_b32 s{sT1}, 2, 0
    s_or_b32 s{sT0}, s{sT0}, s{sT1}
    """)


def fq_issue(a):
    a(f"""
    buffer_load_dword v{vPOL}, v{vFLA}, {sr4(S_WS)}, s{sFQB} offen{SC}
    buffer_load_dword v{vPOL+1}, v{vFLA+1}, {sr4(S_WS)}, s{sFQB} offen{SC}
    """)


def fq_wait(a, tag, bit, first_issued=False):
    a(f"s_cmp_lg_u32 s{sW}, 0\ns_cbranch_scc1 {tag}_lw\ns_mov_b32 s{sSPIN}, {SPIN_MAX}")
    if first_issued:
        a(f"s_branch {tag}_chk")
    a.label(f"{tag}_ld")
    fq_issue(a)
    a.label(f"{tag}_chk")
    a("s_waitcnt vmcnt(0)")
    fq_eval(a)
    a(f"""
    s_sub_u32 s{sSPIN}, s{sSPIN}, 1
    s_cselect_b32 s{sT0}, 7, s{sT0}
    s_bitcmp1_b32 s{sT0}, {bit}
    s_cbranch_scc1 {tag}_ok
    s_sleep {SLEEP_Q}
    s_branch {tag}_ld
    """)
    a.label(f"{tag}_ok")
    lds_set(a, 4, f"s{sT0}", vT0)
    a(f"s_branch {tag}_go")
    a.label(f"{tag}_lw")
    a(f"v_mov_b32 v{vT0}, {CNT + 4}")
    a.label(f"{tag}_lw2")
    a(f"""
    ds_read_b32 v{vT1}, v{vT0}
    s_waitcnt lgkmcnt(0)
    v_readfirstlane_b32 s{sT0}, v{vT1}
    s_bitcmp1_b32 s{sT0}, {bit}
    s_cbranch_scc1 {tag}_go
    s_sleep 1
    s_branch {tag}_lw2
    """)
    a.label(f"{tag}_go")


def wk_off(i):
    return 8 * (i % 14) + 4 * (i // 14)


def gen():
    a = Asm()
    vDX0, vDX1, vDB0, vDG, vDU = 7, 8, 9, 10, 11
    vAX = 14
    vAW = 18
    vST = 22
    vN, vR4, vC, vRow = 26, 27, 28, 29
    X, ACC, WF = 32, 144, 224
    PFR, vPFL, sPFI = ACC + 60, 30, 58

    stamp(a, "start")
    if INSTR: a("s_memrealtime s[100:101]")
    if "dbgt" in OPT: a("s_memtime s[86:87]\ns_memrealtime s[88:89]")
    a(f"""
    s_cmp_ge_u32 s2, 256
    s_cbranch_scc1 k_end
    """)
    if os.environ.get("DELAY"):
        a(f"""
        s_cmp_lg_u32 s2, {os.environ["DELAY"]}
        s_cbranch_scc1 k_nodelay
        s_mov_b32 s3, 12
        """)
        a.label("k_delay")
        a("s_sleep 100\ns_sub_u32 s3, s3, 1\ns_cmp_lg_u32 s3, 0\ns_cbranch_scc1 k_delay")
        a.label("k_nodelay")
    a(f"""
    s_load_dwordx16 s[64:79], s[0:1], 0
    s_load_dwordx4 s[80:83], s[0:1], 64
    s_load_dwordx2 s[84:85], s[0:1], 80
    v_and_b32 v{vLane}, 63, v0
    v_lshrrev_b32 v{vT0}, 6, v0
    s_and_b32 s{sC8}, s2, 7
    s_lshr_b32 s{sI32}, s2, 3
    v_readfirstlane_b32 s{sW}, v{vT0}
    s_lshr_b32 s{sT1}, s{sC8}, 1
    s_mul_i32 s{sT0}, s{sT1}, 28
    s_sub_u32 s{sT0}, s{sT0}, 4
    s_lshl_b32 s{sT1}, s{sT1}, 2
    s_add_u32 s{sT1}, s{sT1}, 112
    s_cmp_lt_u32 s{sI32}, 4
    s_cselect_b32 s{sT0}, s{sT1}, s{sT0}
    s_add_u32 s{sT0}, s{sT0}, s{sI32}
    s_lshr_b32 s{sJ}, s{sT0}, 3
    s_and_b32 s{sT0}, s{sT0}, 7
    s_and_b32 s{sMI}, s{sC8}, 1
    s_lshl_b32 s{sMI}, s{sMI}, 3
    s_add_u32 s{sMI}, s{sMI}, s{sT0}
    v_lshrrev_b32 v{vT0}, 3, v{vLane}
    v_lshrrev_b32 v{vT1}, 4, v{vLane}
    v_and_b32 v{vT2}, 7, v{vLane}
    v_xor_b32 v{vT3}, v{vT2}, v{vT1}
    s_lshl_b32 s{sT0}, s{sMI}, 7
    s_lshl_b32 s{sT1}, s{sW}, 4
    s_add_u32 s{sT0}, s{sT0}, s{sT1}
    v_add_u32 v{vDX0}, s{sT0}, v{vT0}
    v_mul_u32_u24 v{vDX0}, 896, v{vDX0}
    v_lshl_add_u32 v{vDX0}, v{vT3}, 4, v{vDX0}
    v_xor_b32 v{vDX1}, 64, v{vDX0}
    v_add_u32 v{vDX1}, 7168, v{vDX1}
    v_and_b32 v{vT3}, 1, v{vT1}
    v_lshlrev_b32 v{vT3}, 2, v{vT3}
    v_xor_b32 v{vT3}, v{vT3}, v{vT2}
    v_lshlrev_b32 v{vT3}, 4, v{vT3}
    v_mul_u32_u24 v{vDW}, 896, v{vT0}
    v_add_u32 v{vDW}, v{vDW}, v{vT3}
    s_lshl_b32 s{sT0}, s{sW}, 3
    v_add_u32 v{vT0}, s{sT0}, v{vT0}
    v_mul_u32_u24 v{vDB0}, 2688, v{vT0}
    v_add_u32 v{vDB0}, v{vDB0}, v{vT3}
    s_lshl_b32 s{sMX}, s{sW}, 11
    s_lshl_b32 s{sMB}, s{sW}, 10
    s_add_u32 s{sMB}, s{sMB}, 16384
    v_lshlrev_b32 v{vL16}, 4, v{vLane}
    s_mov_b32 s{S_X+2}, {2048 * 448 * 2}
    s_mov_b32 s{S_X+3}, 0x00020000
    s_mov_b32 s{S_B0+2}, {448 * 1344 * 2}
    s_mov_b32 s{S_B0+3}, 0x00020000
    s_mov_b32 s{S_G+3}, 0x00020000
    s_mov_b32 s{S_U+3}, 0x00020000
    s_cmp_ge_u32 s{sJ}, 14
    s_cbranch_scc1 k1_v
    """)

    vm = None

    def emit_group(g):
        for l in g[0]:
            a(l)
        vm.add(g[1])

    def dma(m0base, m0off, vaddr, srdb, soff):
        return [f"s_add_u32 m0, s{m0base}, {m0off & 0xffffffff}", f"s_mov_b32 s{sSO}, {soff}",
                f"buffer_load_dwordx4 v{vaddr}, {sr4(srdb)}, s{sSO} offen lds"]

    def pf1(tg):
        if "nopf" in OPT.split(","):
            return
        a(f"""
        s_lshl_b32 s{sPFI}, s2, 3
        s_add_u32 s{sPFI}, s{sPFI}, s{sW}
        s_lshl_b32 s{sT0}, s{sPFI}, 10
        s_mov_b32 s{S_TMP+3}, 0x00020000
        v_lshrrev_b32 v{vPFL}, 3, v{vLane}
        v_lshlrev_b32 v{vPFL}, 7, v{vPFL}
        v_add_u32 v{vPFL}, v{vPFL}, v{vL16}
        """)
        if "nox" not in OPT:
            a(f"buffer_load_dwordx4 {vr(PFR, 4)}, v{vL16}, {sr4(S_X)}, s{sT0} offen")
            vm.add(("PF",))
        if "now1" in OPT:
            return
        a(f"""
        s_cmp_lt_u32 s{sPFI}, {NQ}
        s_cbranch_scc1 k_pf_q_{tg}
        s_cmp_lt_u32 s{sPFI}, {NQ + NG}
        s_cselect_b32 s{S_TMP}, s{P_WG}, s{P_WU}
        s_cselect_b32 s{S_TMP+1}, s{P_WG+1}, s{P_WU+1}
        s_cselect_b32 s{sT0}, 0, {NG}
        s_mov_b32 s{S_TMP+2}, {448 * 1792 * 2}
        s_sub_u32 s{sT0}, s{sPFI}, s{sT0}
        s_lshl_b32 s{sT0}, s{sT0}, 11
        s_add_u32 s{sT0}, s{sT0}, {(PFROW * 3584 - NQ * 2048) & 0xffffffff}
        buffer_load_dwordx4 {vr(PFR+4, 4)}, v{vPFL}, {sr4(S_TMP)}, s{sT0} offen
        s_branch k_pf_d_{tg}
        """)
        a.label(f"k_pf_q_{tg}")
        a(f"""
        s_add_u32 s{sT0}, s{sT0}, {PFROW * 2688}
        buffer_load_dwordx4 {vr(PFR+4, 4)}, v{vL16}, {sr4(S_B0)}, s{sT0} offen
        """)
        a.label(f"k_pf_d_{tg}")
        vm.add(("PF",))

    def common_setup2(tg):
        srd(a, S_WS, P_WS, WS_BYTES)
        srd(a, S_DBG, P_DBG, 256)
        srd(a, S_WD, P_WD, 1792 * 448 * 2)
        a(f"""
        s_or_b32 s{sT0}, s2, s{sW}
        s_cmp_lg_u32 s{sT0}, 0
        s_cbranch_scc1 k_nononce_{tg}
        s_memrealtime s[{sSC}:{sSC+1}]
        v_mov_b32 v{vT1}, 0
        s_waitcnt lgkmcnt(0)
        s_or_b32 s{sT0}, s{sSC}, 0x80000000
        v_mov_b32 v{vT0}, s{sT0}
        s_mov_b64 exec, 1
        buffer_store_dword v{vT0}, v{vT1}, {sr4(S_DBG)}, 0 offen{SC}
        s_mov_b64 exec, -1
        """)
        a.label(f"k_nononce_{tg}")
        if not PFPOS:
            pf1(tg)
        if PF_EARLY:
            for g in (([] if 'no2' in OPT else [pf2()]) + ([pf3()] if PF_EARLY == 2 else [])):
                emit_group(g)
        if "tlb" in OPT:
            a(f"""
            s_cmp_lg_u32 s{sW}, 1
            s_cbranch_scc1 k_notlb_{tg}
            s_mov_b32 s{sT0}, {TLB_STR}
            v_mul_lo_u32 v{vT0}, v{vLane}, s{sT0}
            s_mul_i32 s{sT1}, s{sI32}, {TLB_WG}
            s_mov_b32 s{S_TMP}, s{P_WS}
            s_mov_b32 s{S_TMP+1}, s{P_WS+1}
            s_mov_b32 s{S_TMP+2}, {(16 << 20) + 0x50000}
            s_mov_b32 s{S_TMP+3}, 0x00020000
            buffer_load_dword v{ACC+76}, v{vT0}, {sr4(S_TMP)}, s{sT1} offen
            s_mov_b32 s{S_TMP}, s{P_OUT}
            s_mov_b32 s{S_TMP+1}, s{P_OUT+1}
            s_mov_b32 s{S_TMP+2}, {2048 * 448 * 2}
            buffer_load_dword v{ACC+77}, v{vT0}, {sr4(S_TMP)}, s{sT1} offen
            """)
            a.label(f"k_notlb_{tg}")
        if "nocp" not in OPT:
            a(f"""
            s_sub_u32 s{sT0}, s{sI32}, {CPW}
            s_cmp_ge_u32 s{sT0}, 4
            s_cbranch_scc1 k_nocp_{tg}
            s_lshl_b32 s{sT0}, s{sT0}, 3
            s_add_u32 s{sT0}, s{sT0}, s{sW}
            s_lshl_b32 s{sT0}, s{sT0}, 10
            v_add_u32 v{vT0}, s{sT0}, v{vL16}
            v_min_u32 v{vT0}, k_end-{KNAME}-12, v{vT0}
            s_getpc_b64 s[{sSC}:{sSC+1}]
            """)
            a.label(f"k_pc_{tg}")
            a(f"""
            s_sub_u32 s{sSC}, s{sSC}, k_pc_{tg}-{KNAME}
            s_subb_u32 s{sSC+1}, s{sSC+1}, 0
            v_mov_b32 v{vT2}, s{sSC+1}
            v_add_co_u32 v{vT1}, vcc, s{sSC}, v{vT0}
            s_nop 1
            v_addc_co_u32 v{vT2}, vcc, 0, v{vT2}, vcc
            global_load_dwordx4 {vr(ACC+76, 4)}, v[{vT1}:{vT2}], off
            """)
            a.label(f"k_nocp_{tg}")
        a(f"""
        s_and_b32 s{sR}, s{sW}, 3
        s_lshr_b32 s{sGRP}, s{sW}, 2
        s_lshl_b32 s{sTILE}, s{sMI}, 2
        s_add_u32 s{sTILE}, s{sTILE}, s{sR}
        v_and_b32 v{vT0}, 31, v{vLane}
        v_lshrrev_b32 v{vT1}, 5, v{vLane}
        v_bfe_u32 v{vT2}, v{vLane}, 1, 3
        v_xor_b32 v{vT2}, v{vT2}, v{vT1}
        s_lshl_b32 s{sT0}, s{sR}, 12
        v_lshlrev_b32 v{vT3}, 7, v{vT0}
        v_lshl_add_u32 v{vT3}, v{vT2}, 4, v{vT3}
        v_add_u32 v{vAX}, s{sT0}, v{vT3}
        v_xor_b32 v{vAX+1}, 32, v{vAX}
        v_xor_b32 v{vAX+2}, 64, v{vAX}
        v_xor_b32 v{vAX+3}, 96, v{vAX}
        v_bfe_u32 v{vN}, v{vLane}, 4, 1
        v_bfe_u32 v{vR4}, v{vLane}, 2, 2
        v_and_b32 v{vC}, 3, v{vLane}
        v_lshl_add_u32 v{vRow}, v{vT1}, 3, v{vR4}
        v_and_b32 v{vT2}, 2, v{vR4}
        v_xor_b32 v{vT2}, v{vT2}, v{vN}
        s_lshl_b32 s{sT0}, s{sGRP}, 1
        v_xor_b32 v{vT2}, s{sT0}, v{vT2}
        v_lshlrev_b32 v{vT3}, 7, v{vRow}
        v_lshl_add_u32 v{vT3}, v{vT2}, 5, v{vT3}
        v_lshl_add_u32 v{vT3}, v{vC}, 3, v{vT3}
        v_add_u32 v{vAW}, 16384, v{vT3}
        s_mov_b32 s{sNL2E}, {f32bits(-LOG2E):#x}
        """)

    def flag_addr(vtype, vfla, vfqo):
        t0, t1, t2, t3 = vN, vR4, vC, vRow
        o = L(f"""
        s_lshl_b32 s{sHEAD}, s{sC8}, 1
        s_and_b32 s{sT2}, s{sI32}, 1
        s_add_u32 s{sHEAD}, s{sHEAD}, s{sT2}
        s_lshr_b32 s{sQB}, s{sI32}, 1
        s_lshl_b32 s{sMT}, s{sC8}, 2
        s_and_b32 s{sT2}, s{sI32}, 3
        s_add_u32 s{sMT}, s{sMT}, s{sT2}
        s_lshr_b32 s{sNT}, s{sI32}, 2
        s_mul_i32 s{sP0}, s{sHEAD}, 7
        s_lshr_b32 s{sP0}, s{sP0}, 1
        s_lshl_b32 s{sFQB}, s{sHEAD}, 12
        s_add_u32 s{sFQB}, s{sFQB}, {FQ}
        s_lshr_b32 s{sT1}, s{sQB}, 2
        s_lshl_b32 s{sT1}, s{sT1}, 7
        s_and_b32 s{sT2}, s{sQB}, 3
        s_lshl_b32 s{sT2}, s{sT2}, 2
        s_add_u32 s{sT1}, s{sT1}, s{sT2}
        s_add_u32 s{sT1}, s{sT1}, 2048
        v_lshrrev_b32 v{t0}, 2, v{vLane}
        v_and_b32 v{t1}, 3, v{vLane}
        v_lshlrev_b32 v{t1}, 2, v{t1}
        v_lshl_add_u32 v{vfla}, v{t0}, 7, v{t1}
        v_and_b32 v{t0}, 1, v{vLane}
        v_lshl_add_u32 v{vfla+1}, v{t0}, 9, s{sT1}
        v_and_b32 v{t0}, 15, v{vLane}
        v_lshrrev_b32 v{t1}, 4, v{vLane}
        v_lshlrev_b32 v{t3}, 12, v{t0}
        v_lshl_add_u32 v{t3}, v{t1}, 9, v{t3}
        s_lshr_b32 s{sT1}, s{sMI}, 2
        s_lshl_b32 s{sT1}, s{sT1}, 7
        s_and_b32 s{sT2}, s{sMI}, 3
        s_lshl_b32 s{sT2}, s{sT2}, 2
        s_add_u32 s{sT1}, s{sT1}, s{sT2}
        """)
        if not vtype:
            o += L(f"""
            s_add_u32 s{sT2}, s{sJ}, 1
            s_lshr_b32 s{sT2}, s{sT2}, 3
            v_mul_u32_u24 v{t2}, 7, v{t0}
            v_lshrrev_b32 v{t2}, 1, v{t2}
            v_mad_u32_u24 v{t2}, v{t1}, 3, v{t2}
            v_lshrrev_b32 v{t2}, 3, v{t2}
            v_lshrrev_b32 v{t1}, 1, v{t1}
            v_lshl_add_u32 v{t2}, v{t1}, 6, v{t2}
            v_mad_u32_u24 v{t2}, s{sT2}, 7, v{t2}
            v_cmp_eq_u32 vcc, s{sJ}, v{t2}
            s_lshl_b32 s{sT2}, s{sT2}, 11
            s_sub_u32 s{sT1}, s{sT1}, s{sT2}
            s_add_u32 s{sT1}, s{sT1}, 2048
            """)
        else:
            o += L(f"""
            v_add_u32 v{t2}, 14, v{t1}
            v_cmp_eq_u32 vcc, s{sJ}, v{t2}
            s_add_u32 s{sT1}, s{sT1}, 1024
            """)
        o += L(f"""
        v_add_u32 v{t3}, s{sT1}, v{t3}
        v_mov_b32 v{t0}, {OOB}
        v_cndmask_b32 v{vfqo}, v{t0}, v{t3}, vcc
        v_cmp_eq_u32 vcc, 0, v{vLane}
        s_lshr_b32 s{sFHO}, s{sTILE}, 1
        s_lshl_b32 s{sFHO}, s{sFHO}, 10
        v_cndmask_b32 v{vF1}, v{t0}, v{vLane}, vcc
        s_lshr_b32 s{sT1}, s{sJ}, 1
        s_lshl_b32 s{sT1}, s{sT1}, 7
        s_add_u32 s{sFHO}, s{sFHO}, s{sT1}
        s_and_b32 s{sT1}, s{sJ}, 1
        s_lshl_b32 s{sT1}, s{sT1}, 3
        s_add_u32 s{sFHO}, s{sFHO}, s{sT1}
        s_and_b32 s{sT1}, s{sR}, 1
        s_lshl_b32 s{sT1}, s{sT1}, 2
        s_add_u32 s{sFHO}, s{sFHO}, s{sT1}
        s_add_u32 s{sFHO}, s{sFHO}, {FHB}
        s_lshl_b32 s{sFHA}, s{sMI}, 9
        s_lshr_b32 s{sT1}, s{sJ}, 2
        s_lshl_b32 s{sT1}, s{sT1}, 7
        s_add_u32 s{sFHA}, s{sFHA}, s{sT1}
        s_and_b32 s{sT1}, s{sJ}, 3
        s_lshl_b32 s{sT1}, s{sT1}, 2
        s_add_u32 s{sFHA}, s{sFHA}, s{sT1}
        s_add_u32 s{sFHA}, s{sFHA}, {FH}
        s_lshl_b32 s{sM0}, s{sNT}, 7
        s_mul_i32 s{sWB}, s{sR}, {16 * 896}
        s_add_u32 s{sWB}, s{sWB}, s{sM0}
        s_lshl_b32 s{sM0}, s{sR}, 11
        """)
        return o

    def nonce_get(tag):
        a(f"""
        v_readfirstlane_b32 s{sNONCE}, v{vNON}
        v_lshlrev_b32 v{vT0}, 2, v{vLane}
        v_add_u32 v{vT0}, {CNT}, v{vT0}
        v_mov_b32 v{vT1}, 0
        s_cmp_lg_u32 s{sNONCE}, 0
        s_cbranch_scc1 k1_nonce_ok_{tag}
        """)
        a.label(f"k1_nonce_spin_{tag}")
        a(f"""
        buffer_load_dword v{vNON}, v{vT1}, {sr4(S_DBG)}, 0 offen{SC}
        s_waitcnt vmcnt(0)
        v_readfirstlane_b32 s{sNONCE}, v{vNON}
        s_sleep 4
        s_cmp_eq_u32 s{sNONCE}, 0
        s_cbranch_scc1 k1_nonce_spin_{tag}
        """)
        a.label(f"k1_nonce_ok_{tag}")
        a(f"ds_write_b32 v{vT0}, v{vT1}")

    def pf2():
        return (L(f"""
        s_cmp_lt_u32 s{sPFI}, 784
        s_cselect_b32 s{S_TMP}, s{P_WG}, s{P_WU}
        s_cselect_b32 s{S_TMP+1}, s{P_WG+1}, s{P_WU+1}
        s_cselect_b32 s{sT0}, 0, 784
        s_mov_b32 s{S_TMP+2}, {448 * 1792 * 2}
        s_sub_u32 s{sT0}, s{sPFI}, s{sT0}
        s_lshl_b32 s{sT0}, s{sT0}, 11
        buffer_load_dwordx4 {vr(PFR+8, 4)}, v{vPFL}, {sr4(S_TMP)}, s{sT0} offen offset:128
        """), ("PF",))

    def pf3():
        return (L(f"""
        s_cmp_lt_u32 s{sPFI}, 1568
        s_cselect_b32 s{S_TMP}, s{P_WD}, s{P_WO}
        s_cselect_b32 s{S_TMP+1}, s{P_WD+1}, s{P_WO+1}
        s_cselect_b32 s{sT0}, 0, 1568
        s_cselect_b32 s{S_TMP+2}, s{S_WD+2}, {448 * 448 * 2}
        s_sub_u32 s{sT0}, s{sPFI}, s{sT0}
        s_lshl_b32 s{sT0}, s{sT0}, 10
        buffer_load_dwordx4 {vr(PFR+12, 4)}, v{vL16}, {sr4(S_TMP)}, s{sT0} offen
        """), ("PF",))

    nonce_ld = ([f"v_mov_b32 v{vNON}, 0", f"buffer_load_dword v{vNON}, v{vNON}, {sr4(S_DBG)}, 0 offen{SC}"], ("N",))

    def wpref(i):
        ra = ring_addr(i % 13)
        return [f"s_add_u32 m0, s{sM0}, {ra}", f"s_add_u32 s{sT0}, s{sWB}, {wk_off(i) * 16 * 896}",
                f"buffer_load_dwordx4 v{vDW}, {sr4(S_WD)}, s{sT0} offen lds",
                f"s_add_u32 m0, s{sM0}, {ra + 1024}", f"s_add_u32 s{sT0}, s{sT0}, {8 * 896}",
                f"buffer_load_dwordx4 v{vDW}, {sr4(S_WD)}, s{sT0} offen lds"]

    abase = [0]

    def set_base(nb, regs):
        out = []
        if nb != abase[0]:
            d = nb - abase[0]
            for r in regs:
                out.append(f"v_add_u32 v{r}, {d}, v{r}" if d > 0 else f"v_subrev_u32 v{r}, {-d}, v{r}")
            abase[0] = nb
        return out

    def emit(x):
        if isinstance(x, tuple):
            a(x[1]); vm.add((x[0],))
        else:
            a(x)

    vm = VM()
    cnts = lambda t: {"A": 5, "B": 2}[t[0]] if t[0] in ("A", "B") else vm.q.count(t)
    a(f"""
    s_lshl_b32 s{sT0}, s{sJ}, 7
    v_add_u32 v{vDB0}, s{sT0}, v{vDB0}
    v_mul_u32_u24 v{vDG}, 3584, v{vT0}
    s_lshl_b32 s{sT0}, s{sJ}, 8
    v_add3_u32 v{vDG}, v{vDG}, v{vT3}, s{sT0}
    v_xor_b32 v{vDU}, 32, v{vDG}
    s_mov_b32 s{S_G+2}, {448 * 1792 * 2}
    s_mov_b32 s{S_U+2}, {448 * 1792 * 2}
    s_waitcnt lgkmcnt(0)
    s_mov_b64 s[{S_X}:{S_X+1}], s[{P_X}:{P_X+1}]
    s_mov_b64 s[{S_B0}:{S_B0+1}], s[{P_WQKV}:{P_WQKV+1}]
    s_mov_b64 s[{S_G}:{S_G+1}], s[{P_WG}:{P_WG+1}]
    s_mov_b64 s[{S_U}:{S_U+1}], s[{P_WU}:{P_WU+1}]
    """)

    def fA(st):
        b = (st % 4) * SLOT
        g = [dma(sMX, b, vDX0, S_X, st * 128), dma(sMX, b + 1024, vDX1, S_X, st * 128),
             dma(sMB, b, vDB0, S_B0, st * 64 * 2688), dma(sMB, b + 8192, vDG, S_G, st * 64 * 3584),
             dma(sMB, b + 16384, vDU, S_U, st * 64 * 3584)]
        return [(x, ("A", st)) for x in g]

    def bslot(sb):
        return ((3 + sb // 2) % 4) * SLOT + (sb % 2) * 16384

    def fB(sb):
        b = bslot(sb) - 16384
        g = [dma(sMB, b, vDG, S_G, sb * 64 * 3584 + 128), dma(sMB, b + 8192, vDU, S_U, sb * 64 * 3584 + 128)]
        return [(x, ("B", sb)) for x in g]

    for g in fA(0):
        emit_group(g)
    a("s_barrier")
    if PFPOS: pf1("f")
    for g in fA(1):
        emit_group(g)
    common_setup2("f")
    a(f"""
    v_lshl_add_u32 v{vAW+1}, v{vN}, 13, v{vT3}
    v_add_u32 v{vAW+1}, {16384 + 8192}, v{vAW+1}
    v_xor_b32 v{vAW+2}, 32, v{vAW+1}
    s_cmp_ge_u32 s{sJ}, 7
    s_cselect_b32 s{sT1}, {KF - 7 * 4096}, {QF}
    s_cselect_b32 s{sSC}, 1.0, {f32bits(28 ** -0.5 * LOG2E):#x}
    s_lshl_b32 s{sT2}, s{sJ}, 12
    s_add_u32 s{sT1}, s{sT1}, s{sT2}
    s_lshl_b32 s{sT2}, s{sGRP}, 11
    s_add_u32 s{sT1}, s{sT1}, s{sT2}
    s_mul_i32 s{sQKO}, s{sTILE}, {TQ}
    s_add_u32 s{sQKO}, s{sQKO}, s{sT1}
    s_mul_i32 s{sHOFF}, s{sTILE}, 112
    s_lshl_b32 s{sT1}, s{sJ}, 3
    s_add_u32 s{sHOFF}, s{sHOFF}, s{sT1}
    s_lshl_b32 s{sT1}, s{sGRP}, 1
    s_add_u32 s{sHOFF}, s{sHOFF}, s{sT1}
    s_lshl_b32 s{sHOFF}, s{sHOFF}, 10
    s_add_u32 s{sHOFF}, s{sHOFF}, {HF}
    s_add_u32 s{sHOFF2}, s{sHOFF}, 4096
    """)
    WA = [WF, WF + 12, ACC + 48]
    NB = 4
    WB = [WF + 24, WF + 16, WF + 8, WF]

    def readsA(ks):
        st, s = ks // 4, ks % 4
        slot = st % 4
        out = set_base((slot // 2) * 2 * SLOT, [vAX, vAX+1, vAX+2, vAX+3, vAW, vAW+1, vAW+2])
        off = (slot % 2) * SLOT
        f = WA[ks % 3]
        out.append(f"ds_read_b128 {vr(X+4*ks, 4)}, v{vAX+s} offset:{off}")
        for t in range(3):
            for q in range(2):
                out.append(f"ds_read_b64_tr_b16 {vr(f+4*t+2*q, 2)}, v{vAW+t} offset:{off + (16*s + 4*q) * 128}")
        return out

    def readsB(ks):
        sb, s = ks // 4, ks % 4
        b = bslot(sb)
        f = WB[ks % NB]
        b32 = b - b % 32768
        off = b - b32
        out = set_base(b32 - 24576, [vAW+1, vAW+2])
        for t in range(2):
            for q in range(2):
                out.append(f"ds_read_b64_tr_b16 {vr(f+4*t+2*q, 2)}, v{vAW+1+t} offset:{off + (16*s + 4*q) * 128}")
        return out

    def epi_ffn(acc, ko, dst, t):
        g, u = acc, acc + 8
        o = []
        for i in range(8):
            o.append(f"v_mul_f32 v{t+i}, s{sNL2E}, v{g+i}")
        for i in range(8):
            o.append(f"v_exp_f32 v{t+i}, v{t+i}")
        for i in range(8):
            o.append(f"v_add_f32 v{t+i}, 1.0, v{t+i}")
        for i in range(8):
            o.append(f"v_rcp_f32 v{t+i}, v{t+i}")
        for i in range(8):
            o.append(f"v_mul_f32 v{g+i}, v{g+i}, v{t+i}")
        for i in range(8):
            o.append(f"v_mul_f32 v{u+i}, v{u+i}, v{g+i}")
        for i in range(4):
            o.append(f"v_cvt_pk_bf16_f32 v{dst+i}, v{u+2*i}, v{u+2*i+1}")
        so, off = (sHOFF, ko) if ko < 4 else (sHOFF2, ko - 4)
        o.append(("H", f"buffer_store_dwordx4 {vr(dst, 4)}, v{vL16}, {sr4(S_WS)}, s{so} offen offset:{1024*off}{SC}"))
        return o

    def epi_qk():
        o = []
        for i in range(8):
            o.append(f"v_mul_f32 v{ACC+2*i}, s{sSC}, v{ACC+2*i}")
            o.append(f"v_mul_f32 v{ACC+2*i+1}, s{sSC}, v{ACC+2*i+1}")
            o.append(f"v_cvt_pk_bf16_f32 v{ACC+i}, v{ACC+2*i}, v{ACC+2*i+1}")
        o.append("s_nop 1")
        for hh in range(2):
            b = ACC + 4 * hh
            o.append(f"v_permlane32_swap_b32 v{b}, v{b+2}")
            o.append(f"v_permlane32_swap_b32 v{b+1}, v{b+3}")
            o.append(("QK", f"buffer_store_dwordx4 {vr(b, 4)}, v{vL16}, {sr4(S_WS)}, s{sQKO} offen offset:{1024*hh}{SC}"))
        return o

    abase[0] = 0
    a(f"s_waitcnt vmcnt({vm.wait({('A', 0)}, cnts)})\ns_barrier")
    stamp(a, "p1_first")
    for ks in range(2):
        for r in readsA(ks):
            a(r)
    pend = fA(2) + fA(3)
    vFQf = vST
    fillA = flag_addr(False, vFLA, vFQf)
    for ks in range(28):
        st, s = ks // 4, ks % 4
        f = WA[ks % 3]
        m = [f"{MFMA} {vr(ACC+16*t, 16)}, {vr(f+4*t, 4)}, {vr(X+4*ks, 4)}, {'0' if ks == 0 else vr(ACC+16*t, 16)}" for t in range(3)]
        if s == 2:
            need = {("A", st + 1)} if st < 6 else {("B", 0), ("B", 1), ("B", 2), ("B", 3), ("N",)}
            a(f"s_waitcnt vmcnt({vm.wait(need, cnts)}) lgkmcnt(0)")
            if st == 6:
                nonce_get("f")
            a("s_barrier")
            stamp(a, f"p1_a{st}")
            if st + 4 <= 6:
                pend += fA(st + 4)
            else:
                i0 = 2 * (st - 3)
                pend += fB(i0) + (fB(i0 + 1) if i0 + 1 < 7 else [])
            if st == 2:
                pend.append(nonce_ld)
            if "nopf" not in OPT and st == PF2_ST and PF_EARLY < 1: pend.append(pf2())
            if "nopf" not in OPT and st == PF3_ST and PF_EARLY < 2: pend.append(pf3())
        elif ks < 27:
            a("s_waitcnt lgkmcnt(7)")
        else:
            a("s_waitcnt lgkmcnt(4)")
        r = readsA(ks + 2) if ks + 2 < 28 else readsB(ks + 2 - 28)
        k = len(r) - 4 if ks + 2 < 28 else len(r) - 2
        a(m[0])
        for x in r[:k]:
            a(x)
        a(m[1])
        for x in r[k:]:
            a(x)
        a(m[2])
        if ks >= 16:
            assert vm.q.count(("A", 6)) == 5
            for _ in range(7):
                if fillA: a(fillA.pop(0))
        nd = 2 if (len(pend) > 4 or st < 1) else 1
        for _ in range(nd):
            if pend:
                emit_group(pend.pop(0))
    assert not fillA
    stamp(a, "p1_aend")
    for x in readsB(2):
        a(x)
    ea, eb = epi_ffn(ACC + 16, 0, X + 16, X), epi_ffn(ACC + 32, 1, X + 20, X + 8)
    fillq = ["s_nop 3"] + epi_qk()
    fill = ea + eb
    wq = [0, 1, 2, 3, 4, 5, 6]
    sWH, sMH2 = sMX, sOK
    for ks in range(28):
        f = WB[ks % NB]
        m = [f"{MFMA} {vr(ACC+48+16*t, 16)}, {vr(f+4*t, 4)}, {vr(X+4*ks, 4)}, {'0' if ks == 0 else vr(ACC+48+16*t, 16)}" for t in range(2)]
        nxt = ks + NB - 1
        if ks == QKB:
            need = {5: {("B", 2), ("B", 3), ("N",)}, QKB: {("B", 4), ("B", 5), ("B", 6), ("QK",)}, 17: set()}[ks]
            if ks == QKB: assert vm.q.count(("QK",)) == 2 and QKB <= 13
            if need: a(f"s_waitcnt vmcnt({vm.wait(need, cnts)})")
            a("s_barrier")
            stamp(a, {5: "p1_b2", QKB: "p1_b4", 17: "p1_b5"}[ks])
            if ks == QKB:
                a(f"""
                s_cmp_lg_u32 s{sW}, 7
                s_cbranch_scc1 k1_noflag_f
                s_mov_b32 s{sT0}, {FQ}
                buffer_store_dword v{vNON}, v{vFQf}, {sr4(S_WS)}, s{sT0} offen{SC}
                """)
                a.label("k1_noflag_f")
        stamp(a, f"pb{ks}")
        a(f"s_waitcnt lgkmcnt({min(NB - 2, 27 - ks) * 4})")
        r = readsB(nxt) if nxt < 28 else []

        def dofill():
            if ks < 1: return
            if fillq:
                for _ in range(5):
                    if fillq: emit(fillq.pop(0))
            else:
                for _ in range(FPER):
                    if fill and isinstance(fill[0], tuple) and ks < HA_ST and len(fill) > 1:
                        fill[0], fill[1] = fill[1], fill[0]
                    if fill and not (isinstance(fill[0], tuple) and ks < HA_ST): emit(fill.pop(0))
        a(m[0])
        for x in r[:len(r) - 2]:
            a(x)
        if pend:
            emit_group(pend.pop(0))
        dofill()
        a(m[1])
        for x in r[len(r) - 2:]:
            a(x)
        dofill()
        if wq and ks >= WP_ST and (ring_addr(wq[0]) < 122880 or ks >= QKB) and not pend:
            i = wq.pop(0)
            if i == 0:
                a(f"""
                s_mul_i32 s{sWH}, s{sGRP}, {8 * 896}
                s_add_u32 s{sWH}, s{sWH}, s{sWB}
                s_cmp_ge_u32 s{sI32}, 28
                s_cselect_b32 s{sWH}, {OOB}, s{sWH}
                s_lshl_b32 s{sMH2}, s{sGRP}, 10
                s_add_u32 s{sMH2}, s{sMH2}, s{sM0}
                """)
            a(f"""
            s_add_u32 m0, s{sMH2}, {ring_addr(i)}
            s_add_u32 s{sT0}, s{sWH}, {wk_off(i) * 16 * 896}
            buffer_load_dwordx4 v{vDW}, {sr4(S_WD)}, s{sT0} offen lds
            """)
            vm.add(("WP",))
        if ks == EARLY_P:
            a(f"""
            s_cmp_lg_u32 s{sW}, 0
            s_cbranch_scc1 k1_nopoll
            buffer_load_dword v{vPOL}, v{vFLA}, {sr4(S_WS)}, s{sFQB} offen{SC}
            buffer_load_dword v{vPOL+1}, v{vFLA+1}, {sr4(S_WS)}, s{sFQB} offen{SC}
            """)
            a.label("k1_nopoll")
    assert not fill and not pend and not wq
    stamp(a, "pb28")
    a("s_nop 7\ns_nop 3")
    stamp(a, "p1_bend")
    e0, e1 = epi_ffn(ACC + 48, 4, HBR, X + 32), epi_ffn(ACC + 64, 5, HBR + 4, X + 40)
    ev = e0[:-1] + e1[:-1]
    for x in ev[:FA_AT]:
        a(x)
    ev = ev[FA_AT:]
    a(f"""
    v_mov_b32 v{vT0}, {CNT + 32}
    v_mov_b32 v{vT1}, 1
    s_waitcnt vmcnt(0)
    s_mov_b64 exec, 1
    ds_add_rtn_u32 v{vT1}, v{vT0}, v{vT1}
    s_mov_b64 exec, -1
    s_waitcnt lgkmcnt(0)
    v_readfirstlane_b32 s{sT0}, v{vT1}
    s_cmp_lg_u32 s{sT0}, 7
    s_cbranch_scc1 k1_nofa
    """)
    a(flag1(a, sFHA))
    a.label("k1_nofa")
    a(f"""
    s_cmp_ge_u32 s{sW}, 4
    s_cbranch_scc1 k1_epi
    s_cmp_lg_u32 s{sW}, 0
    s_cbranch_scc1 k1_w123
    """)
    fq_eval(a)
    lds_set(a, 4, f"s{sT0}", vT0)
    a(f"""
    s_bitcmp1_b32 s{sT0}, 0
    s_cbranch_scc1 k1_early
    """)
    fq_issue(a)
    a("s_branch k1_epi")
    a.label("k1_w123")
    lds_wait(a, 4, vT0, "ne0", 1)
    a(f"s_bitcmp1_b32 s{sT0}, 0\ns_cbranch_scc0 k1_epi")
    a.label("k1_early")
    stamp(a, "x_go")
    o1, o2, _, flat, _ = att_loads()
    for x in flat(o1):
        a(x)
    a(f"s_bitcmp1_b32 s{sOK}, 1\ns_cbranch_scc1 k1_rp\ns_cmp_lg_u32 s{sW}, 0\ns_cbranch_scc1 k1_rp")
    fq_issue(a)
    a.label("k1_rp")
    ev2 = list(ev)
    step = len(ev2) // len(o2)
    for x in o2:
        for _ in range(step):
            a(ev2.pop(0))
        for y in flat([x]):
            a(y)
    for x in ev2:
        a(x)
    stamp(a, "p1_end")
    a("s_branch att_main")
    a.label("k1_epi")
    for x in ev:
        a(x)
    stamp(a, "p1_end")
    a(f"""
    s_cmp_ge_u32 s{sW}, 4
    s_cbranch_scc1 gemm_role_f
    s_cmp_lg_u32 s{sW}, 0
    s_cbranch_scc1 aq_lw
    s_mov_b32 s{sSPIN}, {SPIN_MAX}
    s_branch aq_chk
    """)
    a.label("gemm_role_f")
    lds_wait(a, 32, vT0, "eq8", 1)
    a("s_branch gemm_role2")

    a.label("k1_v")
    vm = VM()
    cntv = lambda t: {"A": 5, "B": 1}[t[0]] if t[0] in ("A", "B") else vm.q.count(t)
    GWL = CNT + 1024
    a(f"""
    v_add_u32 v{vDU}, {(896 + 192) * 2}, v{vDB0}
    s_cmp_eq_u32 s{sJ}, 14
    s_cselect_b32 s{sT0}, 0, 512
    s_add_u32 s{sT0}, s{sT0}, {896 * 2}
    v_add_u32 v{vDB0}, s{sT0}, v{vDB0}
    s_mov_b32 s{S_U+2}, {448 * 2}
    s_waitcnt lgkmcnt(0)
    s_mov_b64 s[{S_X}:{S_X+1}], s[{P_X}:{P_X+1}]
    s_mov_b64 s[{S_B0}:{S_B0+1}], s[{P_WQKV}:{P_WQKV+1}]
    s_mov_b64 s[{S_U}:{S_U+1}], s[{P_GW}:{P_GW+1}]
    """)

    def vA(st):
        b = (st % 4) * SLOT
        g = [dma(sMX, b, vDX0, S_X, st * 128), dma(sMX, b + 1024, vDX1, S_X, st * 128)]
        for bi in range(3):
            g.append(dma(sMB, b + 8192 * bi, vDB0, S_B0, st * 64 * 2688 + 128 * bi))
        return [(x, ("A", st)) for x in g]

    def vbslot(sb):
        return 3 * SLOT + sb * 8192 if sb < 4 else (sb - 4) * 8192

    def vB(sb):
        return [(dma(sMB, vbslot(sb) - 16384, vDU, S_B0, sb * 64 * 2688), ("B", sb))]

    gw_ld = ([f"s_mov_b32 m0, {GWL}", "s_nop 0", f"buffer_load_dwordx4 v{vL16}, {sr4(S_U)}, 0 offen lds"], ("GW",))

    for g in vA(0):
        emit_group(g)
    a("s_barrier")
    if PFPOS: pf1("v")
    for g in vA(1):
        emit_group(g)
    common_setup2("v")
    vAZ = vAW + 3
    a(f"""
    v_add_u32 v{vAW+1}, 8192, v{vAW}
    v_add_u32 v{vAW+2}, 16384, v{vAW}
    s_sub_u32 s{sT1}, s{sJ}, 14
    s_lshl_b32 s{sT1}, s{sT1}, 6
    v_xor_b32 v{vAZ}, s{sT1}, v{vAW}
    v_lshlrev_b32 v{vST+1}, 4, v{vT1}
    v_add_u32 v{vST+1}, {GWL}, v{vST+1}
    s_cmp_eq_u32 s{sJ}, 14
    s_cselect_b32 s{sT1}, 0, 4096
    s_lshl_b32 s{sT2}, s{sGRP}, 9
    s_add_u32 s{sT1}, s{sT1}, s{sT2}
    s_mul_i32 s{sHOFF}, s{sTILE}, {TQ}
    s_add_u32 s{sHOFF}, s{sHOFF}, s{sT1}
    s_add_u32 s{sHOFF}, s{sHOFF}, {VF}
    s_add_u32 s{sHOFF2}, s{sHOFF}, 14336
    v_mul_u32_u24 v{vST}, {7168 - 512}, v{vT1}
    v_add_u32 v{vST}, v{vST}, v{vL16}
    """)

    def readsVA(ks):
        st, s = ks // 4, ks % 4
        slot = st % 4
        out = set_base((slot // 2) * 2 * SLOT, [vAX, vAX+1, vAX+2, vAX+3, vAW, vAW+1, vAW+2, vAZ])
        off = (slot % 2) * SLOT
        f = WA[ks % 3]
        out.append(f"ds_read_b128 {vr(X+4*ks, 4)}, v{vAX+s} offset:{off}")
        for t in range(3):
            for q in range(2):
                out.append(f"ds_read_b64_tr_b16 {vr(f+4*t+2*q, 2)}, v{vAW+t} offset:{off + (16*s + 4*q) * 128}")
        return out

    NBV = 6
    WBV = [WF + 24, WF + 28, WF + 16, WF + 20, WF + 12, WF + 8]

    def readsVB(ks, z):
        sb, s = ks // 4, ks % 4
        f = WBV[ks % NBV]
        if z:
            return [f"ds_read_b128 {vr(f, 4)}, v{vST+1} offset:{32*ks}"]
        b = vbslot(sb)
        nb = (3 * SLOT if sb < 4 else 0)
        out = set_base(nb - 16384, [vAZ])
        off = b - nb
        for q in range(2):
            out.append(f"ds_read_b64_tr_b16 {vr(f+2*q, 2)}, v{vAZ} offset:{off + (16*s + 4*q) * 128}")
        return out

    def epi_v(acc, bi):
        o = [f"v_cvt_pk_bf16_f32 v{acc+i}, v{acc+2*i}, v{acc+2*i+1}" for i in range(8)]
        o.append(f"buffer_store_dwordx4 {vr(acc, 4)}, v{vST}, {sr4(S_WS)}, s{sHOFF} offen offset:{1024*bi}{SC}")
        o.append(f"buffer_store_dwordx4 {vr(acc+4, 4)}, v{vST}, {sr4(S_WS)}, s{sHOFF2} offen offset:{1024*bi}{SC}")
        return o

    abase[0] = 0
    a(f"s_waitcnt vmcnt({vm.wait({('A', 0)}, cntv)})\ns_barrier")
    stamp(a, "p1_first")
    for ks in range(2):
        for r in readsVA(ks):
            a(r)
    pend = vA(2) + vA(3)
    fillA = flag_addr(True, vFLA, vDG)
    for ks in range(28):
        st, s = ks // 4, ks % 4
        f = WA[ks % 3]
        m = [f"{MFMA} {vr(ACC+16*t, 16)}, {vr(X+4*ks, 4)}, {vr(f+4*t, 4)}, {'0' if ks == 0 else vr(ACC+16*t, 16)}" for t in range(3)]
        if s == 2:
            need = {("A", st + 1)} if st < 6 else {("B", x) for x in range(7)} | {("N",), ("GW",)}
            a(f"s_waitcnt vmcnt({vm.wait(need, cntv)}) lgkmcnt(0)")
            if st == 6:
                nonce_get("v")
            a("s_barrier")
            if st + 4 <= 6:
                pend += vA(st + 4)
            elif st == 3:
                pend += vB(0) + vB(1) + vB(2) + vB(3)
            elif st == 4:
                pend += vB(4) + vB(5) + vB(6) + [gw_ld]
            if st == 2:
                pend.append(nonce_ld)
            if "nopf" not in OPT and st == PF2_ST and PF_EARLY < 1: pend.append(pf2())
            if "nopf" not in OPT and st == PF3_ST and PF_EARLY < 2: pend.append(pf3())
        elif ks < 27:
            a("s_waitcnt lgkmcnt(7)")
        r = readsVA(ks + 2) if ks + 2 < 28 else []
        k = max(len(r) - 4, 0)
        a(m[0])
        for x in r[:k]:
            a(x)
        a(m[1])
        for x in r[k:]:
            a(x)
        a(m[2])
        if ks >= 16:
            assert vm.q.count(("A", 6)) == 5
            for _ in range(7):
                if fillA: a(fillA.pop(0))
        nd = 2 if (len(pend) > 4 or st < 1) else 1
        for _ in range(nd):
            if pend:
                emit_group(pend.pop(0))
    assert not fillA and not pend
    stamp(a, "p1_aend")
    VB = ACC + 48

    def passVB(z, fill):
        nrd = 1 if z else 2
        for ks in range(NBV - 1):
            for x in readsVB(ks, z):
                a(x)
        for ks in range(28):
            f = WBV[ks % NBV]
            c = vr(VB, 16)
            ops = f"{vr(f, 4)}, {vr(X+4*ks, 4)}" if z else f"{vr(X+4*ks, 4)}, {vr(f, 4)}"
            a(f"s_waitcnt lgkmcnt({min(NBV - 2, 27 - ks) * nrd})")
            a(f"{MFMA} {c}, {ops}, {'0' if ks == 0 else c}")
            if ks + NBV - 1 < 28:
                for x in readsVB(ks + NBV - 1, z):
                    a(x)
            for _ in range(3):
                if fill: a(fill.pop(0))
        assert not fill

    a(f"s_cmp_eq_u32 s{sGRP}, 1\ns_cbranch_scc1 k1_vg1")
    passVB(False, ["s_nop 1"] + epi_v(ACC, 0) + epi_v(ACC + 16, 1) + epi_v(ACC + 32, 2))
    a(f"""
    s_mul_i32 s{sHOFF}, s{sTILE}, {TQ}
    s_lshl_b32 s{sT1}, s{sJ}, 9
    s_add_u32 s{sHOFF}, s{sHOFF}, s{sT1}
    s_add_u32 s{sHOFF}, s{sHOFF}, {VF + 192 * 16 - 14 * 512}
    s_add_u32 s{sHOFF2}, s{sHOFF}, 14336
    s_nop 7
    """)
    for x in epi_v(VB, 0):
        a(x)
    stamp(a, "p1_bend")
    a(f"""
    s_waitcnt vmcnt(0)
    s_barrier
    """)
    stamp(a, "p1_end")
    a(f"""
    s_cmp_lg_u32 s{sW}, 3
    s_cbranch_scc1 k1_noflag_v
    s_mov_b32 s{sT0}, {FQ}
    buffer_store_dword v{vNON}, v{vDG}, {sr4(S_WS)}, s{sT0} offen{SC}
    """)
    a(flag1(a, sFHA))
    a.label("k1_noflag_v")
    a("s_branch att_spin")
    a.label("k1_vg1")
    a("s_nop 7")
    for x in epi_v(ACC, 0) + epi_v(ACC + 16, 1) + epi_v(ACC + 32, 2):
        a(x)
    stamp(a, "p1_bend")
    a(f"""
    s_waitcnt vmcnt(0)
    s_barrier
    """)
    stamp(a, "p1_end")
    a(f"s_mov_b32 s{sHOFF2}, {OOB}\ns_cmp_eq_u32 s{sJ}, 14\ns_cbranch_scc1 gemm_role")
    passVB(True, [])
    t = WF
    a(f"""
    s_nop 7
    s_nop 3
    v_mul_f32 v{t}, s{sNL2E}, v{VB}
    v_exp_f32 v{t}, v{t}
    v_and_b32 v{t+1}, 31, v{vLane}
    v_add_f32 v{t}, 1.0, v{t}
    v_rcp_f32 v{t}, v{t}
    v_lshlrev_b32 v{t+1}, 2, v{t+1}
    s_lshl_b32 s{sT0}, s{sTILE}, 7
    s_add_u32 s{sT0}, s{sT0}, {GF}
    buffer_store_dword v{t}, v{t+1}, {sr4(S_WS)}, s{sT0} offen{SC}
    s_waitcnt vmcnt(0)
    """)
    a.label("gemm_role")
    for i in range(7):
        for x in wpref(i):
            a(x)
    a.label("gemm_role2")
    gen_gemm(a, wpref)
    gen_attention(a)
    a.label("k_end")
    a("s_endpgm")
    return a.text()


vAWr = 16
RB = [0, 98304]


def wtr_setup(a):
    a(f"""
    v_bfe_u32 v{vT0}, v{vLane}, 4, 1
    v_bfe_u32 v{vT1}, v{vLane}, 2, 2
    v_and_b32 v{vT2}, 2, v{vT1}
    v_xor_b32 v{vT2}, v{vT2}, v{vT0}
    s_and_b32 s{sT0}, s{sKQ}, 1
    s_lshl_b32 s{sT0}, s{sT0}, 1
    v_xor_b32 v{vT2}, s{sT0}, v{vT2}
    v_lshrrev_b32 v{vT3}, 5, v{vLane}
    v_lshl_add_u32 v{vT3}, v{vT3}, 2, v{vT1}
    v_lshlrev_b32 v{vT3}, 7, v{vT3}
    v_lshl_add_u32 v{vT3}, v{vT2}, 5, v{vT3}
    v_and_b32 v{vT2}, 3, v{vLane}
    v_lshl_add_u32 v{vT3}, v{vT2}, 3, v{vT3}
    v_add_u32 v{vAWr}, s{sM0}, v{vT3}
    v_xor_b32 v{vAWr+1}, 64, v{vAWr}
    v_add_u32 v{vAWr+2}, {RB[1]}, v{vAWr}
    v_add_u32 v{vAWr+3}, {RB[1]}, v{vAWr+1}
    v_mov_b32 v{vAWr+4}, v{vT3}
    """)


def wtr_reads(slot, dst):
    ra = ring_addr(slot)
    bi = max(i for i in range(2) if RB[i] <= ra)
    out = []
    for T in range(2):
        for q in range(2):
            out.append(f"ds_read_b64_tr_b16 {vr(dst+4*T+2*q, 2)}, v{vAWr+2*bi+T} offset:{ra - RB[bi] + q*1024}")
    return out


def bcast_poll(a, tag, leader, addrs, soff, vtmp, sleep, ldsoff, pre=None, lsleep=2, skip_if_set=False):
    if skip_if_set:
        a(f"""
        v_mov_b32 v{vT0}, {CNT + ldsoff}
        ds_read_b32 v{vT1}, v{vT0}
        s_waitcnt lgkmcnt(0)
        v_readfirstlane_b32 s{sT0}, v{vT1}
        s_cmp_eq_u32 s{sT0}, 1
        s_cbranch_scc1 {tag}_go
        """)
    a(f"s_cmp_lg_u32 s{sW}, {leader}\ns_cbranch_scc1 {tag}_lw")
    if pre:
        pre()
    poll(a, addrs, soff, vtmp, sleep)
    a.label(f"{tag}_ok")
    lds_set(a, ldsoff, 1, vT0)
    a(f"s_branch {tag}_go")
    a.label(f"{tag}_lw")
    lds_wait(a, ldsoff, vT0, "eq1", lsleep)
    a.label(f"{tag}_go")


def gen_gemm(a, wpref):
    ACC = 64
    ACT = 128
    WFB = [32, 40]
    vA0, vA1, vG0, vFl, vFl2, vMB = 21, 22, 23, 25, 24, 26
    sA0, sB0w, sFH2, sMO2, sDONE, sNEW, sH = 45, 46, 47, 48, 49, 50, 52
    DA = GDA
    stamp(a, "x_role")
    wtr_setup(a)
    srd(a, S_WO, P_WO, 448 * 448 * 2)
    srd(a, S_OUT, P_OUT, 2048 * 448 * 2)
    a(f"""
    s_lshr_b32 s{sMO2}, s{sKQ}, 1
    s_mul_i32 s{sT0}, s{sMO2}, {112 * 1024}
    v_add_u32 v{vA0}, s{sT0}, v{vL16}
    s_sub_u32 s{sT0}, {112 * 1024}, s{sT0}
    v_add_u32 v{vA1}, s{sT0}, v{vL16}
    s_lshr_b32 s{sT1}, s{sMT}, 1
    s_lshl_b32 s{sT1}, s{sT1}, 9
    s_add_u32 s{sT1}, s{sT1}, {FH}
    s_lshl_b32 s{sFH2}, s{sMT}, 10
    s_add_u32 s{sFH2}, s{sFH2}, {FHB}
    s_mul_i32 s{sA0}, s{sMT}, 224
    s_add_u32 s{sA0}, s{sA0}, s{sKQ}
    s_lshl_b32 s{sA0}, s{sA0}, 10
    s_add_u32 s{sA0}, s{sA0}, {HF}
    s_mul_i32 s{sB0w}, s{sKQ}, {112 * 896}
    s_lshl_b32 s{sT0}, s{sNT}, 7
    s_add_u32 s{sB0w}, s{sB0w}, s{sT0}
    v_and_b32 v{vFl}, 0x1ff, v{vFLA}
    v_and_b32 v{vFl2}, 0x3ff, v{vFLA}
    s_add_u32 s{sT2}, s{sM0}, {QX + MBOX}
    v_add_u32 v{vMB}, s{sT2}, v{vL16}
    s_sub_u32 s{sHOFF}, s{sHOFF2}, 2048
    s_cmp_lt_u32 s{sI32}, 28
    s_cbranch_scc1 gemm_has
    """)

    def hb_all():
        lds_wait(a, 36, vT0, "eq4", 1)
        a(f"""
        ds_read_b128 {vr(HBR+8, 4)}, v{vMB}
        ds_read_b128 {vr(HBR+12, 4)}, v{vMB} offset:1024
        """)

    def hb_st():
        return hb_stores() + [f"buffer_store_dwordx4 {vr(HBR+8+4*i, 4)}, v{vL16}, {sr4(S_WS)}, s{sHOFF} offen offset:{1024*i}{SC}" for i in range(2)]
    hb_all()
    a("s_waitcnt lgkmcnt(0)")
    for x in hb_st():
        a(x)
    a("s_waitcnt vmcnt(0)")
    a(flag1(a, sFHO))
    a("s_endpgm")
    a.label("gemm_has")
    a(f"""
    s_cmp_lg_u32 s{sW}, 4
    s_cbranch_scc1 g_noe
    v_mov_b32 v{vT0}, {CNT + 36}
    """)
    a.label("g_el")
    a(f"""
    buffer_load_dword v{vG0}, v{vFl}, {sr4(S_WS)}, s{sT1} offen{SC}
    s_waitcnt vmcnt(0)
    v_cmp_ne_u32 vcc, s{sNONCE}, v{vG0}
    ds_read_b32 v{vT1}, v{vT0}
    s_cmp_eq_u64 vcc, 0
    s_cbranch_scc1 g_eok
    s_waitcnt lgkmcnt(0)
    v_readfirstlane_b32 s{sT0}, v{vT1}
    s_cmp_eq_u32 s{sT0}, 4
    s_cbranch_scc1 g_noe
    s_sleep 2
    s_branch g_el
    """)
    a.label("g_eok")
    a("s_waitcnt lgkmcnt(0)")
    lds_set(a, 8, 1, vT0)
    a.label("g_noe")
    hb_all()
    vm = VM()
    for i in range(0, 7):
        vm.add(("w", i))

    def act_loads(i):
        r = ACT + 8 * (i % DA)
        a(f"""
        s_add_u32 s{sT0}, s{sA0}, {wk_off(i) * 1024}
        buffer_load_dwordx4 {vr(r, 4)}, v{vA0}, {sr4(S_WS)}, s{sT0} offen{SC}
        buffer_load_dwordx4 {vr(r+4, 4)}, v{vA1}, {sr4(S_WS)}, s{sT0} offen{SC}
        """)
        vm.add(("a", i)); vm.add(("a", i))

    def w_loads(i):
        if i < 28:
            for x in wpref(i):
                a(x)
        else:
            ra = ring_addr(wslot(i))
            off = (28 * ((i - 28) // 2) + 16 * ((i - 28) % 2)) * 896
            a(f"""
            s_add_u32 m0, s{sM0}, {ra}
            s_add_u32 s{sT0}, s{sB0w}, {off}
            buffer_load_dwordx4 v{vDW}, {sr4(S_WO)}, s{sT0} offen lds
            s_add_u32 m0, s{sM0}, {ra + 1024}
            s_add_u32 s{sT0}, s{sT0}, {8 * 896}
            buffer_load_dwordx4 v{vDW}, {sr4(S_WO)}, s{sT0} offen lds
            """)
        vm.add(("w", i)); vm.add(("w", i))

    na, nw = 0, 7
    a("s_waitcnt lgkmcnt(0)")
    for x in hb_st():
        a(x); vm.add(("hb",))
    bcast_poll(a, "gA", 4, [vFl], sT1, vG0, SLEEP_H, 8, skip_if_set=True)
    stamp(a, "x_go"); stamp(a, "x_loop")
    for i in range(GPRE):
        act_loads(na); na += 1
    a(f"s_waitcnt vmcnt({vm.wait({('w', 0)})})")
    for x in wtr_reads(0, WFB[0]):
        a(x)
    gotB = False
    for i in range(28):
        need = {("a", i)}
        if i + 1 < 28:
            need.add(("w", i + 1))
        a(f"s_waitcnt vmcnt({vm.wait(need)}) lgkmcnt(0)")
        if i + 1 < 28:
            for x in wtr_reads((i + 1) % 13, WFB[(i + 1) % 2]):
                a(x)
        for mt in range(2):
            for T in range(2):
                c = vr(ACC + 32 * mt + 16 * T, 16)
                a(f"{MFMA} {c}, {vr(WFB[i%2]+4*T, 4)}, {vr(ACT+8*(i%DA)+4*mt, 4)}, {'0' if i == 0 else c}")
        if i == 0:
            a(flag1(a, sFHO))
        if i == GB_AT:
            stamp(a, "g_b0")
            bcast_poll(a, "gB", 4, [vFl2], sFH2, vPOL, SLEEP_H, 12)
            stamp(a, "g_b1")
            gotB = True
            a(f"""
            v_and_b32 v{vT0}, 31, v{vLane}
            v_lshlrev_b32 v{vT0}, 2, v{vT0}
            s_lshl_b32 s{sT1}, s{sMT}, 1
            s_add_u32 s{sT1}, s{sT1}, s{sMO2}
            s_lshl_b32 s{sT1}, s{sT1}, 7
            s_add_u32 s{sT1}, s{sT1}, {GF}
            buffer_load_dword v{vG0}, v{vT0}, {sr4(S_WS)}, s{sT1} offen{SC}
            """)
            vm.add(("g",))
        for _ in range(2):
            if na < 28 and na <= i + DA and (na < 14 or gotB):
                act_loads(na); na += 1
            if nw < 36 and nw <= i + min(13, DA + 1) and (nw < 28 or wslot(nw) + 13 <= i):
                w_loads(nw); nw += 1
    assert na == 28
    while nw < 36:
        w_loads(nw); nw += 1
    stamp(a, "x_lend")
    XS = [0, 1, 6, 7]
    R, AA, SL = 128, ACC + 16, 128
    vX0, vX1, vC1, vOUT, vWa = 26, 27, 28, 30, 29

    def xaddr(reg, x):
        a(f"""
        s_xor_b32 s{sT0}, s{sKQ}, {x}
        s_lshl_b32 s{sT0}, s{sT0}, 11
        v_add_u32 v{reg}, s{sT0}, v{vL16}
        v_add_u32 v{reg+1}, {RB[1]}, v{reg}
        """)

    def xo(i):
        ra = ring_addr(XS[i // 2]) + (i % 2) * 1024
        return (vX0, ra) if ra < RB[1] else (vX1, ra - RB[1])

    def gsync(off, tag):
        a(f"""
        v_mov_b32 v{vC1}, {CNT + off}
        v_mov_b32 v{vT0}, 1
        s_waitcnt vmcnt(0) lgkmcnt(0)
        s_mov_b64 exec, 1
        ds_add_u32 v{vC1}, v{vT0}
        s_mov_b64 exec, -1
        """)
        a.label(tag)
        a(f"""
        ds_read_b32 v{vT0}, v{vC1}
        s_waitcnt lgkmcnt(0)
        v_readfirstlane_b32 s{sT0}, v{vT0}
        s_cmp_eq_u32 s{sT0}, 4
        s_cbranch_scc1 {tag}_d
        s_sleep 1
        s_branch {tag}
        """)
        a.label(f"{tag}_d")

    a("s_setprio 3")
    xaddr(vX0, 0)
    a("s_nop 7")
    for i in range(8):
        r_, o_ = xo(i)
        a(f"ds_write_b128 v{r_}, {vr(ACC+32+4*i, 4)} offset:{o_}")
    xaddr(vX0, 2)
    gsync(16, "gs1")
    for i in range(8):
        r_, o_ = xo(i)
        a(f"ds_read_b128 {vr(R+4*i, 4)}, v{r_} offset:{o_}")
    a("s_waitcnt lgkmcnt(0)")
    for i in range(16, 32):
        a(f"v_add_f32 v{ACC+i}, v{ACC+i}, v{R+i}")
    for i in range(4):
        r_, o_ = xo(i)
        a(f"ds_write_b128 v{r_}, {vr(ACC+16+4*i, 4)} offset:{o_}")
    for i in range(16):
        a(f"v_add_f32 v{ACC+i}, v{ACC+i}, v{R+i}")
    xaddr(vX0, 3)
    gsync(28, "gs2")
    for i in range(4):
        r_, o_ = xo(i)
        a(f"ds_read_b128 {vr(R+4*i, 4)}, v{r_} offset:{o_}")
    a(f"""
    v_sub_f32 v{vT2}, 1.0, v{vG0}
    s_lshl_b32 s{sT1}, s{sMT}, 1
    s_add_u32 s{sT1}, s{sT1}, s{sMO2}
    s_lshl_b32 s{sFH2}, s{sT1}, 9
    s_add_u32 s{sFH2}, s{sFH2}, {FO}
    s_lshl_b32 s{sA0}, s{sT1}, 15
    s_add_u32 s{sA0}, s{sA0}, {OF}
    s_mul_i32 s{sT2}, s{sT1}, {32 * 896}
    s_lshl_b32 s{sT1}, s{sNT}, 7
    s_add_u32 s{sT2}, s{sT2}, s{sT1}
    s_and_b32 s{sT1}, s{sKQ}, 1
    s_lshl_b32 s{sT1}, s{sT1}, 6
    s_add_u32 s{sT2}, s{sT2}, s{sT1}
    v_and_b32 v{vFl}, 31, v{vLane}
    v_mul_u32_u24 v{vOUT}, 896, v{vFl}
    v_lshrrev_b32 v{vT3}, 5, v{vLane}
    v_lshl_add_u32 v{vOUT}, v{vT3}, 4, v{vOUT}
    v_and_b32 v{vFl}, 0x1ff, v{vFLA}
    s_mov_b32 s{sDONE}, 0xffff0000
    s_mov_b32 s{sSPIN}, {SPIN_MAX}
    s_waitcnt lgkmcnt(0)
    """)
    for i in range(16):
        a(f"v_add_f32 v{ACC+i}, v{ACC+i}, v{R+i}")
    for i in range(16):
        a(f"v_mul_f32 v{ACC+i}, v{ACC+i}, v{vT2}")
        a(f"v_mov_b32 v{AA+i}, 0")
    a("s_setprio 1")
    stamp(a, "p3_poll")
    sNB = 53
    a(f"s_mov_b32 s{sNB}, 0\ns_mov_b32 s{sNEW}, 0")
    a.label("p3_poll")
    a(f"""
    buffer_load_dword v{vPOL}, v{vFl}, {sr4(S_WS)}, s{sFH2} offen{SC}
    s_cmp_eq_u32 s{sNB}, 0
    s_cbranch_scc1 p3_chk
    s_waitcnt vmcnt(1) lgkmcnt(0)
    """)
    a.label("p3_run")
    for k in range(8):
        o, w = SL + 16 * k, SL + 16 * k + 8
        a(f"""
        {MFMA} {vr(AA, 16)}, {vr(w, 4)}, {vr(o, 4)}, {vr(AA, 16)}
        {MFMA} {vr(AA, 16)}, {vr(w+4, 4)}, {vr(o+4, 4)}, {vr(AA, 16)}
        """)
        if k < 7:
            a(f"s_cmp_eq_u32 s{sNB}, {k+1}\ns_cbranch_scc1 p3_ran")
    a.label("p3_ran")
    a(f"""
    s_mov_b32 s{sNB}, 0
    s_cmp_eq_u32 s{sDONE}, -1
    s_cbranch_scc1 p3_fin
    """)
    a.label("p3_chk")
    a(f"""
    s_waitcnt vmcnt(0)
    v_cmp_eq_u32 vcc, s{sNONCE}, v{vPOL}
    s_sub_u32 s{sSPIN}, s{sSPIN}, 1
    s_cbranch_scc1 p3_fin
    s_andn2_b32 s{sNEW}, vcc_lo, s{sDONE}
    s_cbranch_scc1 p3_batch
    s_sleep {SLEEP_O}
    s_branch p3_poll
    """)
    a.label("p3_batch")
    for k in range(8):
        o, w = SL + 16 * k, SL + 16 * k + 8
        a(f"""
        s_ff1_i32_b32 s{sH}, s{sNEW}
        s_bitset0_b32 s{sNEW}, s{sH}
        s_bitset1_b32 s{sDONE}, s{sH}
        s_lshl_b32 s{sT0}, s{sH}, 11
        s_add_u32 s{sT0}, s{sT0}, s{sA0}
        buffer_load_dwordx4 {vr(o, 4)}, v{vL16}, {sr4(S_WS)}, s{sT0} offen{SC}
        buffer_load_dwordx4 {vr(o+4, 4)}, v{vL16}, {sr4(S_WS)}, s{sT0} offen offset:1024{SC}
        s_bitcmp1_b32 s{sH}, 1
        s_cselect_b32 s{sT0}, 0, {ring_addr(2)}
        s_and_b32 s{sT1}, s{sH}, 1
        s_lshl_b32 s{sT1}, s{sT1}, 14
        s_add_u32 s{sT0}, s{sT0}, s{sT1}
        s_lshr_b32 s{sT1}, s{sH}, 2
        s_lshl_b32 s{sT1}, s{sT1}, 11
        s_add_u32 s{sT0}, s{sT0}, s{sT1}
        v_add_u32 v{vWa}, s{sT0}, v{vAWr+4}
        ds_read_b64_tr_b16 {vr(w, 2)}, v{vWa}
        ds_read_b64_tr_b16 {vr(w+2, 2)}, v{vWa} offset:1024
        ds_read_b64_tr_b16 {vr(w+4, 2)}, v{vWa} offset:8192
        ds_read_b64_tr_b16 {vr(w+6, 2)}, v{vWa} offset:9216
        s_mov_b32 s{sNB}, {k+1}
        """)
        if k >= 2:
            a("s_waitcnt lgkmcnt(8)")
        if k < 7:
            a(f"s_cmp_eq_u32 s{sNEW}, 0\ns_cbranch_scc1 p3_iss")
    a.label("p3_iss")
    a(f"""
    s_cmp_lg_u32 s{sDONE}, -1
    s_cbranch_scc1 p3_poll
    s_waitcnt vmcnt(0) lgkmcnt(0)
    s_branch p3_run
    """)
    a.label("p3_fin")
    stamp(a, "p3_mfma")
    a("s_nop 7\ns_nop 1")
    t = 96
    for i in range(16):
        a(f"v_fma_f32 v{ACC+i}, v{AA+i}, v{vG0}, v{ACC+i}")
    for i in range(8):
        a(f"v_cvt_pk_bf16_f32 v{t+i}, v{ACC+2*i}, v{ACC+2*i+1}")
    a(f"""
    v_permlane32_swap_b32 v{t}, v{t+2}
    v_permlane32_swap_b32 v{t+1}, v{t+3}
    buffer_store_dwordx4 {vr(t, 4)}, v{vOUT}, {sr4(S_OUT)}, s{sT2} offen
    v_permlane32_swap_b32 v{t+4}, v{t+6}
    v_permlane32_swap_b32 v{t+5}, v{t+7}
    buffer_store_dwordx4 {vr(t+4, 4)}, v{vOUT}, {sr4(S_OUT)}, s{sT2} offen offset:32
    """)
    amp_end(a, 'g')
    if "dbgt" in OPT:
        a(f"""
        s_cmp_ge_u32 s2, 7
        s_cbranch_scc1 k_end
        s_cmp_lg_u32 s{sW}, 4
        s_cbranch_scc1 k_end
        s_memtime s[90:91]
        s_memrealtime s[92:93]
        s_waitcnt lgkmcnt(0)
        s_sub_u32 s90, s90, s86
        s_sub_u32 s92, s92, s88
        v_mov_b32 v4, s90
        v_mov_b32 v5, s92
        s_lshl_b32 s3, s2, 3
        s_add_u32 s3, s3, 8
        buffer_store_dwordx2 v[4:5], v{vF1}, {sr4(S_DBG)}, s3 offen
        """)
    stamp_flush(a)
    a("s_endpgm")


def gen_attention(a):
    Q, O, S, KV, P, TMP = AQ, AO, AS, AKV, AP, ATMP
    vG, vM, vONE = avG, avM, avONE
    a.label("att_spin")
    fq_wait(a, "aq", 0)
    stamp(a, "x_go")
    o1, o2, vm, flat, o3 = att_loads()

    def k_fix(buf):
        return [f"v_cndmask_b32 v{KV+16*buf+6}, v{KV+16*buf+6}, v{vONE}, s[{sME}:{sME+1}]",
                f"v_cndmask_b32 v{KV+16*buf}, v{KV+16*buf}, v{vONE}, s[{sMO}:{sMO+1}]"]

    zer = [f"v_mov_b32 v{O+k}, 0" for k in range(12, 64)]
    for x in flat(o1):
        a(x)
    a(f"s_bitcmp1_b32 s{sOK}, 1\ns_cbranch_scc1 att_rp\ns_cmp_lg_u32 s{sW}, 0\ns_cbranch_scc1 att_rp")
    fq_issue(a)
    a.label("att_rp")
    step = len(zer) // len(o2) + 1
    zz = list(zer)
    for x in o2:
        for _ in range(step):
            if zz: a(zz.pop(0))
        for y in flat([x]):
            a(y)
    a("s_branch att_main2")
    a.label("att_main")
    for x in zer:
        a(x)
    a.label("att_main2")
    stamp(a, "x_main")
    a(f"s_bitcmp1_b32 s{sOK}, 1\ns_cbranch_scc1 att_lv\ns_cmp_lg_u32 s{sW}, 0\ns_cbranch_scc1 att_rd\ns_waitcnt vmcnt(4)")
    fq_eval(a)
    lds_set(a, 4, f"s{sT0}", vT0)
    a(f"s_mov_b32 s{sOK}, s{sT0}\ns_bitcmp1_b32 s{sOK}, 1\ns_cbranch_scc1 att_lv")
    fq_issue(a)
    a("s_branch att_np")
    a.label("att_rd")
    a(f"""
    v_mov_b32 v{vT0}, {CNT + 4}
    ds_read_b32 v{vT1}, v{vT0}
    s_waitcnt lgkmcnt(0)
    v_readfirstlane_b32 s{sOK}, v{vT1}
    s_bitcmp1_b32 s{sOK}, 1
    s_cbranch_scc0 att_np
    """)
    a.label("att_lv")
    for x in o3:
        a(x)
    a.label("att_np")
    a(f"""
    s_setprio 2
    s_lshl_b32 s{sT0}, s{sKQ}, 11
    s_add_u32 s{sT0}, s{sT0}, {QX}
    v_add_u32 v{TMP}, s{sT0}, v{vL16}
    v_subrev_u32 v{TMP+1}, {-MBOX}, v{TMP}
    ds_write_b128 v{TMP+1}, {vr(HBR, 4)}
    ds_write_b128 v{TMP+1}, {vr(HBR+4, 4)} offset:1024
    v_mov_b32 v{vT1}, 0
    s_and_b32 s{sT0}, s{sHEAD}, 1
    s_mov_b32 s{sME}, 0
    s_mov_b32 s{sMO+1}, 0
    s_sub_u32 s{sME+1}, s{sT0}, 1
    s_sub_u32 s{sMO}, 0, s{sT0}
    v_mov_b32 v{vONE}, 0x3f803f80
    v_mov_b32 v{TMP+1}, {CNT + 24}
    v_mov_b32 v{TMP+2}, 1
    s_waitcnt vmcnt({vm.wait({('q',), ('kv', 0, 1)}) + 6})
    s_bitcmp1_b32 s{sOK}, 1
    s_cbranch_scc1 att_w2
    s_waitcnt vmcnt({vm.wait({('q',), ('kv', 0, 1)})})
att_w2:
    v_cndmask_b32 v{Q}, v{Q}, v{vT1}, s[{sMO}:{sMO+1}]
    v_cndmask_b32 v{Q+1}, v{Q+1}, v{vT1}, s[{sMO}:{sMO+1}]
    v_cndmask_b32 v{Q+6}, v{Q+6}, v{vT1}, s[{sME}:{sME+1}]
    v_cndmask_b32 v{Q+7}, v{Q+7}, v{vT1}, s[{sME}:{sME+1}]
    {MFMA} {vr(S[1], 16)}, {vr(KV, 4)}, {vr(Q, 4)}, 0
    s_nop 0
    {MFMA} {vr(S[1], 16)}, {vr(KV+4, 4)}, {vr(Q+4, 4)}, {vr(S[1], 16)}
    """)
    stamp(a, "x_q")
    for x in k_fix(0):
        a(x)
    for k in range(12):
        a(f"v_mov_b32 v{O+k}, 0")
    s0 = S[1]
    a(f"""
    v_max3_f32 v{vM}, v{s0}, v{s0+1}, v{s0+2}
    v_max3_f32 v{vT0}, v{s0+3}, v{s0+4}, v{s0+5}
    v_max3_f32 v{vT2}, v{s0+6}, v{s0+7}, v{s0+8}
    v_max3_f32 v{vT3}, v{s0+9}, v{s0+10}, v{s0+11}
    v_max3_f32 v{vM}, v{vM}, v{s0+12}, v{s0+13}
    v_max3_f32 v{vT0}, v{vT0}, v{s0+14}, v{s0+15}
    v_max3_f32 v{vM}, v{vM}, v{vT2}, v{vT3}
    v_max_f32 v{vM}, v{vM}, v{vT0}
    v_mov_b32 v{vT0}, v{vM}
    s_nop 1
    v_permlane32_swap_b32 v{vM}, v{vT0}
    v_max_f32 v{vM}, v{vM}, v{vT0}
    v_sub_f32 v{vM}, 0, v{vM}
    v_cvt_pk_bf16_f32 v{vT0}, v{vM}, v{vM}
    v_lshlrev_b32 v{vT0}, 16, v{vT0}
    v_sub_f32 v{vT0}, v{vM}, v{vT0}
    v_cvt_pk_bf16_f32 v{vT0}, v{vM}, v{vT0}
    v_cndmask_b32 v{Q}, v{Q}, v{vT0}, s[{sMO}:{sMO+1}]
    v_cndmask_b32 v{Q+6}, v{Q+6}, v{vT0}, s[{sME}:{sME+1}]
    ds_write_b128 v{TMP}, {vr(Q, 4)}
    ds_write_b128 v{TMP}, {vr(Q+4, 4)} offset:1024
    {MFMA} {vr(S[0], 16)}, {vr(KV, 4)}, {vr(Q, 4)}, 0
    {MFMA} {vr(S[0], 16)}, {vr(KV+4, 4)}, {vr(Q+4, 4)}, {vr(S[0], 16)}
    s_waitcnt lgkmcnt(0)
    s_mov_b64 exec, 1
    ds_add_u32 v{TMP+1}, v{TMP+2}
    s_mov_b64 exec, -1
    """)
    a(f"s_bitcmp1_b32 s{sOK}, 1\ns_cbranch_scc1 att_hv")
    fq_wait(a, "av", 1, first_issued=True)
    for x in o3[:-1]:
        a(x)
    a.label("att_hv")
    stamp(a, "x_v")
    a(f"""
    s_mov_b64 exec, 1
    ds_add_u32 v{TMP+1}, v{TMP+2} offset:12
    s_mov_b64 exec, -1
    """)
    for x in kv_adv()[:3]:
        a(x)
    for i in range(4):
        a(f"v_mov_b32 v{P+4+i}, 0\nv_mov_b32 v{KV+16*3+12+i}, v{vONE}\nv_mov_b32 v{KV+16*3+8+i}, v{vONE}")
    for i in range(1, 4):
        a(f"""
        s_add_u32 s{sT0}, s{sKQ}, {i}
        s_and_b32 s{sT0}, s{sT0}, 3
        s_lshl_b32 s{sT0}, s{sT0}, 11
        s_add_u32 s{sT0}, s{sT0}, {QX}
        v_add_u32 v{TMP+2+i}, s{sT0}, v{vL16}
        s_add_u32 s{sT0}, s{sKQ}, {i}
        s_and_b32 s{sT0}, s{sT0}, 3
        s_mul_i32 s{sT0}, s{sT0}, 12288
        s_add_u32 s{sT0}, s{sT0}, {MERGE + (i-1) * 4096}
        v_add_u32 v{TMP+8+i-1}, s{sT0}, v{vL16}
        """)
    a(f"""
    s_mul_i32 s{sT0}, s{sKQ}, 12288
    s_add_u32 s{sT0}, s{sT0}, {MERGE}
    v_add_u32 v{TMP+11}, s{sT0}, v{vL16}
    v_mov_b32 v{TMP+12}, {CNT}
    v_mov_b32 v{TMP+13}, 1
    """)
    stamp(a, "x_qs")
    a.label("att_qsync")
    a(f"""
    ds_read_b32 v{TMP+2}, v{TMP+1}
    s_waitcnt lgkmcnt(0)
    v_cmp_gt_u32 vcc, 4, v{TMP+2}
    s_cbranch_vccnz att_qsync
    """)
    for i in range(1, 4):
        a(f"ds_read_b128 {vr(Q+8*i, 4)}, v{TMP+2+i}\nds_read_b128 {vr(Q+8*i+4, 4)}, v{TMP+2+i} offset:1024")
    a("s_waitcnt vmcnt(2) lgkmcnt(0)")
    a(f"s_mov_b32 s{sIT}, 0")
    stamp(a, "x_loop")
    vMW, vMR, vMC, vM1 = TMP + 8, TMP + 11, TMP + 12, TMP + 13

    def phase(ph, cur, prev, nxt, s_pv2=[], s_qk1=[], s_qk2=[], s_pv1=[], tail=[]):
        sc, sn = S[ph % 2], S[1 - ph % 2]
        e = [f"v_exp_f32 v{sc+i}, v{sc+i}" for i in range(16)]
        c = [f"v_cvt_pk_bf16_f32 v{P+i}, v{sc+2*i}, v{sc+2*i+1}" for i in range(8)]
        pv2 = f"{MFMA} {vr(O+16*prev[1], 16)}, {vr(KV+16*prev[0]+12, 4)}, {vr(P+4, 4)}, {vr(O+16*prev[1], 16)}"
        pv1 = f"{MFMA} {vr(O+16*cur[1], 16)}, {vr(KV+16*cur[0]+8, 4)}, {vr(P, 4)}, {vr(O+16*cur[1], 16)}"
        qk1, qk2 = [], []
        if nxt:
            qk1 = [f"{MFMA} {vr(sn, 16)}, {vr(KV+16*nxt[0], 4)}, {vr(Q+8*nxt[1], 4)}, 0"]
            qk2 = [f"{MFMA} {vr(sn, 16)}, {vr(KV+16*nxt[0]+4, 4)}, {vr(Q+8*nxt[1]+4, 4)}, {vr(sn, 16)}"]
        seq = e[0:2] + [pv2] + s_pv2 + e[2:5] + qk1 + s_qk1 + e[5:9] + c[0:4] + qk2 + s_qk2 + e[9:12] + [pv1] + s_pv1 + e[12:16] + tail + c[4:8]
        for x in seq:
            a(x)

    a.label("att_loop")
    for tb in range(4):
        for q in range(4):
            adv = kv_adv()
            s_pv2, s_qk1, s_qk2, s_pv1, tail = [], [], [], [], []
            s_qk1 += kv_load((tb + 3) % 4, q, (avV0, avV1))
            if q == 0:
                s_pv2.append(adv[3])
                s_qk2.append("s_waitcnt vmcnt(9)")
                s_pv1.append(adv[4])
            if q == 1:
                if tb == 0:
                    s_pv2.append(f"s_cmp_eq_u32 s{sIT}, 3")
                    s_qk2.append(f"s_cselect_b32 s{sKB}, {OOB}, s{sKB}")
                    s_pv1.append(f"s_cselect_b32 s{sVB}, {OOB}, s{sVB}")
                if tb == 3:
                    s_pv1.append(f"s_add_u32 s{sIT}, s{sIT}, 1")
            if q == 2:
                s_pv2.append(f"s_mul_i32 s{sT0}, s{sTI}, {TQ}")
                s_qk2.append(f"s_add_u32 s{sKS}, s{sT0}, s{sKB}")
                s_pv1.append("s_waitcnt vmcnt(9)")
                if tb == 2:
                    s_pv1.append(f"s_cmp_eq_u32 s{sIT}, 3")
                tail = k_fix((tb + 1) % 4)
            if q == 3:
                s_qk2.append(f"s_add_u32 s{sVS}, s{sT0}, s{sVB}")
            phase(4 * tb + q, (tb, q), (tb if q > 0 else (tb - 1) % 4, (q - 1) % 4), (tb if q < 3 else (tb + 1) % 4, (q + 1) % 4),
                  s_pv2, s_qk1, s_qk2, s_pv1, tail)
            if tb == 2 and q == 2:
                a("s_cbranch_scc1 att_peel")
    a("s_branch att_loop")
    a.label("att_peel")

    def mw(i, lo, hi):
        return [f"ds_write_b128 v{vMW+i-1}, {vr(O+16*i+4*k, 4)} offset:{1024*k}" for k in range(lo, hi)]
    sa = L(f"""
    s_lshl_b32 s{sT2}, s{sQB}, 2
    s_add_u32 s{sT2}, s{sT2}, s{sKQ}
    s_lshl_b32 s{sT2}, s{sT2}, 4
    s_add_u32 s{sT2}, s{sT2}, s{sHEAD}
    s_lshl_b32 s{sKB}, s{sT2}, 11
    s_add_u32 s{sKB}, s{sKB}, {OF}
    s_lshr_b32 s{sVB}, s{sT2}, 2
    s_lshl_b32 s{sVB}, s{sVB}, 7
    s_and_b32 s{sT2}, s{sT2}, 3
    s_lshl_b32 s{sT2}, s{sT2}, 2
    s_add_u32 s{sVB}, s{sVB}, s{sT2}
    s_add_u32 s{sVB}, s{sVB}, {FO}
    s_mov_b32 s{sT0}, {f32bits(2.0**-10):#x}
    s_mov_b32 s{sT1}, {f32bits(2.0**100):#x}
    """)
    phase(11, (2, 3), (2, 2), (3, 1), sa[0:1], sa[1:2], sa[2:3], sa[3:4])
    phase(12, (3, 1), (2, 3), (3, 2), sa[4:5], sa[5:6], ["s_waitcnt vmcnt(0)"], sa[6:7])
    phase(13, (3, 2), (3, 1), (3, 3), sa[7:8], sa[8:9], mw(1, 0, 2), mw(1, 2, 4))
    phase(14, (3, 3), (3, 2), (3, 0), sa[9:10], sa[10:11], mw(2, 0, 2), mw(2, 2, 4))
    phase(15, (3, 0), (3, 3), None, sa[11:14], [], ["s_nop 0"] + mw(3, 0, 4), [],
          ["s_waitcnt lgkmcnt(0)", "s_mov_b64 exec, 1", f"ds_add_u32 v{vMC}, v{vM1}", "s_mov_b64 exec, -1"])
    a(f"""
    v_cmp_lt_u32 s[18:19], 31, v{vLane}
    s_nop 0
    {MFMA} {vr(O, 16)}, {vr(KV+16*3+12, 4)}, {vr(P+4, 4)}, {vr(O, 16)}
    """)
    stamp(a, "x_lend")
    a.label("att_msync")
    a(f"""
    ds_read_b32 v{vT2}, v{vMC}
    s_waitcnt lgkmcnt(0)
    v_cmp_gt_u32 vcc, 4, v{vT2}
    s_cbranch_vccnz att_msync
    """)
    stamp(a, "x_msync")
    for i in range(12):
        a(f"ds_read_b128 {vr(O+16+4*i, 4)}, v{vMR} offset:{1024*i}")
    a("s_mov_b64 vcc, s[18:19]")
    for k in range(3):
        a(f"s_waitcnt lgkmcnt({8 - 4*k})")
        for i in range(16):
            a(f"v_add_f32 v{O+i}, v{O+i}, v{O+16+16*k+i}")
    C = O + 16
    a(f"""
    v_mov_b32 v{vT0}, v{O+12}
    v_mov_b32 v{vT1}, v{O+12}
    """)
    for k in range(4):
        a(f"v_mul_f32 v{C+k}, 0, v{O+4*k}")
    a(f"v_permlane32_swap_b32 v{vT0}, v{vT1}")
    for i in range(1, 4):
        for k in range(4):
            a(f"v_fma_f32 v{C+k}, v{O+4*k+i}, 0, v{C+k}")
    a(f"""
    v_rcp_f32 v{vT2}, v{vT1}
    v_add_f32 v{C}, v{C}, v{C+1}
    v_add_f32 v{C+2}, v{C+2}, v{C+3}
    v_add_f32 v{C}, v{C}, v{vT1}
    v_add_f32 v{C}, v{C}, v{C+2}
    v_cmp_le_f32 s[28:29], s{sT0}, v{C}
    v_cmp_ge_f32 s[16:17], s{sT1}, v{C}
    s_and_b64 s[28:29], s[28:29], s[16:17]
    s_cmp_eq_u64 s[28:29], -1
    s_cbranch_scc0 att_fallback
    """)
    a.label("att_final")
    a(f"""
    v_mov_b32 v{vT0}, 0
    """)
    for hh in range(2):
        for i in range(8):
            a(f"v_mul_f32 v{O+8*hh+i}, v{O+8*hh+i}, v{vT2}")
        for i in range(4):
            a(f"v_cvt_pk_bf16_f32 v{TMP+4*hh+i}, v{O+8*hh+2*i}, v{O+8*hh+2*i+1}")
        if hh == 1:
            a(f"v_cndmask_b32 v{TMP+6}, v{TMP+6}, v{vT0}, vcc\nv_cndmask_b32 v{TMP+7}, v{TMP+7}, v{vT0}, vcc")
        a(f"buffer_store_dwordx4 {vr(TMP+4*hh, 4)}, v{vL16}, {sr4(S_WS)}, s{sKB} offen offset:{1024*hh}{SC}")
    stamp(a, "x_ost")
    a("s_waitcnt vmcnt(0)")
    a(flag1(a, sVB))
    stamp(a, "x_b2")
    amp_end(a, 'a')
    stamp_flush(a)
    a("s_endpgm")

    a.label("att_fallback")
    sc = S[0]
    K, V = KV, KV + 8
    vMo, vMn, vAl = TMP, TMP + 1, TMP + 2
    a(f"""
    v_mov_b32 v{vT0}, 0
    v_mov_b32 v{vMo}, 0xff800000
    v_cndmask_b32 v{Q}, v{Q}, v{vT0}, s[{sMO}:{sMO+1}]
    v_cndmask_b32 v{Q+6}, v{Q+6}, v{vT0}, s[{sME}:{sME+1}]
    s_mov_b32 s{sIT}, 0
    s_lshl_b32 s{sKS}, s{sP0}, 9
    s_add_u32 s{sKS}, s{sKS}, {KF}
    s_mul_i32 s{sVS}, s{sHEAD}, 448
    s_add_u32 s{sVS}, s{sVS}, {VF}
    s_waitcnt vmcnt(0)
    """)
    for i in range(16):
        a(f"v_mov_b32 v{O+i}, 0")
    a.label("att_fb_loop")
    a(f"""
    buffer_load_dwordx4 {vr(K, 4)}, v{vL16}, {sr4(S_WS)}, s{sKS} offen{SC}
    buffer_load_dwordx4 {vr(K+4, 4)}, v{vL16}, {sr4(S_WS)}, s{sKS} offen offset:1024{SC}
    s_mov_b64 exec, s[{sVM}:{sVM+1}]
    buffer_load_dwordx4 {vr(V, 4)}, v{avV0}, {sr4(S_WS)}, s{sVS} offen{SC}
    buffer_load_dwordx4 {vr(V+4, 4)}, v{avV1}, {sr4(S_WS)}, s{sVS} offen{SC}
    s_mov_b64 exec, -1
    s_waitcnt vmcnt(0)
    {MFMA} {vr(sc, 16)}, {vr(K, 4)}, {vr(Q, 4)}, 0
    {MFMA} {vr(sc, 16)}, {vr(K+4, 4)}, {vr(Q+4, 4)}, {vr(sc, 16)}
    s_nop 15
    v_max3_f32 v{vMn}, v{vMo}, v{sc}, v{sc+1}
    """)
    for i in range(2, 16, 2):
        a(f"v_max3_f32 v{vMn}, v{vMn}, v{sc+i}, v{sc+i+1}")
    a(f"""
    v_mov_b32 v{vT0}, v{vMn}
    s_nop 1
    v_permlane32_swap_b32 v{vMn}, v{vT0}
    v_max_f32 v{vMn}, v{vMn}, v{vT0}
    v_sub_f32 v{vAl}, v{vMo}, v{vMn}
    v_exp_f32 v{vAl}, v{vAl}
    v_mov_b32 v{vMo}, v{vMn}
    """)
    for i in range(16):
        a(f"v_sub_f32 v{sc+i}, v{sc+i}, v{vMn}")
    for i in range(16):
        a(f"v_exp_f32 v{sc+i}, v{sc+i}")
    for i in range(16):
        a(f"v_mul_f32 v{O+i}, v{O+i}, v{vAl}")
    for i in range(8):
        a(f"v_cvt_pk_bf16_f32 v{P+i}, v{sc+2*i}, v{sc+2*i+1}")
    a(f"""
    s_nop 1
    {MFMA} {vr(O, 16)}, {vr(V, 4)}, {vr(P, 4)}, {vr(O, 16)}
    {MFMA} {vr(O, 16)}, {vr(V+4, 4)}, {vr(P+4, 4)}, {vr(O, 16)}
    s_add_u32 s{sKS}, s{sKS}, {TQ}
    s_add_u32 s{sVS}, s{sVS}, {TQ}
    s_add_u32 s{sIT}, s{sIT}, 1
    s_cmp_lt_u32 s{sIT}, 64
    s_cbranch_scc1 att_fb_loop
    s_nop 15
    v_mov_b32 v{vT0}, v{O+12}
    v_mov_b32 v{vT1}, v{O+12}
    s_nop 1
    v_permlane32_swap_b32 v{vT0}, v{vT1}
    v_rcp_f32 v{vT2}, v{vT1}
    s_nop 0
    s_branch att_final
    """)


def build():
    ref = open(f"cdna_kernels/{NAME}.s.ref").read().split("\n")
    hdr = [l for l in ref if l.startswith(";") and "@launch" not in l and "Override launch" not in l and "grid=ceil" not in l]
    body = gen()
    out = "\n".join(hdr) + "\n"
    out += f"; @launch grid=(256,1,1) block=(512,1,1) lds={LDS_BYTES}\n"
    out += '.amdgcn_target "amdgcn-amd-amdhsa--gfx950"\n.text\n'
    out += f".globl {KNAME}\n.p2align 8\n.type {KNAME},@function\n{KNAME}:\n"
    out += body
    out += f""".section .rodata,"a"
.p2align 6
.amdhsa_kernel {KNAME}
  .amdhsa_next_free_vgpr 256
  .amdhsa_next_free_sgpr 102
  .amdhsa_accum_offset 256
  .amdhsa_group_segment_fixed_size 0
  .amdhsa_kernarg_size 88
  .amdhsa_user_sgpr_count 2
  .amdhsa_user_sgpr_kernarg_segment_ptr 1
  .amdhsa_system_sgpr_workgroup_id_x 1
.end_amdhsa_kernel
"""
    return out


if __name__ == "__main__":
    path = sys.argv[1]
    open(path, "w").write(build())
    print("wrote", path)
```

```python
import math, struct, sys, os

NAME = "gated_mix__softmax_full_mha__swiglu_ffn__prompt"
KNAME = NAME + "_kernel"
INSTR = int(os.environ.get("INSTR", "0"))
OPT = os.environ.get("OPT", "nox")

QF = 0
KF = 2 << 20
VF = 4 << 20
TQ = 28672
HF = 6 << 20
OF = 14 << 20
GF = 16 << 20
FQ = (16 << 20) + 0x10000
FH = (16 << 20) + 0x20000
FHB = (16 << 20) + 0x28000
QX = 73728
MBOX = 32768 - QX
FO = (16 << 20) + 0x40000
TSF = 24 << 20
WS_BYTES = 32 << 20
OOB = 0x40000000
SLEEP_Q = int(os.environ.get('SLQ', '2'))
SLEEP_H = int(os.environ.get('SLH', '8'))
SLEEP_O = int(os.environ.get('SLO', '2'))
LOG2E = math.log2(math.e)
MFMA = "v_mfma_f32_32x32x16_bf16"
SC = " sc1"
SLOT = 40960
LDS_BYTES = 4 * SLOT
MERGE = 49152
CNT = 155648
SPIN_MAX = 1 << int(os.environ.get('SPINLOG', '20'))


def ring_addr(s):
    if s <= 6:
        return 98304 + s * 8192
    if s == 7:
        return 32768
    if s <= 11:
        return (s - 8) * 8192
    return 40960


def wslot(i):
    return i % 13 if i < 28 else [2, 3, 4, 5, 8, 9, 10, 11][i - 28]


def f32bits(x):
    return struct.unpack("<I", struct.pack("<f", x))[0]


class Asm:
    def __init__(self):
        self.lines = []

    def __call__(self, s):
        for ln in s.strip("\n").split("\n"):
            ln = ln.strip()
            if not ln:
                continue
            self.lines.append(ln if ln.endswith(":") else "    " + ln)

    def label(self, l):
        self.lines.append(l + ":")

    def text(self):
        return "\n".join(self.lines) + "\n"


def vr(base, n):
    return f"v[{base}:{base + n - 1}]"


def sr4(b):
    return f"s[{b}:{b+3}]"


def srd(a, sd, sb, nbytes):
    a(f"""
    s_mov_b32 s{sd}, s{sb}
    s_mov_b32 s{sd+1}, s{sb+1}
    s_mov_b32 s{sd+2}, {nbytes}
    s_mov_b32 s{sd+3}, 0x00020000
    """)


def L(s):
    return [l.strip() for l in s.strip("\n").split("\n") if l.strip()]


HA_ST = int(os.environ.get('HA_ST', '13'))
EARLY_P = int(os.environ.get('EARLY_P', '27'))
QKB = int(os.environ.get('QKB', '11'))
FPER = int(os.environ.get('FPER', '4'))
PF2_ST = int(os.environ.get('PF2_ST', '0'))
PF3_ST = int(os.environ.get('PF3_ST', '2'))
GDA = int(os.environ.get('GDA', '10'))
AROT = int(os.environ.get('AROT', '15'))
WP_ST = int(os.environ.get('WP_ST', '5'))
FA_AT = int(os.environ.get('FA_AT', '52'))
PFPOS = int(os.environ.get('PFPOS', '1'))
PF_EARLY = int(os.environ.get('PF_EARLY', '2'))
PFROW = int(os.environ.get('PFROW', '192'))
NQ = (448 - PFROW) * 2688 // 1024
NG = (448 - PFROW) * 3584 // 2048
assert NQ + 2 * NG <= 2048
TLB_STR = int(os.environ.get('TLB_STR', str(1 << 20)))
TLB_WG = int(os.environ.get('TLB_WG', '0'))
CPW = int(os.environ.get('CPW', '28'))
GPRE = int(os.environ.get('GPRE', '4'))
GB_AT = int(os.environ.get('GB_AT', '7'))

S_X, S_B0, S_G, S_U, S_WS, S_TMP, S_WD, S_DBG = 4, 8, 12, 16, 20, 24, 28, 32
S_WO, S_OUT = 8, 12
sMI, sJ, sW, sR, sGRP = 36, 37, 38, 39, 40
sKQ = 39
sT0, sT1, sT2 = 42, 43, 44
sMX, sMB, sSO = 45, 46, 47
sSC, sTILE, sHOFF, sHOFF2, sQKO = 48, 49, 50, 51, 52
sWB, sM0, sFHO, sFQB, sP0, sOK = 53, 54, 55, 56, 57, 58
sNONCE, sNL2E, sC8, sI32, sSPIN = 59, 60, 61, 62, 63
P_X, P_WQKV, P_WO, P_WG, P_WU, P_WD, P_GW, P_OUT, P_DBG, P_WS = 64, 66, 68, 72, 74, 76, 78, 80, 82, 84
ST0 = 86
sHEAD, sQB, sMT, sNT = 70, 71, 41, 3
sFHA = 65
vLane, vL16 = 1, 2
vT0, vT1, vT2, vT3 = 3, 4, 5, 6
STAMPS = os.environ.get("STAMPS", "").split(",")[:6]


AMP = os.environ.get("AMP", "")


def stamp(a, name):
    if AMP and name == "start": a("s_memrealtime s[86:87]")
    if AMP and name == AMP: a("s_memrealtime s[88:89]")
    if INSTR and (name == "start" or name in STAMPS):
        idx = 0 if name == "start" else 1 + STAMPS.index(name)
        a(f"s_memtime s[{ST0+2*idx}:{ST0+2*idx+1}]")
    if INSTR and "R" + name in STAMPS:
        idx = 1 + STAMPS.index("R" + name)
        a(f"s_memrealtime s[{ST0+2*idx}:{ST0+2*idx+1}]")


def amp_end(a, tag):
    if not AMP: return
    stamp(a, "end")
    a(f"""
    s_cmp_lg_u32 s2, {os.environ.get("AMPG", "40")}
    s_cbranch_scc1 k_end
    s_cmp_lg_u32 s{sW}, {os.environ.get("AMPW", "4")}
    s_cbranch_scc1 k_end
    s_memrealtime s[90:91]
    s_waitcnt lgkmcnt(0)
    s_sub_u32 s88, s88, s86
    s_mul_i32 s88, s88, {os.environ.get('AMPK', '1')}
    """)
    a.label(f"amp_spin{tag}")
    a(f"""
    s_memrealtime s[92:93]
    s_waitcnt lgkmcnt(0)
    s_sub_u32 s92, s92, s90
    s_cmp_lt_u32 s92, s88
    s_cbranch_scc1 amp_spin{tag}
    """)


def stamp_flush(a, vtmp=3):
    if not INSTR:
        return
    a(f"""
    s_memtime s[4:5]
    s_memrealtime s[6:7]
    s_lshl_b32 s3, s2, 3
    s_add_u32 s3, s3, s{sW}
    s_lshl_b32 s3, s3, 7
    s_add_u32 s3, s3, {TSF}
    v_mov_b32 v{vtmp+1}, 0
    s_waitcnt lgkmcnt(0)
    """)
    regs = [ST0 + 2 * i for i in range(8)] + [4, 6]
    for i, r in enumerate(regs):
        a(f"""
        v_mov_b32 v{vtmp}, s{r}
        buffer_store_dword v{vtmp}, v{vtmp+1}, {sr4(S_WS)}, s3 offen offset:{4*i}
        s_nop 1
        """)


def flag_store(a, soff_reg, vtmp):
    a(f"""
    v_mov_b32 v{vtmp}, s{sNONCE}
    v_mov_b32 v{vtmp+1}, 0
    s_mov_b64 exec, 1
    buffer_store_dword v{vtmp}, v{vtmp+1}, {sr4(S_WS)}, s{soff_reg} offen{SC}
    s_mov_b64 exec, -1
    """)


_uid = [0]


def poll(a, addrs, soff, vtmp, sleep):
    _uid[0] += 1
    u = _uid[0]
    a(f"s_mov_b32 s{sSPIN}, {SPIN_MAX}")
    a.label(f"poll_ld{u}")
    for i, va in enumerate(addrs):
        a(f"buffer_load_dword v{vtmp+i}, v{va}, {sr4(S_WS)}, s{soff} offen{SC}")
    a("s_waitcnt vmcnt(0)")
    poll_cmp(a, len(addrs), vtmp)
    a(f"""
    s_sub_u32 s{sSPIN}, s{sSPIN}, 1
    s_cbranch_scc1 poll_done{u}
    s_cmp_eq_u64 vcc, 0
    s_cbranch_scc1 poll_done{u}
    s_sleep {sleep}
    s_branch poll_ld{u}
    """)
    a.label(f"poll_done{u}")


def poll_cmp(a, n, vtmp):
    if n == 1:
        a(f"v_cmp_ne_u32 vcc, s{sNONCE}, v{vtmp}")
    else:
        a(f"""
        v_xor_b32 v{vtmp}, s{sNONCE}, v{vtmp}
        v_xor_b32 v{vtmp+1}, s{sNONCE}, v{vtmp+1}
        v_or_b32 v{vtmp}, v{vtmp}, v{vtmp+1}
        v_cmp_ne_u32 vcc, 0, v{vtmp}
        """)


def lds_set(a, off, val, vtmp):
    a(f"""
    v_mov_b32 v{vtmp}, {CNT + off}
    v_mov_b32 v{vtmp+1}, {val}
    ds_write_b32 v{vtmp}, v{vtmp+1}
    """)


def lds_wait(a, off, vtmp, cond, sleep=1):
    _uid[0] += 1
    u = _uid[0]
    a(f"v_mov_b32 v{vtmp}, {CNT + off}")
    a.label(f"lw{u}")
    a(f"""
    ds_read_b32 v{vtmp+1}, v{vtmp}
    s_waitcnt lgkmcnt(0)
    v_readfirstlane_b32 s{sT0}, v{vtmp+1}
    """)
    a(f"s_cmp_lg_u32 s{sT0}, 0" if cond == "ne0" else f"s_cmp_eq_u32 s{sT0}, {cond[2:]}")
    a(f"""
    s_cbranch_scc1 lwd{u}
    s_sleep {sleep}
    s_branch lw{u}
    """)
    a.label(f"lwd{u}")


class VM:
    def __init__(self):
        self.q = []

    def add(self, tag):
        self.q.append(tag)

    def wait(self, tags, counts=None):
        idx = max([i for i, t in enumerate(self.q) if t in tags], default=-1)
        for t in tags:
            assert t in self.q, (t, self.q)
            if counts:
                assert self.q.count(t) == counts(t), (t, self.q)
        n = len(self.q) - 1 - idx
        assert n <= 63
        return n

    def copy(self):
        v = VM(); v.q = list(self.q); return v


vFLA, vPOL, vFQO, vF1, vNON = 7, 9, 11, 12, 13
vDW = 31


def flag1(a, soff):
    return f"buffer_store_dword v{vNON}, v{vF1}, {sr4(S_WS)}, s{soff} offen{SC}"


AQ, AO, AS, AKV, AP, ATMP = 16, 48, [112, 128], 144, 208, 224
avG, avM, avONE = 14, 15, 216
sME, sMO = 24, 26
sKB, sVB, sTI, sKS, sVS, sIT = 45, 46, 47, 48, 52, 49


avV0, avV1 = 14, 11
HBR = 240


def hb_stores():
    return [f"buffer_store_dwordx4 {vr(HBR+4*i, 4)}, v{vL16}, {sr4(S_WS)}, s{sHOFF2} offen offset:{1024*i}{SC}" for i in range(2)]

sVM = 30


def kv_adv():
    return [f"s_mul_i32 s{sVS}, s{sTI}, {TQ}", f"s_add_u32 s{sKS}, s{sVS}, s{sKB}",
            f"s_add_u32 s{sVS}, s{sVS}, s{sVB}",
            f"s_add_u32 s{sTI}, s{sTI}, 1", f"s_and_b32 s{sTI}, s{sTI}, 15"]


def kv_load(buf, part, vv=(None, None)):
    if part < 2:
        return [f"buffer_load_dwordx4 {vr(AKV+16*buf+4*part, 4)}, v{vL16}, {sr4(S_WS)}, s{sKS} offen offset:{1024*part}{SC}"]
    return [f"s_mov_b64 exec, s[{sVM}:{sVM+1}]",
            f"buffer_load_dwordx4 {vr(AKV+16*buf+4*part, 4)}, v{vv[part-2]}, {sr4(S_WS)}, s{sVS} offen{SC}",
            "s_mov_b64 exec, -1"]


def att_loads():
    vm = VM()
    o1 = L(f"""
    s_mov_b32 s{sOK}, s{sT0}
    s_lshl_b32 s{sT1}, s{sP0}, 9
    s_lshl_b32 s{sT2}, s{sQB}, 2
    s_add_u32 s{sT2}, s{sT2}, s{sKQ}
    s_mul_i32 s{sT0}, s{sT2}, {TQ}
    s_add_u32 s{sT0}, s{sT0}, s{sT1}
    buffer_load_dwordx4 {vr(AQ, 4)}, v{vL16}, {sr4(S_WS)}, s{sT0} offen{SC}
    buffer_load_dwordx4 {vr(AQ+4, 4)}, v{vL16}, {sr4(S_WS)}, s{sT0} offen offset:1024{SC}
    s_mul_i32 s{sVB}, s{sKQ}, {16 * TQ}
    s_add_u32 s{sKB}, s{sVB}, s{sT1}
    s_add_u32 s{sKB}, s{sKB}, {KF}
    s_mul_i32 s{sT0}, s{sHEAD}, 448
    s_add_u32 s{sVB}, s{sVB}, s{sT0}
    s_add_u32 s{sVB}, s{sVB}, {VF}
    s_and_b32 s{sTI}, s{sQB}, {AROT}
    s_mov_b32 s{sVM}, 0x0fffffff
    s_mov_b32 s{sVM+1}, 0x0fffffff
    v_lshrrev_b32 v{avV0}, 5, v{vLane}
    v_mul_u32_u24 v{avV0}, {7168 - 512}, v{avV0}
    v_add_u32 v{avV0}, v{avV0}, v{vL16}
    v_add_u32 v{avV1}, 14336, v{avV0}
    """)
    vm.add(("q",)); vm.add(("q",))
    o2, o3 = [], []
    for t in range(3):
        o = o1 if t == 0 else o2
        o += [f"s_add_u32 s{sT0}, s{sTI}, {t}", f"s_and_b32 s{sT0}, s{sT0}, 15", f"s_mul_i32 s{sKS}, s{sT0}, {TQ}", f"s_add_u32 s{sKS}, s{sKS}, s{sKB}"]
        for p in range(2):
            o.append(kv_load(t, p))
            vm.add(("kv", t, p))
        o2 += [f"v_mov_b32 v{AKV+16*t+8+i}, 0x3f803f80" for i in range(8)]
    o3.append(f"s_mov_b64 exec, s[{sVM}:{sVM+1}]")
    for t in range(3):
        o3 += [f"s_mul_i32 s{sVS}, s{sTI}, {TQ}", f"s_add_u32 s{sVS}, s{sVS}, s{sVB}", f"s_add_u32 s{sTI}, s{sTI}, 1", f"s_and_b32 s{sTI}, s{sTI}, 15"]
        for p in range(2, 4):
            o3.append(kv_load(t, p, (avV0, avV1))[1])
    o3.append("s_mov_b64 exec, -1")
    flat = lambda o: [y for x in o for y in (x if isinstance(x, list) else [x])]
    return o1, o2, vm, flat, o3


def fq_eval(a):
    a(f"""
    v_cmp_ne_u32 vcc, s{sNONCE}, v{vPOL}
    v_cmp_ne_u32 s[16:17], s{sNONCE}, v{vPOL+1}
    s_nop 0
    s_or_b32 s{sT0}, vcc_lo, s16
    s_cselect_b32 s{sT0}, 4, 5
    s_cmp_eq_u32 vcc_hi, 0
    s_cselect_b32 s{sT1}, 2, 0
    s_or_b32 s{sT0}, s{sT0}, s{sT1}
    """)


def fq_issue(a):
    a(f"""
    buffer_load_dword v{vPOL}, v{vFLA}, {sr4(S_WS)}, s{sFQB} offen{SC}
    buffer_load_dword v{vPOL+1}, v{vFLA+1}, {sr4(S_WS)}, s{sFQB} offen{SC}
    """)


def fq_wait(a, tag, bit, first_issued=False):
    a(f"s_cmp_lg_u32 s{sW}, 0\ns_cbranch_scc1 {tag}_lw\ns_mov_b32 s{sSPIN}, {SPIN_MAX}")
    if first_issued:
        a(f"s_branch {tag}_chk")
    a.label(f"{tag}_ld")
    fq_issue(a)
    a.label(f"{tag}_chk")
    a("s_waitcnt vmcnt(0)")
    fq_eval(a)
    a(f"""
    s_sub_u32 s{sSPIN}, s{sSPIN}, 1
    s_cselect_b32 s{sT0}, 7, s{sT0}
    s_bitcmp1_b32 s{sT0}, {bit}
    s_cbranch_scc1 {tag}_ok
    s_sleep {SLEEP_Q}
    s_branch {tag}_ld
    """)
    a.label(f"{tag}_ok")
    lds_set(a, 4, f"s{sT0}", vT0)
    a(f"s_branch {tag}_go")
    a.label(f"{tag}_lw")
    a(f"v_mov_b32 v{vT0}, {CNT + 4}")
    a.label(f"{tag}_lw2")
    a(f"""
    ds_read_b32 v{vT1}, v{vT0}
    s_waitcnt lgkmcnt(0)
    v_readfirstlane_b32 s{sT0}, v{vT1}
    s_bitcmp1_b32 s{sT0}, {bit}
    s_cbranch_scc1 {tag}_go
    s_sleep 1
    s_branch {tag}_lw2
    """)
    a.label(f"{tag}_go")


def wk_off(i):
    return 8 * (i % 14) + 4 * (i // 14)


def gen():
    a = Asm()
    vDX0, vDX1, vDB0, vDG, vDU = 7, 8, 9, 10, 11
    vAX = 14
    vAW = 18
    vST = 22
    vN, vR4, vC, vRow = 26, 27, 28, 29
    X, ACC, WF = 32, 144, 224
    PFR, vPFL, sPFI = ACC + 60, 30, 58

    stamp(a, "start")
    if INSTR: a("s_memrealtime s[100:101]")
    if "dbgt" in OPT: a("s_memtime s[86:87]\ns_memrealtime s[88:89]")
    a(f"""
    s_cmp_ge_u32 s2, 256
    s_cbranch_scc1 k_end
    """)
    if os.environ.get("DELAY"):
        a(f"""
        s_cmp_lg_u32 s2, {os.environ["DELAY"]}
        s_cbranch_scc1 k_nodelay
        s_mov_b32 s3, 12
        """)
        a.label("k_delay")
        a("s_sleep 100\ns_sub_u32 s3, s3, 1\ns_cmp_lg_u32 s3, 0\ns_cbranch_scc1 k_delay")
        a.label("k_nodelay")
    a(f"""
    s_load_dwordx16 s[64:79], s[0:1], 0
    s_load_dwordx4 s[80:83], s[0:1], 64
    s_load_dwordx2 s[84:85], s[0:1], 80
    v_and_b32 v{vLane}, 63, v0
    v_lshrrev_b32 v{vT0}, 6, v0
    s_and_b32 s{sC8}, s2, 7
    s_lshr_b32 s{sI32}, s2, 3
    v_readfirstlane_b32 s{sW}, v{vT0}
    s_lshr_b32 s{sT1}, s{sC8}, 1
    s_mul_i32 s{sT0}, s{sT1}, 28
    s_sub_u32 s{sT0}, s{sT0}, 4
    s_lshl_b32 s{sT1}, s{sT1}, 2
    s_add_u32 s{sT1}, s{sT1}, 112
    s_cmp_lt_u32 s{sI32}, 4
    s_cselect_b32 s{sT0}, s{sT1}, s{sT0}
    s_add_u32 s{sT0}, s{sT0}, s{sI32}
    s_lshr_b32 s{sJ}, s{sT0}, 3
    s_and_b32 s{sT0}, s{sT0}, 7
    s_and_b32 s{sMI}, s{sC8}, 1
    s_lshl_b32 s{sMI}, s{sMI}, 3
    s_add_u32 s{sMI}, s{sMI}, s{sT0}
    v_lshrrev_b32 v{vT0}, 3, v{vLane}
    v_lshrrev_b32 v{vT1}, 4, v{vLane}
    v_and_b32 v{vT2}, 7, v{vLane}
    v_xor_b32 v{vT3}, v{vT2}, v{vT1}
    s_lshl_b32 s{sT0}, s{sMI}, 7
    s_lshl_b32 s{sT1}, s{sW}, 4
    s_add_u32 s{sT0}, s{sT0}, s{sT1}
    v_add_u32 v{vDX0}, s{sT0}, v{vT0}
    v_mul_u32_u24 v{vDX0}, 896, v{vDX0}
    v_lshl_add_u32 v{vDX0}, v{vT3}, 4, v{vDX0}
    v_xor_b32 v{vDX1}, 64, v{vDX0}
    v_add_u32 v{vDX1}, 7168, v{vDX1}
    v_and_b32 v{vT3}, 1, v{vT1}
    v_lshlrev_b32 v{vT3}, 2, v{vT3}
    v_xor_b32 v{vT3}, v{vT3}, v{vT2}
    v_lshlrev_b32 v{vT3}, 4, v{vT3}
    v_mul_u32_u24 v{vDW}, 896, v{vT0}
    v_add_u32 v{vDW}, v{vDW}, v{vT3}
    s_lshl_b32 s{sT0}, s{sW}, 3
    v_add_u32 v{vT0}, s{sT0}, v{vT0}
    v_mul_u32_u24 v{vDB0}, 2688, v{vT0}
    v_add_u32 v{vDB0}, v{vDB0}, v{vT3}
    s_lshl_b32 s{sMX}, s{sW}, 11
    s_lshl_b32 s{sMB}, s{sW}, 10
    s_add_u32 s{sMB}, s{sMB}, 16384
    v_lshlrev_b32 v{vL16}, 4, v{vLane}
    s_mov_b32 s{S_X+2}, {2048 * 448 * 2}
    s_mov_b32 s{S_X+3}, 0x00020000
    s_mov_b32 s{S_B0+2}, {448 * 1344 * 2}
    s_mov_b32 s{S_B0+3}, 0x00020000
    s_mov_b32 s{S_G+3}, 0x00020000
    s_mov_b32 s{S_U+3}, 0x00020000
    s_cmp_ge_u32 s{sJ}, 14
    s_cbranch_scc1 k1_v
    """)

    vm = None

    def emit_group(g):
        for l in g[0]:
            a(l)
        vm.add(g[1])

    def dma(m0base, m0off, vaddr, srdb, soff):
        return [f"s_add_u32 m0, s{m0base}, {m0off & 0xffffffff}", f"s_mov_b32 s{sSO}, {soff}",
                f"buffer_load_dwordx4 v{vaddr}, {sr4(srdb)}, s{sSO} offen lds"]

    def pf1(tg):
        if "nopf" in OPT.split(","):
            return
        a(f"""
        s_lshl_b32 s{sPFI}, s2, 3
        s_add_u32 s{sPFI}, s{sPFI}, s{sW}
        s_lshl_b32 s{sT0}, s{sPFI}, 10
        s_mov_b32 s{S_TMP+3}, 0x00020000
        v_lshrrev_b32 v{vPFL}, 3, v{vLane}
        v_lshlrev_b32 v{vPFL}, 7, v{vPFL}
        v_add_u32 v{vPFL}, v{vPFL}, v{vL16}
        """)
        if "nox" not in OPT:
            a(f"buffer_load_dwordx4 {vr(PFR, 4)}, v{vL16}, {sr4(S_X)}, s{sT0} offen")
            vm.add(("PF",))
        if "now1" in OPT:
            return
        a(f"""
        s_cmp_lt_u32 s{sPFI}, {NQ}
        s_cbranch_scc1 k_pf_q_{tg}
        s_cmp_lt_u32 s{sPFI}, {NQ + NG}
        s_cselect_b32 s{S_TMP}, s{P_WG}, s{P_WU}
        s_cselect_b32 s{S_TMP+1}, s{P_WG+1}, s{P_WU+1}
        s_cselect_b32 s{sT0}, 0, {NG}
        s_mov_b32 s{S_TMP+2}, {448 * 1792 * 2}
        s_sub_u32 s{sT0}, s{sPFI}, s{sT0}
        s_lshl_b32 s{sT0}, s{sT0}, 11
        s_add_u32 s{sT0}, s{sT0}, {(PFROW * 3584 - NQ * 2048) & 0xffffffff}
        buffer_load_dwordx4 {vr(PFR+4, 4)}, v{vPFL}, {sr4(S_TMP)}, s{sT0} offen
        s_branch k_pf_d_{tg}
        """)
        a.label(f"k_pf_q_{tg}")
        a(f"""
        s_add_u32 s{sT0}, s{sT0}, {PFROW * 2688}
        buffer_load_dwordx4 {vr(PFR+4, 4)}, v{vL16}, {sr4(S_B0)}, s{sT0} offen
        """)
        a.label(f"k_pf_d_{tg}")
        vm.add(("PF",))

    def common_setup2(tg):
        srd(a, S_WS, P_WS, WS_BYTES)
        srd(a, S_DBG, P_DBG, 256)
        srd(a, S_WD, P_WD, 1792 * 448 * 2)
        a(f"""
        s_or_b32 s{sT0}, s2, s{sW}
        s_cmp_lg_u32 s{sT0}, 0
        s_cbranch_scc1 k_nononce_{tg}
        s_memrealtime s[{sSC}:{sSC+1}]
        v_mov_b32 v{vT1}, 0
        s_waitcnt lgkmcnt(0)
        s_or_b32 s{sT0}, s{sSC}, 0x80000000
        v_mov_b32 v{vT0}, s{sT0}
        s_mov_b64 exec, 1
        buffer_store_dword v{vT0}, v{vT1}, {sr4(S_DBG)}, 0 offen{SC}
        s_mov_b64 exec, -1
        """)
        a.label(f"k_nononce_{tg}")
        if not PFPOS:
            pf1(tg)
        if PF_EARLY:
            for g in (([] if 'no2' in OPT else [pf2()]) + ([pf3()] if PF_EARLY == 2 else [])):
                emit_group(g)
        if "tlb" in OPT:
            a(f"""
            s_cmp_lg_u32 s{sW}, 1
            s_cbranch_scc1 k_notlb_{tg}
            s_mov_b32 s{sT0}, {TLB_STR}
            v_mul_lo_u32 v{vT0}, v{vLane}, s{sT0}
            s_mul_i32 s{sT1}, s{sI32}, {TLB_WG}
            s_mov_b32 s{S_TMP}, s{P_WS}
            s_mov_b32 s{S_TMP+1}, s{P_WS+1}
            s_mov_b32 s{S_TMP+2}, {(16 << 20) + 0x50000}
            s_mov_b32 s{S_TMP+3}, 0x00020000
            buffer_load_dword v{ACC+76}, v{vT0}, {sr4(S_TMP)}, s{sT1} offen
            s_mov_b32 s{S_TMP}, s{P_OUT}
            s_mov_b32 s{S_TMP+1}, s{P_OUT+1}
            s_mov_b32 s{S_TMP+2}, {2048 * 448 * 2}
            buffer_load_dword v{ACC+77}, v{vT0}, {sr4(S_TMP)}, s{sT1} offen
            """)
            a.label(f"k_notlb_{tg}")
        if "nocp" not in OPT:
            a(f"""
            s_sub_u32 s{sT0}, s{sI32}, {CPW}
            s_cmp_ge_u32 s{sT0}, 4
            s_cbranch_scc1 k_nocp_{tg}
            s_lshl_b32 s{sT0}, s{sT0}, 3
            s_add_u32 s{sT0}, s{sT0}, s{sW}
            s_lshl_b32 s{sT0}, s{sT0}, 10
            v_add_u32 v{vT0}, s{sT0}, v{vL16}
            v_min_u32 v{vT0}, k_end-{KNAME}-12, v{vT0}
            s_getpc_b64 s[{sSC}:{sSC+1}]
            """)
            a.label(f"k_pc_{tg}")
            a(f"""
            s_sub_u32 s{sSC}, s{sSC}, k_pc_{tg}-{KNAME}
            s_subb_u32 s{sSC+1}, s{sSC+1}, 0
            v_mov_b32 v{vT2}, s{sSC+1}
            v_add_co_u32 v{vT1}, vcc, s{sSC}, v{vT0}
            s_nop 1
            v_addc_co_u32 v{vT2}, vcc, 0, v{vT2}, vcc
            global_load_dwordx4 {vr(ACC+76, 4)}, v[{vT1}:{vT2}], off
            """)
            a.label(f"k_nocp_{tg}")
        a(f"""
        s_and_b32 s{sR}, s{sW}, 3
        s_lshr_b32 s{sGRP}, s{sW}, 2
        s_lshl_b32 s{sTILE}, s{sMI}, 2
        s_add_u32 s{sTILE}, s{sTILE}, s{sR}
        v_and_b32 v{vT0}, 31, v{vLane}
        v_lshrrev_b32 v{vT1}, 5, v{vLane}
        v_bfe_u32 v{vT2}, v{vLane}, 1, 3
        v_xor_b32 v{vT2}, v{vT2}, v{vT1}
        s_lshl_b32 s{sT0}, s{sR}, 12
        v_lshlrev_b32 v{vT3}, 7, v{vT0}
        v_lshl_add_u32 v{vT3}, v{vT2}, 4, v{vT3}
        v_add_u32 v{vAX}, s{sT0}, v{vT3}
        v_xor_b32 v{vAX+1}, 32, v{vAX}
        v_xor_b32 v{vAX+2}, 64, v{vAX}
        v_xor_b32 v{vAX+3}, 96, v{vAX}
        v_bfe_u32 v{vN}, v{vLane}, 4, 1
        v_bfe_u32 v{vR4}, v{vLane}, 2, 2
        v_and_b32 v{vC}, 3, v{vLane}
        v_lshl_add_u32 v{vRow}, v{vT1}, 3, v{vR4}
        v_and_b32 v{vT2}, 2, v{vR4}
        v_xor_b32 v{vT2}, v{vT2}, v{vN}
        s_lshl_b32 s{sT0}, s{sGRP}, 1
        v_xor_b32 v{vT2}, s{sT0}, v{vT2}
        v_lshlrev_b32 v{vT3}, 7, v{vRow}
        v_lshl_add_u32 v{vT3}, v{vT2}, 5, v{vT3}
        v_lshl_add_u32 v{vT3}, v{vC}, 3, v{vT3}
        v_add_u32 v{vAW}, 16384, v{vT3}
        s_mov_b32 s{sNL2E}, {f32bits(-LOG2E):#x}
        """)

    def flag_addr(vtype, vfla, vfqo):
        t0, t1, t2, t3 = vN, vR4, vC, vRow
        o = L(f"""
        s_lshl_b32 s{sHEAD}, s{sC8}, 1
        s_and_b32 s{sT2}, s{sI32}, 1
        s_add_u32 s{sHEAD}, s{sHEAD}, s{sT2}
        s_lshr_b32 s{sQB}, s{sI32}, 1
        s_lshl_b32 s{sMT}, s{sC8}, 2
        s_and_b32 s{sT2}, s{sI32}, 3
        s_add_u32 s{sMT}, s{sMT}, s{sT2}
        s_lshr_b32 s{sNT}, s{sI32}, 2
        s_mul_i32 s{sP0}, s{sHEAD}, 7
        s_lshr_b32 s{sP0}, s{sP0}, 1
        s_lshl_b32 s{sFQB}, s{sHEAD}, 12
        s_add_u32 s{sFQB}, s{sFQB}, {FQ}
        s_lshr_b32 s{sT1}, s{sQB}, 2
        s_lshl_b32 s{sT1}, s{sT1}, 7
        s_and_b32 s{sT2}, s{sQB}, 3
        s_lshl_b32 s{sT2}, s{sT2}, 2
        s_add_u32 s{sT1}, s{sT1}, s{sT2}
        s_add_u32 s{sT1}, s{sT1}, 2048
        v_lshrrev_b32 v{t0}, 2, v{vLane}
        v_and_b32 v{t1}, 3, v{vLane}
        v_lshlrev_b32 v{t1}, 2, v{t1}
        v_lshl_add_u32 v{vfla}, v{t0}, 7, v{t1}
        v_and_b32 v{t0}, 1, v{vLane}
        v_lshl_add_u32 v{vfla+1}, v{t0}, 9, s{sT1}
        v_and_b32 v{t0}, 15, v{vLane}
        v_lshrrev_b32 v{t1}, 4, v{vLane}
        v_lshlrev_b32 v{t3}, 12, v{t0}
        v_lshl_add_u32 v{t3}, v{t1}, 9, v{t3}
        s_lshr_b32 s{sT1}, s{sMI}, 2
        s_lshl_b32 s{sT1}, s{sT1}, 7
        s_and_b32 s{sT2}, s{sMI}, 3
        s_lshl_b32 s{sT2}, s{sT2}, 2
        s_add_u32 s{sT1}, s{sT1}, s{sT2}
        """)
        if not vtype:
            o += L(f"""
            s_add_u32 s{sT2}, s{sJ}, 1
            s_lshr_b32 s{sT2}, s{sT2}, 3
            v_mul_u32_u24 v{t2}, 7, v{t0}
            v_lshrrev_b32 v{t2}, 1, v{t2}
            v_mad_u32_u24 v{t2}, v{t1}, 3, v{t2}
            v_lshrrev_b32 v{t2}, 3, v{t2}
            v_lshrrev_b32 v{t1}, 1, v{t1}
            v_lshl_add_u32 v{t2}, v{t1}, 6, v{t2}
            v_mad_u32_u24 v{t2}, s{sT2}, 7, v{t2}
            v_cmp_eq_u32 vcc, s{sJ}, v{t2}
            s_lshl_b32 s{sT2}, s{sT2}, 11
            s_sub_u32 s{sT1}, s{sT1}, s{sT2}
            s_add_u32 s{sT1}, s{sT1}, 2048
            """)
        else:
            o += L(f"""
            v_add_u32 v{t2}, 14, v{t1}
            v_cmp_eq_u32 vcc, s{sJ}, v{t2}
            s_add_u32 s{sT1}, s{sT1}, 1024
            """)
        o += L(f"""
        v_add_u32 v{t3}, s{sT1}, v{t3}
        v_mov_b32 v{t0}, {OOB}
        v_cndmask_b32 v{vfqo}, v{t0}, v{t3}, vcc
        v_cmp_eq_u32 vcc, 0, v{vLane}
        s_lshr_b32 s{sFHO}, s{sTILE}, 1
        s_lshl_b32 s{sFHO}, s{sFHO}, 10
        v_cndmask_b32 v{vF1}, v{t0}, v{vLane}, vcc
        s_lshr_b32 s{sT1}, s{sJ}, 1
        s_lshl_b32 s{sT1}, s{sT1}, 7
        s_add_u32 s{sFHO}, s{sFHO}, s{sT1}
        s_and_b32 s{sT1}, s{sJ}, 1
        s_lshl_b32 s{sT1}, s{sT1}, 3
        s_add_u32 s{sFHO}, s{sFHO}, s{sT1}
        s_and_b32 s{sT1}, s{sR}, 1
        s_lshl_b32 s{sT1}, s{sT1}, 2
        s_add_u32 s{sFHO}, s{sFHO}, s{sT1}
        s_add_u32 s{sFHO}, s{sFHO}, {FHB}
        s_lshl_b32 s{sFHA}, s{sMI}, 9
        s_lshr_b32 s{sT1}, s{sJ}, 2
        s_lshl_b32 s{sT1}, s{sT1}, 7
        s_add_u32 s{sFHA}, s{sFHA}, s{sT1}
        s_and_b32 s{sT1}, s{sJ}, 3
        s_lshl_b32 s{sT1}, s{sT1}, 2
        s_add_u32 s{sFHA}, s{sFHA}, s{sT1}
        s_add_u32 s{sFHA}, s{sFHA}, {FH}
        s_lshl_b32 s{sM0}, s{sNT}, 7
        s_mul_i32 s{sWB}, s{sR}, {16 * 896}
        s_add_u32 s{sWB}, s{sWB}, s{sM0}
        s_lshl_b32 s{sM0}, s{sR}, 11
        """)
        return o

    def nonce_get(tag):
        a(f"""
        v_readfirstlane_b32 s{sNONCE}, v{vNON}
        v_lshlrev_b32 v{vT0}, 2, v{vLane}
        v_add_u32 v{vT0}, {CNT}, v{vT0}
        v_mov_b32 v{vT1}, 0
        s_cmp_lg_u32 s{sNONCE}, 0
        s_cbranch_scc1 k1_nonce_ok_{tag}
        """)
        a.label(f"k1_nonce_spin_{tag}")
        a(f"""
        buffer_load_dword v{vNON}, v{vT1}, {sr4(S_DBG)}, 0 offen{SC}
        s_waitcnt vmcnt(0)
        v_readfirstlane_b32 s{sNONCE}, v{vNON}
        s_sleep 4
        s_cmp_eq_u32 s{sNONCE}, 0
        s_cbranch_scc1 k1_nonce_spin_{tag}
        """)
        a.label(f"k1_nonce_ok_{tag}")
        a(f"ds_write_b32 v{vT0}, v{vT1}")

    def pf2():
        return (L(f"""
        s_cmp_lt_u32 s{sPFI}, 784
        s_cselect_b32 s{S_TMP}, s{P_WG}, s{P_WU}
        s_cselect_b32 s{S_TMP+1}, s{P_WG+1}, s{P_WU+1}
        s_cselect_b32 s{sT0}, 0, 784
        s_mov_b32 s{S_TMP+2}, {448 * 1792 * 2}
        s_sub_u32 s{sT0}, s{sPFI}, s{sT0}
        s_lshl_b32 s{sT0}, s{sT0}, 11
        buffer_load_dwordx4 {vr(PFR+8, 4)}, v{vPFL}, {sr4(S_TMP)}, s{sT0} offen offset:128
        """), ("PF",))

    def pf3():
        return (L(f"""
        s_cmp_lt_u32 s{sPFI}, 1568
        s_cselect_b32 s{S_TMP}, s{P_WD}, s{P_WO}
        s_cselect_b32 s{S_TMP+1}, s{P_WD+1}, s{P_WO+1}
        s_cselect_b32 s{sT0}, 0, 1568
        s_cselect_b32 s{S_TMP+2}, s{S_WD+2}, {448 * 448 * 2}
        s_sub_u32 s{sT0}, s{sPFI}, s{sT0}
        s_lshl_b32 s{sT0}, s{sT0}, 10
        buffer_load_dwordx4 {vr(PFR+12, 4)}, v{vL16}, {sr4(S_TMP)}, s{sT0} offen
        """), ("PF",))

    nonce_ld = ([f"v_mov_b32 v{vNON}, 0", f"buffer_load_dword v{vNON}, v{vNON}, {sr4(S_DBG)}, 0 offen{SC}"], ("N",))

    def wpref(i):
        ra = ring_addr(i % 13)
        return [f"s_add_u32 m0, s{sM0}, {ra}", f"s_add_u32 s{sT0}, s{sWB}, {wk_off(i) * 16 * 896}",
                f"buffer_load_dwordx4 v{vDW}, {sr4(S_WD)}, s{sT0} offen lds",
                f"s_add_u32 m0, s{sM0}, {ra + 1024}", f"s_add_u32 s{sT0}, s{sT0}, {8 * 896}",
                f"buffer_load_dwordx4 v{vDW}, {sr4(S_WD)}, s{sT0} offen lds"]

    abase = [0]

    def set_base(nb, regs):
        out = []
        if nb != abase[0]:
            d = nb - abase[0]
            for r in regs:
                out.append(f"v_add_u32 v{r}, {d}, v{r}" if d > 0 else f"v_subrev_u32 v{r}, {-d}, v{r}")
            abase[0] = nb
        return out

    def emit(x):
        if isinstance(x, tuple):
            a(x[1]); vm.add((x[0],))
        else:
            a(x)

    vm = VM()
    cnts = lambda t: {"A": 5, "B": 2}[t[0]] if t[0] in ("A", "B") else vm.q.count(t)
    a(f"""
    s_lshl_b32 s{sT0}, s{sJ}, 7
    v_add_u32 v{vDB0}, s{sT0}, v{vDB0}
    v_mul_u32_u24 v{vDG}, 3584, v{vT0}
    s_lshl_b32 s{sT0}, s{sJ}, 8
    v_add3_u32 v{vDG}, v{vDG}, v{vT3}, s{sT0}
    v_xor_b32 v{vDU}, 32, v{vDG}
    s_mov_b32 s{S_G+2}, {448 * 1792 * 2}
    s_mov_b32 s{S_U+2}, {448 * 1792 * 2}
    s_waitcnt lgkmcnt(0)
    s_mov_b64 s[{S_X}:{S_X+1}], s[{P_X}:{P_X+1}]
    s_mov_b64 s[{S_B0}:{S_B0+1}], s[{P_WQKV}:{P_WQKV+1}]
    s_mov_b64 s[{S_G}:{S_G+1}], s[{P_WG}:{P_WG+1}]
    s_mov_b64 s[{S_U}:{S_U+1}], s[{P_WU}:{P_WU+1}]
    """)

    def fA(st):
        b = (st % 4) * SLOT
        g = [dma(sMX, b, vDX0, S_X, st * 128), dma(sMX, b + 1024, vDX1, S_X, st * 128),
             dma(sMB, b, vDB0, S_B0, st * 64 * 2688), dma(sMB, b + 8192, vDG, S_G, st * 64 * 3584),
             dma(sMB, b + 16384, vDU, S_U, st * 64 * 3584)]
        return [(x, ("A", st)) for x in g]

    def bslot(sb):
        return ((3 + sb // 2) % 4) * SLOT + (sb % 2) * 16384

    def fB(sb):
        b = bslot(sb) - 16384
        g = [dma(sMB, b, vDG, S_G, sb * 64 * 3584 + 128), dma(sMB, b + 8192, vDU, S_U, sb * 64 * 3584 + 128)]
        return [(x, ("B", sb)) for x in g]

    for g in fA(0):
        emit_group(g)
    a("s_barrier")
    if PFPOS: pf1("f")
    for g in fA(1):
        emit_group(g)
    common_setup2("f")
    a(f"""
    v_lshl_add_u32 v{vAW+1}, v{vN}, 13, v{vT3}
    v_add_u32 v{vAW+1}, {16384 + 8192}, v{vAW+1}
    v_xor_b32 v{vAW+2}, 32, v{vAW+1}
    s_cmp_ge_u32 s{sJ}, 7
    s_cselect_b32 s{sT1}, {KF - 7 * 4096}, {QF}
    s_cselect_b32 s{sSC}, 1.0, {f32bits(28 ** -0.5 * LOG2E):#x}
    s_lshl_b32 s{sT2}, s{sJ}, 12
    s_add_u32 s{sT1}, s{sT1}, s{sT2}
    s_lshl_b32 s{sT2}, s{sGRP}, 11
    s_add_u32 s{sT1}, s{sT1}, s{sT2}
    s_mul_i32 s{sQKO}, s{sTILE}, {TQ}
    s_add_u32 s{sQKO}, s{sQKO}, s{sT1}
    s_mul_i32 s{sHOFF}, s{sTILE}, 112
    s_lshl_b32 s{sT1}, s{sJ}, 3
    s_add_u32 s{sHOFF}, s{sHOFF}, s{sT1}
    s_lshl_b32 s{sT1}, s{sGRP}, 1
    s_add_u32 s{sHOFF}, s{sHOFF}, s{sT1}
    s_lshl_b32 s{sHOFF}, s{sHOFF}, 10
    s_add_u32 s{sHOFF}, s{sHOFF}, {HF}
    s_add_u32 s{sHOFF2}, s{sHOFF}, 4096
    """)
    WA = [WF, WF + 12, ACC + 48]
    NB = 4
    WB = [WF + 24, WF + 16, WF + 8, WF]

    def readsA(ks):
        st, s = ks // 4, ks % 4
        slot = st % 4
        out = set_base((slot // 2) * 2 * SLOT, [vAX, vAX+1, vAX+2, vAX+3, vAW, vAW+1, vAW+2])
        off = (slot % 2) * SLOT
        f = WA[ks % 3]
        out.append(f"ds_read_b128 {vr(X+4*ks, 4)}, v{vAX+s} offset:{off}")
        for t in range(3):
            for q in range(2):
                out.append(f"ds_read_b64_tr_b16 {vr(f+4*t+2*q, 2)}, v{vAW+t} offset:{off + (16*s + 4*q) * 128}")
        return out

    def readsB(ks):
        sb, s = ks // 4, ks % 4
        b = bslot(sb)
        f = WB[ks % NB]
        b32 = b - b % 32768
        off = b - b32
        out = set_base(b32 - 24576, [vAW+1, vAW+2])
        for t in range(2):
            for q in range(2):
                out.append(f"ds_read_b64_tr_b16 {vr(f+4*t+2*q, 2)}, v{vAW+1+t} offset:{off + (16*s + 4*q) * 128}")
        return out

    def epi_ffn(acc, ko, dst, t):
        g, u = acc, acc + 8
        o = []
        for i in range(8):
            o.append(f"v_mul_f32 v{t+i}, s{sNL2E}, v{g+i}")
        for i in range(8):
            o.append(f"v_exp_f32 v{t+i}, v{t+i}")
        for i in range(8):
            o.append(f"v_add_f32 v{t+i}, 1.0, v{t+i}")
        for i in range(8):
            o.append(f"v_rcp_f32 v{t+i}, v{t+i}")
        for i in range(8):
            o.append(f"v_mul_f32 v{g+i}, v{g+i}, v{t+i}")
        for i in range(8):
            o.append(f"v_mul_f32 v{u+i}, v{u+i}, v{g+i}")
        for i in range(4):
            o.append(f"v_cvt_pk_bf16_f32 v{dst+i}, v{u+2*i}, v{u+2*i+1}")
        so, off = (sHOFF, ko) if ko < 4 else (sHOFF2, ko - 4)
        o.append(("H", f"buffer_store_dwordx4 {vr(dst, 4)}, v{vL16}, {sr4(S_WS)}, s{so} offen offset:{1024*off}{SC}"))
        return o

    def epi_qk():
        o = []
        for i in range(8):
            o.append(f"v_mul_f32 v{ACC+2*i}, s{sSC}, v{ACC+2*i}")
            o.append(f"v_mul_f32 v{ACC+2*i+1}, s{sSC}, v{ACC+2*i+1}")
            o.append(f"v_cvt_pk_bf16_f32 v{ACC+i}, v{ACC+2*i}, v{ACC+2*i+1}")
        o.append("s_nop 1")
        for hh in range(2):
            b = ACC + 4 * hh
            o.append(f"v_permlane32_swap_b32 v{b}, v{b+2}")
            o.append(f"v_permlane32_swap_b32 v{b+1}, v{b+3}")
            o.append(("QK", f"buffer_store_dwordx4 {vr(b, 4)}, v{vL16}, {sr4(S_WS)}, s{sQKO} offen offset:{1024*hh}{SC}"))
        return o

    abase[0] = 0
    a(f"s_waitcnt vmcnt({vm.wait({('A', 0)}, cnts)})\ns_barrier")
    stamp(a, "p1_first")
    for ks in range(2):
        for r in readsA(ks):
            a(r)
    pend = fA(2) + fA(3)
    vFQf = vST
    fillA = flag_addr(False, vFLA, vFQf)
    for ks in range(28):
        st, s = ks // 4, ks % 4
        f = WA[ks % 3]
        m = [f"{MFMA} {vr(ACC+16*t, 16)}, {vr(f+4*t, 4)}, {vr(X+4*ks, 4)}, {'0' if ks == 0 else vr(ACC+16*t, 16)}" for t in range(3)]
        if s == 2:
            need = {("A", st + 1)} if st < 6 else {("B", 0), ("B", 1), ("B", 2), ("B", 3), ("N",)}
            a(f"s_waitcnt vmcnt({vm.wait(need, cnts)}) lgkmcnt(0)")
            if st == 6:
                nonce_get("f")
            a("s_barrier")
            stamp(a, f"p1_a{st}")
            if st + 4 <= 6:
                pend += fA(st + 4)
            else:
                i0 = 2 * (st - 3)
                pend += fB(i0) + (fB(i0 + 1) if i0 + 1 < 7 else [])
            if st == 2:
                pend.append(nonce_ld)
            if "nopf" not in OPT and st == PF2_ST and PF_EARLY < 1: pend.append(pf2())
            if "nopf" not in OPT and st == PF3_ST and PF_EARLY < 2: pend.append(pf3())
        elif ks < 27:
            a("s_waitcnt lgkmcnt(7)")
        else:
            a("s_waitcnt lgkmcnt(4)")
        r = readsA(ks + 2) if ks + 2 < 28 else readsB(ks + 2 - 28)
        k = len(r) - 4 if ks + 2 < 28 else len(r) - 2
        a(m[0])
        for x in r[:k]:
            a(x)
        a(m[1])
        for x in r[k:]:
            a(x)
        a(m[2])
        if ks >= 16:
            assert vm.q.count(("A", 6)) == 5
            for _ in range(7):
                if fillA: a(fillA.pop(0))
        nd = 2 if (len(pend) > 4 or st < 1) else 1
        for _ in range(nd):
            if pend:
                emit_group(pend.pop(0))
    assert not fillA
    stamp(a, "p1_aend")
    for x in readsB(2):
        a(x)
    ea, eb = epi_ffn(ACC + 16, 0, X + 16, X), epi_ffn(ACC + 32, 1, X + 20, X + 8)
    fillq = ["s_nop 3"] + epi_qk()
    fill = ea + eb
    wq = [0, 1, 2, 3, 4, 5, 6]
    sWH, sMH2 = sMX, sOK
    for ks in range(28):
        f = WB[ks % NB]
        m = [f"{MFMA} {vr(ACC+48+16*t, 16)}, {vr(f+4*t, 4)}, {vr(X+4*ks, 4)}, {'0' if ks == 0 else vr(ACC+48+16*t, 16)}" for t in range(2)]
        nxt = ks + NB - 1
        if ks == QKB:
            need = {5: {("B", 2), ("B", 3), ("N",)}, QKB: {("B", 4), ("B", 5), ("B", 6), ("QK",)}, 17: set()}[ks]
            if ks == QKB: assert vm.q.count(("QK",)) == 2 and QKB <= 13
            if need: a(f"s_waitcnt vmcnt({vm.wait(need, cnts)})")
            a("s_barrier")
            stamp(a, {5: "p1_b2", QKB: "p1_b4", 17: "p1_b5"}[ks])
            if ks == QKB:
                a(f"""
                s_cmp_lg_u32 s{sW}, 7
                s_cbranch_scc1 k1_noflag_f
                s_mov_b32 s{sT0}, {FQ}
                buffer_store_dword v{vNON}, v{vFQf}, {sr4(S_WS)}, s{sT0} offen{SC}
                """)
                a.label("k1_noflag_f")
        stamp(a, f"pb{ks}")
        a(f"s_waitcnt lgkmcnt({min(NB - 2, 27 - ks) * 4})")
        r = readsB(nxt) if nxt < 28 else []

        def dofill():
            if ks < 1: return
            if fillq:
                for _ in range(5):
                    if fillq: emit(fillq.pop(0))
            else:
                for _ in range(FPER):
                    if fill and isinstance(fill[0], tuple) and ks < HA_ST and len(fill) > 1:
                        fill[0], fill[1] = fill[1], fill[0]
                    if fill and not (isinstance(fill[0], tuple) and ks < HA_ST): emit(fill.pop(0))
        a(m[0])
        for x in r[:len(r) - 2]:
            a(x)
        if pend:
            emit_group(pend.pop(0))
        dofill()
        a(m[1])
        for x in r[len(r) - 2:]:
            a(x)
        dofill()
        if wq and ks >= WP_ST and (ring_addr(wq[0]) < 122880 or ks >= QKB) and not pend:
            i = wq.pop(0)
            if i == 0:
                a(f"""
                s_mul_i32 s{sWH}, s{sGRP}, {8 * 896}
                s_add_u32 s{sWH}, s{sWH}, s{sWB}
                s_cmp_ge_u32 s{sI32}, 28
                s_cselect_b32 s{sWH}, {OOB}, s{sWH}
                s_lshl_b32 s{sMH2}, s{sGRP}, 10
                s_add_u32 s{sMH2}, s{sMH2}, s{sM0}
                """)
            a(f"""
            s_add_u32 m0, s{sMH2}, {ring_addr(i)}
            s_add_u32 s{sT0}, s{sWH}, {wk_off(i) * 16 * 896}
            buffer_load_dwordx4 v{vDW}, {sr4(S_WD)}, s{sT0} offen lds
            """)
            vm.add(("WP",))
        if ks == EARLY_P:
            a(f"""
            s_cmp_lg_u32 s{sW}, 0
            s_cbranch_scc1 k1_nopoll
            buffer_load_dword v{vPOL}, v{vFLA}, {sr4(S_WS)}, s{sFQB} offen{SC}
            buffer_load_dword v{vPOL+1}, v{vFLA+1}, {sr4(S_WS)}, s{sFQB} offen{SC}
            """)
            a.label("k1_nopoll")
    assert not fill and not pend and not wq
    stamp(a, "pb28")
    a("s_nop 7\ns_nop 3")
    stamp(a, "p1_bend")
    e0, e1 = epi_ffn(ACC + 48, 4, HBR, X + 32), epi_ffn(ACC + 64, 5, HBR + 4, X + 40)
    ev = e0[:-1] + e1[:-1]
    for x in ev[:FA_AT]:
        a(x)
    ev = ev[FA_AT:]
    a(f"""
    v_mov_b32 v{vT0}, {CNT + 32}
    v_mov_b32 v{vT1}, 1
    s_waitcnt vmcnt(0)
    s_mov_b64 exec, 1
    ds_add_rtn_u32 v{vT1}, v{vT0}, v{vT1}
    s_mov_b64 exec, -1
    s_waitcnt lgkmcnt(0)
    v_readfirstlane_b32 s{sT0}, v{vT1}
    s_cmp_lg_u32 s{sT0}, 7
    s_cbranch_scc1 k1_nofa
    """)
    a(flag1(a, sFHA))
    a.label("k1_nofa")
    a(f"""
    s_cmp_ge_u32 s{sW}, 4
    s_cbranch_scc1 k1_epi
    s_cmp_lg_u32 s{sW}, 0
    s_cbranch_scc1 k1_w123
    """)
    fq_eval(a)
    lds_set(a, 4, f"s{sT0}", vT0)
    a(f"""
    s_bitcmp1_b32 s{sT0}, 0
    s_cbranch_scc1 k1_early
    """)
    fq_issue(a)
    a("s_branch k1_epi")
    a.label("k1_w123")
    lds_wait(a, 4, vT0, "ne0", 1)
    a(f"s_bitcmp1_b32 s{sT0}, 0\ns_cbranch_scc0 k1_epi")
    a.label("k1_early")
    stamp(a, "x_go")
    o1, o2, _, flat, _ = att_loads()
    for x in flat(o1):
        a(x)
    a(f"s_bitcmp1_b32 s{sOK}, 1\ns_cbranch_scc1 k1_rp\ns_cmp_lg_u32 s{sW}, 0\ns_cbranch_scc1 k1_rp")
    fq_issue(a)
    a.label("k1_rp")
    ev2 = list(ev)
    step = len(ev2) // len(o2)
    for x in o2:
        for _ in range(step):
            a(ev2.pop(0))
        for y in flat([x]):
            a(y)
    for x in ev2:
        a(x)
    stamp(a, "p1_end")
    a("s_branch att_main")
    a.label("k1_epi")
    for x in ev:
        a(x)
    stamp(a, "p1_end")
    a(f"""
    s_cmp_ge_u32 s{sW}, 4
    s_cbranch_scc1 gemm_role_f
    s_cmp_lg_u32 s{sW}, 0
    s_cbranch_scc1 aq_lw
    s_mov_b32 s{sSPIN}, {SPIN_MAX}
    s_branch aq_chk
    """)
    a.label("gemm_role_f")
    lds_wait(a, 32, vT0, "eq8", 1)
    a("s_branch gemm_role2")

    a.label("k1_v")
    vm = VM()
    cntv = lambda t: {"A": 5, "B": 1}[t[0]] if t[0] in ("A", "B") else vm.q.count(t)
    GWL = CNT + 1024
    a(f"""
    v_add_u32 v{vDU}, {(896 + 192) * 2}, v{vDB0}
    s_cmp_eq_u32 s{sJ}, 14
    s_cselect_b32 s{sT0}, 0, 512
    s_add_u32 s{sT0}, s{sT0}, {896 * 2}
    v_add_u32 v{vDB0}, s{sT0}, v{vDB0}
    s_mov_b32 s{S_U+2}, {448 * 2}
    s_waitcnt lgkmcnt(0)
    s_mov_b64 s[{S_X}:{S_X+1}], s[{P_X}:{P_X+1}]
    s_mov_b64 s[{S_B0}:{S_B0+1}], s[{P_WQKV}:{P_WQKV+1}]
    s_mov_b64 s[{S_U}:{S_U+1}], s[{P_GW}:{P_GW+1}]
    """)

    def vA(st):
        b = (st % 4) * SLOT
        g = [dma(sMX, b, vDX0, S_X, st * 128), dma(sMX, b + 1024, vDX1, S_X, st * 128)]
        for bi in range(3):
            g.append(dma(sMB, b + 8192 * bi, vDB0, S_B0, st * 64 * 2688 + 128 * bi))
        return [(x, ("A", st)) for x in g]

    def vbslot(sb):
        return 3 * SLOT + sb * 8192 if sb < 4 else (sb - 4) * 8192

    def vB(sb):
        return [(dma(sMB, vbslot(sb) - 16384, vDU, S_B0, sb * 64 * 2688), ("B", sb))]

    gw_ld = ([f"s_mov_b32 m0, {GWL}", "s_nop 0", f"buffer_load_dwordx4 v{vL16}, {sr4(S_U)}, 0 offen lds"], ("GW",))

    for g in vA(0):
        emit_group(g)
    a("s_barrier")
    if PFPOS: pf1("v")
    for g in vA(1):
        emit_group(g)
    common_setup2("v")
    vAZ = vAW + 3
    a(f"""
    v_add_u32 v{vAW+1}, 8192, v{vAW}
    v_add_u32 v{vAW+2}, 16384, v{vAW}
    s_sub_u32 s{sT1}, s{sJ}, 14
    s_lshl_b32 s{sT1}, s{sT1}, 6
    v_xor_b32 v{vAZ}, s{sT1}, v{vAW}
    v_lshlrev_b32 v{vST+1}, 4, v{vT1}
    v_add_u32 v{vST+1}, {GWL}, v{vST+1}
    s_cmp_eq_u32 s{sJ}, 14
    s_cselect_b32 s{sT1}, 0, 4096
    s_lshl_b32 s{sT2}, s{sGRP}, 9
    s_add_u32 s{sT1}, s{sT1}, s{sT2}
    s_mul_i32 s{sHOFF}, s{sTILE}, {TQ}
    s_add_u32 s{sHOFF}, s{sHOFF}, s{sT1}
    s_add_u32 s{sHOFF}, s{sHOFF}, {VF}
    s_add_u32 s{sHOFF2}, s{sHOFF}, 14336
    v_mul_u32_u24 v{vST}, {7168 - 512}, v{vT1}
    v_add_u32 v{vST}, v{vST}, v{vL16}
    """)

    def readsVA(ks):
        st, s = ks // 4, ks % 4
        slot = st % 4
        out = set_base((slot // 2) * 2 * SLOT, [vAX, vAX+1, vAX+2, vAX+3, vAW, vAW+1, vAW+2, vAZ])
        off = (slot % 2) * SLOT
        f = WA[ks % 3]
        out.append(f"ds_read_b128 {vr(X+4*ks, 4)}, v{vAX+s} offset:{off}")
        for t in range(3):
            for q in range(2):
                out.append(f"ds_read_b64_tr_b16 {vr(f+4*t+2*q, 2)}, v{vAW+t} offset:{off + (16*s + 4*q) * 128}")
        return out

    NBV = 6
    WBV = [WF + 24, WF + 28, WF + 16, WF + 20, WF + 12, WF + 8]

    def readsVB(ks, z):
        sb, s = ks // 4, ks % 4
        f = WBV[ks % NBV]
        if z:
            return [f"ds_read_b128 {vr(f, 4)}, v{vST+1} offset:{32*ks}"]
        b = vbslot(sb)
        nb = (3 * SLOT if sb < 4 else 0)
        out = set_base(nb - 16384, [vAZ])
        off = b - nb
        for q in range(2):
            out.append(f"ds_read_b64_tr_b16 {vr(f+2*q, 2)}, v{vAZ} offset:{off + (16*s + 4*q) * 128}")
        return out

    def epi_v(acc, bi):
        o = [f"v_cvt_pk_bf16_f32 v{acc+i}, v{acc+2*i}, v{acc+2*i+1}" for i in range(8)]
        o.append(f"buffer_store_dwordx4 {vr(acc, 4)}, v{vST}, {sr4(S_WS)}, s{sHOFF} offen offset:{1024*bi}{SC}")
        o.append(f"buffer_store_dwordx4 {vr(acc+4, 4)}, v{vST}, {sr4(S_WS)}, s{sHOFF2} offen offset:{1024*bi}{SC}")
        return o

    abase[0] = 0
    a(f"s_waitcnt vmcnt({vm.wait({('A', 0)}, cntv)})\ns_barrier")
    stamp(a, "p1_first")
    for ks in range(2):
        for r in readsVA(ks):
            a(r)
    pend = vA(2) + vA(3)
    fillA = flag_addr(True, vFLA, vDG)
    for ks in range(28):
        st, s = ks // 4, ks % 4
        f = WA[ks % 3]
        m = [f"{MFMA} {vr(ACC+16*t, 16)}, {vr(X+4*ks, 4)}, {vr(f+4*t, 4)}, {'0' if ks == 0 else vr(ACC+16*t, 16)}" for t in range(3)]
        if s == 2:
            need = {("A", st + 1)} if st < 6 else {("B", x) for x in range(7)} | {("N",), ("GW",)}
            a(f"s_waitcnt vmcnt({vm.wait(need, cntv)}) lgkmcnt(0)")
            if st == 6:
                nonce_get("v")
            a("s_barrier")
            if st + 4 <= 6:
                pend += vA(st + 4)
            elif st == 3:
                pend += vB(0) + vB(1) + vB(2) + vB(3)
            elif st == 4:
                pend += vB(4) + vB(5) + vB(6) + [gw_ld]
            if st == 2:
                pend.append(nonce_ld)
            if "nopf" not in OPT and st == PF2_ST and PF_EARLY < 1: pend.append(pf2())
            if "nopf" not in OPT and st == PF3_ST and PF_EARLY < 2: pend.append(pf3())
        elif ks < 27:
            a("s_waitcnt lgkmcnt(7)")
        r = readsVA(ks + 2) if ks + 2 < 28 else []
        k = max(len(r) - 4, 0)
        a(m[0])
        for x in r[:k]:
            a(x)
        a(m[1])
        for x in r[k:]:
            a(x)
        a(m[2])
        if ks >= 16:
            assert vm.q.count(("A", 6)) == 5
            for _ in range(7):
                if fillA: a(fillA.pop(0))
        nd = 2 if (len(pend) > 4 or st < 1) else 1
        for _ in range(nd):
            if pend:
                emit_group(pend.pop(0))
    assert not fillA and not pend
    stamp(a, "p1_aend")
    VB = ACC + 48

    def passVB(z, fill):
        nrd = 1 if z else 2
        for ks in range(NBV - 1):
            for x in readsVB(ks, z):
                a(x)
        for ks in range(28):
            f = WBV[ks % NBV]
            c = vr(VB, 16)
            ops = f"{vr(f, 4)}, {vr(X+4*ks, 4)}" if z else f"{vr(X+4*ks, 4)}, {vr(f, 4)}"
            a(f"s_waitcnt lgkmcnt({min(NBV - 2, 27 - ks) * nrd})")
            a(f"{MFMA} {c}, {ops}, {'0' if ks == 0 else c}")
            if ks + NBV - 1 < 28:
                for x in readsVB(ks + NBV - 1, z):
                    a(x)
            for _ in range(3):
                if fill: a(fill.pop(0))
        assert not fill

    a(f"s_cmp_eq_u32 s{sGRP}, 1\ns_cbranch_scc1 k1_vg1")
    passVB(False, ["s_nop 1"] + epi_v(ACC, 0) + epi_v(ACC + 16, 1) + epi_v(ACC + 32, 2))
    a(f"""
    s_mul_i32 s{sHOFF}, s{sTILE}, {TQ}
    s_lshl_b32 s{sT1}, s{sJ}, 9
    s_add_u32 s{sHOFF}, s{sHOFF}, s{sT1}
    s_add_u32 s{sHOFF}, s{sHOFF}, {VF + 192 * 16 - 14 * 512}
    s_add_u32 s{sHOFF2}, s{sHOFF}, 14336
    s_nop 7
    """)
    for x in epi_v(VB, 0):
        a(x)
    stamp(a, "p1_bend")
    a(f"""
    s_waitcnt vmcnt(0)
    s_barrier
    """)
    stamp(a, "p1_end")
    a(f"""
    s_cmp_lg_u32 s{sW}, 3
    s_cbranch_scc1 k1_noflag_v
    s_mov_b32 s{sT0}, {FQ}
    buffer_store_dword v{vNON}, v{vDG}, {sr4(S_WS)}, s{sT0} offen{SC}
    """)
    a(flag1(a, sFHA))
    a.label("k1_noflag_v")
    a("s_branch att_spin")
    a.label("k1_vg1")
    a("s_nop 7")
    for x in epi_v(ACC, 0) + epi_v(ACC + 16, 1) + epi_v(ACC + 32, 2):
        a(x)
    stamp(a, "p1_bend")
    a(f"""
    s_waitcnt vmcnt(0)
    s_barrier
    """)
    stamp(a, "p1_end")
    a(f"s_mov_b32 s{sHOFF2}, {OOB}\ns_cmp_eq_u32 s{sJ}, 14\ns_cbranch_scc1 gemm_role")
    passVB(True, [])
    t = WF
    a(f"""
    s_nop 7
    s_nop 3
    v_mul_f32 v{t}, s{sNL2E}, v{VB}
    v_exp_f32 v{t}, v{t}
    v_and_b32 v{t+1}, 31, v{vLane}
    v_add_f32 v{t}, 1.0, v{t}
    v_rcp_f32 v{t}, v{t}
    v_lshlrev_b32 v{t+1}, 2, v{t+1}
    s_lshl_b32 s{sT0}, s{sTILE}, 7
    s_add_u32 s{sT0}, s{sT0}, {GF}
    buffer_store_dword v{t}, v{t+1}, {sr4(S_WS)}, s{sT0} offen{SC}
    s_waitcnt vmcnt(0)
    """)
    a.label("gemm_role")
    for i in range(7):
        for x in wpref(i):
            a(x)
    a.label("gemm_role2")
    gen_gemm(a, wpref)
    gen_attention(a)
    a.label("k_end")
    a("s_endpgm")
    return a.text()


vAWr = 16
RB = [0, 98304]


def wtr_setup(a):
    a(f"""
    v_bfe_u32 v{vT0}, v{vLane}, 4, 1
    v_bfe_u32 v{vT1}, v{vLane}, 2, 2
    v_and_b32 v{vT2}, 2, v{vT1}
    v_xor_b32 v{vT2}, v{vT2}, v{vT0}
    s_and_b32 s{sT0}, s{sKQ}, 1
    s_lshl_b32 s{sT0}, s{sT0}, 1
    v_xor_b32 v{vT2}, s{sT0}, v{vT2}
    v_lshrrev_b32 v{vT3}, 5, v{vLane}
    v_lshl_add_u32 v{vT3}, v{vT3}, 2, v{vT1}
    v_lshlrev_b32 v{vT3}, 7, v{vT3}
    v_lshl_add_u32 v{vT3}, v{vT2}, 5, v{vT3}
    v_and_b32 v{vT2}, 3, v{vLane}
    v_lshl_add_u32 v{vT3}, v{vT2}, 3, v{vT3}
    v_add_u32 v{vAWr}, s{sM0}, v{vT3}
    v_xor_b32 v{vAWr+1}, 64, v{vAWr}
    v_add_u32 v{vAWr+2}, {RB[1]}, v{vAWr}
    v_add_u32 v{vAWr+3}, {RB[1]}, v{vAWr+1}
    v_mov_b32 v{vAWr+4}, v{vT3}
    """)


def wtr_reads(slot, dst):
    ra = ring_addr(slot)
    bi = max(i for i in range(2) if RB[i] <= ra)
    out = []
    for T in range(2):
        for q in range(2):
            out.append(f"ds_read_b64_tr_b16 {vr(dst+4*T+2*q, 2)}, v{vAWr+2*bi+T} offset:{ra - RB[bi] + q*1024}")
    return out


def bcast_poll(a, tag, leader, addrs, soff, vtmp, sleep, ldsoff, pre=None, lsleep=2, skip_if_set=False):
    if skip_if_set:
        a(f"""
        v_mov_b32 v{vT0}, {CNT + ldsoff}
        ds_read_b32 v{vT1}, v{vT0}
        s_waitcnt lgkmcnt(0)
        v_readfirstlane_b32 s{sT0}, v{vT1}
        s_cmp_eq_u32 s{sT0}, 1
        s_cbranch_scc1 {tag}_go
        """)
    a(f"s_cmp_lg_u32 s{sW}, {leader}\ns_cbranch_scc1 {tag}_lw")
    if pre:
        pre()
    poll(a, addrs, soff, vtmp, sleep)
    a.label(f"{tag}_ok")
    lds_set(a, ldsoff, 1, vT0)
    a(f"s_branch {tag}_go")
    a.label(f"{tag}_lw")
    lds_wait(a, ldsoff, vT0, "eq1", lsleep)
    a.label(f"{tag}_go")


def gen_gemm(a, wpref):
    ACC = 64
    ACT = 128
    WFB = [32, 40]
    vA0, vA1, vG0, vFl, vFl2, vMB = 21, 22, 23, 25, 24, 26
    sA0, sB0w, sFH2, sMO2, sDONE, sNEW, sH = 45, 46, 47, 48, 49, 50, 52
    DA = GDA
    stamp(a, "x_role")
    wtr_setup(a)
    srd(a, S_WO, P_WO, 448 * 448 * 2)
    srd(a, S_OUT, P_OUT, 2048 * 448 * 2)
    a(f"""
    s_lshr_b32 s{sMO2}, s{sKQ}, 1
    s_mul_i32 s{sT0}, s{sMO2}, {112 * 1024}
    v_add_u32 v{vA0}, s{sT0}, v{vL16}
    s_sub_u32 s{sT0}, {112 * 1024}, s{sT0}
    v_add_u32 v{vA1}, s{sT0}, v{vL16}
    s_lshr_b32 s{sT1}, s{sMT}, 1
    s_lshl_b32 s{sT1}, s{sT1}, 9
    s_add_u32 s{sT1}, s{sT1}, {FH}
    s_lshl_b32 s{sFH2}, s{sMT}, 10
    s_add_u32 s{sFH2}, s{sFH2}, {FHB}
    s_mul_i32 s{sA0}, s{sMT}, 224
    s_add_u32 s{sA0}, s{sA0}, s{sKQ}
    s_lshl_b32 s{sA0}, s{sA0}, 10
    s_add_u32 s{sA0}, s{sA0}, {HF}
    s_mul_i32 s{sB0w}, s{sKQ}, {112 * 896}
    s_lshl_b32 s{sT0}, s{sNT}, 7
    s_add_u32 s{sB0w}, s{sB0w}, s{sT0}
    v_and_b32 v{vFl}, 0x1ff, v{vFLA}
    v_and_b32 v{vFl2}, 0x3ff, v{vFLA}
    s_add_u32 s{sT2}, s{sM0}, {QX + MBOX}
    v_add_u32 v{vMB}, s{sT2}, v{vL16}
    s_sub_u32 s{sHOFF}, s{sHOFF2}, 2048
    s_cmp_lt_u32 s{sI32}, 28
    s_cbranch_scc1 gemm_has
    """)

    def hb_all():
        lds_wait(a, 36, vT0, "eq4", 1)
        a(f"""
        ds_read_b128 {vr(HBR+8, 4)}, v{vMB}
        ds_read_b128 {vr(HBR+12, 4)}, v{vMB} offset:1024
        """)

    def hb_st():
        return hb_stores() + [f"buffer_store_dwordx4 {vr(HBR+8+4*i, 4)}, v{vL16}, {sr4(S_WS)}, s{sHOFF} offen offset:{1024*i}{SC}" for i in range(2)]
    hb_all()
    a("s_waitcnt lgkmcnt(0)")
    for x in hb_st():
        a(x)
    a("s_waitcnt vmcnt(0)")
    a(flag1(a, sFHO))
    a("s_endpgm")
    a.label("gemm_has")
    a(f"""
    s_cmp_lg_u32 s{sW}, 4
    s_cbranch_scc1 g_noe
    v_mov_b32 v{vT0}, {CNT + 36}
    """)
    a.label("g_el")
    a(f"""
    buffer_load_dword v{vG0}, v{vFl}, {sr4(S_WS)}, s{sT1} offen{SC}
    s_waitcnt vmcnt(0)
    v_cmp_ne_u32 vcc, s{sNONCE}, v{vG0}
    ds_read_b32 v{vT1}, v{vT0}
    s_cmp_eq_u64 vcc, 0
    s_cbranch_scc1 g_eok
    s_waitcnt lgkmcnt(0)
    v_readfirstlane_b32 s{sT0}, v{vT1}
    s_cmp_eq_u32 s{sT0}, 4
    s_cbranch_scc1 g_noe
    s_sleep 2
    s_branch g_el
    """)
    a.label("g_eok")
    a("s_waitcnt lgkmcnt(0)")
    lds_set(a, 8, 1, vT0)
    a.label("g_noe")
    hb_all()
    vm = VM()
    for i in range(0, 7):
        vm.add(("w", i))

    def act_loads(i):
        r = ACT + 8 * (i % DA)
        a(f"""
        s_add_u32 s{sT0}, s{sA0}, {wk_off(i) * 1024}
        buffer_load_dwordx4 {vr(r, 4)}, v{vA0}, {sr4(S_WS)}, s{sT0} offen{SC}
        buffer_load_dwordx4 {vr(r+4, 4)}, v{vA1}, {sr4(S_WS)}, s{sT0} offen{SC}
        """)
        vm.add(("a", i)); vm.add(("a", i))

    def w_loads(i):
        if i < 28:
            for x in wpref(i):
                a(x)
        else:
            ra = ring_addr(wslot(i))
            off = (28 * ((i - 28) // 2) + 16 * ((i - 28) % 2)) * 896
            a(f"""
            s_add_u32 m0, s{sM0}, {ra}
            s_add_u32 s{sT0}, s{sB0w}, {off}
            buffer_load_dwordx4 v{vDW}, {sr4(S_WO)}, s{sT0} offen lds
            s_add_u32 m0, s{sM0}, {ra + 1024}
            s_add_u32 s{sT0}, s{sT0}, {8 * 896}
            buffer_load_dwordx4 v{vDW}, {sr4(S_WO)}, s{sT0} offen lds
            """)
        vm.add(("w", i)); vm.add(("w", i))

    na, nw = 0, 7
    a("s_waitcnt lgkmcnt(0)")
    for x in hb_st():
        a(x); vm.add(("hb",))
    bcast_poll(a, "gA", 4, [vFl], sT1, vG0, SLEEP_H, 8, skip_if_set=True)
    stamp(a, "x_go"); stamp(a, "x_loop")
    for i in range(GPRE):
        act_loads(na); na += 1
    a(f"s_waitcnt vmcnt({vm.wait({('w', 0)})})")
    for x in wtr_reads(0, WFB[0]):
        a(x)
    gotB = False
    for i in range(28):
        need = {("a", i)}
        if i + 1 < 28:
            need.add(("w", i + 1))
        a(f"s_waitcnt vmcnt({vm.wait(need)}) lgkmcnt(0)")
        if i + 1 < 28:
            for x in wtr_reads((i + 1) % 13, WFB[(i + 1) % 2]):
                a(x)
        for mt in range(2):
            for T in range(2):
                c = vr(ACC + 32 * mt + 16 * T, 16)
                a(f"{MFMA} {c}, {vr(WFB[i%2]+4*T, 4)}, {vr(ACT+8*(i%DA)+4*mt, 4)}, {'0' if i == 0 else c}")
        if i == 0:
            a(flag1(a, sFHO))
        if i == GB_AT:
            stamp(a, "g_b0")
            bcast_poll(a, "gB", 4, [vFl2], sFH2, vPOL, SLEEP_H, 12)
            stamp(a, "g_b1")
            gotB = True
            a(f"""
            v_and_b32 v{vT0}, 31, v{vLane}
            v_lshlrev_b32 v{vT0}, 2, v{vT0}
            s_lshl_b32 s{sT1}, s{sMT}, 1
            s_add_u32 s{sT1}, s{sT1}, s{sMO2}
            s_lshl_b32 s{sT1}, s{sT1}, 7
            s_add_u32 s{sT1}, s{sT1}, {GF}
            buffer_load_dword v{vG0}, v{vT0}, {sr4(S_WS)}, s{sT1} offen{SC}
            """)
            vm.add(("g",))
        for _ in range(2):
            if na < 28 and na <= i + DA and (na < 14 or gotB):
                act_loads(na); na += 1
            if nw < 36 and nw <= i + min(13, DA + 1) and (nw < 28 or wslot(nw) + 13 <= i):
                w_loads(nw); nw += 1
    assert na == 28
    while nw < 36:
        w_loads(nw); nw += 1
    stamp(a, "x_lend")
    XS = [0, 1, 6, 7]
    R, AA, SL = 128, ACC + 16, 128
    vX0, vX1, vC1, vOUT, vWa = 26, 27, 28, 30, 29

    def xaddr(reg, x):
        a(f"""
        s_xor_b32 s{sT0}, s{sKQ}, {x}
        s_lshl_b32 s{sT0}, s{sT0}, 11
        v_add_u32 v{reg}, s{sT0}, v{vL16}
        v_add_u32 v{reg+1}, {RB[1]}, v{reg}
        """)

    def xo(i):
        ra = ring_addr(XS[i // 2]) + (i % 2) * 1024
        return (vX0, ra) if ra < RB[1] else (vX1, ra - RB[1])

    def gsync(off, tag):
        a(f"""
        v_mov_b32 v{vC1}, {CNT + off}
        v_mov_b32 v{vT0}, 1
        s_waitcnt vmcnt(0) lgkmcnt(0)
        s_mov_b64 exec, 1
        ds_add_u32 v{vC1}, v{vT0}
        s_mov_b64 exec, -1
        """)
        a.label(tag)
        a(f"""
        ds_read_b32 v{vT0}, v{vC1}
        s_waitcnt lgkmcnt(0)
        v_readfirstlane_b32 s{sT0}, v{vT0}
        s_cmp_eq_u32 s{sT0}, 4
        s_cbranch_scc1 {tag}_d
        s_sleep 1
        s_branch {tag}
        """)
        a.label(f"{tag}_d")

    a("s_setprio 3")
    xaddr(vX0, 0)
    a("s_nop 7")
    for i in range(8):
        r_, o_ = xo(i)
        a(f"ds_write_b128 v{r_}, {vr(ACC+32+4*i, 4)} offset:{o_}")
    xaddr(vX0, 2)
    gsync(16, "gs1")
    for i in range(8):
        r_, o_ = xo(i)
        a(f"ds_read_b128 {vr(R+4*i, 4)}, v{r_} offset:{o_}")
    a("s_waitcnt lgkmcnt(0)")
    for i in range(16, 32):
        a(f"v_add_f32 v{ACC+i}, v{ACC+i}, v{R+i}")
    for i in range(4):
        r_, o_ = xo(i)
        a(f"ds_write_b128 v{r_}, {vr(ACC+16+4*i, 4)} offset:{o_}")
    for i in range(16):
        a(f"v_add_f32 v{ACC+i}, v{ACC+i}, v{R+i}")
    xaddr(vX0, 3)
    gsync(28, "gs2")
    for i in range(4):
        r_, o_ = xo(i)
        a(f"ds_read_b128 {vr(R+4*i, 4)}, v{r_} offset:{o_}")
    a(f"""
    v_sub_f32 v{vT2}, 1.0, v{vG0}
    s_lshl_b32 s{sT1}, s{sMT}, 1
    s_add_u32 s{sT1}, s{sT1}, s{sMO2}
    s_lshl_b32 s{sFH2}, s{sT1}, 9
    s_add_u32 s{sFH2}, s{sFH2}, {FO}
    s_lshl_b32 s{sA0}, s{sT1}, 15
    s_add_u32 s{sA0}, s{sA0}, {OF}
    s_mul_i32 s{sT2}, s{sT1}, {32 * 896}
    s_lshl_b32 s{sT1}, s{sNT}, 7
    s_add_u32 s{sT2}, s{sT2}, s{sT1}
    s_and_b32 s{sT1}, s{sKQ}, 1
    s_lshl_b32 s{sT1}, s{sT1}, 6
    s_add_u32 s{sT2}, s{sT2}, s{sT1}
    v_and_b32 v{vFl}, 31, v{vLane}
    v_mul_u32_u24 v{vOUT}, 896, v{vFl}
    v_lshrrev_b32 v{vT3}, 5, v{vLane}
    v_lshl_add_u32 v{vOUT}, v{vT3}, 4, v{vOUT}
    v_and_b32 v{vFl}, 0x1ff, v{vFLA}
    s_mov_b32 s{sDONE}, 0xffff0000
    s_mov_b32 s{sSPIN}, {SPIN_MAX}
    s_waitcnt lgkmcnt(0)
    """)
    for i in range(16):
        a(f"v_add_f32 v{ACC+i}, v{ACC+i}, v{R+i}")
    for i in range(16):
        a(f"v_mul_f32 v{ACC+i}, v{ACC+i}, v{vT2}")
        a(f"v_mov_b32 v{AA+i}, 0")
    a("s_setprio 1")
    stamp(a, "p3_poll")
    sNB = 53
    a(f"s_mov_b32 s{sNB}, 0\ns_mov_b32 s{sNEW}, 0")
    a.label("p3_poll")
    a(f"""
    buffer_load_dword v{vPOL}, v{vFl}, {sr4(S_WS)}, s{sFH2} offen{SC}
    s_cmp_eq_u32 s{sNB}, 0
    s_cbranch_scc1 p3_chk
    s_waitcnt vmcnt(1) lgkmcnt(0)
    """)
    a.label("p3_run")
    for k in range(8):
        o, w = SL + 16 * k, SL + 16 * k + 8
        a(f"""
        {MFMA} {vr(AA, 16)}, {vr(w, 4)}, {vr(o, 4)}, {vr(AA, 16)}
        {MFMA} {vr(AA, 16)}, {vr(w+4, 4)}, {vr(o+4, 4)}, {vr(AA, 16)}
        """)
        if k < 7:
            a(f"s_cmp_eq_u32 s{sNB}, {k+1}\ns_cbranch_scc1 p3_ran")
    a.label("p3_ran")
    a(f"""
    s_mov_b32 s{sNB}, 0
    s_cmp_eq_u32 s{sDONE}, -1
    s_cbranch_scc1 p3_fin
    """)
    a.label("p3_chk")
    a(f"""
    s_waitcnt vmcnt(0)
    v_cmp_eq_u32 vcc, s{sNONCE}, v{vPOL}
    s_sub_u32 s{sSPIN}, s{sSPIN}, 1
    s_cbranch_scc1 p3_fin
    s_andn2_b32 s{sNEW}, vcc_lo, s{sDONE}
    s_cbranch_scc1 p3_batch
    s_sleep {SLEEP_O}
    s_branch p3_poll
    """)
    a.label("p3_batch")
    for k in range(8):
        o, w = SL + 16 * k, SL + 16 * k + 8
        a(f"""
        s_ff1_i32_b32 s{sH}, s{sNEW}
        s_bitset0_b32 s{sNEW}, s{sH}
        s_bitset1_b32 s{sDONE}, s{sH}
        s_lshl_b32 s{sT0}, s{sH}, 11
        s_add_u32 s{sT0}, s{sT0}, s{sA0}
        buffer_load_dwordx4 {vr(o, 4)}, v{vL16}, {sr4(S_WS)}, s{sT0} offen{SC}
        buffer_load_dwordx4 {vr(o+4, 4)}, v{vL16}, {sr4(S_WS)}, s{sT0} offen offset:1024{SC}
        s_bitcmp1_b32 s{sH}, 1
        s_cselect_b32 s{sT0}, 0, {ring_addr(2)}
        s_and_b32 s{sT1}, s{sH}, 1
        s_lshl_b32 s{sT1}, s{sT1}, 14
        s_add_u32 s{sT0}, s{sT0}, s{sT1}
        s_lshr_b32 s{sT1}, s{sH}, 2
        s_lshl_b32 s{sT1}, s{sT1}, 11
        s_add_u32 s{sT0}, s{sT0}, s{sT1}
        v_add_u32 v{vWa}, s{sT0}, v{vAWr+4}
        ds_read_b64_tr_b16 {vr(w, 2)}, v{vWa}
        ds_read_b64_tr_b16 {vr(w+2, 2)}, v{vWa} offset:1024
        ds_read_b64_tr_b16 {vr(w+4, 2)}, v{vWa} offset:8192
        ds_read_b64_tr_b16 {vr(w+6, 2)}, v{vWa} offset:9216
        s_mov_b32 s{sNB}, {k+1}
        """)
        if k >= 2:
            a("s_waitcnt lgkmcnt(8)")
        if k < 7:
            a(f"s_cmp_eq_u32 s{sNEW}, 0\ns_cbranch_scc1 p3_iss")
    a.label("p3_iss")
    a(f"""
    s_cmp_lg_u32 s{sDONE}, -1
    s_cbranch_scc1 p3_poll
    s_waitcnt vmcnt(0) lgkmcnt(0)
    s_branch p3_run
    """)
    a.label("p3_fin")
    stamp(a, "p3_mfma")
    a("s_nop 7\ns_nop 1")
    t = 96
    for i in range(16):
        a(f"v_fma_f32 v{ACC+i}, v{AA+i}, v{vG0}, v{ACC+i}")
    for i in range(8):
        a(f"v_cvt_pk_bf16_f32 v{t+i}, v{ACC+2*i}, v{ACC+2*i+1}")
    a(f"""
    v_permlane32_swap_b32 v{t}, v{t+2}
    v_permlane32_swap_b32 v{t+1}, v{t+3}
    buffer_store_dwordx4 {vr(t, 4)}, v{vOUT}, {sr4(S_OUT)}, s{sT2} offen
    v_permlane32_swap_b32 v{t+4}, v{t+6}
    v_permlane32_swap_b32 v{t+5}, v{t+7}
    buffer_store_dwordx4 {vr(t+4, 4)}, v{vOUT}, {sr4(S_OUT)}, s{sT2} offen offset:32
    """)
    amp_end(a, 'g')
    if "dbgt" in OPT:
        a(f"""
        s_cmp_ge_u32 s2, 7
        s_cbranch_scc1 k_end
        s_cmp_lg_u32 s{sW}, 4
        s_cbranch_scc1 k_end
        s_memtime s[90:91]
        s_memrealtime s[92:93]
        s_waitcnt lgkmcnt(0)
        s_sub_u32 s90, s90, s86
        s_sub_u32 s92, s92, s88
        v_mov_b32 v4, s90
        v_mov_b32 v5, s92
        s_lshl_b32 s3, s2, 3
        s_add_u32 s3, s3, 8
        buffer_store_dwordx2 v[4:5], v{vF1}, {sr4(S_DBG)}, s3 offen
        """)
    stamp_flush(a)
    a("s_endpgm")


def gen_attention(a):
    Q, O, S, KV, P, TMP = AQ, AO, AS, AKV, AP, ATMP
    vG, vM, vONE = avG, avM, avONE
    a.label("att_spin")
    fq_wait(a, "aq", 0)
    stamp(a, "x_go")
    o1, o2, vm, flat, o3 = att_loads()

    def k_fix(buf):
        return [f"v_cndmask_b32 v{KV+16*buf+6}, v{KV+16*buf+6}, v{vONE}, s[{sME}:{sME+1}]",
                f"v_cndmask_b32 v{KV+16*buf}, v{KV+16*buf}, v{vONE}, s[{sMO}:{sMO+1}]"]

    zer = [f"v_mov_b32 v{O+k}, 0" for k in range(12, 64)]
    for x in flat(o1):
        a(x)
    a(f"s_bitcmp1_b32 s{sOK}, 1\ns_cbranch_scc1 att_rp\ns_cmp_lg_u32 s{sW}, 0\ns_cbranch_scc1 att_rp")
    fq_issue(a)
    a.label("att_rp")
    step = len(zer) // len(o2) + 1
    zz = list(zer)
    for x in o2:
        for _ in range(step):
            if zz: a(zz.pop(0))
        for y in flat([x]):
            a(y)
    a("s_branch att_main2")
    a.label("att_main")
    for x in zer:
        a(x)
    a.label("att_main2")
    stamp(a, "x_main")
    a(f"s_bitcmp1_b32 s{sOK}, 1\ns_cbranch_scc1 att_lv\ns_cmp_lg_u32 s{sW}, 0\ns_cbranch_scc1 att_rd\ns_waitcnt vmcnt(4)")
    fq_eval(a)
    lds_set(a, 4, f"s{sT0}", vT0)
    a(f"s_mov_b32 s{sOK}, s{sT0}\ns_bitcmp1_b32 s{sOK}, 1\ns_cbranch_scc1 att_lv")
    fq_issue(a)
    a("s_branch att_np")
    a.label("att_rd")
    a(f"""
    v_mov_b32 v{vT0}, {CNT + 4}
    ds_read_b32 v{vT1}, v{vT0}
    s_waitcnt lgkmcnt(0)
    v_readfirstlane_b32 s{sOK}, v{vT1}
    s_bitcmp1_b32 s{sOK}, 1
    s_cbranch_scc0 att_np
    """)
    a.label("att_lv")
    for x in o3:
        a(x)
    a.label("att_np")
    a(f"""
    s_setprio 2
    s_lshl_b32 s{sT0}, s{sKQ}, 11
    s_add_u32 s{sT0}, s{sT0}, {QX}
    v_add_u32 v{TMP}, s{sT0}, v{vL16}
    v_subrev_u32 v{TMP+1}, {-MBOX}, v{TMP}
    ds_write_b128 v{TMP+1}, {vr(HBR, 4)}
    ds_write_b128 v{TMP+1}, {vr(HBR+4, 4)} offset:1024
    v_mov_b32 v{vT1}, 0
    s_and_b32 s{sT0}, s{sHEAD}, 1
    s_mov_b32 s{sME}, 0
    s_mov_b32 s{sMO+1}, 0
    s_sub_u32 s{sME+1}, s{sT0}, 1
    s_sub_u32 s{sMO}, 0, s{sT0}
    v_mov_b32 v{vONE}, 0x3f803f80
    v_mov_b32 v{TMP+1}, {CNT + 24}
    v_mov_b32 v{TMP+2}, 1
    s_waitcnt vmcnt({vm.wait({('q',), ('kv', 0, 1)}) + 6})
    s_bitcmp1_b32 s{sOK}, 1
    s_cbranch_scc1 att_w2
    s_waitcnt vmcnt({vm.wait({('q',), ('kv', 0, 1)})})
att_w2:
    v_cndmask_b32 v{Q}, v{Q}, v{vT1}, s[{sMO}:{sMO+1}]
    v_cndmask_b32 v{Q+1}, v{Q+1}, v{vT1}, s[{sMO}:{sMO+1}]
    v_cndmask_b32 v{Q+6}, v{Q+6}, v{vT1}, s[{sME}:{sME+1}]
    v_cndmask_b32 v{Q+7}, v{Q+7}, v{vT1}, s[{sME}:{sME+1}]
    {MFMA} {vr(S[1], 16)}, {vr(KV, 4)}, {vr(Q, 4)}, 0
    s_nop 0
    {MFMA} {vr(S[1], 16)}, {vr(KV+4, 4)}, {vr(Q+4, 4)}, {vr(S[1], 16)}
    """)
    stamp(a, "x_q")
    for x in k_fix(0):
        a(x)
    for k in range(12):
        a(f"v_mov_b32 v{O+k}, 0")
    s0 = S[1]
    a(f"""
    v_max3_f32 v{vM}, v{s0}, v{s0+1}, v{s0+2}
    v_max3_f32 v{vT0}, v{s0+3}, v{s0+4}, v{s0+5}
    v_max3_f32 v{vT2}, v{s0+6}, v{s0+7}, v{s0+8}
    v_max3_f32 v{vT3}, v{s0+9}, v{s0+10}, v{s0+11}
    v_max3_f32 v{vM}, v{vM}, v{s0+12}, v{s0+13}
    v_max3_f32 v{vT0}, v{vT0}, v{s0+14}, v{s0+15}
    v_max3_f32 v{vM}, v{vM}, v{vT2}, v{vT3}
    v_max_f32 v{vM}, v{vM}, v{vT0}
    v_mov_b32 v{vT0}, v{vM}
    s_nop 1
    v_permlane32_swap_b32 v{vM}, v{vT0}
    v_max_f32 v{vM}, v{vM}, v{vT0}
    v_sub_f32 v{vM}, 0, v{vM}
    v_cvt_pk_bf16_f32 v{vT0}, v{vM}, v{vM}
    v_lshlrev_b32 v{vT0}, 16, v{vT0}
    v_sub_f32 v{vT0}, v{vM}, v{vT0}
    v_cvt_pk_bf16_f32 v{vT0}, v{vM}, v{vT0}
    v_cndmask_b32 v{Q}, v{Q}, v{vT0}, s[{sMO}:{sMO+1}]
    v_cndmask_b32 v{Q+6}, v{Q+6}, v{vT0}, s[{sME}:{sME+1}]
    ds_write_b128 v{TMP}, {vr(Q, 4)}
    ds_write_b128 v{TMP}, {vr(Q+4, 4)} offset:1024
    {MFMA} {vr(S[0], 16)}, {vr(KV, 4)}, {vr(Q, 4)}, 0
    {MFMA} {vr(S[0], 16)}, {vr(KV+4, 4)}, {vr(Q+4, 4)}, {vr(S[0], 16)}
    s_waitcnt lgkmcnt(0)
    s_mov_b64 exec, 1
    ds_add_u32 v{TMP+1}, v{TMP+2}
    s_mov_b64 exec, -1
    """)
    a(f"s_bitcmp1_b32 s{sOK}, 1\ns_cbranch_scc1 att_hv")
    fq_wait(a, "av", 1, first_issued=True)
    for x in o3[:-1]:
        a(x)
    a.label("att_hv")
    stamp(a, "x_v")
    a(f"""
    s_mov_b64 exec, 1
    ds_add_u32 v{TMP+1}, v{TMP+2} offset:12
    s_mov_b64 exec, -1
    """)
    for x in kv_adv()[:3]:
        a(x)
    for i in range(4):
        a(f"v_mov_b32 v{P+4+i}, 0\nv_mov_b32 v{KV+16*3+12+i}, v{vONE}\nv_mov_b32 v{KV+16*3+8+i}, v{vONE}")
    for i in range(1, 4):
        a(f"""
        s_add_u32 s{sT0}, s{sKQ}, {i}
        s_and_b32 s{sT0}, s{sT0}, 3
        s_lshl_b32 s{sT0}, s{sT0}, 11
        s_add_u32 s{sT0}, s{sT0}, {QX}
        v_add_u32 v{TMP+2+i}, s{sT0}, v{vL16}
        s_add_u32 s{sT0}, s{sKQ}, {i}
        s_and_b32 s{sT0}, s{sT0}, 3
        s_mul_i32 s{sT0}, s{sT0}, 12288
        s_add_u32 s{sT0}, s{sT0}, {MERGE + (i-1) * 4096}
        v_add_u32 v{TMP+8+i-1}, s{sT0}, v{vL16}
        """)
    a(f"""
    s_mul_i32 s{sT0}, s{sKQ}, 12288
    s_add_u32 s{sT0}, s{sT0}, {MERGE}
    v_add_u32 v{TMP+11}, s{sT0}, v{vL16}
    v_mov_b32 v{TMP+12}, {CNT}
    v_mov_b32 v{TMP+13}, 1
    """)
    stamp(a, "x_qs")
    a.label("att_qsync")
    a(f"""
    ds_read_b32 v{TMP+2}, v{TMP+1}
    s_waitcnt lgkmcnt(0)
    v_cmp_gt_u32 vcc, 4, v{TMP+2}
    s_cbranch_vccnz att_qsync
    """)
    for i in range(1, 4):
        a(f"ds_read_b128 {vr(Q+8*i, 4)}, v{TMP+2+i}\nds_read_b128 {vr(Q+8*i+4, 4)}, v{TMP+2+i} offset:1024")
    a("s_waitcnt vmcnt(2) lgkmcnt(0)")
    a(f"s_mov_b32 s{sIT}, 0")
    stamp(a, "x_loop")
    vMW, vMR, vMC, vM1 = TMP + 8, TMP + 11, TMP + 12, TMP + 13

    def phase(ph, cur, prev, nxt, s_pv2=[], s_qk1=[], s_qk2=[], s_pv1=[], tail=[]):
        sc, sn = S[ph % 2], S[1 - ph % 2]
        e = [f"v_exp_f32 v{sc+i}, v{sc+i}" for i in range(16)]
        c = [f"v_cvt_pk_bf16_f32 v{P+i}, v{sc+2*i}, v{sc+2*i+1}" for i in range(8)]
        pv2 = f"{MFMA} {vr(O+16*prev[1], 16)}, {vr(KV+16*prev[0]+12, 4)}, {vr(P+4, 4)}, {vr(O+16*prev[1], 16)}"
        pv1 = f"{MFMA} {vr(O+16*cur[1], 16)}, {vr(KV+16*cur[0]+8, 4)}, {vr(P, 4)}, {vr(O+16*cur[1], 16)}"
        qk1, qk2 = [], []
        if nxt:
            qk1 = [f"{MFMA} {vr(sn, 16)}, {vr(KV+16*nxt[0], 4)}, {vr(Q+8*nxt[1], 4)}, 0"]
            qk2 = [f"{MFMA} {vr(sn, 16)}, {vr(KV+16*nxt[0]+4, 4)}, {vr(Q+8*nxt[1]+4, 4)}, {vr(sn, 16)}"]
        seq = e[0:2] + [pv2] + s_pv2 + e[2:5] + qk1 + s_qk1 + e[5:9] + c[0:4] + qk2 + s_qk2 + e[9:12] + [pv1] + s_pv1 + e[12:16] + tail + c[4:8]
        for x in seq:
            a(x)

    a.label("att_loop")
    for tb in range(4):
        for q in range(4):
            adv = kv_adv()
            s_pv2, s_qk1, s_qk2, s_pv1, tail = [], [], [], [], []
            s_qk1 += kv_load((tb + 3) % 4, q, (avV0, avV1))
            if q == 0:
                s_pv2.append(adv[3])
                s_qk2.append("s_waitcnt vmcnt(9)")
                s_pv1.append(adv[4])
            if q == 1:
                if tb == 0:
                    s_pv2.append(f"s_cmp_eq_u32 s{sIT}, 3")
                    s_qk2.append(f"s_cselect_b32 s{sKB}, {OOB}, s{sKB}")
                    s_pv1.append(f"s_cselect_b32 s{sVB}, {OOB}, s{sVB}")
                if tb == 3:
                    s_pv1.append(f"s_add_u32 s{sIT}, s{sIT}, 1")
            if q == 2:
                s_pv2.append(f"s_mul_i32 s{sT0}, s{sTI}, {TQ}")
                s_qk2.append(f"s_add_u32 s{sKS}, s{sT0}, s{sKB}")
                s_pv1.append("s_waitcnt vmcnt(9)")
                if tb == 2:
                    s_pv1.append(f"s_cmp_eq_u32 s{sIT}, 3")
                tail = k_fix((tb + 1) % 4)
            if q == 3:
                s_qk2.append(f"s_add_u32 s{sVS}, s{sT0}, s{sVB}")
            phase(4 * tb + q, (tb, q), (tb if q > 0 else (tb - 1) % 4, (q - 1) % 4), (tb if q < 3 else (tb + 1) % 4, (q + 1) % 4),
                  s_pv2, s_qk1, s_qk2, s_pv1, tail)
            if tb == 2 and q == 2:
                a("s_cbranch_scc1 att_peel")
    a("s_branch att_loop")
    a.label("att_peel")

    def mw(i, lo, hi):
        return [f"ds_write_b128 v{vMW+i-1}, {vr(O+16*i+4*k, 4)} offset:{1024*k}" for k in range(lo, hi)]
    sa = L(f"""
    s_lshl_b32 s{sT2}, s{sQB}, 2
    s_add_u32 s{sT2}, s{sT2}, s{sKQ}
    s_lshl_b32 s{sT2}, s{sT2}, 4
    s_add_u32 s{sT2}, s{sT2}, s{sHEAD}
    s_lshl_b32 s{sKB}, s{sT2}, 11
    s_add_u32 s{sKB}, s{sKB}, {OF}
    s_lshr_b32 s{sVB}, s{sT2}, 2
    s_lshl_b32 s{sVB}, s{sVB}, 7
    s_and_b32 s{sT2}, s{sT2}, 3
    s_lshl_b32 s{sT2}, s{sT2}, 2
    s_add_u32 s{sVB}, s{sVB}, s{sT2}
    s_add_u32 s{sVB}, s{sVB}, {FO}
    s_mov_b32 s{sT0}, {f32bits(2.0**-10):#x}
    s_mov_b32 s{sT1}, {f32bits(2.0**100):#x}
    """)
    phase(11, (2, 3), (2, 2), (3, 1), sa[0:1], sa[1:2], sa[2:3], sa[3:4])
    phase(12, (3, 1), (2, 3), (3, 2), sa[4:5], sa[5:6], ["s_waitcnt vmcnt(0)"], sa[6:7])
    phase(13, (3, 2), (3, 1), (3, 3), sa[7:8], sa[8:9], mw(1, 0, 2), mw(1, 2, 4))
    phase(14, (3, 3), (3, 2), (3, 0), sa[9:10], sa[10:11], mw(2, 0, 2), mw(2, 2, 4))
    phase(15, (3, 0), (3, 3), None, sa[11:14], [], ["s_nop 0"] + mw(3, 0, 4), [],
          ["s_waitcnt lgkmcnt(0)", "s_mov_b64 exec, 1", f"ds_add_u32 v{vMC}, v{vM1}", "s_mov_b64 exec, -1"])
    a(f"""
    v_cmp_lt_u32 s[18:19], 31, v{vLane}
    s_nop 0
    {MFMA} {vr(O, 16)}, {vr(KV+16*3+12, 4)}, {vr(P+4, 4)}, {vr(O, 16)}
    """)
    stamp(a, "x_lend")
    a.label("att_msync")
    a(f"""
    ds_read_b32 v{vT2}, v{vMC}
    s_waitcnt lgkmcnt(0)
    v_cmp_gt_u32 vcc, 4, v{vT2}
    s_cbranch_vccnz att_msync
    """)
    stamp(a, "x_msync")
    for i in range(12):
        a(f"ds_read_b128 {vr(O+16+4*i, 4)}, v{vMR} offset:{1024*i}")
    a("s_mov_b64 vcc, s[18:19]")
    for k in range(3):
        a(f"s_waitcnt lgkmcnt({8 - 4*k})")
        for i in range(16):
            a(f"v_add_f32 v{O+i}, v{O+i}, v{O+16+16*k+i}")
    C = O + 16
    a(f"""
    v_mov_b32 v{vT0}, v{O+12}
    v_mov_b32 v{vT1}, v{O+12}
    """)
    for k in range(4):
        a(f"v_mul_f32 v{C+k}, 0, v{O+4*k}")
    a(f"v_permlane32_swap_b32 v{vT0}, v{vT1}")
    for i in range(1, 4):
        for k in range(4):
            a(f"v_fma_f32 v{C+k}, v{O+4*k+i}, 0, v{C+k}")
    a(f"""
    v_rcp_f32 v{vT2}, v{vT1}
    v_add_f32 v{C}, v{C}, v{C+1}
    v_add_f32 v{C+2}, v{C+2}, v{C+3}
    v_add_f32 v{C}, v{C}, v{vT1}
    v_add_f32 v{C}, v{C}, v{C+2}
    v_cmp_le_f32 s[28:29], s{sT0}, v{C}
    v_cmp_ge_f32 s[16:17], s{sT1}, v{C}
    s_and_b64 s[28:29], s[28:29], s[16:17]
    s_cmp_eq_u64 s[28:29], -1
    s_cbranch_scc0 att_fallback
    """)
    a.label("att_final")
    a(f"""
    v_mov_b32 v{vT0}, 0
    """)
    for hh in range(2):
        for i in range(8):
            a(f"v_mul_f32 v{O+8*hh+i}, v{O+8*hh+i}, v{vT2}")
        for i in range(4):
            a(f"v_cvt_pk_bf16_f32 v{TMP+4*hh+i}, v{O+8*hh+2*i}, v{O+8*hh+2*i+1}")
        if hh == 1:
            a(f"v_cndmask_b32 v{TMP+6}, v{TMP+6}, v{vT0}, vcc\nv_cndmask_b32 v{TMP+7}, v{TMP+7}, v{vT0}, vcc")
        a(f"buffer_store_dwordx4 {vr(TMP+4*hh, 4)}, v{vL16}, {sr4(S_WS)}, s{sKB} offen offset:{1024*hh}{SC}")
    stamp(a, "x_ost")
    a("s_waitcnt vmcnt(0)")
    a(flag1(a, sVB))
    stamp(a, "x_b2")
    amp_end(a, 'a')
    stamp_flush(a)
    a("s_endpgm")

    a.label("att_fallback")
    sc = S[0]
    K, V = KV, KV + 8
    vMo, vMn, vAl = TMP, TMP + 1, TMP + 2
    a(f"""
    v_mov_b32 v{vT0}, 0
    v_mov_b32 v{vMo}, 0xff800000
    v_cndmask_b32 v{Q}, v{Q}, v{vT0}, s[{sMO}:{sMO+1}]
    v_cndmask_b32 v{Q+6}, v{Q+6}, v{vT0}, s[{sME}:{sME+1}]
    s_mov_b32 s{sIT}, 0
    s_lshl_b32 s{sKS}, s{sP0}, 9
    s_add_u32 s{sKS}, s{sKS}, {KF}
    s_mul_i32 s{sVS}, s{sHEAD}, 448
    s_add_u32 s{sVS}, s{sVS}, {VF}
    s_waitcnt vmcnt(0)
    """)
    for i in range(16):
        a(f"v_mov_b32 v{O+i}, 0")
    a.label("att_fb_loop")
    a(f"""
    buffer_load_dwordx4 {vr(K, 4)}, v{vL16}, {sr4(S_WS)}, s{sKS} offen{SC}
    buffer_load_dwordx4 {vr(K+4, 4)}, v{vL16}, {sr4(S_WS)}, s{sKS} offen offset:1024{SC}
    s_mov_b64 exec, s[{sVM}:{sVM+1}]
    buffer_load_dwordx4 {vr(V, 4)}, v{avV0}, {sr4(S_WS)}, s{sVS} offen{SC}
    buffer_load_dwordx4 {vr(V+4, 4)}, v{avV1}, {sr4(S_WS)}, s{sVS} offen{SC}
    s_mov_b64 exec, -1
    s_waitcnt vmcnt(0)
    {MFMA} {vr(sc, 16)}, {vr(K, 4)}, {vr(Q, 4)}, 0
    {MFMA} {vr(sc, 16)}, {vr(K+4, 4)}, {vr(Q+4, 4)}, {vr(sc, 16)}
    s_nop 15
    v_max3_f32 v{vMn}, v{vMo}, v{sc}, v{sc+1}
    """)
    for i in range(2, 16, 2):
        a(f"v_max3_f32 v{vMn}, v{vMn}, v{sc+i}, v{sc+i+1}")
    a(f"""
    v_mov_b32 v{vT0}, v{vMn}
    s_nop 1
    v_permlane32_swap_b32 v{vMn}, v{vT0}
    v_max_f32 v{vMn}, v{vMn}, v{vT0}
    v_sub_f32 v{vAl}, v{vMo}, v{vMn}
    v_exp_f32 v{vAl}, v{vAl}
    v_mov_b32 v{vMo}, v{vMn}
    """)
    for i in range(16):
        a(f"v_sub_f32 v{sc+i}, v{sc+i}, v{vMn}")
    for i in range(16):
        a(f"v_exp_f32 v{sc+i}, v{sc+i}")
    for i in range(16):
        a(f"v_mul_f32 v{O+i}, v{O+i}, v{vAl}")
    for i in range(8):
        a(f"v_cvt_pk_bf16_f32 v{P+i}, v{sc+2*i}, v{sc+2*i+1}")
    a(f"""
    s_nop 1
    {MFMA} {vr(O, 16)}, {vr(V, 4)}, {vr(P, 4)}, {vr(O, 16)}
    {MFMA} {vr(O, 16)}, {vr(V+4, 4)}, {vr(P+4, 4)}, {vr(O, 16)}
    s_add_u32 s{sKS}, s{sKS}, {TQ}
    s_add_u32 s{sVS}, s{sVS}, {TQ}
    s_add_u32 s{sIT}, s{sIT}, 1
    s_cmp_lt_u32 s{sIT}, 64
    s_cbranch_scc1 att_fb_loop
    s_nop 15
    v_mov_b32 v{vT0}, v{O+12}
    v_mov_b32 v{vT1}, v{O+12}
    s_nop 1
    v_permlane32_swap_b32 v{vT0}, v{vT1}
    v_rcp_f32 v{vT2}, v{vT1}
    s_nop 0
    s_branch att_final
    """)


DESC = """// Single persistent kernel, 256 workgroups x 8 waves (one per CU), generated by a script.
//           Softmax: exp2(s - m0) with m0 = true row max over one 32-key tile of the row (folded into the QK MFMA);
"""


def build():
    ref = open(f"cdna_kernels/{NAME}.s.ref").read().split("\n")
    hdr = [l for l in ref if l.startswith(";") and "@launch" not in l and "Override launch" not in l and "grid=ceil" not in l]
    body = gen()
    out = "\n".join(hdr) + "\n"
    out += f"; @launch grid=(256,1,1) block=(512,1,1) lds={LDS_BYTES}\n"
    out += '.amdgcn_target "amdgcn-amd-amdhsa--gfx950"\n.text\n'
    out += DESC
    out += f".globl {KNAME}\n.p2align 8\n.type {KNAME},@function\n{KNAME}:\n"
    out += body
    out += f""".section .rodata,"a"
.p2align 6
.amdhsa_kernel {KNAME}
  .amdhsa_next_free_vgpr 256
  .amdhsa_next_free_sgpr 102
  .amdhsa_accum_offset 256
  .amdhsa_group_segment_fixed_size 0
  .amdhsa_kernarg_size 88
  .amdhsa_user_sgpr_count 2
  .amdhsa_user_sgpr_kernarg_segment_ptr 1
  .amdhsa_system_sgpr_workgroup_id_x 1
.end_amdhsa_kernel
"""
    return out


if __name__ == "__main__":
    path = sys.argv[1]
    open(path, "w").write(build())
    print("wrote", path)
```
